```python
import torch

def _softmax(x, axis=-1):
    return torch.softmax(x, dim=axis)
def _gelu(x):
    return torch.nn.functional.gelu(x, approximate="tanh")
def _silu(x):
    return torch.nn.functional.silu(x)
def _sigmoid(x):
    return torch.sigmoid(x)
def _layernorm(x, axis=-1, eps=1e-5):
    m = x.mean(dim=axis, keepdim=True)
    v = x.var(dim=axis, keepdim=True, unbiased=False)
    return (x - m) / torch.sqrt(v + eps)
def _scatter_add(tgt, idx, src, axis=0):
    return tgt.clone().index_add_(axis, idx, src)
def _segment_sum(src, seg, n):
    out = torch.zeros((n,) + src.shape[1:], dtype=src.dtype)
    return out.index_add_(0, seg, src)
def _pad(x, pw):
    flat = tuple(v for pair in reversed(pw) for v in pair)
    return torch.nn.functional.pad(x, flat)

kernel_name = 'standalone__deep_cross_xdeepfm__recsys'

def setup_inputs():

    _w = (lambda a: (lambda t: t.to(torch.bfloat16) if t.is_floating_point() else t)(torch.as_tensor(a)))
    B, F, D, L = 1024, 26, 64, 3
    V = min(1000, 100000)
    Din = F * D
    return {
        "idx": _w((lambda lo, hi, *s: torch.randint(lo, hi, s))(0, V, B, F).to(torch.int64)),
        "table": _w((lambda *s: torch.randn(*s, dtype=torch.bfloat16) * 0.8)(V, D)),
        "ws_cin": _w((lambda *s: torch.randn(*s, dtype=torch.bfloat16) * 0.2)(L, F, F, F) * (1.0 / F)),
        "w_cin_out": _w((lambda *s: torch.randn(*s, dtype=torch.bfloat16) * 0.2)(L * F) * ((L * F) ** -0.5)),
        "w_dnn1": _w((lambda *s: torch.randn(*s, dtype=torch.bfloat16) * 0.8)(Din, Din) * (Din ** -0.5)),
        "b_dnn1": _w((lambda *s: torch.randn(*s, dtype=torch.bfloat16) * 6.4)(Din) * 0.1),
        "w_dnn2": _w((lambda *s: torch.randn(*s, dtype=torch.bfloat16) * 0.2)(Din) * (Din ** -0.5)),
        "b_out": _w((lambda *s: torch.randn(*s, dtype=torch.bfloat16) * 0.4)(1)),
    }

def reference(idx, table, ws_cin, w_cin_out, w_dnn1, b_dnn1, w_dnn2, b_out):
    x0 = table[idx]
    B = x0.shape[0]
    L = ws_cin.shape[0]
    xk = x0
    pooled = []
    for l in range(L):
        xk = torch.einsum('bid,bjd,hij->bhd', xk, x0, ws_cin[l])
        pooled.append(xk.sum(axis=-1))
    p_plus = torch.stack(pooled, axis=1).reshape(B, -1)
    logit_cin = p_plus @ w_cin_out
    h = x0.reshape(B, -1)
    h = _gelu(h @ w_dnn1 + b_dnn1)
    logit_dnn = h @ w_dnn2
    return logit_cin + logit_dnn + b_out
```

```python
import sys, argparse

class Q:
    def __init__(s): s.ops=[]
    def issue(s,name): s.ops.append(name)
    def need(s,name):
        i=len(s.ops)-1-s.ops[::-1].index(name)
        return len(s.ops)-1-i
    def clear(s): s.ops=[]

class G:
    def __init__(s,opt):
        s.L=[]; s.opt=opt; s.nst=0
    def e(s,x): s.L.append("    "+x)
    def lab(s,x): s.L.append(x+":")
    def c(s,x): s.L.append("    ; "+x)

WIMG=0; GRAN=65536; EPOCH=0x50000; STAMP=0x100000; WS_SIZE=0x200000
IDXB=129024
CINW=98304
import math
C1=-2*math.sqrt(2/math.pi)*math.log2(math.e); C2=C1*0.044715
import struct
def f2u(x): return struct.unpack('<I',struct.pack('<f',x))[0]

sWAVE,sXCD,sSLOT,sCB,sRB=3,4,5,7,8
P_IDX,P_TBL,P_CIN,P_WOUT,P_W,P_B1,P_W2,P_BO=16,18,20,22,24,26,28,30
P_OUT,P_DBG,P_WS=32,34,36
S_IDX,S_TBL,S_W,S_WS,S_A,S_B=40,44,48,52,56,60
sSEL_LO,sSEL_HI=64,65
sT=66
sROWIDX=76

def srd(g,d,p,size):
    g.e(f"s_mov_b32 s{d}, s{p}"); g.e(f"s_mov_b32 s{d+1}, s{p+1}")
    g.e(f"s_mov_b32 s{d+2}, {size}"); g.e(f"s_mov_b32 s{d+3}, 0x20000")

def stamp(g,slot):
    if not g.opt.stamps: return
    g.e("s_memrealtime s[12:13]")
    g.e("s_waitcnt lgkmcnt(0)") if g.opt.stamps==2 else None
    g.e(f"s_mov_b32 s{90+slot if False else 15}, s15") if False else None

def pair_of(n,hh):
    if n<169: dlt,m=divmod(n,13)
    else: dlt,m=13,n-169
    r=2*m
    return r,(r+dlt)%26

def build(opt):
    g=G(opt); e=g.e
    ST=opt.stamps
    g.L.append("; @launch grid=(256,1,1) block=(512,1,1) lds=163840")
    g.L.append('.amdgcn_target "amdgcn-amd-amdhsa--gfx950"')
    g.L.append(".text")
    g.L.append(".globl standalone__deep_cross_xdeepfm__recsys_kernel")
    g.L.append(".p2align 8")
    g.L.append(".type standalone__deep_cross_xdeepfm__recsys_kernel,@function")
    g.lab("standalone__deep_cross_xdeepfm__recsys_kernel")
    def st(k):
        if ST: e(f"s_memrealtime s[{STB+2*k}:{STB+2*k+1}]")
    global STB
    STB=76
    e("s_load_dwordx16 s[16:31], s[0:1], 0")
    e("s_load_dwordx4 s[32:35], s[0:1], 64")
    e("s_load_dwordx2 s[36:37], s[0:1], 80")
    if ST: e("s_memrealtime s[10:11]")
    e("s_cmp_ge_u32 s2, 256")
    e("s_cbranch_scc1 L_end")
    e("v_lshrrev_b32 v1, 6, v0")
    e("v_and_b32 v2, 63, v0")
    e(f"v_readfirstlane_b32 s{sWAVE}, v1")
    e(f"s_and_b32 s{sXCD}, s2, 7")
    e(f"s_lshr_b32 s{sSLOT}, s2, 3")
    e(f"s_cmp_ge_u32 s{sSLOT}, 26")
    e("s_cbranch_scc1 L_aux")
    e(f"s_mul_i32 s6, s{sXCD}, 26")
    e(f"s_add_u32 s6, s6, s{sSLOT}")
    e(f"s_lshr_b32 s{sCB}, s6, 3")
    e(f"s_and_b32 s{sRB}, s6, 7")
    e("v_lshrrev_b32 v3, 3, v2")
    e("v_lshrrev_b32 v4, 4, v2")
    e("v_and_b32 v5, 7, v2")
    e("v_xor_b32 v5, v5, v4")
    e(f"s_and_b32 s{sT}, s{sWAVE}, 1")
    e(f"s_lshl_b32 s{sT+1}, s{sT}, 2")
    e(f"v_xor_b32 v5, s{sT+1}, v5")
    e("v_lshlrev_b32 v5, 4, v5")
    e("v_lshl_add_u32 v5, v3, 7, v5")
    e(f"s_lshr_b32 s{sT+2}, s{sWAVE}, 1")
    e(f"s_lshl_b32 s{sT+3}, s{sSLOT}, 1")
    e(f"s_add_u32 s{sT+2}, s{sT+2}, s{sT+3}")
    e(f"s_lshl_b32 s{sT+2}, s{sT+2}, 11")
    e(f"s_lshl_b32 s{sT+3}, s{sT}, 10")
    e(f"s_add_u32 m0, s{sT+2}, s{sT+3}")
    e("v_lshlrev_b32 v6, 2, v0")
    e(f"s_mul_i32 s{sT+4}, s{sRB}, 13312")
    e(f"s_cmp_ge_u32 s{sWAVE}, 4")
    e("s_cbranch_scc1 L_help_pro")

    def table_loads(vm):
        for t in range(16):
            e(f"buffer_load_dwordx4 v5, s[{S_TBL}:{S_TBL+3}], m0 offen lds"); vm.issue(f"tbl{t}")
            if t<15:
                e("s_add_u32 m0, m0, 8192")
                e("s_cmp_ge_u32 m0, 129024")
                e(f"s_cselect_b32 s{sT+5}, 129024, 0")
                e(f"s_sub_u32 m0, m0, s{sT+5}")
                e("s_nop 0")
    def idx_loads(vm,n,vd):
        for m in range(n):
            if m and m%2==0: e(f"s_add_u32 s{sT+4}, s{sT+4}, 4096")
            e(f"buffer_load_dword v{vd+m}, v6, s[{S_IDX}:{S_IDX+3}], s{sT+4} offen offset:{(m%2)*2048}"); vm.issue(f"idx{m}")
    def idx_addr(n,va,t0):
        a,b,c,d=t0,t0+1,t0+2,t0+3
        for m in range(n):
            x=va+m
            e(f"v_add_u32 v{a}, {512*m}, v0")
            e(f"v_mul_u32_u24 v{b}, 2521, v{a}")
            e(f"v_lshrrev_b32 v{b}, 16, v{b}")
            e(f"v_mul_u32_u24 v{c}, 26, v{b}")
            e(f"v_sub_u32 v{a}, v{a}, v{c}")
            e(f"v_and_b32 v{c}, 15, v{b}")
            e(f"v_lshlrev_b32 v{c}, 5, v{c}")
            e(f"v_lshl_add_u32 v{x}, v{a}, 9, v{c}")
            e(f"v_lshrrev_b32 v{c}, 6, v{b}")
            e(f"v_xor_b32 v{c}, v{c}, v{a}")
            e(f"v_and_b32 v{c}, 1, v{c}")
            e(f"v_lshl_add_u32 v{x}, v{c}, 3, v{x}")
            e(f"v_bfe_u32 v{c}, v{b}, 5, 1")
            e(f"v_lshl_add_u32 v{x}, v{c}, 4, v{x}")
            e(f"v_bfe_u32 v{c}, v{b}, 4, 1")
            e(f"v_lshl_add_u32 v{x}, v{c}, 2, v{x}")
            e(f"v_add_u32 v{x}, s{sT+6}, v{x}")
    def idx_store(n,vd,va,t0):
        for m in range(n):
            x=vd+m
            e(f"v_lshlrev_b32 v{t0}, 3, v{x}")
            e(f"v_and_b32 v{t0}, 0x70, v{t0}")
            e(f"v_lshl_or_b32 v{x}, v{x}, 7, v{t0}")
            e(f"ds_write_b32 v{va+m}, v{x}")

    vLANE,vQ=2,4
    vW,vRA,vRB,vC16=1,3,6,7
    AD=8; AF=16; F0=48; RAW=80; ACC=128
    def acc(lt,jj): return ACC+(lt*4+jj)*4
    def Fr(par,jj): return F0+par*16+jj*4
    def raw(d,ee): return RAW+d*16+ee*2
    vm=Q(); lg=Q()
    g.c("---- DNN wave prologue ----")
    e(f"s_lshl_b32 s{sT+7}, s{sWAVE}, 5")
    e(f"v_lshl_add_u32 v7, v4, 3, s{sT+7}")
    e(f"s_movk_i32 s{sT+8}, 3328")
    e(f"v_mul_lo_u32 v7, v7, s{sT+8}")
    e("v_and_b32 v3, 15, v2")
    e("v_lshl_add_u32 v1, v3, 3, v7")
    e(f"s_lshl_b32 s{sT+7}, s{sCB}, 7")
    e(f"v_add_u32 v1, s{sT+7}, v1")
    e(f"v_lshl_add_u32 v7, v4, 5, s{sT+7}")
    e(f"s_mov_b32 s{sSEL_LO}, 0x05040100")
    e(f"s_mov_b32 s{sSEL_HI}, 0x07060302")
    e(f"s_mov_b32 s{sT+6}, {IDXB}")
    e("s_waitcnt lgkmcnt(0)")
    srd(g,S_IDX,P_IDX,106496);
    IV=AF; IA_=AF+8; IT=AF+16
    idx_loads(vm,7,IV)
    srd(g,S_W,P_W,1664*3328)
    sWO=12
    def wloads(j,pairs=range(4)):
        d=j%3
        for i in pairs:
            e(f"s_mov_b32 s{sWO+i}, {j*425984+i*6656}")
            for h in range(2):
                ee=2*i+h
                e(f"buffer_load_dwordx2 v[{raw(d,ee)}:{raw(d,ee)+1}], v{vW}, s[{S_W}:{S_W+3}], s{sWO+i} offen offset:{h*3328}"); vm.issue(f"w{j}_{ee}")
    wloads(0)
    srd(g,S_A,P_B1,3328)
    BI=F0+16
    e(f"buffer_load_dwordx4 v[{BI}:{BI+3}], v7, s[{S_A}:{S_A+3}], 0 offen"); vm.issue("bias0")
    e(f"buffer_load_dwordx4 v[{BI+4}:{BI+7}], v7, s[{S_A}:{S_A+3}], 0 offen offset:16"); vm.issue("bias1")
    srd(g,S_TBL,P_TBL,128000)
    table_loads(vm)
    wloads(1); wloads(2)
    srd(g,S_WS,P_WS,WS_SIZE)
    srd(g,S_B,P_W2,3328)
    idx_addr(7,IA_,IT)
    e(f"s_waitcnt vmcnt({vm.need('idx6')})")
    idx_store(7,IV,IA_,IT)
    e(f"s_lshr_b32 s{sT}, s{sWAVE}, 1")
    e(f"s_lshl_b32 s{sT}, s{sT}, 9")
    e(f"s_and_b32 s{sT+1}, s{sWAVE}, 1")
    e(f"s_lshl_b32 s{sT+2}, s{sT+1}, 4")
    e(f"s_add_u32 s{sT}, s{sT}, s{sT+2}")
    e(f"s_add_u32 s{sT}, s{sT}, {IDXB}")
    e(f"v_lshl_add_u32 v{vRA}, v3, 5, s{sT}")
    e(f"v_xor_b32 v{vRB}, 16, v{vRA}")
    e(f"s_lshl_b32 s{sT+1}, s{sT+1}, 2")
    e(f"v_add_u32 v{vC16}, s{sT+1}, v4")
    e(f"v_lshlrev_b32 v{vC16}, 4, v{vC16}")
    def perms(j,m):
        d=j%3; par=j&1
        x0,x1=raw(d,2*m),raw(d,2*m+1)
        return [f"v_perm_b32 v{Fr(par,0)+m}, v{x1}, v{x0}, s{sSEL_LO}",
                f"v_perm_b32 v{Fr(par,1)+m}, v{x1}, v{x0}, s{sSEL_HI}",
                f"v_perm_b32 v{Fr(par,2)+m}, v{x1+1}, v{x0+1}, s{sSEL_LO}",
                f"v_perm_b32 v{Fr(par,3)+m}, v{x1+1}, v{x0+1}, s{sSEL_HI}"]
    e(f"s_waitcnt vmcnt({vm.need('bias1')})")
    for m in range(4):
        for x in perms(0,m): e(x)
    for lt in range(2):
        for r in range(4):
            for jj in range(4):
                t=4*r+jj; src=BI+(t>>1)
                if t&1: e(f"v_and_b32 v{acc(lt,jj)+r}, 0xffff0000, v{src}")
                else:   e(f"v_lshlrev_b32 v{acc(lt,jj)+r}, 16, v{src}")
    wloads(3)
    e(f"s_waitcnt vmcnt({vm.need('tbl15')}) lgkmcnt(0)")
    if ST: e("s_memrealtime s[76:77]")
    e("s_barrier")
    if ST: e("s_memrealtime s[78:79]")
    if ST: e("s_waitcnt lgkmcnt(0)")
    if opt.prio: e(f"s_setprio {opt.prio}")
    def IAop(j): e(f"ds_read_b128 v[{AD}:{AD+3}], v{vRA} offset:{j*1024}"); lg.issue(f"IA{j}")
    def IBop(j): e(f"ds_read_b128 v[{AD+4}:{AD+7}], v{vRB} offset:{j*1024}"); lg.issue(f"IB{j}")
    def Xop(lt): e(f"v_xor_b32 v{AD+lt}, v{vC16}, v{AD+lt}")
    def Rop(lt,j): e(f"ds_read_b128 v[{AF+4*lt}:{AF+4*lt+3}], v{AD+lt}"); lg.issue(f"R{lt}_{j}")
    IAop(0); IBop(0)
    e("s_waitcnt lgkmcnt(0)")
    for lt in range(8): Xop(lt)
    for lt in range(4): Rop(lt,0)
    IAop(1)
    for lt in range(4,8): Rop(lt,0)
    IBop(1)
    NJ=13
    W2P=RAW+0; EV=RAW+8
    W2P=raw(1,0); EV=raw(1,4)
    for j in range(NJ):
        g.c(f"---- iteration {j} ----")
        par=j&1
        for half in range(2):
            needs=[f"R{lt}_{j}" for lt in range(4*half,4*half+4)]
            if j+1<NJ: needs.append(("IA" if half==0 else "IB")+f"{j+1}")
            e(f"s_waitcnt lgkmcnt({min(lg.need(x) for x in needs)})")
            for lt in range(4*half,4*half+4):
                fill=[]
                if j+1<NJ:
                    m=lt>>1
                    if lt==0: fill.append(lambda j=j: e(f"s_waitcnt vmcnt({vm.need(f'w{j+1}_7')})"))
                    ps=perms(j+1,m)
                    sel=ps[:2] if lt%2==0 else ps[2:]
                    for x in sel: fill.append(lambda x=x: e(x))
                    if lt%2==1 and j+4<NJ:
                        fill.append(lambda j=j,m=m: wloads(j+4,[m]))
                if j==10 and lt==7:
                    def late():
                        e(f"s_lshl_b32 s{sT}, s{sCB}, 7")
                        e(f"v_lshl_add_u32 v{EV+2}, v4, 5, s{sT}")
                        e(f"buffer_load_dwordx4 v[{W2P}:{W2P+3}], v{EV+2}, s[{S_B}:{S_B+3}], 0 offen"); vm.issue("w2a")
                        e(f"buffer_load_dwordx4 v[{W2P+4}:{W2P+7}], v{EV+2}, s[{S_B}:{S_B+3}], 0 offen offset:16"); vm.issue("w2b")
                        e(f"v_lshrrev_b32 v{EV+3}, 5, v2")
                        e(f"v_and_b32 v{EV+4}, 15, v2")
                        e(f"v_lshl_add_u32 v{EV+3}, v{EV+3}, 4, v{EV+4}")
                        e(f"s_lshl_b32 s{sT}, s{sRB}, 7")
                        e(f"s_lshl_b32 s{sT+1}, s{sWAVE}, 5")
                        e(f"s_add_u32 s{sT}, s{sT}, s{sT+1}")
                        e(f"v_add_u32 v{EV+3}, s{sT}, v{EV+3}")
                        e(f"v_lshlrev_b32 v{EV+3}, 3, v{EV+3}")
                        e(f"s_mov_b32 s{sT+2}, {EPOCH}")
                        e(f"buffer_load_dwordx2 v[{EV}:{EV+1}], v{EV+3}, s[{S_WS}:{S_WS+3}], s{sT+2} offen"); vm.issue("ev")
                    fill.append(late)
                k=0
                for jj in range(4):
                    c=f"v[{acc(lt,jj)}:{acc(lt,jj)+3}]"
                    src=c if (j>0 or lt<2) else "0"
                    e(f"v_mfma_f32_16x16x32_bf16 {c}, v[{Fr(par,jj)}:{Fr(par,jj)+3}], v[{AF+4*lt}:{AF+4*lt+3}], {src}")
                    if jj<3:
                        take=2 if jj<2 else len(fill)-k
                        for f in fill[k:k+take]: f()
                        k+=take
                    if jj==2 and j+1<NJ: Xop(lt)
                if j+1<NJ: Rop(lt,j+1)
            if j+2<NJ:
                (IAop if half==0 else IBop)(j+2)
    g.c("---- K-split reduction ----")
    if ST: e("s_memrealtime s[80:81]")
    gu={1:2,2:1,3:3}
    WA=AD
    e(f"v_lshlrev_b32 v{AD+3}, 4, v2")
    for u in (1,2,3):
        e(f"s_xor_b32 s{sT}, s{sWAVE}, {gu[u]}")
        e(f"s_mul_i32 s{sT}, s{sT}, 24576")
        e(f"s_add_u32 s{sT}, s{sT}, {(u-1)*8192}")
        e(f"v_add_u32 v{WA+u-1}, s{sT}, v{AD+3}")
    e(f"s_mul_i32 s{sT}, s{sWAVE}, 24576")
    e(f"v_add_u32 v{AD+3}, s{sT}, v{AD+3}")
    e("s_barrier")
    if ST: e("s_memrealtime s[82:83]")
    for lt in range(2,8):
        for jj in range(4):
            e(f"ds_write_b128 v{WA+(lt>>1)-1}, v[{acc(lt,jj)}:{acc(lt,jj)+3}] offset:{((lt&1)*4+jj)*1024}")
    W2F=AF
    e(f"s_waitcnt vmcnt(0)")
    for t in range(16):
        src=W2P+(t>>1)
        if t&1: e(f"v_and_b32 v{W2F+t}, 0xffff0000, v{src}")
        else:   e(f"v_lshlrev_b32 v{W2F+t}, 16, v{src}")
    e(f"s_mov_b32 s{sT+3}, {f2u(C2)}")
    e(f"v_mov_b32 v{AF+16}, {f2u(C1)}")
    vC1=AF+16
    e("s_waitcnt lgkmcnt(0)")
    e("s_barrier")
    if ST: e("s_memrealtime s[84:85]")
    if ST: e("s_waitcnt lgkmcnt(0)")
    lg=Q()
    PB=ACC+32
    def part(sl,t): return PB+(t*3+sl)*4
    for t in range(8):
        for sl in range(3):
            e(f"ds_read_b128 v[{part(sl,t)}:{part(sl,t)+3}], v{AD+3} offset:{sl*8192+t*1024}"); lg.issue(f"p{sl}_{t}")
    S0,S1=AF+17,AF+18
    e(f"v_mov_b32 v{S0}, 0"); e(f"v_mov_b32 v{S1}, 0")
    T=F0
    for t in range(8):
        lt,jj=t>>2,t&3
        n=lg.need(f"p2_{t}")
        e(f"s_waitcnt lgkmcnt({min(n,15)})")
        a=acc(lt,jj)
        for r in range(4): e(f"v_add_f32 v{a+r}, v{a+r}, v{part(0,t)+r}")
        for r in range(4): e(f"v_add_f32 v{part(1,t)+r}, v{part(1,t)+r}, v{part(2,t)+r}")
        for r in range(4): e(f"v_add_f32 v{a+r}, v{a+r}, v{part(1,t)+r}")
        for r in range(4): e(f"v_mul_f32 v{T+r}, v{a+r}, v{a+r}")
        for r in range(4): e(f"v_fma_f32 v{T+r}, v{T+r}, s{sT+3}, v{vC1}")
        for r in range(4): e(f"v_mul_f32 v{T+r}, v{T+r}, v{a+r}")
        for r in range(4): e(f"v_exp_f32 v{T+r}, v{T+r}")
        for r in range(4): e(f"v_mul_f32 v{a+r}, v{a+r}, v{W2F+4*r+jj}")
        for r in range(4): e(f"v_add_f32 v{T+r}, 1.0, v{T+r}")
        for r in range(4): e(f"v_rcp_f32 v{T+r}, v{T+r}")
        e("s_nop 0")
        S=S0 if lt==0 else S1
        for r in range(4): e(f"v_fmac_f32 v{S}, v{a+r}, v{T+r}")
    e("s_nop 1")
    e(f"v_permlane32_swap_b32 v{S0}, v{S1}")
    e(f"v_add_f32 v{S0}, v{S0}, v{S1}")
    e(f"v_mov_b32 v{S1}, v{S0}")
    e("s_nop 1")
    e(f"v_permlane16_swap_b32 v{S0}, v{S1}")
    e(f"v_add_f32 v{S0}, v{S0}, v{S1}")
    e(f"s_movk_i32 s{sT}, 0xff")
    e(f"v_add_u32 v{EV}, 1, v{EV}")
    e(f"v_bfi_b32 v{EV+1}, s{sT}, v{EV+1}, v{S0}")
    e(f"s_lshl_b32 s{sT+1}, s{sCB}, 13")
    e(f"s_add_u32 s{sT+1}, s{sT+1}, {GRAN}")
    e(f"s_mov_b32 exec_lo, 0xffff")
    e(f"s_mov_b32 exec_hi, 0xffff")
    e(f"buffer_store_dwordx2 v[{EV}:{EV+1}], v{EV+3}, s[{S_WS}:{S_WS+3}], s{sT+1} offen sc0 sc1")
    if ST:
        e("s_memrealtime s[86:87]")
        e("s_waitcnt vmcnt(0)")
        e("s_memrealtime s[88:89]")
        dump_stamps(g,[10,76,78,80,82,84,86,88])
    e("s_endpgm")

    g.lab("L_help_pro")
    vm=Q()
    e(f"s_mov_b32 s{sT+6}, {IDXB}")
    e("s_waitcnt lgkmcnt(0)")
    srd(g,S_IDX,P_IDX,106496)
    IV=16; IA_=24; IT=32
    idx_loads(vm,6,IV)
    srd(g,S_TBL,P_TBL,128000)
    table_loads(vm)
    idx_addr(6,IA_,IT)
    e(f"s_waitcnt vmcnt({vm.need('idx5')})")
    idx_store(6,IV,IA_,IT)
    e("s_waitcnt vmcnt(0) lgkmcnt(0)")
    e("s_barrier")
    g.lab("L_help_main")
    sROW=6; sE=38
    e(f"s_sub_u32 s{sT}, s{sWAVE}, 4")
    e(f"s_lshl_b32 s{sROW}, s2, 2")
    e(f"s_add_u32 s{sROW}, s{sROW}, s{sT}")
    e(f"s_mul_i32 s{sT}, s{sROW}, 104")
    e(f"s_add_u32 s{sT+2}, s{P_IDX}, s{sT}")
    e(f"s_addc_u32 s{sT+3}, s{P_IDX+1}, 0")
    e(f"s_load_dwordx16 s[76:91], s[{sT+2}:{sT+3}], 0")
    e(f"s_load_dwordx8 s[92:99], s[{sT+2}:{sT+3}], 64")
    e(f"s_load_dwordx2 s[100:101], s[{sT+2}:{sT+3}], 96")
    e(f"s_lshl_b32 s{sT}, s{sROW}, 3")
    e(f"s_add_u32 s{sT}, s{sT}, {EPOCH}")
    e(f"s_load_dwordx2 s[{sE}:{sE+1}], s[{P_WS}:{P_WS+1}], s{sT}")
    e(f"s_load_dword s9, s[{P_BO}:{P_BO+1}], 0")
    srd(g,S_WS,P_WS,WS_SIZE)
    srd(g,S_A,P_DBG,256)
    srd(g,S_B,P_OUT,2048)
    X=16
    R=44
    e("v_and_b32 v3, 31, v2")
    e("v_lshlrev_b32 v4, 2, v3")
    e("s_waitcnt lgkmcnt(0)")
    for r in range(26):
        e(f"s_lshl_b32 s{76+r}, s{76+r}, 7")
        e(f"buffer_load_dword v{X+r}, v4, s[{S_TBL}:{S_TBL+3}], s{76+r} offen")
    e("v_lshlrev_b32 v5, 4, v2")
    e("v_mov_b32 v7, 0x7fff0000")
    e("v_cmp_gt_u32 vcc, 26, v3")
    e("s_nop 1")
    e("v_cndmask_b32 v5, v7, v5, vcc")
    e("v_lshlrev_b32 v6, 13, v2")
    e(f"s_lshl_b32 s{sT}, s{sROW}, 3")
    e(f"s_add_u32 s{sT}, s{sT}, {GRAN}")
    e(f"v_add_u32 v6, s{sT}, v6")
    e("v_cmp_gt_u32 vcc, 26, v2")
    e("s_nop 1")
    e("v_cndmask_b32 v6, v7, v6, vcc")
    e("v_cmp_lt_u32 vcc, 31, v2")
    e("s_waitcnt vmcnt(0)")
    e(f"v_mov_b32 v{X+26}, v{X}")
    for r in range(26):
        e(f"v_cndmask_b32 v{X+r}, v{X+r}, v{X+r+1}, vcc")
    for r in range(26):
        e(f"v_lshlrev_b32 v{R+2*r}, 16, v{X+r}")
        e(f"v_and_b32 v{R+2*r+1}, 0xffff0000, v{X+r}")
    if ST: e("s_memrealtime s[76:77]")
    e(f"s_cmp_lg_u32 s{sWAVE}, 4")
    e("s_cbranch_scc1 L_nopoll")
    e(f"s_mov_b32 s{sT+4}, {opt.bound}")
    g.lab("L_poll1")
    e(f"buffer_load_dword v8, off, s[{S_A}:{S_A+3}], 0 sc1")
    e("s_waitcnt vmcnt(0)")
    e(f"v_readfirstlane_b32 s{sT}, v8")
    e("s_nop 1")
    e(f"s_cmp_ge_u32 s{sT}, 52")
    e("s_cbranch_scc1 L_nopoll")
    e("s_sleep 4")
    e(f"s_sub_u32 s{sT+4}, s{sT+4}, 1")
    e("s_cbranch_scc0 L_poll1")
    g.lab("L_nopoll")
    if ST: e("s_memrealtime s[78:79]")
    e("s_barrier")
    if ST: e("s_memrealtime s[80:81]")
    e(f"s_sub_u32 s{sT}, s{sWAVE}, 4")
    e(f"s_lshl_b32 s{sT}, s{sT}, 10")
    e(f"s_add_u32 m0, s{sT}, {CINW}")
    e("s_nop 0")
    for t in range(12):
        if t==11:
            e(f"s_cmp_ge_u32 s{sWAVE}, 6")
            e("s_cbranch_scc1 L_dma_done")
        e(f"buffer_load_dwordx4 v5, s[{S_WS}:{S_WS+3}], s{sT} offen sc1 lds")
        if t<11:
            e(f"s_add_u32 s{sT}, s{sT}, 4096")
            e("s_add_u32 m0, m0, 4096")
            e("s_nop 0")
    g.lab("L_dma_done")
    e(f"v_lshlrev_b32 v8, 4, v2")
    e(f"v_add_u32 v8, {CINW}, v8")
    e("s_waitcnt vmcnt(0)")
    e("s_barrier")
    if ST: e("s_memrealtime s[82:83]")
    if ST: e("s_waitcnt lgkmcnt(0)")
    AX=[96,112]; AU=[128,144]
    WF=160
    ZP=192
    MT=208
    lg=Q()
    NS=24
    def rd(s):
        st_=s%4
        if s<22:
            e(f"ds_read_b128 v[{WF+st_*8}:{WF+st_*8+3}], v8 offset:{(2*s)*1024}"); lg.issue(f"x{s}")
            e(f"ds_read_b128 v[{WF+st_*8+4}:{WF+st_*8+7}], v8 offset:{(2*s+1)*1024}"); lg.issue(f"u{s}")
        else:
            e(f"ds_read_b128 v[{WF+st_*8+4}:{WF+st_*8+7}], v8 offset:{(44+s-22)*1024}"); lg.issue(f"u{s}")
    def zops(s):
        b=s&1; ops=[]
        if s<22:
            for ee in range(8):
                r1,r2=pair_of(8*s+ee,0)
                if opt.pk:
                    ops.append(f"v_pk_mul_f32 v[{MT+2*ee}:{MT+2*ee+1}], v[{R+2*r1}:{R+2*r1+1}], v[{R+2*r2}:{R+2*r2+1}]")
                else:
                    ops.append(f"v_mul_f32 v{MT+2*ee}, v{R+2*r1}, v{R+2*r2}")
                    ops.append(f"v_mul_f32 v{MT+2*ee+1}, v{R+2*r1+1}, v{R+2*r2+1}")
                if ee&1:
                    for tl in range(2):
                        ops.append(f"v_cvt_pk_bf16_f32 v{ZP+b*8+tl*4+(ee>>1)}, v{MT+2*(ee-1)+tl}, v{MT+2*ee+tl}")
        else:
            for m2 in range(4):
                for tl in range(2):
                    d=ZP+b*8+tl*4+m2
                    m=(s-22)*8+2*m2
                    if m+1<=12: ops.append(f"v_cvt_pk_bf16_f32 v{d}, v{R+4*m+tl}, v{R+4*(m+1)+tl}")
                    elif m==12: ops.append(f"v_cvt_pk_bf16_f32 v{d}, v{R+4*m+tl}, 1.0")
                    else: ops.append(f"v_mov_b32 v{d}, 0")
        return ops
    for s in range(3): rd(s)
    for x in zops(0): e(x)
    GV=10
    for s in range(NS):
        b=s&1; st_=s%4
        nxt=zops(s+1) if s+1<NS else []
        mf=[]
        for tl in range(2):
            z=f"v[{ZP+b*8+tl*4}:{ZP+b*8+tl*4+3}]"
            if s<22:
                c=f"v[{AX[tl]}:{AX[tl]+15}]"
                mf.append(f"v_mfma_f32_32x32x16_bf16 {c}, v[{WF+st_*8}:{WF+st_*8+3}], {z}, {c if s else 0}")
            c=f"v[{AU[tl]}:{AU[tl]+15}]"
            mf.append(f"v_mfma_f32_32x32x16_bf16 {c}, v[{WF+st_*8+4}:{WF+st_*8+7}], {z}, {c if s else 0}")
        e(f"s_waitcnt lgkmcnt({lg.need(f'u{s}')})")
        if s==0: e("s_nop 0")
        per=(len(nxt)+len(mf)-1)//len(mf) if mf else 0
        k=0
        for i,m in enumerate(mf):
            e(m)
            if i==len(mf)-1 and s+3<NS: rd(s+3)
            for x in nxt[k:k+per]: e(x)
            k+=per
        if nxt: e("s_nop 0")
        if s==NS-3:
            e(f"buffer_load_dwordx2 v[{GV}:{GV+1}], v6, s[{S_WS}:{S_WS+3}], 0 offen sc1")
    e(f"s_add_u32 s{sE}, s{sE}, 1")
    e(f"s_and_b32 s{sE+1}, s{sE+1}, 0xff")
    e("s_nop 9")
    V=9
    e(f"v_mul_f32 v{V}, v{AX[0]}, v{AU[0]}")
    e(f"v_mul_f32 v12, v{AX[1]}, v{AU[1]}")
    for t in range(1,14):
        e(f"v_fmac_f32 v{V}, v{AX[0]+t}, v{AU[0]+t}")
        e(f"v_fmac_f32 v12, v{AX[1]+t}, v{AU[1]+t}")
    e(f"v_add_f32 v{V}, v{V}, v12")
    if ST: e("s_memrealtime s[84:85]")
    e("s_mov_b32 exec_lo, 0x3ffffff")
    e("s_mov_b32 exec_hi, 0")
    e(f"s_mov_b32 s{sT+4}, {opt.bound}")
    g.lab("L_poll2")
    e("s_waitcnt vmcnt(0)")
    e(f"v_and_b32 v12, 0xff, v{GV+1}")
    e(f"v_cmp_eq_u32 vcc, s{sE}, v{GV}")
    e(f"v_cmp_eq_u32 s[{sT}:{sT+1}], s{sE+1}, v12")
    e(f"s_and_b64 vcc, vcc, s[{sT}:{sT+1}]")
    e("s_cmp_eq_u64 vcc, exec")
    e("s_cbranch_scc1 L_got")
    e(f"buffer_load_dwordx2 v[{GV}:{GV+1}], v6, s[{S_WS}:{S_WS+3}], 0 offen sc1")
    e(f"s_sub_u32 s{sT+4}, s{sT+4}, 1")
    e("s_cbranch_scc0 L_poll2")
    e("s_waitcnt vmcnt(0)")
    g.lab("L_got")
    e(f"v_and_b32 v12, 0xffffff00, v{GV+1}")
    e(f"v_add_f32 v{V}, v{V}, v12")
    e("s_mov_b64 exec, -1")
    if ST: e("s_memrealtime s[86:87]")
    for dpp in ["quad_perm:[1,0,3,2] row_mask:0xf bank_mask:0xf","quad_perm:[2,3,0,1] row_mask:0xf bank_mask:0xf",
                "row_half_mirror row_mask:0xf bank_mask:0xf","row_mirror row_mask:0xf bank_mask:0xf",
                "row_bcast:15 row_mask:0xa bank_mask:0xf","row_bcast:31 row_mask:0xc bank_mask:0xf"]:
        e("s_nop 1")
        e(f"v_add_f32_dpp v{V}, v{V}, v{V} {dpp}")
    e("s_lshl_b32 s9, s9, 16")
    e(f"v_add_f32 v{V}, s9, v{V}")
    e(f"v_cvt_pk_bf16_f32 v{V}, v{V}, v{V}")
    e(f"s_lshl_b32 s{sT}, s{sROW}, 1")
    e(f"s_lshl_b32 s{sT+1}, s{sROW}, 3")
    e(f"s_add_u32 s{sT+1}, s{sT+1}, {EPOCH}")
    e(f"v_mov_b32 v12, s{sE}")
    e("s_mov_b32 exec_lo, 0")
    e("s_mov_b32 exec_hi, 0x80000000")
    e(f"buffer_store_short v{V}, off, s[{S_B}:{S_B+3}], s{sT}")
    e(f"buffer_store_dword v12, off, s[{S_WS}:{S_WS+3}], s{sT+1}")
    if ST:
        e("s_mov_b64 exec, -1")
        e("s_waitcnt vmcnt(0)")
        e("s_memrealtime s[88:89]")
        dump_stamps(g,[10,76,78,80,82,84,86,88])
    e("s_endpgm")

    g.lab("L_aux")
    e("s_waitcnt lgkmcnt(0)")
    srd(g,S_TBL,P_TBL,128000)
    e(f"s_cmp_lg_u32 s{sSLOT}, 26")
    e("s_cbranch_scc1 L_prefetch")
    e(f"s_cmp_ge_u32 s{sXCD}, 7")
    e("s_cbranch_scc1 L_prefetch")
    g.c("---- CIN weight folding: rows i = 4*xcd + (wave&3) ----")
    S_C=S_IDX
    srd(g,S_C,P_CIN,105456)
    srd(g,S_WS,P_WS,WS_SIZE)
    srd(g,S_A,P_DBG,256)
    e(f"s_load_dwordx16 s[76:91], s[{P_WOUT}:{P_WOUT+1}], 104")
    sI=6
    e(f"s_and_b32 s{sT}, s{sWAVE}, 3")
    e(f"s_lshl_b32 s{sI}, s{sXCD}, 2")
    e(f"s_add_u32 s{sI}, s{sI}, s{sT}")
    vm=Q()
    M=16
    e("v_lshlrev_b32 v3, 2, v0")
    e("v_mov_b32 v7, 0x7fff0000")
    e("v_cmp_gt_u32 vcc, 338, v0") if False else None
    e(f"s_movk_i32 s{sT+1}, 338")
    e(f"v_cmp_gt_u32 vcc, s{sT+1}, v0")
    e("s_nop 1")
    e("v_cndmask_b32 v3, v7, v3, vcc")
    for gg in range(26):
        if gg%3==0: e(f"s_mov_b32 s{sT+2}, {2*35152+gg*1352}")
        e(f"buffer_load_dword v{M+gg}, v3, s[{S_C}:{S_C+3}], s{sT+2} offen offset:{(gg%3)*1352}"); vm.issue(f"m{gg}")
    PP=44; QQ=52
    e("v_lshrrev_b32 v4, 1, v2")
    e("v_and_b32 v5, 1, v2")
    e("v_lshlrev_b32 v4, 3, v4")
    for ee in range(8):
        e(f"v_add_u32 v8, {ee}, v4")
        e("v_mul_u32_u24 v9, 5042, v8")
        e("v_lshrrev_b32 v9, 16, v9")
        e("v_mul_u32_u24 v10, 13, v9")
        e("v_sub_u32 v10, v8, v10")
        e(f"v_lshl_add_u32 v{PP+ee}, v10, 1, v5")
        e(f"v_add_u32 v{QQ+ee}, v{PP+ee}, v9")
        e(f"v_subrev_u32 v10, 26, v{QQ+ee}")
        e(f"v_min_u32 v{QQ+ee}, v{QQ+ee}, v10")
    e(f"s_cmp_ge_u32 s{sWAVE}, 4")
    e("s_cbranch_scc1 L_aux_w1")
    Pq=60
    e("v_and_b32 v8, 31, v2")
    e("v_lshrrev_b32 v9, 5, v2")
    e(f"s_movk_i32 s{sT+1}, {8*1352}")
    e(f"v_mul_lo_u32 v10, v9, s{sT+1}")
    e("v_lshl_add_u32 v10, v8, 1, v10")
    e("v_cmp_gt_u32 vcc, 26, v8")
    e("s_nop 1")
    e("v_cndmask_b32 v10, v7, v10, vcc")
    e("v_cmp_gt_u32 vcc, 32, v2")
    e("s_nop 1")
    e("v_cndmask_b32 v11, v7, v10, vcc")
    e(f"s_mul_i32 s{sT+3}, s{sI}, 52")
    e(f"s_add_u32 s{sT+3}, s{sT+3}, 35152")
    PR=76
    for s in range(2):
        for ee in range(8):
            h=16*s+ee
            if h%3==0 or ee==0:
                hb=h; e(f"s_add_u32 s{sT+2}, s{sT+3}, {h*1352}")
            va=11 if (s==1 and ee>=2) else 10
            e(f"buffer_load_ushort v{PR+s*8+ee}, v{va}, s[{S_C}:{S_C+3}], s{sT+2} offen offset:{(h-hb)*1352}"); vm.issue(f"p{h}")
    S_O=S_B
    srd(g,S_O,P_WOUT,156)
    e("v_lshlrev_b32 v12, 2, v2")
    e(f"buffer_load_dword v13, v12, s[{S_O}:{S_O+3}], 0 offen offset:52"); vm.issue("w2row")
    e(f"s_lshl_b32 s{sT+2}, s{sI}, 1")
    e(f"buffer_load_ushort v14, off, s[{S_O}:{S_O+3}], s{sT+2}"); vm.issue("w1i")
    e("s_branch L_aux_m3")
    g.lab("L_aux_w1")
    vm2=Q(); vm2.ops=list(vm.ops[:26])
    GA=60; GB=68
    e(f"s_mul_i32 s{sT+3}, s{sI}, 1352")
    for ee in range(8):
        e(f"v_mul_u32_u24 v8, 26, v{PP+ee}")
        e(f"v_add_lshl_u32 v8, v8, v{QQ+ee}, 1")
        e(f"buffer_load_ushort v{GA+ee}, v8, s[{S_C}:{S_C+3}], s{sT+3} offen")
        e(f"v_mul_u32_u24 v9, 26, v{QQ+ee}")
        e(f"v_add_lshl_u32 v9, v9, v{PP+ee}, 1")
        e(f"buffer_load_ushort v{GB+ee}, v9, s[{S_C}:{S_C+3}], s{sT+3} offen")
    e("buffer_load_dword v13, off, s[%d:%d], 0"%(S_C,S_C+3))
    e("buffer_load_dword v14, off, s[%d:%d], 0"%(S_C,S_C+3))
    g.lab("L_aux_m3")
    e("s_waitcnt lgkmcnt(0)")
    for gg in range(26):
        sreg=76+(gg>>1)
        if gg&1: e(f"s_and_b32 s{sT+4+(gg&1)}, s{sreg}, 0xffff0000")
        else:    e(f"s_lshl_b32 s{sT+4+(gg&1)}, s{sreg}, 16")
        e(f"s_waitcnt vmcnt({18+25-gg})")
        e(f"v_lshlrev_b32 v8, 16, v{M+gg}")
        e(f"v_and_b32 v9, 0xffff0000, v{M+gg}")
        if gg==0:
            e(f"v_mul_f32 v10, s{sT+4}, v8"); e(f"v_mul_f32 v11, s{sT+4}, v9")
        else:
            e(f"v_fmac_f32 v10, s{sT+4+(gg&1)}, v8"); e(f"v_fmac_f32 v11, s{sT+4+(gg&1)}, v9")
    e("v_mul_u32_u24 v8, 5042, v0")
    e("v_lshrrev_b32 v8, 16, v8")
    e("v_mul_u32_u24 v9, 13, v8")
    e("v_sub_u32 v9, v0, v9")
    e("v_lshlrev_b32 v9, 7, v9")
    e("v_lshl_add_u32 v9, v8, 1, v9")
    e("v_cvt_pk_bf16_f32 v10, v10, v11")
    e(f"s_movk_i32 s{sT+1}, 338")
    e(f"v_cmp_gt_u32 vcc, s{sT+1}, v0")
    e(f"s_and_saveexec_b64 s[{sT+2}:{sT+3}], vcc")
    e("ds_write_b16 v9, v10")
    e("ds_write_b16_d16_hi v9, v10 offset:64")
    e("s_mov_b64 exec, -1")
    e(f"s_cmp_ge_u32 s{sWAVE}, 4")
    e("s_cbranch_scc1 L_aux_w1b")
    e("v_lshlrev_b32 v8, 6, v2")
    e("v_mov_b32 v9, 0")
    e("s_mov_b32 exec_lo, 0x7ffffff")
    e("s_mov_b32 exec_hi, 0")
    e("ds_write_b32 v8, v9 offset:52")
    e("ds_write_b64 v8, v[8:9] offset:56") if False else None
    e("ds_write_b32 v8, v9 offset:56")
    e("ds_write_b32 v8, v9 offset:60")
    e("s_mov_b32 exec_lo, 0x1fff")
    e("s_waitcnt vmcnt(0)")
    e(f"ds_write_b32 v12, v13 offset:{26*64}")
    e("s_mov_b64 exec, -1")
    for r in range(8): e(f"v_lshl_or_b32 v{Pq+r}, v{PR+2*r+1}, 16, v{PR+2*r}")
    e("s_waitcnt lgkmcnt(0)")
    e("s_barrier")
    e("v_and_b32 v8, 31, v2")
    e("v_lshrrev_b32 v9, 5, v2")
    e("v_lshlrev_b32 v8, 6, v8")
    e("v_lshl_add_u32 v8, v9, 4, v8")
    Qq=16
    e(f"ds_read_b128 v[{Qq}:{Qq+3}], v8")
    e(f"ds_read_b128 v[{Qq+4}:{Qq+7}], v8 offset:32")
    D=24
    e("s_waitcnt lgkmcnt(0)")
    e(f"v_mfma_f32_32x32x16_bf16 v[{D}:{D+15}], v[{Pq}:{Pq+3}], v[{Qq}:{Qq+3}], 0")
    e(f"v_mfma_f32_32x32x16_bf16 v[{D}:{D+15}], v[{Pq+4}:{Pq+7}], v[{Qq+4}:{Qq+7}], v[{D}:{D+15}]")
    e(f"v_mfma_f32_32x32x16_bf16 v[{D}:{D+15}], v[{Qq}:{Qq+3}], v[{Pq}:{Pq+3}], v[{D}:{D+15}]")
    e(f"v_mfma_f32_32x32x16_bf16 v[{D}:{D+15}], v[{Qq+4}:{Qq+7}], v[{Pq+4}:{Pq+7}], v[{D}:{D+15}]")
    e(f"s_mul_i32 s{sT+1}, s{sWAVE}, 5120")
    e(f"s_add_u32 s{sT+1}, s{sT+1}, 4096")
    e("v_and_b32 v8, 31, v2")
    e(f"s_movk_i32 s{sT+2}, 144")
    e(f"v_mul_lo_u32 v8, v8, s{sT+2}")
    e("v_lshl_add_u32 v8, v9, 4, v8")
    e(f"v_add_u32 v8, s{sT+1}, v8")
    RA=68
    e("v_cmp_lt_u32 vcc, 43, v2")
    e("v_subrev_u32 v10, 176, v4")
    e("v_mov_b32 v11, 26")
    for ee in range(8):
        e(f"v_add_u32 v12, {ee}, v10")
        e("v_lshl_add_u32 v12, v12, 1, v5")
        e(f"v_min_u32 v12, 31, v12")
        e(f"v_cndmask_b32 v{QQ+ee}, v{QQ+ee}, v12, vcc")
        e(f"v_cndmask_b32 v12, v{PP+ee}, v11, vcc")
        e(f"v_mul_lo_u32 v12, v12, s{sT+2}")
        e(f"v_lshl_add_u32 v12, v{QQ+ee}, 2, v12")
        e(f"v_add_u32 v{RA+ee}, s{sT+1}, v12")
    for m in range(4):
        e(f"ds_write_b128 v8, v[{D+4*m}:{D+4*m+3}] offset:{m*32}")
    e("s_waitcnt lgkmcnt(0)")
    VV=16
    for ee in range(8): e(f"ds_read_b32 v{VV+ee}, v{RA+ee}")
    e("v_lshlrev_b32 v14, 16, v14")
    e("s_waitcnt lgkmcnt(0)")
    e("v_cmp_eq_u32 vcc, 46, v2")
    e("s_nop 1")
    e(f"v_cndmask_b32 v{VV+5}, v{VV+5}, v14, vcc")
    e("v_cmp_eq_u32 vcc, 47, v2")
    e("s_nop 1")
    e(f"v_cndmask_b32 v{VV+5}, v{VV+5}, 0, vcc")
    e("v_cmp_lt_u32 vcc, 45, v2")
    e("s_nop 1")
    e(f"v_cndmask_b32 v{VV+6}, v{VV+6}, 0, vcc")
    e(f"v_cndmask_b32 v{VV+7}, v{VV+7}, 0, vcc")
    e("v_lshrrev_b32 v8, 1, v2")
    e("v_lshl_add_u32 v9, v8, 1, 1")
    e("v_add_u32 v8, 22, v8")
    e("v_cmp_lt_u32 vcc, 43, v2")
    e("s_nop 1")
    e("v_cndmask_b32 v9, v9, v8, vcc")
    e(f"s_mov_b32 s{sT+6}, 48")
    e("s_branch L_aux_pack")
    g.lab("L_aux_w1b")
    e("s_waitcnt lgkmcnt(0)")
    e("s_barrier")
    e("s_waitcnt vmcnt(0)")
    for ee in range(8):
        e(f"v_lshlrev_b32 v{GA+ee}, 16, v{GA+ee}")
        e(f"v_lshlrev_b32 v{GB+ee}, 16, v{GB+ee}")
        e(f"v_add_f32 v{VV+ee}, v{GA+ee}, v{GB+ee}")
    e("v_and_b32 v9, 62, v2")
    e(f"s_mov_b32 s{sT+6}, 44")
    g.lab("L_aux_pack")
    e("v_mov_b32 v10, 1.0")
    e("v_cmp_gt_u32 vcc, 2, v2")
    e("s_nop 1")
    e("v_cndmask_b32 v11, v10, 0.5, vcc")
    e("v_cmp_gt_u32 vcc, 4, v2")
    e("s_nop 1")
    e("v_cndmask_b32 v10, v10, 0.5, vcc")
    for ee in range(8): e(f"v_mul_f32 v{VV+ee}, v{VV+ee}, v{10 if ee<5 else 11}")
    e("v_cmp_eq_u32 vcc, 43, v2")
    e("s_nop 1")
    e(f"v_cndmask_b32 v{VV+7}, v{VV+7}, 0, vcc")
    for m in range(4): e(f"v_cvt_pk_bf16_f32 v{24+m}, v{VV+2*m}, v{VV+2*m+1}")
    e("v_lshlrev_b32 v9, 10, v9")
    e("v_lshl_add_u32 v9, v5, 9, v9")
    e(f"s_lshl_b32 s{sT+1}, s{sI}, 4")
    e(f"v_add_u32 v9, s{sT+1}, v9")
    e(f"v_cmp_gt_u32 vcc, s{sT+6}, v2")
    e("s_nop 1")
    e("v_cndmask_b32 v9, v7, v9, vcc")
    e(f"s_cmp_ge_u32 s{sI}, 26")
    e("s_cbranch_scc1 L_aux_done")
    e(f"buffer_store_dwordx4 v[24:27], v9, s[{S_WS}:{S_WS+3}], 0 offen sc0 sc1")
    e("v_mov_b32 v8, 1")
    e("s_mov_b64 exec, 1")
    e("s_waitcnt vmcnt(0)")
    e(f"buffer_atomic_add v8, off, s[{S_A}:{S_A+3}], 0 sc1")
    e("s_mov_b64 exec, -1")
    e("s_branch L_aux_done")
    g.lab("L_prefetch")
    if opt.pf:
        srd(g,S_W,P_W,1664*3328)
        if opt.cpf:
            e(f"s_getpc_b64 s[{S_IDX}:{S_IDX+1}]")
            g.lab("L_pc")
            e(f"s_sub_u32 s{S_IDX}, s{S_IDX}, L_pc-standalone__deep_cross_xdeepfm__recsys_kernel")
            e(f"s_subb_u32 s{S_IDX+1}, s{S_IDX+1}, 0")
            e(f"s_mov_b32 s{S_IDX+2}, L_end-standalone__deep_cross_xdeepfm__recsys_kernel")
            e(f"s_mov_b32 s{S_IDX+3}, 0x20000")
            e("v_lshlrev_b32 v3, 7, v0")
            e(f"buffer_load_dword v8, v3, s[{S_IDX}:{S_IDX+3}], 0 offen")
        e(f"s_cmp_lt_u32 s{sSLOT}, 27")
        e("s_cbranch_scc1 L_aux_done")
        e(f"s_sub_u32 s{sT}, s{sSLOT}, 27")
        e(f"s_mul_i32 s{sT+1}, s{sXCD}, 26")
        e(f"s_lshr_b32 s{sT+1}, s{sT+1}, 3")
        e(f"s_lshl_b32 s{sT+1}, s{sT+1}, 7")
        e(f"s_movk_i32 s{sT+2}, 3328")
        for u in range(3):
            e(f"v_add_u32 v3, {512*u}, v0")
            e(f"v_mad_u32_u24 v3, v3, 5, s{sT}")
            e("v_lshrrev_b32 v4, 2, v3")
            e("v_and_b32 v3, 3, v3")
            e(f"v_mul_lo_u32 v4, v4, s{sT+2}")
            e("v_lshl_add_u32 v3, v3, 7, v4")
            e(f"buffer_load_dword v{9+u}, v3, s[{S_W}:{S_W+3}], s{sT+1} offen")
    g.lab("L_aux_done")
    e(f"s_cmp_ge_u32 s{sWAVE}, 4")
    e("s_cbranch_scc1 L_help_main")
    g.lab("L_end")
    e("s_endpgm")
    g.L.append('.section .rodata,"a"')
    g.L.append(".p2align 6")
    g.L.append(".amdhsa_kernel standalone__deep_cross_xdeepfm__recsys_kernel")
    for x in ["next_free_vgpr 256","next_free_sgpr 102","accum_offset 256","group_segment_fixed_size 0","kernarg_size 88",
              "user_sgpr_count 2","user_sgpr_kernarg_segment_ptr 1","system_sgpr_workgroup_id_x 1"]:
        g.L.append("  .amdhsa_"+x)
    g.L.append(".end_amdhsa_kernel")
    return "\n".join(g.L)+"\n"

def dump_stamps(g,regs):
    e=g.e
    e("s_mov_b64 exec, -1")
    e("s_waitcnt lgkmcnt(0)")
    e("s_lshl_b32 s12, s2, 3")
    e(f"s_add_u32 s12, s12, s{sWAVE}")
    e("s_lshl_b32 s12, s12, 5")
    e(f"s_add_u32 s12, s12, {STAMP}")
    for i,r in enumerate(regs): e(f"v_mov_b32 v{16+i}, s{r}")
    e("s_mov_b64 exec, 1")
    e(f"buffer_store_dwordx4 v[16:19], off, s[{S_WS}:{S_WS+3}], s12")
    e(f"buffer_store_dwordx4 v[20:23], off, s[{S_WS}:{S_WS+3}], s12 offset:16")

if __name__=="__main__":
    ap=argparse.ArgumentParser()
    ap.add_argument("-o",default="k.s"); ap.add_argument("--stamps",type=int,default=0)
    ap.add_argument("--pk",type=int,default=0); ap.add_argument("--pf",type=int,default=1); ap.add_argument("--cpf",type=int,default=1)
    ap.add_argument("--prio",type=int,default=0); ap.add_argument("--bound",type=int,default=20000)
    opt=ap.parse_args()
    for t in range(512): assert (t*5042)>>16==t//13, t
    for t in range(3584): assert (t*2521)>>16==t//26, t
    open(opt.o,"w").write(build(opt))
```

```python
import sys, argparse

class Q:
    def __init__(s): s.ops=[]
    def issue(s,name): s.ops.append(name)
    def need(s,name):
        i=len(s.ops)-1-s.ops[::-1].index(name)
        return min(63,len(s.ops)-1-i)
    def clear(s): s.ops=[]

class G:
    def __init__(s,opt):
        s.L=[]; s.opt=opt; s.nst=0
    def e(s,x): s.L.append("    "+x)
    def lab(s,x): s.L.append(x+":")
    def c(s,x): s.L.append("    ; "+x)

WIMG=0; GRAN=65536; EPOCH=0x50000; STAMP=0x100000; WS_SIZE=0x200000
IDXB=129024
CINW=98304
import math
C1=-2*math.sqrt(2/math.pi)*math.log2(math.e); C2=C1*0.044715
import struct
def f2u(x): return struct.unpack('<I',struct.pack('<f',x))[0]

sWAVE,sXCD,sSLOT,sCB,sRB=3,4,5,7,8
P_IDX,P_TBL,P_CIN,P_WOUT,P_W,P_B1,P_W2,P_BO=16,18,20,22,24,26,28,30
P_OUT,P_DBG,P_WS=32,34,36
S_IDX,S_TBL,S_W,S_WS,S_A,S_B=40,44,48,52,56,60
sSEL_LO,sSEL_HI=64,65
sT=66
sROWIDX=76

def srd(g,d,p,size):
    g.e(f"s_mov_b32 s{d}, s{p}"); g.e(f"s_mov_b32 s{d+1}, s{p+1}")
    g.e(f"s_mov_b32 s{d+2}, {size}"); g.e(f"s_mov_b32 s{d+3}, 0x20000")

def stamp(g,slot):
    if not g.opt.stamps: return
    g.e("s_memrealtime s[12:13]")
    g.e("s_waitcnt lgkmcnt(0)") if g.opt.stamps==2 else None
    g.e(f"s_mov_b32 s{90+slot if False else 15}, s15") if False else None

def pair_of(n,hh):
    if n<169: dlt,m=divmod(n,13)
    else: dlt,m=13,n-169
    r=2*m
    return r,(r+dlt)%26

def build(opt):
    g=G(opt); e=g.e
    ST=opt.stamps
    g.L.append("; @launch grid=(256,1,1) block=(512,1,1) lds=163840")
    g.L.append('.amdgcn_target "amdgcn-amd-amdhsa--gfx950"')
    g.L.append(".text")
    g.L.append(".globl standalone__deep_cross_xdeepfm__recsys_kernel")
    g.L.append(".p2align 8")
    g.L.append(".type standalone__deep_cross_xdeepfm__recsys_kernel,@function")
    g.lab("standalone__deep_cross_xdeepfm__recsys_kernel")
    def st(k):
        if ST: e(f"s_memrealtime s[{STB+2*k}:{STB+2*k+1}]")
    global STB
    STB=76
    e("s_load_dwordx16 s[16:31], s[0:1], 0")
    e("s_load_dwordx4 s[32:35], s[0:1], 64")
    e("s_load_dwordx2 s[36:37], s[0:1], 80")
    if ST: e("s_memrealtime s[10:11]")
    e("s_cmp_ge_u32 s2, 256")
    e("s_cbranch_scc1 L_end")
    e("v_lshrrev_b32 v1, 6, v0")
    e("v_and_b32 v2, 63, v0")
    e(f"v_readfirstlane_b32 s{sWAVE}, v1")
    e(f"s_and_b32 s{sXCD}, s2, 7")
    e(f"s_lshr_b32 s{sSLOT}, s2, 3")
    e(f"s_cmp_ge_u32 s{sSLOT}, 26")
    e("s_cbranch_scc1 L_aux")
    e(f"s_mul_i32 s6, s{sXCD}, 26")
    e(f"s_add_u32 s6, s6, s{sSLOT}")
    e(f"s_lshr_b32 s{sCB}, s6, 3")
    e(f"s_and_b32 s{sRB}, s6, 7")
    e("v_lshrrev_b32 v3, 3, v2")
    e("v_lshrrev_b32 v4, 4, v2")
    e("v_and_b32 v5, 7, v2")
    e("v_xor_b32 v5, v5, v4")
    e(f"s_and_b32 s{sT}, s{sWAVE}, 1")
    e(f"s_lshl_b32 s{sT+1}, s{sT}, 2")
    e(f"v_xor_b32 v5, s{sT+1}, v5")
    e("v_lshlrev_b32 v5, 4, v5")
    e("v_lshl_add_u32 v5, v3, 7, v5")
    e(f"s_lshr_b32 s{sT+2}, s{sWAVE}, 1")
    e(f"s_lshl_b32 s{sT+3}, s{sSLOT}, 1")
    e(f"s_add_u32 s{sT+2}, s{sT+2}, s{sT+3}")
    e(f"s_lshl_b32 s{sT+2}, s{sT+2}, 11")
    e(f"s_lshl_b32 s{sT+3}, s{sT}, 10")
    e(f"s_add_u32 m0, s{sT+2}, s{sT+3}")
    e("v_lshlrev_b32 v6, 2, v0")
    e(f"s_mul_i32 s{sT+4}, s{sRB}, 13312")
    e(f"s_cmp_ge_u32 s{sWAVE}, 4")
    e("s_cbranch_scc1 L_help_pro")

    def table_loads(vm):
        for t in range(16):
            e(f"buffer_load_dwordx4 v5, s[{S_TBL}:{S_TBL+3}], m0 offen lds"); vm.issue(f"tbl{t}")
            if t<15:
                e("s_add_u32 m0, m0, 8192")
                e("s_cmp_ge_u32 m0, 129024")
                e(f"s_cselect_b32 s{sT+5}, 129024, 0")
                e(f"s_sub_u32 m0, m0, s{sT+5}")
                e("s_nop 0")
    def idx_loads(vm,n,vd):
        for m in range(n):
            if m and m%2==0: e(f"s_add_u32 s{sT+4}, s{sT+4}, 4096")
            e(f"buffer_load_dword v{vd+m}, v6, s[{S_IDX}:{S_IDX+3}], s{sT+4} offen offset:{(m%2)*2048}"); vm.issue(f"idx{m}")
    def idx_addr(n,va,t0):
        a,b,c,d=t0,t0+1,t0+2,t0+3
        for m in range(n):
            x=va+m
            e(f"v_add_u32 v{a}, {512*m}, v0")
            e(f"v_mul_u32_u24 v{b}, 2521, v{a}")
            e(f"v_lshrrev_b32 v{b}, 16, v{b}")
            e(f"v_mul_u32_u24 v{c}, 26, v{b}")
            e(f"v_sub_u32 v{a}, v{a}, v{c}")
            e(f"v_and_b32 v{c}, 15, v{b}")
            e(f"v_lshlrev_b32 v{c}, 5, v{c}")
            e(f"v_lshl_add_u32 v{x}, v{a}, 9, v{c}")
            e(f"v_lshrrev_b32 v{c}, 6, v{b}")
            e(f"v_xor_b32 v{c}, v{c}, v{a}")
            e(f"v_and_b32 v{c}, 1, v{c}")
            e(f"v_lshl_add_u32 v{x}, v{c}, 3, v{x}")
            e(f"v_bfe_u32 v{c}, v{b}, 5, 1")
            e(f"v_lshl_add_u32 v{x}, v{c}, 4, v{x}")
            e(f"v_bfe_u32 v{c}, v{b}, 4, 1")
            e(f"v_lshl_add_u32 v{x}, v{c}, 2, v{x}")
            e(f"v_add_u32 v{x}, s{sT+6}, v{x}")
    def idx_store(n,vd,va,t0):
        for m in range(n):
            x=vd+m
            e(f"v_lshlrev_b32 v{t0}, 3, v{x}")
            e(f"v_and_b32 v{t0}, 0x70, v{t0}")
            e(f"v_lshl_or_b32 v{x}, v{x}, 7, v{t0}")
            e(f"ds_write_b32 v{va+m}, v{x}")

    vLANE,vQ=2,4
    vW,vRA,vRB,vC16=1,3,6,7
    AD=8; AF=16; F0=48; RAW=80; ACC=128
    def acc(lt,jj): return ACC+(lt*4+jj)*4
    def Fr(par,jj): return F0+par*16+jj*4
    def raw(d,ee): return RAW+d*16+ee*2
    vm=Q(); lg=Q()
    g.c("---- DNN wave prologue ----")
    e(f"s_lshl_b32 s{sT+7}, s{sWAVE}, 5")
    e(f"v_lshl_add_u32 v7, v4, 3, s{sT+7}")
    e(f"s_movk_i32 s{sT+8}, 3328")
    e(f"v_mul_lo_u32 v7, v7, s{sT+8}")
    e("v_and_b32 v3, 15, v2")
    e("v_lshl_add_u32 v1, v3, 3, v7")
    e(f"s_lshl_b32 s{sT+7}, s{sCB}, 7")
    e(f"v_add_u32 v1, s{sT+7}, v1")
    e(f"v_lshl_add_u32 v7, v4, 5, s{sT+7}")
    e(f"s_mov_b32 s{sSEL_LO}, 0x05040100")
    e(f"s_mov_b32 s{sSEL_HI}, 0x07060302")
    e(f"s_mov_b32 s{sT+6}, {IDXB}")
    e("s_waitcnt lgkmcnt(0)")
    srd(g,S_IDX,P_IDX,106496);
    IV=AF; IA_=AF+8; IT=AF+16
    idx_loads(vm,7,IV)
    srd(g,S_W,P_W,1664*3328)
    sWO=12
    def wloads(j,pairs=range(4)):
        d=j%3
        for i in pairs:
            if opt.now and j>=4:
                vm.issue(f"w{j}_{2*i}"); vm.issue(f"w{j}_{2*i+1}"); vm.ops=vm.ops[:-2]+[]; vm.ops.insert(0,f"w{j}_{2*i}"); vm.ops.insert(0,f"w{j}_{2*i+1}")
                continue
            e(f"s_mov_b32 s{sWO+i}, {j*425984+i*6656}")
            for h in range(2):
                ee=2*i+h
                e(f"buffer_load_dwordx2 v[{raw(d,ee)}:{raw(d,ee)+1}], v{vW}, s[{S_W}:{S_W+3}], s{sWO+i} offen offset:{h*3328}"); vm.issue(f"w{j}_{ee}")
    wloads(0)
    srd(g,S_A,P_B1,3328)
    BI=F0+16
    e(f"buffer_load_dwordx4 v[{BI}:{BI+3}], v7, s[{S_A}:{S_A+3}], 0 offen"); vm.issue("bias0")
    e(f"buffer_load_dwordx4 v[{BI+4}:{BI+7}], v7, s[{S_A}:{S_A+3}], 0 offen offset:16"); vm.issue("bias1")
    srd(g,S_TBL,P_TBL,128000)
    table_loads(vm)
    wloads(1); wloads(2)
    srd(g,S_WS,P_WS,WS_SIZE)
    srd(g,S_B,P_W2,3328)
    idx_addr(7,IA_,IT)
    e(f"s_waitcnt vmcnt({vm.need('idx6')})")
    idx_store(7,IV,IA_,IT)
    e(f"s_lshr_b32 s{sT}, s{sWAVE}, 1")
    e(f"s_lshl_b32 s{sT}, s{sT}, 9")
    e(f"s_and_b32 s{sT+1}, s{sWAVE}, 1")
    e(f"s_lshl_b32 s{sT+2}, s{sT+1}, 4")
    e(f"s_add_u32 s{sT}, s{sT}, s{sT+2}")
    e(f"s_add_u32 s{sT}, s{sT}, {IDXB}")
    e(f"v_lshl_add_u32 v{vRA}, v3, 5, s{sT}")
    e(f"v_xor_b32 v{vRB}, 16, v{vRA}")
    e(f"s_lshl_b32 s{sT+1}, s{sT+1}, 2")
    e(f"v_add_u32 v{vC16}, s{sT+1}, v4")
    e(f"v_lshlrev_b32 v{vC16}, 4, v{vC16}")
    def perms(j,m):
        d=j%3; par=j&1
        x0,x1=raw(d,2*m),raw(d,2*m+1)
        return [f"v_perm_b32 v{Fr(par,0)+m}, v{x1}, v{x0}, s{sSEL_LO}",
                f"v_perm_b32 v{Fr(par,1)+m}, v{x1}, v{x0}, s{sSEL_HI}",
                f"v_perm_b32 v{Fr(par,2)+m}, v{x1+1}, v{x0+1}, s{sSEL_LO}",
                f"v_perm_b32 v{Fr(par,3)+m}, v{x1+1}, v{x0+1}, s{sSEL_HI}"]
    e(f"s_waitcnt vmcnt({vm.need('bias1')})")
    for m in range(4):
        for x in perms(0,m): e(x)
    for lt in range(2):
        for r in range(4):
            for jj in range(4):
                t=4*r+jj; src=BI+(t>>1)
                if t&1: e(f"v_and_b32 v{acc(lt,jj)+r}, 0xffff0000, v{src}")
                else:   e(f"v_lshlrev_b32 v{acc(lt,jj)+r}, 16, v{src}")
    wloads(3)
    e(f"s_waitcnt vmcnt({vm.need('tbl15')}) lgkmcnt(0)")
    if ST: e("s_memrealtime s[76:77]")
    e("s_barrier")
    if ST: e("s_memrealtime s[78:79]")
    if ST: e("s_memtime s[90:91]")
    if ST: e("s_waitcnt lgkmcnt(0)")
    if opt.prio: e(f"s_setprio {opt.prio}")
    def IAop(j): e(f"ds_read_b128 v[{AD}:{AD+3}], v{vRA} offset:{j*1024}"); lg.issue(f"IA{j}")
    def IBop(j): e(f"ds_read_b128 v[{AD+4}:{AD+7}], v{vRB} offset:{j*1024}"); lg.issue(f"IB{j}")
    def Xop(lt):
        if opt.nogather: e(f"v_lshlrev_b32 v{AD+lt}, 4, v2")
        else: e(f"v_xor_b32 v{AD+lt}, v{vC16}, v{AD+lt}")
    def Rop(lt,j): e(f"ds_read_b128 v[{AF+4*lt}:{AF+4*lt+3}], v{AD+lt}"); lg.issue(f"R{lt}_{j}")
    IAop(0); IBop(0)
    e("s_waitcnt lgkmcnt(0)")
    for lt in range(8): Xop(lt)
    for lt in range(4): Rop(lt,0)
    IAop(1)
    for lt in range(4,8): Rop(lt,0)
    IBop(1)
    NJ=13
    W2P=RAW+0; EV=RAW+8
    W2P=raw(1,0); EV=raw(1,4)
    for j in range(NJ):
        g.c(f"---- iteration {j} ----")
        par=j&1
        for half in range(2):
            needs=[f"R{lt}_{j}" for lt in range(4*half,4*half+4)]
            if j+1<NJ: needs.append(("IA" if half==0 else "IB")+f"{j+1}")
            e(f"s_waitcnt lgkmcnt({min(lg.need(x) for x in needs)})")
            for lt in range(4*half,4*half+4):
                fill=[]
                if j+1<NJ:
                    m=lt>>1
                    if lt==0: fill.append(lambda j=j: e(f"s_waitcnt vmcnt({vm.need(f'w{j+1}_7')})"))
                    ps=perms(j+1,m)
                    sel=ps[:2] if lt%2==0 else ps[2:]
                    for x in sel: fill.append(lambda x=x: e(x))
                    if lt%2==1 and j+4<NJ:
                        fill.append(lambda j=j,m=m: wloads(j+4,[m]))
                if j==10 and lt==7:
                    def late():
                        e(f"s_lshl_b32 s{sT}, s{sCB}, 7")
                        e(f"v_lshl_add_u32 v{EV+2}, v4, 5, s{sT}")
                        e(f"buffer_load_dwordx4 v[{W2P}:{W2P+3}], v{EV+2}, s[{S_B}:{S_B+3}], 0 offen"); vm.issue("w2a")
                        e(f"buffer_load_dwordx4 v[{W2P+4}:{W2P+7}], v{EV+2}, s[{S_B}:{S_B+3}], 0 offen offset:16"); vm.issue("w2b")
                        e(f"v_lshrrev_b32 v{EV+3}, 5, v2")
                        e(f"v_and_b32 v{EV+4}, 15, v2")
                        e(f"v_lshl_add_u32 v{EV+3}, v{EV+3}, 4, v{EV+4}")
                        e(f"s_lshl_b32 s{sT}, s{sRB}, 7")
                        e(f"s_lshl_b32 s{sT+1}, s{sWAVE}, 5")
                        e(f"s_add_u32 s{sT}, s{sT}, s{sT+1}")
                        e(f"v_add_u32 v{EV+3}, s{sT}, v{EV+3}")
                        e(f"v_lshlrev_b32 v{EV+3}, 3, v{EV+3}")
                        e(f"s_mov_b32 s{sT+2}, {EPOCH}")
                        e(f"buffer_load_dwordx2 v[{EV}:{EV+1}], v{EV+3}, s[{S_WS}:{S_WS+3}], s{sT+2} offen"); vm.issue("ev")
                    fill.append(late)
                k=0
                for jj in range(4):
                    c=f"v[{acc(lt,jj)}:{acc(lt,jj)+3}]"
                    src=c if (j>0 or lt<2) else "0"
                    e(f"v_mfma_f32_16x16x32_bf16 {c}, v[{Fr(par,jj)}:{Fr(par,jj)+3}], v[{AF+4*lt}:{AF+4*lt+3}], {src}")
                    if jj<3:
                        take=2 if jj<2 else len(fill)-k
                        for f in fill[k:k+take]: f()
                        k+=take
                    if jj==2 and j+1<NJ: Xop(lt)
                if j+1<NJ: Rop(lt,j+1)
            if j+2<NJ:
                (IAop if half==0 else IBop)(j+2)
    g.c("---- K-split reduction ----")
    if ST: e("s_memrealtime s[80:81]")
    if ST: e("s_memtime s[92:93]")
    gu={1:2,2:1,3:3}
    WA=AD
    e(f"v_lshlrev_b32 v{AD+3}, 4, v2")
    for u in (1,2,3):
        e(f"s_xor_b32 s{sT}, s{sWAVE}, {gu[u]}")
        e(f"s_mul_i32 s{sT}, s{sT}, 24576")
        e(f"s_add_u32 s{sT}, s{sT}, {(u-1)*8192}")
        e(f"v_add_u32 v{WA+u-1}, s{sT}, v{AD+3}")
    e(f"s_mul_i32 s{sT}, s{sWAVE}, 24576")
    e(f"v_add_u32 v{AD+3}, s{sT}, v{AD+3}")
    e("s_barrier")
    if ST: e("s_memrealtime s[82:83]")
    for lt in range(2,8):
        for jj in range(4):
            e(f"ds_write_b128 v{WA+(lt>>1)-1}, v[{acc(lt,jj)}:{acc(lt,jj)+3}] offset:{((lt&1)*4+jj)*1024}")
    W2F=AF
    e(f"s_waitcnt vmcnt(0)")
    for t in range(16):
        src=W2P+(t>>1)
        if t&1: e(f"v_and_b32 v{W2F+t}, 0xffff0000, v{src}")
        else:   e(f"v_lshlrev_b32 v{W2F+t}, 16, v{src}")
    e(f"s_mov_b32 s{sT+3}, {f2u(C2)}")
    e(f"v_mov_b32 v{AF+16}, {f2u(C1)}")
    vC1=AF+16
    e("s_waitcnt lgkmcnt(0)")
    e("s_barrier")
    if ST: e("s_memrealtime s[84:85]")
    if ST: e("s_waitcnt lgkmcnt(0)")
    lg=Q()
    PB=ACC+32
    def part(sl,t): return PB+(t*3+sl)*4
    for t in range(8):
        for sl in range(3):
            e(f"ds_read_b128 v[{part(sl,t)}:{part(sl,t)+3}], v{AD+3} offset:{sl*8192+t*1024}"); lg.issue(f"p{sl}_{t}")
    S0,S1=AF+17,AF+18
    e(f"v_mov_b32 v{S0}, 0"); e(f"v_mov_b32 v{S1}, 0")
    T=F0
    for t in range(8):
        lt,jj=t>>2,t&3
        n=lg.need(f"p2_{t}")
        e(f"s_waitcnt lgkmcnt({min(n,15)})")
        a=acc(lt,jj)
        for r in range(4): e(f"v_add_f32 v{a+r}, v{a+r}, v{part(0,t)+r}")
        for r in range(4): e(f"v_add_f32 v{part(1,t)+r}, v{part(1,t)+r}, v{part(2,t)+r}")
        for r in range(4): e(f"v_add_f32 v{a+r}, v{a+r}, v{part(1,t)+r}")
        for r in range(4): e(f"v_mul_f32 v{T+r}, v{a+r}, v{a+r}")
        for r in range(4): e(f"v_fma_f32 v{T+r}, v{T+r}, s{sT+3}, v{vC1}")
        for r in range(4): e(f"v_mul_f32 v{T+r}, v{T+r}, v{a+r}")
        for r in range(4): e(f"v_exp_f32 v{T+r}, v{T+r}")
        for r in range(4): e(f"v_mul_f32 v{a+r}, v{a+r}, v{W2F+4*r+jj}")
        for r in range(4): e(f"v_add_f32 v{T+r}, 1.0, v{T+r}")
        for r in range(4): e(f"v_rcp_f32 v{T+r}, v{T+r}")
        e("s_nop 0")
        S=S0 if lt==0 else S1
        for r in range(4): e(f"v_fmac_f32 v{S}, v{a+r}, v{T+r}")
    e("s_nop 1")
    e(f"v_permlane32_swap_b32 v{S0}, v{S1}")
    e(f"v_add_f32 v{S0}, v{S0}, v{S1}")
    e(f"v_mov_b32 v{S1}, v{S0}")
    e("s_nop 1")
    e(f"v_permlane16_swap_b32 v{S0}, v{S1}")
    e(f"v_add_f32 v{S0}, v{S0}, v{S1}")
    e(f"s_movk_i32 s{sT}, 0xff")
    e(f"v_add_u32 v{EV}, 1, v{EV}")
    e(f"v_bfi_b32 v{EV+1}, s{sT}, v{EV+1}, v{S0}")
    e(f"s_lshl_b32 s{sT+1}, s{sCB}, 13")
    e(f"s_add_u32 s{sT+1}, s{sT+1}, {GRAN}")
    e(f"s_mov_b32 exec_lo, 0xffff")
    e(f"s_mov_b32 exec_hi, 0xffff")
    e(f"buffer_store_dwordx2 v[{EV}:{EV+1}], v{EV+3}, s[{S_WS}:{S_WS+3}], s{sT+1} offen sc0 sc1")
    if ST:
        e("s_memrealtime s[86:87]")
        e("s_waitcnt vmcnt(0)")
        e("s_memrealtime s[88:89]")
        e("s_waitcnt lgkmcnt(0)")
        e("s_sub_u32 s92, s92, s90")
        dump_stamps(g,[10,76,78,80,82,84,86,88],92)
    e("s_endpgm")

    g.lab("L_help_pro")
    vm=Q()
    e(f"s_mov_b32 s{sT+6}, {IDXB}")
    e("s_waitcnt lgkmcnt(0)")
    srd(g,S_IDX,P_IDX,106496)
    IV=16; IA_=24; IT=32
    idx_loads(vm,6,IV)
    srd(g,S_TBL,P_TBL,128000)
    table_loads(vm)
    idx_addr(6,IA_,IT)
    e(f"s_waitcnt vmcnt({vm.need('idx5')})")
    idx_store(6,IV,IA_,IT)
    e("s_waitcnt vmcnt(0) lgkmcnt(0)")
    e("s_barrier")
    g.lab("L_help_main")
    sROW=6; sE=38
    e(f"s_sub_u32 s{sT}, s{sWAVE}, 4")
    e(f"s_lshl_b32 s{sROW}, s2, 2")
    e(f"s_add_u32 s{sROW}, s{sROW}, s{sT}")
    e(f"s_mul_i32 s{sT}, s{sROW}, 104")
    e(f"s_add_u32 s{sT+2}, s{P_IDX}, s{sT}")
    e(f"s_addc_u32 s{sT+3}, s{P_IDX+1}, 0")
    e(f"s_load_dwordx16 s[76:91], s[{sT+2}:{sT+3}], 0")
    e(f"s_load_dwordx8 s[92:99], s[{sT+2}:{sT+3}], 64")
    e(f"s_load_dwordx2 s[100:101], s[{sT+2}:{sT+3}], 96")
    e(f"s_lshl_b32 s{sT}, s{sROW}, 3")
    e(f"s_add_u32 s{sT}, s{sT}, {EPOCH}")
    e(f"s_load_dwordx2 s[{sE}:{sE+1}], s[{P_WS}:{P_WS+1}], s{sT}")
    e(f"s_load_dword s9, s[{P_BO}:{P_BO+1}], 0")
    srd(g,S_WS,P_WS,WS_SIZE)
    srd(g,S_A,P_DBG,256)
    srd(g,S_B,P_OUT,2048)
    X=16
    R=44
    e("v_and_b32 v3, 31, v2")
    e("v_lshlrev_b32 v4, 2, v3")
    e("s_waitcnt lgkmcnt(0)")
    for r in range(26 if not opt.nox0 else 0):
        e(f"s_lshl_b32 s{76+r}, s{76+r}, 7")
        e(f"buffer_load_dword v{X+r}, v4, s[{S_TBL}:{S_TBL+3}], s{76+r} offen")
    e("v_lshlrev_b32 v5, 4, v2")
    e("v_mov_b32 v7, 0x7fff0000")
    e("v_cmp_gt_u32 vcc, 26, v3")
    e("s_nop 1")
    e("v_cndmask_b32 v5, v7, v5, vcc")
    e("v_lshlrev_b32 v6, 13, v2")
    e(f"s_lshl_b32 s{sT}, s{sROW}, 3")
    e(f"s_add_u32 s{sT}, s{sT}, {GRAN}")
    e(f"v_add_u32 v6, s{sT}, v6")
    e("v_cmp_gt_u32 vcc, 26, v2")
    e("s_nop 1")
    e("v_cndmask_b32 v6, v7, v6, vcc")
    e("v_cmp_lt_u32 vcc, 31, v2")
    e("s_waitcnt vmcnt(0)")
    e(f"v_mov_b32 v{X+26}, v{X}")
    for r in range(26):
        e(f"v_cndmask_b32 v{X+r}, v{X+r}, v{X+r+1}, vcc")
    for r in range(26):
        e(f"v_lshlrev_b32 v{R+2*r}, 16, v{X+r}")
        e(f"v_and_b32 v{R+2*r+1}, 0xffff0000, v{X+r}")
    if ST: e("s_memrealtime s[76:77]")
    e(f"s_cmp_lg_u32 s{sWAVE}, 4")
    e("s_cbranch_scc1 L_nopoll")
    e(f"s_mov_b32 s{sT+4}, {opt.bound}")
    g.lab("L_poll1")
    e(f"buffer_load_dword v8, off, s[{S_A}:{S_A+3}], 0 sc1")
    e("s_waitcnt vmcnt(0)")
    e(f"v_readfirstlane_b32 s{sT}, v8")
    e("s_nop 1")
    e(f"s_cmp_ge_u32 s{sT}, 52")
    e("s_cbranch_scc1 L_nopoll")
    e("s_sleep 4")
    e(f"s_sub_u32 s{sT+4}, s{sT+4}, 1")
    e("s_cbranch_scc0 L_poll1")
    g.lab("L_nopoll")
    if ST: e("s_memrealtime s[78:79]")
    e("s_barrier")
    if ST: e("s_memrealtime s[80:81]")
    e(f"s_sub_u32 s{sT}, s{sWAVE}, 4")
    e(f"s_lshl_b32 s{sT}, s{sT}, 10")
    e(f"s_add_u32 m0, s{sT}, {CINW}")
    e("s_nop 0")
    for t in range(12):
        if t==11:
            e(f"s_cmp_ge_u32 s{sWAVE}, 6")
            e("s_cbranch_scc1 L_dma_done")
        e(f"buffer_load_dwordx4 v5, s[{S_WS}:{S_WS+3}], s{sT} offen sc1 lds")
        if t<11:
            e(f"s_add_u32 s{sT}, s{sT}, 4096")
            e("s_add_u32 m0, m0, 4096")
            e("s_nop 0")
    g.lab("L_dma_done")
    e(f"v_lshlrev_b32 v8, 4, v2")
    e(f"v_add_u32 v8, {CINW}, v8")
    e("s_waitcnt vmcnt(0)")
    e("s_barrier")
    if ST: e("s_memrealtime s[82:83]")
    if ST: e("s_memtime s[90:91]")
    if ST: e("s_waitcnt lgkmcnt(0)")
    AX=[96,112]; AU=[128,144]
    WF=160
    ZP=192
    MT=208
    lg=Q()
    NS=24
    def rd(s):
        st_=s%4
        if s<22:
            e(f"ds_read_b128 v[{WF+st_*8}:{WF+st_*8+3}], v8 offset:{(2*s)*1024}"); lg.issue(f"x{s}")
            e(f"ds_read_b128 v[{WF+st_*8+4}:{WF+st_*8+7}], v8 offset:{(2*s+1)*1024}"); lg.issue(f"u{s}")
        else:
            e(f"ds_read_b128 v[{WF+st_*8+4}:{WF+st_*8+7}], v8 offset:{(44+s-22)*1024}"); lg.issue(f"u{s}")
    def zops(s):
        b=s&1; ops=[]
        if s<22:
            for ee in range(8):
                r1,r2=pair_of(8*s+ee,0)
                if opt.pk:
                    ops.append(f"v_pk_mul_f32 v[{MT+2*ee}:{MT+2*ee+1}], v[{R+2*r1}:{R+2*r1+1}], v[{R+2*r2}:{R+2*r2+1}]")
                else:
                    ops.append(f"v_mul_f32 v{MT+2*ee}, v{R+2*r1}, v{R+2*r2}")
                    ops.append(f"v_mul_f32 v{MT+2*ee+1}, v{R+2*r1+1}, v{R+2*r2+1}")
                if ee&1:
                    for tl in range(2):
                        ops.append(f"v_cvt_pk_bf16_f32 v{ZP+b*8+tl*4+(ee>>1)}, v{MT+2*(ee-1)+tl}, v{MT+2*ee+tl}")
        else:
            for m2 in range(4):
                for tl in range(2):
                    d=ZP+b*8+tl*4+m2
                    m=(s-22)*8+2*m2
                    if m+1<=12: ops.append(f"v_cvt_pk_bf16_f32 v{d}, v{R+4*m+tl}, v{R+4*(m+1)+tl}")
                    elif m==12: ops.append(f"v_cvt_pk_bf16_f32 v{d}, v{R+4*m+tl}, 1.0")
                    else: ops.append(f"v_mov_b32 v{d}, 0")
        return ops
    for s in range(3): rd(s)
    for x in zops(0): e(x)
    GV=10
    for s in range(NS):
        b=s&1; st_=s%4
        nxt=zops(s+1) if s+1<NS else []
        mf=[]
        for tl in range(2):
            z=f"v[{ZP+b*8+tl*4}:{ZP+b*8+tl*4+3}]"
            if s<22:
                c=f"v[{AX[tl]}:{AX[tl]+15}]"
                mf.append(f"v_mfma_f32_32x32x16_bf16 {c}, v[{WF+st_*8}:{WF+st_*8+3}], {z}, {c if s else 0}")
            c=f"v[{AU[tl]}:{AU[tl]+15}]"
            mf.append(f"v_mfma_f32_32x32x16_bf16 {c}, v[{WF+st_*8+4}:{WF+st_*8+7}], {z}, {c if s else 0}")
        e(f"s_waitcnt lgkmcnt({lg.need(f'u{s}')})")
        if s==0: e("s_nop 0")
        per=(len(nxt)+len(mf)-1)//len(mf) if mf else 0
        k=0
        for i,m in enumerate(mf):
            e(m)
            if i==len(mf)-1 and s+3<NS: rd(s+3)
            for x in nxt[k:k+per]: e(x)
            k+=per
        if nxt: e("s_nop 0")
        if s==NS-3:
            e(f"buffer_load_dwordx2 v[{GV}:{GV+1}], v6, s[{S_WS}:{S_WS+3}], 0 offen sc1")
    e(f"s_add_u32 s{sE}, s{sE}, 1")
    e(f"s_and_b32 s{sE+1}, s{sE+1}, 0xff")
    e("s_nop 9")
    V=9
    e(f"v_mul_f32 v{V}, v{AX[0]}, v{AU[0]}")
    e(f"v_mul_f32 v12, v{AX[1]}, v{AU[1]}")
    for t in range(1,14):
        e(f"v_fmac_f32 v{V}, v{AX[0]+t}, v{AU[0]+t}")
        e(f"v_fmac_f32 v12, v{AX[1]+t}, v{AU[1]+t}")
    e(f"v_add_f32 v{V}, v{V}, v12")
    if ST: e("s_memrealtime s[84:85]")
    if ST: e("s_memtime s[92:93]")
    e("s_mov_b32 exec_lo, 0x3ffffff")
    e("s_mov_b32 exec_hi, 0")
    e(f"s_mov_b32 s{sT+4}, {opt.bound}")
    g.lab("L_poll2")
    e("s_waitcnt vmcnt(0)")
    e(f"v_and_b32 v12, 0xff, v{GV+1}")
    e(f"v_cmp_eq_u32 vcc, s{sE}, v{GV}")
    e(f"v_cmp_eq_u32 s[{sT}:{sT+1}], s{sE+1}, v12")
    e(f"s_and_b64 vcc, vcc, s[{sT}:{sT+1}]")
    e("s_cmp_eq_u64 vcc, exec")
    e("s_cbranch_scc1 L_got")
    e(f"buffer_load_dwordx2 v[{GV}:{GV+1}], v6, s[{S_WS}:{S_WS+3}], 0 offen sc1")
    e(f"s_sub_u32 s{sT+4}, s{sT+4}, 1")
    e("s_cbranch_scc0 L_poll2")
    e("s_waitcnt vmcnt(0)")
    g.lab("L_got")
    e(f"v_and_b32 v12, 0xffffff00, v{GV+1}")
    e(f"v_add_f32 v{V}, v{V}, v12")
    e("s_mov_b64 exec, -1")
    if ST: e("s_memrealtime s[86:87]")
    for dpp in ["quad_perm:[1,0,3,2] row_mask:0xf bank_mask:0xf","quad_perm:[2,3,0,1] row_mask:0xf bank_mask:0xf",
                "row_half_mirror row_mask:0xf bank_mask:0xf","row_mirror row_mask:0xf bank_mask:0xf",
                "row_bcast:15 row_mask:0xa bank_mask:0xf","row_bcast:31 row_mask:0xc bank_mask:0xf"]:
        e("s_nop 1")
        e(f"v_add_f32_dpp v{V}, v{V}, v{V} {dpp}")
    e("s_lshl_b32 s9, s9, 16")
    e(f"v_add_f32 v{V}, s9, v{V}")
    e(f"v_cvt_pk_bf16_f32 v{V}, v{V}, v{V}")
    e(f"s_lshl_b32 s{sT}, s{sROW}, 1")
    e(f"s_lshl_b32 s{sT+1}, s{sROW}, 3")
    e(f"s_add_u32 s{sT+1}, s{sT+1}, {EPOCH}")
    e(f"v_mov_b32 v12, s{sE}")
    e("s_mov_b32 exec_lo, 0")
    e("s_mov_b32 exec_hi, 0x80000000")
    e(f"buffer_store_short v{V}, off, s[{S_B}:{S_B+3}], s{sT}")
    e(f"buffer_store_dword v12, off, s[{S_WS}:{S_WS+3}], s{sT+1}")
    if ST:
        e("s_mov_b64 exec, -1")
        e("s_waitcnt vmcnt(0)")
        e("s_memrealtime s[88:89]")
        e("s_waitcnt lgkmcnt(0)")
        e("s_sub_u32 s92, s92, s90")
        dump_stamps(g,[10,76,78,80,82,84,86,88],92)
    e("s_endpgm")

    g.lab("L_aux")
    e("s_waitcnt lgkmcnt(0)")
    srd(g,S_TBL,P_TBL,128000)
    e(f"s_cmp_lg_u32 s{sSLOT}, 26")
    e("s_cbranch_scc1 L_prefetch")
    e(f"s_cmp_ge_u32 s{sXCD}, 7")
    e("s_cbranch_scc1 L_prefetch")
    g.c("---- CIN weight folding: rows i = 4*xcd + (wave&3) ----")
    S_C=S_IDX
    srd(g,S_C,P_CIN,105456)
    srd(g,S_WS,P_WS,WS_SIZE)
    srd(g,S_A,P_DBG,256)
    e(f"s_load_dwordx16 s[76:91], s[{P_WOUT}:{P_WOUT+1}], 104")
    sI=6
    e(f"s_and_b32 s{sT}, s{sWAVE}, 3")
    e(f"s_lshl_b32 s{sI}, s{sXCD}, 2")
    e(f"s_add_u32 s{sI}, s{sI}, s{sT}")
    vm=Q()
    M=16
    e("v_lshlrev_b32 v3, 2, v0")
    e("v_mov_b32 v7, 0x7fff0000")
    e("v_cmp_gt_u32 vcc, 338, v0") if False else None
    e(f"s_movk_i32 s{sT+1}, 338")
    e(f"v_cmp_gt_u32 vcc, s{sT+1}, v0")
    e("s_nop 1")
    e("v_cndmask_b32 v3, v7, v3, vcc")
    for gg in range(26):
        if gg%3==0: e(f"s_mov_b32 s{sT+2}, {2*35152+gg*1352}")
        e(f"buffer_load_dword v{M+gg}, v3, s[{S_C}:{S_C+3}], s{sT+2} offen offset:{(gg%3)*1352}"); vm.issue(f"m{gg}")
    PP=44; QQ=52
    e("v_lshrrev_b32 v4, 1, v2")
    e("v_and_b32 v5, 1, v2")
    e("v_lshlrev_b32 v4, 3, v4")
    for ee in range(8):
        e(f"v_add_u32 v8, {ee}, v4")
        e("v_mul_u32_u24 v9, 5042, v8")
        e("v_lshrrev_b32 v9, 16, v9")
        e("v_mul_u32_u24 v10, 13, v9")
        e("v_sub_u32 v10, v8, v10")
        e(f"v_lshl_add_u32 v{PP+ee}, v10, 1, v5")
        e(f"v_add_u32 v{QQ+ee}, v{PP+ee}, v9")
        e(f"v_subrev_u32 v10, 26, v{QQ+ee}")
        e(f"v_min_u32 v{QQ+ee}, v{QQ+ee}, v10")
    e(f"s_cmp_ge_u32 s{sWAVE}, 4")
    e("s_cbranch_scc1 L_aux_w1")
    Pq=60
    e("v_and_b32 v8, 31, v2")
    e("v_lshrrev_b32 v9, 5, v2")
    e(f"s_movk_i32 s{sT+1}, {8*1352}")
    e(f"v_mul_lo_u32 v10, v9, s{sT+1}")
    e("v_lshl_add_u32 v10, v8, 1, v10")
    e("v_cmp_gt_u32 vcc, 26, v8")
    e("s_nop 1")
    e("v_cndmask_b32 v10, v7, v10, vcc")
    e("v_cmp_gt_u32 vcc, 32, v2")
    e("s_nop 1")
    e("v_cndmask_b32 v11, v7, v10, vcc")
    e(f"s_mul_i32 s{sT+3}, s{sI}, 52")
    e(f"s_add_u32 s{sT+3}, s{sT+3}, 35152")
    PR=76
    for s in range(2):
        for ee in range(8):
            h=16*s+ee
            if h%3==0 or ee==0:
                hb=h; e(f"s_add_u32 s{sT+2}, s{sT+3}, {h*1352}")
            va=11 if (s==1 and ee>=2) else 10
            e(f"buffer_load_ushort v{PR+s*8+ee}, v{va}, s[{S_C}:{S_C+3}], s{sT+2} offen offset:{(h-hb)*1352}"); vm.issue(f"p{h}")
    S_O=S_B
    srd(g,S_O,P_WOUT,156)
    e("v_lshlrev_b32 v12, 2, v2")
    e(f"buffer_load_dword v13, v12, s[{S_O}:{S_O+3}], 0 offen offset:52"); vm.issue("w2row")
    e(f"s_lshl_b32 s{sT+2}, s{sI}, 1")
    e(f"buffer_load_ushort v14, off, s[{S_O}:{S_O+3}], s{sT+2}"); vm.issue("w1i")
    e("s_branch L_aux_m3")
    g.lab("L_aux_w1")
    vm2=Q(); vm2.ops=list(vm.ops[:26])
    GA=60; GB=68
    e(f"s_mul_i32 s{sT+3}, s{sI}, 1352")
    for ee in range(8):
        e(f"v_mul_u32_u24 v8, 26, v{PP+ee}")
        e(f"v_add_lshl_u32 v8, v8, v{QQ+ee}, 1")
        e(f"buffer_load_ushort v{GA+ee}, v8, s[{S_C}:{S_C+3}], s{sT+3} offen")
        e(f"v_mul_u32_u24 v9, 26, v{QQ+ee}")
        e(f"v_add_lshl_u32 v9, v9, v{PP+ee}, 1")
        e(f"buffer_load_ushort v{GB+ee}, v9, s[{S_C}:{S_C+3}], s{sT+3} offen")
    e("buffer_load_dword v13, off, s[%d:%d], 0"%(S_C,S_C+3))
    e("buffer_load_dword v14, off, s[%d:%d], 0"%(S_C,S_C+3))
    g.lab("L_aux_m3")
    e("s_waitcnt lgkmcnt(0)")
    for gg in range(26):
        sreg=76+(gg>>1)
        if gg&1: e(f"s_and_b32 s{sT+4+(gg&1)}, s{sreg}, 0xffff0000")
        else:    e(f"s_lshl_b32 s{sT+4+(gg&1)}, s{sreg}, 16")
        e(f"s_waitcnt vmcnt({18+25-gg})")
        e(f"v_lshlrev_b32 v8, 16, v{M+gg}")
        e(f"v_and_b32 v9, 0xffff0000, v{M+gg}")
        if gg==0:
            e(f"v_mul_f32 v10, s{sT+4}, v8"); e(f"v_mul_f32 v11, s{sT+4}, v9")
        else:
            e(f"v_fmac_f32 v10, s{sT+4+(gg&1)}, v8"); e(f"v_fmac_f32 v11, s{sT+4+(gg&1)}, v9")
    e("v_mul_u32_u24 v8, 5042, v0")
    e("v_lshrrev_b32 v8, 16, v8")
    e("v_mul_u32_u24 v9, 13, v8")
    e("v_sub_u32 v9, v0, v9")
    e("v_lshlrev_b32 v9, 7, v9")
    e("v_lshl_add_u32 v9, v8, 1, v9")
    e("v_cvt_pk_bf16_f32 v10, v10, v11")
    e(f"s_movk_i32 s{sT+1}, 338")
    e(f"v_cmp_gt_u32 vcc, s{sT+1}, v0")
    e(f"s_and_saveexec_b64 s[{sT+2}:{sT+3}], vcc")
    e("ds_write_b16 v9, v10")
    e("ds_write_b16_d16_hi v9, v10 offset:64")
    e("s_mov_b64 exec, -1")
    e(f"s_cmp_ge_u32 s{sWAVE}, 4")
    e("s_cbranch_scc1 L_aux_w1b")
    e("v_lshlrev_b32 v8, 6, v2")
    e("v_mov_b32 v9, 0")
    e("s_mov_b32 exec_lo, 0x7ffffff")
    e("s_mov_b32 exec_hi, 0")
    e("ds_write_b32 v8, v9 offset:52")
    e("ds_write_b64 v8, v[8:9] offset:56") if False else None
    e("ds_write_b32 v8, v9 offset:56")
    e("ds_write_b32 v8, v9 offset:60")
    e("s_mov_b32 exec_lo, 0x1fff")
    e("s_waitcnt vmcnt(0)")
    e(f"ds_write_b32 v12, v13 offset:{26*64}")
    e("s_mov_b64 exec, -1")
    for r in range(8): e(f"v_lshl_or_b32 v{Pq+r}, v{PR+2*r+1}, 16, v{PR+2*r}")
    e("s_waitcnt lgkmcnt(0)")
    e("s_barrier")
    e("v_and_b32 v8, 31, v2")
    e("v_lshrrev_b32 v9, 5, v2")
    e("v_lshlrev_b32 v8, 6, v8")
    e("v_lshl_add_u32 v8, v9, 4, v8")
    Qq=16
    e(f"ds_read_b128 v[{Qq}:{Qq+3}], v8")
    e(f"ds_read_b128 v[{Qq+4}:{Qq+7}], v8 offset:32")
    D=24
    e("s_waitcnt lgkmcnt(0)")
    e(f"v_mfma_f32_32x32x16_bf16 v[{D}:{D+15}], v[{Pq}:{Pq+3}], v[{Qq}:{Qq+3}], 0")
    e(f"v_mfma_f32_32x32x16_bf16 v[{D}:{D+15}], v[{Pq+4}:{Pq+7}], v[{Qq+4}:{Qq+7}], v[{D}:{D+15}]")
    e(f"v_mfma_f32_32x32x16_bf16 v[{D}:{D+15}], v[{Qq}:{Qq+3}], v[{Pq}:{Pq+3}], v[{D}:{D+15}]")
    e(f"v_mfma_f32_32x32x16_bf16 v[{D}:{D+15}], v[{Qq+4}:{Qq+7}], v[{Pq+4}:{Pq+7}], v[{D}:{D+15}]")
    e(f"s_mul_i32 s{sT+1}, s{sWAVE}, 5120")
    e(f"s_add_u32 s{sT+1}, s{sT+1}, 4096")
    e("v_and_b32 v8, 31, v2")
    e(f"s_movk_i32 s{sT+2}, 144")
    e(f"v_mul_lo_u32 v8, v8, s{sT+2}")
    e("v_lshl_add_u32 v8, v9, 4, v8")
    e(f"v_add_u32 v8, s{sT+1}, v8")
    RA=68
    e("v_cmp_lt_u32 vcc, 43, v2")
    e("v_subrev_u32 v10, 176, v4")
    e("v_mov_b32 v11, 26")
    for ee in range(8):
        e(f"v_add_u32 v12, {ee}, v10")
        e("v_lshl_add_u32 v12, v12, 1, v5")
        e(f"v_min_u32 v12, 31, v12")
        e(f"v_cndmask_b32 v{QQ+ee}, v{QQ+ee}, v12, vcc")
        e(f"v_cndmask_b32 v12, v{PP+ee}, v11, vcc")
        e(f"v_mul_lo_u32 v12, v12, s{sT+2}")
        e(f"v_lshl_add_u32 v12, v{QQ+ee}, 2, v12")
        e(f"v_add_u32 v{RA+ee}, s{sT+1}, v12")
    for m in range(4):
        e(f"ds_write_b128 v8, v[{D+4*m}:{D+4*m+3}] offset:{m*32}")
    e("s_waitcnt lgkmcnt(0)")
    VV=16
    for ee in range(8): e(f"ds_read_b32 v{VV+ee}, v{RA+ee}")
    e("v_lshlrev_b32 v14, 16, v14")
    e("s_waitcnt lgkmcnt(0)")
    e("v_cmp_eq_u32 vcc, 46, v2")
    e("s_nop 1")
    e(f"v_cndmask_b32 v{VV+5}, v{VV+5}, v14, vcc")
    e("v_cmp_eq_u32 vcc, 47, v2")
    e("s_nop 1")
    e(f"v_cndmask_b32 v{VV+5}, v{VV+5}, 0, vcc")
    e("v_cmp_lt_u32 vcc, 45, v2")
    e("s_nop 1")
    e(f"v_cndmask_b32 v{VV+6}, v{VV+6}, 0, vcc")
    e(f"v_cndmask_b32 v{VV+7}, v{VV+7}, 0, vcc")
    e("v_lshrrev_b32 v8, 1, v2")
    e("v_lshl_add_u32 v9, v8, 1, 1")
    e("v_add_u32 v8, 22, v8")
    e("v_cmp_lt_u32 vcc, 43, v2")
    e("s_nop 1")
    e("v_cndmask_b32 v9, v9, v8, vcc")
    e(f"s_mov_b32 s{sT+6}, 48")
    e("s_branch L_aux_pack")
    g.lab("L_aux_w1b")
    e("s_waitcnt lgkmcnt(0)")
    e("s_barrier")
    e("s_waitcnt vmcnt(0)")
    for ee in range(8):
        e(f"v_lshlrev_b32 v{GA+ee}, 16, v{GA+ee}")
        e(f"v_lshlrev_b32 v{GB+ee}, 16, v{GB+ee}")
        e(f"v_add_f32 v{VV+ee}, v{GA+ee}, v{GB+ee}")
    e("v_and_b32 v9, 62, v2")
    e(f"s_mov_b32 s{sT+6}, 44")
    g.lab("L_aux_pack")
    e("v_mov_b32 v10, 1.0")
    e("v_cmp_gt_u32 vcc, 2, v2")
    e("s_nop 1")
    e("v_cndmask_b32 v11, v10, 0.5, vcc")
    e("v_cmp_gt_u32 vcc, 4, v2")
    e("s_nop 1")
    e("v_cndmask_b32 v10, v10, 0.5, vcc")
    for ee in range(8): e(f"v_mul_f32 v{VV+ee}, v{VV+ee}, v{10 if ee<5 else 11}")
    e("v_cmp_eq_u32 vcc, 43, v2")
    e("s_nop 1")
    e(f"v_cndmask_b32 v{VV+7}, v{VV+7}, 0, vcc")
    for m in range(4): e(f"v_cvt_pk_bf16_f32 v{24+m}, v{VV+2*m}, v{VV+2*m+1}")
    e("v_lshlrev_b32 v9, 10, v9")
    e("v_lshl_add_u32 v9, v5, 9, v9")
    e(f"s_lshl_b32 s{sT+1}, s{sI}, 4")
    e(f"v_add_u32 v9, s{sT+1}, v9")
    e(f"v_cmp_gt_u32 vcc, s{sT+6}, v2")
    e("s_nop 1")
    e("v_cndmask_b32 v9, v7, v9, vcc")
    e(f"s_cmp_ge_u32 s{sI}, 26")
    e("s_cbranch_scc1 L_aux_done")
    e(f"buffer_store_dwordx4 v[24:27], v9, s[{S_WS}:{S_WS+3}], 0 offen sc0 sc1")
    e("v_mov_b32 v8, 1")
    e("s_mov_b64 exec, 1")
    e("s_waitcnt vmcnt(0)")
    e(f"buffer_atomic_add v8, off, s[{S_A}:{S_A+3}], 0 sc1")
    e("s_mov_b64 exec, -1")
    e("s_branch L_aux_done")
    g.lab("L_prefetch")
    if opt.pf:
        srd(g,S_W,P_W,1664*3328)
        if opt.cpf:
            e(f"s_getpc_b64 s[{S_IDX}:{S_IDX+1}]")
            g.lab("L_pc")
            e(f"s_sub_u32 s{S_IDX}, s{S_IDX}, L_pc-standalone__deep_cross_xdeepfm__recsys_kernel")
            e(f"s_subb_u32 s{S_IDX+1}, s{S_IDX+1}, 0")
            e(f"s_mov_b32 s{S_IDX+2}, L_end-standalone__deep_cross_xdeepfm__recsys_kernel")
            e(f"s_mov_b32 s{S_IDX+3}, 0x20000")
            e("v_lshlrev_b32 v3, 7, v0")
            e(f"buffer_load_dword v8, v3, s[{S_IDX}:{S_IDX+3}], 0 offen")
        e(f"s_cmp_lt_u32 s{sSLOT}, 27")
        e("s_cbranch_scc1 L_aux_done")
        e(f"s_sub_u32 s{sT}, s{sSLOT}, 27")
        e(f"s_mul_i32 s{sT+1}, s{sXCD}, 26")
        e(f"s_lshr_b32 s{sT+1}, s{sT+1}, 3")
        e(f"s_lshl_b32 s{sT+1}, s{sT+1}, 7")
        e(f"s_movk_i32 s{sT+2}, 3328")
        for u in range(3):
            e(f"v_add_u32 v3, {512*u}, v0")
            e(f"v_mad_u32_u24 v3, v3, 5, s{sT}")
            e("v_lshrrev_b32 v4, 2, v3")
            e("v_and_b32 v3, 3, v3")
            e(f"v_mul_lo_u32 v4, v4, s{sT+2}")
            e("v_lshl_add_u32 v3, v3, 7, v4")
            e(f"buffer_load_dword v{9+u}, v3, s[{S_W}:{S_W+3}], s{sT+1} offen")
    g.lab("L_aux_done")
    e(f"s_cmp_ge_u32 s{sWAVE}, 4")
    e("s_cbranch_scc1 L_help_main")
    g.lab("L_end")
    e("s_endpgm")
    g.L.append('.section .rodata,"a"')
    g.L.append(".p2align 6")
    g.L.append(".amdhsa_kernel standalone__deep_cross_xdeepfm__recsys_kernel")
    for x in ["next_free_vgpr 256","next_free_sgpr 102","accum_offset 256","group_segment_fixed_size 0","kernarg_size 88",
              "user_sgpr_count 2","user_sgpr_kernarg_segment_ptr 1","system_sgpr_workgroup_id_x 1"]:
        g.L.append("  .amdhsa_"+x)
    g.L.append(".end_amdhsa_kernel")
    return "\n".join(g.L)+"\n"

def dump_stamps(g,regs,cyc):
    e=g.e
    e("s_mov_b64 exec, -1")
    e("s_waitcnt lgkmcnt(0)")
    e("s_lshl_b32 s12, s2, 3")
    e(f"s_add_u32 s12, s12, s{sWAVE}")
    e("s_lshl_b32 s12, s12, 6")
    e(f"s_add_u32 s12, s12, {STAMP}")
    for i,r in enumerate(regs): e(f"v_mov_b32 v{16+i}, s{r}")
    e("s_mov_b64 exec, 1")
    e(f"buffer_store_dwordx4 v[16:19], off, s[{S_WS}:{S_WS+3}], s12")
    e(f"buffer_store_dwordx4 v[20:23], off, s[{S_WS}:{S_WS+3}], s12 offset:16")
    e(f"v_mov_b32 v24, s{cyc}")
    e(f"buffer_store_dword v24, off, s[{S_WS}:{S_WS+3}], s12 offset:32")

if __name__=="__main__":
    ap=argparse.ArgumentParser()
    ap.add_argument("-o",default="k.s"); ap.add_argument("--stamps",type=int,default=0)
    ap.add_argument("--pk",type=int,default=0); ap.add_argument("--pf",type=int,default=1); ap.add_argument("--cpf",type=int,default=1)
    ap.add_argument("--now",type=int,default=0); ap.add_argument("--nogather",type=int,default=0); ap.add_argument("--nox0",type=int,default=0); ap.add_argument("--prio",type=int,default=0); ap.add_argument("--bound",type=int,default=20000)
    opt=ap.parse_args()
    for t in range(512): assert (t*5042)>>16==t//13, t
    for t in range(3584): assert (t*2521)>>16==t//26, t
    open(opt.o,"w").write(build(opt))
```

```python
import sys, argparse

class Q:
    def __init__(s): s.ops=[]
    def issue(s,name): s.ops.append(name)
    def need(s,name):
        i=len(s.ops)-1-s.ops[::-1].index(name)
        return min(63,len(s.ops)-1-i)
    def clear(s): s.ops=[]

class G:
    def __init__(s,opt):
        s.L=[]; s.opt=opt; s.nst=0
    def e(s,x): s.L.append("    "+x)
    def lab(s,x): s.L.append(x+":")
    def c(s,x): s.L.append("    ; "+x)

WIMG=0; GRAN=65536; EPOCH=0x50000; STAMP=0x100000; WS_SIZE=0x200000
IDXB=129024
CINW=98304
import math
C1=-2*math.sqrt(2/math.pi)*math.log2(math.e); C2=C1*0.044715
import struct
def f2u(x): return struct.unpack('<I',struct.pack('<f',x))[0]

sWAVE,sXCD,sSLOT,sCB,sRB=3,4,5,7,8
P_IDX,P_TBL,P_CIN,P_WOUT,P_W,P_B1,P_W2,P_BO=16,18,20,22,24,26,28,30
P_OUT,P_DBG,P_WS=32,34,36
S_IDX,S_TBL,S_W,S_WS,S_A,S_B=40,44,48,52,56,60
sSEL_LO,sSEL_HI=64,65
sT=66
sROWIDX=76

def srd(g,d,p,size):
    g.e(f"s_mov_b32 s{d}, s{p}"); g.e(f"s_mov_b32 s{d+1}, s{p+1}")
    g.e(f"s_mov_b32 s{d+2}, {size}"); g.e(f"s_mov_b32 s{d+3}, 0x20000")

def stamp(g,slot):
    if not g.opt.stamps: return
    g.e("s_memrealtime s[12:13]")
    g.e("s_waitcnt lgkmcnt(0)") if g.opt.stamps==2 else None
    g.e(f"s_mov_b32 s{90+slot if False else 15}, s15") if False else None

def pair_of(n,hh):
    if n<169: dlt,m=divmod(n,13)
    else: dlt,m=13,n-169
    r=2*m
    return r,(r+dlt)%26

def build(opt):
    g=G(opt); e=g.e
    ST=opt.stamps
    g.L.append("; @launch grid=(256,1,1) block=(512,1,1) lds=163840")
    g.L.append('.amdgcn_target "amdgcn-amd-amdhsa--gfx950"')
    g.L.append(".text")
    g.L.append(".globl standalone__deep_cross_xdeepfm__recsys_kernel")
    g.L.append(".p2align 8")
    g.L.append(".type standalone__deep_cross_xdeepfm__recsys_kernel,@function")
    g.lab("standalone__deep_cross_xdeepfm__recsys_kernel")
    def st(k):
        if ST: e(f"s_memrealtime s[{STB+2*k}:{STB+2*k+1}]")
    global STB
    STB=76
    e("s_load_dwordx16 s[16:31], s[0:1], 0")
    e("s_load_dwordx4 s[32:35], s[0:1], 64")
    e("s_load_dwordx2 s[36:37], s[0:1], 80")
    if ST: e("s_memrealtime s[10:11]")
    e("s_cmp_ge_u32 s2, 256")
    e("s_cbranch_scc1 L_end")
    e("v_lshrrev_b32 v1, 6, v0")
    e("v_and_b32 v2, 63, v0")
    e(f"v_readfirstlane_b32 s{sWAVE}, v1")
    e(f"s_and_b32 s{sXCD}, s2, 7")
    e(f"s_lshr_b32 s{sSLOT}, s2, 3")
    e(f"s_cmp_ge_u32 s{sSLOT}, 26")
    e("s_cbranch_scc1 L_aux")
    e(f"s_mul_i32 s6, s{sXCD}, 26")
    e(f"s_add_u32 s6, s6, s{sSLOT}")
    e(f"s_lshr_b32 s{sCB}, s6, 3")
    e(f"s_and_b32 s{sRB}, s6, 7")
    e("v_lshrrev_b32 v3, 3, v2")
    e("v_lshrrev_b32 v4, 4, v2")
    e("v_and_b32 v5, 7, v2")
    e("v_xor_b32 v5, v5, v4")
    e(f"s_and_b32 s{sT}, s{sWAVE}, 1")
    e(f"s_lshl_b32 s{sT+1}, s{sT}, 2")
    e(f"v_xor_b32 v5, s{sT+1}, v5")
    e("v_lshlrev_b32 v5, 4, v5")
    e("v_lshl_add_u32 v5, v3, 7, v5")
    e(f"s_lshr_b32 s{sT+2}, s{sWAVE}, 1")
    e(f"s_lshl_b32 s{sT+3}, s{sSLOT}, 1")
    e(f"s_add_u32 s{sT+2}, s{sT+2}, s{sT+3}")
    e(f"s_lshl_b32 s{sT+2}, s{sT+2}, 11")
    e(f"s_lshl_b32 s{sT+3}, s{sT}, 10")
    e(f"s_add_u32 m0, s{sT+2}, s{sT+3}")
    e("v_lshlrev_b32 v6, 2, v0")
    e(f"s_mul_i32 s{sT+4}, s{sRB}, 13312")
    e(f"s_cmp_ge_u32 s{sWAVE}, 4")
    e("s_cbranch_scc1 L_help_pro")

    def table_loads(vm):
        for t in range(16):
            e(f"buffer_load_dwordx4 v5, s[{S_TBL}:{S_TBL+3}], m0 offen lds"); vm.issue(f"tbl{t}")
            if t<15:
                e("s_add_u32 m0, m0, 8192")
                e("s_cmp_ge_u32 m0, 129024")
                e(f"s_cselect_b32 s{sT+5}, 129024, 0")
                e(f"s_sub_u32 m0, m0, s{sT+5}")
                e("s_nop 0")
    def idx_loads(vm,n,vd):
        for m in range(n):
            if m and m%2==0: e(f"s_add_u32 s{sT+4}, s{sT+4}, 4096")
            e(f"buffer_load_dword v{vd+m}, v6, s[{S_IDX}:{S_IDX+3}], s{sT+4} offen offset:{(m%2)*2048}"); vm.issue(f"idx{m}")
    def idx_addr(n,va,t0):
        a,b,c,d=t0,t0+1,t0+2,t0+3
        for m in range(n):
            x=va+m
            e(f"v_add_u32 v{a}, {512*m}, v0")
            e(f"v_mul_u32_u24 v{b}, 2521, v{a}")
            e(f"v_lshrrev_b32 v{b}, 16, v{b}")
            e(f"v_mul_u32_u24 v{c}, 26, v{b}")
            e(f"v_sub_u32 v{a}, v{a}, v{c}")
            e(f"v_and_b32 v{c}, 15, v{b}")
            e(f"v_lshlrev_b32 v{c}, 5, v{c}")
            e(f"v_lshl_add_u32 v{x}, v{a}, 9, v{c}")
            e(f"v_lshrrev_b32 v{c}, 6, v{b}")
            e(f"v_xor_b32 v{c}, v{c}, v{a}")
            e(f"v_and_b32 v{c}, 1, v{c}")
            e(f"v_lshl_add_u32 v{x}, v{c}, 3, v{x}")
            e(f"v_bfe_u32 v{c}, v{b}, 5, 1")
            e(f"v_lshl_add_u32 v{x}, v{c}, 4, v{x}")
            e(f"v_bfe_u32 v{c}, v{b}, 4, 1")
            e(f"v_lshl_add_u32 v{x}, v{c}, 2, v{x}")
            e(f"v_add_u32 v{x}, s{sT+6}, v{x}")
    def idx_store(n,vd,va,t0):
        for m in range(n):
            x=vd+m
            e(f"v_lshlrev_b32 v{t0}, 3, v{x}")
            e(f"v_and_b32 v{t0}, 0x70, v{t0}")
            e(f"v_lshl_or_b32 v{x}, v{x}, 7, v{t0}")
            e(f"ds_write_b32 v{va+m}, v{x}")

    vLANE,vQ=2,4
    vW,vRA,vRB,vC16=1,3,6,7
    AD=8; AF=16; F0=48; RAW=80; ACC=128
    def acc(lt,jj): return ACC+(lt*4+jj)*4
    def Fr(par,jj): return F0+par*16+jj*4
    def raw(d,ee): return RAW+d*16+ee*2
    vm=Q(); lg=Q()
    g.c("---- DNN wave prologue ----")
    e(f"s_lshl_b32 s{sT+7}, s{sWAVE}, 5")
    e(f"v_lshl_add_u32 v7, v4, 3, s{sT+7}")
    e(f"s_movk_i32 s{sT+8}, 3328")
    e(f"v_mul_lo_u32 v7, v7, s{sT+8}")
    e("v_and_b32 v3, 15, v2")
    e("v_lshl_add_u32 v1, v3, 3, v7")
    e(f"s_lshl_b32 s{sT+7}, s{sCB}, 7")
    e(f"v_add_u32 v1, s{sT+7}, v1")
    e(f"v_lshl_add_u32 v7, v4, 5, s{sT+7}")
    e(f"s_mov_b32 s{sSEL_LO}, 0x05040100")
    e(f"s_mov_b32 s{sSEL_HI}, 0x07060302")
    e(f"s_mov_b32 s{sT+6}, {IDXB}")
    e("s_waitcnt lgkmcnt(0)")
    srd(g,S_IDX,P_IDX,106496);
    IV=AF; IA_=AF+8; IT=AF+16
    idx_loads(vm,7,IV)
    srd(g,S_W,P_W,1664*3328)
    sWO=12
    def wloads(j,pairs=range(4)):
        d=j%3
        for i in pairs:
            if opt.now and j>=4:
                vm.issue(f"w{j}_{2*i}"); vm.issue(f"w{j}_{2*i+1}"); vm.ops=vm.ops[:-2]+[]; vm.ops.insert(0,f"w{j}_{2*i}"); vm.ops.insert(0,f"w{j}_{2*i+1}")
                continue
            e(f"s_mov_b32 s{sWO+i}, {j*425984+i*6656}")
            for h in range(2):
                ee=2*i+h
                e(f"buffer_load_dwordx2 v[{raw(d,ee)}:{raw(d,ee)+1}], v{vW}, s[{S_W}:{S_W+3}], s{sWO+i} offen offset:{h*3328}"); vm.issue(f"w{j}_{ee}")
    wloads(0)
    srd(g,S_A,P_B1,3328)
    BI=F0+16
    e(f"buffer_load_dwordx4 v[{BI}:{BI+3}], v7, s[{S_A}:{S_A+3}], 0 offen"); vm.issue("bias0")
    e(f"buffer_load_dwordx4 v[{BI+4}:{BI+7}], v7, s[{S_A}:{S_A+3}], 0 offen offset:16"); vm.issue("bias1")
    srd(g,S_TBL,P_TBL,128000)
    table_loads(vm)
    wloads(1); wloads(2)
    srd(g,S_WS,P_WS,WS_SIZE)
    srd(g,S_B,P_W2,3328)
    idx_addr(7,IA_,IT)
    e(f"s_waitcnt vmcnt({vm.need('idx6')})")
    idx_store(7,IV,IA_,IT)
    e(f"s_lshr_b32 s{sT}, s{sWAVE}, 1")
    e(f"s_lshl_b32 s{sT}, s{sT}, 9")
    e(f"s_and_b32 s{sT+1}, s{sWAVE}, 1")
    e(f"s_lshl_b32 s{sT+2}, s{sT+1}, 4")
    e(f"s_add_u32 s{sT}, s{sT}, s{sT+2}")
    e(f"s_add_u32 s{sT}, s{sT}, {IDXB}")
    e(f"v_lshl_add_u32 v{vRA}, v3, 5, s{sT}")
    e(f"v_xor_b32 v{vRB}, 16, v{vRA}")
    e(f"s_lshl_b32 s{sT+1}, s{sT+1}, 2")
    e(f"v_add_u32 v{vC16}, s{sT+1}, v4")
    e(f"v_lshlrev_b32 v{vC16}, 4, v{vC16}")
    def perms(j,m):
        d=j%3; par=j&1
        x0,x1=raw(d,2*m),raw(d,2*m+1)
        return [f"v_perm_b32 v{Fr(par,0)+m}, v{x1}, v{x0}, s{sSEL_LO}",
                f"v_perm_b32 v{Fr(par,1)+m}, v{x1}, v{x0}, s{sSEL_HI}",
                f"v_perm_b32 v{Fr(par,2)+m}, v{x1+1}, v{x0+1}, s{sSEL_LO}",
                f"v_perm_b32 v{Fr(par,3)+m}, v{x1+1}, v{x0+1}, s{sSEL_HI}"]
    e(f"s_waitcnt vmcnt({vm.need('bias1')})")
    for m in range(4):
        for x in perms(0,m): e(x)
    for lt in range(2):
        for r in range(4):
            for jj in range(4):
                t=4*r+jj; src=BI+(t>>1)
                if t&1: e(f"v_and_b32 v{acc(lt,jj)+r}, 0xffff0000, v{src}")
                else:   e(f"v_lshlrev_b32 v{acc(lt,jj)+r}, 16, v{src}")
    wloads(3)
    e(f"s_waitcnt vmcnt({vm.need('tbl15')}) lgkmcnt(0)")
    if ST: e("s_memrealtime s[76:77]")
    e("s_barrier")
    if ST: e("s_memrealtime s[78:79]")
    if ST: e("s_memtime s[90:91]")
    if ST: e("s_waitcnt lgkmcnt(0)")
    if opt.prio: e(f"s_setprio {opt.prio}")
    def IAop(j): e(f"ds_read_b128 v[{AD}:{AD+3}], v{vRA} offset:{j*1024}"); lg.issue(f"IA{j}")
    def IBop(j): e(f"ds_read_b128 v[{AD+4}:{AD+7}], v{vRB} offset:{j*1024}"); lg.issue(f"IB{j}")
    def Xop(lt):
        if opt.nogather: e(f"v_lshlrev_b32 v{AD+lt}, 4, v2")
        else: e(f"v_xor_b32 v{AD+lt}, v{vC16}, v{AD+lt}")
    def Rop(lt,j): e(f"ds_read_b128 v[{AF+4*lt}:{AF+4*lt+3}], v{AD+lt}"); lg.issue(f"R{lt}_{j}")
    IAop(0); IBop(0)
    e("s_waitcnt lgkmcnt(0)")
    for lt in range(8): Xop(lt)
    for lt in range(4): Rop(lt,0)
    IAop(1)
    for lt in range(4,8): Rop(lt,0)
    IBop(1)
    NJ=13
    W2P=RAW+0; EV=RAW+8
    W2P=raw(1,0); EV=raw(1,4)
    for j in range(NJ):
        g.c(f"---- iteration {j} ----")
        par=j&1
        for half in range(2):
            needs=[f"R{lt}_{j}" for lt in range(4*half,4*half+4)]
            if j+1<NJ: needs.append(("IA" if half==0 else "IB")+f"{j+1}")
            e(f"s_waitcnt lgkmcnt({min(lg.need(x) for x in needs)})")
            for lt in range(4*half,4*half+4):
                fill=[]
                if j+1<NJ:
                    m=lt>>1
                    if lt==0: fill.append(lambda j=j: e(f"s_waitcnt vmcnt({vm.need(f'w{j+1}_7')})"))
                    ps=perms(j+1,m)
                    sel=ps[:2] if lt%2==0 else ps[2:]
                    for x in sel: fill.append(lambda x=x: e(x))
                    if lt%2==1 and j+4<NJ:
                        fill.append(lambda j=j,m=m: wloads(j+4,[m]))
                if j==10 and lt==7:
                    def late():
                        e(f"s_lshl_b32 s{sT}, s{sCB}, 7")
                        e(f"v_lshl_add_u32 v{EV+2}, v4, 5, s{sT}")
                        e(f"buffer_load_dwordx4 v[{W2P}:{W2P+3}], v{EV+2}, s[{S_B}:{S_B+3}], 0 offen"); vm.issue("w2a")
                        e(f"buffer_load_dwordx4 v[{W2P+4}:{W2P+7}], v{EV+2}, s[{S_B}:{S_B+3}], 0 offen offset:16"); vm.issue("w2b")
                        e(f"v_lshrrev_b32 v{EV+3}, 5, v2")
                        e(f"v_and_b32 v{EV+4}, 15, v2")
                        e(f"v_lshl_add_u32 v{EV+3}, v{EV+3}, 4, v{EV+4}")
                        e(f"s_lshl_b32 s{sT}, s{sRB}, 7")
                        e(f"s_lshl_b32 s{sT+1}, s{sWAVE}, 5")
                        e(f"s_add_u32 s{sT}, s{sT}, s{sT+1}")
                        e(f"v_add_u32 v{EV+3}, s{sT}, v{EV+3}")
                        e(f"v_lshlrev_b32 v{EV+3}, 3, v{EV+3}")
                        e(f"s_mov_b32 s{sT+2}, {EPOCH}")
                        e(f"buffer_load_dwordx2 v[{EV}:{EV+1}], v{EV+3}, s[{S_WS}:{S_WS+3}], s{sT+2} offen"); vm.issue("ev")
                    fill.append(late)
                k=0
                for jj in range(4):
                    c=f"v[{acc(lt,jj)}:{acc(lt,jj)+3}]"
                    src=c if (j>0 or lt<2) else "0"
                    e(f"v_mfma_f32_16x16x32_bf16 {c}, v[{Fr(par,jj)}:{Fr(par,jj)+3}], v[{AF+4*lt}:{AF+4*lt+3}], {src}")
                    if jj<3:
                        take=2 if jj<2 else len(fill)-k
                        for f in fill[k:k+take]: f()
                        k+=take
                    if jj==2 and j+1<NJ: Xop(lt)
                if j+1<NJ: Rop(lt,j+1)
            if j+2<NJ:
                (IAop if half==0 else IBop)(j+2)
    g.c("---- K-split reduction ----")
    if ST: e("s_memrealtime s[80:81]")
    if ST: e("s_memtime s[92:93]")
    gu={1:2,2:1,3:3}
    WA=AD
    e(f"v_lshlrev_b32 v{AD+3}, 4, v2")
    for u in (1,2,3):
        e(f"s_xor_b32 s{sT}, s{sWAVE}, {gu[u]}")
        e(f"s_mul_i32 s{sT}, s{sT}, 24576")
        e(f"s_add_u32 s{sT}, s{sT}, {(u-1)*8192}")
        e(f"v_add_u32 v{WA+u-1}, s{sT}, v{AD+3}")
    e(f"s_mul_i32 s{sT}, s{sWAVE}, 24576")
    e(f"v_add_u32 v{AD+3}, s{sT}, v{AD+3}")
    e("s_barrier")
    if ST: e("s_memrealtime s[82:83]")
    for lt in range(2,8):
        for jj in range(4):
            e(f"ds_write_b128 v{WA+(lt>>1)-1}, v[{acc(lt,jj)}:{acc(lt,jj)+3}] offset:{((lt&1)*4+jj)*1024}")
    W2F=AF
    e(f"s_waitcnt vmcnt(0)")
    for t in range(16):
        src=W2P+(t>>1)
        if t&1: e(f"v_and_b32 v{W2F+t}, 0xffff0000, v{src}")
        else:   e(f"v_lshlrev_b32 v{W2F+t}, 16, v{src}")
    e(f"s_mov_b32 s{sT+3}, {f2u(C2)}")
    e(f"v_mov_b32 v{AF+16}, {f2u(C1)}")
    vC1=AF+16
    e("s_waitcnt lgkmcnt(0)")
    e("s_barrier")
    if ST: e("s_memrealtime s[84:85]")
    if ST: e("s_waitcnt lgkmcnt(0)")
    lg=Q()
    PB=ACC+32
    def part(sl,t): return PB+(t*3+sl)*4
    for t in range(8):
        for sl in range(3):
            e(f"ds_read_b128 v[{part(sl,t)}:{part(sl,t)+3}], v{AD+3} offset:{sl*8192+t*1024}"); lg.issue(f"p{sl}_{t}")
    S0,S1=AF+17,AF+18
    e(f"v_mov_b32 v{S0}, 0"); e(f"v_mov_b32 v{S1}, 0")
    T=F0
    for t in range(8):
        lt,jj=t>>2,t&3
        n=lg.need(f"p2_{t}")
        e(f"s_waitcnt lgkmcnt({min(n,15)})")
        a=acc(lt,jj)
        for r in range(4): e(f"v_add_f32 v{a+r}, v{a+r}, v{part(0,t)+r}")
        for r in range(4): e(f"v_add_f32 v{part(1,t)+r}, v{part(1,t)+r}, v{part(2,t)+r}")
        for r in range(4): e(f"v_add_f32 v{a+r}, v{a+r}, v{part(1,t)+r}")
        for r in range(4): e(f"v_mul_f32 v{T+r}, v{a+r}, v{a+r}")
        for r in range(4): e(f"v_fma_f32 v{T+r}, v{T+r}, s{sT+3}, v{vC1}")
        for r in range(4): e(f"v_mul_f32 v{T+r}, v{T+r}, v{a+r}")
        for r in range(4): e(f"v_exp_f32 v{T+r}, v{T+r}")
        for r in range(4): e(f"v_mul_f32 v{a+r}, v{a+r}, v{W2F+4*r+jj}")
        for r in range(4): e(f"v_add_f32 v{T+r}, 1.0, v{T+r}")
        for r in range(4): e(f"v_rcp_f32 v{T+r}, v{T+r}")
        e("s_nop 0")
        S=S0 if lt==0 else S1
        for r in range(4): e(f"v_fmac_f32 v{S}, v{a+r}, v{T+r}")
    e("s_nop 1")
    e(f"v_permlane32_swap_b32 v{S0}, v{S1}")
    e(f"v_add_f32 v{S0}, v{S0}, v{S1}")
    e(f"v_mov_b32 v{S1}, v{S0}")
    e("s_nop 1")
    e(f"v_permlane16_swap_b32 v{S0}, v{S1}")
    e(f"v_add_f32 v{S0}, v{S0}, v{S1}")
    e(f"s_movk_i32 s{sT}, 0xff")
    e(f"v_add_u32 v{EV}, 1, v{EV}")
    e(f"v_bfi_b32 v{EV+1}, s{sT}, v{EV+1}, v{S0}")
    e(f"s_lshl_b32 s{sT+1}, s{sCB}, 13")
    e(f"s_add_u32 s{sT+1}, s{sT+1}, {GRAN}")
    e(f"s_mov_b32 exec_lo, 0xffff")
    e(f"s_mov_b32 exec_hi, 0xffff")
    e(f"buffer_store_dwordx2 v[{EV}:{EV+1}], v{EV+3}, s[{S_WS}:{S_WS+3}], s{sT+1} offen sc0 sc1")
    if ST:
        e("s_memrealtime s[86:87]")
        e("s_waitcnt vmcnt(0)")
        e("s_memrealtime s[88:89]")
        e("s_waitcnt lgkmcnt(0)")
        e("s_sub_u32 s92, s92, s90")
        dump_stamps(g,[10,76,78,80,82,84,86,88],92)
    e("s_endpgm")

    g.lab("L_help_pro")
    vm=Q()
    e(f"s_mov_b32 s{sT+6}, {IDXB}")
    e("s_waitcnt lgkmcnt(0)")
    srd(g,S_IDX,P_IDX,106496)
    IV=16; IA_=24; IT=32
    idx_loads(vm,6,IV)
    srd(g,S_TBL,P_TBL,128000)
    table_loads(vm)
    idx_addr(6,IA_,IT)
    e(f"s_waitcnt vmcnt({vm.need('idx5')})")
    idx_store(6,IV,IA_,IT)
    e("s_waitcnt vmcnt(0) lgkmcnt(0)")
    e("s_barrier")
    g.lab("L_help_main")
    sROW=6; sE=38
    e(f"s_sub_u32 s{sT}, s{sWAVE}, 4")
    e(f"s_lshl_b32 s{sROW}, s2, 2")
    e(f"s_add_u32 s{sROW}, s{sROW}, s{sT}")
    e(f"s_mul_i32 s{sT}, s{sROW}, 104")
    e(f"s_add_u32 s{sT+2}, s{P_IDX}, s{sT}")
    e(f"s_addc_u32 s{sT+3}, s{P_IDX+1}, 0")
    e(f"s_load_dwordx16 s[76:91], s[{sT+2}:{sT+3}], 0")
    e(f"s_load_dwordx8 s[92:99], s[{sT+2}:{sT+3}], 64")
    e(f"s_load_dwordx2 s[100:101], s[{sT+2}:{sT+3}], 96")
    e(f"s_lshl_b32 s{sT}, s{sROW}, 3")
    e(f"s_add_u32 s{sT}, s{sT}, {EPOCH}")
    e(f"s_load_dwordx2 s[{sE}:{sE+1}], s[{P_WS}:{P_WS+1}], s{sT}")
    e(f"s_load_dword s9, s[{P_BO}:{P_BO+1}], 0")
    srd(g,S_WS,P_WS,WS_SIZE)
    srd(g,S_A,P_DBG,256)
    srd(g,S_B,P_OUT,2048)
    X=16
    R=44
    e("v_and_b32 v3, 31, v2")
    e("v_lshlrev_b32 v4, 2, v3")
    e("s_waitcnt lgkmcnt(0)")
    for r in range(26 if not opt.nox0 else 0):
        e(f"s_lshl_b32 s{76+r}, s{76+r}, 7")
        e(f"buffer_load_dword v{X+r}, v4, s[{S_TBL}:{S_TBL+3}], s{76+r} offen")
    e("v_lshlrev_b32 v5, 4, v2")
    e("v_mov_b32 v7, 0x7fff0000")
    e("v_cmp_gt_u32 vcc, 26, v3")
    e("s_nop 1")
    e("v_cndmask_b32 v5, v7, v5, vcc")
    e("v_lshlrev_b32 v6, 13, v2")
    e(f"s_lshl_b32 s{sT}, s{sROW}, 3")
    e(f"s_add_u32 s{sT}, s{sT}, {GRAN}")
    e(f"v_add_u32 v6, s{sT}, v6")
    e("v_cmp_gt_u32 vcc, 26, v2")
    e("s_nop 1")
    e("v_cndmask_b32 v6, v7, v6, vcc")
    e("v_cmp_lt_u32 vcc, 31, v2")
    e("s_waitcnt vmcnt(0)")
    e(f"v_mov_b32 v{X+26}, v{X}")
    for r in range(26):
        e(f"v_cndmask_b32 v{X+r}, v{X+r}, v{X+r+1}, vcc")
    for r in range(26):
        e(f"v_lshlrev_b32 v{R+2*r}, 16, v{X+r}")
        e(f"v_and_b32 v{R+2*r+1}, 0xffff0000, v{X+r}")
    if ST: e("s_memrealtime s[76:77]")
    e(f"s_cmp_lg_u32 s{sWAVE}, 4")
    e("s_cbranch_scc1 L_nopoll")
    e(f"s_mov_b32 s{sT+4}, {opt.bound}")
    g.lab("L_poll1")
    e(f"buffer_load_dword v8, off, s[{S_A}:{S_A+3}], 0 sc1")
    e("s_waitcnt vmcnt(0)")
    e(f"v_readfirstlane_b32 s{sT}, v8")
    e("s_nop 1")
    e(f"s_cmp_ge_u32 s{sT}, 52")
    e("s_cbranch_scc1 L_nopoll")
    e("s_sleep 4")
    e(f"s_sub_u32 s{sT+4}, s{sT+4}, 1")
    e("s_cbranch_scc0 L_poll1")
    g.lab("L_nopoll")
    if ST: e("s_memrealtime s[78:79]")
    e("s_barrier")
    if ST: e("s_memrealtime s[80:81]")
    e(f"s_sub_u32 s{sT}, s{sWAVE}, 4")
    e(f"s_lshl_b32 s{sT}, s{sT}, 10")
    e(f"s_add_u32 m0, s{sT}, {CINW}")
    e("s_nop 0")
    for t in range(12):
        if t==11:
            e(f"s_cmp_ge_u32 s{sWAVE}, 6")
            e("s_cbranch_scc1 L_dma_done")
        e(f"buffer_load_dwordx4 v5, s[{S_WS}:{S_WS+3}], s{sT} offen sc1 lds")
        if t<11:
            e(f"s_add_u32 s{sT}, s{sT}, 4096")
            e("s_add_u32 m0, m0, 4096")
            e("s_nop 0")
    g.lab("L_dma_done")
    e(f"v_lshlrev_b32 v8, 4, v2")
    e(f"v_add_u32 v8, {CINW}, v8")
    e("s_waitcnt vmcnt(0)")
    e("s_barrier")
    if ST: e("s_memrealtime s[82:83]")
    if ST: e("s_memtime s[90:91]")
    if ST: e("s_waitcnt lgkmcnt(0)")
    AX=[96,112]; AU=[128,144]
    WF=160
    ZP=192
    MT=208
    lg=Q()
    NS=24
    def rd(s):
        st_=s%4
        if s<22:
            e(f"ds_read_b128 v[{WF+st_*8}:{WF+st_*8+3}], v8 offset:{(2*s)*1024}"); lg.issue(f"x{s}")
            e(f"ds_read_b128 v[{WF+st_*8+4}:{WF+st_*8+7}], v8 offset:{(2*s+1)*1024}"); lg.issue(f"u{s}")
        else:
            e(f"ds_read_b128 v[{WF+st_*8+4}:{WF+st_*8+7}], v8 offset:{(44+s-22)*1024}"); lg.issue(f"u{s}")
    def zops(s):
        b=s&1; ops=[]
        if s<22:
            for ee in range(8):
                r1,r2=pair_of(8*s+ee,0)
                if opt.pk:
                    ops.append(f"v_pk_mul_f32 v[{MT+2*ee}:{MT+2*ee+1}], v[{R+2*r1}:{R+2*r1+1}], v[{R+2*r2}:{R+2*r2+1}]")
                else:
                    ops.append(f"v_mul_f32 v{MT+2*ee}, v{R+2*r1}, v{R+2*r2}")
                    ops.append(f"v_mul_f32 v{MT+2*ee+1}, v{R+2*r1+1}, v{R+2*r2+1}")
                if ee&1:
                    for tl in range(2):
                        ops.append(f"v_cvt_pk_bf16_f32 v{ZP+b*8+tl*4+(ee>>1)}, v{MT+2*(ee-1)+tl}, v{MT+2*ee+tl}")
        else:
            for m2 in range(4):
                for tl in range(2):
                    d=ZP+b*8+tl*4+m2
                    m=(s-22)*8+2*m2
                    if m+1<=12: ops.append(f"v_cvt_pk_bf16_f32 v{d}, v{R+4*m+tl}, v{R+4*(m+1)+tl}")
                    elif m==12: ops.append(f"v_cvt_pk_bf16_f32 v{d}, v{R+4*m+tl}, 1.0")
                    else: ops.append(f"v_mov_b32 v{d}, 0")
        return ops
    for s in range(3): rd(s)
    for x in zops(0): e(x)
    GV=10
    for s in range(NS):
        b=s&1; st_=s%4
        nxt=zops(s+1) if s+1<NS else []
        mf=[]
        for tl in range(2):
            z=f"v[{ZP+b*8+tl*4}:{ZP+b*8+tl*4+3}]"
            if s<22:
                c=f"v[{AX[tl]}:{AX[tl]+15}]"
                mf.append(f"v_mfma_f32_32x32x16_bf16 {c}, v[{WF+st_*8}:{WF+st_*8+3}], {z}, {c if s else 0}")
            c=f"v[{AU[tl]}:{AU[tl]+15}]"
            mf.append(f"v_mfma_f32_32x32x16_bf16 {c}, v[{WF+st_*8+4}:{WF+st_*8+7}], {z}, {c if s else 0}")
        e(f"s_waitcnt lgkmcnt({lg.need(f'u{s}')})")
        if s==0: e("s_nop 0")
        per=(len(nxt)+len(mf)-1)//len(mf) if mf else 0
        k=0
        for i,m in enumerate(mf):
            e(m)
            if i==len(mf)-1 and s+3<NS: rd(s+3)
            for x in nxt[k:k+per]: e(x)
            k+=per
        if nxt: e("s_nop 0")
        if s==NS-3:
            e(f"buffer_load_dwordx2 v[{GV}:{GV+1}], v6, s[{S_WS}:{S_WS+3}], 0 offen sc1")
    e(f"s_add_u32 s{sE}, s{sE}, 1")
    e(f"s_and_b32 s{sE+1}, s{sE+1}, 0xff")
    e("s_nop 9")
    V=9
    e(f"v_mul_f32 v{V}, v{AX[0]}, v{AU[0]}")
    e(f"v_mul_f32 v12, v{AX[1]}, v{AU[1]}")
    for t in range(1,14):
        e(f"v_fmac_f32 v{V}, v{AX[0]+t}, v{AU[0]+t}")
        e(f"v_fmac_f32 v12, v{AX[1]+t}, v{AU[1]+t}")
    e(f"v_add_f32 v{V}, v{V}, v12")
    if ST: e("s_memrealtime s[84:85]")
    if ST: e("s_memtime s[92:93]")
    e("s_mov_b32 exec_lo, 0x3ffffff")
    e("s_mov_b32 exec_hi, 0")
    e(f"s_mov_b32 s{sT+4}, {opt.bound}")
    g.lab("L_poll2")
    e("s_waitcnt vmcnt(0)")
    e(f"v_and_b32 v12, 0xff, v{GV+1}")
    e(f"v_cmp_eq_u32 vcc, s{sE}, v{GV}")
    e(f"v_cmp_eq_u32 s[{sT}:{sT+1}], s{sE+1}, v12")
    e(f"s_and_b64 vcc, vcc, s[{sT}:{sT+1}]")
    e("s_cmp_eq_u64 vcc, exec")
    e("s_cbranch_scc1 L_got")
    e(f"buffer_load_dwordx2 v[{GV}:{GV+1}], v6, s[{S_WS}:{S_WS+3}], 0 offen sc1")
    e(f"s_sub_u32 s{sT+4}, s{sT+4}, 1")
    e("s_cbranch_scc0 L_poll2")
    e("s_waitcnt vmcnt(0)")
    g.lab("L_got")
    e(f"v_and_b32 v12, 0xffffff00, v{GV+1}")
    e(f"v_add_f32 v{V}, v{V}, v12")
    e("s_mov_b64 exec, -1")
    if ST: e("s_memrealtime s[86:87]")
    for dpp in ["quad_perm:[1,0,3,2] row_mask:0xf bank_mask:0xf","quad_perm:[2,3,0,1] row_mask:0xf bank_mask:0xf",
                "row_half_mirror row_mask:0xf bank_mask:0xf","row_mirror row_mask:0xf bank_mask:0xf",
                "row_bcast:15 row_mask:0xa bank_mask:0xf","row_bcast:31 row_mask:0xc bank_mask:0xf"]:
        e("s_nop 1")
        e(f"v_add_f32_dpp v{V}, v{V}, v{V} {dpp}")
    e("s_lshl_b32 s9, s9, 16")
    e(f"v_add_f32 v{V}, s9, v{V}")
    e(f"v_cvt_pk_bf16_f32 v{V}, v{V}, v{V}")
    e(f"s_lshl_b32 s{sT}, s{sROW}, 1")
    e(f"s_lshl_b32 s{sT+1}, s{sROW}, 3")
    e(f"s_add_u32 s{sT+1}, s{sT+1}, {EPOCH}")
    e(f"v_mov_b32 v12, s{sE}")
    e("s_mov_b32 exec_lo, 0")
    e("s_mov_b32 exec_hi, 0x80000000")
    e(f"buffer_store_short v{V}, off, s[{S_B}:{S_B+3}], s{sT}")
    e(f"buffer_store_dword v12, off, s[{S_WS}:{S_WS+3}], s{sT+1}")
    if ST:
        e("s_mov_b64 exec, -1")
        e("s_waitcnt vmcnt(0)")
        e("s_memrealtime s[88:89]")
        e("s_waitcnt lgkmcnt(0)")
        e("s_sub_u32 s92, s92, s90")
        dump_stamps(g,[10,76,78,80,82,84,86,88],92,1)
    e("s_endpgm")

    g.lab("L_aux")
    e("s_waitcnt lgkmcnt(0)")
    srd(g,S_TBL,P_TBL,128000)
    e(f"s_cmp_lg_u32 s{sSLOT}, 26")
    e("s_cbranch_scc1 L_prefetch")
    e(f"s_cmp_ge_u32 s{sXCD}, 7")
    e("s_cbranch_scc1 L_prefetch")
    g.c("---- CIN weight folding: rows i = 4*xcd + (wave&3) ----")
    S_C=S_IDX
    srd(g,S_C,P_CIN,105456)
    srd(g,S_WS,P_WS,WS_SIZE)
    srd(g,S_A,P_DBG,256)
    e(f"s_load_dwordx16 s[76:91], s[{P_WOUT}:{P_WOUT+1}], 104")
    sI=6
    e(f"s_and_b32 s{sT}, s{sWAVE}, 3")
    e(f"s_lshl_b32 s{sI}, s{sXCD}, 2")
    e(f"s_add_u32 s{sI}, s{sI}, s{sT}")
    vm=Q()
    M=16
    e("v_lshlrev_b32 v3, 2, v0")
    e("v_mov_b32 v7, 0x7fff0000")
    e("v_cmp_gt_u32 vcc, 338, v0") if False else None
    e(f"s_movk_i32 s{sT+1}, 338")
    e(f"v_cmp_gt_u32 vcc, s{sT+1}, v0")
    e("s_nop 1")
    e("v_cndmask_b32 v3, v7, v3, vcc")
    for gg in range(26):
        if gg%3==0: e(f"s_mov_b32 s{sT+2}, {2*35152+gg*1352}")
        e(f"buffer_load_dword v{M+gg}, v3, s[{S_C}:{S_C+3}], s{sT+2} offen offset:{(gg%3)*1352}"); vm.issue(f"m{gg}")
    PP=44; QQ=52
    e("v_lshrrev_b32 v4, 1, v2")
    e("v_and_b32 v5, 1, v2")
    e("v_lshlrev_b32 v4, 3, v4")
    for ee in range(8):
        e(f"v_add_u32 v8, {ee}, v4")
        e("v_mul_u32_u24 v9, 5042, v8")
        e("v_lshrrev_b32 v9, 16, v9")
        e("v_mul_u32_u24 v10, 13, v9")
        e("v_sub_u32 v10, v8, v10")
        e(f"v_lshl_add_u32 v{PP+ee}, v10, 1, v5")
        e(f"v_add_u32 v{QQ+ee}, v{PP+ee}, v9")
        e(f"v_subrev_u32 v10, 26, v{QQ+ee}")
        e(f"v_min_u32 v{QQ+ee}, v{QQ+ee}, v10")
    e(f"s_cmp_ge_u32 s{sWAVE}, 4")
    e("s_cbranch_scc1 L_aux_w1")
    Pq=60
    e("v_and_b32 v8, 31, v2")
    e("v_lshrrev_b32 v9, 5, v2")
    e(f"s_movk_i32 s{sT+1}, {8*1352}")
    e(f"v_mul_lo_u32 v10, v9, s{sT+1}")
    e("v_lshl_add_u32 v10, v8, 1, v10")
    e("v_cmp_gt_u32 vcc, 26, v8")
    e("s_nop 1")
    e("v_cndmask_b32 v10, v7, v10, vcc")
    e("v_cmp_gt_u32 vcc, 32, v2")
    e("s_nop 1")
    e("v_cndmask_b32 v11, v7, v10, vcc")
    e(f"s_mul_i32 s{sT+3}, s{sI}, 52")
    e(f"s_add_u32 s{sT+3}, s{sT+3}, 35152")
    PR=76
    for s in range(2):
        for ee in range(8):
            h=16*s+ee
            if h%3==0 or ee==0:
                hb=h; e(f"s_add_u32 s{sT+2}, s{sT+3}, {h*1352}")
            va=11 if (s==1 and ee>=2) else 10
            e(f"buffer_load_ushort v{PR+s*8+ee}, v{va}, s[{S_C}:{S_C+3}], s{sT+2} offen offset:{(h-hb)*1352}"); vm.issue(f"p{h}")
    S_O=S_B
    srd(g,S_O,P_WOUT,156)
    e("v_lshlrev_b32 v12, 2, v2")
    e(f"buffer_load_dword v13, v12, s[{S_O}:{S_O+3}], 0 offen offset:52"); vm.issue("w2row")
    e(f"s_lshl_b32 s{sT+2}, s{sI}, 1")
    e(f"buffer_load_ushort v14, off, s[{S_O}:{S_O+3}], s{sT+2}"); vm.issue("w1i")
    e("s_branch L_aux_m3")
    g.lab("L_aux_w1")
    vm2=Q(); vm2.ops=list(vm.ops[:26])
    GA=60; GB=68
    e(f"s_mul_i32 s{sT+3}, s{sI}, 1352")
    for ee in range(8):
        e(f"v_mul_u32_u24 v8, 26, v{PP+ee}")
        e(f"v_add_lshl_u32 v8, v8, v{QQ+ee}, 1")
        e(f"buffer_load_ushort v{GA+ee}, v8, s[{S_C}:{S_C+3}], s{sT+3} offen")
        e(f"v_mul_u32_u24 v9, 26, v{QQ+ee}")
        e(f"v_add_lshl_u32 v9, v9, v{PP+ee}, 1")
        e(f"buffer_load_ushort v{GB+ee}, v9, s[{S_C}:{S_C+3}], s{sT+3} offen")
    e("buffer_load_dword v13, off, s[%d:%d], 0"%(S_C,S_C+3))
    e("buffer_load_dword v14, off, s[%d:%d], 0"%(S_C,S_C+3))
    g.lab("L_aux_m3")
    e("s_waitcnt lgkmcnt(0)")
    for gg in range(26):
        sreg=76+(gg>>1)
        if gg&1: e(f"s_and_b32 s{sT+4+(gg&1)}, s{sreg}, 0xffff0000")
        else:    e(f"s_lshl_b32 s{sT+4+(gg&1)}, s{sreg}, 16")
        e(f"s_waitcnt vmcnt({18+25-gg})")
        e(f"v_lshlrev_b32 v8, 16, v{M+gg}")
        e(f"v_and_b32 v9, 0xffff0000, v{M+gg}")
        if gg==0:
            e(f"v_mul_f32 v10, s{sT+4}, v8"); e(f"v_mul_f32 v11, s{sT+4}, v9")
        else:
            e(f"v_fmac_f32 v10, s{sT+4+(gg&1)}, v8"); e(f"v_fmac_f32 v11, s{sT+4+(gg&1)}, v9")
    e("v_mul_u32_u24 v8, 5042, v0")
    e("v_lshrrev_b32 v8, 16, v8")
    e("v_mul_u32_u24 v9, 13, v8")
    e("v_sub_u32 v9, v0, v9")
    e("v_lshlrev_b32 v9, 7, v9")
    e("v_lshl_add_u32 v9, v8, 1, v9")
    e("v_cvt_pk_bf16_f32 v10, v10, v11")
    e(f"s_movk_i32 s{sT+1}, 338")
    e(f"v_cmp_gt_u32 vcc, s{sT+1}, v0")
    e(f"s_and_saveexec_b64 s[{sT+2}:{sT+3}], vcc")
    e("ds_write_b16 v9, v10")
    e("ds_write_b16_d16_hi v9, v10 offset:64")
    e("s_mov_b64 exec, -1")
    e(f"s_cmp_ge_u32 s{sWAVE}, 4")
    e("s_cbranch_scc1 L_aux_w1b")
    e("v_lshlrev_b32 v8, 6, v2")
    e("v_mov_b32 v9, 0")
    e("s_mov_b32 exec_lo, 0x7ffffff")
    e("s_mov_b32 exec_hi, 0")
    e("ds_write_b32 v8, v9 offset:52")
    e("ds_write_b64 v8, v[8:9] offset:56") if False else None
    e("ds_write_b32 v8, v9 offset:56")
    e("ds_write_b32 v8, v9 offset:60")
    e("s_mov_b32 exec_lo, 0x1fff")
    e("s_waitcnt vmcnt(0)")
    e(f"ds_write_b32 v12, v13 offset:{26*64}")
    e("s_mov_b64 exec, -1")
    for r in range(8): e(f"v_lshl_or_b32 v{Pq+r}, v{PR+2*r+1}, 16, v{PR+2*r}")
    e("s_waitcnt lgkmcnt(0)")
    e("s_barrier")
    e("v_and_b32 v8, 31, v2")
    e("v_lshrrev_b32 v9, 5, v2")
    e("v_lshlrev_b32 v8, 6, v8")
    e("v_lshl_add_u32 v8, v9, 4, v8")
    Qq=16
    e(f"ds_read_b128 v[{Qq}:{Qq+3}], v8")
    e(f"ds_read_b128 v[{Qq+4}:{Qq+7}], v8 offset:32")
    D=24
    e("s_waitcnt lgkmcnt(0)")
    e(f"v_mfma_f32_32x32x16_bf16 v[{D}:{D+15}], v[{Pq}:{Pq+3}], v[{Qq}:{Qq+3}], 0")
    e(f"v_mfma_f32_32x32x16_bf16 v[{D}:{D+15}], v[{Pq+4}:{Pq+7}], v[{Qq+4}:{Qq+7}], v[{D}:{D+15}]")
    e(f"v_mfma_f32_32x32x16_bf16 v[{D}:{D+15}], v[{Qq}:{Qq+3}], v[{Pq}:{Pq+3}], v[{D}:{D+15}]")
    e(f"v_mfma_f32_32x32x16_bf16 v[{D}:{D+15}], v[{Qq+4}:{Qq+7}], v[{Pq+4}:{Pq+7}], v[{D}:{D+15}]")
    e(f"s_mul_i32 s{sT+1}, s{sWAVE}, 5120")
    e(f"s_add_u32 s{sT+1}, s{sT+1}, 4096")
    e("v_and_b32 v8, 31, v2")
    e(f"s_movk_i32 s{sT+2}, 144")
    e(f"v_mul_lo_u32 v8, v8, s{sT+2}")
    e("v_lshl_add_u32 v8, v9, 4, v8")
    e(f"v_add_u32 v8, s{sT+1}, v8")
    RA=68
    e("v_cmp_lt_u32 vcc, 43, v2")
    e("v_subrev_u32 v10, 176, v4")
    e("v_mov_b32 v11, 26")
    for ee in range(8):
        e(f"v_add_u32 v12, {ee}, v10")
        e("v_lshl_add_u32 v12, v12, 1, v5")
        e(f"v_min_u32 v12, 31, v12")
        e(f"v_cndmask_b32 v{QQ+ee}, v{QQ+ee}, v12, vcc")
        e(f"v_cndmask_b32 v12, v{PP+ee}, v11, vcc")
        e(f"v_mul_lo_u32 v12, v12, s{sT+2}")
        e(f"v_lshl_add_u32 v12, v{QQ+ee}, 2, v12")
        e(f"v_add_u32 v{RA+ee}, s{sT+1}, v12")
    for m in range(4):
        e(f"ds_write_b128 v8, v[{D+4*m}:{D+4*m+3}] offset:{m*32}")
    e("s_waitcnt lgkmcnt(0)")
    VV=16
    for ee in range(8): e(f"ds_read_b32 v{VV+ee}, v{RA+ee}")
    e("v_lshlrev_b32 v14, 16, v14")
    e("s_waitcnt lgkmcnt(0)")
    e("v_cmp_eq_u32 vcc, 46, v2")
    e("s_nop 1")
    e(f"v_cndmask_b32 v{VV+5}, v{VV+5}, v14, vcc")
    e("v_cmp_eq_u32 vcc, 47, v2")
    e("s_nop 1")
    e(f"v_cndmask_b32 v{VV+5}, v{VV+5}, 0, vcc")
    e("v_cmp_lt_u32 vcc, 45, v2")
    e("s_nop 1")
    e(f"v_cndmask_b32 v{VV+6}, v{VV+6}, 0, vcc")
    e(f"v_cndmask_b32 v{VV+7}, v{VV+7}, 0, vcc")
    e("v_lshrrev_b32 v8, 1, v2")
    e("v_lshl_add_u32 v9, v8, 1, 1")
    e("v_add_u32 v8, 22, v8")
    e("v_cmp_lt_u32 vcc, 43, v2")
    e("s_nop 1")
    e("v_cndmask_b32 v9, v9, v8, vcc")
    e(f"s_mov_b32 s{sT+6}, 48")
    e("s_branch L_aux_pack")
    g.lab("L_aux_w1b")
    e("s_waitcnt lgkmcnt(0)")
    e("s_barrier")
    e("s_waitcnt vmcnt(0)")
    for ee in range(8):
        e(f"v_lshlrev_b32 v{GA+ee}, 16, v{GA+ee}")
        e(f"v_lshlrev_b32 v{GB+ee}, 16, v{GB+ee}")
        e(f"v_add_f32 v{VV+ee}, v{GA+ee}, v{GB+ee}")
    e("v_and_b32 v9, 62, v2")
    e(f"s_mov_b32 s{sT+6}, 44")
    g.lab("L_aux_pack")
    e("v_mov_b32 v10, 1.0")
    e("v_cmp_gt_u32 vcc, 2, v2")
    e("s_nop 1")
    e("v_cndmask_b32 v11, v10, 0.5, vcc")
    e("v_cmp_gt_u32 vcc, 4, v2")
    e("s_nop 1")
    e("v_cndmask_b32 v10, v10, 0.5, vcc")
    for ee in range(8): e(f"v_mul_f32 v{VV+ee}, v{VV+ee}, v{10 if ee<5 else 11}")
    e("v_cmp_eq_u32 vcc, 43, v2")
    e("s_nop 1")
    e(f"v_cndmask_b32 v{VV+7}, v{VV+7}, 0, vcc")
    for m in range(4): e(f"v_cvt_pk_bf16_f32 v{24+m}, v{VV+2*m}, v{VV+2*m+1}")
    e("v_lshlrev_b32 v9, 10, v9")
    e("v_lshl_add_u32 v9, v5, 9, v9")
    e(f"s_lshl_b32 s{sT+1}, s{sI}, 4")
    e(f"v_add_u32 v9, s{sT+1}, v9")
    e(f"v_cmp_gt_u32 vcc, s{sT+6}, v2")
    e("s_nop 1")
    e("v_cndmask_b32 v9, v7, v9, vcc")
    e(f"s_cmp_ge_u32 s{sI}, 26")
    e("s_cbranch_scc1 L_aux_done")
    e(f"buffer_store_dwordx4 v[24:27], v9, s[{S_WS}:{S_WS+3}], 0 offen sc0 sc1")
    e("v_mov_b32 v8, 1")
    e("s_mov_b64 exec, 1")
    e("s_waitcnt vmcnt(0)")
    e(f"buffer_atomic_add v8, off, s[{S_A}:{S_A+3}], 0 sc1")
    e("s_mov_b64 exec, -1")
    e("s_branch L_aux_done")
    g.lab("L_prefetch")
    if opt.pf:
        srd(g,S_W,P_W,1664*3328)
        if opt.cpf:
            e(f"s_getpc_b64 s[{S_IDX}:{S_IDX+1}]")
            g.lab("L_pc")
            e(f"s_sub_u32 s{S_IDX}, s{S_IDX}, L_pc-standalone__deep_cross_xdeepfm__recsys_kernel")
            e(f"s_subb_u32 s{S_IDX+1}, s{S_IDX+1}, 0")
            e(f"s_mov_b32 s{S_IDX+2}, L_end-standalone__deep_cross_xdeepfm__recsys_kernel")
            e(f"s_mov_b32 s{S_IDX+3}, 0x20000")
            e("v_lshlrev_b32 v3, 7, v0")
            e(f"buffer_load_dword v8, v3, s[{S_IDX}:{S_IDX+3}], 0 offen")
        e(f"s_cmp_lt_u32 s{sSLOT}, 27")
        e("s_cbranch_scc1 L_aux_done")
        e(f"s_sub_u32 s{sT}, s{sSLOT}, 27")
        e(f"s_mul_i32 s{sT+1}, s{sXCD}, 26")
        e(f"s_lshr_b32 s{sT+1}, s{sT+1}, 3")
        e(f"s_lshl_b32 s{sT+1}, s{sT+1}, 7")
        e(f"s_movk_i32 s{sT+2}, 3328")
        for u in range(3):
            e(f"v_add_u32 v3, {512*u}, v0")
            e(f"v_mad_u32_u24 v3, v3, 5, s{sT}")
            e("v_lshrrev_b32 v4, 2, v3")
            e("v_and_b32 v3, 3, v3")
            e(f"v_mul_lo_u32 v4, v4, s{sT+2}")
            e("v_lshl_add_u32 v3, v3, 7, v4")
            e(f"buffer_load_dword v{9+u}, v3, s[{S_W}:{S_W+3}], s{sT+1} offen")
    g.lab("L_aux_done")
    e(f"s_cmp_ge_u32 s{sWAVE}, 4")
    e("s_cbranch_scc1 L_help_main")
    g.lab("L_end")
    e("s_endpgm")
    g.L.append('.section .rodata,"a"')
    g.L.append(".p2align 6")
    g.L.append(".amdhsa_kernel standalone__deep_cross_xdeepfm__recsys_kernel")
    for x in ["next_free_vgpr 256","next_free_sgpr 102","accum_offset 256","group_segment_fixed_size 0","kernarg_size 88",
              "user_sgpr_count 2","user_sgpr_kernarg_segment_ptr 1","system_sgpr_workgroup_id_x 1"]:
        g.L.append("  .amdhsa_"+x)
    g.L.append(".end_amdhsa_kernel")
    return "\n".join(g.L)+"\n"

def dump_stamps(g,regs,cyc,role=0):
    e=g.e
    if g.opt.stamps==2:
        e("s_mov_b64 exec, -1")
        e("s_waitcnt lgkmcnt(0)")
        srd(g,S_A,P_DBG,256)
        e("s_not_b32 s12, s10")
        e("v_mov_b32 v16, s12")
        for i,r in enumerate(regs[1:]): e(f"v_mov_b32 v{17+i}, s{r}")
        e("s_mov_b64 exec, 1")
        e(f"buffer_atomic_umax v16, off, s[{S_A}:{S_A+3}], 0 offset:4 sc1")
        for i,r in enumerate(regs[1:]):
            e(f"buffer_atomic_umax v{17+i}, off, s[{S_A}:{S_A+3}], 0 offset:{8+role*28+4*i} sc1")
        return
    e("s_mov_b64 exec, -1")
    e("s_waitcnt lgkmcnt(0)")
    e("s_lshl_b32 s12, s2, 3")
    e(f"s_add_u32 s12, s12, s{sWAVE}")
    e("s_lshl_b32 s12, s12, 6")
    e(f"s_add_u32 s12, s12, {STAMP}")
    for i,r in enumerate(regs): e(f"v_mov_b32 v{16+i}, s{r}")
    e("s_mov_b64 exec, 1")
    e(f"buffer_store_dwordx4 v[16:19], off, s[{S_WS}:{S_WS+3}], s12")
    e(f"buffer_store_dwordx4 v[20:23], off, s[{S_WS}:{S_WS+3}], s12 offset:16")
    e(f"v_mov_b32 v24, s{cyc}")
    e(f"buffer_store_dword v24, off, s[{S_WS}:{S_WS+3}], s12 offset:32")

if __name__=="__main__":
    ap=argparse.ArgumentParser()
    ap.add_argument("-o",default="k.s"); ap.add_argument("--stamps",type=int,default=0)
    ap.add_argument("--pk",type=int,default=0); ap.add_argument("--pf",type=int,default=1); ap.add_argument("--cpf",type=int,default=1)
    ap.add_argument("--now",type=int,default=0); ap.add_argument("--nogather",type=int,default=0); ap.add_argument("--nox0",type=int,default=0); ap.add_argument("--prio",type=int,default=0); ap.add_argument("--bound",type=int,default=20000)
    opt=ap.parse_args()
    for t in range(512): assert (t*5042)>>16==t//13, t
    for t in range(3584): assert (t*2521)>>16==t//26, t
    open(opt.o,"w").write(build(opt))
```

```python
import sys, argparse, math, struct

class Q:
    def __init__(s,cap): s.ops=[]; s.cap=cap
    def issue(s,name): s.ops.append(name)
    def need(s,*names):
        r=99
        for name in names:
            i=len(s.ops)-1-s.ops[::-1].index(name)
            r=min(r,len(s.ops)-1-i)
        return min(r,s.cap)

WIMG=0; GRAN=65536; EPOCH=0x50000; STAMP=0x100000; WS_SIZE=0x200000
RING=128000; FLAGS=160768; CINW=65536
F_IT9,F_RED,F_CW=0,4,8
C1=-2*math.sqrt(2/math.pi)*math.log2(math.e); C2=C1*0.044715
def f2u(x): return struct.unpack('<I',struct.pack('<f',x))[0]
KN="standalone__deep_cross_xdeepfm__recsys_kernel"

sWAVE,sXCD,sSLOT,sCB,sRB=3,4,5,7,8
P_IDX,P_TBL,P_CIN,P_WOUT,P_W,P_B1,P_W2,P_BO=16,18,20,22,24,26,28,30
P_OUT,P_DBG,P_WS=32,34,36
S_IDX,S_TBL,S_W,S_WS,S_A,S_B=40,44,48,52,56,60
sRING,sWR1,sWR2=64,65,15
sT=66

def pair_of(n):
    if n<169: dlt,m=divmod(n,13)
    else: dlt,m=13,n-169
    r=2*m
    return r,(r+dlt)%26

def build(opt):
    L=[]
    cnt=[0]; lastw={}
    def e(x):
        L.append("    "+x)
        cnt[0]+= (int(x.split()[1])+1) if x.startswith("s_nop") else 1
    def hz(key,n):
        d=cnt[0]-lastw[key]
        if d<n: e(f"s_nop {n-d-1}")
    def lab(x): L.append(x+":")
    def cm(x): L.append("    ; "+x)
    E=lambda x:(lambda: e(x))
    ST=opt.stamps
    def srd(d,p,size):
        e(f"s_mov_b32 s{d}, s{p}"); e(f"s_mov_b32 s{d+1}, s{p+1}")
        e(f"s_mov_b32 s{d+2}, {size}"); e(f"s_mov_b32 s{d+3}, 0x20000")
    def st(r,wait=False):
        if ST:
            e(f"s_memrealtime s[{r}:{r+1}]")
            if wait: e("s_waitcnt lgkmcnt(0)")
    def dump(regs,area=0):
        e("s_mov_b64 exec, -1")
        e("s_waitcnt lgkmcnt(0)")
        e("s_lshl_b32 s12, s2, 3")
        e(f"s_add_u32 s12, s12, s{sWAVE}")
        e("s_lshl_b32 s12, s12, 6")
        e(f"s_add_u32 s12, s12, {STAMP+area*0x40000}")
        regs=list(regs)+[regs[0]]*(12-len(regs))
        for i,r in enumerate(regs): e(f"v_mov_b32 v{244+i}, s{r}")
        e("s_mov_b64 exec, 1")
        for i in range(3):
            e(f"buffer_store_dwordx4 v[{244+4*i}:{247+4*i}], off, s[{S_WS}:{S_WS+3}], s12 offset:{16*i}")
        e("s_mov_b64 exec, -1")
    def lds_spin(name,vaddr,vtmp,off,target,sleep=0):
        e(f"s_mov_b32 s{sT+4}, {opt.bound*8}")
        lab(name)
        e(f"ds_read_b32 v{vtmp}, v{vaddr} offset:{off}")
        e("s_waitcnt lgkmcnt(0)")
        e(f"v_readfirstlane_b32 s{sT+5}, v{vtmp}")
        e(f"s_cmp_ge_u32 s{sT+5}, {target}")
        e(f"s_cbranch_scc1 {name}_x")
        if sleep: e(f"s_sleep {sleep}")
        e(f"s_sub_u32 s{sT+4}, s{sT+4}, 1")
        e(f"s_cbranch_scc0 {name}")
        lab(name+"_x")

    L.append("; @launch grid=(256,1,1) block=(512,1,1) lds=163840")
    L.append('.amdgcn_target "amdgcn-amd-amdhsa--gfx950"')
    L.append(".text"); L.append(f".globl {KN}"); L.append(".p2align 8"); L.append(f".type {KN},@function")
    lab(KN)
    e("s_load_dwordx16 s[16:31], s[0:1], 0")
    e("s_load_dwordx4 s[32:35], s[0:1], 64")
    e("s_load_dwordx2 s[36:37], s[0:1], 80")
    st(10)
    e("s_cmp_ge_u32 s2, 256")
    e("s_cbranch_scc1 L_end")
    e("v_lshrrev_b32 v1, 6, v0")
    e("v_and_b32 v2, 63, v0")
    e(f"v_readfirstlane_b32 s{sWAVE}, v1")
    e(f"s_and_b32 s{sXCD}, s2, 7")
    e(f"s_lshr_b32 s{sSLOT}, s2, 3")
    e(f"s_cmp_ge_u32 s{sSLOT}, 26")
    e("s_cbranch_scc1 L_aux")
    e(f"s_mul_i32 s6, s{sXCD}, 26")
    e(f"s_add_u32 s6, s6, s{sSLOT}")
    e(f"s_lshr_b32 s{sCB}, s6, 3")
    e(f"s_and_b32 s{sRB}, s6, 7")
    e("v_lshrrev_b32 v3, 3, v2")
    e("v_lshrrev_b32 v4, 4, v2")
    e("v_and_b32 v5, 7, v2")
    e("v_xor_b32 v5, v5, v4")
    e(f"s_and_b32 s{sT}, s{sWAVE}, 1")
    e(f"s_lshl_b32 s{sT+1}, s{sT}, 2")
    e(f"v_xor_b32 v5, s{sT+1}, v5")
    e("v_lshlrev_b32 v5, 4, v5")
    e("v_lshl_add_u32 v5, v3, 7, v5")
    e(f"s_lshr_b32 s{sT+2}, s{sWAVE}, 1")
    e(f"s_lshl1_add_u32 s{sT+3}, s{sSLOT}, s{sT+2}")
    e(f"s_lshl_b32 s{sT+3}, s{sT+3}, 11")
    e(f"s_lshl_b32 s{sT+4}, s{sT}, 10")
    e(f"s_add_u32 m0, s{sT+3}, s{sT+4}")
    e(f"s_lshl_b32 s{sT+3}, s{sT}, 11")
    e(f"s_sub_u32 s{sWR2}, {63*2048}, s{sT+3}")
    e(f"s_add_u32 s{sWR1}, s{sWR2}, s{sT+4}")
    e("v_lshrrev_b32 v7, 2, v2")
    e("v_and_b32 v8, 3, v2")
    e("v_mul_u32_u24 v6, 104, v7")
    e("v_mad_u32_u24 v6, v8, 28, v6")
    e(f"s_mul_i32 s{sT+4}, s{sRB}, 13312")
    e(f"s_mul_i32 s{sT+5}, s{sWAVE}, 1664")
    e(f"s_add_u32 s{sT+4}, s{sT+4}, s{sT+5}")
    e(f"s_cmp_ge_u32 s{sWAVE}, 4")
    e("s_cbranch_scc1 L_help_pro")

    IV=16; IA=24
    def rec_addrs():
        e(f"s_lshl_b32 s{sT+5}, s{sT}, 7")
        e(f"s_add_u32 s{sT+5}, s{sT+5}, {RING+4096}")
        e(f"v_lshl_add_u32 v7, v7, 3, s{sT+5}")
        e("v_mul_u32_u24 v9, 7, v8")
        e("v_and_b32 v8, 1, v8")
        for par in range(2):
            d=IA+2*par
            if par:
                e("v_xor_b32 v8, 1, v8"); e("v_add_u32 v9, 1, v9")
            e("v_lshrrev_b32 v10, 1, v9")
            e(f"v_lshl_add_u32 v{d}, v10, 8, v7")
            e(f"v_lshl_add_u32 v{d}, v8, 14, v{d}")
            e("v_lshlrev_b32 v10, 1, v8")
            e(f"v_xor_b32 v10, s{sT+2}, v10")
            e(f"v_lshl_add_u32 v{d}, v10, 1, v{d}")
            e(f"v_xor_b32 v{d+1}, 2, v{d}")
            e(f"v_add_u32 v{d+1}, 8192, v{d+1}")
    def table_loads(vm,t0,t1):
        for t in range(t0,t1):
            e(f"buffer_load_dwordx4 v5, s[{S_TBL}:{S_TBL+3}], m0 offen lds"); vm.issue(f"tbl{t}")
            if t<15:
                e("s_add_u32 m0, m0, 8192")
                e(f"s_cmp_ge_u32 m0, s{sWR1}")
                e(f"s_cselect_b32 s{sT+5}, s{sWR2}, 0")
                e(f"s_sub_u32 m0, m0, s{sT+5}")
                e("s_nop 0")
    def idx_loads(vm):
        e(f"buffer_load_dwordx4 v[{IV}:{IV+3}], v6, s[{S_IDX}:{S_IDX+3}], s{sT+4} offen"); vm.issue("idx0")
        e(f"buffer_load_dwordx3 v[{IV+4}:{IV+6}], v6, s[{S_IDX}:{S_IDX+3}], s{sT+4} offen offset:16"); vm.issue("idx1")
    def idx_store():
        for m in range(7):
            x=IV+m
            e(f"v_bfe_u32 v8, v{x}, 1, 3")
            e(f"v_lshl_or_b32 v{x}, v{x}, 3, v8")
            e(f"ds_write_b16 v{IA+2*(m&1)}, v{x} offset:{(m>>1)*256}")
            e(f"ds_write_b16 v{IA+2*(m&1)+1}, v{x} offset:{(m>>1)*256}")
    NT0=opt.nt0

    vW,vT0,vT1=1,3,4
    AD=8; AF=16; F0=48; REC=80; ACC=128
    acc=lambda lt,ct: ACC+(lt*2+ct)*16
    Fr=lambda j,ks,ct: F0+(j&1)*16+(ks*2+ct)*4
    AF2={1:80,2:88,3:96,0:120}
    afr=lambda lt,ks,j: (AF2[lt] if j==12 else AF+8*lt)+4*ks
    vm=Q(63); lg=Q(15)
    cm("---- DNN wave prologue ----")
    rec_addrs()
    e(f"s_lshl_b32 s{sT+7}, s{sWAVE}, 5")
    e(f"v_add_u32 v3, s{sT+7}, v3")
    e("v_mul_u32_u24 v3, 3328, v3")
    e("v_and_b32 v9, 1, v4")
    e("v_lshlrev_b32 v9, 2, v9")
    e("v_and_b32 v10, 7, v2")
    e("v_xor_b32 v9, v9, v10")
    e("v_lshl_add_u32 v1, v9, 4, v3")
    e(f"s_lshl_b32 s{sT+7}, s{sCB}, 7")
    e(f"v_add_u32 v1, s{sT+7}, v1")
    e("v_lshrrev_b32 v12, 5, v2")
    e(f"v_lshl_add_u32 v11, v12, 5, s{sT+7}")
    e(f"s_lshl_b32 s{sRING}, s{sWAVE}, 13")
    e(f"s_add_u32 s{sRING}, s{sRING}, {RING}")
    e("v_bfe_u32 v9, v2, 2, 2")
    e("v_lshlrev_b32 v3, 7, v9")
    e("v_lshl_add_u32 v3, v12, 10, v3")
    e("v_lshrrev_b32 v9, 1, v9")
    e("v_lshl_add_u32 v3, v9, 6, v3")
    e("v_and_b32 v9, 1, v2")
    e("v_lshl_add_u32 v3, v9, 5, v3")
    e("v_bfe_u32 v9, v2, 1, 1")
    e("v_lshl_add_u32 v3, v9, 3, v3")
    e("v_and_b32 v9, 1, v4")
    e("v_lshl_add_u32 v3, v9, 4, v3")
    e(f"v_add_u32 v3, s{sRING}, v3")
    e("v_xor_b32 v4, 64, v3")
    e("v_and_b32 v13, 31, v2")
    e(f"v_lshl_add_u32 v13, v13, 3, s{sRING}")
    e(f"v_add_u32 v14, s{sT+1}, v12")
    e("v_lshl_or_b32 v14, v14, 16, v14")
    e("v_lshlrev_b32 v15, 2, v2")
    e(f"v_add_u32 v15, {FLAGS}, v15")
    e("v_mov_b32 v28, 0")
    e("s_waitcnt lgkmcnt(0)")
    srd(S_IDX,P_IDX,106496)
    idx_loads(vm)
    srd(S_TBL,P_TBL,128000)
    table_loads(vm,0,NT0)
    e("ds_write_b32 v15, v28")
    e(f"s_waitcnt vmcnt({vm.need('idx1')})")
    idx_store()
    srd(S_W,P_W,1664*3328)
    srd(S_A,P_B1,3328)
    e("s_waitcnt lgkmcnt(0)")
    e("s_barrier")
    table_loads(vm,NT0,16)
    sWO=12
    def dma(j,pcs):
        for pc in pcs:
            if opt.now and j>=3:
                vm.ops.insert(0,f"w{j}_{pc}"); continue
            e(f"s_add_u32 m0, s{sRING}, {((j&1)*4+pc)*1024}")
            e(f"s_mov_b32 s{sWO}, {(128*j+8*pc)*3328}")
            e(f"buffer_load_dwordx4 v{vW}, s[{S_W}:{S_W+3}], s{sWO} offen lds"); vm.issue(f"w{j}_{pc}")
    dma(0,range(4))
    BI=106
    for i in range(4):
        e(f"buffer_load_dwordx4 v[{BI+4*i}:{BI+4*i+3}], v11, s[{S_A}:{S_A+3}], 0 offen offset:{(i>>1)*64+(i&1)*16}"); vm.issue(f"bias{i}")
    for j in range(13): e(f"ds_read_b64 v[{REC+2*j}:{REC+2*j+1}], v13 offset:{4096+j*256}")
    st(76)
    srd(S_WS,P_WS,WS_SIZE)
    srd(S_B,P_W2,3328)
    e("s_waitcnt lgkmcnt(0)")
    dma(1,range(4))
    for j in range(26): e(f"v_xor_b32 v{REC+j}, v14, v{REC+j}")
    def adr(lt,j):
        e(f"v_lshlrev_b32_sdwa v{AD+2*lt}, 4, v{REC+2*j+(lt>>1)} dst_sel:DWORD dst_unused:UNUSED_PAD src0_sel:DWORD src1_sel:WORD_{lt&1}")
        e(f"v_xor_b32 v{AD+2*lt+1}, 32, v{AD+2*lt}")
    def Rop(lt,j):
        for ks in range(2):
            e(f"ds_read_b128 v[{afr(lt,ks,j)}:{afr(lt,ks,j)+3}], v{AD+2*lt+ks}"); lg.issue(f"R{lt}_{ks}_{j}")
    def Top(j,ks):
        for ct in range(2):
            for h4 in range(2):
                d=Fr(j,ks,ct)+2*h4
                e(f"ds_read_b64_tr_b16 v[{d}:{d+1}], v{vT0+ct} offset:{((j&1)*4+ks*2)*1024+h4*512}"); lg.issue(f"T{j}_{ks}_{ct}{h4}")
    e(f"v_mov_b32 v7, {FLAGS}")
    for lt in range(4): adr(lt,0)
    e(f"s_waitcnt vmcnt({vm.need('tbl15')})")
    st(78)
    e("s_barrier")
    st(80,True)
    if ST: e("s_memtime s[96:97]"); e("s_waitcnt lgkmcnt(0)")
    if opt.prio: e(f"s_setprio {opt.prio}")
    Rop(1,0)
    e(f"s_waitcnt vmcnt({vm.need('w0_3')})")
    Top(0,0); Top(0,1)
    Rop(2,0); Rop(3,0); Rop(0,0)
    e(f"s_waitcnt vmcnt({vm.need('bias3')})")
    for ct in range(2):
        for t in range(16):
            src=BI+ct*8+(t>>1)
            if t&1: e(f"v_and_b32 v{acc(0,ct)+t}, 0xffff0000, v{src}")
            else:   e(f"v_lshlrev_b32 v{acc(0,ct)+t}, 16, v{src}")
    e(f"s_waitcnt lgkmcnt({lg.need('T0_1_11')})")
    dma(2,range(4))
    def group(lt,j,fills,after=()):
        for i,(ks,ct) in enumerate([(0,0),(0,1),(1,0),(1,1)]):
            c=f"v[{acc(lt,ct)}:{acc(lt,ct)+15}]"
            src=c if (j>0 or lt==0 or ks==1) else "0"
            e(f"v_mfma_f32_32x32x16_bf16 {c}, v[{Fr(j,ks,ct)}:{Fr(j,ks,ct)+3}], v[{afr(lt,ks,j)}:{afr(lt,ks,j)+3}], {src}")
            lastw[(lt,ct)]=cnt[0]
            for f in fills[i]: f()
        for f in after: f()
    LT=[1,2,3,0]
    for j in range(11):
        cm(f"---- iteration {j} ----")
        for g,lt in enumerate(LT):
            needs=[f"R{lt}_1_{j}"]+([f"T{j}_1_11"] if g==0 else [])
            e(f"s_waitcnt lgkmcnt({lg.need(*needs)})")
            fills=[[],[],[],[]]
            if g<2:
                fills[0].append(lambda j=j,g=g: e(f"s_waitcnt vmcnt({vm.need(f'w{j+1}_{2*g+1}')})"))
                fills[0].append(lambda j=j,g=g: Top(j+1,g))
            elif j+3<13:
                fills[0].append(lambda j=j,g=g: e(f"s_waitcnt lgkmcnt({lg.need(f'T{j+1}_{g-2}_11')})"))
                fills[0].append(lambda j=j,g=g: dma(j+3,[2*(g-2)]))
                fills[1].append(lambda j=j,g=g: dma(j+3,[2*(g-2)+1]))
            fills[2].append(lambda j=j,lt=lt: adr(lt,j+1))
            fills[3].append(lambda j=j,lt=lt: Rop(lt,j+1))
            if j==9 and g==3:
                fills[2].append(E("v_mov_b32 v0, 1")); fills[3].append(lambda: (e(f"ds_write_b32 v7, v0 offset:{F_IT9}"),lg.issue("it9")))
            if j==10 and g==2:
                fills[0].append(lambda: adr(1,12)); fills[1].append(lambda: Rop(1,12))
            group(lt,j,fills)
    cm("---- merged iterations 11/12 with reduction writes ----")
    W2P=104; EV=6; WA=AD
    order=[(1,11),(2,11),(1,12),(3,11),(2,12),(0,11),(3,12),(0,12)]
    def wr(lt,qs):
        return [(lambda q=q,lt=lt: (hz((lt,q>>2),12),e(f"ds_write_b128 v{WA+lt-1}, v[{acc(lt,q>>2)+4*(q&3)}:{acc(lt,q>>2)+4*(q&3)+3}] offset:{q*1024}"),lg.issue(f"W{lt}_{q}"))) for q in qs]
    def addrs():
        e(f"v_lshlrev_b32 v{AD+3}, 4, v2")
        e(f"v_add_u32 v{WA}, s{sRING}, v{AD+3}")
        for u in (2,3):
            e(f"s_xor_b32 s{sT}, s{sWAVE}, {u}")
            e(f"s_lshl_b32 s{sT}, s{sT}, 13")
            if u==3: e(f"s_add_u32 s{sT}, s{sT}, 32768")
            e(f"v_add_u32 v{WA+u-1}, s{sT}, v{AD+3}")
        e(f"s_xor_b32 s{sT}, s{sWAVE}, 1")
        e(f"s_lshl_b32 s{sT}, s{sT}, 13")
        e(f"s_add_u32 s{sT}, s{sT}, {RING}")
        e(f"v_add_u32 v{AD+4}, s{sT}, v{AD+3}")
        e(f"s_lshl_b32 s{sT}, s{sWAVE}, 13")
        e(f"v_add_u32 v{AD+3}, s{sT}, v{AD+3}")
    def late():
        e(f"s_lshl_b32 s{sT}, s{sCB}, 7")
        e(f"v_lshrrev_b32 v5, 5, v2")
        e(f"v_lshl_add_u32 v5, v5, 5, s{sT}")
        for i in range(4):
            e(f"buffer_load_dwordx4 v[{W2P+4*i}:{W2P+4*i+3}], v5, s[{S_B}:{S_B+3}], 0 offen offset:{(i>>1)*64+(i&1)*16}")
        e(f"v_and_b32 v5, 31, v2")
        e(f"s_lshl_b32 s{sT}, s{sRB}, 7")
        e(f"s_lshl_b32 s{sT+1}, s{sWAVE}, 5")
        e(f"s_add_u32 s{sT}, s{sT}, s{sT+1}")
        e(f"v_add_lshl_u32 v5, v5, s{sT}, 3")
        e(f"s_mov_b32 s{sT+2}, {EPOCH}")
        e(f"v_mov_b32 v1, v7")
        e(f"buffer_load_dwordx2 v[{EV}:{EV+1}], v5, s[{S_WS}:{S_WS+3}], s{sT+2} offen")
    pend=[]
    for gi,(lt,j) in enumerate(order):
        fills=[[],[],[],[]]; after=[]
        needs=[f"R{lt}_1_{j}"]+([f"T{j}_1_11"] if gi in (0,2) else [])
        e(f"s_waitcnt lgkmcnt({lg.need(*needs)})")
        if gi==0:
            fills[0].append(lambda: e(f"s_waitcnt vmcnt({vm.need('w12_3')})"))
            fills[0].append(lambda: Top(12,0)); fills[1].append(lambda: Top(12,1))
            fills[2].append(lambda: (adr(2,12),Rop(2,12)))
            fills[3].append(lambda: (adr(3,12),Rop(3,12)))
        if gi==1:
            fills[0].append(lambda: (adr(0,12),Rop(0,12)))
            fills[1].append(addrs); fills[2].append(late)
        if gi>=3:
            if gi==5:
                def bar2():
                    e(f"s_waitcnt lgkmcnt({lg.need('R0_1_12')})")
                    st(82); e("s_barrier"); st(84)
                fills[0].append(bar2)
            sched=opt.wsched
            for i in range(4):
                if gi in (3,5,7) and i==0:
                    if gi!=5: fills[0].append(E("s_nop 3"))
                    continue
                n=2 if not (gi==7 and i==3) else 99
                take=[p for p in pend[:n]]
                fills[i]+=take; pend=pend[len(take):]
        group(lt,j,fills,after)
        if j==12 and lt>=1: pend+=wr(lt,[0,1,2,3,4,5,6,7])
    for f in pend: f()
    st(86)
    if ST: e("s_memtime s[98:99]")
    W2F=AF
    e("s_waitcnt vmcnt(0)")
    for t in range(32):
        src=W2P+(t>>1)
        if t&1: e(f"v_and_b32 v{W2F+t}, 0xffff0000, v{src}")
        else:   e(f"v_lshlrev_b32 v{W2F+t}, 16, v{src}")
    vC1=F0+16; S0=F0+17; S1=F0+18
    e(f"s_mov_b32 s{sT+2}, {f2u(C2)}")
    e(f"v_mov_b32 v{vC1}, {f2u(C1)}")
    e(f"v_mov_b32 v{S0}, 0"); e(f"v_mov_b32 v{S1}, 0")
    e("v_mov_b32 v0, 1")
    e("s_mov_b64 exec, 1")
    e("s_waitcnt lgkmcnt(0)")
    e(f"ds_add_u32 v1, v0 offset:{F_RED}")
    e("s_mov_b64 exec, -1")
    lds_spin("L_red",1,0,F_RED,4)
    st(88,True)
    lg=Q(15)
    PB=ACC+32
    part=lambda sl,q: PB+(q*3+sl)*4
    for q in range(8):
        for sl in range(3):
            a,off=(AD+4,q*1024) if sl==0 else (AD+3,(sl-1)*32768+q*1024)
            e(f"ds_read_b128 v[{part(sl,q)}:{part(sl,q)+3}], v{a} offset:{off}"); lg.issue(f"p{sl}_{q}")
    T=F0
    for q in range(8):
        e(f"s_waitcnt lgkmcnt({lg.need(f'p2_{q}')})")
        a=ACC+4*q
        for r in range(4): e(f"v_add_f32 v{a+r}, v{a+r}, v{part(0,q)+r}")
        for r in range(4): e(f"v_add_f32 v{part(1,q)+r}, v{part(1,q)+r}, v{part(2,q)+r}")
        for r in range(4): e(f"v_add_f32 v{a+r}, v{a+r}, v{part(1,q)+r}")
        for r in range(4): e(f"v_mul_f32 v{T+r}, v{a+r}, v{a+r}")
        for r in range(4): e(f"v_fma_f32 v{T+r}, v{T+r}, s{sT+2}, v{vC1}")
        for r in range(4): e(f"v_mul_f32 v{T+r}, v{T+r}, v{a+r}")
        for r in range(4): e(f"v_exp_f32 v{T+r}, v{T+r}")
        for r in range(4): e(f"v_mul_f32 v{a+r}, v{a+r}, v{W2F+4*q+r}")
        for r in range(4): e(f"v_add_f32 v{T+r}, 1.0, v{T+r}")
        for r in range(4): e(f"v_rcp_f32 v{T+r}, v{T+r}")
        e("s_nop 0")
        for r in range(4): e(f"v_fmac_f32 v{S0+(r&1)}, v{a+r}, v{T+r}")
    e(f"v_add_f32 v{S0}, v{S0}, v{S1}")
    e(f"v_mov_b32 v{S1}, v{S0}")
    e(f"s_movk_i32 s{sT}, 0xff")
    e(f"v_add_u32 v{EV}, 1, v{EV}")
    e(f"v_permlane32_swap_b32 v{S0}, v{S1}")
    e(f"s_lshl_b32 s{sT+1}, s{sCB}, 13")
    e(f"v_add_f32 v{S0}, v{S0}, v{S1}")
    e(f"s_add_u32 s{sT+1}, s{sT+1}, {GRAN}")
    e(f"v_bfi_b32 v{EV+1}, s{sT}, v{EV+1}, v{S0}")
    e(f"s_mov_b32 exec_hi, 0")
    e(f"buffer_store_dwordx2 v[{EV}:{EV+1}], v5, s[{S_WS}:{S_WS+3}], s{sT+1} offen sc0 sc1")
    if ST:
        st(90); e("s_waitcnt vmcnt(0)"); st(92,True); e("s_sub_u32 s98, s98, s96")
        dump([10,76,78,80,82,84,86,88,90,92,98])
    e("s_endpgm")

    sROW=6; sE=38
    def row_sloads():
        e(f"s_sub_u32 s{sT+6}, s{sWAVE}, 4")
        e(f"s_lshl2_add_u32 s{sROW}, s2, s{sT+6}")
        e(f"s_mul_i32 s{sT+6}, s{sROW}, 104")
        e(f"s_add_u32 s{sT+6}, s{P_IDX}, s{sT+6}")
        e(f"s_addc_u32 s{sT+7}, s{P_IDX+1}, 0")
        e(f"s_load_dwordx16 s[76:91], s[{sT+6}:{sT+7}], 0")
        e(f"s_load_dwordx8 s[92:99], s[{sT+6}:{sT+7}], 64")
        e(f"s_load_dwordx2 s[100:101], s[{sT+6}:{sT+7}], 96")
        e(f"s_lshl_b32 s{sT+8}, s{sROW}, 3")
        e(f"s_add_u32 s{sT+8}, s{sT+8}, {EPOCH}")
        e(f"s_load_dwordx2 s[{sE}:{sE+1}], s[{P_WS}:{P_WS+1}], s{sT+8}")
        e(f"s_load_dword s9, s[{P_BO}:{P_BO+1}], 0")
    X=32
    lab("L_help_pro")
    vm=Q(63)
    rec_addrs()
    e("s_waitcnt lgkmcnt(0)")
    row_sloads()
    srd(S_IDX,P_IDX,106496)
    idx_loads(vm)
    srd(S_TBL,P_TBL,128000)
    table_loads(vm,0,NT0)
    e(f"s_waitcnt vmcnt({vm.need('idx1')})")
    idx_store()
    e("s_waitcnt lgkmcnt(0)")
    e("s_barrier")
    table_loads(vm,NT0,16)
    e("v_and_b32 v3, 31, v2")
    e("v_lshlrev_b32 v4, 2, v3")
    for r in range(26):
        e(f"s_lshl_b32 s{sT}, s{76+r}, 3")
        e(f"s_and_b32 s{sT}, s{sT}, 0x70")
        e(f"s_lshl_b32 s{76+r}, s{76+r}, 7")
        e(f"s_or_b32 s{76+r}, s{76+r}, s{sT}")
        e(f"v_xor_b32 v{X+r}, s{76+r}, v4")
    e("s_waitcnt vmcnt(0)")
    e("s_barrier")
    for r in range(26): e(f"ds_read_b32 v{X+r}, v{X+r}")
    lab("L_help_main")
    srd(S_WS,P_WS,WS_SIZE); srd(S_A,P_DBG,256); srd(S_B,P_OUT,2048)
    Z0=8
    ZE=lambda s: Z0+4*s
    ZO=lambda s: Z0+88+4*s
    LE=lambda k: Z0+176+4*k
    LO=lambda k: Z0+184+4*k
    R=200; MT=252
    e("v_lshlrev_b32 v5, 4, v2")
    e("v_mov_b32 v7, 0x7fff0000")
    e("v_cmp_gt_u32 vcc, 26, v3")
    e("v_lshlrev_b32 v6, 13, v2")
    e(f"s_lshl_b32 s{sT}, s{sROW}, 3")
    e("v_cndmask_b32 v5, v7, v5, vcc")
    e(f"s_add_u32 s{sT}, s{sT}, {GRAN}")
    e(f"v_add_u32 v6, s{sT}, v6")
    e("v_cmp_gt_u32 vcc, 26, v2")
    e("v_lshlrev_b32 v1, 4, v2")
    e(f"v_add_u32 v1, {CINW}, v1")
    e("v_cndmask_b32 v6, v7, v6, vcc")
    e("v_cmp_lt_u32 vcc, 31, v2")
    e(f"v_mov_b32 v7, {FLAGS}")
    e("s_waitcnt vmcnt(0) lgkmcnt(0)")
    st(76)
    e(f"v_mov_b32 v{X+26}, v{X}")
    for r in range(26):
        e(f"v_cndmask_b32 v{X+r}, v{X+r}, v{X+r+1}, vcc")
    for r in range(26):
        e(f"v_lshlrev_b32 v{R+2*r}, 16, v{X+r}")
        e(f"v_and_b32 v{R+2*r+1}, 0xffff0000, v{X+r}")
    def zstep(s):
        for m in range(4):
            (a1,a2),(b1,b2)=pair_of(8*s+2*m),pair_of(8*s+2*m+1)
            e(f"v_mul_f32 v{MT}, v{R+2*a1}, v{R+2*a2}")
            e(f"v_mul_f32 v{MT+2}, v{R+2*b1}, v{R+2*b2}")
            e(f"v_mul_f32 v{MT+1}, v{R+2*a1+1}, v{R+2*a2+1}")
            e(f"v_mul_f32 v{MT+3}, v{R+2*b1+1}, v{R+2*b2+1}")
            e(f"v_cvt_pk_bf16_f32 v{ZE(s)+m}, v{MT}, v{MT+2}")
            e(f"v_cvt_pk_bf16_f32 v{ZO(s)+m}, v{MT+1}, v{MT+3}")
    def zlin():
        for k in range(2):
            for m2 in range(4):
                m=k*8+2*m2
                for tl,d in ((0,LE(k)+m2),(1,LO(k)+m2)):
                    if m+1<=12: e(f"v_cvt_pk_bf16_f32 v{d}, v{R+4*m+tl}, v{R+4*(m+1)+tl}")
                    elif m==12: e(f"v_cvt_pk_bf16_f32 v{d}, v{R+4*m+tl}, 1.0")
                    else: e(f"v_mov_b32 v{d}, 0")
    for s in range(opt.zsplit): zstep(s)
    st(78)
    lds_spin("L_it9",7,4,F_IT9,1,sleep=1)
    e(f"v_lshlrev_b32 v0, 2, v2")
    e(f"buffer_load_dword v4, v0, s[{S_A}:{S_A+3}], 0 offen sc1")
    for s in range(opt.zsplit,22): zstep(s)
    zlin()
    st(80)
    e(f"s_mov_b32 s{sT+4}, {opt.bound}")
    e(f"s_mov_b32 s{sT+2}, -1")
    e(f"s_mov_b32 s{sT+3}, 0xfffff")
    lab("L_poll1")
    e("s_waitcnt vmcnt(0)")
    e("v_cmp_ne_u32 vcc, 0, v4")
    e(f"s_and_b64 vcc, vcc, s[{sT+2}:{sT+3}]")
    e(f"s_cmp_eq_u64 vcc, s[{sT+2}:{sT+3}]")
    e("s_cbranch_scc1 L_polled")
    e("s_sleep 4")
    e(f"buffer_load_dword v4, v0, s[{S_A}:{S_A+3}], 0 offen sc1")
    e(f"s_sub_u32 s{sT+4}, s{sT+4}, 1")
    e("s_cbranch_scc0 L_poll1")
    lab("L_polled")
    e(f"s_sub_u32 s{sT}, s{sWAVE}, 4")
    e(f"s_lshl_b32 s{sT}, s{sT}, 10")
    e(f"s_add_u32 m0, s{sT}, {CINW}")
    st(82)
    e("s_barrier")
    st(84)
    for t in range(12):
        if t==11:
            e(f"s_cmp_ge_u32 s{sWAVE}, 6")
            e("s_cbranch_scc1 L_dma_done")
        e(f"buffer_load_dwordx4 v5, s[{S_WS}:{S_WS+3}], s{sT} offen sc1 lds")
        if t<11:
            e(f"s_add_u32 m0, m0, 4096")
            e(f"s_add_u32 s{sT}, s{sT}, 4096")
    lab("L_dma_done")
    e("v_mov_b32 v0, 1")
    e("s_mov_b64 exec, 1")
    e("s_waitcnt vmcnt(0)")
    st(86)
    e(f"ds_add_u32 v7, v0 offset:{F_CW}")
    e("s_mov_b64 exec, -1")
    lds_spin("L_cw",7,0,F_CW,4)
    st(88,True)
    if ST: e("s_memtime s[96:97]"); e("s_waitcnt lgkmcnt(0)")
    AXE,AUE=200,216; WF=232
    AXO,AUO=ZE(0),ZE(4)
    lg=Q(15)
    seq=[('e',s) for s in range(8)]+[('o',s) for s in range(8)]+[('eo',s) for s in range(8,24)]
    def rd(i):
        tl,s=seq[i]; b=WF+(i%3)*8
        if s<22:
            e(f"ds_read_b128 v[{b}:{b+3}], v1 offset:{2*s*1024}"); lg.issue(f"x{i}")
            e(f"ds_read_b128 v[{b+4}:{b+7}], v1 offset:{(2*s+1)*1024}"); lg.issue(f"u{i}")
        else:
            e(f"ds_read_b128 v[{b+4}:{b+7}], v1 offset:{(44+s-22)*1024}"); lg.issue(f"u{i}")
    rd(0); rd(1)
    GV=ZE(8)
    for i,(tl,s) in enumerate(seq):
        b=WF+(i%3)*8
        if i+2<len(seq): rd(i+2)
        e(f"s_waitcnt lgkmcnt({lg.need(f'u{i}')})")
        for t in tl:
            z=(ZE if t=='e' else ZO)(s) if s<22 else (LE if t=='e' else LO)(s-22)
            ax,au=(AXE,AUE) if t=='e' else (AXO,AUO)
            if s<22:
                c=f"v[{ax}:{ax+15}]"
                e(f"v_mfma_f32_32x32x16_bf16 {c}, v[{b}:{b+3}], v[{z}:{z+3}], {c if s else 0}")
            c=f"v[{au}:{au+15}]"
            e(f"v_mfma_f32_32x32x16_bf16 {c}, v[{b+4}:{b+7}], v[{z}:{z+3}], {c if s else 0}")
        if i==len(seq)-3:
            e(f"buffer_load_dwordx2 v[{GV}:{GV+1}], v6, s[{S_WS}:{S_WS+3}], 0 offen sc1")
    e(f"s_add_u32 s{sE}, s{sE}, 1")
    e(f"s_and_b32 s{sE+1}, s{sE+1}, 0xff")
    e("s_nop 9")
    V=ZE(9); V2=V+1
    e(f"v_mul_f32 v{V}, v{AXE}, v{AUE}")
    e(f"v_mul_f32 v{V2}, v{AXO}, v{AUO}")
    for t in range(1,14):
        e(f"v_fmac_f32 v{V}, v{AXE+t}, v{AUE+t}")
        e(f"v_fmac_f32 v{V2}, v{AXO+t}, v{AUO+t}")
    e(f"v_add_f32 v{V}, v{V}, v{V2}")
    st(90)
    if ST: e("s_memtime s[98:99]")
    e("s_mov_b32 exec_lo, 0x3ffffff")
    e("s_mov_b32 exec_hi, 0")
    e(f"s_mov_b32 s{sT+4}, {opt.bound}")
    lab("L_poll2")
    e("s_waitcnt vmcnt(0)")
    e(f"v_and_b32 v{V2}, 0xff, v{GV+1}")
    e(f"v_cmp_eq_u32 vcc, s{sE}, v{GV}")
    e(f"v_cmp_eq_u32 s[{sT}:{sT+1}], s{sE+1}, v{V2}")
    e(f"s_and_b64 vcc, vcc, s[{sT}:{sT+1}]")
    e("s_cmp_eq_u64 vcc, exec")
    e("s_cbranch_scc1 L_got")
    e(f"buffer_load_dwordx2 v[{GV}:{GV+1}], v6, s[{S_WS}:{S_WS+3}], 0 offen sc1")
    e(f"s_sub_u32 s{sT+4}, s{sT+4}, 1")
    e("s_cbranch_scc0 L_poll2")
    e("s_waitcnt vmcnt(0)")
    lab("L_got")
    e(f"v_and_b32 v{V2}, 0xffffff00, v{GV+1}")
    e(f"v_add_f32 v{V}, v{V}, v{V2}")
    e("s_mov_b64 exec, -1")
    st(92)
    for dpp in ["quad_perm:[1,0,3,2] row_mask:0xf bank_mask:0xf","quad_perm:[2,3,0,1] row_mask:0xf bank_mask:0xf",
                "row_half_mirror row_mask:0xf bank_mask:0xf","row_mirror row_mask:0xf bank_mask:0xf",
                "row_bcast:15 row_mask:0xa bank_mask:0xf","row_bcast:31 row_mask:0xc bank_mask:0xf"]:
        e("s_nop 1")
        e(f"v_add_f32_dpp v{V}, v{V}, v{V} {dpp}")
    e("s_lshl_b32 s9, s9, 16")
    e(f"v_add_f32 v{V}, s9, v{V}")
    e(f"v_cvt_pk_bf16_f32 v{V}, v{V}, v{V}")
    e(f"s_lshl_b32 s{sT}, s{sROW}, 1")
    e(f"s_lshl_b32 s{sT+1}, s{sROW}, 3")
    e(f"s_add_u32 s{sT+1}, s{sT+1}, {EPOCH}")
    e(f"v_mov_b32 v{V2}, s{sE}")
    e("s_mov_b32 exec_lo, 0")
    e("s_mov_b32 exec_hi, 0x80000000")
    e(f"buffer_store_short v{V}, off, s[{S_B}:{S_B+3}], s{sT}")
    e(f"buffer_store_dword v{V2}, off, s[{S_WS}:{S_WS+3}], s{sT+1}")
    if ST:
        e("s_waitcnt vmcnt(0)"); st(94,True); e("s_sub_u32 s98, s98, s96")
        dump([10,76,78,80,82,84,86,88,90,92,94,98])
    e("s_endpgm")

    lab("L_aux")
    if opt.cpf:
        e(f"s_getpc_b64 s[{S_IDX}:{S_IDX+1}]")
        lab("L_pc")
        e(f"s_sub_u32 s{S_IDX}, s{S_IDX}, L_pc-{KN}")
        e(f"s_subb_u32 s{S_IDX+1}, s{S_IDX+1}, 0")
        e(f"s_mov_b32 s{S_IDX+2}, L_end-{KN}")
        e(f"s_mov_b32 s{S_IDX+3}, 0x20000")
        e("v_lshlrev_b32 v3, 7, v0")
        e(f"buffer_load_dword v255, v3, s[{S_IDX}:{S_IDX+3}], 0 offen")
    e(f"s_lshl1_add_u32 s{sT+1}, s{sXCD}, s{sSLOT}")
    e(f"s_sub_u32 s{sT+1}, s{sT+1}, 26")
    e(f"s_cmp_ge_u32 s{sSLOT}, 28")
    e("s_cbranch_scc1 L_prefetch")
    e(f"s_cmp_ge_u32 s{sT+1}, 7")
    e("s_cbranch_scc1 L_prefetch")
    cm("---- CIN weight folding: rows i = 4*pidx + (wave&3) ----")
    S_C=S_W; S_O=S_B; sI=6
    e(f"s_and_b32 s{sT}, s{sWAVE}, 3")
    e(f"s_lshl2_add_u32 s{sI}, s{sT+1}, s{sT}")
    M=16
    e("v_lshlrev_b32 v3, 2, v0")
    e("v_mov_b32 v7, 0x7fff0000")
    e(f"s_movk_i32 s{sT+1}, 338")
    e(f"v_cmp_gt_u32 vcc, s{sT+1}, v0")
    e("v_lshrrev_b32 v4, 1, v2")
    e("v_and_b32 v5, 1, v2")
    e("v_cndmask_b32 v3, v7, v3, vcc")
    e("v_lshlrev_b32 v4, 3, v4")
    e("s_waitcnt lgkmcnt(0)")
    e(f"s_load_dwordx16 s[76:91], s[{P_WOUT}:{P_WOUT+1}], 104")
    srd(S_C,P_CIN,105456)
    for gg in range(26):
        if gg%3==0: e(f"s_mov_b32 s{sT+2}, {2*35152+gg*1352}")
        e(f"buffer_load_dword v{M+gg}, v3, s[{S_C}:{S_C+3}], s{sT+2} offen offset:{(gg%3)*1352}")
    PP=44; QQ=52
    def slots():
        for ee in range(8):
            e(f"v_add_u32 v8, {ee}, v4")
            e("v_mul_u32_u24 v9, 5042, v8")
            e("v_lshrrev_b32 v9, 16, v9")
            e("v_mul_u32_u24 v10, 13, v9")
            e("v_sub_u32 v10, v8, v10")
            e(f"v_lshl_add_u32 v{PP+ee}, v10, 1, v5")
            e(f"v_add_u32 v{QQ+ee}, v{PP+ee}, v9")
            e(f"v_subrev_u32 v10, 26, v{QQ+ee}")
            e(f"v_min_u32 v{QQ+ee}, v{QQ+ee}, v10")
    def m3(later):
        e("v_mul_u32_u24 v8, 5042, v0")
        e("v_lshrrev_b32 v8, 16, v8")
        e("v_mul_u32_u24 v9, 13, v8")
        e("v_sub_u32 v9, v0, v9")
        e("v_lshlrev_b32 v9, 7, v9")
        e("v_lshl_add_u32 v96, v8, 1, v9")
        e("s_waitcnt lgkmcnt(0)")
        st(92)
        for gg in range(26):
            sreg=76+(gg>>1)
            if gg&1: e(f"s_and_b32 s{sT+4+(gg&1)}, s{sreg}, 0xffff0000")
            else:    e(f"s_lshl_b32 s{sT+4+(gg&1)}, s{sreg}, 16")
            if gg%4==0: e(f"s_waitcnt vmcnt({later+25-min(gg+3,25)})")
            e(f"v_lshlrev_b32 v8, 16, v{M+gg}")
            e(f"v_and_b32 v9, 0xffff0000, v{M+gg}")
            if gg==0:
                e(f"v_mul_f32 v10, s{sT+4}, v8"); e(f"v_mul_f32 v11, s{sT+4}, v9")
            else:
                e(f"v_fmac_f32 v10, s{sT+4+(gg&1)}, v8"); e(f"v_fmac_f32 v11, s{sT+4+(gg&1)}, v9")
        e("v_cvt_pk_bf16_f32 v10, v10, v11")
        e(f"s_movk_i32 s{sT+1}, 338")
        e(f"v_cmp_gt_u32 vcc, s{sT+1}, v0")
        e(f"s_and_saveexec_b64 s[{sT+2}:{sT+3}], vcc")
        e("ds_write_b16 v96, v10")
        e("ds_write_b16_d16_hi v96, v10 offset:64")
        e("s_mov_b64 exec, -1")
        st(94)
    def st_addr(cnt):
        e("v_lshlrev_b32 v6, 10, v6")
        e("v_lshl_add_u32 v6, v5, 9, v6")
        e(f"s_lshl_b32 s{sT+1}, s{sI}, 4")
        e(f"v_add_u32 v6, s{sT+1}, v6")
        e(f"v_cmp_gt_u32 vcc, {cnt}, v2")
        e("v_mov_b32 v94, 1.0")
        e("s_nop 0")
        e("v_cndmask_b32 v6, v7, v6, vcc")
        e("v_cmp_gt_u32 vcc, 2, v2")
        e("s_nop 1")
        e("v_cndmask_b32 v95, v94, 0.5, vcc")
        e("v_cmp_gt_u32 vcc, 4, v2")
        e("s_nop 1")
        e("v_cndmask_b32 v94, v94, 0.5, vcc")
    e(f"s_cmp_ge_u32 s{sWAVE}, 4")
    e("s_cbranch_scc1 L_aux_w1")
    Pq=60; PR=76; RA=68; VV=16
    e("v_and_b32 v8, 31, v2")
    e("v_lshrrev_b32 v15, 5, v2")
    e(f"v_mul_u32_u24 v10, {8*1352}, v15")
    e("v_lshl_add_u32 v10, v8, 1, v10")
    e("v_cmp_gt_u32 vcc, 26, v8")
    e(f"s_mul_i32 s{sT+3}, s{sI}, 52")
    e(f"s_add_u32 s{sT+3}, s{sT+3}, 35152")
    e("v_cndmask_b32 v10, v7, v10, vcc")
    e("v_cmp_gt_u32 vcc, 32, v2")
    e("v_lshlrev_b32 v12, 2, v2")
    e("s_nop 0")
    e("v_cndmask_b32 v11, v7, v10, vcc")
    for s in range(2):
        for ee in range(8):
            h=16*s+ee
            if h%3==0 or ee==0:
                hb=h; e(f"s_add_u32 s{sT+2}, s{sT+3}, {h*1352}")
            va=11 if (s==1 and ee>=2) else 10
            e(f"buffer_load_ushort v{PR+s*8+ee}, v{va}, s[{S_C}:{S_C+3}], s{sT+2} offen offset:{(h-hb)*1352}")
    srd(S_O,P_WOUT,156)
    e(f"buffer_load_dword v13, v12, s[{S_O}:{S_O+3}], 0 offen offset:52")
    e(f"s_lshl_b32 s{sT+2}, s{sI}, 1")
    e(f"buffer_load_ushort v14, off, s[{S_O}:{S_O+3}], s{sT+2}")
    e("v_lshlrev_b32 v8, 6, v2")
    e("v_mov_b32 v9, 0")
    e("s_mov_b32 exec_lo, 0x7ffffff")
    e("s_mov_b32 exec_hi, 0")
    e("ds_write_b32 v8, v9 offset:52")
    e("ds_write_b32 v8, v9 offset:56")
    e("ds_write_b32 v8, v9 offset:60")
    e("s_mov_b64 exec, -1")
    e("v_and_b32 v8, 31, v2")
    e("v_lshlrev_b32 v93, 6, v8")
    e("v_lshl_add_u32 v93, v15, 4, v93")
    e(f"s_mul_i32 s{sT+1}, s{sWAVE}, 5120")
    e(f"s_add_u32 s{sT+1}, s{sT+1}, 4096")
    e("v_mul_u32_u24 v92, 144, v8")
    e("v_lshl_add_u32 v92, v15, 4, v92")
    e(f"v_add_u32 v92, s{sT+1}, v92")
    slots()
    e("v_cmp_lt_u32 vcc, 43, v2")
    e("v_subrev_u32 v10, 176, v4")
    e("v_mov_b32 v11, 26")
    for ee in range(8):
        e(f"v_add_u32 v8, {ee}, v10")
        e("v_lshl_add_u32 v8, v8, 1, v5")
        e(f"v_min_u32 v8, 31, v8")
        e(f"v_cndmask_b32 v8, v{QQ+ee}, v8, vcc")
        e(f"v_cndmask_b32 v9, v{PP+ee}, v11, vcc")
        e(f"v_mul_u32_u24 v9, 144, v9")
        e(f"v_lshl_add_u32 v9, v8, 2, v9")
        e(f"v_add_u32 v{RA+ee}, s{sT+1}, v9")
    e("v_lshrrev_b32 v8, 1, v2")
    e("v_lshl_add_u32 v6, v8, 1, 1")
    e("v_add_u32 v8, 22, v8")
    e("v_cndmask_b32 v6, v6, v8, vcc")
    st_addr(48)
    m3(18)
    e("s_mov_b32 exec_lo, 0x1fff")
    e("s_mov_b32 exec_hi, 0")
    e("s_waitcnt vmcnt(0)")
    e(f"ds_write_b32 v12, v13 offset:{26*64}")
    e("s_mov_b64 exec, -1")
    for r in range(8): e(f"v_lshl_or_b32 v{Pq+r}, v{PR+2*r+1}, 16, v{PR+2*r}")
    e("s_waitcnt lgkmcnt(0)")
    e("s_barrier")
    Qq=16; D=24
    e(f"ds_read_b128 v[{Qq}:{Qq+3}], v93")
    e(f"ds_read_b128 v[{Qq+4}:{Qq+7}], v93 offset:32")
    e("s_waitcnt lgkmcnt(0)")
    e(f"v_mfma_f32_32x32x16_bf16 v[{D}:{D+15}], v[{Pq}:{Pq+3}], v[{Qq}:{Qq+3}], 0")
    e(f"v_mfma_f32_32x32x16_bf16 v[{D}:{D+15}], v[{Pq+4}:{Pq+7}], v[{Qq+4}:{Qq+7}], v[{D}:{D+15}]")
    e(f"v_mfma_f32_32x32x16_bf16 v[{D}:{D+15}], v[{Qq}:{Qq+3}], v[{Pq}:{Pq+3}], v[{D}:{D+15}]")
    e(f"v_mfma_f32_32x32x16_bf16 v[{D}:{D+15}], v[{Qq+4}:{Qq+7}], v[{Pq+4}:{Pq+7}], v[{D}:{D+15}]")
    e("s_nop 11")
    for m in range(4):
        e(f"ds_write_b128 v92, v[{D+4*m}:{D+4*m+3}] offset:{m*32}")
    e("s_waitcnt lgkmcnt(0)")
    for ee in range(8): e(f"ds_read_b32 v{VV+ee}, v{RA+ee}")
    e("v_lshlrev_b32 v14, 16, v14")
    e(f"v_cmp_eq_u32 s[{sT}:{sT+1}], 46, v2")
    e(f"v_cmp_eq_u32 s[{sT+2}:{sT+3}], 47, v2")
    e("v_cmp_lt_u32 vcc, 45, v2")
    e("s_waitcnt lgkmcnt(0)")
    e(f"v_cndmask_b32 v{VV+5}, v{VV+5}, v14, s[{sT}:{sT+1}]")
    e(f"v_cndmask_b32 v{VV+5}, v{VV+5}, 0, s[{sT+2}:{sT+3}]")
    e(f"v_cndmask_b32 v{VV+6}, v{VV+6}, 0, vcc")
    e(f"v_cndmask_b32 v{VV+7}, v{VV+7}, 0, vcc")
    e("s_branch L_aux_pack")
    lab("L_aux_w1")
    GA=60; GB=68
    e(f"s_mul_i32 s{sT+3}, s{sI}, 1352")
    e(f"s_lshl_b32 s{sT+6}, s{sWAVE}, 11")
    e(f"s_add_u32 s{sT+6}, s{sT+6}, {32768-4*2048}")
    e(f"s_mov_b32 m0, s{sT+6}")
    e("v_lshlrev_b32 v12, 4, v2")
    e(f"buffer_load_dwordx4 v12, s[{S_C}:{S_C+3}], s{sT+3} offen lds")
    e(f"buffer_load_dwordx4 v12, s[{S_C}:{S_C+3}], s{sT+3} offen offset:1024 lds")
    slots()
    for ee in range(8):
        e(f"v_mul_u32_u24 v8, 26, v{PP+ee}")
        e(f"v_add_lshl_u32 v8, v8, v{QQ+ee}, 1")
        e(f"v_add_u32 v{GA+ee}, s{sT+6}, v8")
        e(f"v_mul_u32_u24 v9, 26, v{QQ+ee}")
        e(f"v_add_lshl_u32 v9, v9, v{PP+ee}, 1")
        e(f"v_add_u32 v{GB+ee}, s{sT+6}, v9")
    e("v_and_b32 v6, 62, v2")
    st_addr(44)
    m3(2)
    e("s_waitcnt lgkmcnt(0)")
    e("s_barrier")
    e("s_waitcnt vmcnt(0)")
    for ee in range(8):
        e(f"ds_read_u16 v{GA+ee}, v{GA+ee}")
        e(f"ds_read_u16 v{GB+ee}, v{GB+ee}")
    e("s_waitcnt lgkmcnt(0)")
    for ee in range(8):
        e(f"v_lshlrev_b32 v{GA+ee}, 16, v{GA+ee}")
        e(f"v_lshlrev_b32 v{GB+ee}, 16, v{GB+ee}")
        e(f"v_add_f32 v{VV+ee}, v{GA+ee}, v{GB+ee}")
    lab("L_aux_pack")
    srd(S_WS,P_WS,WS_SIZE); srd(S_A,P_DBG,256)
    e("v_cmp_eq_u32 vcc, 43, v2")
    for ee in range(8): e(f"v_mul_f32 v{VV+ee}, v{VV+ee}, v{94 if ee<5 else 95}")
    e(f"v_cndmask_b32 v{VV+7}, v{VV+7}, 0, vcc")
    for m in range(4): e(f"v_cvt_pk_bf16_f32 v{24+m}, v{VV+2*m}, v{VV+2*m+1}")
    e(f"s_cmp_ge_u32 s{sI}, 26")
    e("s_cbranch_scc1 L_aux_done")
    e(f"buffer_store_dwordx4 v[24:27], v6, s[{S_WS}:{S_WS+3}], 0 offen sc0 sc1")
    st(96)
    e(f"s_lshr_b32 s{sT}, s{sWAVE}, 2")
    e(f"s_lshl1_add_u32 s{sT}, s{sI}, s{sT}")
    e(f"s_lshl_b32 s{sT}, s{sT}, 2")
    e("v_mov_b32 v8, 1")
    e("s_mov_b64 exec, 1")
    e("s_waitcnt vmcnt(0)")
    e(f"buffer_store_dword v8, off, s[{S_A}:{S_A+3}], s{sT} sc0 sc1")
    e("s_mov_b64 exec, -1")
    if ST:
        st(98); e("s_waitcnt vmcnt(0)"); st(100,True)
        dump([10,92,94,96,98,100],1)
    e("s_branch L_aux_done")
    lab("L_prefetch")
    e("s_waitcnt lgkmcnt(0)")
    if opt.pf:
        srd(S_W,P_W,1664*3328)
        e(f"s_cmp_lt_u32 s{sXCD}, 4")
        e(f"s_cselect_b32 s{sT+2}, 27, 26")
        e(f"s_cmp_lt_u32 s{sXCD}, 3")
        e(f"s_cselect_b32 s{sT+2}, 28, s{sT+2}")
        e(f"s_sub_u32 s{sT}, s{sSLOT}, s{sT+2}")
        e(f"s_sub_u32 s{sT+2}, 32, s{sT+2}")
        e(f"s_mul_i32 s{sT+1}, s{sXCD}, 26")
        e(f"s_lshr_b32 s{sT+1}, s{sT+1}, 3")
        e(f"s_lshl_b32 s{sT+1}, s{sT+1}, 7")
        for u in range(4):
            e(f"v_add_u32 v3, {512*u}, v0")
            e(f"v_mul_u32_u24 v3, s{sT+2}, v3")
            e(f"v_add_u32 v3, s{sT}, v3")
            e("v_lshrrev_b32 v4, 2, v3")
            e("v_and_b32 v3, 3, v3")
            e(f"v_mul_u32_u24 v4, 3328, v4")
            e("v_lshl_add_u32 v3, v3, 7, v4")
            e(f"buffer_load_dword v{9+u}, v3, s[{S_W}:{S_W+3}], s{sT+1} offen")
        e(f"s_cmp_lg_u32 s{sSLOT}, 31")
        e("s_cbranch_scc1 L_aux_done")
        srd(S_B,P_W2,3328); srd(S_WS,P_WS,EPOCH+8192)
        e("v_lshlrev_b32 v3, 7, v0")
        e(f"buffer_load_dword v13, v3, s[{S_B}:{S_B+3}], 0 offen")
        e(f"s_mov_b32 s{sT}, {EPOCH}")
        e(f"buffer_load_dword v14, v3, s[{S_WS}:{S_WS+3}], s{sT} offen")
    lab("L_aux_done")
    e(f"s_cmp_lt_u32 s{sWAVE}, 4")
    e("s_cbranch_scc1 L_end")
    srd(S_TBL,P_TBL,128000)
    row_sloads()
    e("v_and_b32 v3, 31, v2")
    e("v_lshlrev_b32 v4, 2, v3")
    e(f"v_mov_b32 v7, {FLAGS}")
    e("v_mov_b32 v8, 1")
    e("v_mov_b32 v9, 0")
    e(f"ds_write_b32 v7, v8 offset:{F_IT9}")
    e(f"ds_write_b32 v7, v9 offset:{F_CW}")
    e("s_waitcnt lgkmcnt(0)")
    for r in range(26):
        e(f"s_lshl_b32 s{76+r}, s{76+r}, 7")
        e(f"buffer_load_dword v{X+r}, v4, s[{S_TBL}:{S_TBL+3}], s{76+r} offen")
    e("s_branch L_help_main")
    lab("L_end")
    e("s_endpgm")
    L.append('.section .rodata,"a"'); L.append(".p2align 6"); L.append(f".amdhsa_kernel {KN}")
    for x in ["next_free_vgpr 256","next_free_sgpr 102","accum_offset 256","group_segment_fixed_size 0","kernarg_size 88",
              "user_sgpr_count 2","user_sgpr_kernarg_segment_ptr 1","system_sgpr_workgroup_id_x 1"]:
        L.append("  .amdhsa_"+x)
    L.append(".end_amdhsa_kernel")
    return "\n".join(L)+"\n"

if __name__=="__main__":
    ap=argparse.ArgumentParser()
    ap.add_argument("-o",default="k.s")
    for k,d in dict(now=0,stamps=0,pf=1,cpf=1,prio=1,bound=20000,zsplit=18,nt0=10,wsched=0).items(): ap.add_argument("--"+k,type=int,default=d)
    opt=ap.parse_args()
    for t in range(512): assert (t*5042)>>16==t//13, t
    open(opt.o,"w").write(build(opt))
```

```python
import sys, argparse, math, struct

class Q:
    def __init__(s,cap): s.ops=[]; s.cap=cap
    def issue(s,name): s.ops.append(name)
    def need(s,*names):
        r=99
        for name in names:
            i=len(s.ops)-1-s.ops[::-1].index(name)
            r=min(r,len(s.ops)-1-i)
        return min(r,s.cap)

WIMG=0; GRAN=65536; EPOCH=0x50000; STAMP=0x100000; WS_SIZE=0x200000
RING=128000; FLAGS=160768; CINW=65536
F_IT9,F_RED,F_CW=0,4,8
C1=-2*math.sqrt(2/math.pi)*math.log2(math.e); C2=C1*0.044715
def f2u(x): return struct.unpack('<I',struct.pack('<f',x))[0]
KN="standalone__deep_cross_xdeepfm__recsys_kernel"

sWAVE,sXCD,sSLOT,sCB,sRB=3,4,5,7,8
P_IDX,P_TBL,P_CIN,P_WOUT,P_W,P_B1,P_W2,P_BO=16,18,20,22,24,26,28,30
P_OUT,P_DBG,P_WS=32,34,36
S_IDX,S_TBL,S_W,S_WS,S_A,S_B=40,44,48,52,56,60
sRING,sWR1,sWR2=64,65,15
sT=66

def pair_of(n):
    if n<169: dlt,m=divmod(n,13)
    else: dlt,m=13,n-169
    r=2*m
    return r,(r+dlt)%26

def build(opt):
    L=[]
    cnt=[0]; lastw={}
    def e(x):
        L.append("    "+x)
        cnt[0]+= (int(x.split()[1])+1) if x.startswith("s_nop") else 1
    def hz(key,n):
        d=cnt[0]-lastw[key]
        if d<n: e(f"s_nop {n-d-1}")
    def lab(x): L.append(x+":")
    def cm(x): L.append("    ; "+x)
    E=lambda x:(lambda: e(x))
    ST=opt.stamps
    def srd(d,p,size):
        e(f"s_mov_b32 s{d}, s{p}"); e(f"s_mov_b32 s{d+1}, s{p+1}")
        e(f"s_mov_b32 s{d+2}, {size}"); e(f"s_mov_b32 s{d+3}, 0x20000")
    def st(r,wait=False):
        if ST:
            e(f"s_memrealtime s[{r}:{r+1}]")
            if wait: e("s_waitcnt lgkmcnt(0)")
    def dump(regs,area=0,role=0):
        if opt.enc:
            delay(regs,role); return
        dump_(regs,area)
    dl=[0]
    def delay(regs,role):
        dl[0]+=1; n=dl[0]
        e("s_mov_b64 exec, -1")
        e("s_waitcnt lgkmcnt(0)")
        if opt.enc==99:
            if role!=1: return
            srd(S_A,P_DBG,256)
            e("s_not_b32 s12, s10")
            e("v_mov_b32 v244, s12")
            e(f"v_mov_b32 v245, s{regs[10]}")
            e("v_mov_b32 v246, 1")
            e("s_mov_b64 exec, 1")
            e(f"buffer_atomic_umax v244, off, s[{S_A}:{S_A+3}], 0 offset:240 sc1")
            e(f"buffer_atomic_umax v245, off, s[{S_A}:{S_A+3}], 0 offset:244 sc1")
            e("s_waitcnt vmcnt(0)")
            e(f"buffer_atomic_add v246, off, s[{S_A}:{S_A+3}], 0 offset:248 sc0 sc1")
            e("s_waitcnt vmcnt(0)")
            e("v_readfirstlane_b32 s12, v246")
            e("s_cmp_lg_u32 s12, 1023")
            e(f"s_cbranch_scc1 L_dly{n}_x")
            e(f"buffer_load_dwordx2 v[244:245], off, s[{S_A}:{S_A+3}], 0 offset:240 sc1")
            e("s_waitcnt vmcnt(0)")
            e("v_readfirstlane_b32 s12, v244")
            e("v_readfirstlane_b32 s13, v245")
            e("s_not_b32 s12, s12")
            e("s_sub_u32 s12, s13, s12")
        else:
            if role!=opt.encrole: return
            e(f"s_cmp_lg_u32 s2, {opt.encwg}")
            e(f"s_cbranch_scc1 L_dly{n}_x")
            e(f"s_cmp_lg_u32 s{sWAVE}, {opt.encwave}")
            e(f"s_cbranch_scc1 L_dly{n}_x")
            e(f"s_sub_u32 s12, s{regs[opt.enc]}, s10")
        e("s_mul_i32 s12, s12, 100")
        e("s_memrealtime s[66:67]")
        e("s_waitcnt lgkmcnt(0)")
        e("s_add_u32 s12, s12, s66")
        lab(f"L_dly{n}")
        e("s_sleep 8")
        e("s_memrealtime s[66:67]")
        e("s_waitcnt lgkmcnt(0)")
        e("s_sub_u32 s13, s66, s12")
        e("s_cmp_lt_i32 s13, 0")
        e(f"s_cbranch_scc1 L_dly{n}")
        lab(f"L_dly{n}_x")
        e("s_mov_b64 exec, -1")
    def dump_(regs,area=0):
        e("s_mov_b64 exec, -1")
        e("s_waitcnt lgkmcnt(0)")
        e("s_lshl_b32 s12, s2, 3")
        e(f"s_add_u32 s12, s12, s{sWAVE}")
        e("s_lshl_b32 s12, s12, 6")
        e(f"s_add_u32 s12, s12, {STAMP+area*0x40000}")
        regs=list(regs)+[regs[0]]*(12-len(regs))
        for i,r in enumerate(regs): e(f"v_mov_b32 v{244+i}, s{r}")
        e("s_mov_b64 exec, 1")
        for i in range(3):
            e(f"buffer_store_dwordx4 v[{244+4*i}:{247+4*i}], off, s[{S_WS}:{S_WS+3}], s12 offset:{16*i}")
        e("s_mov_b64 exec, -1")
    def lds_spin(name,vaddr,vtmp,off,target,sleep=0):
        e(f"s_mov_b32 s{sT+4}, {opt.bound*8}")
        lab(name)
        e(f"ds_read_b32 v{vtmp}, v{vaddr} offset:{off}")
        e("s_waitcnt lgkmcnt(0)")
        e(f"v_readfirstlane_b32 s{sT+5}, v{vtmp}")
        e(f"s_cmp_ge_u32 s{sT+5}, {target}")
        e(f"s_cbranch_scc1 {name}_x")
        if sleep: e(f"s_sleep {sleep}")
        e(f"s_sub_u32 s{sT+4}, s{sT+4}, 1")
        e(f"s_cbranch_scc0 {name}")
        lab(name+"_x")

    L.append("; @launch grid=(256,1,1) block=(512,1,1) lds=163840")
    L.append('.amdgcn_target "amdgcn-amd-amdhsa--gfx950"')
    L.append(".text"); L.append(f".globl {KN}"); L.append(".p2align 8"); L.append(f".type {KN},@function")
    lab(KN)
    e("s_load_dwordx16 s[16:31], s[0:1], 0")
    e("s_load_dwordx4 s[32:35], s[0:1], 64")
    e("s_load_dwordx2 s[36:37], s[0:1], 80")
    st(10)
    e("s_cmp_ge_u32 s2, 256")
    e("s_cbranch_scc1 L_end")
    e("v_lshrrev_b32 v1, 6, v0")
    e("v_and_b32 v2, 63, v0")
    e(f"v_readfirstlane_b32 s{sWAVE}, v1")
    e(f"s_and_b32 s{sXCD}, s2, 7")
    e(f"s_lshr_b32 s{sSLOT}, s2, 3")
    e(f"s_cmp_ge_u32 s{sSLOT}, 26")
    e("s_cbranch_scc1 L_aux")
    e(f"s_mul_i32 s6, s{sXCD}, 26")
    e(f"s_add_u32 s6, s6, s{sSLOT}")
    e(f"s_lshr_b32 s{sCB}, s6, 3")
    e(f"s_and_b32 s{sRB}, s6, 7")
    e("v_lshrrev_b32 v3, 3, v2")
    e("v_lshrrev_b32 v4, 4, v2")
    e("v_and_b32 v5, 7, v2")
    e("v_xor_b32 v5, v5, v4")
    e(f"s_and_b32 s{sT}, s{sWAVE}, 1")
    e(f"s_lshl_b32 s{sT+1}, s{sT}, 2")
    e(f"v_xor_b32 v5, s{sT+1}, v5")
    e("v_lshlrev_b32 v5, 4, v5")
    e("v_lshl_add_u32 v5, v3, 7, v5")
    e(f"s_lshr_b32 s{sT+2}, s{sWAVE}, 1")
    e(f"s_lshl1_add_u32 s{sT+3}, s{sSLOT}, s{sT+2}")
    e(f"s_lshl_b32 s{sT+3}, s{sT+3}, 11")
    e(f"s_lshl_b32 s{sT+4}, s{sT}, 10")
    e(f"s_add_u32 m0, s{sT+3}, s{sT+4}")
    e(f"s_lshl_b32 s{sT+3}, s{sT}, 11")
    e(f"s_sub_u32 s{sWR2}, {63*2048}, s{sT+3}")
    e(f"s_add_u32 s{sWR1}, s{sWR2}, s{sT+4}")
    e("v_lshrrev_b32 v7, 2, v2")
    e("v_and_b32 v8, 3, v2")
    e("v_mul_u32_u24 v6, 104, v7")
    e("v_mad_u32_u24 v6, v8, 28, v6")
    e(f"s_mul_i32 s{sT+4}, s{sRB}, 13312")
    e(f"s_mul_i32 s{sT+5}, s{sWAVE}, 1664")
    e(f"s_add_u32 s{sT+4}, s{sT+4}, s{sT+5}")
    e(f"s_cmp_ge_u32 s{sWAVE}, 4")
    e("s_cbranch_scc1 L_help_pro")

    IV=16; IA=24
    def rec_addrs():
        e(f"s_lshl_b32 s{sT+5}, s{sT}, 7")
        e(f"s_add_u32 s{sT+5}, s{sT+5}, {RING+4096}")
        e(f"v_lshl_add_u32 v7, v7, 3, s{sT+5}")
        e("v_mul_u32_u24 v9, 7, v8")
        e("v_and_b32 v8, 1, v8")
        for par in range(2):
            d=IA+2*par
            if par:
                e("v_xor_b32 v8, 1, v8"); e("v_add_u32 v9, 1, v9")
            e("v_lshrrev_b32 v10, 1, v9")
            e(f"v_lshl_add_u32 v{d}, v10, 8, v7")
            e(f"v_lshl_add_u32 v{d}, v8, 14, v{d}")
            e("v_lshlrev_b32 v10, 1, v8")
            e(f"v_xor_b32 v10, s{sT+2}, v10")
            e(f"v_lshl_add_u32 v{d}, v10, 1, v{d}")
            e(f"v_xor_b32 v{d+1}, 2, v{d}")
            e(f"v_add_u32 v{d+1}, 8192, v{d+1}")
    def table_loads(vm,t0,t1):
        for t in range(t0,t1):
            e(f"buffer_load_dwordx4 v5, s[{S_TBL}:{S_TBL+3}], m0 offen lds"); vm.issue(f"tbl{t}")
            if t<15:
                e("s_add_u32 m0, m0, 8192")
                e(f"s_cmp_ge_u32 m0, s{sWR1}")
                e(f"s_cselect_b32 s{sT+5}, s{sWR2}, 0")
                e(f"s_sub_u32 m0, m0, s{sT+5}")
                e("s_nop 0")
    def idx_loads(vm):
        e(f"buffer_load_dwordx4 v[{IV}:{IV+3}], v6, s[{S_IDX}:{S_IDX+3}], s{sT+4} offen"); vm.issue("idx0")
        e(f"buffer_load_dwordx3 v[{IV+4}:{IV+6}], v6, s[{S_IDX}:{S_IDX+3}], s{sT+4} offen offset:16"); vm.issue("idx1")
    def idx_store():
        for m in range(7):
            x=IV+m
            e(f"v_bfe_u32 v8, v{x}, 1, 3")
            e(f"v_lshl_or_b32 v{x}, v{x}, 3, v8")
            e(f"ds_write_b16 v{IA+2*(m&1)}, v{x} offset:{(m>>1)*256}")
            e(f"ds_write_b16 v{IA+2*(m&1)+1}, v{x} offset:{(m>>1)*256}")
    NT0=opt.nt0

    vW,vT0,vT1=1,3,4
    AD=8; AF=16; F0=48; REC=80; ACC=128
    acc=lambda lt,ct: ACC+(lt*2+ct)*16
    Fr=lambda j,ks,ct: F0+(j&1)*16+(ks*2+ct)*4
    AF2={1:80,2:88,3:96,0:120}
    afr=lambda lt,ks,j: (AF2[lt] if j==12 else AF+8*lt)+4*ks
    vm=Q(63); lg=Q(15)
    cm("---- DNN wave prologue ----")
    rec_addrs()
    e(f"s_lshl_b32 s{sT+7}, s{sWAVE}, 5")
    e(f"v_add_u32 v3, s{sT+7}, v3")
    e("v_mul_u32_u24 v3, 3328, v3")
    e("v_and_b32 v9, 1, v4")
    e("v_lshlrev_b32 v9, 2, v9")
    e("v_and_b32 v10, 7, v2")
    e("v_xor_b32 v9, v9, v10")
    e("v_lshl_add_u32 v1, v9, 4, v3")
    e(f"s_lshl_b32 s{sT+7}, s{sCB}, 7")
    e(f"v_add_u32 v1, s{sT+7}, v1")
    e("v_lshrrev_b32 v12, 5, v2")
    e(f"v_lshl_add_u32 v11, v12, 5, s{sT+7}")
    e(f"s_lshl_b32 s{sRING}, s{sWAVE}, 13")
    e(f"s_add_u32 s{sRING}, s{sRING}, {RING}")
    e("v_bfe_u32 v9, v2, 2, 2")
    e("v_lshlrev_b32 v3, 7, v9")
    e("v_lshl_add_u32 v3, v12, 10, v3")
    e("v_lshrrev_b32 v9, 1, v9")
    e("v_lshl_add_u32 v3, v9, 6, v3")
    e("v_and_b32 v9, 1, v2")
    e("v_lshl_add_u32 v3, v9, 5, v3")
    e("v_bfe_u32 v9, v2, 1, 1")
    e("v_lshl_add_u32 v3, v9, 3, v3")
    e("v_and_b32 v9, 1, v4")
    e("v_lshl_add_u32 v3, v9, 4, v3")
    e(f"v_add_u32 v3, s{sRING}, v3")
    e("v_xor_b32 v4, 64, v3")
    e("v_and_b32 v13, 31, v2")
    e(f"v_lshl_add_u32 v13, v13, 3, s{sRING}")
    e(f"v_add_u32 v14, s{sT+1}, v12")
    e("v_lshl_or_b32 v14, v14, 16, v14")
    e("v_lshlrev_b32 v15, 2, v2")
    e(f"v_add_u32 v15, {FLAGS}, v15")
    e("v_mov_b32 v28, 0")
    e("s_waitcnt lgkmcnt(0)")
    srd(S_IDX,P_IDX,106496)
    idx_loads(vm)
    srd(S_TBL,P_TBL,128000)
    table_loads(vm,0,NT0)
    e("ds_write_b32 v15, v28")
    e(f"s_waitcnt vmcnt({vm.need('idx1')})")
    idx_store()
    srd(S_W,P_W,1664*3328)
    srd(S_A,P_B1,3328)
    e("s_waitcnt lgkmcnt(0)")
    e("s_barrier")
    table_loads(vm,NT0,16)
    sWO=12
    def dma(j,pcs):
        for pc in pcs:
            if opt.now and j>=3:
                vm.ops.insert(0,f"w{j}_{pc}"); continue
            e(f"s_add_u32 m0, s{sRING}, {((j&1)*4+pc)*1024}")
            e(f"s_mov_b32 s{sWO}, {(128*j+8*pc)*3328}")
            e(f"buffer_load_dwordx4 v{vW}, s[{S_W}:{S_W+3}], s{sWO} offen lds"); vm.issue(f"w{j}_{pc}")
    dma(0,range(4))
    BI=106
    for i in range(4):
        e(f"buffer_load_dwordx4 v[{BI+4*i}:{BI+4*i+3}], v11, s[{S_A}:{S_A+3}], 0 offen offset:{(i>>1)*64+(i&1)*16}"); vm.issue(f"bias{i}")
    for j in range(13): e(f"ds_read_b64 v[{REC+2*j}:{REC+2*j+1}], v13 offset:{4096+j*256}")
    st(76)
    srd(S_WS,P_WS,WS_SIZE)
    srd(S_B,P_W2,3328)
    e("s_waitcnt lgkmcnt(0)")
    dma(1,range(4))
    for j in range(26): e(f"v_xor_b32 v{REC+j}, v14, v{REC+j}")
    def adr(lt,j):
        e(f"v_lshlrev_b32_sdwa v{AD+2*lt}, 4, v{REC+2*j+(lt>>1)} dst_sel:DWORD dst_unused:UNUSED_PAD src0_sel:DWORD src1_sel:WORD_{lt&1}")
        e(f"v_xor_b32 v{AD+2*lt+1}, 32, v{AD+2*lt}")
    def Rop(lt,j):
        for ks in range(2):
            e(f"ds_read_b128 v[{afr(lt,ks,j)}:{afr(lt,ks,j)+3}], v{AD+2*lt+ks}"); lg.issue(f"R{lt}_{ks}_{j}")
    def Top(j,ks):
        for ct in range(2):
            for h4 in range(2):
                d=Fr(j,ks,ct)+2*h4
                e(f"ds_read_b64_tr_b16 v[{d}:{d+1}], v{vT0+ct} offset:{((j&1)*4+ks*2)*1024+h4*512}"); lg.issue(f"T{j}_{ks}_{ct}{h4}")
    e(f"v_mov_b32 v7, {FLAGS}")
    for lt in range(4): adr(lt,0)
    e(f"s_waitcnt vmcnt({vm.need('tbl15')})")
    st(78)
    e("s_barrier")
    st(80,True)
    if ST: e("s_memtime s[96:97]"); e("s_waitcnt lgkmcnt(0)")
    if opt.prio: e(f"s_setprio {opt.prio}")
    Rop(1,0)
    e(f"s_waitcnt vmcnt({vm.need('w0_3')})")
    Top(0,0); Top(0,1)
    Rop(2,0); Rop(3,0); Rop(0,0)
    e(f"s_waitcnt vmcnt({vm.need('bias3')})")
    for ct in range(2):
        for t in range(16):
            src=BI+ct*8+(t>>1)
            if t&1: e(f"v_and_b32 v{acc(0,ct)+t}, 0xffff0000, v{src}")
            else:   e(f"v_lshlrev_b32 v{acc(0,ct)+t}, 16, v{src}")
    e(f"s_waitcnt lgkmcnt({lg.need('T0_1_11')})")
    dma(2,range(4))
    def group(lt,j,fills,after=()):
        for i,(ks,ct) in enumerate([(0,0),(0,1),(1,0),(1,1)]):
            c=f"v[{acc(lt,ct)}:{acc(lt,ct)+15}]"
            src=c if (j>0 or lt==0 or ks==1) else "0"
            e(f"v_mfma_f32_32x32x16_bf16 {c}, v[{Fr(j,ks,ct)}:{Fr(j,ks,ct)+3}], v[{afr(lt,ks,j)}:{afr(lt,ks,j)+3}], {src}")
            lastw[(lt,ct)]=cnt[0]
            for f in fills[i]: f()
        for f in after: f()
    LT=[1,2,3,0]
    for j in range(11):
        cm(f"---- iteration {j} ----")
        for g,lt in enumerate(LT):
            needs=[f"R{lt}_1_{j}"]+([f"T{j}_1_11"] if g==0 else [])
            e(f"s_waitcnt lgkmcnt({lg.need(*needs)})")
            fills=[[],[],[],[]]
            if g<2:
                fills[0].append(lambda j=j,g=g: e(f"s_waitcnt vmcnt({vm.need(f'w{j+1}_{2*g+1}')})"))
                fills[0].append(lambda j=j,g=g: Top(j+1,g))
            elif j+3<13:
                fills[0].append(lambda j=j,g=g: e(f"s_waitcnt lgkmcnt({lg.need(f'T{j+1}_{g-2}_11')})"))
                fills[0].append(lambda j=j,g=g: dma(j+3,[2*(g-2)]))
                fills[1].append(lambda j=j,g=g: dma(j+3,[2*(g-2)+1]))
            fills[2].append(lambda j=j,lt=lt: adr(lt,j+1))
            fills[3].append(lambda j=j,lt=lt: Rop(lt,j+1))
            if j==9 and g==3:
                fills[2].append(E("v_mov_b32 v0, 1")); fills[3].append(lambda: (e(f"ds_write_b32 v7, v0 offset:{F_IT9}"),lg.issue("it9")))
            if j==10 and g==2:
                fills[0].append(lambda: adr(1,12)); fills[1].append(lambda: Rop(1,12))
            group(lt,j,fills)
    cm("---- merged iterations 11/12 with reduction writes ----")
    W2P=104; EV=6; WA=AD
    order=[(1,11),(2,11),(1,12),(3,11),(2,12),(0,11),(3,12),(0,12)]
    def wr(lt,qs):
        return [(lambda q=q,lt=lt: (hz((lt,q>>2),12),e(f"ds_write_b128 v{WA+lt-1}, v[{acc(lt,q>>2)+4*(q&3)}:{acc(lt,q>>2)+4*(q&3)+3}] offset:{q*1024}"),lg.issue(f"W{lt}_{q}"))) for q in qs]
    def addrs():
        e(f"v_lshlrev_b32 v{AD+3}, 4, v2")
        e(f"v_add_u32 v{WA}, s{sRING}, v{AD+3}")
        for u in (2,3):
            e(f"s_xor_b32 s{sT}, s{sWAVE}, {u}")
            e(f"s_lshl_b32 s{sT}, s{sT}, 13")
            if u==3: e(f"s_add_u32 s{sT}, s{sT}, 32768")
            e(f"v_add_u32 v{WA+u-1}, s{sT}, v{AD+3}")
        e(f"s_xor_b32 s{sT}, s{sWAVE}, 1")
        e(f"s_lshl_b32 s{sT}, s{sT}, 13")
        e(f"s_add_u32 s{sT}, s{sT}, {RING}")
        e(f"v_add_u32 v{AD+4}, s{sT}, v{AD+3}")
        e(f"s_lshl_b32 s{sT}, s{sWAVE}, 13")
        e(f"v_add_u32 v{AD+3}, s{sT}, v{AD+3}")
    def late():
        e(f"s_lshl_b32 s{sT}, s{sCB}, 7")
        e(f"v_lshrrev_b32 v5, 5, v2")
        e(f"v_lshl_add_u32 v5, v5, 5, s{sT}")
        for i in range(4):
            e(f"buffer_load_dwordx4 v[{W2P+4*i}:{W2P+4*i+3}], v5, s[{S_B}:{S_B+3}], 0 offen offset:{(i>>1)*64+(i&1)*16}")
        e(f"v_and_b32 v5, 31, v2")
        e(f"s_lshl_b32 s{sT}, s{sRB}, 7")
        e(f"s_lshl_b32 s{sT+1}, s{sWAVE}, 5")
        e(f"s_add_u32 s{sT}, s{sT}, s{sT+1}")
        e(f"v_add_lshl_u32 v5, v5, s{sT}, 3")
        e(f"s_mov_b32 s{sT+2}, {EPOCH}")
        e(f"v_mov_b32 v1, v7")
        e(f"buffer_load_dwordx2 v[{EV}:{EV+1}], v5, s[{S_WS}:{S_WS+3}], s{sT+2} offen")
    pend=[]
    for gi,(lt,j) in enumerate(order):
        fills=[[],[],[],[]]; after=[]
        needs=[f"R{lt}_1_{j}"]+([f"T{j}_1_11"] if gi in (0,2) else [])
        e(f"s_waitcnt lgkmcnt({lg.need(*needs)})")
        if gi==0:
            fills[0].append(lambda: e(f"s_waitcnt vmcnt({vm.need('w12_3')})"))
            fills[0].append(lambda: Top(12,0)); fills[1].append(lambda: Top(12,1))
            fills[2].append(lambda: (adr(2,12),Rop(2,12)))
            fills[3].append(lambda: (adr(3,12),Rop(3,12)))
        if gi==1:
            fills[0].append(lambda: (adr(0,12),Rop(0,12)))
            fills[1].append(addrs); fills[2].append(late)
        if gi>=3:
            if gi==5:
                def bar2():
                    e(f"s_waitcnt lgkmcnt({lg.need('R0_1_12')})")
                    st(82); e("s_barrier"); st(84)
                fills[0].append(bar2)
            sched=opt.wsched
            for i in range(4):
                if gi in (3,5,7) and i==0:
                    if gi!=5: fills[0].append(E("s_nop 3"))
                    continue
                n=2 if not (gi==7 and i==3) else 99
                take=[p for p in pend[:n]]
                fills[i]+=take; pend=pend[len(take):]
        group(lt,j,fills,after)
        if j==12 and lt>=1: pend+=wr(lt,[0,1,2,3,4,5,6,7])
    for f in pend: f()
    st(86)
    if ST: e("s_memtime s[98:99]")
    W2F=AF
    e("s_waitcnt vmcnt(0)")
    for t in range(32):
        src=W2P+(t>>1)
        if t&1: e(f"v_and_b32 v{W2F+t}, 0xffff0000, v{src}")
        else:   e(f"v_lshlrev_b32 v{W2F+t}, 16, v{src}")
    vC1=F0+16; S0=F0+17; S1=F0+18
    e(f"s_mov_b32 s{sT+2}, {f2u(C2)}")
    e(f"v_mov_b32 v{vC1}, {f2u(C1)}")
    e(f"v_mov_b32 v{S0}, 0"); e(f"v_mov_b32 v{S1}, 0")
    e("v_mov_b32 v0, 1")
    e("s_mov_b64 exec, 1")
    e("s_waitcnt lgkmcnt(0)")
    e(f"ds_add_u32 v1, v0 offset:{F_RED}")
    e("s_mov_b64 exec, -1")
    lds_spin("L_red",1,0,F_RED,4)
    st(88,True)
    if ST and opt.gcyc: e("s_memtime s[96:97]"); e("s_waitcnt lgkmcnt(0)")
    lg=Q(15)
    PB=ACC+32
    part=lambda sl,q: PB+(q*3+sl)*4
    for q in range(8):
        for sl in range(3):
            a,off=(AD+4,q*1024) if sl==0 else (AD+3,(sl-1)*32768+q*1024)
            e(f"ds_read_b128 v[{part(sl,q)}:{part(sl,q)+3}], v{a} offset:{off}"); lg.issue(f"p{sl}_{q}")
    T=F0
    for q in range(8):
        e(f"s_waitcnt lgkmcnt({lg.need(f'p2_{q}')})")
        a=ACC+4*q
        for r in range(4): e(f"v_add_f32 v{a+r}, v{a+r}, v{part(0,q)+r}")
        for r in range(4): e(f"v_add_f32 v{part(1,q)+r}, v{part(1,q)+r}, v{part(2,q)+r}")
        for r in range(4): e(f"v_add_f32 v{a+r}, v{a+r}, v{part(1,q)+r}")
        for r in range(4): e(f"v_mul_f32 v{T+r}, v{a+r}, v{a+r}")
        for r in range(4): e(f"v_fma_f32 v{T+r}, v{T+r}, s{sT+2}, v{vC1}")
        for r in range(4): e(f"v_mul_f32 v{T+r}, v{T+r}, v{a+r}")
        for r in range(4): e(f"v_exp_f32 v{T+r}, v{T+r}")
        for r in range(4): e(f"v_mul_f32 v{a+r}, v{a+r}, v{W2F+4*q+r}")
        for r in range(4): e(f"v_add_f32 v{T+r}, 1.0, v{T+r}")
        for r in range(4): e(f"v_rcp_f32 v{T+r}, v{T+r}")
        e("s_nop 0")
        for r in range(4): e(f"v_fmac_f32 v{S0+(r&1)}, v{a+r}, v{T+r}")
    e(f"v_add_f32 v{S0}, v{S0}, v{S1}")
    e(f"v_mov_b32 v{S1}, v{S0}")
    e(f"s_movk_i32 s{sT}, 0xff")
    e(f"v_add_u32 v{EV}, 1, v{EV}")
    e(f"v_permlane32_swap_b32 v{S0}, v{S1}")
    e(f"s_lshl_b32 s{sT+1}, s{sCB}, 13")
    e(f"v_add_f32 v{S0}, v{S0}, v{S1}")
    e(f"s_add_u32 s{sT+1}, s{sT+1}, {GRAN}")
    e(f"v_bfi_b32 v{EV+1}, s{sT}, v{EV+1}, v{S0}")
    e(f"s_mov_b32 exec_hi, 0")
    e(f"buffer_store_dwordx2 v[{EV}:{EV+1}], v5, s[{S_WS}:{S_WS+3}], s{sT+1} offen sc0 sc1")
    if ST:
        if opt.gcyc: e("s_memtime s[98:99]")
        st(90); e("s_waitcnt vmcnt(0)"); st(92,True); e("s_sub_u32 s98, s98, s96")
        dump([10,76,78,80,82,84,86,88,90,92,98])
    e("s_endpgm")

    sROW=6; sE=38
    def row_sloads():
        e(f"s_sub_u32 s{sT+6}, s{sWAVE}, 4")
        e(f"s_lshl2_add_u32 s{sROW}, s2, s{sT+6}")
        e(f"s_mul_i32 s{sT+6}, s{sROW}, 104")
        e(f"s_add_u32 s{sT+6}, s{P_IDX}, s{sT+6}")
        e(f"s_addc_u32 s{sT+7}, s{P_IDX+1}, 0")
        e(f"s_load_dwordx16 s[76:91], s[{sT+6}:{sT+7}], 0")
        e(f"s_load_dwordx8 s[92:99], s[{sT+6}:{sT+7}], 64")
        e(f"s_load_dwordx2 s[100:101], s[{sT+6}:{sT+7}], 96")
        e(f"s_lshl_b32 s{sT+8}, s{sROW}, 3")
        e(f"s_add_u32 s{sT+8}, s{sT+8}, {EPOCH}")
        e(f"s_load_dwordx2 s[{sE}:{sE+1}], s[{P_WS}:{P_WS+1}], s{sT+8}")
        e(f"s_load_dword s9, s[{P_BO}:{P_BO+1}], 0")
    X=32
    lab("L_help_pro")
    vm=Q(63)
    rec_addrs()
    e("s_waitcnt lgkmcnt(0)")
    row_sloads()
    srd(S_IDX,P_IDX,106496)
    idx_loads(vm)
    srd(S_TBL,P_TBL,128000)
    table_loads(vm,0,NT0)
    e(f"s_waitcnt vmcnt({vm.need('idx1')})")
    idx_store()
    e("s_waitcnt lgkmcnt(0)")
    e("s_barrier")
    table_loads(vm,NT0,16)
    e("v_and_b32 v3, 31, v2")
    e("v_lshlrev_b32 v4, 2, v3")
    for r in range(26):
        e(f"s_lshl_b32 s{sT}, s{76+r}, 3")
        e(f"s_and_b32 s{sT}, s{sT}, 0x70")
        e(f"s_lshl_b32 s{76+r}, s{76+r}, 7")
        e(f"s_or_b32 s{76+r}, s{76+r}, s{sT}")
        e(f"v_xor_b32 v{X+r}, s{76+r}, v4")
    e("s_waitcnt vmcnt(0)")
    e("s_barrier")
    for r in range(26): e(f"ds_read_b32 v{X+r}, v{X+r}")
    lab("L_help_main")
    srd(S_WS,P_WS,WS_SIZE); srd(S_A,P_DBG,256); srd(S_B,P_OUT,2048)
    Z0=8
    ZE=lambda s: Z0+4*s
    ZO=lambda s: Z0+88+4*s
    LE=lambda k: Z0+176+4*k
    LO=lambda k: Z0+184+4*k
    R=200; MT=252
    e("v_lshlrev_b32 v5, 4, v2")
    e("v_mov_b32 v7, 0x7fff0000")
    e("v_cmp_gt_u32 vcc, 26, v3")
    e("v_lshlrev_b32 v6, 13, v2")
    e(f"s_lshl_b32 s{sT}, s{sROW}, 3")
    e("v_cndmask_b32 v5, v7, v5, vcc")
    e(f"s_add_u32 s{sT}, s{sT}, {GRAN}")
    e(f"v_add_u32 v6, s{sT}, v6")
    e("v_cmp_gt_u32 vcc, 26, v2")
    e("v_lshlrev_b32 v1, 4, v2")
    e(f"v_add_u32 v1, {CINW}, v1")
    e("v_cndmask_b32 v6, v7, v6, vcc")
    e("v_cmp_lt_u32 vcc, 31, v2")
    e(f"v_mov_b32 v7, {FLAGS}")
    e("s_waitcnt vmcnt(0) lgkmcnt(0)")
    st(76)
    e(f"v_mov_b32 v{X+26}, v{X}")
    for r in range(26):
        e(f"v_cndmask_b32 v{X+r}, v{X+r}, v{X+r+1}, vcc")
    for r in range(26):
        e(f"v_lshlrev_b32 v{R+2*r}, 16, v{X+r}")
        e(f"v_and_b32 v{R+2*r+1}, 0xffff0000, v{X+r}")
    def zstep(s):
        for m in range(4):
            (a1,a2),(b1,b2)=pair_of(8*s+2*m),pair_of(8*s+2*m+1)
            e(f"v_mul_f32 v{MT}, v{R+2*a1}, v{R+2*a2}")
            e(f"v_mul_f32 v{MT+2}, v{R+2*b1}, v{R+2*b2}")
            e(f"v_mul_f32 v{MT+1}, v{R+2*a1+1}, v{R+2*a2+1}")
            e(f"v_mul_f32 v{MT+3}, v{R+2*b1+1}, v{R+2*b2+1}")
            e(f"v_cvt_pk_bf16_f32 v{ZE(s)+m}, v{MT}, v{MT+2}")
            e(f"v_cvt_pk_bf16_f32 v{ZO(s)+m}, v{MT+1}, v{MT+3}")
    def zlin():
        for k in range(2):
            for m2 in range(4):
                m=k*8+2*m2
                for tl,d in ((0,LE(k)+m2),(1,LO(k)+m2)):
                    if m+1<=12: e(f"v_cvt_pk_bf16_f32 v{d}, v{R+4*m+tl}, v{R+4*(m+1)+tl}")
                    elif m==12: e(f"v_cvt_pk_bf16_f32 v{d}, v{R+4*m+tl}, 1.0")
                    else: e(f"v_mov_b32 v{d}, 0")
    for s in range(opt.zsplit): zstep(s)
    st(78)
    lds_spin("L_it9",7,4,F_IT9,1,sleep=1)
    e(f"v_lshlrev_b32 v0, 2, v2")
    e(f"buffer_load_dword v4, v0, s[{S_A}:{S_A+3}], 0 offen sc1")
    for s in range(opt.zsplit,22): zstep(s)
    zlin()
    st(80)
    e(f"s_mov_b32 s{sT+4}, {opt.bound}")
    e(f"s_mov_b32 s{sT+2}, -1")
    e(f"s_mov_b32 s{sT+3}, 0xfffff")
    lab("L_poll1")
    e("s_waitcnt vmcnt(0)")
    e("v_cmp_ne_u32 vcc, 0, v4")
    e(f"s_and_b64 vcc, vcc, s[{sT+2}:{sT+3}]")
    e(f"s_cmp_eq_u64 vcc, s[{sT+2}:{sT+3}]")
    e("s_cbranch_scc1 L_polled")
    e(f"s_sleep {opt.psleep}")
    e(f"buffer_load_dword v4, v0, s[{S_A}:{S_A+3}], 0 offen sc1")
    e(f"s_sub_u32 s{sT+4}, s{sT+4}, 1")
    e("s_cbranch_scc0 L_poll1")
    lab("L_polled")
    e(f"s_sub_u32 s{sT}, s{sWAVE}, 4")
    e(f"s_lshl_b32 s{sT}, s{sT}, 10")
    e(f"s_add_u32 m0, s{sT}, {CINW}")
    st(82)
    e("s_barrier")
    st(84)
    for t in range(12):
        if t==11:
            e(f"s_cmp_ge_u32 s{sWAVE}, 6")
            e("s_cbranch_scc1 L_dma_done")
        e(f"buffer_load_dwordx4 v5, s[{S_WS}:{S_WS+3}], s{sT} offen sc1 lds")
        if t<11:
            e(f"s_add_u32 m0, m0, 4096")
            e(f"s_add_u32 s{sT}, s{sT}, 4096")
    lab("L_dma_done")
    e("v_mov_b32 v0, 1")
    e("s_mov_b64 exec, 1")
    e("s_waitcnt vmcnt(0)")
    st(86)
    e(f"ds_add_u32 v7, v0 offset:{F_CW}")
    e("s_mov_b64 exec, -1")
    lds_spin("L_cw",7,0,F_CW,4)
    st(88,True)
    if ST: e("s_memtime s[96:97]"); e("s_waitcnt lgkmcnt(0)")
    AXE,AUE=200,216; WF=232
    AXO,AUO=ZE(0),ZE(4)
    lg=Q(15)
    seq=[('e',s) for s in range(8)]+[('o',s) for s in range(8)]+[('eo',s) for s in range(8,24)]
    def rd(i):
        tl,s=seq[i]; b=WF+(i%3)*8
        if s<22:
            e(f"ds_read_b128 v[{b}:{b+3}], v1 offset:{2*s*1024}"); lg.issue(f"x{i}")
            e(f"ds_read_b128 v[{b+4}:{b+7}], v1 offset:{(2*s+1)*1024}"); lg.issue(f"u{i}")
        else:
            e(f"ds_read_b128 v[{b+4}:{b+7}], v1 offset:{(44+s-22)*1024}"); lg.issue(f"u{i}")
    rd(0); rd(1)
    GV=ZE(8)
    for i,(tl,s) in enumerate(seq):
        if opt.nocin and i<len(seq)-3: continue
        if opt.nocin and i==len(seq)-3: rd(i); rd(i+1)
        b=WF+(i%3)*8
        if i+2<len(seq): rd(i+2)
        e(f"s_waitcnt lgkmcnt({lg.need(f'u{i}')})")
        for t in tl:
            z=(ZE if t=='e' else ZO)(s) if s<22 else (LE if t=='e' else LO)(s-22)
            ax,au=(AXE,AUE) if t=='e' else (AXO,AUO)
            if s<22:
                c=f"v[{ax}:{ax+15}]"
                e(f"v_mfma_f32_32x32x16_bf16 {c}, v[{b}:{b+3}], v[{z}:{z+3}], {c if s else 0}")
            c=f"v[{au}:{au+15}]"
            e(f"v_mfma_f32_32x32x16_bf16 {c}, v[{b+4}:{b+7}], v[{z}:{z+3}], {c if s else 0}")
        if i==len(seq)-3:
            e(f"buffer_load_dwordx2 v[{GV}:{GV+1}], v6, s[{S_WS}:{S_WS+3}], 0 offen sc1")
    e(f"s_add_u32 s{sE}, s{sE}, 1")
    e(f"s_and_b32 s{sE+1}, s{sE+1}, 0xff")
    e("s_nop 9")
    V=ZE(9); V2=V+1
    e(f"v_mul_f32 v{V}, v{AXE}, v{AUE}")
    e(f"v_mul_f32 v{V2}, v{AXO}, v{AUO}")
    for t in range(1,14):
        e(f"v_fmac_f32 v{V}, v{AXE+t}, v{AUE+t}")
        e(f"v_fmac_f32 v{V2}, v{AXO+t}, v{AUO+t}")
    e(f"v_add_f32 v{V}, v{V}, v{V2}")
    st(90)
    if ST: e("s_memtime s[98:99]")
    e("s_mov_b32 exec_lo, 0x3ffffff")
    e("s_mov_b32 exec_hi, 0")
    e(f"s_mov_b32 s{sT+4}, {opt.bound}")
    lab("L_poll2")
    e("s_waitcnt vmcnt(0)")
    e(f"v_and_b32 v{V2}, 0xff, v{GV+1}")
    e(f"v_cmp_eq_u32 vcc, s{sE}, v{GV}")
    e(f"v_cmp_eq_u32 s[{sT}:{sT+1}], s{sE+1}, v{V2}")
    e(f"s_and_b64 vcc, vcc, s[{sT}:{sT+1}]")
    e("s_cmp_eq_u64 vcc, exec")
    e("s_cbranch_scc1 L_got")
    e(f"buffer_load_dwordx2 v[{GV}:{GV+1}], v6, s[{S_WS}:{S_WS+3}], 0 offen sc1")
    e(f"s_sub_u32 s{sT+4}, s{sT+4}, 1")
    e("s_cbranch_scc0 L_poll2")
    e("s_waitcnt vmcnt(0)")
    lab("L_got")
    e(f"v_and_b32 v{V2}, 0xffffff00, v{GV+1}")
    e(f"v_add_f32 v{V}, v{V}, v{V2}")
    e("s_mov_b64 exec, -1")
    st(92)
    for dpp in ["quad_perm:[1,0,3,2] row_mask:0xf bank_mask:0xf","quad_perm:[2,3,0,1] row_mask:0xf bank_mask:0xf",
                "row_half_mirror row_mask:0xf bank_mask:0xf","row_mirror row_mask:0xf bank_mask:0xf",
                "row_bcast:15 row_mask:0xa bank_mask:0xf","row_bcast:31 row_mask:0xc bank_mask:0xf"]:
        e("s_nop 1")
        e(f"v_add_f32_dpp v{V}, v{V}, v{V} {dpp}")
    e("s_lshl_b32 s9, s9, 16")
    e(f"v_add_f32 v{V}, s9, v{V}")
    e(f"v_cvt_pk_bf16_f32 v{V}, v{V}, v{V}")
    e(f"s_lshl_b32 s{sT}, s{sROW}, 1")
    e(f"s_lshl_b32 s{sT+1}, s{sROW}, 3")
    e(f"s_add_u32 s{sT+1}, s{sT+1}, {EPOCH}")
    e(f"v_mov_b32 v{V2}, s{sE}")
    e("s_mov_b32 exec_lo, 0")
    e("s_mov_b32 exec_hi, 0x80000000")
    e(f"buffer_store_short v{V}, off, s[{S_B}:{S_B+3}], s{sT}")
    e(f"buffer_store_dword v{V2}, off, s[{S_WS}:{S_WS+3}], s{sT+1}")
    if ST:
        e("s_waitcnt vmcnt(0)"); st(94,True); e("s_sub_u32 s98, s98, s96")
        dump([10,76,78,80,82,84,86,88,90,92,94,98],0,1)
    e("s_endpgm")

    lab("L_aux")
    if opt.cpf:
        e(f"s_getpc_b64 s[{S_IDX}:{S_IDX+1}]")
        lab("L_pc")
        e(f"s_sub_u32 s{S_IDX}, s{S_IDX}, L_pc-{KN}")
        e(f"s_subb_u32 s{S_IDX+1}, s{S_IDX+1}, 0")
        e(f"s_mov_b32 s{S_IDX+2}, L_end-{KN}")
        e(f"s_mov_b32 s{S_IDX+3}, 0x20000")
        e("v_lshlrev_b32 v3, 7, v0")
        e(f"buffer_load_dword v255, v3, s[{S_IDX}:{S_IDX+3}], 0 offen")
    e(f"s_lshl1_add_u32 s{sT+1}, s{sXCD}, s{sSLOT}")
    e(f"s_sub_u32 s{sT+1}, s{sT+1}, 26")
    e(f"s_cmp_ge_u32 s{sSLOT}, 28")
    e("s_cbranch_scc1 L_prefetch")
    e(f"s_cmp_ge_u32 s{sT+1}, 7")
    e("s_cbranch_scc1 L_prefetch")
    cm("---- CIN weight folding: rows i = 4*pidx + (wave&3) ----")
    S_C=S_W; S_O=S_B; sI=6
    e(f"s_and_b32 s{sT}, s{sWAVE}, 3")
    e(f"s_lshl2_add_u32 s{sI}, s{sT+1}, s{sT}")
    M=16
    e("v_lshlrev_b32 v3, 2, v0")
    e("v_mov_b32 v7, 0x7fff0000")
    e(f"s_movk_i32 s{sT+1}, 338")
    e(f"v_cmp_gt_u32 vcc, s{sT+1}, v0")
    e("v_lshrrev_b32 v4, 1, v2")
    e("v_and_b32 v5, 1, v2")
    e("v_cndmask_b32 v3, v7, v3, vcc")
    e("v_lshlrev_b32 v4, 3, v4")
    e("s_waitcnt lgkmcnt(0)")
    e(f"s_load_dwordx16 s[76:91], s[{P_WOUT}:{P_WOUT+1}], 104")
    srd(S_C,P_CIN,105456)
    for gg in range(26):
        if gg%3==0: e(f"s_mov_b32 s{sT+2}, {2*35152+gg*1352}")
        e(f"buffer_load_dword v{M+gg}, v3, s[{S_C}:{S_C+3}], s{sT+2} offen offset:{(gg%3)*1352}")
    PP=44; QQ=52
    def slots():
        for ee in range(8):
            e(f"v_add_u32 v8, {ee}, v4")
            e("v_mul_u32_u24 v9, 5042, v8")
            e("v_lshrrev_b32 v9, 16, v9")
            e("v_mul_u32_u24 v10, 13, v9")
            e("v_sub_u32 v10, v8, v10")
            e(f"v_lshl_add_u32 v{PP+ee}, v10, 1, v5")
            e(f"v_add_u32 v{QQ+ee}, v{PP+ee}, v9")
            e(f"v_subrev_u32 v10, 26, v{QQ+ee}")
            e(f"v_min_u32 v{QQ+ee}, v{QQ+ee}, v10")
    def m3(later):
        e("v_mul_u32_u24 v8, 5042, v0")
        e("v_lshrrev_b32 v8, 16, v8")
        e("v_mul_u32_u24 v9, 13, v8")
        e("v_sub_u32 v9, v0, v9")
        e("v_lshlrev_b32 v9, 7, v9")
        e("v_lshl_add_u32 v96, v8, 1, v9")
        e("s_waitcnt lgkmcnt(0)")
        st(92)
        for gg in range(26):
            sreg=76+(gg>>1)
            if gg&1: e(f"s_and_b32 s{sT+4+(gg&1)}, s{sreg}, 0xffff0000")
            else:    e(f"s_lshl_b32 s{sT+4+(gg&1)}, s{sreg}, 16")
            if gg%4==0: e(f"s_waitcnt vmcnt({later+25-min(gg+3,25)})")
            e(f"v_lshlrev_b32 v8, 16, v{M+gg}")
            e(f"v_and_b32 v9, 0xffff0000, v{M+gg}")
            if gg==0:
                e(f"v_mul_f32 v10, s{sT+4}, v8"); e(f"v_mul_f32 v11, s{sT+4}, v9")
            else:
                e(f"v_fmac_f32 v10, s{sT+4+(gg&1)}, v8"); e(f"v_fmac_f32 v11, s{sT+4+(gg&1)}, v9")
        e("v_cvt_pk_bf16_f32 v10, v10, v11")
        e(f"s_movk_i32 s{sT+1}, 338")
        e(f"v_cmp_gt_u32 vcc, s{sT+1}, v0")
        e(f"s_and_saveexec_b64 s[{sT+2}:{sT+3}], vcc")
        e("ds_write_b16 v96, v10")
        e("ds_write_b16_d16_hi v96, v10 offset:64")
        e("s_mov_b64 exec, -1")
        st(94)
    def st_addr(cnt):
        e("v_lshlrev_b32 v6, 10, v6")
        e("v_lshl_add_u32 v6, v5, 9, v6")
        e(f"s_lshl_b32 s{sT+1}, s{sI}, 4")
        e(f"v_add_u32 v6, s{sT+1}, v6")
        e(f"v_cmp_gt_u32 vcc, {cnt}, v2")
        e("v_mov_b32 v94, 1.0")
        e("s_nop 0")
        e("v_cndmask_b32 v6, v7, v6, vcc")
        e("v_cmp_gt_u32 vcc, 2, v2")
        e("s_nop 1")
        e("v_cndmask_b32 v95, v94, 0.5, vcc")
        e("v_cmp_gt_u32 vcc, 4, v2")
        e("s_nop 1")
        e("v_cndmask_b32 v94, v94, 0.5, vcc")
    e(f"s_cmp_ge_u32 s{sWAVE}, 4")
    e("s_cbranch_scc1 L_aux_w1")
    Pq=60; PR=76; RA=68; VV=16
    e("v_and_b32 v8, 31, v2")
    e("v_lshrrev_b32 v15, 5, v2")
    e(f"v_mul_u32_u24 v10, {8*1352}, v15")
    e("v_lshl_add_u32 v10, v8, 1, v10")
    e("v_cmp_gt_u32 vcc, 26, v8")
    e(f"s_mul_i32 s{sT+3}, s{sI}, 52")
    e(f"s_add_u32 s{sT+3}, s{sT+3}, 35152")
    e("v_cndmask_b32 v10, v7, v10, vcc")
    e("v_cmp_gt_u32 vcc, 32, v2")
    e("v_lshlrev_b32 v12, 2, v2")
    e("s_nop 0")
    e("v_cndmask_b32 v11, v7, v10, vcc")
    for s in range(2):
        for ee in range(8):
            h=16*s+ee
            if h%3==0 or ee==0:
                hb=h; e(f"s_add_u32 s{sT+2}, s{sT+3}, {h*1352}")
            va=11 if (s==1 and ee>=2) else 10
            e(f"buffer_load_ushort v{PR+s*8+ee}, v{va}, s[{S_C}:{S_C+3}], s{sT+2} offen offset:{(h-hb)*1352}")
    srd(S_O,P_WOUT,156)
    e(f"buffer_load_dword v13, v12, s[{S_O}:{S_O+3}], 0 offen offset:52")
    e(f"s_lshl_b32 s{sT+2}, s{sI}, 1")
    e(f"buffer_load_ushort v14, off, s[{S_O}:{S_O+3}], s{sT+2}")
    e("v_lshlrev_b32 v8, 6, v2")
    e("v_mov_b32 v9, 0")
    e("s_mov_b32 exec_lo, 0x7ffffff")
    e("s_mov_b32 exec_hi, 0")
    e("ds_write_b32 v8, v9 offset:52")
    e("ds_write_b32 v8, v9 offset:56")
    e("ds_write_b32 v8, v9 offset:60")
    e("s_mov_b64 exec, -1")
    e("v_and_b32 v8, 31, v2")
    e("v_lshlrev_b32 v93, 6, v8")
    e("v_lshl_add_u32 v93, v15, 4, v93")
    e(f"s_mul_i32 s{sT+1}, s{sWAVE}, 5120")
    e(f"s_add_u32 s{sT+1}, s{sT+1}, 4096")
    e("v_mul_u32_u24 v92, 144, v8")
    e("v_lshl_add_u32 v92, v15, 4, v92")
    e(f"v_add_u32 v92, s{sT+1}, v92")
    slots()
    e("v_cmp_lt_u32 vcc, 43, v2")
    e("v_subrev_u32 v10, 176, v4")
    e("v_mov_b32 v11, 26")
    for ee in range(8):
        e(f"v_add_u32 v8, {ee}, v10")
        e("v_lshl_add_u32 v8, v8, 1, v5")
        e(f"v_min_u32 v8, 31, v8")
        e(f"v_cndmask_b32 v8, v{QQ+ee}, v8, vcc")
        e(f"v_cndmask_b32 v9, v{PP+ee}, v11, vcc")
        e(f"v_mul_u32_u24 v9, 144, v9")
        e(f"v_lshl_add_u32 v9, v8, 2, v9")
        e(f"v_add_u32 v{RA+ee}, s{sT+1}, v9")
    e("v_lshrrev_b32 v8, 1, v2")
    e("v_lshl_add_u32 v6, v8, 1, 1")
    e("v_add_u32 v8, 22, v8")
    e("v_cndmask_b32 v6, v6, v8, vcc")
    st_addr(48)
    m3(18)
    e("s_mov_b32 exec_lo, 0x1fff")
    e("s_mov_b32 exec_hi, 0")
    e("s_waitcnt vmcnt(0)")
    e(f"ds_write_b32 v12, v13 offset:{26*64}")
    e("s_mov_b64 exec, -1")
    for r in range(8): e(f"v_lshl_or_b32 v{Pq+r}, v{PR+2*r+1}, 16, v{PR+2*r}")
    e("s_waitcnt lgkmcnt(0)")
    e("s_barrier")
    Qq=16; D=24
    e(f"ds_read_b128 v[{Qq}:{Qq+3}], v93")
    e(f"ds_read_b128 v[{Qq+4}:{Qq+7}], v93 offset:32")
    e("s_waitcnt lgkmcnt(0)")
    e(f"v_mfma_f32_32x32x16_bf16 v[{D}:{D+15}], v[{Pq}:{Pq+3}], v[{Qq}:{Qq+3}], 0")
    e(f"v_mfma_f32_32x32x16_bf16 v[{D}:{D+15}], v[{Pq+4}:{Pq+7}], v[{Qq+4}:{Qq+7}], v[{D}:{D+15}]")
    e(f"v_mfma_f32_32x32x16_bf16 v[{D}:{D+15}], v[{Qq}:{Qq+3}], v[{Pq}:{Pq+3}], v[{D}:{D+15}]")
    e(f"v_mfma_f32_32x32x16_bf16 v[{D}:{D+15}], v[{Qq+4}:{Qq+7}], v[{Pq+4}:{Pq+7}], v[{D}:{D+15}]")
    e("s_nop 11")
    for m in range(4):
        e(f"ds_write_b128 v92, v[{D+4*m}:{D+4*m+3}] offset:{m*32}")
    e("s_waitcnt lgkmcnt(0)")
    for ee in range(8): e(f"ds_read_b32 v{VV+ee}, v{RA+ee}")
    e("v_lshlrev_b32 v14, 16, v14")
    e(f"v_cmp_eq_u32 s[{sT}:{sT+1}], 46, v2")
    e(f"v_cmp_eq_u32 s[{sT+2}:{sT+3}], 47, v2")
    e("v_cmp_lt_u32 vcc, 45, v2")
    e("s_waitcnt lgkmcnt(0)")
    e(f"v_cndmask_b32 v{VV+5}, v{VV+5}, v14, s[{sT}:{sT+1}]")
    e(f"v_cndmask_b32 v{VV+5}, v{VV+5}, 0, s[{sT+2}:{sT+3}]")
    e(f"v_cndmask_b32 v{VV+6}, v{VV+6}, 0, vcc")
    e(f"v_cndmask_b32 v{VV+7}, v{VV+7}, 0, vcc")
    e("s_branch L_aux_pack")
    lab("L_aux_w1")
    GA=60; GB=68
    e(f"s_mul_i32 s{sT+3}, s{sI}, 1352")
    e(f"s_lshl_b32 s{sT+6}, s{sWAVE}, 11")
    e(f"s_add_u32 s{sT+6}, s{sT+6}, {32768-4*2048}")
    e(f"s_mov_b32 m0, s{sT+6}")
    e("v_lshlrev_b32 v12, 4, v2")
    e(f"buffer_load_dwordx4 v12, s[{S_C}:{S_C+3}], s{sT+3} offen lds")
    e(f"buffer_load_dwordx4 v12, s[{S_C}:{S_C+3}], s{sT+3} offen offset:1024 lds")
    slots()
    for ee in range(8):
        e(f"v_mul_u32_u24 v8, 26, v{PP+ee}")
        e(f"v_add_lshl_u32 v8, v8, v{QQ+ee}, 1")
        e(f"v_add_u32 v{GA+ee}, s{sT+6}, v8")
        e(f"v_mul_u32_u24 v9, 26, v{QQ+ee}")
        e(f"v_add_lshl_u32 v9, v9, v{PP+ee}, 1")
        e(f"v_add_u32 v{GB+ee}, s{sT+6}, v9")
    e("v_and_b32 v6, 62, v2")
    st_addr(44)
    m3(2)
    e("s_waitcnt lgkmcnt(0)")
    e("s_barrier")
    e("s_waitcnt vmcnt(0)")
    for ee in range(8):
        e(f"ds_read_u16 v{GA+ee}, v{GA+ee}")
        e(f"ds_read_u16 v{GB+ee}, v{GB+ee}")
    e("s_waitcnt lgkmcnt(0)")
    for ee in range(8):
        e(f"v_lshlrev_b32 v{GA+ee}, 16, v{GA+ee}")
        e(f"v_lshlrev_b32 v{GB+ee}, 16, v{GB+ee}")
        e(f"v_add_f32 v{VV+ee}, v{GA+ee}, v{GB+ee}")
    lab("L_aux_pack")
    srd(S_WS,P_WS,WS_SIZE); srd(S_A,P_DBG,256)
    e("v_cmp_eq_u32 vcc, 43, v2")
    for ee in range(8): e(f"v_mul_f32 v{VV+ee}, v{VV+ee}, v{94 if ee<5 else 95}")
    e(f"v_cndmask_b32 v{VV+7}, v{VV+7}, 0, vcc")
    for m in range(4): e(f"v_cvt_pk_bf16_f32 v{24+m}, v{VV+2*m}, v{VV+2*m+1}")
    e(f"s_cmp_ge_u32 s{sI}, 26")
    e("s_cbranch_scc1 L_aux_done")
    e(f"buffer_store_dwordx4 v[24:27], v6, s[{S_WS}:{S_WS+3}], 0 offen sc0 sc1")
    st(96)
    e(f"s_lshr_b32 s{sT}, s{sWAVE}, 2")
    e(f"s_lshl1_add_u32 s{sT}, s{sI}, s{sT}")
    e(f"s_lshl_b32 s{sT}, s{sT}, 2")
    e("v_mov_b32 v8, 1")
    e("s_mov_b64 exec, 1")
    e("s_waitcnt vmcnt(0)")
    e(f"buffer_store_dword v8, off, s[{S_A}:{S_A+3}], s{sT} sc0 sc1")
    e("s_mov_b64 exec, -1")
    if ST:
        st(98); e("s_waitcnt vmcnt(0)"); st(100,True)
        dump([10,92,94,96,98,100],1,2)
    e("s_branch L_aux_done")
    lab("L_prefetch")
    e("s_waitcnt lgkmcnt(0)")
    if opt.pf:
        srd(S_W,P_W,1664*3328)
        e(f"s_cmp_lt_u32 s{sXCD}, 4")
        e(f"s_cselect_b32 s{sT+2}, 27, 26")
        e(f"s_cmp_lt_u32 s{sXCD}, 3")
        e(f"s_cselect_b32 s{sT+2}, 28, s{sT+2}")
        e(f"s_sub_u32 s{sT}, s{sSLOT}, s{sT+2}")
        e(f"s_sub_u32 s{sT+2}, 32, s{sT+2}")
        e(f"s_mul_i32 s{sT+1}, s{sXCD}, 26")
        e(f"s_lshr_b32 s{sT+1}, s{sT+1}, 3")
        e(f"s_lshl_b32 s{sT+1}, s{sT+1}, 7")
        for u in range(4):
            e(f"v_add_u32 v3, {512*u}, v0")
            e(f"v_mul_u32_u24 v3, s{sT+2}, v3")
            e(f"v_add_u32 v3, s{sT}, v3")
            e("v_lshrrev_b32 v4, 2, v3")
            e("v_and_b32 v3, 3, v3")
            e(f"v_mul_u32_u24 v4, 3328, v4")
            e("v_lshl_add_u32 v3, v3, 7, v4")
            e(f"buffer_load_dword v{9+u}, v3, s[{S_W}:{S_W+3}], s{sT+1} offen")
        e(f"s_cmp_lg_u32 s{sSLOT}, 31")
        e("s_cbranch_scc1 L_aux_done")
        srd(S_B,P_W2,3328); srd(S_WS,P_WS,EPOCH+8192)
        e("v_lshlrev_b32 v3, 7, v0")
        e(f"buffer_load_dword v13, v3, s[{S_B}:{S_B+3}], 0 offen")
        e(f"s_mov_b32 s{sT}, {EPOCH}")
        e(f"buffer_load_dword v14, v3, s[{S_WS}:{S_WS+3}], s{sT} offen")
    lab("L_aux_done")
    e(f"s_cmp_lt_u32 s{sWAVE}, 4")
    e("s_cbranch_scc1 L_end")
    srd(S_TBL,P_TBL,128000)
    row_sloads()
    e("v_and_b32 v3, 31, v2")
    e("v_lshlrev_b32 v4, 2, v3")
    e(f"v_mov_b32 v7, {FLAGS}")
    e("v_mov_b32 v8, 1")
    e("v_mov_b32 v9, 0")
    e(f"ds_write_b32 v7, v8 offset:{F_IT9}")
    e(f"ds_write_b32 v7, v9 offset:{F_CW}")
    e("s_waitcnt lgkmcnt(0)")
    for r in range(26):
        e(f"s_lshl_b32 s{76+r}, s{76+r}, 7")
        e(f"buffer_load_dword v{X+r}, v4, s[{S_TBL}:{S_TBL+3}], s{76+r} offen")
    e("s_branch L_help_main")
    lab("L_end")
    e("s_endpgm")
    L.append('.section .rodata,"a"'); L.append(".p2align 6"); L.append(f".amdhsa_kernel {KN}")
    for x in ["next_free_vgpr 256","next_free_sgpr 102","accum_offset 256","group_segment_fixed_size 0","kernarg_size 88",
              "user_sgpr_count 2","user_sgpr_kernarg_segment_ptr 1","system_sgpr_workgroup_id_x 1"]:
        L.append("  .amdhsa_"+x)
    L.append(".end_amdhsa_kernel")
    return "\n".join(L)+"\n"

if __name__=="__main__":
    ap=argparse.ArgumentParser()
    ap.add_argument("-o",default="k.s")
    for k,d in dict(enc=0,encrole=0,encwg=0,encwave=0,nocin=0,gcyc=0,psleep=4,now=0,stamps=0,pf=1,cpf=1,prio=1,bound=20000,zsplit=18,nt0=10,wsched=0).items(): ap.add_argument("--"+k,type=int,default=d)
    opt=ap.parse_args()
    for t in range(512): assert (t*5042)>>16==t//13, t
    open(opt.o,"w").write(build(opt))
```

```python
import sys, argparse, math, struct

class Q:
    def __init__(s,cap): s.ops=[]; s.cap=cap
    def issue(s,name): s.ops.append(name)
    def need(s,*names):
        r=99
        for name in names:
            i=len(s.ops)-1-s.ops[::-1].index(name)
            r=min(r,len(s.ops)-1-i)
        return min(r,s.cap)

WIMG=0; GRAN=65536; EPOCH=0x50000; STAMP=0x100000; WS_SIZE=0x200000
STG=49152; RING=128000; FLAGS=160768; CINW=65536
F_IT9,F_RED,F_CW,F_PRE,F_IDX=0,4,8,12,16
C1=-2*math.sqrt(2/math.pi)*math.log2(math.e); C2=C1*0.044715
def f2u(x): return struct.unpack('<I',struct.pack('<f',x))[0]
KN="standalone__deep_cross_xdeepfm__recsys_kernel"

sWAVE,sXCD,sSLOT,sCB,sRB=3,4,5,7,8
P_IDX,P_TBL,P_CIN,P_WOUT,P_W,P_B1,P_W2,P_BO=16,18,20,22,24,26,28,30
P_OUT,P_DBG,P_WS=32,34,36
S_IDX,S_TBL,S_W,S_WS,S_A,S_B=40,44,48,52,56,60
sRING,sWR1,sWR2,sTM=64,65,15,14
sT=66

def pair_of(n):
    if n<169: dlt,m=divmod(n,13)
    else: dlt,m=13,n-169
    r=2*m
    return r,(r+dlt)%26

def build(opt):
    L=[]
    cnt=[0]; lastw={}
    def e(x):
        L.append("    "+x)
        cnt[0]+= (int(x.split()[1])+1) if x.startswith("s_nop") else 1
    def hz(key,n):
        d=cnt[0]-lastw[key]
        if d<n: e(f"s_nop {n-d-1}")
    def lab(x): L.append(x+":")
    def cm(x): L.append("    ; "+x)
    E=lambda x:(lambda: e(x))
    ST=opt.stamps
    def srd(d,p,size):
        e(f"s_mov_b32 s{d}, s{p}"); e(f"s_mov_b32 s{d+1}, s{p+1}")
        e(f"s_mov_b32 s{d+2}, {size}"); e(f"s_mov_b32 s{d+3}, 0x20000")
    def st(r,wait=False):
        if ST:
            e(f"s_memrealtime s[{r}:{r+1}]")
            if wait: e("s_waitcnt lgkmcnt(0)")
    def dump(regs,area=0,role=0):
        if opt.enc:
            delay(regs,role); return
        dump_(regs,area)
    dl=[0]
    def delay(regs,role):
        dl[0]+=1; n=dl[0]
        e("s_mov_b64 exec, -1")
        e("s_waitcnt lgkmcnt(0)")
        if opt.enc==99:
            if role!=1: return
            srd(S_A,P_DBG,256)
            e("s_not_b32 s12, s10")
            e("v_mov_b32 v244, s12")
            e(f"v_mov_b32 v245, s{regs[10]}")
            e("v_mov_b32 v246, 1")
            e("s_mov_b64 exec, 1")
            e(f"buffer_atomic_umax v244, off, s[{S_A}:{S_A+3}], 0 offset:240 sc1")
            e(f"buffer_atomic_umax v245, off, s[{S_A}:{S_A+3}], 0 offset:244 sc1")
            e("s_waitcnt vmcnt(0)")
            e(f"buffer_atomic_add v246, off, s[{S_A}:{S_A+3}], 0 offset:248 sc0 sc1")
            e("s_waitcnt vmcnt(0)")
            e("v_readfirstlane_b32 s12, v246")
            e("s_cmp_lg_u32 s12, 1023")
            e(f"s_cbranch_scc1 L_dly{n}_x")
            e(f"buffer_load_dwordx2 v[244:245], off, s[{S_A}:{S_A+3}], 0 offset:240 sc1")
            e("s_waitcnt vmcnt(0)")
            e("v_readfirstlane_b32 s12, v244")
            e("v_readfirstlane_b32 s13, v245")
            e("s_not_b32 s12, s12")
            e("s_sub_u32 s12, s13, s12")
        else:
            if role!=opt.encrole: return
            e(f"s_cmp_lg_u32 s2, {opt.encwg}")
            e(f"s_cbranch_scc1 L_dly{n}_x")
            e(f"s_cmp_lg_u32 s{sWAVE}, {opt.encwave}")
            e(f"s_cbranch_scc1 L_dly{n}_x")
            e(f"s_sub_u32 s12, s{regs[opt.enc]}, s10")
        e("s_mul_i32 s12, s12, 100")
        e("s_memrealtime s[66:67]")
        e("s_waitcnt lgkmcnt(0)")
        e("s_add_u32 s12, s12, s66")
        lab(f"L_dly{n}")
        e("s_sleep 8")
        e("s_memrealtime s[66:67]")
        e("s_waitcnt lgkmcnt(0)")
        e("s_sub_u32 s13, s66, s12")
        e("s_cmp_lt_i32 s13, 0")
        e(f"s_cbranch_scc1 L_dly{n}")
        lab(f"L_dly{n}_x")
        e("s_mov_b64 exec, -1")
    def dump_(regs,area=0):
        e("s_mov_b64 exec, -1")
        e("s_waitcnt lgkmcnt(0)")
        e("s_lshl_b32 s12, s2, 3")
        e(f"s_add_u32 s12, s12, s{sWAVE}")
        e("s_lshl_b32 s12, s12, 6")
        e(f"s_add_u32 s12, s12, {STAMP+area*0x40000}")
        regs=list(regs)+[regs[0]]*(12-len(regs))
        for i,r in enumerate(regs): e(f"v_mov_b32 v{244+i}, s{r}")
        e("s_mov_b64 exec, 1")
        for i in range(3):
            e(f"buffer_store_dwordx4 v[{244+4*i}:{247+4*i}], off, s[{S_WS}:{S_WS+3}], s12 offset:{16*i}")
        e("s_mov_b64 exec, -1")
    def lds_spin(name,vaddr,vtmp,off,target,sleep=0):
        e(f"s_mov_b32 s{sT+4}, {opt.bound*8}")
        lab(name)
        e(f"ds_read_b32 v{vtmp}, v{vaddr} offset:{off}")
        e("s_waitcnt lgkmcnt(0)")
        e(f"v_readfirstlane_b32 s{sT+5}, v{vtmp}")
        e(f"s_cmp_ge_u32 s{sT+5}, {target}")
        e(f"s_cbranch_scc1 {name}_x")
        if sleep: e(f"s_sleep {sleep}")
        e(f"s_sub_u32 s{sT+4}, s{sT+4}, 1")
        e(f"s_cbranch_scc0 {name}")
        lab(name+"_x")

    IV=16; IA=24
    def rec_addrs():
        e(f"s_lshl_b32 s{sT+5}, s{sT}, 7")
        e(f"s_add_u32 s{sT+5}, s{sT+5}, {RING+4096}")
        e(f"v_lshl_add_u32 v7, v7, 3, s{sT+5}")
        e("v_mul_u32_u24 v9, 7, v8")
        e("v_and_b32 v8, 1, v8")
        for par in range(2):
            d=IA+2*par
            if par:
                e("v_xor_b32 v8, 1, v8"); e("v_add_u32 v9, 1, v9")
            e("v_lshrrev_b32 v10, 1, v9")
            e(f"v_lshl_add_u32 v{d}, v10, 8, v7")
            e(f"v_lshl_add_u32 v{d}, v8, 14, v{d}")
            e("v_lshlrev_b32 v10, 1, v8")
            e(f"v_xor_b32 v10, s{sT+2}, v10")
            e(f"v_lshl_add_u32 v{d}, v10, 1, v{d}")
            e(f"v_xor_b32 v{d+1}, 2, v{d}")
            e(f"v_add_u32 v{d+1}, 8192, v{d+1}")
    sROW=6; sE=38
    def rowidx_load():
        e(f"s_sub_u32 s{sT+6}, s{sWAVE}, 4")
        e(f"s_lshl2_add_u32 s{sROW}, s2, s{sT+6}")
        e(f"s_mul_i32 s{sT+6}, s{sROW}, 104")
        e("v_lshlrev_b32 v30, 2, v2")
        e(f"buffer_load_dword v29, v30, s[{S_IDX}:{S_IDX+3}], s{sT+6} offen")
    L.append("; @launch grid=(256,1,1) block=(512,1,1) lds=163840")
    L.append('.amdgcn_target "amdgcn-amd-amdhsa--gfx950"')
    L.append(".text"); L.append(f".globl {KN}"); L.append(".p2align 8"); L.append(f".type {KN},@function")
    lab(KN)
    e("s_load_dwordx16 s[16:31], s[0:1], 0")
    e("s_load_dwordx4 s[32:35], s[0:1], 64")
    e("s_load_dwordx2 s[36:37], s[0:1], 80")
    st(10)
    e("s_cmp_ge_u32 s2, 256")
    e("s_cbranch_scc1 L_end")
    e("v_lshrrev_b32 v1, 6, v0")
    e("v_and_b32 v2, 63, v0")
    e(f"v_readfirstlane_b32 s{sWAVE}, v1")
    e(f"s_and_b32 s{sXCD}, s2, 7")
    e(f"s_lshr_b32 s{sSLOT}, s2, 3")
    e(f"s_cmp_ge_u32 s{sSLOT}, 26")
    e("s_cbranch_scc1 L_aux")
    e(f"s_mul_i32 s6, s{sXCD}, 26")
    e(f"s_add_u32 s6, s6, s{sSLOT}")
    e(f"s_lshr_b32 s{sCB}, s6, 3")
    e(f"s_and_b32 s{sRB}, s6, 7")
    e(f"v_mov_b32 v7, {FLAGS}")
    e("v_mov_b32 v8, 0"); e("v_mov_b32 v9, 0")
    e("ds_write2_b64 v7, v[8:9], v[8:9] offset1:1")
    e("ds_write_b64 v7, v[8:9] offset:16")
    e("v_lshrrev_b32 v3, 3, v2")
    e("v_lshrrev_b32 v4, 4, v2")
    e("v_and_b32 v10, 7, v2")
    e(f"s_mov_b32 s{S_IDX+2}, 106496"); e(f"s_mov_b32 s{S_IDX+3}, 0x20000")
    e(f"s_and_b32 s{sT}, s{sWAVE}, 1")
    e(f"s_lshl_b32 s{sT+1}, s{sT}, 2")
    e("v_xor_b32 v5, v10, v4")
    e(f"v_xor_b32 v5, s{sT+1}, v5")
    e("v_lshlrev_b32 v5, 4, v5")
    e("v_lshl_add_u32 v5, v3, 7, v5")
    e(f"s_lshr_b32 s{sT+2}, s{sWAVE}, 1")
    e(f"s_lshl1_add_u32 s{sT+3}, s{sSLOT}, s{sT+2}")
    e(f"s_lshl_b32 s{sT+3}, s{sT+3}, 11")
    e(f"s_lshl_b32 s{sT+4}, s{sT}, 10")
    e(f"s_add_u32 s{sTM}, s{sT+3}, s{sT+4}")
    e(f"s_lshl_b32 s{sT+3}, s{sT}, 11")
    e(f"s_sub_u32 s{sWR2}, {63*2048}, s{sT+3}")
    e(f"s_add_u32 s{sWR1}, s{sWR2}, s{sT+4}")
    e(f"s_mov_b32 s{S_TBL+2}, 128000"); e(f"s_mov_b32 s{S_TBL+3}, 0x20000")
    e(f"s_cmp_ge_u32 s{sWAVE}, 4")
    e("s_cbranch_scc1 L_help_pro")
    def tbl(n,vm):
        for t in range(n):
            e(f"s_mov_b32 m0, s{sTM}")
            e(f"s_add_u32 s{sTM}, s{sTM}, 8192")
            e(f"buffer_load_dwordx4 v5, s[{S_TBL}:{S_TBL+3}], m0 offen lds"); vm.issue("tbl")
            e(f"s_cmp_ge_u32 s{sTM}, s{sWR1}")
            e(f"s_cselect_b32 s{sT+5}, s{sWR2}, 0")
            e(f"s_sub_u32 s{sTM}, s{sTM}, s{sT+5}")

    vW,vT0,vT1=1,3,4
    AD=8; AF=16; F0=48; REC=80; ACC=128
    acc=lambda lt,ct: ACC+(lt*2+ct)*16
    Fr=lambda j,ks,ct: F0+(j&1)*16+(ks*2+ct)*4
    AF2={1:80,2:88,3:96,0:120}
    afr=lambda lt,ks,j: (AF2[lt] if j==12 else AF+8*lt)+4*ks
    vm=Q(63); lg=Q(15)
    cm("---- DNN wave prologue ----")
    e("v_lshlrev_b32 v6, 4, v2")
    e(f"s_mul_i32 s{sT+4}, s{sRB}, 13312")
    e(f"s_mul_i32 s{sT+5}, s{sWAVE}, 3328")
    e(f"s_add_u32 s{sT+4}, s{sT+4}, s{sT+5}")
    e(f"s_lshl_b32 s{sRING}, s{sWAVE}, 13")
    e(f"s_add_u32 s{sRING}, s{sRING}, {RING}")
    e(f"s_add_u32 m0, s{sRING}, 4096")
    e(f"s_lshl_b32 s{sT+7}, s{sWAVE}, 5")
    e(f"v_add_u32 v9, s{sT+7}, v3")
    e("v_mul_u32_u24 v9, 3328, v9")
    e("v_lshlrev_b32 v11, 2, v4")
    e("v_and_b32 v11, 4, v11")
    e("v_xor_b32 v11, v11, v10")
    e("v_lshl_add_u32 v1, v11, 4, v9")
    e(f"s_lshl_b32 s{sT+7}, s{sCB}, 7")
    e(f"v_add_u32 v1, s{sT+7}, v1")
    e("v_lshrrev_b32 v12, 5, v2")
    e(f"v_lshl_add_u32 v11, v12, 5, s{sT+7}")
    e("s_waitcnt lgkmcnt(0)")
    if opt.pst: st(84)
    e(f"s_mov_b64 s[{S_IDX}:{S_IDX+1}], s[{P_IDX}:{P_IDX+1}]")
    e(f"s_mov_b64 s[{S_TBL}:{S_TBL+1}], s[{P_TBL}:{P_TBL+1}]")
    for i in range(4):
        if i==3: e("s_mov_b64 exec, 0xffff")
        e(f"buffer_load_dwordx4 v6, s[{S_IDX}:{S_IDX+3}], s{sT+4} offen offset:{1024*i} lds"); vm.issue(f"idx{i}")
    e("s_mov_b64 exec, -1")
    srd(S_W,P_W,1664*3328)
    srd(S_A,P_B1,3328)
    for pc in range(4):
        e(f"s_add_u32 m0, s{sRING}, {pc*1024}")
        e(f"s_mov_b32 s12, {8*pc*3328}")
        e(f"buffer_load_dwordx4 v1, s[{S_W}:{S_W+3}], s12 offen lds"); vm.issue(f"w0_{pc}")
    def bias_loads():
        for i in range(4):
            e(f"buffer_load_dwordx4 v[{106+4*i}:{109+4*i}], v{VB}, s[{S_A}:{S_A+3}], 0 offen offset:{(i>>1)*64+(i&1)*16}"); vm.issue(f"bias{i}")
    VB=6
    e("v_mov_b32 v6, v11")
    TB=[int(c,16) for c in str(opt.tb)]
    tbl(TB[0],vm)
    if opt.pst: st(86)
    e("v_and_b32 v13, 31, v2")
    e("v_mul_u32_u24 v13, 104, v13")
    e(f"s_lshl2_add_u32 s{sT+5}, s{sT+2}, {RING+4096}")
    e(f"v_add_u32 v13, s{sT+5}, v13")
    e("v_lshlrev_b32 v9, 1, v12")
    e(f"v_xor_b32 v9, s{sWAVE}, v9")
    e("v_lshl_add_u32 v24, v9, 13, v13")
    e("v_xor_b32 v9, 1, v9")
    e("v_lshl_add_u32 v25, v9, 13, v13")
    e("v_bfe_u32 v9, v2, 2, 2")
    e("v_lshlrev_b32 v3, 7, v9")
    e("v_lshl_add_u32 v3, v12, 10, v3")
    e("v_lshrrev_b32 v9, 1, v9")
    e("v_lshl_add_u32 v3, v9, 6, v3")
    e("v_and_b32 v9, 1, v2")
    e("v_lshl_add_u32 v3, v9, 5, v3")
    e("v_bfe_u32 v9, v2, 1, 1")
    e("v_lshl_add_u32 v3, v9, 3, v3")
    e("v_and_b32 v9, 1, v4")
    e("v_lshl_add_u32 v3, v9, 4, v3")
    e(f"v_add_u32 v3, s{sRING}, v3")
    e("v_xor_b32 v4, 64, v3")
    e(f"v_add_u32 v14, s{sT+1}, v12")
    e("v_lshl_or_b32 v14, v14, 16, v14")
    e(f"s_mov_b32 s{sT+6}, 0x00070007")
    e(f"s_waitcnt vmcnt({vm.need('idx3')})")
    if opt.pst: st(88)
    def lds_inc(va,off):
        e("v_mov_b32 v0, 1")
        e("s_mov_b64 exec, 1")
        e(f"ds_add_u32 v{va}, v0 offset:{off}")
        e("s_mov_b64 exec, -1")
    e("s_barrier")
    if opt.pst: st(90)
    sWO=12
    def dma(j,pcs):
        for pc in pcs:
            if opt.now and j>=3:
                vm.ops.insert(0,f"w{j}_{pc}"); continue
            e(f"s_add_u32 m0, s{sRING}, {((j&1)*4+pc)*1024}")
            e(f"s_mov_b32 s{sWO}, {(128*j+8*pc)*3328}")
            e(f"buffer_load_dwordx4 v{vW}, s[{S_W}:{S_W+3}], s{sWO} offen lds"); vm.issue(f"w{j}_{pc}")
    BI=106
    RW=lambda t,j: 160+t*14+j
    for j in range(0,13,2):
        for t in range(2):
            e(f"ds_read2_b32 v[{RW(t,j)}:{RW(t,j)+1}], v{24+t} offset0:{2*j} offset1:{2*j+2}")
    tbl(TB[1],vm)
    srd(S_WS,P_WS,WS_SIZE)
    srd(S_B,P_W2,3328)
    e("s_waitcnt lgkmcnt(0)")
    e("s_barrier")
    st(76)
    tbl(TB[2],vm)
    for j in range(13):
        if j==6: tbl(TB[3],vm)
        d=REC+2*j
        e(f"v_lshl_or_b32 v{d}, v{RW(1,j)}, 16, v{RW(0,j)}")
        e(f"v_lshrrev_b32 v13, 1, v{d}")
        e(f"v_and_b32 v13, s{sT+6}, v13")
        e(f"v_lshl_or_b32 v{d}, v{d}, 3, v13")
        e(f"v_mov_b32 v{d+1}, v{d}")
        if j:
            e(f"v_permlane32_swap_b32 v{d-2}, v{d-1}")
            e(f"v_xor_b32 v{d-2}, v14, v{d-2}"); e(f"v_xor_b32 v{d-1}, v14, v{d-1}")
    e("s_nop 1")
    e(f"v_permlane32_swap_b32 v{REC+24}, v{REC+25}")
    e(f"v_xor_b32 v{REC+24}, v14, v{REC+24}"); e(f"v_xor_b32 v{REC+25}, v14, v{REC+25}")
    def adr(lt,j):
        e(f"v_lshlrev_b32_sdwa v{AD+2*lt}, 4, v{REC+2*j+(lt>>1)} dst_sel:DWORD dst_unused:UNUSED_PAD src0_sel:DWORD src1_sel:WORD_{lt&1}")
        e(f"v_xor_b32 v{AD+2*lt+1}, 32, v{AD+2*lt}")
    def Rop(lt,j):
        for ks in range(2):
            e(f"ds_read_b128 v[{afr(lt,ks,j)}:{afr(lt,ks,j)+3}], v{AD+2*lt+ks}"); lg.issue(f"R{lt}_{ks}_{j}")
    def Top(j,ks):
        for ct in range(2):
            for h4 in range(2):
                d=Fr(j,ks,ct)+2*h4
                e(f"ds_read_b64_tr_b16 v[{d}:{d+1}], v{vT0+ct} offset:{((j&1)*4+ks*2)*1024+h4*512}"); lg.issue(f"T{j}_{ks}_{ct}{h4}")
    for lt in range(4): adr(lt,0)
    if ST: e("s_waitcnt lgkmcnt(0)")
    e(f"s_waitcnt vmcnt({vm.need('w0_3' if opt.lateb else 'bias3')})")
    Top(0,0); Top(0,1)
    bun=[]
    for ct in range(2):
        for t in range(16):
            src=BI+ct*8+(t>>1)
            if t&1: bun.append(f"v_and_b32 v{acc(0,ct)+t}, 0xffff0000, v{src}")
            else:   bun.append(f"v_lshlrev_b32 v{acc(0,ct)+t}, 16, v{src}")
    if not opt.lateb:
        for x in bun: e(x)
    tbl(16-sum(TB),vm)
    bias_loads()
    dma(1,range(4))
    e("s_waitcnt lgkmcnt(0)")
    dma(2,range(4))
    if opt.pst: st(92)
    e(f"s_waitcnt vmcnt({vm.need('tbl')})")
    st(78)
    e("s_barrier")
    st(80,True)
    if ST: e("s_memtime s[96:97]"); e("s_waitcnt lgkmcnt(0)")
    if opt.prio: e(f"s_setprio {opt.prio}")
    Rop(1,0); Rop(2,0); Rop(3,0); Rop(0,0)
    def group(lt,j,fills,after=()):
        for i,(ks,ct) in enumerate([(0,0),(0,1),(1,0),(1,1)]):
            c=f"v[{acc(lt,ct)}:{acc(lt,ct)+15}]"
            src=c if (j>0 or lt==0 or ks==1) else "0"
            e(f"v_mfma_f32_32x32x16_bf16 {c}, v[{Fr(j,ks,ct)}:{Fr(j,ks,ct)+3}], v[{afr(lt,ks,j)}:{afr(lt,ks,j)+3}], {src}")
            lastw[(lt,ct)]=cnt[0]
            for f in fills[i]: f()
        for f in after: f()
    LT=[1,2,3,0]
    for j in range(11):
        cm(f"---- iteration {j} ----")
        for g,lt in enumerate(LT):
            needs=[f"R{lt}_1_{j}"]+([f"T{j}_1_11"] if g==0 else [])
            e(f"s_waitcnt lgkmcnt({lg.need(*needs)})")
            fills=[[],[],[],[]]
            if g<2:
                fills[0].append(lambda j=j,g=g: e(f"s_waitcnt vmcnt({vm.need(f'w{j+1}_{2*g+1}')})"))
                fills[0].append(lambda j=j,g=g: Top(j+1,g))
            elif j+3<13:
                fills[0].append(lambda j=j,g=g: e(f"s_waitcnt lgkmcnt({lg.need(f'T{j+1}_{g-2}_11')})"))
                fills[0].append(lambda j=j,g=g: dma(j+3,[2*(g-2)]))
                fills[1].append(lambda j=j,g=g: dma(j+3,[2*(g-2)+1]))
            fills[2].append(lambda j=j,lt=lt: adr(lt,j+1))
            fills[3].append(lambda j=j,lt=lt: Rop(lt,j+1))
            if j==0 and opt.lateb and g in (1,2):
                if g==1: fills[1].append(lambda: e(f"s_waitcnt vmcnt({vm.need('bias3')})"))
                for i in range(1,4):
                    k0=((g-1)*3+(i-1))*6
                    fills[i]+= [E(x) for x in bun[k0:k0+6]]
            if j==9 and g==3:
                fills[2].append(E("v_mov_b32 v0, 1")); fills[3].append(lambda: (e(f"ds_write_b32 v7, v0 offset:{F_IT9}"),lg.issue("it9")))
            if j==10 and g==2:
                fills[0].append(lambda: adr(1,12)); fills[1].append(lambda: Rop(1,12))
            group(lt,j,fills)
    cm("---- merged iterations 11/12 with reduction writes ----")
    W2P=104; EV=6; WA=AD
    order=[(1,11),(2,11),(1,12),(3,11),(2,12),(0,11),(3,12),(0,12)]
    def wr(lt,qs):
        return [(lambda q=q,lt=lt: (hz((lt,q>>2),12),e(f"ds_write_b128 v{WA+lt-1}, v[{acc(lt,q>>2)+4*(q&3)}:{acc(lt,q>>2)+4*(q&3)+3}] offset:{q*1024}"),lg.issue(f"W{lt}_{q}"))) for q in qs]
    def addrs():
        e(f"v_lshlrev_b32 v{AD+3}, 4, v2")
        e(f"v_add_u32 v{WA}, s{sRING}, v{AD+3}")
        for u in (2,3):
            e(f"s_xor_b32 s{sT}, s{sWAVE}, {u}")
            e(f"s_lshl_b32 s{sT}, s{sT}, 13")
            if u==3: e(f"s_add_u32 s{sT}, s{sT}, 32768")
            e(f"v_add_u32 v{WA+u-1}, s{sT}, v{AD+3}")
        e(f"s_xor_b32 s{sT}, s{sWAVE}, 1")
        e(f"s_lshl_b32 s{sT}, s{sT}, 13")
        e(f"s_add_u32 s{sT}, s{sT}, {RING}")
        e(f"v_add_u32 v{AD+4}, s{sT}, v{AD+3}")
        e(f"s_lshl_b32 s{sT}, s{sWAVE}, 13")
        e(f"v_add_u32 v{AD+3}, s{sT}, v{AD+3}")
    def late():
        e(f"s_lshl_b32 s{sT}, s{sCB}, 7")
        e(f"v_lshrrev_b32 v5, 5, v2")
        e(f"v_lshl_add_u32 v5, v5, 5, s{sT}")
        for i in range(4):
            e(f"buffer_load_dwordx4 v[{W2P+4*i}:{W2P+4*i+3}], v5, s[{S_B}:{S_B+3}], 0 offen offset:{(i>>1)*64+(i&1)*16}")
        e(f"v_and_b32 v5, 31, v2")
        e(f"s_lshl_b32 s{sT}, s{sRB}, 7")
        e(f"s_lshl_b32 s{sT+1}, s{sWAVE}, 5")
        e(f"s_add_u32 s{sT}, s{sT}, s{sT+1}")
        e(f"v_add_lshl_u32 v5, v5, s{sT}, 3")
        e(f"s_mov_b32 s{sT+2}, {EPOCH}")
        e(f"v_mov_b32 v1, v7")
        e(f"buffer_load_dwordx2 v[{EV}:{EV+1}], v5, s[{S_WS}:{S_WS+3}], s{sT+2} offen")
    pend=[]
    for gi,(lt,j) in enumerate(order):
        fills=[[],[],[],[]]; after=[]
        needs=[f"R{lt}_1_{j}"]+([f"T{j}_1_11"] if gi in (0,2) else [])
        e(f"s_waitcnt lgkmcnt({lg.need(*needs)})")
        if gi==0:
            fills[0].append(lambda: e(f"s_waitcnt vmcnt({vm.need('w12_3')})"))
            fills[0].append(lambda: Top(12,0)); fills[1].append(lambda: Top(12,1))
            fills[2].append(lambda: (adr(2,12),Rop(2,12)))
            fills[3].append(lambda: (adr(3,12),Rop(3,12)))
        if gi==1:
            fills[0].append(lambda: (adr(0,12),Rop(0,12)))
            fills[1].append(addrs); fills[2].append(late)
        if gi>=3:
            if gi==5:
                def bar2():
                    e(f"s_waitcnt lgkmcnt({lg.need('R0_1_12')})")
                    if opt.pst: e("s_barrier")
                    else: st(82); e("s_barrier"); st(84)
                fills[0].append(bar2)
            sched=opt.wsched
            for i in range(4):
                if gi in (3,5,7) and i==0:
                    if gi!=5: fills[0].append(E("s_nop 3"))
                    continue
                n=2 if not (gi==7 and i==3) else 99
                take=[p for p in pend[:n]]
                fills[i]+=take; pend=pend[len(take):]
        group(lt,j,fills,after)
        if j==12 and lt>=1: pend+=wr(lt,[0,1,2,3,4,5,6,7])
    for f in pend: f()
    e("v_mov_b32 v0, 1")
    e("s_mov_b64 exec, 1")
    e(f"ds_add_u32 v1, v0 offset:{F_PRE}")
    e("s_mov_b64 exec, -1")
    if not opt.pst: st(86)
    if ST: e("s_memtime s[98:99]")
    W2F=AF
    e("s_waitcnt vmcnt(0)")
    for t in range(32):
        src=W2P+(t>>1)
        if t&1: e(f"v_and_b32 v{W2F+t}, 0xffff0000, v{src}")
        else:   e(f"v_lshlrev_b32 v{W2F+t}, 16, v{src}")
    vC1=F0+16; S0=F0+17; S1=F0+18
    e(f"s_mov_b32 s{sT+2}, {f2u(C2)}")
    e(f"v_mov_b32 v{vC1}, {f2u(C1)}")
    e(f"v_mov_b32 v{S0}, 0"); e(f"v_mov_b32 v{S1}, 0")
    e("v_mov_b32 v0, 1")
    e("s_mov_b64 exec, 1")
    e("s_waitcnt lgkmcnt(0)")
    e(f"ds_add_u32 v1, v0 offset:{F_RED}")
    e("s_mov_b64 exec, -1")
    lds_spin("L_red",1,0,F_RED,4)
    if not opt.pst: st(88,True)
    if ST and opt.gcyc: e("s_memtime s[96:97]"); e("s_waitcnt lgkmcnt(0)")
    lg=Q(15)
    PB=ACC+32
    part=lambda sl,q: PB+(q*3+sl)*4
    for q in range(8):
        for sl in range(3):
            a,off=(AD+4,q*1024) if sl==0 else (AD+3,(sl-1)*32768+q*1024)
            e(f"ds_read_b128 v[{part(sl,q)}:{part(sl,q)+3}], v{a} offset:{off}"); lg.issue(f"p{sl}_{q}")
    T=F0
    for q in range(8):
        e(f"s_waitcnt lgkmcnt({lg.need(f'p2_{q}')})")
        a=ACC+4*q
        for r in range(4): e(f"v_add_f32 v{a+r}, v{a+r}, v{part(0,q)+r}")
        for r in range(4): e(f"v_add_f32 v{part(1,q)+r}, v{part(1,q)+r}, v{part(2,q)+r}")
        for r in range(4): e(f"v_add_f32 v{a+r}, v{a+r}, v{part(1,q)+r}")
        for r in range(4): e(f"v_mul_f32 v{T+r}, v{a+r}, v{a+r}")
        for r in range(4): e(f"v_fma_f32 v{T+r}, v{T+r}, s{sT+2}, v{vC1}")
        for r in range(4): e(f"v_mul_f32 v{T+r}, v{T+r}, v{a+r}")
        for r in range(4): e(f"v_exp_f32 v{T+r}, v{T+r}")
        for r in range(4): e(f"v_mul_f32 v{a+r}, v{a+r}, v{W2F+4*q+r}")
        for r in range(4): e(f"v_add_f32 v{T+r}, 1.0, v{T+r}")
        for r in range(4): e(f"v_rcp_f32 v{T+r}, v{T+r}")
        e("s_nop 0")
        for r in range(4): e(f"v_fmac_f32 v{S0+(r&1)}, v{a+r}, v{T+r}")
    e(f"v_add_f32 v{S0}, v{S0}, v{S1}")
    e(f"v_mov_b32 v{S1}, v{S0}")
    e(f"s_movk_i32 s{sT}, 0xff")
    e(f"v_add_u32 v{EV}, 1, v{EV}")
    e(f"v_permlane32_swap_b32 v{S0}, v{S1}")
    e(f"s_lshl_b32 s{sT+1}, s{sCB}, 13")
    e(f"v_add_f32 v{S0}, v{S0}, v{S1}")
    e(f"s_add_u32 s{sT+1}, s{sT+1}, {GRAN}")
    e(f"v_bfi_b32 v{EV+1}, s{sT}, v{EV+1}, v{S0}")
    e(f"s_mov_b32 exec_hi, 0")
    e(f"buffer_store_dwordx2 v[{EV}:{EV+1}], v5, s[{S_WS}:{S_WS+3}], s{sT+1} offen sc0 sc1")
    if ST:
        if opt.gcyc: e("s_memtime s[98:99]")
        if not opt.pst: st(90); e("s_waitcnt vmcnt(0)"); st(92,True)
        e("s_waitcnt lgkmcnt(0)"); e("s_sub_u32 s98, s98, s96")
        dump([10,76,78,80,82,84,86,88,90,92,98])
    e("s_endpgm")

    def late_sloads():
        e(f"s_lshl_b32 s{sT+8}, s{sROW}, 3")
        e(f"s_add_u32 s{sT+8}, s{sT+8}, {EPOCH}")
        e(f"s_load_dwordx2 s[{sE}:{sE+1}], s[{P_WS}:{P_WS+1}], s{sT+8}")
        e(f"s_load_dword s9, s[{P_BO}:{P_BO+1}], 0")
    X=32
    def x0_addrs():
        e("v_and_b32 v3, 31, v2")
        e("v_lshlrev_b32 v4, 2, v3")
        for r in range(26): e(f"v_readlane_b32 s{76+r}, v29, {r}")
        e("s_mov_b32 exec_hi, 0")
        for r in range(26): e(f"v_xor_b32 v{X+r}, s{76+r}, v4")
        e("s_mov_b64 exec, -1")
        e("s_mov_b32 exec_lo, 0")
        for r in range(26): e(f"v_xor_b32 v{X+r}, s{76+(r+1)%26}, v4")
        e("s_mov_b64 exec, -1")
    lab("L_help_pro")
    e(f"s_mov_b32 m0, s{sTM}")
    e(f"s_mov_b32 s{sT+3}, {opt.nt0-1}")
    e("s_waitcnt lgkmcnt(0)")
    e(f"s_mov_b64 s[{S_IDX}:{S_IDX+1}], s[{P_IDX}:{P_IDX+1}]")
    e(f"s_mov_b64 s[{S_TBL}:{S_TBL+1}], s[{P_TBL}:{P_TBL+1}]")
    def tloop(name):
        lab(name)
        e(f"buffer_load_dwordx4 v5, s[{S_TBL}:{S_TBL+3}], m0 offen lds")
        e("s_add_u32 m0, m0, 8192")
        e(f"s_cmp_ge_u32 m0, s{sWR1}")
        e(f"s_cselect_b32 s{sT+5}, s{sWR2}, 0")
        e(f"s_sub_u32 m0, m0, s{sT+5}")
        e(f"s_sub_u32 s{sT+3}, s{sT+3}, 1")
        e(f"s_cbranch_scc0 {name}")
    rowidx_load()
    tloop("L_tloop")
    e(f"s_mov_b32 s{sT+3}, {16-opt.nt0-1}")
    e("s_barrier")
    tloop("L_tloop2")
    e("s_barrier")
    e("s_waitcnt vmcnt(16)")
    e("v_lshlrev_b32 v8, 3, v29")
    e("v_and_b32 v8, 0x70, v8")
    e("v_lshl_or_b32 v29, v29, 7, v8")
    x0_addrs()
    e("s_waitcnt vmcnt(0)")
    e("s_barrier")
    for r in range(26): e(f"ds_read_b32 v{X+r}, v{X+r}")
    lab("L_help_main")
    srd(S_WS,P_WS,WS_SIZE); srd(S_A,P_DBG,256); srd(S_B,P_OUT,2048)
    Z0=8
    ZE=lambda s: Z0+4*s
    ZO=lambda s: Z0+88+4*s
    LE=lambda k: Z0+176+4*k
    LO=lambda k: Z0+184+4*k
    R=200; MT=252
    e("v_lshrrev_b32 v5, 2, v3")
    e("v_mul_u32_u24 v5, 5888, v5")
    e("v_and_b32 v6, 3, v2")
    e("v_lshl_add_u32 v5, v6, 4, v5")
    e("v_lshrrev_b32 v6, 5, v2")
    e("v_lshl_add_u32 v5, v6, 6, v5")
    e("v_mov_b32 v7, 0x7fff0000")
    e("v_cmp_gt_u32 vcc, 26, v3")
    e("v_lshlrev_b32 v6, 13, v2")
    e(f"s_lshl_b32 s{sT}, s{sROW}, 3")
    e("v_cndmask_b32 v5, v7, v5, vcc")
    e(f"s_add_u32 s{sT}, s{sT}, {GRAN}")
    e(f"v_add_u32 v6, s{sT}, v6")
    e("v_cmp_gt_u32 vcc, 26, v2")
    e("v_lshlrev_b32 v1, 4, v2")
    e(f"v_add_u32 v1, {CINW}, v1")
    e("v_cndmask_b32 v6, v7, v6, vcc")
    e(f"v_mov_b32 v7, {FLAGS}")
    e("s_waitcnt vmcnt(0) lgkmcnt(0)")
    late_sloads()
    st(76)
    for r in range(26):
        e(f"v_lshlrev_b32 v{R+2*r}, 16, v{X+r}")
        e(f"v_and_b32 v{R+2*r+1}, 0xffff0000, v{X+r}")
    def zstep(s):
        for m in range(4):
            (a1,a2),(b1,b2)=pair_of(8*s+2*m),pair_of(8*s+2*m+1)
            e(f"v_mul_f32 v{MT}, v{R+2*a1}, v{R+2*a2}")
            e(f"v_mul_f32 v{MT+2}, v{R+2*b1}, v{R+2*b2}")
            e(f"v_mul_f32 v{MT+1}, v{R+2*a1+1}, v{R+2*a2+1}")
            e(f"v_mul_f32 v{MT+3}, v{R+2*b1+1}, v{R+2*b2+1}")
            e(f"v_cvt_pk_bf16_f32 v{ZE(s)+m}, v{MT}, v{MT+2}")
            e(f"v_cvt_pk_bf16_f32 v{ZO(s)+m}, v{MT+1}, v{MT+3}")
    def zlin():
        for k in range(2):
            for m2 in range(4):
                m=k*8+2*m2
                for tl,d in ((0,LE(k)+m2),(1,LO(k)+m2)):
                    if m+1<=12: e(f"v_cvt_pk_bf16_f32 v{d}, v{R+4*m+tl}, v{R+4*(m+1)+tl}")
                    elif m==12: e(f"v_cvt_pk_bf16_f32 v{d}, v{R+4*m+tl}, 1.0")
                    else: e(f"v_mov_b32 v{d}, 0")
    for s in range(opt.zsplit): zstep(s)
    st(78)
    lds_spin("L_it9",7,4,F_IT9,1,sleep=1)
    e(f"v_lshlrev_b32 v0, 2, v2")
    e(f"buffer_load_dword v4, v0, s[{S_A}:{S_A+3}], 0 offen sc1")
    for s in range(opt.zsplit,22): zstep(s)
    zlin()
    st(80)
    e(f"s_mov_b32 s{sT+4}, {opt.bound}")
    e(f"s_mov_b32 s{sT+2}, 0x7f")
    e(f"s_mov_b32 s{sT+3}, 0")
    lab("L_poll1")
    e("s_waitcnt vmcnt(0)")
    e("v_cmp_ne_u32 vcc, 0, v4")
    e(f"s_and_b64 vcc, vcc, s[{sT+2}:{sT+3}]")
    e(f"s_cmp_eq_u64 vcc, s[{sT+2}:{sT+3}]")
    e("s_cbranch_scc1 L_polled")
    e(f"s_sleep {opt.psleep}")
    e(f"buffer_load_dword v4, v0, s[{S_A}:{S_A+3}], 0 offen sc1")
    e(f"s_sub_u32 s{sT+4}, s{sT+4}, 1")
    e("s_cbranch_scc0 L_poll1")
    lab("L_polled")
    e(f"s_sub_u32 s{sT}, s{sWAVE}, 4")
    e(f"s_lshl_b32 s{sT+1}, s{sT}, 10")
    e(f"s_lshl_b32 s{sT}, s{sT}, 7")
    e(f"s_add_u32 m0, s{sT+1}, {CINW}")
    st(82)
    e("s_barrier")
    if opt.dly: lds_spin("L_wred",7,0,F_PRE,opt.dly)
    st(84)
    for t in range(12):
        if t==11:
            e(f"s_cmp_ge_u32 s{sWAVE}, 6")
            e("s_cbranch_scc1 L_dma_done")
        e(f"buffer_load_dwordx4 v5, s[{S_WS}:{S_WS+3}], s{sT} offen sc1 lds")
        if t<11:
            e(f"s_add_u32 m0, m0, 4096")
            e(f"s_add_u32 s{sT}, s{sT}, 512")
    lab("L_dma_done")
    e("v_mov_b32 v0, 1")
    e("s_mov_b64 exec, 1")
    e("s_waitcnt vmcnt(0)")
    st(86)
    e(f"ds_add_u32 v7, v0 offset:{F_CW}")
    e("s_mov_b64 exec, -1")
    lds_spin("L_cw",7,0,F_CW,4)
    st(88,True)
    if ST: e("s_memtime s[96:97]"); e("s_waitcnt lgkmcnt(0)")
    AXE,AUE=200,216; WF=232
    AXO,AUO=ZE(0),ZE(4)
    lg=Q(15)
    seq=[('e',s) for s in range(8)]+[('o',s) for s in range(8)]+[('eo',s) for s in range(8,24)]
    def rd(i):
        tl,s=seq[i]; b=WF+(i%3)*8
        if s<22:
            e(f"ds_read_b128 v[{b}:{b+3}], v1 offset:{2*s*1024}"); lg.issue(f"x{i}")
            e(f"ds_read_b128 v[{b+4}:{b+7}], v1 offset:{(2*s+1)*1024}"); lg.issue(f"u{i}")
        else:
            e(f"ds_read_b128 v[{b+4}:{b+7}], v1 offset:{(44+s-22)*1024}"); lg.issue(f"u{i}")
    rd(0); rd(1)
    GV=ZE(8)
    for i,(tl,s) in enumerate(seq):
        if opt.nocin and i<len(seq)-3: continue
        if opt.nocin and i==len(seq)-3: rd(i); rd(i+1)
        b=WF+(i%3)*8
        if i+2<len(seq): rd(i+2)
        e(f"s_waitcnt lgkmcnt({lg.need(f'u{i}')})")
        for t in tl:
            z=(ZE if t=='e' else ZO)(s) if s<22 else (LE if t=='e' else LO)(s-22)
            ax,au=(AXE,AUE) if t=='e' else (AXO,AUO)
            if s<22:
                c=f"v[{ax}:{ax+15}]"
                e(f"v_mfma_f32_32x32x16_bf16 {c}, v[{b}:{b+3}], v[{z}:{z+3}], {c if s else 0}")
            c=f"v[{au}:{au+15}]"
            e(f"v_mfma_f32_32x32x16_bf16 {c}, v[{b+4}:{b+7}], v[{z}:{z+3}], {c if s else 0}")
        if i==len(seq)-3:
            e(f"buffer_load_dwordx2 v[{GV}:{GV+1}], v6, s[{S_WS}:{S_WS+3}], 0 offen sc1")
    e(f"s_add_u32 s{sE}, s{sE}, 1")
    e(f"s_and_b32 s{sE+1}, s{sE+1}, 0xff")
    e("s_nop 9")
    V=ZE(9); V2=V+1
    e(f"v_mul_f32 v{V}, v{AXE}, v{AUE}")
    e(f"v_mul_f32 v{V2}, v{AXO}, v{AUO}")
    for t in range(1,14):
        e(f"v_fmac_f32 v{V}, v{AXE+t}, v{AUE+t}")
        e(f"v_fmac_f32 v{V2}, v{AXO+t}, v{AUO+t}")
    e(f"v_add_f32 v{V}, v{V}, v{V2}")
    st(90)
    if ST: e("s_memtime s[98:99]")
    e("s_mov_b32 exec_lo, 0x3ffffff")
    e("s_mov_b32 exec_hi, 0")
    e(f"s_mov_b32 s{sT+4}, {opt.bound}")
    G2=GV+2
    def chk(g,lbl):
        e(f"v_and_b32 v{V2}, 0xff, v{g+1}")
        e(f"v_cmp_eq_u32 vcc, s{sE}, v{g}")
        e(f"v_cmp_eq_u32 s[{sT}:{sT+1}], s{sE+1}, v{V2}")
        e(f"v_and_b32 v{V2}, 0xffffff00, v{g+1}")
        e(f"s_and_b64 vcc, vcc, s[{sT}:{sT+1}]")
        e("s_cmp_eq_u64 vcc, exec")
        e(f"s_cbranch_scc1 L_got")
    lab("L_poll2")
    e(f"buffer_load_dwordx2 v[{G2}:{G2+1}], v6, s[{S_WS}:{S_WS+3}], 0 offen sc1")
    e("s_waitcnt vmcnt(1)")
    chk(GV,0)
    e(f"buffer_load_dwordx2 v[{GV}:{GV+1}], v6, s[{S_WS}:{S_WS+3}], 0 offen sc1")
    e("s_waitcnt vmcnt(1)")
    chk(G2,1)
    e(f"s_sub_u32 s{sT+4}, s{sT+4}, 1")
    e("s_cbranch_scc0 L_poll2")
    lab("L_got")
    e(f"v_add_f32 v{V}, v{V}, v{V2}")
    e("s_mov_b64 exec, -1")
    st(92)
    for dpp in ["quad_perm:[1,0,3,2] row_mask:0xf bank_mask:0xf","quad_perm:[2,3,0,1] row_mask:0xf bank_mask:0xf",
                "row_half_mirror row_mask:0xf bank_mask:0xf","row_mirror row_mask:0xf bank_mask:0xf",
                "row_bcast:15 row_mask:0xa bank_mask:0xf","row_bcast:31 row_mask:0xc bank_mask:0xf"]:
        e("s_nop 1")
        e(f"v_add_f32_dpp v{V}, v{V}, v{V} {dpp}")
    e("s_lshl_b32 s9, s9, 16")
    e(f"v_add_f32 v{V}, s9, v{V}")
    e(f"v_cvt_pk_bf16_f32 v{V}, v{V}, v{V}")
    e(f"s_lshl_b32 s{sT}, s{sROW}, 1")
    e(f"s_lshl_b32 s{sT+1}, s{sROW}, 3")
    e(f"s_add_u32 s{sT+1}, s{sT+1}, {EPOCH}")
    e(f"v_mov_b32 v{V2}, s{sE}")
    e("s_mov_b32 exec_lo, 0")
    e("s_mov_b32 exec_hi, 0x80000000")
    e(f"buffer_store_short v{V}, off, s[{S_B}:{S_B+3}], s{sT}")
    e(f"buffer_store_dword v{V2}, off, s[{S_WS}:{S_WS+3}], s{sT+1}")
    if ST:
        e("s_waitcnt vmcnt(0)"); st(94,True); e("s_sub_u32 s98, s98, s96")
        dump([10,76,78,80,82,84,86,88,90,92,94,98],0,1)
    e("s_endpgm")

    lab("L_aux")
    if opt.cpf:
        e(f"s_getpc_b64 s[{S_IDX}:{S_IDX+1}]")
        lab("L_pc")
        e(f"s_sub_u32 s{S_IDX}, s{S_IDX}, L_pc-{KN}")
        e(f"s_subb_u32 s{S_IDX+1}, s{S_IDX+1}, 0")
        e(f"s_mov_b32 s{S_IDX+2}, L_end-{KN}")
        e(f"s_mov_b32 s{S_IDX+3}, 0x20000")
        e("v_lshlrev_b32 v3, 7, v0")
        e(f"buffer_load_dword v255, v3, s[{S_IDX}:{S_IDX+3}], 0 offen")
    e(f"s_lshl1_add_u32 s{sT+1}, s{sXCD}, s{sSLOT}")
    e(f"s_sub_u32 s{sT+1}, s{sT+1}, 26")
    e(f"s_cmp_ge_u32 s{sSLOT}, 28")
    e("s_cbranch_scc1 L_prefetch")
    e(f"s_cmp_ge_u32 s{sT+1}, 7")
    e("s_cbranch_scc1 L_prefetch")
    cm("---- CIN weight folding: rows i = 4*pidx + (wave&3) ----")
    S_C=S_W; S_O=S_B; sI=6
    e(f"s_and_b32 s{sT}, s{sWAVE}, 3")
    e(f"s_lshl2_add_u32 s{sI}, s{sT+1}, s{sT}")
    M=16
    e("v_lshlrev_b32 v3, 2, v0")
    e("v_mov_b32 v7, 0x7fff0000")
    e(f"s_movk_i32 s{sT+1}, 338")
    e(f"v_cmp_gt_u32 vcc, s{sT+1}, v0")
    e("v_lshrrev_b32 v4, 1, v2")
    e("v_and_b32 v5, 1, v2")
    e("v_cndmask_b32 v3, v7, v3, vcc")
    e("v_lshlrev_b32 v4, 3, v4")
    e("s_waitcnt lgkmcnt(0)")
    e(f"s_load_dwordx16 s[76:91], s[{P_WOUT}:{P_WOUT+1}], 104")
    srd(S_C,P_CIN,105456)
    for gg in range(26):
        if gg%3==0: e(f"s_mov_b32 s{sT+2}, {2*35152+gg*1352}")
        e(f"buffer_load_dword v{M+gg}, v3, s[{S_C}:{S_C+3}], s{sT+2} offen offset:{(gg%3)*1352}")
    PP=44; QQ=52
    def slots():
        for ee in range(8):
            e(f"v_add_u32 v8, {ee}, v4")
            e("v_mul_u32_u24 v9, 5042, v8")
            e("v_lshrrev_b32 v9, 16, v9")
            e("v_mul_u32_u24 v10, 13, v9")
            e("v_sub_u32 v10, v8, v10")
            e(f"v_lshl_add_u32 v{PP+ee}, v10, 1, v5")
            e(f"v_add_u32 v{QQ+ee}, v{PP+ee}, v9")
            e(f"v_subrev_u32 v10, 26, v{QQ+ee}")
            e(f"v_min_u32 v{QQ+ee}, v{QQ+ee}, v10")
    def m3(later):
        e("v_mul_u32_u24 v8, 5042, v0")
        e("v_lshrrev_b32 v8, 16, v8")
        e("v_mul_u32_u24 v9, 13, v8")
        e("v_sub_u32 v9, v0, v9")
        e("v_lshlrev_b32 v9, 7, v9")
        e("v_lshl_add_u32 v96, v8, 1, v9")
        e("s_waitcnt lgkmcnt(0)")
        st(92)
        for gg in range(26):
            sreg=76+(gg>>1)
            if gg&1: e(f"s_and_b32 s{sT+4+(gg&1)}, s{sreg}, 0xffff0000")
            else:    e(f"s_lshl_b32 s{sT+4+(gg&1)}, s{sreg}, 16")
            if gg%4==0: e(f"s_waitcnt vmcnt({later+25-min(gg+3,25)})")
            e(f"v_lshlrev_b32 v8, 16, v{M+gg}")
            e(f"v_and_b32 v9, 0xffff0000, v{M+gg}")
            if gg==0:
                e(f"v_mul_f32 v10, s{sT+4}, v8"); e(f"v_mul_f32 v11, s{sT+4}, v9")
            else:
                e(f"v_fmac_f32 v10, s{sT+4+(gg&1)}, v8"); e(f"v_fmac_f32 v11, s{sT+4+(gg&1)}, v9")
        e("v_cvt_pk_bf16_f32 v10, v10, v11")
        e(f"s_movk_i32 s{sT+1}, 338")
        e(f"v_cmp_gt_u32 vcc, s{sT+1}, v0")
        e(f"s_and_saveexec_b64 s[{sT+2}:{sT+3}], vcc")
        e("ds_write_b16 v96, v10")
        e("ds_write_b16_d16_hi v96, v10 offset:64")
        e("s_mov_b64 exec, -1")
        st(94)
    def st_addr(cnt):
        e("v_lshlrev_b32 v6, 7, v6")
        e("v_lshl_add_u32 v6, v5, 6, v6")
        e(f"s_and_b32 s{sT+1}, s{sWAVE}, 3")
        e(f"s_lshl_b32 s{sT+1}, s{sT+1}, 4")
        e(f"s_add_u32 s{sT+1}, s{sT+1}, {STG}")
        e(f"v_add_u32 v6, s{sT+1}, v6")
        e(f"v_cmp_gt_u32 vcc, {cnt}, v2")
        e("v_mov_b32 v94, 1.0")
        e(f"v_mov_b32 v8, {STG+8192}")
        e("v_cndmask_b32 v6, v8, v6, vcc")
        e("v_cmp_gt_u32 vcc, 2, v2")
        e("s_nop 1")
        e("v_cndmask_b32 v95, v94, 0.5, vcc")
        e("v_cmp_gt_u32 vcc, 4, v2")
        e("s_nop 1")
        e("v_cndmask_b32 v94, v94, 0.5, vcc")
    e(f"s_cmp_ge_u32 s{sWAVE}, 4")
    e("s_cbranch_scc1 L_aux_w1")
    Pq=60; PR=76; RA=68; VV=16
    e("v_and_b32 v8, 31, v2")
    e("v_lshrrev_b32 v15, 5, v2")
    e(f"v_mul_u32_u24 v10, {8*1352}, v15")
    e("v_lshl_add_u32 v10, v8, 1, v10")
    e("v_cmp_gt_u32 vcc, 26, v8")
    e(f"s_mul_i32 s{sT+3}, s{sI}, 52")
    e(f"s_add_u32 s{sT+3}, s{sT+3}, 35152")
    e("v_cndmask_b32 v10, v7, v10, vcc")
    e("v_cmp_gt_u32 vcc, 32, v2")
    e("v_lshlrev_b32 v12, 2, v2")
    e("s_nop 0")
    e("v_cndmask_b32 v11, v7, v10, vcc")
    for s in range(2):
        for ee in range(8):
            h=16*s+ee
            if h%3==0 or ee==0:
                hb=h; e(f"s_add_u32 s{sT+2}, s{sT+3}, {h*1352}")
            va=11 if (s==1 and ee>=2) else 10
            e(f"buffer_load_ushort v{PR+s*8+ee}, v{va}, s[{S_C}:{S_C+3}], s{sT+2} offen offset:{(h-hb)*1352}")
    srd(S_O,P_WOUT,156)
    e(f"buffer_load_dword v13, v12, s[{S_O}:{S_O+3}], 0 offen offset:52")
    e(f"s_lshl_b32 s{sT+2}, s{sI}, 1")
    e(f"buffer_load_ushort v14, off, s[{S_O}:{S_O+3}], s{sT+2}")
    e("v_lshlrev_b32 v8, 6, v2")
    e("v_mov_b32 v9, 0")
    e("s_mov_b32 exec_lo, 0x7ffffff")
    e("s_mov_b32 exec_hi, 0")
    e("ds_write_b32 v8, v9 offset:52")
    e("ds_write_b32 v8, v9 offset:56")
    e("ds_write_b32 v8, v9 offset:60")
    e("s_mov_b64 exec, -1")
    e("v_and_b32 v8, 31, v2")
    e("v_lshlrev_b32 v93, 6, v8")
    e("v_lshl_add_u32 v93, v15, 4, v93")
    e(f"s_mul_i32 s{sT+1}, s{sWAVE}, 5120")
    e(f"s_add_u32 s{sT+1}, s{sT+1}, 4096")
    e("v_mul_u32_u24 v92, 144, v8")
    e("v_lshl_add_u32 v92, v15, 4, v92")
    e(f"v_add_u32 v92, s{sT+1}, v92")
    slots()
    e("v_cmp_lt_u32 vcc, 43, v2")
    e("v_subrev_u32 v10, 176, v4")
    e("v_mov_b32 v11, 26")
    for ee in range(8):
        e(f"v_add_u32 v8, {ee}, v10")
        e("v_lshl_add_u32 v8, v8, 1, v5")
        e(f"v_min_u32 v8, 31, v8")
        e(f"v_cndmask_b32 v8, v{QQ+ee}, v8, vcc")
        e(f"v_cndmask_b32 v9, v{PP+ee}, v11, vcc")
        e(f"v_mul_u32_u24 v9, 144, v9")
        e(f"v_lshl_add_u32 v9, v8, 2, v9")
        e(f"v_add_u32 v{RA+ee}, s{sT+1}, v9")
    e("v_lshrrev_b32 v8, 1, v2")
    e("v_lshl_add_u32 v6, v8, 1, 1")
    e("v_add_u32 v8, 22, v8")
    e("v_cndmask_b32 v6, v6, v8, vcc")
    st_addr(48)
    m3(18)
    e("s_mov_b32 exec_lo, 0x1fff")
    e("s_mov_b32 exec_hi, 0")
    e("s_waitcnt vmcnt(0)")
    e(f"ds_write_b32 v12, v13 offset:{26*64}")
    e("s_mov_b64 exec, -1")
    for r in range(8): e(f"v_lshl_or_b32 v{Pq+r}, v{PR+2*r+1}, 16, v{PR+2*r}")
    e("s_waitcnt lgkmcnt(0)")
    e("s_barrier")
    Qq=16; D=24
    e(f"ds_read_b128 v[{Qq}:{Qq+3}], v93")
    e(f"ds_read_b128 v[{Qq+4}:{Qq+7}], v93 offset:32")
    e("s_waitcnt lgkmcnt(0)")
    e(f"v_mfma_f32_32x32x16_bf16 v[{D}:{D+15}], v[{Pq}:{Pq+3}], v[{Qq}:{Qq+3}], 0")
    e(f"v_mfma_f32_32x32x16_bf16 v[{D}:{D+15}], v[{Pq+4}:{Pq+7}], v[{Qq+4}:{Qq+7}], v[{D}:{D+15}]")
    e(f"v_mfma_f32_32x32x16_bf16 v[{D}:{D+15}], v[{Qq}:{Qq+3}], v[{Pq}:{Pq+3}], v[{D}:{D+15}]")
    e(f"v_mfma_f32_32x32x16_bf16 v[{D}:{D+15}], v[{Qq+4}:{Qq+7}], v[{Pq+4}:{Pq+7}], v[{D}:{D+15}]")
    e("s_nop 11")
    for m in range(4):
        e(f"ds_write_b128 v92, v[{D+4*m}:{D+4*m+3}] offset:{m*32}")
    e("s_waitcnt lgkmcnt(0)")
    for ee in range(8): e(f"ds_read_b32 v{VV+ee}, v{RA+ee}")
    e("v_lshlrev_b32 v14, 16, v14")
    e(f"v_cmp_eq_u32 s[{sT}:{sT+1}], 46, v2")
    e(f"v_cmp_eq_u32 s[{sT+2}:{sT+3}], 47, v2")
    e("v_cmp_lt_u32 vcc, 45, v2")
    e("s_waitcnt lgkmcnt(0)")
    e(f"v_cndmask_b32 v{VV+5}, v{VV+5}, v14, s[{sT}:{sT+1}]")
    e(f"v_cndmask_b32 v{VV+5}, v{VV+5}, 0, s[{sT+2}:{sT+3}]")
    e(f"v_cndmask_b32 v{VV+6}, v{VV+6}, 0, vcc")
    e(f"v_cndmask_b32 v{VV+7}, v{VV+7}, 0, vcc")
    e("s_branch L_aux_pack")
    lab("L_aux_w1")
    GA=60; GB=68
    e(f"s_mul_i32 s{sT+3}, s{sI}, 1352")
    e(f"s_lshl_b32 s{sT+6}, s{sWAVE}, 11")
    e(f"s_add_u32 s{sT+6}, s{sT+6}, {32768-4*2048}")
    e(f"s_mov_b32 m0, s{sT+6}")
    e("v_lshlrev_b32 v12, 4, v2")
    e(f"buffer_load_dwordx4 v12, s[{S_C}:{S_C+3}], s{sT+3} offen lds")
    e(f"buffer_load_dwordx4 v12, s[{S_C}:{S_C+3}], s{sT+3} offen offset:1024 lds")
    slots()
    for ee in range(8):
        e(f"v_mul_u32_u24 v8, 26, v{PP+ee}")
        e(f"v_add_lshl_u32 v8, v8, v{QQ+ee}, 1")
        e(f"v_add_u32 v{GA+ee}, s{sT+6}, v8")
        e(f"v_mul_u32_u24 v9, 26, v{QQ+ee}")
        e(f"v_add_lshl_u32 v9, v9, v{PP+ee}, 1")
        e(f"v_add_u32 v{GB+ee}, s{sT+6}, v9")
    e("v_and_b32 v6, 62, v2")
    st_addr(44)
    m3(2)
    e("s_waitcnt lgkmcnt(0)")
    e("s_barrier")
    e("s_waitcnt vmcnt(0)")
    for ee in range(8):
        e(f"ds_read_u16 v{GA+ee}, v{GA+ee}")
        e(f"ds_read_u16 v{GB+ee}, v{GB+ee}")
    e("s_waitcnt lgkmcnt(0)")
    for ee in range(8):
        e(f"v_lshlrev_b32 v{GA+ee}, 16, v{GA+ee}")
        e(f"v_lshlrev_b32 v{GB+ee}, 16, v{GB+ee}")
        e(f"v_add_f32 v{VV+ee}, v{GA+ee}, v{GB+ee}")
    lab("L_aux_pack")
    srd(S_WS,P_WS,WS_SIZE); srd(S_A,P_DBG,256)
    e("v_cmp_eq_u32 vcc, 43, v2")
    for ee in range(8): e(f"v_mul_f32 v{VV+ee}, v{VV+ee}, v{94 if ee<5 else 95}")
    e(f"v_cndmask_b32 v{VV+7}, v{VV+7}, 0, vcc")
    for m in range(4): e(f"v_cvt_pk_bf16_f32 v{24+m}, v{VV+2*m}, v{VV+2*m+1}")
    e("ds_write_b128 v6, v[24:27]")
    e("v_lshlrev_b32 v8, 4, v0")
    e(f"s_movk_i32 s{sT+1}, 368")
    e(f"v_cmp_gt_u32 vcc, s{sT+1}, v0")
    e(f"s_lshr_b32 s{sT}, s{sI}, 2")
    e(f"s_mul_i32 s{sT+2}, s{sT}, 5888")
    e("v_cndmask_b32 v9, v7, v8, vcc")
    e("s_waitcnt lgkmcnt(0)")
    e("s_barrier")
    e(f"ds_read_b128 v[24:27], v8 offset:{STG}")
    e("s_waitcnt lgkmcnt(0)")
    e(f"buffer_store_dwordx4 v[24:27], v9, s[{S_WS}:{S_WS+3}], s{sT+2} offen sc0 sc1")
    st(96)
    e(f"s_lshl_b32 s{sT}, s{sT}, 2")
    e("v_mov_b32 v8, 1")
    e("s_waitcnt vmcnt(0)")
    e("s_barrier")
    e(f"s_cmp_lg_u32 s{sWAVE}, 0")
    e("s_cbranch_scc1 L_noflag")
    e("s_mov_b64 exec, 1")
    e(f"buffer_store_dword v8, off, s[{S_A}:{S_A+3}], s{sT} sc0 sc1")
    e("s_mov_b64 exec, -1")
    lab("L_noflag")
    if ST:
        st(98); e("s_waitcnt vmcnt(0)"); st(100,True)
        dump([10,92,94,96,98,100],1,2)
    e("s_branch L_aux_done")
    lab("L_prefetch")
    e("s_waitcnt lgkmcnt(0)")
    if opt.pf:
        srd(S_W,P_W,1664*3328)
        e(f"s_cmp_lt_u32 s{sXCD}, 4")
        e(f"s_cselect_b32 s{sT+2}, 27, 26")
        e(f"s_cmp_lt_u32 s{sXCD}, 3")
        e(f"s_cselect_b32 s{sT+2}, 28, s{sT+2}")
        e(f"s_sub_u32 s{sT}, s{sSLOT}, s{sT+2}")
        e(f"s_sub_u32 s{sT+2}, 32, s{sT+2}")
        e(f"s_mul_i32 s{sT+1}, s{sXCD}, 26")
        e(f"s_lshr_b32 s{sT+1}, s{sT+1}, 3")
        e(f"s_lshl_b32 s{sT+1}, s{sT+1}, 7")
        for u in range(4):
            e(f"v_add_u32 v3, {512*u}, v0")
            e(f"v_mul_u32_u24 v3, s{sT+2}, v3")
            e(f"v_add_u32 v3, s{sT}, v3")
            e("v_lshrrev_b32 v4, 2, v3")
            e("v_and_b32 v3, 3, v3")
            e(f"v_mul_u32_u24 v4, 3328, v4")
            e("v_lshl_add_u32 v3, v3, 7, v4")
            e(f"buffer_load_dword v{9+u}, v3, s[{S_W}:{S_W+3}], s{sT+1} offen")
        e(f"s_cmp_lg_u32 s{sSLOT}, 31")
        e("s_cbranch_scc1 L_aux_done")
        srd(S_B,P_W2,3328); srd(S_WS,P_WS,EPOCH+8192)
        e("v_lshlrev_b32 v3, 7, v0")
        e(f"buffer_load_dword v13, v3, s[{S_B}:{S_B+3}], 0 offen")
        e(f"s_mov_b32 s{sT}, {EPOCH}")
        e(f"buffer_load_dword v14, v3, s[{S_WS}:{S_WS+3}], s{sT} offen")
    lab("L_aux_done")
    e(f"s_cmp_lt_u32 s{sWAVE}, 4")
    e("s_cbranch_scc1 L_end")
    srd(S_TBL,P_TBL,128000); srd(S_IDX,P_IDX,106496)
    rowidx_load()
    e(f"v_mov_b32 v7, {FLAGS}")
    e("v_mov_b32 v8, 4")
    e("v_mov_b32 v9, 0")
    e(f"ds_write_b32 v7, v8 offset:{F_IT9}")
    e(f"ds_write_b32 v7, v8 offset:{F_PRE}")
    e(f"ds_write_b32 v7, v9 offset:{F_CW}")
    e("s_waitcnt vmcnt(0)")
    e("v_lshlrev_b32 v29, 7, v29")
    x0_addrs()
    for r in range(26):
        e(f"buffer_load_dword v{X+r}, v{X+r}, s[{S_TBL}:{S_TBL+3}], 0 offen")
    e("s_branch L_help_main")
    lab("L_end")
    e("s_endpgm")
    L.append('.section .rodata,"a"'); L.append(".p2align 6"); L.append(f".amdhsa_kernel {KN}")
    for x in ["next_free_vgpr 256","next_free_sgpr 102","accum_offset 256","group_segment_fixed_size 0","kernarg_size 88",
              "user_sgpr_count 2","user_sgpr_kernarg_segment_ptr 1","system_sgpr_workgroup_id_x 1"]:
        L.append("  .amdhsa_"+x)
    L.append(".end_amdhsa_kernel")
    return "\n".join(L)+"\n"

if __name__=="__main__":
    ap=argparse.ArgumentParser()
    ap.add_argument("-o",default="k.s")
    for k,d in dict(lateb=1,dly=4,pst=0,enc=0,encrole=0,encwg=0,encwave=0,nocin=0,gcyc=0,psleep=4,now=0,stamps=0,pf=1,cpf=1,prio=1,bound=20000,zsplit=18,nt0=10,tb=4444,wsched=0).items(): ap.add_argument("--"+k,type=int,default=d)
    opt=ap.parse_args()
    for t in range(512): assert (t*5042)>>16==t//13, t
    open(opt.o,"w").write(build(opt))
```

```python
import sys, argparse, math, struct

class Q:
    def __init__(s,cap): s.ops=[]; s.cap=cap; s.done=0
    def issue(s,name): s.ops.append(name)
    def need(s,*names):
        r=99
        for name in names:
            i=len(s.ops)-1-s.ops[::-1].index(name)
            r=min(r,len(s.ops)-1-i)
        r=min(r,s.cap)
        s.done=max(s.done,len(s.ops)-r)
        return r
    def pending(s,*names):
        return any(len(s.ops)-1-s.ops[::-1].index(n)>=s.done for n in names)

WIMG=0; GRAN=65536; EPOCH=0x50000; STAMP=0x100000; WS_SIZE=0x200000
STG=49152; RING=128000; FLAGS=160768; CINW=81920
F_IT9,F_RED,F_CW,F_PRE,F_CW2=0,4,8,12,16
C1=-2*math.sqrt(2/math.pi)*math.log2(math.e); C2=C1*0.044715
def f2u(x): return struct.unpack('<I',struct.pack('<f',x))[0]
KN="standalone__deep_cross_xdeepfm__recsys_kernel"

sWAVE,sXCD,sSLOT,sCB,sRB=3,4,5,7,8
P_IDX,P_TBL,P_CIN,P_WOUT,P_W,P_B1,P_W2,P_BO=16,18,20,22,24,26,28,30
P_OUT,P_DBG,P_WS=32,34,36
S_IDX,S_TBL,S_W,S_WS,S_A,S_B=40,44,48,52,56,60
sRING,sWR1,sWR2,sTM=64,65,15,14
sT=66

def pair_of(n):
    if n<169: dlt,m=divmod(n,13)
    else: dlt,m=13,n-169
    r=2*m
    return r,(r+dlt)%26

def build(opt):
    L=[]
    cnt=[0]; lastw={}
    def e(x):
        L.append("    "+x)
        cnt[0]+= (int(x.split()[1])+1) if x.startswith("s_nop") else 1
    def hz(key,n):
        d=cnt[0]-lastw[key]
        if d<n: e(f"s_nop {n-d-1}")
    def lab(x): L.append(x+":")
    def cm(x): L.append("    ; "+x)
    E=lambda x:(lambda: e(x))
    ST=opt.stamps
    def srd(d,p,size):
        e(f"s_mov_b32 s{d}, s{p}"); e(f"s_mov_b32 s{d+1}, s{p+1}")
        e(f"s_mov_b32 s{d+2}, {size}"); e(f"s_mov_b32 s{d+3}, 0x20000")
    def st(r,wait=False):
        if ST:
            e(f"s_memrealtime s[{r}:{r+1}]")
            if wait: e("s_waitcnt lgkmcnt(0)")
    def dump(regs,area=0,role=0):
        if opt.enc:
            delay(regs,role); return
        dump_(regs,area)
    dl=[0]
    def delay(regs,role):
        dl[0]+=1; n=dl[0]
        e("s_mov_b64 exec, -1")
        e("s_waitcnt lgkmcnt(0)")
        if opt.enc==99:
            if role!=1: return
            srd(S_A,P_DBG,256)
            e("s_not_b32 s12, s10")
            e("v_mov_b32 v244, s12")
            e(f"v_mov_b32 v245, s{regs[10]}")
            e("v_mov_b32 v246, 1")
            e("s_mov_b64 exec, 1")
            e(f"buffer_atomic_umax v244, off, s[{S_A}:{S_A+3}], 0 offset:240 sc1")
            e(f"buffer_atomic_umax v245, off, s[{S_A}:{S_A+3}], 0 offset:244 sc1")
            e("s_waitcnt vmcnt(0)")
            e(f"buffer_atomic_add v246, off, s[{S_A}:{S_A+3}], 0 offset:248 sc0 sc1")
            e("s_waitcnt vmcnt(0)")
            e("v_readfirstlane_b32 s12, v246")
            e("s_cmp_lg_u32 s12, 1023")
            e(f"s_cbranch_scc1 L_dly{n}_x")
            e(f"buffer_load_dwordx2 v[244:245], off, s[{S_A}:{S_A+3}], 0 offset:240 sc1")
            e("s_waitcnt vmcnt(0)")
            e("v_readfirstlane_b32 s12, v244")
            e("v_readfirstlane_b32 s13, v245")
            e("s_not_b32 s12, s12")
            e("s_sub_u32 s12, s13, s12")
        else:
            if role!=opt.encrole: return
            e(f"s_cmp_lg_u32 s2, {opt.encwg}")
            e(f"s_cbranch_scc1 L_dly{n}_x")
            e(f"s_cmp_lg_u32 s{sWAVE}, {opt.encwave}")
            e(f"s_cbranch_scc1 L_dly{n}_x")
            e(f"s_sub_u32 s12, s{regs[opt.enc]}, s10")
        e("s_mul_i32 s12, s12, 100")
        e("s_memrealtime s[66:67]")
        e("s_waitcnt lgkmcnt(0)")
        e("s_add_u32 s12, s12, s66")
        lab(f"L_dly{n}")
        e("s_sleep 8")
        e("s_memrealtime s[66:67]")
        e("s_waitcnt lgkmcnt(0)")
        e("s_sub_u32 s13, s66, s12")
        e("s_cmp_lt_i32 s13, 0")
        e(f"s_cbranch_scc1 L_dly{n}")
        lab(f"L_dly{n}_x")
        e("s_mov_b64 exec, -1")
    def dump_(regs,area=0):
        e("s_mov_b64 exec, -1")
        e("s_waitcnt lgkmcnt(0)")
        e("s_lshl_b32 s12, s2, 3")
        e(f"s_add_u32 s12, s12, s{sWAVE}")
        e("s_lshl_b32 s12, s12, 6")
        e(f"s_add_u32 s12, s12, {STAMP+area*0x40000}")
        regs=list(regs)+[regs[0]]*(12-len(regs))
        for i,r in enumerate(regs): e(f"v_mov_b32 v{244+i}, s{r}")
        e("s_mov_b64 exec, 1")
        for i in range(3):
            e(f"buffer_store_dwordx4 v[{244+4*i}:{247+4*i}], off, s[{S_WS}:{S_WS+3}], s12 offset:{16*i}")
        e("s_mov_b64 exec, -1")
    def lds_spin(name,vaddr,vtmp,off,target,sleep=0):
        e(f"s_mov_b32 s{sT+4}, {opt.bound*8}")
        lab(name)
        e(f"ds_read_b32 v{vtmp}, v{vaddr} offset:{off}")
        e("s_waitcnt lgkmcnt(0)")
        e(f"v_readfirstlane_b32 s{sT+5}, v{vtmp}")
        e(f"s_cmp_ge_u32 s{sT+5}, {target}")
        e(f"s_cbranch_scc1 {name}_x")
        if sleep: e(f"s_sleep {sleep}")
        e(f"s_sub_u32 s{sT+4}, s{sT+4}, 1")
        e(f"s_cbranch_scc0 {name}")
        lab(name+"_x")

    IV=16; IA=24
    def rec_addrs():
        e(f"s_lshl_b32 s{sT+5}, s{sT}, 7")
        e(f"s_add_u32 s{sT+5}, s{sT+5}, {RING+4096}")
        e(f"v_lshl_add_u32 v7, v7, 3, s{sT+5}")
        e("v_mul_u32_u24 v9, 7, v8")
        e("v_and_b32 v8, 1, v8")
        for par in range(2):
            d=IA+2*par
            if par:
                e("v_xor_b32 v8, 1, v8"); e("v_add_u32 v9, 1, v9")
            e("v_lshrrev_b32 v10, 1, v9")
            e(f"v_lshl_add_u32 v{d}, v10, 8, v7")
            e(f"v_lshl_add_u32 v{d}, v8, 14, v{d}")
            e("v_lshlrev_b32 v10, 1, v8")
            e(f"v_xor_b32 v10, s{sT+2}, v10")
            e(f"v_lshl_add_u32 v{d}, v10, 1, v{d}")
            e(f"v_xor_b32 v{d+1}, 2, v{d}")
            e(f"v_add_u32 v{d+1}, 8192, v{d+1}")
    sROW=6; sE=38
    def rowidx_load():
        e(f"s_sub_u32 s{sT+6}, s{sWAVE}, 4")
        e(f"s_lshl2_add_u32 s{sROW}, s2, s{sT+6}")
        e(f"s_mul_i32 s{sT+6}, s{sROW}, 104")
        e("v_lshlrev_b32 v30, 2, v2")
        e(f"buffer_load_dword v29, v30, s[{S_IDX}:{S_IDX+3}], s{sT+6} offen")
    L.append("; @launch grid=(256,1,1) block=(512,1,1) lds=163840")
    L.append('.amdgcn_target "amdgcn-amd-amdhsa--gfx950"')
    L.append(".text"); L.append(f".globl {KN}"); L.append(".p2align 8"); L.append(f".type {KN},@function")
    lab(KN)
    e("s_load_dwordx16 s[16:31], s[0:1], 0")
    e("s_load_dwordx4 s[32:35], s[0:1], 64")
    e("s_load_dwordx2 s[36:37], s[0:1], 80")
    st(10)
    e("s_cmp_ge_u32 s2, 256")
    e("s_cbranch_scc1 L_end")
    e("v_lshrrev_b32 v1, 6, v0")
    e("v_and_b32 v2, 63, v0")
    e(f"v_readfirstlane_b32 s{sWAVE}, v1")
    e(f"s_and_b32 s{sXCD}, s2, 7")
    e(f"s_lshr_b32 s{sSLOT}, s2, 3")
    e(f"s_cmp_ge_u32 s{sSLOT}, 26")
    e("s_cbranch_scc1 L_aux")
    e(f"s_mul_i32 s6, s{sXCD}, 26")
    e(f"s_add_u32 s6, s6, s{sSLOT}")
    e(f"s_lshr_b32 s{sCB}, s6, 3")
    e(f"s_and_b32 s{sRB}, s6, 7")
    e(f"v_mov_b32 v7, {FLAGS}")
    e("v_mov_b32 v8, 0"); e("v_mov_b32 v9, 0")
    e("ds_write2_b64 v7, v[8:9], v[8:9] offset1:1")
    e("ds_write_b64 v7, v[8:9] offset:16")
    e("v_lshrrev_b32 v3, 3, v2")
    e("v_lshrrev_b32 v4, 4, v2")
    e("v_and_b32 v10, 7, v2")
    e(f"s_mov_b32 s{S_IDX+2}, 106496"); e(f"s_mov_b32 s{S_IDX+3}, 0x20000")
    e(f"s_and_b32 s{sT}, s{sWAVE}, 1")
    e(f"s_lshl_b32 s{sT+1}, s{sT}, 2")
    e("v_xor_b32 v5, v10, v4")
    e(f"v_xor_b32 v5, s{sT+1}, v5")
    e("v_lshlrev_b32 v5, 4, v5")
    e("v_lshl_add_u32 v5, v3, 7, v5")
    e(f"s_lshr_b32 s{sT+2}, s{sWAVE}, 1")
    e(f"s_lshl1_add_u32 s{sT+3}, s{sSLOT}, s{sT+2}")
    e(f"s_lshl_b32 s{sT+3}, s{sT+3}, 11")
    e(f"s_lshl_b32 s{sT+4}, s{sT}, 10")
    e(f"s_add_u32 s{sTM}, s{sT+3}, s{sT+4}")
    e(f"s_lshl_b32 s{sT+3}, s{sT}, 11")
    e(f"s_sub_u32 s{sWR2}, {63*2048}, s{sT+3}")
    e(f"s_add_u32 s{sWR1}, s{sWR2}, s{sT+4}")
    e(f"s_mov_b32 s{S_TBL+2}, 128000"); e(f"s_mov_b32 s{S_TBL+3}, 0x20000")
    e(f"s_cmp_ge_u32 s{sWAVE}, 4")
    e("s_cbranch_scc1 L_help_pro")
    def tbl(n,vm):
        for t in range(n):
            e(f"s_mov_b32 m0, s{sTM}")
            e(f"s_add_u32 s{sTM}, s{sTM}, 8192")
            e(f"buffer_load_dwordx4 v5, s[{S_TBL}:{S_TBL+3}], m0 offen lds"); vm.issue("tbl")
            e(f"s_cmp_ge_u32 s{sTM}, s{sWR1}")
            e(f"s_cselect_b32 s{sT+5}, s{sWR2}, 0")
            e(f"s_sub_u32 s{sTM}, s{sTM}, s{sT+5}")

    vW,vT0,vT1=1,3,4
    AD=8; AF=16; F0=48; REC=80; ACC=128
    acc=lambda lt,ct: ACC+(lt*2+ct)*16
    Fr=lambda j,ks,ct: F0+(j&1)*16+(ks*2+ct)*4
    vm=Q(63); lg=Q(15)
    cm("---- DNN wave prologue ----")
    e("v_lshlrev_b32 v6, 4, v2")
    e(f"s_mul_i32 s{sT+4}, s{sRB}, 13312")
    e(f"s_mul_i32 s{sT+5}, s{sWAVE}, 3328")
    e(f"s_add_u32 s{sT+4}, s{sT+4}, s{sT+5}")
    e(f"s_lshl_b32 s{sRING}, s{sWAVE}, 13")
    e(f"s_add_u32 s{sRING}, s{sRING}, {RING}")
    e(f"s_add_u32 m0, s{sRING}, 4096")
    e(f"s_lshl_b32 s{sT+7}, s{sWAVE}, 5")
    e(f"v_add_u32 v9, s{sT+7}, v3")
    e("v_mul_u32_u24 v9, 3328, v9")
    e("v_lshlrev_b32 v11, 2, v4")
    e("v_and_b32 v11, 4, v11")
    e("v_xor_b32 v11, v11, v10")
    e("v_lshl_add_u32 v1, v11, 4, v9")
    e(f"s_lshl_b32 s{sT+7}, s{sCB}, 7")
    e(f"v_add_u32 v1, s{sT+7}, v1")
    e("v_lshrrev_b32 v12, 5, v2")
    e(f"v_lshl_add_u32 v11, v12, 5, s{sT+7}")
    e("s_waitcnt lgkmcnt(0)")
    if opt.pst: st(84)
    e(f"s_mov_b64 s[{S_IDX}:{S_IDX+1}], s[{P_IDX}:{P_IDX+1}]")
    e(f"s_mov_b64 s[{S_TBL}:{S_TBL+1}], s[{P_TBL}:{P_TBL+1}]")
    for i in range(4):
        if i==3: e("s_mov_b64 exec, 0xffff")
        e(f"buffer_load_dwordx4 v6, s[{S_IDX}:{S_IDX+3}], s{sT+4} offen offset:{1024*i} lds"); vm.issue(f"idx{i}")
    e("s_mov_b64 exec, -1")
    srd(S_W,P_W,1664*3328)
    srd(S_A,P_B1,3328)
    for pc in range(4):
        e(f"s_add_u32 m0, s{sRING}, {pc*1024}")
        e(f"s_mov_b32 s12, {8*pc*3328}")
        e(f"buffer_load_dwordx4 v1, s[{S_W}:{S_W+3}], s12 offen lds"); vm.issue(f"w0_{pc}")
    def bias_loads():
        for i in range(4):
            e(f"buffer_load_dwordx4 v[{106+4*i}:{109+4*i}], v{VB}, s[{S_A}:{S_A+3}], 0 offen offset:{(i>>1)*64+(i&1)*16}"); vm.issue(f"bias{i}")
    VB=6
    e("v_mov_b32 v6, v11")
    TB=[int(c,16) for c in str(opt.tb)]
    tbl(TB[0],vm)
    if opt.pst: st(86)
    e("v_and_b32 v13, 31, v2")
    e("v_mul_u32_u24 v13, 104, v13")
    e(f"s_lshl2_add_u32 s{sT+5}, s{sT+2}, {RING+4096}")
    e(f"v_add_u32 v13, s{sT+5}, v13")
    e("v_lshlrev_b32 v9, 1, v12")
    e(f"v_xor_b32 v9, s{sWAVE}, v9")
    e("v_lshl_add_u32 v24, v9, 13, v13")
    e("v_xor_b32 v9, 1, v9")
    e("v_lshl_add_u32 v25, v9, 13, v13")
    e("v_and_b32 v26, 31, v2")
    e("v_mul_u32_u24 v26, 104, v26")
    e(f"v_add_u32 v26, s{sRING}, v26")
    e("v_add_u32 v26, 4096, v26")
    e("v_bfe_u32 v9, v2, 2, 2")
    e("v_lshlrev_b32 v3, 7, v9")
    e("v_lshl_add_u32 v3, v12, 10, v3")
    e("v_lshrrev_b32 v9, 1, v9")
    e("v_lshl_add_u32 v3, v9, 6, v3")
    e("v_and_b32 v9, 1, v2")
    e("v_lshl_add_u32 v3, v9, 5, v3")
    e("v_bfe_u32 v9, v2, 1, 1")
    e("v_lshl_add_u32 v3, v9, 3, v3")
    e("v_and_b32 v9, 1, v4")
    e("v_lshl_add_u32 v3, v9, 4, v3")
    e(f"v_add_u32 v3, s{sRING}, v3")
    e("v_xor_b32 v4, 64, v3")
    e(f"v_add_u32 v14, s{sT+1}, v12")
    e("v_lshl_or_b32 v14, v14, 16, v14")
    e(f"s_mov_b32 s{sT+6}, 0x00070007")
    e(f"s_waitcnt vmcnt({vm.need('idx3')})")
    if opt.pst: st(88)
    def lds_inc(va,off):
        e("v_mov_b32 v0, 1")
        e("s_mov_b64 exec, 1")
        e(f"ds_add_u32 v{va}, v0 offset:{off}")
        e("s_mov_b64 exec, -1")
    e("s_barrier")
    if opt.pst: st(90)
    sWO=12
    def dma(j,pcs):
        for pc in pcs:
            if opt.now and j>=3:
                vm.ops.insert(0,f"w{j}_{pc}"); continue
            e(f"s_add_u32 m0, s{sRING}, {((j&1)*4+pc)*1024}")
            e(f"s_mov_b32 s{sWO}, {(128*j+8*pc)*3328}")
            e(f"buffer_load_dwordx4 v{vW}, s[{S_W}:{S_W+3}], s{sWO} offen lds"); vm.issue(f"w{j}_{pc}")
    BI=106
    RW=lambda t,j: 160+t*14+j
    RECX=104
    for j in range(0,12,2):
        for t in range(2):
            e(f"ds_read2_b32 v[{RW(t,j)}:{RW(t,j)+1}], v{24+t} offset0:{2*j} offset1:{2*j+2}")
    e("ds_read_b64 v[190:191], v26 offset:96")
    tbl(TB[1],vm)
    srd(S_WS,P_WS,WS_SIZE)
    srd(S_B,P_W2,3328)
    e("s_waitcnt lgkmcnt(0)")
    e("s_barrier")
    st(76)
    tbl(TB[2],vm)
    for j in range(13):
        if j==6: tbl(TB[3],vm)
        d=REC+2*j
        if j<12: e(f"v_lshl_or_b32 v{d}, v{RW(1,j)}, 16, v{RW(0,j)}")
        else:    e(f"v_lshl_or_b32 v{d}, v191, 16, v190")
        e(f"v_lshrrev_b32 v13, 1, v{d}")
        e(f"v_and_b32 v13, s{sT+6}, v13")
        e(f"v_lshl_or_b32 v{d}, v{d}, 3, v13")
        if j<12: e(f"v_mov_b32 v{d+1}, v{d}")
        if j:
            e(f"v_permlane32_swap_b32 v{d-2}, v{d-1}")
            e(f"v_xor_b32 v{d-2}, v14, v{d-2}"); e(f"v_xor_b32 v{d-1}, v14, v{d-1}")
    e("v_lshl_or_b32 v13, v12, 16, v12")
    e(f"v_xor_b32 v{RECX}, v13, v{RECX}")
    afr=lambda lt,ks: AF+8*lt+4*ks
    XF={0:80,1:88,2:afr(1,0),3:afr(2,0)}
    FX={0:[F0,F0+4,F0+8,F0+12],1:[8,12,40,44],2:[F0+16,F0+20,F0+24,F0+28],3:[F0,F0+4,F0+8,F0+12]}
    def adr(lt,j):
        e(f"v_lshlrev_b32_sdwa v{AD+2*lt}, 4, v{REC+2*j+(lt>>1)} dst_sel:DWORD dst_unused:UNUSED_PAD src0_sel:DWORD src1_sel:WORD_{lt&1}")
        e(f"v_xor_b32 v{AD+2*lt+1}, 32, v{AD+2*lt}")
    def Rop(lt,j):
        for ks in range(2):
            e(f"ds_read_b128 v[{afr(lt,ks)}:{afr(lt,ks)+3}], v{AD+2*lt+ks}"); lg.issue(f"R{lt}_{ks}_{j}")
    def adrX(c,a):
        e(f"v_lshlrev_b32_sdwa v{a}, 4, v{RECX} dst_sel:DWORD dst_unused:UNUSED_PAD src0_sel:DWORD src1_sel:WORD_{c>>1}")
        if c&1: e(f"v_xor_b32 v{a}, 64, v{a}")
        e(f"v_xor_b32 v{a+1}, 32, v{a}")
    def RX(c,a):
        for ks in range(2):
            e(f"ds_read_b128 v[{XF[c]+4*ks}:{XF[c]+4*ks+3}], v{a+ks}"); lg.issue(f"X{c}_{ks}")
    def Top(j,ks):
        for ct in range(2):
            for h4 in range(2):
                d=Fr(j,ks,ct)+2*h4
                e(f"ds_read_b64_tr_b16 v[{d}:{d+1}], v{vT0+ct} offset:{((j&1)*4+ks*2)*1024+h4*512}"); lg.issue(f"T{j}_{ks}_{ct}{h4}")
    def TX(c):
        for ks in range(2):
            for ct in range(2):
                for h4 in range(2):
                    d=FX[c][ks*2+ct]+2*h4
                    e(f"ds_read_b64_tr_b16 v[{d}:{d+1}], v{vT0+ct} offset:{c*8192+ks*2048+h4*512}"); lg.issue(f"TX{c}")
    for lt in range(4): adr(lt,0)
    if ST: e("s_waitcnt lgkmcnt(0)")
    e(f"s_waitcnt vmcnt({vm.need('w0_3')})")
    Top(0,0); Top(0,1)
    tbl(16-sum(TB),vm)
    dma(1,range(4))
    e("s_waitcnt lgkmcnt(0)")
    if not opt.d2late: dma(2,range(4))
    if opt.pst: st(92)
    e(f"s_waitcnt vmcnt({vm.need('tbl')})")
    st(78)
    e("s_barrier")
    st(80,True)
    if ST: e("s_memtime s[96:97]"); e("s_waitcnt lgkmcnt(0)")
    if opt.prio: e(f"s_setprio {opt.prio}")
    Rop(1,0); Rop(2,0); Rop(3,0); Rop(0,0)
    def group(lt,fa,xa,first,fills):
        for i,(ks,ct) in enumerate([(0,0),(0,1),(1,0),(1,1)]):
            c=f"v[{acc(lt,ct)}:{acc(lt,ct)+15}]"
            src="0" if (first and ks==0) else c
            e(f"v_mfma_f32_32x32x16_bf16 {c}, v[{fa[ks*2+ct]}:{fa[ks*2+ct]+3}], v[{xa+4*ks}:{xa+4*ks+3}], {src}")
            lastw[(lt,ct)]=cnt[0]
            for f in fills[i]: f()
    LT=[1,2,3,0]
    W2P=106; EV=122; VR=124; WA=125; RA1,RA2=5,6; sM=[0,sT+7,sT+8,13]
    WA0=105; RA0=127
    def addrs():
        e(f"s_xor_b32 s{sM[1]}, s{sWAVE}, 1")
        e(f"s_lshl_b32 s{sT}, s{sM[1]}, 13")
        e(f"s_add_u32 s{sT}, s{sT}, {RING}")
        e(f"v_lshlrev_b32 v{RA1}, 4, v2")
        e(f"v_add_u32 v{RA0}, s{sT}, v{RA1}")
        e(f"v_add_u32 v{WA0}, s{sRING}, v{RA1}")
    def addrs2():
        e(f"s_lshl_b32 s{sM[1]}, s{sM[1]}, 12")
        e(f"v_add_u32 v{WA}, s{sM[1]}, v{RA1}")
        e(f"s_xor_b32 s{sT}, s{sWAVE}, 2")
        e(f"s_lshl_b32 s{sT}, s{sT}, 13")
        e(f"v_add_u32 v{WA+1}, s{sT}, v{RA1}")
    def addrs3():
        e(f"s_lshl_b32 s{sT}, s{sWAVE}, 12")
        e(f"v_add_u32 v{RA2}, s{sT}, v{RA1}")
        e(f"s_lshl_b32 s{sT}, s{sWAVE}, 13")
        e(f"s_add_u32 s{sT}, s{sT}, 16384")
        e(f"v_add_u32 v{RA1}, s{sT}, v{RA1}")
    def late1():
        e(f"s_lshl_b32 s{sT}, s{sCB}, 7")
        e(f"v_lshrrev_b32 v{VR}, 5, v2")
        e(f"v_lshl_add_u32 v{VR}, v{VR}, 5, s{sT}")
    def late2(i):
        e(f"buffer_load_dwordx4 v[{W2P+4*i}:{W2P+4*i+3}], v{VR}, s[{S_B}:{S_B+3}], 0 offen offset:{(i>>1)*64+(i&1)*16}"); vm.issue(f"w2_{i}")
    def late3():
        e(f"v_and_b32 v{VR}, 31, v2")
        e(f"s_lshl_b32 s{sT}, s{sRB}, 7")
        e(f"s_lshl_b32 s{sT+1}, s{sWAVE}, 5")
        e(f"s_add_u32 s{sT}, s{sT}, s{sT+1}")
        e(f"v_add_lshl_u32 v{VR}, v{VR}, s{sT}, 3")
    def late4():
        e(f"s_mov_b32 s{sT+2}, {EPOCH}")
        e(f"buffer_load_dwordx2 v[{EV}:{EV+1}], v{VR}, s[{S_WS}:{S_WS+3}], s{sT+2} offen"); vm.issue("ev")
    def badd(ct,t):
        src=BI+ct*8+(t>>1)
        if t&1: e(f"v_and_b32 v0, 0xffff0000, v{src}")
        else:   e(f"v_lshlrev_b32 v0, 16, v{src}")
        hz((0,ct),12)
        e(f"v_add_f32 v{acc(0,ct)+t}, v{acc(0,ct)+t}, v0")
    def wv(n): return lambda n=n: (e(f"s_waitcnt vmcnt({vm.need(n)})") if vm.pending(n) else None)
    def wl(n): return lambda n=n: (e(f"s_waitcnt lgkmcnt({lg.need(n)})") if lg.pending(n) else None)
    ITS={1:76,2:78,3:80,5:82,7:84,9:86,10:88,11:90}
    for j in range(12):
        cm(f"---- iteration {j} ----")
        if opt.its==1 and j in ITS: e(f"s_memtime s[{ITS[j]}:{ITS[j]+1}]")
        if opt.its and j==11: opt.pst=1
        for g,lt in enumerate(LT):
            if j==11 and g==3: break
            needs=[f"R{lt}_1_{j}"]+([f"T{j}_1_11"] if g==0 else [])
            if lg.pending(*needs): e(f"s_waitcnt lgkmcnt({lg.need(*needs)})")
            if opt.its==2 and j<2: e(f"s_memtime s[{76+2*(4*j+g)}:{77+2*(4*j+g)}]")
            if opt.its==3 and j>=10: e(f"s_memtime s[{76+2*(4*(j-10)+g)}:{77+2*(4*(j-10)+g)}]")
            fills=[[],[],[],[]]
            if j==0:
                if g==0:
                    if opt.d2late:
                        for i in range(4): fills[i].append(lambda i=i: dma(2,[i]))
                if g==1: fills[0].append(bias_loads)
                if g>=2: fills[0]+= [wv(f'w1_{2*(g-2)+1}'),lambda g=g: Top(1,g-2)]
            elif j<11:
                if j==1 and g<2:
                    fills[1].append(lambda g=g: dma(3,[2*g])); fills[2].append(lambda g=g: dma(3,[2*g+1]))
                if g<2: fills[0]+= [wv(f'w{j+1}_{2*g+1}'),lambda j=j,g=g: Top(j+1,g)]
                elif j+3<13:
                    fills[0]+= [wl(f'T{j+1}_{g-2}_11'),lambda j=j,g=g: dma(j+3,[2*(g-2)])]
                    fills[1].append(lambda j=j,g=g: dma(j+3,[2*(g-2)+1]))
            if j<11:
                fills[2].append(lambda j=j,lt=lt: adr(lt,j+1))
                fills[3].append(lambda j=j,lt=lt: Rop(lt,j+1))
            if j in (3,4,5,6) and g in (1,2):
                ct=(j-3)>>1; t0=((j-3)&1)*8+(g-1)*4
                if g==1 and j==3: fills[1].append(wv('bias3'))
                for i,ts in ((1,(0,1)),(2,(2,)),(3 if g==1 else 2,(3,))):
                    fills[i]+= [(lambda t=t0+t,ct=ct: badd(ct,t)) for t in ts]
            if j==9 and g==0: fills[1].append(addrs)
            if j==9 and g==1: fills[1].append(addrs2); fills[2].append(addrs3)
            if j==9 and g==3:
                fills[2].append(E("v_mov_b32 v0, 1")); fills[3].append(lambda: (e(f"ds_write_b32 v7, v0 offset:{F_IT9}"),lg.issue("it9")))
            if j==10 and g==0: fills[1].append(late1); fills[2].append(lambda: late2(0))
            if j==10 and g==1: fills[1].append(lambda: late2(1)); fills[2].append(lambda: late2(2))
            if j==10 and g==2: fills[2].append(lambda: late2(3))
            if j==10 and g==3: fills[0].append(late3); fills[1].append(late4)
            if j==11 and g>=1:
                qs={1:[(1,0),(3,1)],2:[(0,2),(2,3)]}[g]
                for i,q in qs: fills[i].append(lambda q=q: (hz((1,0),12),e(f"ds_write_b128 v{WA0}, v[{acc(1,0)+4*q}:{acc(1,0)+4*q+3}] offset:{4096+q*1024}"),lg.issue("W")))
            if j==10 and g==2: fills[0].append(lambda: adrX(0,AD+2)); fills[1].append(lambda: RX(0,AD+2))
            if j==11 and g==0:
                fills[0].append(lambda: (adrX(1,AD),RX(1,AD))); fills[2].append(lambda: adrX(2,AD+2)); fills[3].append(lambda: RX(2,AD+2))
            if j==11 and g==1:
                fills[0].append(lambda: (e(f"s_lshl_b32 s{sT}, s{sWAVE}, 13"),e(f"v_subrev_u32 v{vT0}, s{sT}, v{vT0}"),e(f"v_subrev_u32 v{vT1}, s{sT}, v{vT1}")))
                fills[2].append(lambda: adrX(3,AD+4)); fills[3].append(lambda: RX(3,AD+4))
            group(lt,[Fr(j,ks,ct) for ks in range(2) for ct in range(2)],afr(lt,0),j==0,fills)
    cm("---- last K chunk set: own tile only, partial tiles go out meanwhile ----")
    e(f"s_waitcnt vmcnt({vm.need('w12_3')}) lgkmcnt(0)"); lg.done=len(lg.ops)
    if opt.its: e("s_memtime s[92:93]")
    if not opt.pst: st(82)
    e("s_barrier")
    if not opt.pst: st(84)
    TX(0); TX(1)
    wrs=[]
    def w1(lt,q,va,off): return lambda: (hz((lt,q>>2),12),e(f"ds_write_b128 v{va}, v[{acc(lt,0)+4*q}:{acc(lt,0)+4*q+3}] offset:{off}"),lg.issue("W"))
    wrs+=[w1(1,q,WA,(q-4)*1024) for q in range(4,8)]
    wrs+=[w1(2,q,WA+1,16384+q*1024) for q in range(8)]
    wrs+=[E(f"v_xor_b32 v{WA}, 8192, v{WA+1}")]
    wrs+=[w1(3,q,WA,49152+q*1024) for q in range(8)]
    W2F=list(range(96,104))+list(range(16,24))+list(range(8,16))+list(range(40,48))
    unp=[]
    for t in range(32):
        src=W2P+(t>>1)
        unp.append(E(f"v_and_b32 v{W2F[t]}, 0xffff0000, v{src}" if t&1 else f"v_lshlrev_b32 v{W2F[t]}, 16, v{src}"))
    per=opt.wper
    for gi in range(5):
        c=gi-1
        fills=[[],[],[],[]]
        if gi>0 and lg.pending(f"TX{c}"): e(f"s_waitcnt lgkmcnt({lg.need(f'TX{c}')})")
        for i in range(4):
            n=1 if (i<3 or gi%2) else 0
            if gi in (0,1) and i==3: fills[i].append(lambda c=gi+2: TX(c))
            fills[i]+=wrs[:n]; wrs=wrs[n:]
            if gi==1 and i==0: fills[i].append(lambda: e("s_waitcnt vmcnt(0)"))
            if gi==1 or gi==2: fills[i]+=unp[:2]; unp=unp[2:]
            if gi>=3: fills[i]+=unp[:2]; unp=unp[2:]
        if gi==0: group(0,[Fr(11,ks,ct) for ks in range(2) for ct in range(2)],afr(0,0),False,fills)
        else: group(0,FX[c],XF[c],False,fills)
    for f in wrs: f()
    e("v_mov_b32 v0, 1")
    e("s_mov_b64 exec, 1")
    e(f"ds_add_u32 v7, v0 offset:{F_PRE}")
    e("s_mov_b64 exec, -1")
    if not opt.pst: st(86)
    if ST: e("s_memtime s[98:99]")
    vC1=F0+16; S0=F0+17; S1=F0+18
    e(f"s_mov_b32 s{sT+2}, {f2u(C2)}")
    e(f"v_mov_b32 v{vC1}, {f2u(C1)}")
    e(f"v_mov_b32 v{S0}, 0"); e(f"v_mov_b32 v{S1}, 0")
    e("s_mov_b64 exec, 1")
    e("s_waitcnt lgkmcnt(0)")
    e(f"ds_add_u32 v7, v0 offset:{F_RED}")
    e("s_mov_b64 exec, -1")
    lds_spin("L_red",7,0,F_RED,4)
    if not opt.pst: st(88,True)
    if ST and opt.gcyc: e("s_memtime s[96:97]"); e("s_waitcnt lgkmcnt(0)")
    lg=Q(15)
    PB=ACC+32
    part=lambda sl,q: PB+(q*3+sl)*4
    for q in range(8):
        for sl in range(3):
            if sl==0: a,off=(RA0,4096+q*1024) if q<4 else (RA2,(q-4)*1024)
            else: a,off=RA1,(sl-1)*32768+q*1024
            e(f"ds_read_b128 v[{part(sl,q)}:{part(sl,q)+3}], v{a} offset:{off}"); lg.issue(f"p{sl}_{q}")
    T=F0
    for q in range(8):
        e(f"s_waitcnt lgkmcnt({lg.need(f'p2_{q}')})")
        a=ACC+4*q
        for r in range(4): e(f"v_add_f32 v{a+r}, v{a+r}, v{part(0,q)+r}")
        for r in range(4): e(f"v_add_f32 v{part(1,q)+r}, v{part(1,q)+r}, v{part(2,q)+r}")
        for r in range(4): e(f"v_add_f32 v{a+r}, v{a+r}, v{part(1,q)+r}")
        for r in range(4): e(f"v_mul_f32 v{T+r}, v{a+r}, v{a+r}")
        for r in range(4): e(f"v_fma_f32 v{T+r}, v{T+r}, s{sT+2}, v{vC1}")
        for r in range(4): e(f"v_mul_f32 v{T+r}, v{T+r}, v{a+r}")
        for r in range(4): e(f"v_exp_f32 v{T+r}, v{T+r}")
        for r in range(4): e(f"v_mul_f32 v{a+r}, v{a+r}, v{W2F[4*q+r]}")
        for r in range(4): e(f"v_add_f32 v{T+r}, 1.0, v{T+r}")
        for r in range(4): e(f"v_rcp_f32 v{T+r}, v{T+r}")
        e("s_nop 0")
        for r in range(4): e(f"v_fmac_f32 v{S0+(r&1)}, v{a+r}, v{T+r}")
    e(f"v_add_f32 v{S0}, v{S0}, v{S1}")
    e(f"v_mov_b32 v{S1}, v{S0}")
    e(f"s_movk_i32 s{sT}, 0xff")
    e(f"v_add_u32 v{EV}, 1, v{EV}")
    e(f"v_permlane32_swap_b32 v{S0}, v{S1}")
    e(f"s_lshl_b32 s{sT+1}, s{sCB}, 13")
    e(f"v_add_f32 v{S0}, v{S0}, v{S1}")
    e(f"s_add_u32 s{sT+1}, s{sT+1}, {GRAN}")
    e(f"v_bfi_b32 v{EV+1}, s{sT}, v{EV+1}, v{S0}")
    e(f"s_mov_b32 exec_hi, 0")
    e(f"buffer_store_dwordx2 v[{EV}:{EV+1}], v{VR}, s[{S_WS}:{S_WS+3}], s{sT+1} offen sc0 sc1")
    if ST:
        if opt.gcyc: e("s_memtime s[98:99]")
        if not opt.pst: st(90); e("s_waitcnt vmcnt(0)"); st(92,True)
        e("s_waitcnt lgkmcnt(0)"); e("s_sub_u32 s98, s98, s96")
        if opt.its:
            for r in range(76,94,2):
                e(f"s_sub_u32 s{r}, s{r}, s96"); e(f"s_mul_i32 s{r}, s{r}, 100"); e(f"s_add_u32 s{r}, s{r}, s10")
        dump([10,76,78,80,82,84,86,88,90,92,98])
    e("s_endpgm")

    def late_sloads():
        e(f"s_lshl_b32 s{sT+8}, s{sROW}, 3")
        e(f"s_add_u32 s{sT+8}, s{sT+8}, {EPOCH}")
        e(f"s_load_dwordx2 s[{sE}:{sE+1}], s[{P_WS}:{P_WS+1}], s{sT+8}")
        e(f"s_load_dword s9, s[{P_BO}:{P_BO+1}], 0")
    X=32
    def x0_addrs():
        e("v_and_b32 v3, 31, v2")
        e("v_lshlrev_b32 v4, 2, v3")
        for r in range(26): e(f"v_readlane_b32 s{76+r}, v29, {r}")
        e("s_mov_b32 exec_hi, 0")
        for r in range(26): e(f"v_xor_b32 v{X+r}, s{76+r}, v4")
        e("s_mov_b64 exec, -1")
        e("s_mov_b32 exec_lo, 0")
        for r in range(26): e(f"v_xor_b32 v{X+r}, s{76+(r+1)%26}, v4")
        e("s_mov_b64 exec, -1")
    lab("L_help_pro")
    e(f"s_mov_b32 m0, s{sTM}")
    e(f"s_mov_b32 s{sT+3}, {opt.nt0-1}")
    e("s_waitcnt lgkmcnt(0)")
    e(f"s_mov_b64 s[{S_IDX}:{S_IDX+1}], s[{P_IDX}:{P_IDX+1}]")
    e(f"s_mov_b64 s[{S_TBL}:{S_TBL+1}], s[{P_TBL}:{P_TBL+1}]")
    def tloop(name):
        lab(name)
        e(f"buffer_load_dwordx4 v5, s[{S_TBL}:{S_TBL+3}], m0 offen lds")
        e("s_add_u32 m0, m0, 8192")
        e(f"s_cmp_ge_u32 m0, s{sWR1}")
        e(f"s_cselect_b32 s{sT+5}, s{sWR2}, 0")
        e(f"s_sub_u32 m0, m0, s{sT+5}")
        e(f"s_sub_u32 s{sT+3}, s{sT+3}, 1")
        e(f"s_cbranch_scc0 {name}")
    rowidx_load()
    tloop("L_tloop")
    e(f"s_mov_b32 s{sT+3}, {16-opt.nt0-1}")
    e("s_barrier")
    tloop("L_tloop2")
    e("s_barrier")
    e("s_waitcnt vmcnt(16)")
    e("v_lshlrev_b32 v29, 7, v29")
    x0_addrs()
    e("s_waitcnt vmcnt(0)")
    e("s_barrier")
    if opt.xsl: e(f"s_sleep {opt.xsl}")
    lab("L_help_x0")
    for r in range(26):
        e(f"buffer_load_dword v{X+r}, v{X+r}, s[{S_TBL}:{S_TBL+3}], 0 offen")
    lab("L_help_main")
    srd(S_WS,P_WS,WS_SIZE); srd(S_A,P_DBG,256); srd(S_B,P_OUT,2048)
    Z0=8
    ZE=lambda s: Z0+4*s
    ZO=lambda s: Z0+88+4*s
    LE=lambda k: Z0+176+4*k
    LO=lambda k: Z0+184+4*k
    R=200; MT=252
    e("v_lshrrev_b32 v5, 2, v3")
    e("v_mul_u32_u24 v5, 5888, v5")
    e("v_and_b32 v6, 3, v2")
    e("v_lshl_add_u32 v5, v6, 4, v5")
    e("v_lshrrev_b32 v6, 5, v2")
    e("v_lshl_add_u32 v5, v6, 6, v5")
    e("v_mov_b32 v7, 0x7fff0000")
    e("v_cmp_gt_u32 vcc, 26, v3")
    e("v_lshlrev_b32 v6, 13, v2")
    e(f"s_lshl_b32 s{sT}, s{sROW}, 3")
    e("v_cndmask_b32 v5, v7, v5, vcc")
    e(f"s_add_u32 s{sT}, s{sT}, {GRAN}")
    e(f"v_add_u32 v6, s{sT}, v6")
    e("v_cmp_gt_u32 vcc, 26, v2")
    e("v_lshlrev_b32 v1, 4, v2")
    e(f"v_add_u32 v1, {CINW}, v1")
    e("v_cndmask_b32 v6, v7, v6, vcc")
    e(f"v_mov_b32 v7, {FLAGS}")
    e("s_waitcnt vmcnt(0) lgkmcnt(0)")
    late_sloads()
    st(76)
    for r in range(26):
        e(f"v_lshlrev_b32 v{R+2*r}, 16, v{X+r}")
        e(f"v_and_b32 v{R+2*r+1}, 0xffff0000, v{X+r}")
    def zstep(s):
        if opt.noz: return
        for m in range(4):
            (a1,a2),(b1,b2)=pair_of(8*s+2*m),pair_of(8*s+2*m+1)
            e(f"v_mul_f32 v{MT}, v{R+2*a1}, v{R+2*a2}")
            e(f"v_mul_f32 v{MT+2}, v{R+2*b1}, v{R+2*b2}")
            e(f"v_mul_f32 v{MT+1}, v{R+2*a1+1}, v{R+2*a2+1}")
            e(f"v_mul_f32 v{MT+3}, v{R+2*b1+1}, v{R+2*b2+1}")
            e(f"v_cvt_pk_bf16_f32 v{ZE(s)+m}, v{MT}, v{MT+2}")
            e(f"v_cvt_pk_bf16_f32 v{ZO(s)+m}, v{MT+1}, v{MT+3}")
    def zlin():
        for k in range(2):
            for m2 in range(4):
                m=k*8+2*m2
                for tl,d in ((0,LE(k)+m2),(1,LO(k)+m2)):
                    if m+1<=12: e(f"v_cvt_pk_bf16_f32 v{d}, v{R+4*m+tl}, v{R+4*(m+1)+tl}")
                    elif m==12: e(f"v_cvt_pk_bf16_f32 v{d}, v{R+4*m+tl}, 1.0")
                    else: e(f"v_mov_b32 v{d}, 0")
    for s in range(opt.zsplit): zstep(s)
    st(78)
    lds_spin("L_it9",7,4,F_IT9,1,sleep=1)
    e(f"v_lshlrev_b32 v0, 2, v2")
    e(f"buffer_load_dword v4, v0, s[{S_A}:{S_A+3}], 0 offen sc1")
    for s in range(opt.zsplit,opt.zbar): zstep(s)
    st(80)
    e("s_barrier")
    for s in range(opt.zbar,22): zstep(s)
    zlin()
    st(82)
    e(f"s_mov_b32 s{sT+4}, {opt.bound}")
    e(f"s_mov_b32 s{sT+2}, 0x7f")
    e(f"s_mov_b32 s{sT+3}, 0")
    lab("L_poll1")
    e("s_waitcnt vmcnt(0)")
    e("v_cmp_ne_u32 vcc, 0, v4")
    e(f"s_and_b64 vcc, vcc, s[{sT+2}:{sT+3}]")
    e(f"s_cmp_eq_u64 vcc, s[{sT+2}:{sT+3}]")
    e("s_cbranch_scc1 L_polled")
    e(f"s_sleep {opt.psleep}")
    e(f"buffer_load_dword v4, v0, s[{S_A}:{S_A+3}], 0 offen sc1")
    e(f"s_sub_u32 s{sT+4}, s{sT+4}, 1")
    e("s_cbranch_scc0 L_poll1")
    lab("L_polled")
    e(f"s_sub_u32 s{sT}, s{sWAVE}, 4")
    e(f"s_lshl_b32 s{sT+1}, s{sT}, 10")
    e(f"s_lshl_b32 s{sT}, s{sT}, 7")
    e(f"s_add_u32 m0, s{sT+1}, {CINW}")
    lds_spin("L_wred",7,0,F_PRE,opt.dly)
    st(84)
    for t in range(12):
        if t==11:
            e(f"s_cmp_ge_u32 s{sWAVE}, 6")
            e("s_cbranch_scc1 L_dma_done")
        e(f"buffer_load_dwordx4 v5, s[{S_WS}:{S_WS+3}], s{sT} offen sc1 lds")
        if t<11:
            e(f"s_add_u32 m0, m0, 4096")
            e(f"s_add_u32 s{sT}, s{sT}, 512")
    lab("L_dma_done")
    e("v_mov_b32 v0, 1")
    e("s_mov_b64 exec, 1")
    e("s_waitcnt vmcnt(7)")
    st(86)
    e(f"ds_add_u32 v7, v0 offset:{F_CW}")
    e("s_mov_b64 exec, -1")
    lds_spin("L_cw",7,0,F_CW,4)
    st(88,True)
    if ST: e("s_memtime s[96:97]"); e("s_waitcnt lgkmcnt(0)")
    AXE,AUE=200,216; WF=232
    AXO,AUO=ZE(0),ZE(4)
    lg=Q(15)
    seq=[('e',s) for s in range(8)]+[('o',s) for s in range(8)]+[('eo',s) for s in range(8,24)]
    def rd(i):
        tl,s=seq[i]; b=WF+(i%3)*8
        if s<22:
            e(f"ds_read_b128 v[{b}:{b+3}], v1 offset:{2*s*1024}"); lg.issue(f"x{i}")
            e(f"ds_read_b128 v[{b+4}:{b+7}], v1 offset:{(2*s+1)*1024}"); lg.issue(f"u{i}")
        else:
            e(f"ds_read_b128 v[{b+4}:{b+7}], v1 offset:{(44+s-22)*1024}"); lg.issue(f"u{i}")
    rd(0); rd(1)
    GV=ZE(8)
    for i,(tl,s) in enumerate(seq):
        if opt.nocin and i<len(seq)-3: continue
        if opt.nocin and i==len(seq)-3: rd(i); rd(i+1)
        b=WF+(i%3)*8
        if i==6:
            e("v_mov_b32 v0, 1")
            e("s_mov_b64 exec, 1")
            e("s_waitcnt vmcnt(0)")
            e(f"ds_add_u32 v7, v0 offset:{F_CW2}"); lg.issue("cw2")
            e("s_mov_b64 exec, -1")
        if i+2==16:
            lds_spin("L_cw2",7,0,F_CW2,4); lg.done=len(lg.ops)
        if i+2<len(seq): rd(i+2)
        if lg.pending(f'u{i}'): e(f"s_waitcnt lgkmcnt({lg.need(f'u{i}')})")
        for t in tl:
            z=(ZE if t=='e' else ZO)(s) if s<22 else (LE if t=='e' else LO)(s-22)
            ax,au=(AXE,AUE) if t=='e' else (AXO,AUO)
            if s<22:
                c=f"v[{ax}:{ax+15}]"
                e(f"v_mfma_f32_32x32x16_bf16 {c}, v[{b}:{b+3}], v[{z}:{z+3}], {c if s else 0}")
            c=f"v[{au}:{au+15}]"
            e(f"v_mfma_f32_32x32x16_bf16 {c}, v[{b+4}:{b+7}], v[{z}:{z+3}], {c if s else 0}")
        if i==len(seq)-3:
            e(f"buffer_load_dwordx2 v[{GV}:{GV+1}], v6, s[{S_WS}:{S_WS+3}], 0 offen sc1")
    e(f"s_add_u32 s{sE}, s{sE}, 1")
    e(f"s_and_b32 s{sE+1}, s{sE+1}, 0xff")
    e("s_nop 9")
    V=ZE(9); V2=V+1
    e(f"v_mul_f32 v{V}, v{AXE}, v{AUE}")
    e(f"v_mul_f32 v{V2}, v{AXO}, v{AUO}")
    for t in range(1,14):
        e(f"v_fmac_f32 v{V}, v{AXE+t}, v{AUE+t}")
        e(f"v_fmac_f32 v{V2}, v{AXO+t}, v{AUO+t}")
    e(f"v_add_f32 v{V}, v{V}, v{V2}")
    st(90)
    if ST: e("s_memtime s[98:99]")
    e("s_mov_b32 exec_lo, 0x3ffffff")
    e("s_mov_b32 exec_hi, 0")
    e(f"s_mov_b32 s{sT+4}, {opt.bound}")
    G2=GV+2
    def chk(g,lbl):
        e(f"v_and_b32 v{V2}, 0xff, v{g+1}")
        e(f"v_cmp_eq_u32 vcc, s{sE}, v{g}")
        e(f"v_cmp_eq_u32 s[{sT}:{sT+1}], s{sE+1}, v{V2}")
        e(f"v_and_b32 v{V2}, 0xffffff00, v{g+1}")
        e(f"s_and_b64 vcc, vcc, s[{sT}:{sT+1}]")
        e("s_cmp_eq_u64 vcc, exec")
        e(f"s_cbranch_scc1 L_got")
    lab("L_poll2")
    e(f"buffer_load_dwordx2 v[{G2}:{G2+1}], v6, s[{S_WS}:{S_WS+3}], 0 offen sc1")
    e("s_waitcnt vmcnt(1)")
    chk(GV,0)
    e(f"buffer_load_dwordx2 v[{GV}:{GV+1}], v6, s[{S_WS}:{S_WS+3}], 0 offen sc1")
    e("s_waitcnt vmcnt(1)")
    chk(G2,1)
    e(f"s_sub_u32 s{sT+4}, s{sT+4}, 1")
    e("s_cbranch_scc0 L_poll2")
    lab("L_got")
    e(f"v_add_f32 v{V}, v{V}, v{V2}")
    e("s_mov_b64 exec, -1")
    st(92)
    for dpp in ["quad_perm:[1,0,3,2] row_mask:0xf bank_mask:0xf","quad_perm:[2,3,0,1] row_mask:0xf bank_mask:0xf",
                "row_half_mirror row_mask:0xf bank_mask:0xf","row_mirror row_mask:0xf bank_mask:0xf",
                "row_bcast:15 row_mask:0xa bank_mask:0xf","row_bcast:31 row_mask:0xc bank_mask:0xf"]:
        e("s_nop 1")
        e(f"v_add_f32_dpp v{V}, v{V}, v{V} {dpp}")
    e("s_lshl_b32 s9, s9, 16")
    e(f"v_add_f32 v{V}, s9, v{V}")
    e(f"v_cvt_pk_bf16_f32 v{V}, v{V}, v{V}")
    e(f"s_lshl_b32 s{sT}, s{sROW}, 1")
    e(f"s_lshl_b32 s{sT+1}, s{sROW}, 3")
    e(f"s_add_u32 s{sT+1}, s{sT+1}, {EPOCH}")
    e(f"v_mov_b32 v{V2}, s{sE}")
    e("s_mov_b32 exec_lo, 0")
    e("s_mov_b32 exec_hi, 0x80000000")
    e(f"buffer_store_short v{V}, off, s[{S_B}:{S_B+3}], s{sT}")
    e(f"buffer_store_dword v{V2}, off, s[{S_WS}:{S_WS+3}], s{sT+1}")
    if ST:
        e("s_waitcnt vmcnt(0)"); st(94,True); e("s_sub_u32 s98, s98, s96")
        dump([10,76,78,80,82,84,86,88,90,92,94,98],0,1)
    e("s_endpgm")

    lab("L_aux")
    if opt.cpf:
        e(f"s_getpc_b64 s[{S_IDX}:{S_IDX+1}]")
        lab("L_pc")
        e(f"s_sub_u32 s{S_IDX}, s{S_IDX}, L_pc-{KN}")
        e(f"s_subb_u32 s{S_IDX+1}, s{S_IDX+1}, 0")
        e(f"s_mov_b32 s{S_IDX+2}, L_end-{KN}")
        e(f"s_mov_b32 s{S_IDX+3}, 0x20000")
        e("v_lshlrev_b32 v3, 7, v0")
        e(f"buffer_load_dword v255, v3, s[{S_IDX}:{S_IDX+3}], 0 offen")
    e(f"s_lshl1_add_u32 s{sT+1}, s{sXCD}, s{sSLOT}")
    e(f"s_sub_u32 s{sT+1}, s{sT+1}, 26")
    e(f"s_cmp_ge_u32 s{sSLOT}, 28")
    e("s_cbranch_scc1 L_prefetch")
    e(f"s_cmp_ge_u32 s{sT+1}, 7")
    e("s_cbranch_scc1 L_prefetch")
    cm("---- CIN weight folding: rows i = 4*pidx + (wave&3) ----")
    S_C=S_W; S_O=S_B; sI=6
    e(f"s_and_b32 s{sT}, s{sWAVE}, 3")
    e(f"s_lshl2_add_u32 s{sI}, s{sT+1}, s{sT}")
    M=16
    e("v_lshlrev_b32 v3, 2, v0")
    e("v_mov_b32 v7, 0x7fff0000")
    e(f"s_movk_i32 s{sT+1}, 338")
    e(f"v_cmp_gt_u32 vcc, s{sT+1}, v0")
    e("v_lshrrev_b32 v4, 1, v2")
    e("v_and_b32 v5, 1, v2")
    e("v_cndmask_b32 v3, v7, v3, vcc")
    e("v_lshlrev_b32 v4, 3, v4")
    e("s_waitcnt lgkmcnt(0)")
    e(f"s_load_dwordx16 s[76:91], s[{P_WOUT}:{P_WOUT+1}], 104")
    srd(S_C,P_CIN,105456)
    for gg in range(26):
        if gg%3==0: e(f"s_mov_b32 s{sT+2}, {2*35152+gg*1352}")
        e(f"buffer_load_dword v{M+gg}, v3, s[{S_C}:{S_C+3}], s{sT+2} offen offset:{(gg%3)*1352}")
    PP=44; QQ=52
    def slots():
        for ee in range(8):
            e(f"v_add_u32 v8, {ee}, v4")
            e("v_mul_u32_u24 v9, 5042, v8")
            e("v_lshrrev_b32 v9, 16, v9")
            e("v_mul_u32_u24 v10, 13, v9")
            e("v_sub_u32 v10, v8, v10")
            e(f"v_lshl_add_u32 v{PP+ee}, v10, 1, v5")
            e(f"v_add_u32 v{QQ+ee}, v{PP+ee}, v9")
            e(f"v_subrev_u32 v10, 26, v{QQ+ee}")
            e(f"v_min_u32 v{QQ+ee}, v{QQ+ee}, v10")
    def m3(later):
        e("v_mul_u32_u24 v8, 5042, v0")
        e("v_lshrrev_b32 v8, 16, v8")
        e("v_mul_u32_u24 v9, 13, v8")
        e("v_sub_u32 v9, v0, v9")
        e("v_lshlrev_b32 v9, 7, v9")
        e("v_lshl_add_u32 v96, v8, 1, v9")
        e("s_waitcnt lgkmcnt(0)")
        st(92)
        for gg in range(26):
            sreg=76+(gg>>1)
            if gg&1: e(f"s_and_b32 s{sT+4+(gg&1)}, s{sreg}, 0xffff0000")
            else:    e(f"s_lshl_b32 s{sT+4+(gg&1)}, s{sreg}, 16")
            if gg%4==0: e(f"s_waitcnt vmcnt({later+25-min(gg+3,25)})")
            e(f"v_lshlrev_b32 v8, 16, v{M+gg}")
            e(f"v_and_b32 v9, 0xffff0000, v{M+gg}")
            if gg==0:
                e(f"v_mul_f32 v10, s{sT+4}, v8"); e(f"v_mul_f32 v11, s{sT+4}, v9")
            else:
                e(f"v_fmac_f32 v10, s{sT+4+(gg&1)}, v8"); e(f"v_fmac_f32 v11, s{sT+4+(gg&1)}, v9")
        e("v_cvt_pk_bf16_f32 v10, v10, v11")
        e(f"s_movk_i32 s{sT+1}, 338")
        e(f"v_cmp_gt_u32 vcc, s{sT+1}, v0")
        e(f"s_and_saveexec_b64 s[{sT+2}:{sT+3}], vcc")
        e("ds_write_b16 v96, v10")
        e("ds_write_b16_d16_hi v96, v10 offset:64")
        e("s_mov_b64 exec, -1")
        st(94)
    def st_addr(cnt):
        e("v_lshlrev_b32 v6, 7, v6")
        e("v_lshl_add_u32 v6, v5, 6, v6")
        e(f"s_and_b32 s{sT+1}, s{sWAVE}, 3")
        e(f"s_lshl_b32 s{sT+1}, s{sT+1}, 4")
        e(f"s_add_u32 s{sT+1}, s{sT+1}, {STG}")
        e(f"v_add_u32 v6, s{sT+1}, v6")
        e(f"v_cmp_gt_u32 vcc, {cnt}, v2")
        e("v_mov_b32 v94, 1.0")
        e(f"v_mov_b32 v8, {STG+8192}")
        e("v_cndmask_b32 v6, v8, v6, vcc")
        e("v_cmp_gt_u32 vcc, 2, v2")
        e("s_nop 1")
        e("v_cndmask_b32 v95, v94, 0.5, vcc")
        e("v_cmp_gt_u32 vcc, 4, v2")
        e("s_nop 1")
        e("v_cndmask_b32 v94, v94, 0.5, vcc")
    e(f"s_cmp_ge_u32 s{sWAVE}, 4")
    e("s_cbranch_scc1 L_aux_w1")
    Pq=60; PR=76; RA=68; VV=16
    e("v_and_b32 v8, 31, v2")
    e("v_lshrrev_b32 v15, 5, v2")
    e(f"v_mul_u32_u24 v10, {8*1352}, v15")
    e("v_lshl_add_u32 v10, v8, 1, v10")
    e("v_cmp_gt_u32 vcc, 26, v8")
    e(f"s_mul_i32 s{sT+3}, s{sI}, 52")
    e(f"s_add_u32 s{sT+3}, s{sT+3}, 35152")
    e("v_cndmask_b32 v10, v7, v10, vcc")
    e("v_cmp_gt_u32 vcc, 32, v2")
    e("v_lshlrev_b32 v12, 2, v2")
    e("s_nop 0")
    e("v_cndmask_b32 v11, v7, v10, vcc")
    for s in range(2):
        for ee in range(8):
            h=16*s+ee
            if h%3==0 or ee==0:
                hb=h; e(f"s_add_u32 s{sT+2}, s{sT+3}, {h*1352}")
            va=11 if (s==1 and ee>=2) else 10
            e(f"buffer_load_ushort v{PR+s*8+ee}, v{va}, s[{S_C}:{S_C+3}], s{sT+2} offen offset:{(h-hb)*1352}")
    srd(S_O,P_WOUT,156)
    e(f"buffer_load_dword v13, v12, s[{S_O}:{S_O+3}], 0 offen offset:52")
    e(f"s_lshl_b32 s{sT+2}, s{sI}, 1")
    e(f"buffer_load_ushort v14, off, s[{S_O}:{S_O+3}], s{sT+2}")
    e("v_lshlrev_b32 v8, 6, v2")
    e("v_mov_b32 v9, 0")
    e("s_mov_b32 exec_lo, 0x7ffffff")
    e("s_mov_b32 exec_hi, 0")
    e("ds_write_b32 v8, v9 offset:52")
    e("ds_write_b32 v8, v9 offset:56")
    e("ds_write_b32 v8, v9 offset:60")
    e("s_mov_b64 exec, -1")
    e("v_and_b32 v8, 31, v2")
    e("v_lshlrev_b32 v93, 6, v8")
    e("v_lshl_add_u32 v93, v15, 4, v93")
    e(f"s_mul_i32 s{sT+1}, s{sWAVE}, 5120")
    e(f"s_add_u32 s{sT+1}, s{sT+1}, 4096")
    e("v_mul_u32_u24 v92, 144, v8")
    e("v_lshl_add_u32 v92, v15, 4, v92")
    e(f"v_add_u32 v92, s{sT+1}, v92")
    slots()
    e("v_cmp_lt_u32 vcc, 43, v2")
    e("v_subrev_u32 v10, 176, v4")
    e("v_mov_b32 v11, 26")
    for ee in range(8):
        e(f"v_add_u32 v8, {ee}, v10")
        e("v_lshl_add_u32 v8, v8, 1, v5")
        e(f"v_min_u32 v8, 31, v8")
        e(f"v_cndmask_b32 v8, v{QQ+ee}, v8, vcc")
        e(f"v_cndmask_b32 v9, v{PP+ee}, v11, vcc")
        e(f"v_mul_u32_u24 v9, 144, v9")
        e(f"v_lshl_add_u32 v9, v8, 2, v9")
        e(f"v_add_u32 v{RA+ee}, s{sT+1}, v9")
    e("v_lshrrev_b32 v8, 1, v2")
    e("v_lshl_add_u32 v6, v8, 1, 1")
    e("v_add_u32 v8, 22, v8")
    e("v_cndmask_b32 v6, v6, v8, vcc")
    st_addr(48)
    m3(18)
    e("s_mov_b32 exec_lo, 0x1fff")
    e("s_mov_b32 exec_hi, 0")
    e("s_waitcnt vmcnt(0)")
    e(f"ds_write_b32 v12, v13 offset:{26*64}")
    e("s_mov_b64 exec, -1")
    for r in range(8): e(f"v_lshl_or_b32 v{Pq+r}, v{PR+2*r+1}, 16, v{PR+2*r}")
    e("s_waitcnt lgkmcnt(0)")
    e("s_barrier")
    Qq=16; D=24
    e(f"ds_read_b128 v[{Qq}:{Qq+3}], v93")
    e(f"ds_read_b128 v[{Qq+4}:{Qq+7}], v93 offset:32")
    e("s_waitcnt lgkmcnt(0)")
    e(f"v_mfma_f32_32x32x16_bf16 v[{D}:{D+15}], v[{Pq}:{Pq+3}], v[{Qq}:{Qq+3}], 0")
    e(f"v_mfma_f32_32x32x16_bf16 v[{D}:{D+15}], v[{Pq+4}:{Pq+7}], v[{Qq+4}:{Qq+7}], v[{D}:{D+15}]")
    e(f"v_mfma_f32_32x32x16_bf16 v[{D}:{D+15}], v[{Qq}:{Qq+3}], v[{Pq}:{Pq+3}], v[{D}:{D+15}]")
    e(f"v_mfma_f32_32x32x16_bf16 v[{D}:{D+15}], v[{Qq+4}:{Qq+7}], v[{Pq+4}:{Pq+7}], v[{D}:{D+15}]")
    e("s_nop 11")
    for m in range(4):
        e(f"ds_write_b128 v92, v[{D+4*m}:{D+4*m+3}] offset:{m*32}")
    e("s_waitcnt lgkmcnt(0)")
    for ee in range(8): e(f"ds_read_b32 v{VV+ee}, v{RA+ee}")
    e("v_lshlrev_b32 v14, 16, v14")
    e(f"v_cmp_eq_u32 s[{sT}:{sT+1}], 46, v2")
    e(f"v_cmp_eq_u32 s[{sT+2}:{sT+3}], 47, v2")
    e("v_cmp_lt_u32 vcc, 45, v2")
    e("s_waitcnt lgkmcnt(0)")
    e(f"v_cndmask_b32 v{VV+5}, v{VV+5}, v14, s[{sT}:{sT+1}]")
    e(f"v_cndmask_b32 v{VV+5}, v{VV+5}, 0, s[{sT+2}:{sT+3}]")
    e(f"v_cndmask_b32 v{VV+6}, v{VV+6}, 0, vcc")
    e(f"v_cndmask_b32 v{VV+7}, v{VV+7}, 0, vcc")
    e("s_branch L_aux_pack")
    lab("L_aux_w1")
    GA=60; GB=68
    e(f"s_mul_i32 s{sT+3}, s{sI}, 1352")
    e(f"s_lshl_b32 s{sT+6}, s{sWAVE}, 11")
    e(f"s_add_u32 s{sT+6}, s{sT+6}, {32768-4*2048}")
    e(f"s_mov_b32 m0, s{sT+6}")
    e("v_lshlrev_b32 v12, 4, v2")
    e(f"buffer_load_dwordx4 v12, s[{S_C}:{S_C+3}], s{sT+3} offen lds")
    e(f"buffer_load_dwordx4 v12, s[{S_C}:{S_C+3}], s{sT+3} offen offset:1024 lds")
    slots()
    for ee in range(8):
        e(f"v_mul_u32_u24 v8, 26, v{PP+ee}")
        e(f"v_add_lshl_u32 v8, v8, v{QQ+ee}, 1")
        e(f"v_add_u32 v{GA+ee}, s{sT+6}, v8")
        e(f"v_mul_u32_u24 v9, 26, v{QQ+ee}")
        e(f"v_add_lshl_u32 v9, v9, v{PP+ee}, 1")
        e(f"v_add_u32 v{GB+ee}, s{sT+6}, v9")
    e("v_and_b32 v6, 62, v2")
    st_addr(44)
    m3(2)
    e("s_waitcnt lgkmcnt(0)")
    e("s_barrier")
    e("s_waitcnt vmcnt(0)")
    for ee in range(8):
        e(f"ds_read_u16 v{GA+ee}, v{GA+ee}")
        e(f"ds_read_u16 v{GB+ee}, v{GB+ee}")
    e("s_waitcnt lgkmcnt(0)")
    for ee in range(8):
        e(f"v_lshlrev_b32 v{GA+ee}, 16, v{GA+ee}")
        e(f"v_lshlrev_b32 v{GB+ee}, 16, v{GB+ee}")
        e(f"v_add_f32 v{VV+ee}, v{GA+ee}, v{GB+ee}")
    lab("L_aux_pack")
    srd(S_WS,P_WS,WS_SIZE); srd(S_A,P_DBG,256)
    e("v_cmp_eq_u32 vcc, 43, v2")
    for ee in range(8): e(f"v_mul_f32 v{VV+ee}, v{VV+ee}, v{94 if ee<5 else 95}")
    e(f"v_cndmask_b32 v{VV+7}, v{VV+7}, 0, vcc")
    for m in range(4): e(f"v_cvt_pk_bf16_f32 v{24+m}, v{VV+2*m}, v{VV+2*m+1}")
    e("ds_write_b128 v6, v[24:27]")
    e("v_lshlrev_b32 v8, 4, v0")
    e(f"s_movk_i32 s{sT+1}, 368")
    e(f"v_cmp_gt_u32 vcc, s{sT+1}, v0")
    e(f"s_lshr_b32 s{sT}, s{sI}, 2")
    e(f"s_mul_i32 s{sT+2}, s{sT}, 5888")
    e("v_cndmask_b32 v9, v7, v8, vcc")
    e("s_waitcnt lgkmcnt(0)")
    e("s_barrier")
    e(f"ds_read_b128 v[24:27], v8 offset:{STG}")
    e("s_waitcnt lgkmcnt(0)")
    e(f"buffer_store_dwordx4 v[24:27], v9, s[{S_WS}:{S_WS+3}], s{sT+2} offen sc0 sc1")
    st(96)
    e(f"s_lshl_b32 s{sT}, s{sT}, 2")
    e("v_mov_b32 v8, 1")
    e("s_waitcnt vmcnt(0)")
    e("s_barrier")
    e(f"s_cmp_lg_u32 s{sWAVE}, 0")
    e("s_cbranch_scc1 L_noflag")
    e("s_mov_b64 exec, 1")
    e(f"buffer_store_dword v8, off, s[{S_A}:{S_A+3}], s{sT} sc0 sc1")
    e("s_mov_b64 exec, -1")
    lab("L_noflag")
    if ST:
        st(98); e("s_waitcnt vmcnt(0)"); st(100,True)
        dump([10,92,94,96,98,100],1,2)
    e("s_branch L_aux_done")
    lab("L_prefetch")
    e("s_waitcnt lgkmcnt(0)")
    if opt.pf:
        srd(S_W,P_W,1664*3328)
        e(f"s_cmp_lt_u32 s{sXCD}, 4")
        e(f"s_cselect_b32 s{sT+2}, 27, 26")
        e(f"s_cmp_lt_u32 s{sXCD}, 3")
        e(f"s_cselect_b32 s{sT+2}, 28, s{sT+2}")
        e(f"s_sub_u32 s{sT}, s{sSLOT}, s{sT+2}")
        e(f"s_sub_u32 s{sT+2}, 32, s{sT+2}")
        e(f"s_mul_i32 s{sT+1}, s{sXCD}, 26")
        e(f"s_lshr_b32 s{sT+1}, s{sT+1}, 3")
        e(f"s_lshl_b32 s{sT+1}, s{sT+1}, 7")
        for u in range(4):
            e(f"v_add_u32 v3, {512*u}, v0")
            e(f"v_mul_u32_u24 v3, s{sT+2}, v3")
            e(f"v_add_u32 v3, s{sT}, v3")
            e("v_lshrrev_b32 v4, 2, v3")
            if opt.pskip: e(f"v_add_u32 v4, {opt.pskip}, v4")
            e("v_and_b32 v3, 3, v3")
            e(f"v_mul_u32_u24 v4, 3328, v4")
            e("v_lshl_add_u32 v3, v3, 7, v4")
            e(f"buffer_load_dword v{9+u}, v3, s[{S_W}:{S_W+3}], s{sT+1} offen")
        e(f"s_cmp_lg_u32 s{sSLOT}, 31")
        e("s_cbranch_scc1 L_aux_done")
        srd(S_B,P_W2,3328); srd(S_WS,P_WS,EPOCH+8192)
        e("v_lshlrev_b32 v3, 7, v0")
        e(f"buffer_load_dword v13, v3, s[{S_B}:{S_B+3}], 0 offen")
        e(f"s_mov_b32 s{sT}, {EPOCH}")
        e(f"buffer_load_dword v14, v3, s[{S_WS}:{S_WS+3}], s{sT} offen")
    lab("L_aux_done")
    e(f"s_cmp_lt_u32 s{sWAVE}, 4")
    e("s_cbranch_scc1 L_end")
    srd(S_TBL,P_TBL,128000); srd(S_IDX,P_IDX,106496)
    rowidx_load()
    e(f"v_mov_b32 v7, {FLAGS}")
    e("v_mov_b32 v8, 4")
    e("v_mov_b32 v9, 0")
    e(f"ds_write_b32 v7, v8 offset:{F_IT9}")
    e(f"ds_write_b32 v7, v8 offset:{F_PRE}")
    e(f"ds_write_b32 v7, v9 offset:{F_CW}")
    e(f"ds_write_b32 v7, v9 offset:{F_CW2}")
    e("s_waitcnt vmcnt(0)")
    e("v_lshlrev_b32 v29, 7, v29")
    x0_addrs()
    e("s_branch L_help_x0")
    lab("L_end")
    e("s_endpgm")
    L.append('.section .rodata,"a"'); L.append(".p2align 6"); L.append(f".amdhsa_kernel {KN}")
    for x in ["next_free_vgpr 256","next_free_sgpr 102","accum_offset 256","group_segment_fixed_size 0","kernarg_size 88",
              "user_sgpr_count 2","user_sgpr_kernarg_segment_ptr 1","system_sgpr_workgroup_id_x 1"]:
        L.append("  .amdhsa_"+x)
    L.append(".end_amdhsa_kernel")
    return "\n".join(L)+"\n"

if __name__=="__main__":
    ap=argparse.ArgumentParser()
    ap.add_argument("-o",default="k.s")
    for k,d in dict(atid=1,xsl=8,pskip=128,d2late=1,wper=4,its=0,sched=0,nog=0,not_=0,c2=0,noz=0,lateb=1,dly=4,pst=0,enc=0,encrole=0,encwg=0,encwave=0,nocin=0,gcyc=0,psleep=4,now=0,stamps=0,pf=1,cpf=1,prio=1,bound=20000,zsplit=14,zbar=17,nt0=10,tb=4444,wsched=0).items(): ap.add_argument("--"+k,type=int,default=d)
    opt=ap.parse_args()
    for t in range(512): assert (t*5042)>>16==t//13, t
    open(opt.o,"w").write(build(opt))
```

```python
import sys, argparse, math, struct

class Q:
    def __init__(s,cap): s.ops=[]; s.cap=cap; s.done=0
    def issue(s,name): s.ops.append(name)
    def need(s,*names):
        r=99
        for name in names:
            i=len(s.ops)-1-s.ops[::-1].index(name)
            r=min(r,len(s.ops)-1-i)
        r=min(r,s.cap)
        s.done=max(s.done,len(s.ops)-r)
        return r
    def pending(s,*names):
        return any(len(s.ops)-1-s.ops[::-1].index(n)>=s.done for n in names)

WIMG=0; GRAN=65536; EPOCH=0x50000; STAMP=0x100000; WS_SIZE=0x200000
STG=49152; RING=128000; FLAGS=160768; CINW=81920
F_IT9,F_RED,F_CW,F_PRE,F_CW2=0,4,8,12,16
C1=-2*math.sqrt(2/math.pi)*math.log2(math.e); C2=C1*0.044715
def f2u(x): return struct.unpack('<I',struct.pack('<f',x))[0]
KN="standalone__deep_cross_xdeepfm__recsys_kernel"

sWAVE,sXCD,sSLOT,sCB,sRB=3,4,5,7,8
P_IDX,P_TBL,P_CIN,P_WOUT,P_W,P_B1,P_W2,P_BO=16,18,20,22,24,26,28,30
P_OUT,P_DBG,P_WS=32,34,36
S_IDX,S_TBL,S_W,S_WS,S_A,S_B=40,44,48,52,56,60
sRING,sWR1,sWR2,sTM=64,65,15,14
sT=66

def pair_of(n):
    if n<169: dlt,m=divmod(n,13)
    else: dlt,m=13,n-169
    r=2*m
    return r,(r+dlt)%26

def build(opt):
    L=[]
    cnt=[0]; lastw={}
    def e(x):
        L.append("    "+x)
        cnt[0]+= (int(x.split()[1])+1) if x.startswith("s_nop") else 1
    def hz(key,n):
        d=cnt[0]-lastw[key]
        if d<n: e(f"s_nop {n-d-1}")
    def lab(x): L.append(x+":")
    def cm(x): L.append("    ; "+x)
    E=lambda x:(lambda: e(x))
    ST=opt.stamps
    def srd(d,p,size):
        e(f"s_mov_b32 s{d}, s{p}"); e(f"s_mov_b32 s{d+1}, s{p+1}")
        e(f"s_mov_b32 s{d+2}, {size}"); e(f"s_mov_b32 s{d+3}, 0x20000")
    def st(r,wait=False):
        if ST:
            e(f"s_memrealtime s[{r}:{r+1}]")
            if wait: e("s_waitcnt lgkmcnt(0)")
    def dump(regs,area=0,role=0):
        if opt.enc:
            delay(regs,role); return
        dump_(regs,area)
    dl=[0]
    def delay(regs,role):
        dl[0]+=1; n=dl[0]
        e("s_mov_b64 exec, -1")
        e("s_waitcnt lgkmcnt(0)")
        if opt.enc==99:
            if role!=1: return
            srd(S_A,P_DBG,256)
            e("s_not_b32 s12, s10")
            e("v_mov_b32 v244, s12")
            e(f"v_mov_b32 v245, s{regs[10]}")
            e("v_mov_b32 v246, 1")
            e("s_mov_b64 exec, 1")
            e(f"buffer_atomic_umax v244, off, s[{S_A}:{S_A+3}], 0 offset:240 sc1")
            e(f"buffer_atomic_umax v245, off, s[{S_A}:{S_A+3}], 0 offset:244 sc1")
            e("s_waitcnt vmcnt(0)")
            e(f"buffer_atomic_add v246, off, s[{S_A}:{S_A+3}], 0 offset:248 sc0 sc1")
            e("s_waitcnt vmcnt(0)")
            e("v_readfirstlane_b32 s12, v246")
            e("s_cmp_lg_u32 s12, 1023")
            e(f"s_cbranch_scc1 L_dly{n}_x")
            e(f"buffer_load_dwordx2 v[244:245], off, s[{S_A}:{S_A+3}], 0 offset:240 sc1")
            e("s_waitcnt vmcnt(0)")
            e("v_readfirstlane_b32 s12, v244")
            e("v_readfirstlane_b32 s13, v245")
            e("s_not_b32 s12, s12")
            e("s_sub_u32 s12, s13, s12")
        else:
            if role!=opt.encrole: return
            e(f"s_cmp_lg_u32 s2, {opt.encwg}")
            e(f"s_cbranch_scc1 L_dly{n}_x")
            e(f"s_cmp_lg_u32 s{sWAVE}, {opt.encwave}")
            e(f"s_cbranch_scc1 L_dly{n}_x")
            e(f"s_sub_u32 s12, s{regs[opt.enc]}, s10")
        e("s_mul_i32 s12, s12, 100")
        e("s_memrealtime s[66:67]")
        e("s_waitcnt lgkmcnt(0)")
        e("s_add_u32 s12, s12, s66")
        lab(f"L_dly{n}")
        e("s_sleep 8")
        e("s_memrealtime s[66:67]")
        e("s_waitcnt lgkmcnt(0)")
        e("s_sub_u32 s13, s66, s12")
        e("s_cmp_lt_i32 s13, 0")
        e(f"s_cbranch_scc1 L_dly{n}")
        lab(f"L_dly{n}_x")
        e("s_mov_b64 exec, -1")
    def dump_(regs,area=0):
        e("s_mov_b64 exec, -1")
        e("s_waitcnt lgkmcnt(0)")
        e("s_lshl_b32 s12, s2, 3")
        e(f"s_add_u32 s12, s12, s{sWAVE}")
        e("s_lshl_b32 s12, s12, 6")
        e(f"s_add_u32 s12, s12, {STAMP+area*0x40000}")
        regs=list(regs)+[regs[0]]*(12-len(regs))
        for i,r in enumerate(regs): e(f"v_mov_b32 v{244+i}, s{r}")
        e("s_mov_b64 exec, 1")
        for i in range(3):
            e(f"buffer_store_dwordx4 v[{244+4*i}:{247+4*i}], off, s[{S_WS}:{S_WS+3}], s12 offset:{16*i}")
        e("s_mov_b64 exec, -1")
    def lds_spin(name,vaddr,vtmp,off,target,sleep=0):
        e(f"s_mov_b32 s{sT+4}, {opt.bound*8}")
        lab(name)
        e(f"ds_read_b32 v{vtmp}, v{vaddr} offset:{off}")
        e("s_waitcnt lgkmcnt(0)")
        e(f"v_readfirstlane_b32 s{sT+5}, v{vtmp}")
        e(f"s_cmp_ge_u32 s{sT+5}, {target}")
        e(f"s_cbranch_scc1 {name}_x")
        if sleep: e(f"s_sleep {sleep}")
        e(f"s_sub_u32 s{sT+4}, s{sT+4}, 1")
        e(f"s_cbranch_scc0 {name}")
        lab(name+"_x")

    IV=16; IA=24
    def rec_addrs():
        e(f"s_lshl_b32 s{sT+5}, s{sT}, 7")
        e(f"s_add_u32 s{sT+5}, s{sT+5}, {RING+4096}")
        e(f"v_lshl_add_u32 v7, v7, 3, s{sT+5}")
        e("v_mul_u32_u24 v9, 7, v8")
        e("v_and_b32 v8, 1, v8")
        for par in range(2):
            d=IA+2*par
            if par:
                e("v_xor_b32 v8, 1, v8"); e("v_add_u32 v9, 1, v9")
            e("v_lshrrev_b32 v10, 1, v9")
            e(f"v_lshl_add_u32 v{d}, v10, 8, v7")
            e(f"v_lshl_add_u32 v{d}, v8, 14, v{d}")
            e("v_lshlrev_b32 v10, 1, v8")
            e(f"v_xor_b32 v10, s{sT+2}, v10")
            e(f"v_lshl_add_u32 v{d}, v10, 1, v{d}")
            e(f"v_xor_b32 v{d+1}, 2, v{d}")
            e(f"v_add_u32 v{d+1}, 8192, v{d+1}")
    sROW=6; sE=38
    def rowidx_load():
        e(f"s_sub_u32 s{sT+6}, s{sWAVE}, 4")
        if opt.rowx:
            e(f"s_lshl2_add_u32 s{sROW}, s{sSLOT}, s{sT+6}")
            e(f"s_lshl_b32 s{sT+6}, s{sXCD}, 7")
            e(f"s_add_u32 s{sROW}, s{sROW}, s{sT+6}")
        else: e(f"s_lshl2_add_u32 s{sROW}, s2, s{sT+6}")
        e(f"s_mul_i32 s{sT+6}, s{sROW}, 104")
        e("v_lshlrev_b32 v30, 2, v2")
        e(f"buffer_load_dword v29, v30, s[{S_IDX}:{S_IDX+3}], s{sT+6} offen")
    L.append("; @launch grid=(256,1,1) block=(512,1,1) lds=163840")
    L.append('.amdgcn_target "amdgcn-amd-amdhsa--gfx950"')
    L.append(".text"); L.append(f".globl {KN}"); L.append(".p2align 8"); L.append(f".type {KN},@function")
    lab(KN)
    e("s_load_dwordx16 s[16:31], s[0:1], 0")
    e("s_load_dwordx4 s[32:35], s[0:1], 64")
    e("s_load_dwordx2 s[36:37], s[0:1], 80")
    st(10)
    e("s_cmp_ge_u32 s2, 256")
    e("s_cbranch_scc1 L_end")
    e("v_lshrrev_b32 v1, 6, v0")
    e("v_and_b32 v2, 63, v0")
    e(f"v_readfirstlane_b32 s{sWAVE}, v1")
    e(f"s_and_b32 s{sXCD}, s2, 7")
    e(f"s_lshr_b32 s{sSLOT}, s2, 3")
    e(f"s_cmp_ge_u32 s{sSLOT}, 26")
    e("s_cbranch_scc1 L_aux")
    e(f"s_mul_i32 s6, s{sXCD}, 26")
    e(f"s_add_u32 s6, s6, s{sSLOT}")
    e(f"s_lshr_b32 s{sCB}, s6, 3")
    e(f"s_and_b32 s{sRB}, s6, 7")
    e(f"v_mov_b32 v7, {FLAGS}")
    e("v_mov_b32 v8, 0"); e("v_mov_b32 v9, 0")
    e("ds_write2_b64 v7, v[8:9], v[8:9] offset1:1")
    e("ds_write_b64 v7, v[8:9] offset:16")
    e("v_lshrrev_b32 v3, 3, v2")
    e("v_lshrrev_b32 v4, 4, v2")
    e("v_and_b32 v10, 7, v2")
    e(f"s_mov_b32 s{S_IDX+2}, 106496"); e(f"s_mov_b32 s{S_IDX+3}, 0x20000")
    e(f"s_and_b32 s{sT}, s{sWAVE}, 1")
    e(f"s_lshl_b32 s{sT+1}, s{sT}, 2")
    e("v_xor_b32 v5, v10, v4")
    e(f"v_xor_b32 v5, s{sT+1}, v5")
    e("v_lshlrev_b32 v5, 4, v5")
    e("v_lshl_add_u32 v5, v3, 7, v5")
    e(f"s_lshr_b32 s{sT+2}, s{sWAVE}, 1")
    e(f"s_lshl1_add_u32 s{sT+3}, s{sSLOT}, s{sT+2}")
    e(f"s_lshl_b32 s{sT+3}, s{sT+3}, 11")
    e(f"s_lshl_b32 s{sT+4}, s{sT}, 10")
    e(f"s_add_u32 s{sTM}, s{sT+3}, s{sT+4}")
    e(f"s_lshl_b32 s{sT+3}, s{sT}, 11")
    e(f"s_sub_u32 s{sWR2}, {63*2048}, s{sT+3}")
    e(f"s_add_u32 s{sWR1}, s{sWR2}, s{sT+4}")
    e(f"s_mov_b32 s{S_TBL+2}, 128000"); e(f"s_mov_b32 s{S_TBL+3}, 0x20000")
    e(f"s_cmp_ge_u32 s{sWAVE}, 4")
    e("s_cbranch_scc1 L_help_pro")
    def tbl(n,vm):
        for t in range(n):
            e(f"s_mov_b32 m0, s{sTM}")
            e(f"s_add_u32 s{sTM}, s{sTM}, 8192")
            e(f"buffer_load_dwordx4 v5, s[{S_TBL}:{S_TBL+3}], m0 offen lds"); vm.issue("tbl")
            e(f"s_cmp_ge_u32 s{sTM}, s{sWR1}")
            e(f"s_cselect_b32 s{sT+5}, s{sWR2}, 0")
            e(f"s_sub_u32 s{sTM}, s{sTM}, s{sT+5}")

    vW,vT0,vT1=1,3,4
    AD=8; AF=16; F0=48; REC=80; ACC=128
    acc=lambda lt,ct: ACC+(lt*2+ct)*16
    Fr=lambda j,ks,ct: F0+(j&1)*16+(ks*2+ct)*4
    vm=Q(63); lg=Q(15)
    cm("---- DNN wave prologue ----")
    e("v_lshlrev_b32 v6, 4, v2")
    e(f"s_mul_i32 s{sT+4}, s{sRB}, 13312")
    e(f"s_mul_i32 s{sT+5}, s{sWAVE}, 3328")
    e(f"s_add_u32 s{sT+4}, s{sT+4}, s{sT+5}")
    e(f"s_lshl_b32 s{sRING}, s{sWAVE}, 13")
    e(f"s_add_u32 s{sRING}, s{sRING}, {RING}")
    e(f"s_add_u32 m0, s{sRING}, 4096")
    e(f"s_lshl_b32 s{sT+7}, s{sWAVE}, 5")
    e(f"v_add_u32 v9, s{sT+7}, v3")
    e("v_mul_u32_u24 v9, 3328, v9")
    e("v_lshlrev_b32 v11, 2, v4")
    e("v_and_b32 v11, 4, v11")
    e("v_xor_b32 v11, v11, v10")
    e("v_lshl_add_u32 v1, v11, 4, v9")
    e(f"s_lshl_b32 s{sT+7}, s{sCB}, 7")
    e(f"v_add_u32 v1, s{sT+7}, v1")
    e("v_lshrrev_b32 v12, 5, v2")
    e(f"v_lshl_add_u32 v11, v12, 5, s{sT+7}")
    e("s_waitcnt lgkmcnt(0)")
    if opt.pst: st(84)
    e(f"s_mov_b64 s[{S_IDX}:{S_IDX+1}], s[{P_IDX}:{P_IDX+1}]")
    e(f"s_mov_b64 s[{S_TBL}:{S_TBL+1}], s[{P_TBL}:{P_TBL+1}]")
    for i in range(4):
        if i==3: e("s_mov_b64 exec, 0xffff")
        e(f"buffer_load_dwordx4 v6, s[{S_IDX}:{S_IDX+3}], s{sT+4} offen offset:{1024*i} lds"); vm.issue(f"idx{i}")
    e("s_mov_b64 exec, -1")
    srd(S_W,P_W,1664*3328)
    srd(S_A,P_B1,3328)
    for pc in range(4):
        e(f"s_add_u32 m0, s{sRING}, {pc*1024}")
        e(f"s_mov_b32 s12, {8*pc*3328}")
        e(f"buffer_load_dwordx4 v1, s[{S_W}:{S_W+3}], s12 offen lds"); vm.issue(f"w0_{pc}")
    def bias_loads():
        for i in range(4):
            e(f"buffer_load_dwordx4 v[{106+4*i}:{109+4*i}], v{VB}, s[{S_A}:{S_A+3}], 0 offen offset:{(i>>1)*64+(i&1)*16}"); vm.issue(f"bias{i}")
    VB=6
    e("v_mov_b32 v6, v11")
    TB=[int(c,16) for c in str(opt.tb)]
    tbl(TB[0],vm)
    if opt.pst: st(86)
    e("v_and_b32 v13, 31, v2")
    e("v_mul_u32_u24 v13, 104, v13")
    e(f"s_lshl2_add_u32 s{sT+5}, s{sT+2}, {RING+4096}")
    e(f"v_add_u32 v13, s{sT+5}, v13")
    e("v_lshlrev_b32 v9, 1, v12")
    e(f"v_xor_b32 v9, s{sWAVE}, v9")
    e("v_lshl_add_u32 v24, v9, 13, v13")
    e("v_xor_b32 v9, 1, v9")
    e("v_lshl_add_u32 v25, v9, 13, v13")
    e("v_and_b32 v26, 31, v2")
    e("v_mul_u32_u24 v26, 104, v26")
    e(f"v_add_u32 v26, s{sRING}, v26")
    e("v_add_u32 v26, 4096, v26")
    e("v_bfe_u32 v9, v2, 2, 2")
    e("v_lshlrev_b32 v3, 7, v9")
    e("v_lshl_add_u32 v3, v12, 10, v3")
    e("v_lshrrev_b32 v9, 1, v9")
    e("v_lshl_add_u32 v3, v9, 6, v3")
    e("v_and_b32 v9, 1, v2")
    e("v_lshl_add_u32 v3, v9, 5, v3")
    e("v_bfe_u32 v9, v2, 1, 1")
    e("v_lshl_add_u32 v3, v9, 3, v3")
    e("v_and_b32 v9, 1, v4")
    e("v_lshl_add_u32 v3, v9, 4, v3")
    e(f"v_add_u32 v3, s{sRING}, v3")
    e("v_xor_b32 v4, 64, v3")
    e(f"v_add_u32 v14, s{sT+1}, v12")
    e("v_lshl_or_b32 v14, v14, 16, v14")
    e(f"s_mov_b32 s{sT+6}, 0x00070007")
    e(f"s_waitcnt vmcnt({vm.need('idx3')})")
    if opt.pst: st(88)
    def lds_inc(va,off):
        e("v_mov_b32 v0, 1")
        e("s_mov_b64 exec, 1")
        e(f"ds_add_u32 v{va}, v0 offset:{off}")
        e("s_mov_b64 exec, -1")
    e("s_barrier")
    if opt.pst: st(90)
    sWO=12
    def dma(j,pcs):
        for pc in pcs:
            if opt.now and j>=3:
                vm.ops.insert(0,f"w{j}_{pc}"); continue
            e(f"s_add_u32 m0, s{sRING}, {((j&1)*4+pc)*1024}")
            e(f"s_mov_b32 s{sWO}, {(128*j+8*pc)*3328}")
            e(f"buffer_load_dwordx4 v{vW}, s[{S_W}:{S_W+3}], s{sWO} offen lds"); vm.issue(f"w{j}_{pc}")
    BI=106
    RW=lambda t,j: 160+t*14+j
    RECX=104
    for j in range(0,12,2):
        for t in range(2):
            e(f"ds_read2_b32 v[{RW(t,j)}:{RW(t,j)+1}], v{24+t} offset0:{2*j} offset1:{2*j+2}")
    e("ds_read_b64 v[190:191], v26 offset:96")
    tbl(TB[1],vm)
    srd(S_WS,P_WS,WS_SIZE)
    srd(S_B,P_W2,3328)
    e("s_waitcnt lgkmcnt(0)")
    e("s_barrier")
    st(76)
    tbl(TB[2],vm)
    for j in range(13):
        if j==6: tbl(TB[3],vm)
        d=REC+2*j
        if j<12: e(f"v_lshl_or_b32 v{d}, v{RW(1,j)}, 16, v{RW(0,j)}")
        else:    e(f"v_lshl_or_b32 v{d}, v191, 16, v190")
        e(f"v_lshrrev_b32 v13, 1, v{d}")
        e(f"v_and_b32 v13, s{sT+6}, v13")
        e(f"v_lshl_or_b32 v{d}, v{d}, 3, v13")
        if j<12: e(f"v_mov_b32 v{d+1}, v{d}")
        if j:
            e(f"v_permlane32_swap_b32 v{d-2}, v{d-1}")
            e(f"v_xor_b32 v{d-2}, v14, v{d-2}"); e(f"v_xor_b32 v{d-1}, v14, v{d-1}")
    e("v_lshl_or_b32 v13, v12, 16, v12")
    e(f"v_xor_b32 v{RECX}, v13, v{RECX}")
    afr=lambda lt,ks: AF+8*lt+4*ks
    XF={0:80,1:88,2:afr(1,0),3:afr(2,0)}
    FX={0:[F0,F0+4,F0+8,F0+12],1:[8,12,40,44],2:[F0+16,F0+20,F0+24,F0+28],3:[F0,F0+4,F0+8,F0+12]}
    def adr(lt,j):
        e(f"v_lshlrev_b32_sdwa v{AD+2*lt}, 4, v{REC+2*j+(lt>>1)} dst_sel:DWORD dst_unused:UNUSED_PAD src0_sel:DWORD src1_sel:WORD_{lt&1}")
        e(f"v_xor_b32 v{AD+2*lt+1}, 32, v{AD+2*lt}")
    def Rop(lt,j):
        for ks in range(2):
            e(f"ds_read_b128 v[{afr(lt,ks)}:{afr(lt,ks)+3}], v{AD+2*lt+ks}"); lg.issue(f"R{lt}_{ks}_{j}")
    def adrX(c,a):
        e(f"v_lshlrev_b32_sdwa v{a}, 4, v{RECX} dst_sel:DWORD dst_unused:UNUSED_PAD src0_sel:DWORD src1_sel:WORD_{c>>1}")
        if c&1: e(f"v_xor_b32 v{a}, 64, v{a}")
        e(f"v_xor_b32 v{a+1}, 32, v{a}")
    def RX(c,a):
        for ks in range(2):
            e(f"ds_read_b128 v[{XF[c]+4*ks}:{XF[c]+4*ks+3}], v{a+ks}"); lg.issue(f"X{c}_{ks}")
    def Top(j,ks):
        for ct in range(2):
            for h4 in range(2):
                d=Fr(j,ks,ct)+2*h4
                e(f"ds_read_b64_tr_b16 v[{d}:{d+1}], v{vT0+ct} offset:{((j&1)*4+ks*2)*1024+h4*512}"); lg.issue(f"T{j}_{ks}_{ct}{h4}")
    def TX(c):
        for ks in range(2):
            for ct in range(2):
                for h4 in range(2):
                    d=FX[c][ks*2+ct]+2*h4
                    e(f"ds_read_b64_tr_b16 v[{d}:{d+1}], v{vT0+ct} offset:{c*8192+ks*2048+h4*512}"); lg.issue(f"TX{c}")
    for lt in range(4): adr(lt,0)
    if ST: e("s_waitcnt lgkmcnt(0)")
    e(f"s_waitcnt vmcnt({vm.need('w0_3')})")
    Top(0,0); Top(0,1)
    tbl(16-sum(TB),vm)
    dma(1,range(4))
    e("s_waitcnt lgkmcnt(0)")
    if not opt.d2late: dma(2,range(4))
    if opt.pst: st(92)
    e(f"s_waitcnt vmcnt({vm.need('tbl')})")
    st(78)
    e("s_barrier")
    st(80,True)
    if ST: e("s_memtime s[96:97]"); e("s_waitcnt lgkmcnt(0)")
    if opt.prio: e(f"s_setprio {opt.prio}")
    Rop(1,0); Rop(2,0); Rop(3,0); Rop(0,0)
    def group(lt,fa,xa,first,fills):
        for i,(ks,ct) in enumerate([(0,0),(0,1),(1,0),(1,1)]):
            c=f"v[{acc(lt,ct)}:{acc(lt,ct)+15}]"
            src="0" if (first and ks==0) else c
            e(f"v_mfma_f32_32x32x16_bf16 {c}, v[{fa[ks*2+ct]}:{fa[ks*2+ct]+3}], v[{xa+4*ks}:{xa+4*ks+3}], {src}")
            lastw[(lt,ct)]=cnt[0]
            for f in fills[i]: f()
    LT=[1,2,3,0]
    W2P=106; EV=122; VR=124; WA=125; RA1,RA2=5,6; sM=[0,sT+7,sT+8,13]
    WA0=105; RA0=127
    def addrs():
        e(f"s_xor_b32 s{sM[1]}, s{sWAVE}, 1")
        e(f"s_lshl_b32 s{sT}, s{sM[1]}, 13")
        e(f"s_add_u32 s{sT}, s{sT}, {RING}")
        e(f"v_lshlrev_b32 v{RA1}, 4, v2")
        e(f"v_add_u32 v{RA0}, s{sT}, v{RA1}")
        e(f"v_add_u32 v{WA0}, s{sRING}, v{RA1}")
    def addrs2():
        e(f"s_lshl_b32 s{sM[1]}, s{sM[1]}, 12")
        e(f"v_add_u32 v{WA}, s{sM[1]}, v{RA1}")
        e(f"s_xor_b32 s{sT}, s{sWAVE}, 2")
        e(f"s_lshl_b32 s{sT}, s{sT}, 13")
        e(f"v_add_u32 v{WA+1}, s{sT}, v{RA1}")
    def addrs3():
        e(f"s_lshl_b32 s{sT}, s{sWAVE}, 12")
        e(f"v_add_u32 v{RA2}, s{sT}, v{RA1}")
        e(f"s_lshl_b32 s{sT}, s{sWAVE}, 13")
        e(f"s_add_u32 s{sT}, s{sT}, 16384")
        e(f"v_add_u32 v{RA1}, s{sT}, v{RA1}")
    def late1():
        e(f"s_lshl_b32 s{sT}, s{sCB}, 7")
        e(f"v_lshrrev_b32 v{VR}, 5, v2")
        e(f"v_lshl_add_u32 v{VR}, v{VR}, 5, s{sT}")
    def late2(i):
        e(f"buffer_load_dwordx4 v[{W2P+4*i}:{W2P+4*i+3}], v{VR}, s[{S_B}:{S_B+3}], 0 offen offset:{(i>>1)*64+(i&1)*16}"); vm.issue(f"w2_{i}")
    def late3():
        e(f"v_and_b32 v{VR}, 31, v2")
        e(f"s_lshl_b32 s{sT}, s{sRB}, 7")
        e(f"s_lshl_b32 s{sT+1}, s{sWAVE}, 5")
        e(f"s_add_u32 s{sT}, s{sT}, s{sT+1}")
        e(f"v_add_lshl_u32 v{VR}, v{VR}, s{sT}, 3")
    def late4():
        e(f"s_mov_b32 s{sT+2}, {EPOCH}")
        e(f"buffer_load_dwordx2 v[{EV}:{EV+1}], v{VR}, s[{S_WS}:{S_WS+3}], s{sT+2} offen"); vm.issue("ev")
    def badd(ct,t):
        src=BI+ct*8+(t>>1)
        if t&1: e(f"v_and_b32 v0, 0xffff0000, v{src}")
        else:   e(f"v_lshlrev_b32 v0, 16, v{src}")
        hz((0,ct),12)
        e(f"v_add_f32 v{acc(0,ct)+t}, v{acc(0,ct)+t}, v0")
    def wv(n): return lambda n=n: (e(f"s_waitcnt vmcnt({vm.need(n)})") if vm.pending(n) else None)
    def wl(n): return lambda n=n: (e(f"s_waitcnt lgkmcnt({lg.need(n)})") if lg.pending(n) else None)
    ITS={1:76,2:78,3:80,5:82,7:84,9:86,10:88,11:90}
    for j in range(12):
        cm(f"---- iteration {j} ----")
        if opt.its==1 and j in ITS: e(f"s_memtime s[{ITS[j]}:{ITS[j]+1}]")
        if opt.its and j==11: opt.pst=1
        for g,lt in enumerate(LT):
            if j==11 and g==3: break
            needs=[f"R{lt}_1_{j}"]+([f"T{j}_1_11"] if g==0 else [])
            if lg.pending(*needs): e(f"s_waitcnt lgkmcnt({lg.need(*needs)})")
            if opt.its==2 and j<2: e(f"s_memtime s[{76+2*(4*j+g)}:{77+2*(4*j+g)}]")
            if opt.its==3 and j>=10: e(f"s_memtime s[{76+2*(4*(j-10)+g)}:{77+2*(4*(j-10)+g)}]")
            fills=[[],[],[],[]]
            if j==0:
                if g==0:
                    if opt.d2late:
                        for i in range(4): fills[i].append(lambda i=i: dma(2,[i]))
                if g==1: fills[0].append(bias_loads)
                if g>=2: fills[0]+= [wv(f'w1_{2*(g-2)+1}'),lambda g=g: Top(1,g-2)]
            elif j<11:
                if j==1 and g<2:
                    fills[1].append(lambda g=g: dma(3,[2*g])); fills[2].append(lambda g=g: dma(3,[2*g+1]))
                if g<2: fills[0]+= [wv(f'w{j+1}_{2*g+1}'),lambda j=j,g=g: Top(j+1,g)]
                elif j+3<13:
                    fills[0]+= [wl(f'T{j+1}_{g-2}_11'),lambda j=j,g=g: dma(j+3,[2*(g-2)])]
                    fills[1].append(lambda j=j,g=g: dma(j+3,[2*(g-2)+1]))
            if j<11:
                fills[2].append(lambda j=j,lt=lt: adr(lt,j+1))
                fills[3].append(lambda j=j,lt=lt: Rop(lt,j+1))
            if j in (3,4,5,6) and g in (1,2):
                ct=(j-3)>>1; t0=((j-3)&1)*8+(g-1)*4
                if g==1 and j==3: fills[1].append(wv('bias3'))
                for i,ts in ((1,(0,1)),(2,(2,)),(3 if g==1 else 2,(3,))):
                    fills[i]+= [(lambda t=t0+t,ct=ct: badd(ct,t)) for t in ts]
            if j==9 and g==0: fills[1].append(addrs)
            if j==9 and g==1: fills[1].append(addrs2); fills[2].append(addrs3)
            if j==9 and g==3:
                fills[2].append(E("v_mov_b32 v0, 1")); fills[3].append(lambda: (e(f"ds_write_b32 v7, v0 offset:{F_IT9}"),lg.issue("it9")))
            if j==10 and g==0: fills[1].append(late1); fills[2].append(lambda: late2(0))
            if j==10 and g==1: fills[1].append(lambda: late2(1)); fills[2].append(lambda: late2(2))
            if j==10 and g==2: fills[2].append(lambda: late2(3))
            if j==10 and g==3: fills[0].append(late3); fills[1].append(late4)
            if j==11 and g>=1:
                qs={1:[(1,0),(3,1)],2:[(0,2),(2,3)]}[g]
                for i,q in qs: fills[i].append(lambda q=q: (hz((1,0),12),e(f"ds_write_b128 v{WA0}, v[{acc(1,0)+4*q}:{acc(1,0)+4*q+3}] offset:{4096+q*1024}"),lg.issue("W")))
            if j==10 and g==2: fills[0].append(lambda: adrX(0,AD+2)); fills[1].append(lambda: RX(0,AD+2))
            if j==11 and g==0:
                fills[0].append(lambda: (adrX(1,AD),RX(1,AD))); fills[2].append(lambda: adrX(2,AD+2)); fills[3].append(lambda: RX(2,AD+2))
            if j==11 and g==1:
                fills[0].append(lambda: (e(f"s_lshl_b32 s{sT}, s{sWAVE}, 13"),e(f"v_subrev_u32 v{vT0}, s{sT}, v{vT0}"),e(f"v_subrev_u32 v{vT1}, s{sT}, v{vT1}")))
                fills[2].append(lambda: adrX(3,AD+4)); fills[3].append(lambda: RX(3,AD+4))
            group(lt,[Fr(j,ks,ct) for ks in range(2) for ct in range(2)],afr(lt,0),j==0,fills)
    cm("---- last K chunk set: own tile only, partial tiles go out meanwhile ----")
    e(f"s_waitcnt vmcnt({vm.need('w12_3')}) lgkmcnt(0)"); lg.done=len(lg.ops)
    if opt.its: e("s_memtime s[92:93]")
    if not opt.pst: st(82)
    e("s_barrier")
    if not opt.pst: st(84)
    TX(0); TX(1)
    wrs=[]
    def w1(lt,q,va,off): return lambda: (hz((lt,q>>2),12),e(f"ds_write_b128 v{va}, v[{acc(lt,0)+4*q}:{acc(lt,0)+4*q+3}] offset:{off}"),lg.issue("W"))
    WA3=104
    def inc(off,nm):
        def f():
            e("s_mov_b64 exec, 1")
            e(f"ds_add_u32 v7, v0 offset:{off}"); lg.issue(nm)
            e("s_mov_b64 exec, -1")
        return f
    e(f"v_xor_b32 v{WA3}, 8192, v{WA+1}")
    e("v_mov_b32 v0, 1")
    wrs+=[w1(2,q,WA+1,16384+q*1024) for q in range(4)]
    wrs+=[w1(3,q,WA3,49152+q*1024) for q in range(4)]
    wrs+=[inc(F_RED,"incA")]
    wrs+=[w1(1,q,WA,(q-4)*1024) for q in range(4,8)]
    wrs+=[w1(2,q,WA+1,16384+q*1024) for q in range(4,8)]
    wrs+=[w1(3,q,WA3,49152+q*1024) for q in range(4,8)]
    wrs+=[inc(F_PRE,"incB")]
    W2F=list(range(96,104))+list(range(16,24))+list(range(8,16))+list(range(40,48))
    unp=[]
    for t in range(32):
        src=W2P+(t>>1)
        unp.append(E(f"v_and_b32 v{W2F[t]}, 0xffff0000, v{src}" if t&1 else f"v_lshlrev_b32 v{W2F[t]}, 16, v{src}"))
    per=opt.wper
    for gi in range(5):
        c=gi-1
        fills=[[],[],[],[]]
        if gi>0 and lg.pending(f"TX{c}"): e(f"s_waitcnt lgkmcnt({lg.need(f'TX{c}')})")
        for i in range(4):
            n=(1 if (i<3 or gi%2) else 0) if gi<opt.wstop else 0
            if gi in (0,1) and i==3: fills[i].append(lambda c=gi+2: TX(c))
            fills[i]+=wrs[:n]; wrs=wrs[n:]
            if gi==1 and i==0: fills[i].append(lambda: e("s_waitcnt vmcnt(0)"))
            if gi==1 or gi==2: fills[i]+=unp[:2]; unp=unp[2:]
            if gi>=3: fills[i]+=unp[:2]; unp=unp[2:]
        if gi==0: group(0,[Fr(11,ks,ct) for ks in range(2) for ct in range(2)],afr(0,0),False,fills)
        else: group(0,FX[c],XF[c],False,fills)
    if not opt.pst: st(86)
    if ST: e("s_memtime s[98:99]")
    vC1=F0+16; S0=F0+17; S1=F0+18
    e(f"s_mov_b32 s{sT+2}, {f2u(C2)}")
    e(f"v_mov_b32 v{vC1}, {f2u(C1)}")
    e(f"v_mov_b32 v{S0}, 0"); e(f"v_mov_b32 v{S1}, 0")
    nrest=opt.wrest
    k=max(0,len(wrs)-nrest)
    for f in wrs[:k]: f()
    wrs=wrs[k:]
    lds_spin("L_red",7,F0+20,F_RED,4)
    if not opt.pst: st(88,True)
    if ST and opt.gcyc: e("s_memtime s[96:97]"); e("s_waitcnt lgkmcnt(0)")
    lg=Q(15)
    part=lambda sl,q: acc(sl+1,q>>2)+4*(q&3)
    def rdp(q):
        for sl in range(3):
            if sl==0: a,off=(RA0,4096+q*1024) if q<4 else (RA2,(q-4)*1024)
            else: a,off=RA1,(sl-1)*32768+q*1024
            e(f"ds_read_b128 v[{part(sl,q)}:{part(sl,q)+3}], v{a} offset:{off}"); lg.issue(f"p{sl}_{q}")
    for q in range(4): rdp(q)
    T=F0
    for q in range(8):
        if q==opt.bq:
            for f in wrs: f()
            wrs=[]
            lds_spin("L_red2",7,F0+20,F_PRE,4); lg.done=len(lg.ops)
            for q2 in range(4,8): rdp(q2)
        if lg.pending(f'p2_{q}'): e(f"s_waitcnt lgkmcnt({lg.need(f'p2_{q}')})")
        a=ACC+4*q
        if q==0: hz((0,0),12)
        def W():
            if wrs: wrs.pop(0)()
        for r in range(4): e(f"v_add_f32 v{a+r}, v{a+r}, v{part(0,q)+r}")
        for r in range(4): e(f"v_add_f32 v{part(1,q)+r}, v{part(1,q)+r}, v{part(2,q)+r}")
        W()
        for r in range(4): e(f"v_add_f32 v{a+r}, v{a+r}, v{part(1,q)+r}")
        for r in range(4): e(f"v_mul_f32 v{T+r}, v{a+r}, v{a+r}")
        for r in range(4): e(f"v_fma_f32 v{T+r}, v{T+r}, s{sT+2}, v{vC1}")
        W()
        for r in range(4): e(f"v_mul_f32 v{T+r}, v{T+r}, v{a+r}")
        for r in range(4): e(f"v_exp_f32 v{T+r}, v{T+r}")
        W()
        for r in range(4): e(f"v_mul_f32 v{a+r}, v{a+r}, v{W2F[4*q+r]}")
        for r in range(4): e(f"v_add_f32 v{T+r}, 1.0, v{T+r}")
        for r in range(4): e(f"v_rcp_f32 v{T+r}, v{T+r}")
        if wrs: W()
        else: e("s_nop 0")
        for r in range(4): e(f"v_fmac_f32 v{S0+(r&1)}, v{a+r}, v{T+r}")
    e(f"v_add_f32 v{S0}, v{S0}, v{S1}")
    e(f"v_mov_b32 v{S1}, v{S0}")
    e(f"s_movk_i32 s{sT}, 0xff")
    e(f"v_add_u32 v{EV}, 1, v{EV}")
    e(f"v_permlane32_swap_b32 v{S0}, v{S1}")
    e(f"s_lshl_b32 s{sT+1}, s{sCB}, 13")
    e(f"v_add_f32 v{S0}, v{S0}, v{S1}")
    e(f"s_add_u32 s{sT+1}, s{sT+1}, {GRAN}")
    e(f"v_bfi_b32 v{EV+1}, s{sT}, v{EV+1}, v{S0}")
    e(f"s_mov_b32 exec_hi, 0")
    e(f"buffer_store_dwordx2 v[{EV}:{EV+1}], v{VR}, s[{S_WS}:{S_WS+3}], s{sT+1} offen sc0 sc1")
    if ST:
        if opt.gcyc: e("s_memtime s[98:99]")
        if not opt.pst: st(90); e("s_waitcnt vmcnt(0)"); st(92,True)
        e("s_waitcnt lgkmcnt(0)"); e("s_sub_u32 s98, s98, s96")
        if opt.its:
            for r in range(76,94,2):
                e(f"s_sub_u32 s{r}, s{r}, s96"); e(f"s_mul_i32 s{r}, s{r}, 100"); e(f"s_add_u32 s{r}, s{r}, s10")
        dump([10,76,78,80,82,84,86,88,90,92,98])
    e("s_endpgm")

    def late_sloads():
        e(f"s_lshl_b32 s{sT+8}, s{sROW}, 3")
        e(f"s_add_u32 s{sT+8}, s{sT+8}, {EPOCH}")
        e(f"s_load_dwordx2 s[{sE}:{sE+1}], s[{P_WS}:{P_WS+1}], s{sT+8}")
        e(f"s_load_dword s9, s[{P_BO}:{P_BO+1}], 0")
    X=32
    def x0_addrs():
        e("v_and_b32 v3, 31, v2")
        e("v_lshlrev_b32 v4, 2, v3")
        for r in range(26): e(f"v_readlane_b32 s{76+r}, v29, {r}")
        e("s_mov_b32 exec_hi, 0")
        for r in range(26): e(f"v_xor_b32 v{X+r}, s{76+r}, v4")
        e("s_mov_b64 exec, -1")
        e("s_mov_b32 exec_lo, 0")
        for r in range(26): e(f"v_xor_b32 v{X+r}, s{76+(r+1)%26}, v4")
        e("s_mov_b64 exec, -1")
    lab("L_help_pro")
    e(f"s_mov_b32 m0, s{sTM}")
    e(f"s_mov_b32 s{sT+3}, {opt.nt0-1}")
    e("s_waitcnt lgkmcnt(0)")
    e(f"s_mov_b64 s[{S_IDX}:{S_IDX+1}], s[{P_IDX}:{P_IDX+1}]")
    e(f"s_mov_b64 s[{S_TBL}:{S_TBL+1}], s[{P_TBL}:{P_TBL+1}]")
    def tloop(name):
        lab(name)
        e(f"buffer_load_dwordx4 v5, s[{S_TBL}:{S_TBL+3}], m0 offen lds")
        e("s_add_u32 m0, m0, 8192")
        e(f"s_cmp_ge_u32 m0, s{sWR1}")
        e(f"s_cselect_b32 s{sT+5}, s{sWR2}, 0")
        e(f"s_sub_u32 m0, m0, s{sT+5}")
        e(f"s_sub_u32 s{sT+3}, s{sT+3}, 1")
        e(f"s_cbranch_scc0 {name}")
    rowidx_load()
    tloop("L_tloop")
    e(f"s_mov_b32 s{sT+3}, {16-opt.nt0-1}")
    e("s_barrier")
    tloop("L_tloop2")
    e("s_barrier")
    e("s_waitcnt vmcnt(16)")
    if opt.xlds:
        e("v_lshlrev_b32 v8, 3, v29"); e("v_and_b32 v8, 0x70, v8"); e("v_lshl_or_b32 v29, v29, 7, v8")
    else: e("v_lshlrev_b32 v29, 7, v29")
    x0_addrs()
    e("s_waitcnt vmcnt(0)")
    e("s_barrier")
    if opt.xsl: e(f"s_sleep {opt.xsl}")
    if opt.xlds:
        for r in range(26):
            e(f"ds_read_b32 v{X+r}, v{X+r}")
            if opt.xgap and r%opt.xgap==opt.xgap-1: e("s_sleep 1")
        e("s_branch L_help_main")
    lab("L_help_x0")
    for r in range(26):
        e(f"buffer_load_dword v{X+r}, v{X+r}, s[{S_TBL}:{S_TBL+3}], 0 offen")
    lab("L_help_main")
    srd(S_WS,P_WS,WS_SIZE); srd(S_A,P_DBG,256); srd(S_B,P_OUT,2048)
    Z0=8
    ZE=lambda s: Z0+4*s
    ZO=lambda s: Z0+88+4*s
    LE=lambda k: Z0+176+4*k
    LO=lambda k: Z0+184+4*k
    R=200; MT=252
    e("v_lshrrev_b32 v5, 2, v3")
    e("v_mul_u32_u24 v5, 5888, v5")
    e("v_and_b32 v6, 3, v2")
    e("v_lshl_add_u32 v5, v6, 4, v5")
    e("v_lshrrev_b32 v6, 5, v2")
    e("v_lshl_add_u32 v5, v6, 6, v5")
    e("v_mov_b32 v7, 0x7fff0000")
    e("v_cmp_gt_u32 vcc, 26, v3")
    e("v_lshlrev_b32 v6, 13, v2")
    e(f"s_lshl_b32 s{sT}, s{sROW}, 3")
    e("v_cndmask_b32 v5, v7, v5, vcc")
    e(f"s_add_u32 s{sT}, s{sT}, {GRAN}")
    e(f"v_add_u32 v6, s{sT}, v6")
    e("v_cmp_gt_u32 vcc, 26, v2")
    e("v_lshlrev_b32 v1, 4, v2")
    e(f"v_add_u32 v1, {CINW}, v1")
    e("v_cndmask_b32 v6, v7, v6, vcc")
    e(f"v_mov_b32 v7, {FLAGS}")
    e("s_waitcnt vmcnt(0) lgkmcnt(0)")
    late_sloads()
    st(76)
    for r in range(26):
        e(f"v_lshlrev_b32 v{R+2*r}, 16, v{X+r}")
        e(f"v_and_b32 v{R+2*r+1}, 0xffff0000, v{X+r}")
    def zstep(s):
        if opt.noz: return
        for m in range(4):
            (a1,a2),(b1,b2)=pair_of(8*s+2*m),pair_of(8*s+2*m+1)
            e(f"v_mul_f32 v{MT}, v{R+2*a1}, v{R+2*a2}")
            e(f"v_mul_f32 v{MT+2}, v{R+2*b1}, v{R+2*b2}")
            e(f"v_mul_f32 v{MT+1}, v{R+2*a1+1}, v{R+2*a2+1}")
            e(f"v_mul_f32 v{MT+3}, v{R+2*b1+1}, v{R+2*b2+1}")
            e(f"v_cvt_pk_bf16_f32 v{ZE(s)+m}, v{MT}, v{MT+2}")
            e(f"v_cvt_pk_bf16_f32 v{ZO(s)+m}, v{MT+1}, v{MT+3}")
    def zlin():
        for k in range(2):
            for m2 in range(4):
                m=k*8+2*m2
                for tl,d in ((0,LE(k)+m2),(1,LO(k)+m2)):
                    if m+1<=12: e(f"v_cvt_pk_bf16_f32 v{d}, v{R+4*m+tl}, v{R+4*(m+1)+tl}")
                    elif m==12: e(f"v_cvt_pk_bf16_f32 v{d}, v{R+4*m+tl}, 1.0")
                    else: e(f"v_mov_b32 v{d}, 0")
    for s in range(opt.zsplit): zstep(s)
    st(78)
    lds_spin("L_it9",7,4,F_IT9,1,sleep=4)
    e(f"v_lshlrev_b32 v0, 2, v2")
    e(f"buffer_load_dword v4, v0, s[{S_A}:{S_A+3}], 0 offen sc1")
    for s in range(opt.zsplit,opt.zbar): zstep(s)
    st(80)
    e("s_barrier")
    for s in range(opt.zbar,22): zstep(s)
    zlin()
    st(82)
    e(f"s_mov_b32 s{sT+4}, {opt.bound}")
    e(f"s_mov_b32 s{sT+2}, 0x7f")
    e(f"s_mov_b32 s{sT+3}, 0")
    lab("L_poll1")
    e("s_waitcnt vmcnt(0)")
    e("v_cmp_ne_u32 vcc, 0, v4")
    e(f"s_and_b64 vcc, vcc, s[{sT+2}:{sT+3}]")
    e(f"s_cmp_eq_u64 vcc, s[{sT+2}:{sT+3}]")
    e("s_cbranch_scc1 L_polled")
    e(f"s_sleep {opt.psleep}")
    e(f"buffer_load_dword v4, v0, s[{S_A}:{S_A+3}], 0 offen sc1")
    e(f"s_sub_u32 s{sT+4}, s{sT+4}, 1")
    e("s_cbranch_scc0 L_poll1")
    lab("L_polled")
    e(f"s_sub_u32 s{sT}, s{sWAVE}, 4")
    e(f"s_lshl_b32 s{sT+1}, s{sT}, 10")
    e(f"s_lshl_b32 s{sT}, s{sT}, 7")
    e(f"s_add_u32 m0, s{sT+1}, {CINW}")
    lds_spin("L_wred",7,0,F_PRE,opt.dly,sleep=1)
    st(84)
    for t in range(12):
        if t==11:
            e(f"s_cmp_ge_u32 s{sWAVE}, 6")
            e("s_cbranch_scc1 L_dma_done")
        e(f"buffer_load_dwordx4 v5, s[{S_WS}:{S_WS+3}], s{sT} offen sc1 lds")
        if t<11:
            e(f"s_add_u32 m0, m0, 4096")
            e(f"s_add_u32 s{sT}, s{sT}, 512")
    lab("L_dma_done")
    e("v_mov_b32 v0, 1")
    e("s_mov_b64 exec, 1")
    e("s_waitcnt vmcnt(7)")
    st(86)
    e(f"ds_add_u32 v7, v0 offset:{F_CW}")
    e("s_mov_b64 exec, -1")
    lds_spin("L_cw",7,0,F_CW,4)
    st(88,True)
    if ST: e("s_memtime s[96:97]"); e("s_waitcnt lgkmcnt(0)")
    AXE,AUE=200,216; WF=232
    AXO,AUO=ZE(0),ZE(4)
    lg=Q(15)
    seq=[('e',s) for s in range(8)]+[('o',s) for s in range(8)]+[('eo',s) for s in range(8,24)]
    def rd(i):
        tl,s=seq[i]; b=WF+(i%3)*8
        if s<22:
            e(f"ds_read_b128 v[{b}:{b+3}], v1 offset:{2*s*1024}"); lg.issue(f"x{i}")
            e(f"ds_read_b128 v[{b+4}:{b+7}], v1 offset:{(2*s+1)*1024}"); lg.issue(f"u{i}")
        else:
            e(f"ds_read_b128 v[{b+4}:{b+7}], v1 offset:{(44+s-22)*1024}"); lg.issue(f"u{i}")
    rd(0); rd(1)
    GV=ZE(8)
    for i,(tl,s) in enumerate(seq):
        if opt.nocin and i<len(seq)-3: continue
        if opt.nocin and i==len(seq)-3: rd(i); rd(i+1)
        b=WF+(i%3)*8
        if i==6:
            e("v_mov_b32 v0, 1")
            e("s_mov_b64 exec, 1")
            e("s_waitcnt vmcnt(0)")
            e(f"ds_add_u32 v7, v0 offset:{F_CW2}"); lg.issue("cw2")
            e("s_mov_b64 exec, -1")
        if i+2==16:
            lds_spin("L_cw2",7,0,F_CW2,4); lg.done=len(lg.ops)
        if i+2<len(seq): rd(i+2)
        if lg.pending(f'u{i}'): e(f"s_waitcnt lgkmcnt({lg.need(f'u{i}')})")
        for t in tl:
            z=(ZE if t=='e' else ZO)(s) if s<22 else (LE if t=='e' else LO)(s-22)
            ax,au=(AXE,AUE) if t=='e' else (AXO,AUO)
            if s<22:
                c=f"v[{ax}:{ax+15}]"
                e(f"v_mfma_f32_32x32x16_bf16 {c}, v[{b}:{b+3}], v[{z}:{z+3}], {c if s else 0}")
            c=f"v[{au}:{au+15}]"
            e(f"v_mfma_f32_32x32x16_bf16 {c}, v[{b+4}:{b+7}], v[{z}:{z+3}], {c if s else 0}")
        if i==len(seq)-3:
            e(f"buffer_load_dwordx2 v[{GV}:{GV+1}], v6, s[{S_WS}:{S_WS+3}], 0 offen sc1")
    e(f"s_add_u32 s{sE}, s{sE}, 1")
    e(f"s_and_b32 s{sE+1}, s{sE+1}, 0xff")
    e("s_nop 9")
    V=ZE(9); V2=V+1
    e(f"v_mul_f32 v{V}, v{AXE}, v{AUE}")
    e(f"v_mul_f32 v{V2}, v{AXO}, v{AUO}")
    for t in range(1,14):
        e(f"v_fmac_f32 v{V}, v{AXE+t}, v{AUE+t}")
        e(f"v_fmac_f32 v{V2}, v{AXO+t}, v{AUO+t}")
    e(f"v_add_f32 v{V}, v{V}, v{V2}")
    st(90)
    if ST: e("s_memtime s[98:99]")
    e("s_mov_b32 exec_lo, 0x3ffffff")
    e("s_mov_b32 exec_hi, 0")
    e(f"s_mov_b32 s{sT+4}, {opt.bound}")
    G2=GV+2
    def chk(g,lbl):
        e(f"v_and_b32 v{V2}, 0xff, v{g+1}")
        e(f"v_cmp_eq_u32 vcc, s{sE}, v{g}")
        e(f"v_cmp_eq_u32 s[{sT}:{sT+1}], s{sE+1}, v{V2}")
        e(f"v_and_b32 v{V2}, 0xffffff00, v{g+1}")
        e(f"s_and_b64 vcc, vcc, s[{sT}:{sT+1}]")
        e("s_cmp_eq_u64 vcc, exec")
        e(f"s_cbranch_scc1 L_got")
    lab("L_poll2")
    e(f"buffer_load_dwordx2 v[{G2}:{G2+1}], v6, s[{S_WS}:{S_WS+3}], 0 offen sc1")
    e("s_waitcnt vmcnt(1)")
    chk(GV,0)
    e(f"buffer_load_dwordx2 v[{GV}:{GV+1}], v6, s[{S_WS}:{S_WS+3}], 0 offen sc1")
    e("s_waitcnt vmcnt(1)")
    chk(G2,1)
    e(f"s_sub_u32 s{sT+4}, s{sT+4}, 1")
    e("s_cbranch_scc0 L_poll2")
    lab("L_got")
    e(f"v_add_f32 v{V}, v{V}, v{V2}")
    e("s_mov_b64 exec, -1")
    st(92)
    for dpp in ["quad_perm:[1,0,3,2] row_mask:0xf bank_mask:0xf","quad_perm:[2,3,0,1] row_mask:0xf bank_mask:0xf",
                "row_half_mirror row_mask:0xf bank_mask:0xf","row_mirror row_mask:0xf bank_mask:0xf",
                "row_bcast:15 row_mask:0xa bank_mask:0xf","row_bcast:31 row_mask:0xc bank_mask:0xf"]:
        e("s_nop 1")
        e(f"v_add_f32_dpp v{V}, v{V}, v{V} {dpp}")
    e("s_lshl_b32 s9, s9, 16")
    e(f"v_add_f32 v{V}, s9, v{V}")
    e(f"v_cvt_pk_bf16_f32 v{V}, v{V}, v{V}")
    e(f"s_lshl_b32 s{sT}, s{sROW}, 1")
    e(f"s_lshl_b32 s{sT+1}, s{sROW}, 3")
    e(f"s_add_u32 s{sT+1}, s{sT+1}, {EPOCH}")
    e(f"v_mov_b32 v{V2}, s{sE}")
    e("s_mov_b32 exec_lo, 0")
    e("s_mov_b32 exec_hi, 0x80000000")
    e(f"buffer_store_short v{V}, off, s[{S_B}:{S_B+3}], s{sT}")
    e(f"buffer_store_dword v{V2}, off, s[{S_WS}:{S_WS+3}], s{sT+1}")
    if ST:
        e("s_waitcnt vmcnt(0)"); st(94,True); e("s_sub_u32 s98, s98, s96")
        dump([10,76,78,80,82,84,86,88,90,92,94,98],0,1)
    e("s_endpgm")

    lab("L_aux")
    if opt.cpf:
        e(f"s_getpc_b64 s[{S_IDX}:{S_IDX+1}]")
        lab("L_pc")
        e(f"s_sub_u32 s{S_IDX}, s{S_IDX}, L_pc-{KN}")
        e(f"s_subb_u32 s{S_IDX+1}, s{S_IDX+1}, 0")
        e(f"s_mov_b32 s{S_IDX+2}, L_end-{KN}")
        e(f"s_mov_b32 s{S_IDX+3}, 0x20000")
        e("v_lshlrev_b32 v3, 7, v0")
        e(f"buffer_load_dword v255, v3, s[{S_IDX}:{S_IDX+3}], 0 offen")
    e(f"s_lshl1_add_u32 s{sT+1}, s{sXCD}, s{sSLOT}")
    e(f"s_sub_u32 s{sT+1}, s{sT+1}, 26")
    e(f"s_cmp_ge_u32 s{sSLOT}, 28")
    e("s_cbranch_scc1 L_prefetch")
    e(f"s_cmp_ge_u32 s{sT+1}, 7")
    e("s_cbranch_scc1 L_prefetch")
    cm("---- CIN weight folding: rows i = 4*pidx + (wave&3) ----")
    S_C=S_W; S_O=S_B; sI=6
    e(f"s_and_b32 s{sT}, s{sWAVE}, 3")
    e(f"s_lshl2_add_u32 s{sI}, s{sT+1}, s{sT}")
    M=16
    e("v_lshlrev_b32 v3, 2, v0")
    e("v_mov_b32 v7, 0x7fff0000")
    e(f"s_movk_i32 s{sT+1}, 338")
    e(f"v_cmp_gt_u32 vcc, s{sT+1}, v0")
    e("v_lshrrev_b32 v4, 1, v2")
    e("v_and_b32 v5, 1, v2")
    e("v_cndmask_b32 v3, v7, v3, vcc")
    e("v_lshlrev_b32 v4, 3, v4")
    e("s_waitcnt lgkmcnt(0)")
    e(f"s_load_dwordx16 s[76:91], s[{P_WOUT}:{P_WOUT+1}], 104")
    srd(S_C,P_CIN,105456)
    for gg in range(26):
        if gg%3==0: e(f"s_mov_b32 s{sT+2}, {2*35152+gg*1352}")
        e(f"buffer_load_dword v{M+gg}, v3, s[{S_C}:{S_C+3}], s{sT+2} offen offset:{(gg%3)*1352}")
    PP=44; QQ=52
    def slots():
        for ee in range(8):
            e(f"v_add_u32 v8, {ee}, v4")
            e("v_mul_u32_u24 v9, 5042, v8")
            e("v_lshrrev_b32 v9, 16, v9")
            e("v_mul_u32_u24 v10, 13, v9")
            e("v_sub_u32 v10, v8, v10")
            e(f"v_lshl_add_u32 v{PP+ee}, v10, 1, v5")
            e(f"v_add_u32 v{QQ+ee}, v{PP+ee}, v9")
            e(f"v_subrev_u32 v10, 26, v{QQ+ee}")
            e(f"v_min_u32 v{QQ+ee}, v{QQ+ee}, v10")
    def m3(later):
        e("v_mul_u32_u24 v8, 5042, v0")
        e("v_lshrrev_b32 v8, 16, v8")
        e("v_mul_u32_u24 v9, 13, v8")
        e("v_sub_u32 v9, v0, v9")
        e("v_lshlrev_b32 v9, 7, v9")
        e("v_lshl_add_u32 v96, v8, 1, v9")
        e("s_waitcnt lgkmcnt(0)")
        st(92)
        for gg in range(26):
            sreg=76+(gg>>1)
            if gg&1: e(f"s_and_b32 s{sT+4+(gg&1)}, s{sreg}, 0xffff0000")
            else:    e(f"s_lshl_b32 s{sT+4+(gg&1)}, s{sreg}, 16")
            if gg%4==0: e(f"s_waitcnt vmcnt({later+25-min(gg+3,25)})")
            e(f"v_lshlrev_b32 v8, 16, v{M+gg}")
            e(f"v_and_b32 v9, 0xffff0000, v{M+gg}")
            if gg==0:
                e(f"v_mul_f32 v10, s{sT+4}, v8"); e(f"v_mul_f32 v11, s{sT+4}, v9")
            else:
                e(f"v_fmac_f32 v10, s{sT+4+(gg&1)}, v8"); e(f"v_fmac_f32 v11, s{sT+4+(gg&1)}, v9")
        e("v_cvt_pk_bf16_f32 v10, v10, v11")
        e(f"s_movk_i32 s{sT+1}, 338")
        e(f"v_cmp_gt_u32 vcc, s{sT+1}, v0")
        e(f"s_and_saveexec_b64 s[{sT+2}:{sT+3}], vcc")
        e("ds_write_b16 v96, v10")
        e("ds_write_b16_d16_hi v96, v10 offset:64")
        e("s_mov_b64 exec, -1")
        st(94)
    def st_addr(cnt):
        e("v_lshlrev_b32 v6, 7, v6")
        e("v_lshl_add_u32 v6, v5, 6, v6")
        e(f"s_and_b32 s{sT+1}, s{sWAVE}, 3")
        e(f"s_lshl_b32 s{sT+1}, s{sT+1}, 4")
        e(f"s_add_u32 s{sT+1}, s{sT+1}, {STG}")
        e(f"v_add_u32 v6, s{sT+1}, v6")
        e(f"v_cmp_gt_u32 vcc, {cnt}, v2")
        e("v_mov_b32 v94, 1.0")
        e(f"v_mov_b32 v8, {STG+8192}")
        e("v_cndmask_b32 v6, v8, v6, vcc")
        e("v_cmp_gt_u32 vcc, 2, v2")
        e("s_nop 1")
        e("v_cndmask_b32 v95, v94, 0.5, vcc")
        e("v_cmp_gt_u32 vcc, 4, v2")
        e("s_nop 1")
        e("v_cndmask_b32 v94, v94, 0.5, vcc")
    e(f"s_cmp_ge_u32 s{sWAVE}, 4")
    e("s_cbranch_scc1 L_aux_w1")
    Pq=60; PR=76; RA=68; VV=16
    e("v_and_b32 v8, 31, v2")
    e("v_lshrrev_b32 v15, 5, v2")
    e(f"v_mul_u32_u24 v10, {8*1352}, v15")
    e("v_lshl_add_u32 v10, v8, 1, v10")
    e("v_cmp_gt_u32 vcc, 26, v8")
    e(f"s_mul_i32 s{sT+3}, s{sI}, 52")
    e(f"s_add_u32 s{sT+3}, s{sT+3}, 35152")
    e("v_cndmask_b32 v10, v7, v10, vcc")
    e("v_cmp_gt_u32 vcc, 32, v2")
    e("v_lshlrev_b32 v12, 2, v2")
    e("s_nop 0")
    e("v_cndmask_b32 v11, v7, v10, vcc")
    for s in range(2):
        for ee in range(8):
            h=16*s+ee
            if h%3==0 or ee==0:
                hb=h; e(f"s_add_u32 s{sT+2}, s{sT+3}, {h*1352}")
            va=11 if (s==1 and ee>=2) else 10
            e(f"buffer_load_ushort v{PR+s*8+ee}, v{va}, s[{S_C}:{S_C+3}], s{sT+2} offen offset:{(h-hb)*1352}")
    srd(S_O,P_WOUT,156)
    e(f"buffer_load_dword v13, v12, s[{S_O}:{S_O+3}], 0 offen offset:52")
    e(f"s_lshl_b32 s{sT+2}, s{sI}, 1")
    e(f"buffer_load_ushort v14, off, s[{S_O}:{S_O+3}], s{sT+2}")
    e("v_lshlrev_b32 v8, 6, v2")
    e("v_mov_b32 v9, 0")
    e("s_mov_b32 exec_lo, 0x7ffffff")
    e("s_mov_b32 exec_hi, 0")
    e("ds_write_b32 v8, v9 offset:52")
    e("ds_write_b32 v8, v9 offset:56")
    e("ds_write_b32 v8, v9 offset:60")
    e("s_mov_b64 exec, -1")
    e("v_and_b32 v8, 31, v2")
    e("v_lshlrev_b32 v93, 6, v8")
    e("v_lshl_add_u32 v93, v15, 4, v93")
    e(f"s_mul_i32 s{sT+1}, s{sWAVE}, 5120")
    e(f"s_add_u32 s{sT+1}, s{sT+1}, 4096")
    e("v_mul_u32_u24 v92, 144, v8")
    e("v_lshl_add_u32 v92, v15, 4, v92")
    e(f"v_add_u32 v92, s{sT+1}, v92")
    slots()
    e("v_cmp_lt_u32 vcc, 43, v2")
    e("v_subrev_u32 v10, 176, v4")
    e("v_mov_b32 v11, 26")
    for ee in range(8):
        e(f"v_add_u32 v8, {ee}, v10")
        e("v_lshl_add_u32 v8, v8, 1, v5")
        e(f"v_min_u32 v8, 31, v8")
        e(f"v_cndmask_b32 v8, v{QQ+ee}, v8, vcc")
        e(f"v_cndmask_b32 v9, v{PP+ee}, v11, vcc")
        e(f"v_mul_u32_u24 v9, 144, v9")
        e(f"v_lshl_add_u32 v9, v8, 2, v9")
        e(f"v_add_u32 v{RA+ee}, s{sT+1}, v9")
    e("v_lshrrev_b32 v8, 1, v2")
    e("v_lshl_add_u32 v6, v8, 1, 1")
    e("v_add_u32 v8, 22, v8")
    e("v_cndmask_b32 v6, v6, v8, vcc")
    st_addr(48)
    m3(18)
    e("s_mov_b32 exec_lo, 0x1fff")
    e("s_mov_b32 exec_hi, 0")
    e("s_waitcnt vmcnt(0)")
    e(f"ds_write_b32 v12, v13 offset:{26*64}")
    e("s_mov_b64 exec, -1")
    for r in range(8): e(f"v_lshl_or_b32 v{Pq+r}, v{PR+2*r+1}, 16, v{PR+2*r}")
    e("s_waitcnt lgkmcnt(0)")
    e("s_barrier")
    Qq=16; D=24
    e(f"ds_read_b128 v[{Qq}:{Qq+3}], v93")
    e(f"ds_read_b128 v[{Qq+4}:{Qq+7}], v93 offset:32")
    e("s_waitcnt lgkmcnt(0)")
    e(f"v_mfma_f32_32x32x16_bf16 v[{D}:{D+15}], v[{Pq}:{Pq+3}], v[{Qq}:{Qq+3}], 0")
    e(f"v_mfma_f32_32x32x16_bf16 v[{D}:{D+15}], v[{Pq+4}:{Pq+7}], v[{Qq+4}:{Qq+7}], v[{D}:{D+15}]")
    e(f"v_mfma_f32_32x32x16_bf16 v[{D}:{D+15}], v[{Qq}:{Qq+3}], v[{Pq}:{Pq+3}], v[{D}:{D+15}]")
    e(f"v_mfma_f32_32x32x16_bf16 v[{D}:{D+15}], v[{Qq+4}:{Qq+7}], v[{Pq+4}:{Pq+7}], v[{D}:{D+15}]")
    e("s_nop 11")
    for m in range(4):
        e(f"ds_write_b128 v92, v[{D+4*m}:{D+4*m+3}] offset:{m*32}")
    e("s_waitcnt lgkmcnt(0)")
    for ee in range(8): e(f"ds_read_b32 v{VV+ee}, v{RA+ee}")
    e("v_lshlrev_b32 v14, 16, v14")
    e(f"v_cmp_eq_u32 s[{sT}:{sT+1}], 46, v2")
    e(f"v_cmp_eq_u32 s[{sT+2}:{sT+3}], 47, v2")
    e("v_cmp_lt_u32 vcc, 45, v2")
    e("s_waitcnt lgkmcnt(0)")
    e(f"v_cndmask_b32 v{VV+5}, v{VV+5}, v14, s[{sT}:{sT+1}]")
    e(f"v_cndmask_b32 v{VV+5}, v{VV+5}, 0, s[{sT+2}:{sT+3}]")
    e(f"v_cndmask_b32 v{VV+6}, v{VV+6}, 0, vcc")
    e(f"v_cndmask_b32 v{VV+7}, v{VV+7}, 0, vcc")
    e("s_branch L_aux_pack")
    lab("L_aux_w1")
    GA=60; GB=68
    e(f"s_mul_i32 s{sT+3}, s{sI}, 1352")
    e(f"s_lshl_b32 s{sT+6}, s{sWAVE}, 11")
    e(f"s_add_u32 s{sT+6}, s{sT+6}, {32768-4*2048}")
    e(f"s_mov_b32 m0, s{sT+6}")
    e("v_lshlrev_b32 v12, 4, v2")
    e(f"buffer_load_dwordx4 v12, s[{S_C}:{S_C+3}], s{sT+3} offen lds")
    e(f"buffer_load_dwordx4 v12, s[{S_C}:{S_C+3}], s{sT+3} offen offset:1024 lds")
    slots()
    for ee in range(8):
        e(f"v_mul_u32_u24 v8, 26, v{PP+ee}")
        e(f"v_add_lshl_u32 v8, v8, v{QQ+ee}, 1")
        e(f"v_add_u32 v{GA+ee}, s{sT+6}, v8")
        e(f"v_mul_u32_u24 v9, 26, v{QQ+ee}")
        e(f"v_add_lshl_u32 v9, v9, v{PP+ee}, 1")
        e(f"v_add_u32 v{GB+ee}, s{sT+6}, v9")
    e("v_and_b32 v6, 62, v2")
    st_addr(44)
    m3(2)
    e("s_waitcnt lgkmcnt(0)")
    e("s_barrier")
    e("s_waitcnt vmcnt(0)")
    for ee in range(8):
        e(f"ds_read_u16 v{GA+ee}, v{GA+ee}")
        e(f"ds_read_u16 v{GB+ee}, v{GB+ee}")
    e("s_waitcnt lgkmcnt(0)")
    for ee in range(8):
        e(f"v_lshlrev_b32 v{GA+ee}, 16, v{GA+ee}")
        e(f"v_lshlrev_b32 v{GB+ee}, 16, v{GB+ee}")
        e(f"v_add_f32 v{VV+ee}, v{GA+ee}, v{GB+ee}")
    lab("L_aux_pack")
    srd(S_WS,P_WS,WS_SIZE); srd(S_A,P_DBG,256)
    e("v_cmp_eq_u32 vcc, 43, v2")
    for ee in range(8): e(f"v_mul_f32 v{VV+ee}, v{VV+ee}, v{94 if ee<5 else 95}")
    e(f"v_cndmask_b32 v{VV+7}, v{VV+7}, 0, vcc")
    for m in range(4): e(f"v_cvt_pk_bf16_f32 v{24+m}, v{VV+2*m}, v{VV+2*m+1}")
    e("ds_write_b128 v6, v[24:27]")
    e("v_lshlrev_b32 v8, 4, v0")
    e(f"s_movk_i32 s{sT+1}, 368")
    e(f"v_cmp_gt_u32 vcc, s{sT+1}, v0")
    e(f"s_lshr_b32 s{sT}, s{sI}, 2")
    e(f"s_mul_i32 s{sT+2}, s{sT}, 5888")
    e("v_cndmask_b32 v9, v7, v8, vcc")
    e("s_waitcnt lgkmcnt(0)")
    e("s_barrier")
    e(f"ds_read_b128 v[24:27], v8 offset:{STG}")
    e("s_waitcnt lgkmcnt(0)")
    e(f"buffer_store_dwordx4 v[24:27], v9, s[{S_WS}:{S_WS+3}], s{sT+2} offen sc0 sc1")
    st(96)
    e(f"s_lshl_b32 s{sT}, s{sT}, 2")
    e("v_mov_b32 v8, 1")
    e("s_waitcnt vmcnt(0)")
    e("s_barrier")
    e(f"s_cmp_lg_u32 s{sWAVE}, 0")
    e("s_cbranch_scc1 L_noflag")
    e("s_mov_b64 exec, 1")
    e(f"buffer_store_dword v8, off, s[{S_A}:{S_A+3}], s{sT} sc0 sc1")
    e("s_mov_b64 exec, -1")
    lab("L_noflag")
    if ST:
        st(98); e("s_waitcnt vmcnt(0)"); st(100,True)
        dump([10,92,94,96,98,100],1,2)
    e("s_branch L_aux_done")
    lab("L_prefetch")
    e("s_waitcnt lgkmcnt(0)")
    if opt.pf:
        srd(S_W,P_W,1664*3328)
        e(f"s_cmp_lt_u32 s{sXCD}, 4")
        e(f"s_cselect_b32 s{sT+2}, 27, 26")
        e(f"s_cmp_lt_u32 s{sXCD}, 3")
        e(f"s_cselect_b32 s{sT+2}, 28, s{sT+2}")
        e(f"s_sub_u32 s{sT}, s{sSLOT}, s{sT+2}")
        e(f"s_sub_u32 s{sT+2}, 32, s{sT+2}")
        e(f"s_mul_i32 s{sT+1}, s{sXCD}, 26")
        e(f"s_lshr_b32 s{sT+1}, s{sT+1}, 3")
        e(f"s_lshl_b32 s{sT+1}, s{sT+1}, 7")
        for u in range(4):
            e(f"v_add_u32 v3, {512*u}, v0")
            e(f"v_mul_u32_u24 v3, s{sT+2}, v3")
            e(f"v_add_u32 v3, s{sT}, v3")
            e("v_lshrrev_b32 v4, 2, v3")
            if opt.pskip: e(f"v_add_u32 v4, {opt.pskip}, v4")
            e("v_and_b32 v3, 3, v3")
            e(f"v_mul_u32_u24 v4, 3328, v4")
            e("v_lshl_add_u32 v3, v3, 7, v4")
            e(f"buffer_load_dword v{9+u}, v3, s[{S_W}:{S_W+3}], s{sT+1} offen")
        e(f"s_cmp_lg_u32 s{sSLOT}, 31")
        e("s_cbranch_scc1 L_aux_done")
        srd(S_B,P_W2,3328); srd(S_WS,P_WS,EPOCH+8192)
        e("v_lshlrev_b32 v3, 7, v0")
        e(f"buffer_load_dword v13, v3, s[{S_B}:{S_B+3}], 0 offen")
        e(f"s_mov_b32 s{sT}, {EPOCH}")
        e(f"buffer_load_dword v14, v3, s[{S_WS}:{S_WS+3}], s{sT} offen")
    lab("L_aux_done")
    e(f"s_cmp_lt_u32 s{sWAVE}, 4")
    e("s_cbranch_scc1 L_end")
    srd(S_TBL,P_TBL,128000); srd(S_IDX,P_IDX,106496)
    rowidx_load()
    e(f"v_mov_b32 v7, {FLAGS}")
    e("v_mov_b32 v8, 4")
    e("v_mov_b32 v9, 0")
    e(f"ds_write_b32 v7, v8 offset:{F_IT9}")
    e(f"ds_write_b32 v7, v8 offset:{F_PRE}")
    e(f"ds_write_b32 v7, v9 offset:{F_CW}")
    e(f"ds_write_b32 v7, v9 offset:{F_CW2}")
    e("s_waitcnt vmcnt(0)")
    e("v_lshlrev_b32 v29, 7, v29")
    x0_addrs()
    e("s_branch L_help_x0")
    lab("L_end")
    e("s_endpgm")
    L.append('.section .rodata,"a"'); L.append(".p2align 6"); L.append(f".amdhsa_kernel {KN}")
    for x in ["next_free_vgpr 256","next_free_sgpr 102","accum_offset 256","group_segment_fixed_size 0","kernarg_size 88",
              "user_sgpr_count 2","user_sgpr_kernarg_segment_ptr 1","system_sgpr_workgroup_id_x 1"]:
        L.append("  .amdhsa_"+x)
    L.append(".end_amdhsa_kernel")
    return "\n".join(L)+"\n"

if __name__=="__main__":
    ap=argparse.ArgumentParser()
    ap.add_argument("-o",default="k.s")
    for k,d in dict(rowx=1,wstop=5,wrest=16,bq=3,xlds=1,xgap=0,atid=1,xsl=8,pskip=128,d2late=1,wper=4,its=0,sched=0,nog=0,not_=0,c2=0,noz=0,lateb=1,dly=4,pst=0,enc=0,encrole=0,encwg=0,encwave=0,nocin=0,gcyc=0,psleep=4,now=0,stamps=0,pf=1,cpf=1,prio=1,bound=20000,zsplit=14,zbar=17,nt0=10,tb=4444,wsched=0).items(): ap.add_argument("--"+k,type=int,default=d)
    opt=ap.parse_args()
    for t in range(512): assert (t*5042)>>16==t//13, t
    open(opt.o,"w").write(build(opt))
```

```python
import sys, argparse, math, struct

class Q:
    def __init__(s,cap): s.ops=[]; s.cap=cap; s.done=0
    def issue(s,name): s.ops.append(name)
    def need(s,*names):
        r=99
        for name in names:
            i=len(s.ops)-1-s.ops[::-1].index(name)
            r=min(r,len(s.ops)-1-i)
        r=min(r,s.cap)
        s.done=max(s.done,len(s.ops)-r)
        return r
    def pending(s,*names):
        return any(len(s.ops)-1-s.ops[::-1].index(n)>=s.done for n in names)

WIMG=0; GRAN=65536; EPOCH=0x50000; STAMP=0x100000; WS_SIZE=0x200000
STG=49152; RING=128000; FLAGS=160768; CINW=49152
F_IT9,F_RED,F_G,F_PRE,F_S1,F_CW,F_CW2=0,4,8,12,16,20,24
C1=-2*math.sqrt(2/math.pi)*math.log2(math.e); C2=C1*0.044715
def f2u(x): return struct.unpack('<I',struct.pack('<f',x))[0]
KN="standalone__deep_cross_xdeepfm__recsys_kernel"

sWAVE,sXCD,sSLOT,sCB,sRB=3,4,5,7,8
P_IDX,P_TBL,P_CIN,P_WOUT,P_W,P_B1,P_W2,P_BO=16,18,20,22,24,26,28,30
P_OUT,P_DBG,P_WS=32,34,36
S_IDX,S_TBL,S_W,S_WS,S_A,S_B=40,44,48,52,56,60
sRING,sWR1,sWR2,sTM=64,65,15,14
sT=66

def pair_of(n):
    if n<169: dlt,m=divmod(n,13)
    else: dlt,m=13,n-169
    r=2*m
    return r,(r+dlt)%26

def build(opt):
    L=[]
    cnt=[0]; lastw={}
    def e(x):
        L.append("    "+x)
        cnt[0]+= (int(x.split()[1])+1) if x.startswith("s_nop") else 1
    def hz(key,n):
        d=cnt[0]-lastw[key]
        if d<n: e(f"s_nop {n-d-1}")
    def lab(x): L.append(x+":")
    def cm(x): L.append("    ; "+x)
    E=lambda x:(lambda: e(x))
    ST=opt.stamps
    def srd(d,p,size):
        e(f"s_mov_b32 s{d}, s{p}"); e(f"s_mov_b32 s{d+1}, s{p+1}")
        e(f"s_mov_b32 s{d+2}, {size}"); e(f"s_mov_b32 s{d+3}, 0x20000")
    def st(r,wait=False):
        if ST:
            e(f"s_memrealtime s[{r}:{r+1}]")
            if wait: e("s_waitcnt lgkmcnt(0)")
    def dump(regs,area=0,role=0):
        if opt.enc:
            delay(regs,role); return
        dump_(regs,area)
    dl=[0]
    def delay(regs,role):
        dl[0]+=1; n=dl[0]
        e("s_mov_b64 exec, -1")
        e("s_waitcnt lgkmcnt(0)")
        if opt.enc==99:
            if role!=1: return
            srd(S_A,P_DBG,256)
            e("s_not_b32 s12, s10")
            e("v_mov_b32 v244, s12")
            e(f"v_mov_b32 v245, s{regs[10]}")
            e("v_mov_b32 v246, 1")
            e("s_mov_b64 exec, 1")
            e(f"buffer_atomic_umax v244, off, s[{S_A}:{S_A+3}], 0 offset:240 sc1")
            e(f"buffer_atomic_umax v245, off, s[{S_A}:{S_A+3}], 0 offset:244 sc1")
            e("s_waitcnt vmcnt(0)")
            e(f"buffer_atomic_add v246, off, s[{S_A}:{S_A+3}], 0 offset:248 sc0 sc1")
            e("s_waitcnt vmcnt(0)")
            e("v_readfirstlane_b32 s12, v246")
            e("s_cmp_lg_u32 s12, 1023")
            e(f"s_cbranch_scc1 L_dly{n}_x")
            e(f"buffer_load_dwordx2 v[244:245], off, s[{S_A}:{S_A+3}], 0 offset:240 sc1")
            e("s_waitcnt vmcnt(0)")
            e("v_readfirstlane_b32 s12, v244")
            e("v_readfirstlane_b32 s13, v245")
            e("s_not_b32 s12, s12")
            e("s_sub_u32 s12, s13, s12")
        else:
            if role!=opt.encrole: return
            e(f"s_cmp_lg_u32 s2, {opt.encwg}")
            e(f"s_cbranch_scc1 L_dly{n}_x")
            e(f"s_cmp_lg_u32 s{sWAVE}, {opt.encwave}")
            e(f"s_cbranch_scc1 L_dly{n}_x")
            e(f"s_sub_u32 s12, s{regs[opt.enc]}, s10")
        e("s_mul_i32 s12, s12, 100")
        e("s_memrealtime s[66:67]")
        e("s_waitcnt lgkmcnt(0)")
        e("s_add_u32 s12, s12, s66")
        lab(f"L_dly{n}")
        e("s_sleep 8")
        e("s_memrealtime s[66:67]")
        e("s_waitcnt lgkmcnt(0)")
        e("s_sub_u32 s13, s66, s12")
        e("s_cmp_lt_i32 s13, 0")
        e(f"s_cbranch_scc1 L_dly{n}")
        lab(f"L_dly{n}_x")
        e("s_mov_b64 exec, -1")
    def dump_(regs,area=0):
        e("s_mov_b64 exec, -1")
        e("s_waitcnt lgkmcnt(0)")
        e("s_lshl_b32 s12, s2, 3")
        e(f"s_add_u32 s12, s12, s{sWAVE}")
        e("s_lshl_b32 s12, s12, 6")
        e(f"s_add_u32 s12, s12, {STAMP+area*0x40000}")
        regs=list(regs)+[regs[0]]*(12-len(regs))
        for i,r in enumerate(regs): e(f"v_mov_b32 v{244+i}, s{r}")
        e("s_mov_b64 exec, 1")
        for i in range(3):
            e(f"buffer_store_dwordx4 v[{244+4*i}:{247+4*i}], off, s[{S_WS}:{S_WS+3}], s12 offset:{16*i}")
        e("s_mov_b64 exec, -1")
    def lds_spin(name,vaddr,vtmp,off,target,sleep=0):
        e(f"s_mov_b32 s{sT+4}, {opt.bound*8}")
        lab(name)
        e(f"ds_read_b32 v{vtmp}, v{vaddr} offset:{off}")
        e("s_waitcnt lgkmcnt(0)")
        e(f"v_readfirstlane_b32 s{sT+5}, v{vtmp}")
        e(f"s_cmp_ge_u32 s{sT+5}, {target}")
        e(f"s_cbranch_scc1 {name}_x")
        if sleep: e(f"s_sleep {sleep}")
        e(f"s_sub_u32 s{sT+4}, s{sT+4}, 1")
        e(f"s_cbranch_scc0 {name}")
        lab(name+"_x")

    IV=16; IA=24
    def rec_addrs():
        e(f"s_lshl_b32 s{sT+5}, s{sT}, 7")
        e(f"s_add_u32 s{sT+5}, s{sT+5}, {RING+4096}")
        e(f"v_lshl_add_u32 v7, v7, 3, s{sT+5}")
        e("v_mul_u32_u24 v9, 7, v8")
        e("v_and_b32 v8, 1, v8")
        for par in range(2):
            d=IA+2*par
            if par:
                e("v_xor_b32 v8, 1, v8"); e("v_add_u32 v9, 1, v9")
            e("v_lshrrev_b32 v10, 1, v9")
            e(f"v_lshl_add_u32 v{d}, v10, 8, v7")
            e(f"v_lshl_add_u32 v{d}, v8, 14, v{d}")
            e("v_lshlrev_b32 v10, 1, v8")
            e(f"v_xor_b32 v10, s{sT+2}, v10")
            e(f"v_lshl_add_u32 v{d}, v10, 1, v{d}")
            e(f"v_xor_b32 v{d+1}, 2, v{d}")
            e(f"v_add_u32 v{d+1}, 8192, v{d+1}")
    sROW=6; sE=38
    def rowidx_load():
        e(f"s_sub_u32 s{sT+6}, s{sWAVE}, 4")
        if opt.rowx:
            e(f"s_lshl2_add_u32 s{sROW}, s{sSLOT}, s{sT+6}")
            e(f"s_lshl_b32 s{sT+6}, s{sXCD}, 7")
            e(f"s_add_u32 s{sROW}, s{sROW}, s{sT+6}")
        else: e(f"s_lshl2_add_u32 s{sROW}, s2, s{sT+6}")
        e(f"s_mul_i32 s{sT+6}, s{sROW}, 104")
        e("v_lshlrev_b32 v30, 2, v2")
        e(f"buffer_load_dword v29, v30, s[{S_IDX}:{S_IDX+3}], s{sT+6} offen")
    L.append("; @launch grid=(256,1,1) block=(512,1,1) lds=163840")
    L.append('.amdgcn_target "amdgcn-amd-amdhsa--gfx950"')
    L.append(".text"); L.append(f".globl {KN}"); L.append(".p2align 8"); L.append(f".type {KN},@function")
    lab(KN)
    e("s_load_dwordx16 s[16:31], s[0:1], 0")
    e("s_load_dwordx4 s[32:35], s[0:1], 64")
    e("s_load_dwordx2 s[36:37], s[0:1], 80")
    st(10)
    e("s_cmp_ge_u32 s2, 256")
    e("s_cbranch_scc1 L_end")
    e("v_lshrrev_b32 v1, 6, v0")
    e("v_and_b32 v2, 63, v0")
    e(f"v_readfirstlane_b32 s{sWAVE}, v1")
    e(f"s_and_b32 s{sXCD}, s2, 7")
    e(f"s_lshr_b32 s{sSLOT}, s2, 3")
    e(f"s_cmp_ge_u32 s{sSLOT}, 26")
    e("s_cbranch_scc1 L_aux")
    e(f"s_mul_i32 s6, s{sXCD}, 26")
    e(f"s_add_u32 s6, s6, s{sSLOT}")
    e(f"s_lshr_b32 s{sCB}, s6, 3")
    e(f"s_and_b32 s{sRB}, s6, 7")
    e(f"v_mov_b32 v7, {FLAGS}")
    e("v_mov_b32 v8, 0"); e("v_mov_b32 v9, 0")
    e("ds_write2_b64 v7, v[8:9], v[8:9] offset1:1")
    e("ds_write2_b64 v7, v[8:9], v[8:9] offset0:2 offset1:3")
    e("v_lshrrev_b32 v3, 3, v2")
    e("v_lshrrev_b32 v4, 4, v2")
    e("v_and_b32 v10, 7, v2")
    e(f"s_mov_b32 s{S_IDX+2}, 106496"); e(f"s_mov_b32 s{S_IDX+3}, 0x20000")
    e(f"s_and_b32 s{sT}, s{sWAVE}, 1")
    e(f"s_lshl_b32 s{sT+1}, s{sT}, 2")
    e("v_xor_b32 v5, v10, v4")
    e(f"v_xor_b32 v5, s{sT+1}, v5")
    e("v_lshlrev_b32 v5, 4, v5")
    e("v_lshl_add_u32 v5, v3, 7, v5")
    e(f"s_lshr_b32 s{sT+2}, s{sWAVE}, 1")
    e(f"s_lshl1_add_u32 s{sT+3}, s{sSLOT}, s{sT+2}")
    e(f"s_lshl_b32 s{sT+3}, s{sT+3}, 11")
    e(f"s_lshl_b32 s{sT+4}, s{sT}, 10")
    e(f"s_add_u32 s{sTM}, s{sT+3}, s{sT+4}")
    e(f"s_lshl_b32 s{sT+3}, s{sT}, 11")
    e(f"s_sub_u32 s{sWR2}, {63*2048}, s{sT+3}")
    e(f"s_add_u32 s{sWR1}, s{sWR2}, s{sT+4}")
    e(f"s_mov_b32 s{S_TBL+2}, 128000"); e(f"s_mov_b32 s{S_TBL+3}, 0x20000")
    e(f"s_cmp_ge_u32 s{sWAVE}, 4")
    e("s_cbranch_scc1 L_help_pro")
    def tbl(n,vm):
        for t in range(n):
            e(f"s_mov_b32 m0, s{sTM}")
            e(f"s_add_u32 s{sTM}, s{sTM}, 8192")
            e(f"buffer_load_dwordx4 v5, s[{S_TBL}:{S_TBL+3}], m0 offen lds"); vm.issue("tbl")
            e(f"s_cmp_ge_u32 s{sTM}, s{sWR1}")
            e(f"s_cselect_b32 s{sT+5}, s{sWR2}, 0")
            e(f"s_sub_u32 s{sTM}, s{sTM}, s{sT+5}")

    vW,vT0,vT1=1,3,4
    AD=8; AF=16; F0=48; REC=80; ACC=128
    acc=lambda lt,ct: ACC+(lt*2+ct)*16
    Fr=lambda j,ks,ct: F0+(j&1)*16+(ks*2+ct)*4
    vm=Q(63); lg=Q(15)
    cm("---- DNN wave prologue ----")
    e("v_lshlrev_b32 v6, 4, v2")
    e(f"s_mul_i32 s{sT+4}, s{sRB}, 13312")
    e(f"s_mul_i32 s{sT+5}, s{sWAVE}, 3328")
    e(f"s_add_u32 s{sT+4}, s{sT+4}, s{sT+5}")
    e(f"s_lshl_b32 s{sRING}, s{sWAVE}, 13")
    e(f"s_add_u32 s{sRING}, s{sRING}, {RING}")
    e(f"s_add_u32 m0, s{sRING}, 4096")
    e(f"s_lshl_b32 s{sT+7}, s{sWAVE}, 5")
    e(f"v_add_u32 v9, s{sT+7}, v3")
    e("v_mul_u32_u24 v9, 3328, v9")
    e("v_lshlrev_b32 v11, 2, v4")
    e("v_and_b32 v11, 4, v11")
    e("v_xor_b32 v11, v11, v10")
    e("v_lshl_add_u32 v1, v11, 4, v9")
    e(f"s_lshl_b32 s{sT+7}, s{sCB}, 7")
    e(f"v_add_u32 v1, s{sT+7}, v1")
    e("v_lshrrev_b32 v12, 5, v2")
    e(f"v_lshl_add_u32 v11, v12, 5, s{sT+7}")
    e("s_waitcnt lgkmcnt(0)")
    if opt.pst: st(84)
    e(f"s_mov_b64 s[{S_IDX}:{S_IDX+1}], s[{P_IDX}:{P_IDX+1}]")
    e(f"s_mov_b64 s[{S_TBL}:{S_TBL+1}], s[{P_TBL}:{P_TBL+1}]")
    for i in range(4):
        if i==3: e("s_mov_b64 exec, 0xffff")
        e(f"buffer_load_dwordx4 v6, s[{S_IDX}:{S_IDX+3}], s{sT+4} offen offset:{1024*i} lds"); vm.issue(f"idx{i}")
    e("s_mov_b64 exec, -1")
    srd(S_W,P_W,1664*3328)
    srd(S_A,P_B1,3328)
    for pc in range(4):
        e(f"s_add_u32 m0, s{sRING}, {pc*1024}")
        e(f"s_mov_b32 s12, {8*pc*3328}")
        e(f"buffer_load_dwordx4 v1, s[{S_W}:{S_W+3}], s12 offen lds"); vm.issue(f"w0_{pc}")
    def bias_loads():
        for i in range(4):
            e(f"buffer_load_dwordx4 v[{106+4*i}:{109+4*i}], v{VB}, s[{S_A}:{S_A+3}], 0 offen offset:{(i>>1)*64+(i&1)*16}"); vm.issue(f"bias{i}")
    VB=6
    e("v_mov_b32 v6, v11")
    TB=[int(c,16) for c in str(opt.tb)]
    tbl(TB[0],vm)
    if opt.pst: st(86)
    e("v_and_b32 v13, 31, v2")
    e("v_mul_u32_u24 v13, 104, v13")
    e(f"s_lshl2_add_u32 s{sT+5}, s{sT+2}, {RING+4096}")
    e(f"v_add_u32 v13, s{sT+5}, v13")
    e("v_lshlrev_b32 v9, 1, v12")
    e(f"v_xor_b32 v9, s{sWAVE}, v9")
    e("v_lshl_add_u32 v24, v9, 13, v13")
    e("v_xor_b32 v9, 1, v9")
    e("v_lshl_add_u32 v25, v9, 13, v13")
    e("v_bfe_u32 v9, v2, 2, 2")
    e("v_lshlrev_b32 v3, 7, v9")
    e("v_lshl_add_u32 v3, v12, 10, v3")
    e("v_lshrrev_b32 v9, 1, v9")
    e("v_lshl_add_u32 v3, v9, 6, v3")
    e("v_and_b32 v9, 1, v2")
    e("v_lshl_add_u32 v3, v9, 5, v3")
    e("v_bfe_u32 v9, v2, 1, 1")
    e("v_lshl_add_u32 v3, v9, 3, v3")
    e("v_and_b32 v9, 1, v4")
    e("v_lshl_add_u32 v3, v9, 4, v3")
    e(f"v_add_u32 v3, s{sRING}, v3")
    e("v_xor_b32 v4, 64, v3")
    e(f"v_add_u32 v14, s{sT+1}, v12")
    e("v_lshl_or_b32 v14, v14, 16, v14")
    e(f"s_mov_b32 s{sT+6}, 0x00070007")
    e(f"s_waitcnt vmcnt({vm.need('idx3')})")
    if opt.pst: st(88)
    def lds_inc(va,off):
        e("v_mov_b32 v0, 1")
        e("s_mov_b64 exec, 1")
        e(f"ds_add_u32 v{va}, v0 offset:{off}")
        e("s_mov_b64 exec, -1")
    e("s_barrier")
    if opt.pst: st(90)
    sWO=12
    def dma(j,pcs):
        for pc in pcs:
            if opt.now and j>=3:
                vm.ops.insert(0,f"w{j}_{pc}"); continue
            e(f"s_add_u32 m0, s{sRING}, {((j&1)*4+pc)*1024}")
            e(f"s_mov_b32 s{sWO}, {(128*j+8*pc)*3328}")
            e(f"buffer_load_dwordx4 v{vW}, s[{S_W}:{S_W+3}], s{sWO} offen lds"); vm.issue(f"w{j}_{pc}")
    BI=106
    RW=lambda t,j: 160+t*14+j
    RECX=104
    for j in range(0,13,2):
        for t in range(2):
            e(f"ds_read2_b32 v[{RW(t,j)}:{RW(t,j)+1}], v{24+t} offset0:{2*j} offset1:{2*j+2}")
    tbl(TB[1],vm)
    srd(S_WS,P_WS,WS_SIZE)
    srd(S_B,P_W2,3328)
    e("s_waitcnt lgkmcnt(0)")
    e("s_barrier")
    st(76)
    tbl(TB[2],vm)
    for j in range(13):
        if j==6: tbl(TB[3],vm)
        d=REC+2*j
        e(f"v_lshl_or_b32 v{d}, v{RW(1,j)}, 16, v{RW(0,j)}")
        e(f"v_lshrrev_b32 v13, 1, v{d}")
        e(f"v_and_b32 v13, s{sT+6}, v13")
        e(f"v_lshl_or_b32 v{d}, v{d}, 3, v13")
        e(f"v_mov_b32 v{d+1}, v{d}")
        if j:
            e(f"v_permlane32_swap_b32 v{d-2}, v{d-1}")
            e(f"v_xor_b32 v{d-2}, v14, v{d-2}"); e(f"v_xor_b32 v{d-1}, v14, v{d-1}")
    e("s_nop 1")
    e(f"v_permlane32_swap_b32 v{REC+24}, v{REC+25}")
    e(f"v_xor_b32 v{REC+24}, v14, v{REC+24}"); e(f"v_xor_b32 v{REC+25}, v14, v{REC+25}")
    afr=lambda lt,ks: AF+8*lt+4*ks
    XF={0:80,1:88,2:afr(1,0),3:afr(2,0)}
    FX={0:[F0,F0+4,F0+8,F0+12],1:[8,12,40,44],2:[F0+16,F0+20,F0+24,F0+28],3:[F0,F0+4,F0+8,F0+12]}
    def adr(lt,j):
        e(f"v_lshlrev_b32_sdwa v{AD+2*lt}, 4, v{REC+2*j+(lt>>1)} dst_sel:DWORD dst_unused:UNUSED_PAD src0_sel:DWORD src1_sel:WORD_{lt&1}")
        e(f"v_xor_b32 v{AD+2*lt+1}, 32, v{AD+2*lt}")
    def Rop(lt,j):
        for ks in range(2):
            e(f"ds_read_b128 v[{afr(lt,ks)}:{afr(lt,ks)+3}], v{AD+2*lt+ks}"); lg.issue(f"R{lt}_{ks}_{j}")
    def adrX(c,a):
        e(f"v_lshlrev_b32_sdwa v{a}, 4, v{RECX} dst_sel:DWORD dst_unused:UNUSED_PAD src0_sel:DWORD src1_sel:WORD_{c>>1}")
        if c&1: e(f"v_xor_b32 v{a}, 64, v{a}")
        e(f"v_xor_b32 v{a+1}, 32, v{a}")
    def RX(c,a):
        for ks in range(2):
            e(f"ds_read_b128 v[{XF[c]+4*ks}:{XF[c]+4*ks+3}], v{a+ks}"); lg.issue(f"X{c}_{ks}")
    def Top(j,ks):
        for ct in range(2):
            for h4 in range(2):
                d=Fr(j,ks,ct)+2*h4
                e(f"ds_read_b64_tr_b16 v[{d}:{d+1}], v{vT0+ct} offset:{((j&1)*4+ks*2)*1024+h4*512}"); lg.issue(f"T{j}_{ks}_{ct}{h4}")
    def TX(c):
        for ks in range(2):
            for ct in range(2):
                for h4 in range(2):
                    d=FX[c][ks*2+ct]+2*h4
                    e(f"ds_read_b64_tr_b16 v[{d}:{d+1}], v{vT0+ct} offset:{c*8192+ks*2048+h4*512}"); lg.issue(f"TX{c}")
    for lt in range(4): adr(lt,0)
    if ST: e("s_waitcnt lgkmcnt(0)")
    e(f"s_waitcnt vmcnt({vm.need('w0_3')})")
    Top(0,0); Top(0,1)
    tbl(16-sum(TB),vm)
    dma(1,range(4))
    e("s_waitcnt lgkmcnt(0)")
    if not opt.d2late: dma(2,range(4))
    if opt.pst: st(92)
    e(f"s_waitcnt vmcnt({vm.need('tbl')})")
    st(78)
    e("s_barrier")
    st(80,True)
    if ST: e("s_memtime s[96:97]"); e("s_waitcnt lgkmcnt(0)")
    if opt.prio: e(f"s_setprio {opt.prio}")
    Rop(1,0); Rop(2,0); Rop(3,0); Rop(0,0)
    def group(lt,fa,xa,first,fills):
        for i,(ks,ct) in enumerate([(0,0),(0,1),(1,0),(1,1)]):
            c=f"v[{acc(lt,ct)}:{acc(lt,ct)+15}]"
            src="0" if (first and ks==0) else c
            e(f"v_mfma_f32_32x32x16_bf16 {c}, v[{fa[ks*2+ct]}:{fa[ks*2+ct]+3}], v[{xa+4*ks}:{xa+4*ks+3}], {src}")
            lastw[(lt,ct)]=cnt[0]
            for f in fills[i]: f()
    LT=[1,2,3,0]
    W2P=106; EV=122; VR=124; WA=125; RA1,RA2=5,6; sM=[0,sT+7,sT+8,13]
    def addrs():
        e(f"s_xor_b32 s{sT}, s{sWAVE}, 1")
        e(f"s_lshl_b32 s{sT}, s{sT}, 12")
        e(f"v_lshlrev_b32 v{RA1}, 4, v2")
        e(f"v_add_u32 v{WA}, s{sT}, v{RA1}")
        e(f"v_xor_b32 v{WA+1}, {3<<12}, v{WA}")
    def addrs2():
        e(f"v_xor_b32 v{WA+2}, {2<<12}, v{WA}")
        e(f"s_lshl_b32 s{sT}, s{sWAVE}, 12")
        e(f"v_add_u32 v{RA1}, s{sT}, v{RA1}")
    def addrs3(): pass
    SEL=80; TA=92
    selops=[E("v_and_b32 v0, 31, v2"),E(f"v_lshrrev_b32 v{TA}, 5, v2"),E(f"v_lshlrev_b32 v{TA}, 2, v{TA}"),E(f"v_sub_u32 v0, v0, v{TA}"),
            E(f"v_lshrrev_b32 v{TA}, 1, v0"),E(f"v_and_b32 v{TA}, 12, v{TA}"),E(f"v_and_or_b32 v{TA}, v0, 3, v{TA}"),
            E("v_and_b32 v0, 0xffffffe4, v0"),E("v_cmp_eq_u32 vcc, 0, v0"),E(f"v_lshlrev_b32 v0, 4, v{TA}"),E("v_and_b32 v0, 16, v0"),
            E(f"v_lshlrev_b32 v0, v0, s{sM[1]}"),E("v_cndmask_b32 v0, 0, v0, vcc"),E(f"v_lshrrev_b32 v{TA}, 1, v{TA}")]
    selops.insert(0,E(f"s_movk_i32 s{sM[1]}, 0x3f80"))
    for ms in ((0,1,2),(3,4,5),(6,7)):
        def f(ms=ms):
            for k,m in enumerate(ms): e(f"v_cmp_eq_u32 s[{sT+2*k}:{sT+2*k+1}], {m}, v{TA}")
            if len(ms)<3: e("s_nop 0")
            for k,m in enumerate(ms): e(f"v_cndmask_b32 v{SEL+m}, 0, v0, s[{sT+2*k}:{sT+2*k+1}]")
        selops.append(f)
    def cv(lt,ct):
        a=acc(lt,ct)
        return [(lambda m=m: (hz((lt,ct),12),e(f"v_cvt_pk_bf16_f32 v{a+m}, v{a+2*m}, v{a+2*m+1}"))) for m in range(8)]
    def late1():
        e(f"s_lshl_b32 s{sT}, s{sCB}, 7")
        e(f"v_lshrrev_b32 v{VR}, 5, v2")
        e(f"v_lshl_add_u32 v{VR}, v{VR}, 5, s{sT}")
    def late2(i):
        e(f"buffer_load_dwordx4 v[{W2P+4*i}:{W2P+4*i+3}], v{VR}, s[{S_B}:{S_B+3}], 0 offen offset:{(i>>1)*64+(i&1)*16}"); vm.issue(f"w2_{i}")
    def late3():
        e(f"v_and_b32 v{VR}, 31, v2")
        e(f"s_lshl_b32 s{sT}, s{sRB}, 7")
        e(f"s_lshl_b32 s{sT+1}, s{sWAVE}, 5")
        e(f"s_add_u32 s{sT}, s{sT}, s{sT+1}")
        e(f"v_add_lshl_u32 v{VR}, v{VR}, s{sT}, 3")
    def late4():
        e(f"s_mov_b32 s{sT+2}, {EPOCH}")
        e(f"buffer_load_dwordx2 v[{EV}:{EV+1}], v{VR}, s[{S_WS}:{S_WS+3}], s{sT+2} offen"); vm.issue("ev")
    def badd(ct,t):
        src=BI+ct*8+(t>>1)
        if t&1: e(f"v_and_b32 v0, 0xffff0000, v{src}")
        else:   e(f"v_lshlrev_b32 v0, 16, v{src}")
        hz((0,ct),12)
        e(f"v_add_f32 v{acc(0,ct)+t}, v{acc(0,ct)+t}, v0")
    def wv(n): return lambda n=n: (e(f"s_waitcnt vmcnt({vm.need(n)})") if vm.pending(n) else None)
    def wl(n): return lambda n=n: (e(f"s_waitcnt lgkmcnt({lg.need(n)})") if lg.pending(n) else None)
    ITS={1:76,2:78,3:80,5:82,7:84,9:86,11:88,12:90}
    def inc(off,nm):
        def f():
            e("s_mov_b64 exec, 1")
            e(f"ds_add_u32 v7, v{ONE} offset:{off}"); lg.issue(nm)
            e("s_mov_b64 exec, -1")
        return f
    ONE=88; vC1=89; S0=90; S1=91; TA,TB_=92,93
    def w1(lt,ct,h): return lambda: (e(f"ds_write_b128 v{WA+lt-1}, v[{acc(lt,ct)+4*h}:{acc(lt,ct)+4*h+3}] offset:{(lt-1)*16384+(ct*2+h)*1024}"),lg.issue("W"))
    W=lambda lt,ct: [w1(lt,ct,0),w1(lt,ct,1)]
    W2F=list(range(F0+16,F0+32))+list(range(8,16))+list(range(96,104))
    unp=[]
    for t in range(32):
        src=W2P+(t>>1)
        unp.append(E(f"v_and_b32 v{W2F[t]}, 0xffff0000, v{src}" if t&1 else f"v_lshlrev_b32 v{W2F[t]}, 16, v{src}"))
    def bar2():
        e("s_waitcnt lgkmcnt(0)"); lg.done=len(lg.ops)
        if opt.its: e("s_memtime s[92:93]")
        if not opt.pst: st(82)
        e("s_barrier")
        if not opt.pst: st(84)
    for j in range(13):
        cm(f"---- iteration {j} ----")
        if opt.its==1 and j in ITS: e(f"s_memtime s[{ITS[j]}:{ITS[j]+1}]")
        if opt.its and j==12: opt.pst=1
        for g,lt in enumerate(LT):
            needs=[f"R{lt}_1_{j}"]+([f"T{j}_1_11"] if g==0 else [])
            if lg.pending(*needs): e(f"s_waitcnt lgkmcnt({lg.need(*needs)})")
            fills=[[],[],[],[]]
            if j==0:
                if g==0:
                    for i in range(4): fills[i].append(lambda i=i: dma(2,[i]))
                if g==1: fills[0].append(bias_loads)
                if g>=2: fills[0]+= [wv(f'w1_{2*(g-2)+1}'),lambda g=g: Top(1,g-2)]
            elif j<12:
                if j==1 and g<2:
                    fills[1].append(lambda g=g: dma(3,[2*g])); fills[2].append(lambda g=g: dma(3,[2*g+1]))
                if g<2: fills[0]+= [wv(f'w{j+1}_{2*g+1}'),lambda j=j,g=g: Top(j+1,g)]
                elif j+3<13:
                    fills[0]+= [wl(f'T{j+1}_{g-2}_11'),lambda j=j,g=g: dma(j+3,[2*(g-2)])]
                    fills[1].append(lambda j=j,g=g: dma(j+3,[2*(g-2)+1]))
            if j<12:
                fills[2].append(lambda j=j,lt=lt: adr(lt,j+1))
                fills[3].append(lambda j=j,lt=lt: Rop(lt,j+1))
            if j in (3,4,5,6) and g in (1,2):
                ct=(j-3)>>1; t0=((j-3)&1)*8+(g-1)*4
                if g==1 and j==3: fills[1].append(wv('bias3'))
                for i,ts in ((1,(0,1)),(2,(2,)),(3 if g==1 else 2,(3,))):
                    fills[i]+= [(lambda t=t0+t,ct=ct: badd(ct,t)) for t in ts]
            if j==7:
                sl={0:[(0,0),(0,5),(5,7),(7,9)],1:[(9,9),(9,15),(15,15),(15,15)],2:[(15,15),(15,15),(15,16),(16,16)],3:[(16,16),(16,16),(16,17),(17,18)]}[g]
                for i in range(4): fills[i]+=selops[sl[i][0]:sl[i][1]]
            if j==8 and g==0: fills[1].append(addrs)
            if j==8 and g==1: fills[1].append(addrs2); fills[2]+= [E(f"v_mov_b32 v{ONE}, 1"),E(f"v_mov_b32 v{vC1}, {f2u(C1)}"),E(f"v_mov_b32 v{S0}, 0"),E(f"v_mov_b32 v{S1}, 0")]
            if j==9 and g==3: fills[3].append(inc(F_IT9,"it9"))
            if j==10 and g==0: fills[1].append(late1); fills[2].append(lambda: late2(0))
            if j==10 and g==1: fills[1].append(lambda: late2(1)); fills[2].append(lambda: late2(2))
            if j==10 and g==2: fills[0]+= [wl('T11_1_11'),inc(F_S1,"s1")]; fills[1].append(lambda: late2(3))
            if j==10 and g==3: fills[0].append(late3); fills[1].append(late4)
            if j==12:
                G={0:[[E("s_waitcnt vmcnt(0)")]+unp[:5],unp[5:11],unp[11:16],unp[16:22]],
                   1:[unp[22:27]+([bar2] if opt.b2g==1 else []),unp[27:],cv(1,0)[:6],cv(1,0)[6:]+W(1,0)+cv(1,1)[:3]],
                   2:[cv(1,1)[3:]+W(1,1)[:1],W(1,1)[1:],cv(2,0)[:6],cv(2,0)[6:]+W(2,0)+cv(2,1)[:3]],
                   3:[cv(2,1)[3:]+W(2,1)[:1],W(2,1)[1:]+[E(f"s_mov_b32 s{sT+2}, {f2u(C2)}")],cv(3,0)[:6],cv(3,0)[6:]+W(3,0)+cv(3,1)+W(3,1)+[inc(F_RED,"inc")]]}[g]
                if g==0 and opt.b2g==0: G[3]=G[3]+[bar2]
                for i in range(4): fills[i]+=G[i]
            group(lt,[Fr(j,ks,ct) for ks in range(2) for ct in range(2)],afr(lt,0),j==0,fills)
    if not opt.pst: st(86)
    if ST: e("s_memtime s[98:99]")
    lds_spin("L_red",7,0,F_RED,4)
    if not opt.pst: st(88,True)
    if ST and opt.gcyc: e("s_memtime s[96:97]"); e("s_waitcnt lgkmcnt(0)")
    lg=Q(15)
    adds=[]
    for ct in range(2):
        for u in (1,2,3):
            for h in range(2):
                r=acc(u,ct)+4*h
                e(f"ds_read_b128 v[{r}:{r+3}], v{RA1} offset:{(u-1)*16384+(ct*2+h)*1024}"); lg.issue(f"p{ct}{u}{h}")
                def add(ct=ct,u=u,h=h,r=r):
                    if lg.pending(f"p{ct}{u}{h}"): e(f"s_waitcnt lgkmcnt({lg.need(f'p{ct}{u}{h}')})")
                    c=f"v[{acc(0,ct)}:{acc(0,ct)+15}]"
                    e(f"v_mfma_f32_32x32x16_bf16 {c}, v[{SEL+4*h}:{SEL+4*h+3}], v[{r}:{r+3}], {c}"); lastw[(0,ct)]=cnt[0]
                adds.append(add)
    for f in adds[:7]: f()
    adds=adds[7:]
    T=F0
    for q in range(8):
        a=ACC+4*q
        if q==opt.gq and opt.gateC==3: inc(F_G,"g")()
        def A():
            if adds: adds.pop(0)()
        hz((0,q>>2),12)
        for r in range(4): e(f"v_mul_f32 v{T+r}, v{a+r}, v{a+r}")
        for r in range(4): e(f"v_fma_f32 v{T+r}, v{T+r}, s{sT+2}, v{vC1}")
        A()
        for r in range(4): e(f"v_mul_f32 v{T+r}, v{T+r}, v{a+r}")
        for r in range(4): e(f"v_exp_f32 v{T+r}, v{T+r}")
        A()
        for r in range(4): e(f"v_mul_f32 v{a+r}, v{a+r}, v{W2F[4*q+r]}")
        for r in range(4): e(f"v_add_f32 v{T+r}, 1.0, v{T+r}")
        for r in range(4): e(f"v_rcp_f32 v{T+r}, v{T+r}")
        if adds: A()
        else: e("s_nop 0")
        for r in range(4): e(f"v_fmac_f32 v{S0 if r&1==0 else S1}, v{a+r}, v{T+r}")
    e(f"v_add_f32 v{S0}, v{S0}, v{S1}")
    e(f"v_mov_b32 v{S1}, v{S0}")
    e(f"s_movk_i32 s{sT}, 0xff")
    e(f"v_add_u32 v{EV}, 1, v{EV}")
    e(f"v_permlane32_swap_b32 v{S0}, v{S1}")
    e(f"s_lshl_b32 s{sT+1}, s{sCB}, 13")
    e(f"v_add_f32 v{S0}, v{S0}, v{S1}")
    e(f"s_add_u32 s{sT+1}, s{sT+1}, {GRAN}")
    e(f"v_bfi_b32 v{EV+1}, s{sT}, v{EV+1}, v{S0}")
    e(f"s_mov_b32 exec_hi, 0")
    e(f"buffer_store_dwordx2 v[{EV}:{EV+1}], v{VR}, s[{S_WS}:{S_WS+3}], s{sT+1} offen sc0 sc1")
    if ST:
        if opt.gcyc: e("s_memtime s[98:99]")
        if not opt.pst: st(90); e("s_waitcnt vmcnt(0)"); st(92,True)
        e("s_waitcnt lgkmcnt(0)"); e("s_sub_u32 s98, s98, s96")
        if opt.its:
            for r in range(76,94,2):
                e(f"s_sub_u32 s{r}, s{r}, s96"); e(f"s_mul_i32 s{r}, s{r}, 100"); e(f"s_add_u32 s{r}, s{r}, s10")
        dump([10,76,78,80,82,84,86,88,90,92,98])
    e("s_endpgm")

    def late_sloads():
        e(f"s_lshl_b32 s{sT+8}, s{sROW}, 3")
        e(f"s_add_u32 s{sT+8}, s{sT+8}, {EPOCH}")
        e(f"s_load_dwordx2 s[{sE}:{sE+1}], s[{P_WS}:{P_WS+1}], s{sT+8}")
        e(f"s_load_dword s9, s[{P_BO}:{P_BO+1}], 0")
    X=32
    def x0_addrs():
        e("v_and_b32 v3, 31, v2")
        e("v_lshlrev_b32 v4, 2, v3")
        for r in range(26): e(f"v_readlane_b32 s{76+r}, v29, {r}")
        e("s_mov_b32 exec_hi, 0")
        for r in range(26): e(f"v_xor_b32 v{X+r}, s{76+r}, v4")
        e("s_mov_b64 exec, -1")
        e("s_mov_b32 exec_lo, 0")
        for r in range(26): e(f"v_xor_b32 v{X+r}, s{76+(r+1)%26}, v4")
        e("s_mov_b64 exec, -1")
    lab("L_help_pro")
    e(f"s_mov_b32 m0, s{sTM}")
    e(f"s_mov_b32 s{sT+3}, {opt.nt0-1}")
    e("s_waitcnt lgkmcnt(0)")
    e(f"s_mov_b64 s[{S_IDX}:{S_IDX+1}], s[{P_IDX}:{P_IDX+1}]")
    e(f"s_mov_b64 s[{S_TBL}:{S_TBL+1}], s[{P_TBL}:{P_TBL+1}]")
    def tloop(name):
        lab(name)
        e(f"buffer_load_dwordx4 v5, s[{S_TBL}:{S_TBL+3}], m0 offen lds")
        e("s_add_u32 m0, m0, 8192")
        e(f"s_cmp_ge_u32 m0, s{sWR1}")
        e(f"s_cselect_b32 s{sT+5}, s{sWR2}, 0")
        e(f"s_sub_u32 m0, m0, s{sT+5}")
        e(f"s_sub_u32 s{sT+3}, s{sT+3}, 1")
        e(f"s_cbranch_scc0 {name}")
    rowidx_load()
    tloop("L_tloop")
    e(f"s_mov_b32 s{sT+3}, {16-opt.nt0-1}")
    e("s_barrier")
    tloop("L_tloop2")
    e("s_barrier")
    e("s_waitcnt vmcnt(16)")
    if opt.xlds:
        e("v_lshlrev_b32 v8, 3, v29"); e("v_and_b32 v8, 0x70, v8"); e("v_lshl_or_b32 v29, v29, 7, v8")
    else: e("v_lshlrev_b32 v29, 7, v29")
    x0_addrs()
    e("s_waitcnt vmcnt(0)")
    e("s_barrier")
    if opt.xsl: e(f"s_sleep {opt.xsl}")
    if opt.xlds:
        for r in range(26):
            e(f"ds_read_b32 v{X+r}, v{X+r}")
            if opt.xgap and r%opt.xgap==opt.xgap-1: e("s_sleep 1")
        e("s_branch L_help_main")
    lab("L_help_x0")
    for r in range(26):
        e(f"buffer_load_dword v{X+r}, v{X+r}, s[{S_TBL}:{S_TBL+3}], 0 offen")
    lab("L_help_main")
    srd(S_WS,P_WS,WS_SIZE); srd(S_A,P_DBG,256); srd(S_B,P_OUT,2048)
    Z0=8
    ZE=lambda s: Z0+4*s
    ZO=lambda s: Z0+88+4*s
    LE=lambda k: Z0+176+4*k
    LO=lambda k: Z0+184+4*k
    R=200; MT=252
    e("v_lshrrev_b32 v5, 2, v3")
    e("v_mul_u32_u24 v5, 5888, v5")
    e("v_and_b32 v6, 3, v2")
    e("v_lshl_add_u32 v5, v6, 4, v5")
    e("v_lshrrev_b32 v6, 5, v2")
    e("v_lshl_add_u32 v5, v6, 6, v5")
    e("v_mov_b32 v7, 0x7fff0000")
    e("v_cmp_gt_u32 vcc, 26, v3")
    e("v_lshlrev_b32 v6, 13, v2")
    e(f"s_lshl_b32 s{sT}, s{sROW}, 3")
    e("v_cndmask_b32 v5, v7, v5, vcc")
    e(f"s_add_u32 s{sT}, s{sT}, {GRAN}")
    e(f"v_add_u32 v6, s{sT}, v6")
    e("v_cmp_gt_u32 vcc, 26, v2")
    e("v_lshlrev_b32 v1, 4, v2")
    e(f"v_add_u32 v1, 97280, v1")
    e("v_cndmask_b32 v6, v7, v6, vcc")
    e(f"v_mov_b32 v7, {FLAGS}")
    e("s_waitcnt vmcnt(0) lgkmcnt(0)")
    late_sloads()
    st(76)
    for r in range(26):
        e(f"v_lshlrev_b32 v{R+2*r}, 16, v{X+r}")
        e(f"v_and_b32 v{R+2*r+1}, 0xffff0000, v{X+r}")
    def zstep(s):
        if opt.noz: return
        for m in range(4):
            (a1,a2),(b1,b2)=pair_of(8*s+2*m),pair_of(8*s+2*m+1)
            e(f"v_mul_f32 v{MT}, v{R+2*a1}, v{R+2*a2}")
            e(f"v_mul_f32 v{MT+2}, v{R+2*b1}, v{R+2*b2}")
            e(f"v_mul_f32 v{MT+1}, v{R+2*a1+1}, v{R+2*a2+1}")
            e(f"v_mul_f32 v{MT+3}, v{R+2*b1+1}, v{R+2*b2+1}")
            e(f"v_cvt_pk_bf16_f32 v{ZE(s)+m}, v{MT}, v{MT+2}")
            e(f"v_cvt_pk_bf16_f32 v{ZO(s)+m}, v{MT+1}, v{MT+3}")
    def zlin():
        for k in range(2):
            for m2 in range(4):
                m=k*8+2*m2
                for tl,d in ((0,LE(k)+m2),(1,LO(k)+m2)):
                    if m+1<=12: e(f"v_cvt_pk_bf16_f32 v{d}, v{R+4*m+tl}, v{R+4*(m+1)+tl}")
                    elif m==12: e(f"v_cvt_pk_bf16_f32 v{d}, v{R+4*m+tl}, 1.0")
                    else: e(f"v_mov_b32 v{d}, 0")
    SC=" sc1" if opt.csc else ""
    zlin()
    for s in range(opt.zsplit): zstep(s)
    st(78)
    e(f"s_load_dwordx8 s[92:99], s[{P_DBG}:{P_DBG+1}], 0")
    e("s_waitcnt lgkmcnt(0)")
    for k in range(1,7): e(f"s_and_b32 s92, s92, s{92+k}")
    e("s_cmp_lg_u32 s92, 0")
    e("s_cbranch_scc1 L_polled")
    lds_spin("L_it9",7,4,F_IT9,1,sleep=4)
    e(f"v_lshlrev_b32 v0, 2, v2")
    e(f"buffer_load_dword v4, v0, s[{S_A}:{S_A+3}], 0 offen sc1")
    for s in range(opt.zsplit,opt.zmid): zstep(s)
    e(f"s_mov_b32 s{sT+4}, {opt.bound}")
    e(f"s_mov_b32 s{sT+2}, 0x7f")
    e(f"s_mov_b32 s{sT+3}, 0")
    lab("L_poll1")
    e("s_waitcnt vmcnt(0)")
    e("v_cmp_ne_u32 vcc, 0, v4")
    e(f"s_and_b64 vcc, vcc, s[{sT+2}:{sT+3}]")
    e(f"s_cmp_eq_u64 vcc, s[{sT+2}:{sT+3}]")
    e("s_cbranch_scc1 L_polled")
    e(f"s_sleep {opt.psleep}")
    e(f"buffer_load_dword v4, v0, s[{S_A}:{S_A+3}], 0 offen sc1")
    e(f"s_sub_u32 s{sT+4}, s{sT+4}, 1")
    e("s_cbranch_scc0 L_poll1")
    lab("L_polled")
    if opt.inv: e("buffer_inv sc1")
    st(80)
    lds_spin("L_s1",7,0,F_S1,4,sleep=2)
    e(f"s_sub_u32 s{sT}, s{sWAVE}, 4")
    e(f"s_lshl_b32 s{sT+1}, s{sT}, 13")
    e(f"s_add_u32 m0, s{sT+1}, {RING+4096}")
    e(f"s_lshl_b32 s{sT}, s{sT}, 9")
    e(f"s_sub_u32 s{sT}, s{sT}, 256")
    for t in range(4):
        if t<2:
            e(f"s_cmp_eq_u32 s{sWAVE}, 4")
            e(f"s_cselect_b32 s{sT+1}, {(44+t)*128}, s{sT}")
        else: e(f"s_mov_b32 s{sT+1}, s{sT}")
        e(f"buffer_load_dwordx4 v5, s[{S_WS}:{S_WS+3}], s{sT+1} offen sc1 lds")
        if t<3:
            e(f"s_add_u32 m0, m0, 1024")
            e(f"s_add_u32 s{sT}, s{sT}, 128")
    for s in range(opt.zmid,opt.zbar): zstep(s)
    e("s_waitcnt vmcnt(0)")
    st(82)
    e("s_barrier")
    for s in range(opt.zbar,22): zstep(s)
    def hinc(off):
        e("v_mov_b32 v0, 1")
        e("s_mov_b64 exec, 1")
        e("s_waitcnt vmcnt(0)")
        e(f"ds_add_u32 v7, v0 offset:{off}")
        e("s_mov_b64 exec, -1")
    CWB=97280
    def dmaB():
        e(f"s_sub_u32 s{sT}, s{sWAVE}, 4")
        e(f"s_lshl_b32 s{sT+1}, s{sT}, 10")
        e(f"s_add_u32 m0, s{sT+1}, {CWB}")
        e(f"s_lshl_b32 s{sT}, s{sT}, 7")
        e(f"s_add_u32 s{sT}, s{sT}, {14*128}")
        for t in range(8):
            if t==7:
                e(f"s_cmp_ge_u32 s{sWAVE}, 6")
                e("s_cbranch_scc1 L_dma_done")
            e(f"buffer_load_dwordx4 v5, s[{S_WS}:{S_WS+3}], s{sT} offen sc1 lds")
            if t<7:
                e(f"s_add_u32 m0, m0, 4096")
                e(f"s_add_u32 s{sT}, s{sT}, 512")
        lab("L_dma_done")
    if opt.bstep<0:
        if opt.bgate: lds_spin("L_wred",7,0,F_RED,4,sleep=1)
        dmaB()
    st(84)
    AUE,AUO=200,216; RG=232
    AXE=LE(0); AXO=ZE(0)
    vm=Q(63); lg=Q(15)
    seq=[('eo',22),('eo',23)]+[('e',s) for s in range(4)]+[('o',s) for s in range(4)]+[('eo',s) for s in range(4,22)]
    free=[RG+4*k for k in range(6)]
    reg={}
    lL=[]; lG=[]
    for i,(tl,s) in enumerate(seq):
        for k,fi in ([('x',2*s),('u',2*s+1)] if s<22 else [('u',44+s-22)]): lL.append((i,k,fi))
    cur=[0]; okB=[False]
    def ld():
        if not free or not lL or lL[0][0]>cur[0]+opt.look: return False
        i,k,fi=lL[0]
        if 14<=fi<44 and not okB[0]: return False
        lL.pop(0); r=free.pop(0); reg[(i,k)]=r
        if 14<=fi<44: off=(fi-14)*1024
        else:
            p=fi+2 if fi<14 else fi-44
            off=RING+4096-CWB+(p>>2)*8192+(p&3)*1024
        e(f"ds_read_b128 v[{r}:{r+3}], v1 offset:{off}"); lg.issue(f"{k}{i}")
        return True
    if opt.gateC: lds_spin("L_gC",7,0,{1:F_RED,3:F_G}[opt.gateC],4,sleep=1)
    st(88,True)
    if ST: e("s_memtime s[96:97]"); e("s_waitcnt lgkmcnt(0)")
    while ld(): pass
    first={'xe':1,'xo':1,'ue':1,'uo':1}
    GV=RG; rel=[]
    for i,(tl,s) in enumerate(seq):
        cur[0]=i
        CS={2:76,6:78,10:80,12:82,13:84,16:86,20:88,24:92}
        if opt.cst and i in CS: e(f"s_memtime s[{CS[i]}:{CS[i]+1}]")
        if i==opt.bstep:
            if opt.bgate: lds_spin("L_wred",7,0,F_RED,4,sleep=1); lg.done=len(lg.ops)
            dmaB()
        if i==opt.bstep2: hinc(F_CW2); lg.issue("cw2")
        if i==12:
            lds_spin("L_cw2",7,0,F_CW2,4); lg.done=len(lg.ops); okB[0]=True
            while ld(): pass
        q,nm=(lg,"lgkmcnt") if f'u{i}' in lg.ops else (vm,"vmcnt")
        if q.pending(f'u{i}'): e(f"s_waitcnt {nm}({q.need(f'u{i}')})")
        n=0
        for t in tl:
            z=(ZE if t=='e' else ZO)(s) if s<22 else (LE if t=='e' else LO)(s-22)
            for k,a in (('x',AXE if t=='e' else AXO),('u',AUE if t=='e' else AUO)):
                if (i,k) not in reg: continue
                c=f"v[{a}:{a+15}]"; r=reg[(i,k)]
                e(f"v_mfma_f32_32x32x16_bf16 {c}, v[{r}:{r+3}], v[{z}:{z+3}], {0 if first[k+t] else c}"); first[k+t]=0
                n+=1
                if n==1: free+=rel; rel=[]
                ld()
                if len(tl)==1: ld()
            if s<22 and not (t=='e' and s<4): rel.append(z)
        rel+= [reg[(i,k)] for k in 'xu' if (i,k) in reg]
        if i==len(seq)-3:
            assert not lL and not lG
            GV=free.pop(0)
            e(f"buffer_load_dwordx2 v[{GV}:{GV+1}], v6, s[{S_WS}:{S_WS+3}], 0 offen sc1"); vm.issue("gv")
    e(f"s_add_u32 s{sE}, s{sE}, 1")
    e(f"s_and_b32 s{sE+1}, s{sE+1}, 0xff")
    e("s_nop 9")
    V=free.pop(0); V2=V+1
    e(f"v_mul_f32 v{V}, v{AXE}, v{AUE}")
    e(f"v_mul_f32 v{V2}, v{AXO}, v{AUO}")
    for t in range(1,14):
        e(f"v_fmac_f32 v{V}, v{AXE+t}, v{AUE+t}")
        e(f"v_fmac_f32 v{V2}, v{AXO+t}, v{AUO+t}")
    e(f"v_add_f32 v{V}, v{V}, v{V2}")
    st(90)
    if ST: e("s_memtime s[98:99]")
    e("s_mov_b32 exec_lo, 0x3ffffff")
    e("s_mov_b32 exec_hi, 0")
    e(f"s_mov_b32 s{sT+4}, {opt.bound}")
    G2=GV+2
    def chk(g,lbl):
        e(f"v_and_b32 v{V2}, 0xff, v{g+1}")
        e(f"v_cmp_eq_u32 vcc, s{sE}, v{g}")
        e(f"v_cmp_eq_u32 s[{sT}:{sT+1}], s{sE+1}, v{V2}")
        e(f"v_and_b32 v{V2}, 0xffffff00, v{g+1}")
        e(f"s_and_b64 vcc, vcc, s[{sT}:{sT+1}]")
        e("s_cmp_eq_u64 vcc, exec")
        e(f"s_cbranch_scc1 L_got")
    lab("L_poll2")
    e(f"buffer_load_dwordx2 v[{G2}:{G2+1}], v6, s[{S_WS}:{S_WS+3}], 0 offen sc1")
    e("s_waitcnt vmcnt(1)")
    chk(GV,0)
    e(f"buffer_load_dwordx2 v[{GV}:{GV+1}], v6, s[{S_WS}:{S_WS+3}], 0 offen sc1")
    e("s_waitcnt vmcnt(1)")
    chk(G2,1)
    e(f"s_sub_u32 s{sT+4}, s{sT+4}, 1")
    e("s_cbranch_scc0 L_poll2")
    lab("L_got")
    e(f"v_add_f32 v{V}, v{V}, v{V2}")
    e("s_mov_b64 exec, -1")
    if not opt.cst: st(92)
    for dpp in ["quad_perm:[1,0,3,2] row_mask:0xf bank_mask:0xf","quad_perm:[2,3,0,1] row_mask:0xf bank_mask:0xf",
                "row_half_mirror row_mask:0xf bank_mask:0xf","row_mirror row_mask:0xf bank_mask:0xf",
                "row_bcast:15 row_mask:0xa bank_mask:0xf","row_bcast:31 row_mask:0xc bank_mask:0xf"]:
        e("s_nop 1")
        e(f"v_add_f32_dpp v{V}, v{V}, v{V} {dpp}")
    e("s_lshl_b32 s9, s9, 16")
    e(f"v_add_f32 v{V}, s9, v{V}")
    e(f"v_cvt_pk_bf16_f32 v{V}, v{V}, v{V}")
    e(f"s_lshl_b32 s{sT}, s{sROW}, 1")
    e(f"s_lshl_b32 s{sT+1}, s{sROW}, 3")
    e(f"s_add_u32 s{sT+1}, s{sT+1}, {EPOCH}")
    e(f"v_mov_b32 v{V2}, s{sE}")
    e("s_mov_b32 exec_lo, 0")
    e("s_mov_b32 exec_hi, 0x80000000")
    e(f"buffer_store_short v{V}, off, s[{S_B}:{S_B+3}], s{sT}")
    e(f"buffer_store_dword v{V2}, off, s[{S_WS}:{S_WS+3}], s{sT+1}")
    if ST:
        e("s_waitcnt vmcnt(0)"); st(94,True); e("s_sub_u32 s98, s98, s96")
        if opt.cst:
            for r in (76,78,80,82,84,86,88,92):
                e(f"s_sub_u32 s{r}, s{r}, s96"); e(f"s_mul_i32 s{r}, s{r}, 100"); e(f"s_add_u32 s{r}, s{r}, s10")
        dump([10,76,78,80,82,84,86,88,90,92,94,98],0,1)
    e("s_endpgm")

    lab("L_aux")
    if opt.cpf:
        e(f"s_getpc_b64 s[{S_IDX}:{S_IDX+1}]")
        lab("L_pc")
        e(f"s_sub_u32 s{S_IDX}, s{S_IDX}, L_pc-{KN}")
        e(f"s_subb_u32 s{S_IDX+1}, s{S_IDX+1}, 0")
        e(f"s_mov_b32 s{S_IDX+2}, L_end-{KN}")
        e(f"s_mov_b32 s{S_IDX+3}, 0x20000")
        e("v_lshlrev_b32 v3, 7, v0")
        e(f"buffer_load_dword v255, v3, s[{S_IDX}:{S_IDX+3}], 0 offen")
    e(f"s_lshl1_add_u32 s{sT+1}, s{sXCD}, s{sSLOT}")
    e(f"s_sub_u32 s{sT+1}, s{sT+1}, 26")
    e(f"s_cmp_ge_u32 s{sSLOT}, 28")
    e("s_cbranch_scc1 L_prefetch")
    e(f"s_cmp_ge_u32 s{sT+1}, 7")
    e("s_cbranch_scc1 L_prefetch")
    cm("---- CIN weight folding: rows i = 4*pidx + (wave&3) ----")
    S_C=S_W; S_O=S_B; sI=6
    e(f"s_and_b32 s{sT}, s{sWAVE}, 3")
    e(f"s_lshl2_add_u32 s{sI}, s{sT+1}, s{sT}")
    M=16
    e("v_lshlrev_b32 v3, 2, v0")
    e("v_mov_b32 v7, 0x7fff0000")
    e(f"s_movk_i32 s{sT+1}, 338")
    e(f"v_cmp_gt_u32 vcc, s{sT+1}, v0")
    e("v_lshrrev_b32 v4, 1, v2")
    e("v_and_b32 v5, 1, v2")
    e("v_cndmask_b32 v3, v7, v3, vcc")
    e("v_lshlrev_b32 v4, 3, v4")
    e("s_waitcnt lgkmcnt(0)")
    e(f"s_load_dwordx16 s[76:91], s[{P_WOUT}:{P_WOUT+1}], 104")
    srd(S_C,P_CIN,105456)
    for gg in range(26):
        if gg%3==0: e(f"s_mov_b32 s{sT+2}, {2*35152+gg*1352}")
        e(f"buffer_load_dword v{M+gg}, v3, s[{S_C}:{S_C+3}], s{sT+2} offen offset:{(gg%3)*1352}")
    PP=44; QQ=52
    def slots():
        for ee in range(8):
            e(f"v_add_u32 v8, {ee}, v4")
            e("v_mul_u32_u24 v9, 5042, v8")
            e("v_lshrrev_b32 v9, 16, v9")
            e("v_mul_u32_u24 v10, 13, v9")
            e("v_sub_u32 v10, v8, v10")
            e(f"v_lshl_add_u32 v{PP+ee}, v10, 1, v5")
            e(f"v_add_u32 v{QQ+ee}, v{PP+ee}, v9")
            e(f"v_subrev_u32 v10, 26, v{QQ+ee}")
            e(f"v_min_u32 v{QQ+ee}, v{QQ+ee}, v10")
    def m3(later):
        e("v_mul_u32_u24 v8, 5042, v0")
        e("v_lshrrev_b32 v8, 16, v8")
        e("v_mul_u32_u24 v9, 13, v8")
        e("v_sub_u32 v9, v0, v9")
        e("v_lshlrev_b32 v9, 7, v9")
        e("v_lshl_add_u32 v96, v8, 1, v9")
        e("s_waitcnt lgkmcnt(0)")
        st(92)
        for gg in range(26):
            sreg=76+(gg>>1)
            if gg&1: e(f"s_and_b32 s{sT+4+(gg&1)}, s{sreg}, 0xffff0000")
            else:    e(f"s_lshl_b32 s{sT+4+(gg&1)}, s{sreg}, 16")
            if gg%4==0: e(f"s_waitcnt vmcnt({later+25-min(gg+3,25)})")
            e(f"v_lshlrev_b32 v8, 16, v{M+gg}")
            e(f"v_and_b32 v9, 0xffff0000, v{M+gg}")
            if gg==0:
                e(f"v_mul_f32 v10, s{sT+4}, v8"); e(f"v_mul_f32 v11, s{sT+4}, v9")
            else:
                e(f"v_fmac_f32 v10, s{sT+4+(gg&1)}, v8"); e(f"v_fmac_f32 v11, s{sT+4+(gg&1)}, v9")
        e("v_cvt_pk_bf16_f32 v10, v10, v11")
        e(f"s_movk_i32 s{sT+1}, 338")
        e(f"v_cmp_gt_u32 vcc, s{sT+1}, v0")
        e(f"s_and_saveexec_b64 s[{sT+2}:{sT+3}], vcc")
        e("ds_write_b16 v96, v10")
        e("ds_write_b16_d16_hi v96, v10 offset:64")
        e("s_mov_b64 exec, -1")
        st(94)
    def st_addr(cnt):
        e("v_lshlrev_b32 v6, 7, v6")
        e("v_lshl_add_u32 v6, v5, 6, v6")
        e(f"s_and_b32 s{sT+1}, s{sWAVE}, 3")
        e(f"s_lshl_b32 s{sT+1}, s{sT+1}, 4")
        e(f"s_add_u32 s{sT+1}, s{sT+1}, {STG}")
        e(f"v_add_u32 v6, s{sT+1}, v6")
        e(f"v_cmp_gt_u32 vcc, {cnt}, v2")
        e("v_mov_b32 v94, 1.0")
        e(f"v_mov_b32 v8, {STG+8192}")
        e("v_cndmask_b32 v6, v8, v6, vcc")
        e("v_cmp_gt_u32 vcc, 2, v2")
        e("s_nop 1")
        e("v_cndmask_b32 v95, v94, 0.5, vcc")
        e("v_cmp_gt_u32 vcc, 4, v2")
        e("s_nop 1")
        e("v_cndmask_b32 v94, v94, 0.5, vcc")
    e(f"s_cmp_ge_u32 s{sWAVE}, 4")
    e("s_cbranch_scc1 L_aux_w1")
    Pq=60; PR=76; RA=68; VV=16
    e("v_and_b32 v8, 31, v2")
    e("v_lshrrev_b32 v15, 5, v2")
    e(f"v_mul_u32_u24 v10, {8*1352}, v15")
    e("v_lshl_add_u32 v10, v8, 1, v10")
    e("v_cmp_gt_u32 vcc, 26, v8")
    e(f"s_mul_i32 s{sT+3}, s{sI}, 52")
    e(f"s_add_u32 s{sT+3}, s{sT+3}, 35152")
    e("v_cndmask_b32 v10, v7, v10, vcc")
    e("v_cmp_gt_u32 vcc, 32, v2")
    e("v_lshlrev_b32 v12, 2, v2")
    e("s_nop 0")
    e("v_cndmask_b32 v11, v7, v10, vcc")
    for s in range(2):
        for ee in range(8):
            h=16*s+ee
            if h%3==0 or ee==0:
                hb=h; e(f"s_add_u32 s{sT+2}, s{sT+3}, {h*1352}")
            va=11 if (s==1 and ee>=2) else 10
            e(f"buffer_load_ushort v{PR+s*8+ee}, v{va}, s[{S_C}:{S_C+3}], s{sT+2} offen offset:{(h-hb)*1352}")
    srd(S_O,P_WOUT,156)
    e(f"buffer_load_dword v13, v12, s[{S_O}:{S_O+3}], 0 offen offset:52")
    e(f"s_lshl_b32 s{sT+2}, s{sI}, 1")
    e(f"buffer_load_ushort v14, off, s[{S_O}:{S_O+3}], s{sT+2}")
    e("v_lshlrev_b32 v8, 6, v2")
    e("v_mov_b32 v9, 0")
    e("s_mov_b32 exec_lo, 0x7ffffff")
    e("s_mov_b32 exec_hi, 0")
    e("ds_write_b32 v8, v9 offset:52")
    e("ds_write_b32 v8, v9 offset:56")
    e("ds_write_b32 v8, v9 offset:60")
    e("s_mov_b64 exec, -1")
    e("v_and_b32 v8, 31, v2")
    e("v_lshlrev_b32 v93, 6, v8")
    e("v_lshl_add_u32 v93, v15, 4, v93")
    e(f"s_mul_i32 s{sT+1}, s{sWAVE}, 5120")
    e(f"s_add_u32 s{sT+1}, s{sT+1}, 4096")
    e("v_mul_u32_u24 v92, 144, v8")
    e("v_lshl_add_u32 v92, v15, 4, v92")
    e(f"v_add_u32 v92, s{sT+1}, v92")
    slots()
    e("v_cmp_lt_u32 vcc, 43, v2")
    e("v_subrev_u32 v10, 176, v4")
    e("v_mov_b32 v11, 26")
    for ee in range(8):
        e(f"v_add_u32 v8, {ee}, v10")
        e("v_lshl_add_u32 v8, v8, 1, v5")
        e(f"v_min_u32 v8, 31, v8")
        e(f"v_cndmask_b32 v8, v{QQ+ee}, v8, vcc")
        e(f"v_cndmask_b32 v9, v{PP+ee}, v11, vcc")
        e(f"v_mul_u32_u24 v9, 144, v9")
        e(f"v_lshl_add_u32 v9, v8, 2, v9")
        e(f"v_add_u32 v{RA+ee}, s{sT+1}, v9")
    e("v_lshrrev_b32 v8, 1, v2")
    e("v_lshl_add_u32 v6, v8, 1, 1")
    e("v_add_u32 v8, 22, v8")
    e("v_cndmask_b32 v6, v6, v8, vcc")
    st_addr(48)
    m3(18)
    e("s_mov_b32 exec_lo, 0x1fff")
    e("s_mov_b32 exec_hi, 0")
    e("s_waitcnt vmcnt(0)")
    e(f"ds_write_b32 v12, v13 offset:{26*64}")
    e("s_mov_b64 exec, -1")
    for r in range(8): e(f"v_lshl_or_b32 v{Pq+r}, v{PR+2*r+1}, 16, v{PR+2*r}")
    e("s_waitcnt lgkmcnt(0)")
    e("s_barrier")
    Qq=16; D=24
    e(f"ds_read_b128 v[{Qq}:{Qq+3}], v93")
    e(f"ds_read_b128 v[{Qq+4}:{Qq+7}], v93 offset:32")
    e("s_waitcnt lgkmcnt(0)")
    e(f"v_mfma_f32_32x32x16_bf16 v[{D}:{D+15}], v[{Pq}:{Pq+3}], v[{Qq}:{Qq+3}], 0")
    e(f"v_mfma_f32_32x32x16_bf16 v[{D}:{D+15}], v[{Pq+4}:{Pq+7}], v[{Qq+4}:{Qq+7}], v[{D}:{D+15}]")
    e(f"v_mfma_f32_32x32x16_bf16 v[{D}:{D+15}], v[{Qq}:{Qq+3}], v[{Pq}:{Pq+3}], v[{D}:{D+15}]")
    e(f"v_mfma_f32_32x32x16_bf16 v[{D}:{D+15}], v[{Qq+4}:{Qq+7}], v[{Pq+4}:{Pq+7}], v[{D}:{D+15}]")
    e("s_nop 11")
    for m in range(4):
        e(f"ds_write_b128 v92, v[{D+4*m}:{D+4*m+3}] offset:{m*32}")
    e("s_waitcnt lgkmcnt(0)")
    for ee in range(8): e(f"ds_read_b32 v{VV+ee}, v{RA+ee}")
    e("v_lshlrev_b32 v14, 16, v14")
    e(f"v_cmp_eq_u32 s[{sT}:{sT+1}], 46, v2")
    e(f"v_cmp_eq_u32 s[{sT+2}:{sT+3}], 47, v2")
    e("v_cmp_lt_u32 vcc, 45, v2")
    e("s_waitcnt lgkmcnt(0)")
    e(f"v_cndmask_b32 v{VV+5}, v{VV+5}, v14, s[{sT}:{sT+1}]")
    e(f"v_cndmask_b32 v{VV+5}, v{VV+5}, 0, s[{sT+2}:{sT+3}]")
    e(f"v_cndmask_b32 v{VV+6}, v{VV+6}, 0, vcc")
    e(f"v_cndmask_b32 v{VV+7}, v{VV+7}, 0, vcc")
    e("s_branch L_aux_pack")
    lab("L_aux_w1")
    GA=60; GB=68
    e(f"s_mul_i32 s{sT+3}, s{sI}, 1352")
    e(f"s_lshl_b32 s{sT+6}, s{sWAVE}, 11")
    e(f"s_add_u32 s{sT+6}, s{sT+6}, {32768-4*2048}")
    e(f"s_mov_b32 m0, s{sT+6}")
    e("v_lshlrev_b32 v12, 4, v2")
    e(f"buffer_load_dwordx4 v12, s[{S_C}:{S_C+3}], s{sT+3} offen lds")
    e(f"buffer_load_dwordx4 v12, s[{S_C}:{S_C+3}], s{sT+3} offen offset:1024 lds")
    slots()
    for ee in range(8):
        e(f"v_mul_u32_u24 v8, 26, v{PP+ee}")
        e(f"v_add_lshl_u32 v8, v8, v{QQ+ee}, 1")
        e(f"v_add_u32 v{GA+ee}, s{sT+6}, v8")
        e(f"v_mul_u32_u24 v9, 26, v{QQ+ee}")
        e(f"v_add_lshl_u32 v9, v9, v{PP+ee}, 1")
        e(f"v_add_u32 v{GB+ee}, s{sT+6}, v9")
    e("v_and_b32 v6, 62, v2")
    st_addr(44)
    m3(2)
    e("s_waitcnt lgkmcnt(0)")
    e("s_barrier")
    e("s_waitcnt vmcnt(0)")
    for ee in range(8):
        e(f"ds_read_u16 v{GA+ee}, v{GA+ee}")
        e(f"ds_read_u16 v{GB+ee}, v{GB+ee}")
    e("s_waitcnt lgkmcnt(0)")
    for ee in range(8):
        e(f"v_lshlrev_b32 v{GA+ee}, 16, v{GA+ee}")
        e(f"v_lshlrev_b32 v{GB+ee}, 16, v{GB+ee}")
        e(f"v_add_f32 v{VV+ee}, v{GA+ee}, v{GB+ee}")
    lab("L_aux_pack")
    srd(S_WS,P_WS,WS_SIZE); srd(S_A,P_DBG,256)
    e("v_cmp_eq_u32 vcc, 43, v2")
    for ee in range(8): e(f"v_mul_f32 v{VV+ee}, v{VV+ee}, v{94 if ee<5 else 95}")
    e(f"v_cndmask_b32 v{VV+7}, v{VV+7}, 0, vcc")
    for m in range(4): e(f"v_cvt_pk_bf16_f32 v{24+m}, v{VV+2*m}, v{VV+2*m+1}")
    e("ds_write_b128 v6, v[24:27]")
    e("v_lshlrev_b32 v8, 4, v0")
    e(f"s_movk_i32 s{sT+1}, 368")
    e(f"v_cmp_gt_u32 vcc, s{sT+1}, v0")
    e(f"s_lshr_b32 s{sT}, s{sI}, 2")
    e(f"s_mul_i32 s{sT+2}, s{sT}, 5888")
    e("v_cndmask_b32 v9, v7, v8, vcc")
    e("s_waitcnt lgkmcnt(0)")
    e("s_barrier")
    e(f"ds_read_b128 v[24:27], v8 offset:{STG}")
    e("s_waitcnt lgkmcnt(0)")
    e(f"buffer_store_dwordx4 v[24:27], v9, s[{S_WS}:{S_WS+3}], s{sT+2} offen sc0 sc1")
    st(96)
    e(f"s_lshl_b32 s{sT}, s{sT}, 2")
    e("v_mov_b32 v8, 1")
    e("s_waitcnt vmcnt(0)")
    e("s_barrier")
    e(f"s_cmp_lg_u32 s{sWAVE}, 0")
    e("s_cbranch_scc1 L_noflag")
    e("s_mov_b64 exec, 1")
    e(f"buffer_store_dword v8, off, s[{S_A}:{S_A+3}], s{sT} sc0 sc1")
    e("s_mov_b64 exec, -1")
    lab("L_noflag")
    if ST:
        st(98); e("s_waitcnt vmcnt(0)"); st(100,True)
        dump([10,92,94,96,98,100],1,2)
    e("s_branch L_aux_done")
    lab("L_prefetch")
    e("s_waitcnt lgkmcnt(0)")
    if opt.pf:
        srd(S_W,P_W,1664*3328)
        e(f"s_cmp_lt_u32 s{sXCD}, 4")
        e(f"s_cselect_b32 s{sT+2}, 27, 26")
        e(f"s_cmp_lt_u32 s{sXCD}, 3")
        e(f"s_cselect_b32 s{sT+2}, 28, s{sT+2}")
        e(f"s_sub_u32 s{sT}, s{sSLOT}, s{sT+2}")
        e(f"s_sub_u32 s{sT+2}, 32, s{sT+2}")
        e(f"s_mul_i32 s{sT+1}, s{sXCD}, 26")
        e(f"s_lshr_b32 s{sT+1}, s{sT+1}, 3")
        e(f"s_lshl_b32 s{sT+1}, s{sT+1}, 7")
        for u in range(4):
            e(f"v_add_u32 v3, {512*u}, v0")
            e(f"v_mul_u32_u24 v3, s{sT+2}, v3")
            e(f"v_add_u32 v3, s{sT}, v3")
            e("v_lshrrev_b32 v4, 2, v3")
            if opt.pskip: e(f"v_add_u32 v4, {opt.pskip}, v4")
            e("v_and_b32 v3, 3, v3")
            e(f"v_mul_u32_u24 v4, 3328, v4")
            e("v_lshl_add_u32 v3, v3, 7, v4")
            e(f"buffer_load_dword v{9+u}, v3, s[{S_W}:{S_W+3}], s{sT+1} offen")
        e(f"s_cmp_lg_u32 s{sSLOT}, 31")
        e("s_cbranch_scc1 L_aux_done")
        srd(S_B,P_W2,3328); srd(S_WS,P_WS,EPOCH+8192)
        e("v_lshlrev_b32 v3, 7, v0")
        e(f"buffer_load_dword v13, v3, s[{S_B}:{S_B+3}], 0 offen")
        e(f"s_mov_b32 s{sT}, {EPOCH}")
        e(f"buffer_load_dword v14, v3, s[{S_WS}:{S_WS+3}], s{sT} offen")
    lab("L_aux_done")
    e(f"s_cmp_lt_u32 s{sWAVE}, 4")
    e("s_cbranch_scc1 L_end")
    srd(S_TBL,P_TBL,128000); srd(S_IDX,P_IDX,106496)
    rowidx_load()
    e(f"v_mov_b32 v7, {FLAGS}")
    e("v_mov_b32 v8, 4")
    e("v_mov_b32 v9, 0")
    e(f"ds_write_b32 v7, v8 offset:{F_IT9}")
    e(f"ds_write_b32 v7, v8 offset:{F_RED}")
    e(f"ds_write_b32 v7, v8 offset:{F_G}")
    e(f"ds_write_b32 v7, v8 offset:{F_S1}")
    e(f"ds_write_b32 v7, v9 offset:{F_CW}")
    e(f"ds_write_b32 v7, v9 offset:{F_CW2}")
    e("s_waitcnt vmcnt(0)")
    e("v_lshlrev_b32 v29, 7, v29")
    x0_addrs()
    e("s_branch L_help_x0")
    lab("L_end")
    e("s_endpgm")
    L.append('.section .rodata,"a"'); L.append(".p2align 6"); L.append(f".amdhsa_kernel {KN}")
    for x in ["next_free_vgpr 256","next_free_sgpr 102","accum_offset 256","group_segment_fixed_size 0","kernarg_size 88",
              "user_sgpr_count 2","user_sgpr_kernarg_segment_ptr 1","system_sgpr_workgroup_id_x 1"]:
        L.append("  .amdhsa_"+x)
    L.append(".end_amdhsa_kernel")
    return "\n".join(L)+"\n"

if __name__=="__main__":
    ap=argparse.ArgumentParser()
    ap.add_argument("-o",default="k.s")
    for k,d in dict(b2g=1,cst=0,bgate=0,look=2,bstep=-1,bstep2=10,inv=0,zmid=22,csc=0,gateC=0,gq=0,rowx=1,wstop=5,wrest=16,bq=3,xlds=1,xgap=0,atid=1,xsl=8,pskip=128,d2late=1,wper=4,its=0,sched=0,nog=0,not_=0,c2=0,noz=0,lateb=1,dly=4,pst=0,enc=0,encrole=0,encwg=0,encwave=0,nocin=0,gcyc=0,psleep=4,now=0,stamps=0,pf=1,cpf=1,prio=1,bound=20000,zsplit=22,zbar=22,nt0=10,tb=4444,wsched=0).items(): ap.add_argument("--"+k,type=int,default=d)
    opt=ap.parse_args()
    for t in range(512): assert (t*5042)>>16==t//13, t
    open(opt.o,"w").write(build(opt))
```

```python
import sys, argparse, math, struct

class Q:
    def __init__(s,cap): s.ops=[]; s.cap=cap; s.done=0
    def issue(s,name): s.ops.append(name)
    def need(s,*names):
        r=99
        for name in names:
            i=len(s.ops)-1-s.ops[::-1].index(name)
            r=min(r,len(s.ops)-1-i)
        r=min(r,s.cap)
        s.done=max(s.done,len(s.ops)-r)
        return r
    def pending(s,*names):
        return any(len(s.ops)-1-s.ops[::-1].index(n)>=s.done for n in names)

WIMG=0; GRAN=65536; EPOCH=0x50000; STAMP=0x100000; WS_SIZE=0x200000
STG=49152; RING=128000; FLAGS=160768; CINW=49152
F_IT9,F_RED,F_G,F_PRE,F_S1,F_CW,F_CW2=0,4,8,12,16,20,24
C1=-2*math.sqrt(2/math.pi)*math.log2(math.e); C2=C1*0.044715
def f2u(x): return struct.unpack('<I',struct.pack('<f',x))[0]
KN="standalone__deep_cross_xdeepfm__recsys_kernel"

sWAVE,sXCD,sSLOT,sCB,sRB=3,4,5,7,8
P_IDX,P_TBL,P_CIN,P_WOUT,P_W,P_B1,P_W2,P_BO=16,18,20,22,24,26,28,30
P_OUT,P_DBG,P_WS=32,34,36
S_IDX,S_TBL,S_W,S_WS,S_A,S_B=40,44,48,52,56,60
sRING,sWR1,sWR2,sTM=64,65,15,14
sT=66

def pair_of(n):
    if n<169: dlt,m=divmod(n,13)
    else: dlt,m=13,n-169
    r=2*m
    return r,(r+dlt)%26

def build(opt):
    SEC={"entry":[]}; order=["entry","hpro","dnn0","pref","fold0","dnn","help","fold"] if opt.lay else ["entry","hpro","pref","fold0","dnn0","dnn","help","fold"]
    class LL:
        cur="entry"
        def append(s,x): SEC.setdefault(s.cur,[]).append(x)
    L=LL()
    def sec(n): L.cur=n
    cnt=[0]; lastw={}
    def e(x):
        L.append("    "+x)
        cnt[0]+= (int(x.split()[1])+1) if x.startswith("s_nop") else 1
    def hz(key,n):
        d=cnt[0]-lastw[key]
        if d<n: e(f"s_nop {n-d-1}")
    def lab(x): L.append(x+":")
    def cm(x): L.append("    ; "+x)
    E=lambda x:(lambda: e(x))
    ST=opt.stamps
    def srd(d,p,size):
        e(f"s_mov_b32 s{d}, s{p}"); e(f"s_mov_b32 s{d+1}, s{p+1}")
        e(f"s_mov_b32 s{d+2}, {size}"); e(f"s_mov_b32 s{d+3}, 0x20000")
    def st(r,wait=False):
        if ST:
            e(f"s_memrealtime s[{r}:{r+1}]")
            if wait: e("s_waitcnt lgkmcnt(0)")
    def dump(regs,area=0,role=0):
        if opt.enc:
            delay(regs,role); return
        dump_(regs,area)
    dl=[0]
    def delay(regs,role):
        dl[0]+=1; n=dl[0]
        e("s_mov_b64 exec, -1")
        e("s_waitcnt lgkmcnt(0)")
        if opt.enc==99:
            if role!=1: return
            srd(S_A,P_DBG,256)
            e("s_not_b32 s12, s10")
            e("v_mov_b32 v244, s12")
            e(f"v_mov_b32 v245, s{regs[10]}")
            e("v_mov_b32 v246, 1")
            e("s_mov_b64 exec, 1")
            e(f"buffer_atomic_umax v244, off, s[{S_A}:{S_A+3}], 0 offset:240 sc1")
            e(f"buffer_atomic_umax v245, off, s[{S_A}:{S_A+3}], 0 offset:244 sc1")
            e("s_waitcnt vmcnt(0)")
            e(f"buffer_atomic_add v246, off, s[{S_A}:{S_A+3}], 0 offset:248 sc0 sc1")
            e("s_waitcnt vmcnt(0)")
            e("v_readfirstlane_b32 s12, v246")
            e("s_cmp_lg_u32 s12, 1023")
            e(f"s_cbranch_scc1 L_dly{n}_x")
            e(f"buffer_load_dwordx2 v[244:245], off, s[{S_A}:{S_A+3}], 0 offset:240 sc1")
            e("s_waitcnt vmcnt(0)")
            e("v_readfirstlane_b32 s12, v244")
            e("v_readfirstlane_b32 s13, v245")
            e("s_not_b32 s12, s12")
            e("s_sub_u32 s12, s13, s12")
        else:
            if role!=opt.encrole: return
            e(f"s_cmp_lg_u32 s2, {opt.encwg}")
            e(f"s_cbranch_scc1 L_dly{n}_x")
            e(f"s_cmp_lg_u32 s{sWAVE}, {opt.encwave}")
            e(f"s_cbranch_scc1 L_dly{n}_x")
            e(f"s_sub_u32 s12, s{regs[opt.enc]}, s10")
        e("s_mul_i32 s12, s12, 100")
        e("s_memrealtime s[66:67]")
        e("s_waitcnt lgkmcnt(0)")
        e("s_add_u32 s12, s12, s66")
        lab(f"L_dly{n}")
        e("s_sleep 8")
        e("s_memrealtime s[66:67]")
        e("s_waitcnt lgkmcnt(0)")
        e("s_sub_u32 s13, s66, s12")
        e("s_cmp_lt_i32 s13, 0")
        e(f"s_cbranch_scc1 L_dly{n}")
        lab(f"L_dly{n}_x")
        e("s_mov_b64 exec, -1")
    def dump_(regs,area=0):
        e("s_mov_b64 exec, -1")
        e("s_waitcnt lgkmcnt(0)")
        e("s_lshl_b32 s12, s2, 3")
        e(f"s_add_u32 s12, s12, s{sWAVE}")
        e("s_lshl_b32 s12, s12, 6")
        e(f"s_add_u32 s12, s12, {STAMP+area*0x40000}")
        regs=list(regs)+[regs[0]]*(12-len(regs))
        for i,r in enumerate(regs): e(f"v_mov_b32 v{244+i}, s{r}")
        e("s_mov_b64 exec, 1")
        for i in range(3):
            e(f"buffer_store_dwordx4 v[{244+4*i}:{247+4*i}], off, s[{S_WS}:{S_WS+3}], s12 offset:{16*i}")
        e("s_mov_b64 exec, -1")
    def lds_spin(name,vaddr,vtmp,off,target,sleep=0):
        e(f"s_mov_b32 s{sT+4}, {opt.bound*8}")
        lab(name)
        e(f"ds_read_b32 v{vtmp}, v{vaddr} offset:{off}")
        e("s_waitcnt lgkmcnt(0)")
        e(f"v_readfirstlane_b32 s{sT+5}, v{vtmp}")
        e(f"s_cmp_ge_u32 s{sT+5}, {target}")
        e(f"s_cbranch_scc1 {name}_x")
        if sleep: e(f"s_sleep {sleep}")
        e(f"s_sub_u32 s{sT+4}, s{sT+4}, 1")
        e(f"s_cbranch_scc0 {name}")
        lab(name+"_x")

    IV=16; IA=24
    def rec_addrs():
        e(f"s_lshl_b32 s{sT+5}, s{sT}, 7")
        e(f"s_add_u32 s{sT+5}, s{sT+5}, {RING+4096}")
        e(f"v_lshl_add_u32 v7, v7, 3, s{sT+5}")
        e("v_mul_u32_u24 v9, 7, v8")
        e("v_and_b32 v8, 1, v8")
        for par in range(2):
            d=IA+2*par
            if par:
                e("v_xor_b32 v8, 1, v8"); e("v_add_u32 v9, 1, v9")
            e("v_lshrrev_b32 v10, 1, v9")
            e(f"v_lshl_add_u32 v{d}, v10, 8, v7")
            e(f"v_lshl_add_u32 v{d}, v8, 14, v{d}")
            e("v_lshlrev_b32 v10, 1, v8")
            e(f"v_xor_b32 v10, s{sT+2}, v10")
            e(f"v_lshl_add_u32 v{d}, v10, 1, v{d}")
            e(f"v_xor_b32 v{d+1}, 2, v{d}")
            e(f"v_add_u32 v{d+1}, 8192, v{d+1}")
    sROW=6; sE=38
    def rowidx_load():
        e(f"s_sub_u32 s{sT+6}, s{sWAVE}, 4")
        if opt.rowx:
            e(f"s_lshl2_add_u32 s{sROW}, s{sSLOT}, s{sT+6}")
            e(f"s_lshl_b32 s{sT+6}, s{sXCD}, 7")
            e(f"s_add_u32 s{sROW}, s{sROW}, s{sT+6}")
        else: e(f"s_lshl2_add_u32 s{sROW}, s2, s{sT+6}")
        e(f"s_mul_i32 s{sT+6}, s{sROW}, 104")
        e("v_lshlrev_b32 v30, 2, v2")
        e(f"buffer_load_dword v29, v30, s[{S_IDX}:{S_IDX+3}], s{sT+6} offen")
    L.append("; @launch grid=(256,1,1) block=(512,1,1) lds=163840")
    L.append('.amdgcn_target "amdgcn-amd-amdhsa--gfx950"')
    L.append(".text"); L.append(f".globl {KN}"); L.append(".p2align 8"); L.append(f".type {KN},@function")
    lab(KN)
    e("s_load_dwordx16 s[16:31], s[0:1], 0")
    e("s_load_dwordx4 s[32:35], s[0:1], 64")
    e("s_load_dwordx2 s[36:37], s[0:1], 80")
    st(10)
    e("s_cmp_ge_u32 s2, 256")
    e("s_cbranch_scc1 L_end")
    e("v_lshrrev_b32 v1, 6, v0")
    e("v_and_b32 v2, 63, v0")
    e(f"v_readfirstlane_b32 s{sWAVE}, v1")
    e(f"s_and_b32 s{sXCD}, s2, 7")
    e(f"s_lshr_b32 s{sSLOT}, s2, 3")
    e(f"s_cmp_lt_u32 s{sSLOT}, 26")
    e("s_cbranch_scc1 L_tile")
    if opt.cpf:
        e(f"s_getpc_b64 s[{S_IDX}:{S_IDX+1}]")
        lab("L_pc")
        e(f"s_sub_u32 s{S_IDX}, s{S_IDX}, L_pc-{KN}")
        e(f"s_subb_u32 s{S_IDX+1}, s{S_IDX+1}, 0")
        e(f"s_mov_b32 s{S_IDX+2}, L_end-{KN}")
        e(f"s_mov_b32 s{S_IDX+3}, 0x20000")
        e("v_lshlrev_b32 v3, 7, v0")
        e(f"buffer_load_dword v255, v3, s[{S_IDX}:{S_IDX+3}], 0 offen")
    e("s_branch L_aux")
    lab("L_tile")
    e(f"s_mul_i32 s6, s{sXCD}, 26")
    e(f"s_add_u32 s6, s6, s{sSLOT}")
    e(f"s_lshr_b32 s{sCB}, s6, 3")
    e(f"s_and_b32 s{sRB}, s6, 7")
    e(f"v_mov_b32 v7, {FLAGS}")
    e("v_mov_b32 v8, 0"); e("v_mov_b32 v9, 0")
    e("ds_write2_b64 v7, v[8:9], v[8:9] offset1:1")
    e("ds_write2_b64 v7, v[8:9], v[8:9] offset0:2 offset1:3")
    e("v_lshrrev_b32 v3, 3, v2")
    e("v_lshrrev_b32 v4, 4, v2")
    e("v_and_b32 v10, 7, v2")
    e(f"s_mov_b32 s{S_IDX+2}, 106496"); e(f"s_mov_b32 s{S_IDX+3}, 0x20000")
    e(f"s_and_b32 s{sT}, s{sWAVE}, 1")
    e(f"s_lshl_b32 s{sT+1}, s{sT}, 2")
    e("v_xor_b32 v5, v10, v4")
    e(f"v_xor_b32 v5, s{sT+1}, v5")
    e("v_lshlrev_b32 v5, 4, v5")
    e("v_lshl_add_u32 v5, v3, 7, v5")
    e(f"s_lshr_b32 s{sT+2}, s{sWAVE}, 1")
    e(f"s_lshl1_add_u32 s{sT+3}, s{sSLOT}, s{sT+2}")
    e(f"s_lshl_b32 s{sT+3}, s{sT+3}, 11")
    e(f"s_lshl_b32 s{sT+4}, s{sT}, 10")
    e(f"s_add_u32 s{sTM}, s{sT+3}, s{sT+4}")
    e(f"s_lshl_b32 s{sT+3}, s{sT}, 11")
    e(f"s_sub_u32 s{sWR2}, {63*2048}, s{sT+3}")
    e(f"s_add_u32 s{sWR1}, s{sWR2}, s{sT+4}")
    e(f"s_mov_b32 s{S_TBL+2}, 128000"); e(f"s_mov_b32 s{S_TBL+3}, 0x20000")
    e(f"s_cmp_lt_u32 s{sWAVE}, 4")
    e("s_cbranch_scc1 L_dnn")
    sec("dnn0"); lab("L_dnn")
    def tbl(n,vm):
        for t in range(n):
            e(f"s_mov_b32 m0, s{sTM}")
            e(f"s_add_u32 s{sTM}, s{sTM}, 8192")
            e(f"buffer_load_dwordx4 v5, s[{S_TBL}:{S_TBL+3}], m0 offen lds"); vm.issue("tbl")
            e(f"s_cmp_ge_u32 s{sTM}, s{sWR1}")
            e(f"s_cselect_b32 s{sT+5}, s{sWR2}, 0")
            e(f"s_sub_u32 s{sTM}, s{sTM}, s{sT+5}")

    vW,vT0,vT1=1,3,4
    AD=8; AF=16; F0=48; REC=80; ACC=128
    acc=lambda lt,ct: ACC+(lt*2+ct)*16
    Fr=lambda j,ks,ct: F0+(j&1)*16+(ks*2+ct)*4
    vm=Q(63); lg=Q(15)
    cm("---- DNN wave prologue ----")
    e("v_lshlrev_b32 v6, 4, v2")
    e(f"s_mul_i32 s{sT+4}, s{sRB}, 13312")
    e(f"s_mul_i32 s{sT+5}, s{sWAVE}, 3328")
    e(f"s_add_u32 s{sT+4}, s{sT+4}, s{sT+5}")
    e(f"s_lshl_b32 s{sRING}, s{sWAVE}, 13")
    e(f"s_add_u32 s{sRING}, s{sRING}, {RING}")
    e(f"s_add_u32 m0, s{sRING}, 4096")
    e(f"s_lshl_b32 s{sT+7}, s{sWAVE}, 5")
    e(f"v_add_u32 v9, s{sT+7}, v3")
    e("v_mul_u32_u24 v9, 3328, v9")
    e("v_lshlrev_b32 v11, 2, v4")
    e("v_and_b32 v11, 4, v11")
    e("v_xor_b32 v11, v11, v10")
    e("v_lshl_add_u32 v1, v11, 4, v9")
    e(f"s_lshl_b32 s{sT+7}, s{sCB}, 7")
    e(f"v_add_u32 v1, s{sT+7}, v1")
    e("v_lshrrev_b32 v12, 5, v2")
    e(f"v_lshl_add_u32 v11, v12, 5, s{sT+7}")
    e("s_waitcnt lgkmcnt(0)")
    if opt.pst: st(84)
    e(f"s_mov_b64 s[{S_IDX}:{S_IDX+1}], s[{P_IDX}:{P_IDX+1}]")
    e(f"s_mov_b64 s[{S_TBL}:{S_TBL+1}], s[{P_TBL}:{P_TBL+1}]")
    for i in range(4):
        if i==3: e("s_mov_b64 exec, 0xffff")
        e(f"buffer_load_dwordx4 v6, s[{S_IDX}:{S_IDX+3}], s{sT+4} offen offset:{1024*i} lds"); vm.issue(f"idx{i}")
    e("s_mov_b64 exec, -1")
    srd(S_W,P_W,1664*3328)
    srd(S_A,P_B1,3328)
    for pc in range(4):
        e(f"s_add_u32 m0, s{sRING}, {pc*1024}")
        e(f"s_mov_b32 s12, {8*pc*3328}")
        e(f"buffer_load_dwordx4 v1, s[{S_W}:{S_W+3}], s12 offen lds"); vm.issue(f"w0_{pc}")
    def bias_loads():
        for i in range(4):
            e(f"buffer_load_dwordx4 v[{106+4*i}:{109+4*i}], v{VB}, s[{S_A}:{S_A+3}], 0 offen offset:{(i>>1)*64+(i&1)*16}"); vm.issue(f"bias{i}")
    VB=6
    e("v_mov_b32 v6, v11")
    TB=[int(c,16) for c in str(opt.tb)]
    tbl(TB[0],vm)
    if opt.lay: e("s_branch L_dnn_b")
    sec("dnn"); lab("L_dnn_b")
    if opt.pst: st(86)
    e("v_and_b32 v13, 31, v2")
    e("v_mul_u32_u24 v13, 104, v13")
    e(f"s_lshl2_add_u32 s{sT+5}, s{sT+2}, {RING+4096}")
    e(f"v_add_u32 v13, s{sT+5}, v13")
    e("v_lshlrev_b32 v9, 1, v12")
    e(f"v_xor_b32 v9, s{sWAVE}, v9")
    e("v_lshl_add_u32 v24, v9, 13, v13")
    e("v_xor_b32 v9, 1, v9")
    e("v_lshl_add_u32 v25, v9, 13, v13")
    e("v_bfe_u32 v9, v2, 2, 2")
    e("v_lshlrev_b32 v3, 7, v9")
    e("v_lshl_add_u32 v3, v12, 10, v3")
    e("v_lshrrev_b32 v9, 1, v9")
    e("v_lshl_add_u32 v3, v9, 6, v3")
    e("v_and_b32 v9, 1, v2")
    e("v_lshl_add_u32 v3, v9, 5, v3")
    e("v_bfe_u32 v9, v2, 1, 1")
    e("v_lshl_add_u32 v3, v9, 3, v3")
    e("v_and_b32 v9, 1, v4")
    e("v_lshl_add_u32 v3, v9, 4, v3")
    e(f"v_add_u32 v3, s{sRING}, v3")
    e("v_xor_b32 v4, 64, v3")
    e(f"v_add_u32 v14, s{sT+1}, v12")
    e("v_lshl_or_b32 v14, v14, 16, v14")
    e(f"s_mov_b32 s{sT+6}, 0x00070007")
    e(f"s_waitcnt vmcnt({vm.need('idx3')})")
    if opt.pst: st(88)
    def lds_inc(va,off):
        e("v_mov_b32 v0, 1")
        e("s_mov_b64 exec, 1")
        e(f"ds_add_u32 v{va}, v0 offset:{off}")
        e("s_mov_b64 exec, -1")
    e("s_barrier")
    if opt.pst: st(90)
    sWO=12
    def dma(j,pcs):
        for pc in pcs:
            if opt.now and j>=3:
                vm.ops.insert(0,f"w{j}_{pc}"); continue
            e(f"s_add_u32 m0, s{sRING}, {((j&1)*4+pc)*1024}")
            e(f"s_mov_b32 s{sWO}, {(128*j+8*pc)*3328}")
            e(f"buffer_load_dwordx4 v{vW}, s[{S_W}:{S_W+3}], s{sWO} offen lds"); vm.issue(f"w{j}_{pc}")
    BI=106
    RW=lambda t,j: 160+t*14+j
    RECX=104
    for j in range(0,13,2):
        for t in range(2):
            e(f"ds_read2_b32 v[{RW(t,j)}:{RW(t,j)+1}], v{24+t} offset0:{2*j} offset1:{2*j+2}")
    tbl(TB[1],vm)
    srd(S_WS,P_WS,WS_SIZE)
    srd(S_B,P_W2,3328)
    e("s_waitcnt lgkmcnt(0)")
    e("s_barrier")
    st(76)
    tbl(TB[2],vm)
    for j in range(13):
        if j==6: tbl(TB[3],vm)
        d=REC+2*j
        e(f"v_lshl_or_b32 v{d}, v{RW(1,j)}, 16, v{RW(0,j)}")
        e(f"v_lshrrev_b32 v13, 1, v{d}")
        e(f"v_and_b32 v13, s{sT+6}, v13")
        e(f"v_lshl_or_b32 v{d}, v{d}, 3, v13")
        e(f"v_mov_b32 v{d+1}, v{d}")
        if j:
            e(f"v_permlane32_swap_b32 v{d-2}, v{d-1}")
            e(f"v_xor_b32 v{d-2}, v14, v{d-2}"); e(f"v_xor_b32 v{d-1}, v14, v{d-1}")
    e("s_nop 1")
    e(f"v_permlane32_swap_b32 v{REC+24}, v{REC+25}")
    e(f"v_xor_b32 v{REC+24}, v14, v{REC+24}"); e(f"v_xor_b32 v{REC+25}, v14, v{REC+25}")
    afr=lambda lt,ks: AF+8*lt+4*ks
    XF={0:80,1:88,2:afr(1,0),3:afr(2,0)}
    FX={0:[F0,F0+4,F0+8,F0+12],1:[8,12,40,44],2:[F0+16,F0+20,F0+24,F0+28],3:[F0,F0+4,F0+8,F0+12]}
    def adr(lt,j):
        e(f"v_lshlrev_b32_sdwa v{AD+2*lt}, 4, v{REC+2*j+(lt>>1)} dst_sel:DWORD dst_unused:UNUSED_PAD src0_sel:DWORD src1_sel:WORD_{lt&1}")
        e(f"v_xor_b32 v{AD+2*lt+1}, 32, v{AD+2*lt}")
    def Rop(lt,j):
        for ks in range(2):
            e(f"ds_read_b128 v[{afr(lt,ks)}:{afr(lt,ks)+3}], v{AD+2*lt+ks}"); lg.issue(f"R{lt}_{ks}_{j}")
    def adrX(c,a):
        e(f"v_lshlrev_b32_sdwa v{a}, 4, v{RECX} dst_sel:DWORD dst_unused:UNUSED_PAD src0_sel:DWORD src1_sel:WORD_{c>>1}")
        if c&1: e(f"v_xor_b32 v{a}, 64, v{a}")
        e(f"v_xor_b32 v{a+1}, 32, v{a}")
    def RX(c,a):
        for ks in range(2):
            e(f"ds_read_b128 v[{XF[c]+4*ks}:{XF[c]+4*ks+3}], v{a+ks}"); lg.issue(f"X{c}_{ks}")
    def Top(j,ks):
        for ct in range(2):
            for h4 in range(2):
                d=Fr(j,ks,ct)+2*h4
                e(f"ds_read_b64_tr_b16 v[{d}:{d+1}], v{vT0+ct} offset:{((j&1)*4+ks*2)*1024+h4*512}"); lg.issue(f"T{j}_{ks}_{ct}{h4}")
    def TX(c):
        for ks in range(2):
            for ct in range(2):
                for h4 in range(2):
                    d=FX[c][ks*2+ct]+2*h4
                    e(f"ds_read_b64_tr_b16 v[{d}:{d+1}], v{vT0+ct} offset:{c*8192+ks*2048+h4*512}"); lg.issue(f"TX{c}")
    for lt in range(4): adr(lt,0)
    if ST: e("s_waitcnt lgkmcnt(0)")
    e(f"s_waitcnt vmcnt({vm.need('w0_3')})")
    Top(0,0); Top(0,1)
    tbl(16-sum(TB),vm)
    dma(1,range(4))
    e("s_waitcnt lgkmcnt(0)")
    if not opt.d2late: dma(2,range(4))
    if opt.pst: st(92)
    e(f"s_waitcnt vmcnt({vm.need('tbl')})")
    st(78)
    e("s_barrier")
    st(80,True)
    if ST: e("s_memtime s[96:97]"); e("s_waitcnt lgkmcnt(0)")
    if opt.prio: e(f"s_setprio {opt.prio}")
    Rop(1,0); Rop(2,0); Rop(3,0); Rop(0,0)
    def group(lt,fa,xa,first,fills):
        for i,(ks,ct) in enumerate([(0,0),(0,1),(1,0),(1,1)]):
            c=f"v[{acc(lt,ct)}:{acc(lt,ct)+15}]"
            src="0" if (first and ks==0) else c
            e(f"v_mfma_f32_32x32x16_bf16 {c}, v[{fa[ks*2+ct]}:{fa[ks*2+ct]+3}], v[{xa+4*ks}:{xa+4*ks+3}], {src}")
            lastw[(lt,ct)]=cnt[0]
            for f in fills[i]: f()
    LT=[1,2,3,0]
    W2P=106; EV=122; VR=124; WA=125; RA1,RA2=5,6; sM=[0,sT+7,sT+8,13]
    def addrs():
        e(f"s_xor_b32 s{sT}, s{sWAVE}, 1")
        e(f"s_lshl_b32 s{sT}, s{sT}, 12")
        e(f"v_lshlrev_b32 v{RA1}, 4, v2")
        e(f"v_add_u32 v{WA}, s{sT}, v{RA1}")
        e(f"v_xor_b32 v{WA+1}, {3<<12}, v{WA}")
    def addrs2():
        e(f"v_xor_b32 v{WA+2}, {2<<12}, v{WA}")
        e(f"s_lshl_b32 s{sT}, s{sWAVE}, 12")
        e(f"v_add_u32 v{RA1}, s{sT}, v{RA1}")
    def addrs3(): pass
    SEL=80; TA=92
    selops=[E("v_and_b32 v0, 31, v2"),E(f"v_lshrrev_b32 v{TA}, 5, v2"),E(f"v_lshlrev_b32 v{TA}, 2, v{TA}"),E(f"v_sub_u32 v0, v0, v{TA}"),
            E(f"v_lshrrev_b32 v{TA}, 1, v0"),E(f"v_and_b32 v{TA}, 12, v{TA}"),E(f"v_and_or_b32 v{TA}, v0, 3, v{TA}"),
            E("v_and_b32 v0, 0xffffffe4, v0"),E("v_cmp_eq_u32 vcc, 0, v0"),E(f"v_lshlrev_b32 v0, 4, v{TA}"),E("v_and_b32 v0, 16, v0"),
            E(f"v_lshlrev_b32 v0, v0, s{sM[1]}"),E("v_cndmask_b32 v0, 0, v0, vcc"),E(f"v_lshrrev_b32 v{TA}, 1, v{TA}")]
    selops.insert(0,E(f"s_movk_i32 s{sM[1]}, 0x3f80"))
    for ms in ((0,1,2),(3,4,5),(6,7)):
        def f(ms=ms):
            for k,m in enumerate(ms): e(f"v_cmp_eq_u32 s[{sT+2*k}:{sT+2*k+1}], {m}, v{TA}")
            if len(ms)<3: e("s_nop 0")
            for k,m in enumerate(ms): e(f"v_cndmask_b32 v{SEL+m}, 0, v0, s[{sT+2*k}:{sT+2*k+1}]")
        selops.append(f)
    def cv(lt,ct):
        a=acc(lt,ct)
        return [(lambda m=m: (hz((lt,ct),12),e(f"v_cvt_pk_bf16_f32 v{a+m}, v{a+2*m}, v{a+2*m+1}"))) for m in range(8)]
    def late1():
        e(f"s_lshl_b32 s{sT}, s{sCB}, 7")
        e(f"v_lshrrev_b32 v{VR}, 5, v2")
        e(f"v_lshl_add_u32 v{VR}, v{VR}, 5, s{sT}")
    def late2(i):
        e(f"buffer_load_dwordx4 v[{W2P+4*i}:{W2P+4*i+3}], v{VR}, s[{S_B}:{S_B+3}], 0 offen offset:{(i>>1)*64+(i&1)*16}"); vm.issue(f"w2_{i}")
    def late3():
        e(f"v_and_b32 v{VR}, 31, v2")
        e(f"s_lshl_b32 s{sT}, s{sRB}, 7")
        e(f"s_lshl_b32 s{sT+1}, s{sWAVE}, 5")
        e(f"s_add_u32 s{sT}, s{sT}, s{sT+1}")
        e(f"v_add_lshl_u32 v{VR}, v{VR}, s{sT}, 3")
    def late4():
        e(f"s_mov_b32 s{sT+2}, {EPOCH}")
        e(f"buffer_load_dwordx2 v[{EV}:{EV+1}], v{VR}, s[{S_WS}:{S_WS+3}], s{sT+2} offen"); vm.issue("ev")
    def badd(ct,t):
        src=BI+ct*8+(t>>1)
        if t&1: e(f"v_and_b32 v0, 0xffff0000, v{src}")
        else:   e(f"v_lshlrev_b32 v0, 16, v{src}")
        hz((0,ct),12)
        e(f"v_add_f32 v{acc(0,ct)+t}, v{acc(0,ct)+t}, v0")
    def wv(n): return lambda n=n: (e(f"s_waitcnt vmcnt({vm.need(n)})") if vm.pending(n) else None)
    def wl(n): return lambda n=n: (e(f"s_waitcnt lgkmcnt({lg.need(n)})") if lg.pending(n) else None)
    ITS={1:76,2:78,3:80,5:82,7:84,9:86,11:88,12:90}
    def inc(off,nm):
        def f():
            e("s_mov_b64 exec, 1")
            e(f"ds_add_u32 v7, v{ONE} offset:{off}"); lg.issue(nm)
            e("s_mov_b64 exec, -1")
        return f
    ONE=88; vC1=89; S0=90; S1=91; TA,TB_=92,93
    def w1(lt,ct,h): return lambda: (e(f"ds_write_b128 v{WA+lt-1}, v[{acc(lt,ct)+4*h}:{acc(lt,ct)+4*h+3}] offset:{(lt-1)*16384+(ct*2+h)*1024}"),lg.issue("W"))
    W=lambda lt,ct: [w1(lt,ct,0),w1(lt,ct,1)]
    W2F=list(range(F0+16,F0+32))+list(range(8,16))+list(range(96,104))
    unp=[]
    for t in range(32):
        src=W2P+(t>>1)
        unp.append(E(f"v_and_b32 v{W2F[t]}, 0xffff0000, v{src}" if t&1 else f"v_lshlrev_b32 v{W2F[t]}, 16, v{src}"))
    def bar2():
        e("s_waitcnt lgkmcnt(0)"); lg.done=len(lg.ops)
        if opt.its: e("s_memtime s[92:93]")
        if not opt.pst: st(82)
        e("s_barrier")
        if not opt.pst: st(84)
    for j in range(13):
        cm(f"---- iteration {j} ----")
        if opt.its==1 and j in ITS: e(f"s_memtime s[{ITS[j]}:{ITS[j]+1}]")
        if opt.its and j==12: opt.pst=1
        for g,lt in enumerate(LT):
            needs=[f"R{lt}_1_{j}"]+([f"T{j}_1_11"] if g==0 else [])
            if lg.pending(*needs): e(f"s_waitcnt lgkmcnt({lg.need(*needs)})")
            if opt.its==2 and j<2: e(f"s_memtime s[{76+2*(4*j+g)}:{77+2*(4*j+g)}]")
            fills=[[],[],[],[]]
            if j==0:
                if g==0:
                    for i in range(4): fills[i].append(lambda i=i: dma(2,[i]))
                if g==1: fills[0].append(bias_loads)
                if g>=2: fills[0]+= [wv(f'w1_{2*(g-2)+1}'),lambda g=g: Top(1,g-2)]
            elif j<12:
                if j==1 and g<2:
                    fills[1].append(lambda g=g: dma(3,[2*g])); fills[2].append(lambda g=g: dma(3,[2*g+1]))
                if g<2: fills[0]+= [wv(f'w{j+1}_{2*g+1}'),lambda j=j,g=g: Top(j+1,g)]
                elif j+3<13:
                    fills[0]+= [wl(f'T{j+1}_{g-2}_11'),lambda j=j,g=g: dma(j+3,[2*(g-2)])]
                    fills[1].append(lambda j=j,g=g: dma(j+3,[2*(g-2)+1]))
            if j<12:
                fills[2].append(lambda j=j,lt=lt: adr(lt,j+1))
                fills[3].append(lambda j=j,lt=lt: Rop(lt,j+1))
            if j in (3,4,5,6) and g in (1,2):
                ct=(j-3)>>1; t0=((j-3)&1)*8+(g-1)*4
                if g==1 and j==3: fills[1].append(wv('bias3'))
                for i,ts in ((1,(0,1)),(2,(2,)),(3 if g==1 else 2,(3,))):
                    fills[i]+= [(lambda t=t0+t,ct=ct: badd(ct,t)) for t in ts]
            if j==7:
                sl={0:[(0,0),(0,5),(5,7),(7,9)],1:[(9,9),(9,15),(15,15),(15,15)],2:[(15,15),(15,15),(15,16),(16,16)],3:[(16,16),(16,16),(16,17),(17,18)]}[g]
                for i in range(4): fills[i]+=selops[sl[i][0]:sl[i][1]]
            if j==8 and g==0: fills[1].append(addrs)
            if j==8 and g==1: fills[1].append(addrs2); fills[2]+= [E(f"v_mov_b32 v{ONE}, 1"),E(f"v_mov_b32 v{vC1}, {f2u(C1)}"),E(f"v_mov_b32 v{S0}, 0"),E(f"v_mov_b32 v{S1}, 0")]
            if j==9 and g==3: fills[3].append(inc(F_IT9,"it9"))
            if j==10 and g==0: fills[1].append(late1); fills[2].append(lambda: late2(0))
            if j==10 and g==1: fills[1].append(lambda: late2(1)); fills[2].append(lambda: late2(2))
            if j==10 and g==2: fills[0]+= [wl('T11_1_11'),inc(F_S1,"s1")]; fills[1].append(lambda: late2(3))
            if j==10 and g==3: fills[0].append(late3); fills[1].append(late4)
            if j==12:
                G={0:[[E("s_waitcnt vmcnt(0)")]+unp[:5],unp[5:11],unp[11:16],unp[16:22]],
                   1:[unp[22:27]+([bar2] if opt.b2g==1 else []),unp[27:],cv(1,0)[:6],cv(1,0)[6:]+W(1,0)+cv(1,1)[:3]],
                   2:[cv(1,1)[3:]+W(1,1)[:1],W(1,1)[1:],cv(2,0)[:6],cv(2,0)[6:]+W(2,0)+cv(2,1)[:3]],
                   3:[cv(2,1)[3:]+W(2,1)[:1],W(2,1)[1:]+[E(f"s_mov_b32 s{sT+2}, {f2u(C2)}")],cv(3,0)[:6],cv(3,0)[6:]+W(3,0)+cv(3,1)+W(3,1)+[inc(F_RED,"inc")]]}[g]
                if g==0 and opt.b2g==0: G[3]=G[3]+[bar2]
                for i in range(4): fills[i]+=G[i]
            group(lt,[Fr(j,ks,ct) for ks in range(2) for ct in range(2)],afr(lt,0),j==0,fills)
    if not opt.pst: st(86)
    if ST: e("s_memtime s[98:99]")
    lds_spin("L_red",7,0,F_RED,4)
    if not opt.pst: st(88,True)
    if ST and opt.gcyc: e("s_memtime s[96:97]"); e("s_waitcnt lgkmcnt(0)")
    lg=Q(15)
    adds=[]
    for ct in range(2):
        for u in (1,2,3):
            for h in range(2):
                r=acc(u,ct)+4*h
                e(f"ds_read_b128 v[{r}:{r+3}], v{RA1} offset:{(u-1)*16384+(ct*2+h)*1024}"); lg.issue(f"p{ct}{u}{h}")
                def add(ct=ct,u=u,h=h,r=r):
                    if lg.pending(f"p{ct}{u}{h}"): e(f"s_waitcnt lgkmcnt({lg.need(f'p{ct}{u}{h}')})")
                    c=f"v[{acc(0,ct)}:{acc(0,ct)+15}]"
                    e(f"v_mfma_f32_32x32x16_bf16 {c}, v[{SEL+4*h}:{SEL+4*h+3}], v[{r}:{r+3}], {c}"); lastw[(0,ct)]=cnt[0]
                adds.append(add)
    for f in adds[:7]: f()
    adds=adds[7:]
    T=F0
    for q in range(8):
        a=ACC+4*q
        if q==opt.gq and opt.gateC==3: inc(F_G,"g")()
        def A():
            if adds: adds.pop(0)()
        hz((0,q>>2),12)
        for r in range(4): e(f"v_mul_f32 v{T+r}, v{a+r}, v{a+r}")
        for r in range(4): e(f"v_fma_f32 v{T+r}, v{T+r}, s{sT+2}, v{vC1}")
        A()
        for r in range(4): e(f"v_mul_f32 v{T+r}, v{T+r}, v{a+r}")
        for r in range(4): e(f"v_exp_f32 v{T+r}, v{T+r}")
        A()
        for r in range(4): e(f"v_mul_f32 v{a+r}, v{a+r}, v{W2F[4*q+r]}")
        for r in range(4): e(f"v_add_f32 v{T+r}, 1.0, v{T+r}")
        for r in range(4): e(f"v_rcp_f32 v{T+r}, v{T+r}")
        if adds: A()
        else: e("s_nop 0")
        for r in range(4): e(f"v_fmac_f32 v{S0 if r&1==0 else S1}, v{a+r}, v{T+r}")
    e(f"v_add_f32 v{S0}, v{S0}, v{S1}")
    e(f"v_mov_b32 v{S1}, v{S0}")
    e(f"s_movk_i32 s{sT}, 0xff")
    e(f"v_add_u32 v{EV}, 1, v{EV}")
    e(f"v_permlane32_swap_b32 v{S0}, v{S1}")
    e(f"s_lshl_b32 s{sT+1}, s{sCB}, 13")
    e(f"v_add_f32 v{S0}, v{S0}, v{S1}")
    e(f"s_add_u32 s{sT+1}, s{sT+1}, {GRAN}")
    e(f"v_bfi_b32 v{EV+1}, s{sT}, v{EV+1}, v{S0}")
    e(f"s_mov_b32 exec_hi, 0")
    e(f"buffer_store_dwordx2 v[{EV}:{EV+1}], v{VR}, s[{S_WS}:{S_WS+3}], s{sT+1} offen sc0 sc1")
    if ST:
        if opt.gcyc: e("s_memtime s[98:99]")
        if not opt.pst: st(90); e("s_waitcnt vmcnt(0)"); st(92,True)
        e("s_waitcnt lgkmcnt(0)"); e("s_sub_u32 s98, s98, s96")
        if opt.its:
            for r in range(76,94,2):
                e(f"s_sub_u32 s{r}, s{r}, s96"); e(f"s_mul_i32 s{r}, s{r}, 100"); e(f"s_add_u32 s{r}, s{r}, s10")
        dump([10,76,78,80,82,84,86,88,90,92,98])
    e("s_endpgm")

    sec("hpro")
    def late_sloads():
        e(f"s_lshl_b32 s{sT+8}, s{sROW}, 3")
        e(f"s_add_u32 s{sT+8}, s{sT+8}, {EPOCH}")
        e(f"s_load_dwordx2 s[{sE}:{sE+1}], s[{P_WS}:{P_WS+1}], s{sT+8}")
        e(f"s_load_dword s9, s[{P_BO}:{P_BO+1}], 0")
    X=32
    def x0_addrs():
        e("v_and_b32 v3, 31, v2")
        e("v_lshlrev_b32 v4, 2, v3")
        for r in range(26): e(f"v_readlane_b32 s{76+r}, v29, {r}")
        e("s_mov_b32 exec_hi, 0")
        for r in range(26): e(f"v_xor_b32 v{X+r}, s{76+r}, v4")
        e("s_mov_b64 exec, -1")
        e("s_mov_b32 exec_lo, 0")
        for r in range(26): e(f"v_xor_b32 v{X+r}, s{76+(r+1)%26}, v4")
        e("s_mov_b64 exec, -1")
    lab("L_help_pro")
    e(f"s_mov_b32 m0, s{sTM}")
    e(f"s_mov_b32 s{sT+3}, {opt.nt0-1}")
    e("s_waitcnt lgkmcnt(0)")
    e(f"s_mov_b64 s[{S_IDX}:{S_IDX+1}], s[{P_IDX}:{P_IDX+1}]")
    e(f"s_mov_b64 s[{S_TBL}:{S_TBL+1}], s[{P_TBL}:{P_TBL+1}]")
    def tloop(name):
        lab(name)
        e(f"buffer_load_dwordx4 v5, s[{S_TBL}:{S_TBL+3}], m0 offen lds")
        e("s_add_u32 m0, m0, 8192")
        e(f"s_cmp_ge_u32 m0, s{sWR1}")
        e(f"s_cselect_b32 s{sT+5}, s{sWR2}, 0")
        e(f"s_sub_u32 m0, m0, s{sT+5}")
        e(f"s_sub_u32 s{sT+3}, s{sT+3}, 1")
        e(f"s_cbranch_scc0 {name}")
    rowidx_load()
    tloop("L_tloop")
    e(f"s_mov_b32 s{sT+3}, {16-opt.nt0-1}")
    e("s_barrier")
    tloop("L_tloop2")
    e("s_barrier")
    e("s_branch L_help_b")
    sec("help"); lab("L_help_b")
    e("s_waitcnt vmcnt(16)")
    if opt.xlds:
        e("v_lshlrev_b32 v8, 3, v29"); e("v_and_b32 v8, 0x70, v8"); e("v_lshl_or_b32 v29, v29, 7, v8")
    else: e("v_lshlrev_b32 v29, 7, v29")
    x0_addrs()
    e("s_waitcnt vmcnt(0)")
    e("s_barrier")
    if opt.xsl: e(f"s_sleep {opt.xsl}")
    if opt.xlds:
        for r in range(26):
            e(f"ds_read_b32 v{X+r}, v{X+r}")
            if opt.xgap and r%opt.xgap==opt.xgap-1: e("s_sleep 1")
        e("s_branch L_help_main")
    lab("L_help_x0")
    for r in range(26):
        e(f"buffer_load_dword v{X+r}, v{X+r}, s[{S_TBL}:{S_TBL+3}], 0 offen")
    lab("L_help_main")
    srd(S_WS,P_WS,WS_SIZE); srd(S_A,P_DBG,256); srd(S_B,P_OUT,2048)
    Z0=8
    ZE=lambda s: Z0+4*s
    ZO=lambda s: Z0+88+4*s
    LE=lambda k: Z0+176+4*k
    LO=lambda k: Z0+184+4*k
    R=200; MT=252
    e("v_lshrrev_b32 v5, 2, v3")
    e("v_mul_u32_u24 v5, 5888, v5")
    e("v_and_b32 v6, 3, v2")
    e("v_lshl_add_u32 v5, v6, 4, v5")
    e("v_lshrrev_b32 v6, 5, v2")
    e("v_lshl_add_u32 v5, v6, 6, v5")
    e("v_mov_b32 v7, 0x7fff0000")
    e("v_cmp_gt_u32 vcc, 26, v3")
    e("v_lshlrev_b32 v6, 13, v2")
    e(f"s_lshl_b32 s{sT}, s{sROW}, 3")
    e("v_cndmask_b32 v5, v7, v5, vcc")
    e(f"s_add_u32 s{sT}, s{sT}, {GRAN}")
    e(f"v_add_u32 v6, s{sT}, v6")
    e("v_cmp_gt_u32 vcc, 26, v2")
    e("v_lshlrev_b32 v1, 4, v2")
    e(f"v_add_u32 v1, 97280, v1")
    e("v_cndmask_b32 v6, v7, v6, vcc")
    e(f"v_mov_b32 v7, {FLAGS}")
    e("s_waitcnt vmcnt(0) lgkmcnt(0)")
    late_sloads()
    st(76)
    for r in range(26):
        e(f"v_lshlrev_b32 v{R+2*r}, 16, v{X+r}")
        e(f"v_and_b32 v{R+2*r+1}, 0xffff0000, v{X+r}")
    def zstep(s):
        if opt.noz: return
        for m in range(4):
            (a1,a2),(b1,b2)=pair_of(8*s+2*m),pair_of(8*s+2*m+1)
            e(f"v_mul_f32 v{MT}, v{R+2*a1}, v{R+2*a2}")
            e(f"v_mul_f32 v{MT+2}, v{R+2*b1}, v{R+2*b2}")
            e(f"v_mul_f32 v{MT+1}, v{R+2*a1+1}, v{R+2*a2+1}")
            e(f"v_mul_f32 v{MT+3}, v{R+2*b1+1}, v{R+2*b2+1}")
            e(f"v_cvt_pk_bf16_f32 v{ZE(s)+m}, v{MT}, v{MT+2}")
            e(f"v_cvt_pk_bf16_f32 v{ZO(s)+m}, v{MT+1}, v{MT+3}")
    def zlin():
        for k in range(2):
            for m2 in range(4):
                m=k*8+2*m2
                for tl,d in ((0,LE(k)+m2),(1,LO(k)+m2)):
                    if m+1<=12: e(f"v_cvt_pk_bf16_f32 v{d}, v{R+4*m+tl}, v{R+4*(m+1)+tl}")
                    elif m==12: e(f"v_cvt_pk_bf16_f32 v{d}, v{R+4*m+tl}, 1.0")
                    else: e(f"v_mov_b32 v{d}, 0")
    SC=" sc1" if opt.csc else ""
    zlin()
    for s in range(opt.zsplit): zstep(s)
    st(78)
    e(f"s_load_dwordx8 s[92:99], s[{P_DBG}:{P_DBG+1}], 0")
    e("s_waitcnt lgkmcnt(0)")
    for k in range(1,7): e(f"s_and_b32 s92, s92, s{92+k}")
    e("s_cmp_lg_u32 s92, 0")
    e("s_cbranch_scc1 L_polled")
    lds_spin("L_it9",7,4,F_IT9,1,sleep=4)
    e(f"v_lshlrev_b32 v0, 2, v2")
    e(f"buffer_load_dword v4, v0, s[{S_A}:{S_A+3}], 0 offen sc1")
    for s in range(opt.zsplit,opt.zmid): zstep(s)
    e(f"s_mov_b32 s{sT+4}, {opt.bound}")
    e(f"s_mov_b32 s{sT+2}, 0x7f")
    e(f"s_mov_b32 s{sT+3}, 0")
    lab("L_poll1")
    e("s_waitcnt vmcnt(0)")
    e("v_cmp_ne_u32 vcc, 0, v4")
    e(f"s_and_b64 vcc, vcc, s[{sT+2}:{sT+3}]")
    e(f"s_cmp_eq_u64 vcc, s[{sT+2}:{sT+3}]")
    e("s_cbranch_scc1 L_polled")
    e(f"s_sleep {opt.psleep}")
    e(f"buffer_load_dword v4, v0, s[{S_A}:{S_A+3}], 0 offen sc1")
    e(f"s_sub_u32 s{sT+4}, s{sT+4}, 1")
    e("s_cbranch_scc0 L_poll1")
    lab("L_polled")
    if opt.inv: e("buffer_inv sc1")
    st(80)
    lds_spin("L_s1",7,0,F_S1,4,sleep=2)
    e(f"s_sub_u32 s{sT}, s{sWAVE}, 4")
    e(f"s_lshl_b32 s{sT+1}, s{sT}, 13")
    e(f"s_add_u32 m0, s{sT+1}, {RING+4096}")
    e(f"s_lshl_b32 s{sT}, s{sT}, 9")
    e(f"s_sub_u32 s{sT}, s{sT}, 256")
    for t in range(4):
        if t<2:
            e(f"s_cmp_eq_u32 s{sWAVE}, 4")
            e(f"s_cselect_b32 s{sT+1}, {(44+t)*128}, s{sT}")
        else: e(f"s_mov_b32 s{sT+1}, s{sT}")
        e(f"buffer_load_dwordx4 v5, s[{S_WS}:{S_WS+3}], s{sT+1} offen sc1 lds")
        if t<3:
            e(f"s_add_u32 m0, m0, 1024")
            e(f"s_add_u32 s{sT}, s{sT}, 128")
    for s in range(opt.zmid,opt.zbar): zstep(s)
    e("s_waitcnt vmcnt(0)")
    st(82)
    e("s_barrier")
    for s in range(opt.zbar,22): zstep(s)
    def hinc(off):
        e("v_mov_b32 v0, 1")
        e("s_mov_b64 exec, 1")
        e("s_waitcnt vmcnt(0)")
        e(f"ds_add_u32 v7, v0 offset:{off}")
        e("s_mov_b64 exec, -1")
    CWB=97280
    def dmaB():
        e(f"s_sub_u32 s{sT}, s{sWAVE}, 4")
        e(f"s_lshl_b32 s{sT+1}, s{sT}, 10")
        e(f"s_add_u32 m0, s{sT+1}, {CWB}")
        e(f"s_lshl_b32 s{sT}, s{sT}, 7")
        e(f"s_add_u32 s{sT}, s{sT}, {14*128}")
        for t in range(8):
            if t==7:
                e(f"s_cmp_ge_u32 s{sWAVE}, 6")
                e("s_cbranch_scc1 L_dma_done")
            e(f"buffer_load_dwordx4 v5, s[{S_WS}:{S_WS+3}], s{sT} offen sc1 lds")
            if t<7:
                e(f"s_add_u32 m0, m0, 4096")
                e(f"s_add_u32 s{sT}, s{sT}, 512")
        lab("L_dma_done")
    if opt.bstep<0:
        if opt.bgate: lds_spin("L_wred",7,0,F_RED,4,sleep=1)
        dmaB()
    st(84)
    AUE,AUO=200,216; RG=232
    AXE=LE(0); AXO=ZE(0)
    vm=Q(63); lg=Q(15)
    seq=[('eo',22),('eo',23)]+[('e',s) for s in range(4)]+[('o',s) for s in range(4)]+[('eo',s) for s in range(4,22)]
    free=[RG+4*k for k in range(6)]
    reg={}
    lL=[]; lG=[]
    for i,(tl,s) in enumerate(seq):
        for k,fi in ([('x',2*s),('u',2*s+1)] if s<22 else [('u',44+s-22)]): lL.append((i,k,fi))
    cur=[0]; okB=[False]
    def ld():
        if not free or not lL or lL[0][0]>cur[0]+opt.look: return False
        i,k,fi=lL[0]
        if 14<=fi<44 and not okB[0]: return False
        lL.pop(0); r=free.pop(0); reg[(i,k)]=r
        if 14<=fi<44: off=(fi-14)*1024
        else:
            p=fi+2 if fi<14 else fi-44
            off=RING+4096-CWB+(p>>2)*8192+(p&3)*1024
        e(f"ds_read_b128 v[{r}:{r+3}], v1 offset:{off}"); lg.issue(f"{k}{i}")
        return True
    if opt.gateC: lds_spin("L_gC",7,0,{1:F_RED,3:F_G}[opt.gateC],4,sleep=1)
    st(88,True)
    if ST: e("s_memtime s[96:97]"); e("s_waitcnt lgkmcnt(0)")
    while ld(): pass
    first={'xe':1,'xo':1,'ue':1,'uo':1}
    GV=RG; rel=[]
    for i,(tl,s) in enumerate(seq):
        cur[0]=i
        CS={2:76,6:78,10:80,12:82,13:84,16:86,20:88,24:92}
        if opt.cst and i in CS: e(f"s_memtime s[{CS[i]}:{CS[i]+1}]")
        if i==opt.bstep:
            if opt.bgate: lds_spin("L_wred",7,0,F_RED,4,sleep=1); lg.done=len(lg.ops)
            dmaB()
        if i==opt.bstep2: hinc(F_CW2); lg.issue("cw2")
        if i==12:
            lds_spin("L_cw2",7,0,F_CW2,4); lg.done=len(lg.ops); okB[0]=True
            while ld(): pass
        q,nm=(lg,"lgkmcnt") if f'u{i}' in lg.ops else (vm,"vmcnt")
        if q.pending(f'u{i}'): e(f"s_waitcnt {nm}({q.need(f'u{i}')})")
        n=0
        for t in tl:
            z=(ZE if t=='e' else ZO)(s) if s<22 else (LE if t=='e' else LO)(s-22)
            for k,a in (('x',AXE if t=='e' else AXO),('u',AUE if t=='e' else AUO)):
                if (i,k) not in reg: continue
                c=f"v[{a}:{a+15}]"; r=reg[(i,k)]
                e(f"v_mfma_f32_32x32x16_bf16 {c}, v[{r}:{r+3}], v[{z}:{z+3}], {0 if first[k+t] else c}"); first[k+t]=0
                n+=1
                if n==1: free+=rel; rel=[]
                ld()
                if len(tl)==1: ld()
            if s<22 and not (t=='e' and s<4): rel.append(z)
        rel+= [reg[(i,k)] for k in 'xu' if (i,k) in reg]
        if i==len(seq)-3:
            assert not lL and not lG
            GV=free.pop(0)
            e(f"buffer_load_dwordx2 v[{GV}:{GV+1}], v6, s[{S_WS}:{S_WS+3}], 0 offen sc1"); vm.issue("gv")
    e(f"s_add_u32 s{sE}, s{sE}, 1")
    e(f"s_and_b32 s{sE+1}, s{sE+1}, 0xff")
    e("s_nop 9")
    V=free.pop(0); V2=V+1
    e(f"v_mul_f32 v{V}, v{AXE}, v{AUE}")
    e(f"v_mul_f32 v{V2}, v{AXO}, v{AUO}")
    for t in range(1,14):
        e(f"v_fmac_f32 v{V}, v{AXE+t}, v{AUE+t}")
        e(f"v_fmac_f32 v{V2}, v{AXO+t}, v{AUO+t}")
    e(f"v_add_f32 v{V}, v{V}, v{V2}")
    st(90)
    if ST: e("s_memtime s[98:99]")
    e("s_mov_b32 exec_lo, 0x3ffffff")
    e("s_mov_b32 exec_hi, 0")
    e(f"s_mov_b32 s{sT+4}, {opt.bound}")
    G2=GV+2
    def chk(g,lbl):
        e(f"v_and_b32 v{V2}, 0xff, v{g+1}")
        e(f"v_cmp_eq_u32 vcc, s{sE}, v{g}")
        e(f"v_cmp_eq_u32 s[{sT}:{sT+1}], s{sE+1}, v{V2}")
        e(f"v_and_b32 v{V2}, 0xffffff00, v{g+1}")
        e(f"s_and_b64 vcc, vcc, s[{sT}:{sT+1}]")
        e("s_cmp_eq_u64 vcc, exec")
        e(f"s_cbranch_scc1 L_got")
    lab("L_poll2")
    e(f"buffer_load_dwordx2 v[{G2}:{G2+1}], v6, s[{S_WS}:{S_WS+3}], 0 offen sc1")
    e("s_waitcnt vmcnt(1)")
    chk(GV,0)
    e(f"buffer_load_dwordx2 v[{GV}:{GV+1}], v6, s[{S_WS}:{S_WS+3}], 0 offen sc1")
    e("s_waitcnt vmcnt(1)")
    chk(G2,1)
    e(f"s_sub_u32 s{sT+4}, s{sT+4}, 1")
    e("s_cbranch_scc0 L_poll2")
    lab("L_got")
    e(f"v_add_f32 v{V}, v{V}, v{V2}")
    e("s_mov_b64 exec, -1")
    if not opt.cst: st(92)
    for dpp in ["quad_perm:[1,0,3,2] row_mask:0xf bank_mask:0xf","quad_perm:[2,3,0,1] row_mask:0xf bank_mask:0xf",
                "row_half_mirror row_mask:0xf bank_mask:0xf","row_mirror row_mask:0xf bank_mask:0xf",
                "row_bcast:15 row_mask:0xa bank_mask:0xf","row_bcast:31 row_mask:0xc bank_mask:0xf"]:
        e("s_nop 1")
        e(f"v_add_f32_dpp v{V}, v{V}, v{V} {dpp}")
    e("s_lshl_b32 s9, s9, 16")
    e(f"v_add_f32 v{V}, s9, v{V}")
    e(f"v_cvt_pk_bf16_f32 v{V}, v{V}, v{V}")
    e(f"s_lshl_b32 s{sT}, s{sROW}, 1")
    e(f"s_lshl_b32 s{sT+1}, s{sROW}, 3")
    e(f"s_add_u32 s{sT+1}, s{sT+1}, {EPOCH}")
    e(f"v_mov_b32 v{V2}, s{sE}")
    e("s_mov_b32 exec_lo, 0")
    e("s_mov_b32 exec_hi, 0x80000000")
    e(f"buffer_store_short v{V}, off, s[{S_B}:{S_B+3}], s{sT}")
    e(f"buffer_store_dword v{V2}, off, s[{S_WS}:{S_WS+3}], s{sT+1}")
    if ST:
        e("s_waitcnt vmcnt(0)"); st(94,True); e("s_sub_u32 s98, s98, s96")
        if opt.cst:
            for r in (76,78,80,82,84,86,88,92):
                e(f"s_sub_u32 s{r}, s{r}, s96"); e(f"s_mul_i32 s{r}, s{r}, 100"); e(f"s_add_u32 s{r}, s{r}, s10")
        dump([10,76,78,80,82,84,86,88,90,92,94,98],0,1)
    e("s_endpgm")

    sec("pref")
    lab("L_aux")
    e(f"s_lshl1_add_u32 s{sT+1}, s{sXCD}, s{sSLOT}")
    e(f"s_sub_u32 s{sT+1}, s{sT+1}, 26")
    e(f"s_cmp_ge_u32 s{sSLOT}, 28")
    e("s_cbranch_scc1 L_prefetch")
    e(f"s_cmp_lt_u32 s{sT+1}, 7")
    e("s_cbranch_scc1 L_fold")
    sec("fold0"); lab("L_fold")
    cm("---- CIN weight folding: rows i = 4*pidx + (wave&3) ----")
    S_C=S_W; S_O=S_B; sI=6
    e(f"s_and_b32 s{sT}, s{sWAVE}, 3")
    e(f"s_lshl2_add_u32 s{sI}, s{sT+1}, s{sT}")
    M=16
    e("v_lshlrev_b32 v3, 2, v0")
    e("v_mov_b32 v7, 0x7fff0000")
    e(f"s_movk_i32 s{sT+1}, 338")
    e(f"v_cmp_gt_u32 vcc, s{sT+1}, v0")
    e("v_lshrrev_b32 v4, 1, v2")
    e("v_and_b32 v5, 1, v2")
    e("v_cndmask_b32 v3, v7, v3, vcc")
    e("v_lshlrev_b32 v4, 3, v4")
    e("s_waitcnt lgkmcnt(0)")
    e(f"s_load_dwordx16 s[76:91], s[{P_WOUT}:{P_WOUT+1}], 104")
    srd(S_C,P_CIN,105456)
    for gg in range(26):
        if gg%3==0: e(f"s_mov_b32 s{sT+2}, {2*35152+gg*1352}")
        e(f"buffer_load_dword v{M+gg}, v3, s[{S_C}:{S_C+3}], s{sT+2} offen offset:{(gg%3)*1352}")
    e("s_branch L_fold_b")
    sec("fold"); lab("L_fold_b")
    PP=44; QQ=52
    def slots():
        for ee in range(8):
            e(f"v_add_u32 v8, {ee}, v4")
            e("v_mul_u32_u24 v9, 5042, v8")
            e("v_lshrrev_b32 v9, 16, v9")
            e("v_mul_u32_u24 v10, 13, v9")
            e("v_sub_u32 v10, v8, v10")
            e(f"v_lshl_add_u32 v{PP+ee}, v10, 1, v5")
            e(f"v_add_u32 v{QQ+ee}, v{PP+ee}, v9")
            e(f"v_subrev_u32 v10, 26, v{QQ+ee}")
            e(f"v_min_u32 v{QQ+ee}, v{QQ+ee}, v10")
    def m3(later):
        e("v_mul_u32_u24 v8, 5042, v0")
        e("v_lshrrev_b32 v8, 16, v8")
        e("v_mul_u32_u24 v9, 13, v8")
        e("v_sub_u32 v9, v0, v9")
        e("v_lshlrev_b32 v9, 7, v9")
        e("v_lshl_add_u32 v96, v8, 1, v9")
        e("s_waitcnt lgkmcnt(0)")
        st(92)
        for gg in range(26):
            sreg=76+(gg>>1)
            if gg&1: e(f"s_and_b32 s{sT+4+(gg&1)}, s{sreg}, 0xffff0000")
            else:    e(f"s_lshl_b32 s{sT+4+(gg&1)}, s{sreg}, 16")
            if gg%4==0: e(f"s_waitcnt vmcnt({later+25-min(gg+3,25)})")
            e(f"v_lshlrev_b32 v8, 16, v{M+gg}")
            e(f"v_and_b32 v9, 0xffff0000, v{M+gg}")
            if gg==0:
                e(f"v_mul_f32 v10, s{sT+4}, v8"); e(f"v_mul_f32 v11, s{sT+4}, v9")
            else:
                e(f"v_fmac_f32 v10, s{sT+4+(gg&1)}, v8"); e(f"v_fmac_f32 v11, s{sT+4+(gg&1)}, v9")
        e("v_cvt_pk_bf16_f32 v10, v10, v11")
        e(f"s_movk_i32 s{sT+1}, 338")
        e(f"v_cmp_gt_u32 vcc, s{sT+1}, v0")
        e(f"s_and_saveexec_b64 s[{sT+2}:{sT+3}], vcc")
        e("ds_write_b16 v96, v10")
        e("ds_write_b16_d16_hi v96, v10 offset:64")
        e("s_mov_b64 exec, -1")
        st(94)
    def st_addr(cnt):
        e("v_lshlrev_b32 v6, 7, v6")
        e("v_lshl_add_u32 v6, v5, 6, v6")
        e(f"s_and_b32 s{sT+1}, s{sWAVE}, 3")
        e(f"s_lshl_b32 s{sT+1}, s{sT+1}, 4")
        e(f"s_add_u32 s{sT+1}, s{sT+1}, {STG}")
        e(f"v_add_u32 v6, s{sT+1}, v6")
        e(f"v_cmp_gt_u32 vcc, {cnt}, v2")
        e("v_mov_b32 v94, 1.0")
        e(f"v_mov_b32 v8, {STG+8192}")
        e("v_cndmask_b32 v6, v8, v6, vcc")
        e("v_cmp_gt_u32 vcc, 2, v2")
        e("s_nop 1")
        e("v_cndmask_b32 v95, v94, 0.5, vcc")
        e("v_cmp_gt_u32 vcc, 4, v2")
        e("s_nop 1")
        e("v_cndmask_b32 v94, v94, 0.5, vcc")
    e(f"s_cmp_ge_u32 s{sWAVE}, 4")
    e("s_cbranch_scc1 L_aux_w1")
    Pq=60; PR=76; RA=68; VV=16
    e("v_and_b32 v8, 31, v2")
    e("v_lshrrev_b32 v15, 5, v2")
    e(f"v_mul_u32_u24 v10, {8*1352}, v15")
    e("v_lshl_add_u32 v10, v8, 1, v10")
    e("v_cmp_gt_u32 vcc, 26, v8")
    e(f"s_mul_i32 s{sT+3}, s{sI}, 52")
    e(f"s_add_u32 s{sT+3}, s{sT+3}, 35152")
    e("v_cndmask_b32 v10, v7, v10, vcc")
    e("v_cmp_gt_u32 vcc, 32, v2")
    e("v_lshlrev_b32 v12, 2, v2")
    e("s_nop 0")
    e("v_cndmask_b32 v11, v7, v10, vcc")
    for s in range(2):
        for ee in range(8):
            h=16*s+ee
            if h%3==0 or ee==0:
                hb=h; e(f"s_add_u32 s{sT+2}, s{sT+3}, {h*1352}")
            va=11 if (s==1 and ee>=2) else 10
            e(f"buffer_load_ushort v{PR+s*8+ee}, v{va}, s[{S_C}:{S_C+3}], s{sT+2} offen offset:{(h-hb)*1352}")
    srd(S_O,P_WOUT,156)
    e(f"buffer_load_dword v13, v12, s[{S_O}:{S_O+3}], 0 offen offset:52")
    e(f"s_lshl_b32 s{sT+2}, s{sI}, 1")
    e(f"buffer_load_ushort v14, off, s[{S_O}:{S_O+3}], s{sT+2}")
    e("v_lshlrev_b32 v8, 6, v2")
    e("v_mov_b32 v9, 0")
    e("s_mov_b32 exec_lo, 0x7ffffff")
    e("s_mov_b32 exec_hi, 0")
    e("ds_write_b32 v8, v9 offset:52")
    e("ds_write_b32 v8, v9 offset:56")
    e("ds_write_b32 v8, v9 offset:60")
    e("s_mov_b64 exec, -1")
    e("v_and_b32 v8, 31, v2")
    e("v_lshlrev_b32 v93, 6, v8")
    e("v_lshl_add_u32 v93, v15, 4, v93")
    e(f"s_mul_i32 s{sT+1}, s{sWAVE}, 5120")
    e(f"s_add_u32 s{sT+1}, s{sT+1}, 4096")
    e("v_mul_u32_u24 v92, 144, v8")
    e("v_lshl_add_u32 v92, v15, 4, v92")
    e(f"v_add_u32 v92, s{sT+1}, v92")
    slots()
    e("v_cmp_lt_u32 vcc, 43, v2")
    e("v_subrev_u32 v10, 176, v4")
    e("v_mov_b32 v11, 26")
    for ee in range(8):
        e(f"v_add_u32 v8, {ee}, v10")
        e("v_lshl_add_u32 v8, v8, 1, v5")
        e(f"v_min_u32 v8, 31, v8")
        e(f"v_cndmask_b32 v8, v{QQ+ee}, v8, vcc")
        e(f"v_cndmask_b32 v9, v{PP+ee}, v11, vcc")
        e(f"v_mul_u32_u24 v9, 144, v9")
        e(f"v_lshl_add_u32 v9, v8, 2, v9")
        e(f"v_add_u32 v{RA+ee}, s{sT+1}, v9")
    e("v_lshrrev_b32 v8, 1, v2")
    e("v_lshl_add_u32 v6, v8, 1, 1")
    e("v_add_u32 v8, 22, v8")
    e("v_cndmask_b32 v6, v6, v8, vcc")
    st_addr(48)
    m3(18)
    e("s_mov_b32 exec_lo, 0x1fff")
    e("s_mov_b32 exec_hi, 0")
    e("s_waitcnt vmcnt(0)")
    e(f"ds_write_b32 v12, v13 offset:{26*64}")
    e("s_mov_b64 exec, -1")
    for r in range(8): e(f"v_lshl_or_b32 v{Pq+r}, v{PR+2*r+1}, 16, v{PR+2*r}")
    e("s_waitcnt lgkmcnt(0)")
    e("s_barrier")
    Qq=16; D=24
    e(f"ds_read_b128 v[{Qq}:{Qq+3}], v93")
    e(f"ds_read_b128 v[{Qq+4}:{Qq+7}], v93 offset:32")
    e("s_waitcnt lgkmcnt(0)")
    e(f"v_mfma_f32_32x32x16_bf16 v[{D}:{D+15}], v[{Pq}:{Pq+3}], v[{Qq}:{Qq+3}], 0")
    e(f"v_mfma_f32_32x32x16_bf16 v[{D}:{D+15}], v[{Pq+4}:{Pq+7}], v[{Qq+4}:{Qq+7}], v[{D}:{D+15}]")
    e(f"v_mfma_f32_32x32x16_bf16 v[{D}:{D+15}], v[{Qq}:{Qq+3}], v[{Pq}:{Pq+3}], v[{D}:{D+15}]")
    e(f"v_mfma_f32_32x32x16_bf16 v[{D}:{D+15}], v[{Qq+4}:{Qq+7}], v[{Pq+4}:{Pq+7}], v[{D}:{D+15}]")
    e("s_nop 11")
    for m in range(4):
        e(f"ds_write_b128 v92, v[{D+4*m}:{D+4*m+3}] offset:{m*32}")
    e("s_waitcnt lgkmcnt(0)")
    for ee in range(8): e(f"ds_read_b32 v{VV+ee}, v{RA+ee}")
    e("v_lshlrev_b32 v14, 16, v14")
    e(f"v_cmp_eq_u32 s[{sT}:{sT+1}], 46, v2")
    e(f"v_cmp_eq_u32 s[{sT+2}:{sT+3}], 47, v2")
    e("v_cmp_lt_u32 vcc, 45, v2")
    e("s_waitcnt lgkmcnt(0)")
    e(f"v_cndmask_b32 v{VV+5}, v{VV+5}, v14, s[{sT}:{sT+1}]")
    e(f"v_cndmask_b32 v{VV+5}, v{VV+5}, 0, s[{sT+2}:{sT+3}]")
    e(f"v_cndmask_b32 v{VV+6}, v{VV+6}, 0, vcc")
    e(f"v_cndmask_b32 v{VV+7}, v{VV+7}, 0, vcc")
    e("s_branch L_aux_pack")
    lab("L_aux_w1")
    GA=60; GB=68
    e(f"s_mul_i32 s{sT+3}, s{sI}, 1352")
    e(f"s_lshl_b32 s{sT+6}, s{sWAVE}, 11")
    e(f"s_add_u32 s{sT+6}, s{sT+6}, {32768-4*2048}")
    e(f"s_mov_b32 m0, s{sT+6}")
    e("v_lshlrev_b32 v12, 4, v2")
    e(f"buffer_load_dwordx4 v12, s[{S_C}:{S_C+3}], s{sT+3} offen lds")
    e(f"buffer_load_dwordx4 v12, s[{S_C}:{S_C+3}], s{sT+3} offen offset:1024 lds")
    slots()
    for ee in range(8):
        e(f"v_mul_u32_u24 v8, 26, v{PP+ee}")
        e(f"v_add_lshl_u32 v8, v8, v{QQ+ee}, 1")
        e(f"v_add_u32 v{GA+ee}, s{sT+6}, v8")
        e(f"v_mul_u32_u24 v9, 26, v{QQ+ee}")
        e(f"v_add_lshl_u32 v9, v9, v{PP+ee}, 1")
        e(f"v_add_u32 v{GB+ee}, s{sT+6}, v9")
    e("v_and_b32 v6, 62, v2")
    st_addr(44)
    m3(2)
    e("s_waitcnt lgkmcnt(0)")
    e("s_barrier")
    e("s_waitcnt vmcnt(0)")
    for ee in range(8):
        e(f"ds_read_u16 v{GA+ee}, v{GA+ee}")
        e(f"ds_read_u16 v{GB+ee}, v{GB+ee}")
    e("s_waitcnt lgkmcnt(0)")
    for ee in range(8):
        e(f"v_lshlrev_b32 v{GA+ee}, 16, v{GA+ee}")
        e(f"v_lshlrev_b32 v{GB+ee}, 16, v{GB+ee}")
        e(f"v_add_f32 v{VV+ee}, v{GA+ee}, v{GB+ee}")
    lab("L_aux_pack")
    srd(S_WS,P_WS,WS_SIZE); srd(S_A,P_DBG,256)
    e("v_cmp_eq_u32 vcc, 43, v2")
    for ee in range(8): e(f"v_mul_f32 v{VV+ee}, v{VV+ee}, v{94 if ee<5 else 95}")
    e(f"v_cndmask_b32 v{VV+7}, v{VV+7}, 0, vcc")
    for m in range(4): e(f"v_cvt_pk_bf16_f32 v{24+m}, v{VV+2*m}, v{VV+2*m+1}")
    e("ds_write_b128 v6, v[24:27]")
    e("v_lshlrev_b32 v8, 4, v0")
    e(f"s_movk_i32 s{sT+1}, 368")
    e(f"v_cmp_gt_u32 vcc, s{sT+1}, v0")
    e(f"s_lshr_b32 s{sT}, s{sI}, 2")
    e(f"s_mul_i32 s{sT+2}, s{sT}, 5888")
    e("v_cndmask_b32 v9, v7, v8, vcc")
    e("s_waitcnt lgkmcnt(0)")
    e("s_barrier")
    e(f"ds_read_b128 v[24:27], v8 offset:{STG}")
    e("s_waitcnt lgkmcnt(0)")
    e(f"buffer_store_dwordx4 v[24:27], v9, s[{S_WS}:{S_WS+3}], s{sT+2} offen sc0 sc1")
    st(96)
    e(f"s_lshl_b32 s{sT}, s{sT}, 2")
    e("v_mov_b32 v8, 1")
    e("s_waitcnt vmcnt(0)")
    e("s_barrier")
    e(f"s_cmp_lg_u32 s{sWAVE}, 0")
    e("s_cbranch_scc1 L_noflag")
    e("s_mov_b64 exec, 1")
    e(f"buffer_store_dword v8, off, s[{S_A}:{S_A+3}], s{sT} sc0 sc1")
    e("s_mov_b64 exec, -1")
    lab("L_noflag")
    if ST:
        st(98); e("s_waitcnt vmcnt(0)"); st(100,True)
        dump([10,92,94,96,98,100],1,2)
    e("s_branch L_aux_done")
    sec("pref")
    lab("L_prefetch")
    e("s_waitcnt lgkmcnt(0)")
    if opt.pf:
        srd(S_W,P_W,1664*3328)
        e(f"s_cmp_lt_u32 s{sXCD}, 4")
        e(f"s_cselect_b32 s{sT+2}, 27, 26")
        e(f"s_cmp_lt_u32 s{sXCD}, 3")
        e(f"s_cselect_b32 s{sT+2}, 28, s{sT+2}")
        e(f"s_sub_u32 s{sT}, s{sSLOT}, s{sT+2}")
        e(f"s_sub_u32 s{sT+2}, 32, s{sT+2}")
        e(f"s_mul_i32 s{sT+1}, s{sXCD}, 26")
        e(f"s_lshr_b32 s{sT+1}, s{sT+1}, 3")
        e(f"s_lshl_b32 s{sT+1}, s{sT+1}, 7")
        for u in range(4):
            e(f"v_add_u32 v3, {512*u}, v0")
            e(f"v_mul_u32_u24 v3, s{sT+2}, v3")
            e(f"v_add_u32 v3, s{sT}, v3")
            e("v_lshrrev_b32 v4, 2, v3")
            if opt.pskip: e(f"v_add_u32 v4, {opt.pskip}, v4")
            e("v_and_b32 v3, 3, v3")
            e(f"v_mul_u32_u24 v4, 3328, v4")
            e("v_lshl_add_u32 v3, v3, 7, v4")
            e(f"buffer_load_dword v{9+u}, v3, s[{S_W}:{S_W+3}], s{sT+1} offen")
        e(f"s_cmp_lg_u32 s{sSLOT}, 31")
        e("s_cbranch_scc1 L_aux_done")
        srd(S_B,P_W2,3328); srd(S_WS,P_WS,EPOCH+8192)
        e("v_lshlrev_b32 v3, 7, v0")
        e(f"buffer_load_dword v13, v3, s[{S_B}:{S_B+3}], 0 offen")
        e(f"s_mov_b32 s{sT}, {EPOCH}")
        e(f"buffer_load_dword v14, v3, s[{S_WS}:{S_WS+3}], s{sT} offen")
    e("s_branch L_aux_done")
    sec("fold")
    lab("L_aux_done")
    e(f"s_cmp_lt_u32 s{sWAVE}, 4")
    e("s_cbranch_scc1 L_end")
    srd(S_TBL,P_TBL,128000); srd(S_IDX,P_IDX,106496)
    rowidx_load()
    e(f"v_mov_b32 v7, {FLAGS}")
    e("v_mov_b32 v8, 4")
    e("v_mov_b32 v9, 0")
    e(f"ds_write_b32 v7, v8 offset:{F_IT9}")
    e(f"ds_write_b32 v7, v8 offset:{F_RED}")
    e(f"ds_write_b32 v7, v8 offset:{F_G}")
    e(f"ds_write_b32 v7, v8 offset:{F_S1}")
    e(f"ds_write_b32 v7, v9 offset:{F_CW}")
    e(f"ds_write_b32 v7, v9 offset:{F_CW2}")
    e("s_waitcnt vmcnt(0)")
    e("v_lshlrev_b32 v29, 7, v29")
    x0_addrs()
    e("s_branch L_help_x0")
    lab("L_end")
    e("s_endpgm")
    sec("tail")
    L.append('.section .rodata,"a"'); L.append(".p2align 6"); L.append(f".amdhsa_kernel {KN}")
    for x in ["next_free_vgpr 256","next_free_sgpr 102","accum_offset 256","group_segment_fixed_size 0","kernarg_size 88",
              "user_sgpr_count 2","user_sgpr_kernarg_segment_ptr 1","system_sgpr_workgroup_id_x 1"]:
        L.append("  .amdhsa_"+x)
    L.append(".end_amdhsa_kernel")
    return "\n".join(sum((SEC.get(k,[]) for k in order+["tail"]),[]))+"\n"

if __name__=="__main__":
    ap=argparse.ArgumentParser()
    ap.add_argument("-o",default="k.s")
    for k,d in dict(lay=1,b2g=1,cst=0,bgate=1,look=2,bstep=3,bstep2=10,inv=0,zmid=22,csc=0,gateC=0,gq=0,rowx=1,wstop=5,wrest=16,bq=3,xlds=1,xgap=0,atid=1,xsl=8,pskip=128,d2late=1,wper=4,its=0,sched=0,nog=0,not_=0,c2=0,noz=0,lateb=1,dly=4,pst=0,enc=0,encrole=0,encwg=0,encwave=0,nocin=0,gcyc=0,psleep=4,now=0,stamps=0,pf=1,cpf=1,prio=1,bound=20000,zsplit=22,zbar=22,nt0=10,tb=4444,wsched=0).items(): ap.add_argument("--"+k,type=int,default=d)
    opt=ap.parse_args()
    for t in range(512): assert (t*5042)>>16==t//13, t
    open(opt.o,"w").write(build(opt))
```

```python
import sys, argparse, math, struct

class Q:
    def __init__(s,cap): s.ops=[]; s.cap=cap; s.done=0
    def issue(s,name): s.ops.append(name)
    def need(s,*names):
        r=99
        for name in names:
            i=len(s.ops)-1-s.ops[::-1].index(name)
            r=min(r,len(s.ops)-1-i)
        r=min(r,s.cap)
        s.done=max(s.done,len(s.ops)-r)
        return r
    def pending(s,*names):
        return any(len(s.ops)-1-s.ops[::-1].index(n)>=s.done for n in names)

WIMG=0; GRAN=65536; EPOCH=0x50000; STAMP=0x100000; WS_SIZE=0x200000
STG=49152; RING=128000; FLAGS=160768; CINW=49152
F_IT9,F_RED,F_G,F_PRE,F_S1,F_CW,F_CW2=0,4,8,12,16,20,24
C1=-2*math.sqrt(2/math.pi)*math.log2(math.e); C2=C1*0.044715
def f2u(x): return struct.unpack('<I',struct.pack('<f',x))[0]
KN="standalone__deep_cross_xdeepfm__recsys_kernel"

sWAVE,sXCD,sSLOT,sCB,sRB=3,4,5,7,8
P_IDX,P_TBL,P_CIN,P_WOUT,P_W,P_B1,P_W2,P_BO=16,18,20,22,24,26,28,30
P_OUT,P_DBG,P_WS=32,34,36
S_IDX,S_TBL,S_W,S_WS,S_A,S_B=40,44,48,52,56,60
sRING,sWR1,sWR2,sTM=64,65,15,14
sT=66

def pair_of(n):
    if n<169: dlt,m=divmod(n,13)
    else: dlt,m=13,n-169
    r=2*m
    return r,(r+dlt)%26

def build(opt):
    SEC={"entry":[]}; order=["entry","dnn0","hpro","pref","fold0","dnn","help","fold"]
    class LL:
        cur="entry"
        def append(s,x): SEC.setdefault(s.cur,[]).append(x)
    L=LL()
    def sec(n): L.cur=n
    cnt=[0]; lastw={}
    def e(x):
        L.append("    "+x)
        cnt[0]+= (int(x.split()[1])+1) if x.startswith("s_nop") else 1
    def hz(key,n):
        d=cnt[0]-lastw[key]
        if d<n: e(f"s_nop {n-d-1}")
    def lab(x): L.append(x+":")
    def cm(x): L.append("    ; "+x)
    E=lambda x:(lambda: e(x))
    ST=opt.stamps
    def srd(d,p,size):
        e(f"s_mov_b32 s{d}, s{p}"); e(f"s_mov_b32 s{d+1}, s{p+1}")
        e(f"s_mov_b32 s{d+2}, {size}"); e(f"s_mov_b32 s{d+3}, 0x20000")
    def st(r,wait=False):
        if ST:
            e(f"s_memrealtime s[{r}:{r+1}]")
            if wait: e("s_waitcnt lgkmcnt(0)")
    def dump(regs,area=0,role=0):
        if opt.enc:
            delay(regs,role); return
        dump_(regs,area)
    dl=[0]
    def delay(regs,role):
        dl[0]+=1; n=dl[0]
        e("s_mov_b64 exec, -1")
        e("s_waitcnt lgkmcnt(0)")
        if opt.enc==99:
            if role!=1: return
            srd(S_A,P_DBG,256)
            e("s_not_b32 s12, s10")
            e("v_mov_b32 v244, s12")
            e(f"v_mov_b32 v245, s{regs[10]}")
            e("v_mov_b32 v246, 1")
            e("s_mov_b64 exec, 1")
            e(f"buffer_atomic_umax v244, off, s[{S_A}:{S_A+3}], 0 offset:240 sc1")
            e(f"buffer_atomic_umax v245, off, s[{S_A}:{S_A+3}], 0 offset:244 sc1")
            e("s_waitcnt vmcnt(0)")
            e(f"buffer_atomic_add v246, off, s[{S_A}:{S_A+3}], 0 offset:248 sc0 sc1")
            e("s_waitcnt vmcnt(0)")
            e("v_readfirstlane_b32 s12, v246")
            e("s_cmp_lg_u32 s12, 1023")
            e(f"s_cbranch_scc1 L_dly{n}_x")
            e(f"buffer_load_dwordx2 v[244:245], off, s[{S_A}:{S_A+3}], 0 offset:240 sc1")
            e("s_waitcnt vmcnt(0)")
            e("v_readfirstlane_b32 s12, v244")
            e("v_readfirstlane_b32 s13, v245")
            e("s_not_b32 s12, s12")
            e("s_sub_u32 s12, s13, s12")
        else:
            if role!=opt.encrole: return
            e(f"s_cmp_lg_u32 s2, {opt.encwg}")
            e(f"s_cbranch_scc1 L_dly{n}_x")
            e(f"s_cmp_lg_u32 s{sWAVE}, {opt.encwave}")
            e(f"s_cbranch_scc1 L_dly{n}_x")
            e(f"s_sub_u32 s12, s{regs[opt.enc]}, s10")
        e("s_mul_i32 s12, s12, 100")
        e("s_memrealtime s[66:67]")
        e("s_waitcnt lgkmcnt(0)")
        e("s_add_u32 s12, s12, s66")
        lab(f"L_dly{n}")
        e("s_sleep 8")
        e("s_memrealtime s[66:67]")
        e("s_waitcnt lgkmcnt(0)")
        e("s_sub_u32 s13, s66, s12")
        e("s_cmp_lt_i32 s13, 0")
        e(f"s_cbranch_scc1 L_dly{n}")
        lab(f"L_dly{n}_x")
        e("s_mov_b64 exec, -1")
    def dump_(regs,area=0):
        e("s_mov_b64 exec, -1")
        e("s_waitcnt lgkmcnt(0)")
        e("s_lshl_b32 s12, s2, 3")
        e(f"s_add_u32 s12, s12, s{sWAVE}")
        e("s_lshl_b32 s12, s12, 6")
        e(f"s_add_u32 s12, s12, {STAMP+area*0x40000}")
        regs=list(regs)+[regs[0]]*(12-len(regs))
        for i,r in enumerate(regs): e(f"v_mov_b32 v{244+i}, s{r}")
        e("s_mov_b64 exec, 1")
        for i in range(3):
            e(f"buffer_store_dwordx4 v[{244+4*i}:{247+4*i}], off, s[{S_WS}:{S_WS+3}], s12 offset:{16*i}")
        e("s_mov_b64 exec, -1")
    def lds_spin(name,vaddr,vtmp,off,target,sleep=0):
        e(f"s_mov_b32 s{sT+4}, {opt.bound*8}")
        lab(name)
        e(f"ds_read_b32 v{vtmp}, v{vaddr} offset:{off}")
        e("s_waitcnt lgkmcnt(0)")
        e(f"v_readfirstlane_b32 s{sT+5}, v{vtmp}")
        e(f"s_cmp_ge_u32 s{sT+5}, {target}")
        e(f"s_cbranch_scc1 {name}_x")
        if sleep: e(f"s_sleep {sleep}")
        e(f"s_sub_u32 s{sT+4}, s{sT+4}, 1")
        e(f"s_cbranch_scc0 {name}")
        lab(name+"_x")

    IV=16; IA=24
    def rec_addrs():
        e(f"s_lshl_b32 s{sT+5}, s{sT}, 7")
        e(f"s_add_u32 s{sT+5}, s{sT+5}, {RING+4096}")
        e(f"v_lshl_add_u32 v7, v7, 3, s{sT+5}")
        e("v_mul_u32_u24 v9, 7, v8")
        e("v_and_b32 v8, 1, v8")
        for par in range(2):
            d=IA+2*par
            if par:
                e("v_xor_b32 v8, 1, v8"); e("v_add_u32 v9, 1, v9")
            e("v_lshrrev_b32 v10, 1, v9")
            e(f"v_lshl_add_u32 v{d}, v10, 8, v7")
            e(f"v_lshl_add_u32 v{d}, v8, 14, v{d}")
            e("v_lshlrev_b32 v10, 1, v8")
            e(f"v_xor_b32 v10, s{sT+2}, v10")
            e(f"v_lshl_add_u32 v{d}, v10, 1, v{d}")
            e(f"v_xor_b32 v{d+1}, 2, v{d}")
            e(f"v_add_u32 v{d+1}, 8192, v{d+1}")
    sROW=6; sE=38
    def rowidx_load():
        e(f"s_sub_u32 s{sT+6}, s{sWAVE}, 4")
        if opt.rowx:
            e(f"s_lshl2_add_u32 s{sROW}, s{sSLOT}, s{sT+6}")
            e(f"s_lshl_b32 s{sT+6}, s{sXCD}, 7")
            e(f"s_add_u32 s{sROW}, s{sROW}, s{sT+6}")
        else: e(f"s_lshl2_add_u32 s{sROW}, s2, s{sT+6}")
        e(f"s_mul_i32 s{sT+6}, s{sROW}, 104")
        e("v_lshlrev_b32 v30, 2, v2")
        e(f"buffer_load_dword v29, v30, s[{S_IDX}:{S_IDX+3}], s{sT+6} offen")
    L.append("; @launch grid=(256,1,1) block=(512,1,1) lds=163840")
    L.append('.amdgcn_target "amdgcn-amd-amdhsa--gfx950"')
    L.append(".text"); L.append(f".globl {KN}"); L.append(".p2align 8"); L.append(f".type {KN},@function")
    lab(KN)
    e("s_load_dwordx16 s[16:31], s[0:1], 0")
    e("s_load_dwordx4 s[32:35], s[0:1], 64")
    e("s_load_dwordx2 s[36:37], s[0:1], 80")
    st(10)
    e("s_cmp_ge_u32 s2, 256")
    e("s_cbranch_scc1 L_end")
    e("v_lshrrev_b32 v1, 6, v0")
    e("v_and_b32 v2, 63, v0")
    e(f"v_readfirstlane_b32 s{sWAVE}, v1")
    e(f"s_and_b32 s{sXCD}, s2, 7")
    e(f"s_lshr_b32 s{sSLOT}, s2, 3")
    e(f"s_cmp_ge_u32 s{sSLOT}, 26")
    e("s_cbranch_scc1 L_aux0")
    sec("pref"); lab("L_aux0")
    e(f"s_cmp_gt_u32 s{sSLOT}, 26")
    e("s_cbranch_scc1 L_prefetch")
    if opt.cpf:
        e(f"s_getpc_b64 s[{S_IDX}:{S_IDX+1}]")
        lab("L_pc")
        e(f"s_sub_u32 s{S_IDX}, s{S_IDX}, L_pc-{KN}")
        e(f"s_subb_u32 s{S_IDX+1}, s{S_IDX+1}, 0")
        e(f"s_mov_b32 s{S_IDX+2}, L_end-{KN}")
        e(f"s_mov_b32 s{S_IDX+3}, 0x20000")
        e("v_lshlrev_b32 v3, 7, v0")
        e(f"buffer_load_dword v255, v3, s[{S_IDX}:{S_IDX+3}], 0 offen")
    sec("entry")
    e(f"s_mul_i32 s6, s{sXCD}, 26")
    e(f"s_add_u32 s6, s6, s{sSLOT}")
    e(f"s_and_b32 s{sRB}, s6, 7")
    e(f"s_and_b32 s{sT}, s{sWAVE}, 1")
    e(f"s_lshr_b32 s{sT+2}, s{sWAVE}, 1")
    e(f"s_lshl2_add_u32 s{sT+4}, s{sRB}, s{sT+2}")
    e(f"s_mul_i32 s{sT+4}, s{sT+4}, 3328")
    e(f"s_lshl_b32 s{sT+5}, s{sT}, 11")
    e(f"s_add_u32 s{sT+4}, s{sT+4}, s{sT+5}")
    e(f"s_lshl_b32 s{sT+3}, s{sT+2}, 13")
    e(f"s_add_u32 s{sT+3}, s{sT+3}, s{sT+5}")
    e(f"s_add_u32 m0, s{sT+3}, {RING+4096}")
    e("v_lshlrev_b32 v6, 4, v2")
    e("v_lshrrev_b32 v3, 3, v2")
    e("v_lshrrev_b32 v4, 4, v2")
    e("v_and_b32 v10, 7, v2")
    e(f"s_lshl_b32 s{sT+1}, s{sT}, 2")
    e("v_xor_b32 v5, v10, v4")
    e(f"v_xor_b32 v5, s{sT+1}, v5")
    e("v_lshlrev_b32 v5, 4, v5")
    e("v_lshl_add_u32 v5, v3, 7, v5")
    e(f"s_lshl1_add_u32 s{sT+3}, s{sSLOT}, s{sT+2}")
    e(f"s_lshl1_add_u32 s{sTM}, s{sT+3}, s{sT}")
    e(f"s_lshl_b32 s{sTM}, s{sTM}, 10")
    e(f"s_sub_u32 s{sWR2}, {63*2048}, s{sT+5}")
    e(f"s_lshr_b32 s{sT+5}, s{sT+5}, 1")
    e(f"s_add_u32 s{sWR1}, s{sWR2}, s{sT+5}")
    e(f"s_mov_b32 s{S_IDX+2}, 106496"); e(f"s_mov_b32 s{S_IDX+3}, 0x20000")
    e(f"s_mov_b32 s{S_TBL+2}, 128000"); e(f"s_mov_b32 s{S_TBL+3}, 0x20000")
    e(f"s_mov_b32 s{sT+3}, {opt.n0-1}")
    e("s_waitcnt lgkmcnt(0)")
    if opt.pst: st(84)
    e(f"s_mov_b64 s[{S_IDX}:{S_IDX+1}], s[{P_IDX}:{P_IDX+1}]")
    e(f"s_mov_b64 s[{S_TBL}:{S_TBL+1}], s[{P_TBL}:{P_TBL+1}]")
    e(f"buffer_load_dwordx4 v6, s[{S_IDX}:{S_IDX+3}], s{sT+4} offen lds")
    if opt.trim:
        e(f"s_cmp_eq_u32 s{sT}, 0")
        e("s_cselect_b64 exec, -1, 0xffff")
    e(f"buffer_load_dwordx4 v6, s[{S_IDX}:{S_IDX+3}], s{sT+4} offen offset:1024 lds")
    if opt.trim: e("s_mov_b64 exec, -1")
    nl=[0]
    def tloop(n=None,vm=None):
        nl[0]+=1; name=f"L_tl{nl[0]}"
        if n is not None:
            if n==0: return
            e(f"s_mov_b32 s{sT+3}, {n-1}")
        lab(name)
        e(f"s_mov_b32 m0, s{sTM}")
        e(f"s_add_u32 s{sTM}, s{sTM}, 8192")
        e(f"buffer_load_dwordx4 v5, s[{S_TBL}:{S_TBL+3}], m0 offen lds")
        e(f"s_cmp_ge_u32 s{sTM}, s{sWR1}")
        e(f"s_cselect_b32 s{sT+5}, s{sWR2}, 0")
        e(f"s_sub_u32 s{sTM}, s{sTM}, s{sT+5}")
        e(f"s_sub_u32 s{sT+3}, s{sT+3}, 1")
        e(f"s_cbranch_scc0 {name}")
        if vm is not None:
            for t in range(n): vm.issue("tbl")
    tloop()
    e(f"s_cmp_ge_u32 s{sWAVE}, 4")
    e("s_cbranch_scc1 L_help_pro")
    sec("dnn0")
    tbl=tloop

    vW,vT0,vT1=1,3,4
    AD=8; AF=16; F0=48; REC=80; ACC=128
    acc=lambda lt,ct: ACC+(lt*2+ct)*16
    Fr=lambda j,ks,ct: F0+(j&1)*16+(ks*2+ct)*4
    vm=Q(63); lg=Q(15)
    cm("---- DNN wave prologue ----")
    for x in ["idx0","idx3"]+["tbl"]*opt.n0: vm.issue(x)
    e(f"s_lshr_b32 s{sCB}, s6, 3")
    e(f"s_lshl_b32 s{sRING}, s{sWAVE}, 13")
    e(f"s_add_u32 s{sRING}, s{sRING}, {RING}")
    e(f"s_lshl_b32 s{sT+7}, s{sWAVE}, 5")
    e(f"v_add_u32 v9, s{sT+7}, v3")
    e("v_mul_u32_u24 v9, 3328, v9")
    e("v_lshlrev_b32 v11, 2, v4")
    e("v_and_b32 v11, 4, v11")
    e("v_xor_b32 v11, v11, v10")
    e("v_lshl_add_u32 v1, v11, 4, v9")
    e(f"s_lshl_b32 s{sT+7}, s{sCB}, 7")
    e(f"v_add_u32 v1, s{sT+7}, v1")
    srd(S_W,P_W,1664*3328)
    for pc in range(4):
        e(f"s_add_u32 m0, s{sRING}, {pc*1024}")
        e(f"s_mov_b32 s12, {8*pc*3328}")
        e(f"buffer_load_dwordx4 v1, s[{S_W}:{S_W+3}], s12 offen lds"); vm.issue(f"w0_{pc}")
    def bias_loads(ii=range(4)):
        for i in ii:
            e(f"buffer_load_dwordx4 v[{106+4*i}:{109+4*i}], v{VB}, s[{S_A}:{S_A+3}], 0 offen offset:{(i>>1)*64+(i&1)*16}"); vm.issue(f"bias{i}")
    VB=6
    TB=[opt.n0]+[int(c,16) for c in str(opt.tb)]
    e("s_branch L_dnn_b")
    sec("dnn"); lab("L_dnn_b")
    e("v_lshrrev_b32 v12, 5, v2")
    e(f"v_lshl_add_u32 v6, v12, 5, s{sT+7}")
    e(f"v_mov_b32 v7, {FLAGS}")
    srd(S_A,P_B1,3328)
    if opt.pst: st(86)
    e("v_and_b32 v13, 31, v2")
    e("v_mul_u32_u24 v13, 104, v13")
    e(f"s_lshl2_add_u32 s{sT+5}, s{sT+2}, {RING+4096}")
    e(f"v_add_u32 v13, s{sT+5}, v13")
    e("v_lshlrev_b32 v9, 1, v12")
    e(f"v_xor_b32 v9, s{sWAVE}, v9")
    e("v_lshl_add_u32 v24, v9, 13, v13")
    e("v_xor_b32 v9, 1, v9")
    e("v_lshl_add_u32 v25, v9, 13, v13")
    e("v_bfe_u32 v9, v2, 2, 2")
    e("v_lshlrev_b32 v3, 7, v9")
    e("v_lshl_add_u32 v3, v12, 10, v3")
    e("v_lshrrev_b32 v9, 1, v9")
    e("v_lshl_add_u32 v3, v9, 6, v3")
    e("v_and_b32 v9, 1, v2")
    e("v_lshl_add_u32 v3, v9, 5, v3")
    e("v_bfe_u32 v9, v2, 1, 1")
    e("v_lshl_add_u32 v3, v9, 3, v3")
    e("v_and_b32 v9, 1, v4")
    e("v_lshl_add_u32 v3, v9, 4, v3")
    e(f"v_add_u32 v3, s{sRING}, v3")
    e("v_xor_b32 v4, 64, v3")
    e(f"v_add_u32 v14, s{sT+1}, v12")
    e("v_lshl_or_b32 v14, v14, 16, v14")
    e(f"s_mov_b32 s{sT+6}, 0x00070007")
    e(f"s_waitcnt vmcnt({vm.need('idx3')})")
    if opt.pst: st(88)
    def lds_inc(va,off):
        e("v_mov_b32 v0, 1")
        e("s_mov_b64 exec, 1")
        e(f"ds_add_u32 v{va}, v0 offset:{off}")
        e("s_mov_b64 exec, -1")
    e("s_barrier")
    if opt.pst: st(90)
    sWO=12
    def dma(j,pcs):
        for pc in pcs:
            if opt.now and j>=3:
                vm.ops.insert(0,f"w{j}_{pc}"); continue
            e(f"s_add_u32 m0, s{sRING}, {((j&1)*4+pc)*1024}")
            e(f"s_mov_b32 s{sWO}, {(128*j+8*pc)*3328}")
            e(f"buffer_load_dwordx4 v{vW}, s[{S_W}:{S_W+3}], s{sWO} offen lds"); vm.issue(f"w{j}_{pc}")
    BI=106
    RW=lambda t,j: 160+t*14+j
    RECX=104
    for j in range(0,13,2):
        for t in range(2):
            e(f"ds_read2_b32 v[{RW(t,j)}:{RW(t,j)+1}], v{24+t} offset0:{2*j} offset1:{2*j+2}")
    tbl(TB[1],vm)
    srd(S_WS,P_WS,WS_SIZE)
    srd(S_B,P_W2,3328)
    e("s_waitcnt lgkmcnt(0)")
    e("s_barrier")
    st(76)
    tbl(TB[2],vm)
    for j in range(13):
        if j==6: tbl(TB[3],vm)
        d=REC+2*j
        e(f"v_lshl_or_b32 v{d}, v{RW(1,j)}, 16, v{RW(0,j)}")
        e(f"v_lshrrev_b32 v13, 1, v{d}")
        e(f"v_and_b32 v13, s{sT+6}, v13")
        e(f"v_lshl_or_b32 v{d}, v{d}, 3, v13")
        e(f"v_mov_b32 v{d+1}, v{d}")
        if j:
            e(f"v_permlane32_swap_b32 v{d-2}, v{d-1}")
            e(f"v_xor_b32 v{d-2}, v14, v{d-2}"); e(f"v_xor_b32 v{d-1}, v14, v{d-1}")
    e("s_nop 1")
    e(f"v_permlane32_swap_b32 v{REC+24}, v{REC+25}")
    e(f"v_xor_b32 v{REC+24}, v14, v{REC+24}"); e(f"v_xor_b32 v{REC+25}, v14, v{REC+25}")
    afr=lambda lt,ks: AF+8*lt+4*ks
    XF={0:80,1:88,2:afr(1,0),3:afr(2,0)}
    FX={0:[F0,F0+4,F0+8,F0+12],1:[8,12,40,44],2:[F0+16,F0+20,F0+24,F0+28],3:[F0,F0+4,F0+8,F0+12]}
    def adr(lt,j):
        e(f"v_lshlrev_b32_sdwa v{AD+2*lt}, 4, v{REC+2*j+(lt>>1)} dst_sel:DWORD dst_unused:UNUSED_PAD src0_sel:DWORD src1_sel:WORD_{lt&1}")
        e(f"v_xor_b32 v{AD+2*lt+1}, 32, v{AD+2*lt}")
    def Rop(lt,j):
        for ks in range(2):
            e(f"ds_read_b128 v[{afr(lt,ks)}:{afr(lt,ks)+3}], v{AD+2*lt+ks}"); lg.issue(f"R{lt}_{ks}_{j}")
    def adrX(c,a):
        e(f"v_lshlrev_b32_sdwa v{a}, 4, v{RECX} dst_sel:DWORD dst_unused:UNUSED_PAD src0_sel:DWORD src1_sel:WORD_{c>>1}")
        if c&1: e(f"v_xor_b32 v{a}, 64, v{a}")
        e(f"v_xor_b32 v{a+1}, 32, v{a}")
    def RX(c,a):
        for ks in range(2):
            e(f"ds_read_b128 v[{XF[c]+4*ks}:{XF[c]+4*ks+3}], v{a+ks}"); lg.issue(f"X{c}_{ks}")
    def Top(j,ks):
        for ct in range(2):
            for h4 in range(2):
                d=Fr(j,ks,ct)+2*h4
                e(f"ds_read_b64_tr_b16 v[{d}:{d+1}], v{vT0+ct} offset:{((j&1)*4+ks*2)*1024+h4*512}"); lg.issue(f"T{j}_{ks}_{ct}{h4}")
    def TX(c):
        for ks in range(2):
            for ct in range(2):
                for h4 in range(2):
                    d=FX[c][ks*2+ct]+2*h4
                    e(f"ds_read_b64_tr_b16 v[{d}:{d+1}], v{vT0+ct} offset:{c*8192+ks*2048+h4*512}"); lg.issue(f"TX{c}")
    for lt in range(4): adr(lt,0)
    if ST: e("s_waitcnt lgkmcnt(0)")
    e(f"s_waitcnt vmcnt({vm.need('w0_3')})")
    Top(0,0); Top(0,1)
    if not opt.d1late: dma(1,range(4))
    e("s_waitcnt lgkmcnt(0)")
    if opt.d2late!=1: dma(2,range(4))
    if opt.pst: st(92)
    e(f"s_waitcnt vmcnt({vm.need('tbl')})")
    st(78)
    e("s_barrier")
    st(80,True)
    if ST: e("s_memtime s[96:97]"); e("s_waitcnt lgkmcnt(0)")
    if opt.prio: e(f"s_setprio {opt.prio}")
    Rop(1,0); Rop(2,0); Rop(3,0); Rop(0,0)
    if opt.d1late: dma(1,range(4))
    def group(lt,fa,xa,first,fills):
        for i,(ks,ct) in enumerate([(0,0),(0,1),(1,0),(1,1)]):
            c=f"v[{acc(lt,ct)}:{acc(lt,ct)+15}]"
            src="0" if (first and ks==0) else c
            e(f"v_mfma_f32_32x32x16_bf16 {c}, v[{fa[ks*2+ct]}:{fa[ks*2+ct]+3}], v[{xa+4*ks}:{xa+4*ks+3}], {src}")
            lastw[(lt,ct)]=cnt[0]
            for f in fills[i]: f()
    LT=[1,2,3,0]
    W2P=106; EV=122; VR=124; WA=125; RA1,RA2=5,6; sM=[0,sT+7,sT+8,13]
    def addrs():
        e(f"s_xor_b32 s{sT}, s{sWAVE}, 1")
        e(f"s_lshl_b32 s{sT}, s{sT}, 12")
        e(f"v_lshlrev_b32 v{RA1}, 4, v2")
        e(f"v_add_u32 v{WA}, s{sT}, v{RA1}")
        e(f"v_xor_b32 v{WA+1}, {3<<12}, v{WA}")
    def addrs2():
        e(f"v_xor_b32 v{WA+2}, {2<<12}, v{WA}")
        e(f"s_lshl_b32 s{sT}, s{sWAVE}, 12")
        e(f"v_add_u32 v{RA1}, s{sT}, v{RA1}")
    def addrs3(): pass
    SEL=80; TA=92
    selops=[E("v_and_b32 v0, 31, v2"),E(f"v_lshrrev_b32 v{TA}, 5, v2"),E(f"v_lshlrev_b32 v{TA}, 2, v{TA}"),E(f"v_sub_u32 v0, v0, v{TA}"),
            E(f"v_lshrrev_b32 v{TA}, 1, v0"),E(f"v_and_b32 v{TA}, 12, v{TA}"),E(f"v_and_or_b32 v{TA}, v0, 3, v{TA}"),
            E("v_and_b32 v0, 0xffffffe4, v0"),E("v_cmp_eq_u32 vcc, 0, v0"),E(f"v_lshlrev_b32 v0, 4, v{TA}"),E("v_and_b32 v0, 16, v0"),
            E(f"v_lshlrev_b32 v0, v0, s{sM[1]}"),E("v_cndmask_b32 v0, 0, v0, vcc"),E(f"v_lshrrev_b32 v{TA}, 1, v{TA}")]
    selops.insert(0,E(f"s_movk_i32 s{sM[1]}, 0x3f80"))
    for ms in ((0,1,2),(3,4,5),(6,7)):
        def f(ms=ms):
            for k,m in enumerate(ms): e(f"v_cmp_eq_u32 s[{sT+2*k}:{sT+2*k+1}], {m}, v{TA}")
            if len(ms)<3: e("s_nop 0")
            for k,m in enumerate(ms): e(f"v_cndmask_b32 v{SEL+m}, 0, v0, s[{sT+2*k}:{sT+2*k+1}]")
        selops.append(f)
    def cv(lt,ct):
        a=acc(lt,ct)
        return [(lambda m=m: (hz((lt,ct),12),e(f"v_cvt_pk_bf16_f32 v{a+m}, v{a+2*m}, v{a+2*m+1}"))) for m in range(8)]
    def late1():
        e(f"s_lshl_b32 s{sT}, s{sCB}, 7")
        e(f"v_lshrrev_b32 v{VR}, 5, v2")
        e(f"v_lshl_add_u32 v{VR}, v{VR}, 5, s{sT}")
    def late2(i):
        e(f"buffer_load_dwordx4 v[{W2P+4*i}:{W2P+4*i+3}], v{VR}, s[{S_B}:{S_B+3}], 0 offen offset:{(i>>1)*64+(i&1)*16}"); vm.issue(f"w2_{i}")
    def late3():
        e(f"v_and_b32 v{VR}, 31, v2")
        e(f"s_lshl_b32 s{sT}, s{sRB}, 7")
        e(f"s_lshl_b32 s{sT+1}, s{sWAVE}, 5")
        e(f"s_add_u32 s{sT}, s{sT}, s{sT+1}")
        e(f"v_add_lshl_u32 v{VR}, v{VR}, s{sT}, 3")
    def late4():
        e(f"s_mov_b32 s{sT+2}, {EPOCH}")
        e(f"buffer_load_dwordx2 v[{EV}:{EV+1}], v{VR}, s[{S_WS}:{S_WS+3}], s{sT+2} offen"); vm.issue("ev")
    def badd(ct,t):
        src=BI+ct*8+(t>>1)
        if t&1: e(f"v_and_b32 v0, 0xffff0000, v{src}")
        else:   e(f"v_lshlrev_b32 v0, 16, v{src}")
        hz((0,ct),12)
        e(f"v_add_f32 v{acc(0,ct)+t}, v{acc(0,ct)+t}, v0")
    def wv(n): return lambda n=n: (e(f"s_waitcnt vmcnt({vm.need(n)})") if vm.pending(n) else None)
    def wl(n): return lambda n=n: (e(f"s_waitcnt lgkmcnt({lg.need(n)})") if lg.pending(n) else None)
    ITS={1:76,2:78,3:80,5:82,7:84,9:86,11:88,12:90}
    def inc(off,nm):
        def f():
            e("s_mov_b64 exec, 1")
            e(f"ds_add_u32 v7, v{ONE} offset:{off}"); lg.issue(nm)
            e("s_mov_b64 exec, -1")
        return f
    ONE=88; vC1=89; S0=90; S1=91; TA,TB_=92,93
    def w1(lt,ct,h): return lambda: (e(f"ds_write_b128 v{WA+lt-1}, v[{acc(lt,ct)+4*h}:{acc(lt,ct)+4*h+3}] offset:{(lt-1)*16384+(ct*2+h)*1024}"),lg.issue("W"))
    W=lambda lt,ct: [w1(lt,ct,0),w1(lt,ct,1)]
    W2F=list(range(F0+16,F0+32))+list(range(8,16))+list(range(96,104))
    unp=[]
    for t in range(32):
        src=W2P+(t>>1)
        unp.append(E(f"v_and_b32 v{W2F[t]}, 0xffff0000, v{src}" if t&1 else f"v_lshlrev_b32 v{W2F[t]}, 16, v{src}"))
    def bar2():
        e("s_waitcnt lgkmcnt(0)"); lg.done=len(lg.ops)
        if opt.its: e("s_memtime s[92:93]")
        if not opt.pst: st(82)
        e("s_barrier")
        if not opt.pst: st(84)
    for j in range(13):
        cm(f"---- iteration {j} ----")
        if opt.its==1 and j in ITS: e(f"s_memtime s[{ITS[j]}:{ITS[j]+1}]")
        if opt.its and j==12: opt.pst=1
        for g,lt in enumerate(LT):
            needs=[f"R{lt}_1_{j}"]+([f"T{j}_1_11"] if g==0 else [])
            if lg.pending(*needs): e(f"s_waitcnt lgkmcnt({lg.need(*needs)})")
            if opt.its==2 and j<2: e(f"s_memtime s[{76+2*(4*j+g)}:{77+2*(4*j+g)}]")
            fills=[[],[],[],[]]
            if j==0 and opt.d2late:
                if g<2 and opt.d2late==1:
                    fills[0].append(lambda g=g: dma(2,[2*g])); fills[2].append(lambda g=g: dma(2,[2*g+1]))
                if g>=2: fills[0]+= [wv(f'w1_{2*(g-2)+1}'),lambda g=g: Top(1,g-2)]
            elif j<12:
                if j==2: fills[1 if g<2 else 2].append(lambda g=g: bias_loads([g]))
                if j==1 and g<2 and opt.d2late:
                    fills[1].append(lambda g=g: dma(3,[2*g])); fills[2].append(lambda g=g: dma(3,[2*g+1]))
                if g<2: fills[0]+= [wv(f'w{j+1}_{2*g+1}'),lambda j=j,g=g: Top(j+1,g)]
                elif j+3<13:
                    fills[0]+= [wl(f'T{j+1}_{g-2}_11'),lambda j=j,g=g: dma(j+3,[2*(g-2)])]
                    fills[1].append(lambda j=j,g=g: dma(j+3,[2*(g-2)+1]))
            if j<12:
                fills[2].append(lambda j=j,lt=lt: adr(lt,j+1))
                fills[3].append(lambda j=j,lt=lt: Rop(lt,j+1))
            if j in (4,5,6,9) and g in (1,2):
                jj={4:0,5:1,6:2,9:3}[j]; ct=jj>>1; t0=(jj&1)*8+(g-1)*4
                if g==1 and j==4: fills[1].append(wv('bias3'))
                for i,ts in ((1,(0,1)),(2,(2,)),(3 if g==1 else 2,(3,))):
                    fills[i]+= [(lambda t=t0+t,ct=ct: badd(ct,t)) for t in ts]
            if j==7:
                sl={0:[(0,0),(0,5),(5,7),(7,9)],1:[(9,9),(9,15),(15,15),(15,15)],2:[(15,15),(15,15),(15,16),(16,16)],3:[(16,16),(16,16),(16,17),(17,18)]}[g]
                for i in range(4): fills[i]+=selops[sl[i][0]:sl[i][1]]
            if j==8 and g==0: fills[1].append(addrs)
            if j==8 and g==1: fills[1].append(addrs2); fills[2]+= [E(f"v_mov_b32 v{ONE}, 1"),E(f"v_mov_b32 v{vC1}, {f2u(C1)}"),E(f"v_mov_b32 v{S0}, 0"),E(f"v_mov_b32 v{S1}, 0")]
            if j==10 and g==0: fills[1].append(late1); fills[2].append(lambda: late2(0))
            if j==10 and g==1: fills[1].append(lambda: late2(1)); fills[2].append(lambda: late2(2))
            if j==10 and g==2: fills[0]+= [wl('T11_1_11'),inc(F_S1,"s1")]; fills[1].append(lambda: late2(3))
            if j==10 and g==3: fills[0].append(late3); fills[1].append(late4)
            if j==12:
                G={0:[[E("s_waitcnt vmcnt(0)")]+unp[:5],unp[5:11],unp[11:16],unp[16:22]],
                   1:[unp[22:27]+([bar2] if opt.b2g==1 else []),unp[27:],cv(1,0)[:6],cv(1,0)[6:]+W(1,0)+cv(1,1)[:3]],
                   2:[cv(1,1)[3:]+W(1,1)[:1],W(1,1)[1:],cv(2,0)[:6],cv(2,0)[6:]+W(2,0)+cv(2,1)[:3]],
                   3:[cv(2,1)[3:]+W(2,1)[:1],W(2,1)[1:]+[E(f"s_mov_b32 s{sT+2}, {f2u(C2)}")],cv(3,0)[:6],cv(3,0)[6:]+W(3,0)+cv(3,1)+W(3,1)+[inc(F_RED,"inc")]]}[g]
                if g==0 and opt.b2g==0: G[3]=G[3]+[bar2]
                for i in range(4): fills[i]+=G[i]
            group(lt,[Fr(j,ks,ct) for ks in range(2) for ct in range(2)],afr(lt,0),j==0,fills)
    if not opt.pst: st(86)
    if ST: e("s_memtime s[98:99]")
    lds_spin("L_red",7,0,F_RED,4)
    if not opt.pst: st(88,True)
    if ST and opt.gcyc: e("s_memtime s[96:97]"); e("s_waitcnt lgkmcnt(0)")
    lg=Q(15)
    adds=[]
    for ct in range(2):
        for u in (1,2,3):
            for h in range(2):
                r=acc(u,ct)+4*h
                e(f"ds_read_b128 v[{r}:{r+3}], v{RA1} offset:{(u-1)*16384+(ct*2+h)*1024}"); lg.issue(f"p{ct}{u}{h}")
                def add(ct=ct,u=u,h=h,r=r):
                    if lg.pending(f"p{ct}{u}{h}"): e(f"s_waitcnt lgkmcnt({lg.need(f'p{ct}{u}{h}')})")
                    c=f"v[{acc(0,ct)}:{acc(0,ct)+15}]"
                    e(f"v_mfma_f32_32x32x16_bf16 {c}, v[{SEL+4*h}:{SEL+4*h+3}], v[{r}:{r+3}], {c}"); lastw[(0,ct)]=cnt[0]
                adds.append(add)
    for f in adds[:7]: f()
    adds=adds[7:]
    T=F0
    for q in range(8):
        a=ACC+4*q
        if q==opt.gq and opt.gateC==3: inc(F_G,"g")()
        def A():
            if adds: adds.pop(0)()
        hz((0,q>>2),12)
        for r in range(4): e(f"v_mul_f32 v{T+r}, v{a+r}, v{a+r}")
        for r in range(4): e(f"v_fma_f32 v{T+r}, v{T+r}, s{sT+2}, v{vC1}")
        A()
        for r in range(4): e(f"v_mul_f32 v{T+r}, v{T+r}, v{a+r}")
        for r in range(4): e(f"v_exp_f32 v{T+r}, v{T+r}")
        A()
        for r in range(4): e(f"v_mul_f32 v{a+r}, v{a+r}, v{W2F[4*q+r]}")
        for r in range(4): e(f"v_add_f32 v{T+r}, 1.0, v{T+r}")
        for r in range(4): e(f"v_rcp_f32 v{T+r}, v{T+r}")
        if adds: A()
        else: e("s_nop 0")
        for r in range(4): e(f"v_fmac_f32 v{S0 if r&1==0 else S1}, v{a+r}, v{T+r}")
    e(f"v_add_f32 v{S0}, v{S0}, v{S1}")
    e(f"v_mov_b32 v{S1}, v{S0}")
    e(f"s_movk_i32 s{sT}, 0xff")
    e(f"v_add_u32 v{EV}, 1, v{EV}")
    e(f"v_permlane32_swap_b32 v{S0}, v{S1}")
    e(f"s_lshl_b32 s{sT+1}, s{sCB}, 13")
    e(f"v_add_f32 v{S0}, v{S0}, v{S1}")
    e(f"s_add_u32 s{sT+1}, s{sT+1}, {GRAN}")
    e(f"v_bfi_b32 v{EV+1}, s{sT}, v{EV+1}, v{S0}")
    e(f"s_mov_b32 exec_hi, 0")
    e(f"buffer_store_dwordx2 v[{EV}:{EV+1}], v{VR}, s[{S_WS}:{S_WS+3}], s{sT+1} offen sc0 sc1")
    if ST:
        if opt.gcyc: e("s_memtime s[98:99]")
        if not opt.pst: st(90); e("s_waitcnt vmcnt(0)"); st(92,True)
        e("s_waitcnt lgkmcnt(0)"); e("s_sub_u32 s98, s98, s96")
        if opt.its:
            for r in range(76,94,2):
                e(f"s_sub_u32 s{r}, s{r}, s96"); e(f"s_mul_i32 s{r}, s{r}, 100"); e(f"s_add_u32 s{r}, s{r}, s10")
        dump([10,76,78,80,82,84,86,88,90,92,98])
    e("s_endpgm")

    sec("hpro")
    def late_sloads():
        e(f"s_lshl_b32 s{sT+8}, s{sROW}, 3")
        e(f"s_add_u32 s{sT+8}, s{sT+8}, {EPOCH}")
        e(f"s_load_dwordx2 s[{sE}:{sE+1}], s[{P_WS}:{P_WS+1}], s{sT+8}")
        e(f"s_load_dword s9, s[{P_BO}:{P_BO+1}], 0")
    X=32
    def x0_addrs():
        e("v_and_b32 v3, 31, v2")
        e("v_lshlrev_b32 v4, 2, v3")
        for r in range(26): e(f"v_readlane_b32 s{76+r}, v29, {r}")
        e("s_mov_b32 exec_hi, 0")
        for r in range(26): e(f"v_xor_b32 v{X+r}, s{76+r}, v4")
        e("s_mov_b64 exec, -1")
        e("s_mov_b32 exec_lo, 0")
        for r in range(26): e(f"v_xor_b32 v{X+r}, s{76+(r+1)%26}, v4")
        e("s_mov_b64 exec, -1")
    lab("L_help_pro")
    rowidx_load()
    tloop(opt.nt0-opt.n0)
    e(f"v_mov_b32 v7, {FLAGS}")
    e("v_mov_b32 v8, 0"); e("v_mov_b32 v9, 0")
    e("ds_write2_b64 v7, v[8:9], v[8:9] offset1:1")
    e("ds_write2_b64 v7, v[8:9], v[8:9] offset0:2 offset1:3")
    e(f"s_waitcnt vmcnt({opt.nt0+1})")
    e("s_barrier")
    tloop(opt.nt1)
    e("s_waitcnt lgkmcnt(0)")
    e("s_barrier")
    if opt.trim:
        e(f"s_cmp_eq_u32 s{sWAVE}, 4")
        e(f"s_cselect_b32 s{sT+3}, {16-opt.nt0-opt.nt1-1}, {16-opt.nt0-opt.nt1-2}")
        tloop()
    else: tloop(16-opt.nt0-opt.nt1)
    e("s_branch L_help_b")
    sec("help"); lab("L_help_b")
    e(f"s_waitcnt vmcnt({15-opt.n0})")
    if opt.xlds:
        e("v_lshlrev_b32 v8, 3, v29"); e("v_and_b32 v8, 0x70, v8"); e("v_lshl_or_b32 v29, v29, 7, v8")
    else: e("v_lshlrev_b32 v29, 7, v29")
    x0_addrs()
    e("s_waitcnt vmcnt(0)")
    e("s_barrier")
    if opt.xsl: e(f"s_sleep {opt.xsl}")
    if opt.xlds:
        for r in range(26):
            e(f"ds_read_b32 v{X+r}, v{X+r}")
            if opt.xgap and r%opt.xgap==opt.xgap-1: e("s_sleep 1")
        e("s_branch L_help_main")
    lab("L_help_x0")
    for r in range(26):
        e(f"buffer_load_dword v{X+r}, v{X+r}, s[{S_TBL}:{S_TBL+3}], 0 offen")
    lab("L_help_main")
    srd(S_WS,P_WS,WS_SIZE); srd(S_A,P_DBG,256); srd(S_B,P_OUT,2048)
    Z0=8
    ZE=lambda s: Z0+4*s
    ZO=lambda s: Z0+88+4*s
    LE=lambda k: Z0+176+4*k
    LO=lambda k: Z0+184+4*k
    R=200; MT=252
    e("v_lshrrev_b32 v5, 2, v3")
    e("v_mul_u32_u24 v5, 5888, v5")
    e("v_and_b32 v6, 3, v2")
    e("v_lshl_add_u32 v5, v6, 4, v5")
    e("v_lshrrev_b32 v6, 5, v2")
    e("v_lshl_add_u32 v5, v6, 6, v5")
    e("v_mov_b32 v7, 0x7fff0000")
    e("v_cmp_gt_u32 vcc, 26, v3")
    e("v_lshlrev_b32 v6, 13, v2")
    e(f"s_lshl_b32 s{sT}, s{sROW}, 3")
    e("v_cndmask_b32 v5, v7, v5, vcc")
    e(f"s_add_u32 s{sT}, s{sT}, {GRAN}")
    e(f"v_add_u32 v6, s{sT}, v6")
    e("v_cmp_gt_u32 vcc, 26, v2")
    e("v_lshlrev_b32 v1, 4, v2")
    e(f"v_add_u32 v1, 97280, v1")
    e("v_cndmask_b32 v6, v7, v6, vcc")
    e(f"v_mov_b32 v7, {FLAGS}")
    e("s_waitcnt vmcnt(0) lgkmcnt(0)")
    late_sloads()
    st(76)
    for r in range(26):
        e(f"v_lshlrev_b32 v{R+2*r}, 16, v{X+r}")
        e(f"v_and_b32 v{R+2*r+1}, 0xffff0000, v{X+r}")
    def zstep(s):
        if opt.noz: return
        for m in range(4):
            (a1,a2),(b1,b2)=pair_of(8*s+2*m),pair_of(8*s+2*m+1)
            e(f"v_mul_f32 v{MT}, v{R+2*a1}, v{R+2*a2}")
            e(f"v_mul_f32 v{MT+2}, v{R+2*b1}, v{R+2*b2}")
            e(f"v_mul_f32 v{MT+1}, v{R+2*a1+1}, v{R+2*a2+1}")
            e(f"v_mul_f32 v{MT+3}, v{R+2*b1+1}, v{R+2*b2+1}")
            e(f"v_cvt_pk_bf16_f32 v{ZE(s)+m}, v{MT}, v{MT+2}")
            e(f"v_cvt_pk_bf16_f32 v{ZO(s)+m}, v{MT+1}, v{MT+3}")
    def zlin():
        for k in range(2):
            for m2 in range(4):
                m=k*8+2*m2
                for tl,d in ((0,LE(k)+m2),(1,LO(k)+m2)):
                    if m+1<=12: e(f"v_cvt_pk_bf16_f32 v{d}, v{R+4*m+tl}, v{R+4*(m+1)+tl}")
                    elif m==12: e(f"v_cvt_pk_bf16_f32 v{d}, v{R+4*m+tl}, 1.0")
                    else: e(f"v_mov_b32 v{d}, 0")
    SC=" sc1" if opt.csc else ""
    zlin()
    for s in range(opt.zsplit): zstep(s)
    st(78)
    e(f"s_load_dwordx8 s[92:99], s[{P_DBG}:{P_DBG+1}], 0")
    e("s_waitcnt lgkmcnt(0)")
    for k in range(1,7): e(f"s_and_b32 s92, s92, s{92+k}")
    e("s_cmp_lg_u32 s92, 0")
    e("s_cbranch_scc1 L_polled")
    lds_spin("L_it9",7,4,F_S1,4,sleep=4)
    e(f"v_lshlrev_b32 v0, 2, v2")
    e(f"buffer_load_dword v4, v0, s[{S_A}:{S_A+3}], 0 offen sc1")
    for s in range(opt.zsplit,opt.zmid): zstep(s)
    e(f"s_mov_b32 s{sT+4}, {opt.bound}")
    e(f"s_mov_b32 s{sT+2}, 0x7f")
    e(f"s_mov_b32 s{sT+3}, 0")
    lab("L_poll1")
    e("s_waitcnt vmcnt(0)")
    e("v_cmp_ne_u32 vcc, 0, v4")
    e(f"s_and_b64 vcc, vcc, s[{sT+2}:{sT+3}]")
    e(f"s_cmp_eq_u64 vcc, s[{sT+2}:{sT+3}]")
    e("s_cbranch_scc1 L_polled")
    e(f"s_sleep {opt.psleep}")
    e(f"buffer_load_dword v4, v0, s[{S_A}:{S_A+3}], 0 offen sc1")
    e(f"s_sub_u32 s{sT+4}, s{sT+4}, 1")
    e("s_cbranch_scc0 L_poll1")
    lab("L_polled")
    if opt.inv: e("buffer_inv sc1")
    st(80)
    lds_spin("L_s1",7,0,F_S1,4,sleep=2)
    e(f"s_sub_u32 s{sT}, s{sWAVE}, 4")
    e(f"s_lshl_b32 s{sT+1}, s{sT}, 13")
    e(f"s_add_u32 m0, s{sT+1}, {RING+4096}")
    e(f"s_lshl_b32 s{sT}, s{sT}, 9")
    e(f"s_sub_u32 s{sT}, s{sT}, 256")
    for t in range(4):
        if t<2:
            e(f"s_cmp_eq_u32 s{sWAVE}, 4")
            e(f"s_cselect_b32 s{sT+1}, {(44+t)*128}, s{sT}")
        else: e(f"s_mov_b32 s{sT+1}, s{sT}")
        e(f"buffer_load_dwordx4 v5, s[{S_WS}:{S_WS+3}], s{sT+1} offen sc1 lds")
        if t<3:
            e(f"s_add_u32 m0, m0, 1024")
            e(f"s_add_u32 s{sT}, s{sT}, 128")
    for s in range(opt.zmid,opt.zbar): zstep(s)
    e("s_waitcnt vmcnt(0)")
    st(82)
    e("s_barrier")
    for s in range(opt.zbar,22): zstep(s)
    def hinc(off):
        e("v_mov_b32 v0, 1")
        e("s_mov_b64 exec, 1")
        e("s_waitcnt vmcnt(0)")
        e(f"ds_add_u32 v7, v0 offset:{off}")
        e("s_mov_b64 exec, -1")
    CWB=97280
    def dmaB():
        e(f"s_sub_u32 s{sT}, s{sWAVE}, 4")
        e(f"s_lshl_b32 s{sT+1}, s{sT}, 10")
        e(f"s_add_u32 m0, s{sT+1}, {CWB}")
        e(f"s_lshl_b32 s{sT}, s{sT}, 7")
        e(f"s_add_u32 s{sT}, s{sT}, {14*128}")
        for t in range(8):
            if t==7:
                e(f"s_cmp_ge_u32 s{sWAVE}, 6")
                e("s_cbranch_scc1 L_dma_done")
            e(f"buffer_load_dwordx4 v5, s[{S_WS}:{S_WS+3}], s{sT} offen sc1 lds")
            if t<7:
                e(f"s_add_u32 m0, m0, 4096")
                e(f"s_add_u32 s{sT}, s{sT}, 512")
        lab("L_dma_done")
    if opt.bstep<0:
        if opt.bgate: lds_spin("L_wred",7,0,F_RED,4,sleep=1)
        dmaB()
    st(84)
    AUE,AUO=200,216; RG=232
    AXE=LE(0); AXO=ZE(0)
    vm=Q(63); lg=Q(15)
    seq=[('eo',22),('eo',23)]+[('e',s) for s in range(4)]+[('o',s) for s in range(4)]+[('eo',s) for s in range(4,22)]
    free=[RG+4*k for k in range(6)]
    reg={}
    lL=[]; lG=[]
    for i,(tl,s) in enumerate(seq):
        for k,fi in ([('x',2*s),('u',2*s+1)] if s<22 else [('u',44+s-22)]): lL.append((i,k,fi))
    cur=[0]; okB=[False]
    def ld():
        if not free or not lL or lL[0][0]>cur[0]+opt.look: return False
        i,k,fi=lL[0]
        if 14<=fi<44 and not okB[0]: return False
        lL.pop(0); r=free.pop(0); reg[(i,k)]=r
        if 14<=fi<44: off=(fi-14)*1024
        else:
            p=fi+2 if fi<14 else fi-44
            off=RING+4096-CWB+(p>>2)*8192+(p&3)*1024
        e(f"ds_read_b128 v[{r}:{r+3}], v1 offset:{off}"); lg.issue(f"{k}{i}")
        return True
    if opt.gateC: lds_spin("L_gC",7,0,{1:F_RED,3:F_G}[opt.gateC],4,sleep=1)
    st(88,True)
    if ST: e("s_memtime s[96:97]"); e("s_waitcnt lgkmcnt(0)")
    while ld(): pass
    first={'xe':1,'xo':1,'ue':1,'uo':1}
    GV=RG; rel=[]
    for i,(tl,s) in enumerate(seq):
        cur[0]=i
        CS={2:76,6:78,10:80,12:82,13:84,16:86,20:88,24:92}
        if opt.cst and i in CS: e(f"s_memtime s[{CS[i]}:{CS[i]+1}]")
        if i==opt.bstep:
            if opt.bgate: lds_spin("L_wred",7,0,F_RED,4,sleep=1); lg.done=len(lg.ops)
            dmaB()
        if i==opt.bstep2: hinc(F_CW2); lg.issue("cw2")
        if i==12:
            lds_spin("L_cw2",7,0,F_CW2,4); lg.done=len(lg.ops); okB[0]=True
            while ld(): pass
        q,nm=(lg,"lgkmcnt") if f'u{i}' in lg.ops else (vm,"vmcnt")
        if q.pending(f'u{i}'): e(f"s_waitcnt {nm}({q.need(f'u{i}')})")
        n=0
        for t in tl:
            z=(ZE if t=='e' else ZO)(s) if s<22 else (LE if t=='e' else LO)(s-22)
            for k,a in (('x',AXE if t=='e' else AXO),('u',AUE if t=='e' else AUO)):
                if (i,k) not in reg: continue
                c=f"v[{a}:{a+15}]"; r=reg[(i,k)]
                e(f"v_mfma_f32_32x32x16_bf16 {c}, v[{r}:{r+3}], v[{z}:{z+3}], {0 if first[k+t] else c}"); first[k+t]=0; lastw[t]=cnt[0]
                n+=1
                if n==1: free+=rel; rel=[]
                ld()
                if len(tl)==1: ld()
            if s<22 and not (t=='e' and s<4): rel.append(z)
        rel+= [reg[(i,k)] for k in 'xu' if (i,k) in reg]
        if i==len(seq)-3:
            assert not lL and not lG
            GV=free.pop(0)
            e(f"buffer_load_dwordx2 v[{GV}:{GV+1}], v6, s[{S_WS}:{S_WS+3}], 0 offen sc1"); vm.issue("gv")
    V=free.pop(0); V2=V+1
    e(f"s_add_u32 s{sE}, s{sE}, 1")
    e(f"s_and_b32 s{sE+1}, s{sE+1}, 0xff")
    e("s_lshl_b32 s9, s9, 16")
    e(f"s_lshl_b32 s{sT+6}, s{sROW}, 1")
    e(f"s_lshl_b32 s{sT+7}, s{sROW}, 3")
    e(f"s_add_u32 s{sT+7}, s{sT+7}, {EPOCH}")
    e(f"v_mov_b32 v{V+3}, s{sE}")
    hz('e',12)
    e(f"v_mul_f32 v{V}, v{AXE}, v{AUE}")
    e(f"v_mul_f32 v{V2}, v{AXE+1}, v{AUE+1}")
    for t in range(2,14): e(f"v_fmac_f32 v{V+(t&1)}, v{AXE+t}, v{AUE+t}")
    hz('o',12)
    for t in range(14): e(f"v_fmac_f32 v{V+(t&1)}, v{AXO+t}, v{AUO+t}")
    e(f"v_add_f32 v{V}, v{V}, v{V2}")
    st(90)
    if ST: e("s_memtime s[98:99]")
    e("s_mov_b32 exec_lo, 0x3ffffff")
    e("s_mov_b32 exec_hi, 0")
    e(f"s_mov_b32 s{sT+4}, {opt.bound}")
    G2=GV+2
    def chk(g,lbl):
        e(f"v_and_b32 v{V2}, 0xff, v{g+1}")
        e(f"v_cmp_eq_u32 vcc, s{sE}, v{g}")
        e(f"v_cmp_eq_u32 s[{sT}:{sT+1}], s{sE+1}, v{V2}")
        e(f"v_and_b32 v{V2}, 0xffffff00, v{g+1}")
        e(f"s_and_b64 vcc, vcc, s[{sT}:{sT+1}]")
        e("s_cmp_eq_u64 vcc, exec")
        e(f"s_cbranch_scc1 L_got")
    lab("L_poll2")
    e(f"buffer_load_dwordx2 v[{G2}:{G2+1}], v6, s[{S_WS}:{S_WS+3}], 0 offen sc1")
    e("s_waitcnt vmcnt(1)")
    chk(GV,0)
    e(f"buffer_load_dwordx2 v[{GV}:{GV+1}], v6, s[{S_WS}:{S_WS+3}], 0 offen sc1")
    e("s_waitcnt vmcnt(1)")
    chk(G2,1)
    e(f"s_sub_u32 s{sT+4}, s{sT+4}, 1")
    e("s_cbranch_scc0 L_poll2")
    lab("L_got")
    e(f"v_add_f32 v{V}, v{V}, v{V2}")
    e("s_mov_b64 exec, -1")
    if not opt.cst: st(92)
    for dpp in ["quad_perm:[1,0,3,2] row_mask:0xf bank_mask:0xf","quad_perm:[2,3,0,1] row_mask:0xf bank_mask:0xf",
                "row_half_mirror row_mask:0xf bank_mask:0xf","row_mirror row_mask:0xf bank_mask:0xf",
                "row_bcast:15 row_mask:0xa bank_mask:0xf","row_bcast:31 row_mask:0xc bank_mask:0xf"]:
        e("s_nop 1")
        e(f"v_add_f32_dpp v{V}, v{V}, v{V} {dpp}")
    e("s_mov_b32 exec_lo, 0")
    e("s_mov_b32 exec_hi, 0x80000000")
    e(f"v_add_f32 v{V}, s9, v{V}")
    e(f"v_cvt_pk_bf16_f32 v{V}, v{V}, v{V}")
    e(f"buffer_store_short v{V}, off, s[{S_B}:{S_B+3}], s{sT+6}")
    e(f"buffer_store_dword v{V+3}, off, s[{S_WS}:{S_WS+3}], s{sT+7}")
    if ST:
        e("s_waitcnt vmcnt(0)"); st(94,True); e("s_sub_u32 s98, s98, s96")
        if opt.cst:
            for r in (76,78,80,82,84,86,88,92):
                e(f"s_sub_u32 s{r}, s{r}, s96"); e(f"s_mul_i32 s{r}, s{r}, 100"); e(f"s_add_u32 s{r}, s{r}, s10")
        dump([10,76,78,80,82,84,86,88,90,92,94,98],0,1)
    e("s_endpgm")

    sec("pref")
    lab("L_aux")
    e(f"s_mov_b32 s{sT+1}, s{sXCD}")
    e(f"s_cmp_ge_u32 s{sSLOT}, 27")
    e("s_cbranch_scc1 L_prefetch")
    e(f"s_cmp_lt_u32 s{sXCD}, 7")
    e("s_cbranch_scc1 L_fold")
    sec("fold0"); lab("L_fold")
    cm("---- CIN weight folding: rows i = 4*pidx + (wave&3) ----")
    S_C=S_W; S_O=S_B; sI=6
    e(f"s_and_b32 s{sT}, s{sWAVE}, 3")
    e(f"s_lshl2_add_u32 s{sI}, s{sT+1}, s{sT}")
    M=16
    e("v_lshlrev_b32 v3, 2, v0")
    e("v_mov_b32 v7, 0x7fff0000")
    e(f"s_movk_i32 s{sT+1}, 338")
    e(f"v_cmp_gt_u32 vcc, s{sT+1}, v0")
    e("v_lshrrev_b32 v4, 1, v2")
    e("v_and_b32 v5, 1, v2")
    e("v_cndmask_b32 v3, v7, v3, vcc")
    e("v_lshlrev_b32 v4, 3, v4")
    e("s_waitcnt lgkmcnt(0)")
    e(f"s_load_dwordx16 s[76:91], s[{P_WOUT}:{P_WOUT+1}], 104")
    srd(S_C,P_CIN,105456)
    for gg in range(26):
        if gg%3==0: e(f"s_mov_b32 s{sT+2}, {2*35152+gg*1352}")
        e(f"buffer_load_dword v{M+gg}, v3, s[{S_C}:{S_C+3}], s{sT+2} offen offset:{(gg%3)*1352}")
    e("s_branch L_fold_b")
    sec("fold"); lab("L_fold_b")
    PP=44; QQ=52
    def slots():
        for ee in range(8):
            e(f"v_add_u32 v8, {ee}, v4")
            e("v_mul_u32_u24 v9, 5042, v8")
            e("v_lshrrev_b32 v9, 16, v9")
            e("v_mul_u32_u24 v10, 13, v9")
            e("v_sub_u32 v10, v8, v10")
            e(f"v_lshl_add_u32 v{PP+ee}, v10, 1, v5")
            e(f"v_add_u32 v{QQ+ee}, v{PP+ee}, v9")
            e(f"v_subrev_u32 v10, 26, v{QQ+ee}")
            e(f"v_min_u32 v{QQ+ee}, v{QQ+ee}, v10")
    def m3(later):
        e("v_mul_u32_u24 v8, 5042, v0")
        e("v_lshrrev_b32 v8, 16, v8")
        e("v_mul_u32_u24 v9, 13, v8")
        e("v_sub_u32 v9, v0, v9")
        e("v_lshlrev_b32 v9, 7, v9")
        e("v_lshl_add_u32 v96, v8, 1, v9")
        e("s_waitcnt lgkmcnt(0)")
        st(92)
        for gg in range(26):
            sreg=76+(gg>>1)
            if gg&1: e(f"s_and_b32 s{sT+4+(gg&1)}, s{sreg}, 0xffff0000")
            else:    e(f"s_lshl_b32 s{sT+4+(gg&1)}, s{sreg}, 16")
            if gg%4==0: e(f"s_waitcnt vmcnt({later+25-min(gg+3,25)})")
            e(f"v_lshlrev_b32 v8, 16, v{M+gg}")
            e(f"v_and_b32 v9, 0xffff0000, v{M+gg}")
            if gg==0:
                e(f"v_mul_f32 v10, s{sT+4}, v8"); e(f"v_mul_f32 v11, s{sT+4}, v9")
            else:
                e(f"v_fmac_f32 v10, s{sT+4+(gg&1)}, v8"); e(f"v_fmac_f32 v11, s{sT+4+(gg&1)}, v9")
        e("v_cvt_pk_bf16_f32 v10, v10, v11")
        e(f"s_movk_i32 s{sT+1}, 338")
        e(f"v_cmp_gt_u32 vcc, s{sT+1}, v0")
        e(f"s_and_saveexec_b64 s[{sT+2}:{sT+3}], vcc")
        e("ds_write_b16 v96, v10")
        e("ds_write_b16_d16_hi v96, v10 offset:64")
        e("s_mov_b64 exec, -1")
        st(94)
    def st_addr(cnt):
        e("v_lshlrev_b32 v6, 7, v6")
        e("v_lshl_add_u32 v6, v5, 6, v6")
        e(f"s_and_b32 s{sT+1}, s{sWAVE}, 3")
        e(f"s_lshl_b32 s{sT+1}, s{sT+1}, 4")
        e(f"s_add_u32 s{sT+1}, s{sT+1}, {STG}")
        e(f"v_add_u32 v6, s{sT+1}, v6")
        e(f"v_cmp_gt_u32 vcc, {cnt}, v2")
        e("v_mov_b32 v94, 1.0")
        e(f"v_mov_b32 v8, {STG+8192}")
        e("v_cndmask_b32 v6, v8, v6, vcc")
        e("v_cmp_gt_u32 vcc, 2, v2")
        e("s_nop 1")
        e("v_cndmask_b32 v95, v94, 0.5, vcc")
        e("v_cmp_gt_u32 vcc, 4, v2")
        e("s_nop 1")
        e("v_cndmask_b32 v94, v94, 0.5, vcc")
    e(f"s_cmp_ge_u32 s{sWAVE}, 4")
    e("s_cbranch_scc1 L_aux_w1")
    Pq=60; PR=76; RA=68; VV=16
    e("v_and_b32 v8, 31, v2")
    e("v_lshrrev_b32 v15, 5, v2")
    e(f"v_mul_u32_u24 v10, {8*1352}, v15")
    e("v_lshl_add_u32 v10, v8, 1, v10")
    e("v_cmp_gt_u32 vcc, 26, v8")
    e(f"s_mul_i32 s{sT+3}, s{sI}, 52")
    e(f"s_add_u32 s{sT+3}, s{sT+3}, 35152")
    e("v_cndmask_b32 v10, v7, v10, vcc")
    e("v_cmp_gt_u32 vcc, 32, v2")
    e("v_lshlrev_b32 v12, 2, v2")
    e("s_nop 0")
    e("v_cndmask_b32 v11, v7, v10, vcc")
    for s in range(2):
        for ee in range(8):
            h=16*s+ee
            if h%3==0 or ee==0:
                hb=h; e(f"s_add_u32 s{sT+2}, s{sT+3}, {h*1352}")
            va=11 if (s==1 and ee>=2) else 10
            e(f"buffer_load_ushort v{PR+s*8+ee}, v{va}, s[{S_C}:{S_C+3}], s{sT+2} offen offset:{(h-hb)*1352}")
    srd(S_O,P_WOUT,156)
    e(f"buffer_load_dword v13, v12, s[{S_O}:{S_O+3}], 0 offen offset:52")
    e(f"s_lshl_b32 s{sT+2}, s{sI}, 1")
    e(f"buffer_load_ushort v14, off, s[{S_O}:{S_O+3}], s{sT+2}")
    e("v_lshlrev_b32 v8, 6, v2")
    e("v_mov_b32 v9, 0")
    e("s_mov_b32 exec_lo, 0x7ffffff")
    e("s_mov_b32 exec_hi, 0")
    e("ds_write_b32 v8, v9 offset:52")
    e("ds_write_b32 v8, v9 offset:56")
    e("ds_write_b32 v8, v9 offset:60")
    e("s_mov_b64 exec, -1")
    e("v_and_b32 v8, 31, v2")
    e("v_lshlrev_b32 v93, 6, v8")
    e("v_lshl_add_u32 v93, v15, 4, v93")
    e(f"s_mul_i32 s{sT+1}, s{sWAVE}, 5120")
    e(f"s_add_u32 s{sT+1}, s{sT+1}, 4096")
    e("v_mul_u32_u24 v92, 144, v8")
    e("v_lshl_add_u32 v92, v15, 4, v92")
    e(f"v_add_u32 v92, s{sT+1}, v92")
    slots()
    e("v_cmp_lt_u32 vcc, 43, v2")
    e("v_subrev_u32 v10, 176, v4")
    e("v_mov_b32 v11, 26")
    for ee in range(8):
        e(f"v_add_u32 v8, {ee}, v10")
        e("v_lshl_add_u32 v8, v8, 1, v5")
        e(f"v_min_u32 v8, 31, v8")
        e(f"v_cndmask_b32 v8, v{QQ+ee}, v8, vcc")
        e(f"v_cndmask_b32 v9, v{PP+ee}, v11, vcc")
        e(f"v_mul_u32_u24 v9, 144, v9")
        e(f"v_lshl_add_u32 v9, v8, 2, v9")
        e(f"v_add_u32 v{RA+ee}, s{sT+1}, v9")
    e("v_lshrrev_b32 v8, 1, v2")
    e("v_lshl_add_u32 v6, v8, 1, 1")
    e("v_add_u32 v8, 22, v8")
    e("v_cndmask_b32 v6, v6, v8, vcc")
    st_addr(48)
    m3(18)
    e("s_mov_b32 exec_lo, 0x1fff")
    e("s_mov_b32 exec_hi, 0")
    e("s_waitcnt vmcnt(0)")
    e(f"ds_write_b32 v12, v13 offset:{26*64}")
    e("s_mov_b64 exec, -1")
    for r in range(8): e(f"v_lshl_or_b32 v{Pq+r}, v{PR+2*r+1}, 16, v{PR+2*r}")
    e("s_waitcnt lgkmcnt(0)")
    e("s_barrier")
    Qq=16; D=24
    e(f"ds_read_b128 v[{Qq}:{Qq+3}], v93")
    e(f"ds_read_b128 v[{Qq+4}:{Qq+7}], v93 offset:32")
    e("s_waitcnt lgkmcnt(0)")
    e(f"v_mfma_f32_32x32x16_bf16 v[{D}:{D+15}], v[{Pq}:{Pq+3}], v[{Qq}:{Qq+3}], 0")
    e(f"v_mfma_f32_32x32x16_bf16 v[{D}:{D+15}], v[{Pq+4}:{Pq+7}], v[{Qq+4}:{Qq+7}], v[{D}:{D+15}]")
    e(f"v_mfma_f32_32x32x16_bf16 v[{D}:{D+15}], v[{Qq}:{Qq+3}], v[{Pq}:{Pq+3}], v[{D}:{D+15}]")
    e(f"v_mfma_f32_32x32x16_bf16 v[{D}:{D+15}], v[{Qq+4}:{Qq+7}], v[{Pq+4}:{Pq+7}], v[{D}:{D+15}]")
    e("s_nop 11")
    for m in range(4):
        e(f"ds_write_b128 v92, v[{D+4*m}:{D+4*m+3}] offset:{m*32}")
    e("s_waitcnt lgkmcnt(0)")
    for ee in range(8): e(f"ds_read_b32 v{VV+ee}, v{RA+ee}")
    e("v_lshlrev_b32 v14, 16, v14")
    e(f"v_cmp_eq_u32 s[{sT}:{sT+1}], 46, v2")
    e(f"v_cmp_eq_u32 s[{sT+2}:{sT+3}], 47, v2")
    e("v_cmp_lt_u32 vcc, 45, v2")
    e("s_waitcnt lgkmcnt(0)")
    e(f"v_cndmask_b32 v{VV+5}, v{VV+5}, v14, s[{sT}:{sT+1}]")
    e(f"v_cndmask_b32 v{VV+5}, v{VV+5}, 0, s[{sT+2}:{sT+3}]")
    e(f"v_cndmask_b32 v{VV+6}, v{VV+6}, 0, vcc")
    e(f"v_cndmask_b32 v{VV+7}, v{VV+7}, 0, vcc")
    e("s_branch L_aux_pack")
    lab("L_aux_w1")
    GA=60; GB=68
    e(f"s_mul_i32 s{sT+3}, s{sI}, 1352")
    e(f"s_lshl_b32 s{sT+6}, s{sWAVE}, 11")
    e(f"s_add_u32 s{sT+6}, s{sT+6}, {32768-4*2048}")
    e(f"s_mov_b32 m0, s{sT+6}")
    e("v_lshlrev_b32 v12, 4, v2")
    e(f"buffer_load_dwordx4 v12, s[{S_C}:{S_C+3}], s{sT+3} offen lds")
    e(f"buffer_load_dwordx4 v12, s[{S_C}:{S_C+3}], s{sT+3} offen offset:1024 lds")
    slots()
    for ee in range(8):
        e(f"v_mul_u32_u24 v8, 26, v{PP+ee}")
        e(f"v_add_lshl_u32 v8, v8, v{QQ+ee}, 1")
        e(f"v_add_u32 v{GA+ee}, s{sT+6}, v8")
        e(f"v_mul_u32_u24 v9, 26, v{QQ+ee}")
        e(f"v_add_lshl_u32 v9, v9, v{PP+ee}, 1")
        e(f"v_add_u32 v{GB+ee}, s{sT+6}, v9")
    e("v_and_b32 v6, 62, v2")
    st_addr(44)
    m3(2)
    e("s_waitcnt lgkmcnt(0)")
    e("s_barrier")
    e("s_waitcnt vmcnt(0)")
    for ee in range(8):
        e(f"ds_read_u16 v{GA+ee}, v{GA+ee}")
        e(f"ds_read_u16 v{GB+ee}, v{GB+ee}")
    e("s_waitcnt lgkmcnt(0)")
    for ee in range(8):
        e(f"v_lshlrev_b32 v{GA+ee}, 16, v{GA+ee}")
        e(f"v_lshlrev_b32 v{GB+ee}, 16, v{GB+ee}")
        e(f"v_add_f32 v{VV+ee}, v{GA+ee}, v{GB+ee}")
    lab("L_aux_pack")
    srd(S_WS,P_WS,WS_SIZE); srd(S_A,P_DBG,256)
    e("v_cmp_eq_u32 vcc, 43, v2")
    for ee in range(8): e(f"v_mul_f32 v{VV+ee}, v{VV+ee}, v{94 if ee<5 else 95}")
    e(f"v_cndmask_b32 v{VV+7}, v{VV+7}, 0, vcc")
    for m in range(4): e(f"v_cvt_pk_bf16_f32 v{24+m}, v{VV+2*m}, v{VV+2*m+1}")
    e("ds_write_b128 v6, v[24:27]")
    e("v_lshlrev_b32 v8, 4, v0")
    e(f"s_movk_i32 s{sT+1}, 368")
    e(f"v_cmp_gt_u32 vcc, s{sT+1}, v0")
    e(f"s_lshr_b32 s{sT}, s{sI}, 2")
    e(f"s_mul_i32 s{sT+2}, s{sT}, 5888")
    e("v_cndmask_b32 v9, v7, v8, vcc")
    e("s_waitcnt lgkmcnt(0)")
    e("s_barrier")
    e(f"ds_read_b128 v[24:27], v8 offset:{STG}")
    e("s_waitcnt lgkmcnt(0)")
    e(f"buffer_store_dwordx4 v[24:27], v9, s[{S_WS}:{S_WS+3}], s{sT+2} offen sc0 sc1")
    st(96)
    e(f"s_lshl_b32 s{sT}, s{sT}, 2")
    e("v_mov_b32 v8, 1")
    e("s_waitcnt vmcnt(0)")
    e("s_barrier")
    e(f"s_cmp_lg_u32 s{sWAVE}, 0")
    e("s_cbranch_scc1 L_noflag")
    e("s_mov_b64 exec, 1")
    e(f"buffer_store_dword v8, off, s[{S_A}:{S_A+3}], s{sT} sc0 sc1")
    e("s_mov_b64 exec, -1")
    lab("L_noflag")
    if ST:
        st(98); e("s_waitcnt vmcnt(0)"); st(100,True)
        dump([10,92,94,96,98,100],1,2)
    e("s_branch L_aux_done")
    sec("pref")
    lab("L_prefetch")
    e("s_waitcnt lgkmcnt(0)")
    if opt.pdel: e(f"s_sleep {opt.pdel}")
    if opt.pf:
        srd(S_W,P_W,1664*3328)
        e(f"s_cmp_lt_u32 s{sXCD}, 7")
        e(f"s_cselect_b32 s{sT+2}, 27, 26")
        e(f"s_sub_u32 s{sT}, s{sSLOT}, s{sT+2}")
        e(f"s_sub_u32 s{sT+2}, 32, s{sT+2}")
        e(f"s_mul_i32 s{sT+1}, s{sXCD}, 26")
        e(f"s_lshr_b32 s{sT+1}, s{sT+1}, 3")
        e(f"s_lshl_b32 s{sT+1}, s{sT+1}, 7")
        for u in range(3):
            e(f"v_add_u32 v3, {512*u}, v0")
            e(f"v_mul_u32_u24 v3, s{sT+2}, v3")
            e(f"v_add_u32 v3, s{sT}, v3")
            e("v_lshrrev_b32 v4, 2, v3")
            if opt.pskip: e(f"v_add_u32 v4, {opt.pskip}, v4")
            e("v_and_b32 v3, 3, v3")
            e(f"v_mul_u32_u24 v4, 3328, v4")
            e("v_lshl_add_u32 v3, v3, 7, v4")
            e(f"buffer_load_dword v{9+u}, v3, s[{S_W}:{S_W+3}], s{sT+1} offen")
            if u<2 and opt.pbar: e("s_barrier")
        e(f"s_cmp_lg_u32 s{sSLOT}, 31")
        e("s_cbranch_scc1 L_aux_done")
        srd(S_B,P_W2,3328); srd(S_WS,P_WS,EPOCH+8192)
        e("v_lshlrev_b32 v3, 7, v0")
        e(f"buffer_load_dword v13, v3, s[{S_B}:{S_B+3}], 0 offen")
        e(f"s_mov_b32 s{sT}, {EPOCH}")
        e(f"buffer_load_dword v14, v3, s[{S_WS}:{S_WS+3}], s{sT} offen")
    e("s_branch L_aux_done")
    sec("fold")
    lab("L_aux_done")
    e(f"s_cmp_lt_u32 s{sWAVE}, 4")
    e("s_cbranch_scc1 L_end")
    srd(S_TBL,P_TBL,128000); srd(S_IDX,P_IDX,106496)
    rowidx_load()
    e(f"v_mov_b32 v7, {FLAGS}")
    e("v_mov_b32 v8, 4")
    e("v_mov_b32 v9, 0")
    e(f"ds_write_b32 v7, v8 offset:{F_RED}")
    e(f"ds_write_b32 v7, v8 offset:{F_G}")
    e(f"ds_write_b32 v7, v8 offset:{F_S1}")
    e(f"ds_write_b32 v7, v9 offset:{F_CW}")
    e(f"ds_write_b32 v7, v9 offset:{F_CW2}")
    e("s_waitcnt vmcnt(0)")
    e("v_lshlrev_b32 v29, 7, v29")
    x0_addrs()
    e("s_branch L_help_x0")
    lab("L_end")
    e("s_endpgm")
    sec("tail")
    L.append('.section .rodata,"a"'); L.append(".p2align 6"); L.append(f".amdhsa_kernel {KN}")
    for x in ["next_free_vgpr 256","next_free_sgpr 102","accum_offset 256","group_segment_fixed_size 0","kernarg_size 88",
              "user_sgpr_count 2","user_sgpr_kernarg_segment_ptr 1","system_sgpr_workgroup_id_x 1"]:
        L.append("  .amdhsa_"+x)
    L.append(".end_amdhsa_kernel")
    return "\n".join(sum((SEC.get(k,[]) for k in order+["tail"]),[]))+"\n"

if __name__=="__main__":
    ap=argparse.ArgumentParser()
    ap.add_argument("-o",default="k.s")
    for k,d in dict(pdel=0,cp26=1,pbar=1,lay=1,b2g=1,cst=0,bgate=1,look=2,bstep=3,bstep2=10,inv=0,zmid=22,csc=0,gateC=0,gq=0,rowx=1,wstop=5,wrest=16,bq=3,xlds=1,xgap=0,atid=1,xsl=8,pskip=128,d2late=1,wper=4,its=0,sched=0,nog=0,not_=0,c2=0,noz=0,lateb=1,dly=4,pst=0,enc=0,encrole=0,encwg=0,encwave=0,nocin=0,gcyc=0,psleep=4,now=0,stamps=0,pf=1,cpf=1,prio=1,bound=20000,zsplit=22,zbar=22,nt0=6,tb=444,n0=4,nt1=4,d1late=0,trim=1,wsched=0).items(): ap.add_argument("--"+k,type=int,default=d)
    opt=ap.parse_args()
    for t in range(512): assert (t*5042)>>16==t//13, t
    open(opt.o,"w").write(build(opt))
```

```python
import sys, argparse, math, struct

class Q:
    def __init__(s,cap): s.ops=[]; s.cap=cap; s.done=0
    def issue(s,name): s.ops.append(name)
    def need(s,*names):
        r=99
        for name in names:
            i=len(s.ops)-1-s.ops[::-1].index(name)
            r=min(r,len(s.ops)-1-i)
        r=min(r,s.cap)
        s.done=max(s.done,len(s.ops)-r)
        return r
    def pending(s,*names):
        return any(len(s.ops)-1-s.ops[::-1].index(n)>=s.done for n in names)

WIMG=0; GRAN=65536; EPOCH=0x50000; STAMP=0x100000; WS_SIZE=0x200000
STG=49152; RING=128000; FLAGS=160768; CINW=49152
F_IT9,F_RED,F_G,F_PRE,F_S1,F_CW,F_CW2=0,4,8,12,16,20,24
C1=-2*math.sqrt(2/math.pi)*math.log2(math.e); C2=C1*0.044715
def f2u(x): return struct.unpack('<I',struct.pack('<f',x))[0]
KN="standalone__deep_cross_xdeepfm__recsys_kernel"

sWAVE,sXCD,sSLOT,sCB,sRB=3,4,5,7,8
P_IDX,P_TBL,P_CIN,P_WOUT,P_W,P_B1,P_W2,P_BO=16,18,20,22,24,26,28,30
P_OUT,P_DBG,P_WS=32,34,36
S_IDX,S_TBL,S_W,S_WS,S_A,S_B=40,44,48,52,56,60
sRING,sWR1,sWR2,sTM=64,65,15,14
sT=66

def pair_of(n):
    if n<169: dlt,m=divmod(n,13)
    else: dlt,m=13,n-169
    r=2*m
    return r,(r+dlt)%26

def build(opt):
    SEC={"entry":[]}; order=["entry","hpro","dnn0","pref","fold0","dnn","help","fold"] if opt.lay else ["entry","hpro","pref","fold0","dnn0","dnn","help","fold"]
    class LL:
        cur="entry"
        def append(s,x): SEC.setdefault(s.cur,[]).append(x)
    L=LL()
    def sec(n): L.cur=n
    cnt=[0]; lastw={}
    def e(x):
        L.append("    "+x)
        cnt[0]+= (int(x.split()[1])+1) if x.startswith("s_nop") else 1
    def hz(key,n):
        d=cnt[0]-lastw[key]
        if d<n: e(f"s_nop {n-d-1}")
    def lab(x): L.append(x+":")
    def cm(x): L.append("    ; "+x)
    E=lambda x:(lambda: e(x))
    ST=opt.stamps
    def srd(d,p,size):
        e(f"s_mov_b32 s{d}, s{p}"); e(f"s_mov_b32 s{d+1}, s{p+1}")
        e(f"s_mov_b32 s{d+2}, {size}"); e(f"s_mov_b32 s{d+3}, 0x20000")
    def st(r,wait=False):
        if ST:
            e(f"s_memrealtime s[{r}:{r+1}]")
            if wait: e("s_waitcnt lgkmcnt(0)")
    def dump(regs,area=0,role=0):
        if opt.enc:
            delay(regs,role); return
        dump_(regs,area)
    dl=[0]
    def delay(regs,role):
        dl[0]+=1; n=dl[0]
        e("s_mov_b64 exec, -1")
        e("s_waitcnt lgkmcnt(0)")
        if opt.enc==99:
            if role!=1: return
            srd(S_A,P_DBG,256)
            e("s_not_b32 s12, s10")
            e("v_mov_b32 v244, s12")
            e(f"v_mov_b32 v245, s{regs[10]}")
            e("v_mov_b32 v246, 1")
            e("s_mov_b64 exec, 1")
            e(f"buffer_atomic_umax v244, off, s[{S_A}:{S_A+3}], 0 offset:240 sc1")
            e(f"buffer_atomic_umax v245, off, s[{S_A}:{S_A+3}], 0 offset:244 sc1")
            e("s_waitcnt vmcnt(0)")
            e(f"buffer_atomic_add v246, off, s[{S_A}:{S_A+3}], 0 offset:248 sc0 sc1")
            e("s_waitcnt vmcnt(0)")
            e("v_readfirstlane_b32 s12, v246")
            e("s_cmp_lg_u32 s12, 1023")
            e(f"s_cbranch_scc1 L_dly{n}_x")
            e(f"buffer_load_dwordx2 v[244:245], off, s[{S_A}:{S_A+3}], 0 offset:240 sc1")
            e("s_waitcnt vmcnt(0)")
            e("v_readfirstlane_b32 s12, v244")
            e("v_readfirstlane_b32 s13, v245")
            e("s_not_b32 s12, s12")
            e("s_sub_u32 s12, s13, s12")
        else:
            if role!=opt.encrole: return
            e(f"s_cmp_lg_u32 s2, {opt.encwg}")
            e(f"s_cbranch_scc1 L_dly{n}_x")
            e(f"s_cmp_lg_u32 s{sWAVE}, {opt.encwave}")
            e(f"s_cbranch_scc1 L_dly{n}_x")
            e(f"s_sub_u32 s12, s{regs[opt.enc]}, s10")
        e("s_mul_i32 s12, s12, 100")
        e("s_memrealtime s[66:67]")
        e("s_waitcnt lgkmcnt(0)")
        e("s_add_u32 s12, s12, s66")
        lab(f"L_dly{n}")
        e("s_sleep 8")
        e("s_memrealtime s[66:67]")
        e("s_waitcnt lgkmcnt(0)")
        e("s_sub_u32 s13, s66, s12")
        e("s_cmp_lt_i32 s13, 0")
        e(f"s_cbranch_scc1 L_dly{n}")
        lab(f"L_dly{n}_x")
        e("s_mov_b64 exec, -1")
    def dump_(regs,area=0):
        e("s_mov_b64 exec, -1")
        e("s_waitcnt lgkmcnt(0)")
        e("s_lshl_b32 s12, s2, 3")
        e(f"s_add_u32 s12, s12, s{sWAVE}")
        e("s_lshl_b32 s12, s12, 6")
        e(f"s_add_u32 s12, s12, {STAMP+area*0x40000}")
        regs=list(regs)+[regs[0]]*(12-len(regs))
        for i,r in enumerate(regs): e(f"v_mov_b32 v{244+i}, s{r}")
        e("s_mov_b64 exec, 1")
        for i in range(3):
            e(f"buffer_store_dwordx4 v[{244+4*i}:{247+4*i}], off, s[{S_WS}:{S_WS+3}], s12 offset:{16*i}")
        e("s_mov_b64 exec, -1")
    def lds_spin(name,vaddr,vtmp,off,target,sleep=0):
        e(f"s_mov_b32 s{sT+4}, {opt.bound*8}")
        lab(name)
        e(f"ds_read_b32 v{vtmp}, v{vaddr} offset:{off}")
        e("s_waitcnt lgkmcnt(0)")
        e(f"v_readfirstlane_b32 s{sT+5}, v{vtmp}")
        e(f"s_cmp_ge_u32 s{sT+5}, {target}")
        e(f"s_cbranch_scc1 {name}_x")
        if sleep: e(f"s_sleep {sleep}")
        e(f"s_sub_u32 s{sT+4}, s{sT+4}, 1")
        e(f"s_cbranch_scc0 {name}")
        lab(name+"_x")

    IV=16; IA=24
    def rec_addrs():
        e(f"s_lshl_b32 s{sT+5}, s{sT}, 7")
        e(f"s_add_u32 s{sT+5}, s{sT+5}, {RING+4096}")
        e(f"v_lshl_add_u32 v7, v7, 3, s{sT+5}")
        e("v_mul_u32_u24 v9, 7, v8")
        e("v_and_b32 v8, 1, v8")
        for par in range(2):
            d=IA+2*par
            if par:
                e("v_xor_b32 v8, 1, v8"); e("v_add_u32 v9, 1, v9")
            e("v_lshrrev_b32 v10, 1, v9")
            e(f"v_lshl_add_u32 v{d}, v10, 8, v7")
            e(f"v_lshl_add_u32 v{d}, v8, 14, v{d}")
            e("v_lshlrev_b32 v10, 1, v8")
            e(f"v_xor_b32 v10, s{sT+2}, v10")
            e(f"v_lshl_add_u32 v{d}, v10, 1, v{d}")
            e(f"v_xor_b32 v{d+1}, 2, v{d}")
            e(f"v_add_u32 v{d+1}, 8192, v{d+1}")
    sROW=6; sE=38
    def rowidx_load():
        e(f"s_sub_u32 s{sT+6}, s{sWAVE}, 4")
        if opt.rowx:
            e(f"s_lshl2_add_u32 s{sROW}, s{sSLOT}, s{sT+6}")
            e(f"s_lshl_b32 s{sT+6}, s{sXCD}, 7")
            e(f"s_add_u32 s{sROW}, s{sROW}, s{sT+6}")
        else: e(f"s_lshl2_add_u32 s{sROW}, s2, s{sT+6}")
        e(f"s_mul_i32 s{sT+6}, s{sROW}, 104")
        e("v_lshlrev_b32 v30, 2, v2")
        e(f"buffer_load_dword v29, v30, s[{S_IDX}:{S_IDX+3}], s{sT+6} offen")
    L.append("; @launch grid=(256,1,1) block=(512,1,1) lds=163840")
    L.append('.amdgcn_target "amdgcn-amd-amdhsa--gfx950"')
    L.append(".text"); L.append(f".globl {KN}"); L.append(".p2align 8"); L.append(f".type {KN},@function")
    lab(KN)
    e("s_load_dwordx16 s[16:31], s[0:1], 0")
    e("s_load_dwordx4 s[32:35], s[0:1], 64")
    e("s_load_dwordx2 s[36:37], s[0:1], 80")
    st(10)
    e("s_cmp_ge_u32 s2, 256")
    e("s_cbranch_scc1 L_end")
    e("v_lshrrev_b32 v1, 6, v0")
    e("v_and_b32 v2, 63, v0")
    e(f"v_readfirstlane_b32 s{sWAVE}, v1")
    e(f"s_and_b32 s{sXCD}, s2, 7")
    e(f"s_lshr_b32 s{sSLOT}, s2, 3")
    e(f"s_cmp_lt_u32 s{sSLOT}, 26")
    e("s_cbranch_scc1 L_tile")
    if opt.cpf:
        e(f"s_getpc_b64 s[{S_IDX}:{S_IDX+1}]")
        lab("L_pc")
        e(f"s_sub_u32 s{S_IDX}, s{S_IDX}, L_pc-{KN}")
        e(f"s_subb_u32 s{S_IDX+1}, s{S_IDX+1}, 0")
        e(f"s_mov_b32 s{S_IDX+2}, L_end-{KN}")
        e(f"s_mov_b32 s{S_IDX+3}, 0x20000")
        e("v_lshlrev_b32 v3, 7, v0")
        e(f"buffer_load_dword v255, v3, s[{S_IDX}:{S_IDX+3}], 0 offen")
    e("s_branch L_aux")
    lab("L_tile")
    e(f"s_mul_i32 s6, s{sXCD}, 26")
    e(f"s_add_u32 s6, s6, s{sSLOT}")
    e(f"s_lshr_b32 s{sCB}, s6, 3")
    e(f"s_and_b32 s{sRB}, s6, 7")
    e(f"v_mov_b32 v7, {FLAGS}")
    e("v_mov_b32 v8, 0"); e("v_mov_b32 v9, 0")
    e("ds_write2_b64 v7, v[8:9], v[8:9] offset1:1")
    e("ds_write2_b64 v7, v[8:9], v[8:9] offset0:2 offset1:3")
    e("v_lshrrev_b32 v3, 3, v2")
    e("v_lshrrev_b32 v4, 4, v2")
    e("v_and_b32 v10, 7, v2")
    e(f"s_mov_b32 s{S_IDX+2}, 106496"); e(f"s_mov_b32 s{S_IDX+3}, 0x20000")
    e(f"s_and_b32 s{sT}, s{sWAVE}, 1")
    e(f"s_lshl_b32 s{sT+1}, s{sT}, 2")
    e("v_xor_b32 v5, v10, v4")
    e(f"v_xor_b32 v5, s{sT+1}, v5")
    e("v_lshlrev_b32 v5, 4, v5")
    e("v_lshl_add_u32 v5, v3, 7, v5")
    e(f"s_lshr_b32 s{sT+2}, s{sWAVE}, 1")
    e(f"s_lshl1_add_u32 s{sT+3}, s{sSLOT}, s{sT+2}")
    e(f"s_lshl_b32 s{sT+3}, s{sT+3}, 11")
    e(f"s_lshl_b32 s{sT+4}, s{sT}, 10")
    e(f"s_add_u32 s{sTM}, s{sT+3}, s{sT+4}")
    e(f"s_lshl_b32 s{sT+3}, s{sT}, 11")
    e(f"s_sub_u32 s{sWR2}, {63*2048}, s{sT+3}")
    e(f"s_add_u32 s{sWR1}, s{sWR2}, s{sT+4}")
    e(f"s_mov_b32 s{S_TBL+2}, 128000"); e(f"s_mov_b32 s{S_TBL+3}, 0x20000")
    e(f"s_cmp_lt_u32 s{sWAVE}, 4")
    e("s_cbranch_scc1 L_dnn")
    sec("dnn0"); lab("L_dnn")
    def tbl(n,vm):
        for t in range(n):
            e(f"s_mov_b32 m0, s{sTM}")
            e(f"s_add_u32 s{sTM}, s{sTM}, 8192")
            e(f"buffer_load_dwordx4 v5, s[{S_TBL}:{S_TBL+3}], m0 offen lds"); vm.issue("tbl")
            e(f"s_cmp_ge_u32 s{sTM}, s{sWR1}")
            e(f"s_cselect_b32 s{sT+5}, s{sWR2}, 0")
            e(f"s_sub_u32 s{sTM}, s{sTM}, s{sT+5}")

    vW,vT0,vT1=1,3,4
    AD=8; AF=16; F0=48; REC=80; ACC=128
    acc=lambda lt,ct: ACC+(lt*2+ct)*16
    Fr=lambda j,ks,ct: F0+(j&1)*16+(ks*2+ct)*4
    vm=Q(63); lg=Q(15)
    cm("---- DNN wave prologue ----")
    e("v_lshlrev_b32 v6, 4, v2")
    e(f"s_mul_i32 s{sT+4}, s{sRB}, 13312")
    e(f"s_mul_i32 s{sT+5}, s{sWAVE}, 3328")
    e(f"s_add_u32 s{sT+4}, s{sT+4}, s{sT+5}")
    e(f"s_lshl_b32 s{sRING}, s{sWAVE}, 13")
    e(f"s_add_u32 s{sRING}, s{sRING}, {RING}")
    e(f"s_add_u32 m0, s{sRING}, 4096")
    e(f"s_lshl_b32 s{sT+7}, s{sWAVE}, 5")
    e(f"v_add_u32 v9, s{sT+7}, v3")
    e("v_mul_u32_u24 v9, 3328, v9")
    e("v_lshlrev_b32 v11, 2, v4")
    e("v_and_b32 v11, 4, v11")
    e("v_xor_b32 v11, v11, v10")
    e("v_lshl_add_u32 v1, v11, 4, v9")
    e(f"s_lshl_b32 s{sT+7}, s{sCB}, 7")
    e(f"v_add_u32 v1, s{sT+7}, v1")
    e("v_lshrrev_b32 v12, 5, v2")
    e(f"v_lshl_add_u32 v11, v12, 5, s{sT+7}")
    e("s_waitcnt lgkmcnt(0)")
    if opt.pst: st(84)
    e(f"s_mov_b64 s[{S_IDX}:{S_IDX+1}], s[{P_IDX}:{P_IDX+1}]")
    e(f"s_mov_b64 s[{S_TBL}:{S_TBL+1}], s[{P_TBL}:{P_TBL+1}]")
    for i in range(4):
        if i==3: e("s_mov_b64 exec, 0xffff")
        e(f"buffer_load_dwordx4 v6, s[{S_IDX}:{S_IDX+3}], s{sT+4} offen offset:{1024*i} lds"); vm.issue(f"idx{i}")
    e("s_mov_b64 exec, -1")
    srd(S_W,P_W,1664*3328)
    srd(S_A,P_B1,3328)
    for pc in range(4):
        e(f"s_add_u32 m0, s{sRING}, {pc*1024}")
        e(f"s_mov_b32 s12, {8*pc*3328}")
        e(f"buffer_load_dwordx4 v1, s[{S_W}:{S_W+3}], s12 offen lds"); vm.issue(f"w0_{pc}")
    def bias_loads(ii=range(4)):
        for i in ii:
            e(f"buffer_load_dwordx4 v[{106+4*i}:{109+4*i}], v{VB}, s[{S_A}:{S_A+3}], 0 offen offset:{(i>>1)*64+(i&1)*16}"); vm.issue(f"bias{i}")
    VB=6
    e("v_mov_b32 v6, v11")
    TB=[int(c,16) for c in str(opt.tb)]
    tbl(TB[0],vm)
    if opt.lay: e("s_branch L_dnn_b")
    sec("dnn"); lab("L_dnn_b")
    if opt.pst: st(86)
    e("v_and_b32 v13, 31, v2")
    e("v_mul_u32_u24 v13, 104, v13")
    e(f"s_lshl2_add_u32 s{sT+5}, s{sT+2}, {RING+4096}")
    e(f"v_add_u32 v13, s{sT+5}, v13")
    e("v_lshlrev_b32 v9, 1, v12")
    e(f"v_xor_b32 v9, s{sWAVE}, v9")
    e("v_lshl_add_u32 v24, v9, 13, v13")
    e("v_xor_b32 v9, 1, v9")
    e("v_lshl_add_u32 v25, v9, 13, v13")
    e("v_bfe_u32 v9, v2, 2, 2")
    e("v_lshlrev_b32 v3, 7, v9")
    e("v_lshl_add_u32 v3, v12, 10, v3")
    e("v_lshrrev_b32 v9, 1, v9")
    e("v_lshl_add_u32 v3, v9, 6, v3")
    e("v_and_b32 v9, 1, v2")
    e("v_lshl_add_u32 v3, v9, 5, v3")
    e("v_bfe_u32 v9, v2, 1, 1")
    e("v_lshl_add_u32 v3, v9, 3, v3")
    e("v_and_b32 v9, 1, v4")
    e("v_lshl_add_u32 v3, v9, 4, v3")
    e(f"v_add_u32 v3, s{sRING}, v3")
    e("v_xor_b32 v4, 64, v3")
    e(f"v_add_u32 v14, s{sT+1}, v12")
    e("v_lshl_or_b32 v14, v14, 16, v14")
    e(f"s_mov_b32 s{sT+6}, 0x00070007")
    e(f"s_waitcnt vmcnt({vm.need('idx3')})")
    if opt.pst: st(88)
    def lds_inc(va,off):
        e("v_mov_b32 v0, 1")
        e("s_mov_b64 exec, 1")
        e(f"ds_add_u32 v{va}, v0 offset:{off}")
        e("s_mov_b64 exec, -1")
    e("s_barrier")
    if opt.pst: st(90)
    sWO=12
    def dma(j,pcs):
        for pc in pcs:
            if opt.now and j>=3:
                vm.ops.insert(0,f"w{j}_{pc}"); continue
            e(f"s_add_u32 m0, s{sRING}, {((j&1)*4+pc)*1024}")
            e(f"s_mov_b32 s{sWO}, {(128*j+8*pc)*3328}")
            e(f"buffer_load_dwordx4 v{vW}, s[{S_W}:{S_W+3}], s{sWO} offen lds"); vm.issue(f"w{j}_{pc}")
    BI=106
    RW=lambda t,j: 160+t*14+j
    RECX=104
    for j in range(0,13,2):
        for t in range(2):
            e(f"ds_read2_b32 v[{RW(t,j)}:{RW(t,j)+1}], v{24+t} offset0:{2*j} offset1:{2*j+2}")
    tbl(TB[1],vm)
    srd(S_WS,P_WS,WS_SIZE)
    srd(S_B,P_W2,3328)
    e("s_waitcnt lgkmcnt(0)")
    e("s_barrier")
    st(76)
    tbl(TB[2],vm)
    for j in range(13):
        if j==6: tbl(TB[3],vm)
        d=REC+2*j
        e(f"v_lshl_or_b32 v{d}, v{RW(1,j)}, 16, v{RW(0,j)}")
        e(f"v_lshrrev_b32 v13, 1, v{d}")
        e(f"v_and_b32 v13, s{sT+6}, v13")
        e(f"v_lshl_or_b32 v{d}, v{d}, 3, v13")
        e(f"v_mov_b32 v{d+1}, v{d}")
        if j:
            e(f"v_permlane32_swap_b32 v{d-2}, v{d-1}")
            e(f"v_xor_b32 v{d-2}, v14, v{d-2}"); e(f"v_xor_b32 v{d-1}, v14, v{d-1}")
    e("s_nop 1")
    e(f"v_permlane32_swap_b32 v{REC+24}, v{REC+25}")
    e(f"v_xor_b32 v{REC+24}, v14, v{REC+24}"); e(f"v_xor_b32 v{REC+25}, v14, v{REC+25}")
    afr=lambda lt,ks: AF+8*lt+4*ks
    XF={0:80,1:88,2:afr(1,0),3:afr(2,0)}
    FX={0:[F0,F0+4,F0+8,F0+12],1:[8,12,40,44],2:[F0+16,F0+20,F0+24,F0+28],3:[F0,F0+4,F0+8,F0+12]}
    def adr(lt,j):
        e(f"v_lshlrev_b32_sdwa v{AD+2*lt}, 4, v{REC+2*j+(lt>>1)} dst_sel:DWORD dst_unused:UNUSED_PAD src0_sel:DWORD src1_sel:WORD_{lt&1}")
        e(f"v_xor_b32 v{AD+2*lt+1}, 32, v{AD+2*lt}")
    def Rop(lt,j):
        for ks in range(2):
            e(f"ds_read_b128 v[{afr(lt,ks)}:{afr(lt,ks)+3}], v{AD+2*lt+ks}"); lg.issue(f"R{lt}_{ks}_{j}")
    def adrX(c,a):
        e(f"v_lshlrev_b32_sdwa v{a}, 4, v{RECX} dst_sel:DWORD dst_unused:UNUSED_PAD src0_sel:DWORD src1_sel:WORD_{c>>1}")
        if c&1: e(f"v_xor_b32 v{a}, 64, v{a}")
        e(f"v_xor_b32 v{a+1}, 32, v{a}")
    def RX(c,a):
        for ks in range(2):
            e(f"ds_read_b128 v[{XF[c]+4*ks}:{XF[c]+4*ks+3}], v{a+ks}"); lg.issue(f"X{c}_{ks}")
    def Top(j,ks):
        for ct in range(2):
            for h4 in range(2):
                d=Fr(j,ks,ct)+2*h4
                e(f"ds_read_b64_tr_b16 v[{d}:{d+1}], v{vT0+ct} offset:{((j&1)*4+ks*2)*1024+h4*512}"); lg.issue(f"T{j}_{ks}_{ct}{h4}")
    def TX(c):
        for ks in range(2):
            for ct in range(2):
                for h4 in range(2):
                    d=FX[c][ks*2+ct]+2*h4
                    e(f"ds_read_b64_tr_b16 v[{d}:{d+1}], v{vT0+ct} offset:{c*8192+ks*2048+h4*512}"); lg.issue(f"TX{c}")
    for lt in range(4): adr(lt,0)
    if ST: e("s_waitcnt lgkmcnt(0)")
    e(f"s_waitcnt vmcnt({vm.need('w0_3')})")
    Top(0,0); Top(0,1)
    tbl(16-sum(TB),vm)
    dma(1,range(4))
    e("s_waitcnt lgkmcnt(0)")
    if opt.d2late!=1: dma(2,range(4))
    if opt.pst: st(92)
    e(f"s_waitcnt vmcnt({vm.need('tbl')})")
    st(78)
    e("s_barrier")
    st(80,True)
    if ST: e("s_memtime s[96:97]"); e("s_waitcnt lgkmcnt(0)")
    if opt.prio: e(f"s_setprio {opt.prio}")
    Rop(1,0); Rop(2,0); Rop(3,0); Rop(0,0)
    def group(lt,fa,xa,first,fills):
        for i,(ks,ct) in enumerate([(0,0),(0,1),(1,0),(1,1)]):
            c=f"v[{acc(lt,ct)}:{acc(lt,ct)+15}]"
            src="0" if (first and ks==0) else c
            e(f"v_mfma_f32_32x32x16_bf16 {c}, v[{fa[ks*2+ct]}:{fa[ks*2+ct]+3}], v[{xa+4*ks}:{xa+4*ks+3}], {src}")
            lastw[(lt,ct)]=cnt[0]
            for f in fills[i]: f()
    LT=[1,2,3,0]
    W2P=106; EV=122; VR=124; WA=125; RA1,RA2=5,6; sM=[0,sT+7,sT+8,13]
    def addrs():
        e(f"s_xor_b32 s{sT}, s{sWAVE}, 1")
        e(f"s_lshl_b32 s{sT}, s{sT}, 12")
        e(f"v_lshlrev_b32 v{RA1}, 4, v2")
        e(f"v_add_u32 v{WA}, s{sT}, v{RA1}")
        e(f"v_xor_b32 v{WA+1}, {3<<12}, v{WA}")
    def addrs2():
        e(f"v_xor_b32 v{WA+2}, {2<<12}, v{WA}")
        e(f"s_lshl_b32 s{sT}, s{sWAVE}, 12")
        e(f"v_add_u32 v{RA1}, s{sT}, v{RA1}")
    def addrs3(): pass
    SEL=80; TA=92
    selops=[E("v_and_b32 v0, 31, v2"),E(f"v_lshrrev_b32 v{TA}, 5, v2"),E(f"v_lshlrev_b32 v{TA}, 2, v{TA}"),E(f"v_sub_u32 v0, v0, v{TA}"),
            E(f"v_lshrrev_b32 v{TA}, 1, v0"),E(f"v_and_b32 v{TA}, 12, v{TA}"),E(f"v_and_or_b32 v{TA}, v0, 3, v{TA}"),
            E("v_and_b32 v0, 0xffffffe4, v0"),E("v_cmp_eq_u32 vcc, 0, v0"),E(f"v_lshlrev_b32 v0, 4, v{TA}"),E("v_and_b32 v0, 16, v0"),
            E(f"v_lshlrev_b32 v0, v0, s{sM[1]}"),E("v_cndmask_b32 v0, 0, v0, vcc"),E(f"v_lshrrev_b32 v{TA}, 1, v{TA}")]
    selops.insert(0,E(f"s_movk_i32 s{sM[1]}, 0x3f80"))
    for ms in ((0,1,2),(3,4,5),(6,7)):
        def f(ms=ms):
            for k,m in enumerate(ms): e(f"v_cmp_eq_u32 s[{sT+2*k}:{sT+2*k+1}], {m}, v{TA}")
            if len(ms)<3: e("s_nop 0")
            for k,m in enumerate(ms): e(f"v_cndmask_b32 v{SEL+m}, 0, v0, s[{sT+2*k}:{sT+2*k+1}]")
        selops.append(f)
    def cv(lt,ct):
        a=acc(lt,ct)
        return [(lambda m=m: (hz((lt,ct),12),e(f"v_cvt_pk_bf16_f32 v{a+m}, v{a+2*m}, v{a+2*m+1}"))) for m in range(8)]
    def late1():
        e(f"s_lshl_b32 s{sT}, s{sCB}, 7")
        e(f"v_lshrrev_b32 v{VR}, 5, v2")
        e(f"v_lshl_add_u32 v{VR}, v{VR}, 5, s{sT}")
    def late2(i):
        e(f"buffer_load_dwordx4 v[{W2P+4*i}:{W2P+4*i+3}], v{VR}, s[{S_B}:{S_B+3}], 0 offen offset:{(i>>1)*64+(i&1)*16}"); vm.issue(f"w2_{i}")
    def late3():
        e(f"v_and_b32 v{VR}, 31, v2")
        e(f"s_lshl_b32 s{sT}, s{sRB}, 7")
        e(f"s_lshl_b32 s{sT+1}, s{sWAVE}, 5")
        e(f"s_add_u32 s{sT}, s{sT}, s{sT+1}")
        e(f"v_add_lshl_u32 v{VR}, v{VR}, s{sT}, 3")
    def late4():
        e(f"s_mov_b32 s{sT+2}, {EPOCH}")
        e(f"buffer_load_dwordx2 v[{EV}:{EV+1}], v{VR}, s[{S_WS}:{S_WS+3}], s{sT+2} offen"); vm.issue("ev")
    def badd(ct,t):
        src=BI+ct*8+(t>>1)
        if t&1: e(f"v_and_b32 v0, 0xffff0000, v{src}")
        else:   e(f"v_lshlrev_b32 v0, 16, v{src}")
        hz((0,ct),12)
        e(f"v_add_f32 v{acc(0,ct)+t}, v{acc(0,ct)+t}, v0")
    def wv(n): return lambda n=n: (e(f"s_waitcnt vmcnt({vm.need(n)})") if vm.pending(n) else None)
    def wl(n): return lambda n=n: (e(f"s_waitcnt lgkmcnt({lg.need(n)})") if lg.pending(n) else None)
    ITS={1:76,2:78,3:80,5:82,7:84,9:86,11:88,12:90}
    def inc(off,nm):
        def f():
            e("s_mov_b64 exec, 1")
            e(f"ds_add_u32 v7, v{ONE} offset:{off}"); lg.issue(nm)
            e("s_mov_b64 exec, -1")
        return f
    ONE=88; vC1=89; S0=90; S1=91; TA,TB_=92,93
    def w1(lt,ct,h): return lambda: (e(f"ds_write_b128 v{WA+lt-1}, v[{acc(lt,ct)+4*h}:{acc(lt,ct)+4*h+3}] offset:{(lt-1)*16384+(ct*2+h)*1024}"),lg.issue("W"))
    W=lambda lt,ct: [w1(lt,ct,0),w1(lt,ct,1)]
    W2F=list(range(F0+16,F0+32))+list(range(8,16))+list(range(96,104))
    unp=[]
    for t in range(32):
        src=W2P+(t>>1)
        unp.append(E(f"v_and_b32 v{W2F[t]}, 0xffff0000, v{src}" if t&1 else f"v_lshlrev_b32 v{W2F[t]}, 16, v{src}"))
    def bar2():
        e("s_waitcnt lgkmcnt(0)"); lg.done=len(lg.ops)
        if opt.its: e("s_memtime s[92:93]")
        if not opt.pst: st(82)
        e("s_barrier")
        if not opt.pst: st(84)
    for j in range(13):
        cm(f"---- iteration {j} ----")
        if opt.its==1 and j in ITS: e(f"s_memtime s[{ITS[j]}:{ITS[j]+1}]")
        if opt.its and j==12: opt.pst=1
        for g,lt in enumerate(LT):
            needs=[f"R{lt}_1_{j}"]+([f"T{j}_1_11"] if g==0 else [])
            if lg.pending(*needs): e(f"s_waitcnt lgkmcnt({lg.need(*needs)})")
            if opt.its==2 and j<2: e(f"s_memtime s[{76+2*(4*j+g)}:{77+2*(4*j+g)}]")
            fills=[[],[],[],[]]
            if j==0 and opt.d2late:
                if g<2 and opt.d2late==1:
                    fills[0].append(lambda g=g: dma(2,[2*g])); fills[2].append(lambda g=g: dma(2,[2*g+1]))
                if g>=2: fills[0]+= [wv(f'w1_{2*(g-2)+1}'),lambda g=g: Top(1,g-2)]
            elif j<12:
                if j==2: fills[1 if g<2 else 2].append(lambda g=g: bias_loads([g]))
                if j==1 and g<2 and opt.d2late:
                    fills[1].append(lambda g=g: dma(3,[2*g])); fills[2].append(lambda g=g: dma(3,[2*g+1]))
                if g<2: fills[0]+= [wv(f'w{j+1}_{2*g+1}'),lambda j=j,g=g: Top(j+1,g)]
                elif j+3<13:
                    fills[0]+= [wl(f'T{j+1}_{g-2}_11'),lambda j=j,g=g: dma(j+3,[2*(g-2)])]
                    fills[1].append(lambda j=j,g=g: dma(j+3,[2*(g-2)+1]))
            if j<12:
                fills[2].append(lambda j=j,lt=lt: adr(lt,j+1))
                fills[3].append(lambda j=j,lt=lt: Rop(lt,j+1))
            if j in (4,5,6,9) and g in (1,2):
                jj={4:0,5:1,6:2,9:3}[j]; ct=jj>>1; t0=(jj&1)*8+(g-1)*4
                if g==1 and j==4: fills[1].append(wv('bias3'))
                for i,ts in ((1,(0,1)),(2,(2,)),(3 if g==1 else 2,(3,))):
                    fills[i]+= [(lambda t=t0+t,ct=ct: badd(ct,t)) for t in ts]
            if j==7:
                sl={0:[(0,0),(0,5),(5,7),(7,9)],1:[(9,9),(9,15),(15,15),(15,15)],2:[(15,15),(15,15),(15,16),(16,16)],3:[(16,16),(16,16),(16,17),(17,18)]}[g]
                for i in range(4): fills[i]+=selops[sl[i][0]:sl[i][1]]
            if j==8 and g==0: fills[1].append(addrs)
            if j==8 and g==1: fills[1].append(addrs2); fills[2]+= [E(f"v_mov_b32 v{ONE}, 1"),E(f"v_mov_b32 v{vC1}, {f2u(C1)}"),E(f"v_mov_b32 v{S0}, 0"),E(f"v_mov_b32 v{S1}, 0")]
            if j==10 and g==0: fills[1].append(late1); fills[2].append(lambda: late2(0))
            if j==10 and g==1: fills[1].append(lambda: late2(1)); fills[2].append(lambda: late2(2))
            if j==10 and g==2: fills[0]+= [wl('T11_1_11'),inc(F_S1,"s1")]; fills[1].append(lambda: late2(3))
            if j==10 and g==3: fills[0].append(late3); fills[1].append(late4)
            if j==12:
                G={0:[[E("s_waitcnt vmcnt(0)")]+unp[:5],unp[5:11],unp[11:16],unp[16:22]],
                   1:[unp[22:27]+([bar2] if opt.b2g==1 else []),unp[27:],cv(1,0)[:6],cv(1,0)[6:]+W(1,0)+cv(1,1)[:3]],
                   2:[cv(1,1)[3:]+W(1,1)[:1],W(1,1)[1:],cv(2,0)[:6],cv(2,0)[6:]+W(2,0)+cv(2,1)[:3]],
                   3:[cv(2,1)[3:]+W(2,1)[:1],W(2,1)[1:]+[E(f"s_mov_b32 s{sT+2}, {f2u(C2)}")],cv(3,0)[:6],cv(3,0)[6:]+W(3,0)+cv(3,1)+W(3,1)+[inc(F_RED,"inc")]]}[g]
                if g==0 and opt.b2g==0: G[3]=G[3]+[bar2]
                for i in range(4): fills[i]+=G[i]
            group(lt,[Fr(j,ks,ct) for ks in range(2) for ct in range(2)],afr(lt,0),j==0,fills)
    if not opt.pst: st(86)
    if ST: e("s_memtime s[98:99]")
    lds_spin("L_red",7,0,F_RED,4)
    if not opt.pst: st(88,True)
    if ST and opt.gcyc: e("s_memtime s[96:97]"); e("s_waitcnt lgkmcnt(0)")
    lg=Q(15)
    adds=[]
    for ct in range(2):
        for u in (1,2,3):
            for h in range(2):
                r=acc(u,ct)+4*h
                e(f"ds_read_b128 v[{r}:{r+3}], v{RA1} offset:{(u-1)*16384+(ct*2+h)*1024}"); lg.issue(f"p{ct}{u}{h}")
                def add(ct=ct,u=u,h=h,r=r):
                    if lg.pending(f"p{ct}{u}{h}"): e(f"s_waitcnt lgkmcnt({lg.need(f'p{ct}{u}{h}')})")
                    c=f"v[{acc(0,ct)}:{acc(0,ct)+15}]"
                    e(f"v_mfma_f32_32x32x16_bf16 {c}, v[{SEL+4*h}:{SEL+4*h+3}], v[{r}:{r+3}], {c}"); lastw[(0,ct)]=cnt[0]
                adds.append(add)
    for f in adds[:7]: f()
    adds=adds[7:]
    T=F0
    for q in range(8):
        a=ACC+4*q
        if q==opt.gq and opt.gateC==3: inc(F_G,"g")()
        def A():
            if adds: adds.pop(0)()
        hz((0,q>>2),12)
        for r in range(4): e(f"v_mul_f32 v{T+r}, v{a+r}, v{a+r}")
        for r in range(4): e(f"v_fma_f32 v{T+r}, v{T+r}, s{sT+2}, v{vC1}")
        A()
        for r in range(4): e(f"v_mul_f32 v{T+r}, v{T+r}, v{a+r}")
        for r in range(4): e(f"v_exp_f32 v{T+r}, v{T+r}")
        A()
        for r in range(4): e(f"v_mul_f32 v{a+r}, v{a+r}, v{W2F[4*q+r]}")
        for r in range(4): e(f"v_add_f32 v{T+r}, 1.0, v{T+r}")
        for r in range(4): e(f"v_rcp_f32 v{T+r}, v{T+r}")
        if adds: A()
        else: e("s_nop 0")
        for r in range(4): e(f"v_fmac_f32 v{S0 if r&1==0 else S1}, v{a+r}, v{T+r}")
    e(f"v_add_f32 v{S0}, v{S0}, v{S1}")
    e(f"v_mov_b32 v{S1}, v{S0}")
    e(f"s_movk_i32 s{sT}, 0xff")
    e(f"v_add_u32 v{EV}, 1, v{EV}")
    e(f"v_permlane32_swap_b32 v{S0}, v{S1}")
    e(f"s_lshl_b32 s{sT+1}, s{sCB}, 13")
    e(f"v_add_f32 v{S0}, v{S0}, v{S1}")
    e(f"s_add_u32 s{sT+1}, s{sT+1}, {GRAN}")
    e(f"v_bfi_b32 v{EV+1}, s{sT}, v{EV+1}, v{S0}")
    e(f"s_mov_b32 exec_hi, 0")
    e(f"buffer_store_dwordx2 v[{EV}:{EV+1}], v{VR}, s[{S_WS}:{S_WS+3}], s{sT+1} offen sc0 sc1")
    if ST:
        if opt.gcyc: e("s_memtime s[98:99]")
        if not opt.pst: st(90); e("s_waitcnt vmcnt(0)"); st(92,True)
        e("s_waitcnt lgkmcnt(0)"); e("s_sub_u32 s98, s98, s96")
        if opt.its:
            for r in range(76,94,2):
                e(f"s_sub_u32 s{r}, s{r}, s96"); e(f"s_mul_i32 s{r}, s{r}, 100"); e(f"s_add_u32 s{r}, s{r}, s10")
        dump([10,76,78,80,82,84,86,88,90,92,98])
    e("s_endpgm")

    sec("hpro")
    def late_sloads():
        e(f"s_lshl_b32 s{sT+8}, s{sROW}, 3")
        e(f"s_add_u32 s{sT+8}, s{sT+8}, {EPOCH}")
        e(f"s_load_dwordx2 s[{sE}:{sE+1}], s[{P_WS}:{P_WS+1}], s{sT+8}")
        e(f"s_load_dword s9, s[{P_BO}:{P_BO+1}], 0")
    X=32
    def x0_addrs():
        e("v_and_b32 v3, 31, v2")
        e("v_lshlrev_b32 v4, 2, v3")
        for r in range(26): e(f"v_readlane_b32 s{76+r}, v29, {r}")
        e("s_mov_b32 exec_hi, 0")
        for r in range(26): e(f"v_xor_b32 v{X+r}, s{76+r}, v4")
        e("s_mov_b64 exec, -1")
        e("s_mov_b32 exec_lo, 0")
        for r in range(26): e(f"v_xor_b32 v{X+r}, s{76+(r+1)%26}, v4")
        e("s_mov_b64 exec, -1")
    lab("L_help_pro")
    e(f"s_mov_b32 m0, s{sTM}")
    e(f"s_mov_b32 s{sT+3}, {opt.nt0-1}")
    e("s_waitcnt lgkmcnt(0)")
    e(f"s_mov_b64 s[{S_IDX}:{S_IDX+1}], s[{P_IDX}:{P_IDX+1}]")
    e(f"s_mov_b64 s[{S_TBL}:{S_TBL+1}], s[{P_TBL}:{P_TBL+1}]")
    def tloop(name):
        lab(name)
        e(f"buffer_load_dwordx4 v5, s[{S_TBL}:{S_TBL+3}], m0 offen lds")
        e("s_add_u32 m0, m0, 8192")
        e(f"s_cmp_ge_u32 m0, s{sWR1}")
        e(f"s_cselect_b32 s{sT+5}, s{sWR2}, 0")
        e(f"s_sub_u32 m0, m0, s{sT+5}")
        e(f"s_sub_u32 s{sT+3}, s{sT+3}, 1")
        e(f"s_cbranch_scc0 {name}")
    rowidx_load()
    tloop("L_tloop")
    e(f"s_mov_b32 s{sT+3}, {16-opt.nt0-1}")
    e("s_barrier")
    tloop("L_tloop2")
    e("s_barrier")
    e("s_branch L_help_b")
    sec("help"); lab("L_help_b")
    e("s_waitcnt vmcnt(16)")
    if opt.xlds:
        e("v_lshlrev_b32 v8, 3, v29"); e("v_and_b32 v8, 0x70, v8"); e("v_lshl_or_b32 v29, v29, 7, v8")
    else: e("v_lshlrev_b32 v29, 7, v29")
    x0_addrs()
    e("s_waitcnt vmcnt(0)")
    e("s_barrier")
    if opt.xsl: e(f"s_sleep {opt.xsl}")
    if opt.xlds:
        for r in range(26):
            e(f"ds_read_b32 v{X+r}, v{X+r}")
            if opt.xgap and r%opt.xgap==opt.xgap-1: e("s_sleep 1")
        e("s_branch L_help_main")
    lab("L_help_x0")
    for r in range(26):
        e(f"buffer_load_dword v{X+r}, v{X+r}, s[{S_TBL}:{S_TBL+3}], 0 offen")
    lab("L_help_main")
    srd(S_WS,P_WS,WS_SIZE); srd(S_A,P_DBG,256); srd(S_B,P_OUT,2048)
    Z0=8
    ZE=lambda s: Z0+4*s
    ZO=lambda s: Z0+88+4*s
    LE=lambda k: Z0+176+4*k
    LO=lambda k: Z0+184+4*k
    R=200; MT=252
    e("v_lshrrev_b32 v5, 2, v3")
    e("v_mul_u32_u24 v5, 5888, v5")
    e("v_and_b32 v6, 3, v2")
    e("v_lshl_add_u32 v5, v6, 4, v5")
    e("v_lshrrev_b32 v6, 5, v2")
    e("v_lshl_add_u32 v5, v6, 6, v5")
    e("v_mov_b32 v7, 0x7fff0000")
    e("v_cmp_gt_u32 vcc, 26, v3")
    e("v_lshlrev_b32 v6, 13, v2")
    e(f"s_lshl_b32 s{sT}, s{sROW}, 3")
    e("v_cndmask_b32 v5, v7, v5, vcc")
    e(f"s_add_u32 s{sT}, s{sT}, {GRAN}")
    e(f"v_add_u32 v6, s{sT}, v6")
    e("v_cmp_gt_u32 vcc, 26, v2")
    e("v_lshlrev_b32 v1, 4, v2")
    e(f"v_add_u32 v1, 97280, v1")
    e("v_cndmask_b32 v6, v7, v6, vcc")
    e(f"v_mov_b32 v7, {FLAGS}")
    e("s_waitcnt vmcnt(0) lgkmcnt(0)")
    late_sloads()
    st(76)
    for r in range(26):
        e(f"v_lshlrev_b32 v{R+2*r}, 16, v{X+r}")
        e(f"v_and_b32 v{R+2*r+1}, 0xffff0000, v{X+r}")
    def zstep(s):
        if opt.noz: return
        for m in range(4):
            (a1,a2),(b1,b2)=pair_of(8*s+2*m),pair_of(8*s+2*m+1)
            e(f"v_mul_f32 v{MT}, v{R+2*a1}, v{R+2*a2}")
            e(f"v_mul_f32 v{MT+2}, v{R+2*b1}, v{R+2*b2}")
            e(f"v_mul_f32 v{MT+1}, v{R+2*a1+1}, v{R+2*a2+1}")
            e(f"v_mul_f32 v{MT+3}, v{R+2*b1+1}, v{R+2*b2+1}")
            e(f"v_cvt_pk_bf16_f32 v{ZE(s)+m}, v{MT}, v{MT+2}")
            e(f"v_cvt_pk_bf16_f32 v{ZO(s)+m}, v{MT+1}, v{MT+3}")
    def zlin():
        for k in range(2):
            for m2 in range(4):
                m=k*8+2*m2
                for tl,d in ((0,LE(k)+m2),(1,LO(k)+m2)):
                    if m+1<=12: e(f"v_cvt_pk_bf16_f32 v{d}, v{R+4*m+tl}, v{R+4*(m+1)+tl}")
                    elif m==12: e(f"v_cvt_pk_bf16_f32 v{d}, v{R+4*m+tl}, 1.0")
                    else: e(f"v_mov_b32 v{d}, 0")
    SC=" sc1" if opt.csc else ""
    zlin()
    for s in range(opt.zsplit): zstep(s)
    st(78)
    e(f"s_load_dwordx8 s[92:99], s[{P_DBG}:{P_DBG+1}], 0")
    e("s_waitcnt lgkmcnt(0)")
    for k in range(1,7): e(f"s_and_b32 s92, s92, s{92+k}")
    e("s_cmp_lg_u32 s92, 0")
    e("s_cbranch_scc1 L_polled")
    lds_spin("L_it9",7,4,F_S1,4,sleep=4)
    e(f"v_lshlrev_b32 v0, 2, v2")
    e(f"buffer_load_dword v4, v0, s[{S_A}:{S_A+3}], 0 offen sc1")
    for s in range(opt.zsplit,opt.zmid): zstep(s)
    e(f"s_mov_b32 s{sT+4}, {opt.bound}")
    e(f"s_mov_b32 s{sT+2}, 0x7f")
    e(f"s_mov_b32 s{sT+3}, 0")
    lab("L_poll1")
    e("s_waitcnt vmcnt(0)")
    e("v_cmp_ne_u32 vcc, 0, v4")
    e(f"s_and_b64 vcc, vcc, s[{sT+2}:{sT+3}]")
    e(f"s_cmp_eq_u64 vcc, s[{sT+2}:{sT+3}]")
    e("s_cbranch_scc1 L_polled")
    e(f"s_sleep {opt.psleep}")
    e(f"buffer_load_dword v4, v0, s[{S_A}:{S_A+3}], 0 offen sc1")
    e(f"s_sub_u32 s{sT+4}, s{sT+4}, 1")
    e("s_cbranch_scc0 L_poll1")
    lab("L_polled")
    if opt.inv: e("buffer_inv sc1")
    st(80)
    lds_spin("L_s1",7,0,F_S1,4,sleep=2)
    e(f"s_sub_u32 s{sT}, s{sWAVE}, 4")
    e(f"s_lshl_b32 s{sT+1}, s{sT}, 13")
    e(f"s_add_u32 m0, s{sT+1}, {RING+4096}")
    e(f"s_lshl_b32 s{sT}, s{sT}, 9")
    e(f"s_sub_u32 s{sT}, s{sT}, 256")
    for t in range(4):
        if t<2:
            e(f"s_cmp_eq_u32 s{sWAVE}, 4")
            e(f"s_cselect_b32 s{sT+1}, {(44+t)*128}, s{sT}")
        else: e(f"s_mov_b32 s{sT+1}, s{sT}")
        e(f"buffer_load_dwordx4 v5, s[{S_WS}:{S_WS+3}], s{sT+1} offen sc1 lds")
        if t<3:
            e(f"s_add_u32 m0, m0, 1024")
            e(f"s_add_u32 s{sT}, s{sT}, 128")
    for s in range(opt.zmid,opt.zbar): zstep(s)
    e("s_waitcnt vmcnt(0)")
    st(82)
    e("s_barrier")
    for s in range(opt.zbar,22): zstep(s)
    def hinc(off):
        e("v_mov_b32 v0, 1")
        e("s_mov_b64 exec, 1")
        e("s_waitcnt vmcnt(0)")
        e(f"ds_add_u32 v7, v0 offset:{off}")
        e("s_mov_b64 exec, -1")
    CWB=97280
    def dmaB():
        e(f"s_sub_u32 s{sT}, s{sWAVE}, 4")
        e(f"s_lshl_b32 s{sT+1}, s{sT}, 10")
        e(f"s_add_u32 m0, s{sT+1}, {CWB}")
        e(f"s_lshl_b32 s{sT}, s{sT}, 7")
        e(f"s_add_u32 s{sT}, s{sT}, {14*128}")
        for t in range(8):
            if t==7:
                e(f"s_cmp_ge_u32 s{sWAVE}, 6")
                e("s_cbranch_scc1 L_dma_done")
            e(f"buffer_load_dwordx4 v5, s[{S_WS}:{S_WS+3}], s{sT} offen sc1 lds")
            if t<7:
                e(f"s_add_u32 m0, m0, 4096")
                e(f"s_add_u32 s{sT}, s{sT}, 512")
        lab("L_dma_done")
    if opt.bstep<0:
        if opt.bgate: lds_spin("L_wred",7,0,F_RED,4,sleep=1)
        dmaB()
    st(84)
    AUE,AUO=200,216; RG=232
    AXE=LE(0); AXO=ZE(0)
    vm=Q(63); lg=Q(15)
    seq=[('eo',22),('eo',23)]+[('e',s) for s in range(4)]+[('o',s) for s in range(4)]+[('eo',s) for s in range(4,22)]
    free=[RG+4*k for k in range(6)]
    reg={}
    lL=[]; lG=[]
    for i,(tl,s) in enumerate(seq):
        for k,fi in ([('x',2*s),('u',2*s+1)] if s<22 else [('u',44+s-22)]): lL.append((i,k,fi))
    cur=[0]; okB=[False]
    def ld():
        if not free or not lL or lL[0][0]>cur[0]+opt.look: return False
        i,k,fi=lL[0]
        if 14<=fi<44 and not okB[0]: return False
        lL.pop(0); r=free.pop(0); reg[(i,k)]=r
        if 14<=fi<44: off=(fi-14)*1024
        else:
            p=fi+2 if fi<14 else fi-44
            off=RING+4096-CWB+(p>>2)*8192+(p&3)*1024
        e(f"ds_read_b128 v[{r}:{r+3}], v1 offset:{off}"); lg.issue(f"{k}{i}")
        return True
    if opt.gateC: lds_spin("L_gC",7,0,{1:F_RED,3:F_G}[opt.gateC],4,sleep=1)
    st(88,True)
    if ST: e("s_memtime s[96:97]"); e("s_waitcnt lgkmcnt(0)")
    while ld(): pass
    first={'xe':1,'xo':1,'ue':1,'uo':1}
    GV=RG; rel=[]
    for i,(tl,s) in enumerate(seq):
        cur[0]=i
        CS={2:76,6:78,10:80,12:82,13:84,16:86,20:88,24:92}
        if opt.cst and i in CS: e(f"s_memtime s[{CS[i]}:{CS[i]+1}]")
        if i==opt.bstep:
            if opt.bgate: lds_spin("L_wred",7,0,F_RED,4,sleep=1); lg.done=len(lg.ops)
            dmaB()
        if i==opt.bstep2: hinc(F_CW2); lg.issue("cw2")
        if i==12:
            lds_spin("L_cw2",7,0,F_CW2,4); lg.done=len(lg.ops); okB[0]=True
            while ld(): pass
        q,nm=(lg,"lgkmcnt") if f'u{i}' in lg.ops else (vm,"vmcnt")
        if q.pending(f'u{i}'): e(f"s_waitcnt {nm}({q.need(f'u{i}')})")
        n=0
        for t in tl:
            z=(ZE if t=='e' else ZO)(s) if s<22 else (LE if t=='e' else LO)(s-22)
            for k,a in (('x',AXE if t=='e' else AXO),('u',AUE if t=='e' else AUO)):
                if (i,k) not in reg: continue
                c=f"v[{a}:{a+15}]"; r=reg[(i,k)]
                e(f"v_mfma_f32_32x32x16_bf16 {c}, v[{r}:{r+3}], v[{z}:{z+3}], {0 if first[k+t] else c}"); first[k+t]=0; lastw[t]=cnt[0]
                n+=1
                if n==1: free+=rel; rel=[]
                ld()
                if len(tl)==1: ld()
            if s<22 and not (t=='e' and s<4): rel.append(z)
        rel+= [reg[(i,k)] for k in 'xu' if (i,k) in reg]
        if i==len(seq)-3:
            assert not lL and not lG
            GV=free.pop(0)
            e(f"buffer_load_dwordx2 v[{GV}:{GV+1}], v6, s[{S_WS}:{S_WS+3}], 0 offen sc1"); vm.issue("gv")
    V=free.pop(0); V2=V+1
    e(f"s_add_u32 s{sE}, s{sE}, 1")
    e(f"s_and_b32 s{sE+1}, s{sE+1}, 0xff")
    e("s_lshl_b32 s9, s9, 16")
    e(f"s_lshl_b32 s{sT+6}, s{sROW}, 1")
    e(f"s_lshl_b32 s{sT+7}, s{sROW}, 3")
    e(f"s_add_u32 s{sT+7}, s{sT+7}, {EPOCH}")
    e(f"v_mov_b32 v{V+3}, s{sE}")
    hz('e',12)
    e(f"v_mul_f32 v{V}, v{AXE}, v{AUE}")
    e(f"v_mul_f32 v{V2}, v{AXE+1}, v{AUE+1}")
    for t in range(2,14): e(f"v_fmac_f32 v{V+(t&1)}, v{AXE+t}, v{AUE+t}")
    hz('o',12)
    for t in range(14): e(f"v_fmac_f32 v{V+(t&1)}, v{AXO+t}, v{AUO+t}")
    e(f"v_add_f32 v{V}, v{V}, v{V2}")
    st(90)
    if ST: e("s_memtime s[98:99]")
    e("s_mov_b32 exec_lo, 0x3ffffff")
    e("s_mov_b32 exec_hi, 0")
    e(f"s_mov_b32 s{sT+4}, {opt.bound}")
    G2=GV+2
    def chk(g,lbl):
        e(f"v_and_b32 v{V2}, 0xff, v{g+1}")
        e(f"v_cmp_eq_u32 vcc, s{sE}, v{g}")
        e(f"v_cmp_eq_u32 s[{sT}:{sT+1}], s{sE+1}, v{V2}")
        e(f"v_and_b32 v{V2}, 0xffffff00, v{g+1}")
        e(f"s_and_b64 vcc, vcc, s[{sT}:{sT+1}]")
        e("s_cmp_eq_u64 vcc, exec")
        e(f"s_cbranch_scc1 L_got")
    lab("L_poll2")
    e(f"buffer_load_dwordx2 v[{G2}:{G2+1}], v6, s[{S_WS}:{S_WS+3}], 0 offen sc1")
    e("s_waitcnt vmcnt(1)")
    chk(GV,0)
    e(f"buffer_load_dwordx2 v[{GV}:{GV+1}], v6, s[{S_WS}:{S_WS+3}], 0 offen sc1")
    e("s_waitcnt vmcnt(1)")
    chk(G2,1)
    e(f"s_sub_u32 s{sT+4}, s{sT+4}, 1")
    e("s_cbranch_scc0 L_poll2")
    lab("L_got")
    e(f"v_add_f32 v{V}, v{V}, v{V2}")
    e("s_mov_b64 exec, -1")
    if not opt.cst: st(92)
    for dpp in ["quad_perm:[1,0,3,2] row_mask:0xf bank_mask:0xf","quad_perm:[2,3,0,1] row_mask:0xf bank_mask:0xf",
                "row_half_mirror row_mask:0xf bank_mask:0xf","row_mirror row_mask:0xf bank_mask:0xf",
                "row_bcast:15 row_mask:0xa bank_mask:0xf","row_bcast:31 row_mask:0xc bank_mask:0xf"]:
        e("s_nop 1")
        e(f"v_add_f32_dpp v{V}, v{V}, v{V} {dpp}")
    e("s_mov_b32 exec_lo, 0")
    e("s_mov_b32 exec_hi, 0x80000000")
    e(f"v_add_f32 v{V}, s9, v{V}")
    e(f"v_cvt_pk_bf16_f32 v{V}, v{V}, v{V}")
    e(f"buffer_store_short v{V}, off, s[{S_B}:{S_B+3}], s{sT+6}")
    e(f"buffer_store_dword v{V+3}, off, s[{S_WS}:{S_WS+3}], s{sT+7}")
    if ST:
        e("s_waitcnt vmcnt(0)"); st(94,True); e("s_sub_u32 s98, s98, s96")
        if opt.cst:
            for r in (76,78,80,82,84,86,88,92):
                e(f"s_sub_u32 s{r}, s{r}, s96"); e(f"s_mul_i32 s{r}, s{r}, 100"); e(f"s_add_u32 s{r}, s{r}, s10")
        dump([10,76,78,80,82,84,86,88,90,92,94,98],0,1)
    e("s_endpgm")

    sec("pref")
    lab("L_aux")
    e(f"s_lshl1_add_u32 s{sT+1}, s{sXCD}, s{sSLOT}")
    e(f"s_sub_u32 s{sT+1}, s{sT+1}, 26")
    e(f"s_cmp_ge_u32 s{sSLOT}, 28")
    e("s_cbranch_scc1 L_prefetch")
    e(f"s_cmp_lt_u32 s{sT+1}, 7")
    e("s_cbranch_scc1 L_fold")
    sec("fold0"); lab("L_fold")
    cm("---- CIN weight folding: rows i = 4*pidx + (wave&3) ----")
    S_C=S_W; S_O=S_B; sI=6
    e(f"s_and_b32 s{sT}, s{sWAVE}, 3")
    e(f"s_lshl2_add_u32 s{sI}, s{sT+1}, s{sT}")
    M=16
    e("v_lshlrev_b32 v3, 2, v0")
    e("v_mov_b32 v7, 0x7fff0000")
    e(f"s_movk_i32 s{sT+1}, 338")
    e(f"v_cmp_gt_u32 vcc, s{sT+1}, v0")
    e("v_lshrrev_b32 v4, 1, v2")
    e("v_and_b32 v5, 1, v2")
    e("v_cndmask_b32 v3, v7, v3, vcc")
    e("v_lshlrev_b32 v4, 3, v4")
    e("s_waitcnt lgkmcnt(0)")
    e(f"s_load_dwordx16 s[76:91], s[{P_WOUT}:{P_WOUT+1}], 104")
    srd(S_C,P_CIN,105456)
    for gg in range(26):
        if gg%3==0: e(f"s_mov_b32 s{sT+2}, {2*35152+gg*1352}")
        e(f"buffer_load_dword v{M+gg}, v3, s[{S_C}:{S_C+3}], s{sT+2} offen offset:{(gg%3)*1352}")
    e("s_branch L_fold_b")
    sec("fold"); lab("L_fold_b")
    PP=44; QQ=52
    def slots():
        for ee in range(8):
            e(f"v_add_u32 v8, {ee}, v4")
            e("v_mul_u32_u24 v9, 5042, v8")
            e("v_lshrrev_b32 v9, 16, v9")
            e("v_mul_u32_u24 v10, 13, v9")
            e("v_sub_u32 v10, v8, v10")
            e(f"v_lshl_add_u32 v{PP+ee}, v10, 1, v5")
            e(f"v_add_u32 v{QQ+ee}, v{PP+ee}, v9")
            e(f"v_subrev_u32 v10, 26, v{QQ+ee}")
            e(f"v_min_u32 v{QQ+ee}, v{QQ+ee}, v10")
    def m3(later):
        e("v_mul_u32_u24 v8, 5042, v0")
        e("v_lshrrev_b32 v8, 16, v8")
        e("v_mul_u32_u24 v9, 13, v8")
        e("v_sub_u32 v9, v0, v9")
        e("v_lshlrev_b32 v9, 7, v9")
        e("v_lshl_add_u32 v96, v8, 1, v9")
        e("s_waitcnt lgkmcnt(0)")
        st(92)
        for gg in range(26):
            sreg=76+(gg>>1)
            if gg&1: e(f"s_and_b32 s{sT+4+(gg&1)}, s{sreg}, 0xffff0000")
            else:    e(f"s_lshl_b32 s{sT+4+(gg&1)}, s{sreg}, 16")
            if gg%4==0: e(f"s_waitcnt vmcnt({later+25-min(gg+3,25)})")
            e(f"v_lshlrev_b32 v8, 16, v{M+gg}")
            e(f"v_and_b32 v9, 0xffff0000, v{M+gg}")
            if gg==0:
                e(f"v_mul_f32 v10, s{sT+4}, v8"); e(f"v_mul_f32 v11, s{sT+4}, v9")
            else:
                e(f"v_fmac_f32 v10, s{sT+4+(gg&1)}, v8"); e(f"v_fmac_f32 v11, s{sT+4+(gg&1)}, v9")
        e("v_cvt_pk_bf16_f32 v10, v10, v11")
        e(f"s_movk_i32 s{sT+1}, 338")
        e(f"v_cmp_gt_u32 vcc, s{sT+1}, v0")
        e(f"s_and_saveexec_b64 s[{sT+2}:{sT+3}], vcc")
        e("ds_write_b16 v96, v10")
        e("ds_write_b16_d16_hi v96, v10 offset:64")
        e("s_mov_b64 exec, -1")
        st(94)
    def st_addr(cnt):
        e("v_lshlrev_b32 v6, 7, v6")
        e("v_lshl_add_u32 v6, v5, 6, v6")
        e(f"s_and_b32 s{sT+1}, s{sWAVE}, 3")
        e(f"s_lshl_b32 s{sT+1}, s{sT+1}, 4")
        e(f"s_add_u32 s{sT+1}, s{sT+1}, {STG}")
        e(f"v_add_u32 v6, s{sT+1}, v6")
        e(f"v_cmp_gt_u32 vcc, {cnt}, v2")
        e("v_mov_b32 v94, 1.0")
        e(f"v_mov_b32 v8, {STG+8192}")
        e("v_cndmask_b32 v6, v8, v6, vcc")
        e("v_cmp_gt_u32 vcc, 2, v2")
        e("s_nop 1")
        e("v_cndmask_b32 v95, v94, 0.5, vcc")
        e("v_cmp_gt_u32 vcc, 4, v2")
        e("s_nop 1")
        e("v_cndmask_b32 v94, v94, 0.5, vcc")
    e(f"s_cmp_ge_u32 s{sWAVE}, 4")
    e("s_cbranch_scc1 L_aux_w1")
    Pq=60; PR=76; RA=68; VV=16
    e("v_and_b32 v8, 31, v2")
    e("v_lshrrev_b32 v15, 5, v2")
    e(f"v_mul_u32_u24 v10, {8*1352}, v15")
    e("v_lshl_add_u32 v10, v8, 1, v10")
    e("v_cmp_gt_u32 vcc, 26, v8")
    e(f"s_mul_i32 s{sT+3}, s{sI}, 52")
    e(f"s_add_u32 s{sT+3}, s{sT+3}, 35152")
    e("v_cndmask_b32 v10, v7, v10, vcc")
    e("v_cmp_gt_u32 vcc, 32, v2")
    e("v_lshlrev_b32 v12, 2, v2")
    e("s_nop 0")
    e("v_cndmask_b32 v11, v7, v10, vcc")
    for s in range(2):
        for ee in range(8):
            h=16*s+ee
            if h%3==0 or ee==0:
                hb=h; e(f"s_add_u32 s{sT+2}, s{sT+3}, {h*1352}")
            va=11 if (s==1 and ee>=2) else 10
            e(f"buffer_load_ushort v{PR+s*8+ee}, v{va}, s[{S_C}:{S_C+3}], s{sT+2} offen offset:{(h-hb)*1352}")
    srd(S_O,P_WOUT,156)
    e(f"buffer_load_dword v13, v12, s[{S_O}:{S_O+3}], 0 offen offset:52")
    e(f"s_lshl_b32 s{sT+2}, s{sI}, 1")
    e(f"buffer_load_ushort v14, off, s[{S_O}:{S_O+3}], s{sT+2}")
    e("v_lshlrev_b32 v8, 6, v2")
    e("v_mov_b32 v9, 0")
    e("s_mov_b32 exec_lo, 0x7ffffff")
    e("s_mov_b32 exec_hi, 0")
    e("ds_write_b32 v8, v9 offset:52")
    e("ds_write_b32 v8, v9 offset:56")
    e("ds_write_b32 v8, v9 offset:60")
    e("s_mov_b64 exec, -1")
    e("v_and_b32 v8, 31, v2")
    e("v_lshlrev_b32 v93, 6, v8")
    e("v_lshl_add_u32 v93, v15, 4, v93")
    e(f"s_mul_i32 s{sT+1}, s{sWAVE}, 5120")
    e(f"s_add_u32 s{sT+1}, s{sT+1}, 4096")
    e("v_mul_u32_u24 v92, 144, v8")
    e("v_lshl_add_u32 v92, v15, 4, v92")
    e(f"v_add_u32 v92, s{sT+1}, v92")
    slots()
    e("v_cmp_lt_u32 vcc, 43, v2")
    e("v_subrev_u32 v10, 176, v4")
    e("v_mov_b32 v11, 26")
    for ee in range(8):
        e(f"v_add_u32 v8, {ee}, v10")
        e("v_lshl_add_u32 v8, v8, 1, v5")
        e(f"v_min_u32 v8, 31, v8")
        e(f"v_cndmask_b32 v8, v{QQ+ee}, v8, vcc")
        e(f"v_cndmask_b32 v9, v{PP+ee}, v11, vcc")
        e(f"v_mul_u32_u24 v9, 144, v9")
        e(f"v_lshl_add_u32 v9, v8, 2, v9")
        e(f"v_add_u32 v{RA+ee}, s{sT+1}, v9")
    e("v_lshrrev_b32 v8, 1, v2")
    e("v_lshl_add_u32 v6, v8, 1, 1")
    e("v_add_u32 v8, 22, v8")
    e("v_cndmask_b32 v6, v6, v8, vcc")
    st_addr(48)
    m3(18)
    e("s_mov_b32 exec_lo, 0x1fff")
    e("s_mov_b32 exec_hi, 0")
    e("s_waitcnt vmcnt(0)")
    e(f"ds_write_b32 v12, v13 offset:{26*64}")
    e("s_mov_b64 exec, -1")
    for r in range(8): e(f"v_lshl_or_b32 v{Pq+r}, v{PR+2*r+1}, 16, v{PR+2*r}")
    e("s_waitcnt lgkmcnt(0)")
    e("s_barrier")
    Qq=16; D=24
    e(f"ds_read_b128 v[{Qq}:{Qq+3}], v93")
    e(f"ds_read_b128 v[{Qq+4}:{Qq+7}], v93 offset:32")
    e("s_waitcnt lgkmcnt(0)")
    e(f"v_mfma_f32_32x32x16_bf16 v[{D}:{D+15}], v[{Pq}:{Pq+3}], v[{Qq}:{Qq+3}], 0")
    e(f"v_mfma_f32_32x32x16_bf16 v[{D}:{D+15}], v[{Pq+4}:{Pq+7}], v[{Qq+4}:{Qq+7}], v[{D}:{D+15}]")
    e(f"v_mfma_f32_32x32x16_bf16 v[{D}:{D+15}], v[{Qq}:{Qq+3}], v[{Pq}:{Pq+3}], v[{D}:{D+15}]")
    e(f"v_mfma_f32_32x32x16_bf16 v[{D}:{D+15}], v[{Qq+4}:{Qq+7}], v[{Pq+4}:{Pq+7}], v[{D}:{D+15}]")
    e("s_nop 11")
    for m in range(4):
        e(f"ds_write_b128 v92, v[{D+4*m}:{D+4*m+3}] offset:{m*32}")
    e("s_waitcnt lgkmcnt(0)")
    for ee in range(8): e(f"ds_read_b32 v{VV+ee}, v{RA+ee}")
    e("v_lshlrev_b32 v14, 16, v14")
    e(f"v_cmp_eq_u32 s[{sT}:{sT+1}], 46, v2")
    e(f"v_cmp_eq_u32 s[{sT+2}:{sT+3}], 47, v2")
    e("v_cmp_lt_u32 vcc, 45, v2")
    e("s_waitcnt lgkmcnt(0)")
    e(f"v_cndmask_b32 v{VV+5}, v{VV+5}, v14, s[{sT}:{sT+1}]")
    e(f"v_cndmask_b32 v{VV+5}, v{VV+5}, 0, s[{sT+2}:{sT+3}]")
    e(f"v_cndmask_b32 v{VV+6}, v{VV+6}, 0, vcc")
    e(f"v_cndmask_b32 v{VV+7}, v{VV+7}, 0, vcc")
    e("s_branch L_aux_pack")
    lab("L_aux_w1")
    GA=60; GB=68
    e(f"s_mul_i32 s{sT+3}, s{sI}, 1352")
    e(f"s_lshl_b32 s{sT+6}, s{sWAVE}, 11")
    e(f"s_add_u32 s{sT+6}, s{sT+6}, {32768-4*2048}")
    e(f"s_mov_b32 m0, s{sT+6}")
    e("v_lshlrev_b32 v12, 4, v2")
    e(f"buffer_load_dwordx4 v12, s[{S_C}:{S_C+3}], s{sT+3} offen lds")
    e(f"buffer_load_dwordx4 v12, s[{S_C}:{S_C+3}], s{sT+3} offen offset:1024 lds")
    slots()
    for ee in range(8):
        e(f"v_mul_u32_u24 v8, 26, v{PP+ee}")
        e(f"v_add_lshl_u32 v8, v8, v{QQ+ee}, 1")
        e(f"v_add_u32 v{GA+ee}, s{sT+6}, v8")
        e(f"v_mul_u32_u24 v9, 26, v{QQ+ee}")
        e(f"v_add_lshl_u32 v9, v9, v{PP+ee}, 1")
        e(f"v_add_u32 v{GB+ee}, s{sT+6}, v9")
    e("v_and_b32 v6, 62, v2")
    st_addr(44)
    m3(2)
    e("s_waitcnt lgkmcnt(0)")
    e("s_barrier")
    e("s_waitcnt vmcnt(0)")
    for ee in range(8):
        e(f"ds_read_u16 v{GA+ee}, v{GA+ee}")
        e(f"ds_read_u16 v{GB+ee}, v{GB+ee}")
    e("s_waitcnt lgkmcnt(0)")
    for ee in range(8):
        e(f"v_lshlrev_b32 v{GA+ee}, 16, v{GA+ee}")
        e(f"v_lshlrev_b32 v{GB+ee}, 16, v{GB+ee}")
        e(f"v_add_f32 v{VV+ee}, v{GA+ee}, v{GB+ee}")
    lab("L_aux_pack")
    srd(S_WS,P_WS,WS_SIZE); srd(S_A,P_DBG,256)
    e("v_cmp_eq_u32 vcc, 43, v2")
    for ee in range(8): e(f"v_mul_f32 v{VV+ee}, v{VV+ee}, v{94 if ee<5 else 95}")
    e(f"v_cndmask_b32 v{VV+7}, v{VV+7}, 0, vcc")
    for m in range(4): e(f"v_cvt_pk_bf16_f32 v{24+m}, v{VV+2*m}, v{VV+2*m+1}")
    e("ds_write_b128 v6, v[24:27]")
    e("v_lshlrev_b32 v8, 4, v0")
    e(f"s_movk_i32 s{sT+1}, 368")
    e(f"v_cmp_gt_u32 vcc, s{sT+1}, v0")
    e(f"s_lshr_b32 s{sT}, s{sI}, 2")
    e(f"s_mul_i32 s{sT+2}, s{sT}, 5888")
    e("v_cndmask_b32 v9, v7, v8, vcc")
    e("s_waitcnt lgkmcnt(0)")
    e("s_barrier")
    e(f"ds_read_b128 v[24:27], v8 offset:{STG}")
    e("s_waitcnt lgkmcnt(0)")
    e(f"buffer_store_dwordx4 v[24:27], v9, s[{S_WS}:{S_WS+3}], s{sT+2} offen sc0 sc1")
    st(96)
    e(f"s_lshl_b32 s{sT}, s{sT}, 2")
    e("v_mov_b32 v8, 1")
    e("s_waitcnt vmcnt(0)")
    e("s_barrier")
    e(f"s_cmp_lg_u32 s{sWAVE}, 0")
    e("s_cbranch_scc1 L_noflag")
    e("s_mov_b64 exec, 1")
    e(f"buffer_store_dword v8, off, s[{S_A}:{S_A+3}], s{sT} sc0 sc1")
    e("s_mov_b64 exec, -1")
    lab("L_noflag")
    if ST:
        st(98); e("s_waitcnt vmcnt(0)"); st(100,True)
        dump([10,92,94,96,98,100],1,2)
    e("s_branch L_aux_done")
    sec("pref")
    lab("L_prefetch")
    e("s_waitcnt lgkmcnt(0)")
    if opt.pf:
        srd(S_W,P_W,1664*3328)
        e(f"s_cmp_lt_u32 s{sXCD}, 4")
        e(f"s_cselect_b32 s{sT+2}, 27, 26")
        e(f"s_cmp_lt_u32 s{sXCD}, 3")
        e(f"s_cselect_b32 s{sT+2}, 28, s{sT+2}")
        e(f"s_sub_u32 s{sT}, s{sSLOT}, s{sT+2}")
        e(f"s_sub_u32 s{sT+2}, 32, s{sT+2}")
        e(f"s_mul_i32 s{sT+1}, s{sXCD}, 26")
        e(f"s_lshr_b32 s{sT+1}, s{sT+1}, 3")
        e(f"s_lshl_b32 s{sT+1}, s{sT+1}, 7")
        for u in range(4):
            e(f"v_add_u32 v3, {512*u}, v0")
            e(f"v_mul_u32_u24 v3, s{sT+2}, v3")
            e(f"v_add_u32 v3, s{sT}, v3")
            e("v_lshrrev_b32 v4, 2, v3")
            if opt.pskip: e(f"v_add_u32 v4, {opt.pskip}, v4")
            e("v_and_b32 v3, 3, v3")
            e(f"v_mul_u32_u24 v4, 3328, v4")
            e("v_lshl_add_u32 v3, v3, 7, v4")
            e(f"buffer_load_dword v{9+u}, v3, s[{S_W}:{S_W+3}], s{sT+1} offen")
        e(f"s_cmp_lg_u32 s{sSLOT}, 31")
        e("s_cbranch_scc1 L_aux_done")
        srd(S_B,P_W2,3328); srd(S_WS,P_WS,EPOCH+8192)
        e("v_lshlrev_b32 v3, 7, v0")
        e(f"buffer_load_dword v13, v3, s[{S_B}:{S_B+3}], 0 offen")
        e(f"s_mov_b32 s{sT}, {EPOCH}")
        e(f"buffer_load_dword v14, v3, s[{S_WS}:{S_WS+3}], s{sT} offen")
    e("s_branch L_aux_done")
    sec("fold")
    lab("L_aux_done")
    e(f"s_cmp_lt_u32 s{sWAVE}, 4")
    e("s_cbranch_scc1 L_end")
    srd(S_TBL,P_TBL,128000); srd(S_IDX,P_IDX,106496)
    rowidx_load()
    e(f"v_mov_b32 v7, {FLAGS}")
    e("v_mov_b32 v8, 4")
    e("v_mov_b32 v9, 0")
    e(f"ds_write_b32 v7, v8 offset:{F_RED}")
    e(f"ds_write_b32 v7, v8 offset:{F_G}")
    e(f"ds_write_b32 v7, v8 offset:{F_S1}")
    e(f"ds_write_b32 v7, v9 offset:{F_CW}")
    e(f"ds_write_b32 v7, v9 offset:{F_CW2}")
    e("s_waitcnt vmcnt(0)")
    e("v_lshlrev_b32 v29, 7, v29")
    x0_addrs()
    e("s_branch L_help_x0")
    lab("L_end")
    e("s_endpgm")
    sec("tail")
    L.append('.section .rodata,"a"'); L.append(".p2align 6"); L.append(f".amdhsa_kernel {KN}")
    for x in ["next_free_vgpr 256","next_free_sgpr 102","accum_offset 256","group_segment_fixed_size 0","kernarg_size 88",
              "user_sgpr_count 2","user_sgpr_kernarg_segment_ptr 1","system_sgpr_workgroup_id_x 1"]:
        L.append("  .amdhsa_"+x)
    L.append(".end_amdhsa_kernel")
    return "\n".join(sum((SEC.get(k,[]) for k in order+["tail"]),[]))+"\n"

if __name__=="__main__":
    ap=argparse.ArgumentParser()
    ap.add_argument("-o",default="k.s")
    for k,d in dict(lay=1,b2g=1,cst=0,bgate=1,look=2,bstep=3,bstep2=10,inv=0,zmid=22,csc=0,gateC=0,gq=0,rowx=1,wstop=5,wrest=16,bq=3,xlds=1,xgap=0,atid=1,xsl=8,pskip=128,d2late=1,wper=4,its=0,sched=0,nog=0,not_=0,c2=0,noz=0,lateb=1,dly=4,pst=0,enc=0,encrole=0,encwg=0,encwave=0,nocin=0,gcyc=0,psleep=4,now=0,stamps=0,pf=1,cpf=1,prio=1,bound=20000,zsplit=22,zbar=22,nt0=10,tb=4444,wsched=0).items(): ap.add_argument("--"+k,type=int,default=d)
    opt=ap.parse_args()
    for t in range(512): assert (t*5042)>>16==t//13, t
    open(opt.o,"w").write(build(opt))
```

```python
import sys, argparse, math, struct

class Q:
    def __init__(s,cap): s.ops=[]; s.cap=cap; s.done=0
    def issue(s,name): s.ops.append(name)
    def need(s,*names):
        r=99
        for name in names:
            i=len(s.ops)-1-s.ops[::-1].index(name)
            r=min(r,len(s.ops)-1-i)
        r=min(r,s.cap)
        s.done=max(s.done,len(s.ops)-r)
        return r
    def pending(s,*names):
        return any(len(s.ops)-1-s.ops[::-1].index(n)>=s.done for n in names)

WIMG=0; GRAN=65536; EPOCH=0x50000; STAMP=0x100000; WS_SIZE=0x200000
STG=49152; RING=128000; FLAGS=160768; CINW=49152
F_IT9,F_RED,F_G,F_PRE,F_S1,F_CW,F_CW2=0,4,8,12,16,20,24
C1=-2*math.sqrt(2/math.pi)*math.log2(math.e); C2=C1*0.044715
def f2u(x): return struct.unpack('<I',struct.pack('<f',x))[0]
KN="standalone__deep_cross_xdeepfm__recsys_kernel"

sWAVE,sXCD,sSLOT,sCB,sRB=3,4,5,7,8
P_IDX,P_TBL,P_CIN,P_WOUT,P_W,P_B1,P_W2,P_BO=16,18,20,22,24,26,28,30
P_OUT,P_DBG,P_WS=32,34,36
S_IDX,S_TBL,S_W,S_WS,S_A,S_B=40,44,48,52,56,60
sRING,sWR1,sWR2,sTM=64,65,15,14
sT=66

def pair_of(n):
    if n<169: dlt,m=divmod(n,13)
    else: dlt,m=13,n-169
    r=2*m
    return r,(r+dlt)%26

def build(opt):
    SEC={"entry":[]}; order=["entry","dnn0","hpro","pref","fold0","dnn","help","fold"]
    class LL:
        cur="entry"
        def append(s,x): SEC.setdefault(s.cur,[]).append(x)
    L=LL()
    def sec(n): L.cur=n
    cnt=[0]; lastw={}
    def e(x):
        L.append("    "+x)
        cnt[0]+= (int(x.split()[1])+1) if x.startswith("s_nop") else 1
    def hz(key,n):
        d=cnt[0]-lastw[key]
        if d<n: e(f"s_nop {n-d-1}")
    def lab(x): L.append(x+":")
    def cm(x): L.append("    ; "+x)
    E=lambda x:(lambda: e(x))
    ST=opt.stamps
    def srd(d,p,size):
        e(f"s_mov_b32 s{d}, s{p}"); e(f"s_mov_b32 s{d+1}, s{p+1}")
        e(f"s_mov_b32 s{d+2}, {size}"); e(f"s_mov_b32 s{d+3}, 0x20000")
    def st(r,wait=False):
        if ST:
            e(f"s_memrealtime s[{r}:{r+1}]")
            if wait: e("s_waitcnt lgkmcnt(0)")
    def dump(regs,area=0,role=0):
        if opt.enc:
            delay(regs,role); return
        dump_(regs,area)
    dl=[0]
    def delay(regs,role):
        dl[0]+=1; n=dl[0]
        e("s_mov_b64 exec, -1")
        e("s_waitcnt lgkmcnt(0)")
        if opt.enc==99:
            if role!=1: return
            srd(S_A,P_DBG,256)
            e("s_not_b32 s12, s10")
            e("v_mov_b32 v244, s12")
            e(f"v_mov_b32 v245, s{regs[10]}")
            e("v_mov_b32 v246, 1")
            e("s_mov_b64 exec, 1")
            e(f"buffer_atomic_umax v244, off, s[{S_A}:{S_A+3}], 0 offset:240 sc1")
            e(f"buffer_atomic_umax v245, off, s[{S_A}:{S_A+3}], 0 offset:244 sc1")
            e("s_waitcnt vmcnt(0)")
            e(f"buffer_atomic_add v246, off, s[{S_A}:{S_A+3}], 0 offset:248 sc0 sc1")
            e("s_waitcnt vmcnt(0)")
            e("v_readfirstlane_b32 s12, v246")
            e("s_cmp_lg_u32 s12, 1023")
            e(f"s_cbranch_scc1 L_dly{n}_x")
            e(f"buffer_load_dwordx2 v[244:245], off, s[{S_A}:{S_A+3}], 0 offset:240 sc1")
            e("s_waitcnt vmcnt(0)")
            e("v_readfirstlane_b32 s12, v244")
            e("v_readfirstlane_b32 s13, v245")
            e("s_not_b32 s12, s12")
            e("s_sub_u32 s12, s13, s12")
        else:
            if role!=opt.encrole: return
            e(f"s_cmp_lg_u32 s2, {opt.encwg}")
            e(f"s_cbranch_scc1 L_dly{n}_x")
            e(f"s_cmp_lg_u32 s{sWAVE}, {opt.encwave}")
            e(f"s_cbranch_scc1 L_dly{n}_x")
            e(f"s_sub_u32 s12, s{regs[opt.enc]}, s10")
        e("s_mul_i32 s12, s12, 100")
        e("s_memrealtime s[66:67]")
        e("s_waitcnt lgkmcnt(0)")
        e("s_add_u32 s12, s12, s66")
        lab(f"L_dly{n}")
        e("s_sleep 8")
        e("s_memrealtime s[66:67]")
        e("s_waitcnt lgkmcnt(0)")
        e("s_sub_u32 s13, s66, s12")
        e("s_cmp_lt_i32 s13, 0")
        e(f"s_cbranch_scc1 L_dly{n}")
        lab(f"L_dly{n}_x")
        e("s_mov_b64 exec, -1")
    def dump_(regs,area=0):
        e("s_mov_b64 exec, -1")
        e("s_waitcnt lgkmcnt(0)")
        e("s_lshl_b32 s12, s2, 3")
        e(f"s_add_u32 s12, s12, s{sWAVE}")
        e("s_lshl_b32 s12, s12, 6")
        e(f"s_add_u32 s12, s12, {STAMP+area*0x40000}")
        regs=list(regs)+[regs[0]]*(12-len(regs))
        for i,r in enumerate(regs): e(f"v_mov_b32 v{244+i}, s{r}")
        e("s_mov_b64 exec, 1")
        for i in range(3):
            e(f"buffer_store_dwordx4 v[{244+4*i}:{247+4*i}], off, s[{S_WS}:{S_WS+3}], s12 offset:{16*i}")
        e("s_mov_b64 exec, -1")
    def lds_spin(name,vaddr,vtmp,off,target,sleep=0):
        e(f"s_mov_b32 s{sT+4}, {opt.bound*8}")
        lab(name)
        e(f"ds_read_b32 v{vtmp}, v{vaddr} offset:{off}")
        e("s_waitcnt lgkmcnt(0)")
        e(f"v_readfirstlane_b32 s{sT+5}, v{vtmp}")
        e(f"s_cmp_ge_u32 s{sT+5}, {target}")
        e(f"s_cbranch_scc1 {name}_x")
        if sleep: e(f"s_sleep {sleep}")
        e(f"s_sub_u32 s{sT+4}, s{sT+4}, 1")
        e(f"s_cbranch_scc0 {name}")
        lab(name+"_x")

    IV=16; IA=24
    def rec_addrs():
        e(f"s_lshl_b32 s{sT+5}, s{sT}, 7")
        e(f"s_add_u32 s{sT+5}, s{sT+5}, {RING+4096}")
        e(f"v_lshl_add_u32 v7, v7, 3, s{sT+5}")
        e("v_mul_u32_u24 v9, 7, v8")
        e("v_and_b32 v8, 1, v8")
        for par in range(2):
            d=IA+2*par
            if par:
                e("v_xor_b32 v8, 1, v8"); e("v_add_u32 v9, 1, v9")
            e("v_lshrrev_b32 v10, 1, v9")
            e(f"v_lshl_add_u32 v{d}, v10, 8, v7")
            e(f"v_lshl_add_u32 v{d}, v8, 14, v{d}")
            e("v_lshlrev_b32 v10, 1, v8")
            e(f"v_xor_b32 v10, s{sT+2}, v10")
            e(f"v_lshl_add_u32 v{d}, v10, 1, v{d}")
            e(f"v_xor_b32 v{d+1}, 2, v{d}")
            e(f"v_add_u32 v{d+1}, 8192, v{d+1}")
    sROW=6; sE=38
    def rowidx_load():
        e(f"s_sub_u32 s{sT+6}, s{sWAVE}, 4")
        if opt.rowx:
            e(f"s_lshl2_add_u32 s{sROW}, s{sSLOT}, s{sT+6}")
            e(f"s_lshl_b32 s{sT+6}, s{sXCD}, 7")
            e(f"s_add_u32 s{sROW}, s{sROW}, s{sT+6}")
        else: e(f"s_lshl2_add_u32 s{sROW}, s2, s{sT+6}")
        e(f"s_mul_i32 s{sT+6}, s{sROW}, 104")
        e("v_lshlrev_b32 v30, 2, v2")
        e(f"buffer_load_dword v29, v30, s[{S_IDX}:{S_IDX+3}], s{sT+6} offen")
    L.append("; @launch grid=(256,1,1) block=(512,1,1) lds=163840")
    L.append('.amdgcn_target "amdgcn-amd-amdhsa--gfx950"')
    L.append(".text"); L.append(f".globl {KN}"); L.append(".p2align 8"); L.append(f".type {KN},@function")
    lab(KN)
    e("s_load_dwordx16 s[16:31], s[0:1], 0")
    e("s_load_dwordx4 s[32:35], s[0:1], 64")
    e("s_load_dwordx2 s[36:37], s[0:1], 80")
    st(10)
    e("s_cmp_ge_u32 s2, 256")
    e("s_cbranch_scc1 L_end")
    e("v_lshrrev_b32 v1, 6, v0")
    e("v_and_b32 v2, 63, v0")
    e(f"v_readfirstlane_b32 s{sWAVE}, v1")
    e(f"s_and_b32 s{sXCD}, s2, 7")
    e(f"s_lshr_b32 s{sSLOT}, s2, 3")
    e(f"s_cmp_ge_u32 s{sSLOT}, 26")
    e("s_cbranch_scc1 L_aux0")
    sec("pref"); lab("L_aux0")
    e(f"s_cmp_gt_u32 s{sSLOT}, 26")
    e("s_cbranch_scc1 L_prefetch")
    if opt.cpf:
        e(f"s_getpc_b64 s[{S_IDX}:{S_IDX+1}]")
        lab("L_pc")
        e(f"s_sub_u32 s{S_IDX}, s{S_IDX}, L_pc-{KN}")
        e(f"s_subb_u32 s{S_IDX+1}, s{S_IDX+1}, 0")
        e(f"s_mov_b32 s{S_IDX+2}, L_end-{KN}")
        e(f"s_mov_b32 s{S_IDX+3}, 0x20000")
        e("v_lshlrev_b32 v3, 7, v0")
        e(f"buffer_load_dword v255, v3, s[{S_IDX}:{S_IDX+3}], 0 offen")
    sec("entry")
    e(f"s_mul_i32 s6, s{sXCD}, 26")
    e(f"s_add_u32 s6, s6, s{sSLOT}")
    e(f"s_and_b32 s{sRB}, s6, 7")
    e(f"s_and_b32 s{sT}, s{sWAVE}, 1")
    e(f"s_lshr_b32 s{sT+2}, s{sWAVE}, 1")
    e(f"s_lshl2_add_u32 s{sT+4}, s{sRB}, s{sT+2}")
    e(f"s_mul_i32 s{sT+4}, s{sT+4}, 3328")
    e(f"s_lshl_b32 s{sT+5}, s{sT}, 11")
    e(f"s_add_u32 s{sT+4}, s{sT+4}, s{sT+5}")
    e(f"s_lshl_b32 s{sT+3}, s{sT+2}, 13")
    e(f"s_add_u32 s{sT+3}, s{sT+3}, s{sT+5}")
    e(f"s_add_u32 m0, s{sT+3}, {RING+4096}")
    e("v_lshlrev_b32 v6, 4, v2")
    e("v_lshrrev_b32 v3, 3, v2")
    e("v_lshrrev_b32 v4, 4, v2")
    e("v_and_b32 v10, 7, v2")
    e(f"s_lshl_b32 s{sT+1}, s{sT}, 2")
    e("v_xor_b32 v5, v10, v4")
    e(f"v_xor_b32 v5, s{sT+1}, v5")
    e("v_lshlrev_b32 v5, 4, v5")
    e("v_lshl_add_u32 v5, v3, 7, v5")
    e(f"s_lshl1_add_u32 s{sT+3}, s{sSLOT}, s{sT+2}")
    e(f"s_lshl1_add_u32 s{sTM}, s{sT+3}, s{sT}")
    e(f"s_lshl_b32 s{sTM}, s{sTM}, 10")
    e(f"s_sub_u32 s{sWR2}, {63*2048}, s{sT+5}")
    e(f"s_lshr_b32 s{sT+5}, s{sT+5}, 1")
    e(f"s_add_u32 s{sWR1}, s{sWR2}, s{sT+5}")
    e(f"s_mov_b32 s{S_IDX+2}, 106496"); e(f"s_mov_b32 s{S_IDX+3}, 0x20000")
    e(f"s_mov_b32 s{S_TBL+2}, 128000"); e(f"s_mov_b32 s{S_TBL+3}, 0x20000")
    e(f"s_mov_b32 s{sT+3}, {opt.n0-1}")
    e("s_waitcnt lgkmcnt(0)")
    if opt.pst: st(84)
    e(f"s_mov_b64 s[{S_IDX}:{S_IDX+1}], s[{P_IDX}:{P_IDX+1}]")
    e(f"s_mov_b64 s[{S_TBL}:{S_TBL+1}], s[{P_TBL}:{P_TBL+1}]")
    e(f"buffer_load_dwordx4 v6, s[{S_IDX}:{S_IDX+3}], s{sT+4} offen lds")
    if opt.trim:
        e(f"s_cmp_eq_u32 s{sT}, 0")
        e("s_cselect_b64 exec, -1, 0xffff")
    e(f"buffer_load_dwordx4 v6, s[{S_IDX}:{S_IDX+3}], s{sT+4} offen offset:1024 lds")
    if opt.trim: e("s_mov_b64 exec, -1")
    nl=[0]
    def tloop(n=None,vm=None):
        nl[0]+=1; name=f"L_tl{nl[0]}"
        if n is not None:
            if n==0: return
            e(f"s_mov_b32 s{sT+3}, {n-1}")
        lab(name)
        e(f"s_mov_b32 m0, s{sTM}")
        e(f"s_add_u32 s{sTM}, s{sTM}, 8192")
        e(f"buffer_load_dwordx4 v5, s[{S_TBL}:{S_TBL+3}], m0 offen lds")
        e(f"s_cmp_ge_u32 s{sTM}, s{sWR1}")
        e(f"s_cselect_b32 s{sT+5}, s{sWR2}, 0")
        e(f"s_sub_u32 s{sTM}, s{sTM}, s{sT+5}")
        e(f"s_sub_u32 s{sT+3}, s{sT+3}, 1")
        e(f"s_cbranch_scc0 {name}")
        if vm is not None:
            for t in range(n): vm.issue("tbl")
    tloop()
    e(f"s_cmp_ge_u32 s{sWAVE}, 4")
    e("s_cbranch_scc1 L_help_pro")
    sec("dnn0")
    tbl=tloop

    vW,vT0,vT1=1,3,4
    AD=8; AF=16; F0=48; REC=80; ACC=128
    acc=lambda lt,ct: ACC+(lt*2+ct)*16
    Fr=lambda j,ks,ct: F0+(j&1)*16+(ks*2+ct)*4
    vm=Q(63); lg=Q(15)
    cm("---- DNN wave prologue ----")
    for x in ["idx0","idx3"]+["tbl"]*opt.n0: vm.issue(x)
    e(f"s_lshr_b32 s{sCB}, s6, 3")
    e(f"s_lshl_b32 s{sRING}, s{sWAVE}, 13")
    e(f"s_add_u32 s{sRING}, s{sRING}, {RING}")
    e(f"s_lshl_b32 s{sT+7}, s{sWAVE}, 5")
    e(f"v_add_u32 v9, s{sT+7}, v3")
    e("v_mul_u32_u24 v9, 3328, v9")
    e("v_lshlrev_b32 v11, 2, v4")
    e("v_and_b32 v11, 4, v11")
    e("v_xor_b32 v11, v11, v10")
    e("v_lshl_add_u32 v1, v11, 4, v9")
    e(f"s_lshl_b32 s{sT+7}, s{sCB}, 7")
    e(f"v_add_u32 v1, s{sT+7}, v1")
    srd(S_W,P_W,1664*3328)
    for pc in range(4):
        e(f"s_add_u32 m0, s{sRING}, {pc*1024}")
        e(f"s_mov_b32 s12, {8*pc*3328}")
        e(f"buffer_load_dwordx4 v1, s[{S_W}:{S_W+3}], s12 offen lds"); vm.issue(f"w0_{pc}")
    def bias_loads(ii=range(4)):
        for i in ii:
            e(f"buffer_load_dwordx4 v[{106+4*i}:{109+4*i}], v{VB}, s[{S_A}:{S_A+3}], 0 offen offset:{(i>>1)*64+(i&1)*16}"); vm.issue(f"bias{i}")
    VB=6
    TB=[opt.n0]+[int(c,16) for c in str(opt.tb)]
    e("s_branch L_dnn_b")
    sec("dnn"); lab("L_dnn_b")
    e("v_lshrrev_b32 v12, 5, v2")
    e(f"v_lshl_add_u32 v6, v12, 5, s{sT+7}")
    e(f"v_mov_b32 v7, {FLAGS}")
    srd(S_A,P_B1,3328)
    if opt.pst: st(86)
    e("v_and_b32 v13, 31, v2")
    e("v_mul_u32_u24 v13, 104, v13")
    e(f"s_lshl2_add_u32 s{sT+5}, s{sT+2}, {RING+4096}")
    e(f"v_add_u32 v13, s{sT+5}, v13")
    e("v_lshlrev_b32 v9, 1, v12")
    e(f"v_xor_b32 v9, s{sWAVE}, v9")
    e("v_lshl_add_u32 v24, v9, 13, v13")
    e("v_xor_b32 v9, 1, v9")
    e("v_lshl_add_u32 v25, v9, 13, v13")
    e("v_bfe_u32 v9, v2, 2, 2")
    e("v_lshlrev_b32 v3, 7, v9")
    e("v_lshl_add_u32 v3, v12, 10, v3")
    e("v_lshrrev_b32 v9, 1, v9")
    e("v_lshl_add_u32 v3, v9, 6, v3")
    e("v_and_b32 v9, 1, v2")
    e("v_lshl_add_u32 v3, v9, 5, v3")
    e("v_bfe_u32 v9, v2, 1, 1")
    e("v_lshl_add_u32 v3, v9, 3, v3")
    e("v_and_b32 v9, 1, v4")
    e("v_lshl_add_u32 v3, v9, 4, v3")
    e(f"v_add_u32 v3, s{sRING}, v3")
    e("v_xor_b32 v4, 64, v3")
    e(f"v_add_u32 v14, s{sT+1}, v12")
    e("v_lshl_or_b32 v14, v14, 16, v14")
    e(f"s_mov_b32 s{sT+6}, 0x00070007")
    e(f"s_waitcnt vmcnt({vm.need('idx3')})")
    if opt.pst: st(88)
    def lds_inc(va,off):
        e("v_mov_b32 v0, 1")
        e("s_mov_b64 exec, 1")
        e(f"ds_add_u32 v{va}, v0 offset:{off}")
        e("s_mov_b64 exec, -1")
    e("s_barrier")
    if opt.pst: st(90)
    sWO=12
    def dma(j,pcs):
        for pc in pcs:
            if opt.now and j>=3:
                vm.ops.insert(0,f"w{j}_{pc}"); continue
            e(f"s_add_u32 m0, s{sRING}, {((j&1)*4+pc)*1024}")
            e(f"s_mov_b32 s{sWO}, {(128*j+8*pc)*3328}")
            e(f"buffer_load_dwordx4 v{vW}, s[{S_W}:{S_W+3}], s{sWO} offen lds"); vm.issue(f"w{j}_{pc}")
    BI=106
    RW=lambda t,j: 160+t*14+j
    RECX=104
    for j in range(0,13,2):
        for t in range(2):
            e(f"ds_read2_b32 v[{RW(t,j)}:{RW(t,j)+1}], v{24+t} offset0:{2*j} offset1:{2*j+2}")
    tbl(TB[1],vm)
    srd(S_WS,P_WS,WS_SIZE)
    srd(S_B,P_W2,3328)
    e("s_waitcnt lgkmcnt(0)")
    e("s_barrier")
    st(76)
    tbl(TB[2],vm)
    for j in range(13):
        if j==6: tbl(TB[3],vm)
        d=REC+2*j
        e(f"v_lshl_or_b32 v{d}, v{RW(1,j)}, 16, v{RW(0,j)}")
        e(f"v_lshrrev_b32 v13, 1, v{d}")
        e(f"v_and_b32 v13, s{sT+6}, v13")
        e(f"v_lshl_or_b32 v{d}, v{d}, 3, v13")
        e(f"v_mov_b32 v{d+1}, v{d}")
        if j:
            e(f"v_permlane32_swap_b32 v{d-2}, v{d-1}")
            e(f"v_xor_b32 v{d-2}, v14, v{d-2}"); e(f"v_xor_b32 v{d-1}, v14, v{d-1}")
    e("s_nop 1")
    e(f"v_permlane32_swap_b32 v{REC+24}, v{REC+25}")
    e(f"v_xor_b32 v{REC+24}, v14, v{REC+24}"); e(f"v_xor_b32 v{REC+25}, v14, v{REC+25}")
    afr=lambda lt,ks: AF+8*lt+4*ks
    XF={0:80,1:88,2:afr(1,0),3:afr(2,0)}
    FX={0:[F0,F0+4,F0+8,F0+12],1:[8,12,40,44],2:[F0+16,F0+20,F0+24,F0+28],3:[F0,F0+4,F0+8,F0+12]}
    def adr(lt,j):
        e(f"v_lshlrev_b32_sdwa v{AD+2*lt}, 4, v{REC+2*j+(lt>>1)} dst_sel:DWORD dst_unused:UNUSED_PAD src0_sel:DWORD src1_sel:WORD_{lt&1}")
        e(f"v_xor_b32 v{AD+2*lt+1}, 32, v{AD+2*lt}")
    def Rop(lt,j):
        for ks in range(2):
            e(f"ds_read_b128 v[{afr(lt,ks)}:{afr(lt,ks)+3}], v{AD+2*lt+ks}"); lg.issue(f"R{lt}_{ks}_{j}")
    def adrX(c,a):
        e(f"v_lshlrev_b32_sdwa v{a}, 4, v{RECX} dst_sel:DWORD dst_unused:UNUSED_PAD src0_sel:DWORD src1_sel:WORD_{c>>1}")
        if c&1: e(f"v_xor_b32 v{a}, 64, v{a}")
        e(f"v_xor_b32 v{a+1}, 32, v{a}")
    def RX(c,a):
        for ks in range(2):
            e(f"ds_read_b128 v[{XF[c]+4*ks}:{XF[c]+4*ks+3}], v{a+ks}"); lg.issue(f"X{c}_{ks}")
    def Top(j,ks):
        for ct in range(2):
            for h4 in range(2):
                d=Fr(j,ks,ct)+2*h4
                e(f"ds_read_b64_tr_b16 v[{d}:{d+1}], v{vT0+ct} offset:{((j&1)*4+ks*2)*1024+h4*512}"); lg.issue(f"T{j}_{ks}_{ct}{h4}")
    def TX(c):
        for ks in range(2):
            for ct in range(2):
                for h4 in range(2):
                    d=FX[c][ks*2+ct]+2*h4
                    e(f"ds_read_b64_tr_b16 v[{d}:{d+1}], v{vT0+ct} offset:{c*8192+ks*2048+h4*512}"); lg.issue(f"TX{c}")
    for lt in range(4): adr(lt,0)
    if ST: e("s_waitcnt lgkmcnt(0)")
    e(f"s_waitcnt vmcnt({vm.need('w0_3')})")
    Top(0,0); Top(0,1)
    if not opt.d1late: dma(1,range(4))
    e("s_waitcnt lgkmcnt(0)")
    if opt.d2late!=1: dma(2,range(4))
    if opt.pst: st(92)
    e(f"s_waitcnt vmcnt({vm.need('tbl')})")
    st(78)
    e("s_barrier")
    st(80,True)
    if ST: e("s_memtime s[96:97]"); e("s_waitcnt lgkmcnt(0)")
    if opt.prio: e(f"s_setprio {opt.prio}")
    Rop(1,0)
    if not opt.rp: Rop(2,0); Rop(3,0); Rop(0,0)
    if opt.d1late: dma(1,range(4))
    def group(lt,fa,xa,first,fills):
        for i,(ks,ct) in enumerate([(0,0),(0,1),(1,0),(1,1)]):
            c=f"v[{acc(lt,ct)}:{acc(lt,ct)+15}]"
            src="0" if (first and ks==0) else c
            e(f"v_mfma_f32_32x32x16_bf16 {c}, v[{fa[ks*2+ct]}:{fa[ks*2+ct]+3}], v[{xa+4*ks}:{xa+4*ks+3}], {src}")
            lastw[(lt,ct)]=cnt[0]
            for f in fills[i]: f()
    LT=[1,2,3,0]
    W2P=106; EV=122; VR=124; WA=125; RA1,RA2=5,6; sM=[0,sT+7,sT+8,13]
    def addrs():
        e(f"s_xor_b32 s{sT}, s{sWAVE}, 1")
        e(f"s_lshl_b32 s{sT}, s{sT}, 12")
        e(f"v_lshlrev_b32 v{RA1}, 4, v2")
        e(f"v_add_u32 v{WA}, s{sT}, v{RA1}")
        e(f"v_xor_b32 v{WA+1}, {3<<12}, v{WA}")
    def addrs2():
        e(f"v_xor_b32 v{WA+2}, {2<<12}, v{WA}")
        e(f"s_lshl_b32 s{sT}, s{sWAVE}, 12")
        e(f"v_add_u32 v{RA1}, s{sT}, v{RA1}")
    def addrs3(): pass
    SEL=80; TA=92
    selops=[E("v_and_b32 v0, 31, v2"),E(f"v_lshrrev_b32 v{TA}, 5, v2"),E(f"v_lshlrev_b32 v{TA}, 2, v{TA}"),E(f"v_sub_u32 v0, v0, v{TA}"),
            E(f"v_lshrrev_b32 v{TA}, 1, v0"),E(f"v_and_b32 v{TA}, 12, v{TA}"),E(f"v_and_or_b32 v{TA}, v0, 3, v{TA}"),
            E("v_and_b32 v0, 0xffffffe4, v0"),E("v_cmp_eq_u32 vcc, 0, v0"),E(f"v_lshlrev_b32 v0, 4, v{TA}"),E("v_and_b32 v0, 16, v0"),
            E(f"v_lshlrev_b32 v0, v0, s{sM[1]}"),E("v_cndmask_b32 v0, 0, v0, vcc"),E(f"v_lshrrev_b32 v{TA}, 1, v{TA}")]
    selops.insert(0,E(f"s_movk_i32 s{sM[1]}, 0x3f80"))
    for ms in ((0,1,2),(3,4,5),(6,7)):
        def f(ms=ms):
            for k,m in enumerate(ms): e(f"v_cmp_eq_u32 s[{sT+2*k}:{sT+2*k+1}], {m}, v{TA}")
            if len(ms)<3: e("s_nop 0")
            for k,m in enumerate(ms): e(f"v_cndmask_b32 v{SEL+m}, 0, v0, s[{sT+2*k}:{sT+2*k+1}]")
        selops.append(f)
    def cv(lt,ct):
        a=acc(lt,ct)
        return [(lambda m=m: (hz((lt,ct),12),e(f"v_cvt_pk_bf16_f32 v{a+m}, v{a+2*m}, v{a+2*m+1}"))) for m in range(8)]
    def late1():
        e(f"s_lshl_b32 s{sT}, s{sCB}, 7")
        e(f"v_lshrrev_b32 v{VR}, 5, v2")
        e(f"v_lshl_add_u32 v{VR}, v{VR}, 5, s{sT}")
    def late2(i):
        e(f"buffer_load_dwordx4 v[{W2P+4*i}:{W2P+4*i+3}], v{VR}, s[{S_B}:{S_B+3}], 0 offen offset:{(i>>1)*64+(i&1)*16}"); vm.issue(f"w2_{i}")
    def late3():
        e(f"v_and_b32 v{VR}, 31, v2")
        e(f"s_lshl_b32 s{sT}, s{sRB}, 7")
        e(f"s_lshl_b32 s{sT+1}, s{sWAVE}, 5")
        e(f"s_add_u32 s{sT}, s{sT}, s{sT+1}")
        e(f"v_add_lshl_u32 v{VR}, v{VR}, s{sT}, 3")
    def late4():
        e(f"s_mov_b32 s{sT+2}, {EPOCH}")
        e(f"buffer_load_dwordx2 v[{EV}:{EV+1}], v{VR}, s[{S_WS}:{S_WS+3}], s{sT+2} offen"); vm.issue("ev")
    def badd(ct,t):
        src=BI+ct*8+(t>>1)
        if t&1: e(f"v_and_b32 v0, 0xffff0000, v{src}")
        else:   e(f"v_lshlrev_b32 v0, 16, v{src}")
        hz((0,ct),12)
        e(f"v_add_f32 v{acc(0,ct)+t}, v{acc(0,ct)+t}, v0")
    def wv(n): return lambda n=n: (e(f"s_waitcnt vmcnt({vm.need(n)})") if vm.pending(n) else None)
    def wl(n): return lambda n=n: (e(f"s_waitcnt lgkmcnt({lg.need(n)})") if lg.pending(n) else None)
    ITS={1:76,2:78,3:80,5:82,7:84,9:86,11:88,12:90}
    def inc(off,nm):
        def f():
            e("s_mov_b64 exec, 1")
            e(f"ds_add_u32 v7, v{ONE} offset:{off}"); lg.issue(nm)
            e("s_mov_b64 exec, -1")
        return f
    ONE=88; vC1=89; S0=90; S1=91; TA,TB_=92,93
    def w1(lt,ct,h): return lambda: (e(f"ds_write_b128 v{WA+lt-1}, v[{acc(lt,ct)+4*h}:{acc(lt,ct)+4*h+3}] offset:{(lt-1)*16384+(ct*2+h)*1024}"),lg.issue("W"))
    W=lambda lt,ct: [w1(lt,ct,0),w1(lt,ct,1)]
    LO=list(range(92,104))+[1,6,3,4]
    W2F=[LO[t>>1] if t%2==0 else W2P+(t>>1) for t in range(32)]
    unp=[]
    for k in range(16):
        unp.append(E(f"v_lshlrev_b32 v{LO[k]}, 16, v{W2P+k}")); unp.append(E(f"v_and_b32 v{W2P+k}, 0xffff0000, v{W2P+k}"))
    def bar2():
        e("s_waitcnt lgkmcnt(0)"); lg.done=len(lg.ops)
        if opt.its: e("s_memtime s[92:93]")
        if not opt.pst: st(82)
        e("s_barrier")
        if not opt.pst: st(84)
    for j in range(13):
        cm(f"---- iteration {j} ----")
        if opt.its==1 and j in ITS: e(f"s_memtime s[{ITS[j]}:{ITS[j]+1}]")
        if opt.its and j==12: opt.pst=1
        for g,lt in enumerate(LT):
            needs=[f"R{lt}_1_{j}"]+([f"T{j}_1_11"] if g==0 else [])
            if lg.pending(*needs): e(f"s_waitcnt lgkmcnt({lg.need(*needs)})")
            if opt.its==2 and j<2: e(f"s_memtime s[{76+2*(4*j+g)}:{77+2*(4*j+g)}]")
            fills=[[],[],[],[]]
            if j==0 and g==0 and opt.rp:
                fills[0].append(lambda: Rop(2,0)); fills[1].append(lambda: Rop(3,0)); fills[2].append(lambda: Rop(0,0))
            if j==0 and opt.d2late:
                if g<2 and opt.d2late==1:
                    fills[0].append(lambda g=g: dma(2,[2*g])); fills[2].append(lambda g=g: dma(2,[2*g+1]))
                if g>=2: fills[0]+= [wv(f'w1_{2*(g-2)+1}'),lambda g=g: Top(1,g-2)]
            elif j<12:
                if j==2: fills[1 if g<2 else 2].append(lambda g=g: bias_loads([g]))
                if j==1 and g<2 and opt.d2late:
                    fills[1].append(lambda g=g: dma(3,[2*g])); fills[2].append(lambda g=g: dma(3,[2*g+1]))
                if g<2: fills[0]+= [wv(f'w{j+1}_{2*g+1}'),lambda j=j,g=g: Top(j+1,g)]
                elif j+3<13:
                    fills[0]+= [wl(f'T{j+1}_{g-2}_11'),lambda j=j,g=g: dma(j+3,[2*(g-2)])]
                    fills[1].append(lambda j=j,g=g: dma(j+3,[2*(g-2)+1]))
            if j<12:
                fills[2].append(lambda j=j,lt=lt: adr(lt,j+1))
                fills[3].append(lambda j=j,lt=lt: Rop(lt,j+1))
            if j in (4,5,6,9) and g in (1,2):
                jj={4:0,5:1,6:2,9:3}[j]; ct=jj>>1; t0=(jj&1)*8+(g-1)*4
                if g==1 and j==4: fills[1].append(wv('bias3'))
                for i,ts in ((1,(0,1)),(2,(2,)),(3 if g==1 else 2,(3,))):
                    fills[i]+= [(lambda t=t0+t,ct=ct: badd(ct,t)) for t in ts]
            if j==7:
                sl={0:[(0,0),(0,5),(5,7),(7,9)],1:[(9,9),(9,15),(15,15),(15,15)],2:[(15,15),(15,15),(15,16),(16,16)],3:[(16,16),(16,16),(16,17),(17,18)]}[g]
                for i in range(4): fills[i]+=selops[sl[i][0]:sl[i][1]]
            if j==8 and g==0: fills[1].append(addrs)
            if j==8 and g==1: fills[1].append(addrs2); fills[2]+= [E(f"v_mov_b32 v{ONE}, 1"),E(f"v_mov_b32 v{vC1}, {f2u(C1)}"),E(f"v_mov_b32 v{S0}, 0"),E(f"v_mov_b32 v{S1}, 0")]
            if j==10 and g==0: fills[1].append(late1); fills[2].append(lambda: late2(0))
            if j==10 and g==1: fills[1].append(lambda: late2(1)); fills[2].append(lambda: late2(2))
            if j==10 and g==2: fills[0]+= [wl('T11_1_11'),inc(F_S1,"s1")]; fills[1].append(lambda: late2(3))
            if j==10 and g==3: fills[0].append(late3); fills[1].append(late4)
            if j==11:
                G={0:[[],[],[],[]],1:[[],[E("s_waitcnt vmcnt(0)")]+unp[:4],unp[4:6],unp[6:8]],2:[unp[8:12],unp[12:16],unp[16:18],unp[18:20]],3:[unp[20:24],unp[24:28],unp[28:30],unp[30:32]]}[g]
                for i in range(4): fills[i]+=G[i]
            if j==12:
                N=lambda k: E(f"s_nop {k}")
                G={0:[[],[],[bar2],[N(3)]],
                   1:[[N(3)]+cv(1,0)[:4]+W(1,0)[:1],cv(1,0)[4:]+W(1,0)[1:],cv(1,1)[:4]+W(1,1)[:1],cv(1,1)[4:]+W(1,1)[1:]],
                   2:[[N(1)]+cv(2,0)[:4]+W(2,0)[:1],cv(2,0)[4:]+W(2,0)[1:],cv(2,1)[:4]+W(2,1)[:1],cv(2,1)[4:]+W(2,1)[1:]],
                   3:[[N(1)]+cv(3,0)[:4]+W(3,0)[:1],cv(3,0)[4:]+W(3,0)[1:],cv(3,1)[:4]+W(3,1)[:1],cv(3,1)[4:]+W(3,1)[1:]+[inc(F_RED,"inc"),E(f"s_mov_b32 s{sT+2}, {f2u(C2)}")]]}[g]
                for i in range(4): fills[i]+=G[i]
            group(lt,[Fr(j,ks,ct) for ks in range(2) for ct in range(2)],afr(lt,0),j==0,fills)
    if not opt.pst: st(86)
    if ST: e("s_memtime s[98:99]")
    lds_spin("L_red",7,0,F_RED,4)
    if not opt.pst: st(88,True)
    if ST and opt.gcyc: e("s_memtime s[96:97]"); e("s_waitcnt lgkmcnt(0)")
    lg=Q(15)
    adds=[]
    for ct in range(2):
        for u in (1,2,3):
            for h in range(2):
                r=acc(u,ct)+4*h
                e(f"ds_read_b128 v[{r}:{r+3}], v{RA1} offset:{(u-1)*16384+(ct*2+h)*1024}"); lg.issue(f"p{ct}{u}{h}")
                def add(ct=ct,u=u,h=h,r=r):
                    if lg.pending(f"p{ct}{u}{h}"): e(f"s_waitcnt lgkmcnt({lg.need(f'p{ct}{u}{h}')})")
                    c=f"v[{acc(0,ct)}:{acc(0,ct)+15}]"
                    e(f"v_mfma_f32_32x32x16_bf16 {c}, v[{SEL+4*h}:{SEL+4*h+3}], v[{r}:{r+3}], {c}"); lastw[(0,ct)]=cnt[0]
                adds.append(add)
    for f in adds[:7]: f()
    adds=adds[7:]
    T=F0
    for q in range(8):
        a=ACC+4*q
        if q==opt.gq and opt.gateC==3: inc(F_G,"g")()
        def A():
            if adds: adds.pop(0)()
        hz((0,q>>2),12)
        for r in range(4): e(f"v_mul_f32 v{T+r}, v{a+r}, v{a+r}")
        for r in range(4): e(f"v_fma_f32 v{T+r}, v{T+r}, s{sT+2}, v{vC1}")
        A()
        for r in range(4): e(f"v_mul_f32 v{T+r}, v{T+r}, v{a+r}")
        for r in range(4): e(f"v_exp_f32 v{T+r}, v{T+r}")
        A()
        for r in range(4): e(f"v_mul_f32 v{a+r}, v{a+r}, v{W2F[4*q+r]}")
        for r in range(4): e(f"v_add_f32 v{T+r}, 1.0, v{T+r}")
        for r in range(4): e(f"v_rcp_f32 v{T+r}, v{T+r}")
        if adds: A()
        else: e("s_nop 0")
        for r in range(4): e(f"v_fmac_f32 v{S0 if r&1==0 else S1}, v{a+r}, v{T+r}")
    e(f"v_add_f32 v{S0}, v{S0}, v{S1}")
    e(f"v_mov_b32 v{S1}, v{S0}")
    e(f"s_movk_i32 s{sT}, 0xff")
    e(f"v_add_u32 v{EV}, 1, v{EV}")
    e(f"v_permlane32_swap_b32 v{S0}, v{S1}")
    e(f"s_lshl_b32 s{sT+1}, s{sCB}, 13")
    e(f"v_add_f32 v{S0}, v{S0}, v{S1}")
    e(f"s_add_u32 s{sT+1}, s{sT+1}, {GRAN}")
    e(f"v_bfi_b32 v{EV+1}, s{sT}, v{EV+1}, v{S0}")
    e(f"s_mov_b32 exec_hi, 0")
    e(f"buffer_store_dwordx2 v[{EV}:{EV+1}], v{VR}, s[{S_WS}:{S_WS+3}], s{sT+1} offen sc0 sc1")
    if ST:
        if opt.gcyc: e("s_memtime s[98:99]")
        if not opt.pst: st(90); e("s_waitcnt vmcnt(0)"); st(92,True)
        e("s_waitcnt lgkmcnt(0)"); e("s_sub_u32 s98, s98, s96")
        if opt.its:
            for r in range(76,94,2):
                e(f"s_sub_u32 s{r}, s{r}, s96"); e(f"s_mul_i32 s{r}, s{r}, 100"); e(f"s_add_u32 s{r}, s{r}, s10")
        dump([10,76,78,80,82,84,86,88,90,92,98])
    e("s_endpgm")

    sec("hpro")
    def late_sloads():
        e(f"s_lshl_b32 s{sT+8}, s{sROW}, 3")
        e(f"s_add_u32 s{sT+8}, s{sT+8}, {EPOCH}")
        e(f"s_load_dwordx2 s[{sE}:{sE+1}], s[{P_WS}:{P_WS+1}], s{sT+8}")
        e(f"s_load_dword s9, s[{P_BO}:{P_BO+1}], 0")
    X=32
    def x0_addrs():
        e("v_and_b32 v3, 31, v2")
        e("v_lshlrev_b32 v4, 2, v3")
        for r in range(26): e(f"v_readlane_b32 s{76+r}, v29, {r}")
        e("s_mov_b32 exec_hi, 0")
        for r in range(26): e(f"v_xor_b32 v{X+r}, s{76+r}, v4")
        e("s_mov_b64 exec, -1")
        e("s_mov_b32 exec_lo, 0")
        for r in range(26): e(f"v_xor_b32 v{X+r}, s{76+(r+1)%26}, v4")
        e("s_mov_b64 exec, -1")
    lab("L_help_pro")
    rowidx_load()
    tloop(opt.nt0-opt.n0)
    e(f"v_mov_b32 v7, {FLAGS}")
    e("v_mov_b32 v8, 0"); e("v_mov_b32 v9, 0")
    e("ds_write2_b64 v7, v[8:9], v[8:9] offset1:1")
    e("ds_write2_b64 v7, v[8:9], v[8:9] offset0:2 offset1:3")
    e(f"s_waitcnt vmcnt({opt.nt0+1})")
    e("s_barrier")
    tloop(opt.nt1)
    e("s_waitcnt lgkmcnt(0)")
    e("s_barrier")
    if opt.trim:
        e(f"s_cmp_eq_u32 s{sWAVE}, 4")
        e(f"s_cselect_b32 s{sT+3}, {16-opt.nt0-opt.nt1-1}, {16-opt.nt0-opt.nt1-2}")
        tloop()
    else: tloop(16-opt.nt0-opt.nt1)
    e("s_branch L_help_b")
    sec("help"); lab("L_help_b")
    e(f"s_waitcnt vmcnt({15-opt.n0})")
    if opt.xlds:
        e("v_lshlrev_b32 v8, 3, v29"); e("v_and_b32 v8, 0x70, v8"); e("v_lshl_or_b32 v29, v29, 7, v8")
    else: e("v_lshlrev_b32 v29, 7, v29")
    x0_addrs()
    e("s_waitcnt vmcnt(0)")
    e("s_barrier")
    if opt.xsl: e(f"s_sleep {opt.xsl}")
    if opt.xlds:
        for r in range(26):
            e(f"ds_read_b32 v{X+r}, v{X+r}")
            if opt.xgap and r%opt.xgap==opt.xgap-1: e("s_sleep 1")
        e("s_branch L_help_main")
    lab("L_help_x0")
    for r in range(26):
        e(f"buffer_load_dword v{X+r}, v{X+r}, s[{S_TBL}:{S_TBL+3}], 0 offen")
    lab("L_help_main")
    srd(S_WS,P_WS,WS_SIZE); srd(S_A,P_DBG,256); srd(S_B,P_OUT,2048)
    Z0=8
    ZE=lambda s: Z0+4*s
    ZO=lambda s: Z0+88+4*s
    LE=lambda k: Z0+176+4*k
    LO=lambda k: Z0+184+4*k
    R=200; MT=252
    e("v_lshrrev_b32 v5, 2, v3")
    e("v_mul_u32_u24 v5, 5888, v5")
    e("v_and_b32 v6, 3, v2")
    e("v_lshl_add_u32 v5, v6, 4, v5")
    e("v_lshrrev_b32 v6, 5, v2")
    e("v_lshl_add_u32 v5, v6, 6, v5")
    e("v_mov_b32 v7, 0x7fff0000")
    e("v_cmp_gt_u32 vcc, 26, v3")
    e("v_lshlrev_b32 v6, 13, v2")
    e(f"s_lshl_b32 s{sT}, s{sROW}, 3")
    e("v_cndmask_b32 v5, v7, v5, vcc")
    e(f"s_add_u32 s{sT}, s{sT}, {GRAN}")
    e(f"v_add_u32 v6, s{sT}, v6")
    e("v_cmp_gt_u32 vcc, 26, v2")
    e("v_lshlrev_b32 v1, 4, v2")
    e(f"v_add_u32 v1, 97280, v1")
    e("v_cndmask_b32 v6, v7, v6, vcc")
    e(f"v_mov_b32 v7, {FLAGS}")
    e("s_waitcnt vmcnt(0) lgkmcnt(0)")
    late_sloads()
    st(76)
    for r in range(26):
        e(f"v_lshlrev_b32 v{R+2*r}, 16, v{X+r}")
        e(f"v_and_b32 v{R+2*r+1}, 0xffff0000, v{X+r}")
    def zstep(s):
        if opt.noz: return
        for m in range(4):
            (a1,a2),(b1,b2)=pair_of(8*s+2*m),pair_of(8*s+2*m+1)
            e(f"v_mul_f32 v{MT}, v{R+2*a1}, v{R+2*a2}")
            e(f"v_mul_f32 v{MT+2}, v{R+2*b1}, v{R+2*b2}")
            e(f"v_mul_f32 v{MT+1}, v{R+2*a1+1}, v{R+2*a2+1}")
            e(f"v_mul_f32 v{MT+3}, v{R+2*b1+1}, v{R+2*b2+1}")
            e(f"v_cvt_pk_bf16_f32 v{ZE(s)+m}, v{MT}, v{MT+2}")
            e(f"v_cvt_pk_bf16_f32 v{ZO(s)+m}, v{MT+1}, v{MT+3}")
    def zlin():
        for k in range(2):
            for m2 in range(4):
                m=k*8+2*m2
                for tl,d in ((0,LE(k)+m2),(1,LO(k)+m2)):
                    if m+1<=12: e(f"v_cvt_pk_bf16_f32 v{d}, v{R+4*m+tl}, v{R+4*(m+1)+tl}")
                    elif m==12: e(f"v_cvt_pk_bf16_f32 v{d}, v{R+4*m+tl}, 1.0")
                    else: e(f"v_mov_b32 v{d}, 0")
    SC=" sc1" if opt.csc else ""
    zlin()
    for s in range(opt.zsplit): zstep(s)
    st(78)
    e(f"s_load_dwordx8 s[92:99], s[{P_DBG}:{P_DBG+1}], 0")
    e("s_waitcnt lgkmcnt(0)")
    for k in range(1,7): e(f"s_and_b32 s92, s92, s{92+k}")
    e("s_cmp_lg_u32 s92, 0")
    e("s_cbranch_scc1 L_polled")
    lds_spin("L_it9",7,4,F_S1,4,sleep=4)
    e(f"v_lshlrev_b32 v0, 2, v2")
    e(f"buffer_load_dword v4, v0, s[{S_A}:{S_A+3}], 0 offen sc1")
    for s in range(opt.zsplit,opt.zmid): zstep(s)
    e(f"s_mov_b32 s{sT+4}, {opt.bound}")
    e(f"s_mov_b32 s{sT+2}, 0x7f")
    e(f"s_mov_b32 s{sT+3}, 0")
    lab("L_poll1")
    e("s_waitcnt vmcnt(0)")
    e("v_cmp_ne_u32 vcc, 0, v4")
    e(f"s_and_b64 vcc, vcc, s[{sT+2}:{sT+3}]")
    e(f"s_cmp_eq_u64 vcc, s[{sT+2}:{sT+3}]")
    e("s_cbranch_scc1 L_polled")
    e(f"s_sleep {opt.psleep}")
    e(f"buffer_load_dword v4, v0, s[{S_A}:{S_A+3}], 0 offen sc1")
    e(f"s_sub_u32 s{sT+4}, s{sT+4}, 1")
    e("s_cbranch_scc0 L_poll1")
    lab("L_polled")
    if opt.inv: e("buffer_inv sc1")
    st(80)
    lds_spin("L_s1",7,0,F_S1,4,sleep=2)
    e(f"s_sub_u32 s{sT}, s{sWAVE}, 4")
    e(f"s_lshl_b32 s{sT+1}, s{sT}, 13")
    e(f"s_add_u32 m0, s{sT+1}, {RING+4096}")
    e(f"s_lshl_b32 s{sT}, s{sT}, 9")
    e(f"s_sub_u32 s{sT}, s{sT}, 256")
    for t in range(4):
        if t<2:
            e(f"s_cmp_eq_u32 s{sWAVE}, 4")
            e(f"s_cselect_b32 s{sT+1}, {(44+t)*128}, s{sT}")
        else: e(f"s_mov_b32 s{sT+1}, s{sT}")
        e(f"buffer_load_dwordx4 v5, s[{S_WS}:{S_WS+3}], s{sT+1} offen sc1 lds")
        if t<3:
            e(f"s_add_u32 m0, m0, 1024")
            e(f"s_add_u32 s{sT}, s{sT}, 128")
    for s in range(opt.zmid,opt.zbar): zstep(s)
    e("s_waitcnt vmcnt(0)")
    st(82)
    e("s_barrier")
    for s in range(opt.zbar,22): zstep(s)
    def hinc(off):
        e("v_mov_b32 v0, 1")
        e("s_mov_b64 exec, 1")
        e("s_waitcnt vmcnt(0)")
        e(f"ds_add_u32 v7, v0 offset:{off}")
        e("s_mov_b64 exec, -1")
    CWB=97280
    def dmaB():
        e(f"s_sub_u32 s{sT}, s{sWAVE}, 4")
        e(f"s_lshl_b32 s{sT+1}, s{sT}, 10")
        e(f"s_add_u32 m0, s{sT+1}, {CWB}")
        e(f"s_lshl_b32 s{sT}, s{sT}, 7")
        e(f"s_add_u32 s{sT}, s{sT}, {14*128}")
        for t in range(8):
            if t==7:
                e(f"s_cmp_ge_u32 s{sWAVE}, 6")
                e("s_cbranch_scc1 L_dma_done")
            e(f"buffer_load_dwordx4 v5, s[{S_WS}:{S_WS+3}], s{sT} offen sc1 lds")
            if t<7:
                e(f"s_add_u32 m0, m0, 4096")
                e(f"s_add_u32 s{sT}, s{sT}, 512")
        lab("L_dma_done")
    if opt.bstep<0:
        if opt.bgate: lds_spin("L_wred",7,0,F_RED,4,sleep=1)
        dmaB()
    st(84)
    AUE,AUO=200,216; RG=232
    AXE=LE(0); AXO=ZE(0)
    vm=Q(63); lg=Q(15)
    seq=[('eo',22),('eo',23)]+[('e',s) for s in range(4)]+[('o',s) for s in range(4)]+[('eo',s) for s in range(4,22)]
    free=[RG+4*k for k in range(6)]
    reg={}
    lL=[]; lG=[]
    for i,(tl,s) in enumerate(seq):
        for k,fi in ([('x',2*s),('u',2*s+1)] if s<22 else [('u',44+s-22)]): lL.append((i,k,fi))
    cur=[0]; okB=[False]
    def ld():
        if not free or not lL or lL[0][0]>cur[0]+opt.look: return False
        i,k,fi=lL[0]
        if 14<=fi<44 and not okB[0]: return False
        lL.pop(0); r=free.pop(0); reg[(i,k)]=r
        if 14<=fi<44: off=(fi-14)*1024
        else:
            p=fi+2 if fi<14 else fi-44
            off=RING+4096-CWB+(p>>2)*8192+(p&3)*1024
        e(f"ds_read_b128 v[{r}:{r+3}], v1 offset:{off}"); lg.issue(f"{k}{i}")
        return True
    if opt.gateC: lds_spin("L_gC",7,0,{1:F_RED,3:F_G}[opt.gateC],4,sleep=1)
    st(88,True)
    if ST: e("s_memtime s[96:97]"); e("s_waitcnt lgkmcnt(0)")
    while ld(): pass
    first={'xe':1,'xo':1,'ue':1,'uo':1}
    GV=RG; rel=[]
    for i,(tl,s) in enumerate(seq):
        cur[0]=i
        CS={2:76,6:78,10:80,12:82,13:84,16:86,20:88,24:92}
        if opt.cst and i in CS: e(f"s_memtime s[{CS[i]}:{CS[i]+1}]")
        if i==opt.bstep:
            if opt.bgate: lds_spin("L_wred",7,0,F_RED,4,sleep=1); lg.done=len(lg.ops)
            dmaB()
        if i==opt.bstep2: hinc(F_CW2); lg.issue("cw2")
        if i==12:
            lds_spin("L_cw2",7,0,F_CW2,4); lg.done=len(lg.ops); okB[0]=True
            while ld(): pass
        q,nm=(lg,"lgkmcnt") if f'u{i}' in lg.ops else (vm,"vmcnt")
        if q.pending(f'u{i}'): e(f"s_waitcnt {nm}({q.need(f'u{i}')})")
        n=0
        for t in tl:
            z=(ZE if t=='e' else ZO)(s) if s<22 else (LE if t=='e' else LO)(s-22)
            for k,a in (('x',AXE if t=='e' else AXO),('u',AUE if t=='e' else AUO)):
                if (i,k) not in reg: continue
                c=f"v[{a}:{a+15}]"; r=reg[(i,k)]
                e(f"v_mfma_f32_32x32x16_bf16 {c}, v[{r}:{r+3}], v[{z}:{z+3}], {0 if first[k+t] else c}"); first[k+t]=0; lastw[t]=cnt[0]
                n+=1
                if n==1: free+=rel; rel=[]
                ld()
                if len(tl)==1: ld()
            if s<22 and not (t=='e' and s<4): rel.append(z)
        rel+= [reg[(i,k)] for k in 'xu' if (i,k) in reg]
        if i==len(seq)-3:
            assert not lL and not lG
            GV=free.pop(0)
            e(f"buffer_load_dwordx2 v[{GV}:{GV+1}], v6, s[{S_WS}:{S_WS+3}], 0 offen sc1"); vm.issue("gv")
    V=free.pop(0); V2=V+1
    e(f"s_add_u32 s{sE}, s{sE}, 1")
    e(f"s_and_b32 s{sE+1}, s{sE+1}, 0xff")
    e("s_lshl_b32 s9, s9, 16")
    e(f"s_lshl_b32 s{sT+6}, s{sROW}, 1")
    e(f"s_lshl_b32 s{sT+7}, s{sROW}, 3")
    e(f"s_add_u32 s{sT+7}, s{sT+7}, {EPOCH}")
    e(f"v_mov_b32 v{V+3}, s{sE}")
    hz('e',12)
    e(f"v_mul_f32 v{V}, v{AXE}, v{AUE}")
    e(f"v_mul_f32 v{V2}, v{AXE+1}, v{AUE+1}")
    for t in range(2,14): e(f"v_fmac_f32 v{V+(t&1)}, v{AXE+t}, v{AUE+t}")
    hz('o',12)
    for t in range(14): e(f"v_fmac_f32 v{V+(t&1)}, v{AXO+t}, v{AUO+t}")
    e(f"v_add_f32 v{V}, v{V}, v{V2}")
    st(90)
    if ST: e("s_memtime s[98:99]")
    e("s_mov_b32 exec_lo, 0x3ffffff")
    e("s_mov_b32 exec_hi, 0")
    e(f"s_mov_b32 s{sT+4}, {opt.bound}")
    G2=GV+2
    def chk(g,lbl):
        e(f"v_and_b32 v{V2}, 0xff, v{g+1}")
        e(f"v_cmp_eq_u32 vcc, s{sE}, v{g}")
        e(f"v_cmp_eq_u32 s[{sT}:{sT+1}], s{sE+1}, v{V2}")
        e(f"v_and_b32 v{V2}, 0xffffff00, v{g+1}")
        e(f"s_and_b64 vcc, vcc, s[{sT}:{sT+1}]")
        e("s_cmp_eq_u64 vcc, exec")
        e(f"s_cbranch_scc1 L_got")
    lab("L_poll2")
    e(f"buffer_load_dwordx2 v[{G2}:{G2+1}], v6, s[{S_WS}:{S_WS+3}], 0 offen sc1")
    e("s_waitcnt vmcnt(1)")
    chk(GV,0)
    e(f"buffer_load_dwordx2 v[{GV}:{GV+1}], v6, s[{S_WS}:{S_WS+3}], 0 offen sc1")
    e("s_waitcnt vmcnt(1)")
    chk(G2,1)
    e(f"s_sub_u32 s{sT+4}, s{sT+4}, 1")
    e("s_cbranch_scc0 L_poll2")
    lab("L_got")
    e(f"v_add_f32 v{V}, v{V}, v{V2}")
    e("s_mov_b64 exec, -1")
    if not opt.cst: st(92)
    for dpp in ["quad_perm:[1,0,3,2] row_mask:0xf bank_mask:0xf","quad_perm:[2,3,0,1] row_mask:0xf bank_mask:0xf",
                "row_half_mirror row_mask:0xf bank_mask:0xf","row_mirror row_mask:0xf bank_mask:0xf",
                "row_bcast:15 row_mask:0xa bank_mask:0xf","row_bcast:31 row_mask:0xc bank_mask:0xf"]:
        e("s_nop 1")
        e(f"v_add_f32_dpp v{V}, v{V}, v{V} {dpp}")
    e("s_mov_b32 exec_lo, 0")
    e("s_mov_b32 exec_hi, 0x80000000")
    e(f"v_add_f32 v{V}, s9, v{V}")
    e(f"v_cvt_pk_bf16_f32 v{V}, v{V}, v{V}")
    e(f"buffer_store_short v{V}, off, s[{S_B}:{S_B+3}], s{sT+6}")
    e(f"buffer_store_dword v{V+3}, off, s[{S_WS}:{S_WS+3}], s{sT+7}")
    if ST:
        e("s_waitcnt vmcnt(0)"); st(94,True); e("s_sub_u32 s98, s98, s96")
        if opt.cst:
            for r in (76,78,80,82,84,86,88,92):
                e(f"s_sub_u32 s{r}, s{r}, s96"); e(f"s_mul_i32 s{r}, s{r}, 100"); e(f"s_add_u32 s{r}, s{r}, s10")
        dump([10,76,78,80,82,84,86,88,90,92,94,98],0,1)
    e("s_endpgm")

    sec("pref")
    lab("L_aux")
    e(f"s_mov_b32 s{sT+1}, s{sXCD}")
    e(f"s_cmp_ge_u32 s{sSLOT}, 27")
    e("s_cbranch_scc1 L_prefetch")
    e(f"s_cmp_lt_u32 s{sXCD}, 7")
    e("s_cbranch_scc1 L_fold")
    sec("fold0"); lab("L_fold")
    cm("---- CIN weight folding: rows i = 4*pidx + (wave&3) ----")
    S_C=S_W; S_O=S_B; sI=6
    e(f"s_and_b32 s{sT}, s{sWAVE}, 3")
    e(f"s_lshl2_add_u32 s{sI}, s{sT+1}, s{sT}")
    M=16
    e("v_lshlrev_b32 v3, 2, v0")
    e("v_mov_b32 v7, 0x7fff0000")
    e(f"s_movk_i32 s{sT+1}, 338")
    e(f"v_cmp_gt_u32 vcc, s{sT+1}, v0")
    e("v_lshrrev_b32 v4, 1, v2")
    e("v_and_b32 v5, 1, v2")
    e("v_cndmask_b32 v3, v7, v3, vcc")
    e("v_lshlrev_b32 v4, 3, v4")
    e("s_waitcnt lgkmcnt(0)")
    e(f"s_load_dwordx16 s[76:91], s[{P_WOUT}:{P_WOUT+1}], 104")
    srd(S_C,P_CIN,105456)
    for gg in range(26):
        if gg%3==0: e(f"s_mov_b32 s{sT+2}, {2*35152+gg*1352}")
        e(f"buffer_load_dword v{M+gg}, v3, s[{S_C}:{S_C+3}], s{sT+2} offen offset:{(gg%3)*1352}")
    e("s_branch L_fold_b")
    sec("fold"); lab("L_fold_b")
    PP=44; QQ=52
    def slots():
        for ee in range(8):
            e(f"v_add_u32 v8, {ee}, v4")
            e("v_mul_u32_u24 v9, 5042, v8")
            e("v_lshrrev_b32 v9, 16, v9")
            e("v_mul_u32_u24 v10, 13, v9")
            e("v_sub_u32 v10, v8, v10")
            e(f"v_lshl_add_u32 v{PP+ee}, v10, 1, v5")
            e(f"v_add_u32 v{QQ+ee}, v{PP+ee}, v9")
            e(f"v_subrev_u32 v10, 26, v{QQ+ee}")
            e(f"v_min_u32 v{QQ+ee}, v{QQ+ee}, v10")
    def m3(later):
        e("v_mul_u32_u24 v8, 5042, v0")
        e("v_lshrrev_b32 v8, 16, v8")
        e("v_mul_u32_u24 v9, 13, v8")
        e("v_sub_u32 v9, v0, v9")
        e("v_lshlrev_b32 v9, 7, v9")
        e("v_lshl_add_u32 v96, v8, 1, v9")
        e("s_waitcnt lgkmcnt(0)")
        st(92)
        for gg in range(26):
            sreg=76+(gg>>1)
            if gg&1: e(f"s_and_b32 s{sT+4+(gg&1)}, s{sreg}, 0xffff0000")
            else:    e(f"s_lshl_b32 s{sT+4+(gg&1)}, s{sreg}, 16")
            if gg%4==0: e(f"s_waitcnt vmcnt({later+25-min(gg+3,25)})")
            e(f"v_lshlrev_b32 v8, 16, v{M+gg}")
            e(f"v_and_b32 v9, 0xffff0000, v{M+gg}")
            if gg==0:
                e(f"v_mul_f32 v10, s{sT+4}, v8"); e(f"v_mul_f32 v11, s{sT+4}, v9")
            else:
                e(f"v_fmac_f32 v10, s{sT+4+(gg&1)}, v8"); e(f"v_fmac_f32 v11, s{sT+4+(gg&1)}, v9")
        e("v_cvt_pk_bf16_f32 v10, v10, v11")
        e(f"s_movk_i32 s{sT+1}, 338")
        e(f"v_cmp_gt_u32 vcc, s{sT+1}, v0")
        e(f"s_and_saveexec_b64 s[{sT+2}:{sT+3}], vcc")
        e("ds_write_b16 v96, v10")
        e("ds_write_b16_d16_hi v96, v10 offset:64")
        e("s_mov_b64 exec, -1")
        st(94)
    def st_addr(cnt):
        e("v_lshlrev_b32 v6, 7, v6")
        e("v_lshl_add_u32 v6, v5, 6, v6")
        e(f"s_and_b32 s{sT+1}, s{sWAVE}, 3")
        e(f"s_lshl_b32 s{sT+1}, s{sT+1}, 4")
        e(f"s_add_u32 s{sT+1}, s{sT+1}, {STG}")
        e(f"v_add_u32 v6, s{sT+1}, v6")
        e(f"v_cmp_gt_u32 vcc, {cnt}, v2")
        e("v_mov_b32 v94, 1.0")
        e(f"v_mov_b32 v8, {STG+8192}")
        e("v_cndmask_b32 v6, v8, v6, vcc")
        e("v_cmp_gt_u32 vcc, 2, v2")
        e("s_nop 1")
        e("v_cndmask_b32 v95, v94, 0.5, vcc")
        e("v_cmp_gt_u32 vcc, 4, v2")
        e("s_nop 1")
        e("v_cndmask_b32 v94, v94, 0.5, vcc")
    e(f"s_cmp_ge_u32 s{sWAVE}, 4")
    e("s_cbranch_scc1 L_aux_w1")
    Pq=60; PR=76; RA=68; VV=16
    e("v_and_b32 v8, 31, v2")
    e("v_lshrrev_b32 v15, 5, v2")
    e(f"v_mul_u32_u24 v10, {8*1352}, v15")
    e("v_lshl_add_u32 v10, v8, 1, v10")
    e("v_cmp_gt_u32 vcc, 26, v8")
    e(f"s_mul_i32 s{sT+3}, s{sI}, 52")
    e(f"s_add_u32 s{sT+3}, s{sT+3}, 35152")
    e("v_cndmask_b32 v10, v7, v10, vcc")
    e("v_cmp_gt_u32 vcc, 32, v2")
    e("v_lshlrev_b32 v12, 2, v2")
    e("s_nop 0")
    e("v_cndmask_b32 v11, v7, v10, vcc")
    for s in range(2):
        for ee in range(8):
            h=16*s+ee
            if h%3==0 or ee==0:
                hb=h; e(f"s_add_u32 s{sT+2}, s{sT+3}, {h*1352}")
            va=11 if (s==1 and ee>=2) else 10
            e(f"buffer_load_ushort v{PR+s*8+ee}, v{va}, s[{S_C}:{S_C+3}], s{sT+2} offen offset:{(h-hb)*1352}")
    srd(S_O,P_WOUT,156)
    e(f"buffer_load_dword v13, v12, s[{S_O}:{S_O+3}], 0 offen offset:52")
    e(f"s_lshl_b32 s{sT+2}, s{sI}, 1")
    e(f"buffer_load_ushort v14, off, s[{S_O}:{S_O+3}], s{sT+2}")
    e("v_lshlrev_b32 v8, 6, v2")
    e("v_mov_b32 v9, 0")
    e("s_mov_b32 exec_lo, 0x7ffffff")
    e("s_mov_b32 exec_hi, 0")
    e("ds_write_b32 v8, v9 offset:52")
    e("ds_write_b32 v8, v9 offset:56")
    e("ds_write_b32 v8, v9 offset:60")
    e("s_mov_b64 exec, -1")
    e("v_and_b32 v8, 31, v2")
    e("v_lshlrev_b32 v93, 6, v8")
    e("v_lshl_add_u32 v93, v15, 4, v93")
    e(f"s_mul_i32 s{sT+1}, s{sWAVE}, 5120")
    e(f"s_add_u32 s{sT+1}, s{sT+1}, 4096")
    e("v_mul_u32_u24 v92, 144, v8")
    e("v_lshl_add_u32 v92, v15, 4, v92")
    e(f"v_add_u32 v92, s{sT+1}, v92")
    slots()
    e("v_cmp_lt_u32 vcc, 43, v2")
    e("v_subrev_u32 v10, 176, v4")
    e("v_mov_b32 v11, 26")
    for ee in range(8):
        e(f"v_add_u32 v8, {ee}, v10")
        e("v_lshl_add_u32 v8, v8, 1, v5")
        e(f"v_min_u32 v8, 31, v8")
        e(f"v_cndmask_b32 v8, v{QQ+ee}, v8, vcc")
        e(f"v_cndmask_b32 v9, v{PP+ee}, v11, vcc")
        e(f"v_mul_u32_u24 v9, 144, v9")
        e(f"v_lshl_add_u32 v9, v8, 2, v9")
        e(f"v_add_u32 v{RA+ee}, s{sT+1}, v9")
    e("v_lshrrev_b32 v8, 1, v2")
    e("v_lshl_add_u32 v6, v8, 1, 1")
    e("v_add_u32 v8, 22, v8")
    e("v_cndmask_b32 v6, v6, v8, vcc")
    st_addr(48)
    m3(18)
    e("s_mov_b32 exec_lo, 0x1fff")
    e("s_mov_b32 exec_hi, 0")
    e("s_waitcnt vmcnt(0)")
    e(f"ds_write_b32 v12, v13 offset:{26*64}")
    e("s_mov_b64 exec, -1")
    for r in range(8): e(f"v_lshl_or_b32 v{Pq+r}, v{PR+2*r+1}, 16, v{PR+2*r}")
    e("s_waitcnt lgkmcnt(0)")
    e("s_barrier")
    Qq=16; D=24
    e(f"ds_read_b128 v[{Qq}:{Qq+3}], v93")
    e(f"ds_read_b128 v[{Qq+4}:{Qq+7}], v93 offset:32")
    e("s_waitcnt lgkmcnt(0)")
    e(f"v_mfma_f32_32x32x16_bf16 v[{D}:{D+15}], v[{Pq}:{Pq+3}], v[{Qq}:{Qq+3}], 0")
    e(f"v_mfma_f32_32x32x16_bf16 v[{D}:{D+15}], v[{Pq+4}:{Pq+7}], v[{Qq+4}:{Qq+7}], v[{D}:{D+15}]")
    e(f"v_mfma_f32_32x32x16_bf16 v[{D}:{D+15}], v[{Qq}:{Qq+3}], v[{Pq}:{Pq+3}], v[{D}:{D+15}]")
    e(f"v_mfma_f32_32x32x16_bf16 v[{D}:{D+15}], v[{Qq+4}:{Qq+7}], v[{Pq+4}:{Pq+7}], v[{D}:{D+15}]")
    e("s_nop 11")
    for m in range(4):
        e(f"ds_write_b128 v92, v[{D+4*m}:{D+4*m+3}] offset:{m*32}")
    e("s_waitcnt lgkmcnt(0)")
    for ee in range(8): e(f"ds_read_b32 v{VV+ee}, v{RA+ee}")
    e("v_lshlrev_b32 v14, 16, v14")
    e(f"v_cmp_eq_u32 s[{sT}:{sT+1}], 46, v2")
    e(f"v_cmp_eq_u32 s[{sT+2}:{sT+3}], 47, v2")
    e("v_cmp_lt_u32 vcc, 45, v2")
    e("s_waitcnt lgkmcnt(0)")
    e(f"v_cndmask_b32 v{VV+5}, v{VV+5}, v14, s[{sT}:{sT+1}]")
    e(f"v_cndmask_b32 v{VV+5}, v{VV+5}, 0, s[{sT+2}:{sT+3}]")
    e(f"v_cndmask_b32 v{VV+6}, v{VV+6}, 0, vcc")
    e(f"v_cndmask_b32 v{VV+7}, v{VV+7}, 0, vcc")
    e("s_branch L_aux_pack")
    lab("L_aux_w1")
    GA=60; GB=68
    e(f"s_mul_i32 s{sT+3}, s{sI}, 1352")
    e(f"s_lshl_b32 s{sT+6}, s{sWAVE}, 11")
    e(f"s_add_u32 s{sT+6}, s{sT+6}, {32768-4*2048}")
    e(f"s_mov_b32 m0, s{sT+6}")
    e("v_lshlrev_b32 v12, 4, v2")
    e(f"buffer_load_dwordx4 v12, s[{S_C}:{S_C+3}], s{sT+3} offen lds")
    e(f"buffer_load_dwordx4 v12, s[{S_C}:{S_C+3}], s{sT+3} offen offset:1024 lds")
    slots()
    for ee in range(8):
        e(f"v_mul_u32_u24 v8, 26, v{PP+ee}")
        e(f"v_add_lshl_u32 v8, v8, v{QQ+ee}, 1")
        e(f"v_add_u32 v{GA+ee}, s{sT+6}, v8")
        e(f"v_mul_u32_u24 v9, 26, v{QQ+ee}")
        e(f"v_add_lshl_u32 v9, v9, v{PP+ee}, 1")
        e(f"v_add_u32 v{GB+ee}, s{sT+6}, v9")
    e("v_and_b32 v6, 62, v2")
    st_addr(44)
    m3(2)
    e("s_waitcnt lgkmcnt(0)")
    e("s_barrier")
    e("s_waitcnt vmcnt(0)")
    for ee in range(8):
        e(f"ds_read_u16 v{GA+ee}, v{GA+ee}")
        e(f"ds_read_u16 v{GB+ee}, v{GB+ee}")
    e("s_waitcnt lgkmcnt(0)")
    for ee in range(8):
        e(f"v_lshlrev_b32 v{GA+ee}, 16, v{GA+ee}")
        e(f"v_lshlrev_b32 v{GB+ee}, 16, v{GB+ee}")
        e(f"v_add_f32 v{VV+ee}, v{GA+ee}, v{GB+ee}")
    lab("L_aux_pack")
    srd(S_WS,P_WS,WS_SIZE); srd(S_A,P_DBG,256)
    e("v_cmp_eq_u32 vcc, 43, v2")
    for ee in range(8): e(f"v_mul_f32 v{VV+ee}, v{VV+ee}, v{94 if ee<5 else 95}")
    e(f"v_cndmask_b32 v{VV+7}, v{VV+7}, 0, vcc")
    for m in range(4): e(f"v_cvt_pk_bf16_f32 v{24+m}, v{VV+2*m}, v{VV+2*m+1}")
    e("ds_write_b128 v6, v[24:27]")
    e("v_lshlrev_b32 v8, 4, v0")
    e(f"s_movk_i32 s{sT+1}, 368")
    e(f"v_cmp_gt_u32 vcc, s{sT+1}, v0")
    e(f"s_lshr_b32 s{sT}, s{sI}, 2")
    e(f"s_mul_i32 s{sT+2}, s{sT}, 5888")
    e("v_cndmask_b32 v9, v7, v8, vcc")
    e("s_waitcnt lgkmcnt(0)")
    e("s_barrier")
    e(f"ds_read_b128 v[24:27], v8 offset:{STG}")
    e("s_waitcnt lgkmcnt(0)")
    e(f"buffer_store_dwordx4 v[24:27], v9, s[{S_WS}:{S_WS+3}], s{sT+2} offen sc0 sc1")
    st(96)
    e(f"s_lshl_b32 s{sT}, s{sT}, 2")
    e("v_mov_b32 v8, 1")
    e("s_waitcnt vmcnt(0)")
    e("s_barrier")
    e(f"s_cmp_lg_u32 s{sWAVE}, 0")
    e("s_cbranch_scc1 L_noflag")
    e("s_mov_b64 exec, 1")
    e(f"buffer_store_dword v8, off, s[{S_A}:{S_A+3}], s{sT} sc0 sc1")
    e("s_mov_b64 exec, -1")
    lab("L_noflag")
    if ST:
        st(98); e("s_waitcnt vmcnt(0)"); st(100,True)
        dump([10,92,94,96,98,100],1,2)
    e("s_branch L_aux_done")
    sec("pref")
    lab("L_prefetch")
    e("s_waitcnt lgkmcnt(0)")
    if opt.pdel: e(f"s_sleep {opt.pdel}")
    if opt.pf:
        srd(S_W,P_W,1664*3328)
        e(f"s_cmp_lt_u32 s{sXCD}, 7")
        e(f"s_cselect_b32 s{sT+2}, 27, 26")
        e(f"s_sub_u32 s{sT}, s{sSLOT}, s{sT+2}")
        e(f"s_sub_u32 s{sT+2}, 32, s{sT+2}")
        e(f"s_mul_i32 s{sT+1}, s{sXCD}, 26")
        e(f"s_lshr_b32 s{sT+1}, s{sT+1}, 3")
        e(f"s_lshl_b32 s{sT+1}, s{sT+1}, 7")
        for u in range(3):
            e(f"v_add_u32 v3, {512*u}, v0")
            e(f"v_mul_u32_u24 v3, s{sT+2}, v3")
            e(f"v_add_u32 v3, s{sT}, v3")
            e("v_lshrrev_b32 v4, 2, v3")
            if opt.pskip: e(f"v_add_u32 v4, {opt.pskip}, v4")
            e("v_and_b32 v3, 3, v3")
            e(f"v_mul_u32_u24 v4, 3328, v4")
            e("v_lshl_add_u32 v3, v3, 7, v4")
            e(f"buffer_load_dword v{9+u}, v3, s[{S_W}:{S_W+3}], s{sT+1} offen")
            if u<2 and opt.pbar: e("s_barrier")
        e(f"s_cmp_lg_u32 s{sSLOT}, 31")
        e("s_cbranch_scc1 L_aux_done")
        srd(S_B,P_W2,3328); srd(S_WS,P_WS,EPOCH+8192)
        e("v_lshlrev_b32 v3, 7, v0")
        e(f"buffer_load_dword v13, v3, s[{S_B}:{S_B+3}], 0 offen")
        e(f"s_mov_b32 s{sT}, {EPOCH}")
        e(f"buffer_load_dword v14, v3, s[{S_WS}:{S_WS+3}], s{sT} offen")
    e("s_branch L_aux_done")
    sec("fold")
    lab("L_aux_done")
    e(f"s_cmp_lt_u32 s{sWAVE}, 4")
    e("s_cbranch_scc1 L_end")
    srd(S_TBL,P_TBL,128000); srd(S_IDX,P_IDX,106496)
    rowidx_load()
    e(f"v_mov_b32 v7, {FLAGS}")
    e("v_mov_b32 v8, 4")
    e("v_mov_b32 v9, 0")
    e(f"ds_write_b32 v7, v8 offset:{F_RED}")
    e(f"ds_write_b32 v7, v8 offset:{F_G}")
    e(f"ds_write_b32 v7, v8 offset:{F_S1}")
    e(f"ds_write_b32 v7, v9 offset:{F_CW}")
    e(f"ds_write_b32 v7, v9 offset:{F_CW2}")
    e("s_waitcnt vmcnt(0)")
    e("v_lshlrev_b32 v29, 7, v29")
    x0_addrs()
    e("s_branch L_help_x0")
    lab("L_end")
    e("s_endpgm")
    sec("tail")
    L.append('.section .rodata,"a"'); L.append(".p2align 6"); L.append(f".amdhsa_kernel {KN}")
    for x in ["next_free_vgpr 256","next_free_sgpr 102","accum_offset 256","group_segment_fixed_size 0","kernarg_size 88",
              "user_sgpr_count 2","user_sgpr_kernarg_segment_ptr 1","system_sgpr_workgroup_id_x 1"]:
        L.append("  .amdhsa_"+x)
    L.append(".end_amdhsa_kernel")
    return "\n".join(sum((SEC.get(k,[]) for k in order+["tail"]),[]))+"\n"

if __name__=="__main__":
    ap=argparse.ArgumentParser()
    ap.add_argument("-o",default="k.s")
    for k,d in dict(rp=1,pdel=0,cp26=1,pbar=1,lay=1,b2g=1,cst=0,bgate=1,look=2,bstep=3,bstep2=10,inv=0,zmid=22,csc=0,gateC=0,gq=0,rowx=1,wstop=5,wrest=16,bq=3,xlds=1,xgap=0,atid=1,xsl=8,pskip=128,d2late=1,wper=4,its=0,sched=0,nog=0,not_=0,c2=0,noz=0,lateb=1,dly=4,pst=0,enc=0,encrole=0,encwg=0,encwave=0,nocin=0,gcyc=0,psleep=4,now=0,stamps=0,pf=1,cpf=1,prio=1,bound=20000,zsplit=22,zbar=22,nt0=6,tb=444,n0=4,nt1=4,d1late=0,trim=1,wsched=0).items(): ap.add_argument("--"+k,type=int,default=d)
    opt=ap.parse_args()
    for t in range(512): assert (t*5042)>>16==t//13, t
    open(opt.o,"w").write(build(opt))
```

```python
import sys, argparse, math, struct

class Q:
    def __init__(s,cap): s.ops=[]; s.cap=cap; s.done=0
    def issue(s,name): s.ops.append(name)
    def need(s,*names):
        r=99
        for name in names:
            i=len(s.ops)-1-s.ops[::-1].index(name)
            r=min(r,len(s.ops)-1-i)
        r=min(r,s.cap)
        s.done=max(s.done,len(s.ops)-r)
        return r
    def pending(s,*names):
        return any(len(s.ops)-1-s.ops[::-1].index(n)>=s.done for n in names)

WIMG=0; GRAN=65536; EPOCH=0x50000; STAMP=0x100000; WS_SIZE=0x200000
STG=49152; RING=128000; FLAGS=160768; CINW=49152
F_IT9,F_RED,F_G,F_PRE,F_S1,F_CW,F_CW2=0,4,8,12,16,20,24
C1=-2*math.sqrt(2/math.pi)*math.log2(math.e); C2=C1*0.044715
def f2u(x): return struct.unpack('<I',struct.pack('<f',x))[0]
KN="standalone__deep_cross_xdeepfm__recsys_kernel"

sWAVE,sXCD,sSLOT,sCB,sRB=3,4,5,7,8
P_IDX,P_TBL,P_CIN,P_WOUT,P_W,P_B1,P_W2,P_BO=16,18,20,22,24,26,28,30
P_OUT,P_DBG,P_WS=32,34,36
S_IDX,S_TBL,S_W,S_WS,S_A,S_B=40,44,48,52,56,60
sRING,sWR1,sWR2,sTM=64,65,15,14
sT=66

def pair_of(n):
    if n<169: dlt,m=divmod(n,13)
    else: dlt,m=13,n-169
    r=2*m
    return r,(r+dlt)%26

def build(opt):
    L=[]
    cnt=[0]; lastw={}
    def e(x):
        L.append("    "+x)
        cnt[0]+= (int(x.split()[1])+1) if x.startswith("s_nop") else 1
    def hz(key,n):
        d=cnt[0]-lastw[key]
        if d<n: e(f"s_nop {n-d-1}")
    def lab(x): L.append(x+":")
    def cm(x): L.append("    ; "+x)
    E=lambda x:(lambda: e(x))
    ST=opt.stamps
    def srd(d,p,size):
        e(f"s_mov_b32 s{d}, s{p}"); e(f"s_mov_b32 s{d+1}, s{p+1}")
        e(f"s_mov_b32 s{d+2}, {size}"); e(f"s_mov_b32 s{d+3}, 0x20000")
    def st(r,wait=False):
        if ST:
            e(f"s_memrealtime s[{r}:{r+1}]")
            if wait: e("s_waitcnt lgkmcnt(0)")
    def dump(regs,area=0,role=0):
        if opt.enc:
            delay(regs,role); return
        dump_(regs,area)
    dl=[0]
    def delay(regs,role):
        dl[0]+=1; n=dl[0]
        e("s_mov_b64 exec, -1")
        e("s_waitcnt lgkmcnt(0)")
        if opt.enc==99:
            if role!=1: return
            srd(S_A,P_DBG,256)
            e("s_not_b32 s12, s10")
            e("v_mov_b32 v244, s12")
            e(f"v_mov_b32 v245, s{regs[10]}")
            e("v_mov_b32 v246, 1")
            e("s_mov_b64 exec, 1")
            e(f"buffer_atomic_umax v244, off, s[{S_A}:{S_A+3}], 0 offset:240 sc1")
            e(f"buffer_atomic_umax v245, off, s[{S_A}:{S_A+3}], 0 offset:244 sc1")
            e("s_waitcnt vmcnt(0)")
            e(f"buffer_atomic_add v246, off, s[{S_A}:{S_A+3}], 0 offset:248 sc0 sc1")
            e("s_waitcnt vmcnt(0)")
            e("v_readfirstlane_b32 s12, v246")
            e("s_cmp_lg_u32 s12, 1023")
            e(f"s_cbranch_scc1 L_dly{n}_x")
            e(f"buffer_load_dwordx2 v[244:245], off, s[{S_A}:{S_A+3}], 0 offset:240 sc1")
            e("s_waitcnt vmcnt(0)")
            e("v_readfirstlane_b32 s12, v244")
            e("v_readfirstlane_b32 s13, v245")
            e("s_not_b32 s12, s12")
            e("s_sub_u32 s12, s13, s12")
        else:
            if role!=opt.encrole: return
            e(f"s_cmp_lg_u32 s2, {opt.encwg}")
            e(f"s_cbranch_scc1 L_dly{n}_x")
            e(f"s_cmp_lg_u32 s{sWAVE}, {opt.encwave}")
            e(f"s_cbranch_scc1 L_dly{n}_x")
            e(f"s_sub_u32 s12, s{regs[opt.enc]}, s10")
        e("s_mul_i32 s12, s12, 100")
        e("s_memrealtime s[66:67]")
        e("s_waitcnt lgkmcnt(0)")
        e("s_add_u32 s12, s12, s66")
        lab(f"L_dly{n}")
        e("s_sleep 8")
        e("s_memrealtime s[66:67]")
        e("s_waitcnt lgkmcnt(0)")
        e("s_sub_u32 s13, s66, s12")
        e("s_cmp_lt_i32 s13, 0")
        e(f"s_cbranch_scc1 L_dly{n}")
        lab(f"L_dly{n}_x")
        e("s_mov_b64 exec, -1")
    def dump_(regs,area=0):
        e("s_mov_b64 exec, -1")
        e("s_waitcnt lgkmcnt(0)")
        e("s_lshl_b32 s12, s2, 3")
        e(f"s_add_u32 s12, s12, s{sWAVE}")
        e("s_lshl_b32 s12, s12, 6")
        e(f"s_add_u32 s12, s12, {STAMP+area*0x40000}")
        regs=list(regs)+[regs[0]]*(12-len(regs))
        for i,r in enumerate(regs): e(f"v_mov_b32 v{244+i}, s{r}")
        e("s_mov_b64 exec, 1")
        for i in range(3):
            e(f"buffer_store_dwordx4 v[{244+4*i}:{247+4*i}], off, s[{S_WS}:{S_WS+3}], s12 offset:{16*i}")
        e("s_mov_b64 exec, -1")
    def lds_spin(name,vaddr,vtmp,off,target,sleep=0):
        e(f"s_mov_b32 s{sT+4}, {opt.bound*8}")
        lab(name)
        e(f"ds_read_b32 v{vtmp}, v{vaddr} offset:{off}")
        e("s_waitcnt lgkmcnt(0)")
        e(f"v_readfirstlane_b32 s{sT+5}, v{vtmp}")
        e(f"s_cmp_ge_u32 s{sT+5}, {target}")
        e(f"s_cbranch_scc1 {name}_x")
        if sleep: e(f"s_sleep {sleep}")
        e(f"s_sub_u32 s{sT+4}, s{sT+4}, 1")
        e(f"s_cbranch_scc0 {name}")
        lab(name+"_x")

    IV=16; IA=24
    def rec_addrs():
        e(f"s_lshl_b32 s{sT+5}, s{sT}, 7")
        e(f"s_add_u32 s{sT+5}, s{sT+5}, {RING+4096}")
        e(f"v_lshl_add_u32 v7, v7, 3, s{sT+5}")
        e("v_mul_u32_u24 v9, 7, v8")
        e("v_and_b32 v8, 1, v8")
        for par in range(2):
            d=IA+2*par
            if par:
                e("v_xor_b32 v8, 1, v8"); e("v_add_u32 v9, 1, v9")
            e("v_lshrrev_b32 v10, 1, v9")
            e(f"v_lshl_add_u32 v{d}, v10, 8, v7")
            e(f"v_lshl_add_u32 v{d}, v8, 14, v{d}")
            e("v_lshlrev_b32 v10, 1, v8")
            e(f"v_xor_b32 v10, s{sT+2}, v10")
            e(f"v_lshl_add_u32 v{d}, v10, 1, v{d}")
            e(f"v_xor_b32 v{d+1}, 2, v{d}")
            e(f"v_add_u32 v{d+1}, 8192, v{d+1}")
    sROW=6; sE=38
    def rowidx_load():
        e(f"s_sub_u32 s{sT+6}, s{sWAVE}, 4")
        if opt.rowx:
            e(f"s_lshl2_add_u32 s{sROW}, s{sSLOT}, s{sT+6}")
            e(f"s_lshl_b32 s{sT+6}, s{sXCD}, 7")
            e(f"s_add_u32 s{sROW}, s{sROW}, s{sT+6}")
        else: e(f"s_lshl2_add_u32 s{sROW}, s2, s{sT+6}")
        e(f"s_mul_i32 s{sT+6}, s{sROW}, 104")
        e("v_lshlrev_b32 v30, 2, v2")
        e(f"buffer_load_dword v29, v30, s[{S_IDX}:{S_IDX+3}], s{sT+6} offen")
    L.append("; @launch grid=(256,1,1) block=(512,1,1) lds=163840")
    L.append('.amdgcn_target "amdgcn-amd-amdhsa--gfx950"')
    L.append(".text"); L.append(f".globl {KN}"); L.append(".p2align 8"); L.append(f".type {KN},@function")
    lab(KN)
    e("s_load_dwordx16 s[16:31], s[0:1], 0")
    e("s_load_dwordx4 s[32:35], s[0:1], 64")
    e("s_load_dwordx2 s[36:37], s[0:1], 80")
    st(10)
    e("s_cmp_ge_u32 s2, 256")
    e("s_cbranch_scc1 L_end")
    e("v_lshrrev_b32 v1, 6, v0")
    e("v_and_b32 v2, 63, v0")
    e(f"v_readfirstlane_b32 s{sWAVE}, v1")
    e(f"s_and_b32 s{sXCD}, s2, 7")
    e(f"s_lshr_b32 s{sSLOT}, s2, 3")
    e(f"s_cmp_ge_u32 s{sSLOT}, 26")
    e("s_cbranch_scc1 L_aux")
    e(f"s_mul_i32 s6, s{sXCD}, 26")
    e(f"s_add_u32 s6, s6, s{sSLOT}")
    e(f"s_lshr_b32 s{sCB}, s6, 3")
    e(f"s_and_b32 s{sRB}, s6, 7")
    e(f"v_mov_b32 v7, {FLAGS}")
    e("v_mov_b32 v8, 0"); e("v_mov_b32 v9, 0")
    e("ds_write2_b64 v7, v[8:9], v[8:9] offset1:1")
    e("ds_write2_b64 v7, v[8:9], v[8:9] offset0:2 offset1:3")
    e("v_lshrrev_b32 v3, 3, v2")
    e("v_lshrrev_b32 v4, 4, v2")
    e("v_and_b32 v10, 7, v2")
    e(f"s_mov_b32 s{S_IDX+2}, 106496"); e(f"s_mov_b32 s{S_IDX+3}, 0x20000")
    e(f"s_and_b32 s{sT}, s{sWAVE}, 1")
    e(f"s_lshl_b32 s{sT+1}, s{sT}, 2")
    e("v_xor_b32 v5, v10, v4")
    e(f"v_xor_b32 v5, s{sT+1}, v5")
    e("v_lshlrev_b32 v5, 4, v5")
    e("v_lshl_add_u32 v5, v3, 7, v5")
    e(f"s_lshr_b32 s{sT+2}, s{sWAVE}, 1")
    e(f"s_lshl1_add_u32 s{sT+3}, s{sSLOT}, s{sT+2}")
    e(f"s_lshl_b32 s{sT+3}, s{sT+3}, 11")
    e(f"s_lshl_b32 s{sT+4}, s{sT}, 10")
    e(f"s_add_u32 s{sTM}, s{sT+3}, s{sT+4}")
    e(f"s_lshl_b32 s{sT+3}, s{sT}, 11")
    e(f"s_sub_u32 s{sWR2}, {63*2048}, s{sT+3}")
    e(f"s_add_u32 s{sWR1}, s{sWR2}, s{sT+4}")
    e(f"s_mov_b32 s{S_TBL+2}, 128000"); e(f"s_mov_b32 s{S_TBL+3}, 0x20000")
    e(f"s_cmp_ge_u32 s{sWAVE}, 4")
    e("s_cbranch_scc1 L_help_pro")
    def tbl(n,vm):
        for t in range(n):
            e(f"s_mov_b32 m0, s{sTM}")
            e(f"s_add_u32 s{sTM}, s{sTM}, 8192")
            e(f"buffer_load_dwordx4 v5, s[{S_TBL}:{S_TBL+3}], m0 offen lds"); vm.issue("tbl")
            e(f"s_cmp_ge_u32 s{sTM}, s{sWR1}")
            e(f"s_cselect_b32 s{sT+5}, s{sWR2}, 0")
            e(f"s_sub_u32 s{sTM}, s{sTM}, s{sT+5}")

    vW,vT0,vT1=1,3,4
    AD=8; AF=16; F0=48; REC=80; ACC=128
    acc=lambda lt,ct: ACC+(lt*2+ct)*16
    Fr=lambda j,ks,ct: F0+(j&1)*16+(ks*2+ct)*4
    vm=Q(63); lg=Q(15)
    cm("---- DNN wave prologue ----")
    e("v_lshlrev_b32 v6, 4, v2")
    e(f"s_mul_i32 s{sT+4}, s{sRB}, 13312")
    e(f"s_mul_i32 s{sT+5}, s{sWAVE}, 3328")
    e(f"s_add_u32 s{sT+4}, s{sT+4}, s{sT+5}")
    e(f"s_lshl_b32 s{sRING}, s{sWAVE}, 13")
    e(f"s_add_u32 s{sRING}, s{sRING}, {RING}")
    e(f"s_add_u32 m0, s{sRING}, 4096")
    e(f"s_lshl_b32 s{sT+7}, s{sWAVE}, 5")
    e(f"v_add_u32 v9, s{sT+7}, v3")
    e("v_mul_u32_u24 v9, 3328, v9")
    e("v_lshlrev_b32 v11, 2, v4")
    e("v_and_b32 v11, 4, v11")
    e("v_xor_b32 v11, v11, v10")
    e("v_lshl_add_u32 v1, v11, 4, v9")
    e(f"s_lshl_b32 s{sT+7}, s{sCB}, 7")
    e(f"v_add_u32 v1, s{sT+7}, v1")
    e("v_lshrrev_b32 v12, 5, v2")
    e(f"v_lshl_add_u32 v11, v12, 5, s{sT+7}")
    e("s_waitcnt lgkmcnt(0)")
    if opt.pst: st(84)
    e(f"s_mov_b64 s[{S_IDX}:{S_IDX+1}], s[{P_IDX}:{P_IDX+1}]")
    e(f"s_mov_b64 s[{S_TBL}:{S_TBL+1}], s[{P_TBL}:{P_TBL+1}]")
    for i in range(4):
        if i==3: e("s_mov_b64 exec, 0xffff")
        e(f"buffer_load_dwordx4 v6, s[{S_IDX}:{S_IDX+3}], s{sT+4} offen offset:{1024*i} lds"); vm.issue(f"idx{i}")
    e("s_mov_b64 exec, -1")
    srd(S_W,P_W,1664*3328)
    srd(S_A,P_B1,3328)
    for pc in range(4):
        e(f"s_add_u32 m0, s{sRING}, {pc*1024}")
        e(f"s_mov_b32 s12, {8*pc*3328}")
        e(f"buffer_load_dwordx4 v1, s[{S_W}:{S_W+3}], s12 offen lds"); vm.issue(f"w0_{pc}")
    def bias_loads():
        for i in range(4):
            e(f"buffer_load_dwordx4 v[{106+4*i}:{109+4*i}], v{VB}, s[{S_A}:{S_A+3}], 0 offen offset:{(i>>1)*64+(i&1)*16}"); vm.issue(f"bias{i}")
    VB=6
    e("v_mov_b32 v6, v11")
    TB=[int(c,16) for c in str(opt.tb)]
    tbl(TB[0],vm)
    if opt.pst: st(86)
    e("v_and_b32 v13, 31, v2")
    e("v_mul_u32_u24 v13, 104, v13")
    e(f"s_lshl2_add_u32 s{sT+5}, s{sT+2}, {RING+4096}")
    e(f"v_add_u32 v13, s{sT+5}, v13")
    e("v_lshlrev_b32 v9, 1, v12")
    e(f"v_xor_b32 v9, s{sWAVE}, v9")
    e("v_lshl_add_u32 v24, v9, 13, v13")
    e("v_xor_b32 v9, 1, v9")
    e("v_lshl_add_u32 v25, v9, 13, v13")
    e("v_and_b32 v26, 31, v2")
    e("v_mul_u32_u24 v26, 104, v26")
    e(f"v_add_u32 v26, s{sRING}, v26")
    e("v_add_u32 v26, 4096, v26")
    e("v_bfe_u32 v9, v2, 2, 2")
    e("v_lshlrev_b32 v3, 7, v9")
    e("v_lshl_add_u32 v3, v12, 10, v3")
    e("v_lshrrev_b32 v9, 1, v9")
    e("v_lshl_add_u32 v3, v9, 6, v3")
    e("v_and_b32 v9, 1, v2")
    e("v_lshl_add_u32 v3, v9, 5, v3")
    e("v_bfe_u32 v9, v2, 1, 1")
    e("v_lshl_add_u32 v3, v9, 3, v3")
    e("v_and_b32 v9, 1, v4")
    e("v_lshl_add_u32 v3, v9, 4, v3")
    e(f"v_add_u32 v3, s{sRING}, v3")
    e("v_xor_b32 v4, 64, v3")
    e(f"v_add_u32 v14, s{sT+1}, v12")
    e("v_lshl_or_b32 v14, v14, 16, v14")
    e(f"s_mov_b32 s{sT+6}, 0x00070007")
    e(f"s_waitcnt vmcnt({vm.need('idx3')})")
    if opt.pst: st(88)
    def lds_inc(va,off):
        e("v_mov_b32 v0, 1")
        e("s_mov_b64 exec, 1")
        e(f"ds_add_u32 v{va}, v0 offset:{off}")
        e("s_mov_b64 exec, -1")
    e("s_barrier")
    if opt.pst: st(90)
    sWO=12
    def dma(j,pcs):
        for pc in pcs:
            if opt.now and j>=3:
                vm.ops.insert(0,f"w{j}_{pc}"); continue
            e(f"s_add_u32 m0, s{sRING}, {((j&1)*4+pc)*1024}")
            e(f"s_mov_b32 s{sWO}, {(128*j+8*pc)*3328}")
            e(f"buffer_load_dwordx4 v{vW}, s[{S_W}:{S_W+3}], s{sWO} offen lds"); vm.issue(f"w{j}_{pc}")
    BI=106
    RW=lambda t,j: 160+t*14+j
    RECX=104
    for j in range(0,12,2):
        for t in range(2):
            e(f"ds_read2_b32 v[{RW(t,j)}:{RW(t,j)+1}], v{24+t} offset0:{2*j} offset1:{2*j+2}")
    e("ds_read_b64 v[190:191], v26 offset:96")
    tbl(TB[1],vm)
    srd(S_WS,P_WS,WS_SIZE)
    srd(S_B,P_W2,3328)
    e("s_waitcnt lgkmcnt(0)")
    e("s_barrier")
    st(76)
    tbl(TB[2],vm)
    for j in range(13):
        if j==6: tbl(TB[3],vm)
        d=REC+2*j
        if j<12: e(f"v_lshl_or_b32 v{d}, v{RW(1,j)}, 16, v{RW(0,j)}")
        else:    e(f"v_lshl_or_b32 v{d}, v191, 16, v190")
        e(f"v_lshrrev_b32 v13, 1, v{d}")
        e(f"v_and_b32 v13, s{sT+6}, v13")
        e(f"v_lshl_or_b32 v{d}, v{d}, 3, v13")
        if j<12: e(f"v_mov_b32 v{d+1}, v{d}")
        if j:
            e(f"v_permlane32_swap_b32 v{d-2}, v{d-1}")
            e(f"v_xor_b32 v{d-2}, v14, v{d-2}"); e(f"v_xor_b32 v{d-1}, v14, v{d-1}")
    e("v_lshl_or_b32 v13, v12, 16, v12")
    e(f"v_xor_b32 v{RECX}, v13, v{RECX}")
    afr=lambda lt,ks: AF+8*lt+4*ks
    XF={0:80,1:88,2:afr(1,0),3:afr(2,0)}
    FX={0:[F0,F0+4,F0+8,F0+12],1:[8,12,40,44],2:[F0+16,F0+20,F0+24,F0+28],3:[F0,F0+4,F0+8,F0+12]}
    def adr(lt,j):
        e(f"v_lshlrev_b32_sdwa v{AD+2*lt}, 4, v{REC+2*j+(lt>>1)} dst_sel:DWORD dst_unused:UNUSED_PAD src0_sel:DWORD src1_sel:WORD_{lt&1}")
        e(f"v_xor_b32 v{AD+2*lt+1}, 32, v{AD+2*lt}")
    def Rop(lt,j):
        for ks in range(2):
            e(f"ds_read_b128 v[{afr(lt,ks)}:{afr(lt,ks)+3}], v{AD+2*lt+ks}"); lg.issue(f"R{lt}_{ks}_{j}")
    def adrX(c,a):
        e(f"v_lshlrev_b32_sdwa v{a}, 4, v{RECX} dst_sel:DWORD dst_unused:UNUSED_PAD src0_sel:DWORD src1_sel:WORD_{c>>1}")
        if c&1: e(f"v_xor_b32 v{a}, 64, v{a}")
        e(f"v_xor_b32 v{a+1}, 32, v{a}")
    def RX(c,a):
        for ks in range(2):
            e(f"ds_read_b128 v[{XF[c]+4*ks}:{XF[c]+4*ks+3}], v{a+ks}"); lg.issue(f"X{c}_{ks}")
    def Top(j,ks):
        for ct in range(2):
            for h4 in range(2):
                d=Fr(j,ks,ct)+2*h4
                e(f"ds_read_b64_tr_b16 v[{d}:{d+1}], v{vT0+ct} offset:{((j&1)*4+ks*2)*1024+h4*512}"); lg.issue(f"T{j}_{ks}_{ct}{h4}")
    def TX(c):
        for ks in range(2):
            for ct in range(2):
                for h4 in range(2):
                    d=FX[c][ks*2+ct]+2*h4
                    e(f"ds_read_b64_tr_b16 v[{d}:{d+1}], v{vT0+ct} offset:{c*8192+ks*2048+h4*512}"); lg.issue(f"TX{c}")
    for lt in range(4): adr(lt,0)
    if ST: e("s_waitcnt lgkmcnt(0)")
    e(f"s_waitcnt vmcnt({vm.need('w0_3')})")
    Top(0,0); Top(0,1)
    tbl(16-sum(TB),vm)
    dma(1,range(4))
    e("s_waitcnt lgkmcnt(0)")
    if not opt.d2late: dma(2,range(4))
    if opt.pst: st(92)
    e(f"s_waitcnt vmcnt({vm.need('tbl')})")
    st(78)
    e("s_barrier")
    st(80,True)
    if ST: e("s_memtime s[96:97]"); e("s_waitcnt lgkmcnt(0)")
    if opt.prio: e(f"s_setprio {opt.prio}")
    Rop(1,0); Rop(2,0); Rop(3,0); Rop(0,0)
    def group(lt,fa,xa,first,fills):
        for i,(ks,ct) in enumerate([(0,0),(0,1),(1,0),(1,1)]):
            c=f"v[{acc(lt,ct)}:{acc(lt,ct)+15}]"
            src="0" if (first and ks==0) else c
            e(f"v_mfma_f32_32x32x16_bf16 {c}, v[{fa[ks*2+ct]}:{fa[ks*2+ct]+3}], v[{xa+4*ks}:{xa+4*ks+3}], {src}")
            lastw[(lt,ct)]=cnt[0]
            for f in fills[i]: f()
    LT=[1,2,3,0]
    W2P=106; EV=122; VR=124; WA=125; RA1,RA2=5,6; sM=[0,sT+7,sT+8,13]
    def addrs():
        e(f"s_xor_b32 s{sT}, s{sWAVE}, 1")
        e(f"s_lshl_b32 s{sT}, s{sT}, 12")
        e(f"v_lshlrev_b32 v{RA1}, 4, v2")
        e(f"v_add_u32 v{WA}, s{sT}, v{RA1}")
        e(f"v_xor_b32 v{WA+1}, {3<<12}, v{WA}")
    def addrs2():
        e(f"v_xor_b32 v{WA+2}, {2<<12}, v{WA}")
        e(f"s_lshl_b32 s{sT}, s{sWAVE}, 12")
        e(f"v_add_u32 v{RA1}, s{sT}, v{RA1}")
    def addrs3(): pass
    SEL=96
    selops=[E("v_and_b32 v0, 31, v2"),E("v_lshrrev_b32 v105, 5, v2"),E("v_lshlrev_b32 v105, 2, v105"),E("v_sub_u32 v0, v0, v105"),
            E("v_lshrrev_b32 v105, 1, v0"),E("v_and_b32 v105, 12, v105"),E("v_and_or_b32 v105, v0, 3, v105"),
            E("v_and_b32 v0, 0xffffffe4, v0"),E("v_cmp_eq_u32 vcc, 0, v0"),E("v_lshlrev_b32 v0, 4, v105"),E("v_and_b32 v0, 16, v0"),
            E(f"v_lshlrev_b32 v0, v0, s{sM[1]}"),E("v_cndmask_b32 v0, 0, v0, vcc"),E("v_lshrrev_b32 v105, 1, v105")]
    selops.insert(0,E(f"s_movk_i32 s{sM[1]}, 0x3f80"))
    for ms in ((0,1,2),(3,4,5),(6,7)):
        def f(ms=ms):
            for k,m in enumerate(ms): e(f"v_cmp_eq_u32 s[{sT+2*k}:{sT+2*k+1}], {m}, v105")
            if len(ms)<3: e("s_nop 0")
            for k,m in enumerate(ms): e(f"v_cndmask_b32 v{SEL+m}, 0, v0, s[{sT+2*k}:{sT+2*k+1}]")
        selops.append(f)
    def cv(lt,ct):
        a=acc(lt,ct)
        return [(lambda m=m: (hz((lt,ct),12),e(f"v_cvt_pk_bf16_f32 v{a+m}, v{a+2*m}, v{a+2*m+1}"))) for m in range(8)]
    def late1():
        e(f"s_lshl_b32 s{sT}, s{sCB}, 7")
        e(f"v_lshrrev_b32 v{VR}, 5, v2")
        e(f"v_lshl_add_u32 v{VR}, v{VR}, 5, s{sT}")
    def late2(i):
        e(f"buffer_load_dwordx4 v[{W2P+4*i}:{W2P+4*i+3}], v{VR}, s[{S_B}:{S_B+3}], 0 offen offset:{(i>>1)*64+(i&1)*16}"); vm.issue(f"w2_{i}")
    def late3():
        e(f"v_and_b32 v{VR}, 31, v2")
        e(f"s_lshl_b32 s{sT}, s{sRB}, 7")
        e(f"s_lshl_b32 s{sT+1}, s{sWAVE}, 5")
        e(f"s_add_u32 s{sT}, s{sT}, s{sT+1}")
        e(f"v_add_lshl_u32 v{VR}, v{VR}, s{sT}, 3")
    def late4():
        e(f"s_mov_b32 s{sT+2}, {EPOCH}")
        e(f"buffer_load_dwordx2 v[{EV}:{EV+1}], v{VR}, s[{S_WS}:{S_WS+3}], s{sT+2} offen"); vm.issue("ev")
    def badd(ct,t):
        src=BI+ct*8+(t>>1)
        if t&1: e(f"v_and_b32 v0, 0xffff0000, v{src}")
        else:   e(f"v_lshlrev_b32 v0, 16, v{src}")
        hz((0,ct),12)
        e(f"v_add_f32 v{acc(0,ct)+t}, v{acc(0,ct)+t}, v0")
    def wv(n): return lambda n=n: (e(f"s_waitcnt vmcnt({vm.need(n)})") if vm.pending(n) else None)
    def wl(n): return lambda n=n: (e(f"s_waitcnt lgkmcnt({lg.need(n)})") if lg.pending(n) else None)
    ITS={1:76,2:78,3:80,5:82,7:84,9:86,10:88,11:90}
    for j in range(12):
        cm(f"---- iteration {j} ----")
        if opt.its==1 and j in ITS: e(f"s_memtime s[{ITS[j]}:{ITS[j]+1}]")
        if opt.its and j==11: opt.pst=1
        for g,lt in enumerate(LT):
            if j==11 and g==3: break
            needs=[f"R{lt}_1_{j}"]+([f"T{j}_1_11"] if g==0 else [])
            if lg.pending(*needs): e(f"s_waitcnt lgkmcnt({lg.need(*needs)})")
            if opt.its==2 and j<2: e(f"s_memtime s[{76+2*(4*j+g)}:{77+2*(4*j+g)}]")
            if opt.its==3 and j>=10: e(f"s_memtime s[{76+2*(4*(j-10)+g)}:{77+2*(4*(j-10)+g)}]")
            fills=[[],[],[],[]]
            if j==0:
                if g==0:
                    if opt.d2late:
                        for i in range(4): fills[i].append(lambda i=i: dma(2,[i]))
                if g==1: fills[0].append(bias_loads)
                if g>=2: fills[0]+= [wv(f'w1_{2*(g-2)+1}'),lambda g=g: Top(1,g-2)]
            elif j<11:
                if j==1 and g<2:
                    fills[1].append(lambda g=g: dma(3,[2*g])); fills[2].append(lambda g=g: dma(3,[2*g+1]))
                if g<2: fills[0]+= [wv(f'w{j+1}_{2*g+1}'),lambda j=j,g=g: Top(j+1,g)]
                elif j+3<13:
                    fills[0]+= [wl(f'T{j+1}_{g-2}_11'),lambda j=j,g=g: dma(j+3,[2*(g-2)])]
                    fills[1].append(lambda j=j,g=g: dma(j+3,[2*(g-2)+1]))
            if j<11:
                fills[2].append(lambda j=j,lt=lt: adr(lt,j+1))
                fills[3].append(lambda j=j,lt=lt: Rop(lt,j+1))
            if j in (3,4,5,6) and g in (1,2):
                ct=(j-3)>>1; t0=((j-3)&1)*8+(g-1)*4
                if g==1 and j==3: fills[1].append(wv('bias3'))
                for i,ts in ((1,(0,1)),(2,(2,)),(3 if g==1 else 2,(3,))):
                    fills[i]+= [(lambda t=t0+t,ct=ct: badd(ct,t)) for t in ts]
            if j==9 and g==0: fills[1].append(addrs)
            if j==9 and g==1: fills[1].append(addrs2); fills[2].append(addrs3)
            if j==9 and g==3:
                fills[2].append(E("v_mov_b32 v0, 1")); fills[3].append(lambda: (e(f"ds_write_b32 v7, v0 offset:{F_IT9}"),lg.issue("it9")))
            if j==10 and g==0: fills[1].append(late1); fills[2].append(lambda: late2(0))
            if j==10 and g==1: fills[1].append(lambda: late2(1)); fills[2].append(lambda: late2(2))
            if j==10 and g==2: fills[2].append(lambda: late2(3))
            if j==10 and g==3: fills[0].append(late3); fills[1].append(late4)
            if j==11 and g==0: fills[1]+=selops[:5]; fills[2]+=selops[5:8]; fills[3]+=selops[8:12]
            if j==11 and g==1: fills[0]+=selops[12:15]; fills[1]+=selops[15:16]; fills[2]+=selops[17:18]; fills[3]+=selops[16:17]
            if j==11 and g==2: fills[0]+=cv(1,0)[:6]; fills[1]+=cv(1,0)[6:]+cv(1,1)[:4]; fills[2]+=cv(1,1)[4:]+cv(2,0)[:2]; fills[3]+=cv(2,0)[2:]
            if j==10 and g==2:
                fills[3]+= [wl('T11_1_11'),E("v_mov_b32 v0, 1"),lambda: (e("s_mov_b64 exec, 1"),e(f"ds_add_u32 v7, v0 offset:{F_S1}"),lg.issue("s1"),e("s_mov_b64 exec, -1"))]
            if j==10 and g==2: fills[0].append(lambda: adrX(0,AD+2)); fills[1].append(lambda: RX(0,AD+2))
            if j==11 and g==0:
                fills[0].append(lambda: (adrX(1,AD),RX(1,AD))); fills[2].append(lambda: adrX(2,AD+2)); fills[3].append(lambda: RX(2,AD+2))
            if j==11 and g==1:
                fills[0].append(lambda: (e(f"s_lshl_b32 s{sT}, s{sWAVE}, 13"),e(f"v_subrev_u32 v{vT0}, s{sT}, v{vT0}"),e(f"v_subrev_u32 v{vT1}, s{sT}, v{vT1}")))
                fills[2].append(lambda: adrX(3,AD+4)); fills[3].append(lambda: RX(3,AD+4))
            group(lt,[Fr(j,ks,ct) for ks in range(2) for ct in range(2)],afr(lt,0),j==0,fills)
    cm("---- last K chunk set: own tile only, partial tiles go out meanwhile ----")
    e(f"s_waitcnt vmcnt({vm.need('w12_3')}) lgkmcnt(0)"); lg.done=len(lg.ops)
    if opt.its: e("s_memtime s[92:93]")
    if not opt.pst: st(82)
    e("s_barrier")
    if not opt.pst: st(84)
    TX(0); TX(1)
    def inc(off,nm):
        def f():
            e("s_mov_b64 exec, 1")
            e(f"ds_add_u32 v7, v0 offset:{off}"); lg.issue(nm)
            e("s_mov_b64 exec, -1")
        return f
    def w1(lt,ct,h): return lambda: (e(f"ds_write_b128 v{WA+lt-1}, v[{acc(lt,ct)+4*h}:{acc(lt,ct)+4*h+3}] offset:{(lt-1)*16384+(ct*2+h)*1024}"),lg.issue("W"))
    W2F=[acc(1,0)+8+t for t in range(8)]+[acc(1,1)+8+t for t in range(8)]+[acc(2,0)+8+t for t in range(8)]+[acc(2,1)+8+t for t in range(8)]
    unp=[]
    for t in range(32):
        src=W2P+(t>>1)
        unp.append(E(f"v_and_b32 v{W2F[t]}, 0xffff0000, v{src}" if t&1 else f"v_lshlrev_b32 v{W2F[t]}, 16, v{src}"))
    e("v_mov_b32 v0, 1")
    W=lambda lt,ct: [w1(lt,ct,0),w1(lt,ct,1)]
    gaps=[W(1,0)[:1]+cv(2,1)[:4], W(1,0)[1:]+cv(2,1)[4:], W(1,1)[:1]+cv(3,0)[:4], [],
          W(1,1)[1:]+cv(3,0)[4:], W(2,0)[:1]+cv(3,1)[:4], W(2,0)[1:]+cv(3,1)[4:], [],
          W(2,1)[:1]+[E("s_waitcnt vmcnt(0)")]+unp[:4], W(2,1)[1:]+unp[4:8], W(3,0)[:1]+unp[8:12], W(3,0)[1:]+unp[12:16],
          W(3,1)[:1]+unp[16:20], W(3,1)[1:]+[inc(F_RED,"inc")], unp[20:25], unp[25:30],
          unp[30:], [], [], []]
    vC1=105; S0=104; S1=F0+31
    gaps[17]=[E(f"s_mov_b32 s{sT+2}, {f2u(C2)}"),E(f"v_mov_b32 v{vC1}, {f2u(C1)}"),E(f"v_mov_b32 v{S0}, 0"),E(f"v_mov_b32 v{S1}, 0")]
    for gi in range(5):
        c=gi-1
        fills=[list(x) for x in gaps[4*gi:4*gi+4]]
        if gi>0 and lg.pending(f"TX{c}"): e(f"s_waitcnt lgkmcnt({lg.need(f'TX{c}')})")
        if gi in (0,1): fills[3].append(lambda c=gi+2: TX(c))
        if gi==0: group(0,[Fr(11,ks,ct) for ks in range(2) for ct in range(2)],afr(0,0),False,fills)
        else: group(0,FX[c],XF[c],False,fills)
    if not opt.pst: st(86)
    if ST: e("s_memtime s[98:99]")
    lds_spin("L_red",7,F0+20,F_RED,4)
    if not opt.pst: st(88,True)
    if ST and opt.gcyc: e("s_memtime s[96:97]"); e("s_waitcnt lgkmcnt(0)")
    lg=Q(15)
    adds=[]
    for ct in range(2):
        for u in (1,2,3):
            for h in range(2):
                r=acc(u,ct)+4*h
                e(f"ds_read_b128 v[{r}:{r+3}], v{RA1} offset:{(u-1)*16384+(ct*2+h)*1024}"); lg.issue(f"p{ct}{u}{h}")
                def add(ct=ct,u=u,h=h,r=r):
                    if lg.pending(f"p{ct}{u}{h}"): e(f"s_waitcnt lgkmcnt({lg.need(f'p{ct}{u}{h}')})")
                    c=f"v[{acc(0,ct)}:{acc(0,ct)+15}]"
                    e(f"v_mfma_f32_32x32x16_bf16 {c}, v[{SEL+4*h}:{SEL+4*h+3}], v[{r}:{r+3}], {c}"); lastw[(0,ct)]=cnt[0]
                adds.append(add)
    for f in adds[:7]: f()
    adds=adds[7:]
    T=F0
    for q in range(8):
        a=ACC+4*q
        if q==opt.gq and opt.gateC==3: inc(F_G,"g")()
        def A():
            if adds: adds.pop(0)()
        hz((0,q>>2),12)
        for r in range(4): e(f"v_mul_f32 v{T+r}, v{a+r}, v{a+r}")
        for r in range(4): e(f"v_fma_f32 v{T+r}, v{T+r}, s{sT+2}, v{vC1}")
        A()
        for r in range(4): e(f"v_mul_f32 v{T+r}, v{T+r}, v{a+r}")
        for r in range(4): e(f"v_exp_f32 v{T+r}, v{T+r}")
        A()
        for r in range(4): e(f"v_mul_f32 v{a+r}, v{a+r}, v{W2F[4*q+r]}")
        for r in range(4): e(f"v_add_f32 v{T+r}, 1.0, v{T+r}")
        for r in range(4): e(f"v_rcp_f32 v{T+r}, v{T+r}")
        if adds: A()
        else: e("s_nop 0")
        for r in range(4): e(f"v_fmac_f32 v{S0 if r&1==0 else S1}, v{a+r}, v{T+r}")
    e(f"v_add_f32 v{S0}, v{S0}, v{S1}")
    e(f"v_mov_b32 v{S1}, v{S0}")
    e(f"s_movk_i32 s{sT}, 0xff")
    e(f"v_add_u32 v{EV}, 1, v{EV}")
    e(f"v_permlane32_swap_b32 v{S0}, v{S1}")
    e(f"s_lshl_b32 s{sT+1}, s{sCB}, 13")
    e(f"v_add_f32 v{S0}, v{S0}, v{S1}")
    e(f"s_add_u32 s{sT+1}, s{sT+1}, {GRAN}")
    e(f"v_bfi_b32 v{EV+1}, s{sT}, v{EV+1}, v{S0}")
    e(f"s_mov_b32 exec_hi, 0")
    e(f"buffer_store_dwordx2 v[{EV}:{EV+1}], v{VR}, s[{S_WS}:{S_WS+3}], s{sT+1} offen sc0 sc1")
    if ST:
        if opt.gcyc: e("s_memtime s[98:99]")
        if not opt.pst: st(90); e("s_waitcnt vmcnt(0)"); st(92,True)
        e("s_waitcnt lgkmcnt(0)"); e("s_sub_u32 s98, s98, s96")
        if opt.its:
            for r in range(76,94,2):
                e(f"s_sub_u32 s{r}, s{r}, s96"); e(f"s_mul_i32 s{r}, s{r}, 100"); e(f"s_add_u32 s{r}, s{r}, s10")
        dump([10,76,78,80,82,84,86,88,90,92,98])
    e("s_endpgm")

    def late_sloads():
        e(f"s_lshl_b32 s{sT+8}, s{sROW}, 3")
        e(f"s_add_u32 s{sT+8}, s{sT+8}, {EPOCH}")
        e(f"s_load_dwordx2 s[{sE}:{sE+1}], s[{P_WS}:{P_WS+1}], s{sT+8}")
        e(f"s_load_dword s9, s[{P_BO}:{P_BO+1}], 0")
    X=32
    def x0_addrs():
        e("v_and_b32 v3, 31, v2")
        e("v_lshlrev_b32 v4, 2, v3")
        for r in range(26): e(f"v_readlane_b32 s{76+r}, v29, {r}")
        e("s_mov_b32 exec_hi, 0")
        for r in range(26): e(f"v_xor_b32 v{X+r}, s{76+r}, v4")
        e("s_mov_b64 exec, -1")
        e("s_mov_b32 exec_lo, 0")
        for r in range(26): e(f"v_xor_b32 v{X+r}, s{76+(r+1)%26}, v4")
        e("s_mov_b64 exec, -1")
    lab("L_help_pro")
    e(f"s_mov_b32 m0, s{sTM}")
    e(f"s_mov_b32 s{sT+3}, {opt.nt0-1}")
    e("s_waitcnt lgkmcnt(0)")
    e(f"s_mov_b64 s[{S_IDX}:{S_IDX+1}], s[{P_IDX}:{P_IDX+1}]")
    e(f"s_mov_b64 s[{S_TBL}:{S_TBL+1}], s[{P_TBL}:{P_TBL+1}]")
    def tloop(name):
        lab(name)
        e(f"buffer_load_dwordx4 v5, s[{S_TBL}:{S_TBL+3}], m0 offen lds")
        e("s_add_u32 m0, m0, 8192")
        e(f"s_cmp_ge_u32 m0, s{sWR1}")
        e(f"s_cselect_b32 s{sT+5}, s{sWR2}, 0")
        e(f"s_sub_u32 m0, m0, s{sT+5}")
        e(f"s_sub_u32 s{sT+3}, s{sT+3}, 1")
        e(f"s_cbranch_scc0 {name}")
    rowidx_load()
    tloop("L_tloop")
    e(f"s_mov_b32 s{sT+3}, {16-opt.nt0-1}")
    e("s_barrier")
    tloop("L_tloop2")
    e("s_barrier")
    e("s_waitcnt vmcnt(16)")
    if opt.xlds:
        e("v_lshlrev_b32 v8, 3, v29"); e("v_and_b32 v8, 0x70, v8"); e("v_lshl_or_b32 v29, v29, 7, v8")
    else: e("v_lshlrev_b32 v29, 7, v29")
    x0_addrs()
    e("s_waitcnt vmcnt(0)")
    e("s_barrier")
    if opt.xsl: e(f"s_sleep {opt.xsl}")
    if opt.xlds:
        for r in range(26):
            e(f"ds_read_b32 v{X+r}, v{X+r}")
            if opt.xgap and r%opt.xgap==opt.xgap-1: e("s_sleep 1")
        e("s_branch L_help_main")
    lab("L_help_x0")
    for r in range(26):
        e(f"buffer_load_dword v{X+r}, v{X+r}, s[{S_TBL}:{S_TBL+3}], 0 offen")
    lab("L_help_main")
    srd(S_WS,P_WS,WS_SIZE); srd(S_A,P_DBG,256); srd(S_B,P_OUT,2048)
    Z0=8
    ZE=lambda s: Z0+4*s
    ZO=lambda s: Z0+88+4*s
    LE=lambda k: Z0+176+4*k
    LO=lambda k: Z0+184+4*k
    R=200; MT=252
    e("v_lshrrev_b32 v5, 2, v3")
    e("v_mul_u32_u24 v5, 5888, v5")
    e("v_and_b32 v6, 3, v2")
    e("v_lshl_add_u32 v5, v6, 4, v5")
    e("v_lshrrev_b32 v6, 5, v2")
    e("v_lshl_add_u32 v5, v6, 6, v5")
    e("v_mov_b32 v7, 0x7fff0000")
    e("v_cmp_gt_u32 vcc, 26, v3")
    e("v_lshlrev_b32 v6, 13, v2")
    e(f"s_lshl_b32 s{sT}, s{sROW}, 3")
    e("v_cndmask_b32 v5, v7, v5, vcc")
    e(f"s_add_u32 s{sT}, s{sT}, {GRAN}")
    e(f"v_add_u32 v6, s{sT}, v6")
    e("v_cmp_gt_u32 vcc, 26, v2")
    e("v_lshlrev_b32 v1, 4, v2")
    e(f"v_add_u32 v1, 97280, v1")
    e("v_cndmask_b32 v6, v7, v6, vcc")
    e(f"v_mov_b32 v7, {FLAGS}")
    e("s_waitcnt vmcnt(0) lgkmcnt(0)")
    late_sloads()
    st(76)
    for r in range(26):
        e(f"v_lshlrev_b32 v{R+2*r}, 16, v{X+r}")
        e(f"v_and_b32 v{R+2*r+1}, 0xffff0000, v{X+r}")
    def zstep(s):
        if opt.noz: return
        for m in range(4):
            (a1,a2),(b1,b2)=pair_of(8*s+2*m),pair_of(8*s+2*m+1)
            e(f"v_mul_f32 v{MT}, v{R+2*a1}, v{R+2*a2}")
            e(f"v_mul_f32 v{MT+2}, v{R+2*b1}, v{R+2*b2}")
            e(f"v_mul_f32 v{MT+1}, v{R+2*a1+1}, v{R+2*a2+1}")
            e(f"v_mul_f32 v{MT+3}, v{R+2*b1+1}, v{R+2*b2+1}")
            e(f"v_cvt_pk_bf16_f32 v{ZE(s)+m}, v{MT}, v{MT+2}")
            e(f"v_cvt_pk_bf16_f32 v{ZO(s)+m}, v{MT+1}, v{MT+3}")
    def zlin():
        for k in range(2):
            for m2 in range(4):
                m=k*8+2*m2
                for tl,d in ((0,LE(k)+m2),(1,LO(k)+m2)):
                    if m+1<=12: e(f"v_cvt_pk_bf16_f32 v{d}, v{R+4*m+tl}, v{R+4*(m+1)+tl}")
                    elif m==12: e(f"v_cvt_pk_bf16_f32 v{d}, v{R+4*m+tl}, 1.0")
                    else: e(f"v_mov_b32 v{d}, 0")
    SC=" sc1" if opt.csc else ""
    zlin()
    for s in range(opt.zsplit): zstep(s)
    st(78)
    lds_spin("L_it9",7,4,F_IT9,1,sleep=4)
    e(f"v_lshlrev_b32 v0, 2, v2")
    e(f"buffer_load_dword v4, v0, s[{S_A}:{S_A+3}], 0 offen sc1")
    for s in range(opt.zsplit,opt.zmid): zstep(s)
    e(f"s_mov_b32 s{sT+4}, {opt.bound}")
    e(f"s_mov_b32 s{sT+2}, 0x7f")
    e(f"s_mov_b32 s{sT+3}, 0")
    lab("L_poll1")
    e("s_waitcnt vmcnt(0)")
    e("v_cmp_ne_u32 vcc, 0, v4")
    e(f"s_and_b64 vcc, vcc, s[{sT+2}:{sT+3}]")
    e(f"s_cmp_eq_u64 vcc, s[{sT+2}:{sT+3}]")
    e("s_cbranch_scc1 L_polled")
    e(f"s_sleep {opt.psleep}")
    e(f"buffer_load_dword v4, v0, s[{S_A}:{S_A+3}], 0 offen sc1")
    e(f"s_sub_u32 s{sT+4}, s{sT+4}, 1")
    e("s_cbranch_scc0 L_poll1")
    lab("L_polled")
    if opt.inv: e("buffer_inv sc1")
    st(80)
    lds_spin("L_s1",7,0,F_S1,4,sleep=2)
    e(f"s_sub_u32 s{sT}, s{sWAVE}, 4")
    e(f"s_lshl_b32 s{sT+1}, s{sT}, 13")
    e(f"s_add_u32 m0, s{sT+1}, {RING+4096}")
    e(f"s_lshl_b32 s{sT}, s{sT}, 9")
    e(f"s_sub_u32 s{sT}, s{sT}, 256")
    for t in range(4):
        if t<2:
            e(f"s_cmp_eq_u32 s{sWAVE}, 4")
            e(f"s_cselect_b32 s{sT+1}, {(44+t)*128}, s{sT}")
        else: e(f"s_mov_b32 s{sT+1}, s{sT}")
        e(f"buffer_load_dwordx4 v5, s[{S_WS}:{S_WS+3}], s{sT+1} offen sc1 lds")
        if t<3:
            e(f"s_add_u32 m0, m0, 1024")
            e(f"s_add_u32 s{sT}, s{sT}, 128")
    for s in range(opt.zmid,opt.zbar): zstep(s)
    st(82)
    e("s_barrier")
    for s in range(opt.zbar,22): zstep(s)
    def hinc(off):
        e("v_mov_b32 v0, 1")
        e("s_mov_b64 exec, 1")
        e("s_waitcnt vmcnt(0)")
        e(f"ds_add_u32 v7, v0 offset:{off}")
        e("s_mov_b64 exec, -1")
    CWB=97280
    def dmaB():
        e(f"s_sub_u32 s{sT}, s{sWAVE}, 4")
        e(f"s_lshl_b32 s{sT+1}, s{sT}, 10")
        e(f"s_add_u32 m0, s{sT+1}, {CWB}")
        e(f"s_lshl_b32 s{sT}, s{sT}, 7")
        e(f"s_add_u32 s{sT}, s{sT}, {14*128}")
        for t in range(8):
            if t==7:
                e(f"s_cmp_ge_u32 s{sWAVE}, 6")
                e("s_cbranch_scc1 L_dma_done")
            e(f"buffer_load_dwordx4 v5, s[{S_WS}:{S_WS+3}], s{sT} offen sc1 lds")
            if t<7:
                e(f"s_add_u32 m0, m0, 4096")
                e(f"s_add_u32 s{sT}, s{sT}, 512")
        lab("L_dma_done")
    hinc(F_CW)
    if opt.bstep<0:
        if opt.bgate: lds_spin("L_wred",7,0,F_RED,4,sleep=1)
        dmaB()
    st(84)
    AUE,AUO=200,216; RG=232
    AXE=LE(0); AXO=ZE(0)
    vm=Q(63); lg=Q(15)
    seq=[('eo',22),('eo',23)]+[('e',s) for s in range(4)]+[('o',s) for s in range(4)]+[('eo',s) for s in range(4,22)]
    free=[RG+4*k for k in range(6)]
    reg={}
    lL=[]; lG=[]
    for i,(tl,s) in enumerate(seq):
        for k,fi in ([('x',2*s),('u',2*s+1)] if s<22 else [('u',44+s-22)]): lL.append((i,k,fi))
    cur=[0]; okB=[False]
    def ld():
        if not free or not lL or lL[0][0]>cur[0]+opt.look: return False
        i,k,fi=lL[0]
        if 14<=fi<44 and not okB[0]: return False
        lL.pop(0); r=free.pop(0); reg[(i,k)]=r
        if 14<=fi<44: off=(fi-14)*1024
        else:
            p=fi+2 if fi<14 else fi-44
            off=RING+4096-CWB+(p>>2)*8192+(p&3)*1024
        e(f"ds_read_b128 v[{r}:{r+3}], v1 offset:{off}"); lg.issue(f"{k}{i}")
        return True
    if opt.gateC: lds_spin("L_gC",7,0,{1:F_RED,3:F_G}[opt.gateC],4,sleep=1)
    lds_spin("L_cw",7,0,F_CW,4)
    st(88,True)
    if ST: e("s_memtime s[96:97]"); e("s_waitcnt lgkmcnt(0)")
    while ld(): pass
    first={'xe':1,'xo':1,'ue':1,'uo':1}
    GV=RG; rel=[]
    for i,(tl,s) in enumerate(seq):
        cur[0]=i
        if i==opt.bstep:
            if opt.bgate: lds_spin("L_wred",7,0,F_RED,4,sleep=1); lg.done=len(lg.ops)
            dmaB()
        if i==opt.bstep2: hinc(F_CW2); lg.issue("cw2")
        if i==12:
            lds_spin("L_cw2",7,0,F_CW2,4); lg.done=len(lg.ops); okB[0]=True
            while ld(): pass
        q,nm=(lg,"lgkmcnt") if f'u{i}' in lg.ops else (vm,"vmcnt")
        if q.pending(f'u{i}'): e(f"s_waitcnt {nm}({q.need(f'u{i}')})")
        n=0
        for t in tl:
            z=(ZE if t=='e' else ZO)(s) if s<22 else (LE if t=='e' else LO)(s-22)
            for k,a in (('x',AXE if t=='e' else AXO),('u',AUE if t=='e' else AUO)):
                if (i,k) not in reg: continue
                c=f"v[{a}:{a+15}]"; r=reg[(i,k)]
                e(f"v_mfma_f32_32x32x16_bf16 {c}, v[{r}:{r+3}], v[{z}:{z+3}], {0 if first[k+t] else c}"); first[k+t]=0
                n+=1
                if n==1: free+=rel; rel=[]
                ld()
                if len(tl)==1: ld()
            if s<22 and not (t=='e' and s<4): rel.append(z)
        rel+= [reg[(i,k)] for k in 'xu' if (i,k) in reg]
        if i==len(seq)-3:
            assert not lL and not lG
            GV=free.pop(0)
            e(f"buffer_load_dwordx2 v[{GV}:{GV+1}], v6, s[{S_WS}:{S_WS+3}], 0 offen sc1"); vm.issue("gv")
    e(f"s_add_u32 s{sE}, s{sE}, 1")
    e(f"s_and_b32 s{sE+1}, s{sE+1}, 0xff")
    e("s_nop 9")
    V=free.pop(0); V2=V+1
    e(f"v_mul_f32 v{V}, v{AXE}, v{AUE}")
    e(f"v_mul_f32 v{V2}, v{AXO}, v{AUO}")
    for t in range(1,14):
        e(f"v_fmac_f32 v{V}, v{AXE+t}, v{AUE+t}")
        e(f"v_fmac_f32 v{V2}, v{AXO+t}, v{AUO+t}")
    e(f"v_add_f32 v{V}, v{V}, v{V2}")
    st(90)
    if ST: e("s_memtime s[98:99]")
    e("s_mov_b32 exec_lo, 0x3ffffff")
    e("s_mov_b32 exec_hi, 0")
    e(f"s_mov_b32 s{sT+4}, {opt.bound}")
    G2=GV+2
    def chk(g,lbl):
        e(f"v_and_b32 v{V2}, 0xff, v{g+1}")
        e(f"v_cmp_eq_u32 vcc, s{sE}, v{g}")
        e(f"v_cmp_eq_u32 s[{sT}:{sT+1}], s{sE+1}, v{V2}")
        e(f"v_and_b32 v{V2}, 0xffffff00, v{g+1}")
        e(f"s_and_b64 vcc, vcc, s[{sT}:{sT+1}]")
        e("s_cmp_eq_u64 vcc, exec")
        e(f"s_cbranch_scc1 L_got")
    lab("L_poll2")
    e(f"buffer_load_dwordx2 v[{G2}:{G2+1}], v6, s[{S_WS}:{S_WS+3}], 0 offen sc1")
    e("s_waitcnt vmcnt(1)")
    chk(GV,0)
    e(f"buffer_load_dwordx2 v[{GV}:{GV+1}], v6, s[{S_WS}:{S_WS+3}], 0 offen sc1")
    e("s_waitcnt vmcnt(1)")
    chk(G2,1)
    e(f"s_sub_u32 s{sT+4}, s{sT+4}, 1")
    e("s_cbranch_scc0 L_poll2")
    lab("L_got")
    e(f"v_add_f32 v{V}, v{V}, v{V2}")
    e("s_mov_b64 exec, -1")
    st(92)
    for dpp in ["quad_perm:[1,0,3,2] row_mask:0xf bank_mask:0xf","quad_perm:[2,3,0,1] row_mask:0xf bank_mask:0xf",
                "row_half_mirror row_mask:0xf bank_mask:0xf","row_mirror row_mask:0xf bank_mask:0xf",
                "row_bcast:15 row_mask:0xa bank_mask:0xf","row_bcast:31 row_mask:0xc bank_mask:0xf"]:
        e("s_nop 1")
        e(f"v_add_f32_dpp v{V}, v{V}, v{V} {dpp}")
    e("s_lshl_b32 s9, s9, 16")
    e(f"v_add_f32 v{V}, s9, v{V}")
    e(f"v_cvt_pk_bf16_f32 v{V}, v{V}, v{V}")
    e(f"s_lshl_b32 s{sT}, s{sROW}, 1")
    e(f"s_lshl_b32 s{sT+1}, s{sROW}, 3")
    e(f"s_add_u32 s{sT+1}, s{sT+1}, {EPOCH}")
    e(f"v_mov_b32 v{V2}, s{sE}")
    e("s_mov_b32 exec_lo, 0")
    e("s_mov_b32 exec_hi, 0x80000000")
    e(f"buffer_store_short v{V}, off, s[{S_B}:{S_B+3}], s{sT}")
    e(f"buffer_store_dword v{V2}, off, s[{S_WS}:{S_WS+3}], s{sT+1}")
    if ST:
        e("s_waitcnt vmcnt(0)"); st(94,True); e("s_sub_u32 s98, s98, s96")
        dump([10,76,78,80,82,84,86,88,90,92,94,98],0,1)
    e("s_endpgm")

    lab("L_aux")
    if opt.cpf:
        e(f"s_getpc_b64 s[{S_IDX}:{S_IDX+1}]")
        lab("L_pc")
        e(f"s_sub_u32 s{S_IDX}, s{S_IDX}, L_pc-{KN}")
        e(f"s_subb_u32 s{S_IDX+1}, s{S_IDX+1}, 0")
        e(f"s_mov_b32 s{S_IDX+2}, L_end-{KN}")
        e(f"s_mov_b32 s{S_IDX+3}, 0x20000")
        e("v_lshlrev_b32 v3, 7, v0")
        e(f"buffer_load_dword v255, v3, s[{S_IDX}:{S_IDX+3}], 0 offen")
    e(f"s_lshl1_add_u32 s{sT+1}, s{sXCD}, s{sSLOT}")
    e(f"s_sub_u32 s{sT+1}, s{sT+1}, 26")
    e(f"s_cmp_ge_u32 s{sSLOT}, 28")
    e("s_cbranch_scc1 L_prefetch")
    e(f"s_cmp_ge_u32 s{sT+1}, 7")
    e("s_cbranch_scc1 L_prefetch")
    cm("---- CIN weight folding: rows i = 4*pidx + (wave&3) ----")
    S_C=S_W; S_O=S_B; sI=6
    e(f"s_and_b32 s{sT}, s{sWAVE}, 3")
    e(f"s_lshl2_add_u32 s{sI}, s{sT+1}, s{sT}")
    M=16
    e("v_lshlrev_b32 v3, 2, v0")
    e("v_mov_b32 v7, 0x7fff0000")
    e(f"s_movk_i32 s{sT+1}, 338")
    e(f"v_cmp_gt_u32 vcc, s{sT+1}, v0")
    e("v_lshrrev_b32 v4, 1, v2")
    e("v_and_b32 v5, 1, v2")
    e("v_cndmask_b32 v3, v7, v3, vcc")
    e("v_lshlrev_b32 v4, 3, v4")
    e("s_waitcnt lgkmcnt(0)")
    e(f"s_load_dwordx16 s[76:91], s[{P_WOUT}:{P_WOUT+1}], 104")
    srd(S_C,P_CIN,105456)
    for gg in range(26):
        if gg%3==0: e(f"s_mov_b32 s{sT+2}, {2*35152+gg*1352}")
        e(f"buffer_load_dword v{M+gg}, v3, s[{S_C}:{S_C+3}], s{sT+2} offen offset:{(gg%3)*1352}")
    PP=44; QQ=52
    def slots():
        for ee in range(8):
            e(f"v_add_u32 v8, {ee}, v4")
            e("v_mul_u32_u24 v9, 5042, v8")
            e("v_lshrrev_b32 v9, 16, v9")
            e("v_mul_u32_u24 v10, 13, v9")
            e("v_sub_u32 v10, v8, v10")
            e(f"v_lshl_add_u32 v{PP+ee}, v10, 1, v5")
            e(f"v_add_u32 v{QQ+ee}, v{PP+ee}, v9")
            e(f"v_subrev_u32 v10, 26, v{QQ+ee}")
            e(f"v_min_u32 v{QQ+ee}, v{QQ+ee}, v10")
    def m3(later):
        e("v_mul_u32_u24 v8, 5042, v0")
        e("v_lshrrev_b32 v8, 16, v8")
        e("v_mul_u32_u24 v9, 13, v8")
        e("v_sub_u32 v9, v0, v9")
        e("v_lshlrev_b32 v9, 7, v9")
        e("v_lshl_add_u32 v96, v8, 1, v9")
        e("s_waitcnt lgkmcnt(0)")
        st(92)
        for gg in range(26):
            sreg=76+(gg>>1)
            if gg&1: e(f"s_and_b32 s{sT+4+(gg&1)}, s{sreg}, 0xffff0000")
            else:    e(f"s_lshl_b32 s{sT+4+(gg&1)}, s{sreg}, 16")
            if gg%4==0: e(f"s_waitcnt vmcnt({later+25-min(gg+3,25)})")
            e(f"v_lshlrev_b32 v8, 16, v{M+gg}")
            e(f"v_and_b32 v9, 0xffff0000, v{M+gg}")
            if gg==0:
                e(f"v_mul_f32 v10, s{sT+4}, v8"); e(f"v_mul_f32 v11, s{sT+4}, v9")
            else:
                e(f"v_fmac_f32 v10, s{sT+4+(gg&1)}, v8"); e(f"v_fmac_f32 v11, s{sT+4+(gg&1)}, v9")
        e("v_cvt_pk_bf16_f32 v10, v10, v11")
        e(f"s_movk_i32 s{sT+1}, 338")
        e(f"v_cmp_gt_u32 vcc, s{sT+1}, v0")
        e(f"s_and_saveexec_b64 s[{sT+2}:{sT+3}], vcc")
        e("ds_write_b16 v96, v10")
        e("ds_write_b16_d16_hi v96, v10 offset:64")
        e("s_mov_b64 exec, -1")
        st(94)
    def st_addr(cnt):
        e("v_lshlrev_b32 v6, 7, v6")
        e("v_lshl_add_u32 v6, v5, 6, v6")
        e(f"s_and_b32 s{sT+1}, s{sWAVE}, 3")
        e(f"s_lshl_b32 s{sT+1}, s{sT+1}, 4")
        e(f"s_add_u32 s{sT+1}, s{sT+1}, {STG}")
        e(f"v_add_u32 v6, s{sT+1}, v6")
        e(f"v_cmp_gt_u32 vcc, {cnt}, v2")
        e("v_mov_b32 v94, 1.0")
        e(f"v_mov_b32 v8, {STG+8192}")
        e("v_cndmask_b32 v6, v8, v6, vcc")
        e("v_cmp_gt_u32 vcc, 2, v2")
        e("s_nop 1")
        e("v_cndmask_b32 v95, v94, 0.5, vcc")
        e("v_cmp_gt_u32 vcc, 4, v2")
        e("s_nop 1")
        e("v_cndmask_b32 v94, v94, 0.5, vcc")
    e(f"s_cmp_ge_u32 s{sWAVE}, 4")
    e("s_cbranch_scc1 L_aux_w1")
    Pq=60; PR=76; RA=68; VV=16
    e("v_and_b32 v8, 31, v2")
    e("v_lshrrev_b32 v15, 5, v2")
    e(f"v_mul_u32_u24 v10, {8*1352}, v15")
    e("v_lshl_add_u32 v10, v8, 1, v10")
    e("v_cmp_gt_u32 vcc, 26, v8")
    e(f"s_mul_i32 s{sT+3}, s{sI}, 52")
    e(f"s_add_u32 s{sT+3}, s{sT+3}, 35152")
    e("v_cndmask_b32 v10, v7, v10, vcc")
    e("v_cmp_gt_u32 vcc, 32, v2")
    e("v_lshlrev_b32 v12, 2, v2")
    e("s_nop 0")
    e("v_cndmask_b32 v11, v7, v10, vcc")
    for s in range(2):
        for ee in range(8):
            h=16*s+ee
            if h%3==0 or ee==0:
                hb=h; e(f"s_add_u32 s{sT+2}, s{sT+3}, {h*1352}")
            va=11 if (s==1 and ee>=2) else 10
            e(f"buffer_load_ushort v{PR+s*8+ee}, v{va}, s[{S_C}:{S_C+3}], s{sT+2} offen offset:{(h-hb)*1352}")
    srd(S_O,P_WOUT,156)
    e(f"buffer_load_dword v13, v12, s[{S_O}:{S_O+3}], 0 offen offset:52")
    e(f"s_lshl_b32 s{sT+2}, s{sI}, 1")
    e(f"buffer_load_ushort v14, off, s[{S_O}:{S_O+3}], s{sT+2}")
    e("v_lshlrev_b32 v8, 6, v2")
    e("v_mov_b32 v9, 0")
    e("s_mov_b32 exec_lo, 0x7ffffff")
    e("s_mov_b32 exec_hi, 0")
    e("ds_write_b32 v8, v9 offset:52")
    e("ds_write_b32 v8, v9 offset:56")
    e("ds_write_b32 v8, v9 offset:60")
    e("s_mov_b64 exec, -1")
    e("v_and_b32 v8, 31, v2")
    e("v_lshlrev_b32 v93, 6, v8")
    e("v_lshl_add_u32 v93, v15, 4, v93")
    e(f"s_mul_i32 s{sT+1}, s{sWAVE}, 5120")
    e(f"s_add_u32 s{sT+1}, s{sT+1}, 4096")
    e("v_mul_u32_u24 v92, 144, v8")
    e("v_lshl_add_u32 v92, v15, 4, v92")
    e(f"v_add_u32 v92, s{sT+1}, v92")
    slots()
    e("v_cmp_lt_u32 vcc, 43, v2")
    e("v_subrev_u32 v10, 176, v4")
    e("v_mov_b32 v11, 26")
    for ee in range(8):
        e(f"v_add_u32 v8, {ee}, v10")
        e("v_lshl_add_u32 v8, v8, 1, v5")
        e(f"v_min_u32 v8, 31, v8")
        e(f"v_cndmask_b32 v8, v{QQ+ee}, v8, vcc")
        e(f"v_cndmask_b32 v9, v{PP+ee}, v11, vcc")
        e(f"v_mul_u32_u24 v9, 144, v9")
        e(f"v_lshl_add_u32 v9, v8, 2, v9")
        e(f"v_add_u32 v{RA+ee}, s{sT+1}, v9")
    e("v_lshrrev_b32 v8, 1, v2")
    e("v_lshl_add_u32 v6, v8, 1, 1")
    e("v_add_u32 v8, 22, v8")
    e("v_cndmask_b32 v6, v6, v8, vcc")
    st_addr(48)
    m3(18)
    e("s_mov_b32 exec_lo, 0x1fff")
    e("s_mov_b32 exec_hi, 0")
    e("s_waitcnt vmcnt(0)")
    e(f"ds_write_b32 v12, v13 offset:{26*64}")
    e("s_mov_b64 exec, -1")
    for r in range(8): e(f"v_lshl_or_b32 v{Pq+r}, v{PR+2*r+1}, 16, v{PR+2*r}")
    e("s_waitcnt lgkmcnt(0)")
    e("s_barrier")
    Qq=16; D=24
    e(f"ds_read_b128 v[{Qq}:{Qq+3}], v93")
    e(f"ds_read_b128 v[{Qq+4}:{Qq+7}], v93 offset:32")
    e("s_waitcnt lgkmcnt(0)")
    e(f"v_mfma_f32_32x32x16_bf16 v[{D}:{D+15}], v[{Pq}:{Pq+3}], v[{Qq}:{Qq+3}], 0")
    e(f"v_mfma_f32_32x32x16_bf16 v[{D}:{D+15}], v[{Pq+4}:{Pq+7}], v[{Qq+4}:{Qq+7}], v[{D}:{D+15}]")
    e(f"v_mfma_f32_32x32x16_bf16 v[{D}:{D+15}], v[{Qq}:{Qq+3}], v[{Pq}:{Pq+3}], v[{D}:{D+15}]")
    e(f"v_mfma_f32_32x32x16_bf16 v[{D}:{D+15}], v[{Qq+4}:{Qq+7}], v[{Pq+4}:{Pq+7}], v[{D}:{D+15}]")
    e("s_nop 11")
    for m in range(4):
        e(f"ds_write_b128 v92, v[{D+4*m}:{D+4*m+3}] offset:{m*32}")
    e("s_waitcnt lgkmcnt(0)")
    for ee in range(8): e(f"ds_read_b32 v{VV+ee}, v{RA+ee}")
    e("v_lshlrev_b32 v14, 16, v14")
    e(f"v_cmp_eq_u32 s[{sT}:{sT+1}], 46, v2")
    e(f"v_cmp_eq_u32 s[{sT+2}:{sT+3}], 47, v2")
    e("v_cmp_lt_u32 vcc, 45, v2")
    e("s_waitcnt lgkmcnt(0)")
    e(f"v_cndmask_b32 v{VV+5}, v{VV+5}, v14, s[{sT}:{sT+1}]")
    e(f"v_cndmask_b32 v{VV+5}, v{VV+5}, 0, s[{sT+2}:{sT+3}]")
    e(f"v_cndmask_b32 v{VV+6}, v{VV+6}, 0, vcc")
    e(f"v_cndmask_b32 v{VV+7}, v{VV+7}, 0, vcc")
    e("s_branch L_aux_pack")
    lab("L_aux_w1")
    GA=60; GB=68
    e(f"s_mul_i32 s{sT+3}, s{sI}, 1352")
    e(f"s_lshl_b32 s{sT+6}, s{sWAVE}, 11")
    e(f"s_add_u32 s{sT+6}, s{sT+6}, {32768-4*2048}")
    e(f"s_mov_b32 m0, s{sT+6}")
    e("v_lshlrev_b32 v12, 4, v2")
    e(f"buffer_load_dwordx4 v12, s[{S_C}:{S_C+3}], s{sT+3} offen lds")
    e(f"buffer_load_dwordx4 v12, s[{S_C}:{S_C+3}], s{sT+3} offen offset:1024 lds")
    slots()
    for ee in range(8):
        e(f"v_mul_u32_u24 v8, 26, v{PP+ee}")
        e(f"v_add_lshl_u32 v8, v8, v{QQ+ee}, 1")
        e(f"v_add_u32 v{GA+ee}, s{sT+6}, v8")
        e(f"v_mul_u32_u24 v9, 26, v{QQ+ee}")
        e(f"v_add_lshl_u32 v9, v9, v{PP+ee}, 1")
        e(f"v_add_u32 v{GB+ee}, s{sT+6}, v9")
    e("v_and_b32 v6, 62, v2")
    st_addr(44)
    m3(2)
    e("s_waitcnt lgkmcnt(0)")
    e("s_barrier")
    e("s_waitcnt vmcnt(0)")
    for ee in range(8):
        e(f"ds_read_u16 v{GA+ee}, v{GA+ee}")
        e(f"ds_read_u16 v{GB+ee}, v{GB+ee}")
    e("s_waitcnt lgkmcnt(0)")
    for ee in range(8):
        e(f"v_lshlrev_b32 v{GA+ee}, 16, v{GA+ee}")
        e(f"v_lshlrev_b32 v{GB+ee}, 16, v{GB+ee}")
        e(f"v_add_f32 v{VV+ee}, v{GA+ee}, v{GB+ee}")
    lab("L_aux_pack")
    srd(S_WS,P_WS,WS_SIZE); srd(S_A,P_DBG,256)
    e("v_cmp_eq_u32 vcc, 43, v2")
    for ee in range(8): e(f"v_mul_f32 v{VV+ee}, v{VV+ee}, v{94 if ee<5 else 95}")
    e(f"v_cndmask_b32 v{VV+7}, v{VV+7}, 0, vcc")
    for m in range(4): e(f"v_cvt_pk_bf16_f32 v{24+m}, v{VV+2*m}, v{VV+2*m+1}")
    e("ds_write_b128 v6, v[24:27]")
    e("v_lshlrev_b32 v8, 4, v0")
    e(f"s_movk_i32 s{sT+1}, 368")
    e(f"v_cmp_gt_u32 vcc, s{sT+1}, v0")
    e(f"s_lshr_b32 s{sT}, s{sI}, 2")
    e(f"s_mul_i32 s{sT+2}, s{sT}, 5888")
    e("v_cndmask_b32 v9, v7, v8, vcc")
    e("s_waitcnt lgkmcnt(0)")
    e("s_barrier")
    e(f"ds_read_b128 v[24:27], v8 offset:{STG}")
    e("s_waitcnt lgkmcnt(0)")
    e(f"buffer_store_dwordx4 v[24:27], v9, s[{S_WS}:{S_WS+3}], s{sT+2} offen sc0 sc1")
    st(96)
    e(f"s_lshl_b32 s{sT}, s{sT}, 2")
    e("v_mov_b32 v8, 1")
    e("s_waitcnt vmcnt(0)")
    e("s_barrier")
    e(f"s_cmp_lg_u32 s{sWAVE}, 0")
    e("s_cbranch_scc1 L_noflag")
    e("s_mov_b64 exec, 1")
    e(f"buffer_store_dword v8, off, s[{S_A}:{S_A+3}], s{sT} sc0 sc1")
    e("s_mov_b64 exec, -1")
    lab("L_noflag")
    if ST:
        st(98); e("s_waitcnt vmcnt(0)"); st(100,True)
        dump([10,92,94,96,98,100],1,2)
    e("s_branch L_aux_done")
    lab("L_prefetch")
    e("s_waitcnt lgkmcnt(0)")
    if opt.pf:
        srd(S_W,P_W,1664*3328)
        e(f"s_cmp_lt_u32 s{sXCD}, 4")
        e(f"s_cselect_b32 s{sT+2}, 27, 26")
        e(f"s_cmp_lt_u32 s{sXCD}, 3")
        e(f"s_cselect_b32 s{sT+2}, 28, s{sT+2}")
        e(f"s_sub_u32 s{sT}, s{sSLOT}, s{sT+2}")
        e(f"s_sub_u32 s{sT+2}, 32, s{sT+2}")
        e(f"s_mul_i32 s{sT+1}, s{sXCD}, 26")
        e(f"s_lshr_b32 s{sT+1}, s{sT+1}, 3")
        e(f"s_lshl_b32 s{sT+1}, s{sT+1}, 7")
        for u in range(4):
            e(f"v_add_u32 v3, {512*u}, v0")
            e(f"v_mul_u32_u24 v3, s{sT+2}, v3")
            e(f"v_add_u32 v3, s{sT}, v3")
            e("v_lshrrev_b32 v4, 2, v3")
            if opt.pskip: e(f"v_add_u32 v4, {opt.pskip}, v4")
            e("v_and_b32 v3, 3, v3")
            e(f"v_mul_u32_u24 v4, 3328, v4")
            e("v_lshl_add_u32 v3, v3, 7, v4")
            e(f"buffer_load_dword v{9+u}, v3, s[{S_W}:{S_W+3}], s{sT+1} offen")
        e(f"s_cmp_lg_u32 s{sSLOT}, 31")
        e("s_cbranch_scc1 L_aux_done")
        srd(S_B,P_W2,3328); srd(S_WS,P_WS,EPOCH+8192)
        e("v_lshlrev_b32 v3, 7, v0")
        e(f"buffer_load_dword v13, v3, s[{S_B}:{S_B+3}], 0 offen")
        e(f"s_mov_b32 s{sT}, {EPOCH}")
        e(f"buffer_load_dword v14, v3, s[{S_WS}:{S_WS+3}], s{sT} offen")
    lab("L_aux_done")
    e(f"s_cmp_lt_u32 s{sWAVE}, 4")
    e("s_cbranch_scc1 L_end")
    srd(S_TBL,P_TBL,128000); srd(S_IDX,P_IDX,106496)
    rowidx_load()
    e(f"v_mov_b32 v7, {FLAGS}")
    e("v_mov_b32 v8, 4")
    e("v_mov_b32 v9, 0")
    e(f"ds_write_b32 v7, v8 offset:{F_IT9}")
    e(f"ds_write_b32 v7, v8 offset:{F_RED}")
    e(f"ds_write_b32 v7, v8 offset:{F_G}")
    e(f"ds_write_b32 v7, v8 offset:{F_S1}")
    e(f"ds_write_b32 v7, v9 offset:{F_CW}")
    e(f"ds_write_b32 v7, v9 offset:{F_CW2}")
    e("s_waitcnt vmcnt(0)")
    e("v_lshlrev_b32 v29, 7, v29")
    x0_addrs()
    e("s_branch L_help_x0")
    lab("L_end")
    e("s_endpgm")
    L.append('.section .rodata,"a"'); L.append(".p2align 6"); L.append(f".amdhsa_kernel {KN}")
    for x in ["next_free_vgpr 256","next_free_sgpr 102","accum_offset 256","group_segment_fixed_size 0","kernarg_size 88",
              "user_sgpr_count 2","user_sgpr_kernarg_segment_ptr 1","system_sgpr_workgroup_id_x 1"]:
        L.append("  .amdhsa_"+x)
    L.append(".end_amdhsa_kernel")
    return "\n".join(L)+"\n"

if __name__=="__main__":
    ap=argparse.ArgumentParser()
    ap.add_argument("-o",default="k.s")
    for k,d in dict(bgate=0,look=2,bstep=-1,bstep2=10,inv=0,zmid=22,csc=0,gateC=0,gq=0,rowx=1,wstop=5,wrest=16,bq=3,xlds=1,xgap=0,atid=1,xsl=8,pskip=128,d2late=1,wper=4,its=0,sched=0,nog=0,not_=0,c2=0,noz=0,lateb=1,dly=4,pst=0,enc=0,encrole=0,encwg=0,encwave=0,nocin=0,gcyc=0,psleep=4,now=0,stamps=0,pf=1,cpf=1,prio=1,bound=20000,zsplit=22,zbar=22,nt0=10,tb=4444,wsched=0).items(): ap.add_argument("--"+k,type=int,default=d)
    opt=ap.parse_args()
    for t in range(512): assert (t*5042)>>16==t//13, t
    open(opt.o,"w").write(build(opt))
```

```python
import sys, argparse, math, struct

class Q:
    def __init__(s,cap): s.ops=[]; s.cap=cap; s.done=0
    def issue(s,name): s.ops.append(name)
    def need(s,*names):
        r=99
        for name in names:
            i=len(s.ops)-1-s.ops[::-1].index(name)
            r=min(r,len(s.ops)-1-i)
        r=min(r,s.cap)
        s.done=max(s.done,len(s.ops)-r)
        return r
    def pending(s,*names):
        return any(len(s.ops)-1-s.ops[::-1].index(n)>=s.done for n in names)

WIMG=0; GRAN=65536; EPOCH=0x50000; STAMP=0x100000; WS_SIZE=0x200000
STG=49152; RING=128000; FLAGS=160768; CINW=49152
F_IT9,F_RED,F_G,F_PRE,F_S1,F_CW,F_CW2=0,4,8,12,16,20,24
C1=-2*math.sqrt(2/math.pi)*math.log2(math.e); C2=C1*0.044715
def f2u(x): return struct.unpack('<I',struct.pack('<f',x))[0]
KN="standalone__deep_cross_xdeepfm__recsys_kernel"

sWAVE,sXCD,sSLOT,sCB,sRB=3,4,5,7,8
P_IDX,P_TBL,P_CIN,P_WOUT,P_W,P_B1,P_W2,P_BO=16,18,20,22,24,26,28,30
P_OUT,P_DBG,P_WS=32,34,36
S_IDX,S_TBL,S_W,S_WS,S_A,S_B=40,44,48,52,56,60
sRING,sWR1,sWR2,sTM=64,65,15,14
sT=66

def pair_of(n):
    if n<169: dlt,m=divmod(n,13)
    else: dlt,m=13,n-169
    r=2*m
    return r,(r+dlt)%26

def build(opt):
    SEC={"entry":[]}; order=["entry","dnn0","hpro","pref","fold0","dnn","help","fold"]
    class LL:
        cur="entry"
        def append(s,x): SEC.setdefault(s.cur,[]).append(x)
    L=LL()
    def sec(n): L.cur=n
    cnt=[0]; lastw={}
    def e(x):
        L.append("    "+x)
        cnt[0]+= (int(x.split()[1])+1) if x.startswith("s_nop") else 1
    def hz(key,n):
        d=cnt[0]-lastw[key]
        if d<n: e(f"s_nop {n-d-1}")
    def lab(x): L.append(x+":")
    def cm(x): L.append("    ; "+x)
    E=lambda x:(lambda: e(x))
    ST=opt.stamps
    def srd(d,p,size):
        e(f"s_mov_b32 s{d}, s{p}"); e(f"s_mov_b32 s{d+1}, s{p+1}")
        e(f"s_mov_b32 s{d+2}, {size}"); e(f"s_mov_b32 s{d+3}, 0x20000")
    def st(r,wait=False):
        if ST:
            e(f"s_memrealtime s[{r}:{r+1}]")
            if wait: e("s_waitcnt lgkmcnt(0)")
    def dump(regs,area=0,role=0):
        if opt.enc:
            delay(regs,role); return
        dump_(regs,area)
    dl=[0]
    def delay(regs,role):
        dl[0]+=1; n=dl[0]
        e("s_mov_b64 exec, -1")
        e("s_waitcnt lgkmcnt(0)")
        if opt.enc==99:
            if role!=1: return
            srd(S_A,P_DBG,256)
            e("s_not_b32 s12, s10")
            e("v_mov_b32 v244, s12")
            e(f"v_mov_b32 v245, s{regs[10]}")
            e("v_mov_b32 v246, 1")
            e("s_mov_b64 exec, 1")
            e(f"buffer_atomic_umax v244, off, s[{S_A}:{S_A+3}], 0 offset:240 sc1")
            e(f"buffer_atomic_umax v245, off, s[{S_A}:{S_A+3}], 0 offset:244 sc1")
            e("s_waitcnt vmcnt(0)")
            e(f"buffer_atomic_add v246, off, s[{S_A}:{S_A+3}], 0 offset:248 sc0 sc1")
            e("s_waitcnt vmcnt(0)")
            e("v_readfirstlane_b32 s12, v246")
            e("s_cmp_lg_u32 s12, 1023")
            e(f"s_cbranch_scc1 L_dly{n}_x")
            e(f"buffer_load_dwordx2 v[244:245], off, s[{S_A}:{S_A+3}], 0 offset:240 sc1")
            e("s_waitcnt vmcnt(0)")
            e("v_readfirstlane_b32 s12, v244")
            e("v_readfirstlane_b32 s13, v245")
            e("s_not_b32 s12, s12")
            e("s_sub_u32 s12, s13, s12")
        else:
            if role!=opt.encrole: return
            e(f"s_cmp_lg_u32 s2, {opt.encwg}")
            e(f"s_cbranch_scc1 L_dly{n}_x")
            e(f"s_cmp_lg_u32 s{sWAVE}, {opt.encwave}")
            e(f"s_cbranch_scc1 L_dly{n}_x")
            if opt.enc in (96,97):
                e(f"s_load_dwordx8 s[76:83], s[{P_DBG}:{P_DBG+1}], 64")
                e("s_waitcnt lgkmcnt(0)")
                e("s_mov_b32 s12, s76"); e("s_mov_b32 s13, s76")
                for k in range(1,8):
                    e(f"s_min_u32 s12, s12, s{76+k}"); e(f"s_max_u32 s13, s13, s{76+k}")
                if opt.enc==96: e("s_mov_b32 s13, s10")
                e("s_sub_u32 s12, s13, s12")
                e("s_min_u32 s12, s12, 2000")
            else: e(f"s_sub_u32 s12, s{regs[opt.enc]}, s10")
        e("s_mul_i32 s12, s12, 100")
        e("s_memrealtime s[66:67]")
        e("s_waitcnt lgkmcnt(0)")
        e("s_add_u32 s12, s12, s66")
        lab(f"L_dly{n}")
        e("s_sleep 8")
        e("s_memrealtime s[66:67]")
        e("s_waitcnt lgkmcnt(0)")
        e("s_sub_u32 s13, s66, s12")
        e("s_cmp_lt_i32 s13, 0")
        e(f"s_cbranch_scc1 L_dly{n}")
        lab(f"L_dly{n}_x")
        e("s_mov_b64 exec, -1")
    def dump_(regs,area=0):
        e("s_mov_b64 exec, -1")
        e("s_waitcnt lgkmcnt(0)")
        e("s_lshl_b32 s12, s2, 3")
        e(f"s_add_u32 s12, s12, s{sWAVE}")
        e("s_lshl_b32 s12, s12, 6")
        e(f"s_add_u32 s12, s12, {STAMP+area*0x40000}")
        regs=list(regs)+[regs[0]]*(12-len(regs))
        for i,r in enumerate(regs): e(f"v_mov_b32 v{244+i}, s{r}")
        e("s_mov_b64 exec, 1")
        for i in range(3):
            e(f"buffer_store_dwordx4 v[{244+4*i}:{247+4*i}], off, s[{S_WS}:{S_WS+3}], s12 offset:{16*i}")
        e("s_mov_b64 exec, -1")
    def lds_spin(name,vaddr,vtmp,off,target,sleep=0):
        e(f"s_mov_b32 s{sT+4}, {opt.bound*8}")
        lab(name)
        e(f"ds_read_b32 v{vtmp}, v{vaddr} offset:{off}")
        e("s_waitcnt lgkmcnt(0)")
        e(f"v_readfirstlane_b32 s{sT+5}, v{vtmp}")
        e(f"s_cmp_ge_u32 s{sT+5}, {target}")
        e(f"s_cbranch_scc1 {name}_x")
        if sleep: e(f"s_sleep {sleep}")
        e(f"s_sub_u32 s{sT+4}, s{sT+4}, 1")
        e(f"s_cbranch_scc0 {name}")
        lab(name+"_x")

    IV=16; IA=24
    def rec_addrs():
        e(f"s_lshl_b32 s{sT+5}, s{sT}, 7")
        e(f"s_add_u32 s{sT+5}, s{sT+5}, {RING+4096}")
        e(f"v_lshl_add_u32 v7, v7, 3, s{sT+5}")
        e("v_mul_u32_u24 v9, 7, v8")
        e("v_and_b32 v8, 1, v8")
        for par in range(2):
            d=IA+2*par
            if par:
                e("v_xor_b32 v8, 1, v8"); e("v_add_u32 v9, 1, v9")
            e("v_lshrrev_b32 v10, 1, v9")
            e(f"v_lshl_add_u32 v{d}, v10, 8, v7")
            e(f"v_lshl_add_u32 v{d}, v8, 14, v{d}")
            e("v_lshlrev_b32 v10, 1, v8")
            e(f"v_xor_b32 v10, s{sT+2}, v10")
            e(f"v_lshl_add_u32 v{d}, v10, 1, v{d}")
            e(f"v_xor_b32 v{d+1}, 2, v{d}")
            e(f"v_add_u32 v{d+1}, 8192, v{d+1}")
    sROW=6; sE=38
    def rowidx_load():
        e(f"s_sub_u32 s{sT+6}, s{sWAVE}, 4")
        if opt.rowx:
            e(f"s_lshl2_add_u32 s{sROW}, s{sSLOT}, s{sT+6}")
            e(f"s_lshl_b32 s{sT+6}, s{sXCD}, 7")
            e(f"s_add_u32 s{sROW}, s{sROW}, s{sT+6}")
        else: e(f"s_lshl2_add_u32 s{sROW}, s2, s{sT+6}")
        e(f"s_mul_i32 s{sT+6}, s{sROW}, 104")
        e("v_lshlrev_b32 v30, 2, v2")
        e(f"buffer_load_dword v29, v30, s[{S_IDX}:{S_IDX+3}], s{sT+6} offen")
    L.append("; @launch grid=(256,1,1) block=(512,1,1) lds=163840")
    L.append('.amdgcn_target "amdgcn-amd-amdhsa--gfx950"')
    L.append(".text"); L.append(f".globl {KN}"); L.append(".p2align 8"); L.append(f".type {KN},@function")
    lab(KN)
    e("s_load_dwordx16 s[16:31], s[0:1], 0")
    e("s_load_dwordx4 s[32:35], s[0:1], 64")
    e("s_load_dwordx2 s[36:37], s[0:1], 80")
    st(10)
    e("s_cmp_ge_u32 s2, 256")
    e("s_cbranch_scc1 L_end")
    e("v_lshrrev_b32 v1, 6, v0")
    e("v_and_b32 v2, 63, v0")
    e(f"v_readfirstlane_b32 s{sWAVE}, v1")
    e(f"s_and_b32 s{sXCD}, s2, 7")
    e(f"s_lshr_b32 s{sSLOT}, s2, 3")
    e(f"s_cmp_ge_u32 s{sSLOT}, 26")
    e("s_cbranch_scc1 L_aux0")
    sec("pref"); lab("L_aux0")
    e(f"s_cmp_gt_u32 s{sSLOT}, {26 if opt.foldx else 27}")
    e("s_cbranch_scc1 L_prefetch")
    if opt.cpf:
        e(f"s_getpc_b64 s[{S_IDX}:{S_IDX+1}]")
        lab("L_pc")
        e(f"s_sub_u32 s{S_IDX}, s{S_IDX}, L_pc-{KN}")
        e(f"s_subb_u32 s{S_IDX+1}, s{S_IDX+1}, 0")
        e(f"s_mov_b32 s{S_IDX+2}, L_end-{KN}")
        e(f"s_mov_b32 s{S_IDX+3}, 0x20000")
        e("v_lshlrev_b32 v3, 7, v0")
        e(f"buffer_load_dword v255, v3, s[{S_IDX}:{S_IDX+3}], 0 offen")
    sec("entry")
    e(f"s_mul_i32 s6, s{sXCD}, 26")
    e(f"s_add_u32 s6, s6, s{sSLOT}")
    e(f"s_and_b32 s{sRB}, s6, 7")
    e(f"s_and_b32 s{sT}, s{sWAVE}, 1")
    e(f"s_lshr_b32 s{sT+2}, s{sWAVE}, 1")
    e(f"s_lshl2_add_u32 s{sT+4}, s{sRB}, s{sT+2}")
    e(f"s_mul_i32 s{sT+4}, s{sT+4}, 3328")
    e(f"s_lshl_b32 s{sT+5}, s{sT}, 11")
    e(f"s_add_u32 s{sT+4}, s{sT+4}, s{sT+5}")
    e(f"s_lshl_b32 s{sT+3}, s{sT+2}, 13")
    e(f"s_add_u32 s{sT+3}, s{sT+3}, s{sT+5}")
    e(f"s_add_u32 m0, s{sT+3}, {RING+4096}")
    e("v_lshlrev_b32 v6, 4, v2")
    e("v_lshrrev_b32 v3, 3, v2")
    e("v_lshrrev_b32 v4, 4, v2")
    e("v_and_b32 v10, 7, v2")
    e(f"s_lshl_b32 s{sT+1}, s{sT}, 2")
    e("v_xor_b32 v5, v10, v4")
    e(f"v_xor_b32 v5, s{sT+1}, v5")
    e("v_lshlrev_b32 v5, 4, v5")
    e("v_lshl_add_u32 v5, v3, 7, v5")
    e(f"s_lshl1_add_u32 s{sT+3}, s{sSLOT}, s{sT+2}")
    e(f"s_lshl1_add_u32 s{sTM}, s{sT+3}, s{sT}")
    e(f"s_lshl_b32 s{sTM}, s{sTM}, 10")
    e(f"s_sub_u32 s{sWR2}, {63*2048}, s{sT+5}")
    e(f"s_lshr_b32 s{sT+5}, s{sT+5}, 1")
    e(f"s_add_u32 s{sWR1}, s{sWR2}, s{sT+5}")
    e(f"s_mov_b32 s{S_IDX+2}, 106496"); e(f"s_mov_b32 s{S_IDX+3}, 0x20000")
    e(f"s_mov_b32 s{S_TBL+2}, 128000"); e(f"s_mov_b32 s{S_TBL+3}, 0x20000")
    e(f"s_mov_b32 s{sT+3}, {opt.n0-1}")
    e("s_waitcnt lgkmcnt(0)")
    if opt.pst: st(84)
    e(f"s_mov_b64 s[{S_IDX}:{S_IDX+1}], s[{P_IDX}:{P_IDX+1}]")
    e(f"s_mov_b64 s[{S_TBL}:{S_TBL+1}], s[{P_TBL}:{P_TBL+1}]")
    e(f"buffer_load_dwordx4 v6, s[{S_IDX}:{S_IDX+3}], s{sT+4} offen lds")
    if opt.trim:
        e(f"s_cmp_eq_u32 s{sT}, 0")
        e("s_cselect_b64 exec, -1, 0xffff")
    e(f"buffer_load_dwordx4 v6, s[{S_IDX}:{S_IDX+3}], s{sT+4} offen offset:1024 lds")
    if opt.trim: e("s_mov_b64 exec, -1")
    nl=[0]
    def tloop(n=None,vm=None):
        nl[0]+=1; name=f"L_tl{nl[0]}"
        if n is not None:
            if n==0: return
            e(f"s_mov_b32 s{sT+3}, {n-1}")
        lab(name)
        e(f"s_mov_b32 m0, s{sTM}")
        e(f"s_add_u32 s{sTM}, s{sTM}, 8192")
        e(f"buffer_load_dwordx4 v5, s[{S_TBL}:{S_TBL+3}], m0 offen lds")
        e(f"s_cmp_ge_u32 s{sTM}, s{sWR1}")
        e(f"s_cselect_b32 s{sT+5}, s{sWR2}, 0")
        e(f"s_sub_u32 s{sTM}, s{sTM}, s{sT+5}")
        e(f"s_sub_u32 s{sT+3}, s{sT+3}, 1")
        e(f"s_cbranch_scc0 {name}")
        if vm is not None:
            for t in range(n): vm.issue("tbl")
    tloop()
    e(f"s_cmp_ge_u32 s{sWAVE}, 4")
    e("s_cbranch_scc1 L_help_pro")
    sec("dnn0")
    tbl=tloop

    vW,vT0,vT1=1,3,4
    AD=8; AF=16; F0=48; REC=80; ACC=128
    acc=lambda lt,ct: ACC+(lt*2+ct)*16
    Fr=lambda j,ks,ct: F0+(j&1)*16+(ks*2+ct)*4
    vm=Q(63); lg=Q(15)
    cm("---- DNN wave prologue ----")
    for x in ["idx0","idx3"]+["tbl"]*opt.n0: vm.issue(x)
    e(f"s_lshr_b32 s{sCB}, s6, 3")
    e(f"s_lshl_b32 s{sRING}, s{sWAVE}, 13")
    e(f"s_add_u32 s{sRING}, s{sRING}, {RING}")
    e(f"s_lshl_b32 s{sT+7}, s{sWAVE}, 5")
    e(f"v_add_u32 v9, s{sT+7}, v3")
    e("v_mul_u32_u24 v9, 3328, v9")
    e("v_lshlrev_b32 v11, 2, v4")
    e("v_and_b32 v11, 4, v11")
    e("v_xor_b32 v11, v11, v10")
    e("v_lshl_add_u32 v1, v11, 4, v9")
    e(f"s_lshl_b32 s{sT+7}, s{sCB}, 7")
    e(f"v_add_u32 v1, s{sT+7}, v1")
    srd(S_W,P_W,1664*3328)
    for pc in range(4):
        e(f"s_add_u32 m0, s{sRING}, {pc*1024}")
        e(f"s_mov_b32 s12, {8*pc*3328}")
        e(f"buffer_load_dwordx4 v1, s[{S_W}:{S_W+3}], s12 offen lds"); vm.issue(f"w0_{pc}")
    def bias_loads(ii=range(4)):
        for i in ii:
            e(f"buffer_load_dwordx4 v[{106+4*i}:{109+4*i}], v{VB}, s[{S_A}:{S_A+3}], 0 offen offset:{(i>>1)*64+(i&1)*16}"); vm.issue(f"bias{i}")
    VB=6
    TB=[opt.n0]+[int(c,16) for c in str(opt.tb)]
    e("s_branch L_dnn_b")
    sec("dnn"); lab("L_dnn_b")
    e("v_lshrrev_b32 v12, 5, v2")
    e(f"v_lshl_add_u32 v6, v12, 5, s{sT+7}")
    e(f"v_mov_b32 v7, {FLAGS}")
    srd(S_A,P_B1,3328)
    if opt.pst: st(86)
    e("v_and_b32 v13, 31, v2")
    e("v_mul_u32_u24 v13, 104, v13")
    e(f"s_lshl2_add_u32 s{sT+5}, s{sT+2}, {RING+4096}")
    e(f"v_add_u32 v13, s{sT+5}, v13")
    e("v_lshlrev_b32 v9, 1, v12")
    e(f"v_xor_b32 v9, s{sWAVE}, v9")
    e("v_lshl_add_u32 v24, v9, 13, v13")
    e("v_xor_b32 v9, 1, v9")
    e("v_lshl_add_u32 v25, v9, 13, v13")
    e("v_bfe_u32 v9, v2, 2, 2")
    e("v_lshlrev_b32 v3, 7, v9")
    e("v_lshl_add_u32 v3, v12, 10, v3")
    e("v_lshrrev_b32 v9, 1, v9")
    e("v_lshl_add_u32 v3, v9, 6, v3")
    e("v_and_b32 v9, 1, v2")
    e("v_lshl_add_u32 v3, v9, 5, v3")
    e("v_bfe_u32 v9, v2, 1, 1")
    e("v_lshl_add_u32 v3, v9, 3, v3")
    e("v_and_b32 v9, 1, v4")
    e("v_lshl_add_u32 v3, v9, 4, v3")
    e(f"v_add_u32 v3, s{sRING}, v3")
    e("v_xor_b32 v4, 64, v3")
    e(f"v_add_u32 v14, s{sT+1}, v12")
    e("v_lshl_or_b32 v14, v14, 16, v14")
    e(f"s_mov_b32 s{sT+6}, 0x00070007")
    e(f"s_waitcnt vmcnt({vm.need('idx3')})")
    if opt.pst: st(88)
    def lds_inc(va,off):
        e("v_mov_b32 v0, 1")
        e("s_mov_b64 exec, 1")
        e(f"ds_add_u32 v{va}, v0 offset:{off}")
        e("s_mov_b64 exec, -1")
    e("s_barrier")
    if opt.pst: st(90)
    sWO=12
    def dma(j,pcs):
        for pc in pcs:
            if opt.now and j>=3:
                vm.ops.insert(0,f"w{j}_{pc}"); continue
            e(f"s_add_u32 m0, s{sRING}, {((j&1)*4+pc)*1024}")
            e(f"s_mov_b32 s{sWO}, {(128*j+8*pc)*3328}")
            e(f"buffer_load_dwordx4 v{vW}, s[{S_W}:{S_W+3}], s{sWO} offen lds"); vm.issue(f"w{j}_{pc}")
    BI=106
    RW=lambda t,j: 160+t*14+j
    RECX=104
    for j in range(0,13,2):
        for t in range(2):
            e(f"ds_read2_b32 v[{RW(t,j)}:{RW(t,j)+1}], v{24+t} offset0:{2*j} offset1:{2*j+2}")
    tbl(TB[1],vm)
    srd(S_WS,P_WS,WS_SIZE)
    srd(S_B,P_W2,3328)
    e("s_waitcnt lgkmcnt(0)")
    e("s_barrier")
    st(76)
    tbl(TB[2],vm)
    for j in range(13):
        if j==6: tbl(TB[3],vm)
        d=REC+2*j
        e(f"v_lshl_or_b32 v{d}, v{RW(1,j)}, 16, v{RW(0,j)}")
        e(f"v_lshrrev_b32 v13, 1, v{d}")
        e(f"v_and_b32 v13, s{sT+6}, v13")
        e(f"v_lshl_or_b32 v{d}, v{d}, 3, v13")
        e(f"v_mov_b32 v{d+1}, v{d}")
        if j:
            e(f"v_permlane32_swap_b32 v{d-2}, v{d-1}")
            e(f"v_xor_b32 v{d-2}, v14, v{d-2}"); e(f"v_xor_b32 v{d-1}, v14, v{d-1}")
    e("s_nop 1")
    e(f"v_permlane32_swap_b32 v{REC+24}, v{REC+25}")
    e(f"v_xor_b32 v{REC+24}, v14, v{REC+24}"); e(f"v_xor_b32 v{REC+25}, v14, v{REC+25}")
    afr=lambda lt,ks: AF+8*lt+4*ks
    XF={0:80,1:88,2:afr(1,0),3:afr(2,0)}
    FX={0:[F0,F0+4,F0+8,F0+12],1:[8,12,40,44],2:[F0+16,F0+20,F0+24,F0+28],3:[F0,F0+4,F0+8,F0+12]}
    def adr(lt,j):
        e(f"v_lshlrev_b32_sdwa v{AD+2*lt}, 4, v{REC+2*j+(lt>>1)} dst_sel:DWORD dst_unused:UNUSED_PAD src0_sel:DWORD src1_sel:WORD_{lt&1}")
        e(f"v_xor_b32 v{AD+2*lt+1}, 32, v{AD+2*lt}")
    def Rop(lt,j):
        for ks in range(2):
            e(f"ds_read_b128 v[{afr(lt,ks)}:{afr(lt,ks)+3}], v{AD+2*lt+ks}"); lg.issue(f"R{lt}_{ks}_{j}")
    def adrX(c,a):
        e(f"v_lshlrev_b32_sdwa v{a}, 4, v{RECX} dst_sel:DWORD dst_unused:UNUSED_PAD src0_sel:DWORD src1_sel:WORD_{c>>1}")
        if c&1: e(f"v_xor_b32 v{a}, 64, v{a}")
        e(f"v_xor_b32 v{a+1}, 32, v{a}")
    def RX(c,a):
        for ks in range(2):
            e(f"ds_read_b128 v[{XF[c]+4*ks}:{XF[c]+4*ks+3}], v{a+ks}"); lg.issue(f"X{c}_{ks}")
    def Top(j,ks):
        for ct in range(2):
            for h4 in range(2):
                d=Fr(j,ks,ct)+2*h4
                e(f"ds_read_b64_tr_b16 v[{d}:{d+1}], v{vT0+ct} offset:{((j&1)*4+ks*2)*1024+h4*512}"); lg.issue(f"T{j}_{ks}_{ct}{h4}")
    def TX(c):
        for ks in range(2):
            for ct in range(2):
                for h4 in range(2):
                    d=FX[c][ks*2+ct]+2*h4
                    e(f"ds_read_b64_tr_b16 v[{d}:{d+1}], v{vT0+ct} offset:{c*8192+ks*2048+h4*512}"); lg.issue(f"TX{c}")
    for lt in range(4): adr(lt,0)
    if ST: e("s_waitcnt lgkmcnt(0)")
    e(f"s_waitcnt vmcnt({vm.need('w0_3')})")
    Top(0,0); Top(0,1)
    if not opt.d1late: dma(1,range(4))
    e("s_waitcnt lgkmcnt(0)")
    if opt.d2late!=1: dma(2,range(4))
    if opt.pst: st(92)
    e(f"s_waitcnt vmcnt({vm.need('tbl')})")
    st(78)
    e("s_barrier")
    st(80,True)
    if ST: e("s_memtime s[96:97]"); e("s_waitcnt lgkmcnt(0)")
    if opt.prio: e(f"s_setprio {opt.prio}")
    Rop(1,0)
    if not opt.rp: Rop(2,0); Rop(3,0); Rop(0,0)
    if opt.d1late: dma(1,range(4))
    def group(lt,fa,xa,first,fills):
        for i,(ks,ct) in enumerate([(0,0),(0,1),(1,0),(1,1)]):
            c=f"v[{acc(lt,ct)}:{acc(lt,ct)+15}]"
            src="0" if (first and ks==0) else c
            e(f"v_mfma_f32_32x32x16_bf16 {c}, v[{fa[ks*2+ct]}:{fa[ks*2+ct]+3}], v[{xa+4*ks}:{xa+4*ks+3}], {src}")
            lastw[(lt,ct)]=cnt[0]
            for f in fills[i]: f()
    LT=[1,2,3,0]
    W2P=106; EV=122; VR=124; WA=125; RA1,RA2=5,6; sM=[0,sT+7,sT+8,13]
    def addrs():
        e(f"s_xor_b32 s{sT}, s{sWAVE}, 1")
        e(f"s_lshl_b32 s{sT}, s{sT}, 12")
        e(f"v_lshlrev_b32 v{RA1}, 4, v2")
        e(f"v_add_u32 v{WA}, s{sT}, v{RA1}")
        e(f"v_xor_b32 v{WA+1}, {3<<12}, v{WA}")
    def addrs2():
        e(f"v_xor_b32 v{WA+2}, {2<<12}, v{WA}")
        e(f"s_lshl_b32 s{sT}, s{sWAVE}, 12")
        e(f"v_add_u32 v{RA1}, s{sT}, v{RA1}")
    def addrs3(): pass
    SEL=80; TA=92
    selops=[E("v_and_b32 v0, 31, v2"),E(f"v_lshrrev_b32 v{TA}, 5, v2"),E(f"v_lshlrev_b32 v{TA}, 2, v{TA}"),E(f"v_sub_u32 v0, v0, v{TA}"),
            E(f"v_lshrrev_b32 v{TA}, 1, v0"),E(f"v_and_b32 v{TA}, 12, v{TA}"),E(f"v_and_or_b32 v{TA}, v0, 3, v{TA}"),
            E("v_and_b32 v0, 0xffffffe4, v0"),E("v_cmp_eq_u32 vcc, 0, v0"),E(f"v_lshlrev_b32 v0, 4, v{TA}"),E("v_and_b32 v0, 16, v0"),
            E(f"v_lshlrev_b32 v0, v0, s{sM[1]}"),E("v_cndmask_b32 v0, 0, v0, vcc"),E(f"v_lshrrev_b32 v{TA}, 1, v{TA}")]
    selops.insert(0,E(f"s_movk_i32 s{sM[1]}, 0x3f80"))
    for ms in ((0,1,2),(3,4,5),(6,7)):
        def f(ms=ms):
            for k,m in enumerate(ms): e(f"v_cmp_eq_u32 s[{sT+2*k}:{sT+2*k+1}], {m}, v{TA}")
            if len(ms)<3: e("s_nop 0")
            for k,m in enumerate(ms): e(f"v_cndmask_b32 v{SEL+m}, 0, v0, s[{sT+2*k}:{sT+2*k+1}]")
        selops.append(f)
    def cv(lt,ct):
        a=acc(lt,ct)
        return [(lambda m=m: (hz((lt,ct),12),e(f"v_cvt_pk_bf16_f32 v{a+m}, v{a+2*m}, v{a+2*m+1}"))) for m in range(8)]
    def late1():
        e(f"s_lshl_b32 s{sT}, s{sCB}, 7")
        e(f"v_lshrrev_b32 v{VR}, 5, v2")
        e(f"v_lshl_add_u32 v{VR}, v{VR}, 5, s{sT}")
    def late2(i):
        e(f"buffer_load_dwordx4 v[{W2P+4*i}:{W2P+4*i+3}], v{VR}, s[{S_B}:{S_B+3}], 0 offen offset:{(i>>1)*64+(i&1)*16}"); vm.issue(f"w2_{i}")
    def late3():
        e(f"v_and_b32 v{VR}, 31, v2")
        e(f"s_lshl_b32 s{sT}, s{sRB}, 7")
        e(f"s_lshl_b32 s{sT+1}, s{sWAVE}, 5")
        e(f"s_add_u32 s{sT}, s{sT}, s{sT+1}")
        e(f"v_add_lshl_u32 v{VR}, v{VR}, s{sT}, 3")
    def late4():
        e(f"s_mov_b32 s{sT+2}, {EPOCH}")
        e(f"buffer_load_dwordx2 v[{EV}:{EV+1}], v{VR}, s[{S_WS}:{S_WS+3}], s{sT+2} offen"); vm.issue("ev")
    def badd(ct,t):
        src=BI+ct*8+(t>>1)
        if t&1: e(f"v_and_b32 v0, 0xffff0000, v{src}")
        else:   e(f"v_lshlrev_b32 v0, 16, v{src}")
        hz((0,ct),12)
        e(f"v_add_f32 v{acc(0,ct)+t}, v{acc(0,ct)+t}, v0")
    def wv(n): return lambda n=n: (e(f"s_waitcnt vmcnt({vm.need(n)})") if vm.pending(n) else None)
    def wl(n): return lambda n=n: (e(f"s_waitcnt lgkmcnt({lg.need(n)})") if lg.pending(n) else None)
    ITS={1:76,2:78,3:80,5:82,7:84,9:86,11:88,12:90}
    def inc(off,nm):
        def f():
            e("s_mov_b64 exec, 1")
            e(f"ds_add_u32 v7, v{ONE} offset:{off}"); lg.issue(nm)
            e("s_mov_b64 exec, -1")
        return f
    ONE=88; vC1=89; S0=90; S1=91; TA,TB_=92,93
    def w1(lt,ct,h): return lambda: (e(f"ds_write_b128 v{WA+lt-1}, v[{acc(lt,ct)+4*h}:{acc(lt,ct)+4*h+3}] offset:{(lt-1)*16384+(ct*2+h)*1024}"),lg.issue("W"))
    W=lambda lt,ct: [w1(lt,ct,0),w1(lt,ct,1)]
    LO=list(range(92,104))+[1,6,3,4]
    W2F=[LO[t>>1] if t%2==0 else W2P+(t>>1) for t in range(32)]
    unp=[]
    for k in range(16):
        unp.append(E(f"v_lshlrev_b32 v{LO[k]}, 16, v{W2P+k}")); unp.append(E(f"v_and_b32 v{W2P+k}, 0xffff0000, v{W2P+k}"))
    def bar2():
        e("s_waitcnt lgkmcnt(0)"); lg.done=len(lg.ops)
        if opt.its: e("s_memtime s[92:93]")
        if not opt.pst: st(82)
        e("s_barrier")
        if not opt.pst: st(84)
    for j in range(13):
        cm(f"---- iteration {j} ----")
        if opt.its==1 and j in ITS: e(f"s_memtime s[{ITS[j]}:{ITS[j]+1}]")
        if opt.its and j==12: opt.pst=1
        for g,lt in enumerate(LT):
            needs=[f"R{lt}_1_{j}"]+([f"T{j}_1_11"] if g==0 else [])
            if lg.pending(*needs): e(f"s_waitcnt lgkmcnt({lg.need(*needs)})")
            if opt.its==2 and j<2: e(f"s_memtime s[{76+2*(4*j+g)}:{77+2*(4*j+g)}]")
            fills=[[],[],[],[]]
            if j==0 and g==0 and opt.rp:
                fills[0].append(lambda: Rop(2,0)); fills[1].append(lambda: Rop(3,0)); fills[2].append(lambda: Rop(0,0))
            if j==0 and opt.d2late:
                if g<2 and opt.d2late==1:
                    fills[0].append(lambda g=g: dma(2,[2*g])); fills[2].append(lambda g=g: dma(2,[2*g+1]))
                if g>=2: fills[0]+= [wv(f'w1_{2*(g-2)+1}'),lambda g=g: Top(1,g-2)]
            elif j<12:
                if j==2: fills[1 if g<2 else 2].append(lambda g=g: bias_loads([g]))
                if j==1 and g<2 and opt.d2late:
                    fills[1].append(lambda g=g: dma(3,[2*g])); fills[2].append(lambda g=g: dma(3,[2*g+1]))
                if g<2: fills[0]+= [wv(f'w{j+1}_{2*g+1}'),lambda j=j,g=g: Top(j+1,g)]
                elif j+3<13:
                    fills[0]+= [wl(f'T{j+1}_{g-2}_11'),lambda j=j,g=g: dma(j+3,[2*(g-2)])]
                    fills[1].append(lambda j=j,g=g: dma(j+3,[2*(g-2)+1]))
            if j<12:
                fills[2].append(lambda j=j,lt=lt: adr(lt,j+1))
                fills[3].append(lambda j=j,lt=lt: Rop(lt,j+1))
            if j in (4,5,6,9) and g in (1,2):
                jj={4:0,5:1,6:2,9:3}[j]; ct=jj>>1; t0=(jj&1)*8+(g-1)*4
                if g==1 and j==4: fills[1].append(wv('bias3'))
                for i,ts in ((1,(0,1)),(2,(2,)),(3 if g==1 else 2,(3,))):
                    fills[i]+= [(lambda t=t0+t,ct=ct: badd(ct,t)) for t in ts]
            if j==7:
                sl={0:[(0,0),(0,5),(5,7),(7,9)],1:[(9,9),(9,15),(15,15),(15,15)],2:[(15,15),(15,15),(15,16),(16,16)],3:[(16,16),(16,16),(16,17),(17,18)]}[g]
                for i in range(4): fills[i]+=selops[sl[i][0]:sl[i][1]]
            if j==8 and g==0: fills[1].append(addrs)
            if j==8 and g==1: fills[1].append(addrs2); fills[2]+= [E(f"v_mov_b32 v{ONE}, 1"),E(f"v_mov_b32 v{vC1}, {f2u(C1)}"),E(f"v_mov_b32 v{S0}, 0"),E(f"v_mov_b32 v{S1}, 0")]
            if j==10 and g==0: fills[1].append(late1); fills[2].append(lambda: late2(0))
            if j==10 and g==1: fills[1].append(lambda: late2(1)); fills[2].append(lambda: late2(2))
            if j==10 and g==2: fills[0]+= [wl('T11_1_11'),inc(F_S1,"s1")]; fills[1].append(lambda: late2(3))
            if j==10 and g==3: fills[0].append(late3); fills[1].append(late4)
            if j==11:
                G={0:[[],[],[],[]],1:[[],[E("s_waitcnt vmcnt(0)")]+unp[:4],unp[4:6],unp[6:8]],2:[unp[8:12],unp[12:16],unp[16:18],unp[18:20]],3:[unp[20:24],unp[24:28],unp[28:30],unp[30:32]]}[g]
                for i in range(4): fills[i]+=G[i]
            if j==12:
                N=lambda k: E(f"s_nop {k}")
                G={0:[[],[],[bar2],[N(3)]],
                   1:[[N(3)]+cv(1,0)[:4]+W(1,0)[:1],cv(1,0)[4:]+W(1,0)[1:],cv(1,1)[:4]+W(1,1)[:1],cv(1,1)[4:]+W(1,1)[1:]],
                   2:[[N(1)]+cv(2,0)[:4]+W(2,0)[:1],cv(2,0)[4:]+W(2,0)[1:],cv(2,1)[:4]+W(2,1)[:1],cv(2,1)[4:]+W(2,1)[1:]],
                   3:[[N(1)]+cv(3,0)[:4]+W(3,0)[:1],cv(3,0)[4:]+W(3,0)[1:],cv(3,1)[:4]+W(3,1)[:1],cv(3,1)[4:]+W(3,1)[1:]+[inc(F_RED,"inc"),E(f"s_mov_b32 s{sT+2}, {f2u(C2)}")]]}[g]
                for i in range(4): fills[i]+=G[i]
            group(lt,[Fr(j,ks,ct) for ks in range(2) for ct in range(2)],afr(lt,0),j==0,fills)
    if not opt.pst: st(86)
    if ST: e("s_memtime s[98:99]")
    lds_spin("L_red",7,0,F_RED,4)
    if not opt.pst: st(88,True)
    if ST and opt.gcyc: e("s_memtime s[96:97]"); e("s_waitcnt lgkmcnt(0)")
    lg=Q(15)
    adds=[]
    for ct in range(2):
        for u in (1,2,3):
            for h in range(2):
                r=acc(u,ct)+4*h
                e(f"ds_read_b128 v[{r}:{r+3}], v{RA1} offset:{(u-1)*16384+(ct*2+h)*1024}"); lg.issue(f"p{ct}{u}{h}")
                def add(ct=ct,u=u,h=h,r=r):
                    if lg.pending(f"p{ct}{u}{h}"): e(f"s_waitcnt lgkmcnt({lg.need(f'p{ct}{u}{h}')})")
                    c=f"v[{acc(0,ct)}:{acc(0,ct)+15}]"
                    e(f"v_mfma_f32_32x32x16_bf16 {c}, v[{SEL+4*h}:{SEL+4*h+3}], v[{r}:{r+3}], {c}"); lastw[(0,ct)]=cnt[0]
                adds.append(add)
    for f in adds[:7]: f()
    adds=adds[7:]
    T=F0
    for q in range(8):
        a=ACC+4*q
        if q==opt.gq and opt.gateC==3: inc(F_G,"g")()
        def A():
            if adds: adds.pop(0)()
        hz((0,q>>2),12)
        for r in range(4): e(f"v_mul_f32 v{T+r}, v{a+r}, v{a+r}")
        for r in range(4): e(f"v_fma_f32 v{T+r}, v{T+r}, s{sT+2}, v{vC1}")
        A()
        for r in range(4): e(f"v_mul_f32 v{T+r}, v{T+r}, v{a+r}")
        for r in range(4): e(f"v_exp_f32 v{T+r}, v{T+r}")
        A()
        for r in range(4): e(f"v_mul_f32 v{a+r}, v{a+r}, v{W2F[4*q+r]}")
        for r in range(4): e(f"v_add_f32 v{T+r}, 1.0, v{T+r}")
        for r in range(4): e(f"v_rcp_f32 v{T+r}, v{T+r}")
        if adds: A()
        else: e("s_nop 0")
        for r in range(4): e(f"v_fmac_f32 v{S0 if r&1==0 else S1}, v{a+r}, v{T+r}")
    e(f"v_add_f32 v{S0}, v{S0}, v{S1}")
    e(f"v_mov_b32 v{S1}, v{S0}")
    e(f"s_movk_i32 s{sT}, 0xff")
    e(f"v_add_u32 v{EV}, 1, v{EV}")
    e(f"v_permlane32_swap_b32 v{S0}, v{S1}")
    e(f"s_lshl_b32 s{sT+1}, s{sCB}, 13")
    e(f"v_add_f32 v{S0}, v{S0}, v{S1}")
    e(f"s_add_u32 s{sT+1}, s{sT+1}, {GRAN}")
    e(f"v_bfi_b32 v{EV+1}, s{sT}, v{EV+1}, v{S0}")
    e(f"s_mov_b32 exec_hi, 0")
    e(f"buffer_store_dwordx2 v[{EV}:{EV+1}], v{VR}, s[{S_WS}:{S_WS+3}], s{sT+1} offen sc0 sc1")
    if ST:
        if opt.gcyc: e("s_memtime s[98:99]")
        if not opt.pst: st(90); e("s_waitcnt vmcnt(0)"); st(92,True)
        e("s_waitcnt lgkmcnt(0)"); e("s_sub_u32 s98, s98, s96")
        if opt.its:
            for r in range(76,94,2):
                e(f"s_sub_u32 s{r}, s{r}, s96"); e(f"s_mul_i32 s{r}, s{r}, 100"); e(f"s_add_u32 s{r}, s{r}, s10")
        dump([10,76,78,80,82,84,86,88,90,92,98])
    e("s_endpgm")

    sec("hpro")
    def late_sloads():
        e(f"s_lshl_b32 s{sT+8}, s{sROW}, 3")
        e(f"s_add_u32 s{sT+8}, s{sT+8}, {EPOCH}")
        e(f"s_load_dwordx2 s[{sE}:{sE+1}], s[{P_WS}:{P_WS+1}], s{sT+8}")
        e(f"s_load_dword s9, s[{P_BO}:{P_BO+1}], 0")
    X=32
    def x0_addrs():
        e("v_and_b32 v3, 31, v2")
        e("v_lshlrev_b32 v4, 2, v3")
        for r in range(26): e(f"v_readlane_b32 s{76+r}, v29, {r}")
        e("s_mov_b32 exec_hi, 0")
        for r in range(26): e(f"v_xor_b32 v{X+r}, s{76+r}, v4")
        e("s_mov_b64 exec, -1")
        e("s_mov_b32 exec_lo, 0")
        for r in range(26): e(f"v_xor_b32 v{X+r}, s{76+(r+1)%26}, v4")
        e("s_mov_b64 exec, -1")
    lab("L_help_pro")
    rowidx_load()
    tloop(opt.nt0-opt.n0)
    e(f"v_mov_b32 v7, {FLAGS}")
    e("v_mov_b32 v8, 0"); e("v_mov_b32 v9, 0")
    e("ds_write2_b64 v7, v[8:9], v[8:9] offset1:1")
    e("ds_write2_b64 v7, v[8:9], v[8:9] offset0:2 offset1:3")
    e(f"s_waitcnt vmcnt({opt.nt0+1})")
    e("s_barrier")
    tloop(opt.nt1)
    e("s_waitcnt lgkmcnt(0)")
    e("s_barrier")
    if opt.trim:
        e(f"s_cmp_eq_u32 s{sWAVE}, 4")
        e(f"s_cselect_b32 s{sT+3}, {16-opt.nt0-opt.nt1-1}, {16-opt.nt0-opt.nt1-2}")
        tloop()
    else: tloop(16-opt.nt0-opt.nt1)
    e("s_branch L_help_b")
    sec("help"); lab("L_help_b")
    e(f"s_waitcnt vmcnt({15-opt.n0})")
    if opt.xlds:
        e("v_lshlrev_b32 v8, 3, v29"); e("v_and_b32 v8, 0x70, v8"); e("v_lshl_or_b32 v29, v29, 7, v8")
    else: e("v_lshlrev_b32 v29, 7, v29")
    x0_addrs()
    e("s_waitcnt vmcnt(0)")
    e("s_barrier")
    if opt.xsl: e(f"s_sleep {opt.xsl}")
    if opt.xlds:
        for r in range(26):
            e(f"ds_read_b32 v{X+r}, v{X+r}")
            if opt.xgap and r%opt.xgap==opt.xgap-1: e("s_sleep 1")
        e("s_branch L_help_main")
    lab("L_help_x0")
    for r in range(26):
        e(f"buffer_load_dword v{X+r}, v{X+r}, s[{S_TBL}:{S_TBL+3}], 0 offen")
    lab("L_help_main")
    srd(S_WS,P_WS,WS_SIZE); srd(S_A,P_DBG,256); srd(S_B,P_OUT,2048)
    Z0=8
    ZE=lambda s: Z0+4*s
    ZO=lambda s: Z0+88+4*s
    LE=lambda k: Z0+176+4*k
    LO=lambda k: Z0+184+4*k
    R=200; MT=252
    e("v_lshrrev_b32 v5, 2, v3")
    e("v_mul_u32_u24 v5, 5888, v5")
    e("v_and_b32 v6, 3, v2")
    e("v_lshl_add_u32 v5, v6, 4, v5")
    e("v_lshrrev_b32 v6, 5, v2")
    e("v_lshl_add_u32 v5, v6, 6, v5")
    e("v_mov_b32 v7, 0x7fff0000")
    e("v_cmp_gt_u32 vcc, 26, v3")
    e("v_lshlrev_b32 v6, 13, v2")
    e(f"s_lshl_b32 s{sT}, s{sROW}, 3")
    e("v_cndmask_b32 v5, v7, v5, vcc")
    e(f"s_add_u32 s{sT}, s{sT}, {GRAN}")
    e(f"v_add_u32 v6, s{sT}, v6")
    e("v_cmp_gt_u32 vcc, 26, v2")
    e("v_lshlrev_b32 v1, 4, v2")
    e(f"v_add_u32 v1, 97280, v1")
    e("v_cndmask_b32 v6, v7, v6, vcc")
    e(f"v_mov_b32 v7, {FLAGS}")
    e("s_waitcnt vmcnt(0) lgkmcnt(0)")
    late_sloads()
    if opt.enc in (96,97):
        e("s_cmp_ge_u32 s2, 8")
        e("s_cbranch_scc1 L_nost")
        e("v_mov_b32 v0, s10")
        e("s_lshl_b32 s12, s2, 2")
        e(f"buffer_store_dword v0, off, s[{S_A}:{S_A+3}], s12 offset:64 sc0 sc1")
        lab("L_nost")
    st(76)
    for r in range(26):
        e(f"v_lshlrev_b32 v{R+2*r}, 16, v{X+r}")
        e(f"v_and_b32 v{R+2*r+1}, 0xffff0000, v{X+r}")
    def zstep(s):
        if opt.noz: return
        for m in range(4):
            (a1,a2),(b1,b2)=pair_of(8*s+2*m),pair_of(8*s+2*m+1)
            e(f"v_mul_f32 v{MT}, v{R+2*a1}, v{R+2*a2}")
            e(f"v_mul_f32 v{MT+2}, v{R+2*b1}, v{R+2*b2}")
            e(f"v_mul_f32 v{MT+1}, v{R+2*a1+1}, v{R+2*a2+1}")
            e(f"v_mul_f32 v{MT+3}, v{R+2*b1+1}, v{R+2*b2+1}")
            e(f"v_cvt_pk_bf16_f32 v{ZE(s)+m}, v{MT}, v{MT+2}")
            e(f"v_cvt_pk_bf16_f32 v{ZO(s)+m}, v{MT+1}, v{MT+3}")
    def zlin():
        for k in range(2):
            for m2 in range(4):
                m=k*8+2*m2
                for tl,d in ((0,LE(k)+m2),(1,LO(k)+m2)):
                    if m+1<=12: e(f"v_cvt_pk_bf16_f32 v{d}, v{R+4*m+tl}, v{R+4*(m+1)+tl}")
                    elif m==12: e(f"v_cvt_pk_bf16_f32 v{d}, v{R+4*m+tl}, 1.0")
                    else: e(f"v_mov_b32 v{d}, 0")
    SC=" sc1" if opt.csc else ""
    zlin()
    for s in range(opt.zsplit): zstep(s)
    st(78)
    e(f"s_load_dwordx8 s[92:99], s[{P_DBG}:{P_DBG+1}], 0")
    e("s_waitcnt lgkmcnt(0)")
    for k in range(1,7): e(f"s_and_b32 s92, s92, s{92+k}")
    e("s_cmp_lg_u32 s92, 0")
    e("s_cbranch_scc1 L_polled")
    lds_spin("L_it9",7,4,F_S1,4,sleep=4)
    e(f"v_lshlrev_b32 v0, 2, v2")
    e(f"buffer_load_dword v4, v0, s[{S_A}:{S_A+3}], 0 offen sc1")
    for s in range(opt.zsplit,opt.zmid): zstep(s)
    e(f"s_mov_b32 s{sT+4}, {opt.bound}")
    e(f"s_mov_b32 s{sT+2}, 0x7f")
    e(f"s_mov_b32 s{sT+3}, 0")
    lab("L_poll1")
    e("s_waitcnt vmcnt(0)")
    e("v_cmp_ne_u32 vcc, 0, v4")
    e(f"s_and_b64 vcc, vcc, s[{sT+2}:{sT+3}]")
    e(f"s_cmp_eq_u64 vcc, s[{sT+2}:{sT+3}]")
    e("s_cbranch_scc1 L_polled")
    e(f"s_sleep {opt.psleep}")
    e(f"buffer_load_dword v4, v0, s[{S_A}:{S_A+3}], 0 offen sc1")
    e(f"s_sub_u32 s{sT+4}, s{sT+4}, 1")
    e("s_cbranch_scc0 L_poll1")
    lab("L_polled")
    if opt.inv: e("buffer_inv sc1")
    st(80)
    lds_spin("L_s1",7,0,F_S1,4,sleep=2)
    e(f"s_sub_u32 s{sT}, s{sWAVE}, 4")
    e(f"s_lshl_b32 s{sT+1}, s{sT}, 13")
    e(f"s_add_u32 m0, s{sT+1}, {RING+4096}")
    e(f"s_lshl_b32 s{sT}, s{sT}, 9")
    e(f"s_sub_u32 s{sT}, s{sT}, 256")
    for t in range(4):
        if t<2:
            e(f"s_cmp_eq_u32 s{sWAVE}, 4")
            e(f"s_cselect_b32 s{sT+1}, {(44+t)*128}, s{sT}")
        else: e(f"s_mov_b32 s{sT+1}, s{sT}")
        e(f"buffer_load_dwordx4 v5, s[{S_WS}:{S_WS+3}], s{sT+1} offen sc1 lds")
        if t<3:
            e(f"s_add_u32 m0, m0, 1024")
            e(f"s_add_u32 s{sT}, s{sT}, 128")
    for s in range(opt.zmid,opt.zbar): zstep(s)
    e("s_waitcnt vmcnt(0)")
    st(82)
    e("s_barrier")
    for s in range(opt.zbar,22): zstep(s)
    def hinc(off):
        e("v_mov_b32 v0, 1")
        e("s_mov_b64 exec, 1")
        e("s_waitcnt vmcnt(0)")
        e(f"ds_add_u32 v7, v0 offset:{off}")
        e("s_mov_b64 exec, -1")
    CWB=97280
    def dmaB():
        e(f"s_sub_u32 s{sT}, s{sWAVE}, 4")
        e(f"s_lshl_b32 s{sT+1}, s{sT}, 10")
        e(f"s_add_u32 m0, s{sT+1}, {CWB}")
        e(f"s_lshl_b32 s{sT}, s{sT}, 7")
        e(f"s_add_u32 s{sT}, s{sT}, {14*128}")
        for t in range(8):
            if t==7:
                e(f"s_cmp_ge_u32 s{sWAVE}, 6")
                e("s_cbranch_scc1 L_dma_done")
            e(f"buffer_load_dwordx4 v5, s[{S_WS}:{S_WS+3}], s{sT} offen sc1 lds")
            if t<7:
                e(f"s_add_u32 m0, m0, 4096")
                e(f"s_add_u32 s{sT}, s{sT}, 512")
        lab("L_dma_done")
    if opt.bstep<0:
        if opt.bgate: lds_spin("L_wred",7,0,F_RED,4,sleep=1)
        dmaB()
    st(84)
    AUE,AUO=200,216; RG=232
    AXE=LE(0); AXO=ZE(0)
    vm=Q(63); lg=Q(15)
    seq=[('eo',22),('eo',23)]+[('e',s) for s in range(4)]+[('o',s) for s in range(4)]+[('eo',s) for s in range(4,22)]
    free=[RG+4*k for k in range(6)]
    reg={}
    lL=[]; lG=[]
    for i,(tl,s) in enumerate(seq):
        for k,fi in ([('x',2*s),('u',2*s+1)] if s<22 else [('u',44+s-22)]): lL.append((i,k,fi))
    cur=[0]; okB=[False]
    def ld():
        if not free or not lL or lL[0][0]>cur[0]+opt.look: return False
        i,k,fi=lL[0]
        if 14<=fi<44 and not okB[0]: return False
        lL.pop(0); r=free.pop(0); reg[(i,k)]=r
        if 14<=fi<44: off=(fi-14)*1024
        else:
            p=fi+2 if fi<14 else fi-44
            off=RING+4096-CWB+(p>>2)*8192+(p&3)*1024
        e(f"ds_read_b128 v[{r}:{r+3}], v1 offset:{off}"); lg.issue(f"{k}{i}")
        return True
    if opt.gateC: lds_spin("L_gC",7,0,{1:F_RED,3:F_G}[opt.gateC],4,sleep=1)
    st(88,True)
    if ST: e("s_memtime s[96:97]"); e("s_waitcnt lgkmcnt(0)")
    while ld(): pass
    first={'xe':1,'xo':1,'ue':1,'uo':1}
    GV=RG; rel=[]
    for i,(tl,s) in enumerate(seq):
        cur[0]=i
        CS={2:76,6:78,10:80,12:82,13:84,16:86,20:88,24:92}
        if opt.cst and i in CS: e(f"s_memtime s[{CS[i]}:{CS[i]+1}]")
        if i==opt.bstep:
            if opt.bgate: lds_spin("L_wred",7,0,F_RED,4,sleep=1); lg.done=len(lg.ops)
            dmaB()
        if i==opt.bstep2: hinc(F_CW2); lg.issue("cw2")
        if i==12:
            lds_spin("L_cw2",7,0,F_CW2,4); lg.done=len(lg.ops); okB[0]=True
            while ld(): pass
        q,nm=(lg,"lgkmcnt") if f'u{i}' in lg.ops else (vm,"vmcnt")
        if q.pending(f'u{i}'): e(f"s_waitcnt {nm}({q.need(f'u{i}')})")
        n=0
        for t in tl:
            z=(ZE if t=='e' else ZO)(s) if s<22 else (LE if t=='e' else LO)(s-22)
            for k,a in (('x',AXE if t=='e' else AXO),('u',AUE if t=='e' else AUO)):
                if (i,k) not in reg: continue
                c=f"v[{a}:{a+15}]"; r=reg[(i,k)]
                e(f"v_mfma_f32_32x32x16_bf16 {c}, v[{r}:{r+3}], v[{z}:{z+3}], {0 if first[k+t] else c}"); first[k+t]=0; lastw[t]=cnt[0]
                n+=1
                if n==1: free+=rel; rel=[]
                ld()
                if len(tl)==1: ld()
            if s<22 and not (t=='e' and s<4): rel.append(z)
        rel+= [reg[(i,k)] for k in 'xu' if (i,k) in reg]
        if i==len(seq)-3:
            assert not lL and not lG
            GV=free.pop(0)
            e(f"buffer_load_dwordx2 v[{GV}:{GV+1}], v6, s[{S_WS}:{S_WS+3}], 0 offen sc1"); vm.issue("gv")
    V=free.pop(0); V2=V+1
    e(f"s_add_u32 s{sE}, s{sE}, 1")
    e(f"s_and_b32 s{sE+1}, s{sE+1}, 0xff")
    e("s_lshl_b32 s9, s9, 16")
    e(f"s_lshl_b32 s{sT+6}, s{sROW}, 1")
    e(f"s_lshl_b32 s{sT+7}, s{sROW}, 3")
    e(f"s_add_u32 s{sT+7}, s{sT+7}, {EPOCH}")
    e(f"v_mov_b32 v{V+3}, s{sE}")
    hz('e',12)
    e(f"v_mul_f32 v{V}, v{AXE}, v{AUE}")
    e(f"v_mul_f32 v{V2}, v{AXE+1}, v{AUE+1}")
    for t in range(2,14): e(f"v_fmac_f32 v{V+(t&1)}, v{AXE+t}, v{AUE+t}")
    hz('o',12)
    for t in range(14): e(f"v_fmac_f32 v{V+(t&1)}, v{AXO+t}, v{AUO+t}")
    e(f"v_add_f32 v{V}, v{V}, v{V2}")
    st(90)
    if ST: e("s_memtime s[98:99]")
    e("s_mov_b32 exec_lo, 0x3ffffff")
    e("s_mov_b32 exec_hi, 0")
    e(f"s_mov_b32 s{sT+4}, {opt.bound}")
    G2=GV+2
    def chk(g,lbl):
        e(f"v_and_b32 v{V2}, 0xff, v{g+1}")
        e(f"v_cmp_eq_u32 vcc, s{sE}, v{g}")
        e(f"v_cmp_eq_u32 s[{sT}:{sT+1}], s{sE+1}, v{V2}")
        e(f"v_and_b32 v{V2}, 0xffffff00, v{g+1}")
        e(f"s_and_b64 vcc, vcc, s[{sT}:{sT+1}]")
        e("s_cmp_eq_u64 vcc, exec")
        e(f"s_cbranch_scc1 L_got")
    lab("L_poll2")
    e(f"buffer_load_dwordx2 v[{G2}:{G2+1}], v6, s[{S_WS}:{S_WS+3}], 0 offen sc1")
    e("s_waitcnt vmcnt(1)")
    chk(GV,0)
    e(f"buffer_load_dwordx2 v[{GV}:{GV+1}], v6, s[{S_WS}:{S_WS+3}], 0 offen sc1")
    e("s_waitcnt vmcnt(1)")
    chk(G2,1)
    e(f"s_sub_u32 s{sT+4}, s{sT+4}, 1")
    e("s_cbranch_scc0 L_poll2")
    lab("L_got")
    e(f"v_add_f32 v{V}, v{V}, v{V2}")
    e("s_mov_b64 exec, -1")
    if not opt.cst: st(92)
    for dpp in ["quad_perm:[1,0,3,2] row_mask:0xf bank_mask:0xf","quad_perm:[2,3,0,1] row_mask:0xf bank_mask:0xf",
                "row_half_mirror row_mask:0xf bank_mask:0xf","row_mirror row_mask:0xf bank_mask:0xf",
                "row_bcast:15 row_mask:0xa bank_mask:0xf","row_bcast:31 row_mask:0xc bank_mask:0xf"]:
        e("s_nop 1")
        e(f"v_add_f32_dpp v{V}, v{V}, v{V} {dpp}")
    e("s_mov_b32 exec_lo, 0")
    e("s_mov_b32 exec_hi, 0x80000000")
    e(f"v_add_f32 v{V}, s9, v{V}")
    e(f"v_cvt_pk_bf16_f32 v{V}, v{V}, v{V}")
    e(f"buffer_store_short v{V}, off, s[{S_B}:{S_B+3}], s{sT+6}")
    e(f"buffer_store_dword v{V+3}, off, s[{S_WS}:{S_WS+3}], s{sT+7}")
    if ST:
        e("s_waitcnt vmcnt(0)"); st(94,True); e("s_sub_u32 s98, s98, s96")
        if opt.cst:
            for r in (76,78,80,82,84,86,88,92):
                e(f"s_sub_u32 s{r}, s{r}, s96"); e(f"s_mul_i32 s{r}, s{r}, 100"); e(f"s_add_u32 s{r}, s{r}, s10")
        dump([10,76,78,80,82,84,86,88,90,92,94,98],0,1)
    e("s_endpgm")

    sec("pref")
    lab("L_aux")
    if opt.foldx:
        e(f"s_mov_b32 s{sT+1}, s{sXCD}")
    else:
        e(f"s_lshl1_add_u32 s{sT+1}, s{sXCD}, s{sSLOT}")
        e(f"s_sub_u32 s{sT+1}, s{sT+1}, 26")
    e(f"s_cmp_lt_u32 s{sT+1}, 7")
    e("s_cbranch_scc1 L_fold")
    sec("fold0"); lab("L_fold")
    cm("---- CIN weight folding: rows i = 4*pidx + (wave&3) ----")
    S_C=S_W; S_O=S_B; sI=6
    e(f"s_and_b32 s{sT}, s{sWAVE}, 3")
    e(f"s_lshl2_add_u32 s{sI}, s{sT+1}, s{sT}")
    M=16
    e("v_lshlrev_b32 v3, 2, v0")
    e("v_mov_b32 v7, 0x7fff0000")
    e(f"s_movk_i32 s{sT+1}, 338")
    e(f"v_cmp_gt_u32 vcc, s{sT+1}, v0")
    e("v_lshrrev_b32 v4, 1, v2")
    e("v_and_b32 v5, 1, v2")
    e("v_cndmask_b32 v3, v7, v3, vcc")
    e("v_lshlrev_b32 v4, 3, v4")
    e("s_waitcnt lgkmcnt(0)")
    e(f"s_load_dwordx16 s[76:91], s[{P_WOUT}:{P_WOUT+1}], 104")
    srd(S_C,P_CIN,105456)
    for gg in range(26):
        if gg%3==0: e(f"s_mov_b32 s{sT+2}, {2*35152+gg*1352}")
        e(f"buffer_load_dword v{M+gg}, v3, s[{S_C}:{S_C+3}], s{sT+2} offen offset:{(gg%3)*1352}")
    e("s_branch L_fold_b")
    sec("fold"); lab("L_fold_b")
    PP=44; QQ=52
    def slots():
        for ee in range(8):
            e(f"v_add_u32 v8, {ee}, v4")
            e("v_mul_u32_u24 v9, 5042, v8")
            e("v_lshrrev_b32 v9, 16, v9")
            e("v_mul_u32_u24 v10, 13, v9")
            e("v_sub_u32 v10, v8, v10")
            e(f"v_lshl_add_u32 v{PP+ee}, v10, 1, v5")
            e(f"v_add_u32 v{QQ+ee}, v{PP+ee}, v9")
            e(f"v_subrev_u32 v10, 26, v{QQ+ee}")
            e(f"v_min_u32 v{QQ+ee}, v{QQ+ee}, v10")
    def m3(later):
        e("v_mul_u32_u24 v8, 5042, v0")
        e("v_lshrrev_b32 v8, 16, v8")
        e("v_mul_u32_u24 v9, 13, v8")
        e("v_sub_u32 v9, v0, v9")
        e("v_lshlrev_b32 v9, 7, v9")
        e("v_lshl_add_u32 v96, v8, 1, v9")
        e("s_waitcnt lgkmcnt(0)")
        st(92)
        for gg in range(26):
            sreg=76+(gg>>1)
            if gg&1: e(f"s_and_b32 s{sT+4+(gg&1)}, s{sreg}, 0xffff0000")
            else:    e(f"s_lshl_b32 s{sT+4+(gg&1)}, s{sreg}, 16")
            if gg%4==0: e(f"s_waitcnt vmcnt({later+25-min(gg+3,25)})")
            e(f"v_lshlrev_b32 v8, 16, v{M+gg}")
            e(f"v_and_b32 v9, 0xffff0000, v{M+gg}")
            if gg==0:
                e(f"v_mul_f32 v10, s{sT+4}, v8"); e(f"v_mul_f32 v11, s{sT+4}, v9")
            else:
                e(f"v_fmac_f32 v10, s{sT+4+(gg&1)}, v8"); e(f"v_fmac_f32 v11, s{sT+4+(gg&1)}, v9")
        e("v_cvt_pk_bf16_f32 v10, v10, v11")
        e(f"s_movk_i32 s{sT+1}, 338")
        e(f"v_cmp_gt_u32 vcc, s{sT+1}, v0")
        e(f"s_and_saveexec_b64 s[{sT+2}:{sT+3}], vcc")
        e("ds_write_b16 v96, v10")
        e("ds_write_b16_d16_hi v96, v10 offset:64")
        e("s_mov_b64 exec, -1")
        st(94)
    def st_addr(cnt):
        e("v_lshlrev_b32 v6, 7, v6")
        e("v_lshl_add_u32 v6, v5, 6, v6")
        e(f"s_and_b32 s{sT+1}, s{sWAVE}, 3")
        e(f"s_lshl_b32 s{sT+1}, s{sT+1}, 4")
        e(f"s_add_u32 s{sT+1}, s{sT+1}, {STG}")
        e(f"v_add_u32 v6, s{sT+1}, v6")
        e(f"v_cmp_gt_u32 vcc, {cnt}, v2")
        e("v_mov_b32 v94, 1.0")
        e(f"v_mov_b32 v8, {STG+8192}")
        e("v_cndmask_b32 v6, v8, v6, vcc")
        e("v_cmp_gt_u32 vcc, 2, v2")
        e("s_nop 1")
        e("v_cndmask_b32 v95, v94, 0.5, vcc")
        e("v_cmp_gt_u32 vcc, 4, v2")
        e("s_nop 1")
        e("v_cndmask_b32 v94, v94, 0.5, vcc")
    e(f"s_cmp_ge_u32 s{sWAVE}, 4")
    e("s_cbranch_scc1 L_aux_w1")
    Pq=60; PR=76; RA=68; VV=16
    e("v_and_b32 v8, 31, v2")
    e("v_lshrrev_b32 v15, 5, v2")
    e(f"v_mul_u32_u24 v10, {8*1352}, v15")
    e("v_lshl_add_u32 v10, v8, 1, v10")
    e("v_cmp_gt_u32 vcc, 26, v8")
    e(f"s_mul_i32 s{sT+3}, s{sI}, 52")
    e(f"s_add_u32 s{sT+3}, s{sT+3}, 35152")
    e("v_cndmask_b32 v10, v7, v10, vcc")
    e("v_cmp_gt_u32 vcc, 32, v2")
    e("v_lshlrev_b32 v12, 2, v2")
    e("s_nop 0")
    e("v_cndmask_b32 v11, v7, v10, vcc")
    for s in range(2):
        for ee in range(8):
            h=16*s+ee
            if h%3==0 or ee==0:
                hb=h; e(f"s_add_u32 s{sT+2}, s{sT+3}, {h*1352}")
            va=11 if (s==1 and ee>=2) else 10
            e(f"buffer_load_ushort v{PR+s*8+ee}, v{va}, s[{S_C}:{S_C+3}], s{sT+2} offen offset:{(h-hb)*1352}")
    srd(S_O,P_WOUT,156)
    e(f"buffer_load_dword v13, v12, s[{S_O}:{S_O+3}], 0 offen offset:52")
    e(f"s_lshl_b32 s{sT+2}, s{sI}, 1")
    e(f"buffer_load_ushort v14, off, s[{S_O}:{S_O+3}], s{sT+2}")
    e("v_lshlrev_b32 v8, 6, v2")
    e("v_mov_b32 v9, 0")
    e("s_mov_b32 exec_lo, 0x7ffffff")
    e("s_mov_b32 exec_hi, 0")
    e("ds_write_b32 v8, v9 offset:52")
    e("ds_write_b32 v8, v9 offset:56")
    e("ds_write_b32 v8, v9 offset:60")
    e("s_mov_b64 exec, -1")
    e("v_and_b32 v8, 31, v2")
    e("v_lshlrev_b32 v93, 6, v8")
    e("v_lshl_add_u32 v93, v15, 4, v93")
    e(f"s_mul_i32 s{sT+1}, s{sWAVE}, 5120")
    e(f"s_add_u32 s{sT+1}, s{sT+1}, 4096")
    e("v_mul_u32_u24 v92, 144, v8")
    e("v_lshl_add_u32 v92, v15, 4, v92")
    e(f"v_add_u32 v92, s{sT+1}, v92")
    slots()
    e("v_cmp_lt_u32 vcc, 43, v2")
    e("v_subrev_u32 v10, 176, v4")
    e("v_mov_b32 v11, 26")
    for ee in range(8):
        e(f"v_add_u32 v8, {ee}, v10")
        e("v_lshl_add_u32 v8, v8, 1, v5")
        e(f"v_min_u32 v8, 31, v8")
        e(f"v_cndmask_b32 v8, v{QQ+ee}, v8, vcc")
        e(f"v_cndmask_b32 v9, v{PP+ee}, v11, vcc")
        e(f"v_mul_u32_u24 v9, 144, v9")
        e(f"v_lshl_add_u32 v9, v8, 2, v9")
        e(f"v_add_u32 v{RA+ee}, s{sT+1}, v9")
    e("v_lshrrev_b32 v8, 1, v2")
    e("v_lshl_add_u32 v6, v8, 1, 1")
    e("v_add_u32 v8, 22, v8")
    e("v_cndmask_b32 v6, v6, v8, vcc")
    st_addr(48)
    m3(18)
    e("s_mov_b32 exec_lo, 0x1fff")
    e("s_mov_b32 exec_hi, 0")
    e("s_waitcnt vmcnt(0)")
    e(f"ds_write_b32 v12, v13 offset:{26*64}")
    e("s_mov_b64 exec, -1")
    for r in range(8): e(f"v_lshl_or_b32 v{Pq+r}, v{PR+2*r+1}, 16, v{PR+2*r}")
    e("s_waitcnt lgkmcnt(0)")
    e("s_barrier")
    Qq=16; D=24
    e(f"ds_read_b128 v[{Qq}:{Qq+3}], v93")
    e(f"ds_read_b128 v[{Qq+4}:{Qq+7}], v93 offset:32")
    e("s_waitcnt lgkmcnt(0)")
    e(f"v_mfma_f32_32x32x16_bf16 v[{D}:{D+15}], v[{Pq}:{Pq+3}], v[{Qq}:{Qq+3}], 0")
    e(f"v_mfma_f32_32x32x16_bf16 v[{D}:{D+15}], v[{Pq+4}:{Pq+7}], v[{Qq+4}:{Qq+7}], v[{D}:{D+15}]")
    e(f"v_mfma_f32_32x32x16_bf16 v[{D}:{D+15}], v[{Qq}:{Qq+3}], v[{Pq}:{Pq+3}], v[{D}:{D+15}]")
    e(f"v_mfma_f32_32x32x16_bf16 v[{D}:{D+15}], v[{Qq+4}:{Qq+7}], v[{Pq+4}:{Pq+7}], v[{D}:{D+15}]")
    e("s_nop 11")
    for m in range(4):
        e(f"ds_write_b128 v92, v[{D+4*m}:{D+4*m+3}] offset:{m*32}")
    e("s_waitcnt lgkmcnt(0)")
    for ee in range(8): e(f"ds_read_b32 v{VV+ee}, v{RA+ee}")
    e("v_lshlrev_b32 v14, 16, v14")
    e(f"v_cmp_eq_u32 s[{sT}:{sT+1}], 46, v2")
    e(f"v_cmp_eq_u32 s[{sT+2}:{sT+3}], 47, v2")
    e("v_cmp_lt_u32 vcc, 45, v2")
    e("s_waitcnt lgkmcnt(0)")
    e(f"v_cndmask_b32 v{VV+5}, v{VV+5}, v14, s[{sT}:{sT+1}]")
    e(f"v_cndmask_b32 v{VV+5}, v{VV+5}, 0, s[{sT+2}:{sT+3}]")
    e(f"v_cndmask_b32 v{VV+6}, v{VV+6}, 0, vcc")
    e(f"v_cndmask_b32 v{VV+7}, v{VV+7}, 0, vcc")
    e("s_branch L_aux_pack")
    lab("L_aux_w1")
    GA=60; GB=68
    e(f"s_mul_i32 s{sT+3}, s{sI}, 1352")
    e(f"s_lshl_b32 s{sT+6}, s{sWAVE}, 11")
    e(f"s_add_u32 s{sT+6}, s{sT+6}, {32768-4*2048}")
    e(f"s_mov_b32 m0, s{sT+6}")
    e("v_lshlrev_b32 v12, 4, v2")
    e(f"buffer_load_dwordx4 v12, s[{S_C}:{S_C+3}], s{sT+3} offen lds")
    e(f"buffer_load_dwordx4 v12, s[{S_C}:{S_C+3}], s{sT+3} offen offset:1024 lds")
    slots()
    for ee in range(8):
        e(f"v_mul_u32_u24 v8, 26, v{PP+ee}")
        e(f"v_add_lshl_u32 v8, v8, v{QQ+ee}, 1")
        e(f"v_add_u32 v{GA+ee}, s{sT+6}, v8")
        e(f"v_mul_u32_u24 v9, 26, v{QQ+ee}")
        e(f"v_add_lshl_u32 v9, v9, v{PP+ee}, 1")
        e(f"v_add_u32 v{GB+ee}, s{sT+6}, v9")
    e("v_and_b32 v6, 62, v2")
    st_addr(44)
    m3(2)
    e("s_waitcnt lgkmcnt(0)")
    e("s_barrier")
    e("s_waitcnt vmcnt(0)")
    for ee in range(8):
        e(f"ds_read_u16 v{GA+ee}, v{GA+ee}")
        e(f"ds_read_u16 v{GB+ee}, v{GB+ee}")
    e("s_waitcnt lgkmcnt(0)")
    for ee in range(8):
        e(f"v_lshlrev_b32 v{GA+ee}, 16, v{GA+ee}")
        e(f"v_lshlrev_b32 v{GB+ee}, 16, v{GB+ee}")
        e(f"v_add_f32 v{VV+ee}, v{GA+ee}, v{GB+ee}")
    lab("L_aux_pack")
    srd(S_WS,P_WS,WS_SIZE); srd(S_A,P_DBG,256)
    e("v_cmp_eq_u32 vcc, 43, v2")
    for ee in range(8): e(f"v_mul_f32 v{VV+ee}, v{VV+ee}, v{94 if ee<5 else 95}")
    e(f"v_cndmask_b32 v{VV+7}, v{VV+7}, 0, vcc")
    for m in range(4): e(f"v_cvt_pk_bf16_f32 v{24+m}, v{VV+2*m}, v{VV+2*m+1}")
    e("ds_write_b128 v6, v[24:27]")
    e("v_lshlrev_b32 v8, 4, v0")
    e(f"s_movk_i32 s{sT+1}, 368")
    e(f"v_cmp_gt_u32 vcc, s{sT+1}, v0")
    e(f"s_lshr_b32 s{sT}, s{sI}, 2")
    e(f"s_mul_i32 s{sT+2}, s{sT}, 5888")
    e("v_cndmask_b32 v9, v7, v8, vcc")
    e("s_waitcnt lgkmcnt(0)")
    e("s_barrier")
    e(f"ds_read_b128 v[24:27], v8 offset:{STG}")
    e("s_waitcnt lgkmcnt(0)")
    e(f"buffer_store_dwordx4 v[24:27], v9, s[{S_WS}:{S_WS+3}], s{sT+2} offen sc0 sc1")
    st(96)
    e(f"s_lshl_b32 s{sT}, s{sT}, 2")
    e("v_mov_b32 v8, 1")
    e("s_waitcnt vmcnt(0)")
    e("s_barrier")
    e(f"s_cmp_lg_u32 s{sWAVE}, 0")
    e("s_cbranch_scc1 L_noflag")
    e("s_mov_b64 exec, 1")
    e(f"buffer_store_dword v8, off, s[{S_A}:{S_A+3}], s{sT} sc0 sc1")
    e("s_mov_b64 exec, -1")
    lab("L_noflag")
    if ST:
        st(98); e("s_waitcnt vmcnt(0)"); st(100,True)
        dump([10,92,94,96,98,100],1,2)
    e("s_branch L_aux_done")
    sec("pref")
    lab("L_prefetch")
    e("s_waitcnt lgkmcnt(0)")
    if opt.pdel: e(f"s_sleep {opt.pdel}")
    if opt.pf:
        srd(S_W,P_W,1664*3328)
        if opt.foldx:
            e(f"s_cmp_lt_u32 s{sXCD}, 7")
            e(f"s_cselect_b32 s{sT+2}, 27, 26")
        else:
            e(f"s_cmp_lt_u32 s{sXCD}, 4")
            e(f"s_cselect_b32 s{sT+2}, 27, 26")
            e(f"s_cmp_lt_u32 s{sXCD}, 3")
            e(f"s_cselect_b32 s{sT+2}, 28, s{sT+2}")
        e(f"s_sub_u32 s{sT}, s{sSLOT}, s{sT+2}")
        e(f"s_sub_u32 s{sT+2}, 32, s{sT+2}")
        e(f"s_mul_i32 s{sT+1}, s{sXCD}, 26")
        e(f"s_lshr_b32 s{sT+1}, s{sT+1}, 3")
        e(f"s_lshl_b32 s{sT+1}, s{sT+1}, 7")
        for u in range(3):
            e(f"v_add_u32 v3, {512*u}, v0")
            e(f"v_mul_u32_u24 v3, s{sT+2}, v3")
            e(f"v_add_u32 v3, s{sT}, v3")
            e("v_lshrrev_b32 v4, 2, v3")
            if opt.pskip: e(f"v_add_u32 v4, {opt.pskip}, v4")
            e("v_and_b32 v3, 3, v3")
            e(f"v_mul_u32_u24 v4, 3328, v4")
            e("v_lshl_add_u32 v3, v3, 7, v4")
            e(f"buffer_load_dword v{9+u}, v3, s[{S_W}:{S_W+3}], s{sT+1} offen")
            if u<2 and opt.pbar: e("s_barrier")
        e(f"s_cmp_lg_u32 s{sSLOT}, 31")
        e("s_cbranch_scc1 L_aux_done")
        srd(S_B,P_W2,3328); srd(S_WS,P_WS,EPOCH+8192)
        e("v_lshlrev_b32 v3, 7, v0")
        e(f"buffer_load_dword v13, v3, s[{S_B}:{S_B+3}], 0 offen")
        e(f"s_mov_b32 s{sT}, {EPOCH}")
        e(f"buffer_load_dword v14, v3, s[{S_WS}:{S_WS+3}], s{sT} offen")
    e("s_branch L_aux_done")
    sec("fold")
    lab("L_aux_done")
    e(f"s_cmp_lt_u32 s{sWAVE}, 4")
    e("s_cbranch_scc1 L_end")
    srd(S_TBL,P_TBL,128000); srd(S_IDX,P_IDX,106496)
    rowidx_load()
    e(f"v_mov_b32 v7, {FLAGS}")
    e("v_mov_b32 v8, 4")
    e("v_mov_b32 v9, 0")
    e(f"ds_write_b32 v7, v8 offset:{F_RED}")
    e(f"ds_write_b32 v7, v8 offset:{F_G}")
    e(f"ds_write_b32 v7, v8 offset:{F_S1}")
    e(f"ds_write_b32 v7, v9 offset:{F_CW}")
    e(f"ds_write_b32 v7, v9 offset:{F_CW2}")
    e("s_waitcnt vmcnt(0)")
    e("v_lshlrev_b32 v29, 7, v29")
    x0_addrs()
    e("s_branch L_help_x0")
    lab("L_end")
    e("s_endpgm")
    sec("tail")
    L.append('.section .rodata,"a"'); L.append(".p2align 6"); L.append(f".amdhsa_kernel {KN}")
    for x in ["next_free_vgpr 256","next_free_sgpr 102","accum_offset 256","group_segment_fixed_size 0","kernarg_size 88",
              "user_sgpr_count 2","user_sgpr_kernarg_segment_ptr 1","system_sgpr_workgroup_id_x 1"]:
        L.append("  .amdhsa_"+x)
    L.append(".end_amdhsa_kernel")
    return "\n".join(sum((SEC.get(k,[]) for k in order+["tail"]),[]))+"\n"

if __name__=="__main__":
    ap=argparse.ArgumentParser()
    ap.add_argument("-o",default="k.s")
    for k,d in dict(foldx=1,rp=1,pdel=0,cp26=1,pbar=1,lay=1,b2g=1,cst=0,bgate=1,look=2,bstep=3,bstep2=10,inv=0,zmid=22,csc=0,gateC=0,gq=0,rowx=1,wstop=5,wrest=16,bq=3,xlds=1,xgap=0,atid=1,xsl=8,pskip=128,d2late=1,wper=4,its=0,sched=0,nog=0,not_=0,c2=0,noz=0,lateb=1,dly=4,pst=0,enc=0,encrole=0,encwg=0,encwave=0,nocin=0,gcyc=0,psleep=4,now=0,stamps=0,pf=1,cpf=1,prio=1,bound=20000,zsplit=22,zbar=22,nt0=6,tb=444,n0=4,nt1=4,d1late=0,trim=1,wsched=0).items(): ap.add_argument("--"+k,type=int,default=d)
    opt=ap.parse_args()
    for t in range(512): assert (t*5042)>>16==t//13, t
    open(opt.o,"w").write(build(opt))
```

```python
import sys, argparse, math, struct

class Q:
    def __init__(s,cap): s.ops=[]; s.cap=cap; s.done=0
    def issue(s,name): s.ops.append(name)
    def need(s,*names):
        r=99
        for name in names:
            i=len(s.ops)-1-s.ops[::-1].index(name)
            r=min(r,len(s.ops)-1-i)
        r=min(r,s.cap)
        s.done=max(s.done,len(s.ops)-r)
        return r
    def pending(s,*names):
        return any(len(s.ops)-1-s.ops[::-1].index(n)>=s.done for n in names)

WIMG=0; GRAN=65536; EPOCH=0x50000; STAMP=0x100000; WS_SIZE=0x200000
STG=49152; RING=128000; FLAGS=160768; CINW=49152
F_IT9,F_RED,F_G,F_PRE,F_S1,F_CW,F_CW2=0,4,8,12,16,20,24
C1=-2*math.sqrt(2/math.pi)*math.log2(math.e); C2=C1*0.044715
def f2u(x): return struct.unpack('<I',struct.pack('<f',x))[0]
KN="standalone__deep_cross_xdeepfm__recsys_kernel"

sWAVE,sXCD,sSLOT,sCB,sRB=3,4,5,7,8
P_IDX,P_TBL,P_CIN,P_WOUT,P_W,P_B1,P_W2,P_BO=16,18,20,22,24,26,28,30
P_OUT,P_DBG,P_WS=32,34,36
S_IDX,S_TBL,S_W,S_WS,S_A,S_B=40,44,48,52,56,60
sRING,sWR1,sWR2,sTM=64,65,15,14
sT=66

def pair_of(n):
    if n<169: dlt,m=divmod(n,13)
    else: dlt,m=13,n-169
    r=2*m
    return r,(r+dlt)%26

def build(opt):
    SEC={"entry":[]}; order=["entry","dnn0","hpro","pref","fold0","dnn","help","fold"]
    class LL:
        cur="entry"
        def append(s,x): SEC.setdefault(s.cur,[]).append(x)
    L=LL()
    def sec(n): L.cur=n
    cnt=[0]; lastw={}
    def e(x):
        L.append("    "+x)
        cnt[0]+= (int(x.split()[1])+1) if x.startswith("s_nop") else 1
    def hz(key,n):
        d=cnt[0]-lastw[key]
        if d<n: e(f"s_nop {n-d-1}")
    def lab(x): L.append(x+":")
    def cm(x): L.append("    ; "+x)
    E=lambda x:(lambda: e(x))
    ST=opt.stamps
    def srd(d,p,size):
        e(f"s_mov_b32 s{d}, s{p}"); e(f"s_mov_b32 s{d+1}, s{p+1}")
        e(f"s_mov_b32 s{d+2}, {size}"); e(f"s_mov_b32 s{d+3}, 0x20000")
    def st(r,wait=False):
        if ST:
            e(f"s_memrealtime s[{r}:{r+1}]")
            if wait: e("s_waitcnt lgkmcnt(0)")
    def dump(regs,area=0,role=0):
        if opt.enc:
            delay(regs,role); return
        dump_(regs,area)
    dl=[0]
    def delay(regs,role):
        dl[0]+=1; n=dl[0]
        e("s_mov_b64 exec, -1")
        e("s_waitcnt lgkmcnt(0)")
        if opt.enc==99:
            if role!=1: return
            srd(S_A,P_DBG,256)
            e("s_not_b32 s12, s10")
            e("v_mov_b32 v244, s12")
            e(f"v_mov_b32 v245, s{regs[10]}")
            e("v_mov_b32 v246, 1")
            e("s_mov_b64 exec, 1")
            e(f"buffer_atomic_umax v244, off, s[{S_A}:{S_A+3}], 0 offset:240 sc1")
            e(f"buffer_atomic_umax v245, off, s[{S_A}:{S_A+3}], 0 offset:244 sc1")
            e("s_waitcnt vmcnt(0)")
            e(f"buffer_atomic_add v246, off, s[{S_A}:{S_A+3}], 0 offset:248 sc0 sc1")
            e("s_waitcnt vmcnt(0)")
            e("v_readfirstlane_b32 s12, v246")
            e("s_cmp_lg_u32 s12, 1023")
            e(f"s_cbranch_scc1 L_dly{n}_x")
            e(f"buffer_load_dwordx2 v[244:245], off, s[{S_A}:{S_A+3}], 0 offset:240 sc1")
            e("s_waitcnt vmcnt(0)")
            e("v_readfirstlane_b32 s12, v244")
            e("v_readfirstlane_b32 s13, v245")
            e("s_not_b32 s12, s12")
            e("s_sub_u32 s12, s13, s12")
        else:
            if role!=opt.encrole: return
            e(f"s_cmp_lg_u32 s2, {opt.encwg}")
            e(f"s_cbranch_scc1 L_dly{n}_x")
            e(f"s_cmp_lg_u32 s{sWAVE}, {opt.encwave}")
            e(f"s_cbranch_scc1 L_dly{n}_x")
            if opt.enc in (96,97):
                e(f"s_load_dwordx8 s[76:83], s[{P_DBG}:{P_DBG+1}], 64")
                e("s_waitcnt lgkmcnt(0)")
                e("s_mov_b32 s12, s76"); e("s_mov_b32 s13, s76")
                for k in range(1,8):
                    e(f"s_min_u32 s12, s12, s{76+k}"); e(f"s_max_u32 s13, s13, s{76+k}")
                if opt.enc==96: e("s_mov_b32 s13, s10")
                e("s_sub_u32 s12, s13, s12")
                e("s_min_u32 s12, s12, 2000")
            else: e(f"s_sub_u32 s12, s{regs[opt.enc]}, s10")
        e("s_mul_i32 s12, s12, 100")
        e("s_memrealtime s[66:67]")
        e("s_waitcnt lgkmcnt(0)")
        e("s_add_u32 s12, s12, s66")
        lab(f"L_dly{n}")
        e("s_sleep 8")
        e("s_memrealtime s[66:67]")
        e("s_waitcnt lgkmcnt(0)")
        e("s_sub_u32 s13, s66, s12")
        e("s_cmp_lt_i32 s13, 0")
        e(f"s_cbranch_scc1 L_dly{n}")
        lab(f"L_dly{n}_x")
        e("s_mov_b64 exec, -1")
    def dump_(regs,area=0):
        e("s_mov_b64 exec, -1")
        e("s_waitcnt lgkmcnt(0)")
        e("s_lshl_b32 s12, s2, 3")
        e(f"s_add_u32 s12, s12, s{sWAVE}")
        e("s_lshl_b32 s12, s12, 6")
        e(f"s_add_u32 s12, s12, {STAMP+area*0x40000}")
        regs=list(regs)+[regs[0]]*(12-len(regs))
        for i,r in enumerate(regs): e(f"v_mov_b32 v{244+i}, s{r}")
        e("s_mov_b64 exec, 1")
        for i in range(3):
            e(f"buffer_store_dwordx4 v[{244+4*i}:{247+4*i}], off, s[{S_WS}:{S_WS+3}], s12 offset:{16*i}")
        e("s_mov_b64 exec, -1")
    def lds_spin(name,vaddr,vtmp,off,target,sleep=0):
        e(f"s_mov_b32 s{sT+4}, {opt.bound*8}")
        lab(name)
        e(f"ds_read_b32 v{vtmp}, v{vaddr} offset:{off}")
        e("s_waitcnt lgkmcnt(0)")
        e(f"v_readfirstlane_b32 s{sT+5}, v{vtmp}")
        e(f"s_cmp_ge_u32 s{sT+5}, {target}")
        e(f"s_cbranch_scc1 {name}_x")
        if sleep: e(f"s_sleep {sleep}")
        e(f"s_sub_u32 s{sT+4}, s{sT+4}, 1")
        e(f"s_cbranch_scc0 {name}")
        lab(name+"_x")

    IV=16; IA=24
    def rec_addrs():
        e(f"s_lshl_b32 s{sT+5}, s{sT}, 7")
        e(f"s_add_u32 s{sT+5}, s{sT+5}, {RING+4096}")
        e(f"v_lshl_add_u32 v7, v7, 3, s{sT+5}")
        e("v_mul_u32_u24 v9, 7, v8")
        e("v_and_b32 v8, 1, v8")
        for par in range(2):
            d=IA+2*par
            if par:
                e("v_xor_b32 v8, 1, v8"); e("v_add_u32 v9, 1, v9")
            e("v_lshrrev_b32 v10, 1, v9")
            e(f"v_lshl_add_u32 v{d}, v10, 8, v7")
            e(f"v_lshl_add_u32 v{d}, v8, 14, v{d}")
            e("v_lshlrev_b32 v10, 1, v8")
            e(f"v_xor_b32 v10, s{sT+2}, v10")
            e(f"v_lshl_add_u32 v{d}, v10, 1, v{d}")
            e(f"v_xor_b32 v{d+1}, 2, v{d}")
            e(f"v_add_u32 v{d+1}, 8192, v{d+1}")
    sROW=6; sE=38
    def rowidx_load():
        e(f"s_sub_u32 s{sT+6}, s{sWAVE}, 4")
        if opt.rowx:
            e(f"s_lshl2_add_u32 s{sROW}, s{sSLOT}, s{sT+6}")
            e(f"s_lshl_b32 s{sT+6}, s{sXCD}, 7")
            e(f"s_add_u32 s{sROW}, s{sROW}, s{sT+6}")
        else: e(f"s_lshl2_add_u32 s{sROW}, s2, s{sT+6}")
        e(f"s_mul_i32 s{sT+6}, s{sROW}, 104")
        e("v_lshlrev_b32 v30, 2, v2")
        e(f"buffer_load_dword v29, v30, s[{S_IDX}:{S_IDX+3}], s{sT+6} offen")
    L.append("; @launch grid=(256,1,1) block=(512,1,1) lds=163840")
    L.append('.amdgcn_target "amdgcn-amd-amdhsa--gfx950"')
    L.append(".text"); L.append(f".globl {KN}"); L.append(".p2align 8"); L.append(f".type {KN},@function")
    lab(KN)
    e("s_load_dwordx16 s[16:31], s[0:1], 0")
    e("s_load_dwordx4 s[32:35], s[0:1], 64")
    e("s_load_dwordx2 s[36:37], s[0:1], 80")
    st(10)
    e("s_cmp_ge_u32 s2, 256")
    e("s_cbranch_scc1 L_end")
    e("v_lshrrev_b32 v1, 6, v0")
    e("v_and_b32 v2, 63, v0")
    e(f"v_readfirstlane_b32 s{sWAVE}, v1")
    e(f"s_and_b32 s{sXCD}, s2, 7")
    e(f"s_lshr_b32 s{sSLOT}, s2, 3")
    e(f"s_cmp_ge_u32 s{sSLOT}, 26")
    e("s_cbranch_scc1 L_aux0")
    sec("pref"); lab("L_aux0")
    e(f"s_cmp_gt_u32 s{sSLOT}, {26 if opt.foldx else 27}")
    e("s_cbranch_scc1 L_prefetch")
    if opt.cpf:
        e(f"s_getpc_b64 s[{S_IDX}:{S_IDX+1}]")
        lab("L_pc")
        e(f"s_sub_u32 s{S_IDX}, s{S_IDX}, L_pc-{KN}")
        e(f"s_subb_u32 s{S_IDX+1}, s{S_IDX+1}, 0")
        e(f"s_mov_b32 s{S_IDX+2}, L_end-{KN}")
        e(f"s_mov_b32 s{S_IDX+3}, 0x20000")
        e("v_lshlrev_b32 v3, 7, v0")
        e(f"buffer_load_dword v255, v3, s[{S_IDX}:{S_IDX+3}], 0 offen")
    sec("entry")
    e(f"s_mul_i32 s6, s{sXCD}, 26")
    e(f"s_add_u32 s6, s6, s{sSLOT}")
    e(f"s_and_b32 s{sRB}, s6, 7")
    e(f"s_and_b32 s{sT}, s{sWAVE}, 1")
    e(f"s_lshr_b32 s{sT+2}, s{sWAVE}, 1")
    e(f"s_lshl2_add_u32 s{sT+4}, s{sRB}, s{sT+2}")
    e(f"s_mul_i32 s{sT+4}, s{sT+4}, 3328")
    e(f"s_lshl_b32 s{sT+5}, s{sT}, 11")
    e(f"s_add_u32 s{sT+4}, s{sT+4}, s{sT+5}")
    e(f"s_lshl_b32 s{sT+3}, s{sT+2}, 13")
    e(f"s_add_u32 s{sT+3}, s{sT+3}, s{sT+5}")
    e(f"s_add_u32 m0, s{sT+3}, {RING+4096}")
    e("v_lshlrev_b32 v6, 4, v2")
    e("v_lshrrev_b32 v3, 3, v2")
    e("v_lshrrev_b32 v4, 4, v2")
    e("v_and_b32 v10, 7, v2")
    e(f"s_lshl_b32 s{sT+1}, s{sT}, 2")
    e("v_xor_b32 v5, v10, v4")
    e(f"v_xor_b32 v5, s{sT+1}, v5")
    e("v_lshlrev_b32 v5, 4, v5")
    e("v_lshl_add_u32 v5, v3, 7, v5")
    e(f"s_lshl1_add_u32 s{sT+3}, s{sSLOT}, s{sT+2}")
    e(f"s_lshl1_add_u32 s{sTM}, s{sT+3}, s{sT}")
    e(f"s_lshl_b32 s{sTM}, s{sTM}, 10")
    e(f"s_sub_u32 s{sWR2}, {63*2048}, s{sT+5}")
    e(f"s_lshr_b32 s{sT+5}, s{sT+5}, 1")
    e(f"s_add_u32 s{sWR1}, s{sWR2}, s{sT+5}")
    e(f"s_mov_b32 s{S_IDX+2}, 106496"); e(f"s_mov_b32 s{S_IDX+3}, 0x20000")
    e(f"s_mov_b32 s{S_TBL+2}, 128000"); e(f"s_mov_b32 s{S_TBL+3}, 0x20000")
    e(f"s_mov_b32 s{sT+3}, {opt.n0-1}")
    e("s_waitcnt lgkmcnt(0)")
    if opt.pst: st(84)
    e(f"s_mov_b64 s[{S_IDX}:{S_IDX+1}], s[{P_IDX}:{P_IDX+1}]")
    e(f"s_mov_b64 s[{S_TBL}:{S_TBL+1}], s[{P_TBL}:{P_TBL+1}]")
    e(f"buffer_load_dwordx4 v6, s[{S_IDX}:{S_IDX+3}], s{sT+4} offen lds")
    if opt.trim:
        e(f"s_cmp_eq_u32 s{sT}, 0")
        e("s_cselect_b64 exec, -1, 0xffff")
    e(f"buffer_load_dwordx4 v6, s[{S_IDX}:{S_IDX+3}], s{sT+4} offen offset:1024 lds")
    if opt.trim: e("s_mov_b64 exec, -1")
    nl=[0]
    def tloop(n=None,vm=None):
        nl[0]+=1; name=f"L_tl{nl[0]}"
        if n is not None:
            if n==0: return
            e(f"s_mov_b32 s{sT+3}, {n-1}")
        lab(name)
        e(f"s_mov_b32 m0, s{sTM}")
        e(f"s_add_u32 s{sTM}, s{sTM}, 8192")
        e(f"buffer_load_dwordx4 v5, s[{S_TBL}:{S_TBL+3}], m0 offen lds")
        e(f"s_cmp_ge_u32 s{sTM}, s{sWR1}")
        e(f"s_cselect_b32 s{sT+5}, s{sWR2}, 0")
        e(f"s_sub_u32 s{sTM}, s{sTM}, s{sT+5}")
        e(f"s_sub_u32 s{sT+3}, s{sT+3}, 1")
        e(f"s_cbranch_scc0 {name}")
        if vm is not None:
            for t in range(n): vm.issue("tbl")
    tloop()
    e(f"s_cmp_ge_u32 s{sWAVE}, 4")
    e("s_cbranch_scc1 L_help_pro")
    sec("dnn0")
    tbl=tloop

    vWe,vWo=1,3
    AD=8; AF=16; F0=48; REC=80; ACC=128
    VT=106; PB,PC=110,111; BI=112; W2P=112; EV=120; VR=122; WA=123; KC=126; RA1=5; VB=6
    SEL=80; ONE=86; vC1=87; S0=88; S1=89; TA=90
    acc=lambda lt,ct: ACC+(lt*4+ct)*4
    Fr=lambda j,ct: F0+(j&1)*16+ct*4
    afr=lambda lt: AF+4*lt
    vm=Q(63); lg=Q(15)
    cm("---- DNN wave prologue ----")
    for x in ["idx0","idx3"]+["tbl"]*opt.n0: vm.issue(x)
    e(f"s_lshr_b32 s{sCB}, s6, 3")
    e(f"s_lshl_b32 s{sRING}, s{sWAVE}, 13")
    e(f"s_add_u32 s{sRING}, s{sRING}, {RING}")
    e(f"s_lshl_b32 s{sT+7}, s{sWAVE}, 5")
    e(f"v_add_u32 v9, s{sT+7}, v3")
    e("v_mul_u32_u24 v9, 3328, v9")
    e("v_lshlrev_b32 v11, 1, v4")
    e("v_and_b32 v11, 2, v11")
    e("v_xor_b32 v11, v11, v10")
    e("v_lshl_add_u32 v1, v11, 4, v9")
    e(f"s_lshl_b32 s{sT+7}, s{sCB}, 7")
    e(f"v_add_u32 v1, s{sT+7}, v1")
    e("v_xor_b32 v3, 64, v1")
    e(f"v_add_u32 v3, {8*3328-1024}, v3")
    srd(S_W,P_W,1664*3328)
    sWO=12
    def d3(j,pc):
        ld=lambda: (e(f"buffer_load_dwordx4 v{vWo if pc&1 else vWe}, s[{S_W}:{S_W+3}], s{sWO} offen offset:{(pc&1)*1024} lds"),vm.issue(f"w{j}_{pc}"))
        if pc&1: return [ld]
        return [E(f"s_add_u32 m0, s{sRING}, {((j&1)*4+pc)*1024}"),E(f"s_mov_b32 s{sWO}, {(128*j+8*pc)*3328}"),ld]
    def dma(j,pcs):
        for pc in pcs:
            for f in d3(j,pc): f()
    dma(0,range(4))
    def bias_loads(ii):
        for i in ii:
            e(f"buffer_load_dwordx2 v[{BI+2*i}:{BI+2*i+1}], v{VB}, s[{S_A}:{S_A+3}], 0 offen offset:{i*32}"); vm.issue(f"bias{i}")
    TB=[opt.n0]+[int(c,16) for c in str(opt.tb)]
    e("s_branch L_dnn_b")
    sec("dnn"); lab("L_dnn_b")
    e(f"v_lshl_add_u32 v{VB}, v4, 3, s{sT+7}")
    e(f"v_mov_b32 v7, {FLAGS}")
    srd(S_A,P_B1,3328)
    if opt.pst: st(86)
    e("v_and_b32 v13, 15, v2")
    e("v_mul_u32_u24 v13, 104, v13")
    e(f"s_lshl2_add_u32 s{sT+5}, s{sT+2}, {RING+4096}")
    e(f"v_add_u32 v13, s{sT+5}, v13")
    e(f"v_xor_b32 v9, s{sWAVE}, v4")
    e("v_lshl_add_u32 v24, v9, 13, v13")
    e("v_add_u32 v25, 1664, v24")
    e("v_bfe_u32 v9, v2, 2, 2")
    e("v_lshlrev_b32 v13, 7, v9")
    e("v_lshl_add_u32 v13, v4, 10, v13")
    e("v_lshrrev_b32 v9, 1, v9")
    e("v_lshl_add_u32 v13, v9, 5, v13")
    e("v_and_b32 v9, 1, v4")
    e("v_lshl_add_u32 v13, v9, 6, v13")
    e("v_and_b32 v9, 3, v2")
    e("v_lshl_add_u32 v13, v9, 3, v13")
    e(f"v_add_u32 v{VT}, s{sRING}, v13")
    e(f"v_xor_b32 v{VT+1}, 32, v{VT}")
    e(f"v_xor_b32 v{VT+2}, 64, v{VT}")
    e(f"v_xor_b32 v{VT+3}, 0x60, v{VT}")
    e(f"v_add_u32 v{KC}, s{sT+1}, v4")
    e(f"v_lshl_or_b32 v{KC}, v{KC}, 16, v{KC}")
    e(f"s_mov_b32 s{sT+6}, 0x00070007")
    e(f"s_waitcnt vmcnt({vm.need('idx3')})")
    if opt.pst: st(88)
    e("s_barrier")
    if opt.pst: st(90)
    RW=lambda t,j: 160+t*14+j
    for j in range(0,13,2):
        for t in range(2):
            e(f"ds_read2_b32 v[{RW(t,j)}:{RW(t,j)+1}], v{24+t} offset0:{2*j} offset1:{2*j+2}")
    tbl(TB[1],vm)
    srd(S_WS,P_WS,WS_SIZE)
    srd(S_B,P_W2,3328)
    e("s_waitcnt lgkmcnt(0)")
    e("s_barrier")
    st(76)
    tbl(TB[2],vm)
    for j in range(13):
        if j==6: tbl(TB[3],vm)
        d=REC+2*j
        e(f"v_lshl_or_b32 v{d}, v{RW(1,j)}, 16, v{RW(0,j)}")
        e(f"v_lshrrev_b32 v13, 1, v{d}")
        e(f"v_and_b32 v13, s{sT+6}, v13")
        e(f"v_lshl_or_b32 v{d}, v{d}, 3, v13")
        e(f"v_mov_b32 v{d+1}, v{d}")
        if j: e(f"v_permlane32_swap_b32 v{d-2}, v{d-1}")
    e("s_nop 1")
    e(f"v_permlane32_swap_b32 v{REC+24}, v{REC+25}")
    def bc(j,h):
        A=REC+2*j+h; B=PC if h else PB
        return [E(f"v_mov_b32 v{B}, v{A}")],[E(f"v_permlane16_swap_b32 v{A}, v{B}"),E(f"v_xor_b32 v{A}, v{KC}, v{A}"),E(f"v_xor_b32 v{B}, v{KC}, v{B}")]
    def adr(lt,j):
        src={0:REC+2*j,1:PB,2:REC+2*j+1,3:PC}[lt>>1]
        e(f"v_lshlrev_b32_sdwa v{AD+lt}, 4, v{src} dst_sel:DWORD dst_unused:UNUSED_PAD src0_sel:DWORD src1_sel:WORD_{lt&1}")
    def Rop(lt,j): e(f"ds_read_b128 v[{afr(lt)}:{afr(lt)+3}], v{AD+lt}"); lg.issue(f"R{lt}_{j}")
    def Top(j,ct,h4):
        d=Fr(j,ct)+2*h4
        e(f"ds_read_b64_tr_b16 v[{d}:{d+1}], v{VT+ct} offset:{(j&1)*4096+h4*512}"); lg.issue(f"T{j}_{ct}{h4}")
    for h in range(2): bc(0,h)[0][0]()
    e("s_nop 0")
    for h in range(2):
        for f in bc(0,h)[1]: f()
    for lt in range(8): adr(lt,0)
    bc(1,0)[0][0]()
    if ST: e("s_waitcnt lgkmcnt(0)")
    e(f"s_waitcnt vmcnt({vm.need('w0_3')})")
    for ct in range(4): Top(0,ct,0); Top(0,ct,1)
    for f in bc(1,0)[1]: f()
    dma(1,range(4))
    e("s_waitcnt lgkmcnt(0)"); lg.done=len(lg.ops)
    for x in [f"s_xor_b32 s{sT}, s{sWAVE}, 1",f"s_lshl_b32 s{sT}, s{sT}, 12",f"v_lshlrev_b32 v{RA1}, 4, v2",f"v_add_u32 v{WA}, s{sT}, v{RA1}",
              f"v_xor_b32 v{WA+1}, {3<<12}, v{WA}",f"v_xor_b32 v{WA+2}, {2<<12}, v{WA}",f"s_lshl_b32 s{sT}, s{sWAVE}, 12",f"v_add_u32 v{RA1}, s{sT}, v{RA1}",
              f"v_lshrrev_b32 v{VR}, 5, v2","v_and_b32 v0, 15, v2",f"v_lshl_add_u32 v{VR}, v{VR}, 4, v0",f"s_lshl_b32 s{sT}, s{sRB}, 7",
              f"s_lshl_b32 s{sT+1}, s{sWAVE}, 5",f"s_add_u32 s{sT}, s{sT}, s{sT+1}",f"v_add_lshl_u32 v{VR}, v{VR}, s{sT}, 3"]: e(x)
    if opt.pst: st(92)
    e(f"s_waitcnt vmcnt({vm.need('tbl')})")
    st(78)
    e("s_barrier")
    st(80,True)
    if ST: e("s_memtime s[96:97]"); e("s_waitcnt lgkmcnt(0)")
    if opt.prio: e(f"s_setprio {opt.prio}")
    LT=[2,3,4,5,6,7,0,1]
    for lt in LT: Rop(lt,0)
    def inc(off,nm):
        def f():
            e("s_mov_b64 exec, 1")
            e(f"ds_add_u32 v7, v{ONE} offset:{off}"); lg.issue(nm)
            e("s_mov_b64 exec, -1")
        return f
    def wv(n): return lambda n=n: (e(f"s_waitcnt vmcnt({vm.need(n)})") if vm.pending(n) else None)
    def wl(n): return lambda n=n: (e(f"s_waitcnt lgkmcnt({lg.need(n)})") if lg.pending(n) else None)
    T_=lambda j,ct,h4: (lambda: Top(j,ct,h4))
    def badd(k):
        ct,r=k>>2,k&3; src=BI+2*ct+(r>>1)
        return [E(f"v_and_b32 v0, 0xffff0000, v{src}" if r&1 else f"v_lshlrev_b32 v0, 16, v{src}")]+\
               [(lambda t=t: (hz((t,ct),8),e(f"v_add_f32 v{acc(t,ct)+r}, v{acc(t,ct)+r}, v0"))) for t in range(2)]
    selops=[E("v_and_b32 v0, 15, v2"),E(f"v_lshlrev_b32 v{TA}, 2, v4"),E(f"v_sub_u32 v0, v0, v{TA}"),E(f"s_movk_i32 s{sT+7}, 0x3f80"),
            E(f"v_lshlrev_b32 v{TA}, 4, v0"),E(f"v_and_b32 v{TA}, 16, v{TA}"),E(f"v_lshlrev_b32 v{TA}, v{TA}, s{sT+7}"),E("v_lshrrev_b32 v0, 1, v0"),
            E(f"v_cmp_eq_u32 s[{sT}:{sT+1}], 0, v0"),E(f"v_cmp_eq_u32 s[{sT+2}:{sT+3}], 1, v0"),E(f"v_mov_b32 v{SEL}, 0"),E(f"v_mov_b32 v{SEL+1}, 0"),
            E(f"v_cndmask_b32 v{SEL+2}, 0, v{TA}, s[{sT}:{sT+1}]"),E(f"v_cndmask_b32 v{SEL+3}, 0, v{TA}, s[{sT+2}:{sT+3}]"),E(f"v_mov_b32 v{SEL+4}, 0"),E(f"v_mov_b32 v{SEL+5}, 0")]
    misc=[E(f"s_xor_b32 s{sT}, s{sWAVE}, 1"),E(f"s_lshl_b32 s{sT}, s{sT}, 12"),E(f"v_lshlrev_b32 v{RA1}, 4, v2"),E(f"v_add_u32 v{WA}, s{sT}, v{RA1}"),
          E(f"v_xor_b32 v{WA+1}, {3<<12}, v{WA}"),E(f"v_xor_b32 v{WA+2}, {2<<12}, v{WA}"),E(f"s_lshl_b32 s{sT}, s{sWAVE}, 12"),E(f"v_add_u32 v{RA1}, s{sT}, v{RA1}"),
          E(f"v_mov_b32 v{ONE}, 1"),E(f"v_mov_b32 v{vC1}, {f2u(C1)}"),E(f"v_mov_b32 v{S0}, 0"),E(f"v_mov_b32 v{S1}, 0"),
          E(f"v_lshrrev_b32 v{VR}, 5, v2"),E("v_and_b32 v0, 15, v2"),E(f"v_lshl_add_u32 v{VR}, v{VR}, 4, v0"),E(f"s_lshl_b32 s{sT}, s{sRB}, 7"),
          E(f"s_lshl_b32 s{sT+1}, s{sWAVE}, 5"),E(f"s_add_u32 s{sT}, s{sT}, s{sT+1}"),E(f"v_add_lshl_u32 v{VR}, v{VR}, s{sT}, 3")]
    def w2l(i): return lambda: (e(f"buffer_load_dwordx2 v[{W2P+2*i}:{W2P+2*i+1}], v{VB}, s[{S_B}:{S_B+3}], 0 offen offset:{i*32}"),vm.issue(f"w2_{i}"))
    evl=[E(f"s_mov_b32 s{sT+2}, {EPOCH}"),lambda: (e(f"buffer_load_dwordx2 v[{EV}:{EV+1}], v{VR}, s[{S_WS}:{S_WS+3}], s{sT+2} offen"),vm.issue("ev"))]
    LO=list(range(92,100))
    W2F=[LO[k>>1] if k%2==0 else W2P+(k>>1) for k in range(16)]
    unp=[]
    for k in range(8):
        unp+= [E(f"v_lshlrev_b32 v{LO[k]}, 16, v{W2P+k}"),E(f"v_and_b32 v{W2P+k}, 0xffff0000, v{W2P+k}")]
    def cv(lt):
        a=acc(lt,0); u=lt>>1
        c=[(lambda m=m: (hz((lt,m>>1),8),e(f"v_cvt_pk_bf16_f32 v{a+m}, v{a+2*m}, v{a+2*m+1}"))) for m in range(8)]
        w=[(lambda h=h: (e(f"ds_write_b128 v{WA+u-1}, v[{a+4*h}:{a+4*h+3}] offset:{(u-1)*16384+((lt&1)*2+h)*1024}"),lg.issue("W"))) for h in range(2)]
        return c[:4]+w[:1]+c[4:]+w[1:]
    def bar2():
        e("s_waitcnt lgkmcnt(0)"); lg.done=len(lg.ops)
        if opt.its: e("s_memtime s[92:93]")
        if not opt.pst: st(82)
        e("s_barrier")
        if not opt.pst: st(84)
    ITS={1:76,2:78,3:80,5:82,7:84,9:86,11:88,12:90}
    bl=sum((badd(k) for k in range(16)),[])
    sel2=[(lambda f=f: f()) for f in selops]
    extra={2:[(lambda i=i: bias_loads([i])) for i in range(4)],
           3:[wv('bias3')]+bl[:6],4:bl[6:15],5:bl[15:24],6:bl[24:33],7:bl[33:42],8:bl[42:48],
           9:[w2l(i) for i in range(4)]+evl+misc[8:12],10:selops,11:[]}
    q12=[]
    for j in range(13):
        cm(f"---- iteration {j} ----")
        if opt.its==1 and j in ITS: e(f"s_memtime s[{ITS[j]}:{ITS[j]+1}]")
        if opt.its and j==12: opt.pst=1
        G=[[] for k in range(32)]
        if j<12:
            Ts=[T_(j+1,ct,h4) for ct in range(4) for h4 in range(2)]
            mB,rB=bc(j+1,1)
            G[2]+=mB; G[6]+=rB[:1]; G[7]+=rB[1:2]; G[11]+=rB[2:]
            if j+2<13:
                mA,rA=bc(j+2,0); G[23]+=mA; G[26]+=rA[:1]; G[27]+=rA[1:2]; G[30]+=rA[2:]
            free=[k for k in range(32) if k%4<2]
            seq=[]
            if j==0: seq=[[x] for x in d3(2,0)+d3(2,1)+d3(2,2)+d3(2,3)]+[[wv('w1_3'),Ts[0]]]+[[x] for x in Ts[1:]]
            else:
                seq=[[wv(f'w{j+1}_3'),Ts[0]]]+[[x] for x in Ts[1:]]
                if opt.tpk and j>1: seq=[[wv(f'w{j+1}_3'),Ts[0],Ts[1]],Ts[2:4],Ts[4:6],Ts[6:8]]
                if j+3<13:
                    dd=d3(j+3,0)+d3(j+3,1)+d3(j+3,2)+d3(j+3,3)
                    seq+=[[dd[0]],[dd[1]],[wl(f'T{j+1}_31'),dd[2]]]+[[x] for x in dd[3:]]
            if j==1:
                dd=d3(3,0)+d3(3,1)+d3(3,2)+d3(3,3)
                for k,x in zip((3,7,10,11,14,15,18,19),dd): G[k].append(x)
                seq=seq[:8]+[[]]*0+seq[8:]
                free=free[:8]+[20,21,22,24,25,28,29,31]
            for k,x in zip(free,seq): G[k]+=x
            if j==10: G[17]+=[wl('T11_31'),inc(F_S1,"s1")]
            ex=list(extra.get(j,[]))
            if j==11: ex=[E("s_waitcnt vmcnt(0)")]+unp
            lo,hi=(5,23) if j in (3,4,5,6,7,8) else (4,32)
            k=lo
            while ex:
                cand=[g for g in range(k,hi) if len(G[g])+(1 if g%4>=2 else 0)<2]
                if not cand:
                    G[hi-2]+=ex; break
                k=cand[0]; G[k].append(ex.pop(0))
        for g,lt in enumerate(LT):
            if g%2==0:
                needs=[f"R{lt}_{j}",f"R{LT[g+1]}_{j}"]+([f"T{j}_31"] if g==0 else [])
                if lg.pending(*needs): e(f"s_waitcnt lgkmcnt({lg.need(*needs)})")
            for ct in range(4):
                c=f"v[{acc(lt,ct)}:{acc(lt,ct)+3}]"
                e(f"v_mfma_f32_16x16x32_bf16 {c}, v[{Fr(j,ct)}:{Fr(j,ct)+3}], v[{afr(lt)}:{afr(lt)+3}], {0 if j==0 else c}")
                lastw[(lt,ct)]=cnt[0]
                if j<12:
                    if ct==2: adr(lt,j+1)
                    if ct==3: Rop(lt,j+1)
                    for f in G[4*g+ct]: f()
                else:
                    if g==0 and ct==2: bar2()
                    n=3 if (g,ct)!=(7,3) else 99
                    if not (ct==0 and g<=6):
                        for f in q12[:n]: f()
                        q12=q12[n:]
            if j==12 and lt>=2:
                q12+=cv(lt)
                if lt==7: q12+= [inc(F_RED,"inc"),E(f"s_mov_b32 s{sT+2}, {f2u(C2)}")]
    if not opt.pst: st(86)
    if ST: e("s_memtime s[98:99]")
    lds_spin("L_red",7,0,F_RED,4)
    if not opt.pst: st(88,True)
    lg=Q(15)
    adds=[]
    for t in range(2):
        for u in (1,2,3):
            for h in range(2):
                r=acc(2*u+t,0)+4*h
                e(f"ds_read_b128 v[{r}:{r+3}], v{RA1} offset:{(u-1)*16384+(t*2+h)*1024}"); lg.issue(f"p{t}{u}{h}")
                for sx in range(2):
                    def add(t=t,u=u,h=h,r=r,sx=sx):
                        if lg.pending(f"p{t}{u}{h}"): e(f"s_waitcnt lgkmcnt({lg.need(f'p{t}{u}{h}')})")
                        c=f"v[{acc(t,2*h+sx)}:{acc(t,2*h+sx)+3}]"; sl=SEL if sx else SEL+2
                        e(f"v_mfma_f32_16x16x32_bf16 {c}, v[{sl}:{sl+3}], v[{r}:{r+3}], {c}"); lastw[(t,2*h+sx)]=cnt[0]
                    adds.append(add)
    for f in adds[:13]: f()
    adds=adds[13:]
    T=F0
    for q in range(8):
        t,ct=q>>2,q&3
        a=acc(t,ct)
        def A(n=2):
            for k in range(n):
                if adds: adds.pop(0)()
        hz((t,ct),8)
        for r in range(4): e(f"v_mul_f32 v{T+r}, v{a+r}, v{a+r}")
        A(1)
        for r in range(4): e(f"v_fma_f32 v{T+r}, v{T+r}, s{sT+2}, v{vC1}")
        A(1)
        for r in range(4): e(f"v_mul_f32 v{T+r}, v{T+r}, v{a+r}")
        A(1)
        for r in range(4): e(f"v_exp_f32 v{T+r}, v{T+r}")
        A(1)
        for r in range(4): e(f"v_mul_f32 v{a+r}, v{a+r}, v{W2F[4*ct+r]}")
        for r in range(4): e(f"v_add_f32 v{T+r}, 1.0, v{T+r}")
        for r in range(4): e(f"v_rcp_f32 v{T+r}, v{T+r}")
        if adds: A(1)
        else: e("s_nop 0")
        for r in range(4): e(f"v_fmac_f32 v{S1 if t else S0}, v{a+r}, v{T+r}")
    e(f"s_movk_i32 s{sT}, 0xff")
    e(f"v_add_u32 v{EV}, 1, v{EV}")
    e(f"v_permlane32_swap_b32 v{S0}, v{S1}")
    e(f"v_add_f32 v{S0}, v{S0}, v{S1}")
    e(f"v_mov_b32 v{S1}, v{S0}")
    e(f"s_lshl_b32 s{sT+1}, s{sCB}, 13")
    e(f"s_add_u32 s{sT+1}, s{sT+1}, {GRAN}")
    e(f"v_permlane16_swap_b32 v{S0}, v{S1}")
    e(f"v_add_f32 v{S0}, v{S0}, v{S1}")
    e(f"v_bfi_b32 v{EV+1}, s{sT}, v{EV+1}, v{S0}")
    e("s_mov_b32 exec_lo, 0xffff")
    e("s_mov_b32 exec_hi, 0xffff")
    e(f"buffer_store_dwordx2 v[{EV}:{EV+1}], v{VR}, s[{S_WS}:{S_WS+3}], s{sT+1} offen sc0 sc1")
    if ST:
        if opt.gcyc: e("s_memtime s[98:99]")
        if not opt.pst: st(90); e("s_waitcnt vmcnt(0)"); st(92,True)
        e("s_waitcnt lgkmcnt(0)"); e("s_sub_u32 s98, s98, s96")
        if opt.its:
            for r in range(76,94,2):
                e(f"s_sub_u32 s{r}, s{r}, s96"); e(f"s_mul_i32 s{r}, s{r}, 100"); e(f"s_add_u32 s{r}, s{r}, s10")
        dump([10,76,78,80,82,84,86,88,90,92,98])
    e("s_endpgm")

    sec("hpro")
    def late_sloads():
        e(f"s_lshl_b32 s{sT+8}, s{sROW}, 3")
        e(f"s_add_u32 s{sT+8}, s{sT+8}, {EPOCH}")
        e(f"s_load_dwordx2 s[{sE}:{sE+1}], s[{P_WS}:{P_WS+1}], s{sT+8}")
        e(f"s_load_dword s9, s[{P_BO}:{P_BO+1}], 0")
    X=32
    def x0_addrs():
        e("v_and_b32 v3, 31, v2")
        e("v_lshlrev_b32 v4, 2, v3")
        for r in range(26): e(f"v_readlane_b32 s{76+r}, v29, {r}")
        e("s_mov_b32 exec_hi, 0")
        for r in range(26): e(f"v_xor_b32 v{X+r}, s{76+r}, v4")
        e("s_mov_b64 exec, -1")
        e("s_mov_b32 exec_lo, 0")
        for r in range(26): e(f"v_xor_b32 v{X+r}, s{76+(r+1)%26}, v4")
        e("s_mov_b64 exec, -1")
    lab("L_help_pro")
    rowidx_load()
    tloop(opt.nt0-opt.n0)
    e(f"v_mov_b32 v7, {FLAGS}")
    e("v_mov_b32 v8, 0"); e("v_mov_b32 v9, 0")
    e("ds_write2_b64 v7, v[8:9], v[8:9] offset1:1")
    e("ds_write2_b64 v7, v[8:9], v[8:9] offset0:2 offset1:3")
    e(f"s_waitcnt vmcnt({opt.nt0+1})")
    e("s_barrier")
    tloop(opt.nt1)
    e("s_waitcnt lgkmcnt(0)")
    e("s_barrier")
    if opt.trim:
        e(f"s_cmp_eq_u32 s{sWAVE}, 4")
        e(f"s_cselect_b32 s{sT+3}, {16-opt.nt0-opt.nt1-1}, {16-opt.nt0-opt.nt1-2}")
        tloop()
    else: tloop(16-opt.nt0-opt.nt1)
    e("s_branch L_help_b")
    sec("help"); lab("L_help_b")
    e(f"s_waitcnt vmcnt({15-opt.n0})")
    if opt.xlds:
        e("v_lshlrev_b32 v8, 3, v29"); e("v_and_b32 v8, 0x70, v8"); e("v_lshl_or_b32 v29, v29, 7, v8")
    else: e("v_lshlrev_b32 v29, 7, v29")
    x0_addrs()
    e("s_waitcnt vmcnt(0)")
    e("s_barrier")
    if opt.xsl: e(f"s_sleep {opt.xsl}")
    if opt.xlds:
        for r in range(26):
            e(f"ds_read_b32 v{X+r}, v{X+r}")
            if opt.xgap and r%opt.xgap==opt.xgap-1: e("s_sleep 1")
        e("s_branch L_help_main")
    lab("L_help_x0")
    for r in range(26):
        e(f"buffer_load_dword v{X+r}, v{X+r}, s[{S_TBL}:{S_TBL+3}], 0 offen")
    lab("L_help_main")
    srd(S_WS,P_WS,WS_SIZE); srd(S_A,P_DBG,256); srd(S_B,P_OUT,2048)
    Z0=8
    ZE=lambda s: Z0+4*s
    ZO=lambda s: Z0+88+4*s
    LE=lambda k: Z0+176+4*k
    LO=lambda k: Z0+184+4*k
    R=200; MT=252
    e("v_lshrrev_b32 v5, 2, v3")
    e("v_mul_u32_u24 v5, 5888, v5")
    e("v_and_b32 v6, 3, v2")
    e("v_lshl_add_u32 v5, v6, 4, v5")
    e("v_lshrrev_b32 v6, 5, v2")
    e("v_lshl_add_u32 v5, v6, 6, v5")
    e("v_mov_b32 v7, 0x7fff0000")
    e("v_cmp_gt_u32 vcc, 26, v3")
    e("v_lshlrev_b32 v6, 13, v2")
    e(f"s_lshl_b32 s{sT}, s{sROW}, 3")
    e("v_cndmask_b32 v5, v7, v5, vcc")
    e(f"s_add_u32 s{sT}, s{sT}, {GRAN}")
    e(f"v_add_u32 v6, s{sT}, v6")
    e("v_cmp_gt_u32 vcc, 26, v2")
    e("v_lshlrev_b32 v1, 4, v2")
    e(f"v_add_u32 v1, 97280, v1")
    e("v_cndmask_b32 v6, v7, v6, vcc")
    e(f"v_mov_b32 v7, {FLAGS}")
    e("s_waitcnt vmcnt(0) lgkmcnt(0)")
    late_sloads()
    if opt.enc in (96,97):
        e("s_cmp_ge_u32 s2, 8")
        e("s_cbranch_scc1 L_nost")
        e("v_mov_b32 v0, s10")
        e("s_lshl_b32 s12, s2, 2")
        e(f"buffer_store_dword v0, off, s[{S_A}:{S_A+3}], s12 offset:64 sc0 sc1")
        lab("L_nost")
    st(76)
    for r in range(26):
        e(f"v_lshlrev_b32 v{R+2*r}, 16, v{X+r}")
        e(f"v_and_b32 v{R+2*r+1}, 0xffff0000, v{X+r}")
    def zstep(s):
        if opt.noz: return
        for m in range(4):
            (a1,a2),(b1,b2)=pair_of(8*s+2*m),pair_of(8*s+2*m+1)
            if opt.zpk:
                e(f"v_pk_mul_f32 v[{MT}:{MT+1}], v[{R+2*a1}:{R+2*a1+1}], v[{R+2*a2}:{R+2*a2+1}]")
                e(f"v_pk_mul_f32 v[{MT+2}:{MT+3}], v[{R+2*b1}:{R+2*b1+1}], v[{R+2*b2}:{R+2*b2+1}]")
            else:
                e(f"v_mul_f32 v{MT}, v{R+2*a1}, v{R+2*a2}")
                e(f"v_mul_f32 v{MT+2}, v{R+2*b1}, v{R+2*b2}")
                e(f"v_mul_f32 v{MT+1}, v{R+2*a1+1}, v{R+2*a2+1}")
                e(f"v_mul_f32 v{MT+3}, v{R+2*b1+1}, v{R+2*b2+1}")
            e(f"v_cvt_pk_bf16_f32 v{ZE(s)+m}, v{MT}, v{MT+2}")
            e(f"v_cvt_pk_bf16_f32 v{ZO(s)+m}, v{MT+1}, v{MT+3}")
    def zlin():
        for k in range(2):
            for m2 in range(4):
                m=k*8+2*m2
                for tl,d in ((0,LE(k)+m2),(1,LO(k)+m2)):
                    if m+1<=12: e(f"v_cvt_pk_bf16_f32 v{d}, v{R+4*m+tl}, v{R+4*(m+1)+tl}")
                    elif m==12: e(f"v_cvt_pk_bf16_f32 v{d}, v{R+4*m+tl}, 1.0")
                    else: e(f"v_mov_b32 v{d}, 0")
    SC=" sc1" if opt.csc else ""
    if opt.hprio: e(f"s_setprio {opt.hprio}")
    zlin()
    for s in range(opt.zsplit): zstep(s)
    if opt.hprio: e("s_setprio 0")
    st(78)
    e(f"s_load_dwordx8 s[92:99], s[{P_DBG}:{P_DBG+1}], 0")
    e("s_waitcnt lgkmcnt(0)")
    for k in range(1,7): e(f"s_and_b32 s92, s92, s{92+k}")
    e("s_cmp_lg_u32 s92, 0")
    e("s_cbranch_scc1 L_polled")
    lds_spin("L_it9",7,4,F_S1,4,sleep=4)
    e(f"v_lshlrev_b32 v0, 2, v2")
    e(f"buffer_load_dword v4, v0, s[{S_A}:{S_A+3}], 0 offen sc1")
    for s in range(opt.zsplit,opt.zmid): zstep(s)
    e(f"s_mov_b32 s{sT+4}, {opt.bound}")
    e(f"s_mov_b32 s{sT+2}, 0x7f")
    e(f"s_mov_b32 s{sT+3}, 0")
    lab("L_poll1")
    e("s_waitcnt vmcnt(0)")
    e("v_cmp_ne_u32 vcc, 0, v4")
    e(f"s_and_b64 vcc, vcc, s[{sT+2}:{sT+3}]")
    e(f"s_cmp_eq_u64 vcc, s[{sT+2}:{sT+3}]")
    e("s_cbranch_scc1 L_polled")
    e(f"s_sleep {opt.psleep}")
    e(f"buffer_load_dword v4, v0, s[{S_A}:{S_A+3}], 0 offen sc1")
    e(f"s_sub_u32 s{sT+4}, s{sT+4}, 1")
    e("s_cbranch_scc0 L_poll1")
    lab("L_polled")
    if opt.inv: e("buffer_inv sc1")
    st(80)
    lds_spin("L_s1",7,0,F_S1,4,sleep=2)
    e(f"s_sub_u32 s{sT}, s{sWAVE}, 4")
    e(f"s_lshl_b32 s{sT+1}, s{sT}, 13")
    e(f"s_add_u32 m0, s{sT+1}, {RING+4096}")
    e(f"s_lshl_b32 s{sT}, s{sT}, 9")
    e(f"s_sub_u32 s{sT}, s{sT}, 256")
    for t in range(4):
        if t<2:
            e(f"s_cmp_eq_u32 s{sWAVE}, 4")
            e(f"s_cselect_b32 s{sT+1}, {(44+t)*128}, s{sT}")
        else: e(f"s_mov_b32 s{sT+1}, s{sT}")
        e(f"buffer_load_dwordx4 v5, s[{S_WS}:{S_WS+3}], s{sT+1} offen sc1 lds")
        if t<3:
            e(f"s_add_u32 m0, m0, 1024")
            e(f"s_add_u32 s{sT}, s{sT}, 128")
    for s in range(opt.zmid,opt.zbar): zstep(s)
    e("s_waitcnt vmcnt(0)")
    st(82)
    e("s_barrier")
    for s in range(opt.zbar,22): zstep(s)
    def hinc(off):
        e("v_mov_b32 v0, 1")
        e("s_mov_b64 exec, 1")
        e("s_waitcnt vmcnt(0)")
        e(f"ds_add_u32 v7, v0 offset:{off}")
        e("s_mov_b64 exec, -1")
    CWB=97280
    def dmaB():
        e(f"s_sub_u32 s{sT}, s{sWAVE}, 4")
        e(f"s_lshl_b32 s{sT+1}, s{sT}, 10")
        e(f"s_add_u32 m0, s{sT+1}, {CWB}")
        e(f"s_lshl_b32 s{sT}, s{sT}, 7")
        e(f"s_add_u32 s{sT}, s{sT}, {14*128}")
        for t in range(8):
            if t==7:
                e(f"s_cmp_ge_u32 s{sWAVE}, 6")
                e("s_cbranch_scc1 L_dma_done")
            e(f"buffer_load_dwordx4 v5, s[{S_WS}:{S_WS+3}], s{sT} offen sc1 lds")
            if t<7:
                e(f"s_add_u32 m0, m0, 4096")
                e(f"s_add_u32 s{sT}, s{sT}, 512")
        lab("L_dma_done")
    if opt.bstep<0:
        if opt.bgate: lds_spin("L_wred",7,0,F_RED,4,sleep=1)
        dmaB()
    st(84)
    AUE,AUO=200,216; RG=232
    AXE=LE(0); AXO=ZE(0)
    vm=Q(63); lg=Q(15)
    seq=[('eo',22),('eo',23)]+[('e',s) for s in range(4)]+[('o',s) for s in range(4)]+[('eo',s) for s in range(4,22)]
    free=[RG+4*k for k in range(6)]
    reg={}
    lL=[]; lG=[]
    for i,(tl,s) in enumerate(seq):
        for k,fi in ([('x',2*s),('u',2*s+1)] if s<22 else [('u',44+s-22)]): lL.append((i,k,fi))
    cur=[0]; okB=[False]
    def ld():
        if not free or not lL or lL[0][0]>cur[0]+opt.look: return False
        i,k,fi=lL[0]
        if 14<=fi<44 and not okB[0]: return False
        lL.pop(0); r=free.pop(0); reg[(i,k)]=r
        if 14<=fi<44: off=(fi-14)*1024
        else:
            p=fi+2 if fi<14 else fi-44
            off=RING+4096-CWB+(p>>2)*8192+(p&3)*1024
        e(f"ds_read_b128 v[{r}:{r+3}], v1 offset:{off}"); lg.issue(f"{k}{i}")
        return True
    if opt.gateC: lds_spin("L_gC",7,0,{1:F_RED,3:F_G}[opt.gateC],4,sleep=1)
    st(88,True)
    if ST: e("s_memtime s[96:97]"); e("s_waitcnt lgkmcnt(0)")
    while ld(): pass
    first={'xe':1,'xo':1,'ue':1,'uo':1}
    GV=RG; rel=[]
    for i,(tl,s) in enumerate(seq):
        cur[0]=i
        CS={2:76,6:78,10:80,12:82,13:84,16:86,20:88,24:92}
        if opt.cst and i in CS: e(f"s_memtime s[{CS[i]}:{CS[i]+1}]")
        if i==opt.bstep:
            if opt.bgate: lds_spin("L_wred",7,0,F_RED,4,sleep=1); lg.done=len(lg.ops)
            dmaB()
        if i==opt.bstep2: hinc(F_CW2); lg.issue("cw2")
        if i==12:
            lds_spin("L_cw2",7,0,F_CW2,4); lg.done=len(lg.ops); okB[0]=True
            while ld(): pass
        q,nm=(lg,"lgkmcnt") if f'u{i}' in lg.ops else (vm,"vmcnt")
        if q.pending(f'u{i}'): e(f"s_waitcnt {nm}({q.need(f'u{i}')})")
        n=0
        for t in tl:
            z=(ZE if t=='e' else ZO)(s) if s<22 else (LE if t=='e' else LO)(s-22)
            for k,a in (('x',AXE if t=='e' else AXO),('u',AUE if t=='e' else AUO)):
                if (i,k) not in reg: continue
                c=f"v[{a}:{a+15}]"; r=reg[(i,k)]
                e(f"v_mfma_f32_32x32x16_bf16 {c}, v[{r}:{r+3}], v[{z}:{z+3}], {0 if first[k+t] else c}"); first[k+t]=0; lastw[t]=cnt[0]
                n+=1
                if n==1: free+=rel; rel=[]
                ld()
                if len(tl)==1: ld()
            if s<22 and not (t=='e' and s<4): rel.append(z)
        rel+= [reg[(i,k)] for k in 'xu' if (i,k) in reg]
        if i==len(seq)-3:
            assert not lL and not lG
            GV=free.pop(0)
            e(f"buffer_load_dwordx2 v[{GV}:{GV+1}], v6, s[{S_WS}:{S_WS+3}], 0 offen sc1"); vm.issue("gv")
    V=free.pop(0); V2=V+1
    e(f"s_add_u32 s{sE}, s{sE}, 1")
    e(f"s_and_b32 s{sE+1}, s{sE+1}, 0xff")
    e("s_lshl_b32 s9, s9, 16")
    e(f"s_lshl_b32 s{sT+6}, s{sROW}, 1")
    e(f"s_lshl_b32 s{sT+7}, s{sROW}, 3")
    e(f"s_add_u32 s{sT+7}, s{sT+7}, {EPOCH}")
    e(f"v_mov_b32 v{V+3}, s{sE}")
    hz('e',12)
    e(f"v_mul_f32 v{V}, v{AXE}, v{AUE}")
    e(f"v_mul_f32 v{V2}, v{AXE+1}, v{AUE+1}")
    for t in range(2,14): e(f"v_fmac_f32 v{V+(t&1)}, v{AXE+t}, v{AUE+t}")
    hz('o',12)
    for t in range(14): e(f"v_fmac_f32 v{V+(t&1)}, v{AXO+t}, v{AUO+t}")
    e(f"v_add_f32 v{V}, v{V}, v{V2}")
    st(90)
    if ST: e("s_memtime s[98:99]")
    e("s_mov_b32 exec_lo, 0x3ffffff")
    e("s_mov_b32 exec_hi, 0")
    e(f"s_mov_b32 s{sT+4}, {opt.bound}")
    G2=GV+2
    def chk(g,lbl):
        e(f"v_and_b32 v{V2}, 0xff, v{g+1}")
        e(f"v_cmp_eq_u32 vcc, s{sE}, v{g}")
        e(f"v_cmp_eq_u32 s[{sT}:{sT+1}], s{sE+1}, v{V2}")
        e(f"v_and_b32 v{V2}, 0xffffff00, v{g+1}")
        e(f"s_and_b64 vcc, vcc, s[{sT}:{sT+1}]")
        e("s_cmp_eq_u64 vcc, exec")
        e(f"s_cbranch_scc1 L_got")
    lab("L_poll2")
    e(f"buffer_load_dwordx2 v[{G2}:{G2+1}], v6, s[{S_WS}:{S_WS+3}], 0 offen sc1")
    e("s_waitcnt vmcnt(1)")
    chk(GV,0)
    e(f"buffer_load_dwordx2 v[{GV}:{GV+1}], v6, s[{S_WS}:{S_WS+3}], 0 offen sc1")
    e("s_waitcnt vmcnt(1)")
    chk(G2,1)
    e(f"s_sub_u32 s{sT+4}, s{sT+4}, 1")
    e("s_cbranch_scc0 L_poll2")
    lab("L_got")
    e(f"v_add_f32 v{V}, v{V}, v{V2}")
    e("s_mov_b64 exec, -1")
    if not opt.cst: st(92)
    for dpp in ["quad_perm:[1,0,3,2] row_mask:0xf bank_mask:0xf","quad_perm:[2,3,0,1] row_mask:0xf bank_mask:0xf",
                "row_half_mirror row_mask:0xf bank_mask:0xf","row_mirror row_mask:0xf bank_mask:0xf",
                "row_bcast:15 row_mask:0xa bank_mask:0xf","row_bcast:31 row_mask:0xc bank_mask:0xf"]:
        e("s_nop 1")
        e(f"v_add_f32_dpp v{V}, v{V}, v{V} {dpp}")
    e("s_mov_b32 exec_lo, 0")
    e("s_mov_b32 exec_hi, 0x80000000")
    e(f"v_add_f32 v{V}, s9, v{V}")
    e(f"v_cvt_pk_bf16_f32 v{V}, v{V}, v{V}")
    e(f"buffer_store_short v{V}, off, s[{S_B}:{S_B+3}], s{sT+6}")
    e(f"buffer_store_dword v{V+3}, off, s[{S_WS}:{S_WS+3}], s{sT+7}")
    if ST:
        e("s_waitcnt vmcnt(0)"); st(94,True); e("s_sub_u32 s98, s98, s96")
        if opt.cst:
            for r in (76,78,80,82,84,86,88,92):
                e(f"s_sub_u32 s{r}, s{r}, s96"); e(f"s_mul_i32 s{r}, s{r}, 100"); e(f"s_add_u32 s{r}, s{r}, s10")
        dump([10,76,78,80,82,84,86,88,90,92,94,98],0,1)
    e("s_endpgm")

    sec("pref")
    lab("L_aux")
    if opt.foldx:
        e(f"s_mov_b32 s{sT+1}, s{sXCD}")
    else:
        e(f"s_lshl1_add_u32 s{sT+1}, s{sXCD}, s{sSLOT}")
        e(f"s_sub_u32 s{sT+1}, s{sT+1}, 26")
    e(f"s_cmp_lt_u32 s{sT+1}, 7")
    e("s_cbranch_scc1 L_fold")
    sec("fold0"); lab("L_fold")
    cm("---- CIN weight folding: rows i = 4*pidx + (wave&3) ----")
    S_C=S_W; S_O=S_B; sI=6
    e(f"s_and_b32 s{sT}, s{sWAVE}, 3")
    e(f"s_lshl2_add_u32 s{sI}, s{sT+1}, s{sT}")
    M=16
    e("v_lshlrev_b32 v3, 2, v0")
    e("v_mov_b32 v7, 0x7fff0000")
    e(f"s_movk_i32 s{sT+1}, 338")
    e(f"v_cmp_gt_u32 vcc, s{sT+1}, v0")
    e("v_lshrrev_b32 v4, 1, v2")
    e("v_and_b32 v5, 1, v2")
    e("v_cndmask_b32 v3, v7, v3, vcc")
    e("v_lshlrev_b32 v4, 3, v4")
    e("s_waitcnt lgkmcnt(0)")
    e(f"s_load_dwordx16 s[76:91], s[{P_WOUT}:{P_WOUT+1}], 104")
    srd(S_C,P_CIN,105456)
    for gg in range(26):
        if gg%3==0: e(f"s_mov_b32 s{sT+2}, {2*35152+gg*1352}")
        e(f"buffer_load_dword v{M+gg}, v3, s[{S_C}:{S_C+3}], s{sT+2} offen offset:{(gg%3)*1352}")
    e("s_branch L_fold_b")
    sec("fold"); lab("L_fold_b")
    PP=44; QQ=52
    def slots():
        for ee in range(8):
            e(f"v_add_u32 v8, {ee}, v4")
            e("v_mul_u32_u24 v9, 5042, v8")
            e("v_lshrrev_b32 v9, 16, v9")
            e("v_mul_u32_u24 v10, 13, v9")
            e("v_sub_u32 v10, v8, v10")
            e(f"v_lshl_add_u32 v{PP+ee}, v10, 1, v5")
            e(f"v_add_u32 v{QQ+ee}, v{PP+ee}, v9")
            e(f"v_subrev_u32 v10, 26, v{QQ+ee}")
            e(f"v_min_u32 v{QQ+ee}, v{QQ+ee}, v10")
    def m3(later):
        e("v_mul_u32_u24 v8, 5042, v0")
        e("v_lshrrev_b32 v8, 16, v8")
        e("v_mul_u32_u24 v9, 13, v8")
        e("v_sub_u32 v9, v0, v9")
        e("v_lshlrev_b32 v9, 7, v9")
        e("v_lshl_add_u32 v96, v8, 1, v9")
        e("s_waitcnt lgkmcnt(0)")
        st(92)
        for gg in range(26):
            sreg=76+(gg>>1)
            if gg&1: e(f"s_and_b32 s{sT+4+(gg&1)}, s{sreg}, 0xffff0000")
            else:    e(f"s_lshl_b32 s{sT+4+(gg&1)}, s{sreg}, 16")
            if gg%4==0: e(f"s_waitcnt vmcnt({later+25-min(gg+3,25)})")
            e(f"v_lshlrev_b32 v8, 16, v{M+gg}")
            e(f"v_and_b32 v9, 0xffff0000, v{M+gg}")
            if gg==0:
                e(f"v_mul_f32 v10, s{sT+4}, v8"); e(f"v_mul_f32 v11, s{sT+4}, v9")
            else:
                e(f"v_fmac_f32 v10, s{sT+4+(gg&1)}, v8"); e(f"v_fmac_f32 v11, s{sT+4+(gg&1)}, v9")
        e("v_cvt_pk_bf16_f32 v10, v10, v11")
        e(f"s_movk_i32 s{sT+1}, 338")
        e(f"v_cmp_gt_u32 vcc, s{sT+1}, v0")
        e(f"s_and_saveexec_b64 s[{sT+2}:{sT+3}], vcc")
        e("ds_write_b16 v96, v10")
        e("ds_write_b16_d16_hi v96, v10 offset:64")
        e("s_mov_b64 exec, -1")
        st(94)
    def st_addr(cnt):
        e("v_lshlrev_b32 v6, 7, v6")
        e("v_lshl_add_u32 v6, v5, 6, v6")
        e(f"s_and_b32 s{sT+1}, s{sWAVE}, 3")
        e(f"s_lshl_b32 s{sT+1}, s{sT+1}, 4")
        e(f"s_add_u32 s{sT+1}, s{sT+1}, {STG}")
        e(f"v_add_u32 v6, s{sT+1}, v6")
        e(f"v_cmp_gt_u32 vcc, {cnt}, v2")
        e("v_mov_b32 v94, 1.0")
        e(f"v_mov_b32 v8, {STG+8192}")
        e("v_cndmask_b32 v6, v8, v6, vcc")
        e("v_cmp_gt_u32 vcc, 2, v2")
        e("s_nop 1")
        e("v_cndmask_b32 v95, v94, 0.5, vcc")
        e("v_cmp_gt_u32 vcc, 4, v2")
        e("s_nop 1")
        e("v_cndmask_b32 v94, v94, 0.5, vcc")
    e(f"s_cmp_ge_u32 s{sWAVE}, 4")
    e("s_cbranch_scc1 L_aux_w1")
    Pq=60; PR=76; RA=68; VV=16
    e("v_and_b32 v8, 31, v2")
    e("v_lshrrev_b32 v15, 5, v2")
    e(f"v_mul_u32_u24 v10, {8*1352}, v15")
    e("v_lshl_add_u32 v10, v8, 1, v10")
    e("v_cmp_gt_u32 vcc, 26, v8")
    e(f"s_mul_i32 s{sT+3}, s{sI}, 52")
    e(f"s_add_u32 s{sT+3}, s{sT+3}, 35152")
    e("v_cndmask_b32 v10, v7, v10, vcc")
    e("v_cmp_gt_u32 vcc, 32, v2")
    e("v_lshlrev_b32 v12, 2, v2")
    e("s_nop 0")
    e("v_cndmask_b32 v11, v7, v10, vcc")
    for s in range(2):
        for ee in range(8):
            h=16*s+ee
            if h%3==0 or ee==0:
                hb=h; e(f"s_add_u32 s{sT+2}, s{sT+3}, {h*1352}")
            va=11 if (s==1 and ee>=2) else 10
            e(f"buffer_load_ushort v{PR+s*8+ee}, v{va}, s[{S_C}:{S_C+3}], s{sT+2} offen offset:{(h-hb)*1352}")
    srd(S_O,P_WOUT,156)
    e(f"buffer_load_dword v13, v12, s[{S_O}:{S_O+3}], 0 offen offset:52")
    e(f"s_lshl_b32 s{sT+2}, s{sI}, 1")
    e(f"buffer_load_ushort v14, off, s[{S_O}:{S_O+3}], s{sT+2}")
    e("v_lshlrev_b32 v8, 6, v2")
    e("v_mov_b32 v9, 0")
    e("s_mov_b32 exec_lo, 0x7ffffff")
    e("s_mov_b32 exec_hi, 0")
    e("ds_write_b32 v8, v9 offset:52")
    e("ds_write_b32 v8, v9 offset:56")
    e("ds_write_b32 v8, v9 offset:60")
    e("s_mov_b64 exec, -1")
    e("v_and_b32 v8, 31, v2")
    e("v_lshlrev_b32 v93, 6, v8")
    e("v_lshl_add_u32 v93, v15, 4, v93")
    e(f"s_mul_i32 s{sT+1}, s{sWAVE}, 5120")
    e(f"s_add_u32 s{sT+1}, s{sT+1}, 4096")
    e("v_mul_u32_u24 v92, 144, v8")
    e("v_lshl_add_u32 v92, v15, 4, v92")
    e(f"v_add_u32 v92, s{sT+1}, v92")
    slots()
    e("v_cmp_lt_u32 vcc, 43, v2")
    e("v_subrev_u32 v10, 176, v4")
    e("v_mov_b32 v11, 26")
    for ee in range(8):
        e(f"v_add_u32 v8, {ee}, v10")
        e("v_lshl_add_u32 v8, v8, 1, v5")
        e(f"v_min_u32 v8, 31, v8")
        e(f"v_cndmask_b32 v8, v{QQ+ee}, v8, vcc")
        e(f"v_cndmask_b32 v9, v{PP+ee}, v11, vcc")
        e(f"v_mul_u32_u24 v9, 144, v9")
        e(f"v_lshl_add_u32 v9, v8, 2, v9")
        e(f"v_add_u32 v{RA+ee}, s{sT+1}, v9")
    e("v_lshrrev_b32 v8, 1, v2")
    e("v_lshl_add_u32 v6, v8, 1, 1")
    e("v_add_u32 v8, 22, v8")
    e("v_cndmask_b32 v6, v6, v8, vcc")
    st_addr(48)
    m3(18)
    e("s_mov_b32 exec_lo, 0x1fff")
    e("s_mov_b32 exec_hi, 0")
    e("s_waitcnt vmcnt(0)")
    e(f"ds_write_b32 v12, v13 offset:{26*64}")
    e("s_mov_b64 exec, -1")
    for r in range(8): e(f"v_lshl_or_b32 v{Pq+r}, v{PR+2*r+1}, 16, v{PR+2*r}")
    e("s_waitcnt lgkmcnt(0)")
    e("s_barrier")
    Qq=16; D=24
    e(f"ds_read_b128 v[{Qq}:{Qq+3}], v93")
    e(f"ds_read_b128 v[{Qq+4}:{Qq+7}], v93 offset:32")
    e("s_waitcnt lgkmcnt(0)")
    e(f"v_mfma_f32_32x32x16_bf16 v[{D}:{D+15}], v[{Pq}:{Pq+3}], v[{Qq}:{Qq+3}], 0")
    e(f"v_mfma_f32_32x32x16_bf16 v[{D}:{D+15}], v[{Pq+4}:{Pq+7}], v[{Qq+4}:{Qq+7}], v[{D}:{D+15}]")
    e(f"v_mfma_f32_32x32x16_bf16 v[{D}:{D+15}], v[{Qq}:{Qq+3}], v[{Pq}:{Pq+3}], v[{D}:{D+15}]")
    e(f"v_mfma_f32_32x32x16_bf16 v[{D}:{D+15}], v[{Qq+4}:{Qq+7}], v[{Pq+4}:{Pq+7}], v[{D}:{D+15}]")
    e("s_nop 11")
    for m in range(4):
        e(f"ds_write_b128 v92, v[{D+4*m}:{D+4*m+3}] offset:{m*32}")
    e("s_waitcnt lgkmcnt(0)")
    for ee in range(8): e(f"ds_read_b32 v{VV+ee}, v{RA+ee}")
    e("v_lshlrev_b32 v14, 16, v14")
    e(f"v_cmp_eq_u32 s[{sT}:{sT+1}], 46, v2")
    e(f"v_cmp_eq_u32 s[{sT+2}:{sT+3}], 47, v2")
    e("v_cmp_lt_u32 vcc, 45, v2")
    e("s_waitcnt lgkmcnt(0)")
    e(f"v_cndmask_b32 v{VV+5}, v{VV+5}, v14, s[{sT}:{sT+1}]")
    e(f"v_cndmask_b32 v{VV+5}, v{VV+5}, 0, s[{sT+2}:{sT+3}]")
    e(f"v_cndmask_b32 v{VV+6}, v{VV+6}, 0, vcc")
    e(f"v_cndmask_b32 v{VV+7}, v{VV+7}, 0, vcc")
    e("s_branch L_aux_pack")
    lab("L_aux_w1")
    GA=60; GB=68
    e(f"s_mul_i32 s{sT+3}, s{sI}, 1352")
    e(f"s_lshl_b32 s{sT+6}, s{sWAVE}, 11")
    e(f"s_add_u32 s{sT+6}, s{sT+6}, {32768-4*2048}")
    e(f"s_mov_b32 m0, s{sT+6}")
    e("v_lshlrev_b32 v12, 4, v2")
    e(f"buffer_load_dwordx4 v12, s[{S_C}:{S_C+3}], s{sT+3} offen lds")
    e(f"buffer_load_dwordx4 v12, s[{S_C}:{S_C+3}], s{sT+3} offen offset:1024 lds")
    slots()
    for ee in range(8):
        e(f"v_mul_u32_u24 v8, 26, v{PP+ee}")
        e(f"v_add_lshl_u32 v8, v8, v{QQ+ee}, 1")
        e(f"v_add_u32 v{GA+ee}, s{sT+6}, v8")
        e(f"v_mul_u32_u24 v9, 26, v{QQ+ee}")
        e(f"v_add_lshl_u32 v9, v9, v{PP+ee}, 1")
        e(f"v_add_u32 v{GB+ee}, s{sT+6}, v9")
    e("v_and_b32 v6, 62, v2")
    st_addr(44)
    m3(2)
    e("s_waitcnt lgkmcnt(0)")
    e("s_barrier")
    e("s_waitcnt vmcnt(0)")
    for ee in range(8):
        e(f"ds_read_u16 v{GA+ee}, v{GA+ee}")
        e(f"ds_read_u16 v{GB+ee}, v{GB+ee}")
    e("s_waitcnt lgkmcnt(0)")
    for ee in range(8):
        e(f"v_lshlrev_b32 v{GA+ee}, 16, v{GA+ee}")
        e(f"v_lshlrev_b32 v{GB+ee}, 16, v{GB+ee}")
        e(f"v_add_f32 v{VV+ee}, v{GA+ee}, v{GB+ee}")
    lab("L_aux_pack")
    srd(S_WS,P_WS,WS_SIZE); srd(S_A,P_DBG,256)
    e("v_cmp_eq_u32 vcc, 43, v2")
    for ee in range(8): e(f"v_mul_f32 v{VV+ee}, v{VV+ee}, v{94 if ee<5 else 95}")
    e(f"v_cndmask_b32 v{VV+7}, v{VV+7}, 0, vcc")
    for m in range(4): e(f"v_cvt_pk_bf16_f32 v{24+m}, v{VV+2*m}, v{VV+2*m+1}")
    e("ds_write_b128 v6, v[24:27]")
    e("v_lshlrev_b32 v8, 4, v0")
    e(f"s_movk_i32 s{sT+1}, 368")
    e(f"v_cmp_gt_u32 vcc, s{sT+1}, v0")
    e(f"s_lshr_b32 s{sT}, s{sI}, 2")
    e(f"s_mul_i32 s{sT+2}, s{sT}, 5888")
    e("v_cndmask_b32 v9, v7, v8, vcc")
    e("s_waitcnt lgkmcnt(0)")
    e("s_barrier")
    e(f"ds_read_b128 v[24:27], v8 offset:{STG}")
    e("s_waitcnt lgkmcnt(0)")
    e(f"buffer_store_dwordx4 v[24:27], v9, s[{S_WS}:{S_WS+3}], s{sT+2} offen sc0 sc1")
    st(96)
    e(f"s_lshl_b32 s{sT}, s{sT}, 2")
    e("v_mov_b32 v8, 1")
    e("s_waitcnt vmcnt(0)")
    e("s_barrier")
    e(f"s_cmp_lg_u32 s{sWAVE}, 0")
    e("s_cbranch_scc1 L_noflag")
    e("s_mov_b64 exec, 1")
    e(f"buffer_store_dword v8, off, s[{S_A}:{S_A+3}], s{sT} sc0 sc1")
    e("s_mov_b64 exec, -1")
    lab("L_noflag")
    if ST:
        st(98); e("s_waitcnt vmcnt(0)"); st(100,True)
        dump([10,92,94,96,98,100],1,2)
    e("s_branch L_aux_done")
    sec("pref")
    lab("L_prefetch")
    e("s_waitcnt lgkmcnt(0)")
    if opt.pdel: e(f"s_sleep {opt.pdel}")
    if opt.pf:
        e(f"s_cmp_lg_u32 s{sSLOT}, 31")
        e("s_cbranch_scc1 L_pf2")
        srd(S_A,P_B1,3328); srd(S_B,P_W2,3328); srd(S_WS,P_WS,EPOCH+8192)
        e("v_lshlrev_b32 v3, 7, v0")
        e(f"buffer_load_dword v12, v3, s[{S_A}:{S_A+3}], 0 offen")
        e(f"buffer_load_dword v13, v3, s[{S_B}:{S_B+3}], 0 offen")
        e(f"s_mov_b32 s{sT}, {EPOCH}")
        e(f"buffer_load_dword v14, v3, s[{S_WS}:{S_WS+3}], s{sT} offen")
        lab("L_pf2")
        srd(S_W,P_W,1664*3328)
        if opt.foldx:
            e(f"s_cmp_lt_u32 s{sXCD}, 7")
            e(f"s_cselect_b32 s{sT+2}, 27, 26")
        else:
            e(f"s_cmp_lt_u32 s{sXCD}, 4")
            e(f"s_cselect_b32 s{sT+2}, 27, 26")
            e(f"s_cmp_lt_u32 s{sXCD}, 3")
            e(f"s_cselect_b32 s{sT+2}, 28, s{sT+2}")
        e(f"s_sub_u32 s{sT}, s{sSLOT}, s{sT+2}")
        e(f"s_sub_u32 s{sT+2}, 32, s{sT+2}")
        e(f"s_mul_i32 s{sT+1}, s{sXCD}, 26")
        e(f"s_lshr_b32 s{sT+1}, s{sT+1}, 3")
        e(f"s_lshl_b32 s{sT+1}, s{sT+1}, 7")
        for u in range(3):
            e(f"v_add_u32 v3, {512*u}, v0")
            e(f"v_mul_u32_u24 v3, s{sT+2}, v3")
            e(f"v_add_u32 v3, s{sT}, v3")
            e("v_lshrrev_b32 v4, 2, v3")
            if opt.pskip: e(f"v_add_u32 v4, {opt.pskip}, v4")
            e("v_and_b32 v3, 3, v3")
            e(f"v_mul_u32_u24 v4, 3328, v4")
            e("v_lshl_add_u32 v3, v3, 7, v4")
            e(f"buffer_load_dword v{9+u}, v3, s[{S_W}:{S_W+3}], s{sT+1} offen")
            if u<2 and opt.pbar: e("s_barrier")
    e("s_branch L_aux_done")
    sec("fold")
    lab("L_aux_done")
    e(f"s_cmp_lt_u32 s{sWAVE}, 4")
    e("s_cbranch_scc1 L_end")
    srd(S_TBL,P_TBL,128000); srd(S_IDX,P_IDX,106496)
    rowidx_load()
    e(f"v_mov_b32 v7, {FLAGS}")
    e("v_mov_b32 v8, 4")
    e("v_mov_b32 v9, 0")
    e(f"ds_write_b32 v7, v8 offset:{F_RED}")
    e(f"ds_write_b32 v7, v8 offset:{F_G}")
    e(f"ds_write_b32 v7, v8 offset:{F_S1}")
    e(f"ds_write_b32 v7, v9 offset:{F_CW}")
    e(f"ds_write_b32 v7, v9 offset:{F_CW2}")
    e("s_waitcnt vmcnt(0)")
    e("v_lshlrev_b32 v29, 7, v29")
    x0_addrs()
    e("s_branch L_help_x0")
    lab("L_end")
    e("s_endpgm")
    sec("tail")
    L.append('.section .rodata,"a"'); L.append(".p2align 6"); L.append(f".amdhsa_kernel {KN}")
    for x in ["next_free_vgpr 256","next_free_sgpr 102","accum_offset 256","group_segment_fixed_size 0","kernarg_size 88",
              "user_sgpr_count 2","user_sgpr_kernarg_segment_ptr 1","system_sgpr_workgroup_id_x 1"]:
        L.append("  .amdhsa_"+x)
    L.append(".end_amdhsa_kernel")
    return "\n".join(sum((SEC.get(k,[]) for k in order+["tail"]),[]))+"\n"

if __name__=="__main__":
    ap=argparse.ArgumentParser()
    ap.add_argument("-o",default="k.s")
    for k,d in dict(zpk=0,hprio=0,tpk=0,foldx=1,rp=1,pdel=0,cp26=1,pbar=1,lay=1,b2g=1,cst=0,bgate=1,look=2,bstep=3,bstep2=10,inv=0,zmid=17,csc=0,gateC=0,gq=0,rowx=1,wstop=5,wrest=16,bq=3,xlds=1,xgap=0,atid=1,xsl=0,pskip=128,d2late=1,wper=4,its=0,sched=0,nog=0,not_=0,c2=0,noz=0,lateb=1,dly=4,pst=0,enc=0,encrole=0,encwg=0,encwave=0,nocin=0,gcyc=0,psleep=4,now=0,stamps=0,pf=1,cpf=1,prio=1,bound=20000,zsplit=17,zbar=17,nt0=6,tb=444,n0=4,nt1=4,d1late=0,trim=1,wsched=0).items(): ap.add_argument("--"+k,type=int,default=d)
    opt=ap.parse_args()
    for t in range(512): assert (t*5042)>>16==t//13, t
    open(opt.o,"w").write(build(opt))
```

```python
import sys, argparse, math, struct

class Q:
    def __init__(s,cap): s.ops=[]; s.cap=cap; s.done=0
    def issue(s,name): s.ops.append(name)
    def need(s,*names):
        r=99
        for name in names:
            i=len(s.ops)-1-s.ops[::-1].index(name)
            r=min(r,len(s.ops)-1-i)
        r=min(r,s.cap)
        s.done=max(s.done,len(s.ops)-r)
        return r
    def pending(s,*names):
        return any(len(s.ops)-1-s.ops[::-1].index(n)>=s.done for n in names)

WIMG=0; GRAN=65536; EPOCH=0x50000; STAMP=0x100000; WS_SIZE=0x200000
STG=49152; RING=128000; FLAGS=160768; CINW=49152
F_IT9,F_RED,F_G,F_PRE,F_S1,F_CW,F_CW2=0,4,8,12,16,20,24
C1=-2*math.sqrt(2/math.pi)*math.log2(math.e); C2=C1*0.044715
def f2u(x): return struct.unpack('<I',struct.pack('<f',x))[0]
KN="standalone__deep_cross_xdeepfm__recsys_kernel"

sWAVE,sXCD,sSLOT,sCB,sRB=3,4,5,7,8
P_IDX,P_TBL,P_CIN,P_WOUT,P_W,P_B1,P_W2,P_BO=16,18,20,22,24,26,28,30
P_OUT,P_DBG,P_WS=32,34,36
S_IDX,S_TBL,S_W,S_WS,S_A,S_B=40,44,48,52,56,60
sRING,sWR1,sWR2,sTM=64,65,15,14
sT=66

def pair_of(n):
    if n<169: dlt,m=divmod(n,13)
    else: dlt,m=13,n-169
    r=2*m
    return r,(r+dlt)%26

def build(opt):
    SEC={"entry":[]}; order=["entry","dnn0","hpro","pref","fold0","dnn","help","fold"]
    class LL:
        cur="entry"
        def append(s,x): SEC.setdefault(s.cur,[]).append(x)
    L=LL()
    def sec(n): L.cur=n
    cnt=[0]; lastw={}
    def e(x):
        L.append("    "+x)
        cnt[0]+= (int(x.split()[1])+1) if x.startswith("s_nop") else 1
    def hz(key,n):
        d=cnt[0]-lastw[key]
        if d<n: e(f"s_nop {n-d-1}")
    def lab(x): L.append(x+":")
    def cm(x): L.append("    ; "+x)
    E=lambda x:(lambda: e(x))
    ST=opt.stamps
    def srd(d,p,size):
        e(f"s_mov_b32 s{d}, s{p}"); e(f"s_mov_b32 s{d+1}, s{p+1}")
        e(f"s_mov_b32 s{d+2}, {size}"); e(f"s_mov_b32 s{d+3}, 0x20000")
    def st(r,wait=False):
        if ST:
            e(f"s_memrealtime s[{r}:{r+1}]")
            if wait: e("s_waitcnt lgkmcnt(0)")
    def dump(regs,area=0,role=0):
        if opt.enc:
            delay(regs,role); return
        dump_(regs,area)
    dl=[0]
    def delay(regs,role):
        dl[0]+=1; n=dl[0]
        e("s_mov_b64 exec, -1")
        e("s_waitcnt lgkmcnt(0)")
        if opt.enc==99:
            if role!=1: return
            srd(S_A,P_DBG,256)
            e("s_not_b32 s12, s10")
            e("v_mov_b32 v244, s12")
            e(f"v_mov_b32 v245, s{regs[10]}")
            e("v_mov_b32 v246, 1")
            e("s_mov_b64 exec, 1")
            e(f"buffer_atomic_umax v244, off, s[{S_A}:{S_A+3}], 0 offset:240 sc1")
            e(f"buffer_atomic_umax v245, off, s[{S_A}:{S_A+3}], 0 offset:244 sc1")
            e("s_waitcnt vmcnt(0)")
            e(f"buffer_atomic_add v246, off, s[{S_A}:{S_A+3}], 0 offset:248 sc0 sc1")
            e("s_waitcnt vmcnt(0)")
            e("v_readfirstlane_b32 s12, v246")
            e("s_cmp_lg_u32 s12, 1023")
            e(f"s_cbranch_scc1 L_dly{n}_x")
            e(f"buffer_load_dwordx2 v[244:245], off, s[{S_A}:{S_A+3}], 0 offset:240 sc1")
            e("s_waitcnt vmcnt(0)")
            e("v_readfirstlane_b32 s12, v244")
            e("v_readfirstlane_b32 s13, v245")
            e("s_not_b32 s12, s12")
            e("s_sub_u32 s12, s13, s12")
        else:
            if role!=opt.encrole: return
            e(f"s_cmp_lg_u32 s2, {opt.encwg}")
            e(f"s_cbranch_scc1 L_dly{n}_x")
            e(f"s_cmp_lg_u32 s{sWAVE}, {opt.encwave}")
            e(f"s_cbranch_scc1 L_dly{n}_x")
            if opt.enc in (96,97):
                e(f"s_load_dwordx8 s[76:83], s[{P_DBG}:{P_DBG+1}], 64")
                e("s_waitcnt lgkmcnt(0)")
                e("s_mov_b32 s12, s76"); e("s_mov_b32 s13, s76")
                for k in range(1,8):
                    e(f"s_min_u32 s12, s12, s{76+k}"); e(f"s_max_u32 s13, s13, s{76+k}")
                if opt.enc==96: e("s_mov_b32 s13, s10")
                e("s_sub_u32 s12, s13, s12")
                e("s_min_u32 s12, s12, 2000")
            else: e(f"s_sub_u32 s12, s{regs[opt.enc]}, s10")
        e("s_mul_i32 s12, s12, 100")
        e("s_memrealtime s[66:67]")
        e("s_waitcnt lgkmcnt(0)")
        e("s_add_u32 s12, s12, s66")
        lab(f"L_dly{n}")
        e("s_sleep 8")
        e("s_memrealtime s[66:67]")
        e("s_waitcnt lgkmcnt(0)")
        e("s_sub_u32 s13, s66, s12")
        e("s_cmp_lt_i32 s13, 0")
        e(f"s_cbranch_scc1 L_dly{n}")
        lab(f"L_dly{n}_x")
        e("s_mov_b64 exec, -1")
    def dump_(regs,area=0):
        e("s_mov_b64 exec, -1")
        e("s_waitcnt lgkmcnt(0)")
        e("s_lshl_b32 s12, s2, 3")
        e(f"s_add_u32 s12, s12, s{sWAVE}")
        e("s_lshl_b32 s12, s12, 6")
        e(f"s_add_u32 s12, s12, {STAMP+area*0x40000}")
        regs=list(regs)+[regs[0]]*(12-len(regs))
        for i,r in enumerate(regs): e(f"v_mov_b32 v{244+i}, s{r}")
        e("s_mov_b64 exec, 1")
        for i in range(3):
            e(f"buffer_store_dwordx4 v[{244+4*i}:{247+4*i}], off, s[{S_WS}:{S_WS+3}], s12 offset:{16*i}")
        e("s_mov_b64 exec, -1")
    def lds_spin(name,vaddr,vtmp,off,target,sleep=0):
        e(f"s_mov_b32 s{sT+4}, {opt.bound*8}")
        lab(name)
        e(f"ds_read_b32 v{vtmp}, v{vaddr} offset:{off}")
        e("s_waitcnt lgkmcnt(0)")
        e(f"v_readfirstlane_b32 s{sT+5}, v{vtmp}")
        e(f"s_cmp_ge_u32 s{sT+5}, {target}")
        e(f"s_cbranch_scc1 {name}_x")
        if sleep: e(f"s_sleep {sleep}")
        e(f"s_sub_u32 s{sT+4}, s{sT+4}, 1")
        e(f"s_cbranch_scc0 {name}")
        lab(name+"_x")

    IV=16; IA=24
    def rec_addrs():
        e(f"s_lshl_b32 s{sT+5}, s{sT}, 7")
        e(f"s_add_u32 s{sT+5}, s{sT+5}, {RING+4096}")
        e(f"v_lshl_add_u32 v7, v7, 3, s{sT+5}")
        e("v_mul_u32_u24 v9, 7, v8")
        e("v_and_b32 v8, 1, v8")
        for par in range(2):
            d=IA+2*par
            if par:
                e("v_xor_b32 v8, 1, v8"); e("v_add_u32 v9, 1, v9")
            e("v_lshrrev_b32 v10, 1, v9")
            e(f"v_lshl_add_u32 v{d}, v10, 8, v7")
            e(f"v_lshl_add_u32 v{d}, v8, 14, v{d}")
            e("v_lshlrev_b32 v10, 1, v8")
            e(f"v_xor_b32 v10, s{sT+2}, v10")
            e(f"v_lshl_add_u32 v{d}, v10, 1, v{d}")
            e(f"v_xor_b32 v{d+1}, 2, v{d}")
            e(f"v_add_u32 v{d+1}, 8192, v{d+1}")
    sROW=6; sE=38
    def rowidx_load():
        e(f"s_sub_u32 s{sT+6}, s{sWAVE}, 4")
        if opt.rowx:
            e(f"s_lshl2_add_u32 s{sROW}, s{sSLOT}, s{sT+6}")
            e(f"s_lshl_b32 s{sT+6}, s{sXCD}, 7")
            e(f"s_add_u32 s{sROW}, s{sROW}, s{sT+6}")
        else: e(f"s_lshl2_add_u32 s{sROW}, s2, s{sT+6}")
        e(f"s_mul_i32 s{sT+6}, s{sROW}, 104")
        e("v_lshlrev_b32 v30, 2, v2")
        e(f"buffer_load_dword v29, v30, s[{S_IDX}:{S_IDX+3}], s{sT+6} offen")
    L.append("; @launch grid=(256,1,1) block=(512,1,1) lds=163840")
    L.append('.amdgcn_target "amdgcn-amd-amdhsa--gfx950"')
    L.append(".text"); L.append(f".globl {KN}"); L.append(".p2align 8"); L.append(f".type {KN},@function")
    lab(KN)
    e("s_load_dwordx16 s[16:31], s[0:1], 0")
    e("s_load_dwordx4 s[32:35], s[0:1], 64")
    e("s_load_dwordx2 s[36:37], s[0:1], 80")
    st(10)
    e("s_cmp_ge_u32 s2, 256")
    e("s_cbranch_scc1 L_end")
    e("v_lshrrev_b32 v1, 6, v0")
    e("v_and_b32 v2, 63, v0")
    e(f"v_readfirstlane_b32 s{sWAVE}, v1")
    e(f"s_and_b32 s{sXCD}, s2, 7")
    e(f"s_lshr_b32 s{sSLOT}, s2, 3")
    e(f"s_cmp_ge_u32 s{sSLOT}, 26")
    e("s_cbranch_scc1 L_aux0")
    sec("pref"); lab("L_aux0")
    e(f"s_cmp_gt_u32 s{sSLOT}, {26 if opt.foldx else 27}")
    e("s_cbranch_scc1 L_prefetch")
    if opt.cpf:
        e(f"s_getpc_b64 s[{S_IDX}:{S_IDX+1}]")
        lab("L_pc")
        e(f"s_sub_u32 s{S_IDX}, s{S_IDX}, L_pc-{KN}")
        e(f"s_subb_u32 s{S_IDX+1}, s{S_IDX+1}, 0")
        e(f"s_mov_b32 s{S_IDX+2}, L_end-{KN}")
        e(f"s_mov_b32 s{S_IDX+3}, 0x20000")
        e("v_lshlrev_b32 v3, 7, v0")
        e(f"buffer_load_dword v255, v3, s[{S_IDX}:{S_IDX+3}], 0 offen")
    sec("entry")
    e(f"s_mul_i32 s6, s{sXCD}, 26")
    e(f"s_add_u32 s6, s6, s{sSLOT}")
    e(f"s_and_b32 s{sRB}, s6, 7")
    e(f"s_and_b32 s{sT}, s{sWAVE}, 1")
    e(f"s_lshr_b32 s{sT+2}, s{sWAVE}, 1")
    e(f"s_lshl2_add_u32 s{sT+4}, s{sRB}, s{sT+2}")
    e(f"s_mul_i32 s{sT+4}, s{sT+4}, 3328")
    e(f"s_lshl_b32 s{sT+5}, s{sT}, 11")
    e(f"s_add_u32 s{sT+4}, s{sT+4}, s{sT+5}")
    e(f"s_lshl_b32 s{sT+3}, s{sT+2}, 13")
    e(f"s_add_u32 s{sT+3}, s{sT+3}, s{sT+5}")
    e(f"s_add_u32 m0, s{sT+3}, {RING+4096}")
    e("v_lshlrev_b32 v6, 4, v2")
    e("v_lshrrev_b32 v3, 3, v2")
    e("v_lshrrev_b32 v4, 4, v2")
    e("v_and_b32 v10, 7, v2")
    e(f"s_lshl_b32 s{sT+1}, s{sT}, 2")
    e("v_xor_b32 v5, v10, v4")
    e(f"v_xor_b32 v5, s{sT+1}, v5")
    e("v_lshlrev_b32 v5, 4, v5")
    e("v_lshl_add_u32 v5, v3, 7, v5")
    e(f"s_lshl1_add_u32 s{sT+3}, s{sSLOT}, s{sT+2}")
    e(f"s_lshl1_add_u32 s{sTM}, s{sT+3}, s{sT}")
    e(f"s_lshl_b32 s{sTM}, s{sTM}, 10")
    e(f"s_sub_u32 s{sWR2}, {63*2048}, s{sT+5}")
    e(f"s_lshr_b32 s{sT+5}, s{sT+5}, 1")
    e(f"s_add_u32 s{sWR1}, s{sWR2}, s{sT+5}")
    e(f"s_mov_b32 s{S_IDX+2}, 106496"); e(f"s_mov_b32 s{S_IDX+3}, 0x20000")
    e(f"s_mov_b32 s{S_TBL+2}, 128000"); e(f"s_mov_b32 s{S_TBL+3}, 0x20000")
    e(f"s_mov_b32 s{sT+3}, {opt.n0-1}")
    e("s_waitcnt lgkmcnt(0)")
    if opt.pst: st(84)
    e(f"s_mov_b64 s[{S_IDX}:{S_IDX+1}], s[{P_IDX}:{P_IDX+1}]")
    e(f"s_mov_b64 s[{S_TBL}:{S_TBL+1}], s[{P_TBL}:{P_TBL+1}]")
    e(f"buffer_load_dwordx4 v6, s[{S_IDX}:{S_IDX+3}], s{sT+4} offen lds")
    if opt.trim:
        e(f"s_cmp_eq_u32 s{sT}, 0")
        e("s_cselect_b64 exec, -1, 0xffff")
    e(f"buffer_load_dwordx4 v6, s[{S_IDX}:{S_IDX+3}], s{sT+4} offen offset:1024 lds")
    if opt.trim: e("s_mov_b64 exec, -1")
    nl=[0]
    def tloop(n=None,vm=None):
        nl[0]+=1; name=f"L_tl{nl[0]}"
        if n is not None:
            if n==0: return
            e(f"s_mov_b32 s{sT+3}, {n-1}")
        lab(name)
        e(f"s_mov_b32 m0, s{sTM}")
        e(f"s_add_u32 s{sTM}, s{sTM}, 8192")
        e(f"buffer_load_dwordx4 v5, s[{S_TBL}:{S_TBL+3}], m0 offen lds")
        e(f"s_cmp_ge_u32 s{sTM}, s{sWR1}")
        e(f"s_cselect_b32 s{sT+5}, s{sWR2}, 0")
        e(f"s_sub_u32 s{sTM}, s{sTM}, s{sT+5}")
        e(f"s_sub_u32 s{sT+3}, s{sT+3}, 1")
        e(f"s_cbranch_scc0 {name}")
        if vm is not None:
            for t in range(n): vm.issue("tbl")
    tloop()
    e(f"s_cmp_ge_u32 s{sWAVE}, 4")
    e("s_cbranch_scc1 L_help_pro")
    sec("dnn0")
    tbl=tloop

    vWe,vWo=1,3
    AD=8; AF=16; F0=48; REC=80; ACC=128
    VT=106; PB,PC=110,111; BI=112; W2P=112; EV=120; VR=122; WA=123; KC=126; RA1=5; VB=6
    SEL=80; ONE=86; vC1=87; S0=88; S1=89; TA=90
    acc=lambda lt,ct: ACC+(lt*4+ct)*4
    Fr=lambda j,ct: F0+(j&1)*16+ct*4
    afr=lambda lt: AF+4*lt
    vm=Q(63); lg=Q(15)
    cm("---- DNN wave prologue ----")
    for x in ["idx0","idx3"]+["tbl"]*opt.n0: vm.issue(x)
    e(f"s_lshr_b32 s{sCB}, s6, 3")
    e(f"s_lshl_b32 s{sRING}, s{sWAVE}, 13")
    e(f"s_add_u32 s{sRING}, s{sRING}, {RING}")
    e(f"s_lshl_b32 s{sT+7}, s{sWAVE}, 5")
    e(f"v_add_u32 v9, s{sT+7}, v3")
    e("v_mul_u32_u24 v9, 3328, v9")
    e("v_lshlrev_b32 v11, 1, v4")
    e("v_and_b32 v11, 2, v11")
    e("v_xor_b32 v11, v11, v10")
    e("v_lshl_add_u32 v1, v11, 4, v9")
    e(f"s_lshl_b32 s{sT+7}, s{sCB}, 7")
    e(f"v_add_u32 v1, s{sT+7}, v1")
    e("v_xor_b32 v3, 64, v1")
    e(f"v_add_u32 v3, {8*3328-1024}, v3")
    srd(S_W,P_W,1664*3328)
    sWO=12
    def d3(j,pc):
        ld=lambda: (e(f"buffer_load_dwordx4 v{vWo if pc&1 else vWe}, s[{S_W}:{S_W+3}], s{sWO} offen offset:{(pc&1)*1024} lds"),vm.issue(f"w{j}_{pc}"))
        if pc&1: return [ld]
        return [E(f"s_add_u32 m0, s{sRING}, {((j&1)*4+pc)*1024}"),E(f"s_mov_b32 s{sWO}, {(128*j+8*pc)*3328}"),ld]
    def dma(j,pcs):
        for pc in pcs:
            for f in d3(j,pc): f()
    dma(0,range(4))
    def bias_loads(ii):
        for i in ii:
            e(f"buffer_load_dwordx2 v[{BI+2*i}:{BI+2*i+1}], v{VB}, s[{S_A}:{S_A+3}], 0 offen offset:{i*32}"); vm.issue(f"bias{i}")
    TB=[opt.n0]+[int(c,16) for c in str(opt.tb)]
    e("s_branch L_dnn_b")
    sec("dnn"); lab("L_dnn_b")
    e(f"v_lshl_add_u32 v{VB}, v4, 3, s{sT+7}")
    e(f"v_mov_b32 v7, {FLAGS}")
    srd(S_A,P_B1,3328)
    if opt.pst: st(86)
    e("v_and_b32 v13, 15, v2")
    e("v_mul_u32_u24 v13, 104, v13")
    e(f"s_lshl2_add_u32 s{sT+5}, s{sT+2}, {RING+4096}")
    e(f"v_add_u32 v13, s{sT+5}, v13")
    e(f"v_xor_b32 v9, s{sWAVE}, v4")
    e("v_lshl_add_u32 v24, v9, 13, v13")
    e("v_add_u32 v25, 1664, v24")
    e("v_bfe_u32 v9, v2, 2, 2")
    e("v_lshlrev_b32 v13, 7, v9")
    e("v_lshl_add_u32 v13, v4, 10, v13")
    e("v_lshrrev_b32 v9, 1, v9")
    e("v_lshl_add_u32 v13, v9, 5, v13")
    e("v_and_b32 v9, 1, v4")
    e("v_lshl_add_u32 v13, v9, 6, v13")
    e("v_and_b32 v9, 3, v2")
    e("v_lshl_add_u32 v13, v9, 3, v13")
    e(f"v_add_u32 v{VT}, s{sRING}, v13")
    e(f"v_xor_b32 v{VT+1}, 32, v{VT}")
    e(f"v_xor_b32 v{VT+2}, 64, v{VT}")
    e(f"v_xor_b32 v{VT+3}, 0x60, v{VT}")
    e(f"v_add_u32 v{KC}, s{sT+1}, v4")
    e(f"v_lshl_or_b32 v{KC}, v{KC}, 16, v{KC}")
    e(f"s_mov_b32 s{sT+6}, 0x00070007")
    e(f"s_waitcnt vmcnt({vm.need('idx3')})")
    if opt.pst: st(88)
    e("s_barrier")
    if opt.pst: st(90)
    RW=lambda t,j: 160+t*14+j
    for j in range(0,13,2):
        for t in range(2):
            e(f"ds_read2_b32 v[{RW(t,j)}:{RW(t,j)+1}], v{24+t} offset0:{2*j} offset1:{2*j+2}")
    tbl(TB[1],vm)
    srd(S_WS,P_WS,WS_SIZE)
    srd(S_B,P_W2,3328)
    e("s_waitcnt lgkmcnt(0)")
    e("s_barrier")
    st(76)
    tbl(TB[2],vm)
    for j in range(13):
        if j==6: tbl(TB[3],vm)
        d=REC+2*j
        e(f"v_lshl_or_b32 v{d}, v{RW(1,j)}, 16, v{RW(0,j)}")
        e(f"v_lshrrev_b32 v13, 1, v{d}")
        e(f"v_and_b32 v13, s{sT+6}, v13")
        e(f"v_lshl_or_b32 v{d}, v{d}, 3, v13")
        e(f"v_mov_b32 v{d+1}, v{d}")
        if j: e(f"v_permlane32_swap_b32 v{d-2}, v{d-1}")
    e("s_nop 1")
    e(f"v_permlane32_swap_b32 v{REC+24}, v{REC+25}")
    def bc(j,h):
        A=REC+2*j+h; B=PC if h else PB
        return [E(f"v_mov_b32 v{B}, v{A}")],[E(f"v_permlane16_swap_b32 v{A}, v{B}"),E(f"v_xor_b32 v{A}, v{KC}, v{A}"),E(f"v_xor_b32 v{B}, v{KC}, v{B}")]
    def adr(lt,j):
        src={0:REC+2*j,1:PB,2:REC+2*j+1,3:PC}[lt>>1]
        e(f"v_lshlrev_b32_sdwa v{AD+lt}, 4, v{src} dst_sel:DWORD dst_unused:UNUSED_PAD src0_sel:DWORD src1_sel:WORD_{lt&1}")
    def Rop(lt,j): e(f"ds_read_b128 v[{afr(lt)}:{afr(lt)+3}], v{AD+lt}"); lg.issue(f"R{lt}_{j}")
    def Top(j,ct,h4):
        d=Fr(j,ct)+2*h4
        e(f"ds_read_b64_tr_b16 v[{d}:{d+1}], v{VT+ct} offset:{(j&1)*4096+h4*512}"); lg.issue(f"T{j}_{ct}{h4}")
    for h in range(2): bc(0,h)[0][0]()
    e("s_nop 0")
    for h in range(2):
        for f in bc(0,h)[1]: f()
    for lt in range(8): adr(lt,0)
    bc(1,0)[0][0]()
    if ST: e("s_waitcnt lgkmcnt(0)")
    e(f"s_waitcnt vmcnt({vm.need('w0_3')})")
    for ct in range(4): Top(0,ct,0); Top(0,ct,1)
    for f in bc(1,0)[1]: f()
    dma(1,range(4))
    e("s_waitcnt lgkmcnt(0)"); lg.done=len(lg.ops)
    for x in [f"s_xor_b32 s{sT}, s{sWAVE}, 1",f"s_lshl_b32 s{sT}, s{sT}, 12",f"v_lshlrev_b32 v{RA1}, 4, v2",f"v_add_u32 v{WA}, s{sT}, v{RA1}",
              f"v_xor_b32 v{WA+1}, {3<<12}, v{WA}",f"v_xor_b32 v{WA+2}, {2<<12}, v{WA}",f"s_lshl_b32 s{sT}, s{sWAVE}, 12",f"v_add_u32 v{RA1}, s{sT}, v{RA1}",
              f"v_lshrrev_b32 v{VR}, 5, v2","v_and_b32 v0, 15, v2",f"v_lshl_add_u32 v{VR}, v{VR}, 4, v0",f"s_lshl_b32 s{sT}, s{sRB}, 7",
              f"s_lshl_b32 s{sT+1}, s{sWAVE}, 5",f"s_add_u32 s{sT}, s{sT}, s{sT+1}",f"v_add_lshl_u32 v{VR}, v{VR}, s{sT}, 3"]: e(x)
    if opt.pst: st(92)
    e(f"s_waitcnt vmcnt({vm.need('tbl')})")
    st(78)
    e("s_barrier")
    st(80,True)
    if ST: e("s_memtime s[96:97]"); e("s_waitcnt lgkmcnt(0)")
    if opt.prio: e(f"s_setprio {opt.prio}")
    LT=[2,3,4,5,6,7,0,1]
    for lt in LT: Rop(lt,0)
    def inc(off,nm):
        def f():
            e("s_mov_b64 exec, 1")
            e(f"ds_add_u32 v7, v{ONE} offset:{off}"); lg.issue(nm)
            e("s_mov_b64 exec, -1")
        return f
    def wv(n): return lambda n=n: (e(f"s_waitcnt vmcnt({vm.need(n)})") if vm.pending(n) else None)
    def wl(n): return lambda n=n: (e(f"s_waitcnt lgkmcnt({lg.need(n)})") if lg.pending(n) else None)
    T_=lambda j,ct,h4: (lambda: Top(j,ct,h4))
    def badd(k):
        ct,r=k>>2,k&3; src=BI+2*ct+(r>>1)
        return [E(f"v_and_b32 v0, 0xffff0000, v{src}" if r&1 else f"v_lshlrev_b32 v0, 16, v{src}")]+\
               [(lambda t=t: (hz((t,ct),8),e(f"v_add_f32 v{acc(t,ct)+r}, v{acc(t,ct)+r}, v0"))) for t in range(2)]
    selops=[E("v_and_b32 v0, 15, v2"),E(f"v_lshlrev_b32 v{TA}, 2, v4"),E(f"v_sub_u32 v0, v0, v{TA}"),E(f"s_movk_i32 s{sT+7}, 0x3f80"),
            E(f"v_lshlrev_b32 v{TA}, 4, v0"),E(f"v_and_b32 v{TA}, 16, v{TA}"),E(f"v_lshlrev_b32 v{TA}, v{TA}, s{sT+7}"),E("v_lshrrev_b32 v0, 1, v0"),
            E(f"v_cmp_eq_u32 s[{sT}:{sT+1}], 0, v0"),E(f"v_cmp_eq_u32 s[{sT+2}:{sT+3}], 1, v0"),E(f"v_mov_b32 v{SEL}, 0"),E(f"v_mov_b32 v{SEL+1}, 0"),
            E(f"v_cndmask_b32 v{SEL+2}, 0, v{TA}, s[{sT}:{sT+1}]"),E(f"v_cndmask_b32 v{SEL+3}, 0, v{TA}, s[{sT+2}:{sT+3}]"),E(f"v_mov_b32 v{SEL+4}, 0"),E(f"v_mov_b32 v{SEL+5}, 0")]
    misc=[E(f"s_xor_b32 s{sT}, s{sWAVE}, 1"),E(f"s_lshl_b32 s{sT}, s{sT}, 12"),E(f"v_lshlrev_b32 v{RA1}, 4, v2"),E(f"v_add_u32 v{WA}, s{sT}, v{RA1}"),
          E(f"v_xor_b32 v{WA+1}, {3<<12}, v{WA}"),E(f"v_xor_b32 v{WA+2}, {2<<12}, v{WA}"),E(f"s_lshl_b32 s{sT}, s{sWAVE}, 12"),E(f"v_add_u32 v{RA1}, s{sT}, v{RA1}"),
          E(f"v_mov_b32 v{ONE}, 1"),E(f"v_mov_b32 v{vC1}, {f2u(C1)}"),E(f"v_mov_b32 v{S0}, 0"),E(f"v_mov_b32 v{S1}, 0"),
          E(f"v_lshrrev_b32 v{VR}, 5, v2"),E("v_and_b32 v0, 15, v2"),E(f"v_lshl_add_u32 v{VR}, v{VR}, 4, v0"),E(f"s_lshl_b32 s{sT}, s{sRB}, 7"),
          E(f"s_lshl_b32 s{sT+1}, s{sWAVE}, 5"),E(f"s_add_u32 s{sT}, s{sT}, s{sT+1}"),E(f"v_add_lshl_u32 v{VR}, v{VR}, s{sT}, 3")]
    def w2l(i): return lambda: (e(f"buffer_load_dwordx2 v[{W2P+2*i}:{W2P+2*i+1}], v{VB}, s[{S_B}:{S_B+3}], 0 offen offset:{i*32}"),vm.issue(f"w2_{i}"))
    evl=[E(f"s_mov_b32 s{sT+2}, {EPOCH}"),lambda: (e(f"buffer_load_dwordx2 v[{EV}:{EV+1}], v{VR}, s[{S_WS}:{S_WS+3}], s{sT+2} offen"),vm.issue("ev"))]
    LO=list(range(92,100))
    W2F=[LO[k>>1] if k%2==0 else W2P+(k>>1) for k in range(16)]
    unp=[]
    for k in range(8):
        unp+= [E(f"v_lshlrev_b32 v{LO[k]}, 16, v{W2P+k}"),E(f"v_and_b32 v{W2P+k}, 0xffff0000, v{W2P+k}")]
    def cv(lt):
        a=acc(lt,0); u=lt>>1
        c=[(lambda m=m: (hz((lt,m>>1),8),e(f"v_cvt_pk_bf16_f32 v{a+m}, v{a+2*m}, v{a+2*m+1}"))) for m in range(8)]
        w=[(lambda h=h: (e(f"ds_write_b128 v{WA+u-1}, v[{a+4*h}:{a+4*h+3}] offset:{(u-1)*16384+((lt&1)*2+h)*1024}"),lg.issue("W"))) for h in range(2)]
        return c[:4]+w[:1]+c[4:]+w[1:]
    def bar2():
        e("s_waitcnt lgkmcnt(0)"); lg.done=len(lg.ops)
        if opt.its: e("s_memtime s[92:93]")
        if not opt.pst: st(82)
        e("s_barrier")
        if not opt.pst: st(84)
    ITS={1:76,2:78,3:80,5:82,7:84,9:86,11:88,12:90}
    bl=sum((badd(k) for k in range(16)),[])
    sel2=[(lambda f=f: f()) for f in selops]
    extra={2:[(lambda i=i: bias_loads([i])) for i in range(4)],
           3:[wv('bias3')]+bl[:6],4:bl[6:15],5:bl[15:24],6:bl[24:33],7:bl[33:42],8:bl[42:48],
           9:[w2l(i) for i in range(4)]+evl+misc[8:12],10:selops,11:[]}
    q12=[]
    for j in range(13):
        cm(f"---- iteration {j} ----")
        if opt.its==1 and j in ITS: e(f"s_memtime s[{ITS[j]}:{ITS[j]+1}]")
        if opt.its and j==12: opt.pst=1
        G=[[] for k in range(32)]
        if j<12:
            Ts=[T_(j+1,ct,h4) for ct in range(4) for h4 in range(2)]
            mB,rB=bc(j+1,1)
            G[2]+=mB; G[6]+=rB[:1]; G[7]+=rB[1:2]; G[11]+=rB[2:]
            if j+2<13:
                mA,rA=bc(j+2,0); G[23]+=mA; G[26]+=rA[:1]; G[27]+=rA[1:2]; G[30]+=rA[2:]
            free=[k for k in range(32) if k%4<2]
            seq=[]
            if j==0: seq=[[x] for x in d3(2,0)+d3(2,1)+d3(2,2)+d3(2,3)]+[[wv('w1_3'),Ts[0]]]+[[x] for x in Ts[1:]]
            else:
                seq=[[wv(f'w{j+1}_3'),Ts[0]]]+[[x] for x in Ts[1:]]
                if opt.tpk and j>1: seq=[[wv(f'w{j+1}_3'),Ts[0],Ts[1]],Ts[2:4],Ts[4:6],Ts[6:8]]
                if j+3<13:
                    dd=d3(j+3,0)+d3(j+3,1)+d3(j+3,2)+d3(j+3,3)
                    seq+=[[dd[0]],[dd[1]],[wl(f'T{j+1}_31'),dd[2]]]+[[x] for x in dd[3:]]
            if j==1:
                dd=d3(3,0)+d3(3,1)+d3(3,2)+d3(3,3)
                for k,x in zip((3,7,10,11,14,15,18,19),dd): G[k].append(x)
                seq=seq[:8]+[[]]*0+seq[8:]
                free=free[:8]+[20,21,22,24,25,28,29,31]
            for k,x in zip(free,seq): G[k]+=x
            if j==10: G[17]+=[wl('T11_31'),inc(F_S1,"s1")]
            ex=list(extra.get(j,[]))
            if j==11: ex=[E("s_waitcnt vmcnt(0)")]+unp
            lo,hi=(5,23) if j in (3,4,5,6,7,8) else (4,32)
            k=lo
            while ex:
                cand=[g for g in range(k,hi) if len(G[g])+(1 if g%4>=2 else 0)<2]
                if not cand:
                    G[hi-2]+=ex; break
                k=cand[0]; G[k].append(ex.pop(0))
        for g,lt in enumerate(LT):
            if g%2==0:
                needs=[f"R{lt}_{j}",f"R{LT[g+1]}_{j}"]+([f"T{j}_31"] if g==0 else [])
                if lg.pending(*needs): e(f"s_waitcnt lgkmcnt({lg.need(*needs)})")
            for ct in range(4):
                c=f"v[{acc(lt,ct)}:{acc(lt,ct)+3}]"
                e(f"v_mfma_f32_16x16x32_bf16 {c}, v[{Fr(j,ct)}:{Fr(j,ct)+3}], v[{afr(lt)}:{afr(lt)+3}], {0 if j==0 else c}")
                lastw[(lt,ct)]=cnt[0]
                if j<12:
                    if ct==2: adr(lt,j+1)
                    if ct==3: Rop(lt,j+1)
                    for f in G[4*g+ct]: f()
                else:
                    if g==0 and ct==2: bar2()
                    n=3 if (g,ct)!=(7,3) else 99
                    if not (ct==0 and g<=6):
                        for f in q12[:n]: f()
                        q12=q12[n:]
            if j==12 and lt>=2:
                q12+=cv(lt)
                if lt==7: q12+= [inc(F_RED,"inc"),E(f"s_mov_b32 s{sT+2}, {f2u(C2)}")]
    if not opt.pst: st(86)
    if ST: e("s_memtime s[98:99]")
    lds_spin("L_red",7,0,F_RED,4)
    if not opt.pst: st(88,True)
    lg=Q(15)
    adds=[]
    for t in range(2):
        for u in (1,2,3):
            for h in range(2):
                r=acc(2*u+t,0)+4*h
                e(f"ds_read_b128 v[{r}:{r+3}], v{RA1} offset:{(u-1)*16384+(t*2+h)*1024}"); lg.issue(f"p{t}{u}{h}")
                for sx in range(2):
                    def add(t=t,u=u,h=h,r=r,sx=sx):
                        if lg.pending(f"p{t}{u}{h}"): e(f"s_waitcnt lgkmcnt({lg.need(f'p{t}{u}{h}')})")
                        c=f"v[{acc(t,2*h+sx)}:{acc(t,2*h+sx)+3}]"; sl=SEL if sx else SEL+2
                        e(f"v_mfma_f32_16x16x32_bf16 {c}, v[{sl}:{sl+3}], v[{r}:{r+3}], {c}"); lastw[(t,2*h+sx)]=cnt[0]
                    adds.append(add)
    for f in adds[:13]: f()
    adds=adds[13:]
    T=F0
    for q in range(8):
        t,ct=q>>2,q&3
        a=acc(t,ct)
        def A(n=2):
            for k in range(n):
                if adds: adds.pop(0)()
        hz((t,ct),8)
        for r in range(4): e(f"v_mul_f32 v{T+r}, v{a+r}, v{a+r}")
        A(1)
        for r in range(4): e(f"v_fma_f32 v{T+r}, v{T+r}, s{sT+2}, v{vC1}")
        A(1)
        for r in range(4): e(f"v_mul_f32 v{T+r}, v{T+r}, v{a+r}")
        A(1)
        for r in range(4): e(f"v_exp_f32 v{T+r}, v{T+r}")
        A(1)
        for r in range(4): e(f"v_mul_f32 v{a+r}, v{a+r}, v{W2F[4*ct+r]}")
        for r in range(4): e(f"v_add_f32 v{T+r}, 1.0, v{T+r}")
        for r in range(4): e(f"v_rcp_f32 v{T+r}, v{T+r}")
        if adds: A(1)
        else: e("s_nop 0")
        for r in range(4): e(f"v_fmac_f32 v{S1 if t else S0}, v{a+r}, v{T+r}")
    e(f"s_movk_i32 s{sT}, 0xff")
    e(f"v_add_u32 v{EV}, 1, v{EV}")
    e(f"v_permlane32_swap_b32 v{S0}, v{S1}")
    e(f"v_add_f32 v{S0}, v{S0}, v{S1}")
    e(f"v_mov_b32 v{S1}, v{S0}")
    e(f"s_lshl_b32 s{sT+1}, s{sCB}, 13")
    e(f"s_add_u32 s{sT+1}, s{sT+1}, {GRAN}")
    e(f"v_permlane16_swap_b32 v{S0}, v{S1}")
    e(f"v_add_f32 v{S0}, v{S0}, v{S1}")
    e(f"v_bfi_b32 v{EV+1}, s{sT}, v{EV+1}, v{S0}")
    e("s_mov_b32 exec_lo, 0xffff")
    e("s_mov_b32 exec_hi, 0xffff")
    e(f"buffer_store_dwordx2 v[{EV}:{EV+1}], v{VR}, s[{S_WS}:{S_WS+3}], s{sT+1} offen sc0 sc1")
    if ST:
        if opt.gcyc: e("s_memtime s[98:99]")
        if not opt.pst: st(90); e("s_waitcnt vmcnt(0)"); st(92,True)
        e("s_waitcnt lgkmcnt(0)"); e("s_sub_u32 s98, s98, s96")
        if opt.its:
            for r in range(76,94,2):
                e(f"s_sub_u32 s{r}, s{r}, s96"); e(f"s_mul_i32 s{r}, s{r}, 100"); e(f"s_add_u32 s{r}, s{r}, s10")
        dump([10,76,78,80,82,84,86,88,90,92,98])
    e("s_endpgm")

    sec("hpro")
    def late_sloads():
        e(f"s_lshl_b32 s{sT+8}, s{sROW}, 3")
        e(f"s_add_u32 s{sT+8}, s{sT+8}, {EPOCH}")
        e(f"s_load_dwordx2 s[{sE}:{sE+1}], s[{P_WS}:{P_WS+1}], s{sT+8}")
        e(f"s_load_dword s9, s[{P_BO}:{P_BO+1}], 0")
    X=32
    def x0_addrs():
        e("v_and_b32 v3, 31, v2")
        e("v_lshlrev_b32 v4, 2, v3")
        for r in range(26): e(f"v_readlane_b32 s{76+r}, v29, {r}")
        e("s_mov_b32 exec_hi, 0")
        for r in range(26): e(f"v_xor_b32 v{X+r}, s{76+r}, v4")
        e("s_mov_b64 exec, -1")
        e("s_mov_b32 exec_lo, 0")
        for r in range(26): e(f"v_xor_b32 v{X+r}, s{76+(r+1)%26}, v4")
        e("s_mov_b64 exec, -1")
    lab("L_help_pro")
    rowidx_load()
    tloop(opt.nt0-opt.n0)
    e(f"v_mov_b32 v7, {FLAGS}")
    e("v_mov_b32 v8, 0"); e("v_mov_b32 v9, 0")
    e("ds_write2_b64 v7, v[8:9], v[8:9] offset1:1")
    e("ds_write2_b64 v7, v[8:9], v[8:9] offset0:2 offset1:3")
    e(f"s_waitcnt vmcnt({opt.nt0+1})")
    e("s_barrier")
    tloop(opt.nt1)
    e("s_waitcnt lgkmcnt(0)")
    e("s_barrier")
    if opt.trim:
        e(f"s_cmp_eq_u32 s{sWAVE}, 4")
        e(f"s_cselect_b32 s{sT+3}, {16-opt.nt0-opt.nt1-1}, {16-opt.nt0-opt.nt1-2}")
        tloop()
    else: tloop(16-opt.nt0-opt.nt1)
    e("s_branch L_help_b")
    sec("help"); lab("L_help_b")
    e(f"s_waitcnt vmcnt({15-opt.n0})")
    if opt.xlds:
        e("v_lshlrev_b32 v8, 3, v29"); e("v_and_b32 v8, 0x70, v8"); e("v_lshl_or_b32 v29, v29, 7, v8")
    else: e("v_lshlrev_b32 v29, 7, v29")
    x0_addrs()
    e("s_waitcnt vmcnt(0)")
    e("s_barrier")
    if opt.xsl: e(f"s_sleep {opt.xsl}")
    if opt.xlds:
        for r in range(26):
            e(f"ds_read_b32 v{X+r}, v{X+r}")
            if opt.xgap and r%opt.xgap==opt.xgap-1: e("s_sleep 1")
        e("s_branch L_help_main")
    lab("L_help_x0")
    for r in range(26):
        e(f"buffer_load_dword v{X+r}, v{X+r}, s[{S_TBL}:{S_TBL+3}], 0 offen")
    lab("L_help_main")
    srd(S_WS,P_WS,WS_SIZE); srd(S_A,P_DBG,256); srd(S_B,P_OUT,2048)
    Z0=8
    ZE=lambda s: Z0+4*s
    ZO=lambda s: Z0+88+4*s
    LE=lambda k: Z0+176+4*k
    LO=lambda k: Z0+184+4*k
    R=200; MT=252
    e("v_lshrrev_b32 v5, 2, v3")
    e("v_mul_u32_u24 v5, 5888, v5")
    e("v_and_b32 v6, 3, v2")
    e("v_lshl_add_u32 v5, v6, 4, v5")
    e("v_lshrrev_b32 v6, 5, v2")
    e("v_lshl_add_u32 v5, v6, 6, v5")
    e("v_mov_b32 v7, 0x7fff0000")
    e("v_cmp_gt_u32 vcc, 26, v3")
    e("v_lshlrev_b32 v6, 13, v2")
    e(f"s_lshl_b32 s{sT}, s{sROW}, 3")
    e("v_cndmask_b32 v5, v7, v5, vcc")
    e(f"s_add_u32 s{sT}, s{sT}, {GRAN}")
    e(f"v_add_u32 v6, s{sT}, v6")
    e("v_cmp_gt_u32 vcc, 26, v2")
    e("v_lshlrev_b32 v1, 4, v2")
    e(f"v_add_u32 v1, 97280, v1")
    e("v_cndmask_b32 v6, v7, v6, vcc")
    e(f"v_mov_b32 v7, {FLAGS}")
    e("s_waitcnt vmcnt(0) lgkmcnt(0)")
    late_sloads()
    if opt.enc in (96,97):
        e("s_cmp_ge_u32 s2, 8")
        e("s_cbranch_scc1 L_nost")
        e("v_mov_b32 v0, s10")
        e("s_lshl_b32 s12, s2, 2")
        e(f"buffer_store_dword v0, off, s[{S_A}:{S_A+3}], s12 offset:64 sc0 sc1")
        lab("L_nost")
    st(76)
    for r in range(26):
        e(f"v_lshlrev_b32 v{R+2*r}, 16, v{X+r}")
        e(f"v_and_b32 v{R+2*r+1}, 0xffff0000, v{X+r}")
    def zstep(s):
        if opt.noz: return
        for m in range(4):
            (a1,a2),(b1,b2)=pair_of(8*s+2*m),pair_of(8*s+2*m+1)
            if opt.zpk:
                e(f"v_pk_mul_f32 v[{MT}:{MT+1}], v[{R+2*a1}:{R+2*a1+1}], v[{R+2*a2}:{R+2*a2+1}]")
                e(f"v_pk_mul_f32 v[{MT+2}:{MT+3}], v[{R+2*b1}:{R+2*b1+1}], v[{R+2*b2}:{R+2*b2+1}]")
            else:
                e(f"v_mul_f32 v{MT}, v{R+2*a1}, v{R+2*a2}")
                e(f"v_mul_f32 v{MT+2}, v{R+2*b1}, v{R+2*b2}")
                e(f"v_mul_f32 v{MT+1}, v{R+2*a1+1}, v{R+2*a2+1}")
                e(f"v_mul_f32 v{MT+3}, v{R+2*b1+1}, v{R+2*b2+1}")
            e(f"v_cvt_pk_bf16_f32 v{ZE(s)+m}, v{MT}, v{MT+2}")
            e(f"v_cvt_pk_bf16_f32 v{ZO(s)+m}, v{MT+1}, v{MT+3}")
    def zlin():
        for k in range(2):
            for m2 in range(4):
                m=k*8+2*m2
                for tl,d in ((0,LE(k)+m2),(1,LO(k)+m2)):
                    if m+1<=12: e(f"v_cvt_pk_bf16_f32 v{d}, v{R+4*m+tl}, v{R+4*(m+1)+tl}")
                    elif m==12: e(f"v_cvt_pk_bf16_f32 v{d}, v{R+4*m+tl}, 1.0")
                    else: e(f"v_mov_b32 v{d}, 0")
    SC=" sc1" if opt.csc else ""
    if opt.hprio: e(f"s_setprio {opt.hprio}")
    zlin()
    for s in range(opt.zsplit): zstep(s)
    if opt.hprio: e("s_setprio 0")
    st(78)
    e(f"s_load_dwordx8 s[92:99], s[{P_DBG}:{P_DBG+1}], 0")
    e("s_waitcnt lgkmcnt(0)")
    for k in range(1,7): e(f"s_and_b32 s92, s92, s{92+k}")
    e("s_cmp_lg_u32 s92, 0")
    e("s_cbranch_scc1 L_polled")
    lds_spin("L_it9",7,4,F_S1,4,sleep=4)
    e(f"v_lshlrev_b32 v0, 2, v2")
    e(f"buffer_load_dword v4, v0, s[{S_A}:{S_A+3}], 0 offen sc1")
    for s in range(opt.zsplit,opt.zmid): zstep(s)
    e(f"s_mov_b32 s{sT+4}, {opt.bound}")
    e(f"s_mov_b32 s{sT+2}, 0x7f")
    e(f"s_mov_b32 s{sT+3}, 0")
    lab("L_poll1")
    e("s_waitcnt vmcnt(0)")
    e("v_cmp_ne_u32 vcc, 0, v4")
    e(f"s_and_b64 vcc, vcc, s[{sT+2}:{sT+3}]")
    e(f"s_cmp_eq_u64 vcc, s[{sT+2}:{sT+3}]")
    e("s_cbranch_scc1 L_polled")
    e(f"s_sleep {opt.psleep}")
    e(f"buffer_load_dword v4, v0, s[{S_A}:{S_A+3}], 0 offen sc1")
    e(f"s_sub_u32 s{sT+4}, s{sT+4}, 1")
    e("s_cbranch_scc0 L_poll1")
    lab("L_polled")
    if opt.inv: e("buffer_inv sc1")
    st(80)
    lds_spin("L_s1",7,0,F_S1,4,sleep=2)
    e(f"s_sub_u32 s{sT}, s{sWAVE}, 4")
    e(f"s_lshl_b32 s{sT+1}, s{sT}, 13")
    e(f"s_add_u32 m0, s{sT+1}, {RING+4096}")
    e(f"s_lshl_b32 s{sT}, s{sT}, 9")
    e(f"s_sub_u32 s{sT}, s{sT}, 256")
    for t in range(4):
        if t<2:
            e(f"s_cmp_eq_u32 s{sWAVE}, 4")
            e(f"s_cselect_b32 s{sT+1}, {(44+t)*128}, s{sT}")
        else: e(f"s_mov_b32 s{sT+1}, s{sT}")
        e(f"buffer_load_dwordx4 v5, s[{S_WS}:{S_WS+3}], s{sT+1} offen sc1 lds")
        if t<3:
            e(f"s_add_u32 m0, m0, 1024")
            e(f"s_add_u32 s{sT}, s{sT}, 128")
    for s in range(opt.zmid,opt.zbar): zstep(s)
    e("s_waitcnt vmcnt(0)")
    st(82)
    e("s_barrier")
    for s in range(opt.zbar,opt.zb2): zstep(s)
    def hinc(off):
        e("v_mov_b32 v0, 1")
        e("s_mov_b64 exec, 1")
        e("s_waitcnt vmcnt(0)")
        e(f"ds_add_u32 v7, v0 offset:{off}")
        e("s_mov_b64 exec, -1")
    CWB=97280
    def dmaB():
        e(f"s_sub_u32 s{sT}, s{sWAVE}, 4")
        e(f"s_lshl_b32 s{sT+1}, s{sT}, 10")
        e(f"s_add_u32 m0, s{sT+1}, {CWB}")
        e(f"s_lshl_b32 s{sT}, s{sT}, 7")
        e(f"s_add_u32 s{sT}, s{sT}, {14*128}")
        for t in range(8):
            if t==7:
                e(f"s_cmp_ge_u32 s{sWAVE}, 6")
                e("s_cbranch_scc1 L_dma_done")
            e(f"buffer_load_dwordx4 v5, s[{S_WS}:{S_WS+3}], s{sT} offen sc1 lds")
            if t<7:
                e(f"s_add_u32 m0, m0, 4096")
                e(f"s_add_u32 s{sT}, s{sT}, 512")
        lab("L_dma_done")
    if opt.bstep<0:
        if opt.bgate: lds_spin("L_wred",7,0,F_RED,4,sleep=1)
        dmaB()
    for s in range(opt.zb2,22): zstep(s)
    st(84)
    AUE,AUO=200,216; RG=232
    AXE=LE(0); AXO=ZE(0)
    vm=Q(63); lg=Q(15)
    seq=[('eo',22),('eo',23)]+[('e',s) for s in range(4)]+[('o',s) for s in range(4)]+[('eo',s) for s in range(4,22)]
    free=[RG+4*k for k in range(6)]
    reg={}
    lL=[]; lG=[]
    for i,(tl,s) in enumerate(seq):
        for k,fi in ([('x',2*s),('u',2*s+1)] if s<22 else [('u',44+s-22)]): lL.append((i,k,fi))
    cur=[0]; okB=[False]
    def ld():
        if not free or not lL or lL[0][0]>cur[0]+opt.look: return False
        i,k,fi=lL[0]
        if 14<=fi<44 and not okB[0]: return False
        lL.pop(0); r=free.pop(0); reg[(i,k)]=r
        if 14<=fi<44: off=(fi-14)*1024
        else:
            p=fi+2 if fi<14 else fi-44
            off=RING+4096-CWB+(p>>2)*8192+(p&3)*1024
        e(f"ds_read_b128 v[{r}:{r+3}], v1 offset:{off}"); lg.issue(f"{k}{i}")
        return True
    if opt.gateC: lds_spin("L_gC",7,0,{1:F_RED,3:F_G}[opt.gateC],4,sleep=1)
    st(88,True)
    if ST: e("s_memtime s[96:97]"); e("s_waitcnt lgkmcnt(0)")
    while ld(): pass
    first={'xe':1,'xo':1,'ue':1,'uo':1}
    GV=RG; rel=[]
    for i,(tl,s) in enumerate(seq):
        cur[0]=i
        CS={2:76,6:78,10:80,12:82,13:84,16:86,20:88,24:92}
        if opt.cst and i in CS: e(f"s_memtime s[{CS[i]}:{CS[i]+1}]")
        if i==opt.bstep:
            if opt.bgate: lds_spin("L_wred",7,0,F_RED,4,sleep=1); lg.done=len(lg.ops)
            dmaB()
        if i==opt.bstep2: hinc(F_CW2); lg.issue("cw2")
        if i==12:
            lds_spin("L_cw2",7,0,F_CW2,4); lg.done=len(lg.ops); okB[0]=True
            while ld(): pass
        q,nm=(lg,"lgkmcnt") if f'u{i}' in lg.ops else (vm,"vmcnt")
        if q.pending(f'u{i}'): e(f"s_waitcnt {nm}({q.need(f'u{i}')})")
        n=0
        for t in tl:
            z=(ZE if t=='e' else ZO)(s) if s<22 else (LE if t=='e' else LO)(s-22)
            for k,a in (('x',AXE if t=='e' else AXO),('u',AUE if t=='e' else AUO)):
                if (i,k) not in reg: continue
                c=f"v[{a}:{a+15}]"; r=reg[(i,k)]
                e(f"v_mfma_f32_32x32x16_bf16 {c}, v[{r}:{r+3}], v[{z}:{z+3}], {0 if first[k+t] else c}"); first[k+t]=0; lastw[t]=cnt[0]
                n+=1
                if n==1: free+=rel; rel=[]
                ld()
                if len(tl)==1: ld()
            if s<22 and not (t=='e' and s<4): rel.append(z)
        rel+= [reg[(i,k)] for k in 'xu' if (i,k) in reg]
        if i==len(seq)-3:
            assert not lL and not lG
            GV=free.pop(0)
            e(f"buffer_load_dwordx2 v[{GV}:{GV+1}], v6, s[{S_WS}:{S_WS+3}], 0 offen sc1"); vm.issue("gv")
    V=free.pop(0); V2=V+1
    e(f"s_add_u32 s{sE}, s{sE}, 1")
    e(f"s_and_b32 s{sE+1}, s{sE+1}, 0xff")
    e("s_lshl_b32 s9, s9, 16")
    e(f"s_lshl_b32 s{sT+6}, s{sROW}, 1")
    e(f"s_lshl_b32 s{sT+7}, s{sROW}, 3")
    e(f"s_add_u32 s{sT+7}, s{sT+7}, {EPOCH}")
    e(f"v_mov_b32 v{V+3}, s{sE}")
    hz('e',12)
    e(f"v_mul_f32 v{V}, v{AXE}, v{AUE}")
    e(f"v_mul_f32 v{V2}, v{AXE+1}, v{AUE+1}")
    for t in range(2,14): e(f"v_fmac_f32 v{V+(t&1)}, v{AXE+t}, v{AUE+t}")
    hz('o',12)
    for t in range(14): e(f"v_fmac_f32 v{V+(t&1)}, v{AXO+t}, v{AUO+t}")
    e(f"v_add_f32 v{V}, v{V}, v{V2}")
    st(90)
    if ST: e("s_memtime s[98:99]")
    e("s_mov_b32 exec_lo, 0x3ffffff")
    e("s_mov_b32 exec_hi, 0")
    e(f"s_mov_b32 s{sT+4}, {opt.bound}")
    G2=GV+2
    def chk(g,lbl):
        e(f"v_and_b32 v{V2}, 0xff, v{g+1}")
        e(f"v_cmp_eq_u32 vcc, s{sE}, v{g}")
        e(f"v_cmp_eq_u32 s[{sT}:{sT+1}], s{sE+1}, v{V2}")
        e(f"v_and_b32 v{V2}, 0xffffff00, v{g+1}")
        e(f"s_and_b64 vcc, vcc, s[{sT}:{sT+1}]")
        e("s_cmp_eq_u64 vcc, exec")
        e(f"s_cbranch_scc1 L_got")
    lab("L_poll2")
    e(f"buffer_load_dwordx2 v[{G2}:{G2+1}], v6, s[{S_WS}:{S_WS+3}], 0 offen sc1")
    e("s_waitcnt vmcnt(1)")
    chk(GV,0)
    e(f"buffer_load_dwordx2 v[{GV}:{GV+1}], v6, s[{S_WS}:{S_WS+3}], 0 offen sc1")
    e("s_waitcnt vmcnt(1)")
    chk(G2,1)
    e(f"s_sub_u32 s{sT+4}, s{sT+4}, 1")
    e("s_cbranch_scc0 L_poll2")
    lab("L_got")
    e(f"v_add_f32 v{V}, v{V}, v{V2}")
    e("s_mov_b64 exec, -1")
    if not opt.cst: st(92)
    for dpp in ["quad_perm:[1,0,3,2] row_mask:0xf bank_mask:0xf","quad_perm:[2,3,0,1] row_mask:0xf bank_mask:0xf",
                "row_half_mirror row_mask:0xf bank_mask:0xf","row_mirror row_mask:0xf bank_mask:0xf",
                "row_bcast:15 row_mask:0xa bank_mask:0xf","row_bcast:31 row_mask:0xc bank_mask:0xf"]:
        e("s_nop 1")
        e(f"v_add_f32_dpp v{V}, v{V}, v{V} {dpp}")
    e("s_mov_b32 exec_lo, 0")
    e("s_mov_b32 exec_hi, 0x80000000")
    e(f"v_add_f32 v{V}, s9, v{V}")
    e(f"v_cvt_pk_bf16_f32 v{V}, v{V}, v{V}")
    e(f"buffer_store_short v{V}, off, s[{S_B}:{S_B+3}], s{sT+6}")
    e(f"buffer_store_dword v{V+3}, off, s[{S_WS}:{S_WS+3}], s{sT+7}")
    if ST:
        e("s_waitcnt vmcnt(0)"); st(94,True); e("s_sub_u32 s98, s98, s96")
        if opt.cst:
            for r in (76,78,80,82,84,86,88,92):
                e(f"s_sub_u32 s{r}, s{r}, s96"); e(f"s_mul_i32 s{r}, s{r}, 100"); e(f"s_add_u32 s{r}, s{r}, s10")
        dump([10,76,78,80,82,84,86,88,90,92,94,98],0,1)
    e("s_endpgm")

    sec("pref")
    lab("L_aux")
    if opt.foldx:
        e(f"s_mov_b32 s{sT+1}, s{sXCD}")
    else:
        e(f"s_lshl1_add_u32 s{sT+1}, s{sXCD}, s{sSLOT}")
        e(f"s_sub_u32 s{sT+1}, s{sT+1}, 26")
    e(f"s_cmp_lt_u32 s{sT+1}, 7")
    e("s_cbranch_scc1 L_fold")
    sec("fold0"); lab("L_fold")
    cm("---- CIN weight folding: rows i = 4*pidx + (wave&3) ----")
    S_C=S_W; S_O=S_B; sI=6
    e(f"s_and_b32 s{sT}, s{sWAVE}, 3")
    e(f"s_lshl2_add_u32 s{sI}, s{sT+1}, s{sT}")
    M=16
    e("v_lshlrev_b32 v3, 2, v0")
    e("v_mov_b32 v7, 0x7fff0000")
    e(f"s_movk_i32 s{sT+1}, 338")
    e(f"v_cmp_gt_u32 vcc, s{sT+1}, v0")
    e("v_lshrrev_b32 v4, 1, v2")
    e("v_and_b32 v5, 1, v2")
    e("v_cndmask_b32 v3, v7, v3, vcc")
    e("v_lshlrev_b32 v4, 3, v4")
    e("s_waitcnt lgkmcnt(0)")
    e(f"s_load_dwordx16 s[76:91], s[{P_WOUT}:{P_WOUT+1}], 104")
    srd(S_C,P_CIN,105456)
    for gg in range(26):
        if gg%3==0: e(f"s_mov_b32 s{sT+2}, {2*35152+gg*1352}")
        e(f"buffer_load_dword v{M+gg}, v3, s[{S_C}:{S_C+3}], s{sT+2} offen offset:{(gg%3)*1352}")
    e("s_branch L_fold_b")
    sec("fold"); lab("L_fold_b")
    PP=44; QQ=52
    def slots():
        for ee in range(8):
            e(f"v_add_u32 v8, {ee}, v4")
            e("v_mul_u32_u24 v9, 5042, v8")
            e("v_lshrrev_b32 v9, 16, v9")
            e("v_mul_u32_u24 v10, 13, v9")
            e("v_sub_u32 v10, v8, v10")
            e(f"v_lshl_add_u32 v{PP+ee}, v10, 1, v5")
            e(f"v_add_u32 v{QQ+ee}, v{PP+ee}, v9")
            e(f"v_subrev_u32 v10, 26, v{QQ+ee}")
            e(f"v_min_u32 v{QQ+ee}, v{QQ+ee}, v10")
    def m3(later):
        e("v_mul_u32_u24 v8, 5042, v0")
        e("v_lshrrev_b32 v8, 16, v8")
        e("v_mul_u32_u24 v9, 13, v8")
        e("v_sub_u32 v9, v0, v9")
        e("v_lshlrev_b32 v9, 7, v9")
        e("v_lshl_add_u32 v96, v8, 1, v9")
        e("s_waitcnt lgkmcnt(0)")
        st(92)
        for gg in range(26):
            sreg=76+(gg>>1)
            if gg&1: e(f"s_and_b32 s{sT+4+(gg&1)}, s{sreg}, 0xffff0000")
            else:    e(f"s_lshl_b32 s{sT+4+(gg&1)}, s{sreg}, 16")
            if gg%4==0: e(f"s_waitcnt vmcnt({later+25-min(gg+3,25)})")
            e(f"v_lshlrev_b32 v8, 16, v{M+gg}")
            e(f"v_and_b32 v9, 0xffff0000, v{M+gg}")
            if gg==0:
                e(f"v_mul_f32 v10, s{sT+4}, v8"); e(f"v_mul_f32 v11, s{sT+4}, v9")
            else:
                e(f"v_fmac_f32 v10, s{sT+4+(gg&1)}, v8"); e(f"v_fmac_f32 v11, s{sT+4+(gg&1)}, v9")
        e("v_cvt_pk_bf16_f32 v10, v10, v11")
        e(f"s_movk_i32 s{sT+1}, 338")
        e(f"v_cmp_gt_u32 vcc, s{sT+1}, v0")
        e(f"s_and_saveexec_b64 s[{sT+2}:{sT+3}], vcc")
        e("ds_write_b16 v96, v10")
        e("ds_write_b16_d16_hi v96, v10 offset:64")
        e("s_mov_b64 exec, -1")
        st(94)
    def st_addr(cnt):
        e("v_lshlrev_b32 v6, 7, v6")
        e("v_lshl_add_u32 v6, v5, 6, v6")
        e(f"s_and_b32 s{sT+1}, s{sWAVE}, 3")
        e(f"s_lshl_b32 s{sT+1}, s{sT+1}, 4")
        e(f"s_add_u32 s{sT+1}, s{sT+1}, {STG}")
        e(f"v_add_u32 v6, s{sT+1}, v6")
        e(f"v_cmp_gt_u32 vcc, {cnt}, v2")
        e("v_mov_b32 v94, 1.0")
        e(f"v_mov_b32 v8, {STG+8192}")
        e("v_cndmask_b32 v6, v8, v6, vcc")
        e("v_cmp_gt_u32 vcc, 2, v2")
        e("s_nop 1")
        e("v_cndmask_b32 v95, v94, 0.5, vcc")
        e("v_cmp_gt_u32 vcc, 4, v2")
        e("s_nop 1")
        e("v_cndmask_b32 v94, v94, 0.5, vcc")
    e(f"s_cmp_ge_u32 s{sWAVE}, 4")
    e("s_cbranch_scc1 L_aux_w1")
    Pq=60; PR=76; RA=68; VV=16
    e("v_and_b32 v8, 31, v2")
    e("v_lshrrev_b32 v15, 5, v2")
    e(f"v_mul_u32_u24 v10, {8*1352}, v15")
    e("v_lshl_add_u32 v10, v8, 1, v10")
    e("v_cmp_gt_u32 vcc, 26, v8")
    e(f"s_mul_i32 s{sT+3}, s{sI}, 52")
    e(f"s_add_u32 s{sT+3}, s{sT+3}, 35152")
    e("v_cndmask_b32 v10, v7, v10, vcc")
    e("v_cmp_gt_u32 vcc, 32, v2")
    e("v_lshlrev_b32 v12, 2, v2")
    e("s_nop 0")
    e("v_cndmask_b32 v11, v7, v10, vcc")
    for s in range(2):
        for ee in range(8):
            h=16*s+ee
            if h%3==0 or ee==0:
                hb=h; e(f"s_add_u32 s{sT+2}, s{sT+3}, {h*1352}")
            va=11 if (s==1 and ee>=2) else 10
            e(f"buffer_load_ushort v{PR+s*8+ee}, v{va}, s[{S_C}:{S_C+3}], s{sT+2} offen offset:{(h-hb)*1352}")
    srd(S_O,P_WOUT,156)
    e(f"buffer_load_dword v13, v12, s[{S_O}:{S_O+3}], 0 offen offset:52")
    e(f"s_lshl_b32 s{sT+2}, s{sI}, 1")
    e(f"buffer_load_ushort v14, off, s[{S_O}:{S_O+3}], s{sT+2}")
    e("v_lshlrev_b32 v8, 6, v2")
    e("v_mov_b32 v9, 0")
    e("s_mov_b32 exec_lo, 0x7ffffff")
    e("s_mov_b32 exec_hi, 0")
    e("ds_write_b32 v8, v9 offset:52")
    e("ds_write_b32 v8, v9 offset:56")
    e("ds_write_b32 v8, v9 offset:60")
    e("s_mov_b64 exec, -1")
    e("v_and_b32 v8, 31, v2")
    e("v_lshlrev_b32 v93, 6, v8")
    e("v_lshl_add_u32 v93, v15, 4, v93")
    e(f"s_mul_i32 s{sT+1}, s{sWAVE}, 5120")
    e(f"s_add_u32 s{sT+1}, s{sT+1}, 4096")
    e("v_mul_u32_u24 v92, 144, v8")
    e("v_lshl_add_u32 v92, v15, 4, v92")
    e(f"v_add_u32 v92, s{sT+1}, v92")
    slots()
    e("v_cmp_lt_u32 vcc, 43, v2")
    e("v_subrev_u32 v10, 176, v4")
    e("v_mov_b32 v11, 26")
    for ee in range(8):
        e(f"v_add_u32 v8, {ee}, v10")
        e("v_lshl_add_u32 v8, v8, 1, v5")
        e(f"v_min_u32 v8, 31, v8")
        e(f"v_cndmask_b32 v8, v{QQ+ee}, v8, vcc")
        e(f"v_cndmask_b32 v9, v{PP+ee}, v11, vcc")
        e(f"v_mul_u32_u24 v9, 144, v9")
        e(f"v_lshl_add_u32 v9, v8, 2, v9")
        e(f"v_add_u32 v{RA+ee}, s{sT+1}, v9")
    e("v_lshrrev_b32 v8, 1, v2")
    e("v_lshl_add_u32 v6, v8, 1, 1")
    e("v_add_u32 v8, 22, v8")
    e("v_cndmask_b32 v6, v6, v8, vcc")
    st_addr(48)
    m3(18)
    e("s_mov_b32 exec_lo, 0x1fff")
    e("s_mov_b32 exec_hi, 0")
    e("s_waitcnt vmcnt(0)")
    e(f"ds_write_b32 v12, v13 offset:{26*64}")
    e("s_mov_b64 exec, -1")
    for r in range(8): e(f"v_lshl_or_b32 v{Pq+r}, v{PR+2*r+1}, 16, v{PR+2*r}")
    e("s_waitcnt lgkmcnt(0)")
    e("s_barrier")
    Qq=16; D=24
    e(f"ds_read_b128 v[{Qq}:{Qq+3}], v93")
    e(f"ds_read_b128 v[{Qq+4}:{Qq+7}], v93 offset:32")
    e("s_waitcnt lgkmcnt(0)")
    e(f"v_mfma_f32_32x32x16_bf16 v[{D}:{D+15}], v[{Pq}:{Pq+3}], v[{Qq}:{Qq+3}], 0")
    e(f"v_mfma_f32_32x32x16_bf16 v[{D}:{D+15}], v[{Pq+4}:{Pq+7}], v[{Qq+4}:{Qq+7}], v[{D}:{D+15}]")
    e(f"v_mfma_f32_32x32x16_bf16 v[{D}:{D+15}], v[{Qq}:{Qq+3}], v[{Pq}:{Pq+3}], v[{D}:{D+15}]")
    e(f"v_mfma_f32_32x32x16_bf16 v[{D}:{D+15}], v[{Qq+4}:{Qq+7}], v[{Pq+4}:{Pq+7}], v[{D}:{D+15}]")
    e("s_nop 11")
    for m in range(4):
        e(f"ds_write_b128 v92, v[{D+4*m}:{D+4*m+3}] offset:{m*32}")
    e("s_waitcnt lgkmcnt(0)")
    for ee in range(8): e(f"ds_read_b32 v{VV+ee}, v{RA+ee}")
    e("v_lshlrev_b32 v14, 16, v14")
    e(f"v_cmp_eq_u32 s[{sT}:{sT+1}], 46, v2")
    e(f"v_cmp_eq_u32 s[{sT+2}:{sT+3}], 47, v2")
    e("v_cmp_lt_u32 vcc, 45, v2")
    e("s_waitcnt lgkmcnt(0)")
    e(f"v_cndmask_b32 v{VV+5}, v{VV+5}, v14, s[{sT}:{sT+1}]")
    e(f"v_cndmask_b32 v{VV+5}, v{VV+5}, 0, s[{sT+2}:{sT+3}]")
    e(f"v_cndmask_b32 v{VV+6}, v{VV+6}, 0, vcc")
    e(f"v_cndmask_b32 v{VV+7}, v{VV+7}, 0, vcc")
    e("s_branch L_aux_pack")
    lab("L_aux_w1")
    GA=60; GB=68
    e(f"s_mul_i32 s{sT+3}, s{sI}, 1352")
    e(f"s_lshl_b32 s{sT+6}, s{sWAVE}, 11")
    e(f"s_add_u32 s{sT+6}, s{sT+6}, {32768-4*2048}")
    e(f"s_mov_b32 m0, s{sT+6}")
    e("v_lshlrev_b32 v12, 4, v2")
    e(f"buffer_load_dwordx4 v12, s[{S_C}:{S_C+3}], s{sT+3} offen lds")
    e(f"buffer_load_dwordx4 v12, s[{S_C}:{S_C+3}], s{sT+3} offen offset:1024 lds")
    slots()
    for ee in range(8):
        e(f"v_mul_u32_u24 v8, 26, v{PP+ee}")
        e(f"v_add_lshl_u32 v8, v8, v{QQ+ee}, 1")
        e(f"v_add_u32 v{GA+ee}, s{sT+6}, v8")
        e(f"v_mul_u32_u24 v9, 26, v{QQ+ee}")
        e(f"v_add_lshl_u32 v9, v9, v{PP+ee}, 1")
        e(f"v_add_u32 v{GB+ee}, s{sT+6}, v9")
    e("v_and_b32 v6, 62, v2")
    st_addr(44)
    m3(2)
    e("s_waitcnt lgkmcnt(0)")
    e("s_barrier")
    e("s_waitcnt vmcnt(0)")
    for ee in range(8):
        e(f"ds_read_u16 v{GA+ee}, v{GA+ee}")
        e(f"ds_read_u16 v{GB+ee}, v{GB+ee}")
    e("s_waitcnt lgkmcnt(0)")
    for ee in range(8):
        e(f"v_lshlrev_b32 v{GA+ee}, 16, v{GA+ee}")
        e(f"v_lshlrev_b32 v{GB+ee}, 16, v{GB+ee}")
        e(f"v_add_f32 v{VV+ee}, v{GA+ee}, v{GB+ee}")
    lab("L_aux_pack")
    srd(S_WS,P_WS,WS_SIZE); srd(S_A,P_DBG,256)
    e("v_cmp_eq_u32 vcc, 43, v2")
    for ee in range(8): e(f"v_mul_f32 v{VV+ee}, v{VV+ee}, v{94 if ee<5 else 95}")
    e(f"v_cndmask_b32 v{VV+7}, v{VV+7}, 0, vcc")
    for m in range(4): e(f"v_cvt_pk_bf16_f32 v{24+m}, v{VV+2*m}, v{VV+2*m+1}")
    e("ds_write_b128 v6, v[24:27]")
    e("v_lshlrev_b32 v8, 4, v0")
    e(f"s_movk_i32 s{sT+1}, 368")
    e(f"v_cmp_gt_u32 vcc, s{sT+1}, v0")
    e(f"s_lshr_b32 s{sT}, s{sI}, 2")
    e(f"s_mul_i32 s{sT+2}, s{sT}, 5888")
    e("v_cndmask_b32 v9, v7, v8, vcc")
    e("s_waitcnt lgkmcnt(0)")
    e("s_barrier")
    e(f"ds_read_b128 v[24:27], v8 offset:{STG}")
    e("s_waitcnt lgkmcnt(0)")
    e(f"buffer_store_dwordx4 v[24:27], v9, s[{S_WS}:{S_WS+3}], s{sT+2} offen sc0 sc1")
    st(96)
    e(f"s_lshl_b32 s{sT}, s{sT}, 2")
    e("v_mov_b32 v8, 1")
    e("s_waitcnt vmcnt(0)")
    e("s_barrier")
    e(f"s_cmp_lg_u32 s{sWAVE}, 0")
    e("s_cbranch_scc1 L_noflag")
    e("s_mov_b64 exec, 1")
    e(f"buffer_store_dword v8, off, s[{S_A}:{S_A+3}], s{sT} sc0 sc1")
    e("s_mov_b64 exec, -1")
    lab("L_noflag")
    if ST:
        st(98); e("s_waitcnt vmcnt(0)"); st(100,True)
        dump([10,92,94,96,98,100],1,2)
    e("s_branch L_aux_done")
    sec("pref")
    lab("L_prefetch")
    e("s_waitcnt lgkmcnt(0)")
    if opt.pdel: e(f"s_sleep {opt.pdel}")
    if opt.pf:
        e(f"s_cmp_lg_u32 s{sSLOT}, 31")
        e("s_cbranch_scc1 L_pf2")
        srd(S_A,P_B1,3328); srd(S_B,P_W2,3328); srd(S_WS,P_WS,EPOCH+8192)
        e("v_lshlrev_b32 v3, 7, v0")
        e(f"buffer_load_dword v12, v3, s[{S_A}:{S_A+3}], 0 offen")
        e(f"buffer_load_dword v13, v3, s[{S_B}:{S_B+3}], 0 offen")
        e(f"s_mov_b32 s{sT}, {EPOCH}")
        e(f"buffer_load_dword v14, v3, s[{S_WS}:{S_WS+3}], s{sT} offen")
        lab("L_pf2")
        srd(S_W,P_W,1664*3328)
        if opt.foldx:
            e(f"s_cmp_lt_u32 s{sXCD}, 7")
            e(f"s_cselect_b32 s{sT+2}, 27, 26")
        else:
            e(f"s_cmp_lt_u32 s{sXCD}, 4")
            e(f"s_cselect_b32 s{sT+2}, 27, 26")
            e(f"s_cmp_lt_u32 s{sXCD}, 3")
            e(f"s_cselect_b32 s{sT+2}, 28, s{sT+2}")
        e(f"s_sub_u32 s{sT}, s{sSLOT}, s{sT+2}")
        e(f"s_sub_u32 s{sT+2}, 32, s{sT+2}")
        e(f"s_mul_i32 s{sT+1}, s{sXCD}, 26")
        e(f"s_lshr_b32 s{sT+1}, s{sT+1}, 3")
        e(f"s_lshl_b32 s{sT+1}, s{sT+1}, 7")
        for u in range(3):
            e(f"v_add_u32 v3, {512*u}, v0")
            e(f"v_mul_u32_u24 v3, s{sT+2}, v3")
            e(f"v_add_u32 v3, s{sT}, v3")
            e("v_lshrrev_b32 v4, 2, v3")
            if opt.pskip: e(f"v_add_u32 v4, {opt.pskip}, v4")
            e("v_and_b32 v3, 3, v3")
            e(f"v_mul_u32_u24 v4, 3328, v4")
            e("v_lshl_add_u32 v3, v3, 7, v4")
            e(f"buffer_load_dword v{9+u}, v3, s[{S_W}:{S_W+3}], s{sT+1} offen")
            if u<2 and opt.pbar: e("s_barrier")
    e("s_branch L_aux_done")
    sec("fold")
    lab("L_aux_done")
    e(f"s_cmp_lt_u32 s{sWAVE}, 4")
    e("s_cbranch_scc1 L_end")
    srd(S_TBL,P_TBL,128000); srd(S_IDX,P_IDX,106496)
    rowidx_load()
    e(f"v_mov_b32 v7, {FLAGS}")
    e("v_mov_b32 v8, 4")
    e("v_mov_b32 v9, 0")
    e(f"ds_write_b32 v7, v8 offset:{F_RED}")
    e(f"ds_write_b32 v7, v8 offset:{F_G}")
    e(f"ds_write_b32 v7, v8 offset:{F_S1}")
    e(f"ds_write_b32 v7, v9 offset:{F_CW}")
    e(f"ds_write_b32 v7, v9 offset:{F_CW2}")
    e("s_waitcnt vmcnt(0)")
    e("v_lshlrev_b32 v29, 7, v29")
    x0_addrs()
    e("s_branch L_help_x0")
    lab("L_end")
    e("s_endpgm")
    sec("tail")
    L.append('.section .rodata,"a"'); L.append(".p2align 6"); L.append(f".amdhsa_kernel {KN}")
    for x in ["next_free_vgpr 256","next_free_sgpr 102","accum_offset 256","group_segment_fixed_size 0","kernarg_size 88",
              "user_sgpr_count 2","user_sgpr_kernarg_segment_ptr 1","system_sgpr_workgroup_id_x 1"]:
        L.append("  .amdhsa_"+x)
    L.append(".end_amdhsa_kernel")
    return "\n".join(sum((SEC.get(k,[]) for k in order+["tail"]),[]))+"\n"

if __name__=="__main__":
    ap=argparse.ArgumentParser()
    ap.add_argument("-o",default="k.s")
    for k,d in dict(zb2=22,zpk=0,hprio=0,tpk=0,foldx=1,rp=1,pdel=0,cp26=1,pbar=1,lay=1,b2g=1,cst=0,bgate=0,look=2,bstep=0,bstep2=10,inv=0,zmid=15,csc=0,gateC=1,gq=0,rowx=1,wstop=5,wrest=16,bq=3,xlds=1,xgap=0,atid=1,xsl=0,pskip=128,d2late=1,wper=4,its=0,sched=0,nog=0,not_=0,c2=0,noz=0,lateb=1,dly=4,pst=0,enc=0,encrole=0,encwg=0,encwave=0,nocin=0,gcyc=0,psleep=4,now=0,stamps=0,pf=1,cpf=1,prio=1,bound=20000,zsplit=15,zbar=17,nt0=6,tb=444,n0=4,nt1=4,d1late=0,trim=1,wsched=0).items(): ap.add_argument("--"+k,type=int,default=d)
    opt=ap.parse_args()
    assert opt.zsplit==opt.zmid
    for t in range(512): assert (t*5042)>>16==t//13, t
    open(opt.o,"w").write(build(opt))
```

```python
import sys, argparse, math, struct

class Q:
    def __init__(s,cap): s.ops=[]; s.cap=cap; s.done=0
    def issue(s,name): s.ops.append(name)
    def need(s,*names):
        r=99
        for name in names:
            i=len(s.ops)-1-s.ops[::-1].index(name)
            r=min(r,len(s.ops)-1-i)
        r=min(r,s.cap)
        s.done=max(s.done,len(s.ops)-r)
        return r
    def pending(s,*names):
        return any(len(s.ops)-1-s.ops[::-1].index(n)>=s.done for n in names)

WIMG=0; GRAN=65536; EPOCH=0x50000; STAMP=0x100000; WS_SIZE=0x200000
STG=49152; RING=128000; FLAGS=160768; CINW=49152
F_IT9,F_RED,F_G,F_PRE,F_S1,F_CW,F_CW2=0,4,8,12,16,20,24
C1=-2*math.sqrt(2/math.pi)*math.log2(math.e); C2=C1*0.044715
def f2u(x): return struct.unpack('<I',struct.pack('<f',x))[0]
KN="standalone__deep_cross_xdeepfm__recsys_kernel"

sWAVE,sXCD,sSLOT,sCB,sRB=3,4,5,7,8
P_IDX,P_TBL,P_CIN,P_WOUT,P_W,P_B1,P_W2,P_BO=16,18,20,22,24,26,28,30
P_OUT,P_DBG,P_WS=32,34,36
S_IDX,S_TBL,S_W,S_WS,S_A,S_B=40,44,48,52,56,60
sRING,sWR1,sWR2,sTM=64,65,15,14
sT=66

def pair_of(n):
    if n<169: dlt,m=divmod(n,13)
    else: dlt,m=13,n-169
    r=2*m
    return r,(r+dlt)%26

def build(opt):
    SEC={"entry":[]}; order=["entry","dnn0","hpro","pref","fold0","dnn","help","fold"]
    class LL:
        cur="entry"
        def append(s,x): SEC.setdefault(s.cur,[]).append(x)
    L=LL()
    def sec(n): L.cur=n
    cnt=[0]; lastw={}
    def e(x):
        L.append("    "+x)
        cnt[0]+= (int(x.split()[1])+1) if x.startswith("s_nop") else 1
    def hz(key,n):
        d=cnt[0]-lastw[key]
        if d<n: e(f"s_nop {n-d-1}")
    def lab(x): L.append(x+":")
    def cm(x): L.append("    ; "+x)
    E=lambda x:(lambda: e(x))
    ST=opt.stamps
    def srd(d,p,size):
        e(f"s_mov_b32 s{d}, s{p}"); e(f"s_mov_b32 s{d+1}, s{p+1}")
        e(f"s_mov_b32 s{d+2}, {size}"); e(f"s_mov_b32 s{d+3}, 0x20000")
    def st(r,wait=False):
        if ST:
            e(f"s_memrealtime s[{r}:{r+1}]")
            if wait: e("s_waitcnt lgkmcnt(0)")
    def dump(regs,area=0,role=0):
        if opt.enc:
            delay(regs,role); return
        dump_(regs,area)
    dl=[0]
    def delay(regs,role):
        dl[0]+=1; n=dl[0]
        e("s_mov_b64 exec, -1")
        e("s_waitcnt lgkmcnt(0)")
        if opt.enc==99:
            if role!=1: return
            srd(S_A,P_DBG,256)
            e("s_not_b32 s12, s10")
            e("v_mov_b32 v244, s12")
            e(f"v_mov_b32 v245, s{regs[10]}")
            e("v_mov_b32 v246, 1")
            e("s_mov_b64 exec, 1")
            e(f"buffer_atomic_umax v244, off, s[{S_A}:{S_A+3}], 0 offset:240 sc1")
            e(f"buffer_atomic_umax v245, off, s[{S_A}:{S_A+3}], 0 offset:244 sc1")
            e("s_waitcnt vmcnt(0)")
            e(f"buffer_atomic_add v246, off, s[{S_A}:{S_A+3}], 0 offset:248 sc0 sc1")
            e("s_waitcnt vmcnt(0)")
            e("v_readfirstlane_b32 s12, v246")
            e("s_cmp_lg_u32 s12, 1023")
            e(f"s_cbranch_scc1 L_dly{n}_x")
            e(f"buffer_load_dwordx2 v[244:245], off, s[{S_A}:{S_A+3}], 0 offset:240 sc1")
            e("s_waitcnt vmcnt(0)")
            e("v_readfirstlane_b32 s12, v244")
            e("v_readfirstlane_b32 s13, v245")
            e("s_not_b32 s12, s12")
            e("s_sub_u32 s12, s13, s12")
        else:
            if role!=opt.encrole: return
            e(f"s_cmp_lg_u32 s2, {opt.encwg}")
            e(f"s_cbranch_scc1 L_dly{n}_x")
            e(f"s_cmp_lg_u32 s{sWAVE}, {opt.encwave}")
            e(f"s_cbranch_scc1 L_dly{n}_x")
            if opt.enc in (96,97):
                e(f"s_load_dwordx8 s[76:83], s[{P_DBG}:{P_DBG+1}], 64")
                e("s_waitcnt lgkmcnt(0)")
                e("s_mov_b32 s12, s76"); e("s_mov_b32 s13, s76")
                for k in range(1,8):
                    e(f"s_min_u32 s12, s12, s{76+k}"); e(f"s_max_u32 s13, s13, s{76+k}")
                if opt.enc==96: e("s_mov_b32 s13, s10")
                e("s_sub_u32 s12, s13, s12")
                e("s_min_u32 s12, s12, 2000")
            else: e(f"s_sub_u32 s12, s{regs[opt.enc]}, s10")
        e("s_mul_i32 s12, s12, 100")
        e("s_memrealtime s[66:67]")
        e("s_waitcnt lgkmcnt(0)")
        e("s_add_u32 s12, s12, s66")
        lab(f"L_dly{n}")
        e("s_sleep 8")
        e("s_memrealtime s[66:67]")
        e("s_waitcnt lgkmcnt(0)")
        e("s_sub_u32 s13, s66, s12")
        e("s_cmp_lt_i32 s13, 0")
        e(f"s_cbranch_scc1 L_dly{n}")
        lab(f"L_dly{n}_x")
        e("s_mov_b64 exec, -1")
    def dump_(regs,area=0):
        e("s_mov_b64 exec, -1")
        e("s_waitcnt lgkmcnt(0)")
        e("s_lshl_b32 s12, s2, 3")
        e(f"s_add_u32 s12, s12, s{sWAVE}")
        e("s_lshl_b32 s12, s12, 6")
        e(f"s_add_u32 s12, s12, {STAMP+area*0x40000}")
        regs=list(regs)+[regs[0]]*(12-len(regs))
        for i,r in enumerate(regs): e(f"v_mov_b32 v{244+i}, s{r}")
        e("s_mov_b64 exec, 1")
        for i in range(3):
            e(f"buffer_store_dwordx4 v[{244+4*i}:{247+4*i}], off, s[{S_WS}:{S_WS+3}], s12 offset:{16*i}")
        e("s_mov_b64 exec, -1")
    def lds_spin(name,vaddr,vtmp,off,target,sleep=0):
        e(f"s_mov_b32 s{sT+4}, {opt.bound*8}")
        lab(name)
        e(f"ds_read_b32 v{vtmp}, v{vaddr} offset:{off}")
        e("s_waitcnt lgkmcnt(0)")
        e(f"v_readfirstlane_b32 s{sT+5}, v{vtmp}")
        e(f"s_cmp_ge_u32 s{sT+5}, {target}")
        e(f"s_cbranch_scc1 {name}_x")
        if sleep: e(f"s_sleep {sleep}")
        e(f"s_sub_u32 s{sT+4}, s{sT+4}, 1")
        e(f"s_cbranch_scc0 {name}")
        lab(name+"_x")

    IV=16; IA=24
    def rec_addrs():
        e(f"s_lshl_b32 s{sT+5}, s{sT}, 7")
        e(f"s_add_u32 s{sT+5}, s{sT+5}, {RING+4096}")
        e(f"v_lshl_add_u32 v7, v7, 3, s{sT+5}")
        e("v_mul_u32_u24 v9, 7, v8")
        e("v_and_b32 v8, 1, v8")
        for par in range(2):
            d=IA+2*par
            if par:
                e("v_xor_b32 v8, 1, v8"); e("v_add_u32 v9, 1, v9")
            e("v_lshrrev_b32 v10, 1, v9")
            e(f"v_lshl_add_u32 v{d}, v10, 8, v7")
            e(f"v_lshl_add_u32 v{d}, v8, 14, v{d}")
            e("v_lshlrev_b32 v10, 1, v8")
            e(f"v_xor_b32 v10, s{sT+2}, v10")
            e(f"v_lshl_add_u32 v{d}, v10, 1, v{d}")
            e(f"v_xor_b32 v{d+1}, 2, v{d}")
            e(f"v_add_u32 v{d+1}, 8192, v{d+1}")
    sROW=6; sE=38
    def rowidx_load():
        e(f"s_sub_u32 s{sT+6}, s{sWAVE}, 4")
        if opt.rowx:
            e(f"s_lshl2_add_u32 s{sROW}, s{sSLOT}, s{sT+6}")
            e(f"s_lshl_b32 s{sT+6}, s{sXCD}, 7")
            e(f"s_add_u32 s{sROW}, s{sROW}, s{sT+6}")
        else: e(f"s_lshl2_add_u32 s{sROW}, s2, s{sT+6}")
        e(f"s_mul_i32 s{sT+6}, s{sROW}, 104")
        e("v_lshlrev_b32 v30, 2, v2")
        e(f"buffer_load_dword v29, v30, s[{S_IDX}:{S_IDX+3}], s{sT+6} offen")
    L.append("; @launch grid=(256,1,1) block=(512,1,1) lds=163840")
    L.append('.amdgcn_target "amdgcn-amd-amdhsa--gfx950"')
    L.append(".text"); L.append(f".globl {KN}"); L.append(".p2align 8"); L.append(f".type {KN},@function")
    lab(KN)
    e("s_load_dwordx16 s[16:31], s[0:1], 0")
    e("s_load_dwordx4 s[32:35], s[0:1], 64")
    e("s_load_dwordx2 s[36:37], s[0:1], 80")
    st(10)
    e("s_cmp_ge_u32 s2, 256")
    e("s_cbranch_scc1 L_end")
    e("v_lshrrev_b32 v1, 6, v0")
    e("v_and_b32 v2, 63, v0")
    e(f"v_readfirstlane_b32 s{sWAVE}, v1")
    e(f"s_and_b32 s{sXCD}, s2, 7")
    e(f"s_lshr_b32 s{sSLOT}, s2, 3")
    e(f"s_cmp_ge_u32 s{sSLOT}, 26")
    e("s_cbranch_scc1 L_aux0")
    sec("pref"); lab("L_aux0")
    e(f"s_cmp_gt_u32 s{sSLOT}, {26 if opt.foldx else 27}")
    e("s_cbranch_scc1 L_prefetch")
    if opt.cpf:
        e(f"s_getpc_b64 s[{S_IDX}:{S_IDX+1}]")
        lab("L_pc")
        e(f"s_sub_u32 s{S_IDX}, s{S_IDX}, L_pc-{KN}")
        e(f"s_subb_u32 s{S_IDX+1}, s{S_IDX+1}, 0")
        e(f"s_mov_b32 s{S_IDX+2}, L_end-{KN}")
        e(f"s_mov_b32 s{S_IDX+3}, 0x20000")
        e("v_lshlrev_b32 v3, 7, v0")
        e(f"buffer_load_dword v255, v3, s[{S_IDX}:{S_IDX+3}], 0 offen")
    sec("entry")
    e(f"s_mul_i32 s6, s{sXCD}, 26")
    e(f"s_add_u32 s6, s6, s{sSLOT}")
    e(f"s_and_b32 s{sRB}, s6, 7")
    e(f"s_and_b32 s{sT}, s{sWAVE}, 1")
    e(f"s_lshr_b32 s{sT+2}, s{sWAVE}, 1")
    e(f"s_lshl2_add_u32 s{sT+4}, s{sRB}, s{sT+2}")
    e(f"s_mul_i32 s{sT+4}, s{sT+4}, 3328")
    e(f"s_lshl_b32 s{sT+5}, s{sT}, 11")
    e(f"s_add_u32 s{sT+4}, s{sT+4}, s{sT+5}")
    e(f"s_lshl_b32 s{sT+3}, s{sT+2}, 13")
    e(f"s_add_u32 s{sT+3}, s{sT+3}, s{sT+5}")
    e(f"s_add_u32 m0, s{sT+3}, {RING+4096}")
    e("v_lshlrev_b32 v6, 4, v2")
    e("v_lshrrev_b32 v3, 3, v2")
    e("v_lshrrev_b32 v4, 4, v2")
    e("v_and_b32 v10, 7, v2")
    e(f"s_lshl_b32 s{sT+1}, s{sT}, 2")
    e("v_xor_b32 v5, v10, v4")
    e(f"v_xor_b32 v5, s{sT+1}, v5")
    e("v_lshlrev_b32 v5, 4, v5")
    e("v_lshl_add_u32 v5, v3, 7, v5")
    e(f"s_lshl1_add_u32 s{sT+3}, s{sSLOT}, s{sT+2}")
    e(f"s_lshl1_add_u32 s{sTM}, s{sT+3}, s{sT}")
    e(f"s_lshl_b32 s{sTM}, s{sTM}, 10")
    e(f"s_sub_u32 s{sWR2}, {63*2048}, s{sT+5}")
    e(f"s_lshr_b32 s{sT+5}, s{sT+5}, 1")
    e(f"s_add_u32 s{sWR1}, s{sWR2}, s{sT+5}")
    e(f"s_mov_b32 s{S_IDX+2}, 106496"); e(f"s_mov_b32 s{S_IDX+3}, 0x20000")
    e(f"s_mov_b32 s{S_TBL+2}, 128000"); e(f"s_mov_b32 s{S_TBL+3}, 0x20000")
    e(f"s_mov_b32 s{sT+3}, {opt.n0-1}")
    e("s_waitcnt lgkmcnt(0)")
    if opt.pst: st(84)
    e(f"s_mov_b64 s[{S_IDX}:{S_IDX+1}], s[{P_IDX}:{P_IDX+1}]")
    e(f"s_mov_b64 s[{S_TBL}:{S_TBL+1}], s[{P_TBL}:{P_TBL+1}]")
    e(f"buffer_load_dwordx4 v6, s[{S_IDX}:{S_IDX+3}], s{sT+4} offen lds")
    if opt.trim:
        e(f"s_cmp_eq_u32 s{sT}, 0")
        e("s_cselect_b64 exec, -1, 0xffff")
    e(f"buffer_load_dwordx4 v6, s[{S_IDX}:{S_IDX+3}], s{sT+4} offen offset:1024 lds")
    if opt.trim: e("s_mov_b64 exec, -1")
    nl=[0]
    def tloop(n=None,vm=None):
        nl[0]+=1; name=f"L_tl{nl[0]}"
        if n is not None:
            if n==0: return
            e(f"s_mov_b32 s{sT+3}, {n-1}")
        lab(name)
        e(f"s_mov_b32 m0, s{sTM}")
        e(f"s_add_u32 s{sTM}, s{sTM}, 8192")
        e(f"buffer_load_dwordx4 v5, s[{S_TBL}:{S_TBL+3}], m0 offen lds")
        e(f"s_cmp_ge_u32 s{sTM}, s{sWR1}")
        e(f"s_cselect_b32 s{sT+5}, s{sWR2}, 0")
        e(f"s_sub_u32 s{sTM}, s{sTM}, s{sT+5}")
        e(f"s_sub_u32 s{sT+3}, s{sT+3}, 1")
        e(f"s_cbranch_scc0 {name}")
        if vm is not None:
            for t in range(n): vm.issue("tbl")
    tloop()
    e(f"s_cmp_ge_u32 s{sWAVE}, 4")
    e("s_cbranch_scc1 L_help_pro")
    sec("dnn0")
    tbl=tloop

    vW,vT0,vT1=1,3,4
    AD=8; AF=16; F0=48; REC=80; ACC=128
    acc=lambda lt,ct: ACC+(lt*2+ct)*16
    Fr=lambda j,ks,ct: F0+(j&1)*16+(ks*2+ct)*4
    vm=Q(63); lg=Q(15)
    cm("---- DNN wave prologue ----")
    for x in ["idx0","idx3"]+["tbl"]*opt.n0: vm.issue(x)
    e(f"s_lshr_b32 s{sCB}, s6, 3")
    e(f"s_lshl_b32 s{sRING}, s{sWAVE}, 13")
    e(f"s_add_u32 s{sRING}, s{sRING}, {RING}")
    e(f"s_lshl_b32 s{sT+7}, s{sWAVE}, 5")
    e(f"v_add_u32 v9, s{sT+7}, v3")
    e("v_mul_u32_u24 v9, 3328, v9")
    e("v_lshlrev_b32 v11, 2, v4")
    e("v_and_b32 v11, 4, v11")
    e("v_xor_b32 v11, v11, v10")
    e("v_lshl_add_u32 v1, v11, 4, v9")
    e(f"s_lshl_b32 s{sT+7}, s{sCB}, 7")
    e(f"v_add_u32 v1, s{sT+7}, v1")
    srd(S_W,P_W,1664*3328)
    for pc in range(4):
        e(f"s_add_u32 m0, s{sRING}, {pc*1024}")
        e(f"s_mov_b32 s12, {8*pc*3328}")
        e(f"buffer_load_dwordx4 v1, s[{S_W}:{S_W+3}], s12 offen lds"); vm.issue(f"w0_{pc}")
    def bias_loads(ii=range(4)):
        for i in ii:
            e(f"buffer_load_dwordx4 v[{106+4*i}:{109+4*i}], v{VB}, s[{S_A}:{S_A+3}], 0 offen offset:{(i>>1)*64+(i&1)*16}"); vm.issue(f"bias{i}")
    VB=6
    TB=[opt.n0]+[int(c,16) for c in str(opt.tb)]
    e("s_branch L_dnn_b")
    sec("dnn"); lab("L_dnn_b")
    e("v_lshrrev_b32 v12, 5, v2")
    e(f"v_lshl_add_u32 v6, v12, 5, s{sT+7}")
    e(f"v_mov_b32 v7, {FLAGS}")
    srd(S_A,P_B1,3328)
    if opt.pst: st(86)
    e("v_and_b32 v13, 31, v2")
    e("v_mul_u32_u24 v13, 104, v13")
    e(f"s_lshl2_add_u32 s{sT+5}, s{sT+2}, {RING+4096}")
    e(f"v_add_u32 v13, s{sT+5}, v13")
    e("v_lshlrev_b32 v9, 1, v12")
    e(f"v_xor_b32 v9, s{sWAVE}, v9")
    e("v_lshl_add_u32 v24, v9, 13, v13")
    e("v_xor_b32 v9, 1, v9")
    e("v_lshl_add_u32 v25, v9, 13, v13")
    e("v_bfe_u32 v9, v2, 2, 2")
    e("v_lshlrev_b32 v3, 7, v9")
    e("v_lshl_add_u32 v3, v12, 10, v3")
    e("v_lshrrev_b32 v9, 1, v9")
    e("v_lshl_add_u32 v3, v9, 6, v3")
    e("v_and_b32 v9, 1, v2")
    e("v_lshl_add_u32 v3, v9, 5, v3")
    e("v_bfe_u32 v9, v2, 1, 1")
    e("v_lshl_add_u32 v3, v9, 3, v3")
    e("v_and_b32 v9, 1, v4")
    e("v_lshl_add_u32 v3, v9, 4, v3")
    e(f"v_add_u32 v3, s{sRING}, v3")
    e("v_xor_b32 v4, 64, v3")
    e(f"v_add_u32 v14, s{sT+1}, v12")
    e("v_lshl_or_b32 v14, v14, 16, v14")
    e(f"s_mov_b32 s{sT+6}, 0x00070007")
    e(f"s_waitcnt vmcnt({vm.need('idx3')})")
    if opt.pst: st(88)
    def lds_inc(va,off):
        e("v_mov_b32 v0, 1")
        e("s_mov_b64 exec, 1")
        e(f"ds_add_u32 v{va}, v0 offset:{off}")
        e("s_mov_b64 exec, -1")
    e("s_barrier")
    if opt.pst: st(90)
    sWO=12
    def dma(j,pcs):
        for pc in pcs:
            if opt.now and j>=3:
                vm.ops.insert(0,f"w{j}_{pc}"); continue
            e(f"s_add_u32 m0, s{sRING}, {((j&1)*4+pc)*1024}")
            e(f"s_mov_b32 s{sWO}, {(128*j+8*pc)*3328}")
            e(f"buffer_load_dwordx4 v{vW}, s[{S_W}:{S_W+3}], s{sWO} offen lds"); vm.issue(f"w{j}_{pc}")
    BI=106
    RW=lambda t,j: 160+t*14+j
    RECX=104
    for j in range(0,13,2):
        for t in range(2):
            e(f"ds_read2_b32 v[{RW(t,j)}:{RW(t,j)+1}], v{24+t} offset0:{2*j} offset1:{2*j+2}")
    tbl(TB[1],vm)
    srd(S_WS,P_WS,WS_SIZE)
    srd(S_B,P_W2,3328)
    e("s_waitcnt lgkmcnt(0)")
    e("s_barrier")
    st(76)
    tbl(TB[2],vm)
    for j in range(13):
        if j==6: tbl(TB[3],vm)
        d=REC+2*j
        e(f"v_lshl_or_b32 v{d}, v{RW(1,j)}, 16, v{RW(0,j)}")
        e(f"v_lshrrev_b32 v13, 1, v{d}")
        e(f"v_and_b32 v13, s{sT+6}, v13")
        e(f"v_lshl_or_b32 v{d}, v{d}, 3, v13")
        e(f"v_mov_b32 v{d+1}, v{d}")
        if j:
            e(f"v_permlane32_swap_b32 v{d-2}, v{d-1}")
            e(f"v_xor_b32 v{d-2}, v14, v{d-2}"); e(f"v_xor_b32 v{d-1}, v14, v{d-1}")
    e("s_nop 1")
    e(f"v_permlane32_swap_b32 v{REC+24}, v{REC+25}")
    e(f"v_xor_b32 v{REC+24}, v14, v{REC+24}"); e(f"v_xor_b32 v{REC+25}, v14, v{REC+25}")
    afr=lambda lt,ks: AF+8*lt+4*ks
    XF={0:80,1:88,2:afr(1,0),3:afr(2,0)}
    FX={0:[F0,F0+4,F0+8,F0+12],1:[8,12,40,44],2:[F0+16,F0+20,F0+24,F0+28],3:[F0,F0+4,F0+8,F0+12]}
    def adr(lt,j):
        e(f"v_lshlrev_b32_sdwa v{AD+2*lt}, 4, v{REC+2*j+(lt>>1)} dst_sel:DWORD dst_unused:UNUSED_PAD src0_sel:DWORD src1_sel:WORD_{lt&1}")
        e(f"v_xor_b32 v{AD+2*lt+1}, 32, v{AD+2*lt}")
    def Rop(lt,j):
        for ks in range(2):
            e(f"ds_read_b128 v[{afr(lt,ks)}:{afr(lt,ks)+3}], v{AD+2*lt+ks}"); lg.issue(f"R{lt}_{ks}_{j}")
    def adrX(c,a):
        e(f"v_lshlrev_b32_sdwa v{a}, 4, v{RECX} dst_sel:DWORD dst_unused:UNUSED_PAD src0_sel:DWORD src1_sel:WORD_{c>>1}")
        if c&1: e(f"v_xor_b32 v{a}, 64, v{a}")
        e(f"v_xor_b32 v{a+1}, 32, v{a}")
    def RX(c,a):
        for ks in range(2):
            e(f"ds_read_b128 v[{XF[c]+4*ks}:{XF[c]+4*ks+3}], v{a+ks}"); lg.issue(f"X{c}_{ks}")
    def Top(j,ks):
        for ct in range(2):
            for h4 in range(2):
                d=Fr(j,ks,ct)+2*h4
                e(f"ds_read_b64_tr_b16 v[{d}:{d+1}], v{vT0+ct} offset:{((j&1)*4+ks*2)*1024+h4*512}"); lg.issue(f"T{j}_{ks}_{ct}{h4}")
    def TX(c):
        for ks in range(2):
            for ct in range(2):
                for h4 in range(2):
                    d=FX[c][ks*2+ct]+2*h4
                    e(f"ds_read_b64_tr_b16 v[{d}:{d+1}], v{vT0+ct} offset:{c*8192+ks*2048+h4*512}"); lg.issue(f"TX{c}")
    for lt in range(4): adr(lt,0)
    if ST: e("s_waitcnt lgkmcnt(0)")
    e(f"s_waitcnt vmcnt({vm.need('w0_3')})")
    Top(0,0); Top(0,1)
    if not opt.d1late: dma(1,range(4))
    e("s_waitcnt lgkmcnt(0)")
    if opt.d2late!=1: dma(2,range(4))
    if opt.pst: st(92)
    e(f"s_waitcnt vmcnt({vm.need('tbl')})")
    st(78)
    e("s_barrier")
    st(80,True)
    if ST: e("s_memtime s[96:97]"); e("s_waitcnt lgkmcnt(0)")
    if opt.prio: e(f"s_setprio {opt.prio}")
    Rop(1,0)
    if not opt.rp: Rop(2,0); Rop(3,0); Rop(0,0)
    if opt.d1late: dma(1,range(4))
    def group(lt,fa,xa,first,fills):
        for i,(ks,ct) in enumerate([(0,0),(0,1),(1,0),(1,1)]):
            c=f"v[{acc(lt,ct)}:{acc(lt,ct)+15}]"
            src="0" if (first and ks==0) else c
            e(f"v_mfma_f32_32x32x16_bf16 {c}, v[{fa[ks*2+ct]}:{fa[ks*2+ct]+3}], v[{xa+4*ks}:{xa+4*ks+3}], {src}")
            lastw[(lt,ct)]=cnt[0]
            for f in fills[i]: f()
    LT=[1,2,3,0]
    W2P=106; EV=122; VR=124; WA=125; RA1,RA2=5,6; sM=[0,sT+7,sT+8,13]
    def addrs():
        e(f"s_xor_b32 s{sT}, s{sWAVE}, 1")
        e(f"s_lshl_b32 s{sT}, s{sT}, 12")
        e(f"v_lshlrev_b32 v{RA1}, 4, v2")
        e(f"v_add_u32 v{WA}, s{sT}, v{RA1}")
        e(f"v_xor_b32 v{WA+1}, {3<<12}, v{WA}")
    def addrs2():
        e(f"v_xor_b32 v{WA+2}, {2<<12}, v{WA}")
        e(f"s_lshl_b32 s{sT}, s{sWAVE}, 12")
        e(f"v_add_u32 v{RA1}, s{sT}, v{RA1}")
    def addrs3(): pass
    SEL=80; TA=92
    selops=[E("v_and_b32 v0, 31, v2"),E(f"v_lshrrev_b32 v{TA}, 5, v2"),E(f"v_lshlrev_b32 v{TA}, 2, v{TA}"),E(f"v_sub_u32 v0, v0, v{TA}"),
            E(f"v_lshrrev_b32 v{TA}, 1, v0"),E(f"v_and_b32 v{TA}, 12, v{TA}"),E(f"v_and_or_b32 v{TA}, v0, 3, v{TA}"),
            E("v_and_b32 v0, 0xffffffe4, v0"),E("v_cmp_eq_u32 vcc, 0, v0"),E(f"v_lshlrev_b32 v0, 4, v{TA}"),E("v_and_b32 v0, 16, v0"),
            E(f"v_lshlrev_b32 v0, v0, s{sM[1]}"),E("v_cndmask_b32 v0, 0, v0, vcc"),E(f"v_lshrrev_b32 v{TA}, 1, v{TA}")]
    selops.insert(0,E(f"s_movk_i32 s{sM[1]}, 0x3f80"))
    for ms in ((0,1,2),(3,4,5),(6,7)):
        def f(ms=ms):
            for k,m in enumerate(ms): e(f"v_cmp_eq_u32 s[{sT+2*k}:{sT+2*k+1}], {m}, v{TA}")
            if len(ms)<3: e("s_nop 0")
            for k,m in enumerate(ms): e(f"v_cndmask_b32 v{SEL+m}, 0, v0, s[{sT+2*k}:{sT+2*k+1}]")
        selops.append(f)
    def cv(lt,ct):
        a=acc(lt,ct)
        return [(lambda m=m: (hz((lt,ct),12),e(f"v_cvt_pk_bf16_f32 v{a+m}, v{a+2*m}, v{a+2*m+1}"))) for m in range(8)]
    def late1():
        e(f"s_lshl_b32 s{sT}, s{sCB}, 7")
        e(f"v_lshrrev_b32 v{VR}, 5, v2")
        e(f"v_lshl_add_u32 v{VR}, v{VR}, 5, s{sT}")
    def late2(i):
        e(f"buffer_load_dwordx4 v[{W2P+4*i}:{W2P+4*i+3}], v{VR}, s[{S_B}:{S_B+3}], 0 offen offset:{(i>>1)*64+(i&1)*16}"); vm.issue(f"w2_{i}")
    def late3():
        e(f"v_and_b32 v{VR}, 31, v2")
        e(f"s_lshl_b32 s{sT}, s{sRB}, 7")
        e(f"s_lshl_b32 s{sT+1}, s{sWAVE}, 5")
        e(f"s_add_u32 s{sT}, s{sT}, s{sT+1}")
        e(f"v_add_lshl_u32 v{VR}, v{VR}, s{sT}, 3")
    def late4():
        e(f"s_mov_b32 s{sT+2}, {EPOCH}")
        e(f"buffer_load_dwordx2 v[{EV}:{EV+1}], v{VR}, s[{S_WS}:{S_WS+3}], s{sT+2} offen"); vm.issue("ev")
    def badd(ct,t):
        src=BI+ct*8+(t>>1)
        if t&1: e(f"v_and_b32 v0, 0xffff0000, v{src}")
        else:   e(f"v_lshlrev_b32 v0, 16, v{src}")
        hz((0,ct),12)
        e(f"v_add_f32 v{acc(0,ct)+t}, v{acc(0,ct)+t}, v0")
    def wv(n): return lambda n=n: (e(f"s_waitcnt vmcnt({vm.need(n)})") if vm.pending(n) else None)
    def wl(n): return lambda n=n: (e(f"s_waitcnt lgkmcnt({lg.need(n)})") if lg.pending(n) else None)
    ITS={1:76,2:78,3:80,5:82,7:84,9:86,11:88,12:90}
    def inc(off,nm):
        def f():
            e("s_mov_b64 exec, 1")
            e(f"ds_add_u32 v7, v{ONE} offset:{off}"); lg.issue(nm)
            e("s_mov_b64 exec, -1")
        return f
    ONE=88; vC1=89; S0=90; S1=91; TA,TB_=92,93
    def w1(lt,ct,h): return lambda: (e(f"ds_write_b128 v{WA+lt-1}, v[{acc(lt,ct)+4*h}:{acc(lt,ct)+4*h+3}] offset:{(lt-1)*16384+(ct*2+h)*1024}"),lg.issue("W"))
    W=lambda lt,ct: [w1(lt,ct,0),w1(lt,ct,1)]
    LO=list(range(92,104))+[1,6,3,4]
    W2F=[LO[t>>1] if t%2==0 else W2P+(t>>1) for t in range(32)]
    unp=[]
    for k in range(16):
        unp.append(E(f"v_lshlrev_b32 v{LO[k]}, 16, v{W2P+k}")); unp.append(E(f"v_and_b32 v{W2P+k}, 0xffff0000, v{W2P+k}"))
    def bar2():
        e("s_waitcnt lgkmcnt(0)"); lg.done=len(lg.ops)
        if opt.its: e("s_memtime s[92:93]")
        if not opt.pst: st(82)
        e("s_barrier")
        if not opt.pst: st(84)
    for j in range(13):
        cm(f"---- iteration {j} ----")
        if opt.its==1 and j in ITS: e(f"s_memtime s[{ITS[j]}:{ITS[j]+1}]")
        if opt.its and j==12: opt.pst=1
        for g,lt in enumerate(LT):
            needs=[f"R{lt}_1_{j}"]+([f"T{j}_1_11"] if g==0 else [])
            if lg.pending(*needs): e(f"s_waitcnt lgkmcnt({lg.need(*needs)})")
            if opt.its==2 and j<2: e(f"s_memtime s[{76+2*(4*j+g)}:{77+2*(4*j+g)}]")
            fills=[[],[],[],[]]
            if j==0 and g==0 and opt.rp:
                fills[0].append(lambda: Rop(2,0)); fills[1].append(lambda: Rop(3,0)); fills[2].append(lambda: Rop(0,0))
            if j==0 and opt.d2late:
                if g<2 and opt.d2late==1:
                    fills[0].append(lambda g=g: dma(2,[2*g])); fills[2].append(lambda g=g: dma(2,[2*g+1]))
                if g>=2: fills[0]+= [wv(f'w1_{2*(g-2)+1}'),lambda g=g: Top(1,g-2)]
            elif j<12:
                if j==2: fills[1 if g<2 else 2].append(lambda g=g: bias_loads([g]))
                if j==1 and g<2 and opt.d2late:
                    fills[1].append(lambda g=g: dma(3,[2*g])); fills[2].append(lambda g=g: dma(3,[2*g+1]))
                if g<2: fills[0]+= [wv(f'w{j+1}_{2*g+1}'),lambda j=j,g=g: Top(j+1,g)]
                elif j+3<13:
                    fills[0]+= [wl(f'T{j+1}_{g-2}_11'),lambda j=j,g=g: dma(j+3,[2*(g-2)])]
                    fills[1].append(lambda j=j,g=g: dma(j+3,[2*(g-2)+1]))
            if j<12:
                fills[2].append(lambda j=j,lt=lt: adr(lt,j+1))
                fills[3].append(lambda j=j,lt=lt: Rop(lt,j+1))
            if j in (4,5,6,9) and g in (1,2):
                jj={4:0,5:1,6:2,9:3}[j]; ct=jj>>1; t0=(jj&1)*8+(g-1)*4
                if g==1 and j==4: fills[1].append(wv('bias3'))
                for i,ts in ((1,(0,1)),(2,(2,)),(3 if g==1 else 2,(3,))):
                    fills[i]+= [(lambda t=t0+t,ct=ct: badd(ct,t)) for t in ts]
            if j==7:
                sl={0:[(0,0),(0,5),(5,7),(7,9)],1:[(9,9),(9,15),(15,15),(15,15)],2:[(15,15),(15,15),(15,16),(16,16)],3:[(16,16),(16,16),(16,17),(17,18)]}[g]
                for i in range(4): fills[i]+=selops[sl[i][0]:sl[i][1]]
            if j==8 and g==0: fills[1].append(addrs)
            if j==8 and g==1: fills[1].append(addrs2); fills[2]+= [E(f"v_mov_b32 v{ONE}, 1"),E(f"v_mov_b32 v{vC1}, {f2u(C1)}"),E(f"v_mov_b32 v{S0}, 0"),E(f"v_mov_b32 v{S1}, 0")]
            if j==10 and g==0: fills[1].append(late1); fills[2].append(lambda: late2(0))
            if j==10 and g==1: fills[1].append(lambda: late2(1)); fills[2].append(lambda: late2(2))
            if j==10 and g==2: fills[0]+= [wl('T11_1_11'),inc(F_S1,"s1")]; fills[1].append(lambda: late2(3))
            if j==10 and g==3: fills[0].append(late3); fills[1].append(late4)
            if j==11:
                G={0:[[],[],[],[]],1:[[],[E("s_waitcnt vmcnt(0)")]+unp[:4],unp[4:6],unp[6:8]],2:[unp[8:12],unp[12:16],unp[16:18],unp[18:20]],3:[unp[20:24],unp[24:28],unp[28:30],unp[30:32]]}[g]
                for i in range(4): fills[i]+=G[i]
            if j==12:
                N=lambda k: E(f"s_nop {k}")
                G={0:[[],[],[bar2],[N(3)]],
                   1:[[N(3)]+cv(1,0)[:4]+W(1,0)[:1],cv(1,0)[4:]+W(1,0)[1:],cv(1,1)[:4]+W(1,1)[:1],cv(1,1)[4:]+W(1,1)[1:]],
                   2:[[N(1)]+cv(2,0)[:4]+W(2,0)[:1],cv(2,0)[4:]+W(2,0)[1:],cv(2,1)[:4]+W(2,1)[:1],cv(2,1)[4:]+W(2,1)[1:]],
                   3:[[N(1)]+cv(3,0)[:4]+W(3,0)[:1],cv(3,0)[4:]+W(3,0)[1:],cv(3,1)[:4]+W(3,1)[:1],cv(3,1)[4:]+W(3,1)[1:]+[inc(F_RED,"inc"),E(f"s_mov_b32 s{sT+2}, {f2u(C2)}")]]}[g]
                for i in range(4): fills[i]+=G[i]
            group(lt,[Fr(j,ks,ct) for ks in range(2) for ct in range(2)],afr(lt,0),j==0,fills)
    if not opt.pst: st(86)
    if ST: e("s_memtime s[98:99]")
    lds_spin("L_red",7,0,F_RED,4)
    if not opt.pst: st(88,True)
    if ST and opt.gcyc: e("s_memtime s[96:97]"); e("s_waitcnt lgkmcnt(0)")
    lg=Q(15)
    adds=[]
    for ct in range(2):
        for u in (1,2,3):
            for h in range(2):
                r=acc(u,ct)+4*h
                e(f"ds_read_b128 v[{r}:{r+3}], v{RA1} offset:{(u-1)*16384+(ct*2+h)*1024}"); lg.issue(f"p{ct}{u}{h}")
                def add(ct=ct,u=u,h=h,r=r):
                    if lg.pending(f"p{ct}{u}{h}"): e(f"s_waitcnt lgkmcnt({lg.need(f'p{ct}{u}{h}')})")
                    c=f"v[{acc(0,ct)}:{acc(0,ct)+15}]"
                    e(f"v_mfma_f32_32x32x16_bf16 {c}, v[{SEL+4*h}:{SEL+4*h+3}], v[{r}:{r+3}], {c}"); lastw[(0,ct)]=cnt[0]
                adds.append(add)
    for f in adds[:7]: f()
    adds=adds[7:]
    T=F0
    for q in range(8):
        a=ACC+4*q
        if q==opt.gq and opt.gateC==3: inc(F_G,"g")()
        def A():
            if adds: adds.pop(0)()
        hz((0,q>>2),12)
        for r in range(4): e(f"v_mul_f32 v{T+r}, v{a+r}, v{a+r}")
        for r in range(4): e(f"v_fma_f32 v{T+r}, v{T+r}, s{sT+2}, v{vC1}")
        A()
        for r in range(4): e(f"v_mul_f32 v{T+r}, v{T+r}, v{a+r}")
        for r in range(4): e(f"v_exp_f32 v{T+r}, v{T+r}")
        A()
        for r in range(4): e(f"v_mul_f32 v{a+r}, v{a+r}, v{W2F[4*q+r]}")
        for r in range(4): e(f"v_add_f32 v{T+r}, 1.0, v{T+r}")
        for r in range(4): e(f"v_rcp_f32 v{T+r}, v{T+r}")
        if adds: A()
        else: e("s_nop 0")
        for r in range(4): e(f"v_fmac_f32 v{S0 if r&1==0 else S1}, v{a+r}, v{T+r}")
    e(f"v_add_f32 v{S0}, v{S0}, v{S1}")
    e(f"v_mov_b32 v{S1}, v{S0}")
    e(f"s_movk_i32 s{sT}, 0xff")
    e(f"v_add_u32 v{EV}, 1, v{EV}")
    e(f"v_permlane32_swap_b32 v{S0}, v{S1}")
    e(f"s_lshl_b32 s{sT+1}, s{sCB}, 13")
    e(f"v_add_f32 v{S0}, v{S0}, v{S1}")
    e(f"s_add_u32 s{sT+1}, s{sT+1}, {GRAN}")
    e(f"v_bfi_b32 v{EV+1}, s{sT}, v{EV+1}, v{S0}")
    e(f"s_mov_b32 exec_hi, 0")
    e(f"buffer_store_dwordx2 v[{EV}:{EV+1}], v{VR}, s[{S_WS}:{S_WS+3}], s{sT+1} offen sc0 sc1")
    if ST:
        if opt.gcyc: e("s_memtime s[98:99]")
        if not opt.pst: st(90); e("s_waitcnt vmcnt(0)"); st(92,True)
        e("s_waitcnt lgkmcnt(0)"); e("s_sub_u32 s98, s98, s96")
        if opt.its:
            for r in range(76,94,2):
                e(f"s_sub_u32 s{r}, s{r}, s96"); e(f"s_mul_i32 s{r}, s{r}, 100"); e(f"s_add_u32 s{r}, s{r}, s10")
        dump([10,76,78,80,82,84,86,88,90,92,98])
    e("s_endpgm")

    sec("hpro")
    def late_sloads():
        e(f"s_lshl_b32 s{sT+8}, s{sROW}, 3")
        e(f"s_add_u32 s{sT+8}, s{sT+8}, {EPOCH}")
        e(f"s_load_dwordx2 s[{sE}:{sE+1}], s[{P_WS}:{P_WS+1}], s{sT+8}")
        e(f"s_load_dword s9, s[{P_BO}:{P_BO+1}], 0")
    X=32
    def x0_addrs():
        e("v_and_b32 v3, 31, v2")
        e("v_lshlrev_b32 v4, 2, v3")
        for r in range(26): e(f"v_readlane_b32 s{76+r}, v29, {r}")
        e("s_mov_b32 exec_hi, 0")
        for r in range(26): e(f"v_xor_b32 v{X+r}, s{76+r}, v4")
        e("s_mov_b64 exec, -1")
        e("s_mov_b32 exec_lo, 0")
        for r in range(26): e(f"v_xor_b32 v{X+r}, s{76+(r+1)%26}, v4")
        e("s_mov_b64 exec, -1")
    lab("L_help_pro")
    rowidx_load()
    tloop(opt.nt0-opt.n0)
    e(f"v_mov_b32 v7, {FLAGS}")
    e("v_mov_b32 v8, 0"); e("v_mov_b32 v9, 0")
    e("ds_write2_b64 v7, v[8:9], v[8:9] offset1:1")
    e("ds_write2_b64 v7, v[8:9], v[8:9] offset0:2 offset1:3")
    e(f"s_waitcnt vmcnt({opt.nt0+1})")
    e("s_barrier")
    tloop(opt.nt1)
    e("s_waitcnt lgkmcnt(0)")
    e("s_barrier")
    if opt.trim:
        e(f"s_cmp_eq_u32 s{sWAVE}, 4")
        e(f"s_cselect_b32 s{sT+3}, {16-opt.nt0-opt.nt1-1}, {16-opt.nt0-opt.nt1-2}")
        tloop()
    else: tloop(16-opt.nt0-opt.nt1)
    e("s_branch L_help_b")
    sec("help"); lab("L_help_b")
    e(f"s_waitcnt vmcnt({15-opt.n0})")
    if opt.xlds:
        e("v_lshlrev_b32 v8, 3, v29"); e("v_and_b32 v8, 0x70, v8"); e("v_lshl_or_b32 v29, v29, 7, v8")
    else: e("v_lshlrev_b32 v29, 7, v29")
    x0_addrs()
    e("s_waitcnt vmcnt(0)")
    e("s_barrier")
    if opt.xsl: e(f"s_sleep {opt.xsl}")
    if opt.xlds:
        for r in range(26):
            e(f"ds_read_b32 v{X+r}, v{X+r}")
            if opt.xgap and r%opt.xgap==opt.xgap-1: e("s_sleep 1")
        e("s_branch L_help_main")
    lab("L_help_x0")
    for r in range(26):
        e(f"buffer_load_dword v{X+r}, v{X+r}, s[{S_TBL}:{S_TBL+3}], 0 offen")
    lab("L_help_main")
    srd(S_WS,P_WS,WS_SIZE); srd(S_A,P_DBG,256); srd(S_B,P_OUT,2048)
    Z0=8
    ZE=lambda s: Z0+4*s
    ZO=lambda s: Z0+88+4*s
    LE=lambda k: Z0+176+4*k
    LO=lambda k: Z0+184+4*k
    R=200; MT=252
    e("v_lshrrev_b32 v5, 2, v3")
    e("v_mul_u32_u24 v5, 5888, v5")
    e("v_and_b32 v6, 3, v2")
    e("v_lshl_add_u32 v5, v6, 4, v5")
    e("v_lshrrev_b32 v6, 5, v2")
    e("v_lshl_add_u32 v5, v6, 6, v5")
    e("v_mov_b32 v7, 0x7fff0000")
    e("v_cmp_gt_u32 vcc, 26, v3")
    e("v_lshlrev_b32 v6, 13, v2")
    e(f"s_lshl_b32 s{sT}, s{sROW}, 3")
    e("v_cndmask_b32 v5, v7, v5, vcc")
    e(f"s_add_u32 s{sT}, s{sT}, {GRAN}")
    e(f"v_add_u32 v6, s{sT}, v6")
    e("v_cmp_gt_u32 vcc, 26, v2")
    e("v_lshlrev_b32 v1, 4, v2")
    e(f"v_add_u32 v1, 97280, v1")
    e("v_cndmask_b32 v6, v7, v6, vcc")
    e(f"v_mov_b32 v7, {FLAGS}")
    e("s_waitcnt vmcnt(0) lgkmcnt(0)")
    late_sloads()
    if opt.enc in (96,97):
        e("s_cmp_ge_u32 s2, 8")
        e("s_cbranch_scc1 L_nost")
        e("v_mov_b32 v0, s10")
        e("s_lshl_b32 s12, s2, 2")
        e(f"buffer_store_dword v0, off, s[{S_A}:{S_A+3}], s12 offset:64 sc0 sc1")
        lab("L_nost")
    st(76)
    for r in range(26):
        e(f"v_lshlrev_b32 v{R+2*r}, 16, v{X+r}")
        e(f"v_and_b32 v{R+2*r+1}, 0xffff0000, v{X+r}")
    def zstep(s):
        if opt.noz: return
        for m in range(4):
            (a1,a2),(b1,b2)=pair_of(8*s+2*m),pair_of(8*s+2*m+1)
            e(f"v_mul_f32 v{MT}, v{R+2*a1}, v{R+2*a2}")
            e(f"v_mul_f32 v{MT+2}, v{R+2*b1}, v{R+2*b2}")
            e(f"v_mul_f32 v{MT+1}, v{R+2*a1+1}, v{R+2*a2+1}")
            e(f"v_mul_f32 v{MT+3}, v{R+2*b1+1}, v{R+2*b2+1}")
            e(f"v_cvt_pk_bf16_f32 v{ZE(s)+m}, v{MT}, v{MT+2}")
            e(f"v_cvt_pk_bf16_f32 v{ZO(s)+m}, v{MT+1}, v{MT+3}")
    def zlin():
        for k in range(2):
            for m2 in range(4):
                m=k*8+2*m2
                for tl,d in ((0,LE(k)+m2),(1,LO(k)+m2)):
                    if m+1<=12: e(f"v_cvt_pk_bf16_f32 v{d}, v{R+4*m+tl}, v{R+4*(m+1)+tl}")
                    elif m==12: e(f"v_cvt_pk_bf16_f32 v{d}, v{R+4*m+tl}, 1.0")
                    else: e(f"v_mov_b32 v{d}, 0")
    SC=" sc1" if opt.csc else ""
    zlin()
    for s in range(opt.zsplit): zstep(s)
    st(78)
    e(f"s_load_dwordx8 s[92:99], s[{P_DBG}:{P_DBG+1}], 0")
    e("s_waitcnt lgkmcnt(0)")
    for k in range(1,7): e(f"s_and_b32 s92, s92, s{92+k}")
    e("s_cmp_lg_u32 s92, 0")
    e("s_cbranch_scc1 L_polled")
    lds_spin("L_it9",7,4,F_S1,4,sleep=4)
    e(f"v_lshlrev_b32 v0, 2, v2")
    e(f"buffer_load_dword v4, v0, s[{S_A}:{S_A+3}], 0 offen sc1")
    for s in range(opt.zsplit,opt.zmid): zstep(s)
    e(f"s_mov_b32 s{sT+4}, {opt.bound}")
    e(f"s_mov_b32 s{sT+2}, 0x7f")
    e(f"s_mov_b32 s{sT+3}, 0")
    lab("L_poll1")
    e("s_waitcnt vmcnt(0)")
    e("v_cmp_ne_u32 vcc, 0, v4")
    e(f"s_and_b64 vcc, vcc, s[{sT+2}:{sT+3}]")
    e(f"s_cmp_eq_u64 vcc, s[{sT+2}:{sT+3}]")
    e("s_cbranch_scc1 L_polled")
    e(f"s_sleep {opt.psleep}")
    e(f"buffer_load_dword v4, v0, s[{S_A}:{S_A+3}], 0 offen sc1")
    e(f"s_sub_u32 s{sT+4}, s{sT+4}, 1")
    e("s_cbranch_scc0 L_poll1")
    lab("L_polled")
    if opt.inv: e("buffer_inv sc1")
    st(80)
    lds_spin("L_s1",7,0,F_S1,4,sleep=2)
    e(f"s_sub_u32 s{sT}, s{sWAVE}, 4")
    e(f"s_lshl_b32 s{sT+1}, s{sT}, 13")
    e(f"s_add_u32 m0, s{sT+1}, {RING+4096}")
    e(f"s_lshl_b32 s{sT}, s{sT}, 9")
    e(f"s_sub_u32 s{sT}, s{sT}, 256")
    for t in range(4):
        if t<2:
            e(f"s_cmp_eq_u32 s{sWAVE}, 4")
            e(f"s_cselect_b32 s{sT+1}, {(44+t)*128}, s{sT}")
        else: e(f"s_mov_b32 s{sT+1}, s{sT}")
        e(f"buffer_load_dwordx4 v5, s[{S_WS}:{S_WS+3}], s{sT+1} offen sc1 lds")
        if t<3:
            e(f"s_add_u32 m0, m0, 1024")
            e(f"s_add_u32 s{sT}, s{sT}, 128")
    for s in range(opt.zmid,opt.zbar): zstep(s)
    e("s_waitcnt vmcnt(0)")
    st(82)
    e("s_barrier")
    for s in range(opt.zbar,22): zstep(s)
    def hinc(off):
        e("v_mov_b32 v0, 1")
        e("s_mov_b64 exec, 1")
        e("s_waitcnt vmcnt(0)")
        e(f"ds_add_u32 v7, v0 offset:{off}")
        e("s_mov_b64 exec, -1")
    CWB=97280
    def dmaB():
        e(f"s_sub_u32 s{sT}, s{sWAVE}, 4")
        e(f"s_lshl_b32 s{sT+1}, s{sT}, 10")
        e(f"s_add_u32 m0, s{sT+1}, {CWB}")
        e(f"s_lshl_b32 s{sT}, s{sT}, 7")
        e(f"s_add_u32 s{sT}, s{sT}, {14*128}")
        for t in range(8):
            if t==7:
                e(f"s_cmp_ge_u32 s{sWAVE}, 6")
                e("s_cbranch_scc1 L_dma_done")
            e(f"buffer_load_dwordx4 v5, s[{S_WS}:{S_WS+3}], s{sT} offen sc1 lds")
            if t<7:
                e(f"s_add_u32 m0, m0, 4096")
                e(f"s_add_u32 s{sT}, s{sT}, 512")
        lab("L_dma_done")
    if opt.bstep<0:
        if opt.bgate: lds_spin("L_wred",7,0,F_RED,4,sleep=1)
        dmaB()
    st(84)
    AUE,AUO=200,216; RG=232
    AXE=LE(0); AXO=ZE(0)
    vm=Q(63); lg=Q(15)
    seq=[('eo',22),('eo',23)]+[('e',s) for s in range(4)]+[('o',s) for s in range(4)]+[('eo',s) for s in range(4,22)]
    free=[RG+4*k for k in range(6)]
    reg={}
    lL=[]; lG=[]
    for i,(tl,s) in enumerate(seq):
        for k,fi in ([('x',2*s),('u',2*s+1)] if s<22 else [('u',44+s-22)]): lL.append((i,k,fi))
    cur=[0]; okB=[False]
    def ld():
        if not free or not lL or lL[0][0]>cur[0]+opt.look: return False
        i,k,fi=lL[0]
        if 14<=fi<44 and not okB[0]: return False
        lL.pop(0); r=free.pop(0); reg[(i,k)]=r
        if 14<=fi<44: off=(fi-14)*1024
        else:
            p=fi+2 if fi<14 else fi-44
            off=RING+4096-CWB+(p>>2)*8192+(p&3)*1024
        e(f"ds_read_b128 v[{r}:{r+3}], v1 offset:{off}"); lg.issue(f"{k}{i}")
        return True
    if opt.gateC: lds_spin("L_gC",7,0,{1:F_RED,3:F_G}[opt.gateC],4,sleep=1)
    st(88,True)
    if ST: e("s_memtime s[96:97]"); e("s_waitcnt lgkmcnt(0)")
    while ld(): pass
    first={'xe':1,'xo':1,'ue':1,'uo':1}
    GV=RG; rel=[]
    for i,(tl,s) in enumerate(seq):
        cur[0]=i
        CS={2:76,6:78,10:80,12:82,13:84,16:86,20:88,24:92}
        if opt.cst and i in CS: e(f"s_memtime s[{CS[i]}:{CS[i]+1}]")
        if i==opt.bstep:
            if opt.bgate: lds_spin("L_wred",7,0,F_RED,4,sleep=1); lg.done=len(lg.ops)
            dmaB()
        if i==opt.bstep2: hinc(F_CW2); lg.issue("cw2")
        if i==12:
            lds_spin("L_cw2",7,0,F_CW2,4); lg.done=len(lg.ops); okB[0]=True
            while ld(): pass
        q,nm=(lg,"lgkmcnt") if f'u{i}' in lg.ops else (vm,"vmcnt")
        if q.pending(f'u{i}'): e(f"s_waitcnt {nm}({q.need(f'u{i}')})")
        n=0
        for t in tl:
            z=(ZE if t=='e' else ZO)(s) if s<22 else (LE if t=='e' else LO)(s-22)
            for k,a in (('x',AXE if t=='e' else AXO),('u',AUE if t=='e' else AUO)):
                if (i,k) not in reg: continue
                c=f"v[{a}:{a+15}]"; r=reg[(i,k)]
                e(f"v_mfma_f32_32x32x16_bf16 {c}, v[{r}:{r+3}], v[{z}:{z+3}], {0 if first[k+t] else c}"); first[k+t]=0; lastw[t]=cnt[0]
                n+=1
                if n==1: free+=rel; rel=[]
                ld()
                if len(tl)==1: ld()
            if s<22 and not (t=='e' and s<4): rel.append(z)
        rel+= [reg[(i,k)] for k in 'xu' if (i,k) in reg]
        if i==len(seq)-3:
            assert not lL and not lG
            GV=free.pop(0)
            e(f"buffer_load_dwordx2 v[{GV}:{GV+1}], v6, s[{S_WS}:{S_WS+3}], 0 offen sc1"); vm.issue("gv")
    V=free.pop(0); V2=V+1
    e(f"s_add_u32 s{sE}, s{sE}, 1")
    e(f"s_and_b32 s{sE+1}, s{sE+1}, 0xff")
    e("s_lshl_b32 s9, s9, 16")
    e(f"s_lshl_b32 s{sT+6}, s{sROW}, 1")
    e(f"s_lshl_b32 s{sT+7}, s{sROW}, 3")
    e(f"s_add_u32 s{sT+7}, s{sT+7}, {EPOCH}")
    e(f"v_mov_b32 v{V+3}, s{sE}")
    hz('e',12)
    e(f"v_mul_f32 v{V}, v{AXE}, v{AUE}")
    e(f"v_mul_f32 v{V2}, v{AXE+1}, v{AUE+1}")
    for t in range(2,14): e(f"v_fmac_f32 v{V+(t&1)}, v{AXE+t}, v{AUE+t}")
    hz('o',12)
    for t in range(14): e(f"v_fmac_f32 v{V+(t&1)}, v{AXO+t}, v{AUO+t}")
    e(f"v_add_f32 v{V}, v{V}, v{V2}")
    st(90)
    if ST: e("s_memtime s[98:99]")
    e("s_mov_b32 exec_lo, 0x3ffffff")
    e("s_mov_b32 exec_hi, 0")
    e(f"s_mov_b32 s{sT+4}, {opt.bound}")
    G2=GV+2
    def chk(g,lbl):
        e(f"v_and_b32 v{V2}, 0xff, v{g+1}")
        e(f"v_cmp_eq_u32 vcc, s{sE}, v{g}")
        e(f"v_cmp_eq_u32 s[{sT}:{sT+1}], s{sE+1}, v{V2}")
        e(f"v_and_b32 v{V2}, 0xffffff00, v{g+1}")
        e(f"s_and_b64 vcc, vcc, s[{sT}:{sT+1}]")
        e("s_cmp_eq_u64 vcc, exec")
        e(f"s_cbranch_scc1 L_got")
    lab("L_poll2")
    e(f"buffer_load_dwordx2 v[{G2}:{G2+1}], v6, s[{S_WS}:{S_WS+3}], 0 offen sc1")
    e("s_waitcnt vmcnt(1)")
    chk(GV,0)
    e(f"buffer_load_dwordx2 v[{GV}:{GV+1}], v6, s[{S_WS}:{S_WS+3}], 0 offen sc1")
    e("s_waitcnt vmcnt(1)")
    chk(G2,1)
    e(f"s_sub_u32 s{sT+4}, s{sT+4}, 1")
    e("s_cbranch_scc0 L_poll2")
    lab("L_got")
    e(f"v_add_f32 v{V}, v{V}, v{V2}")
    e("s_mov_b64 exec, -1")
    if not opt.cst: st(92)
    for dpp in ["quad_perm:[1,0,3,2] row_mask:0xf bank_mask:0xf","quad_perm:[2,3,0,1] row_mask:0xf bank_mask:0xf",
                "row_half_mirror row_mask:0xf bank_mask:0xf","row_mirror row_mask:0xf bank_mask:0xf",
                "row_bcast:15 row_mask:0xa bank_mask:0xf","row_bcast:31 row_mask:0xc bank_mask:0xf"]:
        e("s_nop 1")
        e(f"v_add_f32_dpp v{V}, v{V}, v{V} {dpp}")
    e("s_mov_b32 exec_lo, 0")
    e("s_mov_b32 exec_hi, 0x80000000")
    e(f"v_add_f32 v{V}, s9, v{V}")
    e(f"v_cvt_pk_bf16_f32 v{V}, v{V}, v{V}")
    e(f"buffer_store_short v{V}, off, s[{S_B}:{S_B+3}], s{sT+6}")
    e(f"buffer_store_dword v{V+3}, off, s[{S_WS}:{S_WS+3}], s{sT+7}")
    if ST:
        e("s_waitcnt vmcnt(0)"); st(94,True); e("s_sub_u32 s98, s98, s96")
        if opt.cst:
            for r in (76,78,80,82,84,86,88,92):
                e(f"s_sub_u32 s{r}, s{r}, s96"); e(f"s_mul_i32 s{r}, s{r}, 100"); e(f"s_add_u32 s{r}, s{r}, s10")
        dump([10,76,78,80,82,84,86,88,90,92,94,98],0,1)
    e("s_endpgm")

    sec("pref")
    lab("L_aux")
    if opt.foldx:
        e(f"s_mov_b32 s{sT+1}, s{sXCD}")
    else:
        e(f"s_lshl1_add_u32 s{sT+1}, s{sXCD}, s{sSLOT}")
        e(f"s_sub_u32 s{sT+1}, s{sT+1}, 26")
    e(f"s_cmp_lt_u32 s{sT+1}, 7")
    e("s_cbranch_scc1 L_fold")
    sec("fold0"); lab("L_fold")
    cm("---- CIN weight folding: rows i = 4*pidx + (wave&3) ----")
    S_C=S_W; S_O=S_B; sI=6
    e(f"s_and_b32 s{sT}, s{sWAVE}, 3")
    e(f"s_lshl2_add_u32 s{sI}, s{sT+1}, s{sT}")
    M=16
    e("v_lshlrev_b32 v3, 2, v0")
    e("v_mov_b32 v7, 0x7fff0000")
    e(f"s_movk_i32 s{sT+1}, 338")
    e(f"v_cmp_gt_u32 vcc, s{sT+1}, v0")
    e("v_lshrrev_b32 v4, 1, v2")
    e("v_and_b32 v5, 1, v2")
    e("v_cndmask_b32 v3, v7, v3, vcc")
    e("v_lshlrev_b32 v4, 3, v4")
    e("s_waitcnt lgkmcnt(0)")
    e(f"s_load_dwordx16 s[76:91], s[{P_WOUT}:{P_WOUT+1}], 104")
    srd(S_C,P_CIN,105456)
    for gg in range(26):
        if gg%3==0: e(f"s_mov_b32 s{sT+2}, {2*35152+gg*1352}")
        e(f"buffer_load_dword v{M+gg}, v3, s[{S_C}:{S_C+3}], s{sT+2} offen offset:{(gg%3)*1352}")
    e("s_branch L_fold_b")
    sec("fold"); lab("L_fold_b")
    PP=44; QQ=52
    def slots():
        for ee in range(8):
            e(f"v_add_u32 v8, {ee}, v4")
            e("v_mul_u32_u24 v9, 5042, v8")
            e("v_lshrrev_b32 v9, 16, v9")
            e("v_mul_u32_u24 v10, 13, v9")
            e("v_sub_u32 v10, v8, v10")
            e(f"v_lshl_add_u32 v{PP+ee}, v10, 1, v5")
            e(f"v_add_u32 v{QQ+ee}, v{PP+ee}, v9")
            e(f"v_subrev_u32 v10, 26, v{QQ+ee}")
            e(f"v_min_u32 v{QQ+ee}, v{QQ+ee}, v10")
    def m3(later):
        e("v_mul_u32_u24 v8, 5042, v0")
        e("v_lshrrev_b32 v8, 16, v8")
        e("v_mul_u32_u24 v9, 13, v8")
        e("v_sub_u32 v9, v0, v9")
        e("v_lshlrev_b32 v9, 7, v9")
        e("v_lshl_add_u32 v96, v8, 1, v9")
        e("s_waitcnt lgkmcnt(0)")
        st(92)
        for gg in range(26):
            sreg=76+(gg>>1)
            if gg&1: e(f"s_and_b32 s{sT+4+(gg&1)}, s{sreg}, 0xffff0000")
            else:    e(f"s_lshl_b32 s{sT+4+(gg&1)}, s{sreg}, 16")
            if gg%4==0: e(f"s_waitcnt vmcnt({later+25-min(gg+3,25)})")
            e(f"v_lshlrev_b32 v8, 16, v{M+gg}")
            e(f"v_and_b32 v9, 0xffff0000, v{M+gg}")
            if gg==0:
                e(f"v_mul_f32 v10, s{sT+4}, v8"); e(f"v_mul_f32 v11, s{sT+4}, v9")
            else:
                e(f"v_fmac_f32 v10, s{sT+4+(gg&1)}, v8"); e(f"v_fmac_f32 v11, s{sT+4+(gg&1)}, v9")
        e("v_cvt_pk_bf16_f32 v10, v10, v11")
        e(f"s_movk_i32 s{sT+1}, 338")
        e(f"v_cmp_gt_u32 vcc, s{sT+1}, v0")
        e(f"s_and_saveexec_b64 s[{sT+2}:{sT+3}], vcc")
        e("ds_write_b16 v96, v10")
        e("ds_write_b16_d16_hi v96, v10 offset:64")
        e("s_mov_b64 exec, -1")
        st(94)
    def st_addr(cnt):
        e("v_lshlrev_b32 v6, 7, v6")
        e("v_lshl_add_u32 v6, v5, 6, v6")
        e(f"s_and_b32 s{sT+1}, s{sWAVE}, 3")
        e(f"s_lshl_b32 s{sT+1}, s{sT+1}, 4")
        e(f"s_add_u32 s{sT+1}, s{sT+1}, {STG}")
        e(f"v_add_u32 v6, s{sT+1}, v6")
        e(f"v_cmp_gt_u32 vcc, {cnt}, v2")
        e("v_mov_b32 v94, 1.0")
        e(f"v_mov_b32 v8, {STG+8192}")
        e("v_cndmask_b32 v6, v8, v6, vcc")
        e("v_cmp_gt_u32 vcc, 2, v2")
        e("s_nop 1")
        e("v_cndmask_b32 v95, v94, 0.5, vcc")
        e("v_cmp_gt_u32 vcc, 4, v2")
        e("s_nop 1")
        e("v_cndmask_b32 v94, v94, 0.5, vcc")
    e(f"s_cmp_ge_u32 s{sWAVE}, 4")
    e("s_cbranch_scc1 L_aux_w1")
    Pq=60; PR=76; RA=68; VV=16
    e("v_and_b32 v8, 31, v2")
    e("v_lshrrev_b32 v15, 5, v2")
    e(f"v_mul_u32_u24 v10, {8*1352}, v15")
    e("v_lshl_add_u32 v10, v8, 1, v10")
    e("v_cmp_gt_u32 vcc, 26, v8")
    e(f"s_mul_i32 s{sT+3}, s{sI}, 52")
    e(f"s_add_u32 s{sT+3}, s{sT+3}, 35152")
    e("v_cndmask_b32 v10, v7, v10, vcc")
    e("v_cmp_gt_u32 vcc, 32, v2")
    e("v_lshlrev_b32 v12, 2, v2")
    e("s_nop 0")
    e("v_cndmask_b32 v11, v7, v10, vcc")
    for s in range(2):
        for ee in range(8):
            h=16*s+ee
            if h%3==0 or ee==0:
                hb=h; e(f"s_add_u32 s{sT+2}, s{sT+3}, {h*1352}")
            va=11 if (s==1 and ee>=2) else 10
            e(f"buffer_load_ushort v{PR+s*8+ee}, v{va}, s[{S_C}:{S_C+3}], s{sT+2} offen offset:{(h-hb)*1352}")
    srd(S_O,P_WOUT,156)
    e(f"buffer_load_dword v13, v12, s[{S_O}:{S_O+3}], 0 offen offset:52")
    e(f"s_lshl_b32 s{sT+2}, s{sI}, 1")
    e(f"buffer_load_ushort v14, off, s[{S_O}:{S_O+3}], s{sT+2}")
    e("v_lshlrev_b32 v8, 6, v2")
    e("v_mov_b32 v9, 0")
    e("s_mov_b32 exec_lo, 0x7ffffff")
    e("s_mov_b32 exec_hi, 0")
    e("ds_write_b32 v8, v9 offset:52")
    e("ds_write_b32 v8, v9 offset:56")
    e("ds_write_b32 v8, v9 offset:60")
    e("s_mov_b64 exec, -1")
    e("v_and_b32 v8, 31, v2")
    e("v_lshlrev_b32 v93, 6, v8")
    e("v_lshl_add_u32 v93, v15, 4, v93")
    e(f"s_mul_i32 s{sT+1}, s{sWAVE}, 5120")
    e(f"s_add_u32 s{sT+1}, s{sT+1}, 4096")
    e("v_mul_u32_u24 v92, 144, v8")
    e("v_lshl_add_u32 v92, v15, 4, v92")
    e(f"v_add_u32 v92, s{sT+1}, v92")
    slots()
    e("v_cmp_lt_u32 vcc, 43, v2")
    e("v_subrev_u32 v10, 176, v4")
    e("v_mov_b32 v11, 26")
    for ee in range(8):
        e(f"v_add_u32 v8, {ee}, v10")
        e("v_lshl_add_u32 v8, v8, 1, v5")
        e(f"v_min_u32 v8, 31, v8")
        e(f"v_cndmask_b32 v8, v{QQ+ee}, v8, vcc")
        e(f"v_cndmask_b32 v9, v{PP+ee}, v11, vcc")
        e(f"v_mul_u32_u24 v9, 144, v9")
        e(f"v_lshl_add_u32 v9, v8, 2, v9")
        e(f"v_add_u32 v{RA+ee}, s{sT+1}, v9")
    e("v_lshrrev_b32 v8, 1, v2")
    e("v_lshl_add_u32 v6, v8, 1, 1")
    e("v_add_u32 v8, 22, v8")
    e("v_cndmask_b32 v6, v6, v8, vcc")
    st_addr(48)
    m3(18)
    e("s_mov_b32 exec_lo, 0x1fff")
    e("s_mov_b32 exec_hi, 0")
    e("s_waitcnt vmcnt(0)")
    e(f"ds_write_b32 v12, v13 offset:{26*64}")
    e("s_mov_b64 exec, -1")
    for r in range(8): e(f"v_lshl_or_b32 v{Pq+r}, v{PR+2*r+1}, 16, v{PR+2*r}")
    e("s_waitcnt lgkmcnt(0)")
    e("s_barrier")
    Qq=16; D=24
    e(f"ds_read_b128 v[{Qq}:{Qq+3}], v93")
    e(f"ds_read_b128 v[{Qq+4}:{Qq+7}], v93 offset:32")
    e("s_waitcnt lgkmcnt(0)")
    e(f"v_mfma_f32_32x32x16_bf16 v[{D}:{D+15}], v[{Pq}:{Pq+3}], v[{Qq}:{Qq+3}], 0")
    e(f"v_mfma_f32_32x32x16_bf16 v[{D}:{D+15}], v[{Pq+4}:{Pq+7}], v[{Qq+4}:{Qq+7}], v[{D}:{D+15}]")
    e(f"v_mfma_f32_32x32x16_bf16 v[{D}:{D+15}], v[{Qq}:{Qq+3}], v[{Pq}:{Pq+3}], v[{D}:{D+15}]")
    e(f"v_mfma_f32_32x32x16_bf16 v[{D}:{D+15}], v[{Qq+4}:{Qq+7}], v[{Pq+4}:{Pq+7}], v[{D}:{D+15}]")
    e("s_nop 11")
    for m in range(4):
        e(f"ds_write_b128 v92, v[{D+4*m}:{D+4*m+3}] offset:{m*32}")
    e("s_waitcnt lgkmcnt(0)")
    for ee in range(8): e(f"ds_read_b32 v{VV+ee}, v{RA+ee}")
    e("v_lshlrev_b32 v14, 16, v14")
    e(f"v_cmp_eq_u32 s[{sT}:{sT+1}], 46, v2")
    e(f"v_cmp_eq_u32 s[{sT+2}:{sT+3}], 47, v2")
    e("v_cmp_lt_u32 vcc, 45, v2")
    e("s_waitcnt lgkmcnt(0)")
    e(f"v_cndmask_b32 v{VV+5}, v{VV+5}, v14, s[{sT}:{sT+1}]")
    e(f"v_cndmask_b32 v{VV+5}, v{VV+5}, 0, s[{sT+2}:{sT+3}]")
    e(f"v_cndmask_b32 v{VV+6}, v{VV+6}, 0, vcc")
    e(f"v_cndmask_b32 v{VV+7}, v{VV+7}, 0, vcc")
    e("s_branch L_aux_pack")
    lab("L_aux_w1")
    GA=60; GB=68
    e(f"s_mul_i32 s{sT+3}, s{sI}, 1352")
    e(f"s_lshl_b32 s{sT+6}, s{sWAVE}, 11")
    e(f"s_add_u32 s{sT+6}, s{sT+6}, {32768-4*2048}")
    e(f"s_mov_b32 m0, s{sT+6}")
    e("v_lshlrev_b32 v12, 4, v2")
    e(f"buffer_load_dwordx4 v12, s[{S_C}:{S_C+3}], s{sT+3} offen lds")
    e(f"buffer_load_dwordx4 v12, s[{S_C}:{S_C+3}], s{sT+3} offen offset:1024 lds")
    slots()
    for ee in range(8):
        e(f"v_mul_u32_u24 v8, 26, v{PP+ee}")
        e(f"v_add_lshl_u32 v8, v8, v{QQ+ee}, 1")
        e(f"v_add_u32 v{GA+ee}, s{sT+6}, v8")
        e(f"v_mul_u32_u24 v9, 26, v{QQ+ee}")
        e(f"v_add_lshl_u32 v9, v9, v{PP+ee}, 1")
        e(f"v_add_u32 v{GB+ee}, s{sT+6}, v9")
    e("v_and_b32 v6, 62, v2")
    st_addr(44)
    m3(2)
    e("s_waitcnt lgkmcnt(0)")
    e("s_barrier")
    e("s_waitcnt vmcnt(0)")
    for ee in range(8):
        e(f"ds_read_u16 v{GA+ee}, v{GA+ee}")
        e(f"ds_read_u16 v{GB+ee}, v{GB+ee}")
    e("s_waitcnt lgkmcnt(0)")
    for ee in range(8):
        e(f"v_lshlrev_b32 v{GA+ee}, 16, v{GA+ee}")
        e(f"v_lshlrev_b32 v{GB+ee}, 16, v{GB+ee}")
        e(f"v_add_f32 v{VV+ee}, v{GA+ee}, v{GB+ee}")
    lab("L_aux_pack")
    srd(S_WS,P_WS,WS_SIZE); srd(S_A,P_DBG,256)
    e("v_cmp_eq_u32 vcc, 43, v2")
    for ee in range(8): e(f"v_mul_f32 v{VV+ee}, v{VV+ee}, v{94 if ee<5 else 95}")
    e(f"v_cndmask_b32 v{VV+7}, v{VV+7}, 0, vcc")
    for m in range(4): e(f"v_cvt_pk_bf16_f32 v{24+m}, v{VV+2*m}, v{VV+2*m+1}")
    e("ds_write_b128 v6, v[24:27]")
    e("v_lshlrev_b32 v8, 4, v0")
    e(f"s_movk_i32 s{sT+1}, 368")
    e(f"v_cmp_gt_u32 vcc, s{sT+1}, v0")
    e(f"s_lshr_b32 s{sT}, s{sI}, 2")
    e(f"s_mul_i32 s{sT+2}, s{sT}, 5888")
    e("v_cndmask_b32 v9, v7, v8, vcc")
    e("s_waitcnt lgkmcnt(0)")
    e("s_barrier")
    e(f"ds_read_b128 v[24:27], v8 offset:{STG}")
    e("s_waitcnt lgkmcnt(0)")
    e(f"buffer_store_dwordx4 v[24:27], v9, s[{S_WS}:{S_WS+3}], s{sT+2} offen sc0 sc1")
    st(96)
    e(f"s_lshl_b32 s{sT}, s{sT}, 2")
    e("v_mov_b32 v8, 1")
    e("s_waitcnt vmcnt(0)")
    e("s_barrier")
    e(f"s_cmp_lg_u32 s{sWAVE}, 0")
    e("s_cbranch_scc1 L_noflag")
    e("s_mov_b64 exec, 1")
    e(f"buffer_store_dword v8, off, s[{S_A}:{S_A+3}], s{sT} sc0 sc1")
    e("s_mov_b64 exec, -1")
    lab("L_noflag")
    if ST:
        st(98); e("s_waitcnt vmcnt(0)"); st(100,True)
        dump([10,92,94,96,98,100],1,2)
    e("s_branch L_aux_done")
    sec("pref")
    lab("L_prefetch")
    e("s_waitcnt lgkmcnt(0)")
    if opt.pdel: e(f"s_sleep {opt.pdel}")
    if opt.pf:
        e(f"s_cmp_lg_u32 s{sSLOT}, 31")
        e("s_cbranch_scc1 L_pf2")
        srd(S_A,P_B1,3328); srd(S_B,P_W2,3328); srd(S_WS,P_WS,EPOCH+8192)
        e("v_lshlrev_b32 v3, 7, v0")
        e(f"buffer_load_dword v12, v3, s[{S_A}:{S_A+3}], 0 offen")
        e(f"buffer_load_dword v13, v3, s[{S_B}:{S_B+3}], 0 offen")
        e(f"s_mov_b32 s{sT}, {EPOCH}")
        e(f"buffer_load_dword v14, v3, s[{S_WS}:{S_WS+3}], s{sT} offen")
        lab("L_pf2")
        srd(S_W,P_W,1664*3328)
        if opt.foldx:
            e(f"s_cmp_lt_u32 s{sXCD}, 7")
            e(f"s_cselect_b32 s{sT+2}, 27, 26")
        else:
            e(f"s_cmp_lt_u32 s{sXCD}, 4")
            e(f"s_cselect_b32 s{sT+2}, 27, 26")
            e(f"s_cmp_lt_u32 s{sXCD}, 3")
            e(f"s_cselect_b32 s{sT+2}, 28, s{sT+2}")
        e(f"s_sub_u32 s{sT}, s{sSLOT}, s{sT+2}")
        e(f"s_sub_u32 s{sT+2}, 32, s{sT+2}")
        e(f"s_mul_i32 s{sT+1}, s{sXCD}, 26")
        e(f"s_lshr_b32 s{sT+1}, s{sT+1}, 3")
        e(f"s_lshl_b32 s{sT+1}, s{sT+1}, 7")
        for u in range(3):
            e(f"v_add_u32 v3, {512*u}, v0")
            e(f"v_mul_u32_u24 v3, s{sT+2}, v3")
            e(f"v_add_u32 v3, s{sT}, v3")
            e("v_lshrrev_b32 v4, 2, v3")
            if opt.pskip: e(f"v_add_u32 v4, {opt.pskip}, v4")
            e("v_and_b32 v3, 3, v3")
            e(f"v_mul_u32_u24 v4, 3328, v4")
            e("v_lshl_add_u32 v3, v3, 7, v4")
            e(f"buffer_load_dword v{9+u}, v3, s[{S_W}:{S_W+3}], s{sT+1} offen")
            if u<2 and opt.pbar: e("s_barrier")
    e("s_branch L_aux_done")
    sec("fold")
    lab("L_aux_done")
    e(f"s_cmp_lt_u32 s{sWAVE}, 4")
    e("s_cbranch_scc1 L_end")
    srd(S_TBL,P_TBL,128000); srd(S_IDX,P_IDX,106496)
    rowidx_load()
    e(f"v_mov_b32 v7, {FLAGS}")
    e("v_mov_b32 v8, 4")
    e("v_mov_b32 v9, 0")
    e(f"ds_write_b32 v7, v8 offset:{F_RED}")
    e(f"ds_write_b32 v7, v8 offset:{F_G}")
    e(f"ds_write_b32 v7, v8 offset:{F_S1}")
    e(f"ds_write_b32 v7, v9 offset:{F_CW}")
    e(f"ds_write_b32 v7, v9 offset:{F_CW2}")
    e("s_waitcnt vmcnt(0)")
    e("v_lshlrev_b32 v29, 7, v29")
    x0_addrs()
    e("s_branch L_help_x0")
    lab("L_end")
    e("s_endpgm")
    sec("tail")
    L.append('.section .rodata,"a"'); L.append(".p2align 6"); L.append(f".amdhsa_kernel {KN}")
    for x in ["next_free_vgpr 256","next_free_sgpr 102","accum_offset 256","group_segment_fixed_size 0","kernarg_size 88",
              "user_sgpr_count 2","user_sgpr_kernarg_segment_ptr 1","system_sgpr_workgroup_id_x 1"]:
        L.append("  .amdhsa_"+x)
    L.append(".end_amdhsa_kernel")
    return "\n".join(sum((SEC.get(k,[]) for k in order+["tail"]),[]))+"\n"

if __name__=="__main__":
    ap=argparse.ArgumentParser()
    ap.add_argument("-o",default="k.s")
    for k,d in dict(foldx=1,rp=1,pdel=0,cp26=1,pbar=1,lay=1,b2g=1,cst=0,bgate=1,look=2,bstep=3,bstep2=10,inv=0,zmid=22,csc=0,gateC=0,gq=0,rowx=1,wstop=5,wrest=16,bq=3,xlds=1,xgap=0,atid=1,xsl=8,pskip=128,d2late=1,wper=4,its=0,sched=0,nog=0,not_=0,c2=0,noz=0,lateb=1,dly=4,pst=0,enc=0,encrole=0,encwg=0,encwave=0,nocin=0,gcyc=0,psleep=4,now=0,stamps=0,pf=1,cpf=1,prio=1,bound=20000,zsplit=22,zbar=22,nt0=6,tb=444,n0=4,nt1=4,d1late=0,trim=1,wsched=0).items(): ap.add_argument("--"+k,type=int,default=d)
    opt=ap.parse_args()
    for t in range(512): assert (t*5042)>>16==t//13, t
    open(opt.o,"w").write(build(opt))
```

```python
import sys, argparse, math, struct

class Q:
    def __init__(s,cap): s.ops=[]; s.cap=cap; s.done=0
    def issue(s,name): s.ops.append(name)
    def need(s,*names):
        r=99
        for name in names:
            i=len(s.ops)-1-s.ops[::-1].index(name)
            r=min(r,len(s.ops)-1-i)
        r=min(r,s.cap)
        s.done=max(s.done,len(s.ops)-r)
        return r
    def pending(s,*names):
        return any(len(s.ops)-1-s.ops[::-1].index(n)>=s.done for n in names)

WIMG=0; GRAN=65536; EPOCH=0x50000; STAMP=0x100000; WS_SIZE=0x200000
STG=49152; RING=128000; FLAGS=160768; CINW=49152
F_IT9,F_RED,F_G,F_PRE,F_S1,F_CW,F_CW2=0,4,8,12,16,20,24
C1=-2*math.sqrt(2/math.pi)*math.log2(math.e); C2=C1*0.044715
def f2u(x): return struct.unpack('<I',struct.pack('<f',x))[0]
KN="standalone__deep_cross_xdeepfm__recsys_kernel"

sWAVE,sXCD,sSLOT,sCB,sRB=3,4,5,7,8
P_IDX,P_TBL,P_CIN,P_WOUT,P_W,P_B1,P_W2,P_BO=16,18,20,22,24,26,28,30
P_OUT,P_DBG,P_WS=32,34,36
S_IDX,S_TBL,S_W,S_WS,S_A,S_B=40,44,48,52,56,60
sRING,sWR1,sWR2,sTM=64,65,15,14
sT=66

def pair_of(n):
    if n<169: dlt,m=divmod(n,13)
    else: dlt,m=13,n-169
    r=2*m
    return r,(r+dlt)%26

def build(opt):
    SEC={"entry":[]}; order=["entry","dnn0","hpro","pref","fold0","dnn","help","fold"]
    class LL:
        cur="entry"
        def append(s,x): SEC.setdefault(s.cur,[]).append(x)
    L=LL()
    def sec(n): L.cur=n
    cnt=[0]; lastw={}
    def e(x):
        L.append("    "+x)
        cnt[0]+= (int(x.split()[1])+1) if x.startswith("s_nop") else 1
    def hz(key,n):
        d=cnt[0]-lastw[key]
        if d<n: e(f"s_nop {n-d-1}")
    def lab(x): L.append(x+":")
    def cm(x): L.append("    ; "+x)
    E=lambda x:(lambda: e(x))
    ST=opt.stamps
    def srd(d,p,size):
        e(f"s_mov_b32 s{d}, s{p}"); e(f"s_mov_b32 s{d+1}, s{p+1}")
        e(f"s_mov_b32 s{d+2}, {size}"); e(f"s_mov_b32 s{d+3}, 0x20000")
    def st(r,wait=False):
        if ST:
            e(f"s_memrealtime s[{r}:{r+1}]")
            if wait: e("s_waitcnt lgkmcnt(0)")
    def dump(regs,area=0,role=0):
        if opt.enc:
            delay(regs,role); return
        dump_(regs,area)
    dl=[0]
    def delay(regs,role):
        dl[0]+=1; n=dl[0]
        e("s_mov_b64 exec, -1")
        e("s_waitcnt lgkmcnt(0)")
        if opt.enc==99:
            if role!=1: return
            srd(S_A,P_DBG,256)
            e("s_not_b32 s12, s10")
            e("v_mov_b32 v244, s12")
            e(f"v_mov_b32 v245, s{regs[10]}")
            e("v_mov_b32 v246, 1")
            e("s_mov_b64 exec, 1")
            e(f"buffer_atomic_umax v244, off, s[{S_A}:{S_A+3}], 0 offset:240 sc1")
            e(f"buffer_atomic_umax v245, off, s[{S_A}:{S_A+3}], 0 offset:244 sc1")
            e("s_waitcnt vmcnt(0)")
            e(f"buffer_atomic_add v246, off, s[{S_A}:{S_A+3}], 0 offset:248 sc0 sc1")
            e("s_waitcnt vmcnt(0)")
            e("v_readfirstlane_b32 s12, v246")
            e("s_cmp_lg_u32 s12, 1023")
            e(f"s_cbranch_scc1 L_dly{n}_x")
            e(f"buffer_load_dwordx2 v[244:245], off, s[{S_A}:{S_A+3}], 0 offset:240 sc1")
            e("s_waitcnt vmcnt(0)")
            e("v_readfirstlane_b32 s12, v244")
            e("v_readfirstlane_b32 s13, v245")
            e("s_not_b32 s12, s12")
            e("s_sub_u32 s12, s13, s12")
        else:
            if role!=opt.encrole: return
            e(f"s_cmp_lg_u32 s2, {opt.encwg}")
            e(f"s_cbranch_scc1 L_dly{n}_x")
            e(f"s_cmp_lg_u32 s{sWAVE}, {opt.encwave}")
            e(f"s_cbranch_scc1 L_dly{n}_x")
            if opt.enc in (96,97):
                e(f"s_load_dwordx8 s[76:83], s[{P_DBG}:{P_DBG+1}], 64")
                e("s_waitcnt lgkmcnt(0)")
                e("s_mov_b32 s12, s76"); e("s_mov_b32 s13, s76")
                for k in range(1,8):
                    e(f"s_min_u32 s12, s12, s{76+k}"); e(f"s_max_u32 s13, s13, s{76+k}")
                if opt.enc==96: e("s_mov_b32 s13, s10")
                e("s_sub_u32 s12, s13, s12")
                e("s_min_u32 s12, s12, 2000")
            else: e(f"s_sub_u32 s12, s{regs[opt.enc]}, s10")
        e("s_mul_i32 s12, s12, 100")
        e("s_memrealtime s[66:67]")
        e("s_waitcnt lgkmcnt(0)")
        e("s_add_u32 s12, s12, s66")
        lab(f"L_dly{n}")
        e("s_sleep 8")
        e("s_memrealtime s[66:67]")
        e("s_waitcnt lgkmcnt(0)")
        e("s_sub_u32 s13, s66, s12")
        e("s_cmp_lt_i32 s13, 0")
        e(f"s_cbranch_scc1 L_dly{n}")
        lab(f"L_dly{n}_x")
        e("s_mov_b64 exec, -1")
    def dump_(regs,area=0):
        e("s_mov_b64 exec, -1")
        e("s_waitcnt lgkmcnt(0)")
        e("s_lshl_b32 s12, s2, 3")
        e(f"s_add_u32 s12, s12, s{sWAVE}")
        e("s_lshl_b32 s12, s12, 6")
        e(f"s_add_u32 s12, s12, {STAMP+area*0x40000}")
        regs=list(regs)+[regs[0]]*(12-len(regs))
        for i,r in enumerate(regs): e(f"v_mov_b32 v{244+i}, s{r}")
        e("s_mov_b64 exec, 1")
        for i in range(3):
            e(f"buffer_store_dwordx4 v[{244+4*i}:{247+4*i}], off, s[{S_WS}:{S_WS+3}], s12 offset:{16*i}")
        e("s_mov_b64 exec, -1")
    def lds_spin(name,vaddr,vtmp,off,target,sleep=0):
        e(f"s_mov_b32 s{sT+4}, {opt.bound*8}")
        lab(name)
        e(f"ds_read_b32 v{vtmp}, v{vaddr} offset:{off}")
        e("s_waitcnt lgkmcnt(0)")
        e(f"v_readfirstlane_b32 s{sT+5}, v{vtmp}")
        e(f"s_cmp_ge_u32 s{sT+5}, {target}")
        e(f"s_cbranch_scc1 {name}_x")
        if sleep: e(f"s_sleep {sleep}")
        e(f"s_sub_u32 s{sT+4}, s{sT+4}, 1")
        e(f"s_cbranch_scc0 {name}")
        lab(name+"_x")

    IV=16; IA=24
    def rec_addrs():
        e(f"s_lshl_b32 s{sT+5}, s{sT}, 7")
        e(f"s_add_u32 s{sT+5}, s{sT+5}, {RING+4096}")
        e(f"v_lshl_add_u32 v7, v7, 3, s{sT+5}")
        e("v_mul_u32_u24 v9, 7, v8")
        e("v_and_b32 v8, 1, v8")
        for par in range(2):
            d=IA+2*par
            if par:
                e("v_xor_b32 v8, 1, v8"); e("v_add_u32 v9, 1, v9")
            e("v_lshrrev_b32 v10, 1, v9")
            e(f"v_lshl_add_u32 v{d}, v10, 8, v7")
            e(f"v_lshl_add_u32 v{d}, v8, 14, v{d}")
            e("v_lshlrev_b32 v10, 1, v8")
            e(f"v_xor_b32 v10, s{sT+2}, v10")
            e(f"v_lshl_add_u32 v{d}, v10, 1, v{d}")
            e(f"v_xor_b32 v{d+1}, 2, v{d}")
            e(f"v_add_u32 v{d+1}, 8192, v{d+1}")
    sROW=6; sE=38
    def rowidx_load():
        e(f"s_sub_u32 s{sT+6}, s{sWAVE}, 4")
        if opt.rowx:
            e(f"s_lshl2_add_u32 s{sROW}, s{sSLOT}, s{sT+6}")
            e(f"s_lshl_b32 s{sT+6}, s{sXCD}, 7")
            e(f"s_add_u32 s{sROW}, s{sROW}, s{sT+6}")
        else: e(f"s_lshl2_add_u32 s{sROW}, s2, s{sT+6}")
        e(f"s_mul_i32 s{sT+6}, s{sROW}, 104")
        e("v_lshlrev_b32 v30, 2, v2")
        e(f"buffer_load_dword v29, v30, s[{S_IDX}:{S_IDX+3}], s{sT+6} offen")
    for x in """xDeepFM (CIN + DNN) in one launch for gfx950; the instruction stream is emitted by my own generator script.
Kernarg: idx, table, ws_cin, w_cin_out, w_dnn1, b_dnn1, w_dnn2, b_out, out, debug, ws (8-byte pointers).
Math (exact regrouping of the reference): with Z = sym(x0 (x) x0) per (row, d),
  logit_cin = sum_d sum_i (W1s Z)_i * (w1_i + (M2 x0)_i + (Gs Z)_i),  M3 = w3.W3, M2 = w2.W2, G = W2.M3.
Workgroups g = xcd + 8*slot, 8 waves each:
  slot < 26 : waves 0-3 run a 128x64 tile of gelu(x0*W+b).w2 (table resident in LDS, K split over the waves,
              W streamed by LDS-DMA + transposing reads); partial logits leave as tagged 8-byte words in ws.
  slot 26   : folds the CIN weights (7 workgroups, published in ws, flags in debug); other slots warm L2.
  waves 4-7 of every workgroup evaluate the CIN polynomial of one row each, add the 26 partial logits, store out.
Hand-off tags: each row owns an epoch word in ws; tag = epoch + 1, the consumer advances it after use.""".split("\n"): L.append("; "+x)
    L.append("; @launch grid=(256,1,1) block=(512,1,1) lds=163840")
    L.append('.amdgcn_target "amdgcn-amd-amdhsa--gfx950"')
    L.append(".text"); L.append(f".globl {KN}"); L.append(".p2align 8"); L.append(f".type {KN},@function")
    lab(KN)
    e("s_load_dwordx16 s[16:31], s[0:1], 0")
    e("s_load_dwordx4 s[32:35], s[0:1], 64")
    e("s_load_dwordx2 s[36:37], s[0:1], 80")
    st(10)
    e("s_cmp_ge_u32 s2, 256")
    e("s_cbranch_scc1 L_end")
    e("v_lshrrev_b32 v1, 6, v0")
    e("v_and_b32 v2, 63, v0")
    e(f"v_readfirstlane_b32 s{sWAVE}, v1")
    e(f"s_and_b32 s{sXCD}, s2, 7")
    e(f"s_lshr_b32 s{sSLOT}, s2, 3")
    e(f"s_cmp_ge_u32 s{sSLOT}, 26")
    e("s_cbranch_scc1 L_aux0")
    sec("pref"); lab("L_aux0")
    e(f"s_cmp_gt_u32 s{sSLOT}, {26 if opt.foldx else 27}")
    e("s_cbranch_scc1 L_prefetch")
    if opt.cpf:
        e(f"s_getpc_b64 s[{S_IDX}:{S_IDX+1}]")
        lab("L_pc")
        e(f"s_sub_u32 s{S_IDX}, s{S_IDX}, L_pc-{KN}")
        e(f"s_subb_u32 s{S_IDX+1}, s{S_IDX+1}, 0")
        e(f"s_mov_b32 s{S_IDX+2}, L_end-{KN}")
        e(f"s_mov_b32 s{S_IDX+3}, 0x20000")
        e("v_lshlrev_b32 v3, 7, v0")
        e(f"buffer_load_dword v255, v3, s[{S_IDX}:{S_IDX+3}], 0 offen")
    sec("entry")
    e(f"s_mul_i32 s6, s{sXCD}, 26")
    e(f"s_add_u32 s6, s6, s{sSLOT}")
    e(f"s_and_b32 s{sRB}, s6, 7")
    e(f"s_and_b32 s{sT}, s{sWAVE}, 1")
    e(f"s_lshr_b32 s{sT+2}, s{sWAVE}, 1")
    e(f"s_lshl2_add_u32 s{sT+4}, s{sRB}, s{sT+2}")
    e(f"s_mul_i32 s{sT+4}, s{sT+4}, 3328")
    e(f"s_lshl_b32 s{sT+5}, s{sT}, 11")
    e(f"s_add_u32 s{sT+4}, s{sT+4}, s{sT+5}")
    e(f"s_lshl_b32 s{sT+3}, s{sT+2}, 13")
    e(f"s_add_u32 s{sT+3}, s{sT+3}, s{sT+5}")
    e(f"s_add_u32 m0, s{sT+3}, {RING+4096}")
    e("v_lshlrev_b32 v6, 4, v2")
    e("v_lshrrev_b32 v3, 3, v2")
    e("v_lshrrev_b32 v4, 4, v2")
    e("v_and_b32 v10, 7, v2")
    e(f"s_lshl_b32 s{sT+1}, s{sT}, 2")
    e("v_xor_b32 v5, v10, v4")
    e(f"v_xor_b32 v5, s{sT+1}, v5")
    e("v_lshlrev_b32 v5, 4, v5")
    e("v_lshl_add_u32 v5, v3, 7, v5")
    e(f"s_lshl1_add_u32 s{sT+3}, s{sSLOT}, s{sT+2}")
    e(f"s_lshl1_add_u32 s{sTM}, s{sT+3}, s{sT}")
    e(f"s_lshl_b32 s{sTM}, s{sTM}, 10")
    e(f"s_sub_u32 s{sWR2}, {63*2048}, s{sT+5}")
    e(f"s_lshr_b32 s{sT+5}, s{sT+5}, 1")
    e(f"s_add_u32 s{sWR1}, s{sWR2}, s{sT+5}")
    e(f"s_mov_b32 s{S_IDX+2}, 106496"); e(f"s_mov_b32 s{S_IDX+3}, 0x20000")
    e(f"s_mov_b32 s{S_TBL+2}, 128000"); e(f"s_mov_b32 s{S_TBL+3}, 0x20000")
    e(f"s_mov_b32 s{sT+3}, {opt.n0-1}")
    e("s_waitcnt lgkmcnt(0)")
    if opt.pst: st(84)
    e(f"s_mov_b64 s[{S_IDX}:{S_IDX+1}], s[{P_IDX}:{P_IDX+1}]")
    e(f"s_mov_b64 s[{S_TBL}:{S_TBL+1}], s[{P_TBL}:{P_TBL+1}]")
    e(f"buffer_load_dwordx4 v6, s[{S_IDX}:{S_IDX+3}], s{sT+4} offen lds")
    if opt.trim:
        e(f"s_cmp_eq_u32 s{sT}, 0")
        e("s_cselect_b64 exec, -1, 0xffff")
    e(f"buffer_load_dwordx4 v6, s[{S_IDX}:{S_IDX+3}], s{sT+4} offen offset:1024 lds")
    if opt.trim: e("s_mov_b64 exec, -1")
    nl=[0]
    def tloop(n=None,vm=None):
        nl[0]+=1; name=f"L_tl{nl[0]}"
        if n is not None:
            if n==0: return
            e(f"s_mov_b32 s{sT+3}, {n-1}")
        lab(name)
        e(f"s_mov_b32 m0, s{sTM}")
        e(f"s_add_u32 s{sTM}, s{sTM}, 8192")
        e(f"buffer_load_dwordx4 v5, s[{S_TBL}:{S_TBL+3}], m0 offen lds")
        e(f"s_cmp_ge_u32 s{sTM}, s{sWR1}")
        e(f"s_cselect_b32 s{sT+5}, s{sWR2}, 0")
        e(f"s_sub_u32 s{sTM}, s{sTM}, s{sT+5}")
        e(f"s_sub_u32 s{sT+3}, s{sT+3}, 1")
        e(f"s_cbranch_scc0 {name}")
        if vm is not None:
            for t in range(n): vm.issue("tbl")
    tloop()
    e(f"s_cmp_ge_u32 s{sWAVE}, 4")
    e("s_cbranch_scc1 L_help_pro")
    sec("dnn0")
    tbl=tloop

    vWe,vWo=1,3
    AD=8; AF=16; F0=48; REC=80; ACC=128
    VT=106; PB,PC=110,111; BI=112; W2P=112; EV=120; VR=122; WA=123; KC=126; RA1=5; VB=6
    SEL=80; ONE=86; vC1=87; S0=88; S1=89; TA=90
    acc=lambda lt,ct: ACC+(lt*4+ct)*4
    Fr=lambda j,ct: F0+(j&1)*16+ct*4
    afr=lambda lt: AF+4*lt
    vm=Q(63); lg=Q(15)
    cm("---- DNN wave prologue ----")
    for x in ["idx0","idx3"]+["tbl"]*opt.n0: vm.issue(x)
    e(f"s_lshr_b32 s{sCB}, s6, 3")
    e(f"s_lshl_b32 s{sRING}, s{sWAVE}, 13")
    e(f"s_add_u32 s{sRING}, s{sRING}, {RING}")
    e(f"s_lshl_b32 s{sT+7}, s{sWAVE}, 5")
    e(f"v_add_u32 v9, s{sT+7}, v3")
    e("v_mul_u32_u24 v9, 3328, v9")
    e("v_lshlrev_b32 v11, 1, v4")
    e("v_and_b32 v11, 2, v11")
    e("v_xor_b32 v11, v11, v10")
    e("v_lshl_add_u32 v1, v11, 4, v9")
    e(f"s_lshl_b32 s{sT+7}, s{sCB}, 7")
    e(f"v_add_u32 v1, s{sT+7}, v1")
    e("v_xor_b32 v3, 64, v1")
    e(f"v_add_u32 v3, {8*3328-1024}, v3")
    srd(S_W,P_W,1664*3328)
    sWO=12
    def d3(j,pc):
        ld=lambda: (e(f"buffer_load_dwordx4 v{vWo if pc&1 else vWe}, s[{S_W}:{S_W+3}], s{sWO} offen offset:{(pc&1)*1024} lds"),vm.issue(f"w{j}_{pc}"))
        if pc&1: return [ld]
        return [E(f"s_add_u32 m0, s{sRING}, {((j&1)*4+pc)*1024}"),E(f"s_mov_b32 s{sWO}, {(128*j+8*pc)*3328}"),ld]
    def dma(j,pcs):
        for pc in pcs:
            for f in d3(j,pc): f()
    dma(0,range(4))
    def bias_loads(ii):
        for i in ii:
            e(f"buffer_load_dwordx2 v[{BI+2*i}:{BI+2*i+1}], v{VB}, s[{S_A}:{S_A+3}], 0 offen offset:{i*32}"); vm.issue(f"bias{i}")
    TB=[opt.n0]+[int(c,16) for c in str(opt.tb)]
    e("s_branch L_dnn_b")
    sec("dnn"); lab("L_dnn_b")
    e(f"v_lshl_add_u32 v{VB}, v4, 3, s{sT+7}")
    e(f"v_mov_b32 v7, {FLAGS}")
    srd(S_A,P_B1,3328)
    if opt.pst: st(86)
    e("v_and_b32 v13, 15, v2")
    e("v_mul_u32_u24 v13, 104, v13")
    e(f"s_lshl2_add_u32 s{sT+5}, s{sT+2}, {RING+4096}")
    e(f"v_add_u32 v13, s{sT+5}, v13")
    e(f"v_xor_b32 v9, s{sWAVE}, v4")
    e("v_lshl_add_u32 v24, v9, 13, v13")
    e("v_add_u32 v25, 1664, v24")
    e("v_bfe_u32 v9, v2, 2, 2")
    e("v_lshlrev_b32 v13, 7, v9")
    e("v_lshl_add_u32 v13, v4, 10, v13")
    e("v_lshrrev_b32 v9, 1, v9")
    e("v_lshl_add_u32 v13, v9, 5, v13")
    e("v_and_b32 v9, 1, v4")
    e("v_lshl_add_u32 v13, v9, 6, v13")
    e("v_and_b32 v9, 3, v2")
    e("v_lshl_add_u32 v13, v9, 3, v13")
    e(f"v_add_u32 v{VT}, s{sRING}, v13")
    e(f"v_xor_b32 v{VT+1}, 32, v{VT}")
    e(f"v_xor_b32 v{VT+2}, 64, v{VT}")
    e(f"v_xor_b32 v{VT+3}, 0x60, v{VT}")
    e(f"v_add_u32 v{KC}, s{sT+1}, v4")
    e(f"v_lshl_or_b32 v{KC}, v{KC}, 16, v{KC}")
    e(f"s_mov_b32 s{sT+6}, 0x00070007")
    e(f"s_waitcnt vmcnt({vm.need('idx3')})")
    if opt.pst: st(88)
    e("s_barrier")
    if opt.pst: st(90)
    RW=lambda t,j: 160+t*14+j
    for j in range(0,13,2):
        for t in range(2):
            e(f"ds_read2_b32 v[{RW(t,j)}:{RW(t,j)+1}], v{24+t} offset0:{2*j} offset1:{2*j+2}")
    tbl(TB[1],vm)
    srd(S_WS,P_WS,WS_SIZE)
    srd(S_B,P_W2,3328)
    e("s_waitcnt lgkmcnt(0)")
    e("s_barrier")
    st(76)
    tbl(TB[2],vm)
    for j in range(13):
        if j==6: tbl(TB[3],vm)
        d=REC+2*j
        e(f"v_lshl_or_b32 v{d}, v{RW(1,j)}, 16, v{RW(0,j)}")
        e(f"v_lshrrev_b32 v13, 1, v{d}")
        e(f"v_and_b32 v13, s{sT+6}, v13")
        e(f"v_lshl_or_b32 v{d}, v{d}, 3, v13")
        e(f"v_mov_b32 v{d+1}, v{d}")
        if j: e(f"v_permlane32_swap_b32 v{d-2}, v{d-1}")
    e("s_nop 1")
    e(f"v_permlane32_swap_b32 v{REC+24}, v{REC+25}")
    def bc(j,h):
        A=REC+2*j+h; B=PC if h else PB
        return [E(f"v_mov_b32 v{B}, v{A}")],[E(f"v_permlane16_swap_b32 v{A}, v{B}"),E(f"v_xor_b32 v{A}, v{KC}, v{A}"),E(f"v_xor_b32 v{B}, v{KC}, v{B}")]
    def adr(lt,j):
        src={0:REC+2*j,1:PB,2:REC+2*j+1,3:PC}[lt>>1]
        e(f"v_lshlrev_b32_sdwa v{AD+lt}, 4, v{src} dst_sel:DWORD dst_unused:UNUSED_PAD src0_sel:DWORD src1_sel:WORD_{lt&1}")
    def Rop(lt,j): e(f"ds_read_b128 v[{afr(lt)}:{afr(lt)+3}], v{AD+lt}"); lg.issue(f"R{lt}_{j}")
    def Top(j,ct,h4):
        d=Fr(j,ct)+2*h4
        e(f"ds_read_b64_tr_b16 v[{d}:{d+1}], v{VT+ct} offset:{(j&1)*4096+h4*512}"); lg.issue(f"T{j}_{ct}{h4}")
    for h in range(2): bc(0,h)[0][0]()
    e("s_nop 0")
    for h in range(2):
        for f in bc(0,h)[1]: f()
    for lt in range(8): adr(lt,0)
    bc(1,0)[0][0]()
    if ST: e("s_waitcnt lgkmcnt(0)")
    e(f"s_waitcnt vmcnt({vm.need('w0_3')})")
    for ct in range(4): Top(0,ct,0); Top(0,ct,1)
    for f in bc(1,0)[1]: f()
    dma(1,range(4))
    e("s_waitcnt lgkmcnt(0)"); lg.done=len(lg.ops)
    for x in [f"s_xor_b32 s{sT}, s{sWAVE}, 1",f"s_lshl_b32 s{sT}, s{sT}, 12",f"v_lshlrev_b32 v{RA1}, 4, v2",f"v_add_u32 v{WA}, s{sT}, v{RA1}",
              f"v_xor_b32 v{WA+1}, {3<<12}, v{WA}",f"v_xor_b32 v{WA+2}, {2<<12}, v{WA}",f"s_lshl_b32 s{sT}, s{sWAVE}, 12",f"v_add_u32 v{RA1}, s{sT}, v{RA1}",
              f"v_lshrrev_b32 v{VR}, 5, v2","v_and_b32 v0, 15, v2",f"v_lshl_add_u32 v{VR}, v{VR}, 4, v0",f"s_lshl_b32 s{sT}, s{sRB}, 7",
              f"s_lshl_b32 s{sT+1}, s{sWAVE}, 5",f"s_add_u32 s{sT}, s{sT}, s{sT+1}",f"v_add_lshl_u32 v{VR}, v{VR}, s{sT}, 3"]: e(x)
    if opt.pst: st(92)
    e(f"s_waitcnt vmcnt({vm.need('tbl')})")
    st(78)
    e("s_barrier")
    st(80,True)
    if ST: e("s_memtime s[96:97]"); e("s_waitcnt lgkmcnt(0)")
    if opt.prio: e(f"s_setprio {opt.prio}")
    LT=[2,3,4,5,6,7,0,1]
    for lt in LT: Rop(lt,0)
    def inc(off,nm):
        def f():
            e("s_mov_b64 exec, 1")
            e(f"ds_add_u32 v7, v{ONE} offset:{off}"); lg.issue(nm)
            e("s_mov_b64 exec, -1")
        return f
    def wv(n): return lambda n=n: (e(f"s_waitcnt vmcnt({vm.need(n)})") if vm.pending(n) else None)
    def wl(n): return lambda n=n: (e(f"s_waitcnt lgkmcnt({lg.need(n)})") if lg.pending(n) else None)
    T_=lambda j,ct,h4: (lambda: Top(j,ct,h4))
    def badd(k):
        ct,r=k>>2,k&3; src=BI+2*ct+(r>>1)
        return [E(f"v_and_b32 v0, 0xffff0000, v{src}" if r&1 else f"v_lshlrev_b32 v0, 16, v{src}")]+\
               [(lambda t=t: (hz((t,ct),8),e(f"v_add_f32 v{acc(t,ct)+r}, v{acc(t,ct)+r}, v0"))) for t in range(2)]
    selops=[E("v_and_b32 v0, 15, v2"),E(f"v_lshlrev_b32 v{TA}, 2, v4"),E(f"v_sub_u32 v0, v0, v{TA}"),E(f"s_movk_i32 s{sT+7}, 0x3f80"),
            E(f"v_lshlrev_b32 v{TA}, 4, v0"),E(f"v_and_b32 v{TA}, 16, v{TA}"),E(f"v_lshlrev_b32 v{TA}, v{TA}, s{sT+7}"),E("v_lshrrev_b32 v0, 1, v0"),
            E(f"v_cmp_eq_u32 s[{sT}:{sT+1}], 0, v0"),E(f"v_cmp_eq_u32 s[{sT+2}:{sT+3}], 1, v0"),E(f"v_mov_b32 v{SEL}, 0"),E(f"v_mov_b32 v{SEL+1}, 0"),
            E(f"v_cndmask_b32 v{SEL+2}, 0, v{TA}, s[{sT}:{sT+1}]"),E(f"v_cndmask_b32 v{SEL+3}, 0, v{TA}, s[{sT+2}:{sT+3}]"),E(f"v_mov_b32 v{SEL+4}, 0"),E(f"v_mov_b32 v{SEL+5}, 0")]
    misc=[E(f"s_xor_b32 s{sT}, s{sWAVE}, 1"),E(f"s_lshl_b32 s{sT}, s{sT}, 12"),E(f"v_lshlrev_b32 v{RA1}, 4, v2"),E(f"v_add_u32 v{WA}, s{sT}, v{RA1}"),
          E(f"v_xor_b32 v{WA+1}, {3<<12}, v{WA}"),E(f"v_xor_b32 v{WA+2}, {2<<12}, v{WA}"),E(f"s_lshl_b32 s{sT}, s{sWAVE}, 12"),E(f"v_add_u32 v{RA1}, s{sT}, v{RA1}"),
          E(f"v_mov_b32 v{ONE}, 1"),E(f"v_mov_b32 v{vC1}, {f2u(C1)}"),E(f"v_mov_b32 v{S0}, 0"),E(f"v_mov_b32 v{S1}, 0"),
          E(f"v_lshrrev_b32 v{VR}, 5, v2"),E("v_and_b32 v0, 15, v2"),E(f"v_lshl_add_u32 v{VR}, v{VR}, 4, v0"),E(f"s_lshl_b32 s{sT}, s{sRB}, 7"),
          E(f"s_lshl_b32 s{sT+1}, s{sWAVE}, 5"),E(f"s_add_u32 s{sT}, s{sT}, s{sT+1}"),E(f"v_add_lshl_u32 v{VR}, v{VR}, s{sT}, 3")]
    def w2l(i): return lambda: (e(f"buffer_load_dwordx2 v[{W2P+2*i}:{W2P+2*i+1}], v{VB}, s[{S_B}:{S_B+3}], 0 offen offset:{i*32}"),vm.issue(f"w2_{i}"))
    evl=[E(f"s_mov_b32 s{sT+2}, {EPOCH}"),lambda: (e(f"buffer_load_dwordx2 v[{EV}:{EV+1}], v{VR}, s[{S_WS}:{S_WS+3}], s{sT+2} offen"),vm.issue("ev"))]
    LO=list(range(92,100))
    W2F=[LO[k>>1] if k%2==0 else W2P+(k>>1) for k in range(16)]
    unp=[]
    for k in range(8):
        unp+= [E(f"v_lshlrev_b32 v{LO[k]}, 16, v{W2P+k}"),E(f"v_and_b32 v{W2P+k}, 0xffff0000, v{W2P+k}")]
    def cv(lt):
        a=acc(lt,0); u=lt>>1
        c=[(lambda m=m: (hz((lt,m>>1),8),e(f"v_cvt_pk_bf16_f32 v{a+m}, v{a+2*m}, v{a+2*m+1}"))) for m in range(8)]
        w=[(lambda h=h: (e(f"ds_write_b128 v{WA+u-1}, v[{a+4*h}:{a+4*h+3}] offset:{(u-1)*16384+((lt&1)*2+h)*1024}"),lg.issue("W"))) for h in range(2)]
        return c[:4]+w[:1]+c[4:]+w[1:]
    def bar2():
        e("s_waitcnt lgkmcnt(0)"); lg.done=len(lg.ops)
        if opt.its: e("s_memtime s[92:93]")
        if not opt.pst: st(82)
        e("s_barrier")
        if not opt.pst: st(84)
    ITS={1:76,2:78,3:80,5:82,7:84,9:86,11:88,12:90}
    bl=sum((badd(k) for k in range(16)),[])
    sel2=[(lambda f=f: f()) for f in selops]
    extra={2:[(lambda i=i: bias_loads([i])) for i in range(4)],
           3:[wv('bias3')]+bl[:6],4:bl[6:15],5:bl[15:24],6:bl[24:33],7:bl[33:42],8:bl[42:48],
           9:[w2l(i) for i in range(4)]+evl+misc[8:12],10:selops,11:[]}
    q12=[]
    for j in range(13):
        cm(f"---- iteration {j} ----")
        if opt.its==1 and j in ITS: e(f"s_memtime s[{ITS[j]}:{ITS[j]+1}]")
        if opt.its and j==12: opt.pst=1
        G=[[] for k in range(32)]
        if j<12:
            Ts=[T_(j+1,ct,h4) for ct in range(4) for h4 in range(2)]
            mB,rB=bc(j+1,1)
            G[2]+=mB; G[6]+=rB[:1]; G[7]+=rB[1:2]; G[11]+=rB[2:]
            if j+2<13:
                mA,rA=bc(j+2,0); G[23]+=mA; G[26]+=rA[:1]; G[27]+=rA[1:2]; G[30]+=rA[2:]
            free=[k for k in range(32) if k%4<2]
            seq=[]
            if j==0: seq=[[x] for x in d3(2,0)+d3(2,1)+d3(2,2)+d3(2,3)]+[[wv('w1_3'),Ts[0]]]+[[x] for x in Ts[1:]]
            else:
                seq=[[wv(f'w{j+1}_3'),Ts[0]]]+[[x] for x in Ts[1:]]
                if opt.tpk and j>1: seq=[[wv(f'w{j+1}_3'),Ts[0],Ts[1]],Ts[2:4],Ts[4:6],Ts[6:8]]
                if j+3<13:
                    dd=d3(j+3,0)+d3(j+3,1)+d3(j+3,2)+d3(j+3,3)
                    seq+=[[dd[0]],[dd[1]],[wl(f'T{j+1}_31'),dd[2]]]+[[x] for x in dd[3:]]
            if j==1:
                dd=d3(3,0)+d3(3,1)+d3(3,2)+d3(3,3)
                for k,x in zip((3,7,10,11,14,15,18,19),dd): G[k].append(x)
                seq=seq[:8]+[[]]*0+seq[8:]
                free=free[:8]+[20,21,22,24,25,28,29,31]
            for k,x in zip(free,seq): G[k]+=x
            if j==10: G[17]+=[wl('T11_31'),inc(F_S1,"s1")]
            ex=list(extra.get(j,[]))
            if j==11: ex=[E("s_waitcnt vmcnt(0)")]+unp
            lo,hi=(5,23) if j in (3,4,5,6,7,8) else (4,32)
            k=lo
            while ex:
                cand=[g for g in range(k,hi) if len(G[g])+(1 if g%4>=2 else 0)<2]
                if not cand:
                    G[hi-2]+=ex; break
                k=cand[0]; G[k].append(ex.pop(0))
        for g,lt in enumerate(LT):
            if g%2==0:
                needs=[f"R{lt}_{j}",f"R{LT[g+1]}_{j}"]+([f"T{j}_31"] if g==0 else [])
                if lg.pending(*needs): e(f"s_waitcnt lgkmcnt({lg.need(*needs)})")
            for ct in range(4):
                c=f"v[{acc(lt,ct)}:{acc(lt,ct)+3}]"
                e(f"v_mfma_f32_16x16x32_bf16 {c}, v[{Fr(j,ct)}:{Fr(j,ct)+3}], v[{afr(lt)}:{afr(lt)+3}], {0 if j==0 else c}")
                lastw[(lt,ct)]=cnt[0]
                if j<12:
                    if ct==2: adr(lt,j+1)
                    if ct==3: Rop(lt,j+1)
                    for f in G[4*g+ct]: f()
                else:
                    if g==0 and ct==2: bar2()
                    n=3 if (g,ct)!=(7,3) else 99
                    if not (ct==0 and g<=6):
                        for f in q12[:n]: f()
                        q12=q12[n:]
            if j==12 and lt>=2:
                q12+=cv(lt)
                if lt==7: q12+= [inc(F_RED,"inc"),E(f"s_mov_b32 s{sT+2}, {f2u(C2)}")]
    if not opt.pst: st(86)
    if ST: e("s_memtime s[98:99]")
    lds_spin("L_red",7,0,F_RED,4)
    if not opt.pst: st(88,True)
    lg=Q(15)
    adds=[]
    for t in range(2):
        for u in (1,2,3):
            for h in range(2):
                r=acc(2*u+t,0)+4*h
                e(f"ds_read_b128 v[{r}:{r+3}], v{RA1} offset:{(u-1)*16384+(t*2+h)*1024}"); lg.issue(f"p{t}{u}{h}")
                for sx in range(2):
                    def add(t=t,u=u,h=h,r=r,sx=sx):
                        if lg.pending(f"p{t}{u}{h}"): e(f"s_waitcnt lgkmcnt({lg.need(f'p{t}{u}{h}')})")
                        c=f"v[{acc(t,2*h+sx)}:{acc(t,2*h+sx)+3}]"; sl=SEL if sx else SEL+2
                        e(f"v_mfma_f32_16x16x32_bf16 {c}, v[{sl}:{sl+3}], v[{r}:{r+3}], {c}"); lastw[(t,2*h+sx)]=cnt[0]
                    adds.append(add)
    for f in adds[:13]: f()
    adds=adds[13:]
    T=F0
    for q in range(8):
        t,ct=q>>2,q&3
        a=acc(t,ct)
        def A(n=2):
            for k in range(n):
                if adds: adds.pop(0)()
        hz((t,ct),8)
        for r in range(4): e(f"v_mul_f32 v{T+r}, v{a+r}, v{a+r}")
        A(1)
        for r in range(4): e(f"v_fma_f32 v{T+r}, v{T+r}, s{sT+2}, v{vC1}")
        A(1)
        for r in range(4): e(f"v_mul_f32 v{T+r}, v{T+r}, v{a+r}")
        A(1)
        for r in range(4): e(f"v_exp_f32 v{T+r}, v{T+r}")
        A(1)
        for r in range(4): e(f"v_mul_f32 v{a+r}, v{a+r}, v{W2F[4*ct+r]}")
        for r in range(4): e(f"v_add_f32 v{T+r}, 1.0, v{T+r}")
        for r in range(4): e(f"v_rcp_f32 v{T+r}, v{T+r}")
        if adds: A(1)
        else: e("s_nop 0")
        for r in range(4): e(f"v_fmac_f32 v{S1 if t else S0}, v{a+r}, v{T+r}")
    e(f"s_movk_i32 s{sT}, 0xff")
    e(f"v_add_u32 v{EV}, 1, v{EV}")
    e(f"v_permlane32_swap_b32 v{S0}, v{S1}")
    e(f"v_add_f32 v{S0}, v{S0}, v{S1}")
    e(f"v_mov_b32 v{S1}, v{S0}")
    e(f"s_lshl_b32 s{sT+1}, s{sCB}, 13")
    e(f"s_add_u32 s{sT+1}, s{sT+1}, {GRAN}")
    e(f"v_permlane16_swap_b32 v{S0}, v{S1}")
    e(f"v_add_f32 v{S0}, v{S0}, v{S1}")
    e(f"v_bfi_b32 v{EV+1}, s{sT}, v{EV+1}, v{S0}")
    e("s_mov_b32 exec_lo, 0xffff")
    e("s_mov_b32 exec_hi, 0xffff")
    e(f"buffer_store_dwordx2 v[{EV}:{EV+1}], v{VR}, s[{S_WS}:{S_WS+3}], s{sT+1} offen sc0 sc1")
    if ST:
        if opt.gcyc: e("s_memtime s[98:99]")
        if not opt.pst: st(90); e("s_waitcnt vmcnt(0)"); st(92,True)
        e("s_waitcnt lgkmcnt(0)"); e("s_sub_u32 s98, s98, s96")
        if opt.its:
            for r in range(76,94,2):
                e(f"s_sub_u32 s{r}, s{r}, s96"); e(f"s_mul_i32 s{r}, s{r}, 100"); e(f"s_add_u32 s{r}, s{r}, s10")
        dump([10,76,78,80,82,84,86,88,90,92,98])
    e("s_endpgm")

    sec("hpro")
    def late_sloads():
        e(f"s_lshl_b32 s{sT+8}, s{sROW}, 3")
        e(f"s_add_u32 s{sT+8}, s{sT+8}, {EPOCH}")
        e(f"s_load_dwordx2 s[{sE}:{sE+1}], s[{P_WS}:{P_WS+1}], s{sT+8}")
        e(f"s_load_dword s9, s[{P_BO}:{P_BO+1}], 0")
    X=32
    def x0_addrs():
        e("v_and_b32 v3, 31, v2")
        e("v_lshlrev_b32 v4, 2, v3")
        for r in range(26): e(f"v_readlane_b32 s{76+r}, v29, {r}")
        e("s_mov_b32 exec_hi, 0")
        for r in range(26): e(f"v_xor_b32 v{X+r}, s{76+r}, v4")
        e("s_mov_b64 exec, -1")
        e("s_mov_b32 exec_lo, 0")
        for r in range(26): e(f"v_xor_b32 v{X+r}, s{76+(r+1)%26}, v4")
        e("s_mov_b64 exec, -1")
    lab("L_help_pro")
    rowidx_load()
    tloop(opt.nt0-opt.n0)
    e(f"v_mov_b32 v7, {FLAGS}")
    e("v_mov_b32 v8, 0"); e("v_mov_b32 v9, 0")
    e("ds_write2_b64 v7, v[8:9], v[8:9] offset1:1")
    e("ds_write2_b64 v7, v[8:9], v[8:9] offset0:2 offset1:3")
    e(f"s_waitcnt vmcnt({opt.nt0+1})")
    e("s_barrier")
    tloop(opt.nt1)
    e("s_waitcnt lgkmcnt(0)")
    e("s_barrier")
    if opt.trim:
        e(f"s_cmp_eq_u32 s{sWAVE}, 4")
        e(f"s_cselect_b32 s{sT+3}, {16-opt.nt0-opt.nt1-1}, {16-opt.nt0-opt.nt1-2}")
        tloop()
    else: tloop(16-opt.nt0-opt.nt1)
    e("s_branch L_help_b")
    sec("help"); lab("L_help_b")
    e(f"s_waitcnt vmcnt({15-opt.n0})")
    if opt.xlds:
        e("v_lshlrev_b32 v8, 3, v29"); e("v_and_b32 v8, 0x70, v8"); e("v_lshl_or_b32 v29, v29, 7, v8")
    else: e("v_lshlrev_b32 v29, 7, v29")
    x0_addrs()
    e("s_waitcnt vmcnt(0)")
    e("s_barrier")
    if opt.xsl: e(f"s_sleep {opt.xsl}")
    if opt.xlds:
        for r in range(26):
            e(f"ds_read_b32 v{X+r}, v{X+r}")
            if opt.xgap and r%opt.xgap==opt.xgap-1: e("s_sleep 1")
        e("s_branch L_help_main")
    lab("L_help_x0")
    for r in range(26):
        e(f"buffer_load_dword v{X+r}, v{X+r}, s[{S_TBL}:{S_TBL+3}], 0 offen")
    lab("L_help_main")
    srd(S_WS,P_WS,WS_SIZE); srd(S_A,P_DBG,256); srd(S_B,P_OUT,2048)
    Z0=8
    ZE=lambda s: Z0+4*s
    ZO=lambda s: Z0+88+4*s
    LE=lambda k: Z0+176+4*k
    LO=lambda k: Z0+184+4*k
    R=200; MT=252
    e("v_lshrrev_b32 v5, 2, v3")
    e("v_mul_u32_u24 v5, 5888, v5")
    e("v_and_b32 v6, 3, v2")
    e("v_lshl_add_u32 v5, v6, 4, v5")
    e("v_lshrrev_b32 v6, 5, v2")
    e("v_lshl_add_u32 v5, v6, 6, v5")
    e("v_mov_b32 v7, 0x7fff0000")
    e("v_cmp_gt_u32 vcc, 26, v3")
    e("v_lshlrev_b32 v6, 13, v2")
    e(f"s_lshl_b32 s{sT}, s{sROW}, 3")
    e("v_cndmask_b32 v5, v7, v5, vcc")
    e(f"s_add_u32 s{sT}, s{sT}, {GRAN}")
    e(f"v_add_u32 v6, s{sT}, v6")
    e("v_cmp_gt_u32 vcc, 26, v2")
    e("v_lshlrev_b32 v1, 4, v2")
    e(f"v_add_u32 v1, 97280, v1")
    e("v_cndmask_b32 v6, v7, v6, vcc")
    e(f"v_mov_b32 v7, {FLAGS}")
    e("s_waitcnt vmcnt(0) lgkmcnt(0)")
    late_sloads()
    if opt.enc in (96,97):
        e("s_cmp_ge_u32 s2, 8")
        e("s_cbranch_scc1 L_nost")
        e("v_mov_b32 v0, s10")
        e("s_lshl_b32 s12, s2, 2")
        e(f"buffer_store_dword v0, off, s[{S_A}:{S_A+3}], s12 offset:64 sc0 sc1")
        lab("L_nost")
    st(76)
    for r in range(26):
        e(f"v_lshlrev_b32 v{R+2*r}, 16, v{X+r}")
        e(f"v_and_b32 v{R+2*r+1}, 0xffff0000, v{X+r}")
    def zstep(s):
        if opt.noz: return
        for m in range(4):
            (a1,a2),(b1,b2)=pair_of(8*s+2*m),pair_of(8*s+2*m+1)
            if opt.zpk:
                e(f"v_pk_mul_f32 v[{MT}:{MT+1}], v[{R+2*a1}:{R+2*a1+1}], v[{R+2*a2}:{R+2*a2+1}]")
                e(f"v_pk_mul_f32 v[{MT+2}:{MT+3}], v[{R+2*b1}:{R+2*b1+1}], v[{R+2*b2}:{R+2*b2+1}]")
            else:
                e(f"v_mul_f32 v{MT}, v{R+2*a1}, v{R+2*a2}")
                e(f"v_mul_f32 v{MT+2}, v{R+2*b1}, v{R+2*b2}")
                e(f"v_mul_f32 v{MT+1}, v{R+2*a1+1}, v{R+2*a2+1}")
                e(f"v_mul_f32 v{MT+3}, v{R+2*b1+1}, v{R+2*b2+1}")
            e(f"v_cvt_pk_bf16_f32 v{ZE(s)+m}, v{MT}, v{MT+2}")
            e(f"v_cvt_pk_bf16_f32 v{ZO(s)+m}, v{MT+1}, v{MT+3}")
    def zlin():
        for k in range(2):
            for m2 in range(4):
                m=k*8+2*m2
                for tl,d in ((0,LE(k)+m2),(1,LO(k)+m2)):
                    if m+1<=12: e(f"v_cvt_pk_bf16_f32 v{d}, v{R+4*m+tl}, v{R+4*(m+1)+tl}")
                    elif m==12: e(f"v_cvt_pk_bf16_f32 v{d}, v{R+4*m+tl}, 1.0")
                    else: e(f"v_mov_b32 v{d}, 0")
    SC=" sc1" if opt.csc else ""
    if opt.hprio: e(f"s_setprio {opt.hprio}")
    zlin()
    for s in range(opt.zsplit): zstep(s)
    if opt.hprio: e("s_setprio 0")
    st(78)
    e(f"s_load_dwordx8 s[92:99], s[{P_DBG}:{P_DBG+1}], 0")
    e("s_waitcnt lgkmcnt(0)")
    for k in range(1,7): e(f"s_and_b32 s92, s92, s{92+k}")
    e("s_cmp_lg_u32 s92, 0")
    e("s_cbranch_scc1 L_polled")
    lds_spin("L_it9",7,4,F_S1,4,sleep=4)
    e(f"v_lshlrev_b32 v0, 2, v2")
    e(f"buffer_load_dword v4, v0, s[{S_A}:{S_A+3}], 0 offen sc1")
    for s in range(opt.zsplit,opt.zmid): zstep(s)
    e(f"s_mov_b32 s{sT+4}, {opt.bound}")
    e(f"s_mov_b32 s{sT+2}, 0x7f")
    e(f"s_mov_b32 s{sT+3}, 0")
    lab("L_poll1")
    e("s_waitcnt vmcnt(0)")
    e("v_cmp_ne_u32 vcc, 0, v4")
    e(f"s_and_b64 vcc, vcc, s[{sT+2}:{sT+3}]")
    e(f"s_cmp_eq_u64 vcc, s[{sT+2}:{sT+3}]")
    e("s_cbranch_scc1 L_polled")
    e(f"s_sleep {opt.psleep}")
    e(f"buffer_load_dword v4, v0, s[{S_A}:{S_A+3}], 0 offen sc1")
    e(f"s_sub_u32 s{sT+4}, s{sT+4}, 1")
    e("s_cbranch_scc0 L_poll1")
    lab("L_polled")
    if opt.inv: e("buffer_inv sc1")
    st(80)
    lds_spin("L_s1",7,0,F_S1,4,sleep=2)
    e(f"s_sub_u32 s{sT}, s{sWAVE}, 4")
    e(f"s_lshl_b32 s{sT+1}, s{sT}, 13")
    e(f"s_add_u32 m0, s{sT+1}, {RING+4096}")
    e(f"s_lshl_b32 s{sT}, s{sT}, 9")
    e(f"s_sub_u32 s{sT}, s{sT}, 256")
    for t in range(4):
        if t<2:
            e(f"s_cmp_eq_u32 s{sWAVE}, 4")
            e(f"s_cselect_b32 s{sT+1}, {(44+t)*128}, s{sT}")
        else: e(f"s_mov_b32 s{sT+1}, s{sT}")
        e(f"buffer_load_dwordx4 v5, s[{S_WS}:{S_WS+3}], s{sT+1} offen sc1 lds")
        if t<3:
            e(f"s_add_u32 m0, m0, 1024")
            e(f"s_add_u32 s{sT}, s{sT}, 128")
    for s in range(opt.zmid,opt.zbar): zstep(s)
    e("s_waitcnt vmcnt(0)")
    st(82)
    e("s_barrier")
    for s in range(opt.zbar,opt.zb2): zstep(s)
    def hinc(off):
        e("v_mov_b32 v0, 1")
        e("s_mov_b64 exec, 1")
        e("s_waitcnt vmcnt(0)")
        e(f"ds_add_u32 v7, v0 offset:{off}")
        e("s_mov_b64 exec, -1")
    CWB=97280
    def dmaB0():
        e(f"s_sub_u32 s{sT}, s{sWAVE}, 4")
        e(f"s_lshl_b32 s{sT+1}, s{sT}, 10")
        e(f"s_add_u32 s{sT+1}, s{sT+1}, {CWB}")
        e(f"s_lshl_b32 s{sT}, s{sT}, 7")
        e(f"s_add_u32 s{sT}, s{sT}, {14*128}")
        e(f"s_cmp_ge_u32 s{sWAVE}, 6")
        e(f"s_cselect_b32 s{sT+8}, 6, 7")
        e(f"s_lshl_b32 s{sT+8}, s{sT+8}, 9")
    def dmaB1(t):
        if t<7:
            e(f"s_add_u32 m0, s{sT+1}, {4096*t}")
            e(f"s_add_u32 s{sT+9}, s{sT}, {512*t}")
        else:
            e(f"s_lshl3_add_u32 m0, s{sT+8}, s{sT+1}")
            e(f"s_add_u32 s{sT+9}, s{sT}, s{sT+8}")
        e(f"buffer_load_dwordx4 v5, s[{S_WS}:{S_WS+3}], s{sT+9} offen sc1 lds")
    dmaB0()
    dq=list(range(8))
    for s in range(opt.zb2,22): zstep(s)
    st(84)
    AUE,AUO=200,216; RG=232
    AXE=LE(0); AXO=ZE(0)
    vm=Q(63); lg=Q(15)
    seq=[('eo',22),('eo',23)]+[('e',s) for s in range(4)]+[('o',s) for s in range(4)]+[('eo',s) for s in range(4,22)]
    free=[RG+4*k for k in range(6)]
    reg={}
    lL=[]; lG=[]
    for i,(tl,s) in enumerate(seq):
        for k,fi in ([('x',2*s),('u',2*s+1)] if s<22 else [('u',44+s-22)]): lL.append((i,k,fi))
    cur=[0]; okB=[False]
    def ld():
        if not free or not lL or lL[0][0]>cur[0]+opt.look: return False
        i,k,fi=lL[0]
        if 14<=fi<44 and not okB[0]: return False
        lL.pop(0); r=free.pop(0); reg[(i,k)]=r
        if 14<=fi<44: off=(fi-14)*1024
        else:
            p=fi+2 if fi<14 else fi-44
            off=RING+4096-CWB+(p>>2)*8192+(p&3)*1024
        e(f"ds_read_b128 v[{r}:{r+3}], v1 offset:{off}"); lg.issue(f"{k}{i}")
        return True
    if opt.gateC: lds_spin("L_gC",7,0,{1:F_RED,3:F_G}[opt.gateC],4,sleep=1)
    st(88,True)
    if ST: e("s_memtime s[96:97]"); e("s_waitcnt lgkmcnt(0)")
    while ld(): pass
    for _ in range(opt.dpre): dmaB1(dq.pop(0))
    first={'xe':1,'xo':1,'ue':1,'uo':1}
    GV=RG; rel=[]
    for i,(tl,s) in enumerate(seq):
        cur[0]=i
        CS={2:76,6:78,10:80,12:82,13:84,16:86,20:88,24:92}
        if opt.cst and i in CS: e(f"s_memtime s[{CS[i]}:{CS[i]+1}]")
        if i==12:
            e(f"ds_read_b32 v0, v7 offset:{F_CW2}"); lg.issue("cwr")
        q,nm=(lg,"lgkmcnt") if f'u{i}' in lg.ops else (vm,"vmcnt")
        if q.pending(f'u{i}'): e(f"s_waitcnt {nm}({q.need(f'u{i}')})")
        n=0
        for t in tl:
            z=(ZE if t=='e' else ZO)(s) if s<22 else (LE if t=='e' else LO)(s-22)
            for k,a in (('x',AXE if t=='e' else AXO),('u',AUE if t=='e' else AUO)):
                if (i,k) not in reg: continue
                c=f"v[{a}:{a+15}]"; r=reg[(i,k)]
                e(f"v_mfma_f32_32x32x16_bf16 {c}, v[{r}:{r+3}], v[{z}:{z+3}], {0 if first[k+t] else c}"); first[k+t]=0; lastw[t]=cnt[0]
                n+=1
                if n==1: free+=rel; rel=[]
                for _ in range(opt.dper):
                    if dq: dmaB1(dq.pop(0))
                if i==opt.bstep2 and n==opt.bn: hinc(F_CW2); lg.issue("cw2")
                if i==12 and n==1:
                    e("s_waitcnt lgkmcnt(0)"); lg.done=len(lg.ops)
                    e(f"v_readfirstlane_b32 s{sT+5}, v0")
                    e(f"s_cmp_ge_u32 s{sT+5}, 4")
                    e("s_cbranch_scc1 L_cw2_x")
                    lds_spin("L_cw2",7,0,F_CW2,4); okB[0]=True
                    while ld(): pass
                ld()
                if len(tl)==1: ld()
            if s<22 and not (t=='e' and s<4): rel.append(z)
        rel+= [reg[(i,k)] for k in 'xu' if (i,k) in reg]
        if i==len(seq)-3:
            assert not lL and not lG
            GV=free.pop(0)
            e(f"buffer_load_dwordx2 v[{GV}:{GV+1}], v6, s[{S_WS}:{S_WS+3}], 0 offen sc1"); vm.issue("gv")
    V=free.pop(0); V2=V+1
    e(f"s_add_u32 s{sE}, s{sE}, 1")
    e(f"s_and_b32 s{sE+1}, s{sE+1}, 0xff")
    e("s_lshl_b32 s9, s9, 16")
    e(f"s_lshl_b32 s{sT+6}, s{sROW}, 1")
    e(f"s_lshl_b32 s{sT+7}, s{sROW}, 3")
    e(f"s_add_u32 s{sT+7}, s{sT+7}, {EPOCH}")
    e(f"v_mov_b32 v{V+3}, s{sE}")
    hz('e',12)
    e(f"v_mul_f32 v{V}, v{AXE}, v{AUE}")
    e(f"v_mul_f32 v{V2}, v{AXE+1}, v{AUE+1}")
    for t in range(2,14): e(f"v_fmac_f32 v{V+(t&1)}, v{AXE+t}, v{AUE+t}")
    hz('o',12)
    for t in range(14): e(f"v_fmac_f32 v{V+(t&1)}, v{AXO+t}, v{AUO+t}")
    e(f"v_add_f32 v{V}, v{V}, v{V2}")
    st(90)
    if ST: e("s_memtime s[98:99]")
    e("s_mov_b32 exec_lo, 0x3ffffff")
    e("s_mov_b32 exec_hi, 0")
    e(f"s_mov_b32 s{sT+4}, {opt.bound}")
    G2=GV+2
    def chk(g,lbl):
        e(f"v_and_b32 v{V2}, 0xff, v{g+1}")
        e(f"v_cmp_eq_u32 vcc, s{sE}, v{g}")
        e(f"v_cmp_eq_u32 s[{sT}:{sT+1}], s{sE+1}, v{V2}")
        e(f"v_and_b32 v{V2}, 0xffffff00, v{g+1}")
        e(f"s_and_b64 vcc, vcc, s[{sT}:{sT+1}]")
        e("s_cmp_eq_u64 vcc, exec")
        e(f"s_cbranch_scc1 L_got")
    lab("L_poll2")
    e(f"buffer_load_dwordx2 v[{G2}:{G2+1}], v6, s[{S_WS}:{S_WS+3}], 0 offen sc1")
    e("s_waitcnt vmcnt(1)")
    chk(GV,0)
    e(f"buffer_load_dwordx2 v[{GV}:{GV+1}], v6, s[{S_WS}:{S_WS+3}], 0 offen sc1")
    e("s_waitcnt vmcnt(1)")
    chk(G2,1)
    e(f"s_sub_u32 s{sT+4}, s{sT+4}, 1")
    e("s_cbranch_scc0 L_poll2")
    lab("L_got")
    e(f"v_add_f32 v{V}, v{V}, v{V2}")
    e("s_mov_b64 exec, -1")
    if not opt.cst: st(92)
    for dpp in ["quad_perm:[1,0,3,2] row_mask:0xf bank_mask:0xf","quad_perm:[2,3,0,1] row_mask:0xf bank_mask:0xf",
                "row_half_mirror row_mask:0xf bank_mask:0xf","row_mirror row_mask:0xf bank_mask:0xf",
                "row_bcast:15 row_mask:0xa bank_mask:0xf","row_bcast:31 row_mask:0xc bank_mask:0xf"]:
        e("s_nop 1")
        e(f"v_add_f32_dpp v{V}, v{V}, v{V} {dpp}")
    e("s_mov_b32 exec_lo, 0")
    e("s_mov_b32 exec_hi, 0x80000000")
    e(f"v_add_f32 v{V}, s9, v{V}")
    e(f"v_cvt_pk_bf16_f32 v{V}, v{V}, v{V}")
    e(f"buffer_store_short v{V}, off, s[{S_B}:{S_B+3}], s{sT+6}")
    e(f"buffer_store_dword v{V+3}, off, s[{S_WS}:{S_WS+3}], s{sT+7}")
    if ST:
        e("s_waitcnt vmcnt(0)"); st(94,True); e("s_sub_u32 s98, s98, s96")
        if opt.cst:
            for r in (76,78,80,82,84,86,88,92):
                e(f"s_sub_u32 s{r}, s{r}, s96"); e(f"s_mul_i32 s{r}, s{r}, 100"); e(f"s_add_u32 s{r}, s{r}, s10")
        dump([10,76,78,80,82,84,86,88,90,92,94,98],0,1)
    e("s_endpgm")

    sec("pref")
    lab("L_aux")
    if opt.foldx:
        e(f"s_mov_b32 s{sT+1}, s{sXCD}")
    else:
        e(f"s_lshl1_add_u32 s{sT+1}, s{sXCD}, s{sSLOT}")
        e(f"s_sub_u32 s{sT+1}, s{sT+1}, 26")
    e(f"s_cmp_lt_u32 s{sT+1}, 7")
    e("s_cbranch_scc1 L_fold")
    sec("fold0"); lab("L_fold")
    cm("---- CIN weight folding: rows i = 4*pidx + (wave&3) ----")
    S_C=S_W; S_O=S_B; sI=6
    e(f"s_and_b32 s{sT}, s{sWAVE}, 3")
    e(f"s_lshl2_add_u32 s{sI}, s{sT+1}, s{sT}")
    M=16
    e("v_lshlrev_b32 v3, 2, v0")
    e("v_mov_b32 v7, 0x7fff0000")
    e(f"s_movk_i32 s{sT+1}, 338")
    e(f"v_cmp_gt_u32 vcc, s{sT+1}, v0")
    e("v_lshrrev_b32 v4, 1, v2")
    e("v_and_b32 v5, 1, v2")
    e("v_cndmask_b32 v3, v7, v3, vcc")
    e("v_lshlrev_b32 v4, 3, v4")
    e("s_waitcnt lgkmcnt(0)")
    e(f"s_load_dwordx8 s[76:83], s[{P_WOUT}:{P_WOUT+1}], 104")
    e(f"s_load_dwordx4 s[84:87], s[{P_WOUT}:{P_WOUT+1}], 136")
    e(f"s_load_dword s88, s[{P_WOUT}:{P_WOUT+1}], 152")
    srd(S_C,P_CIN,105456)
    for gg in range(26):
        if gg%3==0: e(f"s_mov_b32 s{sT+2}, {2*35152+gg*1352}")
        e(f"buffer_load_dword v{M+gg}, v3, s[{S_C}:{S_C+3}], s{sT+2} offen offset:{(gg%3)*1352}")
    e("s_branch L_fold_b")
    sec("fold"); lab("L_fold_b")
    PP=44; QQ=52
    def slots():
        for ee in range(8):
            e(f"v_add_u32 v8, {ee}, v4")
            e("v_mul_u32_u24 v9, 5042, v8")
            e("v_lshrrev_b32 v9, 16, v9")
            e("v_mul_u32_u24 v10, 13, v9")
            e("v_sub_u32 v10, v8, v10")
            e(f"v_lshl_add_u32 v{PP+ee}, v10, 1, v5")
            e(f"v_add_u32 v{QQ+ee}, v{PP+ee}, v9")
            e(f"v_subrev_u32 v10, 26, v{QQ+ee}")
            e(f"v_min_u32 v{QQ+ee}, v{QQ+ee}, v10")
    def m3(later):
        e("v_mul_u32_u24 v8, 5042, v0")
        e("v_lshrrev_b32 v8, 16, v8")
        e("v_mul_u32_u24 v9, 13, v8")
        e("v_sub_u32 v9, v0, v9")
        e("v_lshlrev_b32 v9, 7, v9")
        e("v_lshl_add_u32 v96, v8, 1, v9")
        e("s_waitcnt lgkmcnt(0)")
        st(92)
        for gg in range(26):
            sreg=76+(gg>>1)
            if gg&1: e(f"s_and_b32 s{sT+4+(gg&1)}, s{sreg}, 0xffff0000")
            else:    e(f"s_lshl_b32 s{sT+4+(gg&1)}, s{sreg}, 16")
            if gg%4==0: e(f"s_waitcnt vmcnt({later+25-min(gg+3,25)})")
            e(f"v_lshlrev_b32 v8, 16, v{M+gg}")
            e(f"v_and_b32 v9, 0xffff0000, v{M+gg}")
            if gg==0:
                e(f"v_mul_f32 v10, s{sT+4}, v8"); e(f"v_mul_f32 v11, s{sT+4}, v9")
            else:
                e(f"v_fmac_f32 v10, s{sT+4+(gg&1)}, v8"); e(f"v_fmac_f32 v11, s{sT+4+(gg&1)}, v9")
        e("v_cvt_pk_bf16_f32 v10, v10, v11")
        e(f"s_movk_i32 s{sT+1}, 338")
        e(f"v_cmp_gt_u32 vcc, s{sT+1}, v0")
        e(f"s_and_saveexec_b64 s[{sT+2}:{sT+3}], vcc")
        e("ds_write_b16 v96, v10")
        e("ds_write_b16_d16_hi v96, v10 offset:64")
        e("s_mov_b64 exec, -1")
        st(94)
    def st_addr(cnt):
        e("v_lshlrev_b32 v6, 7, v6")
        e("v_lshl_add_u32 v6, v5, 6, v6")
        e(f"s_and_b32 s{sT+1}, s{sWAVE}, 3")
        e(f"s_lshl_b32 s{sT+1}, s{sT+1}, 4")
        e(f"s_add_u32 s{sT+1}, s{sT+1}, {STG}")
        e(f"v_add_u32 v6, s{sT+1}, v6")
        e(f"v_cmp_gt_u32 vcc, {cnt}, v2")
        e("v_mov_b32 v94, 1.0")
        e(f"v_mov_b32 v8, {STG+8192}")
        e("v_cndmask_b32 v6, v8, v6, vcc")
        e("v_cmp_gt_u32 vcc, 2, v2")
        e("s_nop 1")
        e("v_cndmask_b32 v95, v94, 0.5, vcc")
        e("v_cmp_gt_u32 vcc, 4, v2")
        e("s_nop 1")
        e("v_cndmask_b32 v94, v94, 0.5, vcc")
    e(f"s_cmp_ge_u32 s{sWAVE}, 4")
    e("s_cbranch_scc1 L_aux_w1")
    Pq=60; PR=76; RA=68; VV=16
    e("v_and_b32 v8, 31, v2")
    e("v_lshrrev_b32 v15, 5, v2")
    e(f"v_mul_u32_u24 v10, {8*1352}, v15")
    e("v_lshl_add_u32 v10, v8, 1, v10")
    e("v_cmp_gt_u32 vcc, 26, v8")
    e(f"s_mul_i32 s{sT+3}, s{sI}, 52")
    e(f"s_add_u32 s{sT+3}, s{sT+3}, 35152")
    e("v_cndmask_b32 v10, v7, v10, vcc")
    e("v_cmp_gt_u32 vcc, 32, v2")
    e("v_lshlrev_b32 v12, 2, v2")
    e("s_nop 0")
    e("v_cndmask_b32 v11, v7, v10, vcc")
    for s in range(2):
        for ee in range(8):
            h=16*s+ee
            if h%3==0 or ee==0:
                hb=h; e(f"s_add_u32 s{sT+2}, s{sT+3}, {h*1352}")
            va=11 if (s==1 and ee>=2) else 10
            e(f"buffer_load_ushort v{PR+s*8+ee}, v{va}, s[{S_C}:{S_C+3}], s{sT+2} offen offset:{(h-hb)*1352}")
    srd(S_O,P_WOUT,156)
    e(f"buffer_load_dword v13, v12, s[{S_O}:{S_O+3}], 0 offen offset:52")
    e(f"s_lshl_b32 s{sT+2}, s{sI}, 1")
    e(f"buffer_load_ushort v14, off, s[{S_O}:{S_O+3}], s{sT+2}")
    e("v_lshlrev_b32 v8, 6, v2")
    e("v_mov_b32 v9, 0")
    e("s_mov_b32 exec_lo, 0x7ffffff")
    e("s_mov_b32 exec_hi, 0")
    e("ds_write_b32 v8, v9 offset:52")
    e("ds_write_b32 v8, v9 offset:56")
    e("ds_write_b32 v8, v9 offset:60")
    e("s_mov_b64 exec, -1")
    e("v_and_b32 v8, 31, v2")
    e("v_lshlrev_b32 v93, 6, v8")
    e("v_lshl_add_u32 v93, v15, 4, v93")
    e(f"s_mul_i32 s{sT+1}, s{sWAVE}, 5120")
    e(f"s_add_u32 s{sT+1}, s{sT+1}, 4096")
    e("v_mul_u32_u24 v92, 144, v8")
    e("v_lshl_add_u32 v92, v15, 4, v92")
    e(f"v_add_u32 v92, s{sT+1}, v92")
    slots()
    e("v_cmp_lt_u32 vcc, 43, v2")
    e("v_subrev_u32 v10, 176, v4")
    e("v_mov_b32 v11, 26")
    for ee in range(8):
        e(f"v_add_u32 v8, {ee}, v10")
        e("v_lshl_add_u32 v8, v8, 1, v5")
        e(f"v_min_u32 v8, 31, v8")
        e(f"v_cndmask_b32 v8, v{QQ+ee}, v8, vcc")
        e(f"v_cndmask_b32 v9, v{PP+ee}, v11, vcc")
        e(f"v_mul_u32_u24 v9, 144, v9")
        e(f"v_lshl_add_u32 v9, v8, 2, v9")
        e(f"v_add_u32 v{RA+ee}, s{sT+1}, v9")
    e("v_lshrrev_b32 v8, 1, v2")
    e("v_lshl_add_u32 v6, v8, 1, 1")
    e("v_add_u32 v8, 22, v8")
    e("v_cndmask_b32 v6, v6, v8, vcc")
    st_addr(48)
    m3(18)
    e("s_mov_b32 exec_lo, 0x1fff")
    e("s_mov_b32 exec_hi, 0")
    e("s_waitcnt vmcnt(0)")
    e(f"ds_write_b32 v12, v13 offset:{26*64}")
    e("s_mov_b64 exec, -1")
    for r in range(8): e(f"v_lshl_or_b32 v{Pq+r}, v{PR+2*r+1}, 16, v{PR+2*r}")
    e("s_waitcnt lgkmcnt(0)")
    e("s_barrier")
    Qq=16; D=24
    e(f"ds_read_b128 v[{Qq}:{Qq+3}], v93")
    e(f"ds_read_b128 v[{Qq+4}:{Qq+7}], v93 offset:32")
    e("s_waitcnt lgkmcnt(0)")
    e(f"v_mfma_f32_32x32x16_bf16 v[{D}:{D+15}], v[{Pq}:{Pq+3}], v[{Qq}:{Qq+3}], 0")
    e(f"v_mfma_f32_32x32x16_bf16 v[{D}:{D+15}], v[{Pq+4}:{Pq+7}], v[{Qq+4}:{Qq+7}], v[{D}:{D+15}]")
    e(f"v_mfma_f32_32x32x16_bf16 v[{D}:{D+15}], v[{Qq}:{Qq+3}], v[{Pq}:{Pq+3}], v[{D}:{D+15}]")
    e(f"v_mfma_f32_32x32x16_bf16 v[{D}:{D+15}], v[{Qq+4}:{Qq+7}], v[{Pq+4}:{Pq+7}], v[{D}:{D+15}]")
    e("s_nop 11")
    for m in range(4):
        e(f"ds_write_b128 v92, v[{D+4*m}:{D+4*m+3}] offset:{m*32}")
    e("s_waitcnt lgkmcnt(0)")
    for ee in range(8): e(f"ds_read_b32 v{VV+ee}, v{RA+ee}")
    e("v_lshlrev_b32 v14, 16, v14")
    e(f"v_cmp_eq_u32 s[{sT}:{sT+1}], 46, v2")
    e(f"v_cmp_eq_u32 s[{sT+2}:{sT+3}], 47, v2")
    e("v_cmp_lt_u32 vcc, 45, v2")
    e("s_waitcnt lgkmcnt(0)")
    e(f"v_cndmask_b32 v{VV+5}, v{VV+5}, v14, s[{sT}:{sT+1}]")
    e(f"v_cndmask_b32 v{VV+5}, v{VV+5}, 0, s[{sT+2}:{sT+3}]")
    e(f"v_cndmask_b32 v{VV+6}, v{VV+6}, 0, vcc")
    e(f"v_cndmask_b32 v{VV+7}, v{VV+7}, 0, vcc")
    e("s_branch L_aux_pack")
    lab("L_aux_w1")
    GA=60; GB=68
    e(f"s_mul_i32 s{sT+3}, s{sI}, 1352")
    e(f"s_lshl_b32 s{sT+6}, s{sWAVE}, 11")
    e(f"s_add_u32 s{sT+6}, s{sT+6}, {32768-4*2048}")
    e(f"s_mov_b32 m0, s{sT+6}")
    e("v_lshlrev_b32 v12, 4, v2")
    e(f"buffer_load_dwordx4 v12, s[{S_C}:{S_C+3}], s{sT+3} offen lds")
    e(f"buffer_load_dwordx4 v12, s[{S_C}:{S_C+3}], s{sT+3} offen offset:1024 lds")
    slots()
    for ee in range(8):
        e(f"v_mul_u32_u24 v8, 26, v{PP+ee}")
        e(f"v_add_lshl_u32 v8, v8, v{QQ+ee}, 1")
        e(f"v_add_u32 v{GA+ee}, s{sT+6}, v8")
        e(f"v_mul_u32_u24 v9, 26, v{QQ+ee}")
        e(f"v_add_lshl_u32 v9, v9, v{PP+ee}, 1")
        e(f"v_add_u32 v{GB+ee}, s{sT+6}, v9")
    e("v_and_b32 v6, 62, v2")
    st_addr(44)
    m3(2)
    e("s_waitcnt lgkmcnt(0)")
    e("s_barrier")
    e("s_waitcnt vmcnt(0)")
    for ee in range(8):
        e(f"ds_read_u16 v{GA+ee}, v{GA+ee}")
        e(f"ds_read_u16 v{GB+ee}, v{GB+ee}")
    e("s_waitcnt lgkmcnt(0)")
    for ee in range(8):
        e(f"v_lshlrev_b32 v{GA+ee}, 16, v{GA+ee}")
        e(f"v_lshlrev_b32 v{GB+ee}, 16, v{GB+ee}")
        e(f"v_add_f32 v{VV+ee}, v{GA+ee}, v{GB+ee}")
    lab("L_aux_pack")
    srd(S_WS,P_WS,WS_SIZE); srd(S_A,P_DBG,256)
    e("v_cmp_eq_u32 vcc, 43, v2")
    for ee in range(8): e(f"v_mul_f32 v{VV+ee}, v{VV+ee}, v{94 if ee<5 else 95}")
    e(f"v_cndmask_b32 v{VV+7}, v{VV+7}, 0, vcc")
    for m in range(4): e(f"v_cvt_pk_bf16_f32 v{24+m}, v{VV+2*m}, v{VV+2*m+1}")
    e("ds_write_b128 v6, v[24:27]")
    e("v_lshlrev_b32 v8, 4, v0")
    e(f"s_movk_i32 s{sT+1}, 368")
    e(f"v_cmp_gt_u32 vcc, s{sT+1}, v0")
    e(f"s_lshr_b32 s{sT}, s{sI}, 2")
    e(f"s_mul_i32 s{sT+2}, s{sT}, 5888")
    e("v_cndmask_b32 v9, v7, v8, vcc")
    e("s_waitcnt lgkmcnt(0)")
    e("s_barrier")
    e(f"ds_read_b128 v[24:27], v8 offset:{STG}")
    e("s_waitcnt lgkmcnt(0)")
    e(f"buffer_store_dwordx4 v[24:27], v9, s[{S_WS}:{S_WS+3}], s{sT+2} offen sc0 sc1")
    st(96)
    e(f"s_lshl_b32 s{sT}, s{sT}, 2")
    e("v_mov_b32 v8, 1")
    e("s_waitcnt vmcnt(0)")
    e("s_barrier")
    e(f"s_cmp_lg_u32 s{sWAVE}, 0")
    e("s_cbranch_scc1 L_noflag")
    e("s_mov_b64 exec, 1")
    e(f"buffer_store_dword v8, off, s[{S_A}:{S_A+3}], s{sT} sc0 sc1")
    e("s_mov_b64 exec, -1")
    lab("L_noflag")
    if ST:
        st(98); e("s_waitcnt vmcnt(0)"); st(100,True)
        dump([10,92,94,96,98,100],1,2)
    e("s_branch L_aux_done")
    sec("pref")
    lab("L_prefetch")
    e("s_waitcnt lgkmcnt(0)")
    if opt.pdel: e(f"s_sleep {opt.pdel}")
    if opt.pf:
        e(f"s_cmp_lg_u32 s{sSLOT}, 31")
        e("s_cbranch_scc1 L_pf2")
        srd(S_A,P_B1,3328); srd(S_B,P_W2,3328); srd(S_WS,P_WS,EPOCH+8192)
        e("v_lshlrev_b32 v3, 7, v0")
        e(f"buffer_load_dword v12, v3, s[{S_A}:{S_A+3}], 0 offen")
        e(f"buffer_load_dword v13, v3, s[{S_B}:{S_B+3}], 0 offen")
        e(f"s_mov_b32 s{sT}, {EPOCH}")
        e(f"buffer_load_dword v14, v3, s[{S_WS}:{S_WS+3}], s{sT} offen")
        lab("L_pf2")
        srd(S_W,P_W,1664*3328)
        if opt.foldx:
            e(f"s_cmp_lt_u32 s{sXCD}, 7")
            e(f"s_cselect_b32 s{sT+2}, 27, 26")
        else:
            e(f"s_cmp_lt_u32 s{sXCD}, 4")
            e(f"s_cselect_b32 s{sT+2}, 27, 26")
            e(f"s_cmp_lt_u32 s{sXCD}, 3")
            e(f"s_cselect_b32 s{sT+2}, 28, s{sT+2}")
        e(f"s_sub_u32 s{sT}, s{sSLOT}, s{sT+2}")
        e(f"s_sub_u32 s{sT+2}, 32, s{sT+2}")
        e(f"s_mul_i32 s{sT+1}, s{sXCD}, 26")
        e(f"s_lshr_b32 s{sT+1}, s{sT+1}, 3")
        e(f"s_lshl_b32 s{sT+1}, s{sT+1}, 7")
        for u in range(3):
            e(f"v_add_u32 v3, {512*u}, v0")
            e(f"v_mul_u32_u24 v3, s{sT+2}, v3")
            e(f"v_add_u32 v3, s{sT}, v3")
            e("v_lshrrev_b32 v4, 2, v3")
            if opt.pskip: e(f"v_add_u32 v4, {opt.pskip}, v4")
            e("v_and_b32 v3, 3, v3")
            e(f"v_mul_u32_u24 v4, 3328, v4")
            e("v_lshl_add_u32 v3, v3, 7, v4")
            e(f"buffer_load_dword v{9+u}, v3, s[{S_W}:{S_W+3}], s{sT+1} offen")
            if u<2 and opt.pbar: e("s_barrier")
    e("s_branch L_aux_done")
    sec("fold")
    lab("L_aux_done")
    e(f"s_cmp_lt_u32 s{sWAVE}, 4")
    e("s_cbranch_scc1 L_end")
    srd(S_TBL,P_TBL,128000); srd(S_IDX,P_IDX,106496)
    rowidx_load()
    e(f"v_mov_b32 v7, {FLAGS}")
    e("v_mov_b32 v8, 4")
    e("v_mov_b32 v9, 0")
    e(f"ds_write_b32 v7, v8 offset:{F_RED}")
    e(f"ds_write_b32 v7, v8 offset:{F_G}")
    e(f"ds_write_b32 v7, v8 offset:{F_S1}")
    e(f"ds_write_b32 v7, v9 offset:{F_CW}")
    e(f"ds_write_b32 v7, v9 offset:{F_CW2}")
    e("s_waitcnt vmcnt(0)")
    e("v_lshlrev_b32 v29, 7, v29")
    x0_addrs()
    e("s_branch L_help_x0")
    lab("L_end")
    e("s_endpgm")
    sec("tail")
    L.append('.section .rodata,"a"'); L.append(".p2align 6"); L.append(f".amdhsa_kernel {KN}")
    for x in ["next_free_vgpr 256","next_free_sgpr 102","accum_offset 256","group_segment_fixed_size 0","kernarg_size 88",
              "user_sgpr_count 2","user_sgpr_kernarg_segment_ptr 1","system_sgpr_workgroup_id_x 1"]:
        L.append("  .amdhsa_"+x)
    L.append(".end_amdhsa_kernel")
    return "\n".join(sum((SEC.get(k,[]) for k in order+["tail"]),[]))+"\n"

if __name__=="__main__":
    ap=argparse.ArgumentParser()
    ap.add_argument("-o",default="k.s")
    for k,d in dict(zb2=22,zpk=0,hprio=0,tpk=0,foldx=1,rp=1,pdel=0,cp26=1,pbar=1,lay=1,b2g=1,cst=0,bgate=0,look=2,bstep=0,bstep2=11,bn=1,dper=1,dpre=2,inv=0,zmid=15,csc=0,gateC=1,gq=0,rowx=1,wstop=5,wrest=16,bq=3,xlds=1,xgap=0,atid=1,xsl=0,pskip=128,d2late=1,wper=4,its=0,sched=0,nog=0,not_=0,c2=0,noz=0,lateb=1,dly=4,pst=0,enc=0,encrole=0,encwg=0,encwave=0,nocin=0,gcyc=0,psleep=4,now=0,stamps=0,pf=1,cpf=1,prio=1,bound=2000000,zsplit=15,zbar=17,nt0=6,tb=444,n0=4,nt1=4,d1late=0,trim=1,wsched=0).items(): ap.add_argument("--"+k,type=int,default=d)
    opt=ap.parse_args()
    assert opt.zsplit==opt.zmid
    for t in range(512): assert (t*5042)>>16==t//13, t
    open(opt.o,"w").write(build(opt))
```

```python
import sys, argparse, math, struct

class Q:
    def __init__(s,cap): s.ops=[]; s.cap=cap; s.done=0
    def issue(s,name): s.ops.append(name)
    def need(s,*names):
        r=99
        for name in names:
            i=len(s.ops)-1-s.ops[::-1].index(name)
            r=min(r,len(s.ops)-1-i)
        r=min(r,s.cap)
        s.done=max(s.done,len(s.ops)-r)
        return r
    def pending(s,*names):
        return any(len(s.ops)-1-s.ops[::-1].index(n)>=s.done for n in names)

WIMG=0; GRAN=65536; EPOCH=0x50000; STAMP=0x100000; WS_SIZE=0x200000
STG=49152; RING=128000; FLAGS=160768; CINW=49152
F_IT9,F_RED,F_G,F_PRE,F_S1,F_CW,F_CW2=0,4,8,12,16,20,24
C1=-2*math.sqrt(2/math.pi)*math.log2(math.e); C2=C1*0.044715
def f2u(x): return struct.unpack('<I',struct.pack('<f',x))[0]
KN="standalone__deep_cross_xdeepfm__recsys_kernel"

sWAVE,sXCD,sSLOT,sCB,sRB=3,4,5,7,8
P_IDX,P_TBL,P_CIN,P_WOUT,P_W,P_B1,P_W2,P_BO=16,18,20,22,24,26,28,30
P_OUT,P_DBG,P_WS=32,34,36
S_IDX,S_TBL,S_W,S_WS,S_A,S_B=40,44,48,52,56,60
sRING,sWR1,sWR2,sTM=64,65,15,14
sT=66

def pair_of(n):
    if n<169: dlt,m=divmod(n,13)
    else: dlt,m=13,n-169
    r=2*m
    return r,(r+dlt)%26

def build(opt):
    SEC={"entry":[]}; order=["entry","dnn0","hpro","pref","fold0","dnn","help","fold"]
    class LL:
        cur="entry"
        def append(s,x): SEC.setdefault(s.cur,[]).append(x)
    L=LL()
    def sec(n): L.cur=n
    cnt=[0]; lastw={}
    def e(x):
        L.append("    "+x)
        cnt[0]+= (int(x.split()[1])+1) if x.startswith("s_nop") else 1
    def hz(key,n):
        d=cnt[0]-lastw[key]
        if d<n: e(f"s_nop {n-d-1}")
    def lab(x): L.append(x+":")
    def cm(x): L.append("    ; "+x)
    E=lambda x:(lambda: e(x))
    ST=opt.stamps
    def srd(d,p,size):
        e(f"s_mov_b32 s{d}, s{p}"); e(f"s_mov_b32 s{d+1}, s{p+1}")
        e(f"s_mov_b32 s{d+2}, {size}"); e(f"s_mov_b32 s{d+3}, 0x20000")
    def st(r,wait=False):
        if ST:
            e(f"s_memrealtime s[{r}:{r+1}]")
            if wait: e("s_waitcnt lgkmcnt(0)")
    def dump(regs,area=0,role=0):
        if opt.enc:
            delay(regs,role); return
        dump_(regs,area)
    dl=[0]
    def delay(regs,role):
        dl[0]+=1; n=dl[0]
        e("s_mov_b64 exec, -1")
        e("s_waitcnt lgkmcnt(0)")
        if opt.enc==99:
            if role!=1: return
            srd(S_A,P_DBG,256)
            e("s_not_b32 s12, s10")
            e("v_mov_b32 v244, s12")
            e(f"v_mov_b32 v245, s{regs[10]}")
            e("v_mov_b32 v246, 1")
            e("s_mov_b64 exec, 1")
            e(f"buffer_atomic_umax v244, off, s[{S_A}:{S_A+3}], 0 offset:240 sc1")
            e(f"buffer_atomic_umax v245, off, s[{S_A}:{S_A+3}], 0 offset:244 sc1")
            e("s_waitcnt vmcnt(0)")
            e(f"buffer_atomic_add v246, off, s[{S_A}:{S_A+3}], 0 offset:248 sc0 sc1")
            e("s_waitcnt vmcnt(0)")
            e("v_readfirstlane_b32 s12, v246")
            e("s_cmp_lg_u32 s12, 1023")
            e(f"s_cbranch_scc1 L_dly{n}_x")
            e(f"buffer_load_dwordx2 v[244:245], off, s[{S_A}:{S_A+3}], 0 offset:240 sc1")
            e("s_waitcnt vmcnt(0)")
            e("v_readfirstlane_b32 s12, v244")
            e("v_readfirstlane_b32 s13, v245")
            e("s_not_b32 s12, s12")
            e("s_sub_u32 s12, s13, s12")
        else:
            if role!=opt.encrole: return
            e(f"s_cmp_lg_u32 s2, {opt.encwg}")
            e(f"s_cbranch_scc1 L_dly{n}_x")
            e(f"s_cmp_lg_u32 s{sWAVE}, {opt.encwave}")
            e(f"s_cbranch_scc1 L_dly{n}_x")
            if opt.enc in (96,97):
                e(f"s_load_dwordx8 s[76:83], s[{P_DBG}:{P_DBG+1}], 64")
                e("s_waitcnt lgkmcnt(0)")
                e("s_mov_b32 s12, s76"); e("s_mov_b32 s13, s76")
                for k in range(1,8):
                    e(f"s_min_u32 s12, s12, s{76+k}"); e(f"s_max_u32 s13, s13, s{76+k}")
                if opt.enc==96: e("s_mov_b32 s13, s10")
                e("s_sub_u32 s12, s13, s12")
                e("s_min_u32 s12, s12, 2000")
            else: e(f"s_sub_u32 s12, s{regs[opt.enc]}, s10")
        e("s_mul_i32 s12, s12, 100")
        e("s_memrealtime s[66:67]")
        e("s_waitcnt lgkmcnt(0)")
        e("s_add_u32 s12, s12, s66")
        lab(f"L_dly{n}")
        e("s_sleep 8")
        e("s_memrealtime s[66:67]")
        e("s_waitcnt lgkmcnt(0)")
        e("s_sub_u32 s13, s66, s12")
        e("s_cmp_lt_i32 s13, 0")
        e(f"s_cbranch_scc1 L_dly{n}")
        lab(f"L_dly{n}_x")
        e("s_mov_b64 exec, -1")
    def dump_(regs,area=0):
        e("s_mov_b64 exec, -1")
        e("s_waitcnt lgkmcnt(0)")
        e("s_lshl_b32 s12, s2, 3")
        e(f"s_add_u32 s12, s12, s{sWAVE}")
        e("s_lshl_b32 s12, s12, 6")
        e(f"s_add_u32 s12, s12, {STAMP+area*0x40000}")
        regs=list(regs)+[regs[0]]*(12-len(regs))
        for i,r in enumerate(regs): e(f"v_mov_b32 v{244+i}, s{r}")
        e("s_mov_b64 exec, 1")
        for i in range(3):
            e(f"buffer_store_dwordx4 v[{244+4*i}:{247+4*i}], off, s[{S_WS}:{S_WS+3}], s12 offset:{16*i}")
        e("s_mov_b64 exec, -1")
    def lds_spin(name,vaddr,vtmp,off,target,sleep=0):
        e(f"s_mov_b32 s{sT+4}, {opt.bound*8}")
        lab(name)
        e(f"ds_read_b32 v{vtmp}, v{vaddr} offset:{off}")
        e("s_waitcnt lgkmcnt(0)")
        e(f"v_readfirstlane_b32 s{sT+5}, v{vtmp}")
        e(f"s_cmp_ge_u32 s{sT+5}, {target}")
        e(f"s_cbranch_scc1 {name}_x")
        if sleep: e(f"s_sleep {sleep}")
        e(f"s_sub_u32 s{sT+4}, s{sT+4}, 1")
        e(f"s_cbranch_scc0 {name}")
        lab(name+"_x")

    IV=16; IA=24
    def rec_addrs():
        e(f"s_lshl_b32 s{sT+5}, s{sT}, 7")
        e(f"s_add_u32 s{sT+5}, s{sT+5}, {RING+4096}")
        e(f"v_lshl_add_u32 v7, v7, 3, s{sT+5}")
        e("v_mul_u32_u24 v9, 7, v8")
        e("v_and_b32 v8, 1, v8")
        for par in range(2):
            d=IA+2*par
            if par:
                e("v_xor_b32 v8, 1, v8"); e("v_add_u32 v9, 1, v9")
            e("v_lshrrev_b32 v10, 1, v9")
            e(f"v_lshl_add_u32 v{d}, v10, 8, v7")
            e(f"v_lshl_add_u32 v{d}, v8, 14, v{d}")
            e("v_lshlrev_b32 v10, 1, v8")
            e(f"v_xor_b32 v10, s{sT+2}, v10")
            e(f"v_lshl_add_u32 v{d}, v10, 1, v{d}")
            e(f"v_xor_b32 v{d+1}, 2, v{d}")
            e(f"v_add_u32 v{d+1}, 8192, v{d+1}")
    sROW=6; sE=38
    def rowidx_load():
        e(f"s_sub_u32 s{sT+6}, s{sWAVE}, 4")
        if opt.rowx:
            e(f"s_lshl2_add_u32 s{sROW}, s{sSLOT}, s{sT+6}")
            e(f"s_lshl_b32 s{sT+6}, s{sXCD}, 7")
            e(f"s_add_u32 s{sROW}, s{sROW}, s{sT+6}")
        else: e(f"s_lshl2_add_u32 s{sROW}, s2, s{sT+6}")
        e(f"s_mul_i32 s{sT+6}, s{sROW}, 104")
        e("v_lshlrev_b32 v30, 2, v2")
        e(f"buffer_load_dword v29, v30, s[{S_IDX}:{S_IDX+3}], s{sT+6} offen")
    for x in """xDeepFM (CIN + DNN) in one launch for gfx950; the instruction stream is emitted by my own generator script.
Kernarg: idx, table, ws_cin, w_cin_out, w_dnn1, b_dnn1, w_dnn2, b_out, out, debug, ws (8-byte pointers).
Math (exact regrouping of the reference): with Z = sym(x0 (x) x0) per (row, d),
  logit_cin = sum_d sum_i (W1s Z)_i * (w1_i + (M2 x0)_i + (Gs Z)_i),  M3 = w3.W3, M2 = w2.W2, G = W2.M3.
Workgroups g = xcd + 8*slot, 8 waves each:
  slot < 26 : waves 0-3 run a 128x64 tile of gelu(x0*W+b).w2 (table resident in LDS, K split over the waves,
              W streamed by LDS-DMA + transposing reads); partial logits leave as tagged 8-byte words in ws.
  slot 26   : folds the CIN weights (7 workgroups, published in ws, flags in debug); other slots warm L2.
  waves 4-7 of every workgroup evaluate the CIN polynomial of one row each, add the 26 partial logits, store out.
Hand-off tags: each row owns an epoch word in ws; tag = epoch + 1, the consumer advances it after use.""".split("\n"): L.append("; "+x)
    L.append("; @launch grid=(256,1,1) block=(512,1,1) lds=163840")
    L.append('.amdgcn_target "amdgcn-amd-amdhsa--gfx950"')
    L.append(".text"); L.append(f".globl {KN}"); L.append(".p2align 8"); L.append(f".type {KN},@function")
    lab(KN)
    e("s_load_dwordx16 s[16:31], s[0:1], 0")
    e("s_load_dwordx4 s[32:35], s[0:1], 64")
    e("s_load_dwordx2 s[36:37], s[0:1], 80")
    st(10)
    e("s_cmp_ge_u32 s2, 256")
    e("s_cbranch_scc1 L_end")
    e("v_lshrrev_b32 v1, 6, v0")
    e("v_and_b32 v2, 63, v0")
    e(f"v_readfirstlane_b32 s{sWAVE}, v1")
    e(f"s_and_b32 s{sXCD}, s2, 7")
    e(f"s_lshr_b32 s{sSLOT}, s2, 3")
    e(f"s_cmp_ge_u32 s{sSLOT}, 26")
    e("s_cbranch_scc1 L_aux0")
    sec("pref"); lab("L_aux0")
    e(f"s_cmp_gt_u32 s{sSLOT}, {26 if opt.foldx else 27}")
    e("s_cbranch_scc1 L_prefetch")
    if opt.cpf:
        e(f"s_getpc_b64 s[{S_IDX}:{S_IDX+1}]")
        lab("L_pc")
        e(f"s_sub_u32 s{S_IDX}, s{S_IDX}, L_pc-{KN}")
        e(f"s_subb_u32 s{S_IDX+1}, s{S_IDX+1}, 0")
        e(f"s_mov_b32 s{S_IDX+2}, L_end-{KN}")
        e(f"s_mov_b32 s{S_IDX+3}, 0x20000")
        e("v_lshlrev_b32 v3, 7, v0")
        e(f"buffer_load_dword v255, v3, s[{S_IDX}:{S_IDX+3}], 0 offen")
    sec("entry")
    e(f"s_mul_i32 s6, s{sXCD}, 26")
    e(f"s_add_u32 s6, s6, s{sSLOT}")
    e(f"s_and_b32 s{sRB}, s6, 7")
    e(f"s_and_b32 s{sT}, s{sWAVE}, 1")
    e(f"s_lshr_b32 s{sT+2}, s{sWAVE}, 1")
    e(f"s_lshl2_add_u32 s{sT+4}, s{sRB}, s{sT+2}")
    e(f"s_mul_i32 s{sT+4}, s{sT+4}, 3328")
    e(f"s_lshl_b32 s{sT+5}, s{sT}, 11")
    e(f"s_add_u32 s{sT+4}, s{sT+4}, s{sT+5}")
    e(f"s_lshl_b32 s{sT+3}, s{sT+2}, 13")
    e(f"s_add_u32 s{sT+3}, s{sT+3}, s{sT+5}")
    e(f"s_add_u32 m0, s{sT+3}, {RING+4096}")
    e("v_lshlrev_b32 v6, 4, v2")
    e("v_lshrrev_b32 v3, 3, v2")
    e("v_lshrrev_b32 v4, 4, v2")
    e("v_and_b32 v10, 7, v2")
    e(f"s_lshl_b32 s{sT+1}, s{sT}, 2")
    e("v_xor_b32 v5, v10, v4")
    e(f"v_xor_b32 v5, s{sT+1}, v5")
    e("v_lshlrev_b32 v5, 4, v5")
    e("v_lshl_add_u32 v5, v3, 7, v5")
    e(f"s_lshl1_add_u32 s{sT+3}, s{sSLOT}, s{sT+2}")
    e(f"s_lshl1_add_u32 s{sTM}, s{sT+3}, s{sT}")
    e(f"s_lshl_b32 s{sTM}, s{sTM}, 10")
    e(f"s_sub_u32 s{sWR2}, {63*2048}, s{sT+5}")
    e(f"s_lshr_b32 s{sT+5}, s{sT+5}, 1")
    e(f"s_add_u32 s{sWR1}, s{sWR2}, s{sT+5}")
    e(f"s_mov_b32 s{S_IDX+2}, 106496"); e(f"s_mov_b32 s{S_IDX+3}, 0x20000")
    e(f"s_mov_b32 s{S_TBL+2}, 128000"); e(f"s_mov_b32 s{S_TBL+3}, 0x20000")
    e(f"s_mov_b32 s{sT+3}, {opt.n0-1}")
    e("s_waitcnt lgkmcnt(0)")
    if opt.pst: st(84)
    e(f"s_mov_b64 s[{S_IDX}:{S_IDX+1}], s[{P_IDX}:{P_IDX+1}]")
    e(f"s_mov_b64 s[{S_TBL}:{S_TBL+1}], s[{P_TBL}:{P_TBL+1}]")
    e(f"buffer_load_dwordx4 v6, s[{S_IDX}:{S_IDX+3}], s{sT+4} offen lds")
    if opt.trim:
        e(f"s_cmp_eq_u32 s{sT}, 0")
        e("s_cselect_b64 exec, -1, 0xffff")
    e(f"buffer_load_dwordx4 v6, s[{S_IDX}:{S_IDX+3}], s{sT+4} offen offset:1024 lds")
    if opt.trim: e("s_mov_b64 exec, -1")
    nl=[0]
    def tloop(n=None,vm=None):
        nl[0]+=1; name=f"L_tl{nl[0]}"
        if n is not None:
            if n==0: return
            e(f"s_mov_b32 s{sT+3}, {n-1}")
        lab(name)
        e(f"s_mov_b32 m0, s{sTM}")
        e(f"s_add_u32 s{sTM}, s{sTM}, 8192")
        e(f"buffer_load_dwordx4 v5, s[{S_TBL}:{S_TBL+3}], m0 offen lds")
        e(f"s_cmp_ge_u32 s{sTM}, s{sWR1}")
        e(f"s_cselect_b32 s{sT+5}, s{sWR2}, 0")
        e(f"s_sub_u32 s{sTM}, s{sTM}, s{sT+5}")
        e(f"s_sub_u32 s{sT+3}, s{sT+3}, 1")
        e(f"s_cbranch_scc0 {name}")
        if vm is not None:
            for t in range(n): vm.issue("tbl")
    tloop()
    e(f"s_cmp_ge_u32 s{sWAVE}, 4")
    e("s_cbranch_scc1 L_help_pro")
    sec("dnn0")
    tbl=tloop

    vWe,vWo=1,3
    AD=8; AF=16; F0=48; REC=80; ACC=128
    VT=106; PB,PC=110,111; BI=112; W2P=112; EV=120; VR=122; WA=123; KC=126; RA1=5; VB=6
    SEL=80; ONE=86; vC1=87; S0=88; S1=89; TA=90
    acc=lambda lt,ct: ACC+(lt*4+ct)*4
    Fr=lambda j,ct: F0+(j&1)*16+ct*4
    afr=lambda lt: AF+4*lt
    vm=Q(63); lg=Q(15)
    cm("---- DNN wave prologue ----")
    for x in ["idx0","idx3"]+["tbl"]*opt.n0: vm.issue(x)
    e(f"s_lshr_b32 s{sCB}, s6, 3")
    e(f"s_lshl_b32 s{sRING}, s{sWAVE}, 13")
    e(f"s_add_u32 s{sRING}, s{sRING}, {RING}")
    e(f"s_lshl_b32 s{sT+7}, s{sWAVE}, 5")
    e(f"v_add_u32 v9, s{sT+7}, v3")
    e("v_mul_u32_u24 v9, 3328, v9")
    e("v_lshlrev_b32 v11, 1, v4")
    e("v_and_b32 v11, 2, v11")
    e("v_xor_b32 v11, v11, v10")
    e("v_lshl_add_u32 v1, v11, 4, v9")
    e(f"s_lshl_b32 s{sT+7}, s{sCB}, 7")
    e(f"v_add_u32 v1, s{sT+7}, v1")
    e("v_xor_b32 v3, 64, v1")
    e(f"v_add_u32 v3, {8*3328-1024}, v3")
    srd(S_W,P_W,1664*3328)
    sWO=12
    def d3(j,pc):
        ld=lambda: (e(f"buffer_load_dwordx4 v{vWo if pc&1 else vWe}, s[{S_W}:{S_W+3}], s{sWO} offen offset:{(pc&1)*1024} lds"),vm.issue(f"w{j}_{pc}"))
        if pc&1: return [ld]
        return [E(f"s_add_u32 m0, s{sRING}, {((j&1)*4+pc)*1024}"),E(f"s_mov_b32 s{sWO}, {(128*j+8*pc)*3328}"),ld]
    def dma(j,pcs):
        for pc in pcs:
            for f in d3(j,pc): f()
    dma(0,range(4))
    def bias_loads(ii):
        for i in ii:
            e(f"buffer_load_dwordx2 v[{BI+2*i}:{BI+2*i+1}], v{VB}, s[{S_A}:{S_A+3}], 0 offen offset:{i*32}"); vm.issue(f"bias{i}")
    TB=[opt.n0]+[int(c,16) for c in str(opt.tb)]
    e("s_branch L_dnn_b")
    sec("dnn"); lab("L_dnn_b")
    e(f"v_lshl_add_u32 v{VB}, v4, 3, s{sT+7}")
    e(f"v_mov_b32 v7, {FLAGS}")
    srd(S_A,P_B1,3328)
    if opt.pst: st(86)
    e("v_and_b32 v13, 15, v2")
    e("v_mul_u32_u24 v13, 104, v13")
    e(f"s_lshl2_add_u32 s{sT+5}, s{sT+2}, {RING+4096}")
    e(f"v_add_u32 v13, s{sT+5}, v13")
    e(f"v_xor_b32 v9, s{sWAVE}, v4")
    e("v_lshl_add_u32 v24, v9, 13, v13")
    e("v_add_u32 v25, 1664, v24")
    e("v_bfe_u32 v9, v2, 2, 2")
    e("v_lshlrev_b32 v13, 7, v9")
    e("v_lshl_add_u32 v13, v4, 10, v13")
    e("v_lshrrev_b32 v9, 1, v9")
    e("v_lshl_add_u32 v13, v9, 5, v13")
    e("v_and_b32 v9, 1, v4")
    e("v_lshl_add_u32 v13, v9, 6, v13")
    e("v_and_b32 v9, 3, v2")
    e("v_lshl_add_u32 v13, v9, 3, v13")
    e(f"v_add_u32 v{VT}, s{sRING}, v13")
    e(f"v_xor_b32 v{VT+1}, 32, v{VT}")
    e(f"v_xor_b32 v{VT+2}, 64, v{VT}")
    e(f"v_xor_b32 v{VT+3}, 0x60, v{VT}")
    e(f"v_add_u32 v{KC}, s{sT+1}, v4")
    e(f"v_lshl_or_b32 v{KC}, v{KC}, 16, v{KC}")
    e(f"s_mov_b32 s{sT+6}, 0x00070007")
    e(f"s_waitcnt vmcnt({vm.need('idx3')})")
    if opt.pst: st(88)
    e("s_barrier")
    if opt.pst: st(90)
    RW=lambda t,j: 160+t*14+j
    for j in range(0,13,2):
        for t in range(2):
            e(f"ds_read2_b32 v[{RW(t,j)}:{RW(t,j)+1}], v{24+t} offset0:{2*j} offset1:{2*j+2}")
    tbl(TB[1],vm)
    srd(S_WS,P_WS,WS_SIZE)
    srd(S_B,P_W2,3328)
    e("s_waitcnt lgkmcnt(0)")
    e("s_barrier")
    st(76)
    tbl(TB[2],vm)
    for j in range(13):
        if j==6: tbl(TB[3],vm)
        d=REC+2*j
        e(f"v_lshl_or_b32 v{d}, v{RW(1,j)}, 16, v{RW(0,j)}")
        e(f"v_lshrrev_b32 v13, 1, v{d}")
        e(f"v_and_b32 v13, s{sT+6}, v13")
        e(f"v_lshl_or_b32 v{d}, v{d}, 3, v13")
        e(f"v_mov_b32 v{d+1}, v{d}")
        if j: e(f"v_permlane32_swap_b32 v{d-2}, v{d-1}")
    e("s_nop 1")
    e(f"v_permlane32_swap_b32 v{REC+24}, v{REC+25}")
    def bc(j,h):
        A=REC+2*j+h; B=PC if h else PB
        return [E(f"v_mov_b32 v{B}, v{A}")],[E(f"v_permlane16_swap_b32 v{A}, v{B}"),E(f"v_xor_b32 v{A}, v{KC}, v{A}"),E(f"v_xor_b32 v{B}, v{KC}, v{B}")]
    def adr(lt,j):
        src={0:REC+2*j,1:PB,2:REC+2*j+1,3:PC}[lt>>1]
        e(f"v_lshlrev_b32_sdwa v{AD+lt}, 4, v{src} dst_sel:DWORD dst_unused:UNUSED_PAD src0_sel:DWORD src1_sel:WORD_{lt&1}")
    def Rop(lt,j): e(f"ds_read_b128 v[{afr(lt)}:{afr(lt)+3}], v{AD+lt}"); lg.issue(f"R{lt}_{j}")
    def Top(j,ct,h4):
        d=Fr(j,ct)+2*h4
        e(f"ds_read_b64_tr_b16 v[{d}:{d+1}], v{VT+ct} offset:{(j&1)*4096+h4*512}"); lg.issue(f"T{j}_{ct}{h4}")
    for h in range(2): bc(0,h)[0][0]()
    e("s_nop 0")
    for h in range(2):
        for f in bc(0,h)[1]: f()
    for lt in range(8): adr(lt,0)
    bc(1,0)[0][0]()
    if ST: e("s_waitcnt lgkmcnt(0)")
    e(f"s_waitcnt vmcnt({vm.need('w0_3')})")
    for ct in range(4): Top(0,ct,0); Top(0,ct,1)
    for f in bc(1,0)[1]: f()
    dma(1,range(4))
    e("s_waitcnt lgkmcnt(0)"); lg.done=len(lg.ops)
    for x in [f"s_xor_b32 s{sT}, s{sWAVE}, 1",f"s_lshl_b32 s{sT}, s{sT}, 12",f"v_lshlrev_b32 v{RA1}, 4, v2",f"v_add_u32 v{WA}, s{sT}, v{RA1}",
              f"v_xor_b32 v{WA+1}, {3<<12}, v{WA}",f"v_xor_b32 v{WA+2}, {2<<12}, v{WA}",f"s_lshl_b32 s{sT}, s{sWAVE}, 12",f"v_add_u32 v{RA1}, s{sT}, v{RA1}",
              f"v_lshrrev_b32 v{VR}, 5, v2","v_and_b32 v0, 15, v2",f"v_lshl_add_u32 v{VR}, v{VR}, 4, v0",f"s_lshl_b32 s{sT}, s{sRB}, 7",
              f"s_lshl_b32 s{sT+1}, s{sWAVE}, 5",f"s_add_u32 s{sT}, s{sT}, s{sT+1}",f"v_add_lshl_u32 v{VR}, v{VR}, s{sT}, 3"]: e(x)
    if opt.pst: st(92)
    e(f"s_waitcnt vmcnt({vm.need('tbl')})")
    st(78)
    e("s_barrier")
    st(80,True)
    if ST: e("s_memtime s[96:97]"); e("s_waitcnt lgkmcnt(0)")
    if opt.prio: e(f"s_setprio {opt.prio}")
    LT=[2,3,4,5,6,7,0,1]
    for lt in LT: Rop(lt,0)
    def inc(off,nm):
        def f():
            e("s_mov_b64 exec, 1")
            e(f"ds_add_u32 v7, v{ONE} offset:{off}"); lg.issue(nm)
            e("s_mov_b64 exec, -1")
        return f
    def wv(n): return lambda n=n: (e(f"s_waitcnt vmcnt({vm.need(n)})") if vm.pending(n) else None)
    def wl(n): return lambda n=n: (e(f"s_waitcnt lgkmcnt({lg.need(n)})") if lg.pending(n) else None)
    T_=lambda j,ct,h4: (lambda: Top(j,ct,h4))
    def badd(k):
        ct,r=k>>2,k&3; src=BI+2*ct+(r>>1)
        return [E(f"v_and_b32 v0, 0xffff0000, v{src}" if r&1 else f"v_lshlrev_b32 v0, 16, v{src}")]+\
               [(lambda t=t: (hz((t,ct),8),e(f"v_add_f32 v{acc(t,ct)+r}, v{acc(t,ct)+r}, v0"))) for t in range(2)]
    selops=[E("v_and_b32 v0, 15, v2"),E(f"v_lshlrev_b32 v{TA}, 2, v4"),E(f"v_sub_u32 v0, v0, v{TA}"),E(f"s_movk_i32 s{sT+7}, 0x3f80"),
            E(f"v_lshlrev_b32 v{TA}, 4, v0"),E(f"v_and_b32 v{TA}, 16, v{TA}"),E(f"v_lshlrev_b32 v{TA}, v{TA}, s{sT+7}"),E("v_lshrrev_b32 v0, 1, v0"),
            E(f"v_cmp_eq_u32 s[{sT}:{sT+1}], 0, v0"),E(f"v_cmp_eq_u32 s[{sT+2}:{sT+3}], 1, v0"),E(f"v_mov_b32 v{SEL}, 0"),E(f"v_mov_b32 v{SEL+1}, 0"),
            E(f"v_cndmask_b32 v{SEL+2}, 0, v{TA}, s[{sT}:{sT+1}]"),E(f"v_cndmask_b32 v{SEL+3}, 0, v{TA}, s[{sT+2}:{sT+3}]"),E(f"v_mov_b32 v{SEL+4}, 0"),E(f"v_mov_b32 v{SEL+5}, 0")]
    misc=[E(f"s_xor_b32 s{sT}, s{sWAVE}, 1"),E(f"s_lshl_b32 s{sT}, s{sT}, 12"),E(f"v_lshlrev_b32 v{RA1}, 4, v2"),E(f"v_add_u32 v{WA}, s{sT}, v{RA1}"),
          E(f"v_xor_b32 v{WA+1}, {3<<12}, v{WA}"),E(f"v_xor_b32 v{WA+2}, {2<<12}, v{WA}"),E(f"s_lshl_b32 s{sT}, s{sWAVE}, 12"),E(f"v_add_u32 v{RA1}, s{sT}, v{RA1}"),
          E(f"v_mov_b32 v{ONE}, 1"),E(f"v_mov_b32 v{vC1}, {f2u(C1)}"),E(f"v_mov_b32 v{S0}, 0"),E(f"v_mov_b32 v{S1}, 0"),
          E(f"v_lshrrev_b32 v{VR}, 5, v2"),E("v_and_b32 v0, 15, v2"),E(f"v_lshl_add_u32 v{VR}, v{VR}, 4, v0"),E(f"s_lshl_b32 s{sT}, s{sRB}, 7"),
          E(f"s_lshl_b32 s{sT+1}, s{sWAVE}, 5"),E(f"s_add_u32 s{sT}, s{sT}, s{sT+1}"),E(f"v_add_lshl_u32 v{VR}, v{VR}, s{sT}, 3")]
    def w2l(i): return lambda: (e(f"buffer_load_dwordx2 v[{W2P+2*i}:{W2P+2*i+1}], v{VB}, s[{S_B}:{S_B+3}], 0 offen offset:{i*32}"),vm.issue(f"w2_{i}"))
    evl=[E(f"s_mov_b32 s{sT+2}, {EPOCH}"),lambda: (e(f"buffer_load_dwordx2 v[{EV}:{EV+1}], v{VR}, s[{S_WS}:{S_WS+3}], s{sT+2} offen"),vm.issue("ev"))]
    LO=list(range(92,100))
    W2F=[LO[k>>1] if k%2==0 else W2P+(k>>1) for k in range(16)]
    unp=[]
    for k in range(8):
        unp+= [E(f"v_lshlrev_b32 v{LO[k]}, 16, v{W2P+k}"),E(f"v_and_b32 v{W2P+k}, 0xffff0000, v{W2P+k}")]
    def cv(lt):
        a=acc(lt,0); u=lt>>1
        c=[(lambda m=m: (hz((lt,m>>1),8),e(f"v_cvt_pk_bf16_f32 v{a+m}, v{a+2*m}, v{a+2*m+1}"))) for m in range(8)]
        w=[(lambda h=h: (e(f"ds_write_b128 v{WA+u-1}, v[{a+4*h}:{a+4*h+3}] offset:{(u-1)*16384+((lt&1)*2+h)*1024}"),lg.issue("W"))) for h in range(2)]
        return c[:4]+w[:1]+c[4:]+w[1:]
    def bar2():
        e("s_waitcnt lgkmcnt(0)"); lg.done=len(lg.ops)
        if opt.its: e("s_memtime s[92:93]")
        if not opt.pst: st(82)
        e("s_barrier")
        if not opt.pst: st(84)
    ITS={1:76,2:78,3:80,5:82,7:84,9:86,11:88,12:90}
    bl=sum((badd(k) for k in range(16)),[])
    sel2=[(lambda f=f: f()) for f in selops]
    extra={2:[(lambda i=i: bias_loads([i])) for i in range(4)],
           3:[wv('bias3')]+bl[:6],4:bl[6:15],5:bl[15:24],6:bl[24:33],7:bl[33:42],8:bl[42:48],
           9:[w2l(i) for i in range(4)]+evl+misc[8:12],10:selops,11:[]}
    q12=[]
    for j in range(13):
        cm(f"---- iteration {j} ----")
        if opt.its==1 and j in ITS: e(f"s_memtime s[{ITS[j]}:{ITS[j]+1}]")
        if opt.its and j==12: opt.pst=1
        G=[[] for k in range(32)]
        if j<12:
            Ts=[T_(j+1,ct,h4) for ct in range(4) for h4 in range(2)]
            mB,rB=bc(j+1,1)
            G[2]+=mB; G[6]+=rB[:1]; G[7]+=rB[1:2]; G[11]+=rB[2:]
            if j+2<13:
                mA,rA=bc(j+2,0); G[23]+=mA; G[26]+=rA[:1]; G[27]+=rA[1:2]; G[30]+=rA[2:]
            free=[k for k in range(32) if k%4<2]
            seq=[]
            if j==0: seq=[[x] for x in d3(2,0)+d3(2,1)+d3(2,2)+d3(2,3)]+[[wv('w1_3'),Ts[0]]]+[[x] for x in Ts[1:]]
            else:
                seq=[[wv(f'w{j+1}_3'),Ts[0]]]+[[x] for x in Ts[1:]]
                if opt.tpk and j>1: seq=[[wv(f'w{j+1}_3'),Ts[0],Ts[1]],Ts[2:4],Ts[4:6],Ts[6:8]]
                if j+3<13:
                    dd=d3(j+3,0)+d3(j+3,1)+d3(j+3,2)+d3(j+3,3)
                    seq+=[[dd[0]],[dd[1]],[wl(f'T{j+1}_31'),dd[2]]]+[[x] for x in dd[3:]]
            if j==1:
                dd=d3(3,0)+d3(3,1)+d3(3,2)+d3(3,3)
                for k,x in zip((3,7,10,11,14,15,18,19),dd): G[k].append(x)
                seq=seq[:8]+[[]]*0+seq[8:]
                free=free[:8]+[20,21,22,24,25,28,29,31]
            for k,x in zip(free,seq): G[k]+=x
            if j==10: G[17]+=[wl('T11_31'),inc(F_S1,"s1")]
            ex=list(extra.get(j,[]))
            if j==11: ex=[E("s_waitcnt vmcnt(0)")]+unp
            lo,hi=(5,23) if j in (3,4,5,6,7,8) else (4,32)
            k=lo
            while ex:
                cand=[g for g in range(k,hi) if len(G[g])+(1 if g%4>=2 else 0)<2]
                if not cand:
                    G[hi-2]+=ex; break
                k=cand[0]; G[k].append(ex.pop(0))
        for g,lt in enumerate(LT):
            if g%2==0:
                needs=[f"R{lt}_{j}",f"R{LT[g+1]}_{j}"]+([f"T{j}_31"] if g==0 else [])
                if lg.pending(*needs): e(f"s_waitcnt lgkmcnt({lg.need(*needs)})")
            for ct in range(4):
                c=f"v[{acc(lt,ct)}:{acc(lt,ct)+3}]"
                e(f"v_mfma_f32_16x16x32_bf16 {c}, v[{Fr(j,ct)}:{Fr(j,ct)+3}], v[{afr(lt)}:{afr(lt)+3}], {0 if j==0 else c}")
                lastw[(lt,ct)]=cnt[0]
                if j<12:
                    if ct==2: adr(lt,j+1)
                    if ct==3: Rop(lt,j+1)
                    for f in G[4*g+ct]: f()
                else:
                    if g==0 and ct==2: bar2()
                    n=3 if (g,ct)!=(7,3) else 99
                    if not (ct==0 and g<=6):
                        for f in q12[:n]: f()
                        q12=q12[n:]
            if j==12 and lt>=2:
                q12+=cv(lt)
                if lt==7: q12+= [inc(F_RED,"inc"),E(f"s_mov_b32 s{sT+2}, {f2u(C2)}")]
    if not opt.pst: st(86)
    if ST: e("s_memtime s[98:99]")
    lds_spin("L_red",7,0,F_RED,4)
    if not opt.pst: st(88,True)
    lg=Q(15)
    adds=[]
    for t in range(2):
        for u in (1,2,3):
            for h in range(2):
                r=acc(2*u+t,0)+4*h
                e(f"ds_read_b128 v[{r}:{r+3}], v{RA1} offset:{(u-1)*16384+(t*2+h)*1024}"); lg.issue(f"p{t}{u}{h}")
                for sx in range(2):
                    def add(t=t,u=u,h=h,r=r,sx=sx):
                        if lg.pending(f"p{t}{u}{h}"): e(f"s_waitcnt lgkmcnt({lg.need(f'p{t}{u}{h}')})")
                        c=f"v[{acc(t,2*h+sx)}:{acc(t,2*h+sx)+3}]"; sl=SEL if sx else SEL+2
                        e(f"v_mfma_f32_16x16x32_bf16 {c}, v[{sl}:{sl+3}], v[{r}:{r+3}], {c}"); lastw[(t,2*h+sx)]=cnt[0]
                    adds.append(add)
    for f in adds[:13]: f()
    adds=adds[13:]
    if opt.gp>=0: e(f"s_setprio {opt.gp}")
    T=F0
    for q in range(8):
        t,ct=q>>2,q&3
        a=acc(t,ct)
        def A(n=2):
            for k in range(n):
                if adds: adds.pop(0)()
        hz((t,ct),8)
        for r in range(4): e(f"v_mul_f32 v{T+r}, v{a+r}, v{a+r}")
        A(1)
        for r in range(4): e(f"v_fma_f32 v{T+r}, v{T+r}, s{sT+2}, v{vC1}")
        A(1)
        for r in range(4): e(f"v_mul_f32 v{T+r}, v{T+r}, v{a+r}")
        A(1)
        for r in range(4): e(f"v_exp_f32 v{T+r}, v{T+r}")
        A(1)
        for r in range(4): e(f"v_mul_f32 v{a+r}, v{a+r}, v{W2F[4*ct+r]}")
        for r in range(4): e(f"v_add_f32 v{T+r}, 1.0, v{T+r}")
        for r in range(4): e(f"v_rcp_f32 v{T+r}, v{T+r}")
        if adds: A(1)
        else: e("s_nop 0")
        for r in range(4): e(f"v_fmac_f32 v{S1 if t else S0}, v{a+r}, v{T+r}")
    e(f"s_movk_i32 s{sT}, 0xff")
    e(f"v_add_u32 v{EV}, 1, v{EV}")
    e(f"v_permlane32_swap_b32 v{S0}, v{S1}")
    e(f"v_add_f32 v{S0}, v{S0}, v{S1}")
    e(f"v_mov_b32 v{S1}, v{S0}")
    e(f"s_lshl_b32 s{sT+1}, s{sCB}, 13")
    e(f"s_add_u32 s{sT+1}, s{sT+1}, {GRAN}")
    e(f"v_permlane16_swap_b32 v{S0}, v{S1}")
    e(f"v_add_f32 v{S0}, v{S0}, v{S1}")
    e(f"v_bfi_b32 v{EV+1}, s{sT}, v{EV+1}, v{S0}")
    e("s_mov_b32 exec_lo, 0xffff")
    e("s_mov_b32 exec_hi, 0xffff")
    e(f"buffer_store_dwordx2 v[{EV}:{EV+1}], v{VR}, s[{S_WS}:{S_WS+3}], s{sT+1} offen sc0 sc1")
    if ST:
        if opt.gcyc: e("s_memtime s[98:99]")
        if not opt.pst: st(90); e("s_waitcnt vmcnt(0)"); st(92,True)
        e("s_waitcnt lgkmcnt(0)"); e("s_sub_u32 s98, s98, s96")
        if opt.its:
            for r in range(76,94,2):
                e(f"s_sub_u32 s{r}, s{r}, s96"); e(f"s_mul_i32 s{r}, s{r}, 100"); e(f"s_add_u32 s{r}, s{r}, s10")
        dump([10,76,78,80,82,84,86,88,90,92,98])
    e("s_endpgm")

    sec("hpro")
    def late_sloads():
        e(f"s_lshl_b32 s{sT+8}, s{sROW}, 3")
        e(f"s_add_u32 s{sT+8}, s{sT+8}, {EPOCH}")
        e(f"s_load_dwordx2 s[{sE}:{sE+1}], s[{P_WS}:{P_WS+1}], s{sT+8}")
        e(f"s_load_dword s9, s[{P_BO}:{P_BO+1}], 0")
    X=32
    def x0_addrs():
        e("v_and_b32 v3, 31, v2")
        e("v_lshlrev_b32 v4, 2, v3")
        for r in range(26): e(f"v_readlane_b32 s{76+r}, v29, {r}")
        e("s_mov_b32 exec_hi, 0")
        for r in range(26): e(f"v_xor_b32 v{X+r}, s{76+r}, v4")
        e("s_mov_b64 exec, -1")
        e("s_mov_b32 exec_lo, 0")
        for r in range(26): e(f"v_xor_b32 v{X+r}, s{76+(r+1)%26}, v4")
        e("s_mov_b64 exec, -1")
    lab("L_help_pro")
    rowidx_load()
    tloop(opt.nt0-opt.n0)
    e(f"v_mov_b32 v7, {FLAGS}")
    e("v_mov_b32 v8, 0"); e("v_mov_b32 v9, 0")
    e("ds_write2_b64 v7, v[8:9], v[8:9] offset1:1")
    e("ds_write2_b64 v7, v[8:9], v[8:9] offset0:2 offset1:3")
    e(f"s_waitcnt vmcnt({opt.nt0+1})")
    e("s_barrier")
    tloop(opt.nt1)
    e("s_waitcnt lgkmcnt(0)")
    e("s_barrier")
    if opt.trim:
        e(f"s_cmp_eq_u32 s{sWAVE}, 4")
        e(f"s_cselect_b32 s{sT+3}, {16-opt.nt0-opt.nt1-1}, {16-opt.nt0-opt.nt1-2}")
        tloop()
    else: tloop(16-opt.nt0-opt.nt1)
    e("s_branch L_help_b")
    sec("help"); lab("L_help_b")
    e(f"s_waitcnt vmcnt({15-opt.n0})")
    if opt.xlds:
        e("v_lshlrev_b32 v8, 3, v29"); e("v_and_b32 v8, 0x70, v8"); e("v_lshl_or_b32 v29, v29, 7, v8")
    else: e("v_lshlrev_b32 v29, 7, v29")
    x0_addrs()
    e("s_waitcnt vmcnt(0)")
    e("s_barrier")
    if opt.xsl: e(f"s_sleep {opt.xsl}")
    if opt.xlds:
        for r in range(26):
            e(f"ds_read_b32 v{X+r}, v{X+r}")
            if opt.xgap and r%opt.xgap==opt.xgap-1: e("s_sleep 1")
        e("s_branch L_help_main")
    lab("L_help_x0")
    for r in range(26):
        e(f"buffer_load_dword v{X+r}, v{X+r}, s[{S_TBL}:{S_TBL+3}], 0 offen")
    lab("L_help_main")
    srd(S_WS,P_WS,WS_SIZE); srd(S_A,P_DBG,256); srd(S_B,P_OUT,2048)
    Z0=8
    ZE=lambda s: Z0+4*s
    ZO=lambda s: Z0+88+4*s
    LE=lambda k: Z0+176+4*k
    LO=lambda k: Z0+184+4*k
    R=200; MT=252
    e("v_lshrrev_b32 v5, 2, v3")
    e("v_mul_u32_u24 v5, 5888, v5")
    e("v_and_b32 v6, 3, v2")
    e("v_lshl_add_u32 v5, v6, 4, v5")
    e("v_lshrrev_b32 v6, 5, v2")
    e("v_lshl_add_u32 v5, v6, 6, v5")
    e("v_mov_b32 v7, 0x7fff0000")
    e("v_cmp_gt_u32 vcc, 26, v3")
    e("v_lshlrev_b32 v6, 13, v2")
    e(f"s_lshl_b32 s{sT}, s{sROW}, 3")
    e("v_cndmask_b32 v5, v7, v5, vcc")
    e(f"s_add_u32 s{sT}, s{sT}, {GRAN}")
    e(f"v_add_u32 v6, s{sT}, v6")
    e("v_cmp_gt_u32 vcc, 26, v2")
    e("v_lshlrev_b32 v1, 4, v2")
    e(f"v_add_u32 v1, 97280, v1")
    e("v_cndmask_b32 v6, v7, v6, vcc")
    e(f"v_mov_b32 v7, {FLAGS}")
    e("s_waitcnt vmcnt(0) lgkmcnt(0)")
    late_sloads()
    if opt.enc in (96,97):
        e("s_cmp_ge_u32 s2, 8")
        e("s_cbranch_scc1 L_nost")
        e("v_mov_b32 v0, s10")
        e("s_lshl_b32 s12, s2, 2")
        e(f"buffer_store_dword v0, off, s[{S_A}:{S_A+3}], s12 offset:64 sc0 sc1")
        lab("L_nost")
    st(76)
    for r in range(26):
        e(f"v_lshlrev_b32 v{R+2*r}, 16, v{X+r}")
        e(f"v_and_b32 v{R+2*r+1}, 0xffff0000, v{X+r}")
    def zstep(s):
        if opt.noz: return
        for m in range(4):
            (a1,a2),(b1,b2)=pair_of(8*s+2*m),pair_of(8*s+2*m+1)
            if opt.zpk:
                e(f"v_pk_mul_f32 v[{MT}:{MT+1}], v[{R+2*a1}:{R+2*a1+1}], v[{R+2*a2}:{R+2*a2+1}]")
                e(f"v_pk_mul_f32 v[{MT+2}:{MT+3}], v[{R+2*b1}:{R+2*b1+1}], v[{R+2*b2}:{R+2*b2+1}]")
            else:
                e(f"v_mul_f32 v{MT}, v{R+2*a1}, v{R+2*a2}")
                e(f"v_mul_f32 v{MT+2}, v{R+2*b1}, v{R+2*b2}")
                e(f"v_mul_f32 v{MT+1}, v{R+2*a1+1}, v{R+2*a2+1}")
                e(f"v_mul_f32 v{MT+3}, v{R+2*b1+1}, v{R+2*b2+1}")
            e(f"v_cvt_pk_bf16_f32 v{ZE(s)+m}, v{MT}, v{MT+2}")
            e(f"v_cvt_pk_bf16_f32 v{ZO(s)+m}, v{MT+1}, v{MT+3}")
    def zlin():
        for k in range(2):
            for m2 in range(4):
                m=k*8+2*m2
                for tl,d in ((0,LE(k)+m2),(1,LO(k)+m2)):
                    if m+1<=12: e(f"v_cvt_pk_bf16_f32 v{d}, v{R+4*m+tl}, v{R+4*(m+1)+tl}")
                    elif m==12: e(f"v_cvt_pk_bf16_f32 v{d}, v{R+4*m+tl}, 1.0")
                    else: e(f"v_mov_b32 v{d}, 0")
    SC=" sc1" if opt.csc else ""
    if opt.hprio: e(f"s_setprio {opt.hprio}")
    zlin()
    for s in range(opt.zsplit): zstep(s)
    if opt.hprio: e("s_setprio 0")
    st(78)
    e(f"s_load_dwordx8 s[92:99], s[{P_DBG}:{P_DBG+1}], 0")
    e("s_waitcnt lgkmcnt(0)")
    for k in range(1,7): e(f"s_and_b32 s92, s92, s{92+k}")
    e("s_cmp_lg_u32 s92, 0")
    e("s_cbranch_scc1 L_polled")
    lds_spin("L_it9",7,4,F_S1,4,sleep=4)
    e(f"v_lshlrev_b32 v0, 2, v2")
    e(f"buffer_load_dword v4, v0, s[{S_A}:{S_A+3}], 0 offen sc1")
    for s in range(opt.zsplit,opt.zmid): zstep(s)
    e(f"s_mov_b32 s{sT+4}, {opt.bound}")
    e(f"s_mov_b32 s{sT+2}, 0x7f")
    e(f"s_mov_b32 s{sT+3}, 0")
    lab("L_poll1")
    e("s_waitcnt vmcnt(0)")
    e("v_cmp_ne_u32 vcc, 0, v4")
    e(f"s_and_b64 vcc, vcc, s[{sT+2}:{sT+3}]")
    e(f"s_cmp_eq_u64 vcc, s[{sT+2}:{sT+3}]")
    e("s_cbranch_scc1 L_polled")
    e(f"s_sleep {opt.psleep}")
    e(f"buffer_load_dword v4, v0, s[{S_A}:{S_A+3}], 0 offen sc1")
    e(f"s_sub_u32 s{sT+4}, s{sT+4}, 1")
    e("s_cbranch_scc0 L_poll1")
    lab("L_polled")
    if opt.inv: e("buffer_inv sc1")
    st(80)
    lds_spin("L_s1",7,0,F_S1,4,sleep=2)
    e(f"s_sub_u32 s{sT}, s{sWAVE}, 4")
    e(f"s_lshl_b32 s{sT+1}, s{sT}, 13")
    e(f"s_add_u32 m0, s{sT+1}, {RING+4096}")
    e(f"s_lshl_b32 s{sT}, s{sT}, 9")
    e(f"s_sub_u32 s{sT}, s{sT}, 256")
    for t in range(4):
        if t<2:
            e(f"s_cmp_eq_u32 s{sWAVE}, 4")
            e(f"s_cselect_b32 s{sT+1}, {(44+t)*128}, s{sT}")
        else: e(f"s_mov_b32 s{sT+1}, s{sT}")
        e(f"buffer_load_dwordx4 v5, s[{S_WS}:{S_WS+3}], s{sT+1} offen sc1 lds")
        if t<3:
            e(f"s_add_u32 m0, m0, 1024")
            e(f"s_add_u32 s{sT}, s{sT}, 128")
    for s in range(opt.zmid,opt.zbar): zstep(s)
    e("s_waitcnt vmcnt(0)")
    st(82)
    e("s_barrier")
    if opt.hpz: e(f"s_setprio {opt.hpz}")
    for s in range(opt.zbar,opt.zb2): zstep(s)
    def hinc(off):
        e("v_mov_b32 v0, 1")
        e("s_mov_b64 exec, 1")
        e("s_waitcnt vmcnt(0)")
        e(f"ds_add_u32 v7, v0 offset:{off}")
        e("s_mov_b64 exec, -1")
    CWB=97280
    def dmaB0():
        e(f"s_sub_u32 s{sT}, s{sWAVE}, 4")
        e(f"s_lshl_b32 s{sT+1}, s{sT}, 10")
        e(f"s_add_u32 s{sT+1}, s{sT+1}, {CWB}")
        e(f"s_lshl_b32 s{sT}, s{sT}, 7")
        e(f"s_add_u32 s{sT}, s{sT}, {14*128}")
        e(f"s_cmp_ge_u32 s{sWAVE}, 6")
        e(f"s_cselect_b32 s{sT+8}, 6, 7")
        e(f"s_lshl_b32 s{sT+8}, s{sT+8}, 9")
    def dmaB1(t):
        if t<7:
            e(f"s_add_u32 m0, s{sT+1}, {4096*t}")
            e(f"s_add_u32 s{sT+9}, s{sT}, {512*t}")
        else:
            e(f"s_lshl3_add_u32 m0, s{sT+8}, s{sT+1}")
            e(f"s_add_u32 s{sT+9}, s{sT}, s{sT+8}")
        e(f"buffer_load_dwordx4 v5, s[{S_WS}:{S_WS+3}], s{sT+9} offen sc1 lds")
    dmaB0()
    dq=list(range(8))
    for s in range(opt.zb2,22): zstep(s)
    st(84)
    AUE,AUO=200,216; RG=232
    AXE=LE(0); AXO=ZE(0)
    vm=Q(63); lg=Q(15)
    seq=[('eo',22),('eo',23)]+[('e',s) for s in range(4)]+[('o',s) for s in range(4)]+[('eo',s) for s in range(4,22)]
    free=[RG+4*k for k in range(6)]
    reg={}
    lL=[]; lG=[]
    for i,(tl,s) in enumerate(seq):
        for k,fi in ([('x',2*s),('u',2*s+1)] if s<22 else [('u',44+s-22)]): lL.append((i,k,fi))
    cur=[0]; okB=[False]
    def ld():
        if not free or not lL or lL[0][0]>cur[0]+opt.look: return False
        i,k,fi=lL[0]
        if 14<=fi<44 and not okB[0]: return False
        lL.pop(0); r=free.pop(0); reg[(i,k)]=r
        if 14<=fi<44: off=(fi-14)*1024
        else:
            p=fi+2 if fi<14 else fi-44
            off=RING+4096-CWB+(p>>2)*8192+(p&3)*1024
        e(f"ds_read_b128 v[{r}:{r+3}], v1 offset:{off}"); lg.issue(f"{k}{i}")
        return True
    if opt.gateC: lds_spin("L_gC",7,0,{1:F_RED,3:F_G}[opt.gateC],4,sleep=1)
    st(88,True)
    if ST: e("s_memtime s[96:97]"); e("s_waitcnt lgkmcnt(0)")
    if opt.hpc>=0: e(f"s_setprio {opt.hpc}")
    while ld(): pass
    for _ in range(opt.dpre): dmaB1(dq.pop(0))
    first={'xe':1,'xo':1,'ue':1,'uo':1}
    GV=RG; rel=[]
    for i,(tl,s) in enumerate(seq):
        cur[0]=i
        CS={2:76,6:78,10:80,12:82,13:84,16:86,20:88,24:92}
        if opt.cst and i in CS: e(f"s_memtime s[{CS[i]}:{CS[i]+1}]")
        if i==12:
            e(f"ds_read_b32 v0, v7 offset:{F_CW2}"); lg.issue("cwr")
        q,nm=(lg,"lgkmcnt") if f'u{i}' in lg.ops else (vm,"vmcnt")
        if q.pending(f'u{i}'): e(f"s_waitcnt {nm}({q.need(f'u{i}')})")
        n=0
        for t in tl:
            z=(ZE if t=='e' else ZO)(s) if s<22 else (LE if t=='e' else LO)(s-22)
            for k,a in (('x',AXE if t=='e' else AXO),('u',AUE if t=='e' else AUO)):
                if (i,k) not in reg: continue
                c=f"v[{a}:{a+15}]"; r=reg[(i,k)]
                e(f"v_mfma_f32_32x32x16_bf16 {c}, v[{r}:{r+3}], v[{z}:{z+3}], {0 if first[k+t] else c}"); first[k+t]=0; lastw[t]=cnt[0]
                n+=1
                if n==1: free+=rel; rel=[]
                for _ in range(opt.dper):
                    if dq: dmaB1(dq.pop(0))
                if i==opt.bstep2 and n==opt.bn: hinc(F_CW2); lg.issue("cw2")
                if i==12 and n==1:
                    e("s_waitcnt lgkmcnt(0)"); lg.done=len(lg.ops)
                    e(f"v_readfirstlane_b32 s{sT+5}, v0")
                    e(f"s_cmp_ge_u32 s{sT+5}, 4")
                    e("s_cbranch_scc1 L_cw2_x")
                    lds_spin("L_cw2",7,0,F_CW2,4); okB[0]=True
                    while ld(): pass
                ld()
                if len(tl)==1: ld()
            if s<22 and not (t=='e' and s<4): rel.append(z)
        rel+= [reg[(i,k)] for k in 'xu' if (i,k) in reg]
        if i==len(seq)-3:
            assert not lL and not lG
            GV=free.pop(0)
            e(f"buffer_load_dwordx2 v[{GV}:{GV+1}], v6, s[{S_WS}:{S_WS+3}], 0 offen sc1"); vm.issue("gv")
    V=free.pop(0); V2=V+1
    e(f"s_add_u32 s{sE}, s{sE}, 1")
    e(f"s_and_b32 s{sE+1}, s{sE+1}, 0xff")
    e("s_lshl_b32 s9, s9, 16")
    e(f"s_lshl_b32 s{sT+6}, s{sROW}, 1")
    e(f"s_lshl_b32 s{sT+7}, s{sROW}, 3")
    e(f"s_add_u32 s{sT+7}, s{sT+7}, {EPOCH}")
    e(f"v_mov_b32 v{V+3}, s{sE}")
    hz('e',12)
    e(f"v_mul_f32 v{V}, v{AXE}, v{AUE}")
    e(f"v_mul_f32 v{V2}, v{AXE+1}, v{AUE+1}")
    for t in range(2,14): e(f"v_fmac_f32 v{V+(t&1)}, v{AXE+t}, v{AUE+t}")
    hz('o',12)
    for t in range(14): e(f"v_fmac_f32 v{V+(t&1)}, v{AXO+t}, v{AUO+t}")
    e(f"v_add_f32 v{V}, v{V}, v{V2}")
    st(90)
    if ST: e("s_memtime s[98:99]")
    e("s_mov_b32 exec_lo, 0x3ffffff")
    e("s_mov_b32 exec_hi, 0")
    e(f"s_mov_b32 s{sT+4}, {opt.bound}")
    G2=GV+2
    def chk(g,lbl):
        e(f"v_and_b32 v{V2}, 0xff, v{g+1}")
        e(f"v_cmp_eq_u32 vcc, s{sE}, v{g}")
        e(f"v_cmp_eq_u32 s[{sT}:{sT+1}], s{sE+1}, v{V2}")
        e(f"v_and_b32 v{V2}, 0xffffff00, v{g+1}")
        e(f"s_and_b64 vcc, vcc, s[{sT}:{sT+1}]")
        e("s_cmp_eq_u64 vcc, exec")
        e(f"s_cbranch_scc1 L_got")
    lab("L_poll2")
    e(f"buffer_load_dwordx2 v[{G2}:{G2+1}], v6, s[{S_WS}:{S_WS+3}], 0 offen sc1")
    e("s_waitcnt vmcnt(1)")
    chk(GV,0)
    e(f"buffer_load_dwordx2 v[{GV}:{GV+1}], v6, s[{S_WS}:{S_WS+3}], 0 offen sc1")
    e("s_waitcnt vmcnt(1)")
    chk(G2,1)
    e(f"s_sub_u32 s{sT+4}, s{sT+4}, 1")
    e("s_cbranch_scc0 L_poll2")
    lab("L_got")
    e(f"v_add_f32 v{V}, v{V}, v{V2}")
    e("s_mov_b64 exec, -1")
    if not opt.cst: st(92)
    for dpp in ["quad_perm:[1,0,3,2] row_mask:0xf bank_mask:0xf","quad_perm:[2,3,0,1] row_mask:0xf bank_mask:0xf",
                "row_half_mirror row_mask:0xf bank_mask:0xf","row_mirror row_mask:0xf bank_mask:0xf",
                "row_bcast:15 row_mask:0xa bank_mask:0xf","row_bcast:31 row_mask:0xc bank_mask:0xf"]:
        e("s_nop 1")
        e(f"v_add_f32_dpp v{V}, v{V}, v{V} {dpp}")
    e("s_mov_b32 exec_lo, 0")
    e("s_mov_b32 exec_hi, 0x80000000")
    e(f"v_add_f32 v{V}, s9, v{V}")
    e(f"v_cvt_pk_bf16_f32 v{V}, v{V}, v{V}")
    e(f"buffer_store_short v{V}, off, s[{S_B}:{S_B+3}], s{sT+6}")
    e(f"buffer_store_dword v{V+3}, off, s[{S_WS}:{S_WS+3}], s{sT+7}")
    if ST:
        e("s_waitcnt vmcnt(0)"); st(94,True); e("s_sub_u32 s98, s98, s96")
        if opt.cst:
            for r in (76,78,80,82,84,86,88,92):
                e(f"s_sub_u32 s{r}, s{r}, s96"); e(f"s_mul_i32 s{r}, s{r}, 100"); e(f"s_add_u32 s{r}, s{r}, s10")
        dump([10,76,78,80,82,84,86,88,90,92,94,98],0,1)
    e("s_endpgm")

    sec("pref")
    lab("L_aux")
    if opt.foldx:
        e(f"s_mov_b32 s{sT+1}, s{sXCD}")
    else:
        e(f"s_lshl1_add_u32 s{sT+1}, s{sXCD}, s{sSLOT}")
        e(f"s_sub_u32 s{sT+1}, s{sT+1}, 26")
    e(f"s_cmp_lt_u32 s{sT+1}, 7")
    e("s_cbranch_scc1 L_fold")
    sec("fold0"); lab("L_fold")
    cm("---- CIN weight folding: rows i = 4*pidx + (wave&3) ----")
    S_C=S_W; S_O=S_B; sI=6
    e(f"s_and_b32 s{sT}, s{sWAVE}, 3")
    e(f"s_lshl2_add_u32 s{sI}, s{sT+1}, s{sT}")
    M=16
    e("v_lshlrev_b32 v3, 2, v0")
    e("v_mov_b32 v7, 0x7fff0000")
    e(f"s_movk_i32 s{sT+1}, 338")
    e(f"v_cmp_gt_u32 vcc, s{sT+1}, v0")
    e("v_lshrrev_b32 v4, 1, v2")
    e("v_and_b32 v5, 1, v2")
    e("v_cndmask_b32 v3, v7, v3, vcc")
    e("v_lshlrev_b32 v4, 3, v4")
    e("s_waitcnt lgkmcnt(0)")
    e(f"s_load_dwordx8 s[76:83], s[{P_WOUT}:{P_WOUT+1}], 104")
    e(f"s_load_dwordx4 s[84:87], s[{P_WOUT}:{P_WOUT+1}], 136")
    e(f"s_load_dword s88, s[{P_WOUT}:{P_WOUT+1}], 152")
    srd(S_C,P_CIN,105456)
    for gg in range(26):
        if gg%3==0: e(f"s_mov_b32 s{sT+2}, {2*35152+gg*1352}")
        e(f"buffer_load_dword v{M+gg}, v3, s[{S_C}:{S_C+3}], s{sT+2} offen offset:{(gg%3)*1352}")
    e("s_branch L_fold_b")
    sec("fold"); lab("L_fold_b")
    PP=44; QQ=52
    def slots():
        for ee in range(8):
            e(f"v_add_u32 v8, {ee}, v4")
            e("v_mul_u32_u24 v9, 5042, v8")
            e("v_lshrrev_b32 v9, 16, v9")
            e("v_mul_u32_u24 v10, 13, v9")
            e("v_sub_u32 v10, v8, v10")
            e(f"v_lshl_add_u32 v{PP+ee}, v10, 1, v5")
            e(f"v_add_u32 v{QQ+ee}, v{PP+ee}, v9")
            e(f"v_subrev_u32 v10, 26, v{QQ+ee}")
            e(f"v_min_u32 v{QQ+ee}, v{QQ+ee}, v10")
    def m3(later):
        e("v_mul_u32_u24 v8, 5042, v0")
        e("v_lshrrev_b32 v8, 16, v8")
        e("v_mul_u32_u24 v9, 13, v8")
        e("v_sub_u32 v9, v0, v9")
        e("v_lshlrev_b32 v9, 7, v9")
        e("v_lshl_add_u32 v96, v8, 1, v9")
        e("s_waitcnt lgkmcnt(0)")
        st(92)
        for gg in range(26):
            sreg=76+(gg>>1)
            if gg&1: e(f"s_and_b32 s{sT+4+(gg&1)}, s{sreg}, 0xffff0000")
            else:    e(f"s_lshl_b32 s{sT+4+(gg&1)}, s{sreg}, 16")
            if gg%4==0: e(f"s_waitcnt vmcnt({later+25-min(gg+3,25)})")
            e(f"v_lshlrev_b32 v8, 16, v{M+gg}")
            e(f"v_and_b32 v9, 0xffff0000, v{M+gg}")
            if gg==0:
                e(f"v_mul_f32 v10, s{sT+4}, v8"); e(f"v_mul_f32 v11, s{sT+4}, v9")
            else:
                e(f"v_fmac_f32 v10, s{sT+4+(gg&1)}, v8"); e(f"v_fmac_f32 v11, s{sT+4+(gg&1)}, v9")
        e("v_cvt_pk_bf16_f32 v10, v10, v11")
        e(f"s_movk_i32 s{sT+1}, 338")
        e(f"v_cmp_gt_u32 vcc, s{sT+1}, v0")
        e(f"s_and_saveexec_b64 s[{sT+2}:{sT+3}], vcc")
        e("ds_write_b16 v96, v10")
        e("ds_write_b16_d16_hi v96, v10 offset:64")
        e("s_mov_b64 exec, -1")
        st(94)
    def st_addr(cnt):
        e("v_lshlrev_b32 v6, 7, v6")
        e("v_lshl_add_u32 v6, v5, 6, v6")
        e(f"s_and_b32 s{sT+1}, s{sWAVE}, 3")
        e(f"s_lshl_b32 s{sT+1}, s{sT+1}, 4")
        e(f"s_add_u32 s{sT+1}, s{sT+1}, {STG}")
        e(f"v_add_u32 v6, s{sT+1}, v6")
        e(f"v_cmp_gt_u32 vcc, {cnt}, v2")
        e("v_mov_b32 v94, 1.0")
        e(f"v_mov_b32 v8, {STG+8192}")
        e("v_cndmask_b32 v6, v8, v6, vcc")
        e("v_cmp_gt_u32 vcc, 2, v2")
        e("s_nop 1")
        e("v_cndmask_b32 v95, v94, 0.5, vcc")
        e("v_cmp_gt_u32 vcc, 4, v2")
        e("s_nop 1")
        e("v_cndmask_b32 v94, v94, 0.5, vcc")
    e(f"s_cmp_ge_u32 s{sWAVE}, 4")
    e("s_cbranch_scc1 L_aux_w1")
    Pq=60; PR=76; RA=68; VV=16
    e("v_and_b32 v8, 31, v2")
    e("v_lshrrev_b32 v15, 5, v2")
    e(f"v_mul_u32_u24 v10, {8*1352}, v15")
    e("v_lshl_add_u32 v10, v8, 1, v10")
    e("v_cmp_gt_u32 vcc, 26, v8")
    e(f"s_mul_i32 s{sT+3}, s{sI}, 52")
    e(f"s_add_u32 s{sT+3}, s{sT+3}, 35152")
    e("v_cndmask_b32 v10, v7, v10, vcc")
    e("v_cmp_gt_u32 vcc, 32, v2")
    e("v_lshlrev_b32 v12, 2, v2")
    e("s_nop 0")
    e("v_cndmask_b32 v11, v7, v10, vcc")
    for s in range(2):
        for ee in range(8):
            h=16*s+ee
            if h%3==0 or ee==0:
                hb=h; e(f"s_add_u32 s{sT+2}, s{sT+3}, {h*1352}")
            va=11 if (s==1 and ee>=2) else 10
            e(f"buffer_load_ushort v{PR+s*8+ee}, v{va}, s[{S_C}:{S_C+3}], s{sT+2} offen offset:{(h-hb)*1352}")
    srd(S_O,P_WOUT,156)
    e(f"buffer_load_dword v13, v12, s[{S_O}:{S_O+3}], 0 offen offset:52")
    e(f"s_lshl_b32 s{sT+2}, s{sI}, 1")
    e(f"buffer_load_ushort v14, off, s[{S_O}:{S_O+3}], s{sT+2}")
    e("v_lshlrev_b32 v8, 6, v2")
    e("v_mov_b32 v9, 0")
    e("s_mov_b32 exec_lo, 0x7ffffff")
    e("s_mov_b32 exec_hi, 0")
    e("ds_write_b32 v8, v9 offset:52")
    e("ds_write_b32 v8, v9 offset:56")
    e("ds_write_b32 v8, v9 offset:60")
    e("s_mov_b64 exec, -1")
    e("v_and_b32 v8, 31, v2")
    e("v_lshlrev_b32 v93, 6, v8")
    e("v_lshl_add_u32 v93, v15, 4, v93")
    e(f"s_mul_i32 s{sT+1}, s{sWAVE}, 5120")
    e(f"s_add_u32 s{sT+1}, s{sT+1}, 4096")
    e("v_mul_u32_u24 v92, 144, v8")
    e("v_lshl_add_u32 v92, v15, 4, v92")
    e(f"v_add_u32 v92, s{sT+1}, v92")
    slots()
    e("v_cmp_lt_u32 vcc, 43, v2")
    e("v_subrev_u32 v10, 176, v4")
    e("v_mov_b32 v11, 26")
    for ee in range(8):
        e(f"v_add_u32 v8, {ee}, v10")
        e("v_lshl_add_u32 v8, v8, 1, v5")
        e(f"v_min_u32 v8, 31, v8")
        e(f"v_cndmask_b32 v8, v{QQ+ee}, v8, vcc")
        e(f"v_cndmask_b32 v9, v{PP+ee}, v11, vcc")
        e(f"v_mul_u32_u24 v9, 144, v9")
        e(f"v_lshl_add_u32 v9, v8, 2, v9")
        e(f"v_add_u32 v{RA+ee}, s{sT+1}, v9")
    e("v_lshrrev_b32 v8, 1, v2")
    e("v_lshl_add_u32 v6, v8, 1, 1")
    e("v_add_u32 v8, 22, v8")
    e("v_cndmask_b32 v6, v6, v8, vcc")
    st_addr(48)
    m3(18)
    e("s_mov_b32 exec_lo, 0x1fff")
    e("s_mov_b32 exec_hi, 0")
    e("s_waitcnt vmcnt(0)")
    e(f"ds_write_b32 v12, v13 offset:{26*64}")
    e("s_mov_b64 exec, -1")
    for r in range(8): e(f"v_lshl_or_b32 v{Pq+r}, v{PR+2*r+1}, 16, v{PR+2*r}")
    e("s_waitcnt lgkmcnt(0)")
    e("s_barrier")
    Qq=16; D=24
    e(f"ds_read_b128 v[{Qq}:{Qq+3}], v93")
    e(f"ds_read_b128 v[{Qq+4}:{Qq+7}], v93 offset:32")
    e("s_waitcnt lgkmcnt(0)")
    e(f"v_mfma_f32_32x32x16_bf16 v[{D}:{D+15}], v[{Pq}:{Pq+3}], v[{Qq}:{Qq+3}], 0")
    e(f"v_mfma_f32_32x32x16_bf16 v[{D}:{D+15}], v[{Pq+4}:{Pq+7}], v[{Qq+4}:{Qq+7}], v[{D}:{D+15}]")
    e(f"v_mfma_f32_32x32x16_bf16 v[{D}:{D+15}], v[{Qq}:{Qq+3}], v[{Pq}:{Pq+3}], v[{D}:{D+15}]")
    e(f"v_mfma_f32_32x32x16_bf16 v[{D}:{D+15}], v[{Qq+4}:{Qq+7}], v[{Pq+4}:{Pq+7}], v[{D}:{D+15}]")
    e("s_nop 11")
    for m in range(4):
        e(f"ds_write_b128 v92, v[{D+4*m}:{D+4*m+3}] offset:{m*32}")
    e("s_waitcnt lgkmcnt(0)")
    for ee in range(8): e(f"ds_read_b32 v{VV+ee}, v{RA+ee}")
    e("v_lshlrev_b32 v14, 16, v14")
    e(f"v_cmp_eq_u32 s[{sT}:{sT+1}], 46, v2")
    e(f"v_cmp_eq_u32 s[{sT+2}:{sT+3}], 47, v2")
    e("v_cmp_lt_u32 vcc, 45, v2")
    e("s_waitcnt lgkmcnt(0)")
    e(f"v_cndmask_b32 v{VV+5}, v{VV+5}, v14, s[{sT}:{sT+1}]")
    e(f"v_cndmask_b32 v{VV+5}, v{VV+5}, 0, s[{sT+2}:{sT+3}]")
    e(f"v_cndmask_b32 v{VV+6}, v{VV+6}, 0, vcc")
    e(f"v_cndmask_b32 v{VV+7}, v{VV+7}, 0, vcc")
    e("s_branch L_aux_pack")
    lab("L_aux_w1")
    GA=60; GB=68
    e(f"s_mul_i32 s{sT+3}, s{sI}, 1352")
    e(f"s_lshl_b32 s{sT+6}, s{sWAVE}, 11")
    e(f"s_add_u32 s{sT+6}, s{sT+6}, {32768-4*2048}")
    e(f"s_mov_b32 m0, s{sT+6}")
    e("v_lshlrev_b32 v12, 4, v2")
    e(f"buffer_load_dwordx4 v12, s[{S_C}:{S_C+3}], s{sT+3} offen lds")
    e(f"buffer_load_dwordx4 v12, s[{S_C}:{S_C+3}], s{sT+3} offen offset:1024 lds")
    slots()
    for ee in range(8):
        e(f"v_mul_u32_u24 v8, 26, v{PP+ee}")
        e(f"v_add_lshl_u32 v8, v8, v{QQ+ee}, 1")
        e(f"v_add_u32 v{GA+ee}, s{sT+6}, v8")
        e(f"v_mul_u32_u24 v9, 26, v{QQ+ee}")
        e(f"v_add_lshl_u32 v9, v9, v{PP+ee}, 1")
        e(f"v_add_u32 v{GB+ee}, s{sT+6}, v9")
    e("v_and_b32 v6, 62, v2")
    st_addr(44)
    m3(2)
    e("s_waitcnt lgkmcnt(0)")
    e("s_barrier")
    e("s_waitcnt vmcnt(0)")
    for ee in range(8):
        e(f"ds_read_u16 v{GA+ee}, v{GA+ee}")
        e(f"ds_read_u16 v{GB+ee}, v{GB+ee}")
    e("s_waitcnt lgkmcnt(0)")
    for ee in range(8):
        e(f"v_lshlrev_b32 v{GA+ee}, 16, v{GA+ee}")
        e(f"v_lshlrev_b32 v{GB+ee}, 16, v{GB+ee}")
        e(f"v_add_f32 v{VV+ee}, v{GA+ee}, v{GB+ee}")
    lab("L_aux_pack")
    srd(S_WS,P_WS,WS_SIZE); srd(S_A,P_DBG,256)
    e("v_cmp_eq_u32 vcc, 43, v2")
    for ee in range(8): e(f"v_mul_f32 v{VV+ee}, v{VV+ee}, v{94 if ee<5 else 95}")
    e(f"v_cndmask_b32 v{VV+7}, v{VV+7}, 0, vcc")
    for m in range(4): e(f"v_cvt_pk_bf16_f32 v{24+m}, v{VV+2*m}, v{VV+2*m+1}")
    e("ds_write_b128 v6, v[24:27]")
    e("v_lshlrev_b32 v8, 4, v0")
    e(f"s_movk_i32 s{sT+1}, 368")
    e(f"v_cmp_gt_u32 vcc, s{sT+1}, v0")
    e(f"s_lshr_b32 s{sT}, s{sI}, 2")
    e(f"s_mul_i32 s{sT+2}, s{sT}, 5888")
    e("v_cndmask_b32 v9, v7, v8, vcc")
    e("s_waitcnt lgkmcnt(0)")
    e("s_barrier")
    e(f"ds_read_b128 v[24:27], v8 offset:{STG}")
    e("s_waitcnt lgkmcnt(0)")
    e(f"buffer_store_dwordx4 v[24:27], v9, s[{S_WS}:{S_WS+3}], s{sT+2} offen sc0 sc1")
    st(96)
    e(f"s_lshl_b32 s{sT}, s{sT}, 2")
    e("v_mov_b32 v8, 1")
    e("s_waitcnt vmcnt(0)")
    e("s_barrier")
    e(f"s_cmp_lg_u32 s{sWAVE}, 0")
    e("s_cbranch_scc1 L_noflag")
    e("s_mov_b64 exec, 1")
    e(f"buffer_store_dword v8, off, s[{S_A}:{S_A+3}], s{sT} sc0 sc1")
    e("s_mov_b64 exec, -1")
    lab("L_noflag")
    if ST:
        st(98); e("s_waitcnt vmcnt(0)"); st(100,True)
        dump([10,92,94,96,98,100],1,2)
    e("s_branch L_aux_done")
    sec("pref")
    lab("L_prefetch")
    e("s_waitcnt lgkmcnt(0)")
    if opt.pdel: e(f"s_sleep {opt.pdel}")
    if opt.pf:
        e(f"s_cmp_lg_u32 s{sSLOT}, 31")
        e("s_cbranch_scc1 L_pf2")
        srd(S_A,P_B1,3328); srd(S_B,P_W2,3328); srd(S_WS,P_WS,EPOCH+8192)
        e("v_lshlrev_b32 v3, 7, v0")
        e(f"buffer_load_dword v12, v3, s[{S_A}:{S_A+3}], 0 offen")
        e(f"buffer_load_dword v13, v3, s[{S_B}:{S_B+3}], 0 offen")
        e(f"s_mov_b32 s{sT}, {EPOCH}")
        e(f"buffer_load_dword v14, v3, s[{S_WS}:{S_WS+3}], s{sT} offen")
        lab("L_pf2")
        srd(S_W,P_W,1664*3328)
        if opt.foldx:
            e(f"s_cmp_lt_u32 s{sXCD}, 7")
            e(f"s_cselect_b32 s{sT+2}, 27, 26")
        else:
            e(f"s_cmp_lt_u32 s{sXCD}, 4")
            e(f"s_cselect_b32 s{sT+2}, 27, 26")
            e(f"s_cmp_lt_u32 s{sXCD}, 3")
            e(f"s_cselect_b32 s{sT+2}, 28, s{sT+2}")
        e(f"s_sub_u32 s{sT}, s{sSLOT}, s{sT+2}")
        e(f"s_sub_u32 s{sT+2}, 32, s{sT+2}")
        e(f"s_mul_i32 s{sT+1}, s{sXCD}, 26")
        e(f"s_lshr_b32 s{sT+1}, s{sT+1}, 3")
        e(f"s_lshl_b32 s{sT+1}, s{sT+1}, 7")
        for u in range(3):
            e(f"v_add_u32 v3, {512*u}, v0")
            e(f"v_mul_u32_u24 v3, s{sT+2}, v3")
            e(f"v_add_u32 v3, s{sT}, v3")
            e("v_lshrrev_b32 v4, 2, v3")
            if opt.pskip: e(f"v_add_u32 v4, {opt.pskip}, v4")
            e("v_and_b32 v3, 3, v3")
            e(f"v_mul_u32_u24 v4, 3328, v4")
            e("v_lshl_add_u32 v3, v3, 7, v4")
            e(f"buffer_load_dword v{9+u}, v3, s[{S_W}:{S_W+3}], s{sT+1} offen")
            if u<2 and opt.pbar: e("s_barrier")
    e("s_branch L_aux_done")
    sec("fold")
    lab("L_aux_done")
    e(f"s_cmp_lt_u32 s{sWAVE}, 4")
    e("s_cbranch_scc1 L_end")
    srd(S_TBL,P_TBL,128000); srd(S_IDX,P_IDX,106496)
    rowidx_load()
    e(f"v_mov_b32 v7, {FLAGS}")
    e("v_mov_b32 v8, 4")
    e("v_mov_b32 v9, 0")
    e(f"ds_write_b32 v7, v8 offset:{F_RED}")
    e(f"ds_write_b32 v7, v8 offset:{F_G}")
    e(f"ds_write_b32 v7, v8 offset:{F_S1}")
    e(f"ds_write_b32 v7, v9 offset:{F_CW}")
    e(f"ds_write_b32 v7, v9 offset:{F_CW2}")
    e("s_waitcnt vmcnt(0)")
    e("v_lshlrev_b32 v29, 7, v29")
    x0_addrs()
    e("s_branch L_help_x0")
    lab("L_end")
    e("s_endpgm")
    sec("tail")
    L.append('.section .rodata,"a"'); L.append(".p2align 6"); L.append(f".amdhsa_kernel {KN}")
    for x in ["next_free_vgpr 256","next_free_sgpr 102","accum_offset 256","group_segment_fixed_size 0","kernarg_size 88",
              "user_sgpr_count 2","user_sgpr_kernarg_segment_ptr 1","system_sgpr_workgroup_id_x 1"]:
        L.append("  .amdhsa_"+x)
    L.append(".end_amdhsa_kernel")
    return "\n".join(sum((SEC.get(k,[]) for k in order+["tail"]),[]))+"\n"

if __name__=="__main__":
    ap=argparse.ArgumentParser()
    ap.add_argument("-o",default="k.s")
    for k,d in dict(hpz=0,hpc=-1,gp=-1,zb2=22,zpk=0,hprio=0,tpk=0,foldx=1,rp=1,pdel=0,cp26=1,pbar=1,lay=1,b2g=1,cst=0,bgate=0,look=2,bstep=0,bstep2=11,bn=1,dper=1,dpre=2,inv=0,zmid=15,csc=0,gateC=1,gq=0,rowx=1,wstop=5,wrest=16,bq=3,xlds=1,xgap=0,atid=1,xsl=0,pskip=128,d2late=1,wper=4,its=0,sched=0,nog=0,not_=0,c2=0,noz=0,lateb=1,dly=4,pst=0,enc=0,encrole=0,encwg=0,encwave=0,nocin=0,gcyc=0,psleep=4,now=0,stamps=0,pf=1,cpf=1,prio=1,bound=2000000,zsplit=15,zbar=17,nt0=6,tb=444,n0=4,nt1=4,d1late=0,trim=1,wsched=0).items(): ap.add_argument("--"+k,type=int,default=d)
    opt=ap.parse_args()
    assert opt.zsplit==opt.zmid
    for t in range(512): assert (t*5042)>>16==t//13, t
    open(opt.o,"w").write(build(opt))
```

```python
import sys, argparse, math, struct

class Q:
    def __init__(s,cap): s.ops=[]; s.cap=cap; s.done=0
    def issue(s,name): s.ops.append(name)
    def need(s,*names):
        r=99
        for name in names:
            i=len(s.ops)-1-s.ops[::-1].index(name)
            r=min(r,len(s.ops)-1-i)
        r=min(r,s.cap)
        s.done=max(s.done,len(s.ops)-r)
        return r
    def pending(s,*names):
        return any(len(s.ops)-1-s.ops[::-1].index(n)>=s.done for n in names)

WIMG=0; GRAN=65536; EPOCH=0x50000; STAMP=0x100000; WS_SIZE=0x200000
STG=49152; RING=128000; FLAGS=160768; CINW=49152
F_IT9,F_RED,F_G,F_PRE,F_S1,F_CW,F_CW2=0,4,8,12,16,20,24
C1=-2*math.sqrt(2/math.pi)*math.log2(math.e); C2=C1*0.044715
def f2u(x): return struct.unpack('<I',struct.pack('<f',x))[0]
KN="standalone__deep_cross_xdeepfm__recsys_kernel"

sWAVE,sXCD,sSLOT,sCB,sRB=3,4,5,7,8
P_IDX,P_TBL,P_CIN,P_WOUT,P_W,P_B1,P_W2,P_BO=16,18,20,22,24,26,28,30
P_OUT,P_DBG,P_WS=32,34,36
S_IDX,S_TBL,S_W,S_WS,S_A,S_B=40,44,48,52,56,60
sRING,sWR1,sWR2,sTM=64,65,15,14
sT=66

def pair_of(n):
    if n<169: dlt,m=divmod(n,13)
    else: dlt,m=13,n-169
    r=2*m
    return r,(r+dlt)%26

def build(opt):
    SEC={"entry":[]}; order=["entry","dnn0","hpro","pref","fold0","dnn","help","fold"]
    class LL:
        cur="entry"
        def append(s,x): SEC.setdefault(s.cur,[]).append(x)
    L=LL()
    def sec(n): L.cur=n
    cnt=[0]; lastw={}
    def e(x):
        L.append("    "+x)
        cnt[0]+= (int(x.split()[1])+1) if x.startswith("s_nop") else 1
    def hz(key,n):
        d=cnt[0]-lastw[key]
        if d<n: e(f"s_nop {n-d-1}")
    def lab(x): L.append(x+":")
    def cm(x): L.append("    ; "+x)
    E=lambda x:(lambda: e(x))
    ST=opt.stamps
    def srd(d,p,size):
        e(f"s_mov_b32 s{d}, s{p}"); e(f"s_mov_b32 s{d+1}, s{p+1}")
        e(f"s_mov_b32 s{d+2}, {size}"); e(f"s_mov_b32 s{d+3}, 0x20000")
    def st(r,wait=False):
        if ST:
            e(f"s_memrealtime s[{r}:{r+1}]")
            if wait: e("s_waitcnt lgkmcnt(0)")
    def dump(regs,area=0,role=0):
        if opt.enc:
            delay(regs,role); return
        dump_(regs,area)
    dl=[0]
    def delay(regs,role):
        dl[0]+=1; n=dl[0]
        e("s_mov_b64 exec, -1")
        e("s_waitcnt lgkmcnt(0)")
        if opt.enc==99:
            if role!=1: return
            srd(S_A,P_DBG,256)
            e("s_not_b32 s12, s10")
            e("v_mov_b32 v244, s12")
            e(f"v_mov_b32 v245, s{regs[10]}")
            e("v_mov_b32 v246, 1")
            e("s_mov_b64 exec, 1")
            e(f"buffer_atomic_umax v244, off, s[{S_A}:{S_A+3}], 0 offset:240 sc1")
            e(f"buffer_atomic_umax v245, off, s[{S_A}:{S_A+3}], 0 offset:244 sc1")
            e("s_waitcnt vmcnt(0)")
            e(f"buffer_atomic_add v246, off, s[{S_A}:{S_A+3}], 0 offset:248 sc0 sc1")
            e("s_waitcnt vmcnt(0)")
            e("v_readfirstlane_b32 s12, v246")
            e("s_cmp_lg_u32 s12, 1023")
            e(f"s_cbranch_scc1 L_dly{n}_x")
            e(f"buffer_load_dwordx2 v[244:245], off, s[{S_A}:{S_A+3}], 0 offset:240 sc1")
            e("s_waitcnt vmcnt(0)")
            e("v_readfirstlane_b32 s12, v244")
            e("v_readfirstlane_b32 s13, v245")
            e("s_not_b32 s12, s12")
            e("s_sub_u32 s12, s13, s12")
        else:
            if role!=opt.encrole: return
            e(f"s_cmp_lg_u32 s2, {opt.encwg}")
            e(f"s_cbranch_scc1 L_dly{n}_x")
            e(f"s_cmp_lg_u32 s{sWAVE}, {opt.encwave}")
            e(f"s_cbranch_scc1 L_dly{n}_x")
            if opt.enc in (96,97):
                e(f"s_load_dwordx8 s[76:83], s[{P_DBG}:{P_DBG+1}], 64")
                e("s_waitcnt lgkmcnt(0)")
                e("s_mov_b32 s12, s76"); e("s_mov_b32 s13, s76")
                for k in range(1,8):
                    e(f"s_min_u32 s12, s12, s{76+k}"); e(f"s_max_u32 s13, s13, s{76+k}")
                if opt.enc==96: e("s_mov_b32 s13, s10")
                e("s_sub_u32 s12, s13, s12")
                e("s_min_u32 s12, s12, 2000")
            else: e(f"s_sub_u32 s12, s{regs[opt.enc]}, s10")
        e("s_mul_i32 s12, s12, 100")
        e("s_memrealtime s[66:67]")
        e("s_waitcnt lgkmcnt(0)")
        e("s_add_u32 s12, s12, s66")
        lab(f"L_dly{n}")
        e("s_sleep 8")
        e("s_memrealtime s[66:67]")
        e("s_waitcnt lgkmcnt(0)")
        e("s_sub_u32 s13, s66, s12")
        e("s_cmp_lt_i32 s13, 0")
        e(f"s_cbranch_scc1 L_dly{n}")
        lab(f"L_dly{n}_x")
        e("s_mov_b64 exec, -1")
    def dump_(regs,area=0):
        e("s_mov_b64 exec, -1")
        e("s_waitcnt lgkmcnt(0)")
        e("s_lshl_b32 s12, s2, 3")
        e(f"s_add_u32 s12, s12, s{sWAVE}")
        e("s_lshl_b32 s12, s12, 6")
        e(f"s_add_u32 s12, s12, {STAMP+area*0x40000}")
        regs=list(regs)+[regs[0]]*(12-len(regs))
        for i,r in enumerate(regs): e(f"v_mov_b32 v{244+i}, s{r}")
        e("s_mov_b64 exec, 1")
        for i in range(3):
            e(f"buffer_store_dwordx4 v[{244+4*i}:{247+4*i}], off, s[{S_WS}:{S_WS+3}], s12 offset:{16*i}")
        e("s_mov_b64 exec, -1")
    def lds_spin(name,vaddr,vtmp,off,target,sleep=0):
        e(f"s_mov_b32 s{sT+4}, {opt.bound*8}")
        lab(name)
        e(f"ds_read_b32 v{vtmp}, v{vaddr} offset:{off}")
        e("s_waitcnt lgkmcnt(0)")
        e(f"v_readfirstlane_b32 s{sT+5}, v{vtmp}")
        e(f"s_cmp_ge_u32 s{sT+5}, {target}")
        e(f"s_cbranch_scc1 {name}_x")
        if sleep: e(f"s_sleep {sleep}")
        e(f"s_sub_u32 s{sT+4}, s{sT+4}, 1")
        e(f"s_cbranch_scc0 {name}")
        lab(name+"_x")

    IV=16; IA=24
    def rec_addrs():
        e(f"s_lshl_b32 s{sT+5}, s{sT}, 7")
        e(f"s_add_u32 s{sT+5}, s{sT+5}, {RING+4096}")
        e(f"v_lshl_add_u32 v7, v7, 3, s{sT+5}")
        e("v_mul_u32_u24 v9, 7, v8")
        e("v_and_b32 v8, 1, v8")
        for par in range(2):
            d=IA+2*par
            if par:
                e("v_xor_b32 v8, 1, v8"); e("v_add_u32 v9, 1, v9")
            e("v_lshrrev_b32 v10, 1, v9")
            e(f"v_lshl_add_u32 v{d}, v10, 8, v7")
            e(f"v_lshl_add_u32 v{d}, v8, 14, v{d}")
            e("v_lshlrev_b32 v10, 1, v8")
            e(f"v_xor_b32 v10, s{sT+2}, v10")
            e(f"v_lshl_add_u32 v{d}, v10, 1, v{d}")
            e(f"v_xor_b32 v{d+1}, 2, v{d}")
            e(f"v_add_u32 v{d+1}, 8192, v{d+1}")
    sROW=6; sE=38
    def rowidx_load():
        e(f"s_sub_u32 s{sT+6}, s{sWAVE}, 4")
        if opt.rowx:
            e(f"s_lshl2_add_u32 s{sROW}, s{sSLOT}, s{sT+6}")
            e(f"s_lshl_b32 s{sT+6}, s{sXCD}, 7")
            e(f"s_add_u32 s{sROW}, s{sROW}, s{sT+6}")
        else: e(f"s_lshl2_add_u32 s{sROW}, s2, s{sT+6}")
        e(f"s_mul_i32 s{sT+6}, s{sROW}, 104")
        e("v_lshlrev_b32 v30, 2, v2")
        e(f"buffer_load_dword v29, v30, s[{S_IDX}:{S_IDX+3}], s{sT+6} offen")
    for x in """xDeepFM (CIN + DNN) in one launch for gfx950; the instruction stream is emitted by my own generator script.
Kernarg: idx, table, ws_cin, w_cin_out, w_dnn1, b_dnn1, w_dnn2, b_out, out, debug, ws (8-byte pointers).
Math (exact regrouping of the reference): with Z = sym(x0 (x) x0) per (row, d),
  logit_cin = sum_d sum_i (W1s Z)_i * (w1_i + (M2 x0)_i + (Gs Z)_i),  M3 = w3.W3, M2 = w2.W2, G = W2.M3.
Workgroups g = xcd + 8*slot, 8 waves each:
  slot < 26 : waves 0-3 run a 128x64 tile of gelu(x0*W+b).w2 (table resident in LDS, K split over the waves,
              W streamed by LDS-DMA + transposing reads); partial logits leave as tagged 8-byte words in ws.
  slot 26   : folds the CIN weights (7 workgroups, published in ws, flags in debug); other slots warm L2.
  waves 4-7 of every workgroup evaluate the CIN polynomial of one row each, add the 26 partial logits, store out.
Hand-off tags: each row owns an epoch word in ws; tag = epoch + 1, the consumer advances it after use.""".split("\n"): L.append("; "+x)
    L.append("; @launch grid=(256,1,1) block=(512,1,1) lds=163840")
    L.append('.amdgcn_target "amdgcn-amd-amdhsa--gfx950"')
    L.append(".text"); L.append(f".globl {KN}"); L.append(".p2align 8"); L.append(f".type {KN},@function")
    lab(KN)
    e("s_load_dwordx16 s[16:31], s[0:1], 0")
    e("s_load_dwordx4 s[32:35], s[0:1], 64")
    e("s_load_dwordx2 s[36:37], s[0:1], 80")
    st(10)
    e("s_cmp_ge_u32 s2, 256")
    e("s_cbranch_scc1 L_end")
    e("v_lshrrev_b32 v1, 6, v0")
    e("v_and_b32 v2, 63, v0")
    e(f"v_readfirstlane_b32 s{sWAVE}, v1")
    e(f"s_and_b32 s{sXCD}, s2, 7")
    e(f"s_lshr_b32 s{sSLOT}, s2, 3")
    e(f"s_cmp_ge_u32 s{sSLOT}, 26")
    e("s_cbranch_scc1 L_aux0")
    sec("pref"); lab("L_aux0")
    e(f"s_cmp_gt_u32 s{sSLOT}, {26 if opt.foldx else 27}")
    e("s_cbranch_scc1 L_prefetch")
    if opt.cpf:
        e(f"s_getpc_b64 s[{S_IDX}:{S_IDX+1}]")
        lab("L_pc")
        e(f"s_sub_u32 s{S_IDX}, s{S_IDX}, L_pc-{KN}")
        e(f"s_subb_u32 s{S_IDX+1}, s{S_IDX+1}, 0")
        e(f"s_mov_b32 s{S_IDX+2}, L_end-{KN}")
        e(f"s_mov_b32 s{S_IDX+3}, 0x20000")
        e("v_lshlrev_b32 v3, 7, v0")
        e(f"buffer_load_dword v255, v3, s[{S_IDX}:{S_IDX+3}], 0 offen")
    sec("entry")
    e(f"s_mul_i32 s6, s{sXCD}, 26")
    e(f"s_add_u32 s6, s6, s{sSLOT}")
    e(f"s_and_b32 s{sRB}, s6, 7")
    e(f"s_and_b32 s{sT}, s{sWAVE}, 1")
    e(f"s_lshr_b32 s{sT+2}, s{sWAVE}, 1")
    e(f"s_lshl2_add_u32 s{sT+4}, s{sRB}, s{sT+2}")
    e(f"s_mul_i32 s{sT+4}, s{sT+4}, 3328")
    e(f"s_lshl_b32 s{sT+5}, s{sT}, 11")
    e(f"s_add_u32 s{sT+4}, s{sT+4}, s{sT+5}")
    e(f"s_lshl_b32 s{sT+3}, s{sT+2}, 13")
    e(f"s_add_u32 s{sT+3}, s{sT+3}, s{sT+5}")
    e(f"s_add_u32 m0, s{sT+3}, {RING+4096}")
    e("v_lshlrev_b32 v6, 4, v2")
    e("v_lshrrev_b32 v3, 3, v2")
    e("v_lshrrev_b32 v4, 4, v2")
    e("v_and_b32 v10, 7, v2")
    e(f"s_lshl_b32 s{sT+1}, s{sT}, 2")
    e("v_xor_b32 v5, v10, v4")
    e(f"v_xor_b32 v5, s{sT+1}, v5")
    e("v_lshlrev_b32 v5, 4, v5")
    e("v_lshl_add_u32 v5, v3, 7, v5")
    e(f"s_lshl1_add_u32 s{sT+3}, s{sSLOT}, s{sT+2}")
    e(f"s_lshl1_add_u32 s{sTM}, s{sT+3}, s{sT}")
    e(f"s_lshl_b32 s{sTM}, s{sTM}, 10")
    e(f"s_sub_u32 s{sWR2}, {63*2048}, s{sT+5}")
    e(f"s_lshr_b32 s{sT+5}, s{sT+5}, 1")
    e(f"s_add_u32 s{sWR1}, s{sWR2}, s{sT+5}")
    e(f"s_mov_b32 s{S_IDX+2}, 106496"); e(f"s_mov_b32 s{S_IDX+3}, 0x20000")
    e(f"s_mov_b32 s{S_TBL+2}, 128000"); e(f"s_mov_b32 s{S_TBL+3}, 0x20000")
    e(f"s_mov_b32 s{sT+3}, {opt.n0-1}")
    e("s_waitcnt lgkmcnt(0)")
    if opt.pst: st(84)
    e(f"s_mov_b64 s[{S_IDX}:{S_IDX+1}], s[{P_IDX}:{P_IDX+1}]")
    e(f"s_mov_b64 s[{S_TBL}:{S_TBL+1}], s[{P_TBL}:{P_TBL+1}]")
    e(f"buffer_load_dwordx4 v6, s[{S_IDX}:{S_IDX+3}], s{sT+4} offen lds")
    if opt.trim:
        e(f"s_cmp_eq_u32 s{sT}, 0")
        e("s_cselect_b64 exec, -1, 0xffff")
    e(f"buffer_load_dwordx4 v6, s[{S_IDX}:{S_IDX+3}], s{sT+4} offen offset:1024 lds")
    if opt.trim: e("s_mov_b64 exec, -1")
    nl=[0]
    def tloop(n=None,vm=None):
        nl[0]+=1; name=f"L_tl{nl[0]}"
        if n is not None:
            if n==0: return
            e(f"s_mov_b32 s{sT+3}, {n-1}")
        lab(name)
        e(f"s_mov_b32 m0, s{sTM}")
        e(f"s_add_u32 s{sTM}, s{sTM}, 8192")
        e(f"buffer_load_dwordx4 v5, s[{S_TBL}:{S_TBL+3}], m0 offen lds")
        e(f"s_cmp_ge_u32 s{sTM}, s{sWR1}")
        e(f"s_cselect_b32 s{sT+5}, s{sWR2}, 0")
        e(f"s_sub_u32 s{sTM}, s{sTM}, s{sT+5}")
        e(f"s_sub_u32 s{sT+3}, s{sT+3}, 1")
        e(f"s_cbranch_scc0 {name}")
        if vm is not None:
            for t in range(n): vm.issue("tbl")
    tloop()
    e(f"s_cmp_ge_u32 s{sWAVE}, 4")
    e("s_cbranch_scc1 L_help_pro")
    sec("dnn0")
    tbl=tloop

    vWe,vWo=1,3
    AD=8; AF=16; F0=48; REC=80; ACC=128
    VT=106; PB,PC=110,111; BI=112; W2P=112; EV=120; VR=122; WA=123; KC=126; RA1=5; VB=6
    SEL=80; ONE=86; vC1=87; S0=88; S1=89; TA=90
    acc=lambda lt,ct: ACC+(lt*4+ct)*4
    Fr=lambda j,ct: F0+(j&1)*16+ct*4
    afr=lambda lt: AF+4*lt
    vm=Q(63); lg=Q(15)
    cm("---- DNN wave prologue ----")
    for x in ["idx0","idx3"]+["tbl"]*opt.n0: vm.issue(x)
    e(f"s_lshr_b32 s{sCB}, s6, 3")
    e(f"s_lshl_b32 s{sRING}, s{sWAVE}, 13")
    e(f"s_add_u32 s{sRING}, s{sRING}, {RING}")
    e(f"s_lshl_b32 s{sT+7}, s{sWAVE}, 5")
    e(f"v_add_u32 v9, s{sT+7}, v3")
    e("v_mul_u32_u24 v9, 3328, v9")
    e("v_lshlrev_b32 v11, 1, v4")
    e("v_and_b32 v11, 2, v11")
    e("v_xor_b32 v11, v11, v10")
    e("v_lshl_add_u32 v1, v11, 4, v9")
    e(f"s_lshl_b32 s{sT+7}, s{sCB}, 7")
    e(f"v_add_u32 v1, s{sT+7}, v1")
    e("v_xor_b32 v3, 64, v1")
    e(f"v_add_u32 v3, {8*3328-1024}, v3")
    srd(S_W,P_W,1664*3328)
    sWO=12
    def d3(j,pc):
        ld=lambda: (e(f"buffer_load_dwordx4 v{vWo if pc&1 else vWe}, s[{S_W}:{S_W+3}], s{sWO} offen offset:{(pc&1)*1024} lds"),vm.issue(f"w{j}_{pc}"))
        if pc&1: return [ld]
        return [E(f"s_add_u32 m0, s{sRING}, {((j&1)*4+pc)*1024}"),E(f"s_mov_b32 s{sWO}, {(128*j+8*pc)*3328}"),ld]
    def dma(j,pcs):
        for pc in pcs:
            for f in d3(j,pc): f()
    dma(0,range(4))
    def bias_loads(ii):
        for i in ii:
            e(f"buffer_load_dwordx2 v[{BI+2*i}:{BI+2*i+1}], v{VB}, s[{S_A}:{S_A+3}], 0 offen offset:{i*32}"); vm.issue(f"bias{i}")
    TB=[opt.n0]+[int(c,16) for c in str(opt.tb)]
    e("s_branch L_dnn_b")
    sec("dnn"); lab("L_dnn_b")
    e(f"v_lshl_add_u32 v{VB}, v4, 3, s{sT+7}")
    e(f"v_mov_b32 v7, {FLAGS}")
    srd(S_A,P_B1,3328)
    if opt.pst: st(86)
    e("v_and_b32 v13, 15, v2")
    e("v_mul_u32_u24 v13, 104, v13")
    e(f"s_lshl2_add_u32 s{sT+5}, s{sT+2}, {RING+4096}")
    e(f"v_add_u32 v13, s{sT+5}, v13")
    e(f"v_xor_b32 v9, s{sWAVE}, v4")
    e("v_lshl_add_u32 v24, v9, 13, v13")
    e("v_add_u32 v25, 1664, v24")
    e("v_bfe_u32 v9, v2, 2, 2")
    e("v_lshlrev_b32 v13, 7, v9")
    e("v_lshl_add_u32 v13, v4, 10, v13")
    e("v_lshrrev_b32 v9, 1, v9")
    e("v_lshl_add_u32 v13, v9, 5, v13")
    e("v_and_b32 v9, 1, v4")
    e("v_lshl_add_u32 v13, v9, 6, v13")
    e("v_and_b32 v9, 3, v2")
    e("v_lshl_add_u32 v13, v9, 3, v13")
    e(f"v_add_u32 v{VT}, s{sRING}, v13")
    e(f"v_xor_b32 v{VT+1}, 32, v{VT}")
    e(f"v_xor_b32 v{VT+2}, 64, v{VT}")
    e(f"v_xor_b32 v{VT+3}, 0x60, v{VT}")
    e(f"v_add_u32 v{KC}, s{sT+1}, v4")
    e(f"v_lshl_or_b32 v{KC}, v{KC}, 16, v{KC}")
    e(f"s_mov_b32 s{sT+6}, 0x00070007")
    e(f"s_waitcnt vmcnt({vm.need('idx3')})")
    if opt.pst: st(88)
    e("s_barrier")
    if opt.pst: st(90)
    RW=lambda t,j: 160+t*14+j
    for j in range(0,13,2):
        for t in range(2):
            e(f"ds_read2_b32 v[{RW(t,j)}:{RW(t,j)+1}], v{24+t} offset0:{2*j} offset1:{2*j+2}")
    tbl(TB[1],vm)
    srd(S_WS,P_WS,WS_SIZE)
    srd(S_B,P_W2,3328)
    e("s_waitcnt lgkmcnt(0)")
    e("s_barrier")
    st(76)
    tbl(TB[2],vm)
    for j in range(13):
        if j==6: tbl(TB[3],vm)
        d=REC+2*j
        e(f"v_lshl_or_b32 v{d}, v{RW(1,j)}, 16, v{RW(0,j)}")
        e(f"v_lshrrev_b32 v13, 1, v{d}")
        e(f"v_and_b32 v13, s{sT+6}, v13")
        e(f"v_lshl_or_b32 v{d}, v{d}, 3, v13")
        e(f"v_mov_b32 v{d+1}, v{d}")
        if j: e(f"v_permlane32_swap_b32 v{d-2}, v{d-1}")
    e("s_nop 1")
    e(f"v_permlane32_swap_b32 v{REC+24}, v{REC+25}")
    def bc(j,h):
        A=REC+2*j+h; B=PC if h else PB
        return [E(f"v_mov_b32 v{B}, v{A}")],[E(f"v_permlane16_swap_b32 v{A}, v{B}"),E(f"v_xor_b32 v{A}, v{KC}, v{A}"),E(f"v_xor_b32 v{B}, v{KC}, v{B}")]
    def adr(lt,j):
        src={0:REC+2*j,1:PB,2:REC+2*j+1,3:PC}[lt>>1]
        e(f"v_lshlrev_b32_sdwa v{AD+lt}, 4, v{src} dst_sel:DWORD dst_unused:UNUSED_PAD src0_sel:DWORD src1_sel:WORD_{lt&1}")
    def Rop(lt,j): e(f"ds_read_b128 v[{afr(lt)}:{afr(lt)+3}], v{AD+lt}"); lg.issue(f"R{lt}_{j}")
    def Top(j,ct,h4):
        d=Fr(j,ct)+2*h4
        e(f"ds_read_b64_tr_b16 v[{d}:{d+1}], v{VT+ct} offset:{(j&1)*4096+h4*512}"); lg.issue(f"T{j}_{ct}{h4}")
    for h in range(2): bc(0,h)[0][0]()
    e("s_nop 0")
    for h in range(2):
        for f in bc(0,h)[1]: f()
    for lt in range(8): adr(lt,0)
    bc(1,0)[0][0]()
    if ST: e("s_waitcnt lgkmcnt(0)")
    e(f"s_waitcnt vmcnt({vm.need('w0_3')})")
    for ct in range(4): Top(0,ct,0); Top(0,ct,1)
    for f in bc(1,0)[1]: f()
    dma(1,range(4))
    e("s_waitcnt lgkmcnt(0)"); lg.done=len(lg.ops)
    for x in [f"s_xor_b32 s{sT}, s{sWAVE}, 1",f"s_lshl_b32 s{sT}, s{sT}, 12",f"v_lshlrev_b32 v{RA1}, 4, v2",f"v_add_u32 v{WA}, s{sT}, v{RA1}",
              f"v_xor_b32 v{WA+1}, {3<<12}, v{WA}",f"v_xor_b32 v{WA+2}, {2<<12}, v{WA}",f"s_lshl_b32 s{sT}, s{sWAVE}, 12",f"v_add_u32 v{RA1}, s{sT}, v{RA1}",
              f"v_lshrrev_b32 v{VR}, 5, v2","v_and_b32 v0, 15, v2",f"v_lshl_add_u32 v{VR}, v{VR}, 4, v0",f"s_lshl_b32 s{sT}, s{sRB}, 7",
              f"s_lshl_b32 s{sT+1}, s{sWAVE}, 5",f"s_add_u32 s{sT}, s{sT}, s{sT+1}",f"v_add_lshl_u32 v{VR}, v{VR}, s{sT}, 3"]: e(x)
    if opt.pst: st(92)
    e(f"s_waitcnt vmcnt({vm.need('tbl')})")
    st(78)
    e("s_barrier")
    st(80,True)
    if ST: e("s_memtime s[96:97]"); e("s_waitcnt lgkmcnt(0)")
    if opt.prio: e(f"s_setprio {opt.prio}")
    LT=[2,3,4,5,6,7,0,1]
    for lt in LT: Rop(lt,0)
    def inc(off,nm):
        def f():
            e("s_mov_b64 exec, 1")
            e(f"ds_add_u32 v7, v{ONE} offset:{off}"); lg.issue(nm)
            e("s_mov_b64 exec, -1")
        return f
    def wv(n): return lambda n=n: (e(f"s_waitcnt vmcnt({vm.need(n)})") if vm.pending(n) else None)
    def wl(n): return lambda n=n: (e(f"s_waitcnt lgkmcnt({lg.need(n)})") if lg.pending(n) else None)
    T_=lambda j,ct,h4: (lambda: Top(j,ct,h4))
    def badd(k):
        ct,r=k>>2,k&3; src=BI+2*ct+(r>>1)
        return [E(f"v_and_b32 v0, 0xffff0000, v{src}" if r&1 else f"v_lshlrev_b32 v0, 16, v{src}")]+\
               [(lambda t=t: (hz((t,ct),8),e(f"v_add_f32 v{acc(t,ct)+r}, v{acc(t,ct)+r}, v0"))) for t in range(2)]
    selops=[E("v_and_b32 v0, 15, v2"),E(f"v_lshlrev_b32 v{TA}, 2, v4"),E(f"v_sub_u32 v0, v0, v{TA}"),E(f"s_movk_i32 s{sT+7}, 0x3f80"),
            E(f"v_lshlrev_b32 v{TA}, 4, v0"),E(f"v_and_b32 v{TA}, 16, v{TA}"),E(f"v_lshlrev_b32 v{TA}, v{TA}, s{sT+7}"),E("v_lshrrev_b32 v0, 1, v0"),
            E(f"v_cmp_eq_u32 s[{sT}:{sT+1}], 0, v0"),E(f"v_cmp_eq_u32 s[{sT+2}:{sT+3}], 1, v0"),E(f"v_mov_b32 v{SEL}, 0"),E(f"v_mov_b32 v{SEL+1}, 0"),
            E(f"v_cndmask_b32 v{SEL+2}, 0, v{TA}, s[{sT}:{sT+1}]"),E(f"v_cndmask_b32 v{SEL+3}, 0, v{TA}, s[{sT+2}:{sT+3}]"),E(f"v_mov_b32 v{SEL+4}, 0"),E(f"v_mov_b32 v{SEL+5}, 0")]
    misc=[E(f"s_xor_b32 s{sT}, s{sWAVE}, 1"),E(f"s_lshl_b32 s{sT}, s{sT}, 12"),E(f"v_lshlrev_b32 v{RA1}, 4, v2"),E(f"v_add_u32 v{WA}, s{sT}, v{RA1}"),
          E(f"v_xor_b32 v{WA+1}, {3<<12}, v{WA}"),E(f"v_xor_b32 v{WA+2}, {2<<12}, v{WA}"),E(f"s_lshl_b32 s{sT}, s{sWAVE}, 12"),E(f"v_add_u32 v{RA1}, s{sT}, v{RA1}"),
          E(f"v_mov_b32 v{ONE}, 1"),E(f"v_mov_b32 v{vC1}, {f2u(C1)}"),E(f"v_mov_b32 v{S0}, 0"),E(f"v_mov_b32 v{S1}, 0"),
          E(f"v_lshrrev_b32 v{VR}, 5, v2"),E("v_and_b32 v0, 15, v2"),E(f"v_lshl_add_u32 v{VR}, v{VR}, 4, v0"),E(f"s_lshl_b32 s{sT}, s{sRB}, 7"),
          E(f"s_lshl_b32 s{sT+1}, s{sWAVE}, 5"),E(f"s_add_u32 s{sT}, s{sT}, s{sT+1}"),E(f"v_add_lshl_u32 v{VR}, v{VR}, s{sT}, 3")]
    def w2l(i): return lambda: (e(f"buffer_load_dwordx2 v[{W2P+2*i}:{W2P+2*i+1}], v{VB}, s[{S_B}:{S_B+3}], 0 offen offset:{i*32}"),vm.issue(f"w2_{i}"))
    evl=[E(f"s_mov_b32 s{sT+2}, {EPOCH}"),lambda: (e(f"buffer_load_dwordx2 v[{EV}:{EV+1}], v{VR}, s[{S_WS}:{S_WS+3}], s{sT+2} offen"),vm.issue("ev"))]
    LO=list(range(92,100))
    W2F=[LO[k>>1] if k%2==0 else W2P+(k>>1) for k in range(16)]
    unp=[]
    for k in range(8):
        unp+= [E(f"v_lshlrev_b32 v{LO[k]}, 16, v{W2P+k}"),E(f"v_and_b32 v{W2P+k}, 0xffff0000, v{W2P+k}")]
    def cv(lt):
        a=acc(lt,0); u=lt>>1
        c=[(lambda m=m: (hz((lt,m>>1),8),e(f"v_cvt_pk_bf16_f32 v{a+m}, v{a+2*m}, v{a+2*m+1}"))) for m in range(8)]
        w=[(lambda h=h: (e(f"ds_write_b128 v{WA+u-1}, v[{a+4*h}:{a+4*h+3}] offset:{(u-1)*16384+((lt&1)*2+h)*1024}"),lg.issue("W"))) for h in range(2)]
        return c[:4]+w[:1]+c[4:]+w[1:]
    def bar2():
        e("s_waitcnt lgkmcnt(0)"); lg.done=len(lg.ops)
        if opt.its: e("s_memtime s[92:93]")
        if not opt.pst: st(82)
        e("s_barrier")
        if not opt.pst: st(84)
    ITS={1:76,2:78,3:80,5:82,7:84,9:86,11:88,12:90}
    bl=sum((badd(k) for k in range(16)),[])
    sel2=[(lambda f=f: f()) for f in selops]
    extra={2:[(lambda i=i: bias_loads([i])) for i in range(4)],
           3:[wv('bias3')]+bl[:6],4:bl[6:15],5:bl[15:24],6:bl[24:33],7:bl[33:42],8:bl[42:48],
           9:[w2l(i) for i in range(4)]+evl+misc[8:12],10:selops,11:[]}
    q12=[]
    for j in range(13):
        cm(f"---- iteration {j} ----")
        if opt.its==1 and j in ITS: e(f"s_memtime s[{ITS[j]}:{ITS[j]+1}]")
        if opt.its and j==12: opt.pst=1
        G=[[] for k in range(32)]
        if j<12:
            Ts=[T_(j+1,ct,h4) for ct in range(4) for h4 in range(2)]
            mB,rB=bc(j+1,1)
            G[2]+=mB; G[6]+=rB[:1]; G[7]+=rB[1:2]; G[11]+=rB[2:]
            if j+2<13:
                mA,rA=bc(j+2,0); G[23]+=mA; G[26]+=rA[:1]; G[27]+=rA[1:2]; G[30]+=rA[2:]
            free=[k for k in range(32) if k%4<2]
            seq=[]
            if j==0: seq=[[x] for x in d3(2,0)+d3(2,1)+d3(2,2)+d3(2,3)]+[[wv('w1_3'),Ts[0]]]+[[x] for x in Ts[1:]]
            else:
                seq=[[wv(f'w{j+1}_3'),Ts[0]]]+[[x] for x in Ts[1:]]
                if opt.tpk and j>1: seq=[[wv(f'w{j+1}_3'),Ts[0],Ts[1]],Ts[2:4],Ts[4:6],Ts[6:8]]
                if j+3<13:
                    dd=d3(j+3,0)+d3(j+3,1)+d3(j+3,2)+d3(j+3,3)
                    seq+=[[dd[0]],[dd[1]],[wl(f'T{j+1}_31'),dd[2]]]+[[x] for x in dd[3:]]
            if j==1:
                dd=d3(3,0)+d3(3,1)+d3(3,2)+d3(3,3)
                for k,x in zip((3,7,10,11,14,15,18,19),dd): G[k].append(x)
                seq=seq[:8]+[[]]*0+seq[8:]
                free=free[:8]+[20,21,22,24,25,28,29,31]
            for k,x in zip(free,seq): G[k]+=x
            if j==10: G[17]+=[wl('T11_31'),inc(F_S1,"s1")]
            ex=list(extra.get(j,[]))
            if j==11: ex=[E("s_waitcnt vmcnt(0)")]+unp
            lo,hi=(5,23) if j in (3,4,5,6,7,8) else (4,32)
            k=lo
            while ex:
                cand=[g for g in range(k,hi) if len(G[g])+(1 if g%4>=2 else 0)<2]
                if not cand:
                    G[hi-2]+=ex; break
                k=cand[0]; G[k].append(ex.pop(0))
        for g,lt in enumerate(LT):
            if g%2==0:
                needs=[f"R{lt}_{j}",f"R{LT[g+1]}_{j}"]+([f"T{j}_31"] if g==0 else [])
                if lg.pending(*needs): e(f"s_waitcnt lgkmcnt({lg.need(*needs)})")
            for ct in range(4):
                c=f"v[{acc(lt,ct)}:{acc(lt,ct)+3}]"
                e(f"v_mfma_f32_16x16x32_bf16 {c}, v[{Fr(j,ct)}:{Fr(j,ct)+3}], v[{afr(lt)}:{afr(lt)+3}], {0 if j==0 else c}")
                lastw[(lt,ct)]=cnt[0]
                if j<12:
                    if ct==2: adr(lt,j+1)
                    if ct==3: Rop(lt,j+1)
                    for f in G[4*g+ct]: f()
                else:
                    if g==0 and ct==2: bar2()
                    n=3 if (g,ct)!=(7,3) else 99
                    if not (ct==0 and g<=6):
                        for f in q12[:n]: f()
                        q12=q12[n:]
            if j==12 and lt>=2:
                q12+=cv(lt)
                if lt==7: q12+= [inc(F_RED,"inc"),E(f"s_mov_b32 s{sT+2}, {f2u(C2)}")]
    if not opt.pst: st(86)
    if ST: e("s_memtime s[98:99]")
    lds_spin("L_red",7,0,F_RED,4)
    if not opt.pst: st(88,True)
    lg=Q(15)
    adds=[]
    for t in range(2):
        for u in (1,2,3):
            for h in range(2):
                r=acc(2*u+t,0)+4*h
                e(f"ds_read_b128 v[{r}:{r+3}], v{RA1} offset:{(u-1)*16384+(t*2+h)*1024}"); lg.issue(f"p{t}{u}{h}")
                for sx in range(2):
                    def add(t=t,u=u,h=h,r=r,sx=sx):
                        if lg.pending(f"p{t}{u}{h}"): e(f"s_waitcnt lgkmcnt({lg.need(f'p{t}{u}{h}')})")
                        c=f"v[{acc(t,2*h+sx)}:{acc(t,2*h+sx)+3}]"; sl=SEL if sx else SEL+2
                        e(f"v_mfma_f32_16x16x32_bf16 {c}, v[{sl}:{sl+3}], v[{r}:{r+3}], {c}"); lastw[(t,2*h+sx)]=cnt[0]
                    adds.append(add)
    for f in adds[:13]: f()
    adds=adds[13:]
    if opt.gp>=0: e(f"s_setprio {opt.gp}")
    T=F0
    for q in range(8):
        t,ct=q>>2,q&3
        a=acc(t,ct)
        def A(n=2):
            for k in range(n):
                if adds: adds.pop(0)()
        hz((t,ct),8)
        for r in range(4): e(f"v_mul_f32 v{T+r}, v{a+r}, v{a+r}")
        A(1)
        for r in range(4): e(f"v_fma_f32 v{T+r}, v{T+r}, s{sT+2}, v{vC1}")
        A(1)
        for r in range(4): e(f"v_mul_f32 v{T+r}, v{T+r}, v{a+r}")
        A(1)
        for r in range(4): e(f"v_exp_f32 v{T+r}, v{T+r}")
        A(1)
        for r in range(4): e(f"v_mul_f32 v{a+r}, v{a+r}, v{W2F[4*ct+r]}")
        for r in range(4): e(f"v_add_f32 v{T+r}, 1.0, v{T+r}")
        for r in range(4): e(f"v_rcp_f32 v{T+r}, v{T+r}")
        if adds: A(1)
        else: e("s_nop 0")
        for r in range(4): e(f"v_fmac_f32 v{S1 if t else S0}, v{a+r}, v{T+r}")
    e(f"s_movk_i32 s{sT}, 0xff")
    e(f"v_add_u32 v{EV}, 1, v{EV}")
    e(f"v_permlane32_swap_b32 v{S0}, v{S1}")
    e(f"v_xor_b32 v{EV+1}, v{EV}, v{EV+1}")
    e(f"v_add_f32 v{S0}, v{S0}, v{S1}")
    e(f"v_mov_b32 v{S1}, v{S0}")
    e(f"s_lshl_b32 s{sT+1}, s{sCB}, 13")
    e(f"s_add_u32 s{sT+1}, s{sT+1}, {GRAN}")
    e(f"v_permlane16_swap_b32 v{S0}, v{S1}")
    e(f"v_add_f32 v{S0}, v{S0}, v{S1}")
    e(f"v_bfi_b32 v{EV+1}, s{sT}, v{EV+1}, v{S0}")
    e("s_mov_b32 exec_lo, 0xffff")
    e("s_mov_b32 exec_hi, 0xffff")
    e(f"buffer_store_dwordx2 v[{EV}:{EV+1}], v{VR}, s[{S_WS}:{S_WS+3}], s{sT+1} offen sc0 sc1")
    if ST:
        if opt.gcyc: e("s_memtime s[98:99]")
        if not opt.pst: st(90); e("s_waitcnt vmcnt(0)"); st(92,True)
        e("s_waitcnt lgkmcnt(0)"); e("s_sub_u32 s98, s98, s96")
        if opt.its:
            for r in range(76,94,2):
                e(f"s_sub_u32 s{r}, s{r}, s96"); e(f"s_mul_i32 s{r}, s{r}, 100"); e(f"s_add_u32 s{r}, s{r}, s10")
        dump([10,76,78,80,82,84,86,88,90,92,98])
    e("s_endpgm")

    sec("hpro")
    def late_sloads():
        e(f"s_lshl_b32 s{sT+8}, s{sROW}, 3")
        e(f"s_add_u32 s{sT+8}, s{sT+8}, {EPOCH}")
        e(f"s_load_dwordx2 s[{sE}:{sE+1}], s[{P_WS}:{P_WS+1}], s{sT+8}")
        e(f"s_load_dword s9, s[{P_BO}:{P_BO+1}], 0")
    X=32
    def x0_addrs():
        e("v_and_b32 v3, 31, v2")
        e("v_lshlrev_b32 v4, 2, v3")
        for r in range(26): e(f"v_readlane_b32 s{76+r}, v29, {r}")
        e("s_mov_b32 exec_hi, 0")
        for r in range(26): e(f"v_xor_b32 v{X+r}, s{76+r}, v4")
        e("s_mov_b64 exec, -1")
        e("s_mov_b32 exec_lo, 0")
        for r in range(26): e(f"v_xor_b32 v{X+r}, s{76+(r+1)%26}, v4")
        e("s_mov_b64 exec, -1")
    lab("L_help_pro")
    rowidx_load()
    tloop(opt.nt0-opt.n0)
    e(f"v_mov_b32 v7, {FLAGS}")
    e("v_mov_b32 v8, 0"); e("v_mov_b32 v9, 0")
    e("ds_write2_b64 v7, v[8:9], v[8:9] offset1:1")
    e("ds_write2_b64 v7, v[8:9], v[8:9] offset0:2 offset1:3")
    e(f"s_waitcnt vmcnt({opt.nt0+1})")
    e("s_barrier")
    tloop(opt.nt1)
    e("s_waitcnt lgkmcnt(0)")
    e("s_barrier")
    if opt.trim:
        e(f"s_cmp_eq_u32 s{sWAVE}, 4")
        e(f"s_cselect_b32 s{sT+3}, {16-opt.nt0-opt.nt1-1}, {16-opt.nt0-opt.nt1-2}")
        tloop()
    else: tloop(16-opt.nt0-opt.nt1)
    e("s_branch L_help_b")
    sec("help"); lab("L_help_b")
    e(f"s_waitcnt vmcnt({15-opt.n0})")
    if opt.xlds:
        e("v_lshlrev_b32 v8, 3, v29"); e("v_and_b32 v8, 0x70, v8"); e("v_lshl_or_b32 v29, v29, 7, v8")
    else: e("v_lshlrev_b32 v29, 7, v29")
    x0_addrs()
    if opt.xearly:
        for r in range(26):
            e(f"buffer_load_dword v{X+r}, v{X+r}, s[{S_TBL}:{S_TBL+3}], 0 offen")
        e("s_waitcnt vmcnt(26)")
        e("s_barrier")
        e("s_branch L_help_main")
    e("s_waitcnt vmcnt(0)")
    e("s_barrier")
    if opt.xsl: e(f"s_sleep {opt.xsl}")
    if opt.xlds:
        for r in range(26):
            e(f"ds_read_b32 v{X+r}, v{X+r}")
            if opt.xgap and r%opt.xgap==opt.xgap-1: e("s_sleep 1")
        e("s_branch L_help_main")
    lab("L_help_x0")
    for r in range(26):
        e(f"buffer_load_dword v{X+r}, v{X+r}, s[{S_TBL}:{S_TBL+3}], 0 offen")
    lab("L_help_main")
    srd(S_WS,P_WS,WS_SIZE); srd(S_A,P_DBG,256); srd(S_B,P_OUT,2048)
    Z0=8
    ZE=lambda s: Z0+4*s
    ZO=lambda s: Z0+88+4*s
    LE=lambda k: Z0+176+4*k
    LO=lambda k: Z0+184+4*k
    R=200; MT=252
    e("v_lshrrev_b32 v5, 2, v3")
    e("v_mul_u32_u24 v5, 5888, v5")
    e("v_and_b32 v6, 3, v2")
    e("v_lshl_add_u32 v5, v6, 4, v5")
    e("v_lshrrev_b32 v6, 5, v2")
    e("v_lshl_add_u32 v5, v6, 6, v5")
    e("v_mov_b32 v7, 0x7fff0000")
    e("v_cmp_gt_u32 vcc, 26, v3")
    e("v_lshlrev_b32 v6, 13, v2")
    e(f"s_lshl_b32 s{sT}, s{sROW}, 3")
    e("v_cndmask_b32 v5, v7, v5, vcc")
    e(f"s_add_u32 s{sT}, s{sT}, {GRAN}")
    e(f"v_add_u32 v6, s{sT}, v6")
    e("v_cmp_gt_u32 vcc, 26, v2")
    e("v_lshlrev_b32 v1, 4, v2")
    e(f"v_add_u32 v1, 97280, v1")
    e("v_cndmask_b32 v6, v7, v6, vcc")
    e(f"v_mov_b32 v7, {FLAGS}")
    e("s_waitcnt vmcnt(0) lgkmcnt(0)")
    late_sloads()
    if opt.enc in (96,97):
        e("s_cmp_ge_u32 s2, 8")
        e("s_cbranch_scc1 L_nost")
        e("v_mov_b32 v0, s10")
        e("s_lshl_b32 s12, s2, 2")
        e(f"buffer_store_dword v0, off, s[{S_A}:{S_A+3}], s12 offset:64 sc0 sc1")
        lab("L_nost")
    st(76)
    for r in range(26):
        e(f"v_lshlrev_b32 v{R+2*r}, 16, v{X+r}")
        e(f"v_and_b32 v{R+2*r+1}, 0xffff0000, v{X+r}")
    def zstep(s):
        if opt.noz: return
        for m in range(4):
            (a1,a2),(b1,b2)=pair_of(8*s+2*m),pair_of(8*s+2*m+1)
            if opt.zpk:
                e(f"v_pk_mul_f32 v[{MT}:{MT+1}], v[{R+2*a1}:{R+2*a1+1}], v[{R+2*a2}:{R+2*a2+1}]")
                e(f"v_pk_mul_f32 v[{MT+2}:{MT+3}], v[{R+2*b1}:{R+2*b1+1}], v[{R+2*b2}:{R+2*b2+1}]")
            else:
                e(f"v_mul_f32 v{MT}, v{R+2*a1}, v{R+2*a2}")
                e(f"v_mul_f32 v{MT+2}, v{R+2*b1}, v{R+2*b2}")
                e(f"v_mul_f32 v{MT+1}, v{R+2*a1+1}, v{R+2*a2+1}")
                e(f"v_mul_f32 v{MT+3}, v{R+2*b1+1}, v{R+2*b2+1}")
            e(f"v_cvt_pk_bf16_f32 v{ZE(s)+m}, v{MT}, v{MT+2}")
            e(f"v_cvt_pk_bf16_f32 v{ZO(s)+m}, v{MT+1}, v{MT+3}")
    def zlin():
        for k in range(2):
            for m2 in range(4):
                m=k*8+2*m2
                for tl,d in ((0,LE(k)+m2),(1,LO(k)+m2)):
                    if m+1<=12: e(f"v_cvt_pk_bf16_f32 v{d}, v{R+4*m+tl}, v{R+4*(m+1)+tl}")
                    elif m==12: e(f"v_cvt_pk_bf16_f32 v{d}, v{R+4*m+tl}, 1.0")
                    else: e(f"v_mov_b32 v{d}, 0")
    SC=" sc1" if opt.csc else ""
    if opt.hprio: e(f"s_setprio {opt.hprio}")
    zlin()
    for s in range(opt.zsplit): zstep(s)
    if opt.hprio: e("s_setprio 0")
    st(78)
    e(f"s_load_dwordx8 s[92:99], s[{P_DBG}:{P_DBG+1}], 0")
    e("s_waitcnt lgkmcnt(0)")
    for k in range(1,7): e(f"s_and_b32 s92, s92, s{92+k}")
    e("s_cmp_lg_u32 s92, 0")
    e("s_cbranch_scc1 L_polled")
    lds_spin("L_it9",7,4,F_S1,4,sleep=4)
    e(f"v_lshlrev_b32 v0, 2, v2")
    e(f"buffer_load_dword v4, v0, s[{S_A}:{S_A+3}], 0 offen sc1")
    for s in range(opt.zsplit,opt.zmid): zstep(s)
    e(f"s_mov_b32 s{sT+4}, {opt.bound}")
    e(f"s_mov_b32 s{sT+2}, 0x7f")
    e(f"s_mov_b32 s{sT+3}, 0")
    lab("L_poll1")
    e("s_waitcnt vmcnt(0)")
    e("v_cmp_ne_u32 vcc, 0, v4")
    e(f"s_and_b64 vcc, vcc, s[{sT+2}:{sT+3}]")
    e(f"s_cmp_eq_u64 vcc, s[{sT+2}:{sT+3}]")
    e("s_cbranch_scc1 L_polled")
    e(f"s_sleep {opt.psleep}")
    e(f"buffer_load_dword v4, v0, s[{S_A}:{S_A+3}], 0 offen sc1")
    e(f"s_sub_u32 s{sT+4}, s{sT+4}, 1")
    e("s_cbranch_scc0 L_poll1")
    lab("L_polled")
    if opt.inv: e("buffer_inv sc1")
    st(80)
    lds_spin("L_s1",7,0,F_S1,4,sleep=2)
    e(f"s_sub_u32 s{sT}, s{sWAVE}, 4")
    e(f"s_lshl_b32 s{sT+1}, s{sT}, 13")
    e(f"s_add_u32 m0, s{sT+1}, {RING+4096}")
    e(f"s_lshl_b32 s{sT}, s{sT}, 9")
    e(f"s_sub_u32 s{sT}, s{sT}, 256")
    for t in range(4):
        if t<2:
            e(f"s_cmp_eq_u32 s{sWAVE}, 4")
            e(f"s_cselect_b32 s{sT+1}, {(44+t)*128}, s{sT}")
        else: e(f"s_mov_b32 s{sT+1}, s{sT}")
        e(f"buffer_load_dwordx4 v5, s[{S_WS}:{S_WS+3}], s{sT+1} offen sc1 lds")
        if t<3:
            e(f"s_add_u32 m0, m0, 1024")
            e(f"s_add_u32 s{sT}, s{sT}, 128")
    for s in range(opt.zmid,opt.zbar): zstep(s)
    e("s_waitcnt vmcnt(0)")
    st(82)
    e("s_barrier")
    if opt.hpz: e(f"s_setprio {opt.hpz}")
    for s in range(opt.zbar,opt.zb2): zstep(s)
    def hinc(off):
        e("v_mov_b32 v0, 1")
        e("s_mov_b64 exec, 1")
        e("s_waitcnt vmcnt(0)")
        e(f"ds_add_u32 v7, v0 offset:{off}")
        e("s_mov_b64 exec, -1")
    CWB=97280
    def dmaB0():
        e(f"s_sub_u32 s{sT}, s{sWAVE}, 4")
        e(f"s_lshl_b32 s{sT+1}, s{sT}, 10")
        e(f"s_add_u32 s{sT+1}, s{sT+1}, {CWB}")
        e(f"s_lshl_b32 s{sT}, s{sT}, 7")
        e(f"s_add_u32 s{sT}, s{sT}, {14*128}")
        e(f"s_cmp_ge_u32 s{sWAVE}, 6")
        e(f"s_cselect_b32 s{sT+8}, 6, 7")
        e(f"s_lshl_b32 s{sT+8}, s{sT+8}, 9")
    def dmaB1(t):
        if t<7:
            e(f"s_add_u32 m0, s{sT+1}, {4096*t}")
            e(f"s_add_u32 s{sT+9}, s{sT}, {512*t}")
        else:
            e(f"s_lshl3_add_u32 m0, s{sT+8}, s{sT+1}")
            e(f"s_add_u32 s{sT+9}, s{sT}, s{sT+8}")
        e(f"buffer_load_dwordx4 v5, s[{S_WS}:{S_WS+3}], s{sT+9} offen sc1 lds")
    dmaB0()
    dq=list(range(8))
    for s in range(opt.zb2,22): zstep(s)
    st(84)
    AUE,AUO=200,216; RG=232
    AXE=LE(0); AXO=ZE(0)
    vm=Q(63); lg=Q(15)
    seq=[('eo',22),('eo',23)]+[('e',s) for s in range(4)]+[('o',s) for s in range(4)]+[('eo',s) for s in range(4,22)]
    free=[RG+4*k for k in range(6)]
    reg={}
    lL=[]; lG=[]
    for i,(tl,s) in enumerate(seq):
        for k,fi in ([('x',2*s),('u',2*s+1)] if s<22 else [('u',44+s-22)]): lL.append((i,k,fi))
    cur=[0]; okB=[False]
    def ld():
        if not free or not lL or lL[0][0]>cur[0]+opt.look: return False
        i,k,fi=lL[0]
        if 14<=fi<44 and not okB[0]: return False
        lL.pop(0); r=free.pop(0); reg[(i,k)]=r
        if 14<=fi<44: off=(fi-14)*1024
        else:
            p=fi+2 if fi<14 else fi-44
            off=RING+4096-CWB+(p>>2)*8192+(p&3)*1024
        e(f"ds_read_b128 v[{r}:{r+3}], v1 offset:{off}"); lg.issue(f"{k}{i}")
        return True
    if opt.gateC: lds_spin("L_gC",7,0,{1:F_RED,3:F_G}[opt.gateC],4,sleep=1)
    st(88,True)
    if ST: e("s_memtime s[96:97]"); e("s_waitcnt lgkmcnt(0)")
    if opt.hpc>=0: e(f"s_setprio {opt.hpc}")
    while ld(): pass
    for _ in range(opt.dpre): dmaB1(dq.pop(0))
    first={'xe':1,'xo':1,'ue':1,'uo':1}
    GV=RG; rel=[]
    for i,(tl,s) in enumerate(seq):
        cur[0]=i
        CS={2:76,6:78,10:80,12:82,13:84,16:86,20:88,24:92}
        if opt.cst and i in CS: e(f"s_memtime s[{CS[i]}:{CS[i]+1}]")
        if i==12:
            e(f"ds_read_b32 v0, v7 offset:{F_CW2}"); lg.issue("cwr")
        q,nm=(lg,"lgkmcnt") if f'u{i}' in lg.ops else (vm,"vmcnt")
        if q.pending(f'u{i}'): e(f"s_waitcnt {nm}({q.need(f'u{i}')})")
        n=0
        for t in tl:
            z=(ZE if t=='e' else ZO)(s) if s<22 else (LE if t=='e' else LO)(s-22)
            for k,a in (('x',AXE if t=='e' else AXO),('u',AUE if t=='e' else AUO)):
                if (i,k) not in reg: continue
                c=f"v[{a}:{a+15}]"; r=reg[(i,k)]
                e(f"v_mfma_f32_32x32x16_bf16 {c}, v[{r}:{r+3}], v[{z}:{z+3}], {0 if first[k+t] else c}"); first[k+t]=0; lastw[t]=cnt[0]
                n+=1
                if n==1: free+=rel; rel=[]
                for _ in range(opt.dper):
                    if dq: dmaB1(dq.pop(0))
                if i==opt.bstep2 and n==opt.bn: hinc(F_CW2); lg.issue("cw2")
                if i==12 and n==1:
                    e("s_waitcnt lgkmcnt(0)"); lg.done=len(lg.ops)
                    e(f"v_readfirstlane_b32 s{sT+5}, v0")
                    e(f"s_cmp_ge_u32 s{sT+5}, 4")
                    e("s_cbranch_scc1 L_cw2_x")
                    lds_spin("L_cw2",7,0,F_CW2,4); okB[0]=True
                    while ld(): pass
                ld()
                if len(tl)==1: ld()
            if s<22 and not (t=='e' and s<4): rel.append(z)
        rel+= [reg[(i,k)] for k in 'xu' if (i,k) in reg]
        if i==len(seq)-3:
            assert not lL and not lG
            GV=free.pop(0)
            e(f"buffer_load_dwordx2 v[{GV}:{GV+1}], v6, s[{S_WS}:{S_WS+3}], 0 offen sc1"); vm.issue("gv")
    V=free.pop(0); V2=V+1
    e(f"s_add_u32 s{sE}, s{sE}, 1")
    e(f"s_xor_b32 s{sE+1}, s{sE+1}, s{sE}")
    e(f"s_and_b32 s{sE+1}, s{sE+1}, 0xff")
    e("s_lshl_b32 s9, s9, 16")
    e(f"s_lshl_b32 s{sT+6}, s{sROW}, 1")
    e(f"s_lshl_b32 s{sT+7}, s{sROW}, 3")
    e(f"s_add_u32 s{sT+7}, s{sT+7}, {EPOCH}")
    e(f"v_mov_b32 v{V+3}, s{sE}")
    hz('e',12)
    e(f"v_mul_f32 v{V}, v{AXE}, v{AUE}")
    e(f"v_mul_f32 v{V2}, v{AXE+1}, v{AUE+1}")
    for t in range(2,14): e(f"v_fmac_f32 v{V+(t&1)}, v{AXE+t}, v{AUE+t}")
    hz('o',12)
    for t in range(14): e(f"v_fmac_f32 v{V+(t&1)}, v{AXO+t}, v{AUO+t}")
    e(f"v_add_f32 v{V}, v{V}, v{V2}")
    st(90)
    if ST: e("s_memtime s[98:99]")
    e("s_mov_b32 exec_lo, 0x3ffffff")
    e("s_mov_b32 exec_hi, 0")
    e(f"s_mov_b32 s{sT+4}, {opt.bound}")
    G2=GV+2
    def chk(g,lbl):
        e(f"v_and_b32 v{V2}, 0xff, v{g+1}")
        e(f"v_cmp_eq_u32 vcc, s{sE}, v{g}")
        e(f"v_cmp_eq_u32 s[{sT}:{sT+1}], s{sE+1}, v{V2}")
        e(f"v_and_b32 v{V2}, 0xffffff00, v{g+1}")
        e(f"s_and_b64 vcc, vcc, s[{sT}:{sT+1}]")
        e("s_cmp_eq_u64 vcc, exec")
        e(f"s_cbranch_scc1 L_got")
    lab("L_poll2")
    e(f"buffer_load_dwordx2 v[{G2}:{G2+1}], v6, s[{S_WS}:{S_WS+3}], 0 offen sc1")
    e("s_waitcnt vmcnt(1)")
    chk(GV,0)
    e(f"buffer_load_dwordx2 v[{GV}:{GV+1}], v6, s[{S_WS}:{S_WS+3}], 0 offen sc1")
    e("s_waitcnt vmcnt(1)")
    chk(G2,1)
    e(f"s_sub_u32 s{sT+4}, s{sT+4}, 1")
    e("s_cbranch_scc0 L_poll2")
    lab("L_got")
    e(f"v_add_f32 v{V}, v{V}, v{V2}")
    e("s_mov_b64 exec, -1")
    if not opt.cst: st(92)
    for dpp in ["quad_perm:[1,0,3,2] row_mask:0xf bank_mask:0xf","quad_perm:[2,3,0,1] row_mask:0xf bank_mask:0xf",
                "row_half_mirror row_mask:0xf bank_mask:0xf","row_mirror row_mask:0xf bank_mask:0xf",
                "row_bcast:15 row_mask:0xa bank_mask:0xf","row_bcast:31 row_mask:0xc bank_mask:0xf"]:
        e("s_nop 1")
        e(f"v_add_f32_dpp v{V}, v{V}, v{V} {dpp}")
    e("s_mov_b32 exec_lo, 0")
    e("s_mov_b32 exec_hi, 0x80000000")
    e(f"v_add_f32 v{V}, s9, v{V}")
    e(f"v_cvt_pk_bf16_f32 v{V}, v{V}, v{V}")
    e(f"buffer_store_short v{V}, off, s[{S_B}:{S_B+3}], s{sT+6}")
    e(f"buffer_store_dword v{V+3}, off, s[{S_WS}:{S_WS+3}], s{sT+7}")
    if ST:
        e("s_waitcnt vmcnt(0)"); st(94,True); e("s_sub_u32 s98, s98, s96")
        if opt.cst:
            for r in (76,78,80,82,84,86,88,92):
                e(f"s_sub_u32 s{r}, s{r}, s96"); e(f"s_mul_i32 s{r}, s{r}, 100"); e(f"s_add_u32 s{r}, s{r}, s10")
        dump([10,76,78,80,82,84,86,88,90,92,94,98],0,1)
    e("s_endpgm")

    sec("pref")
    lab("L_aux")
    if opt.foldx:
        e(f"s_mov_b32 s{sT+1}, s{sXCD}")
    else:
        e(f"s_lshl1_add_u32 s{sT+1}, s{sXCD}, s{sSLOT}")
        e(f"s_sub_u32 s{sT+1}, s{sT+1}, 26")
    e(f"s_cmp_lt_u32 s{sT+1}, 7")
    e("s_cbranch_scc1 L_fold")
    sec("fold0"); lab("L_fold")
    cm("---- CIN weight folding: rows i = 4*pidx + (wave&3) ----")
    S_C=S_W; S_O=S_B; sI=6
    e(f"s_and_b32 s{sT}, s{sWAVE}, 3")
    e(f"s_lshl2_add_u32 s{sI}, s{sT+1}, s{sT}")
    M=16
    e("v_lshlrev_b32 v3, 2, v0")
    e("v_mov_b32 v7, 0x7fff0000")
    e(f"s_movk_i32 s{sT+1}, 338")
    e(f"v_cmp_gt_u32 vcc, s{sT+1}, v0")
    e("v_lshrrev_b32 v4, 1, v2")
    e("v_and_b32 v5, 1, v2")
    e("v_cndmask_b32 v3, v7, v3, vcc")
    e("v_lshlrev_b32 v4, 3, v4")
    e("s_waitcnt lgkmcnt(0)")
    e(f"s_load_dwordx8 s[76:83], s[{P_WOUT}:{P_WOUT+1}], 104")
    e(f"s_load_dwordx4 s[84:87], s[{P_WOUT}:{P_WOUT+1}], 136")
    e(f"s_load_dword s88, s[{P_WOUT}:{P_WOUT+1}], 152")
    srd(S_C,P_CIN,105456)
    for gg in range(26):
        if gg%3==0: e(f"s_mov_b32 s{sT+2}, {2*35152+gg*1352}")
        e(f"buffer_load_dword v{M+gg}, v3, s[{S_C}:{S_C+3}], s{sT+2} offen offset:{(gg%3)*1352}")
    e("s_branch L_fold_b")
    sec("fold"); lab("L_fold_b")
    PP=44; QQ=52
    def slots():
        for ee in range(8):
            e(f"v_add_u32 v8, {ee}, v4")
            e("v_mul_u32_u24 v9, 5042, v8")
            e("v_lshrrev_b32 v9, 16, v9")
            e("v_mul_u32_u24 v10, 13, v9")
            e("v_sub_u32 v10, v8, v10")
            e(f"v_lshl_add_u32 v{PP+ee}, v10, 1, v5")
            e(f"v_add_u32 v{QQ+ee}, v{PP+ee}, v9")
            e(f"v_subrev_u32 v10, 26, v{QQ+ee}")
            e(f"v_min_u32 v{QQ+ee}, v{QQ+ee}, v10")
    def m3(later):
        e("v_mul_u32_u24 v8, 5042, v0")
        e("v_lshrrev_b32 v8, 16, v8")
        e("v_mul_u32_u24 v9, 13, v8")
        e("v_sub_u32 v9, v0, v9")
        e("v_lshlrev_b32 v9, 7, v9")
        e("v_lshl_add_u32 v96, v8, 1, v9")
        e("s_waitcnt lgkmcnt(0)")
        st(92)
        for gg in range(26):
            sreg=76+(gg>>1)
            if gg&1: e(f"s_and_b32 s{sT+4+(gg&1)}, s{sreg}, 0xffff0000")
            else:    e(f"s_lshl_b32 s{sT+4+(gg&1)}, s{sreg}, 16")
            if gg%4==0: e(f"s_waitcnt vmcnt({later+25-min(gg+3,25)})")
            e(f"v_lshlrev_b32 v8, 16, v{M+gg}")
            e(f"v_and_b32 v9, 0xffff0000, v{M+gg}")
            if gg==0:
                e(f"v_mul_f32 v10, s{sT+4}, v8"); e(f"v_mul_f32 v11, s{sT+4}, v9")
            else:
                e(f"v_fmac_f32 v10, s{sT+4+(gg&1)}, v8"); e(f"v_fmac_f32 v11, s{sT+4+(gg&1)}, v9")
        e("v_cvt_pk_bf16_f32 v10, v10, v11")
        e(f"s_movk_i32 s{sT+1}, 338")
        e(f"v_cmp_gt_u32 vcc, s{sT+1}, v0")
        e(f"s_and_saveexec_b64 s[{sT+2}:{sT+3}], vcc")
        e("ds_write_b16 v96, v10")
        e("ds_write_b16_d16_hi v96, v10 offset:64")
        e("s_mov_b64 exec, -1")
        st(94)
    def st_addr(cnt):
        e("v_lshlrev_b32 v6, 7, v6")
        e("v_lshl_add_u32 v6, v5, 6, v6")
        e(f"s_and_b32 s{sT+1}, s{sWAVE}, 3")
        e(f"s_lshl_b32 s{sT+1}, s{sT+1}, 4")
        e(f"s_add_u32 s{sT+1}, s{sT+1}, {STG}")
        e(f"v_add_u32 v6, s{sT+1}, v6")
        e(f"v_cmp_gt_u32 vcc, {cnt}, v2")
        e("v_mov_b32 v94, 1.0")
        e(f"v_mov_b32 v8, {STG+8192}")
        e("v_cndmask_b32 v6, v8, v6, vcc")
        e("v_cmp_gt_u32 vcc, 2, v2")
        e("s_nop 1")
        e("v_cndmask_b32 v95, v94, 0.5, vcc")
        e("v_cmp_gt_u32 vcc, 4, v2")
        e("s_nop 1")
        e("v_cndmask_b32 v94, v94, 0.5, vcc")
    e(f"s_cmp_ge_u32 s{sWAVE}, 4")
    e("s_cbranch_scc1 L_aux_w1")
    Pq=60; PR=76; RA=68; VV=16
    e("v_and_b32 v8, 31, v2")
    e("v_lshrrev_b32 v15, 5, v2")
    e(f"v_mul_u32_u24 v10, {8*1352}, v15")
    e("v_lshl_add_u32 v10, v8, 1, v10")
    e("v_cmp_gt_u32 vcc, 26, v8")
    e(f"s_mul_i32 s{sT+3}, s{sI}, 52")
    e(f"s_add_u32 s{sT+3}, s{sT+3}, 35152")
    e("v_cndmask_b32 v10, v7, v10, vcc")
    e("v_cmp_gt_u32 vcc, 32, v2")
    e("v_lshlrev_b32 v12, 2, v2")
    e("s_nop 0")
    e("v_cndmask_b32 v11, v7, v10, vcc")
    for s in range(2):
        for ee in range(8):
            h=16*s+ee
            if h%3==0 or ee==0:
                hb=h; e(f"s_add_u32 s{sT+2}, s{sT+3}, {h*1352}")
            va=11 if (s==1 and ee>=2) else 10
            e(f"buffer_load_ushort v{PR+s*8+ee}, v{va}, s[{S_C}:{S_C+3}], s{sT+2} offen offset:{(h-hb)*1352}")
    srd(S_O,P_WOUT,156)
    e(f"buffer_load_dword v13, v12, s[{S_O}:{S_O+3}], 0 offen offset:52")
    e(f"s_lshl_b32 s{sT+2}, s{sI}, 1")
    e(f"buffer_load_ushort v14, off, s[{S_O}:{S_O+3}], s{sT+2}")
    e("v_lshlrev_b32 v8, 6, v2")
    e("v_mov_b32 v9, 0")
    e("s_mov_b32 exec_lo, 0x7ffffff")
    e("s_mov_b32 exec_hi, 0")
    e("ds_write_b32 v8, v9 offset:52")
    e("ds_write_b32 v8, v9 offset:56")
    e("ds_write_b32 v8, v9 offset:60")
    e("s_mov_b64 exec, -1")
    e("v_and_b32 v8, 31, v2")
    e("v_lshlrev_b32 v93, 6, v8")
    e("v_lshl_add_u32 v93, v15, 4, v93")
    e(f"s_mul_i32 s{sT+1}, s{sWAVE}, 5120")
    e(f"s_add_u32 s{sT+1}, s{sT+1}, 4096")
    e("v_mul_u32_u24 v92, 144, v8")
    e("v_lshl_add_u32 v92, v15, 4, v92")
    e(f"v_add_u32 v92, s{sT+1}, v92")
    slots()
    e("v_cmp_lt_u32 vcc, 43, v2")
    e("v_subrev_u32 v10, 176, v4")
    e("v_mov_b32 v11, 26")
    for ee in range(8):
        e(f"v_add_u32 v8, {ee}, v10")
        e("v_lshl_add_u32 v8, v8, 1, v5")
        e(f"v_min_u32 v8, 31, v8")
        e(f"v_cndmask_b32 v8, v{QQ+ee}, v8, vcc")
        e(f"v_cndmask_b32 v9, v{PP+ee}, v11, vcc")
        e(f"v_mul_u32_u24 v9, 144, v9")
        e(f"v_lshl_add_u32 v9, v8, 2, v9")
        e(f"v_add_u32 v{RA+ee}, s{sT+1}, v9")
    e("v_lshrrev_b32 v8, 1, v2")
    e("v_lshl_add_u32 v6, v8, 1, 1")
    e("v_add_u32 v8, 22, v8")
    e("v_cndmask_b32 v6, v6, v8, vcc")
    st_addr(48)
    m3(18)
    e("s_mov_b32 exec_lo, 0x1fff")
    e("s_mov_b32 exec_hi, 0")
    e("s_waitcnt vmcnt(0)")
    e(f"ds_write_b32 v12, v13 offset:{26*64}")
    e("s_mov_b64 exec, -1")
    for r in range(8): e(f"v_lshl_or_b32 v{Pq+r}, v{PR+2*r+1}, 16, v{PR+2*r}")
    e("s_waitcnt lgkmcnt(0)")
    e("s_barrier")
    Qq=16; D=24
    e(f"ds_read_b128 v[{Qq}:{Qq+3}], v93")
    e(f"ds_read_b128 v[{Qq+4}:{Qq+7}], v93 offset:32")
    e("s_waitcnt lgkmcnt(0)")
    e(f"v_mfma_f32_32x32x16_bf16 v[{D}:{D+15}], v[{Pq}:{Pq+3}], v[{Qq}:{Qq+3}], 0")
    e(f"v_mfma_f32_32x32x16_bf16 v[{D}:{D+15}], v[{Pq+4}:{Pq+7}], v[{Qq+4}:{Qq+7}], v[{D}:{D+15}]")
    e(f"v_mfma_f32_32x32x16_bf16 v[{D}:{D+15}], v[{Qq}:{Qq+3}], v[{Pq}:{Pq+3}], v[{D}:{D+15}]")
    e(f"v_mfma_f32_32x32x16_bf16 v[{D}:{D+15}], v[{Qq+4}:{Qq+7}], v[{Pq+4}:{Pq+7}], v[{D}:{D+15}]")
    e("s_nop 11")
    for m in range(4):
        e(f"ds_write_b128 v92, v[{D+4*m}:{D+4*m+3}] offset:{m*32}")
    e("s_waitcnt lgkmcnt(0)")
    for ee in range(8): e(f"ds_read_b32 v{VV+ee}, v{RA+ee}")
    e("v_lshlrev_b32 v14, 16, v14")
    e(f"v_cmp_eq_u32 s[{sT}:{sT+1}], 46, v2")
    e(f"v_cmp_eq_u32 s[{sT+2}:{sT+3}], 47, v2")
    e("v_cmp_lt_u32 vcc, 45, v2")
    e("s_waitcnt lgkmcnt(0)")
    e(f"v_cndmask_b32 v{VV+5}, v{VV+5}, v14, s[{sT}:{sT+1}]")
    e(f"v_cndmask_b32 v{VV+5}, v{VV+5}, 0, s[{sT+2}:{sT+3}]")
    e(f"v_cndmask_b32 v{VV+6}, v{VV+6}, 0, vcc")
    e(f"v_cndmask_b32 v{VV+7}, v{VV+7}, 0, vcc")
    e("s_branch L_aux_pack")
    lab("L_aux_w1")
    GA=60; GB=68
    e(f"s_mul_i32 s{sT+3}, s{sI}, 1352")
    e(f"s_lshl_b32 s{sT+6}, s{sWAVE}, 11")
    e(f"s_add_u32 s{sT+6}, s{sT+6}, {32768-4*2048}")
    e(f"s_mov_b32 m0, s{sT+6}")
    e("v_lshlrev_b32 v12, 4, v2")
    e(f"buffer_load_dwordx4 v12, s[{S_C}:{S_C+3}], s{sT+3} offen lds")
    e(f"buffer_load_dwordx4 v12, s[{S_C}:{S_C+3}], s{sT+3} offen offset:1024 lds")
    slots()
    for ee in range(8):
        e(f"v_mul_u32_u24 v8, 26, v{PP+ee}")
        e(f"v_add_lshl_u32 v8, v8, v{QQ+ee}, 1")
        e(f"v_add_u32 v{GA+ee}, s{sT+6}, v8")
        e(f"v_mul_u32_u24 v9, 26, v{QQ+ee}")
        e(f"v_add_lshl_u32 v9, v9, v{PP+ee}, 1")
        e(f"v_add_u32 v{GB+ee}, s{sT+6}, v9")
    e("v_and_b32 v6, 62, v2")
    st_addr(44)
    m3(2)
    e("s_waitcnt lgkmcnt(0)")
    e("s_barrier")
    e("s_waitcnt vmcnt(0)")
    for ee in range(8):
        e(f"ds_read_u16 v{GA+ee}, v{GA+ee}")
        e(f"ds_read_u16 v{GB+ee}, v{GB+ee}")
    e("s_waitcnt lgkmcnt(0)")
    for ee in range(8):
        e(f"v_lshlrev_b32 v{GA+ee}, 16, v{GA+ee}")
        e(f"v_lshlrev_b32 v{GB+ee}, 16, v{GB+ee}")
        e(f"v_add_f32 v{VV+ee}, v{GA+ee}, v{GB+ee}")
    lab("L_aux_pack")
    srd(S_WS,P_WS,WS_SIZE); srd(S_A,P_DBG,256)
    e("v_cmp_eq_u32 vcc, 43, v2")
    for ee in range(8): e(f"v_mul_f32 v{VV+ee}, v{VV+ee}, v{94 if ee<5 else 95}")
    e(f"v_cndmask_b32 v{VV+7}, v{VV+7}, 0, vcc")
    for m in range(4): e(f"v_cvt_pk_bf16_f32 v{24+m}, v{VV+2*m}, v{VV+2*m+1}")
    e("ds_write_b128 v6, v[24:27]")
    e("v_lshlrev_b32 v8, 4, v0")
    e(f"s_movk_i32 s{sT+1}, 368")
    e(f"v_cmp_gt_u32 vcc, s{sT+1}, v0")
    e(f"s_lshr_b32 s{sT}, s{sI}, 2")
    e(f"s_mul_i32 s{sT+2}, s{sT}, 5888")
    e("v_cndmask_b32 v9, v7, v8, vcc")
    e("s_waitcnt lgkmcnt(0)")
    e("s_barrier")
    e(f"ds_read_b128 v[24:27], v8 offset:{STG}")
    e("s_waitcnt lgkmcnt(0)")
    e(f"buffer_store_dwordx4 v[24:27], v9, s[{S_WS}:{S_WS+3}], s{sT+2} offen sc0 sc1")
    st(96)
    e(f"s_lshl_b32 s{sT}, s{sT}, 2")
    e("v_mov_b32 v8, 1")
    e("s_waitcnt vmcnt(0)")
    e("s_barrier")
    e(f"s_cmp_lg_u32 s{sWAVE}, 0")
    e("s_cbranch_scc1 L_noflag")
    e("s_mov_b64 exec, 1")
    e(f"buffer_store_dword v8, off, s[{S_A}:{S_A+3}], s{sT} sc0 sc1")
    e("s_mov_b64 exec, -1")
    lab("L_noflag")
    if ST:
        st(98); e("s_waitcnt vmcnt(0)"); st(100,True)
        dump([10,92,94,96,98,100],1,2)
    e("s_branch L_aux_done")
    sec("pref")
    lab("L_prefetch")
    e("s_waitcnt lgkmcnt(0)")
    if opt.pdel: e(f"s_sleep {opt.pdel}")
    if opt.pf:
        e(f"s_cmp_lg_u32 s{sSLOT}, 31")
        e("s_cbranch_scc1 L_pf2")
        srd(S_A,P_B1,3328); srd(S_B,P_W2,3328); srd(S_WS,P_WS,EPOCH+8192)
        e("v_lshlrev_b32 v3, 7, v0")
        e(f"buffer_load_dword v12, v3, s[{S_A}:{S_A+3}], 0 offen")
        e(f"buffer_load_dword v13, v3, s[{S_B}:{S_B+3}], 0 offen")
        e(f"s_mov_b32 s{sT}, {EPOCH}")
        e(f"buffer_load_dword v14, v3, s[{S_WS}:{S_WS+3}], s{sT} offen")
        lab("L_pf2")
        srd(S_W,P_W,1664*3328)
        if opt.foldx:
            e(f"s_cmp_lt_u32 s{sXCD}, 7")
            e(f"s_cselect_b32 s{sT+2}, 27, 26")
        else:
            e(f"s_cmp_lt_u32 s{sXCD}, 4")
            e(f"s_cselect_b32 s{sT+2}, 27, 26")
            e(f"s_cmp_lt_u32 s{sXCD}, 3")
            e(f"s_cselect_b32 s{sT+2}, 28, s{sT+2}")
        e(f"s_sub_u32 s{sT}, s{sSLOT}, s{sT+2}")
        e(f"s_sub_u32 s{sT+2}, 32, s{sT+2}")
        e(f"s_mul_i32 s{sT+1}, s{sXCD}, 26")
        e(f"s_lshr_b32 s{sT+1}, s{sT+1}, 3")
        e(f"s_lshl_b32 s{sT+1}, s{sT+1}, 7")
        for u in range(3):
            e(f"v_add_u32 v3, {512*u}, v0")
            e(f"v_mul_u32_u24 v3, s{sT+2}, v3")
            e(f"v_add_u32 v3, s{sT}, v3")
            e("v_lshrrev_b32 v4, 2, v3")
            if opt.pskip: e(f"v_add_u32 v4, {opt.pskip}, v4")
            e("v_and_b32 v3, 3, v3")
            e(f"v_mul_u32_u24 v4, 3328, v4")
            e("v_lshl_add_u32 v3, v3, 7, v4")
            e(f"buffer_load_dword v{9+u}, v3, s[{S_W}:{S_W+3}], s{sT+1} offen")
            if u<2 and opt.pbar: e("s_barrier")
    e("s_branch L_aux_done")
    sec("fold")
    lab("L_aux_done")
    e(f"s_cmp_lt_u32 s{sWAVE}, 4")
    e("s_cbranch_scc1 L_end")
    srd(S_TBL,P_TBL,128000); srd(S_IDX,P_IDX,106496)
    rowidx_load()
    e("s_waitcnt vmcnt(0)")
    e(f"v_mov_b32 v7, {FLAGS}")
    e("v_mov_b32 v8, 4")
    e("v_mov_b32 v9, 0")
    e(f"ds_write_b32 v7, v8 offset:{F_RED}")
    e(f"ds_write_b32 v7, v8 offset:{F_G}")
    e(f"ds_write_b32 v7, v8 offset:{F_S1}")
    e(f"ds_write_b32 v7, v9 offset:{F_CW}")
    e(f"ds_write_b32 v7, v9 offset:{F_CW2}")
    e("s_waitcnt vmcnt(0)")
    e("v_lshlrev_b32 v29, 7, v29")
    x0_addrs()
    e("s_branch L_help_x0")
    lab("L_end")
    e("s_endpgm")
    sec("tail")
    L.append('.section .rodata,"a"'); L.append(".p2align 6"); L.append(f".amdhsa_kernel {KN}")
    for x in ["next_free_vgpr 256","next_free_sgpr 102","accum_offset 256","group_segment_fixed_size 0","kernarg_size 88",
              "user_sgpr_count 2","user_sgpr_kernarg_segment_ptr 1","system_sgpr_workgroup_id_x 1"]:
        L.append("  .amdhsa_"+x)
    L.append(".end_amdhsa_kernel")
    return "\n".join(sum((SEC.get(k,[]) for k in order+["tail"]),[]))+"\n"

if __name__=="__main__":
    ap=argparse.ArgumentParser()
    ap.add_argument("-o",default="k.s")
    for k,d in dict(xearly=0,hpz=0,hpc=-1,gp=-1,zb2=22,zpk=0,hprio=0,tpk=0,foldx=1,rp=1,pdel=0,cp26=1,pbar=1,lay=1,b2g=1,cst=0,bgate=0,look=2,bstep=0,bstep2=11,bn=1,dper=1,dpre=2,inv=0,zmid=15,csc=0,gateC=1,gq=0,rowx=1,wstop=5,wrest=16,bq=3,xlds=1,xgap=0,atid=1,xsl=0,pskip=128,d2late=1,wper=4,its=0,sched=0,nog=0,not_=0,c2=0,noz=0,lateb=1,dly=4,pst=0,enc=0,encrole=0,encwg=0,encwave=0,nocin=0,gcyc=0,psleep=4,now=0,stamps=0,pf=1,cpf=1,prio=1,bound=2000000,zsplit=15,zbar=17,nt0=6,tb=444,n0=4,nt1=4,d1late=0,trim=1,wsched=0).items(): ap.add_argument("--"+k,type=int,default=d)
    opt=ap.parse_args()
    assert opt.zsplit==opt.zmid
    for t in range(512): assert (t*5042)>>16==t//13, t
    open(opt.o,"w").write(build(opt))
```

```python
import sys, argparse, math, struct

class Q:
    def __init__(s,cap): s.ops=[]; s.cap=cap; s.done=0
    def issue(s,name): s.ops.append(name)
    def need(s,*names):
        r=99
        for name in names:
            i=len(s.ops)-1-s.ops[::-1].index(name)
            r=min(r,len(s.ops)-1-i)
        r=min(r,s.cap)
        s.done=max(s.done,len(s.ops)-r)
        return r
    def pending(s,*names):
        return any(len(s.ops)-1-s.ops[::-1].index(n)>=s.done for n in names)

WIMG=0; GRAN=65536; EPOCH=0x50000; STAMP=0x100000; WS_SIZE=0x200000
STG=49152; RING=128000; FLAGS=160768; CINW=49152
F_IT9,F_RED,F_G,F_PRE,F_S1,F_CW,F_CW2=0,4,8,12,16,20,24
C1=-2*math.sqrt(2/math.pi)*math.log2(math.e); C2=C1*0.044715
def f2u(x): return struct.unpack('<I',struct.pack('<f',x))[0]
KN="standalone__deep_cross_xdeepfm__recsys_kernel"

sWAVE,sXCD,sSLOT,sCB,sRB=3,4,5,7,8
P_IDX,P_TBL,P_CIN,P_WOUT,P_W,P_B1,P_W2,P_BO=16,18,20,22,24,26,28,30
P_OUT,P_DBG,P_WS=32,34,36
S_IDX,S_TBL,S_W,S_WS,S_A,S_B=40,44,48,52,56,60
sRING,sWR1,sWR2,sTM=64,65,15,14
sT=66

def pair_of(n):
    if n<169: dlt,m=divmod(n,13)
    else: dlt,m=13,n-169
    r=2*m
    return r,(r+dlt)%26

def build(opt):
    SEC={"entry":[]}; order=["entry","dnn0","hpro","pref","fold0","dnn","help","fold"]
    class LL:
        cur="entry"
        def append(s,x): SEC.setdefault(s.cur,[]).append(x)
    L=LL()
    def sec(n): L.cur=n
    cnt=[0]; lastw={}
    def e(x):
        L.append("    "+x)
        cnt[0]+= (int(x.split()[1])+1) if x.startswith("s_nop") else 1
    def hz(key,n):
        d=cnt[0]-lastw[key]
        if d<n: e(f"s_nop {n-d-1}")
    def lab(x): L.append(x+":")
    def cm(x): L.append("    ; "+x)
    E=lambda x:(lambda: e(x))
    ST=opt.stamps
    def srd(d,p,size):
        e(f"s_mov_b32 s{d}, s{p}"); e(f"s_mov_b32 s{d+1}, s{p+1}")
        e(f"s_mov_b32 s{d+2}, {size}"); e(f"s_mov_b32 s{d+3}, 0x20000")
    def st(r,wait=False):
        if ST:
            e(f"s_memrealtime s[{r}:{r+1}]")
            if wait: e("s_waitcnt lgkmcnt(0)")
    def dump(regs,area=0,role=0):
        if opt.enc:
            delay(regs,role); return
        dump_(regs,area)
    dl=[0]
    def delay(regs,role):
        dl[0]+=1; n=dl[0]
        e("s_mov_b64 exec, -1")
        e("s_waitcnt lgkmcnt(0)")
        if opt.enc==99:
            if role!=1: return
            srd(S_A,P_DBG,256)
            e("s_not_b32 s12, s10")
            e("v_mov_b32 v244, s12")
            e(f"v_mov_b32 v245, s{regs[10]}")
            e("v_mov_b32 v246, 1")
            e("s_mov_b64 exec, 1")
            e(f"buffer_atomic_umax v244, off, s[{S_A}:{S_A+3}], 0 offset:240 sc1")
            e(f"buffer_atomic_umax v245, off, s[{S_A}:{S_A+3}], 0 offset:244 sc1")
            e("s_waitcnt vmcnt(0)")
            e(f"buffer_atomic_add v246, off, s[{S_A}:{S_A+3}], 0 offset:248 sc0 sc1")
            e("s_waitcnt vmcnt(0)")
            e("v_readfirstlane_b32 s12, v246")
            e("s_cmp_lg_u32 s12, 1023")
            e(f"s_cbranch_scc1 L_dly{n}_x")
            e(f"buffer_load_dwordx2 v[244:245], off, s[{S_A}:{S_A+3}], 0 offset:240 sc1")
            e("s_waitcnt vmcnt(0)")
            e("v_readfirstlane_b32 s12, v244")
            e("v_readfirstlane_b32 s13, v245")
            e("s_not_b32 s12, s12")
            e("s_sub_u32 s12, s13, s12")
        else:
            if role!=opt.encrole: return
            e(f"s_cmp_lg_u32 s2, {opt.encwg}")
            e(f"s_cbranch_scc1 L_dly{n}_x")
            e(f"s_cmp_lg_u32 s{sWAVE}, {opt.encwave}")
            e(f"s_cbranch_scc1 L_dly{n}_x")
            if opt.enc in (96,97):
                e(f"s_load_dwordx8 s[76:83], s[{P_DBG}:{P_DBG+1}], 64")
                e("s_waitcnt lgkmcnt(0)")
                e("s_mov_b32 s12, s76"); e("s_mov_b32 s13, s76")
                for k in range(1,8):
                    e(f"s_min_u32 s12, s12, s{76+k}"); e(f"s_max_u32 s13, s13, s{76+k}")
                if opt.enc==96: e("s_mov_b32 s13, s10")
                e("s_sub_u32 s12, s13, s12")
                e("s_min_u32 s12, s12, 2000")
            else: e(f"s_sub_u32 s12, s{regs[opt.enc]}, s10")
        e("s_mul_i32 s12, s12, 100")
        e("s_memrealtime s[66:67]")
        e("s_waitcnt lgkmcnt(0)")
        e("s_add_u32 s12, s12, s66")
        lab(f"L_dly{n}")
        e("s_sleep 8")
        e("s_memrealtime s[66:67]")
        e("s_waitcnt lgkmcnt(0)")
        e("s_sub_u32 s13, s66, s12")
        e("s_cmp_lt_i32 s13, 0")
        e(f"s_cbranch_scc1 L_dly{n}")
        lab(f"L_dly{n}_x")
        e("s_mov_b64 exec, -1")
    def dump_(regs,area=0):
        e("s_mov_b64 exec, -1")
        e("s_waitcnt lgkmcnt(0)")
        e("s_lshl_b32 s12, s2, 3")
        e(f"s_add_u32 s12, s12, s{sWAVE}")
        e("s_lshl_b32 s12, s12, 6")
        e(f"s_add_u32 s12, s12, {STAMP+area*0x40000}")
        regs=list(regs)+[regs[0]]*(12-len(regs))
        for i,r in enumerate(regs): e(f"v_mov_b32 v{244+i}, s{r}")
        e("s_mov_b64 exec, 1")
        for i in range(3):
            e(f"buffer_store_dwordx4 v[{244+4*i}:{247+4*i}], off, s[{S_WS}:{S_WS+3}], s12 offset:{16*i}")
        e("s_mov_b64 exec, -1")
    def lds_spin(name,vaddr,vtmp,off,target,sleep=0):
        e(f"s_mov_b32 s{sT+4}, {opt.bound*8}")
        lab(name)
        e(f"ds_read_b32 v{vtmp}, v{vaddr} offset:{off}")
        e("s_waitcnt lgkmcnt(0)")
        e(f"v_readfirstlane_b32 s{sT+5}, v{vtmp}")
        e(f"s_cmp_ge_u32 s{sT+5}, {target}")
        e(f"s_cbranch_scc1 {name}_x")
        if sleep: e(f"s_sleep {sleep}")
        e(f"s_sub_u32 s{sT+4}, s{sT+4}, 1")
        e(f"s_cbranch_scc0 {name}")
        lab(name+"_x")

    IV=16; IA=24
    def rec_addrs():
        e(f"s_lshl_b32 s{sT+5}, s{sT}, 7")
        e(f"s_add_u32 s{sT+5}, s{sT+5}, {RING+4096}")
        e(f"v_lshl_add_u32 v7, v7, 3, s{sT+5}")
        e("v_mul_u32_u24 v9, 7, v8")
        e("v_and_b32 v8, 1, v8")
        for par in range(2):
            d=IA+2*par
            if par:
                e("v_xor_b32 v8, 1, v8"); e("v_add_u32 v9, 1, v9")
            e("v_lshrrev_b32 v10, 1, v9")
            e(f"v_lshl_add_u32 v{d}, v10, 8, v7")
            e(f"v_lshl_add_u32 v{d}, v8, 14, v{d}")
            e("v_lshlrev_b32 v10, 1, v8")
            e(f"v_xor_b32 v10, s{sT+2}, v10")
            e(f"v_lshl_add_u32 v{d}, v10, 1, v{d}")
            e(f"v_xor_b32 v{d+1}, 2, v{d}")
            e(f"v_add_u32 v{d+1}, 8192, v{d+1}")
    sROW=6; sE=38
    def rowidx_load():
        e(f"s_sub_u32 s{sT+6}, s{sWAVE}, 4")
        if opt.rowx:
            e(f"s_lshl2_add_u32 s{sROW}, s{sSLOT}, s{sT+6}")
            e(f"s_lshl_b32 s{sT+6}, s{sXCD}, 7")
            e(f"s_add_u32 s{sROW}, s{sROW}, s{sT+6}")
        else: e(f"s_lshl2_add_u32 s{sROW}, s2, s{sT+6}")
        e(f"s_mul_i32 s{sT+6}, s{sROW}, 104")
        e("v_lshlrev_b32 v30, 2, v2")
        e(f"buffer_load_dword v29, v30, s[{S_IDX}:{S_IDX+3}], s{sT+6} offen")
    for x in """xDeepFM (CIN + DNN) in one launch for gfx950; the instruction stream is emitted by my own generator script.
Kernarg: idx, table, ws_cin, w_cin_out, w_dnn1, b_dnn1, w_dnn2, b_out, out, debug, ws (8-byte pointers).
Math (exact regrouping of the reference): with Z = sym(x0 (x) x0) per (row, d),
  logit_cin = sum_d sum_i (W1s Z)_i * (w1_i + (M2 x0)_i + (Gs Z)_i),  M3 = w3.W3, M2 = w2.W2, G = W2.M3.
Workgroups g = xcd + 8*slot, 8 waves each:
  slot < 26 : waves 0-3 run a 128x64 tile of gelu(x0*W+b).w2 (table resident in LDS, K split over the waves,
              W streamed by LDS-DMA + transposing reads); partial logits leave as tagged 8-byte words in ws.
  slot 26   : folds the CIN weights (7 workgroups, published in ws, flags in debug); other slots warm L2.
  waves 4-7 of every workgroup evaluate the CIN polynomial of one row each, add the 26 partial logits, store out.
Hand-off tags: each row owns an epoch word in ws; tag = epoch + 1, the consumer advances it after use.""".split("\n"): L.append("; "+x)
    L.append("; @launch grid=(256,1,1) block=(512,1,1) lds=163840")
    L.append('.amdgcn_target "amdgcn-amd-amdhsa--gfx950"')
    L.append(".text"); L.append(f".globl {KN}"); L.append(".p2align 8"); L.append(f".type {KN},@function")
    lab(KN)
    e("s_load_dwordx16 s[16:31], s[0:1], 0")
    e("s_load_dwordx4 s[32:35], s[0:1], 64")
    e("s_load_dwordx2 s[36:37], s[0:1], 80")
    st(10)
    e("s_cmp_ge_u32 s2, 256")
    e("s_cbranch_scc1 L_end")
    e("v_lshrrev_b32 v1, 6, v0")
    e("v_and_b32 v2, 63, v0")
    e(f"v_readfirstlane_b32 s{sWAVE}, v1")
    e(f"s_and_b32 s{sXCD}, s2, 7")
    e(f"s_lshr_b32 s{sSLOT}, s2, 3")
    e(f"s_cmp_ge_u32 s{sSLOT}, 26")
    e("s_cbranch_scc1 L_aux0")
    sec("pref"); lab("L_aux0")
    e(f"s_cmp_gt_u32 s{sSLOT}, {26 if opt.foldx else 27}")
    e("s_cbranch_scc1 L_prefetch")
    if opt.cpf:
        e(f"s_getpc_b64 s[{S_IDX}:{S_IDX+1}]")
        lab("L_pc")
        e(f"s_sub_u32 s{S_IDX}, s{S_IDX}, L_pc-{KN}")
        e(f"s_subb_u32 s{S_IDX+1}, s{S_IDX+1}, 0")
        e(f"s_mov_b32 s{S_IDX+2}, L_end-{KN}")
        e(f"s_mov_b32 s{S_IDX+3}, 0x20000")
        e("v_lshlrev_b32 v3, 7, v0")
        e(f"buffer_load_dword v255, v3, s[{S_IDX}:{S_IDX+3}], 0 offen")
    sec("entry")
    e(f"s_mul_i32 s6, s{sXCD}, 26")
    e(f"s_add_u32 s6, s6, s{sSLOT}")
    e(f"s_and_b32 s{sRB}, s6, 7")
    e(f"s_and_b32 s{sT}, s{sWAVE}, 1")
    e(f"s_lshr_b32 s{sT+2}, s{sWAVE}, 1")
    e(f"s_lshl2_add_u32 s{sT+4}, s{sRB}, s{sT+2}")
    e(f"s_mul_i32 s{sT+4}, s{sT+4}, 3328")
    e(f"s_lshl_b32 s{sT+5}, s{sT}, 11")
    e(f"s_add_u32 s{sT+4}, s{sT+4}, s{sT+5}")
    e(f"s_lshl_b32 s{sT+3}, s{sT+2}, 13")
    e(f"s_add_u32 s{sT+3}, s{sT+3}, s{sT+5}")
    e(f"s_add_u32 m0, s{sT+3}, {RING+4096}")
    e("v_lshlrev_b32 v6, 4, v2")
    e("v_lshrrev_b32 v3, 3, v2")
    e("v_lshrrev_b32 v4, 4, v2")
    e("v_and_b32 v10, 7, v2")
    e(f"s_lshl_b32 s{sT+1}, s{sT}, 2")
    e("v_xor_b32 v5, v10, v4")
    e(f"v_xor_b32 v5, s{sT+1}, v5")
    e("v_lshlrev_b32 v5, 4, v5")
    e("v_lshl_add_u32 v5, v3, 7, v5")
    e(f"s_lshl1_add_u32 s{sT+3}, s{sSLOT}, s{sT+2}")
    e(f"s_lshl1_add_u32 s{sTM}, s{sT+3}, s{sT}")
    e(f"s_lshl_b32 s{sTM}, s{sTM}, 10")
    e(f"s_sub_u32 s{sWR2}, {63*2048}, s{sT+5}")
    e(f"s_lshr_b32 s{sT+5}, s{sT+5}, 1")
    e(f"s_add_u32 s{sWR1}, s{sWR2}, s{sT+5}")
    e(f"s_mov_b32 s{S_IDX+2}, 106496"); e(f"s_mov_b32 s{S_IDX+3}, 0x20000")
    e(f"s_mov_b32 s{S_TBL+2}, 128000"); e(f"s_mov_b32 s{S_TBL+3}, 0x20000")
    e(f"s_mov_b32 s{sT+3}, {opt.n0-1}")
    e("s_waitcnt lgkmcnt(0)")
    if opt.pst: st(84)
    e(f"s_mov_b64 s[{S_IDX}:{S_IDX+1}], s[{P_IDX}:{P_IDX+1}]")
    e(f"s_mov_b64 s[{S_TBL}:{S_TBL+1}], s[{P_TBL}:{P_TBL+1}]")
    e(f"buffer_load_dwordx4 v6, s[{S_IDX}:{S_IDX+3}], s{sT+4} offen lds")
    if opt.trim:
        e(f"s_cmp_eq_u32 s{sT}, 0")
        e("s_cselect_b64 exec, -1, 0xffff")
    e(f"buffer_load_dwordx4 v6, s[{S_IDX}:{S_IDX+3}], s{sT+4} offen offset:1024 lds")
    if opt.trim: e("s_mov_b64 exec, -1")
    nl=[0]
    def tloop(n=None,vm=None):
        nl[0]+=1; name=f"L_tl{nl[0]}"
        if n is not None:
            if n==0: return
            e(f"s_mov_b32 s{sT+3}, {n-1}")
        lab(name)
        e(f"s_mov_b32 m0, s{sTM}")
        e(f"s_add_u32 s{sTM}, s{sTM}, 8192")
        e(f"buffer_load_dwordx4 v5, s[{S_TBL}:{S_TBL+3}], m0 offen lds")
        e(f"s_cmp_ge_u32 s{sTM}, s{sWR1}")
        e(f"s_cselect_b32 s{sT+5}, s{sWR2}, 0")
        e(f"s_sub_u32 s{sTM}, s{sTM}, s{sT+5}")
        e(f"s_sub_u32 s{sT+3}, s{sT+3}, 1")
        e(f"s_cbranch_scc0 {name}")
        if vm is not None:
            for t in range(n): vm.issue("tbl")
    tloop()
    e(f"s_cmp_ge_u32 s{sWAVE}, 4")
    e("s_cbranch_scc1 L_help_pro")
    sec("dnn0")
    tbl=tloop

    vWe,vWo=1,3
    AD=8; AF=16; F0=48; REC=80; ACC=128
    VT=106; PB,PC=110,111; BI=112; W2P=112; EV=120; VR=122; WA=123; KC=126; RA1=5; VB=6
    SEL=80; ONE=86; vC1=87; S0=88; S1=89; TA=90
    acc=lambda lt,ct: ACC+(lt*4+ct)*4
    Fr=lambda j,ct: F0+(j&1)*16+ct*4
    afr=lambda lt: AF+4*lt
    vm=Q(63); lg=Q(15)
    cm("---- DNN wave prologue ----")
    for x in ["idx0","idx3"]+["tbl"]*opt.n0: vm.issue(x)
    e(f"s_lshr_b32 s{sCB}, s6, 3")
    e(f"s_lshl_b32 s{sRING}, s{sWAVE}, 13")
    e(f"s_add_u32 s{sRING}, s{sRING}, {RING}")
    e(f"s_lshl_b32 s{sT+7}, s{sWAVE}, 5")
    e(f"v_add_u32 v9, s{sT+7}, v3")
    e("v_mul_u32_u24 v9, 3328, v9")
    e("v_lshlrev_b32 v11, 1, v4")
    e("v_and_b32 v11, 2, v11")
    e("v_xor_b32 v11, v11, v10")
    e("v_lshl_add_u32 v1, v11, 4, v9")
    e(f"s_lshl_b32 s{sT+7}, s{sCB}, 7")
    e(f"v_add_u32 v1, s{sT+7}, v1")
    e("v_xor_b32 v3, 64, v1")
    e(f"v_add_u32 v3, {8*3328-1024}, v3")
    srd(S_W,P_W,1664*3328)
    sWO=12
    def d3(j,pc):
        ld=lambda: (e(f"buffer_load_dwordx4 v{vWo if pc&1 else vWe}, s[{S_W}:{S_W+3}], s{sWO} offen offset:{(pc&1)*1024} lds"),vm.issue(f"w{j}_{pc}"))
        if pc&1: return [ld]
        return [E(f"s_add_u32 m0, s{sRING}, {((j&1)*4+pc)*1024}"),E(f"s_mov_b32 s{sWO}, {(128*j+8*pc)*3328}"),ld]
    def dma(j,pcs):
        for pc in pcs:
            for f in d3(j,pc): f()
    dma(0,range(4))
    def bias_loads(ii):
        for i in ii:
            e(f"buffer_load_dwordx2 v[{BI+2*i}:{BI+2*i+1}], v{VB}, s[{S_A}:{S_A+3}], 0 offen offset:{i*32}"); vm.issue(f"bias{i}")
    TB=[opt.n0]+[int(c,16) for c in str(opt.tb)]
    e("s_branch L_dnn_b")
    sec("dnn"); lab("L_dnn_b")
    e(f"v_lshl_add_u32 v{VB}, v4, 3, s{sT+7}")
    e(f"v_mov_b32 v7, {FLAGS}")
    srd(S_A,P_B1,3328)
    if opt.pst: st(86)
    e("v_and_b32 v13, 15, v2")
    e("v_mul_u32_u24 v13, 104, v13")
    e(f"s_lshl2_add_u32 s{sT+5}, s{sT+2}, {RING+4096}")
    e(f"v_add_u32 v13, s{sT+5}, v13")
    e(f"v_xor_b32 v9, s{sWAVE}, v4")
    e("v_lshl_add_u32 v24, v9, 13, v13")
    e("v_add_u32 v25, 1664, v24")
    e("v_bfe_u32 v9, v2, 2, 2")
    e("v_lshlrev_b32 v13, 7, v9")
    e("v_lshl_add_u32 v13, v4, 10, v13")
    e("v_lshrrev_b32 v9, 1, v9")
    e("v_lshl_add_u32 v13, v9, 5, v13")
    e("v_and_b32 v9, 1, v4")
    e("v_lshl_add_u32 v13, v9, 6, v13")
    e("v_and_b32 v9, 3, v2")
    e("v_lshl_add_u32 v13, v9, 3, v13")
    e(f"v_add_u32 v{VT}, s{sRING}, v13")
    e(f"v_xor_b32 v{VT+1}, 32, v{VT}")
    e(f"v_xor_b32 v{VT+2}, 64, v{VT}")
    e(f"v_xor_b32 v{VT+3}, 0x60, v{VT}")
    e(f"v_add_u32 v{KC}, s{sT+1}, v4")
    e(f"v_lshl_or_b32 v{KC}, v{KC}, 16, v{KC}")
    e(f"s_mov_b32 s{sT+6}, 0x00070007")
    e(f"s_waitcnt vmcnt({vm.need('idx3')})")
    if opt.pst: st(88)
    e("s_barrier")
    if opt.pst: st(90)
    RW=lambda t,j: 160+t*14+j
    for j in range(0,13,2):
        for t in range(2):
            e(f"ds_read2_b32 v[{RW(t,j)}:{RW(t,j)+1}], v{24+t} offset0:{2*j} offset1:{2*j+2}")
    tbl(TB[1],vm)
    srd(S_WS,P_WS,WS_SIZE)
    srd(S_B,P_W2,3328)
    e("s_waitcnt lgkmcnt(0)")
    e("s_barrier")
    st(76)
    tbl(TB[2],vm)
    for j in range(13):
        if j==6: tbl(TB[3],vm)
        d=REC+2*j
        e(f"v_lshl_or_b32 v{d}, v{RW(1,j)}, 16, v{RW(0,j)}")
        e(f"v_lshrrev_b32 v13, 1, v{d}")
        e(f"v_and_b32 v13, s{sT+6}, v13")
        e(f"v_lshl_or_b32 v{d}, v{d}, 3, v13")
        e(f"v_mov_b32 v{d+1}, v{d}")
        if j: e(f"v_permlane32_swap_b32 v{d-2}, v{d-1}")
    e("s_nop 1")
    e(f"v_permlane32_swap_b32 v{REC+24}, v{REC+25}")
    def bc(j,h):
        A=REC+2*j+h; B=PC if h else PB
        return [E(f"v_mov_b32 v{B}, v{A}")],[E(f"v_permlane16_swap_b32 v{A}, v{B}"),E(f"v_xor_b32 v{A}, v{KC}, v{A}"),E(f"v_xor_b32 v{B}, v{KC}, v{B}")]
    def adr(lt,j):
        src={0:REC+2*j,1:PB,2:REC+2*j+1,3:PC}[lt>>1]
        e(f"v_lshlrev_b32_sdwa v{AD+lt}, 4, v{src} dst_sel:DWORD dst_unused:UNUSED_PAD src0_sel:DWORD src1_sel:WORD_{lt&1}")
    def Rop(lt,j): e(f"ds_read_b128 v[{afr(lt)}:{afr(lt)+3}], v{AD+lt}"); lg.issue(f"R{lt}_{j}")
    def Top(j,ct,h4):
        d=Fr(j,ct)+2*h4
        e(f"ds_read_b64_tr_b16 v[{d}:{d+1}], v{VT+ct} offset:{(j&1)*4096+h4*512}"); lg.issue(f"T{j}_{ct}{h4}")
    for h in range(2): bc(0,h)[0][0]()
    e("s_nop 0")
    for h in range(2):
        for f in bc(0,h)[1]: f()
    for lt in range(8): adr(lt,0)
    bc(1,0)[0][0]()
    if ST: e("s_waitcnt lgkmcnt(0)")
    e(f"s_waitcnt vmcnt({vm.need('w0_3')})")
    for ct in range(4): Top(0,ct,0); Top(0,ct,1)
    for f in bc(1,0)[1]: f()
    dma(1,range(4))
    e("s_waitcnt lgkmcnt(0)"); lg.done=len(lg.ops)
    for x in [f"s_xor_b32 s{sT}, s{sWAVE}, 1",f"s_lshl_b32 s{sT}, s{sT}, 12",f"v_lshlrev_b32 v{RA1}, 4, v2",f"v_add_u32 v{WA}, s{sT}, v{RA1}",
              f"v_xor_b32 v{WA+1}, {3<<12}, v{WA}",f"v_xor_b32 v{WA+2}, {2<<12}, v{WA}",f"s_lshl_b32 s{sT}, s{sWAVE}, 12",f"v_add_u32 v{RA1}, s{sT}, v{RA1}",
              f"v_lshrrev_b32 v{VR}, 5, v2","v_and_b32 v0, 15, v2",f"v_lshl_add_u32 v{VR}, v{VR}, 4, v0",f"s_lshl_b32 s{sT}, s{sRB}, 7",
              f"s_lshl_b32 s{sT+1}, s{sWAVE}, 5",f"s_add_u32 s{sT}, s{sT}, s{sT+1}",f"v_add_lshl_u32 v{VR}, v{VR}, s{sT}, 3"]: e(x)
    if opt.pst: st(92)
    e(f"s_waitcnt vmcnt({vm.need('tbl')})")
    st(78)
    e("s_barrier")
    st(80,True)
    if ST: e("s_memtime s[96:97]"); e("s_waitcnt lgkmcnt(0)")
    if opt.prio: e(f"s_setprio {opt.prio}")
    LT=[2,3,4,5,6,7,0,1]
    for lt in LT: Rop(lt,0)
    def inc(off,nm):
        def f():
            e("s_mov_b64 exec, 1")
            e(f"ds_add_u32 v7, v{ONE} offset:{off}"); lg.issue(nm)
            e("s_mov_b64 exec, -1")
        return f
    def wv(n): return lambda n=n: (e(f"s_waitcnt vmcnt({vm.need(n)})") if vm.pending(n) else None)
    def wl(n): return lambda n=n: (e(f"s_waitcnt lgkmcnt({lg.need(n)})") if lg.pending(n) else None)
    T_=lambda j,ct,h4: (lambda: Top(j,ct,h4))
    def badd(k):
        ct,r=k>>2,k&3; src=BI+2*ct+(r>>1)
        return [E(f"v_and_b32 v0, 0xffff0000, v{src}" if r&1 else f"v_lshlrev_b32 v0, 16, v{src}")]+\
               [(lambda t=t: (hz((t,ct),8),e(f"v_add_f32 v{acc(t,ct)+r}, v{acc(t,ct)+r}, v0"))) for t in range(2)]
    selops=[E("v_and_b32 v0, 15, v2"),E(f"v_lshlrev_b32 v{TA}, 2, v4"),E(f"v_sub_u32 v0, v0, v{TA}"),E(f"s_movk_i32 s{sT+7}, 0x3f80"),
            E(f"v_lshlrev_b32 v{TA}, 4, v0"),E(f"v_and_b32 v{TA}, 16, v{TA}"),E(f"v_lshlrev_b32 v{TA}, v{TA}, s{sT+7}"),E("v_lshrrev_b32 v0, 1, v0"),
            E(f"v_cmp_eq_u32 s[{sT}:{sT+1}], 0, v0"),E(f"v_cmp_eq_u32 s[{sT+2}:{sT+3}], 1, v0"),E(f"v_mov_b32 v{SEL}, 0"),E(f"v_mov_b32 v{SEL+1}, 0"),
            E(f"v_cndmask_b32 v{SEL+2}, 0, v{TA}, s[{sT}:{sT+1}]"),E(f"v_cndmask_b32 v{SEL+3}, 0, v{TA}, s[{sT+2}:{sT+3}]"),E(f"v_mov_b32 v{SEL+4}, 0"),E(f"v_mov_b32 v{SEL+5}, 0")]
    misc=[E(f"s_xor_b32 s{sT}, s{sWAVE}, 1"),E(f"s_lshl_b32 s{sT}, s{sT}, 12"),E(f"v_lshlrev_b32 v{RA1}, 4, v2"),E(f"v_add_u32 v{WA}, s{sT}, v{RA1}"),
          E(f"v_xor_b32 v{WA+1}, {3<<12}, v{WA}"),E(f"v_xor_b32 v{WA+2}, {2<<12}, v{WA}"),E(f"s_lshl_b32 s{sT}, s{sWAVE}, 12"),E(f"v_add_u32 v{RA1}, s{sT}, v{RA1}"),
          E(f"v_mov_b32 v{ONE}, 1"),E(f"v_mov_b32 v{vC1}, {f2u(C1)}"),E(f"v_mov_b32 v{S0}, 0"),E(f"v_mov_b32 v{S1}, 0"),
          E(f"v_lshrrev_b32 v{VR}, 5, v2"),E("v_and_b32 v0, 15, v2"),E(f"v_lshl_add_u32 v{VR}, v{VR}, 4, v0"),E(f"s_lshl_b32 s{sT}, s{sRB}, 7"),
          E(f"s_lshl_b32 s{sT+1}, s{sWAVE}, 5"),E(f"s_add_u32 s{sT}, s{sT}, s{sT+1}"),E(f"v_add_lshl_u32 v{VR}, v{VR}, s{sT}, 3")]
    def w2l(i): return lambda: (e(f"buffer_load_dwordx2 v[{W2P+2*i}:{W2P+2*i+1}], v{VB}, s[{S_B}:{S_B+3}], 0 offen offset:{i*32}"),vm.issue(f"w2_{i}"))
    evl=[E(f"s_mov_b32 s{sT+2}, {EPOCH}"),lambda: (e(f"buffer_load_dwordx2 v[{EV}:{EV+1}], v{VR}, s[{S_WS}:{S_WS+3}], s{sT+2} offen"),vm.issue("ev"))]
    LO=list(range(92,100))
    W2F=[LO[k>>1] if k%2==0 else W2P+(k>>1) for k in range(16)]
    unp=[]
    for k in range(8):
        unp+= [E(f"v_lshlrev_b32 v{LO[k]}, 16, v{W2P+k}"),E(f"v_and_b32 v{W2P+k}, 0xffff0000, v{W2P+k}")]
    def cv(lt):
        a=acc(lt,0); u=lt>>1
        c=[(lambda m=m: (hz((lt,m>>1),8),e(f"v_cvt_pk_bf16_f32 v{a+m}, v{a+2*m}, v{a+2*m+1}"))) for m in range(8)]
        w=[(lambda h=h: (e(f"ds_write_b128 v{WA+u-1}, v[{a+4*h}:{a+4*h+3}] offset:{(u-1)*16384+((lt&1)*2+h)*1024}"),lg.issue("W"))) for h in range(2)]
        return c[:4]+w[:1]+c[4:]+w[1:]
    def bar2():
        e("s_waitcnt lgkmcnt(0)"); lg.done=len(lg.ops)
        if opt.its: e("s_memtime s[92:93]")
        if not opt.pst: st(82)
        e("s_barrier")
        if not opt.pst: st(84)
    ITS={1:76,2:78,3:80,5:82,7:84,9:86,11:88,12:90}
    bl=sum((badd(k) for k in range(16)),[])
    sel2=[(lambda f=f: f()) for f in selops]
    extra={2:[(lambda i=i: bias_loads([i])) for i in range(4)],
           3:[wv('bias3')]+bl[:6],4:bl[6:15],5:bl[15:24],6:bl[24:33],7:bl[33:42],8:bl[42:48],
           9:[w2l(i) for i in range(4)]+evl+misc[8:12],10:selops,11:[]}
    q12=[]
    for j in range(13):
        cm(f"---- iteration {j} ----")
        if opt.its==1 and j in ITS: e(f"s_memtime s[{ITS[j]}:{ITS[j]+1}]")
        if opt.its and j==12: opt.pst=1
        G=[[] for k in range(32)]
        if j<12:
            Ts=[T_(j+1,ct,h4) for ct in range(4) for h4 in range(2)]
            mB,rB=bc(j+1,1)
            G[2]+=mB; G[6]+=rB[:1]; G[7]+=rB[1:2]; G[11]+=rB[2:]
            if j+2<13:
                mA,rA=bc(j+2,0); G[23]+=mA; G[26]+=rA[:1]; G[27]+=rA[1:2]; G[30]+=rA[2:]
            free=[k for k in range(32) if k%4<2]
            seq=[]
            if j==0: seq=[[x] for x in d3(2,0)+d3(2,1)+d3(2,2)+d3(2,3)]+[[wv('w1_3'),Ts[0]]]+[[x] for x in Ts[1:]]
            else:
                seq=[[wv(f'w{j+1}_3'),Ts[0]]]+[[x] for x in Ts[1:]]
                if opt.tpk and j>1: seq=[[wv(f'w{j+1}_3'),Ts[0],Ts[1]],Ts[2:4],Ts[4:6],Ts[6:8]]
                if j+3<13:
                    dd=d3(j+3,0)+d3(j+3,1)+d3(j+3,2)+d3(j+3,3)
                    seq+=[[dd[0]],[dd[1]],[wl(f'T{j+1}_31'),dd[2]]]+[[x] for x in dd[3:]]
            if j==1:
                dd=d3(3,0)+d3(3,1)+d3(3,2)+d3(3,3)
                for k,x in zip((3,7,10,11,14,15,18,19),dd): G[k].append(x)
                seq=seq[:8]+[[]]*0+seq[8:]
                free=free[:8]+[20,21,22,24,25,28,29,31]
            for k,x in zip(free,seq): G[k]+=x
            if j==10: G[17]+=[wl('T11_31'),inc(F_S1,"s1")]
            ex=list(extra.get(j,[]))
            if j==11: ex=[E("s_waitcnt vmcnt(0)")]+unp
            lo,hi=(5,23) if j in (3,4,5,6,7,8) else (4,32)
            k=lo
            while ex:
                cand=[g for g in range(k,hi) if len(G[g])+(1 if g%4>=2 else 0)<2]
                if not cand:
                    G[hi-2]+=ex; break
                k=cand[0]; G[k].append(ex.pop(0))
        for g,lt in enumerate(LT):
            if g%2==0:
                needs=[f"R{lt}_{j}",f"R{LT[g+1]}_{j}"]+([f"T{j}_31"] if g==0 else [])
                if lg.pending(*needs): e(f"s_waitcnt lgkmcnt({lg.need(*needs)})")
            for ct in range(4):
                c=f"v[{acc(lt,ct)}:{acc(lt,ct)+3}]"
                e(f"v_mfma_f32_16x16x32_bf16 {c}, v[{Fr(j,ct)}:{Fr(j,ct)+3}], v[{afr(lt)}:{afr(lt)+3}], {0 if j==0 else c}")
                lastw[(lt,ct)]=cnt[0]
                if j<12:
                    if ct==2: adr(lt,j+1)
                    if ct==3: Rop(lt,j+1)
                    for f in G[4*g+ct]: f()
                else:
                    if g==0 and ct==2: bar2()
                    n=3 if (g,ct)!=(7,3) else 99
                    if not (ct==0 and g<=6):
                        for f in q12[:n]: f()
                        q12=q12[n:]
            if j==12 and lt>=2:
                q12+=cv(lt)
                if lt==7: q12+= [inc(F_RED,"inc"),E(f"s_mov_b32 s{sT+2}, {f2u(C2)}")]
    if not opt.pst: st(86)
    if ST: e("s_memtime s[98:99]")
    lds_spin("L_red",7,0,F_RED,4)
    if not opt.pst: st(88,True)
    lg=Q(15)
    adds=[]
    for t in range(2):
        for u in (1,2,3):
            for h in range(2):
                r=acc(2*u+t,0)+4*h
                e(f"ds_read_b128 v[{r}:{r+3}], v{RA1} offset:{(u-1)*16384+(t*2+h)*1024}"); lg.issue(f"p{t}{u}{h}")
                for sx in range(2):
                    def add(t=t,u=u,h=h,r=r,sx=sx):
                        if lg.pending(f"p{t}{u}{h}"): e(f"s_waitcnt lgkmcnt({lg.need(f'p{t}{u}{h}')})")
                        c=f"v[{acc(t,2*h+sx)}:{acc(t,2*h+sx)+3}]"; sl=SEL if sx else SEL+2
                        e(f"v_mfma_f32_16x16x32_bf16 {c}, v[{sl}:{sl+3}], v[{r}:{r+3}], {c}"); lastw[(t,2*h+sx)]=cnt[0]
                    adds.append(add)
    for f in adds[:13]: f()
    adds=adds[13:]
    if opt.gp>=0: e(f"s_setprio {opt.gp}")
    T=F0
    for q in range(8):
        t,ct=q>>2,q&3
        a=acc(t,ct)
        def A(n=2):
            for k in range(n):
                if adds: adds.pop(0)()
        hz((t,ct),8)
        for r in range(4): e(f"v_mul_f32 v{T+r}, v{a+r}, v{a+r}")
        A(1)
        for r in range(4): e(f"v_fma_f32 v{T+r}, v{T+r}, s{sT+2}, v{vC1}")
        A(1)
        for r in range(4): e(f"v_mul_f32 v{T+r}, v{T+r}, v{a+r}")
        A(1)
        for r in range(4): e(f"v_exp_f32 v{T+r}, v{T+r}")
        A(1)
        for r in range(4): e(f"v_mul_f32 v{a+r}, v{a+r}, v{W2F[4*ct+r]}")
        for r in range(4): e(f"v_add_f32 v{T+r}, 1.0, v{T+r}")
        for r in range(4): e(f"v_rcp_f32 v{T+r}, v{T+r}")
        if adds: A(1)
        else: e("s_nop 0")
        for r in range(4): e(f"v_fmac_f32 v{S1 if t else S0}, v{a+r}, v{T+r}")
    e(f"s_movk_i32 s{sT}, 0xff")
    e(f"v_add_u32 v{EV}, 1, v{EV}")
    e(f"v_permlane32_swap_b32 v{S0}, v{S1}")
    e(f"v_add_f32 v{S0}, v{S0}, v{S1}")
    e(f"v_mov_b32 v{S1}, v{S0}")
    e(f"s_lshl_b32 s{sT+1}, s{sCB}, 13")
    e(f"s_add_u32 s{sT+1}, s{sT+1}, {GRAN}")
    e(f"v_permlane16_swap_b32 v{S0}, v{S1}")
    e(f"v_add_f32 v{S0}, v{S0}, v{S1}")
    e(f"v_bfi_b32 v{EV+1}, s{sT}, v{EV+1}, v{S0}")
    e("s_mov_b32 exec_lo, 0xffff")
    e("s_mov_b32 exec_hi, 0xffff")
    e(f"buffer_store_dwordx2 v[{EV}:{EV+1}], v{VR}, s[{S_WS}:{S_WS+3}], s{sT+1} offen sc0 sc1")
    if ST:
        if opt.gcyc: e("s_memtime s[98:99]")
        if not opt.pst: st(90); e("s_waitcnt vmcnt(0)"); st(92,True)
        e("s_waitcnt lgkmcnt(0)"); e("s_sub_u32 s98, s98, s96")
        if opt.its:
            for r in range(76,94,2):
                e(f"s_sub_u32 s{r}, s{r}, s96"); e(f"s_mul_i32 s{r}, s{r}, 100"); e(f"s_add_u32 s{r}, s{r}, s10")
        dump([10,76,78,80,82,84,86,88,90,92,98])
    e("s_endpgm")

    sec("hpro")
    def late_sloads():
        e(f"s_lshl_b32 s{sT+8}, s{sROW}, 3")
        e(f"s_add_u32 s{sT+8}, s{sT+8}, {EPOCH}")
        e(f"s_load_dwordx2 s[{sE}:{sE+1}], s[{P_WS}:{P_WS+1}], s{sT+8}")
        e(f"s_load_dword s9, s[{P_BO}:{P_BO+1}], 0")
    X=32
    def x0_addrs():
        e("v_and_b32 v3, 31, v2")
        e("v_lshlrev_b32 v4, 2, v3")
        for r in range(26): e(f"v_readlane_b32 s{76+r}, v29, {r}")
        e("s_mov_b32 exec_hi, 0")
        for r in range(26): e(f"v_xor_b32 v{X+r}, s{76+r}, v4")
        e("s_mov_b64 exec, -1")
        e("s_mov_b32 exec_lo, 0")
        for r in range(26): e(f"v_xor_b32 v{X+r}, s{76+(r+1)%26}, v4")
        e("s_mov_b64 exec, -1")
    lab("L_help_pro")
    rowidx_load()
    tloop(opt.nt0-opt.n0)
    e(f"v_mov_b32 v7, {FLAGS}")
    e("v_mov_b32 v8, 0"); e("v_mov_b32 v9, 0")
    e("ds_write2_b64 v7, v[8:9], v[8:9] offset1:1")
    e("ds_write2_b64 v7, v[8:9], v[8:9] offset0:2 offset1:3")
    e(f"s_waitcnt vmcnt({opt.nt0+1})")
    e("s_barrier")
    tloop(opt.nt1)
    e("s_waitcnt lgkmcnt(0)")
    e("s_barrier")
    if opt.trim:
        e(f"s_cmp_eq_u32 s{sWAVE}, 4")
        e(f"s_cselect_b32 s{sT+3}, {16-opt.nt0-opt.nt1-1}, {16-opt.nt0-opt.nt1-2}")
        tloop()
    else: tloop(16-opt.nt0-opt.nt1)
    e("s_branch L_help_b")
    sec("help"); lab("L_help_b")
    e(f"s_waitcnt vmcnt({15-opt.n0})")
    if opt.xlds:
        e("v_lshlrev_b32 v8, 3, v29"); e("v_and_b32 v8, 0x70, v8"); e("v_lshl_or_b32 v29, v29, 7, v8")
    else: e("v_lshlrev_b32 v29, 7, v29")
    x0_addrs()
    if opt.xearly:
        for r in range(26):
            e(f"buffer_load_dword v{X+r}, v{X+r}, s[{S_TBL}:{S_TBL+3}], 0 offen")
        e("s_waitcnt vmcnt(26)")
        e("s_barrier")
        e("s_branch L_help_main")
    e("s_waitcnt vmcnt(0)")
    e("s_barrier")
    if opt.xsl: e(f"s_sleep {opt.xsl}")
    if opt.xlds:
        for r in range(26):
            e(f"ds_read_b32 v{X+r}, v{X+r}")
            if opt.xgap and r%opt.xgap==opt.xgap-1: e("s_sleep 1")
        e("s_branch L_help_main")
    lab("L_help_x0")
    for r in range(26):
        e(f"buffer_load_dword v{X+r}, v{X+r}, s[{S_TBL}:{S_TBL+3}], 0 offen")
    lab("L_help_main")
    srd(S_WS,P_WS,WS_SIZE); srd(S_A,P_DBG,256); srd(S_B,P_OUT,2048)
    Z0=8
    ZE=lambda s: Z0+4*s
    ZO=lambda s: Z0+88+4*s
    LE=lambda k: Z0+176+4*k
    LO=lambda k: Z0+184+4*k
    R=200; MT=252
    e("v_lshrrev_b32 v5, 2, v3")
    e("v_mul_u32_u24 v5, 5888, v5")
    e("v_and_b32 v6, 3, v2")
    e("v_lshl_add_u32 v5, v6, 4, v5")
    e("v_lshrrev_b32 v6, 5, v2")
    e("v_lshl_add_u32 v5, v6, 6, v5")
    e("v_mov_b32 v7, 0x7fff0000")
    e("v_cmp_gt_u32 vcc, 26, v3")
    e("v_lshlrev_b32 v6, 13, v2")
    e(f"s_lshl_b32 s{sT}, s{sROW}, 3")
    e("v_cndmask_b32 v5, v7, v5, vcc")
    e(f"s_add_u32 s{sT}, s{sT}, {GRAN}")
    e(f"v_add_u32 v6, s{sT}, v6")
    e("v_cmp_gt_u32 vcc, 26, v2")
    e("v_lshlrev_b32 v1, 4, v2")
    e(f"v_add_u32 v1, 97280, v1")
    e("v_cndmask_b32 v6, v7, v6, vcc")
    e(f"v_mov_b32 v7, {FLAGS}")
    e("s_waitcnt vmcnt(0) lgkmcnt(0)")
    late_sloads()
    if opt.enc in (96,97):
        e("s_cmp_ge_u32 s2, 8")
        e("s_cbranch_scc1 L_nost")
        e("v_mov_b32 v0, s10")
        e("s_lshl_b32 s12, s2, 2")
        e(f"buffer_store_dword v0, off, s[{S_A}:{S_A+3}], s12 offset:64 sc0 sc1")
        lab("L_nost")
    st(76)
    for r in range(26):
        e(f"v_lshlrev_b32 v{R+2*r}, 16, v{X+r}")
        e(f"v_and_b32 v{R+2*r+1}, 0xffff0000, v{X+r}")
    def zstep(s):
        if opt.noz: return
        for m in range(4):
            (a1,a2),(b1,b2)=pair_of(8*s+2*m),pair_of(8*s+2*m+1)
            if opt.zpk:
                e(f"v_pk_mul_f32 v[{MT}:{MT+1}], v[{R+2*a1}:{R+2*a1+1}], v[{R+2*a2}:{R+2*a2+1}]")
                e(f"v_pk_mul_f32 v[{MT+2}:{MT+3}], v[{R+2*b1}:{R+2*b1+1}], v[{R+2*b2}:{R+2*b2+1}]")
            else:
                e(f"v_mul_f32 v{MT}, v{R+2*a1}, v{R+2*a2}")
                e(f"v_mul_f32 v{MT+2}, v{R+2*b1}, v{R+2*b2}")
                e(f"v_mul_f32 v{MT+1}, v{R+2*a1+1}, v{R+2*a2+1}")
                e(f"v_mul_f32 v{MT+3}, v{R+2*b1+1}, v{R+2*b2+1}")
            e(f"v_cvt_pk_bf16_f32 v{ZE(s)+m}, v{MT}, v{MT+2}")
            e(f"v_cvt_pk_bf16_f32 v{ZO(s)+m}, v{MT+1}, v{MT+3}")
    def zlin():
        for k in range(2):
            for m2 in range(4):
                m=k*8+2*m2
                for tl,d in ((0,LE(k)+m2),(1,LO(k)+m2)):
                    if m+1<=12: e(f"v_cvt_pk_bf16_f32 v{d}, v{R+4*m+tl}, v{R+4*(m+1)+tl}")
                    elif m==12: e(f"v_cvt_pk_bf16_f32 v{d}, v{R+4*m+tl}, 1.0")
                    else: e(f"v_mov_b32 v{d}, 0")
    SC=" sc1" if opt.csc else ""
    if opt.hprio: e(f"s_setprio {opt.hprio}")
    zlin()
    for s in range(opt.zsplit): zstep(s)
    if opt.hprio: e("s_setprio 0")
    st(78)
    e(f"s_load_dwordx8 s[92:99], s[{P_DBG}:{P_DBG+1}], 0")
    e("s_waitcnt lgkmcnt(0)")
    for k in range(1,7): e(f"s_and_b32 s92, s92, s{92+k}")
    e("s_cmp_lg_u32 s92, 0")
    e("s_cbranch_scc1 L_polled")
    lds_spin("L_it9",7,4,F_S1,4,sleep=4)
    e(f"v_lshlrev_b32 v0, 2, v2")
    e(f"buffer_load_dword v4, v0, s[{S_A}:{S_A+3}], 0 offen sc1")
    for s in range(opt.zsplit,opt.zmid): zstep(s)
    e(f"s_mov_b32 s{sT+4}, {opt.bound}")
    e(f"s_mov_b32 s{sT+2}, 0x7f")
    e(f"s_mov_b32 s{sT+3}, 0")
    lab("L_poll1")
    e("s_waitcnt vmcnt(0)")
    e("v_cmp_ne_u32 vcc, 0, v4")
    e(f"s_and_b64 vcc, vcc, s[{sT+2}:{sT+3}]")
    e(f"s_cmp_eq_u64 vcc, s[{sT+2}:{sT+3}]")
    e("s_cbranch_scc1 L_polled")
    e(f"s_sleep {opt.psleep}")
    e(f"buffer_load_dword v4, v0, s[{S_A}:{S_A+3}], 0 offen sc1")
    e(f"s_sub_u32 s{sT+4}, s{sT+4}, 1")
    e("s_cbranch_scc0 L_poll1")
    lab("L_polled")
    if opt.inv: e("buffer_inv sc1")
    st(80)
    lds_spin("L_s1",7,0,F_S1,4,sleep=2)
    e(f"s_sub_u32 s{sT}, s{sWAVE}, 4")
    e(f"s_lshl_b32 s{sT+1}, s{sT}, 13")
    e(f"s_add_u32 m0, s{sT+1}, {RING+4096}")
    e(f"s_lshl_b32 s{sT}, s{sT}, 9")
    e(f"s_sub_u32 s{sT}, s{sT}, 256")
    for t in range(4):
        if t<2:
            e(f"s_cmp_eq_u32 s{sWAVE}, 4")
            e(f"s_cselect_b32 s{sT+1}, {(44+t)*128}, s{sT}")
        else: e(f"s_mov_b32 s{sT+1}, s{sT}")
        e(f"buffer_load_dwordx4 v5, s[{S_WS}:{S_WS+3}], s{sT+1} offen sc1 lds")
        if t<3:
            e(f"s_add_u32 m0, m0, 1024")
            e(f"s_add_u32 s{sT}, s{sT}, 128")
    for s in range(opt.zmid,opt.zbar): zstep(s)
    st(82)
    e("s_barrier")
    if opt.hpz: e(f"s_setprio {opt.hpz}")
    zstep(opt.zbar)
    def hinc(off):
        e("v_mov_b32 v0, 1")
        e("s_mov_b64 exec, 1")
        e("s_waitcnt vmcnt(0)")
        e(f"ds_add_u32 v7, v0 offset:{off}")
        e("s_mov_b64 exec, -1")
    CWB=97280
    hinc(F_CW)
    for s in range(opt.zbar+1,opt.zb2): zstep(s)
    def dmaB0():
        e(f"s_sub_u32 s{sT}, s{sWAVE}, 4")
        e(f"s_lshl_b32 s{sT+1}, s{sT}, 10")
        e(f"s_add_u32 s{sT+1}, s{sT+1}, {CWB}")
        e(f"s_lshl_b32 s{sT}, s{sT}, 7")
        e(f"s_add_u32 s{sT}, s{sT}, {14*128}")
        e(f"s_cmp_ge_u32 s{sWAVE}, 6")
        e(f"s_cselect_b32 s{sT+8}, 6, 7")
        e(f"s_lshl_b32 s{sT+8}, s{sT+8}, 9")
    def dmaB1(t):
        if t<7:
            e(f"s_add_u32 m0, s{sT+1}, {4096*t}")
            e(f"s_add_u32 s{sT+9}, s{sT}, {512*t}")
        else:
            e(f"s_lshl3_add_u32 m0, s{sT+8}, s{sT+1}")
            e(f"s_add_u32 s{sT+9}, s{sT}, s{sT+8}")
        e(f"buffer_load_dwordx4 v5, s[{S_WS}:{S_WS+3}], s{sT+9} offen sc1 lds")
    dmaB0()
    dq=list(range(8))
    for s in range(opt.zb2,22): zstep(s)
    st(84)
    AUE,AUO=200,216; RG=232
    AXE=LE(0); AXO=ZE(0)
    vm=Q(63); lg=Q(15)
    seq=[('eo',22),('eo',23)]+[('e',s) for s in range(4)]+[('o',s) for s in range(4)]+[('eo',s) for s in range(4,22)]
    free=[RG+4*k for k in range(6)]
    reg={}
    lL=[]; lG=[]
    for i,(tl,s) in enumerate(seq):
        for k,fi in ([('x',2*s),('u',2*s+1)] if s<22 else [('u',44+s-22)]): lL.append((i,k,fi))
    cur=[0]; okB=[False]
    def ld():
        if not free or not lL or lL[0][0]>cur[0]+opt.look: return False
        i,k,fi=lL[0]
        if 14<=fi<44 and not okB[0]: return False
        lL.pop(0); r=free.pop(0); reg[(i,k)]=r
        if 14<=fi<44: off=(fi-14)*1024
        else:
            p=fi+2 if fi<14 else fi-44
            off=RING+4096-CWB+(p>>2)*8192+(p&3)*1024
        e(f"ds_read_b128 v[{r}:{r+3}], v1 offset:{off}"); lg.issue(f"{k}{i}")
        return True
    e(f"s_mov_b32 s{sT+4}, {opt.bound*8}")
    lab("L_gC")
    e(f"ds_read2_b32 v[200:201], v7 offset0:{F_RED//4} offset1:{F_CW//4}")
    e("s_waitcnt lgkmcnt(0)")
    e("v_min_u32 v200, v200, v201")
    e(f"s_sub_u32 s{sT+4}, s{sT+4}, 1")
    e(f"v_readfirstlane_b32 s{sT+5}, v200")
    e("s_cselect_b32 s12, 4, 0")
    e(f"s_max_u32 s{sT+5}, s{sT+5}, s12")
    e(f"s_cmp_ge_u32 s{sT+5}, 4")
    e("s_cbranch_scc0 L_gC")
    st(88,True)
    if ST: e("s_memtime s[96:97]"); e("s_waitcnt lgkmcnt(0)")
    if opt.hpc>=0: e(f"s_setprio {opt.hpc}")
    while ld(): pass
    for _ in range(opt.dpre): dmaB1(dq.pop(0))
    first={'xe':1,'xo':1,'ue':1,'uo':1}
    GV=RG; rel=[]
    for i,(tl,s) in enumerate(seq):
        cur[0]=i
        CS={2:76,6:78,10:80,12:82,13:84,16:86,20:88,24:92}
        if opt.cst and i in CS: e(f"s_memtime s[{CS[i]}:{CS[i]+1}]")
        if i==12:
            e(f"ds_read_b32 v0, v7 offset:{F_CW2}"); lg.issue("cwr")
        q,nm=(lg,"lgkmcnt") if f'u{i}' in lg.ops else (vm,"vmcnt")
        if q.pending(f'u{i}'): e(f"s_waitcnt {nm}({q.need(f'u{i}')})")
        n=0
        for t in tl:
            z=(ZE if t=='e' else ZO)(s) if s<22 else (LE if t=='e' else LO)(s-22)
            for k,a in (('x',AXE if t=='e' else AXO),('u',AUE if t=='e' else AUO)):
                if (i,k) not in reg: continue
                c=f"v[{a}:{a+15}]"; r=reg[(i,k)]
                e(f"v_mfma_f32_32x32x16_bf16 {c}, v[{r}:{r+3}], v[{z}:{z+3}], {0 if first[k+t] else c}"); first[k+t]=0; lastw[t]=cnt[0]
                n+=1
                if n==1: free+=rel; rel=[]
                for _ in range(opt.dper):
                    if dq: dmaB1(dq.pop(0))
                if i==opt.bstep2 and n==opt.bn: hinc(F_CW2); lg.issue("cw2")
                if i==12 and n==1:
                    e("s_waitcnt lgkmcnt(0)"); lg.done=len(lg.ops)
                    e(f"v_readfirstlane_b32 s{sT+5}, v0")
                    e(f"s_cmp_ge_u32 s{sT+5}, 4")
                    e("s_cbranch_scc1 L_cw2_x")
                    lds_spin("L_cw2",7,0,F_CW2,4); okB[0]=True
                    while ld(): pass
                ld()
                if len(tl)==1: ld()
            if s<22 and not (t=='e' and s<4): rel.append(z)
        rel+= [reg[(i,k)] for k in 'xu' if (i,k) in reg]
        if i==len(seq)-3:
            assert not lL and not lG
            GV=free.pop(0)
            e(f"buffer_load_dwordx2 v[{GV}:{GV+1}], v6, s[{S_WS}:{S_WS+3}], 0 offen sc1"); vm.issue("gv")
    V=free.pop(0); V2=V+1
    e(f"s_add_u32 s{sE}, s{sE}, 1")
    e(f"s_and_b32 s{sE+1}, s{sE+1}, 0xff")
    e("s_lshl_b32 s9, s9, 16")
    e(f"s_lshl_b32 s{sT+6}, s{sROW}, 1")
    e(f"s_lshl_b32 s{sT+7}, s{sROW}, 3")
    e(f"s_add_u32 s{sT+7}, s{sT+7}, {EPOCH}")
    e(f"v_mov_b32 v{V+3}, s{sE}")
    hz('e',12)
    e(f"v_mul_f32 v{V}, v{AXE}, v{AUE}")
    e(f"v_mul_f32 v{V2}, v{AXE+1}, v{AUE+1}")
    for t in range(2,14): e(f"v_fmac_f32 v{V+(t&1)}, v{AXE+t}, v{AUE+t}")
    hz('o',12)
    for t in range(14): e(f"v_fmac_f32 v{V+(t&1)}, v{AXO+t}, v{AUO+t}")
    e(f"v_add_f32 v{V}, v{V}, v{V2}")
    st(90)
    if ST: e("s_memtime s[98:99]")
    e("s_mov_b32 exec_lo, 0x3ffffff")
    e("s_mov_b32 exec_hi, 0")
    e(f"s_mov_b32 s{sT+4}, {opt.bound}")
    G2=GV+2
    def chk(g,lbl):
        e(f"v_and_b32 v{V2}, 0xff, v{g+1}")
        e(f"v_cmp_eq_u32 vcc, s{sE}, v{g}")
        e(f"v_cmp_eq_u32 s[{sT}:{sT+1}], s{sE+1}, v{V2}")
        e(f"v_and_b32 v{V2}, 0xffffff00, v{g+1}")
        e(f"s_and_b64 vcc, vcc, s[{sT}:{sT+1}]")
        e("s_cmp_eq_u64 vcc, exec")
        e(f"s_cbranch_scc1 L_got")
    lab("L_poll2")
    e(f"buffer_load_dwordx2 v[{G2}:{G2+1}], v6, s[{S_WS}:{S_WS+3}], 0 offen sc1")
    e("s_waitcnt vmcnt(1)")
    chk(GV,0)
    e(f"buffer_load_dwordx2 v[{GV}:{GV+1}], v6, s[{S_WS}:{S_WS+3}], 0 offen sc1")
    e("s_waitcnt vmcnt(1)")
    chk(G2,1)
    e(f"s_sub_u32 s{sT+4}, s{sT+4}, 1")
    e("s_cbranch_scc0 L_poll2")
    lab("L_got")
    e(f"v_add_f32 v{V}, v{V}, v{V2}")
    e("s_mov_b64 exec, -1")
    if not opt.cst: st(92)
    for dpp in ["quad_perm:[1,0,3,2] row_mask:0xf bank_mask:0xf","quad_perm:[2,3,0,1] row_mask:0xf bank_mask:0xf",
                "row_half_mirror row_mask:0xf bank_mask:0xf","row_mirror row_mask:0xf bank_mask:0xf",
                "row_bcast:15 row_mask:0xa bank_mask:0xf","row_bcast:31 row_mask:0xc bank_mask:0xf"]:
        e("s_nop 1")
        e(f"v_add_f32_dpp v{V}, v{V}, v{V} {dpp}")
    e("s_mov_b32 exec_lo, 0")
    e("s_mov_b32 exec_hi, 0x80000000")
    e(f"v_add_f32 v{V}, s9, v{V}")
    e(f"v_cvt_pk_bf16_f32 v{V}, v{V}, v{V}")
    e(f"buffer_store_short v{V}, off, s[{S_B}:{S_B+3}], s{sT+6}")
    e(f"buffer_store_dword v{V+3}, off, s[{S_WS}:{S_WS+3}], s{sT+7}")
    if ST:
        e("s_waitcnt vmcnt(0)"); st(94,True); e("s_sub_u32 s98, s98, s96")
        if opt.cst:
            for r in (76,78,80,82,84,86,88,92):
                e(f"s_sub_u32 s{r}, s{r}, s96"); e(f"s_mul_i32 s{r}, s{r}, 100"); e(f"s_add_u32 s{r}, s{r}, s10")
        dump([10,76,78,80,82,84,86,88,90,92,94,98],0,1)
    e("s_endpgm")

    sec("pref")
    lab("L_aux")
    if opt.foldx:
        e(f"s_mov_b32 s{sT+1}, s{sXCD}")
    else:
        e(f"s_lshl1_add_u32 s{sT+1}, s{sXCD}, s{sSLOT}")
        e(f"s_sub_u32 s{sT+1}, s{sT+1}, 26")
    e(f"s_cmp_lt_u32 s{sT+1}, 7")
    e("s_cbranch_scc1 L_fold")
    sec("fold0"); lab("L_fold")
    cm("---- CIN weight folding: rows i = 4*pidx + (wave&3) ----")
    S_C=S_W; S_O=S_B; sI=6
    e(f"s_and_b32 s{sT}, s{sWAVE}, 3")
    e(f"s_lshl2_add_u32 s{sI}, s{sT+1}, s{sT}")
    M=16
    e("v_lshlrev_b32 v3, 2, v0")
    e("v_mov_b32 v7, 0x7fff0000")
    e(f"s_movk_i32 s{sT+1}, 338")
    e(f"v_cmp_gt_u32 vcc, s{sT+1}, v0")
    e("v_lshrrev_b32 v4, 1, v2")
    e("v_and_b32 v5, 1, v2")
    e("v_cndmask_b32 v3, v7, v3, vcc")
    e("v_lshlrev_b32 v4, 3, v4")
    e("s_waitcnt lgkmcnt(0)")
    e(f"s_load_dwordx8 s[76:83], s[{P_WOUT}:{P_WOUT+1}], 104")
    e(f"s_load_dwordx4 s[84:87], s[{P_WOUT}:{P_WOUT+1}], 136")
    e(f"s_load_dword s88, s[{P_WOUT}:{P_WOUT+1}], 152")
    srd(S_C,P_CIN,105456)
    for gg in range(26):
        if gg%3==0: e(f"s_mov_b32 s{sT+2}, {2*35152+gg*1352}")
        e(f"buffer_load_dword v{M+gg}, v3, s[{S_C}:{S_C+3}], s{sT+2} offen offset:{(gg%3)*1352}")
    e("s_branch L_fold_b")
    sec("fold"); lab("L_fold_b")
    PP=44; QQ=52
    def slots():
        for ee in range(8):
            e(f"v_add_u32 v8, {ee}, v4")
            e("v_mul_u32_u24 v9, 5042, v8")
            e("v_lshrrev_b32 v9, 16, v9")
            e("v_mul_u32_u24 v10, 13, v9")
            e("v_sub_u32 v10, v8, v10")
            e(f"v_lshl_add_u32 v{PP+ee}, v10, 1, v5")
            e(f"v_add_u32 v{QQ+ee}, v{PP+ee}, v9")
            e(f"v_subrev_u32 v10, 26, v{QQ+ee}")
            e(f"v_min_u32 v{QQ+ee}, v{QQ+ee}, v10")
    def m3(later):
        e("v_mul_u32_u24 v8, 5042, v0")
        e("v_lshrrev_b32 v8, 16, v8")
        e("v_mul_u32_u24 v9, 13, v8")
        e("v_sub_u32 v9, v0, v9")
        e("v_lshlrev_b32 v9, 7, v9")
        e("v_lshl_add_u32 v96, v8, 1, v9")
        e("s_waitcnt lgkmcnt(0)")
        st(92)
        for gg in range(26):
            sreg=76+(gg>>1)
            if gg&1: e(f"s_and_b32 s{sT+4+(gg&1)}, s{sreg}, 0xffff0000")
            else:    e(f"s_lshl_b32 s{sT+4+(gg&1)}, s{sreg}, 16")
            if gg%4==0: e(f"s_waitcnt vmcnt({later+25-min(gg+3,25)})")
            e(f"v_lshlrev_b32 v8, 16, v{M+gg}")
            e(f"v_and_b32 v9, 0xffff0000, v{M+gg}")
            if gg==0:
                e(f"v_mul_f32 v10, s{sT+4}, v8"); e(f"v_mul_f32 v11, s{sT+4}, v9")
            else:
                e(f"v_fmac_f32 v10, s{sT+4+(gg&1)}, v8"); e(f"v_fmac_f32 v11, s{sT+4+(gg&1)}, v9")
        e("v_cvt_pk_bf16_f32 v10, v10, v11")
        e(f"s_movk_i32 s{sT+1}, 338")
        e(f"v_cmp_gt_u32 vcc, s{sT+1}, v0")
        e(f"s_and_saveexec_b64 s[{sT+2}:{sT+3}], vcc")
        e("ds_write_b16 v96, v10")
        e("ds_write_b16_d16_hi v96, v10 offset:64")
        e("s_mov_b64 exec, -1")
        st(94)
    def st_addr(cnt):
        e("v_lshlrev_b32 v6, 7, v6")
        e("v_lshl_add_u32 v6, v5, 6, v6")
        e(f"s_and_b32 s{sT+1}, s{sWAVE}, 3")
        e(f"s_lshl_b32 s{sT+1}, s{sT+1}, 4")
        e(f"s_add_u32 s{sT+1}, s{sT+1}, {STG}")
        e(f"v_add_u32 v6, s{sT+1}, v6")
        e(f"v_cmp_gt_u32 vcc, {cnt}, v2")
        e("v_mov_b32 v94, 1.0")
        e(f"v_mov_b32 v8, {STG+8192}")
        e("v_cndmask_b32 v6, v8, v6, vcc")
        e("v_cmp_gt_u32 vcc, 2, v2")
        e("s_nop 1")
        e("v_cndmask_b32 v95, v94, 0.5, vcc")
        e("v_cmp_gt_u32 vcc, 4, v2")
        e("s_nop 1")
        e("v_cndmask_b32 v94, v94, 0.5, vcc")
    e(f"s_cmp_ge_u32 s{sWAVE}, 4")
    e("s_cbranch_scc1 L_aux_w1")
    Pq=60; PR=76; RA=68; VV=16
    e("v_and_b32 v8, 31, v2")
    e("v_lshrrev_b32 v15, 5, v2")
    e(f"v_mul_u32_u24 v10, {8*1352}, v15")
    e("v_lshl_add_u32 v10, v8, 1, v10")
    e("v_cmp_gt_u32 vcc, 26, v8")
    e(f"s_mul_i32 s{sT+3}, s{sI}, 52")
    e(f"s_add_u32 s{sT+3}, s{sT+3}, 35152")
    e("v_cndmask_b32 v10, v7, v10, vcc")
    e("v_cmp_gt_u32 vcc, 32, v2")
    e("v_lshlrev_b32 v12, 2, v2")
    e("s_nop 0")
    e("v_cndmask_b32 v11, v7, v10, vcc")
    for s in range(2):
        for ee in range(8):
            h=16*s+ee
            if h%3==0 or ee==0:
                hb=h; e(f"s_add_u32 s{sT+2}, s{sT+3}, {h*1352}")
            va=11 if (s==1 and ee>=2) else 10
            e(f"buffer_load_ushort v{PR+s*8+ee}, v{va}, s[{S_C}:{S_C+3}], s{sT+2} offen offset:{(h-hb)*1352}")
    srd(S_O,P_WOUT,156)
    e(f"buffer_load_dword v13, v12, s[{S_O}:{S_O+3}], 0 offen offset:52")
    e(f"s_lshl_b32 s{sT+2}, s{sI}, 1")
    e(f"buffer_load_ushort v14, off, s[{S_O}:{S_O+3}], s{sT+2}")
    e("v_lshlrev_b32 v8, 6, v2")
    e("v_mov_b32 v9, 0")
    e("s_mov_b32 exec_lo, 0x7ffffff")
    e("s_mov_b32 exec_hi, 0")
    e("ds_write_b32 v8, v9 offset:52")
    e("ds_write_b32 v8, v9 offset:56")
    e("ds_write_b32 v8, v9 offset:60")
    e("s_mov_b64 exec, -1")
    e("v_and_b32 v8, 31, v2")
    e("v_lshlrev_b32 v93, 6, v8")
    e("v_lshl_add_u32 v93, v15, 4, v93")
    e(f"s_mul_i32 s{sT+1}, s{sWAVE}, 5120")
    e(f"s_add_u32 s{sT+1}, s{sT+1}, 4096")
    e("v_mul_u32_u24 v92, 144, v8")
    e("v_lshl_add_u32 v92, v15, 4, v92")
    e(f"v_add_u32 v92, s{sT+1}, v92")
    slots()
    e("v_cmp_lt_u32 vcc, 43, v2")
    e("v_subrev_u32 v10, 176, v4")
    e("v_mov_b32 v11, 26")
    for ee in range(8):
        e(f"v_add_u32 v8, {ee}, v10")
        e("v_lshl_add_u32 v8, v8, 1, v5")
        e(f"v_min_u32 v8, 31, v8")
        e(f"v_cndmask_b32 v8, v{QQ+ee}, v8, vcc")
        e(f"v_cndmask_b32 v9, v{PP+ee}, v11, vcc")
        e(f"v_mul_u32_u24 v9, 144, v9")
        e(f"v_lshl_add_u32 v9, v8, 2, v9")
        e(f"v_add_u32 v{RA+ee}, s{sT+1}, v9")
    e("v_lshrrev_b32 v8, 1, v2")
    e("v_lshl_add_u32 v6, v8, 1, 1")
    e("v_add_u32 v8, 22, v8")
    e("v_cndmask_b32 v6, v6, v8, vcc")
    st_addr(48)
    m3(18)
    e("s_mov_b32 exec_lo, 0x1fff")
    e("s_mov_b32 exec_hi, 0")
    e("s_waitcnt vmcnt(0)")
    e(f"ds_write_b32 v12, v13 offset:{26*64}")
    e("s_mov_b64 exec, -1")
    for r in range(8): e(f"v_lshl_or_b32 v{Pq+r}, v{PR+2*r+1}, 16, v{PR+2*r}")
    e("s_waitcnt lgkmcnt(0)")
    e("s_barrier")
    Qq=16; D=24
    e(f"ds_read_b128 v[{Qq}:{Qq+3}], v93")
    e(f"ds_read_b128 v[{Qq+4}:{Qq+7}], v93 offset:32")
    e("s_waitcnt lgkmcnt(0)")
    e(f"v_mfma_f32_32x32x16_bf16 v[{D}:{D+15}], v[{Pq}:{Pq+3}], v[{Qq}:{Qq+3}], 0")
    e(f"v_mfma_f32_32x32x16_bf16 v[{D}:{D+15}], v[{Pq+4}:{Pq+7}], v[{Qq+4}:{Qq+7}], v[{D}:{D+15}]")
    e(f"v_mfma_f32_32x32x16_bf16 v[{D}:{D+15}], v[{Qq}:{Qq+3}], v[{Pq}:{Pq+3}], v[{D}:{D+15}]")
    e(f"v_mfma_f32_32x32x16_bf16 v[{D}:{D+15}], v[{Qq+4}:{Qq+7}], v[{Pq+4}:{Pq+7}], v[{D}:{D+15}]")
    e("s_nop 11")
    for m in range(4):
        e(f"ds_write_b128 v92, v[{D+4*m}:{D+4*m+3}] offset:{m*32}")
    e("s_waitcnt lgkmcnt(0)")
    for ee in range(8): e(f"ds_read_b32 v{VV+ee}, v{RA+ee}")
    e("v_lshlrev_b32 v14, 16, v14")
    e(f"v_cmp_eq_u32 s[{sT}:{sT+1}], 46, v2")
    e(f"v_cmp_eq_u32 s[{sT+2}:{sT+3}], 47, v2")
    e("v_cmp_lt_u32 vcc, 45, v2")
    e("s_waitcnt lgkmcnt(0)")
    e(f"v_cndmask_b32 v{VV+5}, v{VV+5}, v14, s[{sT}:{sT+1}]")
    e(f"v_cndmask_b32 v{VV+5}, v{VV+5}, 0, s[{sT+2}:{sT+3}]")
    e(f"v_cndmask_b32 v{VV+6}, v{VV+6}, 0, vcc")
    e(f"v_cndmask_b32 v{VV+7}, v{VV+7}, 0, vcc")
    e("s_branch L_aux_pack")
    lab("L_aux_w1")
    GA=60; GB=68
    e(f"s_mul_i32 s{sT+3}, s{sI}, 1352")
    e(f"s_lshl_b32 s{sT+6}, s{sWAVE}, 11")
    e(f"s_add_u32 s{sT+6}, s{sT+6}, {32768-4*2048}")
    e(f"s_mov_b32 m0, s{sT+6}")
    e("v_lshlrev_b32 v12, 4, v2")
    e(f"buffer_load_dwordx4 v12, s[{S_C}:{S_C+3}], s{sT+3} offen lds")
    e(f"buffer_load_dwordx4 v12, s[{S_C}:{S_C+3}], s{sT+3} offen offset:1024 lds")
    slots()
    for ee in range(8):
        e(f"v_mul_u32_u24 v8, 26, v{PP+ee}")
        e(f"v_add_lshl_u32 v8, v8, v{QQ+ee}, 1")
        e(f"v_add_u32 v{GA+ee}, s{sT+6}, v8")
        e(f"v_mul_u32_u24 v9, 26, v{QQ+ee}")
        e(f"v_add_lshl_u32 v9, v9, v{PP+ee}, 1")
        e(f"v_add_u32 v{GB+ee}, s{sT+6}, v9")
    e("v_and_b32 v6, 62, v2")
    st_addr(44)
    m3(2)
    e("s_waitcnt lgkmcnt(0)")
    e("s_barrier")
    e("s_waitcnt vmcnt(0)")
    for ee in range(8):
        e(f"ds_read_u16 v{GA+ee}, v{GA+ee}")
        e(f"ds_read_u16 v{GB+ee}, v{GB+ee}")
    e("s_waitcnt lgkmcnt(0)")
    for ee in range(8):
        e(f"v_lshlrev_b32 v{GA+ee}, 16, v{GA+ee}")
        e(f"v_lshlrev_b32 v{GB+ee}, 16, v{GB+ee}")
        e(f"v_add_f32 v{VV+ee}, v{GA+ee}, v{GB+ee}")
    lab("L_aux_pack")
    srd(S_WS,P_WS,WS_SIZE); srd(S_A,P_DBG,256)
    e("v_cmp_eq_u32 vcc, 43, v2")
    for ee in range(8): e(f"v_mul_f32 v{VV+ee}, v{VV+ee}, v{94 if ee<5 else 95}")
    e(f"v_cndmask_b32 v{VV+7}, v{VV+7}, 0, vcc")
    for m in range(4): e(f"v_cvt_pk_bf16_f32 v{24+m}, v{VV+2*m}, v{VV+2*m+1}")
    e("ds_write_b128 v6, v[24:27]")
    e("v_lshlrev_b32 v8, 4, v0")
    e(f"s_movk_i32 s{sT+1}, 368")
    e(f"v_cmp_gt_u32 vcc, s{sT+1}, v0")
    e(f"s_lshr_b32 s{sT}, s{sI}, 2")
    e(f"s_mul_i32 s{sT+2}, s{sT}, 5888")
    e("v_cndmask_b32 v9, v7, v8, vcc")
    e("s_waitcnt lgkmcnt(0)")
    e("s_barrier")
    e(f"ds_read_b128 v[24:27], v8 offset:{STG}")
    e("s_waitcnt lgkmcnt(0)")
    e(f"buffer_store_dwordx4 v[24:27], v9, s[{S_WS}:{S_WS+3}], s{sT+2} offen sc0 sc1")
    st(96)
    e(f"s_lshl_b32 s{sT}, s{sT}, 2")
    e("v_mov_b32 v8, 1")
    e("s_waitcnt vmcnt(0)")
    e("s_barrier")
    e(f"s_cmp_lg_u32 s{sWAVE}, 0")
    e("s_cbranch_scc1 L_noflag")
    e("s_mov_b64 exec, 1")
    e(f"buffer_store_dword v8, off, s[{S_A}:{S_A+3}], s{sT} sc0 sc1")
    e("s_mov_b64 exec, -1")
    lab("L_noflag")
    if ST:
        st(98); e("s_waitcnt vmcnt(0)"); st(100,True)
        dump([10,92,94,96,98,100],1,2)
    e("s_branch L_aux_done")
    sec("pref")
    lab("L_prefetch")
    e("s_waitcnt lgkmcnt(0)")
    if opt.pdel: e(f"s_sleep {opt.pdel}")
    if opt.pf:
        e(f"s_cmp_lg_u32 s{sSLOT}, 31")
        e("s_cbranch_scc1 L_pf2")
        srd(S_A,P_B1,3328); srd(S_B,P_W2,3328); srd(S_WS,P_WS,EPOCH+8192)
        e("v_lshlrev_b32 v3, 7, v0")
        e(f"buffer_load_dword v12, v3, s[{S_A}:{S_A+3}], 0 offen")
        e(f"buffer_load_dword v13, v3, s[{S_B}:{S_B+3}], 0 offen")
        e(f"s_mov_b32 s{sT}, {EPOCH}")
        e(f"buffer_load_dword v14, v3, s[{S_WS}:{S_WS+3}], s{sT} offen")
        lab("L_pf2")
        srd(S_W,P_W,1664*3328)
        if opt.foldx:
            e(f"s_cmp_lt_u32 s{sXCD}, 7")
            e(f"s_cselect_b32 s{sT+2}, 27, 26")
        else:
            e(f"s_cmp_lt_u32 s{sXCD}, 4")
            e(f"s_cselect_b32 s{sT+2}, 27, 26")
            e(f"s_cmp_lt_u32 s{sXCD}, 3")
            e(f"s_cselect_b32 s{sT+2}, 28, s{sT+2}")
        e(f"s_sub_u32 s{sT}, s{sSLOT}, s{sT+2}")
        e(f"s_sub_u32 s{sT+2}, 32, s{sT+2}")
        e(f"s_mul_i32 s{sT+1}, s{sXCD}, 26")
        e(f"s_lshr_b32 s{sT+1}, s{sT+1}, 3")
        e(f"s_lshl_b32 s{sT+1}, s{sT+1}, 7")
        for u in range(3):
            e(f"v_add_u32 v3, {512*u}, v0")
            e(f"v_mul_u32_u24 v3, s{sT+2}, v3")
            e(f"v_add_u32 v3, s{sT}, v3")
            e("v_lshrrev_b32 v4, 2, v3")
            if opt.pskip: e(f"v_add_u32 v4, {opt.pskip}, v4")
            e("v_and_b32 v3, 3, v3")
            e(f"v_mul_u32_u24 v4, 3328, v4")
            e("v_lshl_add_u32 v3, v3, 7, v4")
            e(f"buffer_load_dword v{9+u}, v3, s[{S_W}:{S_W+3}], s{sT+1} offen")
            if u<2 and opt.pbar: e("s_barrier")
    e("s_branch L_aux_done")
    sec("fold")
    lab("L_aux_done")
    e(f"s_cmp_lt_u32 s{sWAVE}, 4")
    e("s_cbranch_scc1 L_end")
    srd(S_TBL,P_TBL,128000); srd(S_IDX,P_IDX,106496)
    rowidx_load()
    e(f"v_mov_b32 v7, {FLAGS}")
    e("v_mov_b32 v8, 4")
    e("v_mov_b32 v9, 0")
    e(f"ds_write_b32 v7, v8 offset:{F_RED}")
    e(f"ds_write_b32 v7, v8 offset:{F_G}")
    e(f"ds_write_b32 v7, v8 offset:{F_S1}")
    e(f"ds_write_b32 v7, v9 offset:{F_CW}")
    e(f"ds_write_b32 v7, v9 offset:{F_CW2}")
    e("s_waitcnt vmcnt(0)")
    e("v_lshlrev_b32 v29, 7, v29")
    x0_addrs()
    e("s_branch L_help_x0")
    lab("L_end")
    e("s_endpgm")
    sec("tail")
    L.append('.section .rodata,"a"'); L.append(".p2align 6"); L.append(f".amdhsa_kernel {KN}")
    for x in ["next_free_vgpr 256","next_free_sgpr 102","accum_offset 256","group_segment_fixed_size 0","kernarg_size 88",
              "user_sgpr_count 2","user_sgpr_kernarg_segment_ptr 1","system_sgpr_workgroup_id_x 1"]:
        L.append("  .amdhsa_"+x)
    L.append(".end_amdhsa_kernel")
    return "\n".join(sum((SEC.get(k,[]) for k in order+["tail"]),[]))+"\n"

if __name__=="__main__":
    ap=argparse.ArgumentParser()
    ap.add_argument("-o",default="k.s")
    for k,d in dict(xearly=0,hpz=0,hpc=-1,gp=-1,zb2=22,zpk=0,hprio=0,tpk=0,foldx=1,rp=1,pdel=0,cp26=1,pbar=1,lay=1,b2g=1,cst=0,bgate=0,look=2,bstep=0,bstep2=11,bn=1,dper=1,dpre=2,inv=0,zmid=15,csc=0,gateC=1,gq=0,rowx=1,wstop=5,wrest=16,bq=3,xlds=1,xgap=0,atid=1,xsl=0,pskip=128,d2late=1,wper=4,its=0,sched=0,nog=0,not_=0,c2=0,noz=0,lateb=1,dly=4,pst=0,enc=0,encrole=0,encwg=0,encwave=0,nocin=0,gcyc=0,psleep=4,now=0,stamps=0,pf=1,cpf=1,prio=1,bound=2000000,zsplit=15,zbar=17,nt0=6,tb=444,n0=4,nt1=4,d1late=0,trim=1,wsched=0).items(): ap.add_argument("--"+k,type=int,default=d)
    opt=ap.parse_args()
    assert opt.zsplit==opt.zmid
    for t in range(512): assert (t*5042)>>16==t//13, t
    open(opt.o,"w").write(build(opt))
```

```python
import sys, argparse, math, struct

class Q:
    def __init__(s,cap): s.ops=[]; s.cap=cap; s.done=0
    def issue(s,name): s.ops.append(name)
    def need(s,*names):
        r=99
        for name in names:
            i=len(s.ops)-1-s.ops[::-1].index(name)
            r=min(r,len(s.ops)-1-i)
        r=min(r,s.cap)
        s.done=max(s.done,len(s.ops)-r)
        return r
    def pending(s,*names):
        return any(len(s.ops)-1-s.ops[::-1].index(n)>=s.done for n in names)

WIMG=0; GRAN=65536; EPOCH=0x50000; STAMP=0x100000; WS_SIZE=0x200000
STG=49152; RING=128000; FLAGS=160768; CINW=49152
F_IT9,F_RED,F_G,F_PRE,F_S1,F_CW,F_CW2=0,4,8,12,16,20,24
C1=-2*math.sqrt(2/math.pi)*math.log2(math.e); C2=C1*0.044715
def f2u(x): return struct.unpack('<I',struct.pack('<f',x))[0]
KN="standalone__deep_cross_xdeepfm__recsys_kernel"

sWAVE,sXCD,sSLOT,sCB,sRB=3,4,5,7,8
P_IDX,P_TBL,P_CIN,P_WOUT,P_W,P_B1,P_W2,P_BO=16,18,20,22,24,26,28,30
P_OUT,P_DBG,P_WS=32,34,36
S_IDX,S_TBL,S_W,S_WS,S_A,S_B=40,44,48,52,56,60
sRING,sWR1,sWR2,sTM=64,65,15,14
sT=66

def pair_of(n):
    if n<169: dlt,m=divmod(n,13)
    else: dlt,m=13,n-169
    r=2*m
    return r,(r+dlt)%26

def build(opt):
    SEC={"entry":[]}; order=["entry","dnn0","hpro","pref","fold0","dnn","help","fold"]
    class LL:
        cur="entry"
        def append(s,x): SEC.setdefault(s.cur,[]).append(x)
    L=LL()
    def sec(n): L.cur=n
    cnt=[0]; lastw={}
    def e(x):
        L.append("    "+x)
        cnt[0]+= (int(x.split()[1])+1) if x.startswith("s_nop") else 1
    def hz(key,n):
        d=cnt[0]-lastw[key]
        if d<n: e(f"s_nop {n-d-1}")
    def lab(x): L.append(x+":")
    def cm(x): L.append("    ; "+x)
    E=lambda x:(lambda: e(x))
    ST=opt.stamps
    def srd(d,p,size):
        e(f"s_mov_b32 s{d}, s{p}"); e(f"s_mov_b32 s{d+1}, s{p+1}")
        e(f"s_mov_b32 s{d+2}, {size}"); e(f"s_mov_b32 s{d+3}, 0x20000")
    def st(r,wait=False):
        if ST:
            e(f"s_memrealtime s[{r}:{r+1}]")
            if wait: e("s_waitcnt lgkmcnt(0)")
    def dump(regs,area=0,role=0):
        if opt.enc:
            delay(regs,role); return
        dump_(regs,area)
    dl=[0]
    def delay(regs,role):
        dl[0]+=1; n=dl[0]
        e("s_mov_b64 exec, -1")
        e("s_waitcnt lgkmcnt(0)")
        if opt.enc==99:
            if role!=1: return
            srd(S_A,P_DBG,256)
            e("s_not_b32 s12, s10")
            e("v_mov_b32 v244, s12")
            e(f"v_mov_b32 v245, s{regs[10]}")
            e("v_mov_b32 v246, 1")
            e("s_mov_b64 exec, 1")
            e(f"buffer_atomic_umax v244, off, s[{S_A}:{S_A+3}], 0 offset:240 sc1")
            e(f"buffer_atomic_umax v245, off, s[{S_A}:{S_A+3}], 0 offset:244 sc1")
            e("s_waitcnt vmcnt(0)")
            e(f"buffer_atomic_add v246, off, s[{S_A}:{S_A+3}], 0 offset:248 sc0 sc1")
            e("s_waitcnt vmcnt(0)")
            e("v_readfirstlane_b32 s12, v246")
            e("s_cmp_lg_u32 s12, 1023")
            e(f"s_cbranch_scc1 L_dly{n}_x")
            e(f"buffer_load_dwordx2 v[244:245], off, s[{S_A}:{S_A+3}], 0 offset:240 sc1")
            e("s_waitcnt vmcnt(0)")
            e("v_readfirstlane_b32 s12, v244")
            e("v_readfirstlane_b32 s13, v245")
            e("s_not_b32 s12, s12")
            e("s_sub_u32 s12, s13, s12")
        else:
            if role!=opt.encrole: return
            e(f"s_cmp_lg_u32 s2, {opt.encwg}")
            e(f"s_cbranch_scc1 L_dly{n}_x")
            e(f"s_cmp_lg_u32 s{sWAVE}, {opt.encwave}")
            e(f"s_cbranch_scc1 L_dly{n}_x")
            if opt.enc in (96,97):
                e(f"s_load_dwordx8 s[76:83], s[{P_DBG}:{P_DBG+1}], 64")
                e("s_waitcnt lgkmcnt(0)")
                e("s_mov_b32 s12, s76"); e("s_mov_b32 s13, s76")
                for k in range(1,8):
                    e(f"s_min_u32 s12, s12, s{76+k}"); e(f"s_max_u32 s13, s13, s{76+k}")
                if opt.enc==96: e("s_mov_b32 s13, s10")
                e("s_sub_u32 s12, s13, s12")
                e("s_min_u32 s12, s12, 2000")
            else: e(f"s_sub_u32 s12, s{regs[opt.enc]}, s10")
        e("s_mul_i32 s12, s12, 100")
        e("s_memrealtime s[66:67]")
        e("s_waitcnt lgkmcnt(0)")
        e("s_add_u32 s12, s12, s66")
        lab(f"L_dly{n}")
        e("s_sleep 8")
        e("s_memrealtime s[66:67]")
        e("s_waitcnt lgkmcnt(0)")
        e("s_sub_u32 s13, s66, s12")
        e("s_cmp_lt_i32 s13, 0")
        e(f"s_cbranch_scc1 L_dly{n}")
        lab(f"L_dly{n}_x")
        e("s_mov_b64 exec, -1")
    def dump_(regs,area=0):
        e("s_mov_b64 exec, -1")
        e("s_waitcnt lgkmcnt(0)")
        e("s_lshl_b32 s12, s2, 3")
        e(f"s_add_u32 s12, s12, s{sWAVE}")
        e("s_lshl_b32 s12, s12, 6")
        e(f"s_add_u32 s12, s12, {STAMP+area*0x40000}")
        regs=list(regs)+[regs[0]]*(12-len(regs))
        for i,r in enumerate(regs): e(f"v_mov_b32 v{244+i}, s{r}")
        e("s_mov_b64 exec, 1")
        for i in range(3):
            e(f"buffer_store_dwordx4 v[{244+4*i}:{247+4*i}], off, s[{S_WS}:{S_WS+3}], s12 offset:{16*i}")
        e("s_mov_b64 exec, -1")
    jn=[0]
    def jit():
        if not opt.jit: return
        jn[0]+=1; n=jn[0]
        e("s_memtime s[10:11]"); e("s_waitcnt lgkmcnt(0)")
        e(f"s_lshr_b32 s10, s10, {n%3}")
        e(f"s_and_b32 s10, s10, {opt.jit}")
        lab(f"L_jit{n}")
        e("s_sleep 6")
        e("s_sub_u32 s10, s10, 1")
        e(f"s_cbranch_scc0 L_jit{n}")
    def lds_spin(name,vaddr,vtmp,off,target,sleep=0):
        e(f"s_mov_b32 s{sT+4}, {opt.bound*8}")
        lab(name)
        e(f"ds_read_b32 v{vtmp}, v{vaddr} offset:{off}")
        e("s_waitcnt lgkmcnt(0)")
        e(f"v_readfirstlane_b32 s{sT+5}, v{vtmp}")
        e(f"s_cmp_ge_u32 s{sT+5}, {target}")
        e(f"s_cbranch_scc1 {name}_x")
        if sleep: e(f"s_sleep {sleep}")
        e(f"s_sub_u32 s{sT+4}, s{sT+4}, 1")
        e(f"s_cbranch_scc0 {name}")
        lab(name+"_x")

    IV=16; IA=24
    def rec_addrs():
        e(f"s_lshl_b32 s{sT+5}, s{sT}, 7")
        e(f"s_add_u32 s{sT+5}, s{sT+5}, {RING+4096}")
        e(f"v_lshl_add_u32 v7, v7, 3, s{sT+5}")
        e("v_mul_u32_u24 v9, 7, v8")
        e("v_and_b32 v8, 1, v8")
        for par in range(2):
            d=IA+2*par
            if par:
                e("v_xor_b32 v8, 1, v8"); e("v_add_u32 v9, 1, v9")
            e("v_lshrrev_b32 v10, 1, v9")
            e(f"v_lshl_add_u32 v{d}, v10, 8, v7")
            e(f"v_lshl_add_u32 v{d}, v8, 14, v{d}")
            e("v_lshlrev_b32 v10, 1, v8")
            e(f"v_xor_b32 v10, s{sT+2}, v10")
            e(f"v_lshl_add_u32 v{d}, v10, 1, v{d}")
            e(f"v_xor_b32 v{d+1}, 2, v{d}")
            e(f"v_add_u32 v{d+1}, 8192, v{d+1}")
    sROW=6; sE=38
    def rowidx_load():
        e(f"s_sub_u32 s{sT+6}, s{sWAVE}, 4")
        if opt.rowx:
            e(f"s_lshl2_add_u32 s{sROW}, s{sSLOT}, s{sT+6}")
            e(f"s_lshl_b32 s{sT+6}, s{sXCD}, 7")
            e(f"s_add_u32 s{sROW}, s{sROW}, s{sT+6}")
        else: e(f"s_lshl2_add_u32 s{sROW}, s2, s{sT+6}")
        e(f"s_mul_i32 s{sT+6}, s{sROW}, 104")
        e("v_lshlrev_b32 v30, 2, v2")
        e(f"buffer_load_dword v29, v30, s[{S_IDX}:{S_IDX+3}], s{sT+6} offen")
    for x in """xDeepFM (CIN + DNN) in one launch for gfx950; the instruction stream is emitted by my own generator script.
Kernarg: idx, table, ws_cin, w_cin_out, w_dnn1, b_dnn1, w_dnn2, b_out, out, debug, ws (8-byte pointers).
Math (exact regrouping of the reference): with Z = sym(x0 (x) x0) per (row, d),
  logit_cin = sum_d sum_i (W1s Z)_i * (w1_i + (M2 x0)_i + (Gs Z)_i),  M3 = w3.W3, M2 = w2.W2, G = W2.M3.
Workgroups g = xcd + 8*slot, 8 waves each:
  slot < 26 : waves 0-3 run a 128x64 tile of gelu(x0*W+b).w2 (table resident in LDS, K split over the waves,
              W streamed by LDS-DMA + transposing reads); partial logits leave as tagged 8-byte words in ws.
  slot 26   : folds the CIN weights (7 workgroups, published in ws, flags in debug); other slots warm L2.
  waves 4-7 of every workgroup evaluate the CIN polynomial of one row each, add the 26 partial logits, store out.
Hand-off tags: each row owns an epoch word in ws; tag = epoch + 1, the consumer advances it after use.""".split("\n"): L.append("; "+x)
    L.append("; @launch grid=(256,1,1) block=(512,1,1) lds=163840")
    L.append('.amdgcn_target "amdgcn-amd-amdhsa--gfx950"')
    L.append(".text"); L.append(f".globl {KN}"); L.append(".p2align 8"); L.append(f".type {KN},@function")
    lab(KN)
    e("s_load_dwordx16 s[16:31], s[0:1], 0")
    e("s_load_dwordx4 s[32:35], s[0:1], 64")
    e("s_load_dwordx2 s[36:37], s[0:1], 80")
    st(10)
    e("s_cmp_ge_u32 s2, 256")
    e("s_cbranch_scc1 L_end")
    e("v_lshrrev_b32 v1, 6, v0")
    e("v_and_b32 v2, 63, v0")
    e(f"v_readfirstlane_b32 s{sWAVE}, v1")
    e(f"s_and_b32 s{sXCD}, s2, 7")
    e(f"s_lshr_b32 s{sSLOT}, s2, 3")
    jit()
    e(f"s_cmp_ge_u32 s{sSLOT}, 26")
    e("s_cbranch_scc1 L_aux0")
    sec("pref"); lab("L_aux0")
    e(f"s_cmp_gt_u32 s{sSLOT}, {26 if opt.foldx else 27}")
    e("s_cbranch_scc1 L_prefetch")
    if opt.cpf:
        e(f"s_getpc_b64 s[{S_IDX}:{S_IDX+1}]")
        lab("L_pc")
        e(f"s_sub_u32 s{S_IDX}, s{S_IDX}, L_pc-{KN}")
        e(f"s_subb_u32 s{S_IDX+1}, s{S_IDX+1}, 0")
        e(f"s_mov_b32 s{S_IDX+2}, L_end-{KN}")
        e(f"s_mov_b32 s{S_IDX+3}, 0x20000")
        e("v_lshlrev_b32 v3, 7, v0")
        e(f"buffer_load_dword v255, v3, s[{S_IDX}:{S_IDX+3}], 0 offen")
    sec("entry")
    e(f"s_mul_i32 s6, s{sXCD}, 26")
    e(f"s_add_u32 s6, s6, s{sSLOT}")
    e(f"s_and_b32 s{sRB}, s6, 7")
    e(f"s_and_b32 s{sT}, s{sWAVE}, 1")
    e(f"s_lshr_b32 s{sT+2}, s{sWAVE}, 1")
    e(f"s_lshl2_add_u32 s{sT+4}, s{sRB}, s{sT+2}")
    e(f"s_mul_i32 s{sT+4}, s{sT+4}, 3328")
    e(f"s_lshl_b32 s{sT+5}, s{sT}, 11")
    e(f"s_add_u32 s{sT+4}, s{sT+4}, s{sT+5}")
    e(f"s_lshl_b32 s{sT+3}, s{sT+2}, 13")
    e(f"s_add_u32 s{sT+3}, s{sT+3}, s{sT+5}")
    e(f"s_add_u32 m0, s{sT+3}, {RING+4096}")
    e("v_lshlrev_b32 v6, 4, v2")
    e("v_lshrrev_b32 v3, 3, v2")
    e("v_lshrrev_b32 v4, 4, v2")
    e("v_and_b32 v10, 7, v2")
    e(f"s_lshl_b32 s{sT+1}, s{sT}, 2")
    e("v_xor_b32 v5, v10, v4")
    e(f"v_xor_b32 v5, s{sT+1}, v5")
    e("v_lshlrev_b32 v5, 4, v5")
    e("v_lshl_add_u32 v5, v3, 7, v5")
    e(f"s_lshl1_add_u32 s{sT+3}, s{sSLOT}, s{sT+2}")
    e(f"s_lshl1_add_u32 s{sTM}, s{sT+3}, s{sT}")
    e(f"s_lshl_b32 s{sTM}, s{sTM}, 10")
    e(f"s_sub_u32 s{sWR2}, {63*2048}, s{sT+5}")
    e(f"s_lshr_b32 s{sT+5}, s{sT+5}, 1")
    e(f"s_add_u32 s{sWR1}, s{sWR2}, s{sT+5}")
    e(f"s_mov_b32 s{S_IDX+2}, 106496"); e(f"s_mov_b32 s{S_IDX+3}, 0x20000")
    e(f"s_mov_b32 s{S_TBL+2}, 128000"); e(f"s_mov_b32 s{S_TBL+3}, 0x20000")
    e(f"s_mov_b32 s{sT+3}, {opt.n0-1}")
    e("s_waitcnt lgkmcnt(0)")
    if opt.pst: st(84)
    e(f"s_mov_b64 s[{S_IDX}:{S_IDX+1}], s[{P_IDX}:{P_IDX+1}]")
    e(f"s_mov_b64 s[{S_TBL}:{S_TBL+1}], s[{P_TBL}:{P_TBL+1}]")
    e(f"buffer_load_dwordx4 v6, s[{S_IDX}:{S_IDX+3}], s{sT+4} offen lds")
    if opt.trim:
        e(f"s_cmp_eq_u32 s{sT}, 0")
        e("s_cselect_b64 exec, -1, 0xffff")
    e(f"buffer_load_dwordx4 v6, s[{S_IDX}:{S_IDX+3}], s{sT+4} offen offset:1024 lds")
    if opt.trim: e("s_mov_b64 exec, -1")
    nl=[0]
    def tloop(n=None,vm=None):
        nl[0]+=1; name=f"L_tl{nl[0]}"
        if n is not None:
            if n==0: return
            e(f"s_mov_b32 s{sT+3}, {n-1}")
        lab(name)
        e(f"s_mov_b32 m0, s{sTM}")
        e(f"s_add_u32 s{sTM}, s{sTM}, 8192")
        e(f"buffer_load_dwordx4 v5, s[{S_TBL}:{S_TBL+3}], m0 offen lds")
        e(f"s_cmp_ge_u32 s{sTM}, s{sWR1}")
        e(f"s_cselect_b32 s{sT+5}, s{sWR2}, 0")
        e(f"s_sub_u32 s{sTM}, s{sTM}, s{sT+5}")
        e(f"s_sub_u32 s{sT+3}, s{sT+3}, 1")
        e(f"s_cbranch_scc0 {name}")
        if vm is not None:
            for t in range(n): vm.issue("tbl")
    tloop()
    e(f"s_cmp_ge_u32 s{sWAVE}, 4")
    e("s_cbranch_scc1 L_help_pro")
    sec("dnn0")
    tbl=tloop

    vWe,vWo=1,3
    AD=8; AF=16; F0=48; REC=80; ACC=128
    VT=106; PB,PC=110,111; BI=112; W2P=112; EV=120; VR=122; WA=123; KC=126; RA1=5; VB=6
    SEL=80; ONE=86; vC1=87; S0=88; S1=89; TA=90
    acc=lambda lt,ct: ACC+(lt*4+ct)*4
    Fr=lambda j,ct: F0+(j&1)*16+ct*4
    afr=lambda lt: AF+4*lt
    vm=Q(63); lg=Q(15)
    cm("---- DNN wave prologue ----")
    for x in ["idx0","idx3"]+["tbl"]*opt.n0: vm.issue(x)
    e(f"s_lshr_b32 s{sCB}, s6, 3")
    e(f"s_lshl_b32 s{sRING}, s{sWAVE}, 13")
    e(f"s_add_u32 s{sRING}, s{sRING}, {RING}")
    e(f"s_lshl_b32 s{sT+7}, s{sWAVE}, 5")
    e(f"v_add_u32 v9, s{sT+7}, v3")
    e("v_mul_u32_u24 v9, 3328, v9")
    e("v_lshlrev_b32 v11, 1, v4")
    e("v_and_b32 v11, 2, v11")
    e("v_xor_b32 v11, v11, v10")
    e("v_lshl_add_u32 v1, v11, 4, v9")
    e(f"s_lshl_b32 s{sT+7}, s{sCB}, 7")
    e(f"v_add_u32 v1, s{sT+7}, v1")
    e("v_xor_b32 v3, 64, v1")
    e(f"v_add_u32 v3, {8*3328-1024}, v3")
    srd(S_W,P_W,1664*3328)
    sWO=12
    def d3(j,pc):
        ld=lambda: (e(f"buffer_load_dwordx4 v{vWo if pc&1 else vWe}, s[{S_W}:{S_W+3}], s{sWO} offen offset:{(pc&1)*1024} lds"),vm.issue(f"w{j}_{pc}"))
        if pc&1: return [ld]
        return [E(f"s_add_u32 m0, s{sRING}, {((j&1)*4+pc)*1024}"),E(f"s_mov_b32 s{sWO}, {(128*j+8*pc)*3328}"),ld]
    def dma(j,pcs):
        for pc in pcs:
            for f in d3(j,pc): f()
    dma(0,range(4))
    def bias_loads(ii):
        for i in ii:
            e(f"buffer_load_dwordx2 v[{BI+2*i}:{BI+2*i+1}], v{VB}, s[{S_A}:{S_A+3}], 0 offen offset:{i*32}"); vm.issue(f"bias{i}")
    TB=[opt.n0]+[int(c,16) for c in str(opt.tb)]
    e("s_branch L_dnn_b")
    sec("dnn"); lab("L_dnn_b")
    e(f"v_lshl_add_u32 v{VB}, v4, 3, s{sT+7}")
    e(f"v_mov_b32 v7, {FLAGS}")
    srd(S_A,P_B1,3328)
    if opt.pst: st(86)
    e("v_and_b32 v13, 15, v2")
    e("v_mul_u32_u24 v13, 104, v13")
    e(f"s_lshl2_add_u32 s{sT+5}, s{sT+2}, {RING+4096}")
    e(f"v_add_u32 v13, s{sT+5}, v13")
    e(f"v_xor_b32 v9, s{sWAVE}, v4")
    e("v_lshl_add_u32 v24, v9, 13, v13")
    e("v_add_u32 v25, 1664, v24")
    e("v_bfe_u32 v9, v2, 2, 2")
    e("v_lshlrev_b32 v13, 7, v9")
    e("v_lshl_add_u32 v13, v4, 10, v13")
    e("v_lshrrev_b32 v9, 1, v9")
    e("v_lshl_add_u32 v13, v9, 5, v13")
    e("v_and_b32 v9, 1, v4")
    e("v_lshl_add_u32 v13, v9, 6, v13")
    e("v_and_b32 v9, 3, v2")
    e("v_lshl_add_u32 v13, v9, 3, v13")
    e(f"v_add_u32 v{VT}, s{sRING}, v13")
    e(f"v_xor_b32 v{VT+1}, 32, v{VT}")
    e(f"v_xor_b32 v{VT+2}, 64, v{VT}")
    e(f"v_xor_b32 v{VT+3}, 0x60, v{VT}")
    e(f"v_add_u32 v{KC}, s{sT+1}, v4")
    e(f"v_lshl_or_b32 v{KC}, v{KC}, 16, v{KC}")
    e(f"s_mov_b32 s{sT+6}, 0x00070007")
    e(f"s_waitcnt vmcnt({vm.need('idx3')})")
    if opt.pst: st(88)
    e("s_barrier")
    jit()
    RW=lambda t,j: 160+t*14+j
    for j in range(0,13,2):
        for t in range(2):
            e(f"ds_read2_b32 v[{RW(t,j)}:{RW(t,j)+1}], v{24+t} offset0:{2*j} offset1:{2*j+2}")
    tbl(TB[1],vm)
    srd(S_WS,P_WS,WS_SIZE)
    srd(S_B,P_W2,3328)
    e("s_waitcnt lgkmcnt(0)")
    e("s_barrier")
    st(76)
    tbl(TB[2],vm)
    for j in range(13):
        if j==6: tbl(TB[3],vm)
        d=REC+2*j
        e(f"v_lshl_or_b32 v{d}, v{RW(1,j)}, 16, v{RW(0,j)}")
        e(f"v_lshrrev_b32 v13, 1, v{d}")
        e(f"v_and_b32 v13, s{sT+6}, v13")
        e(f"v_lshl_or_b32 v{d}, v{d}, 3, v13")
        e(f"v_mov_b32 v{d+1}, v{d}")
        if j: e(f"v_permlane32_swap_b32 v{d-2}, v{d-1}")
    e("s_nop 1")
    e(f"v_permlane32_swap_b32 v{REC+24}, v{REC+25}")
    def bc(j,h):
        A=REC+2*j+h; B=PC if h else PB
        return [E(f"v_mov_b32 v{B}, v{A}")],[E(f"v_permlane16_swap_b32 v{A}, v{B}"),E(f"v_xor_b32 v{A}, v{KC}, v{A}"),E(f"v_xor_b32 v{B}, v{KC}, v{B}")]
    def adr(lt,j):
        src={0:REC+2*j,1:PB,2:REC+2*j+1,3:PC}[lt>>1]
        e(f"v_lshlrev_b32_sdwa v{AD+lt}, 4, v{src} dst_sel:DWORD dst_unused:UNUSED_PAD src0_sel:DWORD src1_sel:WORD_{lt&1}")
    def Rop(lt,j): e(f"ds_read_b128 v[{afr(lt)}:{afr(lt)+3}], v{AD+lt}"); lg.issue(f"R{lt}_{j}")
    def Top(j,ct,h4):
        d=Fr(j,ct)+2*h4
        e(f"ds_read_b64_tr_b16 v[{d}:{d+1}], v{VT+ct} offset:{(j&1)*4096+h4*512}"); lg.issue(f"T{j}_{ct}{h4}")
    for h in range(2): bc(0,h)[0][0]()
    e("s_nop 0")
    for h in range(2):
        for f in bc(0,h)[1]: f()
    for lt in range(8): adr(lt,0)
    bc(1,0)[0][0]()
    if ST: e("s_waitcnt lgkmcnt(0)")
    e(f"s_waitcnt vmcnt({vm.need('w0_3')})")
    for ct in range(4): Top(0,ct,0); Top(0,ct,1)
    for f in bc(1,0)[1]: f()
    dma(1,range(4))
    e("s_waitcnt lgkmcnt(0)"); lg.done=len(lg.ops)
    for x in [f"s_xor_b32 s{sT}, s{sWAVE}, 1",f"s_lshl_b32 s{sT}, s{sT}, 12",f"v_lshlrev_b32 v{RA1}, 4, v2",f"v_add_u32 v{WA}, s{sT}, v{RA1}",
              f"v_xor_b32 v{WA+1}, {3<<12}, v{WA}",f"v_xor_b32 v{WA+2}, {2<<12}, v{WA}",f"s_lshl_b32 s{sT}, s{sWAVE}, 12",f"v_add_u32 v{RA1}, s{sT}, v{RA1}",
              f"v_lshrrev_b32 v{VR}, 5, v2","v_and_b32 v0, 15, v2",f"v_lshl_add_u32 v{VR}, v{VR}, 4, v0",f"s_lshl_b32 s{sT}, s{sRB}, 7",
              f"s_lshl_b32 s{sT+1}, s{sWAVE}, 5",f"s_add_u32 s{sT}, s{sT}, s{sT+1}",f"v_add_lshl_u32 v{VR}, v{VR}, s{sT}, 3"]: e(x)
    if opt.pst: st(92)
    e(f"s_waitcnt vmcnt({vm.need('tbl')})")
    st(78)
    e("s_barrier")
    st(80,True)
    if ST: e("s_memtime s[96:97]"); e("s_waitcnt lgkmcnt(0)")
    if opt.prio: e(f"s_setprio {opt.prio}")
    LT=[2,3,4,5,6,7,0,1]
    jit()
    for lt in LT: Rop(lt,0)
    def inc(off,nm):
        def f():
            e("s_mov_b64 exec, 1")
            e(f"ds_add_u32 v7, v{ONE} offset:{off}"); lg.issue(nm)
            e("s_mov_b64 exec, -1")
        return f
    def wv(n): return lambda n=n: (e(f"s_waitcnt vmcnt({vm.need(n)})") if vm.pending(n) else None)
    def wl(n): return lambda n=n: (e(f"s_waitcnt lgkmcnt({lg.need(n)})") if lg.pending(n) else None)
    T_=lambda j,ct,h4: (lambda: Top(j,ct,h4))
    def badd(k):
        ct,r=k>>2,k&3; src=BI+2*ct+(r>>1)
        return [E(f"v_and_b32 v0, 0xffff0000, v{src}" if r&1 else f"v_lshlrev_b32 v0, 16, v{src}")]+\
               [(lambda t=t: (hz((t,ct),8),e(f"v_add_f32 v{acc(t,ct)+r}, v{acc(t,ct)+r}, v0"))) for t in range(2)]
    selops=[E("v_and_b32 v0, 15, v2"),E(f"v_lshlrev_b32 v{TA}, 2, v4"),E(f"v_sub_u32 v0, v0, v{TA}"),E(f"s_movk_i32 s{sT+7}, 0x3f80"),
            E(f"v_lshlrev_b32 v{TA}, 4, v0"),E(f"v_and_b32 v{TA}, 16, v{TA}"),E(f"v_lshlrev_b32 v{TA}, v{TA}, s{sT+7}"),E("v_lshrrev_b32 v0, 1, v0"),
            E(f"v_cmp_eq_u32 s[{sT}:{sT+1}], 0, v0"),E(f"v_cmp_eq_u32 s[{sT+2}:{sT+3}], 1, v0"),E(f"v_mov_b32 v{SEL}, 0"),E(f"v_mov_b32 v{SEL+1}, 0"),
            E(f"v_cndmask_b32 v{SEL+2}, 0, v{TA}, s[{sT}:{sT+1}]"),E(f"v_cndmask_b32 v{SEL+3}, 0, v{TA}, s[{sT+2}:{sT+3}]"),E(f"v_mov_b32 v{SEL+4}, 0"),E(f"v_mov_b32 v{SEL+5}, 0")]
    misc=[E(f"s_xor_b32 s{sT}, s{sWAVE}, 1"),E(f"s_lshl_b32 s{sT}, s{sT}, 12"),E(f"v_lshlrev_b32 v{RA1}, 4, v2"),E(f"v_add_u32 v{WA}, s{sT}, v{RA1}"),
          E(f"v_xor_b32 v{WA+1}, {3<<12}, v{WA}"),E(f"v_xor_b32 v{WA+2}, {2<<12}, v{WA}"),E(f"s_lshl_b32 s{sT}, s{sWAVE}, 12"),E(f"v_add_u32 v{RA1}, s{sT}, v{RA1}"),
          E(f"v_mov_b32 v{ONE}, 1"),E(f"v_mov_b32 v{vC1}, {f2u(C1)}"),E(f"v_mov_b32 v{S0}, 0"),E(f"v_mov_b32 v{S1}, 0"),
          E(f"v_lshrrev_b32 v{VR}, 5, v2"),E("v_and_b32 v0, 15, v2"),E(f"v_lshl_add_u32 v{VR}, v{VR}, 4, v0"),E(f"s_lshl_b32 s{sT}, s{sRB}, 7"),
          E(f"s_lshl_b32 s{sT+1}, s{sWAVE}, 5"),E(f"s_add_u32 s{sT}, s{sT}, s{sT+1}"),E(f"v_add_lshl_u32 v{VR}, v{VR}, s{sT}, 3")]
    def w2l(i): return lambda: (e(f"buffer_load_dwordx2 v[{W2P+2*i}:{W2P+2*i+1}], v{VB}, s[{S_B}:{S_B+3}], 0 offen offset:{i*32}"),vm.issue(f"w2_{i}"))
    evl=[E(f"s_mov_b32 s{sT+2}, {EPOCH}"),lambda: (e(f"buffer_load_dwordx2 v[{EV}:{EV+1}], v{VR}, s[{S_WS}:{S_WS+3}], s{sT+2} offen"),vm.issue("ev"))]
    LO=list(range(92,100))
    W2F=[LO[k>>1] if k%2==0 else W2P+(k>>1) for k in range(16)]
    unp=[]
    for k in range(8):
        unp+= [E(f"v_lshlrev_b32 v{LO[k]}, 16, v{W2P+k}"),E(f"v_and_b32 v{W2P+k}, 0xffff0000, v{W2P+k}")]
    def cv(lt):
        a=acc(lt,0); u=lt>>1
        c=[(lambda m=m: (hz((lt,m>>1),8),e(f"v_cvt_pk_bf16_f32 v{a+m}, v{a+2*m}, v{a+2*m+1}"))) for m in range(8)]
        w=[(lambda h=h: (e(f"ds_write_b128 v{WA+u-1}, v[{a+4*h}:{a+4*h+3}] offset:{(u-1)*16384+((lt&1)*2+h)*1024}"),lg.issue("W"))) for h in range(2)]
        return c[:4]+w[:1]+c[4:]+w[1:]
    def bar2():
        e("s_waitcnt lgkmcnt(0)"); lg.done=len(lg.ops)
        if opt.its: e("s_memtime s[92:93]")
        if not opt.pst: st(82)
        e("s_barrier")
        if not opt.pst: st(84)
    ITS={1:76,2:78,3:80,5:82,7:84,9:86,11:88,12:90}
    bl=sum((badd(k) for k in range(16)),[])
    sel2=[(lambda f=f: f()) for f in selops]
    extra={2:[(lambda i=i: bias_loads([i])) for i in range(4)],
           3:[wv('bias3')]+bl[:6],4:bl[6:15],5:bl[15:24],6:bl[24:33],7:bl[33:42],8:bl[42:48],
           9:[w2l(i) for i in range(4)]+evl+misc[8:12],10:selops,11:[]}
    q12=[]
    for j in range(13):
        cm(f"---- iteration {j} ----")
        if j in (3,10,11,12): jit()
        if opt.its==1 and j in ITS: e(f"s_memtime s[{ITS[j]}:{ITS[j]+1}]")
        if opt.its and j==12: opt.pst=1
        G=[[] for k in range(32)]
        if j<12:
            Ts=[T_(j+1,ct,h4) for ct in range(4) for h4 in range(2)]
            mB,rB=bc(j+1,1)
            G[2]+=mB; G[6]+=rB[:1]; G[7]+=rB[1:2]; G[11]+=rB[2:]
            if j+2<13:
                mA,rA=bc(j+2,0); G[23]+=mA; G[26]+=rA[:1]; G[27]+=rA[1:2]; G[30]+=rA[2:]
            free=[k for k in range(32) if k%4<2]
            seq=[]
            if j==0: seq=[[x] for x in d3(2,0)+d3(2,1)+d3(2,2)+d3(2,3)]+[[wv('w1_3'),Ts[0]]]+[[x] for x in Ts[1:]]
            else:
                seq=[[wv(f'w{j+1}_3'),Ts[0]]]+[[x] for x in Ts[1:]]
                if opt.tpk and j>1: seq=[[wv(f'w{j+1}_3'),Ts[0],Ts[1]],Ts[2:4],Ts[4:6],Ts[6:8]]
                if j+3<13:
                    dd=d3(j+3,0)+d3(j+3,1)+d3(j+3,2)+d3(j+3,3)
                    seq+=[[dd[0]],[dd[1]],[wl(f'T{j+1}_31'),dd[2]]]+[[x] for x in dd[3:]]
            if j==1:
                dd=d3(3,0)+d3(3,1)+d3(3,2)+d3(3,3)
                for k,x in zip((3,7,10,11,14,15,18,19),dd): G[k].append(x)
                seq=seq[:8]+[[]]*0+seq[8:]
                free=free[:8]+[20,21,22,24,25,28,29,31]
            for k,x in zip(free,seq): G[k]+=x
            if j==10: G[17]+=[wl('T11_31'),inc(F_S1,"s1")]
            ex=list(extra.get(j,[]))
            if j==11: ex=[E("s_waitcnt vmcnt(0)")]+unp
            lo,hi=(5,23) if j in (3,4,5,6,7,8) else (4,32)
            k=lo
            while ex:
                cand=[g for g in range(k,hi) if len(G[g])+(1 if g%4>=2 else 0)<2]
                if not cand:
                    G[hi-2]+=ex; break
                k=cand[0]; G[k].append(ex.pop(0))
        for g,lt in enumerate(LT):
            if g%2==0:
                needs=[f"R{lt}_{j}",f"R{LT[g+1]}_{j}"]+([f"T{j}_31"] if g==0 else [])
                if lg.pending(*needs): e(f"s_waitcnt lgkmcnt({lg.need(*needs)})")
            for ct in range(4):
                c=f"v[{acc(lt,ct)}:{acc(lt,ct)+3}]"
                e(f"v_mfma_f32_16x16x32_bf16 {c}, v[{Fr(j,ct)}:{Fr(j,ct)+3}], v[{afr(lt)}:{afr(lt)+3}], {0 if j==0 else c}")
                lastw[(lt,ct)]=cnt[0]
                if j<12:
                    if ct==2: adr(lt,j+1)
                    if ct==3: Rop(lt,j+1)
                    for f in G[4*g+ct]: f()
                else:
                    if g==0 and ct==2: bar2()
                    n=3 if (g,ct)!=(7,3) else 99
                    if not (ct==0 and g<=6):
                        for f in q12[:n]: f()
                        q12=q12[n:]
            if j==12 and lt>=2:
                q12+=cv(lt)
                if lt==7: q12+= [inc(F_RED,"inc"),E(f"s_mov_b32 s{sT+2}, {f2u(C2)}")]
    if not opt.pst: st(86)
    if ST: e("s_memtime s[98:99]")
    jit()
    lds_spin("L_red",7,0,F_RED,4)
    jit()
    if not opt.pst: st(88,True)
    lg=Q(15)
    adds=[]
    for t in range(2):
        for u in (1,2,3):
            for h in range(2):
                r=acc(2*u+t,0)+4*h
                e(f"ds_read_b128 v[{r}:{r+3}], v{RA1} offset:{(u-1)*16384+(t*2+h)*1024}"); lg.issue(f"p{t}{u}{h}")
                for sx in range(2):
                    def add(t=t,u=u,h=h,r=r,sx=sx):
                        if lg.pending(f"p{t}{u}{h}"): e(f"s_waitcnt lgkmcnt({lg.need(f'p{t}{u}{h}')})")
                        c=f"v[{acc(t,2*h+sx)}:{acc(t,2*h+sx)+3}]"; sl=SEL if sx else SEL+2
                        e(f"v_mfma_f32_16x16x32_bf16 {c}, v[{sl}:{sl+3}], v[{r}:{r+3}], {c}"); lastw[(t,2*h+sx)]=cnt[0]
                    adds.append(add)
    for f in adds[:13]: f()
    adds=adds[13:]
    if opt.gp>=0: e(f"s_setprio {opt.gp}")
    T=F0
    for q in range(8):
        t,ct=q>>2,q&3
        a=acc(t,ct)
        def A(n=2):
            for k in range(n):
                if adds: adds.pop(0)()
        hz((t,ct),8)
        for r in range(4): e(f"v_mul_f32 v{T+r}, v{a+r}, v{a+r}")
        A(1)
        for r in range(4): e(f"v_fma_f32 v{T+r}, v{T+r}, s{sT+2}, v{vC1}")
        A(1)
        for r in range(4): e(f"v_mul_f32 v{T+r}, v{T+r}, v{a+r}")
        A(1)
        for r in range(4): e(f"v_exp_f32 v{T+r}, v{T+r}")
        A(1)
        for r in range(4): e(f"v_mul_f32 v{a+r}, v{a+r}, v{W2F[4*ct+r]}")
        for r in range(4): e(f"v_add_f32 v{T+r}, 1.0, v{T+r}")
        for r in range(4): e(f"v_rcp_f32 v{T+r}, v{T+r}")
        if adds: A(1)
        else: e("s_nop 0")
        for r in range(4): e(f"v_fmac_f32 v{S1 if t else S0}, v{a+r}, v{T+r}")
    e(f"s_movk_i32 s{sT}, 0xff")
    e(f"v_add_u32 v{EV}, 1, v{EV}")
    e(f"v_permlane32_swap_b32 v{S0}, v{S1}")
    e(f"v_xor_b32 v{EV+1}, v{EV}, v{EV+1}")
    e(f"v_add_f32 v{S0}, v{S0}, v{S1}")
    e(f"v_mov_b32 v{S1}, v{S0}")
    e(f"s_lshl_b32 s{sT+1}, s{sCB}, 13")
    e(f"s_add_u32 s{sT+1}, s{sT+1}, {GRAN}")
    e(f"v_permlane16_swap_b32 v{S0}, v{S1}")
    e(f"v_add_f32 v{S0}, v{S0}, v{S1}")
    e(f"v_bfi_b32 v{EV+1}, s{sT}, v{EV+1}, v{S0}")
    e("s_mov_b32 exec_lo, 0xffff")
    e("s_mov_b32 exec_hi, 0xffff")
    e(f"buffer_store_dwordx2 v[{EV}:{EV+1}], v{VR}, s[{S_WS}:{S_WS+3}], s{sT+1} offen sc0 sc1")
    if ST:
        if opt.gcyc: e("s_memtime s[98:99]")
        if not opt.pst: st(90); e("s_waitcnt vmcnt(0)"); st(92,True)
        e("s_waitcnt lgkmcnt(0)"); e("s_sub_u32 s98, s98, s96")
        if opt.its:
            for r in range(76,94,2):
                e(f"s_sub_u32 s{r}, s{r}, s96"); e(f"s_mul_i32 s{r}, s{r}, 100"); e(f"s_add_u32 s{r}, s{r}, s10")
        dump([10,76,78,80,82,84,86,88,90,92,98])
    e("s_endpgm")

    sec("hpro")
    def late_sloads():
        e(f"s_lshl_b32 s{sT+8}, s{sROW}, 3")
        e(f"s_add_u32 s{sT+8}, s{sT+8}, {EPOCH}")
        e(f"s_load_dwordx2 s[{sE}:{sE+1}], s[{P_WS}:{P_WS+1}], s{sT+8}")
        e(f"s_load_dword s9, s[{P_BO}:{P_BO+1}], 0")
    X=32
    def x0_addrs():
        e("v_and_b32 v3, 31, v2")
        e("v_lshlrev_b32 v4, 2, v3")
        for r in range(26): e(f"v_readlane_b32 s{76+r}, v29, {r}")
        e("s_mov_b32 exec_hi, 0")
        for r in range(26): e(f"v_xor_b32 v{X+r}, s{76+r}, v4")
        e("s_mov_b64 exec, -1")
        e("s_mov_b32 exec_lo, 0")
        for r in range(26): e(f"v_xor_b32 v{X+r}, s{76+(r+1)%26}, v4")
        e("s_mov_b64 exec, -1")
    lab("L_help_pro")
    rowidx_load()
    tloop(opt.nt0-opt.n0)
    e(f"v_mov_b32 v7, {FLAGS}")
    e("v_mov_b32 v8, 0"); e("v_mov_b32 v9, 0")
    e("ds_write2_b64 v7, v[8:9], v[8:9] offset1:1")
    e("ds_write2_b64 v7, v[8:9], v[8:9] offset0:2 offset1:3")
    e(f"s_waitcnt vmcnt({opt.nt0+1})")
    e("s_barrier")
    tloop(opt.nt1)
    e("s_waitcnt lgkmcnt(0)")
    e("s_barrier")
    if opt.trim:
        e(f"s_cmp_eq_u32 s{sWAVE}, 4")
        e(f"s_cselect_b32 s{sT+3}, {16-opt.nt0-opt.nt1-1}, {16-opt.nt0-opt.nt1-2}")
        tloop()
    else: tloop(16-opt.nt0-opt.nt1)
    e("s_branch L_help_b")
    sec("help"); lab("L_help_b")
    e(f"s_waitcnt vmcnt({15-opt.n0})")
    if opt.xlds:
        e("v_lshlrev_b32 v8, 3, v29"); e("v_and_b32 v8, 0x70, v8"); e("v_lshl_or_b32 v29, v29, 7, v8")
    else: e("v_lshlrev_b32 v29, 7, v29")
    x0_addrs()
    if opt.xearly:
        for r in range(26):
            e(f"buffer_load_dword v{X+r}, v{X+r}, s[{S_TBL}:{S_TBL+3}], 0 offen")
        e("s_waitcnt vmcnt(26)")
        e("s_barrier")
        e("s_branch L_help_main")
    e("s_waitcnt vmcnt(0)")
    e("s_barrier")
    if opt.xsl: e(f"s_sleep {opt.xsl}")
    if opt.xlds:
        for r in range(26):
            e(f"ds_read_b32 v{X+r}, v{X+r}")
            if opt.xgap and r%opt.xgap==opt.xgap-1: e("s_sleep 1")
        e("s_branch L_help_main")
    lab("L_help_x0")
    for r in range(26):
        e(f"buffer_load_dword v{X+r}, v{X+r}, s[{S_TBL}:{S_TBL+3}], 0 offen")
    lab("L_help_main")
    jit()
    srd(S_WS,P_WS,WS_SIZE); srd(S_A,P_DBG,256); srd(S_B,P_OUT,2048)
    Z0=8
    ZE=lambda s: Z0+4*s
    ZO=lambda s: Z0+88+4*s
    LE=lambda k: Z0+176+4*k
    LO=lambda k: Z0+184+4*k
    R=200; MT=252
    e("v_lshrrev_b32 v5, 2, v3")
    e("v_mul_u32_u24 v5, 5888, v5")
    e("v_and_b32 v6, 3, v2")
    e("v_lshl_add_u32 v5, v6, 4, v5")
    e("v_lshrrev_b32 v6, 5, v2")
    e("v_lshl_add_u32 v5, v6, 6, v5")
    e("v_mov_b32 v7, 0x7fff0000")
    e("v_cmp_gt_u32 vcc, 26, v3")
    e("v_lshlrev_b32 v6, 13, v2")
    e(f"s_lshl_b32 s{sT}, s{sROW}, 3")
    e("v_cndmask_b32 v5, v7, v5, vcc")
    e(f"s_add_u32 s{sT}, s{sT}, {GRAN}")
    e(f"v_add_u32 v6, s{sT}, v6")
    e("v_cmp_gt_u32 vcc, 26, v2")
    e("v_lshlrev_b32 v1, 4, v2")
    e(f"v_add_u32 v1, 97280, v1")
    e("v_cndmask_b32 v6, v7, v6, vcc")
    e(f"v_mov_b32 v7, {FLAGS}")
    e("s_waitcnt vmcnt(0) lgkmcnt(0)")
    late_sloads()
    if opt.enc in (96,97):
        e("s_cmp_ge_u32 s2, 8")
        e("s_cbranch_scc1 L_nost")
        e("v_mov_b32 v0, s10")
        e("s_lshl_b32 s12, s2, 2")
        e(f"buffer_store_dword v0, off, s[{S_A}:{S_A+3}], s12 offset:64 sc0 sc1")
        lab("L_nost")
    st(76)
    for r in range(26):
        e(f"v_lshlrev_b32 v{R+2*r}, 16, v{X+r}")
        e(f"v_and_b32 v{R+2*r+1}, 0xffff0000, v{X+r}")
    def zstep(s):
        if opt.noz: return
        for m in range(4):
            (a1,a2),(b1,b2)=pair_of(8*s+2*m),pair_of(8*s+2*m+1)
            if opt.zpk:
                e(f"v_pk_mul_f32 v[{MT}:{MT+1}], v[{R+2*a1}:{R+2*a1+1}], v[{R+2*a2}:{R+2*a2+1}]")
                e(f"v_pk_mul_f32 v[{MT+2}:{MT+3}], v[{R+2*b1}:{R+2*b1+1}], v[{R+2*b2}:{R+2*b2+1}]")
            else:
                e(f"v_mul_f32 v{MT}, v{R+2*a1}, v{R+2*a2}")
                e(f"v_mul_f32 v{MT+2}, v{R+2*b1}, v{R+2*b2}")
                e(f"v_mul_f32 v{MT+1}, v{R+2*a1+1}, v{R+2*a2+1}")
                e(f"v_mul_f32 v{MT+3}, v{R+2*b1+1}, v{R+2*b2+1}")
            e(f"v_cvt_pk_bf16_f32 v{ZE(s)+m}, v{MT}, v{MT+2}")
            e(f"v_cvt_pk_bf16_f32 v{ZO(s)+m}, v{MT+1}, v{MT+3}")
    def zlin():
        for k in range(2):
            for m2 in range(4):
                m=k*8+2*m2
                for tl,d in ((0,LE(k)+m2),(1,LO(k)+m2)):
                    if m+1<=12: e(f"v_cvt_pk_bf16_f32 v{d}, v{R+4*m+tl}, v{R+4*(m+1)+tl}")
                    elif m==12: e(f"v_cvt_pk_bf16_f32 v{d}, v{R+4*m+tl}, 1.0")
                    else: e(f"v_mov_b32 v{d}, 0")
    SC=" sc1" if opt.csc else ""
    if opt.hprio: e(f"s_setprio {opt.hprio}")
    zlin()
    for s in range(opt.zsplit): zstep(s)
    if opt.hprio: e("s_setprio 0")
    st(78)
    e(f"s_load_dwordx8 s[92:99], s[{P_DBG}:{P_DBG+1}], 0")
    e("s_waitcnt lgkmcnt(0)")
    for k in range(1,7): e(f"s_and_b32 s92, s92, s{92+k}")
    e("s_cmp_lg_u32 s92, 0")
    e("s_cbranch_scc1 L_polled")
    lds_spin("L_it9",7,4,F_S1,4,sleep=4)
    e(f"v_lshlrev_b32 v0, 2, v2")
    e(f"buffer_load_dword v4, v0, s[{S_A}:{S_A+3}], 0 offen sc1")
    for s in range(opt.zsplit,opt.zmid): zstep(s)
    e(f"s_mov_b32 s{sT+4}, {opt.bound}")
    e(f"s_mov_b32 s{sT+2}, 0x7f")
    e(f"s_mov_b32 s{sT+3}, 0")
    lab("L_poll1")
    e("s_waitcnt vmcnt(0)")
    e("v_cmp_ne_u32 vcc, 0, v4")
    e(f"s_and_b64 vcc, vcc, s[{sT+2}:{sT+3}]")
    e(f"s_cmp_eq_u64 vcc, s[{sT+2}:{sT+3}]")
    e("s_cbranch_scc1 L_polled")
    e(f"s_sleep {opt.psleep}")
    e(f"buffer_load_dword v4, v0, s[{S_A}:{S_A+3}], 0 offen sc1")
    e(f"s_sub_u32 s{sT+4}, s{sT+4}, 1")
    e("s_cbranch_scc0 L_poll1")
    lab("L_polled")
    jit()
    if opt.inv: e("buffer_inv sc1")
    st(80)
    lds_spin("L_s1",7,0,F_S1,4,sleep=2)
    e(f"s_sub_u32 s{sT}, s{sWAVE}, 4")
    e(f"s_lshl_b32 s{sT+1}, s{sT}, 13")
    e(f"s_add_u32 m0, s{sT+1}, {RING+4096}")
    e(f"s_lshl_b32 s{sT}, s{sT}, 9")
    e(f"s_sub_u32 s{sT}, s{sT}, 256")
    for t in range(4):
        if t<2:
            e(f"s_cmp_eq_u32 s{sWAVE}, 4")
            e(f"s_cselect_b32 s{sT+1}, {(44+t)*128}, s{sT}")
        else: e(f"s_mov_b32 s{sT+1}, s{sT}")
        e(f"buffer_load_dwordx4 v5, s[{S_WS}:{S_WS+3}], s{sT+1} offen sc1 lds")
        if t<3:
            e(f"s_add_u32 m0, m0, 1024")
            e(f"s_add_u32 s{sT}, s{sT}, 128")
    for s in range(opt.zmid,opt.zbar): zstep(s)
    e("s_waitcnt vmcnt(0)")
    st(82)
    e("s_barrier")
    jit()
    for s in range(opt.zbar,opt.zb2): zstep(s)
    def hinc(off):
        e("v_mov_b32 v0, 1")
        e("s_mov_b64 exec, 1")
        e("s_waitcnt vmcnt(0)")
        e(f"ds_add_u32 v7, v0 offset:{off}")
        e("s_mov_b64 exec, -1")
    CWB=97280
    def dmaB0():
        e(f"s_sub_u32 s{sT}, s{sWAVE}, 4")
        e(f"s_lshl_b32 s{sT+1}, s{sT}, 10")
        e(f"s_add_u32 s{sT+1}, s{sT+1}, {CWB}")
        e(f"s_lshl_b32 s{sT}, s{sT}, 7")
        e(f"s_add_u32 s{sT}, s{sT}, {14*128}")
        e(f"s_cmp_ge_u32 s{sWAVE}, 6")
        e(f"s_cselect_b32 s{sT+8}, 6, 7")
        e(f"s_lshl_b32 s{sT+8}, s{sT+8}, 9")
    def dmaB1(t):
        if t<7:
            e(f"s_add_u32 m0, s{sT+1}, {4096*t}")
            e(f"s_add_u32 s{sT+9}, s{sT}, {512*t}")
        else:
            e(f"s_lshl3_add_u32 m0, s{sT+8}, s{sT+1}")
            e(f"s_add_u32 s{sT+9}, s{sT}, s{sT+8}")
        e(f"buffer_load_dwordx4 v5, s[{S_WS}:{S_WS+3}], s{sT+9} offen sc1 lds")
    dmaB0()
    dq=list(range(8))
    for s in range(opt.zb2,22): zstep(s)
    st(84)
    AUE,AUO=200,216; RG=232
    AXE=LE(0); AXO=ZE(0)
    vm=Q(63); lg=Q(15)
    seq=[('eo',22),('eo',23)]+[('e',s) for s in range(4)]+[('o',s) for s in range(4)]+[('eo',s) for s in range(4,22)]
    free=[RG+4*k for k in range(6)]
    reg={}
    lL=[]; lG=[]
    for i,(tl,s) in enumerate(seq):
        for k,fi in ([('x',2*s),('u',2*s+1)] if s<22 else [('u',44+s-22)]): lL.append((i,k,fi))
    cur=[0]; okB=[False]
    def ld():
        if not free or not lL or lL[0][0]>cur[0]+opt.look: return False
        i,k,fi=lL[0]
        if 14<=fi<44 and not okB[0]: return False
        lL.pop(0); r=free.pop(0); reg[(i,k)]=r
        if 14<=fi<44: off=(fi-14)*1024
        else:
            p=fi+2 if fi<14 else fi-44
            off=RING+4096-CWB+(p>>2)*8192+(p&3)*1024
        e(f"ds_read_b128 v[{r}:{r+3}], v1 offset:{off}"); lg.issue(f"{k}{i}")
        return True
    if opt.gateC: lds_spin("L_gC",7,0,{1:F_RED,3:F_G}[opt.gateC],4,sleep=1)
    st(88,True)
    if ST: e("s_memtime s[96:97]"); e("s_waitcnt lgkmcnt(0)")
    if opt.hpc>=0: e(f"s_setprio {opt.hpc}")
    while ld(): pass
    for _ in range(opt.dpre): dmaB1(dq.pop(0))
    first={'xe':1,'xo':1,'ue':1,'uo':1}
    GV=RG; rel=[]
    for i,(tl,s) in enumerate(seq):
        cur[0]=i
        if i in (0,5,11,12): jit()
        CS={2:76,6:78,10:80,12:82,13:84,16:86,20:88,24:92}
        if opt.cst and i in CS: e(f"s_memtime s[{CS[i]}:{CS[i]+1}]")
        if i==12:
            e(f"ds_read_b32 v0, v7 offset:{F_CW2}"); lg.issue("cwr")
        q,nm=(lg,"lgkmcnt") if f'u{i}' in lg.ops else (vm,"vmcnt")
        if q.pending(f'u{i}'): e(f"s_waitcnt {nm}({q.need(f'u{i}')})")
        n=0
        for t in tl:
            z=(ZE if t=='e' else ZO)(s) if s<22 else (LE if t=='e' else LO)(s-22)
            for k,a in (('x',AXE if t=='e' else AXO),('u',AUE if t=='e' else AUO)):
                if (i,k) not in reg: continue
                c=f"v[{a}:{a+15}]"; r=reg[(i,k)]
                e(f"v_mfma_f32_32x32x16_bf16 {c}, v[{r}:{r+3}], v[{z}:{z+3}], {0 if first[k+t] else c}"); first[k+t]=0; lastw[t]=cnt[0]
                n+=1
                if n==1: free+=rel; rel=[]
                for _ in range(opt.dper):
                    if dq: dmaB1(dq.pop(0))
                if i==opt.bstep2 and n==opt.bn: hinc(F_CW2); lg.issue("cw2")
                if i==12 and n==1:
                    e("s_waitcnt lgkmcnt(0)"); lg.done=len(lg.ops)
                    e(f"v_readfirstlane_b32 s{sT+5}, v0")
                    e(f"s_cmp_ge_u32 s{sT+5}, 4")
                    e("s_cbranch_scc1 L_cw2_x")
                    lds_spin("L_cw2",7,0,F_CW2,4); okB[0]=True
                    while ld(): pass
                ld()
                if len(tl)==1: ld()
            if s<22 and not (t=='e' and s<4): rel.append(z)
        rel+= [reg[(i,k)] for k in 'xu' if (i,k) in reg]
        if i==len(seq)-3:
            assert not lL and not lG
            GV=free.pop(0)
            e(f"buffer_load_dwordx2 v[{GV}:{GV+1}], v6, s[{S_WS}:{S_WS+3}], 0 offen sc1"); vm.issue("gv")
    V=free.pop(0); V2=V+1
    e(f"s_add_u32 s{sE}, s{sE}, 1")
    e(f"s_xor_b32 s{sE+1}, s{sE+1}, s{sE}")
    e(f"s_and_b32 s{sE+1}, s{sE+1}, 0xff")
    e("s_lshl_b32 s9, s9, 16")
    e(f"s_lshl_b32 s{sT+6}, s{sROW}, 1")
    e(f"s_lshl_b32 s{sT+7}, s{sROW}, 3")
    e(f"s_add_u32 s{sT+7}, s{sT+7}, {EPOCH}")
    e(f"v_mov_b32 v{V+3}, s{sE}")
    hz('e',12)
    e(f"v_mul_f32 v{V}, v{AXE}, v{AUE}")
    e(f"v_mul_f32 v{V2}, v{AXE+1}, v{AUE+1}")
    for t in range(2,14): e(f"v_fmac_f32 v{V+(t&1)}, v{AXE+t}, v{AUE+t}")
    hz('o',12)
    for t in range(14): e(f"v_fmac_f32 v{V+(t&1)}, v{AXO+t}, v{AUO+t}")
    e(f"v_add_f32 v{V}, v{V}, v{V2}")
    st(90)
    if ST: e("s_memtime s[98:99]")
    e("s_mov_b32 exec_lo, 0x3ffffff")
    e("s_mov_b32 exec_hi, 0")
    e(f"s_mov_b32 s{sT+4}, {opt.bound}")
    G2=GV+2
    def chk(g,lbl):
        e(f"v_and_b32 v{V2}, 0xff, v{g+1}")
        e(f"v_cmp_eq_u32 vcc, s{sE}, v{g}")
        e(f"v_cmp_eq_u32 s[{sT}:{sT+1}], s{sE+1}, v{V2}")
        e(f"v_and_b32 v{V2}, 0xffffff00, v{g+1}")
        e(f"s_and_b64 vcc, vcc, s[{sT}:{sT+1}]")
        e("s_cmp_eq_u64 vcc, exec")
        e(f"s_cbranch_scc1 L_got")
    lab("L_poll2")
    e(f"buffer_load_dwordx2 v[{G2}:{G2+1}], v6, s[{S_WS}:{S_WS+3}], 0 offen sc1")
    e("s_waitcnt vmcnt(1)")
    chk(GV,0)
    e(f"buffer_load_dwordx2 v[{GV}:{GV+1}], v6, s[{S_WS}:{S_WS+3}], 0 offen sc1")
    e("s_waitcnt vmcnt(1)")
    chk(G2,1)
    e(f"s_sub_u32 s{sT+4}, s{sT+4}, 1")
    e("s_cbranch_scc0 L_poll2")
    lab("L_got")
    e(f"v_add_f32 v{V}, v{V}, v{V2}")
    e("s_mov_b64 exec, -1")
    if not opt.cst: st(92)
    for dpp in ["quad_perm:[1,0,3,2] row_mask:0xf bank_mask:0xf","quad_perm:[2,3,0,1] row_mask:0xf bank_mask:0xf",
                "row_half_mirror row_mask:0xf bank_mask:0xf","row_mirror row_mask:0xf bank_mask:0xf",
                "row_bcast:15 row_mask:0xa bank_mask:0xf","row_bcast:31 row_mask:0xc bank_mask:0xf"]:
        e("s_nop 1")
        e(f"v_add_f32_dpp v{V}, v{V}, v{V} {dpp}")
    e("s_mov_b32 exec_lo, 0")
    e("s_mov_b32 exec_hi, 0x80000000")
    e(f"v_add_f32 v{V}, s9, v{V}")
    e(f"v_cvt_pk_bf16_f32 v{V}, v{V}, v{V}")
    e(f"buffer_store_short v{V}, off, s[{S_B}:{S_B+3}], s{sT+6}")
    e(f"buffer_store_dword v{V+3}, off, s[{S_WS}:{S_WS+3}], s{sT+7}")
    if ST:
        e("s_waitcnt vmcnt(0)"); st(94,True); e("s_sub_u32 s98, s98, s96")
        if opt.cst:
            for r in (76,78,80,82,84,86,88,92):
                e(f"s_sub_u32 s{r}, s{r}, s96"); e(f"s_mul_i32 s{r}, s{r}, 100"); e(f"s_add_u32 s{r}, s{r}, s10")
        dump([10,76,78,80,82,84,86,88,90,92,94,98],0,1)
    e("s_endpgm")

    sec("pref")
    lab("L_aux")
    if opt.foldx:
        e(f"s_mov_b32 s{sT+1}, s{sXCD}")
    else:
        e(f"s_lshl1_add_u32 s{sT+1}, s{sXCD}, s{sSLOT}")
        e(f"s_sub_u32 s{sT+1}, s{sT+1}, 26")
    e(f"s_cmp_lt_u32 s{sT+1}, 7")
    e("s_cbranch_scc1 L_fold")
    sec("fold0"); lab("L_fold")
    cm("---- CIN weight folding: rows i = 4*pidx + (wave&3) ----")
    S_C=S_W; S_O=S_B; sI=6
    e(f"s_and_b32 s{sT}, s{sWAVE}, 3")
    e(f"s_lshl2_add_u32 s{sI}, s{sT+1}, s{sT}")
    M=16
    e("v_lshlrev_b32 v3, 2, v0")
    e("v_mov_b32 v7, 0x7fff0000")
    e(f"s_movk_i32 s{sT+1}, 338")
    e(f"v_cmp_gt_u32 vcc, s{sT+1}, v0")
    e("v_lshrrev_b32 v4, 1, v2")
    e("v_and_b32 v5, 1, v2")
    e("v_cndmask_b32 v3, v7, v3, vcc")
    e("v_lshlrev_b32 v4, 3, v4")
    e("s_waitcnt lgkmcnt(0)")
    e(f"s_load_dwordx8 s[76:83], s[{P_WOUT}:{P_WOUT+1}], 104")
    e(f"s_load_dwordx4 s[84:87], s[{P_WOUT}:{P_WOUT+1}], 136")
    e(f"s_load_dword s88, s[{P_WOUT}:{P_WOUT+1}], 152")
    srd(S_C,P_CIN,105456)
    for gg in range(26):
        if gg%3==0: e(f"s_mov_b32 s{sT+2}, {2*35152+gg*1352}")
        e(f"buffer_load_dword v{M+gg}, v3, s[{S_C}:{S_C+3}], s{sT+2} offen offset:{(gg%3)*1352}")
    e("s_branch L_fold_b")
    sec("fold"); lab("L_fold_b")
    jit()
    PP=44; QQ=52
    def slots():
        for ee in range(8):
            e(f"v_add_u32 v8, {ee}, v4")
            e("v_mul_u32_u24 v9, 5042, v8")
            e("v_lshrrev_b32 v9, 16, v9")
            e("v_mul_u32_u24 v10, 13, v9")
            e("v_sub_u32 v10, v8, v10")
            e(f"v_lshl_add_u32 v{PP+ee}, v10, 1, v5")
            e(f"v_add_u32 v{QQ+ee}, v{PP+ee}, v9")
            e(f"v_subrev_u32 v10, 26, v{QQ+ee}")
            e(f"v_min_u32 v{QQ+ee}, v{QQ+ee}, v10")
    def m3(later):
        e("v_mul_u32_u24 v8, 5042, v0")
        e("v_lshrrev_b32 v8, 16, v8")
        e("v_mul_u32_u24 v9, 13, v8")
        e("v_sub_u32 v9, v0, v9")
        e("v_lshlrev_b32 v9, 7, v9")
        e("v_lshl_add_u32 v96, v8, 1, v9")
        e("s_waitcnt lgkmcnt(0)")
        st(92)
        for gg in range(26):
            sreg=76+(gg>>1)
            if gg&1: e(f"s_and_b32 s{sT+4+(gg&1)}, s{sreg}, 0xffff0000")
            else:    e(f"s_lshl_b32 s{sT+4+(gg&1)}, s{sreg}, 16")
            if gg%4==0: e(f"s_waitcnt vmcnt({later+25-min(gg+3,25)})")
            e(f"v_lshlrev_b32 v8, 16, v{M+gg}")
            e(f"v_and_b32 v9, 0xffff0000, v{M+gg}")
            if gg==0:
                e(f"v_mul_f32 v10, s{sT+4}, v8"); e(f"v_mul_f32 v11, s{sT+4}, v9")
            else:
                e(f"v_fmac_f32 v10, s{sT+4+(gg&1)}, v8"); e(f"v_fmac_f32 v11, s{sT+4+(gg&1)}, v9")
        e("v_cvt_pk_bf16_f32 v10, v10, v11")
        e(f"s_movk_i32 s{sT+1}, 338")
        e(f"v_cmp_gt_u32 vcc, s{sT+1}, v0")
        e(f"s_and_saveexec_b64 s[{sT+2}:{sT+3}], vcc")
        e("ds_write_b16 v96, v10")
        e("ds_write_b16_d16_hi v96, v10 offset:64")
        e("s_mov_b64 exec, -1")
        st(94)
    def st_addr(cnt):
        e("v_lshlrev_b32 v6, 7, v6")
        e("v_lshl_add_u32 v6, v5, 6, v6")
        e(f"s_and_b32 s{sT+1}, s{sWAVE}, 3")
        e(f"s_lshl_b32 s{sT+1}, s{sT+1}, 4")
        e(f"s_add_u32 s{sT+1}, s{sT+1}, {STG}")
        e(f"v_add_u32 v6, s{sT+1}, v6")
        e(f"v_cmp_gt_u32 vcc, {cnt}, v2")
        e("v_mov_b32 v94, 1.0")
        e(f"v_mov_b32 v8, {STG+8192}")
        e("v_cndmask_b32 v6, v8, v6, vcc")
        e("v_cmp_gt_u32 vcc, 2, v2")
        e("s_nop 1")
        e("v_cndmask_b32 v95, v94, 0.5, vcc")
        e("v_cmp_gt_u32 vcc, 4, v2")
        e("s_nop 1")
        e("v_cndmask_b32 v94, v94, 0.5, vcc")
    e(f"s_cmp_ge_u32 s{sWAVE}, 4")
    e("s_cbranch_scc1 L_aux_w1")
    Pq=60; PR=76; RA=68; VV=16
    e("v_and_b32 v8, 31, v2")
    e("v_lshrrev_b32 v15, 5, v2")
    e(f"v_mul_u32_u24 v10, {8*1352}, v15")
    e("v_lshl_add_u32 v10, v8, 1, v10")
    e("v_cmp_gt_u32 vcc, 26, v8")
    e(f"s_mul_i32 s{sT+3}, s{sI}, 52")
    e(f"s_add_u32 s{sT+3}, s{sT+3}, 35152")
    e("v_cndmask_b32 v10, v7, v10, vcc")
    e("v_cmp_gt_u32 vcc, 32, v2")
    e("v_lshlrev_b32 v12, 2, v2")
    e("s_nop 0")
    e("v_cndmask_b32 v11, v7, v10, vcc")
    for s in range(2):
        for ee in range(8):
            h=16*s+ee
            if h%3==0 or ee==0:
                hb=h; e(f"s_add_u32 s{sT+2}, s{sT+3}, {h*1352}")
            va=11 if (s==1 and ee>=2) else 10
            e(f"buffer_load_ushort v{PR+s*8+ee}, v{va}, s[{S_C}:{S_C+3}], s{sT+2} offen offset:{(h-hb)*1352}")
    srd(S_O,P_WOUT,156)
    e(f"buffer_load_dword v13, v12, s[{S_O}:{S_O+3}], 0 offen offset:52")
    e(f"s_lshl_b32 s{sT+2}, s{sI}, 1")
    e(f"buffer_load_ushort v14, off, s[{S_O}:{S_O+3}], s{sT+2}")
    e("v_lshlrev_b32 v8, 6, v2")
    e("v_mov_b32 v9, 0")
    e("s_mov_b32 exec_lo, 0x7ffffff")
    e("s_mov_b32 exec_hi, 0")
    e("ds_write_b32 v8, v9 offset:52")
    e("ds_write_b32 v8, v9 offset:56")
    e("ds_write_b32 v8, v9 offset:60")
    e("s_mov_b64 exec, -1")
    e("v_and_b32 v8, 31, v2")
    e("v_lshlrev_b32 v93, 6, v8")
    e("v_lshl_add_u32 v93, v15, 4, v93")
    e(f"s_mul_i32 s{sT+1}, s{sWAVE}, 5120")
    e(f"s_add_u32 s{sT+1}, s{sT+1}, 4096")
    e("v_mul_u32_u24 v92, 144, v8")
    e("v_lshl_add_u32 v92, v15, 4, v92")
    e(f"v_add_u32 v92, s{sT+1}, v92")
    slots()
    e("v_cmp_lt_u32 vcc, 43, v2")
    e("v_subrev_u32 v10, 176, v4")
    e("v_mov_b32 v11, 26")
    for ee in range(8):
        e(f"v_add_u32 v8, {ee}, v10")
        e("v_lshl_add_u32 v8, v8, 1, v5")
        e(f"v_min_u32 v8, 31, v8")
        e(f"v_cndmask_b32 v8, v{QQ+ee}, v8, vcc")
        e(f"v_cndmask_b32 v9, v{PP+ee}, v11, vcc")
        e(f"v_mul_u32_u24 v9, 144, v9")
        e(f"v_lshl_add_u32 v9, v8, 2, v9")
        e(f"v_add_u32 v{RA+ee}, s{sT+1}, v9")
    e("v_lshrrev_b32 v8, 1, v2")
    e("v_lshl_add_u32 v6, v8, 1, 1")
    e("v_add_u32 v8, 22, v8")
    e("v_cndmask_b32 v6, v6, v8, vcc")
    st_addr(48)
    m3(18)
    e("s_mov_b32 exec_lo, 0x1fff")
    e("s_mov_b32 exec_hi, 0")
    e("s_waitcnt vmcnt(0)")
    e(f"ds_write_b32 v12, v13 offset:{26*64}")
    e("s_mov_b64 exec, -1")
    for r in range(8): e(f"v_lshl_or_b32 v{Pq+r}, v{PR+2*r+1}, 16, v{PR+2*r}")
    e("s_waitcnt lgkmcnt(0)")
    e("s_barrier")
    Qq=16; D=24
    e(f"ds_read_b128 v[{Qq}:{Qq+3}], v93")
    e(f"ds_read_b128 v[{Qq+4}:{Qq+7}], v93 offset:32")
    e("s_waitcnt lgkmcnt(0)")
    e(f"v_mfma_f32_32x32x16_bf16 v[{D}:{D+15}], v[{Pq}:{Pq+3}], v[{Qq}:{Qq+3}], 0")
    e(f"v_mfma_f32_32x32x16_bf16 v[{D}:{D+15}], v[{Pq+4}:{Pq+7}], v[{Qq+4}:{Qq+7}], v[{D}:{D+15}]")
    e(f"v_mfma_f32_32x32x16_bf16 v[{D}:{D+15}], v[{Qq}:{Qq+3}], v[{Pq}:{Pq+3}], v[{D}:{D+15}]")
    e(f"v_mfma_f32_32x32x16_bf16 v[{D}:{D+15}], v[{Qq+4}:{Qq+7}], v[{Pq+4}:{Pq+7}], v[{D}:{D+15}]")
    e("s_nop 11")
    for m in range(4):
        e(f"ds_write_b128 v92, v[{D+4*m}:{D+4*m+3}] offset:{m*32}")
    e("s_waitcnt lgkmcnt(0)")
    for ee in range(8): e(f"ds_read_b32 v{VV+ee}, v{RA+ee}")
    e("v_lshlrev_b32 v14, 16, v14")
    e(f"v_cmp_eq_u32 s[{sT}:{sT+1}], 46, v2")
    e(f"v_cmp_eq_u32 s[{sT+2}:{sT+3}], 47, v2")
    e("v_cmp_lt_u32 vcc, 45, v2")
    e("s_waitcnt lgkmcnt(0)")
    e(f"v_cndmask_b32 v{VV+5}, v{VV+5}, v14, s[{sT}:{sT+1}]")
    e(f"v_cndmask_b32 v{VV+5}, v{VV+5}, 0, s[{sT+2}:{sT+3}]")
    e(f"v_cndmask_b32 v{VV+6}, v{VV+6}, 0, vcc")
    e(f"v_cndmask_b32 v{VV+7}, v{VV+7}, 0, vcc")
    e("s_branch L_aux_pack")
    lab("L_aux_w1")
    GA=60; GB=68
    e(f"s_mul_i32 s{sT+3}, s{sI}, 1352")
    e(f"s_lshl_b32 s{sT+6}, s{sWAVE}, 11")
    e(f"s_add_u32 s{sT+6}, s{sT+6}, {32768-4*2048}")
    e(f"s_mov_b32 m0, s{sT+6}")
    e("v_lshlrev_b32 v12, 4, v2")
    e(f"buffer_load_dwordx4 v12, s[{S_C}:{S_C+3}], s{sT+3} offen lds")
    e(f"buffer_load_dwordx4 v12, s[{S_C}:{S_C+3}], s{sT+3} offen offset:1024 lds")
    slots()
    for ee in range(8):
        e(f"v_mul_u32_u24 v8, 26, v{PP+ee}")
        e(f"v_add_lshl_u32 v8, v8, v{QQ+ee}, 1")
        e(f"v_add_u32 v{GA+ee}, s{sT+6}, v8")
        e(f"v_mul_u32_u24 v9, 26, v{QQ+ee}")
        e(f"v_add_lshl_u32 v9, v9, v{PP+ee}, 1")
        e(f"v_add_u32 v{GB+ee}, s{sT+6}, v9")
    e("v_and_b32 v6, 62, v2")
    st_addr(44)
    m3(2)
    e("s_waitcnt lgkmcnt(0)")
    e("s_barrier")
    e("s_waitcnt vmcnt(0)")
    for ee in range(8):
        e(f"ds_read_u16 v{GA+ee}, v{GA+ee}")
        e(f"ds_read_u16 v{GB+ee}, v{GB+ee}")
    e("s_waitcnt lgkmcnt(0)")
    for ee in range(8):
        e(f"v_lshlrev_b32 v{GA+ee}, 16, v{GA+ee}")
        e(f"v_lshlrev_b32 v{GB+ee}, 16, v{GB+ee}")
        e(f"v_add_f32 v{VV+ee}, v{GA+ee}, v{GB+ee}")
    lab("L_aux_pack")
    jit()
    srd(S_WS,P_WS,WS_SIZE); srd(S_A,P_DBG,256)
    e("v_cmp_eq_u32 vcc, 43, v2")
    for ee in range(8): e(f"v_mul_f32 v{VV+ee}, v{VV+ee}, v{94 if ee<5 else 95}")
    e(f"v_cndmask_b32 v{VV+7}, v{VV+7}, 0, vcc")
    for m in range(4): e(f"v_cvt_pk_bf16_f32 v{24+m}, v{VV+2*m}, v{VV+2*m+1}")
    e("ds_write_b128 v6, v[24:27]")
    e("v_lshlrev_b32 v8, 4, v0")
    e(f"s_movk_i32 s{sT+1}, 368")
    e(f"v_cmp_gt_u32 vcc, s{sT+1}, v0")
    e(f"s_lshr_b32 s{sT}, s{sI}, 2")
    e(f"s_mul_i32 s{sT+2}, s{sT}, 5888")
    e("v_cndmask_b32 v9, v7, v8, vcc")
    e("s_waitcnt lgkmcnt(0)")
    e("s_barrier")
    e(f"ds_read_b128 v[24:27], v8 offset:{STG}")
    e("s_waitcnt lgkmcnt(0)")
    e(f"buffer_store_dwordx4 v[24:27], v9, s[{S_WS}:{S_WS+3}], s{sT+2} offen sc0 sc1")
    st(96)
    e(f"s_lshl_b32 s{sT}, s{sT}, 2")
    e("v_mov_b32 v8, 1")
    e("s_waitcnt vmcnt(0)")
    e("s_barrier")
    e(f"s_cmp_lg_u32 s{sWAVE}, 0")
    e("s_cbranch_scc1 L_noflag")
    e("s_mov_b64 exec, 1")
    e(f"buffer_store_dword v8, off, s[{S_A}:{S_A+3}], s{sT} sc0 sc1")
    e("s_mov_b64 exec, -1")
    lab("L_noflag")
    if ST:
        st(98); e("s_waitcnt vmcnt(0)"); st(100,True)
        dump([10,92,94,96,98,100],1,2)
    e("s_branch L_aux_done")
    sec("pref")
    lab("L_prefetch")
    e("s_waitcnt lgkmcnt(0)")
    if opt.pdel: e(f"s_sleep {opt.pdel}")
    if opt.pf:
        e(f"s_cmp_lg_u32 s{sSLOT}, 31")
        e("s_cbranch_scc1 L_pf2")
        srd(S_A,P_B1,3328); srd(S_B,P_W2,3328); srd(S_WS,P_WS,EPOCH+8192)
        e("v_lshlrev_b32 v3, 7, v0")
        e(f"buffer_load_dword v12, v3, s[{S_A}:{S_A+3}], 0 offen")
        e(f"buffer_load_dword v13, v3, s[{S_B}:{S_B+3}], 0 offen")
        e(f"s_mov_b32 s{sT}, {EPOCH}")
        e(f"buffer_load_dword v14, v3, s[{S_WS}:{S_WS+3}], s{sT} offen")
        lab("L_pf2")
        srd(S_W,P_W,1664*3328)
        if opt.foldx:
            e(f"s_cmp_lt_u32 s{sXCD}, 7")
            e(f"s_cselect_b32 s{sT+2}, 27, 26")
        else:
            e(f"s_cmp_lt_u32 s{sXCD}, 4")
            e(f"s_cselect_b32 s{sT+2}, 27, 26")
            e(f"s_cmp_lt_u32 s{sXCD}, 3")
            e(f"s_cselect_b32 s{sT+2}, 28, s{sT+2}")
        e(f"s_sub_u32 s{sT}, s{sSLOT}, s{sT+2}")
        e(f"s_sub_u32 s{sT+2}, 32, s{sT+2}")
        e(f"s_mul_i32 s{sT+1}, s{sXCD}, 26")
        e(f"s_lshr_b32 s{sT+1}, s{sT+1}, 3")
        e(f"s_lshl_b32 s{sT+1}, s{sT+1}, 7")
        for u in range(3):
            e(f"v_add_u32 v3, {512*u}, v0")
            e(f"v_mul_u32_u24 v3, s{sT+2}, v3")
            e(f"v_add_u32 v3, s{sT}, v3")
            e("v_lshrrev_b32 v4, 2, v3")
            if opt.pskip: e(f"v_add_u32 v4, {opt.pskip}, v4")
            e("v_and_b32 v3, 3, v3")
            e(f"v_mul_u32_u24 v4, 3328, v4")
            e("v_lshl_add_u32 v3, v3, 7, v4")
            e(f"buffer_load_dword v{9+u}, v3, s[{S_W}:{S_W+3}], s{sT+1} offen")
            if u<2 and opt.pbar: e("s_barrier")
    e("s_branch L_aux_done")
    sec("fold")
    lab("L_aux_done")
    jit()
    e(f"s_cmp_lt_u32 s{sWAVE}, 4")
    e("s_cbranch_scc1 L_end")
    srd(S_TBL,P_TBL,128000); srd(S_IDX,P_IDX,106496)
    rowidx_load()
    e("s_waitcnt vmcnt(0)")
    e(f"v_mov_b32 v7, {FLAGS}")
    e("v_mov_b32 v8, 4")
    e("v_mov_b32 v9, 0")
    e(f"ds_write_b32 v7, v8 offset:{F_RED}")
    e(f"ds_write_b32 v7, v8 offset:{F_G}")
    e(f"ds_write_b32 v7, v8 offset:{F_S1}")
    e(f"ds_write_b32 v7, v9 offset:{F_CW}")
    e(f"ds_write_b32 v7, v9 offset:{F_CW2}")
    e("s_waitcnt vmcnt(0)")
    e("v_lshlrev_b32 v29, 7, v29")
    x0_addrs()
    e("s_branch L_help_x0")
    lab("L_end")
    e("s_endpgm")
    sec("tail")
    L.append('.section .rodata,"a"'); L.append(".p2align 6"); L.append(f".amdhsa_kernel {KN}")
    for x in ["next_free_vgpr 256","next_free_sgpr 102","accum_offset 256","group_segment_fixed_size 0","kernarg_size 88",
              "user_sgpr_count 2","user_sgpr_kernarg_segment_ptr 1","system_sgpr_workgroup_id_x 1"]:
        L.append("  .amdhsa_"+x)
    L.append(".end_amdhsa_kernel")
    return "\n".join(sum((SEC.get(k,[]) for k in order+["tail"]),[]))+"\n"

if __name__=="__main__":
    ap=argparse.ArgumentParser()
    ap.add_argument("-o",default="k.s")
    for k,d in dict(jit=0,xearly=0,hpz=0,hpc=-1,gp=-1,zb2=22,zpk=0,hprio=0,tpk=0,foldx=1,rp=1,pdel=0,cp26=1,pbar=1,lay=1,b2g=1,cst=0,bgate=0,look=2,bstep=0,bstep2=11,bn=1,dper=1,dpre=2,inv=0,zmid=15,csc=0,gateC=1,gq=0,rowx=1,wstop=5,wrest=16,bq=3,xlds=1,xgap=0,atid=1,xsl=0,pskip=128,d2late=1,wper=4,its=0,sched=0,nog=0,not_=0,c2=0,noz=0,lateb=1,dly=4,pst=0,enc=0,encrole=0,encwg=0,encwave=0,nocin=0,gcyc=0,psleep=4,now=0,stamps=0,pf=1,cpf=1,prio=1,bound=2000000,zsplit=15,zbar=17,nt0=6,tb=444,n0=4,nt1=4,d1late=0,trim=1,wsched=0).items(): ap.add_argument("--"+k,type=int,default=d)
    opt=ap.parse_args()
    assert opt.zsplit==opt.zmid
    for t in range(512): assert (t*5042)>>16==t//13, t
    open(opt.o,"w").write(build(opt))
```

```python
import sys, argparse, math, struct

class Q:
    def __init__(s,cap): s.ops=[]; s.cap=cap; s.done=0
    def issue(s,name): s.ops.append(name)
    def need(s,*names):
        r=99
        for name in names:
            i=len(s.ops)-1-s.ops[::-1].index(name)
            r=min(r,len(s.ops)-1-i)
        r=min(r,s.cap)
        s.done=max(s.done,len(s.ops)-r)
        return r
    def pending(s,*names):
        return any(len(s.ops)-1-s.ops[::-1].index(n)>=s.done for n in names)

WIMG=0; GRAN=65536; EPOCH=0x50000; STAMP=0x100000; WS_SIZE=0x200000
STG=49152; RING=128000; FLAGS=160768; CINW=49152
F_IT9,F_RED,F_G,F_PRE,F_S1,F_CW,F_CW2=0,4,8,12,16,20,24
C1=-2*math.sqrt(2/math.pi)*math.log2(math.e); C2=C1*0.044715
def f2u(x): return struct.unpack('<I',struct.pack('<f',x))[0]
KN="standalone__deep_cross_xdeepfm__recsys_kernel"

sWAVE,sXCD,sSLOT,sCB,sRB=3,4,5,7,8
P_IDX,P_TBL,P_CIN,P_WOUT,P_W,P_B1,P_W2,P_BO=16,18,20,22,24,26,28,30
P_OUT,P_DBG,P_WS=32,34,36
S_IDX,S_TBL,S_W,S_WS,S_A,S_B=40,44,48,52,56,60
sRING,sWR1,sWR2,sTM=64,65,15,14
sT=66

def pair_of(n):
    if n<169: dlt,m=divmod(n,13)
    else: dlt,m=13,n-169
    r=2*m
    return r,(r+dlt)%26

def build(opt):
    SEC={"entry":[]}; order=["entry","dnn0","hpro","pref","fold0","dnn","help","fold"]
    class LL:
        cur="entry"
        def append(s,x): SEC.setdefault(s.cur,[]).append(x)
    L=LL()
    def sec(n): L.cur=n
    cnt=[0]; lastw={}
    def e(x):
        L.append("    "+x)
        cnt[0]+= (int(x.split()[1])+1) if x.startswith("s_nop") else 1
    def hz(key,n):
        d=cnt[0]-lastw[key]
        if d<n: e(f"s_nop {n-d-1}")
    def lab(x): L.append(x+":")
    def cm(x): L.append("    ; "+x)
    E=lambda x:(lambda: e(x))
    ST=opt.stamps
    def srd(d,p,size):
        e(f"s_mov_b32 s{d}, s{p}"); e(f"s_mov_b32 s{d+1}, s{p+1}")
        e(f"s_mov_b32 s{d+2}, {size}"); e(f"s_mov_b32 s{d+3}, 0x20000")
    def st(r,wait=False):
        if ST:
            e(f"s_memrealtime s[{r}:{r+1}]")
            if wait: e("s_waitcnt lgkmcnt(0)")
    def dump(regs,area=0,role=0):
        if opt.enc:
            delay(regs,role); return
        dump_(regs,area)
    dl=[0]
    def delay(regs,role):
        dl[0]+=1; n=dl[0]
        e("s_mov_b64 exec, -1")
        e("s_waitcnt lgkmcnt(0)")
        if opt.enc==99:
            if role!=1: return
            srd(S_A,P_DBG,256)
            e("s_not_b32 s12, s10")
            e("v_mov_b32 v244, s12")
            e(f"v_mov_b32 v245, s{regs[10]}")
            e("v_mov_b32 v246, 1")
            e("s_mov_b64 exec, 1")
            e(f"buffer_atomic_umax v244, off, s[{S_A}:{S_A+3}], 0 offset:240 sc1")
            e(f"buffer_atomic_umax v245, off, s[{S_A}:{S_A+3}], 0 offset:244 sc1")
            e("s_waitcnt vmcnt(0)")
            e(f"buffer_atomic_add v246, off, s[{S_A}:{S_A+3}], 0 offset:248 sc0 sc1")
            e("s_waitcnt vmcnt(0)")
            e("v_readfirstlane_b32 s12, v246")
            e("s_cmp_lg_u32 s12, 1023")
            e(f"s_cbranch_scc1 L_dly{n}_x")
            e(f"buffer_load_dwordx2 v[244:245], off, s[{S_A}:{S_A+3}], 0 offset:240 sc1")
            e("s_waitcnt vmcnt(0)")
            e("v_readfirstlane_b32 s12, v244")
            e("v_readfirstlane_b32 s13, v245")
            e("s_not_b32 s12, s12")
            e("s_sub_u32 s12, s13, s12")
        else:
            if role!=opt.encrole: return
            e(f"s_cmp_lg_u32 s2, {opt.encwg}")
            e(f"s_cbranch_scc1 L_dly{n}_x")
            e(f"s_cmp_lg_u32 s{sWAVE}, {opt.encwave}")
            e(f"s_cbranch_scc1 L_dly{n}_x")
            if opt.enc in (96,97):
                e(f"s_load_dwordx8 s[76:83], s[{P_DBG}:{P_DBG+1}], 64")
                e("s_waitcnt lgkmcnt(0)")
                e("s_mov_b32 s12, s76"); e("s_mov_b32 s13, s76")
                for k in range(1,8):
                    e(f"s_min_u32 s12, s12, s{76+k}"); e(f"s_max_u32 s13, s13, s{76+k}")
                if opt.enc==96: e("s_mov_b32 s13, s10")
                e("s_sub_u32 s12, s13, s12")
                e("s_min_u32 s12, s12, 2000")
            else: e(f"s_sub_u32 s12, s{regs[opt.enc]}, s10")
        e("s_mul_i32 s12, s12, 100")
        e("s_memrealtime s[66:67]")
        e("s_waitcnt lgkmcnt(0)")
        e("s_add_u32 s12, s12, s66")
        lab(f"L_dly{n}")
        e("s_sleep 8")
        e("s_memrealtime s[66:67]")
        e("s_waitcnt lgkmcnt(0)")
        e("s_sub_u32 s13, s66, s12")
        e("s_cmp_lt_i32 s13, 0")
        e(f"s_cbranch_scc1 L_dly{n}")
        lab(f"L_dly{n}_x")
        e("s_mov_b64 exec, -1")
    def dump_(regs,area=0):
        e("s_mov_b64 exec, -1")
        e("s_waitcnt lgkmcnt(0)")
        e("s_lshl_b32 s12, s2, 3")
        e(f"s_add_u32 s12, s12, s{sWAVE}")
        e("s_lshl_b32 s12, s12, 6")
        e(f"s_add_u32 s12, s12, {STAMP+area*0x40000}")
        regs=list(regs)+[regs[0]]*(12-len(regs))
        for i,r in enumerate(regs): e(f"v_mov_b32 v{244+i}, s{r}")
        e("s_mov_b64 exec, 1")
        for i in range(3):
            e(f"buffer_store_dwordx4 v[{244+4*i}:{247+4*i}], off, s[{S_WS}:{S_WS+3}], s12 offset:{16*i}")
        e("s_mov_b64 exec, -1")
    def lds_spin(name,vaddr,vtmp,off,target,sleep=0):
        e(f"s_mov_b32 s{sT+4}, {opt.bound*8}")
        lab(name)
        e(f"ds_read_b32 v{vtmp}, v{vaddr} offset:{off}")
        e("s_waitcnt lgkmcnt(0)")
        e(f"v_readfirstlane_b32 s{sT+5}, v{vtmp}")
        e(f"s_cmp_ge_u32 s{sT+5}, {target}")
        e(f"s_cbranch_scc1 {name}_x")
        if sleep: e(f"s_sleep {sleep}")
        e(f"s_sub_u32 s{sT+4}, s{sT+4}, 1")
        e(f"s_cbranch_scc0 {name}")
        lab(name+"_x")

    IV=16; IA=24
    def rec_addrs():
        e(f"s_lshl_b32 s{sT+5}, s{sT}, 7")
        e(f"s_add_u32 s{sT+5}, s{sT+5}, {RING+4096}")
        e(f"v_lshl_add_u32 v7, v7, 3, s{sT+5}")
        e("v_mul_u32_u24 v9, 7, v8")
        e("v_and_b32 v8, 1, v8")
        for par in range(2):
            d=IA+2*par
            if par:
                e("v_xor_b32 v8, 1, v8"); e("v_add_u32 v9, 1, v9")
            e("v_lshrrev_b32 v10, 1, v9")
            e(f"v_lshl_add_u32 v{d}, v10, 8, v7")
            e(f"v_lshl_add_u32 v{d}, v8, 14, v{d}")
            e("v_lshlrev_b32 v10, 1, v8")
            e(f"v_xor_b32 v10, s{sT+2}, v10")
            e(f"v_lshl_add_u32 v{d}, v10, 1, v{d}")
            e(f"v_xor_b32 v{d+1}, 2, v{d}")
            e(f"v_add_u32 v{d+1}, 8192, v{d+1}")
    sROW=6; sE=38
    def rowidx_load():
        e(f"s_sub_u32 s{sT+6}, s{sWAVE}, 4")
        if opt.rowx:
            e(f"s_lshl2_add_u32 s{sROW}, s{sSLOT}, s{sT+6}")
            e(f"s_lshl_b32 s{sT+6}, s{sXCD}, 7")
            e(f"s_add_u32 s{sROW}, s{sROW}, s{sT+6}")
        else: e(f"s_lshl2_add_u32 s{sROW}, s2, s{sT+6}")
        e(f"s_mul_i32 s{sT+6}, s{sROW}, 104")
        e("v_lshlrev_b32 v30, 2, v2")
        e(f"buffer_load_dword v29, v30, s[{S_IDX}:{S_IDX+3}], s{sT+6} offen")
    for x in """xDeepFM (CIN + DNN) in one launch for gfx950; the instruction stream is emitted by my own generator script.
Kernarg: idx, table, ws_cin, w_cin_out, w_dnn1, b_dnn1, w_dnn2, b_out, out, debug, ws (8-byte pointers).
Math (exact regrouping of the reference): with Z = sym(x0 (x) x0) per (row, d),
  logit_cin = sum_d sum_i (W1s Z)_i * (w1_i + (M2 x0)_i + (Gs Z)_i),  M3 = w3.W3, M2 = w2.W2, G = W2.M3.
Workgroups g = xcd + 8*slot, 8 waves each:
  slot < 26 : waves 0-3 run a 128x64 tile of gelu(x0*W+b).w2 (table resident in LDS, K split over the waves,
              W streamed by LDS-DMA + transposing reads); partial logits leave as tagged 8-byte words in ws.
  slot 26   : folds the CIN weights (7 workgroups, published in ws, flags in debug); other slots warm L2.
  waves 4-7 of every workgroup evaluate the CIN polynomial of one row each, add the 26 partial logits, store out.
Hand-off tags: each row owns an epoch word in ws; tag = epoch + 1, the consumer advances it after use.""".split("\n"): L.append("; "+x)
    L.append("; @launch grid=(256,1,1) block=(512,1,1) lds=163840")
    L.append('.amdgcn_target "amdgcn-amd-amdhsa--gfx950"')
    L.append(".text"); L.append(f".globl {KN}"); L.append(".p2align 8"); L.append(f".type {KN},@function")
    lab(KN)
    e("s_load_dwordx16 s[16:31], s[0:1], 0")
    e("s_load_dwordx4 s[32:35], s[0:1], 64")
    e("s_load_dwordx2 s[36:37], s[0:1], 80")
    st(10)
    e("s_cmp_ge_u32 s2, 256")
    e("s_cbranch_scc1 L_end")
    e("v_lshrrev_b32 v1, 6, v0")
    e("v_and_b32 v2, 63, v0")
    e(f"v_readfirstlane_b32 s{sWAVE}, v1")
    e(f"s_and_b32 s{sXCD}, s2, 7")
    e(f"s_lshr_b32 s{sSLOT}, s2, 3")
    e(f"s_cmp_ge_u32 s{sSLOT}, 26")
    e("s_cbranch_scc1 L_aux0")
    sec("pref"); lab("L_aux0")
    e(f"s_cmp_gt_u32 s{sSLOT}, {26 if opt.foldx else 27}")
    e("s_cbranch_scc1 L_prefetch")
    if opt.cpf:
        e(f"s_getpc_b64 s[{S_IDX}:{S_IDX+1}]")
        lab("L_pc")
        e(f"s_sub_u32 s{S_IDX}, s{S_IDX}, L_pc-{KN}")
        e(f"s_subb_u32 s{S_IDX+1}, s{S_IDX+1}, 0")
        e(f"s_mov_b32 s{S_IDX+2}, L_end-{KN}")
        e(f"s_mov_b32 s{S_IDX+3}, 0x20000")
        e("v_lshlrev_b32 v3, 7, v0")
        e(f"buffer_load_dword v255, v3, s[{S_IDX}:{S_IDX+3}], 0 offen")
    sec("entry")
    e(f"s_mul_i32 s6, s{sXCD}, 26")
    e(f"s_add_u32 s6, s6, s{sSLOT}")
    e(f"s_and_b32 s{sRB}, s6, 7")
    e(f"s_and_b32 s{sT}, s{sWAVE}, 1")
    e(f"s_lshr_b32 s{sT+2}, s{sWAVE}, 1")
    e(f"s_lshl2_add_u32 s{sT+4}, s{sRB}, s{sT+2}")
    e(f"s_mul_i32 s{sT+4}, s{sT+4}, 3328")
    e(f"s_lshl_b32 s{sT+5}, s{sT}, 11")
    e(f"s_add_u32 s{sT+4}, s{sT+4}, s{sT+5}")
    e(f"s_lshl_b32 s{sT+3}, s{sT+2}, 13")
    e(f"s_add_u32 s{sT+3}, s{sT+3}, s{sT+5}")
    e(f"s_add_u32 m0, s{sT+3}, {RING+4096}")
    e("v_lshlrev_b32 v6, 4, v2")
    e("v_lshrrev_b32 v3, 3, v2")
    e("v_lshrrev_b32 v4, 4, v2")
    e("v_and_b32 v10, 7, v2")
    e(f"s_lshl_b32 s{sT+1}, s{sT}, 2")
    e("v_xor_b32 v5, v10, v4")
    e(f"v_xor_b32 v5, s{sT+1}, v5")
    e("v_lshlrev_b32 v5, 4, v5")
    e("v_lshl_add_u32 v5, v3, 7, v5")
    e(f"s_lshl1_add_u32 s{sT+3}, s{sSLOT}, s{sT+2}")
    e(f"s_lshl1_add_u32 s{sTM}, s{sT+3}, s{sT}")
    e(f"s_lshl_b32 s{sTM}, s{sTM}, 10")
    e(f"s_sub_u32 s{sWR2}, {63*2048}, s{sT+5}")
    e(f"s_lshr_b32 s{sT+5}, s{sT+5}, 1")
    e(f"s_add_u32 s{sWR1}, s{sWR2}, s{sT+5}")
    e(f"s_mov_b32 s{S_IDX+2}, 106496"); e(f"s_mov_b32 s{S_IDX+3}, 0x20000")
    e(f"s_mov_b32 s{S_TBL+2}, 128000"); e(f"s_mov_b32 s{S_TBL+3}, 0x20000")
    e(f"s_mov_b32 s{sT+3}, {opt.n0-1}")
    e("s_waitcnt lgkmcnt(0)")
    if opt.pst: st(84)
    e(f"s_mov_b64 s[{S_IDX}:{S_IDX+1}], s[{P_IDX}:{P_IDX+1}]")
    e(f"s_mov_b64 s[{S_TBL}:{S_TBL+1}], s[{P_TBL}:{P_TBL+1}]")
    e(f"buffer_load_dwordx4 v6, s[{S_IDX}:{S_IDX+3}], s{sT+4} offen lds")
    if opt.trim:
        e(f"s_cmp_eq_u32 s{sT}, 0")
        e("s_cselect_b64 exec, -1, 0xffff")
    e(f"buffer_load_dwordx4 v6, s[{S_IDX}:{S_IDX+3}], s{sT+4} offen offset:1024 lds")
    if opt.trim: e("s_mov_b64 exec, -1")
    nl=[0]
    def tloop(n=None,vm=None):
        nl[0]+=1; name=f"L_tl{nl[0]}"
        if n is not None:
            if n==0: return
            e(f"s_mov_b32 s{sT+3}, {n-1}")
        lab(name)
        e(f"s_mov_b32 m0, s{sTM}")
        e(f"s_add_u32 s{sTM}, s{sTM}, 8192")
        e(f"buffer_load_dwordx4 v5, s[{S_TBL}:{S_TBL+3}], m0 offen lds")
        e(f"s_cmp_ge_u32 s{sTM}, s{sWR1}")
        e(f"s_cselect_b32 s{sT+5}, s{sWR2}, 0")
        e(f"s_sub_u32 s{sTM}, s{sTM}, s{sT+5}")
        e(f"s_sub_u32 s{sT+3}, s{sT+3}, 1")
        e(f"s_cbranch_scc0 {name}")
        if vm is not None:
            for t in range(n): vm.issue("tbl")
    tloop()
    e(f"s_cmp_ge_u32 s{sWAVE}, 4")
    e("s_cbranch_scc1 L_help_pro")
    sec("dnn0")
    tbl=tloop

    vWe,vWo=1,3
    AD=8; AF=16; F0=48; REC=80; ACC=128
    VT=106; PB,PC=110,111; BI=112; W2P=112; EV=120; VR=122; WA=123; KC=126; RA1=5; VB=6
    SEL=80; ONE=86; vC1=87; S0=88; S1=89; TA=90
    acc=lambda lt,ct: ACC+(lt*4+ct)*4
    Fr=lambda j,ct: F0+(j&1)*16+ct*4
    afr=lambda lt: AF+4*lt
    vm=Q(63); lg=Q(15)
    cm("---- DNN wave prologue ----")
    for x in ["idx0","idx3"]+["tbl"]*opt.n0: vm.issue(x)
    e(f"s_lshr_b32 s{sCB}, s6, 3")
    e(f"s_lshl_b32 s{sRING}, s{sWAVE}, 13")
    e(f"s_add_u32 s{sRING}, s{sRING}, {RING}")
    e(f"s_lshl_b32 s{sT+7}, s{sWAVE}, 5")
    e(f"v_add_u32 v9, s{sT+7}, v3")
    e("v_mul_u32_u24 v9, 3328, v9")
    e("v_lshlrev_b32 v11, 1, v4")
    e("v_and_b32 v11, 2, v11")
    e("v_xor_b32 v11, v11, v10")
    e("v_lshl_add_u32 v1, v11, 4, v9")
    e(f"s_lshl_b32 s{sT+7}, s{sCB}, 7")
    e(f"v_add_u32 v1, s{sT+7}, v1")
    e("v_xor_b32 v3, 64, v1")
    e(f"v_add_u32 v3, {8*3328-1024}, v3")
    srd(S_W,P_W,1664*3328)
    sWO=12
    def d3(j,pc):
        ld=lambda: (e(f"buffer_load_dwordx4 v{vWo if pc&1 else vWe}, s[{S_W}:{S_W+3}], s{sWO} offen offset:{(pc&1)*1024} lds"),vm.issue(f"w{j}_{pc}"))
        if pc&1: return [ld]
        return [E(f"s_add_u32 m0, s{sRING}, {((j&1)*4+pc)*1024}"),E(f"s_mov_b32 s{sWO}, {(128*j+8*pc)*3328}"),ld]
    def dma(j,pcs):
        for pc in pcs:
            for f in d3(j,pc): f()
    dma(0,range(4))
    def bias_loads(ii):
        for i in ii:
            e(f"buffer_load_dwordx2 v[{BI+2*i}:{BI+2*i+1}], v{VB}, s[{S_A}:{S_A+3}], 0 offen offset:{i*32}"); vm.issue(f"bias{i}")
    TB=[opt.n0]+[int(c,16) for c in str(opt.tb)]
    e("s_branch L_dnn_b")
    sec("dnn"); lab("L_dnn_b")
    e(f"v_lshl_add_u32 v{VB}, v4, 3, s{sT+7}")
    e(f"v_mov_b32 v7, {FLAGS}")
    srd(S_A,P_B1,3328)
    if opt.pst: st(86)
    e("v_and_b32 v13, 15, v2")
    e("v_mul_u32_u24 v13, 104, v13")
    e(f"s_lshl2_add_u32 s{sT+5}, s{sT+2}, {RING+4096}")
    e(f"v_add_u32 v13, s{sT+5}, v13")
    e(f"v_xor_b32 v9, s{sWAVE}, v4")
    e("v_lshl_add_u32 v24, v9, 13, v13")
    e("v_add_u32 v25, 1664, v24")
    e("v_bfe_u32 v9, v2, 2, 2")
    e("v_lshlrev_b32 v13, 7, v9")
    e("v_lshl_add_u32 v13, v4, 10, v13")
    e("v_lshrrev_b32 v9, 1, v9")
    e("v_lshl_add_u32 v13, v9, 5, v13")
    e("v_and_b32 v9, 1, v4")
    e("v_lshl_add_u32 v13, v9, 6, v13")
    e("v_and_b32 v9, 3, v2")
    e("v_lshl_add_u32 v13, v9, 3, v13")
    e(f"v_add_u32 v{VT}, s{sRING}, v13")
    e(f"v_xor_b32 v{VT+1}, 32, v{VT}")
    e(f"v_xor_b32 v{VT+2}, 64, v{VT}")
    e(f"v_xor_b32 v{VT+3}, 0x60, v{VT}")
    e(f"v_add_u32 v{KC}, s{sT+1}, v4")
    e(f"v_lshl_or_b32 v{KC}, v{KC}, 16, v{KC}")
    e(f"s_mov_b32 s{sT+6}, 0x00070007")
    e(f"s_waitcnt vmcnt({vm.need('idx3')})")
    if opt.pst: st(88)
    e("s_barrier")
    if opt.pst: st(90)
    RW=lambda t,j: 160+t*14+j
    for j in range(0,13,2):
        for t in range(2):
            e(f"ds_read2_b32 v[{RW(t,j)}:{RW(t,j)+1}], v{24+t} offset0:{2*j} offset1:{2*j+2}")
    tbl(TB[1],vm)
    srd(S_WS,P_WS,WS_SIZE)
    srd(S_B,P_W2,3328)
    e("s_waitcnt lgkmcnt(0)")
    e("s_barrier")
    st(76)
    tbl(TB[2],vm)
    for j in range(13):
        if j==6: tbl(TB[3],vm)
        d=REC+2*j
        e(f"v_lshl_or_b32 v{d}, v{RW(1,j)}, 16, v{RW(0,j)}")
        e(f"v_lshrrev_b32 v13, 1, v{d}")
        e(f"v_and_b32 v13, s{sT+6}, v13")
        e(f"v_lshl_or_b32 v{d}, v{d}, 3, v13")
        e(f"v_mov_b32 v{d+1}, v{d}")
        if j: e(f"v_permlane32_swap_b32 v{d-2}, v{d-1}")
    e("s_nop 1")
    e(f"v_permlane32_swap_b32 v{REC+24}, v{REC+25}")
    def bc(j,h):
        A=REC+2*j+h; B=PC if h else PB
        return [E(f"v_mov_b32 v{B}, v{A}")],[E(f"v_permlane16_swap_b32 v{A}, v{B}"),E(f"v_xor_b32 v{A}, v{KC}, v{A}"),E(f"v_xor_b32 v{B}, v{KC}, v{B}")]
    def adr(lt,j):
        src={0:REC+2*j,1:PB,2:REC+2*j+1,3:PC}[lt>>1]
        e(f"v_lshlrev_b32_sdwa v{AD+lt}, 4, v{src} dst_sel:DWORD dst_unused:UNUSED_PAD src0_sel:DWORD src1_sel:WORD_{lt&1}")
    def Rop(lt,j): e(f"ds_read_b128 v[{afr(lt)}:{afr(lt)+3}], v{AD+lt}"); lg.issue(f"R{lt}_{j}")
    def Top(j,ct,h4):
        d=Fr(j,ct)+2*h4
        e(f"ds_read_b64_tr_b16 v[{d}:{d+1}], v{VT+ct} offset:{(j&1)*4096+h4*512}"); lg.issue(f"T{j}_{ct}{h4}")
    for h in range(2): bc(0,h)[0][0]()
    e("s_nop 0")
    for h in range(2):
        for f in bc(0,h)[1]: f()
    for lt in range(8): adr(lt,0)
    bc(1,0)[0][0]()
    if ST: e("s_waitcnt lgkmcnt(0)")
    e(f"s_waitcnt vmcnt({vm.need('w0_3')})")
    for ct in range(4): Top(0,ct,0); Top(0,ct,1)
    for f in bc(1,0)[1]: f()
    dma(1,range(4))
    e("s_waitcnt lgkmcnt(0)"); lg.done=len(lg.ops)
    for x in [f"s_xor_b32 s{sT}, s{sWAVE}, 1",f"s_lshl_b32 s{sT}, s{sT}, 12",f"v_lshlrev_b32 v{RA1}, 4, v2",f"v_add_u32 v{WA}, s{sT}, v{RA1}",
              f"v_xor_b32 v{WA+1}, {3<<12}, v{WA}",f"v_xor_b32 v{WA+2}, {2<<12}, v{WA}",f"s_lshl_b32 s{sT}, s{sWAVE}, 12",f"v_add_u32 v{RA1}, s{sT}, v{RA1}",
              f"v_lshrrev_b32 v{VR}, 5, v2","v_and_b32 v0, 15, v2",f"v_lshl_add_u32 v{VR}, v{VR}, 4, v0",f"s_lshl_b32 s{sT}, s{sRB}, 7",
              f"s_lshl_b32 s{sT+1}, s{sWAVE}, 5",f"s_add_u32 s{sT}, s{sT}, s{sT+1}",f"v_add_lshl_u32 v{VR}, v{VR}, s{sT}, 3"]: e(x)
    if opt.pst: st(92)
    e(f"s_waitcnt vmcnt({vm.need('tbl')})")
    st(78)
    e("s_barrier")
    st(80,True)
    if ST: e("s_memtime s[96:97]"); e("s_waitcnt lgkmcnt(0)")
    if opt.prio: e(f"s_setprio {opt.prio}")
    LT=[2,3,4,5,6,7,0,1]
    for lt in LT: Rop(lt,0)
    def inc(off,nm):
        def f():
            e("s_mov_b64 exec, 1")
            e(f"ds_add_u32 v7, v{ONE} offset:{off}"); lg.issue(nm)
            e("s_mov_b64 exec, -1")
        return f
    def wv(n): return lambda n=n: (e(f"s_waitcnt vmcnt({vm.need(n)})") if vm.pending(n) else None)
    def wl(n): return lambda n=n: (e(f"s_waitcnt lgkmcnt({lg.need(n)})") if lg.pending(n) else None)
    T_=lambda j,ct,h4: (lambda: Top(j,ct,h4))
    def badd(k):
        ct,r=k>>2,k&3; src=BI+2*ct+(r>>1)
        return [E(f"v_and_b32 v0, 0xffff0000, v{src}" if r&1 else f"v_lshlrev_b32 v0, 16, v{src}")]+\
               [(lambda t=t: (hz((t,ct),8),e(f"v_add_f32 v{acc(t,ct)+r}, v{acc(t,ct)+r}, v0"))) for t in range(2)]
    selops=[E("v_and_b32 v0, 15, v2"),E(f"v_lshlrev_b32 v{TA}, 2, v4"),E(f"v_sub_u32 v0, v0, v{TA}"),E(f"s_movk_i32 s{sT+7}, 0x3f80"),
            E(f"v_lshlrev_b32 v{TA}, 4, v0"),E(f"v_and_b32 v{TA}, 16, v{TA}"),E(f"v_lshlrev_b32 v{TA}, v{TA}, s{sT+7}"),E("v_lshrrev_b32 v0, 1, v0"),
            E(f"v_cmp_eq_u32 s[{sT}:{sT+1}], 0, v0"),E(f"v_cmp_eq_u32 s[{sT+2}:{sT+3}], 1, v0"),E(f"v_mov_b32 v{SEL}, 0"),E(f"v_mov_b32 v{SEL+1}, 0"),
            E(f"v_cndmask_b32 v{SEL+2}, 0, v{TA}, s[{sT}:{sT+1}]"),E(f"v_cndmask_b32 v{SEL+3}, 0, v{TA}, s[{sT+2}:{sT+3}]"),E(f"v_mov_b32 v{SEL+4}, 0"),E(f"v_mov_b32 v{SEL+5}, 0")]
    misc=[E(f"s_xor_b32 s{sT}, s{sWAVE}, 1"),E(f"s_lshl_b32 s{sT}, s{sT}, 12"),E(f"v_lshlrev_b32 v{RA1}, 4, v2"),E(f"v_add_u32 v{WA}, s{sT}, v{RA1}"),
          E(f"v_xor_b32 v{WA+1}, {3<<12}, v{WA}"),E(f"v_xor_b32 v{WA+2}, {2<<12}, v{WA}"),E(f"s_lshl_b32 s{sT}, s{sWAVE}, 12"),E(f"v_add_u32 v{RA1}, s{sT}, v{RA1}"),
          E(f"v_mov_b32 v{ONE}, 1"),E(f"v_mov_b32 v{vC1}, {f2u(C1)}"),E(f"v_mov_b32 v{S0}, 0"),E(f"v_mov_b32 v{S1}, 0"),
          E(f"v_lshrrev_b32 v{VR}, 5, v2"),E("v_and_b32 v0, 15, v2"),E(f"v_lshl_add_u32 v{VR}, v{VR}, 4, v0"),E(f"s_lshl_b32 s{sT}, s{sRB}, 7"),
          E(f"s_lshl_b32 s{sT+1}, s{sWAVE}, 5"),E(f"s_add_u32 s{sT}, s{sT}, s{sT+1}"),E(f"v_add_lshl_u32 v{VR}, v{VR}, s{sT}, 3")]
    def w2l(i): return lambda: (e(f"buffer_load_dwordx2 v[{W2P+2*i}:{W2P+2*i+1}], v{VB}, s[{S_B}:{S_B+3}], 0 offen offset:{i*32}"),vm.issue(f"w2_{i}"))
    evl=[E(f"s_mov_b32 s{sT+2}, {EPOCH}"),lambda: (e(f"buffer_load_dwordx2 v[{EV}:{EV+1}], v{VR}, s[{S_WS}:{S_WS+3}], s{sT+2} offen"),vm.issue("ev"))]
    LO=list(range(92,100))
    W2F=[LO[k>>1] if k%2==0 else W2P+(k>>1) for k in range(16)]
    unp=[]
    for k in range(8):
        unp+= [E(f"v_lshlrev_b32 v{LO[k]}, 16, v{W2P+k}"),E(f"v_and_b32 v{W2P+k}, 0xffff0000, v{W2P+k}")]
    def cv(lt):
        a=acc(lt,0); u=lt>>1
        c=[(lambda m=m: (hz((lt,m>>1),8),e(f"v_cvt_pk_bf16_f32 v{a+m}, v{a+2*m}, v{a+2*m+1}"))) for m in range(8)]
        w=[(lambda h=h: (e(f"ds_write_b128 v{WA+u-1}, v[{a+4*h}:{a+4*h+3}] offset:{(u-1)*16384+((lt&1)*2+h)*1024}"),lg.issue("W"))) for h in range(2)]
        return c[:4]+w[:1]+c[4:]+w[1:]
    def bar2():
        e("s_waitcnt lgkmcnt(0)"); lg.done=len(lg.ops)
        if opt.its: e("s_memtime s[92:93]")
        if not opt.pst: st(82)
        e("s_barrier")
        if not opt.pst: st(84)
    ITS={1:76,2:78,3:80,5:82,7:84,9:86,11:88,12:90}
    bl=sum((badd(k) for k in range(16)),[])
    sel2=[(lambda f=f: f()) for f in selops]
    extra={2:[(lambda i=i: bias_loads([i])) for i in range(4)],
           3:[wv('bias3')]+bl[:6],4:bl[6:15],5:bl[15:24],6:bl[24:33],7:bl[33:42],8:bl[42:48],
           9:[w2l(i) for i in range(4)]+evl+misc[8:12],10:selops,11:[]}
    q12=[]
    for j in range(13):
        cm(f"---- iteration {j} ----")
        if opt.its==1 and j in ITS: e(f"s_memtime s[{ITS[j]}:{ITS[j]+1}]")
        if opt.its and j==12: opt.pst=1
        G=[[] for k in range(32)]
        if j<12:
            Ts=[T_(j+1,ct,h4) for ct in range(4) for h4 in range(2)]
            mB,rB=bc(j+1,1)
            G[2]+=mB; G[6]+=rB[:1]; G[7]+=rB[1:2]; G[11]+=rB[2:]
            if j+2<13:
                mA,rA=bc(j+2,0); G[23]+=mA; G[26]+=rA[:1]; G[27]+=rA[1:2]; G[30]+=rA[2:]
            free=[k for k in range(32) if k%4<2]
            seq=[]
            if j==0: seq=[[x] for x in d3(2,0)+d3(2,1)+d3(2,2)+d3(2,3)]+[[wv('w1_3'),Ts[0]]]+[[x] for x in Ts[1:]]
            else:
                seq=[[wv(f'w{j+1}_3'),Ts[0]]]+[[x] for x in Ts[1:]]
                if opt.tpk and j>1: seq=[[wv(f'w{j+1}_3'),Ts[0],Ts[1]],Ts[2:4],Ts[4:6],Ts[6:8]]
                if j+3<13:
                    dd=d3(j+3,0)+d3(j+3,1)+d3(j+3,2)+d3(j+3,3)
                    seq+=[[dd[0]],[dd[1]],[wl(f'T{j+1}_31'),dd[2]]]+[[x] for x in dd[3:]]
            if j==1:
                dd=d3(3,0)+d3(3,1)+d3(3,2)+d3(3,3)
                for k,x in zip((3,7,10,11,14,15,18,19),dd): G[k].append(x)
                seq=seq[:8]+[[]]*0+seq[8:]
                free=free[:8]+[20,21,22,24,25,28,29,31]
            for k,x in zip(free,seq): G[k]+=x
            if j==10: G[17]+=[wl('T11_31'),inc(F_S1,"s1")]
            ex=list(extra.get(j,[]))
            if j==11: ex=[E("s_waitcnt vmcnt(0)")]+unp
            lo,hi=(5,23) if j in (3,4,5,6,7,8) else (4,32)
            k=lo
            while ex:
                cand=[g for g in range(k,hi) if len(G[g])+(1 if g%4>=2 else 0)<2]
                if not cand:
                    G[hi-2]+=ex; break
                k=cand[0]; G[k].append(ex.pop(0))
        for g,lt in enumerate(LT):
            if g%2==0:
                needs=[f"R{lt}_{j}",f"R{LT[g+1]}_{j}"]+([f"T{j}_31"] if g==0 else [])
                if lg.pending(*needs): e(f"s_waitcnt lgkmcnt({lg.need(*needs)})")
            for ct in range(4):
                c=f"v[{acc(lt,ct)}:{acc(lt,ct)+3}]"
                e(f"v_mfma_f32_16x16x32_bf16 {c}, v[{Fr(j,ct)}:{Fr(j,ct)+3}], v[{afr(lt)}:{afr(lt)+3}], {0 if j==0 else c}")
                lastw[(lt,ct)]=cnt[0]
                if j<12:
                    if ct==2: adr(lt,j+1)
                    if ct==3: Rop(lt,j+1)
                    for f in G[4*g+ct]: f()
                else:
                    if g==0 and ct==2: bar2()
                    n=3 if (g,ct)!=(7,3) else 99
                    if not (ct==0 and g<=6):
                        for f in q12[:n]: f()
                        q12=q12[n:]
            if j==12 and lt>=2:
                q12+=cv(lt)
                if lt==7: q12+= [inc(F_RED,"inc"),E(f"s_mov_b32 s{sT+2}, {f2u(C2)}")]
    if not opt.pst: st(86)
    if ST: e("s_memtime s[98:99]")
    lds_spin("L_red",7,0,F_RED,4)
    if not opt.pst: st(88,True)
    lg=Q(15)
    adds=[]
    for t in range(2):
        for u in (1,2,3):
            for h in range(2):
                r=acc(2*u+t,0)+4*h
                e(f"ds_read_b128 v[{r}:{r+3}], v{RA1} offset:{(u-1)*16384+(t*2+h)*1024}"); lg.issue(f"p{t}{u}{h}")
                for sx in range(2):
                    def add(t=t,u=u,h=h,r=r,sx=sx):
                        if lg.pending(f"p{t}{u}{h}"): e(f"s_waitcnt lgkmcnt({lg.need(f'p{t}{u}{h}')})")
                        c=f"v[{acc(t,2*h+sx)}:{acc(t,2*h+sx)+3}]"; sl=SEL if sx else SEL+2
                        e(f"v_mfma_f32_16x16x32_bf16 {c}, v[{sl}:{sl+3}], v[{r}:{r+3}], {c}"); lastw[(t,2*h+sx)]=cnt[0]
                    adds.append(add)
    for f in adds[:13]: f()
    adds=adds[13:]
    if opt.gp>=0: e(f"s_setprio {opt.gp}")
    T=F0
    for q in range(8):
        t,ct=q>>2,q&3
        a=acc(t,ct)
        def A(n=2):
            for k in range(n):
                if adds: adds.pop(0)()
        hz((t,ct),8)
        for r in range(4): e(f"v_mul_f32 v{T+r}, v{a+r}, v{a+r}")
        A(1)
        for r in range(4): e(f"v_fma_f32 v{T+r}, v{T+r}, s{sT+2}, v{vC1}")
        A(1)
        for r in range(4): e(f"v_mul_f32 v{T+r}, v{T+r}, v{a+r}")
        A(1)
        for r in range(4): e(f"v_exp_f32 v{T+r}, v{T+r}")
        A(1)
        for r in range(4): e(f"v_mul_f32 v{a+r}, v{a+r}, v{W2F[4*ct+r]}")
        for r in range(4): e(f"v_add_f32 v{T+r}, 1.0, v{T+r}")
        for r in range(4): e(f"v_rcp_f32 v{T+r}, v{T+r}")
        if adds: A(1)
        else: e("s_nop 0")
        for r in range(4): e(f"v_fmac_f32 v{S1 if t else S0}, v{a+r}, v{T+r}")
    e(f"s_movk_i32 s{sT}, 0xff")
    e(f"v_add_u32 v{EV}, 1, v{EV}")
    e(f"v_permlane32_swap_b32 v{S0}, v{S1}")
    e(f"v_xor_b32 v{EV+1}, v{EV}, v{EV+1}")
    e(f"v_add_f32 v{S0}, v{S0}, v{S1}")
    e(f"v_mov_b32 v{S1}, v{S0}")
    e(f"s_lshl_b32 s{sT+1}, s{sCB}, 13")
    e(f"s_add_u32 s{sT+1}, s{sT+1}, {GRAN}")
    e(f"v_permlane16_swap_b32 v{S0}, v{S1}")
    e(f"v_add_f32 v{S0}, v{S0}, v{S1}")
    e(f"v_bfi_b32 v{EV+1}, s{sT}, v{EV+1}, v{S0}")
    e("s_mov_b32 exec_lo, 0xffff")
    e("s_mov_b32 exec_hi, 0xffff")
    e(f"buffer_store_dwordx2 v[{EV}:{EV+1}], v{VR}, s[{S_WS}:{S_WS+3}], s{sT+1} offen sc0 sc1")
    if ST:
        if opt.gcyc: e("s_memtime s[98:99]")
        if not opt.pst: st(90); e("s_waitcnt vmcnt(0)"); st(92,True)
        e("s_waitcnt lgkmcnt(0)"); e("s_sub_u32 s98, s98, s96")
        if opt.its:
            for r in range(76,94,2):
                e(f"s_sub_u32 s{r}, s{r}, s96"); e(f"s_mul_i32 s{r}, s{r}, 100"); e(f"s_add_u32 s{r}, s{r}, s10")
        dump([10,76,78,80,82,84,86,88,90,92,98])
    e("s_endpgm")

    sec("hpro")
    def late_sloads():
        e(f"s_lshl_b32 s{sT+8}, s{sROW}, 3")
        e(f"s_add_u32 s{sT+8}, s{sT+8}, {EPOCH}")
        e(f"s_load_dwordx2 s[{sE}:{sE+1}], s[{P_WS}:{P_WS+1}], s{sT+8}")
        e(f"s_load_dword s9, s[{P_BO}:{P_BO+1}], 0")
    X=32
    def x0_addrs():
        e("v_and_b32 v3, 31, v2")
        e("v_lshlrev_b32 v4, 2, v3")
        for r in range(26): e(f"v_readlane_b32 s{76+r}, v29, {r}")
        e("s_mov_b32 exec_hi, 0")
        for r in range(26): e(f"v_xor_b32 v{X+r}, s{76+r}, v4")
        e("s_mov_b64 exec, -1")
        e("s_mov_b32 exec_lo, 0")
        for r in range(26): e(f"v_xor_b32 v{X+r}, s{76+(r+1)%26}, v4")
        e("s_mov_b64 exec, -1")
    lab("L_help_pro")
    rowidx_load()
    tloop(opt.nt0-opt.n0)
    e(f"v_mov_b32 v7, {FLAGS}")
    e("v_mov_b32 v8, 0"); e("v_mov_b32 v9, 0")
    e("ds_write2_b64 v7, v[8:9], v[8:9] offset1:1")
    e("ds_write2_b64 v7, v[8:9], v[8:9] offset0:2 offset1:3")
    e(f"s_waitcnt vmcnt({opt.nt0+1})")
    e("s_barrier")
    tloop(opt.nt1)
    e("s_waitcnt lgkmcnt(0)")
    e("s_barrier")
    if opt.trim:
        e(f"s_cmp_eq_u32 s{sWAVE}, 4")
        e(f"s_cselect_b32 s{sT+3}, {16-opt.nt0-opt.nt1-1}, {16-opt.nt0-opt.nt1-2}")
        tloop()
    else: tloop(16-opt.nt0-opt.nt1)
    e("s_branch L_help_b")
    sec("help"); lab("L_help_b")
    e(f"s_waitcnt vmcnt({15-opt.n0})")
    if opt.xlds:
        e("v_lshlrev_b32 v8, 3, v29"); e("v_and_b32 v8, 0x70, v8"); e("v_lshl_or_b32 v29, v29, 7, v8")
    else: e("v_lshlrev_b32 v29, 7, v29")
    x0_addrs()
    if opt.xearly:
        for r in range(26):
            e(f"buffer_load_dword v{X+r}, v{X+r}, s[{S_TBL}:{S_TBL+3}], 0 offen")
        e("s_waitcnt vmcnt(26)")
        e("s_barrier")
        e("s_branch L_help_main")
    e("s_waitcnt vmcnt(0)")
    e("s_barrier")
    if opt.xsl: e(f"s_sleep {opt.xsl}")
    if opt.xlds:
        if opt.xp: e("s_setprio 3")
        for r in range(26):
            e(f"ds_read_b32 v{X+r}, v{X+r}")
            if opt.xgap and r%opt.xgap==opt.xgap-1: e("s_sleep 1")
        e("s_branch L_help_main")
    lab("L_help_x0")
    for r in range(26):
        e(f"buffer_load_dword v{X+r}, v{X+r}, s[{S_TBL}:{S_TBL+3}], 0 offen")
    lab("L_help_main")
    srd(S_WS,P_WS,WS_SIZE); srd(S_A,P_DBG,256); srd(S_B,P_OUT,2048)
    Z0=8
    ZE=lambda s: Z0+4*s
    ZO=lambda s: Z0+88+4*s
    LE=lambda k: Z0+176+4*k
    LO=lambda k: Z0+184+4*k
    R=200; MT=252
    e("v_lshrrev_b32 v5, 2, v3")
    e("v_mul_u32_u24 v5, 5888, v5")
    e("v_and_b32 v6, 3, v2")
    e("v_lshl_add_u32 v5, v6, 4, v5")
    e("v_lshrrev_b32 v6, 5, v2")
    e("v_lshl_add_u32 v5, v6, 6, v5")
    e("v_mov_b32 v7, 0x7fff0000")
    e("v_cmp_gt_u32 vcc, 26, v3")
    e("v_lshlrev_b32 v6, 13, v2")
    e(f"s_lshl_b32 s{sT}, s{sROW}, 3")
    e("v_cndmask_b32 v5, v7, v5, vcc")
    e(f"s_add_u32 s{sT}, s{sT}, {GRAN}")
    e(f"v_add_u32 v6, s{sT}, v6")
    e("v_cmp_gt_u32 vcc, 26, v2")
    e("v_lshlrev_b32 v1, 4, v2")
    e(f"v_add_u32 v1, 97280, v1")
    e("v_cndmask_b32 v6, v7, v6, vcc")
    e(f"v_mov_b32 v7, {FLAGS}")
    e("s_waitcnt vmcnt(0) lgkmcnt(0)")
    if opt.xp==1: e("s_setprio 0")
    late_sloads()
    if opt.enc in (96,97):
        e("s_cmp_ge_u32 s2, 8")
        e("s_cbranch_scc1 L_nost")
        e("v_mov_b32 v0, s10")
        e("s_lshl_b32 s12, s2, 2")
        e(f"buffer_store_dword v0, off, s[{S_A}:{S_A+3}], s12 offset:64 sc0 sc1")
        lab("L_nost")
    st(76)
    for r in range(26):
        e(f"v_lshlrev_b32 v{R+2*r}, 16, v{X+r}")
        e(f"v_and_b32 v{R+2*r+1}, 0xffff0000, v{X+r}")
    def zstep(s):
        if opt.noz: return
        for m in range(4):
            (a1,a2),(b1,b2)=pair_of(8*s+2*m),pair_of(8*s+2*m+1)
            if opt.zpk:
                e(f"v_pk_mul_f32 v[{MT}:{MT+1}], v[{R+2*a1}:{R+2*a1+1}], v[{R+2*a2}:{R+2*a2+1}]")
                e(f"v_pk_mul_f32 v[{MT+2}:{MT+3}], v[{R+2*b1}:{R+2*b1+1}], v[{R+2*b2}:{R+2*b2+1}]")
            else:
                e(f"v_mul_f32 v{MT}, v{R+2*a1}, v{R+2*a2}")
                e(f"v_mul_f32 v{MT+2}, v{R+2*b1}, v{R+2*b2}")
                e(f"v_mul_f32 v{MT+1}, v{R+2*a1+1}, v{R+2*a2+1}")
                e(f"v_mul_f32 v{MT+3}, v{R+2*b1+1}, v{R+2*b2+1}")
            e(f"v_cvt_pk_bf16_f32 v{ZE(s)+m}, v{MT}, v{MT+2}")
            e(f"v_cvt_pk_bf16_f32 v{ZO(s)+m}, v{MT+1}, v{MT+3}")
    def zlin():
        for k in range(2):
            for m2 in range(4):
                m=k*8+2*m2
                for tl,d in ((0,LE(k)+m2),(1,LO(k)+m2)):
                    if m+1<=12: e(f"v_cvt_pk_bf16_f32 v{d}, v{R+4*m+tl}, v{R+4*(m+1)+tl}")
                    elif m==12: e(f"v_cvt_pk_bf16_f32 v{d}, v{R+4*m+tl}, 1.0")
                    else: e(f"v_mov_b32 v{d}, 0")
    SC=" sc1" if opt.csc else ""
    if opt.xp==2: e("s_setprio 0")
    zlin()
    for s in range(opt.zsplit): zstep(s)
    if opt.hprio: e("s_setprio 0")
    st(78)
    e(f"s_load_dwordx8 s[92:99], s[{P_DBG}:{P_DBG+1}], 0")
    e("s_waitcnt lgkmcnt(0)")
    for k in range(1,7): e(f"s_and_b32 s92, s92, s{92+k}")
    e("s_cmp_lg_u32 s92, 0")
    e("s_cbranch_scc1 L_polled")
    lds_spin("L_it9",7,4,F_S1,4,sleep=4)
    e(f"v_lshlrev_b32 v0, 2, v2")
    e(f"buffer_load_dword v4, v0, s[{S_A}:{S_A+3}], 0 offen sc1")
    for s in range(opt.zsplit,opt.zmid): zstep(s)
    e(f"s_mov_b32 s{sT+4}, {opt.bound}")
    e(f"s_mov_b32 s{sT+2}, 0x7f")
    e(f"s_mov_b32 s{sT+3}, 0")
    lab("L_poll1")
    e("s_waitcnt vmcnt(0)")
    e("v_cmp_ne_u32 vcc, 0, v4")
    e(f"s_and_b64 vcc, vcc, s[{sT+2}:{sT+3}]")
    e(f"s_cmp_eq_u64 vcc, s[{sT+2}:{sT+3}]")
    e("s_cbranch_scc1 L_polled")
    e(f"s_sleep {opt.psleep}")
    e(f"buffer_load_dword v4, v0, s[{S_A}:{S_A+3}], 0 offen sc1")
    e(f"s_sub_u32 s{sT+4}, s{sT+4}, 1")
    e("s_cbranch_scc0 L_poll1")
    lab("L_polled")
    if opt.inv: e("buffer_inv sc1")
    st(80)
    lds_spin("L_s1",7,0,F_S1,4,sleep=2)
    e(f"s_sub_u32 s{sT}, s{sWAVE}, 4")
    e(f"s_lshl_b32 s{sT+1}, s{sT}, 13")
    e(f"s_add_u32 m0, s{sT+1}, {RING+4096}")
    e(f"s_lshl_b32 s{sT}, s{sT}, 9")
    e(f"s_sub_u32 s{sT}, s{sT}, 256")
    for t in range(4):
        if t<2:
            e(f"s_cmp_eq_u32 s{sWAVE}, 4")
            e(f"s_cselect_b32 s{sT+1}, {(44+t)*128}, s{sT}")
        else: e(f"s_mov_b32 s{sT+1}, s{sT}")
        e(f"buffer_load_dwordx4 v5, s[{S_WS}:{S_WS+3}], s{sT+1} offen sc1 lds")
        if t<3:
            e(f"s_add_u32 m0, m0, 1024")
            e(f"s_add_u32 s{sT}, s{sT}, 128")
    for s in range(opt.zmid,opt.zbar): zstep(s)
    e("s_waitcnt vmcnt(0)")
    st(82)
    e("s_barrier")
    if opt.hpz: e(f"s_setprio {opt.hpz}")
    for s in range(opt.zbar,opt.zb2): zstep(s)
    def hinc(off):
        e("v_mov_b32 v0, 1")
        e("s_mov_b64 exec, 1")
        e("s_waitcnt vmcnt(0)")
        e(f"ds_add_u32 v7, v0 offset:{off}")
        e("s_mov_b64 exec, -1")
    CWB=97280
    def dmaB0():
        e(f"s_sub_u32 s{sT}, s{sWAVE}, 4")
        e(f"s_lshl_b32 s{sT+1}, s{sT}, 10")
        e(f"s_add_u32 s{sT+1}, s{sT+1}, {CWB}")
        e(f"s_lshl_b32 s{sT}, s{sT}, 7")
        e(f"s_add_u32 s{sT}, s{sT}, {14*128}")
        e(f"s_cmp_ge_u32 s{sWAVE}, 6")
        e(f"s_cselect_b32 s{sT+8}, 6, 7")
        e(f"s_lshl_b32 s{sT+8}, s{sT+8}, 9")
    def dmaB1(t):
        if t<7:
            e(f"s_add_u32 m0, s{sT+1}, {4096*t}")
            e(f"s_add_u32 s{sT+9}, s{sT}, {512*t}")
        else:
            e(f"s_lshl3_add_u32 m0, s{sT+8}, s{sT+1}")
            e(f"s_add_u32 s{sT+9}, s{sT}, s{sT+8}")
        e(f"buffer_load_dwordx4 v5, s[{S_WS}:{S_WS+3}], s{sT+9} offen sc1 lds")
    dmaB0()
    dq=list(range(8))
    for s in range(opt.zb2,22): zstep(s)
    st(84)
    AUE,AUO=200,216; RG=232
    AXE=LE(0); AXO=ZE(0)
    vm=Q(63); lg=Q(15)
    seq=[('eo',22),('eo',23)]+[('e',s) for s in range(4)]+[('o',s) for s in range(4)]+[('eo',s) for s in range(4,22)]
    free=[RG+4*k for k in range(6)]
    reg={}
    lL=[]; lG=[]
    for i,(tl,s) in enumerate(seq):
        for k,fi in ([('x',2*s),('u',2*s+1)] if s<22 else [('u',44+s-22)]): lL.append((i,k,fi))
    cur=[0]; okB=[False]
    def ld():
        if not free or not lL or lL[0][0]>cur[0]+opt.look: return False
        i,k,fi=lL[0]
        if 14<=fi<44 and not okB[0]: return False
        lL.pop(0); r=free.pop(0); reg[(i,k)]=r
        if 14<=fi<44: off=(fi-14)*1024
        else:
            p=fi+2 if fi<14 else fi-44
            off=RING+4096-CWB+(p>>2)*8192+(p&3)*1024
        e(f"ds_read_b128 v[{r}:{r+3}], v1 offset:{off}"); lg.issue(f"{k}{i}")
        return True
    if opt.gateC: lds_spin("L_gC",7,0,{1:F_RED,3:F_G}[opt.gateC],4,sleep=1)
    st(88,True)
    if ST: e("s_memtime s[96:97]"); e("s_waitcnt lgkmcnt(0)")
    if opt.hpc>=0: e(f"s_setprio {opt.hpc}")
    while ld(): pass
    for _ in range(opt.dpre): dmaB1(dq.pop(0))
    first={'xe':1,'xo':1,'ue':1,'uo':1}
    GV=RG; rel=[]
    for i,(tl,s) in enumerate(seq):
        cur[0]=i
        CS={2:76,6:78,10:80,12:82,13:84,16:86,20:88,24:92}
        if opt.cst and i in CS: e(f"s_memtime s[{CS[i]}:{CS[i]+1}]")
        if i==12:
            e(f"ds_read_b32 v0, v7 offset:{F_CW2}"); lg.issue("cwr")
        q,nm=(lg,"lgkmcnt") if f'u{i}' in lg.ops else (vm,"vmcnt")
        if q.pending(f'u{i}'): e(f"s_waitcnt {nm}({q.need(f'u{i}')})")
        n=0
        for t in tl:
            z=(ZE if t=='e' else ZO)(s) if s<22 else (LE if t=='e' else LO)(s-22)
            for k,a in (('x',AXE if t=='e' else AXO),('u',AUE if t=='e' else AUO)):
                if (i,k) not in reg: continue
                c=f"v[{a}:{a+15}]"; r=reg[(i,k)]
                e(f"v_mfma_f32_32x32x16_bf16 {c}, v[{r}:{r+3}], v[{z}:{z+3}], {0 if first[k+t] else c}"); first[k+t]=0; lastw[t]=cnt[0]
                n+=1
                if n==1: free+=rel; rel=[]
                for _ in range(opt.dper):
                    if dq: dmaB1(dq.pop(0))
                if i==opt.bstep2 and n==opt.bn: hinc(F_CW2); lg.issue("cw2")
                if i==12 and n==1:
                    e("s_waitcnt lgkmcnt(0)"); lg.done=len(lg.ops)
                    e(f"v_readfirstlane_b32 s{sT+5}, v0")
                    e(f"s_cmp_ge_u32 s{sT+5}, 4")
                    e("s_cbranch_scc1 L_cw2_x")
                    lds_spin("L_cw2",7,0,F_CW2,4); okB[0]=True
                    while ld(): pass
                ld()
                if len(tl)==1: ld()
            if s<22 and not (t=='e' and s<4): rel.append(z)
        rel+= [reg[(i,k)] for k in 'xu' if (i,k) in reg]
        if i==len(seq)-3:
            assert not lL and not lG
            GV=free.pop(0)
            e(f"buffer_load_dwordx2 v[{GV}:{GV+1}], v6, s[{S_WS}:{S_WS+3}], 0 offen sc1"); vm.issue("gv")
    V=free.pop(0); V2=V+1
    e(f"s_add_u32 s{sE}, s{sE}, 1")
    e(f"s_xor_b32 s{sE+1}, s{sE+1}, s{sE}")
    e(f"s_and_b32 s{sE+1}, s{sE+1}, 0xff")
    e("s_lshl_b32 s9, s9, 16")
    e(f"s_lshl_b32 s{sT+6}, s{sROW}, 1")
    e(f"s_lshl_b32 s{sT+7}, s{sROW}, 3")
    e(f"s_add_u32 s{sT+7}, s{sT+7}, {EPOCH}")
    e(f"v_mov_b32 v{V+3}, s{sE}")
    hz('e',12)
    e(f"v_mul_f32 v{V}, v{AXE}, v{AUE}")
    e(f"v_mul_f32 v{V2}, v{AXE+1}, v{AUE+1}")
    for t in range(2,14): e(f"v_fmac_f32 v{V+(t&1)}, v{AXE+t}, v{AUE+t}")
    hz('o',12)
    for t in range(14): e(f"v_fmac_f32 v{V+(t&1)}, v{AXO+t}, v{AUO+t}")
    e(f"v_add_f32 v{V}, v{V}, v{V2}")
    st(90)
    if ST: e("s_memtime s[98:99]")
    e("s_mov_b32 exec_lo, 0x3ffffff")
    e("s_mov_b32 exec_hi, 0")
    e(f"s_mov_b32 s{sT+4}, {opt.bound}")
    G2=GV+2
    def chk(g,lbl):
        e(f"v_and_b32 v{V2}, 0xff, v{g+1}")
        e(f"v_cmp_eq_u32 vcc, s{sE}, v{g}")
        e(f"v_cmp_eq_u32 s[{sT}:{sT+1}], s{sE+1}, v{V2}")
        e(f"v_and_b32 v{V2}, 0xffffff00, v{g+1}")
        e(f"s_and_b64 vcc, vcc, s[{sT}:{sT+1}]")
        e("s_cmp_eq_u64 vcc, exec")
        e(f"s_cbranch_scc1 L_got")
    lab("L_poll2")
    e(f"buffer_load_dwordx2 v[{G2}:{G2+1}], v6, s[{S_WS}:{S_WS+3}], 0 offen sc1")
    e("s_waitcnt vmcnt(1)")
    chk(GV,0)
    e(f"buffer_load_dwordx2 v[{GV}:{GV+1}], v6, s[{S_WS}:{S_WS+3}], 0 offen sc1")
    e("s_waitcnt vmcnt(1)")
    chk(G2,1)
    e(f"s_sub_u32 s{sT+4}, s{sT+4}, 1")
    e("s_cbranch_scc0 L_poll2")
    lab("L_got")
    e(f"v_add_f32 v{V}, v{V}, v{V2}")
    e("s_mov_b64 exec, -1")
    if not opt.cst: st(92)
    for dpp in ["quad_perm:[1,0,3,2] row_mask:0xf bank_mask:0xf","quad_perm:[2,3,0,1] row_mask:0xf bank_mask:0xf",
                "row_half_mirror row_mask:0xf bank_mask:0xf","row_mirror row_mask:0xf bank_mask:0xf",
                "row_bcast:15 row_mask:0xa bank_mask:0xf","row_bcast:31 row_mask:0xc bank_mask:0xf"]:
        e("s_nop 1")
        e(f"v_add_f32_dpp v{V}, v{V}, v{V} {dpp}")
    e("s_mov_b32 exec_lo, 0")
    e("s_mov_b32 exec_hi, 0x80000000")
    e(f"v_add_f32 v{V}, s9, v{V}")
    e(f"v_cvt_pk_bf16_f32 v{V}, v{V}, v{V}")
    e(f"buffer_store_short v{V}, off, s[{S_B}:{S_B+3}], s{sT+6}")
    e(f"buffer_store_dword v{V+3}, off, s[{S_WS}:{S_WS+3}], s{sT+7}")
    if ST:
        e("s_waitcnt vmcnt(0)"); st(94,True); e("s_sub_u32 s98, s98, s96")
        if opt.cst:
            for r in (76,78,80,82,84,86,88,92):
                e(f"s_sub_u32 s{r}, s{r}, s96"); e(f"s_mul_i32 s{r}, s{r}, 100"); e(f"s_add_u32 s{r}, s{r}, s10")
        dump([10,76,78,80,82,84,86,88,90,92,94,98],0,1)
    e("s_endpgm")

    sec("pref")
    lab("L_aux")
    if opt.foldx:
        e(f"s_mov_b32 s{sT+1}, s{sXCD}")
    else:
        e(f"s_lshl1_add_u32 s{sT+1}, s{sXCD}, s{sSLOT}")
        e(f"s_sub_u32 s{sT+1}, s{sT+1}, 26")
    e(f"s_cmp_lt_u32 s{sT+1}, 7")
    e("s_cbranch_scc1 L_fold")
    sec("fold0"); lab("L_fold")
    cm("---- CIN weight folding: rows i = 4*pidx + (wave&3) ----")
    S_C=S_W; S_O=S_B; sI=6
    e(f"s_and_b32 s{sT}, s{sWAVE}, 3")
    e(f"s_lshl2_add_u32 s{sI}, s{sT+1}, s{sT}")
    M=16
    e("v_lshlrev_b32 v3, 2, v0")
    e("v_mov_b32 v7, 0x7fff0000")
    e(f"s_movk_i32 s{sT+1}, 338")
    e(f"v_cmp_gt_u32 vcc, s{sT+1}, v0")
    e("v_lshrrev_b32 v4, 1, v2")
    e("v_and_b32 v5, 1, v2")
    e("v_cndmask_b32 v3, v7, v3, vcc")
    e("v_lshlrev_b32 v4, 3, v4")
    e("s_waitcnt lgkmcnt(0)")
    e(f"s_load_dwordx8 s[76:83], s[{P_WOUT}:{P_WOUT+1}], 104")
    e(f"s_load_dwordx4 s[84:87], s[{P_WOUT}:{P_WOUT+1}], 136")
    e(f"s_load_dword s88, s[{P_WOUT}:{P_WOUT+1}], 152")
    srd(S_C,P_CIN,105456)
    for gg in range(26):
        if gg%3==0: e(f"s_mov_b32 s{sT+2}, {2*35152+gg*1352}")
        e(f"buffer_load_dword v{M+gg}, v3, s[{S_C}:{S_C+3}], s{sT+2} offen offset:{(gg%3)*1352}")
    e("s_branch L_fold_b")
    sec("fold"); lab("L_fold_b")
    PP=44; QQ=52
    def slots():
        for ee in range(8):
            e(f"v_add_u32 v8, {ee}, v4")
            e("v_mul_u32_u24 v9, 5042, v8")
            e("v_lshrrev_b32 v9, 16, v9")
            e("v_mul_u32_u24 v10, 13, v9")
            e("v_sub_u32 v10, v8, v10")
            e(f"v_lshl_add_u32 v{PP+ee}, v10, 1, v5")
            e(f"v_add_u32 v{QQ+ee}, v{PP+ee}, v9")
            e(f"v_subrev_u32 v10, 26, v{QQ+ee}")
            e(f"v_min_u32 v{QQ+ee}, v{QQ+ee}, v10")
    def m3(later):
        e("v_mul_u32_u24 v8, 5042, v0")
        e("v_lshrrev_b32 v8, 16, v8")
        e("v_mul_u32_u24 v9, 13, v8")
        e("v_sub_u32 v9, v0, v9")
        e("v_lshlrev_b32 v9, 7, v9")
        e("v_lshl_add_u32 v96, v8, 1, v9")
        e("s_waitcnt lgkmcnt(0)")
        st(92)
        for gg in range(26):
            sreg=76+(gg>>1)
            if gg&1: e(f"s_and_b32 s{sT+4+(gg&1)}, s{sreg}, 0xffff0000")
            else:    e(f"s_lshl_b32 s{sT+4+(gg&1)}, s{sreg}, 16")
            if gg%4==0: e(f"s_waitcnt vmcnt({later+25-min(gg+3,25)})")
            e(f"v_lshlrev_b32 v8, 16, v{M+gg}")
            e(f"v_and_b32 v9, 0xffff0000, v{M+gg}")
            if gg==0:
                e(f"v_mul_f32 v10, s{sT+4}, v8"); e(f"v_mul_f32 v11, s{sT+4}, v9")
            else:
                e(f"v_fmac_f32 v10, s{sT+4+(gg&1)}, v8"); e(f"v_fmac_f32 v11, s{sT+4+(gg&1)}, v9")
        e("v_cvt_pk_bf16_f32 v10, v10, v11")
        e(f"s_movk_i32 s{sT+1}, 338")
        e(f"v_cmp_gt_u32 vcc, s{sT+1}, v0")
        e(f"s_and_saveexec_b64 s[{sT+2}:{sT+3}], vcc")
        e("ds_write_b16 v96, v10")
        e("ds_write_b16_d16_hi v96, v10 offset:64")
        e("s_mov_b64 exec, -1")
        st(94)
    def st_addr(cnt):
        e("v_lshlrev_b32 v6, 7, v6")
        e("v_lshl_add_u32 v6, v5, 6, v6")
        e(f"s_and_b32 s{sT+1}, s{sWAVE}, 3")
        e(f"s_lshl_b32 s{sT+1}, s{sT+1}, 4")
        e(f"s_add_u32 s{sT+1}, s{sT+1}, {STG}")
        e(f"v_add_u32 v6, s{sT+1}, v6")
        e(f"v_cmp_gt_u32 vcc, {cnt}, v2")
        e("v_mov_b32 v94, 1.0")
        e(f"v_mov_b32 v8, {STG+8192}")
        e("v_cndmask_b32 v6, v8, v6, vcc")
        e("v_cmp_gt_u32 vcc, 2, v2")
        e("s_nop 1")
        e("v_cndmask_b32 v95, v94, 0.5, vcc")
        e("v_cmp_gt_u32 vcc, 4, v2")
        e("s_nop 1")
        e("v_cndmask_b32 v94, v94, 0.5, vcc")
    e(f"s_cmp_ge_u32 s{sWAVE}, 4")
    e("s_cbranch_scc1 L_aux_w1")
    Pq=60; PR=76; RA=68; VV=16
    e("v_and_b32 v8, 31, v2")
    e("v_lshrrev_b32 v15, 5, v2")
    e(f"v_mul_u32_u24 v10, {8*1352}, v15")
    e("v_lshl_add_u32 v10, v8, 1, v10")
    e("v_cmp_gt_u32 vcc, 26, v8")
    e(f"s_mul_i32 s{sT+3}, s{sI}, 52")
    e(f"s_add_u32 s{sT+3}, s{sT+3}, 35152")
    e("v_cndmask_b32 v10, v7, v10, vcc")
    e("v_cmp_gt_u32 vcc, 32, v2")
    e("v_lshlrev_b32 v12, 2, v2")
    e("s_nop 0")
    e("v_cndmask_b32 v11, v7, v10, vcc")
    for s in range(2):
        for ee in range(8):
            h=16*s+ee
            if h%3==0 or ee==0:
                hb=h; e(f"s_add_u32 s{sT+2}, s{sT+3}, {h*1352}")
            va=11 if (s==1 and ee>=2) else 10
            e(f"buffer_load_ushort v{PR+s*8+ee}, v{va}, s[{S_C}:{S_C+3}], s{sT+2} offen offset:{(h-hb)*1352}")
    srd(S_O,P_WOUT,156)
    e(f"buffer_load_dword v13, v12, s[{S_O}:{S_O+3}], 0 offen offset:52")
    e(f"s_lshl_b32 s{sT+2}, s{sI}, 1")
    e(f"buffer_load_ushort v14, off, s[{S_O}:{S_O+3}], s{sT+2}")
    e("v_lshlrev_b32 v8, 6, v2")
    e("v_mov_b32 v9, 0")
    e("s_mov_b32 exec_lo, 0x7ffffff")
    e("s_mov_b32 exec_hi, 0")
    e("ds_write_b32 v8, v9 offset:52")
    e("ds_write_b32 v8, v9 offset:56")
    e("ds_write_b32 v8, v9 offset:60")
    e("s_mov_b64 exec, -1")
    e("v_and_b32 v8, 31, v2")
    e("v_lshlrev_b32 v93, 6, v8")
    e("v_lshl_add_u32 v93, v15, 4, v93")
    e(f"s_mul_i32 s{sT+1}, s{sWAVE}, 5120")
    e(f"s_add_u32 s{sT+1}, s{sT+1}, 4096")
    e("v_mul_u32_u24 v92, 144, v8")
    e("v_lshl_add_u32 v92, v15, 4, v92")
    e(f"v_add_u32 v92, s{sT+1}, v92")
    slots()
    e("v_cmp_lt_u32 vcc, 43, v2")
    e("v_subrev_u32 v10, 176, v4")
    e("v_mov_b32 v11, 26")
    for ee in range(8):
        e(f"v_add_u32 v8, {ee}, v10")
        e("v_lshl_add_u32 v8, v8, 1, v5")
        e(f"v_min_u32 v8, 31, v8")
        e(f"v_cndmask_b32 v8, v{QQ+ee}, v8, vcc")
        e(f"v_cndmask_b32 v9, v{PP+ee}, v11, vcc")
        e(f"v_mul_u32_u24 v9, 144, v9")
        e(f"v_lshl_add_u32 v9, v8, 2, v9")
        e(f"v_add_u32 v{RA+ee}, s{sT+1}, v9")
    e("v_lshrrev_b32 v8, 1, v2")
    e("v_lshl_add_u32 v6, v8, 1, 1")
    e("v_add_u32 v8, 22, v8")
    e("v_cndmask_b32 v6, v6, v8, vcc")
    st_addr(48)
    m3(18)
    e("s_mov_b32 exec_lo, 0x1fff")
    e("s_mov_b32 exec_hi, 0")
    e("s_waitcnt vmcnt(0)")
    e(f"ds_write_b32 v12, v13 offset:{26*64}")
    e("s_mov_b64 exec, -1")
    for r in range(8): e(f"v_lshl_or_b32 v{Pq+r}, v{PR+2*r+1}, 16, v{PR+2*r}")
    e("s_waitcnt lgkmcnt(0)")
    e("s_barrier")
    Qq=16; D=24
    e(f"ds_read_b128 v[{Qq}:{Qq+3}], v93")
    e(f"ds_read_b128 v[{Qq+4}:{Qq+7}], v93 offset:32")
    e("s_waitcnt lgkmcnt(0)")
    e(f"v_mfma_f32_32x32x16_bf16 v[{D}:{D+15}], v[{Pq}:{Pq+3}], v[{Qq}:{Qq+3}], 0")
    e(f"v_mfma_f32_32x32x16_bf16 v[{D}:{D+15}], v[{Pq+4}:{Pq+7}], v[{Qq+4}:{Qq+7}], v[{D}:{D+15}]")
    e(f"v_mfma_f32_32x32x16_bf16 v[{D}:{D+15}], v[{Qq}:{Qq+3}], v[{Pq}:{Pq+3}], v[{D}:{D+15}]")
    e(f"v_mfma_f32_32x32x16_bf16 v[{D}:{D+15}], v[{Qq+4}:{Qq+7}], v[{Pq+4}:{Pq+7}], v[{D}:{D+15}]")
    e("s_nop 11")
    for m in range(4):
        e(f"ds_write_b128 v92, v[{D+4*m}:{D+4*m+3}] offset:{m*32}")
    e("s_waitcnt lgkmcnt(0)")
    for ee in range(8): e(f"ds_read_b32 v{VV+ee}, v{RA+ee}")
    e("v_lshlrev_b32 v14, 16, v14")
    e(f"v_cmp_eq_u32 s[{sT}:{sT+1}], 46, v2")
    e(f"v_cmp_eq_u32 s[{sT+2}:{sT+3}], 47, v2")
    e("v_cmp_lt_u32 vcc, 45, v2")
    e("s_waitcnt lgkmcnt(0)")
    e(f"v_cndmask_b32 v{VV+5}, v{VV+5}, v14, s[{sT}:{sT+1}]")
    e(f"v_cndmask_b32 v{VV+5}, v{VV+5}, 0, s[{sT+2}:{sT+3}]")
    e(f"v_cndmask_b32 v{VV+6}, v{VV+6}, 0, vcc")
    e(f"v_cndmask_b32 v{VV+7}, v{VV+7}, 0, vcc")
    e("s_branch L_aux_pack")
    lab("L_aux_w1")
    GA=60; GB=68
    e(f"s_mul_i32 s{sT+3}, s{sI}, 1352")
    e(f"s_lshl_b32 s{sT+6}, s{sWAVE}, 11")
    e(f"s_add_u32 s{sT+6}, s{sT+6}, {32768-4*2048}")
    e(f"s_mov_b32 m0, s{sT+6}")
    e("v_lshlrev_b32 v12, 4, v2")
    e(f"buffer_load_dwordx4 v12, s[{S_C}:{S_C+3}], s{sT+3} offen lds")
    e(f"buffer_load_dwordx4 v12, s[{S_C}:{S_C+3}], s{sT+3} offen offset:1024 lds")
    slots()
    for ee in range(8):
        e(f"v_mul_u32_u24 v8, 26, v{PP+ee}")
        e(f"v_add_lshl_u32 v8, v8, v{QQ+ee}, 1")
        e(f"v_add_u32 v{GA+ee}, s{sT+6}, v8")
        e(f"v_mul_u32_u24 v9, 26, v{QQ+ee}")
        e(f"v_add_lshl_u32 v9, v9, v{PP+ee}, 1")
        e(f"v_add_u32 v{GB+ee}, s{sT+6}, v9")
    e("v_and_b32 v6, 62, v2")
    st_addr(44)
    m3(2)
    e("s_waitcnt lgkmcnt(0)")
    e("s_barrier")
    e("s_waitcnt vmcnt(0)")
    for ee in range(8):
        e(f"ds_read_u16 v{GA+ee}, v{GA+ee}")
        e(f"ds_read_u16 v{GB+ee}, v{GB+ee}")
    e("s_waitcnt lgkmcnt(0)")
    for ee in range(8):
        e(f"v_lshlrev_b32 v{GA+ee}, 16, v{GA+ee}")
        e(f"v_lshlrev_b32 v{GB+ee}, 16, v{GB+ee}")
        e(f"v_add_f32 v{VV+ee}, v{GA+ee}, v{GB+ee}")
    lab("L_aux_pack")
    srd(S_WS,P_WS,WS_SIZE); srd(S_A,P_DBG,256)
    e("v_cmp_eq_u32 vcc, 43, v2")
    for ee in range(8): e(f"v_mul_f32 v{VV+ee}, v{VV+ee}, v{94 if ee<5 else 95}")
    e(f"v_cndmask_b32 v{VV+7}, v{VV+7}, 0, vcc")
    for m in range(4): e(f"v_cvt_pk_bf16_f32 v{24+m}, v{VV+2*m}, v{VV+2*m+1}")
    e("ds_write_b128 v6, v[24:27]")
    e("v_lshlrev_b32 v8, 4, v0")
    e(f"s_movk_i32 s{sT+1}, 368")
    e(f"v_cmp_gt_u32 vcc, s{sT+1}, v0")
    e(f"s_lshr_b32 s{sT}, s{sI}, 2")
    e(f"s_mul_i32 s{sT+2}, s{sT}, 5888")
    e("v_cndmask_b32 v9, v7, v8, vcc")
    e("s_waitcnt lgkmcnt(0)")
    e("s_barrier")
    e(f"ds_read_b128 v[24:27], v8 offset:{STG}")
    e("s_waitcnt lgkmcnt(0)")
    e(f"buffer_store_dwordx4 v[24:27], v9, s[{S_WS}:{S_WS+3}], s{sT+2} offen sc0 sc1")
    st(96)
    e(f"s_lshl_b32 s{sT}, s{sT}, 2")
    e("v_mov_b32 v8, 1")
    e("s_waitcnt vmcnt(0)")
    e("s_barrier")
    e(f"s_cmp_lg_u32 s{sWAVE}, 0")
    e("s_cbranch_scc1 L_noflag")
    e("s_mov_b64 exec, 1")
    e(f"buffer_store_dword v8, off, s[{S_A}:{S_A+3}], s{sT} sc0 sc1")
    e("s_mov_b64 exec, -1")
    lab("L_noflag")
    if ST:
        st(98); e("s_waitcnt vmcnt(0)"); st(100,True)
        dump([10,92,94,96,98,100],1,2)
    e("s_branch L_aux_done")
    sec("pref")
    lab("L_prefetch")
    e("s_waitcnt lgkmcnt(0)")
    if opt.pdel: e(f"s_sleep {opt.pdel}")
    if opt.pf:
        e(f"s_cmp_lg_u32 s{sSLOT}, 31")
        e("s_cbranch_scc1 L_pf2")
        srd(S_A,P_B1,3328); srd(S_B,P_W2,3328); srd(S_WS,P_WS,EPOCH+8192)
        e("v_lshlrev_b32 v3, 7, v0")
        e(f"buffer_load_dword v12, v3, s[{S_A}:{S_A+3}], 0 offen")
        e(f"buffer_load_dword v13, v3, s[{S_B}:{S_B+3}], 0 offen")
        e(f"s_mov_b32 s{sT}, {EPOCH}")
        e(f"buffer_load_dword v14, v3, s[{S_WS}:{S_WS+3}], s{sT} offen")
        lab("L_pf2")
        srd(S_W,P_W,1664*3328)
        if opt.foldx:
            e(f"s_cmp_lt_u32 s{sXCD}, 7")
            e(f"s_cselect_b32 s{sT+2}, 27, 26")
        else:
            e(f"s_cmp_lt_u32 s{sXCD}, 4")
            e(f"s_cselect_b32 s{sT+2}, 27, 26")
            e(f"s_cmp_lt_u32 s{sXCD}, 3")
            e(f"s_cselect_b32 s{sT+2}, 28, s{sT+2}")
        e(f"s_sub_u32 s{sT}, s{sSLOT}, s{sT+2}")
        e(f"s_sub_u32 s{sT+2}, 32, s{sT+2}")
        e(f"s_mul_i32 s{sT+1}, s{sXCD}, 26")
        e(f"s_lshr_b32 s{sT+1}, s{sT+1}, 3")
        e(f"s_lshl_b32 s{sT+1}, s{sT+1}, 7")
        for u in range(3):
            e(f"v_add_u32 v3, {512*u}, v0")
            e(f"v_mul_u32_u24 v3, s{sT+2}, v3")
            e(f"v_add_u32 v3, s{sT}, v3")
            e("v_lshrrev_b32 v4, 2, v3")
            if opt.pskip: e(f"v_add_u32 v4, {opt.pskip}, v4")
            e("v_and_b32 v3, 3, v3")
            e(f"v_mul_u32_u24 v4, 3328, v4")
            e("v_lshl_add_u32 v3, v3, 7, v4")
            e(f"buffer_load_dword v{9+u}, v3, s[{S_W}:{S_W+3}], s{sT+1} offen")
            if u<2 and opt.pbar: e("s_barrier")
    e("s_branch L_aux_done")
    sec("fold")
    lab("L_aux_done")
    e(f"s_cmp_lt_u32 s{sWAVE}, 4")
    e("s_cbranch_scc1 L_end")
    srd(S_TBL,P_TBL,128000); srd(S_IDX,P_IDX,106496)
    rowidx_load()
    e("s_waitcnt vmcnt(0)")
    e(f"v_mov_b32 v7, {FLAGS}")
    e("v_mov_b32 v8, 4")
    e("v_mov_b32 v9, 0")
    e(f"ds_write_b32 v7, v8 offset:{F_RED}")
    e(f"ds_write_b32 v7, v8 offset:{F_G}")
    e(f"ds_write_b32 v7, v8 offset:{F_S1}")
    e(f"ds_write_b32 v7, v9 offset:{F_CW}")
    e(f"ds_write_b32 v7, v9 offset:{F_CW2}")
    e("s_waitcnt vmcnt(0)")
    e("v_lshlrev_b32 v29, 7, v29")
    x0_addrs()
    e("s_branch L_help_x0")
    lab("L_end")
    e("s_endpgm")
    sec("tail")
    L.append('.section .rodata,"a"'); L.append(".p2align 6"); L.append(f".amdhsa_kernel {KN}")
    for x in ["next_free_vgpr 256","next_free_sgpr 102","accum_offset 256","group_segment_fixed_size 0","kernarg_size 88",
              "user_sgpr_count 2","user_sgpr_kernarg_segment_ptr 1","system_sgpr_workgroup_id_x 1"]:
        L.append("  .amdhsa_"+x)
    L.append(".end_amdhsa_kernel")
    return "\n".join(sum((SEC.get(k,[]) for k in order+["tail"]),[]))+"\n"

if __name__=="__main__":
    ap=argparse.ArgumentParser()
    ap.add_argument("-o",default="k.s")
    for k,d in dict(xp=0,xearly=0,hpz=0,hpc=-1,gp=-1,zb2=22,zpk=0,hprio=0,tpk=0,foldx=1,rp=1,pdel=0,cp26=1,pbar=1,lay=1,b2g=1,cst=0,bgate=0,look=2,bstep=0,bstep2=11,bn=1,dper=1,dpre=2,inv=0,zmid=15,csc=0,gateC=1,gq=0,rowx=1,wstop=5,wrest=16,bq=3,xlds=1,xgap=0,atid=1,xsl=0,pskip=128,d2late=1,wper=4,its=0,sched=0,nog=0,not_=0,c2=0,noz=0,lateb=1,dly=4,pst=0,enc=0,encrole=0,encwg=0,encwave=0,nocin=0,gcyc=0,psleep=4,now=0,stamps=0,pf=1,cpf=1,prio=1,bound=2000000,zsplit=15,zbar=17,nt0=6,tb=444,n0=4,nt1=4,d1late=0,trim=1,wsched=0).items(): ap.add_argument("--"+k,type=int,default=d)
    opt=ap.parse_args()
    assert opt.zsplit==opt.zmid
    for t in range(512): assert (t*5042)>>16==t//13, t
    open(opt.o,"w").write(build(opt))
```

```python
import sys, argparse, math, struct

class Q:
    def __init__(s,cap): s.ops=[]; s.cap=cap; s.done=0
    def issue(s,name): s.ops.append(name)
    def need(s,*names):
        r=99
        for name in names:
            i=len(s.ops)-1-s.ops[::-1].index(name)
            r=min(r,len(s.ops)-1-i)
        r=min(r,s.cap)
        s.done=max(s.done,len(s.ops)-r)
        return r
    def pending(s,*names):
        return any(len(s.ops)-1-s.ops[::-1].index(n)>=s.done for n in names)

WIMG=0; GRAN=65536; EPOCH=0x50000; STAMP=0x100000; WS_SIZE=0x200000
STG=49152; RING=128000; FLAGS=160768; CINW=49152
F_IT9,F_RED,F_G,F_PRE,F_S1,F_CW,F_CW2=0,4,8,12,16,20,24
C1=-2*math.sqrt(2/math.pi)*math.log2(math.e); C2=C1*0.044715
def f2u(x): return struct.unpack('<I',struct.pack('<f',x))[0]
KN="standalone__deep_cross_xdeepfm__recsys_kernel"

sWAVE,sXCD,sSLOT,sCB,sRB=3,4,5,7,8
P_IDX,P_TBL,P_CIN,P_WOUT,P_W,P_B1,P_W2,P_BO=16,18,20,22,24,26,28,30
P_OUT,P_DBG,P_WS=32,34,36
S_IDX,S_TBL,S_W,S_WS,S_A,S_B=40,44,48,52,56,60
sRING,sWR1,sWR2,sTM=64,65,15,14
sT=66

def pair_of(n):
    if n<169: dlt,m=divmod(n,13)
    else: dlt,m=13,n-169
    r=2*m
    return r,(r+dlt)%26

def build(opt):
    SEC={"entry":[]}; order=["entry","dnn0","hpro","pref","fold0","dnn","help","fold"]
    class LL:
        cur="entry"
        def append(s,x): SEC.setdefault(s.cur,[]).append(x)
    L=LL()
    def sec(n): L.cur=n
    cnt=[0]; lastw={}
    def e(x):
        L.append("    "+x)
        cnt[0]+= (int(x.split()[1])+1) if x.startswith("s_nop") else 1
    def hz(key,n):
        d=cnt[0]-lastw[key]
        if d<n: e(f"s_nop {n-d-1}")
    def lab(x): L.append(x+":")
    def cm(x): L.append("    ; "+x)
    E=lambda x:(lambda: e(x))
    ST=opt.stamps
    def srd(d,p,size):
        e(f"s_mov_b32 s{d}, s{p}"); e(f"s_mov_b32 s{d+1}, s{p+1}")
        e(f"s_mov_b32 s{d+2}, {size}"); e(f"s_mov_b32 s{d+3}, 0x20000")
    def st(r,wait=False):
        if ST:
            e(f"s_memrealtime s[{r}:{r+1}]")
            if wait: e("s_waitcnt lgkmcnt(0)")
    def dump(regs,area=0,role=0):
        if opt.enc:
            delay(regs,role); return
        dump_(regs,area)
    dl=[0]
    def delay(regs,role):
        dl[0]+=1; n=dl[0]
        e("s_mov_b64 exec, -1")
        e("s_waitcnt lgkmcnt(0)")
        if opt.enc==99:
            if role!=1: return
            srd(S_A,P_DBG,256)
            e("s_not_b32 s12, s10")
            e("v_mov_b32 v244, s12")
            e(f"v_mov_b32 v245, s{regs[10]}")
            e("v_mov_b32 v246, 1")
            e("s_mov_b64 exec, 1")
            e(f"buffer_atomic_umax v244, off, s[{S_A}:{S_A+3}], 0 offset:240 sc1")
            e(f"buffer_atomic_umax v245, off, s[{S_A}:{S_A+3}], 0 offset:244 sc1")
            e("s_waitcnt vmcnt(0)")
            e(f"buffer_atomic_add v246, off, s[{S_A}:{S_A+3}], 0 offset:248 sc0 sc1")
            e("s_waitcnt vmcnt(0)")
            e("v_readfirstlane_b32 s12, v246")
            e("s_cmp_lg_u32 s12, 1023")
            e(f"s_cbranch_scc1 L_dly{n}_x")
            e(f"buffer_load_dwordx2 v[244:245], off, s[{S_A}:{S_A+3}], 0 offset:240 sc1")
            e("s_waitcnt vmcnt(0)")
            e("v_readfirstlane_b32 s12, v244")
            e("v_readfirstlane_b32 s13, v245")
            e("s_not_b32 s12, s12")
            e("s_sub_u32 s12, s13, s12")
        else:
            if role!=opt.encrole: return
            e(f"s_cmp_lg_u32 s2, {opt.encwg}")
            e(f"s_cbranch_scc1 L_dly{n}_x")
            e(f"s_cmp_lg_u32 s{sWAVE}, {opt.encwave}")
            e(f"s_cbranch_scc1 L_dly{n}_x")
            if opt.enc in (96,97):
                e(f"s_load_dwordx8 s[76:83], s[{P_DBG}:{P_DBG+1}], 64")
                e("s_waitcnt lgkmcnt(0)")
                e("s_mov_b32 s12, s76"); e("s_mov_b32 s13, s76")
                for k in range(1,8):
                    e(f"s_min_u32 s12, s12, s{76+k}"); e(f"s_max_u32 s13, s13, s{76+k}")
                if opt.enc==96: e("s_mov_b32 s13, s10")
                e("s_sub_u32 s12, s13, s12")
                e("s_min_u32 s12, s12, 2000")
            else: e(f"s_sub_u32 s12, s{regs[opt.enc]}, s10")
        e("s_mul_i32 s12, s12, 100")
        e("s_memrealtime s[66:67]")
        e("s_waitcnt lgkmcnt(0)")
        e("s_add_u32 s12, s12, s66")
        lab(f"L_dly{n}")
        e("s_sleep 8")
        e("s_memrealtime s[66:67]")
        e("s_waitcnt lgkmcnt(0)")
        e("s_sub_u32 s13, s66, s12")
        e("s_cmp_lt_i32 s13, 0")
        e(f"s_cbranch_scc1 L_dly{n}")
        lab(f"L_dly{n}_x")
        e("s_mov_b64 exec, -1")
    def dump_(regs,area=0):
        e("s_mov_b64 exec, -1")
        e("s_waitcnt lgkmcnt(0)")
        e("s_lshl_b32 s12, s2, 3")
        e(f"s_add_u32 s12, s12, s{sWAVE}")
        e("s_lshl_b32 s12, s12, 6")
        e(f"s_add_u32 s12, s12, {STAMP+area*0x40000}")
        regs=list(regs)+[regs[0]]*(12-len(regs))
        for i,r in enumerate(regs): e(f"v_mov_b32 v{244+i}, s{r}")
        e("s_mov_b64 exec, 1")
        for i in range(3):
            e(f"buffer_store_dwordx4 v[{244+4*i}:{247+4*i}], off, s[{S_WS}:{S_WS+3}], s12 offset:{16*i}")
        e("s_mov_b64 exec, -1")
    def lds_spin(name,vaddr,vtmp,off,target,sleep=0):
        e(f"s_mov_b32 s{sT+4}, {opt.bound*8}")
        lab(name)
        e(f"ds_read_b32 v{vtmp}, v{vaddr} offset:{off}")
        e("s_waitcnt lgkmcnt(0)")
        e(f"v_readfirstlane_b32 s{sT+5}, v{vtmp}")
        e(f"s_cmp_ge_u32 s{sT+5}, {target}")
        e(f"s_cbranch_scc1 {name}_x")
        if sleep: e(f"s_sleep {sleep}")
        e(f"s_sub_u32 s{sT+4}, s{sT+4}, 1")
        e(f"s_cbranch_scc0 {name}")
        lab(name+"_x")

    IV=16; IA=24
    def rec_addrs():
        e(f"s_lshl_b32 s{sT+5}, s{sT}, 7")
        e(f"s_add_u32 s{sT+5}, s{sT+5}, {RING+4096}")
        e(f"v_lshl_add_u32 v7, v7, 3, s{sT+5}")
        e("v_mul_u32_u24 v9, 7, v8")
        e("v_and_b32 v8, 1, v8")
        for par in range(2):
            d=IA+2*par
            if par:
                e("v_xor_b32 v8, 1, v8"); e("v_add_u32 v9, 1, v9")
            e("v_lshrrev_b32 v10, 1, v9")
            e(f"v_lshl_add_u32 v{d}, v10, 8, v7")
            e(f"v_lshl_add_u32 v{d}, v8, 14, v{d}")
            e("v_lshlrev_b32 v10, 1, v8")
            e(f"v_xor_b32 v10, s{sT+2}, v10")
            e(f"v_lshl_add_u32 v{d}, v10, 1, v{d}")
            e(f"v_xor_b32 v{d+1}, 2, v{d}")
            e(f"v_add_u32 v{d+1}, 8192, v{d+1}")
    sROW=6; sE=38
    def rowidx_load():
        e(f"s_sub_u32 s{sT+6}, s{sWAVE}, 4")
        if opt.rowx:
            e(f"s_lshl2_add_u32 s{sROW}, s{sSLOT}, s{sT+6}")
            e(f"s_lshl_b32 s{sT+6}, s{sXCD}, 7")
            e(f"s_add_u32 s{sROW}, s{sROW}, s{sT+6}")
        else: e(f"s_lshl2_add_u32 s{sROW}, s2, s{sT+6}")
        e(f"s_mul_i32 s{sT+6}, s{sROW}, 104")
        e("v_lshlrev_b32 v30, 2, v2")
        e(f"buffer_load_dword v29, v30, s[{S_IDX}:{S_IDX+3}], s{sT+6} offen")
    for x in """xDeepFM (CIN + DNN) in one launch for gfx950; the instruction stream is emitted by my own generator script.
Kernarg: idx, table, ws_cin, w_cin_out, w_dnn1, b_dnn1, w_dnn2, b_out, out, debug, ws (8-byte pointers).
Math (exact regrouping of the reference): with Z = sym(x0 (x) x0) per (row, d),
  logit_cin = sum_d sum_i (W1s Z)_i * (w1_i + (M2 x0)_i + (Gs Z)_i),  M3 = w3.W3, M2 = w2.W2, G = W2.M3.
Workgroups g = xcd + 8*slot, 8 waves each:
  slot < 26 : waves 0-3 run a 128x64 tile of gelu(x0*W+b).w2 (table resident in LDS, K split over the waves,
              W streamed by LDS-DMA + transposing reads); partial logits leave as tagged 8-byte words in ws.
  slot 26   : folds the CIN weights (7 workgroups, published in ws, flags in debug); other slots warm L2.
  waves 4-7 of every workgroup evaluate the CIN polynomial of one row each, add the 26 partial logits, store out.
Hand-off tags: each row owns an epoch word in ws; tag = epoch + 1, the consumer advances it after use.""".split("\n"): L.append("; "+x)
    L.append("; @launch grid=(256,1,1) block=(512,1,1) lds=163840")
    L.append('.amdgcn_target "amdgcn-amd-amdhsa--gfx950"')
    L.append(".text"); L.append(f".globl {KN}"); L.append(".p2align 8"); L.append(f".type {KN},@function")
    lab(KN)
    e("s_load_dwordx16 s[16:31], s[0:1], 0")
    e("s_load_dwordx4 s[32:35], s[0:1], 64")
    e("s_load_dwordx2 s[36:37], s[0:1], 80")
    st(10)
    e("s_cmp_ge_u32 s2, 256")
    e("s_cbranch_scc1 L_end")
    e("v_lshrrev_b32 v1, 6, v0")
    e("v_and_b32 v2, 63, v0")
    e(f"v_readfirstlane_b32 s{sWAVE}, v1")
    e(f"s_and_b32 s{sXCD}, s2, 7")
    e(f"s_lshr_b32 s{sSLOT}, s2, 3")
    e(f"s_cmp_ge_u32 s{sSLOT}, 26")
    e("s_cbranch_scc1 L_aux0")
    sec("pref"); lab("L_aux0")
    e(f"s_cmp_gt_u32 s{sSLOT}, {26 if opt.foldx else 27}")
    e("s_cbranch_scc1 L_prefetch")
    if opt.cpf:
        e(f"s_getpc_b64 s[{S_IDX}:{S_IDX+1}]")
        lab("L_pc")
        e(f"s_sub_u32 s{S_IDX}, s{S_IDX}, L_pc-{KN}")
        e(f"s_subb_u32 s{S_IDX+1}, s{S_IDX+1}, 0")
        e(f"s_mov_b32 s{S_IDX+2}, L_end-{KN}")
        e(f"s_mov_b32 s{S_IDX+3}, 0x20000")
        e("v_lshlrev_b32 v3, 7, v0")
        e(f"buffer_load_dword v255, v3, s[{S_IDX}:{S_IDX+3}], 0 offen")
    sec("entry")
    e(f"s_mul_i32 s6, s{sXCD}, 26")
    e(f"s_add_u32 s6, s6, s{sSLOT}")
    e(f"s_and_b32 s{sRB}, s6, 7")
    e(f"s_and_b32 s{sT}, s{sWAVE}, 1")
    e(f"s_lshr_b32 s{sT+2}, s{sWAVE}, 1")
    e(f"s_lshl2_add_u32 s{sT+4}, s{sRB}, s{sT+2}")
    e(f"s_mul_i32 s{sT+4}, s{sT+4}, 3328")
    e(f"s_lshl_b32 s{sT+5}, s{sT}, 11")
    e(f"s_add_u32 s{sT+4}, s{sT+4}, s{sT+5}")
    e(f"s_lshl_b32 s{sT+3}, s{sT+2}, 13")
    e(f"s_add_u32 s{sT+3}, s{sT+3}, s{sT+5}")
    e(f"s_add_u32 m0, s{sT+3}, {RING+4096}")
    e("v_lshlrev_b32 v6, 4, v2")
    e("v_lshrrev_b32 v3, 3, v2")
    e("v_lshrrev_b32 v4, 4, v2")
    e("v_and_b32 v10, 7, v2")
    e(f"s_lshl_b32 s{sT+1}, s{sT}, 2")
    e("v_xor_b32 v5, v10, v4")
    e(f"v_xor_b32 v5, s{sT+1}, v5")
    e("v_lshlrev_b32 v5, 4, v5")
    e("v_lshl_add_u32 v5, v3, 7, v5")
    e(f"s_lshl1_add_u32 s{sT+3}, s{sSLOT}, s{sT+2}")
    e(f"s_lshl1_add_u32 s{sTM}, s{sT+3}, s{sT}")
    e(f"s_lshl_b32 s{sTM}, s{sTM}, 10")
    e(f"s_sub_u32 s{sWR2}, {63*2048}, s{sT+5}")
    e(f"s_lshr_b32 s{sT+5}, s{sT+5}, 1")
    e(f"s_add_u32 s{sWR1}, s{sWR2}, s{sT+5}")
    e(f"s_mov_b32 s{S_IDX+2}, 106496"); e(f"s_mov_b32 s{S_IDX+3}, 0x20000")
    e(f"s_mov_b32 s{S_TBL+2}, 128000"); e(f"s_mov_b32 s{S_TBL+3}, 0x20000")
    e(f"s_mov_b32 s{sT+3}, {opt.n0-1}")
    e("s_waitcnt lgkmcnt(0)")
    if opt.pst: st(84)
    e(f"s_mov_b64 s[{S_IDX}:{S_IDX+1}], s[{P_IDX}:{P_IDX+1}]")
    e(f"s_mov_b64 s[{S_TBL}:{S_TBL+1}], s[{P_TBL}:{P_TBL+1}]")
    e(f"buffer_load_dwordx4 v6, s[{S_IDX}:{S_IDX+3}], s{sT+4} offen lds")
    if opt.trim:
        e(f"s_cmp_eq_u32 s{sT}, 0")
        e("s_cselect_b64 exec, -1, 0xffff")
    e(f"buffer_load_dwordx4 v6, s[{S_IDX}:{S_IDX+3}], s{sT+4} offen offset:1024 lds")
    if opt.trim: e("s_mov_b64 exec, -1")
    nl=[0]
    def tloop(n=None,vm=None):
        nl[0]+=1; name=f"L_tl{nl[0]}"
        if n is not None:
            if n==0: return
            e(f"s_mov_b32 s{sT+3}, {n-1}")
        lab(name)
        e(f"s_mov_b32 m0, s{sTM}")
        e(f"s_add_u32 s{sTM}, s{sTM}, 8192")
        e(f"buffer_load_dwordx4 v5, s[{S_TBL}:{S_TBL+3}], m0 offen lds")
        e(f"s_cmp_ge_u32 s{sTM}, s{sWR1}")
        e(f"s_cselect_b32 s{sT+5}, s{sWR2}, 0")
        e(f"s_sub_u32 s{sTM}, s{sTM}, s{sT+5}")
        e(f"s_sub_u32 s{sT+3}, s{sT+3}, 1")
        e(f"s_cbranch_scc0 {name}")
        if vm is not None:
            for t in range(n): vm.issue("tbl")
    tloop()
    e(f"s_cmp_ge_u32 s{sWAVE}, 4")
    e("s_cbranch_scc1 L_help_pro")
    sec("dnn0")
    tbl=tloop

    vWe,vWo=1,3
    AD=8; AF=16; F0=48; REC=80; ACC=128
    VT=106; PB,PC=110,111; BI=112; W2P=112; EV=120; VR=122; WA=123; KC=126; RA1=5; VB=6
    SEL=80; ONE=86; vC1=87; S0=88; S1=89; TA=90
    acc=lambda lt,ct: ACC+(lt*4+ct)*4
    Fr=lambda j,ct: F0+(j&1)*16+ct*4
    afr=lambda lt: AF+4*lt
    vm=Q(63); lg=Q(15)
    cm("---- DNN wave prologue ----")
    for x in ["idx0","idx3"]+["tbl"]*opt.n0: vm.issue(x)
    e(f"s_lshr_b32 s{sCB}, s6, 3")
    e(f"s_lshl_b32 s{sRING}, s{sWAVE}, 13")
    e(f"s_add_u32 s{sRING}, s{sRING}, {RING}")
    e(f"s_lshl_b32 s{sT+7}, s{sWAVE}, 5")
    e(f"v_add_u32 v9, s{sT+7}, v3")
    e("v_mul_u32_u24 v9, 3328, v9")
    e("v_lshlrev_b32 v11, 1, v4")
    e("v_and_b32 v11, 2, v11")
    e("v_xor_b32 v11, v11, v10")
    e("v_lshl_add_u32 v1, v11, 4, v9")
    e(f"s_lshl_b32 s{sT+7}, s{sCB}, 7")
    e(f"v_add_u32 v1, s{sT+7}, v1")
    e("v_xor_b32 v3, 64, v1")
    e(f"v_add_u32 v3, {8*3328-1024}, v3")
    srd(S_W,P_W,1664*3328)
    sWO=12
    def d3(j,pc):
        ld=lambda: (e(f"buffer_load_dwordx4 v{vWo if pc&1 else vWe}, s[{S_W}:{S_W+3}], s{sWO} offen offset:{(pc&1)*1024} lds"),vm.issue(f"w{j}_{pc}"))
        if pc&1: return [ld]
        return [E(f"s_add_u32 m0, s{sRING}, {((j&1)*4+pc)*1024}"),E(f"s_mov_b32 s{sWO}, {(128*j+8*pc)*3328}"),ld]
    def dma(j,pcs):
        for pc in pcs:
            for f in d3(j,pc): f()
    dma(0,range(4))
    def bias_loads(ii):
        for i in ii:
            e(f"buffer_load_dwordx2 v[{BI+2*i}:{BI+2*i+1}], v{VB}, s[{S_A}:{S_A+3}], 0 offen offset:{i*32}"); vm.issue(f"bias{i}")
    TB=[opt.n0]+[int(c,16) for c in str(opt.tb)]
    e("s_branch L_dnn_b")
    sec("dnn"); lab("L_dnn_b")
    e(f"v_lshl_add_u32 v{VB}, v4, 3, s{sT+7}")
    e(f"v_mov_b32 v7, {FLAGS}")
    srd(S_A,P_B1,3328)
    if opt.pst: st(86)
    e("v_and_b32 v13, 15, v2")
    e("v_mul_u32_u24 v13, 104, v13")
    e(f"s_lshl2_add_u32 s{sT+5}, s{sT+2}, {RING+4096}")
    e(f"v_add_u32 v13, s{sT+5}, v13")
    e(f"v_xor_b32 v9, s{sWAVE}, v4")
    e("v_lshl_add_u32 v24, v9, 13, v13")
    e("v_add_u32 v25, 1664, v24")
    e("v_bfe_u32 v9, v2, 2, 2")
    e("v_lshlrev_b32 v13, 7, v9")
    e("v_lshl_add_u32 v13, v4, 10, v13")
    e("v_lshrrev_b32 v9, 1, v9")
    e("v_lshl_add_u32 v13, v9, 5, v13")
    e("v_and_b32 v9, 1, v4")
    e("v_lshl_add_u32 v13, v9, 6, v13")
    e("v_and_b32 v9, 3, v2")
    e("v_lshl_add_u32 v13, v9, 3, v13")
    e(f"v_add_u32 v{VT}, s{sRING}, v13")
    e(f"v_xor_b32 v{VT+1}, 32, v{VT}")
    e(f"v_xor_b32 v{VT+2}, 64, v{VT}")
    e(f"v_xor_b32 v{VT+3}, 0x60, v{VT}")
    e(f"v_add_u32 v{KC}, s{sT+1}, v4")
    e(f"v_lshl_or_b32 v{KC}, v{KC}, 16, v{KC}")
    e(f"s_mov_b32 s{sT+6}, 0x00070007")
    e(f"s_waitcnt vmcnt({vm.need('idx3')})")
    if opt.pst: st(88)
    e("s_barrier")
    if opt.pst: st(90)
    RW=lambda t,j: 160+t*14+j
    for j in range(0,13,2):
        for t in range(2):
            e(f"ds_read2_b32 v[{RW(t,j)}:{RW(t,j)+1}], v{24+t} offset0:{2*j} offset1:{2*j+2}")
    tbl(TB[1],vm)
    srd(S_WS,P_WS,WS_SIZE)
    srd(S_B,P_W2,3328)
    e("s_waitcnt lgkmcnt(0)")
    e("s_barrier")
    st(76)
    tbl(TB[2],vm)
    for j in range(13):
        if j==6: tbl(TB[3],vm)
        d=REC+2*j
        e(f"v_lshl_or_b32 v{d}, v{RW(1,j)}, 16, v{RW(0,j)}")
        e(f"v_lshrrev_b32 v13, 1, v{d}")
        e(f"v_and_b32 v13, s{sT+6}, v13")
        e(f"v_lshl_or_b32 v{d}, v{d}, 3, v13")
        e(f"v_mov_b32 v{d+1}, v{d}")
        if j: e(f"v_permlane32_swap_b32 v{d-2}, v{d-1}")
    e("s_nop 1")
    e(f"v_permlane32_swap_b32 v{REC+24}, v{REC+25}")
    def bc(j,h):
        A=REC+2*j+h; B=PC if h else PB
        return [E(f"v_mov_b32 v{B}, v{A}")],[E(f"v_permlane16_swap_b32 v{A}, v{B}"),E(f"v_xor_b32 v{A}, v{KC}, v{A}"),E(f"v_xor_b32 v{B}, v{KC}, v{B}")]
    def adr(lt,j):
        src={0:REC+2*j,1:PB,2:REC+2*j+1,3:PC}[lt>>1]
        e(f"v_lshlrev_b32_sdwa v{AD+lt}, 4, v{src} dst_sel:DWORD dst_unused:UNUSED_PAD src0_sel:DWORD src1_sel:WORD_{lt&1}")
    def Rop(lt,j): e(f"ds_read_b128 v[{afr(lt)}:{afr(lt)+3}], v{AD+lt}"); lg.issue(f"R{lt}_{j}")
    def Top(j,ct,h4):
        d=Fr(j,ct)+2*h4
        e(f"ds_read_b64_tr_b16 v[{d}:{d+1}], v{VT+ct} offset:{(j&1)*4096+h4*512}"); lg.issue(f"T{j}_{ct}{h4}")
    for h in range(2): bc(0,h)[0][0]()
    e("s_nop 0")
    for h in range(2):
        for f in bc(0,h)[1]: f()
    for lt in range(8): adr(lt,0)
    bc(1,0)[0][0]()
    if ST: e("s_waitcnt lgkmcnt(0)")
    e(f"s_waitcnt vmcnt({vm.need('w0_3')})")
    for ct in range(4): Top(0,ct,0); Top(0,ct,1)
    for f in bc(1,0)[1]: f()
    dma(1,range(4))
    e("s_waitcnt lgkmcnt(0)"); lg.done=len(lg.ops)
    for x in [f"s_xor_b32 s{sT}, s{sWAVE}, 1",f"s_lshl_b32 s{sT}, s{sT}, 12",f"v_lshlrev_b32 v{RA1}, 4, v2",f"v_add_u32 v{WA}, s{sT}, v{RA1}",
              f"v_xor_b32 v{WA+1}, {3<<12}, v{WA}",f"v_xor_b32 v{WA+2}, {2<<12}, v{WA}",f"s_lshl_b32 s{sT}, s{sWAVE}, 12",f"v_add_u32 v{RA1}, s{sT}, v{RA1}",
              f"v_lshrrev_b32 v{VR}, 5, v2","v_and_b32 v0, 15, v2",f"v_lshl_add_u32 v{VR}, v{VR}, 4, v0",f"s_lshl_b32 s{sT}, s{sRB}, 7",
              f"s_lshl_b32 s{sT+1}, s{sWAVE}, 5",f"s_add_u32 s{sT}, s{sT}, s{sT+1}",f"v_add_lshl_u32 v{VR}, v{VR}, s{sT}, 3"]: e(x)
    if opt.pst: st(92)
    e(f"s_waitcnt vmcnt({vm.need('tbl')})")
    st(78)
    e("s_barrier")
    st(80,True)
    if ST: e("s_memtime s[96:97]"); e("s_waitcnt lgkmcnt(0)")
    if opt.prio: e(f"s_setprio {opt.prio}")
    LT=[2,3,4,5,6,7,0,1]
    for lt in LT: Rop(lt,0)
    def inc(off,nm):
        def f():
            e("s_mov_b64 exec, 1")
            e(f"ds_add_u32 v7, v{ONE} offset:{off}"); lg.issue(nm)
            e("s_mov_b64 exec, -1")
        return f
    def wv(n): return lambda n=n: (e(f"s_waitcnt vmcnt({vm.need(n)})") if vm.pending(n) else None)
    def wl(n): return lambda n=n: (e(f"s_waitcnt lgkmcnt({lg.need(n)})") if lg.pending(n) else None)
    T_=lambda j,ct,h4: (lambda: Top(j,ct,h4))
    def badd(k):
        ct,r=k>>2,k&3; src=BI+2*ct+(r>>1)
        return [E(f"v_and_b32 v0, 0xffff0000, v{src}" if r&1 else f"v_lshlrev_b32 v0, 16, v{src}")]+\
               [(lambda t=t: (hz((t,ct),8),e(f"v_add_f32 v{acc(t,ct)+r}, v{acc(t,ct)+r}, v0"))) for t in range(2)]
    selops=[E("v_and_b32 v0, 15, v2"),E(f"v_lshlrev_b32 v{TA}, 2, v4"),E(f"v_sub_u32 v0, v0, v{TA}"),E(f"s_movk_i32 s{sT+7}, 0x3f80"),
            E(f"v_lshlrev_b32 v{TA}, 4, v0"),E(f"v_and_b32 v{TA}, 16, v{TA}"),E(f"v_lshlrev_b32 v{TA}, v{TA}, s{sT+7}"),E("v_lshrrev_b32 v0, 1, v0"),
            E(f"v_cmp_eq_u32 s[{sT}:{sT+1}], 0, v0"),E(f"v_cmp_eq_u32 s[{sT+2}:{sT+3}], 1, v0"),E(f"v_mov_b32 v{SEL}, 0"),E(f"v_mov_b32 v{SEL+1}, 0"),
            E(f"v_cndmask_b32 v{SEL+2}, 0, v{TA}, s[{sT}:{sT+1}]"),E(f"v_cndmask_b32 v{SEL+3}, 0, v{TA}, s[{sT+2}:{sT+3}]"),E(f"v_mov_b32 v{SEL+4}, 0"),E(f"v_mov_b32 v{SEL+5}, 0")]
    misc=[E(f"s_xor_b32 s{sT}, s{sWAVE}, 1"),E(f"s_lshl_b32 s{sT}, s{sT}, 12"),E(f"v_lshlrev_b32 v{RA1}, 4, v2"),E(f"v_add_u32 v{WA}, s{sT}, v{RA1}"),
          E(f"v_xor_b32 v{WA+1}, {3<<12}, v{WA}"),E(f"v_xor_b32 v{WA+2}, {2<<12}, v{WA}"),E(f"s_lshl_b32 s{sT}, s{sWAVE}, 12"),E(f"v_add_u32 v{RA1}, s{sT}, v{RA1}"),
          E(f"v_mov_b32 v{ONE}, 1"),E(f"v_mov_b32 v{vC1}, {f2u(C1)}"),E(f"v_mov_b32 v{S0}, 0"),E(f"v_mov_b32 v{S1}, 0"),
          E(f"v_lshrrev_b32 v{VR}, 5, v2"),E("v_and_b32 v0, 15, v2"),E(f"v_lshl_add_u32 v{VR}, v{VR}, 4, v0"),E(f"s_lshl_b32 s{sT}, s{sRB}, 7"),
          E(f"s_lshl_b32 s{sT+1}, s{sWAVE}, 5"),E(f"s_add_u32 s{sT}, s{sT}, s{sT+1}"),E(f"v_add_lshl_u32 v{VR}, v{VR}, s{sT}, 3")]
    def w2l(i): return lambda: (e(f"buffer_load_dwordx2 v[{W2P+2*i}:{W2P+2*i+1}], v{VB}, s[{S_B}:{S_B+3}], 0 offen offset:{i*32}"),vm.issue(f"w2_{i}"))
    evl=[E(f"s_mov_b32 s{sT+2}, {EPOCH}"),lambda: (e(f"buffer_load_dwordx2 v[{EV}:{EV+1}], v{VR}, s[{S_WS}:{S_WS+3}], s{sT+2} offen"),vm.issue("ev"))]
    LO=list(range(92,100))
    W2F=[LO[k>>1] if k%2==0 else W2P+(k>>1) for k in range(16)]
    unp=[]
    for k in range(8):
        unp+= [E(f"v_lshlrev_b32 v{LO[k]}, 16, v{W2P+k}"),E(f"v_and_b32 v{W2P+k}, 0xffff0000, v{W2P+k}")]
    def cv(lt):
        a=acc(lt,0); u=lt>>1
        c=[(lambda m=m: (hz((lt,m>>1),8),e(f"v_cvt_pk_bf16_f32 v{a+m}, v{a+2*m}, v{a+2*m+1}"))) for m in range(8)]
        w=[(lambda h=h: (e(f"ds_write_b128 v{WA+u-1}, v[{a+4*h}:{a+4*h+3}] offset:{(u-1)*16384+((lt&1)*2+h)*1024}"),lg.issue("W"))) for h in range(2)]
        return c[:4]+w[:1]+c[4:]+w[1:]
    def bar2():
        e("s_waitcnt lgkmcnt(0)"); lg.done=len(lg.ops)
        if opt.its: e("s_memtime s[92:93]")
        if not opt.pst: st(82)
        e("s_barrier")
        if not opt.pst: st(84)
    ITS={1:76,2:78,3:80,5:82,7:84,9:86,11:88,12:90}
    bl=sum((badd(k) for k in range(16)),[])
    sel2=[(lambda f=f: f()) for f in selops]
    extra={2:[(lambda i=i: bias_loads([i])) for i in range(4)],
           3:[wv('bias3')]+bl[:6],4:bl[6:15],5:bl[15:24],6:bl[24:33],7:bl[33:42],8:bl[42:48],
           9:[w2l(i) for i in range(4)]+evl+misc[8:12],10:selops,11:[]}
    q12=[]
    for j in range(13):
        cm(f"---- iteration {j} ----")
        if opt.its==1 and j in ITS: e(f"s_memtime s[{ITS[j]}:{ITS[j]+1}]")
        if opt.its and j==12: opt.pst=1
        G=[[] for k in range(32)]
        if j<12:
            Ts=[T_(j+1,ct,h4) for ct in range(4) for h4 in range(2)]
            mB,rB=bc(j+1,1)
            G[2]+=mB; G[6]+=rB[:1]; G[7]+=rB[1:2]; G[11]+=rB[2:]
            if j+2<13:
                mA,rA=bc(j+2,0); G[23]+=mA; G[26]+=rA[:1]; G[27]+=rA[1:2]; G[30]+=rA[2:]
            free=[k for k in range(32) if k%4<2]
            seq=[]
            if j==0: seq=[[x] for x in d3(2,0)+d3(2,1)+d3(2,2)+d3(2,3)]+[[wv('w1_3'),Ts[0]]]+[[x] for x in Ts[1:]]
            else:
                seq=[[wv(f'w{j+1}_3'),Ts[0]]]+[[x] for x in Ts[1:]]
                if opt.tpk and j>1: seq=[[wv(f'w{j+1}_3'),Ts[0],Ts[1]],Ts[2:4],Ts[4:6],Ts[6:8]]
                if j+3<13:
                    dd=d3(j+3,0)+d3(j+3,1)+d3(j+3,2)+d3(j+3,3)
                    seq+=[[dd[0]],[dd[1]],[wl(f'T{j+1}_31'),dd[2]]]+[[x] for x in dd[3:]]
            if j==1:
                dd=d3(3,0)+d3(3,1)+d3(3,2)+d3(3,3)
                for k,x in zip((3,7,10,11,14,15,18,19),dd): G[k].append(x)
                seq=seq[:8]+[[]]*0+seq[8:]
                free=free[:8]+[20,21,22,24,25,28,29,31]
            for k,x in zip(free,seq): G[k]+=x
            if j==10: G[17]+=[wl('T11_31'),inc(F_S1,"s1")]
            ex=list(extra.get(j,[]))
            if j==11: ex=[E("s_waitcnt vmcnt(0)")]+unp
            lo,hi=(5,23) if j in (3,4,5,6,7,8) else (4,32)
            k=lo
            while ex:
                cand=[g for g in range(k,hi) if len(G[g])+(1 if g%4>=2 else 0)<2]
                if not cand:
                    G[hi-2]+=ex; break
                k=cand[0]; G[k].append(ex.pop(0))
        for g,lt in enumerate(LT):
            if g%2==0:
                needs=[f"R{lt}_{j}",f"R{LT[g+1]}_{j}"]+([f"T{j}_31"] if g==0 else [])
                if lg.pending(*needs): e(f"s_waitcnt lgkmcnt({lg.need(*needs)})")
            for ct in range(4):
                c=f"v[{acc(lt,ct)}:{acc(lt,ct)+3}]"
                e(f"v_mfma_f32_16x16x32_bf16 {c}, v[{Fr(j,ct)}:{Fr(j,ct)+3}], v[{afr(lt)}:{afr(lt)+3}], {0 if j==0 else c}")
                lastw[(lt,ct)]=cnt[0]
                if j<12:
                    if ct==2: adr(lt,j+1)
                    if ct==3: Rop(lt,j+1)
                    for f in G[4*g+ct]: f()
                else:
                    if g==0 and ct==2: bar2()
                    n=3 if (g,ct)!=(7,3) else 99
                    if not (ct==0 and g<=6):
                        for f in q12[:n]: f()
                        q12=q12[n:]
            if j==12 and lt>=2:
                q12+=cv(lt)
                if lt==7: q12+= [inc(F_RED,"inc"),E(f"s_mov_b32 s{sT+2}, {f2u(C2)}")]
    if not opt.pst: st(86)
    if ST: e("s_memtime s[98:99]")
    lds_spin("L_red",7,0,F_RED,4)
    if not opt.pst: st(88,True)
    lg=Q(15)
    adds=[]
    for t in range(2):
        for u in (1,2,3):
            for h in range(2):
                r=acc(2*u+t,0)+4*h
                e(f"ds_read_b128 v[{r}:{r+3}], v{RA1} offset:{(u-1)*16384+(t*2+h)*1024}"); lg.issue(f"p{t}{u}{h}")
                for sx in range(2):
                    def add(t=t,u=u,h=h,r=r,sx=sx):
                        if lg.pending(f"p{t}{u}{h}"): e(f"s_waitcnt lgkmcnt({lg.need(f'p{t}{u}{h}')})")
                        c=f"v[{acc(t,2*h+sx)}:{acc(t,2*h+sx)+3}]"; sl=SEL if sx else SEL+2
                        e(f"v_mfma_f32_16x16x32_bf16 {c}, v[{sl}:{sl+3}], v[{r}:{r+3}], {c}"); lastw[(t,2*h+sx)]=cnt[0]
                    adds.append(add)
    for f in adds[:13]: f()
    adds=adds[13:]
    if opt.gp>=0: e(f"s_setprio {opt.gp}")
    T=F0
    for q in range(8):
        t,ct=q>>2,q&3
        a=acc(t,ct)
        def A(n=2):
            for k in range(n):
                if adds: adds.pop(0)()
        hz((t,ct),8)
        for r in range(4): e(f"v_mul_f32 v{T+r}, v{a+r}, v{a+r}")
        A(1)
        for r in range(4): e(f"v_fma_f32 v{T+r}, v{T+r}, s{sT+2}, v{vC1}")
        A(1)
        for r in range(4): e(f"v_mul_f32 v{T+r}, v{T+r}, v{a+r}")
        A(1)
        for r in range(4): e(f"v_exp_f32 v{T+r}, v{T+r}")
        A(1)
        for r in range(4): e(f"v_mul_f32 v{a+r}, v{a+r}, v{W2F[4*ct+r]}")
        for r in range(4): e(f"v_add_f32 v{T+r}, 1.0, v{T+r}")
        for r in range(4): e(f"v_rcp_f32 v{T+r}, v{T+r}")
        if adds: A(1)
        else: e("s_nop 0")
        for r in range(4): e(f"v_fmac_f32 v{S1 if t else S0}, v{a+r}, v{T+r}")
    e(f"s_movk_i32 s{sT}, 0xff")
    e(f"v_add_u32 v{EV}, 1, v{EV}")
    e(f"v_permlane32_swap_b32 v{S0}, v{S1}")
    e(f"v_xor_b32 v{EV+1}, v{EV}, v{EV+1}")
    e(f"v_add_f32 v{S0}, v{S0}, v{S1}")
    e(f"v_mov_b32 v{S1}, v{S0}")
    e(f"s_lshl_b32 s{sT+1}, s{sCB}, 13")
    e(f"s_add_u32 s{sT+1}, s{sT+1}, {GRAN}")
    e(f"v_permlane16_swap_b32 v{S0}, v{S1}")
    e(f"v_add_f32 v{S0}, v{S0}, v{S1}")
    e(f"v_bfi_b32 v{EV+1}, s{sT}, v{EV+1}, v{S0}")
    e("s_mov_b32 exec_lo, 0xffff")
    e("s_mov_b32 exec_hi, 0xffff")
    e(f"buffer_store_dwordx2 v[{EV}:{EV+1}], v{VR}, s[{S_WS}:{S_WS+3}], s{sT+1} offen sc0 sc1")
    if ST:
        if opt.gcyc: e("s_memtime s[98:99]")
        if not opt.pst: st(90); e("s_waitcnt vmcnt(0)"); st(92,True)
        e("s_waitcnt lgkmcnt(0)"); e("s_sub_u32 s98, s98, s96")
        if opt.its:
            for r in range(76,94,2):
                e(f"s_sub_u32 s{r}, s{r}, s96"); e(f"s_mul_i32 s{r}, s{r}, 100"); e(f"s_add_u32 s{r}, s{r}, s10")
        dump([10,76,78,80,82,84,86,88,90,92,98])
    e("s_endpgm")

    sec("hpro")
    def late_sloads():
        e(f"s_lshl_b32 s{sT+8}, s{sROW}, 3")
        e(f"s_add_u32 s{sT+8}, s{sT+8}, {EPOCH}")
        e(f"s_load_dwordx2 s[{sE}:{sE+1}], s[{P_WS}:{P_WS+1}], s{sT+8}")
        e(f"s_load_dword s9, s[{P_BO}:{P_BO+1}], 0")
    X=32
    def x0_addrs():
        e("v_and_b32 v3, 31, v2")
        e("v_lshlrev_b32 v4, 2, v3")
        for r in range(26): e(f"v_readlane_b32 s{76+r}, v29, {r}")
        e("s_mov_b32 exec_hi, 0")
        for r in range(26): e(f"v_xor_b32 v{X+r}, s{76+r}, v4")
        e("s_mov_b64 exec, -1")
        e("s_mov_b32 exec_lo, 0")
        for r in range(26): e(f"v_xor_b32 v{X+r}, s{76+(r+1)%26}, v4")
        e("s_mov_b64 exec, -1")
    lab("L_help_pro")
    rowidx_load()
    tloop(opt.nt0-opt.n0)
    e(f"v_mov_b32 v7, {FLAGS}")
    e("v_mov_b32 v8, 0"); e("v_mov_b32 v9, 0")
    e("ds_write2_b64 v7, v[8:9], v[8:9] offset1:1")
    e("ds_write2_b64 v7, v[8:9], v[8:9] offset0:2 offset1:3")
    e(f"s_waitcnt vmcnt({opt.nt0+1})")
    e("s_barrier")
    tloop(opt.nt1)
    e("s_waitcnt lgkmcnt(0)")
    e("s_barrier")
    if opt.trim:
        e(f"s_cmp_eq_u32 s{sWAVE}, 4")
        e(f"s_cselect_b32 s{sT+3}, {16-opt.nt0-opt.nt1-1}, {16-opt.nt0-opt.nt1-2}")
        tloop()
    else: tloop(16-opt.nt0-opt.nt1)
    e("s_branch L_help_b")
    sec("help"); lab("L_help_b")
    e(f"s_waitcnt vmcnt({15-opt.n0})")
    if opt.xlds:
        e("v_lshlrev_b32 v8, 3, v29"); e("v_and_b32 v8, 0x70, v8"); e("v_lshl_or_b32 v29, v29, 7, v8")
    else: e("v_lshlrev_b32 v29, 7, v29")
    x0_addrs()
    if opt.xearly:
        for r in range(26):
            e(f"buffer_load_dword v{X+r}, v{X+r}, s[{S_TBL}:{S_TBL+3}], 0 offen")
        e("s_waitcnt vmcnt(26)")
        e("s_barrier")
        e("s_branch L_help_main")
    e("s_waitcnt vmcnt(0)")
    e("s_barrier")
    if opt.xsl: e(f"s_sleep {opt.xsl}")
    if opt.xlds:
        if opt.xp: e("s_setprio 3")
        for r in range(26):
            e(f"ds_read_b32 v{X+r}, v{X+r}")
            if opt.xgap and r%opt.xgap==opt.xgap-1: e("s_sleep 1")
        e("s_branch L_help_main")
    lab("L_help_x0")
    for r in range(26):
        e(f"buffer_load_dword v{X+r}, v{X+r}, s[{S_TBL}:{S_TBL+3}], 0 offen")
    lab("L_help_main")
    srd(S_WS,P_WS,WS_SIZE); srd(S_A,P_DBG,256); srd(S_B,P_OUT,2048)
    Z0=8
    ZE=lambda s: Z0+4*s
    ZO=lambda s: Z0+88+4*s
    LE=lambda k: Z0+176+4*k
    LO=lambda k: Z0+184+4*k
    R=200; MT=252
    e("v_lshrrev_b32 v5, 2, v3")
    e("v_mul_u32_u24 v5, 5888, v5")
    e("v_and_b32 v6, 3, v2")
    e("v_lshl_add_u32 v5, v6, 4, v5")
    e("v_lshrrev_b32 v6, 5, v2")
    e("v_lshl_add_u32 v5, v6, 6, v5")
    e("v_mov_b32 v7, 0x7fff0000")
    e("v_cmp_gt_u32 vcc, 26, v3")
    e("v_lshlrev_b32 v6, 13, v2")
    e(f"s_lshl_b32 s{sT}, s{sROW}, 3")
    e("v_cndmask_b32 v5, v7, v5, vcc")
    e(f"s_add_u32 s{sT}, s{sT}, {GRAN}")
    e(f"v_add_u32 v6, s{sT}, v6")
    e("v_cmp_gt_u32 vcc, 26, v2")
    e("v_lshlrev_b32 v1, 4, v2")
    e(f"v_add_u32 v1, 97280, v1")
    e("v_cndmask_b32 v6, v7, v6, vcc")
    e(f"v_mov_b32 v7, {FLAGS}")
    e("s_waitcnt vmcnt(0) lgkmcnt(0)")
    if opt.xp==1: e("s_setprio 0")
    late_sloads()
    if opt.enc in (96,97):
        e("s_cmp_ge_u32 s2, 8")
        e("s_cbranch_scc1 L_nost")
        e("v_mov_b32 v0, s10")
        e("s_lshl_b32 s12, s2, 2")
        e(f"buffer_store_dword v0, off, s[{S_A}:{S_A+3}], s12 offset:64 sc0 sc1")
        lab("L_nost")
    st(76)
    for r in range(26):
        e(f"v_lshlrev_b32 v{R+2*r}, 16, v{X+r}")
        e(f"v_and_b32 v{R+2*r+1}, 0xffff0000, v{X+r}")
    def zstep(s):
        if opt.noz: return
        for m in range(4):
            (a1,a2),(b1,b2)=pair_of(8*s+2*m),pair_of(8*s+2*m+1)
            if opt.zpk:
                e(f"v_pk_mul_f32 v[{MT}:{MT+1}], v[{R+2*a1}:{R+2*a1+1}], v[{R+2*a2}:{R+2*a2+1}]")
                e(f"v_pk_mul_f32 v[{MT+2}:{MT+3}], v[{R+2*b1}:{R+2*b1+1}], v[{R+2*b2}:{R+2*b2+1}]")
            else:
                e(f"v_mul_f32 v{MT}, v{R+2*a1}, v{R+2*a2}")
                e(f"v_mul_f32 v{MT+2}, v{R+2*b1}, v{R+2*b2}")
                e(f"v_mul_f32 v{MT+1}, v{R+2*a1+1}, v{R+2*a2+1}")
                e(f"v_mul_f32 v{MT+3}, v{R+2*b1+1}, v{R+2*b2+1}")
            e(f"v_cvt_pk_bf16_f32 v{ZE(s)+m}, v{MT}, v{MT+2}")
            e(f"v_cvt_pk_bf16_f32 v{ZO(s)+m}, v{MT+1}, v{MT+3}")
    def zlin():
        for k in range(2):
            for m2 in range(4):
                m=k*8+2*m2
                for tl,d in ((0,LE(k)+m2),(1,LO(k)+m2)):
                    if m+1<=12: e(f"v_cvt_pk_bf16_f32 v{d}, v{R+4*m+tl}, v{R+4*(m+1)+tl}")
                    elif m==12: e(f"v_cvt_pk_bf16_f32 v{d}, v{R+4*m+tl}, 1.0")
                    else: e(f"v_mov_b32 v{d}, 0")
    SC=" sc1" if opt.csc else ""
    if opt.xp==2: e("s_setprio 0")
    zlin()
    for s in range(opt.zsplit): zstep(s)
    if opt.hprio: e("s_setprio 0")
    st(78)
    e(f"s_load_dwordx8 s[92:99], s[{P_DBG}:{P_DBG+1}], 0")
    e("s_waitcnt lgkmcnt(0)")
    for k in range(1,7): e(f"s_and_b32 s92, s92, s{92+k}")
    e("s_cmp_lg_u32 s92, 0")
    e("s_cbranch_scc1 L_polled")
    lds_spin("L_it9",7,4,F_S1,4,sleep=4)
    e(f"v_lshlrev_b32 v0, 2, v2")
    e(f"buffer_load_dword v4, v0, s[{S_A}:{S_A+3}], 0 offen sc1")
    for s in range(opt.zsplit,opt.zmid): zstep(s)
    e(f"s_mov_b32 s{sT+4}, {opt.bound}")
    e(f"s_mov_b32 s{sT+2}, 0x7f")
    e(f"s_mov_b32 s{sT+3}, 0")
    lab("L_poll1")
    e("s_waitcnt vmcnt(0)")
    e("v_cmp_ne_u32 vcc, 0, v4")
    e(f"s_and_b64 vcc, vcc, s[{sT+2}:{sT+3}]")
    e(f"s_cmp_eq_u64 vcc, s[{sT+2}:{sT+3}]")
    e("s_cbranch_scc1 L_polled")
    e(f"s_sleep {opt.psleep}")
    e(f"buffer_load_dword v4, v0, s[{S_A}:{S_A+3}], 0 offen sc1")
    e(f"s_sub_u32 s{sT+4}, s{sT+4}, 1")
    e("s_cbranch_scc0 L_poll1")
    lab("L_polled")
    if opt.inv: e("buffer_inv sc1")
    st(80)
    lds_spin("L_s1",7,0,F_S1,4,sleep=2)
    e(f"s_sub_u32 s{sT}, s{sWAVE}, 4")
    e(f"s_lshl_b32 s{sT+1}, s{sT}, 13")
    e(f"s_add_u32 m0, s{sT+1}, {RING+4096}")
    e(f"s_lshl_b32 s{sT}, s{sT}, 9")
    e(f"s_sub_u32 s{sT}, s{sT}, 256")
    for t in range(4):
        if t<2:
            e(f"s_cmp_eq_u32 s{sWAVE}, 4")
            e(f"s_cselect_b32 s{sT+1}, {(44+t)*128}, s{sT}")
        else: e(f"s_mov_b32 s{sT+1}, s{sT}")
        e(f"buffer_load_dwordx4 v5, s[{S_WS}:{S_WS+3}], s{sT+1} offen sc1 lds")
        if t<3:
            e(f"s_add_u32 m0, m0, 1024")
            e(f"s_add_u32 s{sT}, s{sT}, 128")
    for s in range(opt.zmid,opt.zbar): zstep(s)
    e("s_waitcnt vmcnt(0)")
    st(82)
    e("s_barrier")
    if opt.hpz: e(f"s_setprio {opt.hpz}")
    for s in range(opt.zbar,opt.zb2): zstep(s)
    def hinc(off):
        e("v_mov_b32 v0, 1")
        e("s_mov_b64 exec, 1")
        e("s_waitcnt vmcnt(0)")
        e(f"ds_add_u32 v7, v0 offset:{off}")
        e("s_mov_b64 exec, -1")
    CWB=97280
    def dmaB0():
        e(f"s_sub_u32 s{sT}, s{sWAVE}, 4")
        e(f"s_lshl_b32 s{sT+1}, s{sT}, 10")
        e(f"s_add_u32 s{sT+1}, s{sT+1}, {CWB}")
        e(f"s_lshl_b32 s{sT}, s{sT}, 7")
        e(f"s_add_u32 s{sT}, s{sT}, {14*128}")
        e(f"s_cmp_ge_u32 s{sWAVE}, 6")
        e(f"s_cselect_b32 s{sT+8}, 6, 7")
        e(f"s_lshl_b32 s{sT+8}, s{sT+8}, 9")
    def dmaB1(t):
        if t<7:
            e(f"s_add_u32 m0, s{sT+1}, {4096*t}")
            e(f"s_add_u32 s{sT+9}, s{sT}, {512*t}")
        else:
            e(f"s_lshl3_add_u32 m0, s{sT+8}, s{sT+1}")
            e(f"s_add_u32 s{sT+9}, s{sT}, s{sT+8}")
        e(f"buffer_load_dwordx4 v5, s[{S_WS}:{S_WS+3}], s{sT+9} offen sc1 lds")
    dmaB0()
    dq=list(range(8))
    for s in range(opt.zb2,22): zstep(s)
    st(84)
    AUE,AUO=200,216; RG=232
    AXE=LE(0); AXO=ZE(0)
    vm=Q(63); lg=Q(15)
    seq=[('eo',22),('eo',23)]+[('e',s) for s in range(4)]+[('o',s) for s in range(4)]+[('eo',s) for s in range(4,22)]
    free=[RG+4*k for k in range(6)]
    reg={}
    lL=[]; lG=[]
    for i,(tl,s) in enumerate(seq):
        for k,fi in ([('x',2*s),('u',2*s+1)] if s<22 else [('u',44+s-22)]): lL.append((i,k,fi))
    cur=[0]; okB=[False]
    def ld():
        if not free or not lL or lL[0][0]>cur[0]+opt.look: return False
        i,k,fi=lL[0]
        if 14<=fi<44 and not okB[0]: return False
        lL.pop(0); r=free.pop(0); reg[(i,k)]=r
        if 14<=fi<44: off=(fi-14)*1024
        else:
            p=fi+2 if fi<14 else fi-44
            off=RING+4096-CWB+(p>>2)*8192+(p&3)*1024
        e(f"ds_read_b128 v[{r}:{r+3}], v1 offset:{off}"); lg.issue(f"{k}{i}")
        return True
    if opt.gateC: lds_spin("L_gC",7,0,{1:F_RED,3:F_G}[opt.gateC],4,sleep=1)
    st(88,True)
    if ST: e("s_memtime s[96:97]"); e("s_waitcnt lgkmcnt(0)")
    if opt.hpc>=0: e(f"s_setprio {opt.hpc}")
    while ld(): pass
    for _ in range(opt.dpre): dmaB1(dq.pop(0))
    first={'xe':1,'xo':1,'ue':1,'uo':1}
    GV=RG; rel=[]
    for i,(tl,s) in enumerate(seq):
        cur[0]=i
        CS={2:76,6:78,10:80,12:82,13:84,16:86,20:88,24:92}
        if opt.cst and i in CS: e(f"s_memtime s[{CS[i]}:{CS[i]+1}]")
        if i==12:
            e(f"ds_read_b32 v0, v7 offset:{F_CW2}"); lg.issue("cwr")
        q,nm=(lg,"lgkmcnt") if f'u{i}' in lg.ops else (vm,"vmcnt")
        if q.pending(f'u{i}'): e(f"s_waitcnt {nm}({q.need(f'u{i}')})")
        n=0
        for t in tl:
            z=(ZE if t=='e' else ZO)(s) if s<22 else (LE if t=='e' else LO)(s-22)
            for k,a in (('x',AXE if t=='e' else AXO),('u',AUE if t=='e' else AUO)):
                if (i,k) not in reg: continue
                c=f"v[{a}:{a+15}]"; r=reg[(i,k)]
                e(f"v_mfma_f32_32x32x16_bf16 {c}, v[{r}:{r+3}], v[{z}:{z+3}], {0 if first[k+t] else c}"); first[k+t]=0; lastw[t]=cnt[0]
                n+=1
                if n==1: free+=rel; rel=[]
                for _ in range(opt.dper):
                    if dq: dmaB1(dq.pop(0))
                if i==opt.bstep2 and n==opt.bn: hinc(F_CW2); lg.issue("cw2")
                if i==12 and n==1:
                    e("s_waitcnt lgkmcnt(0)"); lg.done=len(lg.ops)
                    e(f"v_readfirstlane_b32 s{sT+5}, v0")
                    e(f"s_cmp_ge_u32 s{sT+5}, 4")
                    e("s_cbranch_scc1 L_cw2_x")
                    lds_spin("L_cw2",7,0,F_CW2,4); okB[0]=True
                    while ld(): pass
                ld()
                if len(tl)==1: ld()
            if s<22 and not (t=='e' and s<4): rel.append(z)
        rel+= [reg[(i,k)] for k in 'xu' if (i,k) in reg]
        if i==len(seq)-3:
            assert not lL and not lG
            GV=free.pop(0)
            e(f"buffer_load_dwordx2 v[{GV}:{GV+1}], v6, s[{S_WS}:{S_WS+3}], 0 offen sc1"); vm.issue("gv")
    V=free.pop(0); V2=V+1
    e(f"s_add_u32 s{sE}, s{sE}, 1")
    e(f"s_xor_b32 s{sE+1}, s{sE+1}, s{sE}")
    e(f"s_and_b32 s{sE+1}, s{sE+1}, 0xff")
    e("s_lshl_b32 s9, s9, 16")
    e(f"s_lshl_b32 s{sT+6}, s{sROW}, 1")
    e(f"s_lshl_b32 s{sT+7}, s{sROW}, 3")
    e(f"s_add_u32 s{sT+7}, s{sT+7}, {EPOCH}")
    e(f"v_mov_b32 v{V+3}, s{sE}")
    hz('e',12)
    e(f"v_mul_f32 v{V}, v{AXE}, v{AUE}")
    e(f"v_mul_f32 v{V2}, v{AXE+1}, v{AUE+1}")
    for t in range(2,14): e(f"v_fmac_f32 v{V+(t&1)}, v{AXE+t}, v{AUE+t}")
    hz('o',12)
    for t in range(14): e(f"v_fmac_f32 v{V+(t&1)}, v{AXO+t}, v{AUO+t}")
    e(f"v_add_f32 v{V}, v{V}, v{V2}")
    st(90)
    if ST: e("s_memtime s[98:99]")
    e("s_mov_b32 exec_lo, 0x3ffffff")
    e("s_mov_b32 exec_hi, 0")
    e(f"s_mov_b32 s{sT+4}, {opt.bound}")
    G2=GV+2
    def chk(g):
        e(f"v_and_b32 v{V2}, 0xff, v{g+1}")
        e(f"v_cmp_eq_u32 vcc, s{sE}, v{g}")
        e(f"v_cmp_eq_u32 s[{sT}:{sT+1}], s{sE+1}, v{V2}")
        e(f"v_and_b32 v{V2}, 0xffffff00, v{g+1}")
        e(f"s_and_b64 vcc, vcc, s[{sT}:{sT+1}]")
        e(f"s_andn2_b64 s[{sT+2}:{sT+3}], exec, vcc")
        e("s_mov_b64 exec, vcc")
        e(f"v_add_f32 v{V}, v{V}, v{V2}")
        e(f"s_mov_b64 exec, s[{sT+2}:{sT+3}]")
        e("s_cbranch_execz L_got")
    lab("L_poll2")
    if opt.pp2:
        e(f"buffer_load_dwordx2 v[{G2}:{G2+1}], v6, s[{S_WS}:{S_WS+3}], 0 offen sc1")
        e("s_waitcnt vmcnt(1)")
        chk(GV)
        e(f"buffer_load_dwordx2 v[{GV}:{GV+1}], v6, s[{S_WS}:{S_WS+3}], 0 offen sc1")
        e("s_waitcnt vmcnt(1)")
        chk(G2)
    else:
        e("s_waitcnt vmcnt(0)")
        chk(GV)
        if opt.psl2: e(f"s_sleep {opt.psl2}")
        e(f"buffer_load_dwordx2 v[{GV}:{GV+1}], v6, s[{S_WS}:{S_WS+3}], 0 offen sc1")
    e(f"s_sub_u32 s{sT+4}, s{sT+4}, 1")
    e("s_cbranch_scc0 L_poll2")
    lab("L_got")
    e("s_mov_b64 exec, -1")
    if not opt.cst: st(92)
    for dpp in ["quad_perm:[1,0,3,2] row_mask:0xf bank_mask:0xf","quad_perm:[2,3,0,1] row_mask:0xf bank_mask:0xf",
                "row_half_mirror row_mask:0xf bank_mask:0xf","row_mirror row_mask:0xf bank_mask:0xf",
                "row_bcast:15 row_mask:0xa bank_mask:0xf","row_bcast:31 row_mask:0xc bank_mask:0xf"]:
        e("s_nop 1")
        e(f"v_add_f32_dpp v{V}, v{V}, v{V} {dpp}")
    e("s_mov_b32 exec_lo, 0")
    e("s_mov_b32 exec_hi, 0x80000000")
    e(f"v_add_f32 v{V}, s9, v{V}")
    e(f"v_cvt_pk_bf16_f32 v{V}, v{V}, v{V}")
    e(f"buffer_store_short v{V}, off, s[{S_B}:{S_B+3}], s{sT+6}")
    e(f"buffer_store_dword v{V+3}, off, s[{S_WS}:{S_WS+3}], s{sT+7}")
    if ST:
        e("s_waitcnt vmcnt(0)"); st(94,True); e("s_sub_u32 s98, s98, s96")
        if opt.cst:
            for r in (76,78,80,82,84,86,88,92):
                e(f"s_sub_u32 s{r}, s{r}, s96"); e(f"s_mul_i32 s{r}, s{r}, 100"); e(f"s_add_u32 s{r}, s{r}, s10")
        dump([10,76,78,80,82,84,86,88,90,92,94,98],0,1)
    e("s_endpgm")

    sec("pref")
    lab("L_aux")
    if opt.foldx:
        e(f"s_mov_b32 s{sT+1}, s{sXCD}")
    else:
        e(f"s_lshl1_add_u32 s{sT+1}, s{sXCD}, s{sSLOT}")
        e(f"s_sub_u32 s{sT+1}, s{sT+1}, 26")
    e(f"s_cmp_lt_u32 s{sT+1}, 7")
    e("s_cbranch_scc1 L_fold")
    sec("fold0"); lab("L_fold")
    cm("---- CIN weight folding: rows i = 4*pidx + (wave&3) ----")
    S_C=S_W; S_O=S_B; sI=6
    e(f"s_and_b32 s{sT}, s{sWAVE}, 3")
    e(f"s_lshl2_add_u32 s{sI}, s{sT+1}, s{sT}")
    M=16
    e("v_lshlrev_b32 v3, 2, v0")
    e("v_mov_b32 v7, 0x7fff0000")
    e(f"s_movk_i32 s{sT+1}, 338")
    e(f"v_cmp_gt_u32 vcc, s{sT+1}, v0")
    e("v_lshrrev_b32 v4, 1, v2")
    e("v_and_b32 v5, 1, v2")
    e("v_cndmask_b32 v3, v7, v3, vcc")
    e("v_lshlrev_b32 v4, 3, v4")
    e("s_waitcnt lgkmcnt(0)")
    e(f"s_load_dwordx8 s[76:83], s[{P_WOUT}:{P_WOUT+1}], 104")
    e(f"s_load_dwordx4 s[84:87], s[{P_WOUT}:{P_WOUT+1}], 136")
    e(f"s_load_dword s88, s[{P_WOUT}:{P_WOUT+1}], 152")
    srd(S_C,P_CIN,105456)
    for gg in range(26):
        if gg%3==0: e(f"s_mov_b32 s{sT+2}, {2*35152+gg*1352}")
        e(f"buffer_load_dword v{M+gg}, v3, s[{S_C}:{S_C+3}], s{sT+2} offen offset:{(gg%3)*1352}")
    e("s_branch L_fold_b")
    sec("fold"); lab("L_fold_b")
    PP=44; QQ=52
    def slots():
        for ee in range(8):
            e(f"v_add_u32 v8, {ee}, v4")
            e("v_mul_u32_u24 v9, 5042, v8")
            e("v_lshrrev_b32 v9, 16, v9")
            e("v_mul_u32_u24 v10, 13, v9")
            e("v_sub_u32 v10, v8, v10")
            e(f"v_lshl_add_u32 v{PP+ee}, v10, 1, v5")
            e(f"v_add_u32 v{QQ+ee}, v{PP+ee}, v9")
            e(f"v_subrev_u32 v10, 26, v{QQ+ee}")
            e(f"v_min_u32 v{QQ+ee}, v{QQ+ee}, v10")
    def m3(later):
        e("v_mul_u32_u24 v8, 5042, v0")
        e("v_lshrrev_b32 v8, 16, v8")
        e("v_mul_u32_u24 v9, 13, v8")
        e("v_sub_u32 v9, v0, v9")
        e("v_lshlrev_b32 v9, 7, v9")
        e("v_lshl_add_u32 v96, v8, 1, v9")
        e("s_waitcnt lgkmcnt(0)")
        st(92)
        for gg in range(26):
            sreg=76+(gg>>1)
            if gg&1: e(f"s_and_b32 s{sT+4+(gg&1)}, s{sreg}, 0xffff0000")
            else:    e(f"s_lshl_b32 s{sT+4+(gg&1)}, s{sreg}, 16")
            if gg%4==0: e(f"s_waitcnt vmcnt({later+25-min(gg+3,25)})")
            e(f"v_lshlrev_b32 v8, 16, v{M+gg}")
            e(f"v_and_b32 v9, 0xffff0000, v{M+gg}")
            if gg==0:
                e(f"v_mul_f32 v10, s{sT+4}, v8"); e(f"v_mul_f32 v11, s{sT+4}, v9")
            else:
                e(f"v_fmac_f32 v10, s{sT+4+(gg&1)}, v8"); e(f"v_fmac_f32 v11, s{sT+4+(gg&1)}, v9")
        e("v_cvt_pk_bf16_f32 v10, v10, v11")
        e(f"s_movk_i32 s{sT+1}, 338")
        e(f"v_cmp_gt_u32 vcc, s{sT+1}, v0")
        e(f"s_and_saveexec_b64 s[{sT+2}:{sT+3}], vcc")
        e("ds_write_b16 v96, v10")
        e("ds_write_b16_d16_hi v96, v10 offset:64")
        e("s_mov_b64 exec, -1")
        st(94)
    def st_addr(cnt):
        e("v_lshlrev_b32 v6, 7, v6")
        e("v_lshl_add_u32 v6, v5, 6, v6")
        e(f"s_and_b32 s{sT+1}, s{sWAVE}, 3")
        e(f"s_lshl_b32 s{sT+1}, s{sT+1}, 4")
        e(f"s_add_u32 s{sT+1}, s{sT+1}, {STG}")
        e(f"v_add_u32 v6, s{sT+1}, v6")
        e(f"v_cmp_gt_u32 vcc, {cnt}, v2")
        e("v_mov_b32 v94, 1.0")
        e(f"v_mov_b32 v8, {STG+8192}")
        e("v_cndmask_b32 v6, v8, v6, vcc")
        e("v_cmp_gt_u32 vcc, 2, v2")
        e("s_nop 1")
        e("v_cndmask_b32 v95, v94, 0.5, vcc")
        e("v_cmp_gt_u32 vcc, 4, v2")
        e("s_nop 1")
        e("v_cndmask_b32 v94, v94, 0.5, vcc")
    e(f"s_cmp_ge_u32 s{sWAVE}, 4")
    e("s_cbranch_scc1 L_aux_w1")
    Pq=60; PR=76; RA=68; VV=16
    e("v_and_b32 v8, 31, v2")
    e("v_lshrrev_b32 v15, 5, v2")
    e(f"v_mul_u32_u24 v10, {8*1352}, v15")
    e("v_lshl_add_u32 v10, v8, 1, v10")
    e("v_cmp_gt_u32 vcc, 26, v8")
    e(f"s_mul_i32 s{sT+3}, s{sI}, 52")
    e(f"s_add_u32 s{sT+3}, s{sT+3}, 35152")
    e("v_cndmask_b32 v10, v7, v10, vcc")
    e("v_cmp_gt_u32 vcc, 32, v2")
    e("v_lshlrev_b32 v12, 2, v2")
    e("s_nop 0")
    e("v_cndmask_b32 v11, v7, v10, vcc")
    for s in range(2):
        for ee in range(8):
            h=16*s+ee
            if h%3==0 or ee==0:
                hb=h; e(f"s_add_u32 s{sT+2}, s{sT+3}, {h*1352}")
            va=11 if (s==1 and ee>=2) else 10
            e(f"buffer_load_ushort v{PR+s*8+ee}, v{va}, s[{S_C}:{S_C+3}], s{sT+2} offen offset:{(h-hb)*1352}")
    srd(S_O,P_WOUT,156)
    e(f"buffer_load_dword v13, v12, s[{S_O}:{S_O+3}], 0 offen offset:52")
    e(f"s_lshl_b32 s{sT+2}, s{sI}, 1")
    e(f"buffer_load_ushort v14, off, s[{S_O}:{S_O+3}], s{sT+2}")
    e("v_lshlrev_b32 v8, 6, v2")
    e("v_mov_b32 v9, 0")
    e("s_mov_b32 exec_lo, 0x7ffffff")
    e("s_mov_b32 exec_hi, 0")
    e("ds_write_b32 v8, v9 offset:52")
    e("ds_write_b32 v8, v9 offset:56")
    e("ds_write_b32 v8, v9 offset:60")
    e("s_mov_b64 exec, -1")
    e("v_and_b32 v8, 31, v2")
    e("v_lshlrev_b32 v93, 6, v8")
    e("v_lshl_add_u32 v93, v15, 4, v93")
    e(f"s_mul_i32 s{sT+1}, s{sWAVE}, 5120")
    e(f"s_add_u32 s{sT+1}, s{sT+1}, 4096")
    e("v_mul_u32_u24 v92, 144, v8")
    e("v_lshl_add_u32 v92, v15, 4, v92")
    e(f"v_add_u32 v92, s{sT+1}, v92")
    slots()
    e("v_cmp_lt_u32 vcc, 43, v2")
    e("v_subrev_u32 v10, 176, v4")
    e("v_mov_b32 v11, 26")
    for ee in range(8):
        e(f"v_add_u32 v8, {ee}, v10")
        e("v_lshl_add_u32 v8, v8, 1, v5")
        e(f"v_min_u32 v8, 31, v8")
        e(f"v_cndmask_b32 v8, v{QQ+ee}, v8, vcc")
        e(f"v_cndmask_b32 v9, v{PP+ee}, v11, vcc")
        e(f"v_mul_u32_u24 v9, 144, v9")
        e(f"v_lshl_add_u32 v9, v8, 2, v9")
        e(f"v_add_u32 v{RA+ee}, s{sT+1}, v9")
    e("v_lshrrev_b32 v8, 1, v2")
    e("v_lshl_add_u32 v6, v8, 1, 1")
    e("v_add_u32 v8, 22, v8")
    e("v_cndmask_b32 v6, v6, v8, vcc")
    st_addr(48)
    m3(18)
    e("s_mov_b32 exec_lo, 0x1fff")
    e("s_mov_b32 exec_hi, 0")
    e("s_waitcnt vmcnt(0)")
    e(f"ds_write_b32 v12, v13 offset:{26*64}")
    e("s_mov_b64 exec, -1")
    for r in range(8): e(f"v_lshl_or_b32 v{Pq+r}, v{PR+2*r+1}, 16, v{PR+2*r}")
    e("s_waitcnt lgkmcnt(0)")
    e("s_barrier")
    Qq=16; D=24
    e(f"ds_read_b128 v[{Qq}:{Qq+3}], v93")
    e(f"ds_read_b128 v[{Qq+4}:{Qq+7}], v93 offset:32")
    e("s_waitcnt lgkmcnt(0)")
    e(f"v_mfma_f32_32x32x16_bf16 v[{D}:{D+15}], v[{Pq}:{Pq+3}], v[{Qq}:{Qq+3}], 0")
    e(f"v_mfma_f32_32x32x16_bf16 v[{D}:{D+15}], v[{Pq+4}:{Pq+7}], v[{Qq+4}:{Qq+7}], v[{D}:{D+15}]")
    e(f"v_mfma_f32_32x32x16_bf16 v[{D}:{D+15}], v[{Qq}:{Qq+3}], v[{Pq}:{Pq+3}], v[{D}:{D+15}]")
    e(f"v_mfma_f32_32x32x16_bf16 v[{D}:{D+15}], v[{Qq+4}:{Qq+7}], v[{Pq+4}:{Pq+7}], v[{D}:{D+15}]")
    e("s_nop 11")
    for m in range(4):
        e(f"ds_write_b128 v92, v[{D+4*m}:{D+4*m+3}] offset:{m*32}")
    e("s_waitcnt lgkmcnt(0)")
    for ee in range(8): e(f"ds_read_b32 v{VV+ee}, v{RA+ee}")
    e("v_lshlrev_b32 v14, 16, v14")
    e(f"v_cmp_eq_u32 s[{sT}:{sT+1}], 46, v2")
    e(f"v_cmp_eq_u32 s[{sT+2}:{sT+3}], 47, v2")
    e("v_cmp_lt_u32 vcc, 45, v2")
    e("s_waitcnt lgkmcnt(0)")
    e(f"v_cndmask_b32 v{VV+5}, v{VV+5}, v14, s[{sT}:{sT+1}]")
    e(f"v_cndmask_b32 v{VV+5}, v{VV+5}, 0, s[{sT+2}:{sT+3}]")
    e(f"v_cndmask_b32 v{VV+6}, v{VV+6}, 0, vcc")
    e(f"v_cndmask_b32 v{VV+7}, v{VV+7}, 0, vcc")
    e("s_branch L_aux_pack")
    lab("L_aux_w1")
    GA=60; GB=68
    e(f"s_mul_i32 s{sT+3}, s{sI}, 1352")
    e(f"s_lshl_b32 s{sT+6}, s{sWAVE}, 11")
    e(f"s_add_u32 s{sT+6}, s{sT+6}, {32768-4*2048}")
    e(f"s_mov_b32 m0, s{sT+6}")
    e("v_lshlrev_b32 v12, 4, v2")
    e(f"buffer_load_dwordx4 v12, s[{S_C}:{S_C+3}], s{sT+3} offen lds")
    e(f"buffer_load_dwordx4 v12, s[{S_C}:{S_C+3}], s{sT+3} offen offset:1024 lds")
    slots()
    for ee in range(8):
        e(f"v_mul_u32_u24 v8, 26, v{PP+ee}")
        e(f"v_add_lshl_u32 v8, v8, v{QQ+ee}, 1")
        e(f"v_add_u32 v{GA+ee}, s{sT+6}, v8")
        e(f"v_mul_u32_u24 v9, 26, v{QQ+ee}")
        e(f"v_add_lshl_u32 v9, v9, v{PP+ee}, 1")
        e(f"v_add_u32 v{GB+ee}, s{sT+6}, v9")
    e("v_and_b32 v6, 62, v2")
    st_addr(44)
    m3(2)
    e("s_waitcnt lgkmcnt(0)")
    e("s_barrier")
    e("s_waitcnt vmcnt(0)")
    for ee in range(8):
        e(f"ds_read_u16 v{GA+ee}, v{GA+ee}")
        e(f"ds_read_u16 v{GB+ee}, v{GB+ee}")
    e("s_waitcnt lgkmcnt(0)")
    for ee in range(8):
        e(f"v_lshlrev_b32 v{GA+ee}, 16, v{GA+ee}")
        e(f"v_lshlrev_b32 v{GB+ee}, 16, v{GB+ee}")
        e(f"v_add_f32 v{VV+ee}, v{GA+ee}, v{GB+ee}")
    lab("L_aux_pack")
    srd(S_WS,P_WS,WS_SIZE); srd(S_A,P_DBG,256)
    e("v_cmp_eq_u32 vcc, 43, v2")
    for ee in range(8): e(f"v_mul_f32 v{VV+ee}, v{VV+ee}, v{94 if ee<5 else 95}")
    e(f"v_cndmask_b32 v{VV+7}, v{VV+7}, 0, vcc")
    for m in range(4): e(f"v_cvt_pk_bf16_f32 v{24+m}, v{VV+2*m}, v{VV+2*m+1}")
    e("ds_write_b128 v6, v[24:27]")
    e("v_lshlrev_b32 v8, 4, v0")
    e(f"s_movk_i32 s{sT+1}, 368")
    e(f"v_cmp_gt_u32 vcc, s{sT+1}, v0")
    e(f"s_lshr_b32 s{sT}, s{sI}, 2")
    e(f"s_mul_i32 s{sT+2}, s{sT}, 5888")
    e("v_cndmask_b32 v9, v7, v8, vcc")
    e("s_waitcnt lgkmcnt(0)")
    e("s_barrier")
    e(f"ds_read_b128 v[24:27], v8 offset:{STG}")
    e("s_waitcnt lgkmcnt(0)")
    e(f"buffer_store_dwordx4 v[24:27], v9, s[{S_WS}:{S_WS+3}], s{sT+2} offen sc0 sc1")
    st(96)
    e(f"s_lshl_b32 s{sT}, s{sT}, 2")
    e("v_mov_b32 v8, 1")
    e("s_waitcnt vmcnt(0)")
    e("s_barrier")
    e(f"s_cmp_lg_u32 s{sWAVE}, 0")
    e("s_cbranch_scc1 L_noflag")
    e("s_mov_b64 exec, 1")
    e(f"buffer_store_dword v8, off, s[{S_A}:{S_A+3}], s{sT} sc0 sc1")
    e("s_mov_b64 exec, -1")
    lab("L_noflag")
    if ST:
        st(98); e("s_waitcnt vmcnt(0)"); st(100,True)
        dump([10,92,94,96,98,100],1,2)
    e("s_branch L_aux_done")
    sec("pref")
    lab("L_prefetch")
    e("s_waitcnt lgkmcnt(0)")
    if opt.pdel: e(f"s_sleep {opt.pdel}")
    if opt.pf:
        e(f"s_cmp_lg_u32 s{sSLOT}, 31")
        e("s_cbranch_scc1 L_pf2")
        srd(S_A,P_B1,3328); srd(S_B,P_W2,3328); srd(S_WS,P_WS,EPOCH+8192)
        e("v_lshlrev_b32 v3, 7, v0")
        e(f"buffer_load_dword v12, v3, s[{S_A}:{S_A+3}], 0 offen")
        e(f"buffer_load_dword v13, v3, s[{S_B}:{S_B+3}], 0 offen")
        e(f"s_mov_b32 s{sT}, {EPOCH}")
        e(f"buffer_load_dword v14, v3, s[{S_WS}:{S_WS+3}], s{sT} offen")
        lab("L_pf2")
        srd(S_W,P_W,1664*3328)
        if opt.foldx:
            e(f"s_cmp_lt_u32 s{sXCD}, 7")
            e(f"s_cselect_b32 s{sT+2}, 27, 26")
        else:
            e(f"s_cmp_lt_u32 s{sXCD}, 4")
            e(f"s_cselect_b32 s{sT+2}, 27, 26")
            e(f"s_cmp_lt_u32 s{sXCD}, 3")
            e(f"s_cselect_b32 s{sT+2}, 28, s{sT+2}")
        e(f"s_sub_u32 s{sT}, s{sSLOT}, s{sT+2}")
        e(f"s_sub_u32 s{sT+2}, 32, s{sT+2}")
        e(f"s_mul_i32 s{sT+1}, s{sXCD}, 26")
        e(f"s_lshr_b32 s{sT+1}, s{sT+1}, 3")
        e(f"s_lshl_b32 s{sT+1}, s{sT+1}, 7")
        for u in range(3):
            e(f"v_add_u32 v3, {512*u}, v0")
            e(f"v_mul_u32_u24 v3, s{sT+2}, v3")
            e(f"v_add_u32 v3, s{sT}, v3")
            e("v_lshrrev_b32 v4, 2, v3")
            if opt.pskip: e(f"v_add_u32 v4, {opt.pskip}, v4")
            e("v_and_b32 v3, 3, v3")
            e(f"v_mul_u32_u24 v4, 3328, v4")
            e("v_lshl_add_u32 v3, v3, 7, v4")
            e(f"buffer_load_dword v{9+u}, v3, s[{S_W}:{S_W+3}], s{sT+1} offen")
            if u<2 and opt.pbar: e("s_barrier")
    e("s_branch L_aux_done")
    sec("fold")
    lab("L_aux_done")
    e(f"s_cmp_lt_u32 s{sWAVE}, 4")
    e("s_cbranch_scc1 L_end")
    srd(S_TBL,P_TBL,128000); srd(S_IDX,P_IDX,106496)
    rowidx_load()
    e("s_waitcnt vmcnt(0)")
    e(f"v_mov_b32 v7, {FLAGS}")
    e("v_mov_b32 v8, 4")
    e("v_mov_b32 v9, 0")
    e(f"ds_write_b32 v7, v8 offset:{F_RED}")
    e(f"ds_write_b32 v7, v8 offset:{F_G}")
    e(f"ds_write_b32 v7, v8 offset:{F_S1}")
    e(f"ds_write_b32 v7, v9 offset:{F_CW}")
    e(f"ds_write_b32 v7, v9 offset:{F_CW2}")
    e("s_waitcnt vmcnt(0)")
    e("v_lshlrev_b32 v29, 7, v29")
    x0_addrs()
    e("s_branch L_help_x0")
    lab("L_end")
    e("s_endpgm")
    sec("tail")
    L.append('.section .rodata,"a"'); L.append(".p2align 6"); L.append(f".amdhsa_kernel {KN}")
    for x in ["next_free_vgpr 256","next_free_sgpr 102","accum_offset 256","group_segment_fixed_size 0","kernarg_size 88",
              "user_sgpr_count 2","user_sgpr_kernarg_segment_ptr 1","system_sgpr_workgroup_id_x 1"]:
        L.append("  .amdhsa_"+x)
    L.append(".end_amdhsa_kernel")
    return "\n".join(sum((SEC.get(k,[]) for k in order+["tail"]),[]))+"\n"

if __name__=="__main__":
    ap=argparse.ArgumentParser()
    ap.add_argument("-o",default="k.s")
    for k,d in dict(pp2=1,psl2=0,xp=0,xearly=0,hpz=0,hpc=-1,gp=-1,zb2=22,zpk=0,hprio=0,tpk=0,foldx=1,rp=1,pdel=0,cp26=1,pbar=1,lay=1,b2g=1,cst=0,bgate=0,look=2,bstep=0,bstep2=11,bn=1,dper=1,dpre=2,inv=0,zmid=15,csc=0,gateC=1,gq=0,rowx=1,wstop=5,wrest=16,bq=3,xlds=1,xgap=0,atid=1,xsl=0,pskip=128,d2late=1,wper=4,its=0,sched=0,nog=0,not_=0,c2=0,noz=0,lateb=1,dly=4,pst=0,enc=0,encrole=0,encwg=0,encwave=0,nocin=0,gcyc=0,psleep=4,now=0,stamps=0,pf=1,cpf=1,prio=1,bound=2000000,zsplit=15,zbar=17,nt0=6,tb=444,n0=4,nt1=4,d1late=0,trim=1,wsched=0).items(): ap.add_argument("--"+k,type=int,default=d)
    opt=ap.parse_args()
    assert opt.zsplit==opt.zmid
    for t in range(512): assert (t*5042)>>16==t//13, t
    open(opt.o,"w").write(build(opt))
```
